```python
import torch

def _softmax(x, axis=-1):
    return torch.softmax(x, dim=axis)
def _gelu(x):
    return torch.nn.functional.gelu(x, approximate="tanh")
def _silu(x):
    return torch.nn.functional.silu(x)
def _sigmoid(x):
    return torch.sigmoid(x)
def _layernorm(x, axis=-1, eps=1e-5):
    m = x.mean(dim=axis, keepdim=True)
    v = x.var(dim=axis, keepdim=True, unbiased=False)
    return (x - m) / torch.sqrt(v + eps)
def _scatter_add(tgt, idx, src, axis=0):
    return tgt.clone().index_add_(axis, idx, src)
def _segment_sum(src, seg, n):
    out = torch.zeros((n,) + src.shape[1:], dtype=src.dtype)
    return out.index_add_(0, seg, src)
def _pad(x, pw):
    flat = tuple(v for pair in reversed(pw) for v in pair)
    return torch.nn.functional.pad(x, flat)

kernel_name = 'standalone__dense_activation_silu__prompt'

def setup_inputs():

    _w = (lambda a: (lambda t: t.to(torch.bfloat16) if t.is_floating_point() else t)(torch.as_tensor(a)))
    B, S, D, F = 1, 2048, 1024, 3584
    return {
        "x": _w((lambda *s: torch.randn(*s, dtype=torch.bfloat16) * 0.1)(B, S, D)),
        "w1": _w((lambda *s: torch.randn(*s, dtype=torch.bfloat16) * 3.2)(D, F) * (D ** -0.5)),
        "w2": _w((lambda *s: torch.randn(*s, dtype=torch.bfloat16) * 3.2)(F, D) * (F ** -0.5)),
    }

def reference(x, w1, w2):
    h = torch.einsum("bsd,df->bsf", x, w1)
    h = _silu(h)
    out = torch.einsum("bsf,fd->bsd", h, w2)
    return out
```

```python
import sys

class Asm:
    def __init__(self): self.L=[]
    def __call__(self, s):
        for l in s.split("\n"): self.L.append(l)
    def text(self): return "\n".join(self.L)+"\n"

HEADER = """; Kernarg layout (48 bytes): 0 x[2048,1024] bf16, 8 w1[1024,3584] bf16, 16 w2[3584,1024] bf16,
"""
def kd(name, vgpr=256, sgpr=96):
    return f""".amdhsa_kernel {name}
  .amdhsa_next_free_vgpr {vgpr}
  .amdhsa_next_free_sgpr {sgpr}
  .amdhsa_accum_offset {(vgpr+3)//4*4}
  .amdhsa_group_segment_fixed_size 0
  .amdhsa_kernarg_size 48
  .amdhsa_user_sgpr_count 2
  .amdhsa_user_sgpr_kernarg_segment_ptr 1
  .amdhsa_system_sgpr_workgroup_id_x 1
.end_amdhsa_kernel"""

def srd(A, d, b, nbytes):
    A(f"s_mov_b32 s{d}, s{b}\ns_and_b32 s{d+1}, s{b+1}, 0xffff\ns_mov_b32 s{d+2}, {nbytes}\ns_mov_b32 s{d+3}, 0x20000")

def vr(a,n): return f"v[{a}:{a+n-1}]"

X_BYTES=2048*1024*2; W_BYTES=1024*3584*2; H_BYTES=2048*3584*2; O_BYTES=2048*1024*2
H_OFF=0
P_OFF=16<<20
T_OFF=64<<20

def stamp(A, on, idx, sreg_wg=2):
    if on: A(f"s_memtime s[{60+2*idx}:{61+2*idx}]")

def stamp_flush(A, on, n, rowreg, srd_ws, label):
    if not on: return
    A("s_waitcnt lgkmcnt(0)")
    A(f"s_lshl_b32 s59, s{rowreg}, 6\ns_add_u32 s59, s59, {T_OFF}")
    A("v_mov_b32 v1, 0")
    for k in range(n):
        A(f"v_mov_b32 v2, s{60+2*k}\nbuffer_store_dword v2, v1, s[{srd_ws}:{srd_ws+3}], s59 offen offset:{4*k}")
    A("s_waitcnt vmcnt(0)")

def interleave(mf, rd, start=0, per=1):
    out=[]; k=0
    for n,m in enumerate(mf):
        out.append(m)
        if n>=start:
            for _ in range(per):
                if k<len(rd): out.append(rd[k]); k+=1
    out += rd[k:]
    return out

def k1(A, diag=False, nst=16):
    STG=45056; WOFF=16384; R=3
    A(".p2align 8\n.globl k1_kernel\n.type k1_kernel,@function\nk1_kernel:")
    A("s_cmp_ge_u32 s2, 256\ns_cbranch_scc1 K1_end")
    A("s_load_dwordx4 s[4:7], s[0:1], 0\ns_load_dwordx2 s[8:9], s[0:1], 40")
    stamp(A,diag,0)
    A("v_lshrrev_b32 v1, 6, v0\nv_and_b32 v2, 63, v0")
    A("v_readfirstlane_b32 s3, v1")
    A("s_and_b32 s10, s2, 7\ns_lshr_b32 s11, s2, 3")
    A("s_lshr_b32 s12, s10, 1\ns_lshl_b32 s12, s12, 2\ns_lshr_b32 s13, s11, 3\ns_add_u32 s12, s12, s13")
    A("s_and_b32 s13, s10, 1\ns_lshl_b32 s13, s13, 3\ns_and_b32 s14, s11, 7\ns_add_u32 s13, s13, s14")
    A("s_waitcnt lgkmcnt(0)")
    srd(A,16,4,X_BYTES); srd(A,20,6,W_BYTES); srd(A,24,8,0x10000000)
    A("s_cmp_ge_u32 s3, 4\ns_cbranch_scc1 K1_prod")
    ACC=16; F=[(128,144),(172,188)]
    vX0,vX1,vE,vO = 4,5,6,7
    bX0,bX1,bE,bO = 8,9,10,11
    A("s_setprio 1")
    A("s_lshr_b32 s28, s3, 1\ns_and_b32 s29, s3, 1")
    A("v_and_b32 v3, 15, v2\nv_lshrrev_b32 v12, 4, v2")
    A("v_lshrrev_b32 v13, 1, v3\nv_xor_b32 v13, v13, v12\nv_lshlrev_b32 v13, 4, v13")
    A("s_lshl_b32 s30, s28, 13\nv_lshlrev_b32 v14, 7, v3\nv_add3_u32 v%d, v13, v14, s30"%bX0)
    A(f"v_xor_b32 v{bX1}, 64, v{bX0}")
    A("v_lshrrev_b32 v13, 1, v12\nv_mul_u32_u24 v13, 7168, v13")
    A("v_and_b32 v14, 1, v12\nv_lshlrev_b32 v15, 9, v14\nv_add_u32 v13, v13, v15")
    A("v_bfe_u32 v15, v2, 2, 2\nv_lshlrev_b32 v15, 6, v15\nv_add_u32 v13, v13, v15")
    A("v_and_b32 v15, 3, v2\nv_lshlrev_b32 v15, 3, v15\nv_add_u32 v13, v13, v15")
    A("v_xor_b32 v14, s29, v14\nv_lshlrev_b32 v14, 5, v14")
    A(f"s_mul_i32 s30, s29, 3072\ns_add_u32 s30, s30, {WOFF}\nv_add3_u32 v{bE}, v13, v14, s30")
    A(f"v_xor_b32 v14, 32, v14\ns_lshl_b32 s30, s29, 12\ns_add_u32 s30, s30, {WOFF}\nv_add3_u32 v{bO}, v13, v14, s30")
    for a,b in ((vX0,bX0),(vX1,bX1),(vE,bE),(vO,bO)): A(f"v_mov_b32 v{a}, v{b}")
    for r in range(112): A(f"v_mov_b32 v{ACC+r}, 0")
    def reads(u, fs):
        X,W=F[fs]; L=[]
        xs=[f"ds_read_b128 {vr(X+4*i,4)}, v{vX1 if u else vX0} offset:{i*2048}" for i in range(4)]
        ws=[]
        for j in range(7):
            for hh in range(2):
                ws.append(f"ds_read_b64_tr_b16 {vr(W+4*j+2*hh,2)}, v{vO if j&1 else vE} offset:{u*14336+(j>>1)*1024+hh*256}")
        return ws[0:2]+xs+ws[2:]
    def mfmas(fs):
        X,W=F[fs]
        return [f"v_mfma_f32_16x16x32_bf16 {vr(ACC+(j*4+i)*4,4)}, {vr(W+4*j,4)}, {vr(X+4*i,4)}, {vr(ACC+(j*4+i)*4,4)}" for j in range(7) for i in range(4)]
    A("s_mov_b32 s31, 0\ns_mov_b32 s32, 0")
    A("s_barrier")
    stamp(A,diag,1)
    for l in reads(0,0): A(l)
    A(".p2align 3\nK1_cloop:")
    A("s_waitcnt lgkmcnt(0)")
    for l in interleave(mfmas(0), reads(1,1)): A(l)
    A(f"s_add_u32 s32, s32, {STG}\ns_cmp_eq_u32 s32, {STG*R}\ns_cselect_b32 s32, 0, s32")
    A("s_waitcnt lgkmcnt(0)\ns_barrier")
    for a,b in ((vX0,bX0),(vE,bE),(vO,bO),(vX1,bX1)): A(f"v_add_u32 v{a}, s32, v{b}")
    for l in interleave(mfmas(1), reads(0,0)): A(l)
    A(f"s_add_u32 s31, s31, 1\ns_cmp_lt_u32 s31, {nst}\ns_cbranch_scc1 K1_cloop")
    stamp(A,diag,2)
    A("s_waitcnt lgkmcnt(0)\ns_nop 7\ns_nop 7")
    A("s_mul_i32 s33, s12, 112\ns_mul_i32 s34, s13, 7\ns_add_u32 s33, s33, s34\ns_lshl_b32 s33, s33, 3")
    A("s_lshl_b32 s34, s28, 2\ns_add_u32 s33, s33, s34\ns_lshl_b32 s33, s33, 10")
    A(f"s_add_u32 s33, s33, {H_OFF}")
    A("s_mov_b32 s36, 0xbfb8aa3b")
    A("v_lshlrev_b32 v3, 4, v2")
    A("s_lshl_b32 s35, s29, 3\nv_add_u32 v12, s35, v3")
    T=216
    def silu4(src, dst, t):
        for r in range(4): A(f"v_mul_f32 v{t+r}, s36, v{src+r}")
        for r in range(4): A(f"v_exp_f32 v{t+r}, v{t+r}")
        for r in range(4): A(f"v_add_f32 v{t+r}, 1.0, v{t+r}")
        for r in range(4): A(f"v_rcp_f32 v{t+r}, v{t+r}")
        for r in range(4): A(f"v_mul_f32 v{t+r}, v{t+r}, v{src+r}")
        A(f"v_cvt_pk_bf16_f32 v{dst}, v{t}, v{t+1}\nv_cvt_pk_bf16_f32 v{dst+1}, v{t+2}, v{t+3}")
    for wf in range(2):
        if wf==0: A("s_cmp_eq_u32 s29, 0\ns_cbranch_scc0 K1_epi1")
        else: A("K1_epi1:")
        n=0
        pairs=[(0,1,0),(2,3,1),(4,5,2)] if wf==0 else [(1,2,4),(3,4,5),(5,6,6)]
        lone=6 if wf==0 else 0
        for (ja,jb,t) in pairs:
            A(f"s_add_u32 s37, s33, {t*8192}")
            for i in range(4):
                D=128+(n%8)*4; n+=1
                silu4(ACC+(ja*4+i)*4, D, T); silu4(ACC+(jb*4+i)*4, D+2, T+4)
                A(f"buffer_store_dwordx4 {vr(D,4)}, v3, s[24:27], s37 offen offset:{i*1024}")
        A(f"s_add_u32 s37, s33, {3*8192}")
        for i in range(4):
            D=128+(n%8)*4; n+=1
            silu4(ACC+(lone*4+i)*4, D, T)
            A(f"buffer_store_dwordx2 {vr(D,2)}, v12, s[24:27], s37 offen offset:{i*1024}")
        if wf==0: A("s_branch K1_cdone")
    A("K1_cdone:")
    if diag:
        stamp(A,diag,3); A("s_waitcnt vmcnt(0)"); stamp(A,diag,4)
        A("s_lshl_b32 s58, s2, 3\ns_add_u32 s58, s58, s3")
        stamp_flush(A,diag,5,58,24,"c")
    A("s_endpgm")
    A("K1_prod:")
    A("s_sub_u32 s28, s3, 4")
    A("v_lshrrev_b32 v3, 3, v2\nv_and_b32 v4, 7, v2\nv_lshrrev_b32 v5, 4, v2\nv_xor_b32 v4, v4, v5\nv_lshlrev_b32 v4, 4, v4")
    A("v_lshlrev_b32 v3, 11, v3\nv_add_u32 v3, v3, v4")
    A("s_lshl_b32 s30, s12, 7\ns_lshl_b32 s31, s28, 5\ns_add_u32 s30, s30, s31\ns_lshl_b32 s30, s30, 11")
    A("v_add_u32 v8, s30, v3")
    A("v_xor_b32 v9, 64, v8\nv_add_u32 v9, 0x4000, v9\nv_add_u32 v10, 0x8000, v8\nv_add_u32 v11, 0x8000, v9")
    A("v_lshrrev_b32 v3, 2, v2\nv_mul_u32_u24 v3, 7168, v3\nv_and_b32 v4, 3, v2\nv_lshrrev_b32 v5, 5, v2\nv_lshlrev_b32 v5, 1, v5\nv_xor_b32 v4, v4, v5\nv_lshlrev_b32 v4, 4, v4\nv_add_u32 v12, v3, v4")
    A("s_mul_i32 s33, s28, %d\ns_mul_i32 s34, s13, 448\ns_add_u32 s33, s33, s34"%(16*7168))
    A("s_mov_b32 s32, 0")
    A("s_lshl_b32 s35, s28, 12")
    A(f"s_mul_i32 s36, s28, 7168\ns_add_u32 s36, s36, {WOFF}")
    A("s_mov_b32 s37, 0")
    def issue():
        A("s_add_u32 s38, s37, s35\ns_add_u32 s39, s37, s36")
        for t in range(7):
            A(f"s_add_u32 m0, s39, {t*960}\ns_nop 0")
            A(f"buffer_load_dwordx4 v12, s[20:23], s33 offen offset:{t*64} lds")
        for n in range(4):
            A(f"s_add_u32 m0, s38, {n*1024}\ns_nop 0")
            A(f"buffer_load_dwordx4 v{8+n}, s[16:19], s32 offen lds")
        A(f"s_add_u32 s32, s32, 128\ns_add_u32 s33, s33, {64*7168}")
        A(f"s_add_u32 s37, s37, {STG}\ns_cmp_eq_u32 s37, {STG*R}\ns_cselect_b32 s37, 0, s37")
    A("s_mov_b32 s31, 0")
    A("K1_pro:")
    issue()
    A("s_add_u32 s31, s31, 1\ns_cmp_lt_u32 s31, 3\ns_cbranch_scc1 K1_pro")
    stamp(A,diag,1)
    A("s_waitcnt vmcnt(22)")
    stamp(A,diag,2)
    A("s_barrier")
    A("s_mov_b32 s31, 0")
    A("K1_ploop:")
    A("s_waitcnt vmcnt(11)\ns_barrier")
    issue()
    A(f"s_add_u32 s31, s31, 1\ns_cmp_lt_u32 s31, {nst-3}\ns_cbranch_scc1 K1_ploop")
    A("s_waitcnt vmcnt(11)\ns_barrier\ns_waitcnt vmcnt(0)\ns_barrier\ns_barrier")
    if diag:
        stamp(A,diag,3); stamp(A,diag,4)
        A("s_lshl_b32 s58, s2, 3\ns_add_u32 s58, s58, s3")
        stamp_flush(A,diag,5,58,24,"p")
    A("K1_end:\ns_endpgm")

def k2(A, BN=64, diag=False, R=None):
    split = (BN==128)
    NT = BN//32
    JW = BN//32
    WST = 64*BN*2
    STG = 16384+WST; WOFF=16384
    R = R or (5 if BN==64 else 4)
    nst = 28 if split else 56
    NWI = WST//1024//4
    NI = 4+NWI
    A(".p2align 8\n.globl k2_kernel\n.type k2_kernel,@function\nk2_kernel:")
    A("s_cmp_ge_u32 s2, 256\ns_cbranch_scc1 K2_end")
    A("s_load_dwordx4 s[4:7], s[0:1], 16\ns_load_dwordx2 s[8:9], s[0:1], 40")
    stamp(A,diag,0)
    A("v_lshrrev_b32 v1, 6, v0\nv_and_b32 v2, 63, v0")
    A("v_readfirstlane_b32 s3, v1")
    A("s_and_b32 s10, s2, 7\ns_lshr_b32 s11, s2, 3")
    A("s_lshr_b32 s12, s10, 1\ns_lshl_b32 s12, s12, 2\ns_lshr_b32 s13, s11, 3\ns_add_u32 s12, s12, s13")
    A("s_and_b32 s15, s10, 1\ns_and_b32 s14, s11, 7")
    if split:
        A("s_lshl_b32 s13, s14, 8")
        A("s_mul_i32 s40, s15, 56")
    else:
        A("s_lshl_b32 s13, s15, 3\ns_add_u32 s13, s13, s14\ns_lshl_b32 s13, s13, 7")
        A("s_mov_b32 s40, 0")
    A("s_waitcnt lgkmcnt(0)")
    srd(A,16,4,W_BYTES); srd(A,20,6,O_BYTES); srd(A,24,8,0x10000000)
    A("s_cmp_ge_u32 s3, 4\ns_cbranch_scc1 K2_prod")
    ACC=16; NA=16*JW
    F=[(96,112),(144,160)]
    vH,vE,vO=4,6,7; bH,bE,bO=8,10,11
    A("s_setprio 1")
    A("s_lshr_b32 s28, s3, 1\ns_and_b32 s29, s3, 1")
    A("v_lshrrev_b32 v12, 4, v2")
    A(f"s_lshl_b32 s30, s28, 12\nv_lshlrev_b32 v13, 4, v2\nv_add_u32 v{bH}, s30, v13")
    A(f"v_lshrrev_b32 v13, 1, v12\nv_mul_u32_u24 v13, {NT*512}, v13")
    A("v_and_b32 v14, 1, v12\nv_lshlrev_b32 v15, 8, v14\nv_add_u32 v13, v13, v15")
    A("v_bfe_u32 v15, v2, 2, 2\nv_lshlrev_b32 v15, 6, v15\nv_add_u32 v13, v13, v15")
    A("v_and_b32 v15, 3, v2\nv_lshlrev_b32 v15, 3, v15\nv_add_u32 v13, v13, v15")
    A("v_lshlrev_b32 v14, 5, v14")
    A(f"s_mul_i32 s30, s29, {(NT//2)*512}\ns_add_u32 s30, s30, {WOFF}\nv_add3_u32 v{bE}, v13, v14, s30")
    A(f"v_xor_b32 v{bO}, 32, v{bE}")
    for a,b in ((vH,bH),(vE,bE),(vO,bO)): A(f"v_mov_b32 v{a}, v{b}")
    for r in range(NA): A(f"v_mov_b32 v{ACC+r}, 0")
    def reads(u, fs):
        X,W=F[fs]
        xs=[f"ds_read_b128 {vr(X+4*i,4)}, v{vH} offset:{u*8192+i*1024}" for i in range(4)]
        ws=[]
        for j in range(JW):
            for hh in range(2):
                ws.append(f"ds_read_b64_tr_b16 {vr(W+4*j+2*hh,2)}, v{vO if j&1 else vE} offset:{(4*u+2*hh)*NT*512+(j>>1)*512}")
        return ws[0:2]+xs+ws[2:]
    def mfmas(fs):
        X,W=F[fs]
        return [f"v_mfma_f32_16x16x32_bf16 {vr(ACC+(j*4+i)*4,4)}, {vr(W+4*j,4)}, {vr(X+4*i,4)}, {vr(ACC+(j*4+i)*4,4)}" for j in range(JW) for i in range(4)]
    per = 2 if BN==64 else 1
    A("s_mov_b32 s31, 0\ns_mov_b32 s32, 0")
    A("s_barrier")
    stamp(A,diag,1)
    for l in reads(0,0): A(l)
    A(".p2align 3\nK2_cloop:")
    A("s_waitcnt lgkmcnt(0)")
    for l in interleave(mfmas(0), reads(1,1), per=per): A(l)
    A(f"s_add_u32 s32, s32, {STG}\ns_cmp_eq_u32 s32, {STG*R}\ns_cselect_b32 s32, 0, s32")
    A("s_waitcnt lgkmcnt(0)\ns_barrier")
    for a,b in ((vE,bE),(vH,bH),(vO,bO)): A(f"v_add_u32 v{a}, s32, v{b}")
    for l in interleave(mfmas(1), reads(0,0), per=per): A(l)
    A(f"s_add_u32 s31, s31, 1\ns_cmp_lt_u32 s31, {nst}\ns_cbranch_scc1 K2_cloop")
    stamp(A,diag,2)
    A("s_waitcnt lgkmcnt(0)\ns_nop 7\ns_nop 7")
    if not split:
        A("v_and_b32 v3, 15, v2\nv_lshlrev_b32 v3, 11, v3\nv_lshlrev_b32 v12, 3, v12\nv_add_u32 v3, v3, v12")
        A("s_lshl_b32 s33, s12, 1\ns_add_u32 s33, s33, s28\ns_lshl_b32 s33, s33, 17\ns_add_u32 s33, s33, s13")
        A(f"s_lshl_b32 s34, s29, 6\ns_add_u32 s33, s33, s34")
        n=0
        for i in range(4):
            for j in range(JW):
                D=96+2*n; n+=1; S=ACC+(j*4+i)*4
                A(f"v_cvt_pk_bf16_f32 v{D}, v{S}, v{S+1}\nv_cvt_pk_bf16_f32 v{D+1}, v{S+2}, v{S+3}")
                A(f"buffer_store_dwordx2 {vr(D,2)}, v3, s[20:23], s33 offen offset:{j*32}")
            A("s_add_u32 s33, s33, 0x8000")
    else:
        A("s_lshl_b32 s33, s15, 4\ns_add_u32 s33, s33, s12\ns_lshl_b32 s33, s33, 3\ns_add_u32 s33, s33, s14\ns_lshl_b32 s33, s33, 2\ns_add_u32 s33, s33, s3\ns_lshl_b32 s33, s33, 14")
        A(f"s_add_u32 s33, s33, {P_OFF}")
        A("v_lshlrev_b32 v3, 4, v2")
        for b in range(16):
            if b%4==0 and b: A("s_add_u32 s33, s33, 4096")
            A(f"buffer_store_dwordx4 {vr(ACC+4*b,4)}, v3, s[24:27], s33 offen offset:{(b%4)*1024}")
    if diag:
        stamp(A,diag,3); A("s_waitcnt vmcnt(0)"); stamp(A,diag,4)
        A("s_lshl_b32 s58, s2, 3\ns_add_u32 s58, s58, s3\ns_add_u32 s58, s58, 2048")
        stamp_flush(A,diag,5,58,24,"c")
    A("s_endpgm")
    A("K2_prod:")
    A("s_sub_u32 s28, s3, 4")
    A("v_lshlrev_b32 v8, 4, v2")
    A("v_bfe_u32 v3, v2, 2, 3\nv_lshlrev_b32 v3, 11, v3\nv_lshrrev_b32 v4, 5, v2\nv_lshlrev_b32 v4, 6, v4\nv_add_u32 v3, v3, v4")
    A("v_and_b32 v4, 3, v2\nv_bfe_u32 v5, v2, 4, 1\nv_lshlrev_b32 v5, 1, v5\nv_xor_b32 v4, v4, v5\nv_lshlrev_b32 v4, 4, v4\nv_add_u32 v12, v3, v4")
    A("v_add_u32 v13, 0x4000, v12")
    A(f"s_mul_i32 s32, s12, 112\ns_add_u32 s32, s32, s40\ns_lshl_b32 s32, s32, 13\ns_lshl_b32 s30, s28, 12\ns_add_u32 s32, s32, s30\ns_add_u32 s32, s32, {H_OFF}")
    A("s_lshl_b32 s33, s40, 16\ns_lshl_b32 s30, s28, 15\ns_add_u32 s33, s33, s30\ns_add_u32 s33, s33, s13")
    A("s_lshl_b32 s35, s28, 12")
    A(f"s_mul_i32 s36, s28, {2*NT*512}\ns_add_u32 s36, s36, {WOFF}")
    A("s_mov_b32 s37, 0")
    def issue():
        A("s_add_u32 s39, s37, s36")
        for n in range(NWI):
            o,tb = (n,0) if BN==64 else (n>>1,n&1)
            A(f"s_add_u32 m0, s39, {o*NT*512+tb*(1024-128)}\ns_nop 0")
            A(f"buffer_load_dwordx4 v{12+o}, s[16:19], s33 offen offset:{tb*128} lds")
        A("s_add_u32 m0, s37, s35\ns_nop 0")
        for n in range(4):
            A(f"buffer_load_dwordx4 v8, s[24:27], s32 offen offset:{n*1024} lds")
        A(f"s_add_u32 s32, s32, 16384\ns_add_u32 s33, s33, {64*2048}")
        A(f"s_add_u32 s37, s37, {STG}\ns_cmp_eq_u32 s37, {STG*R}\ns_cselect_b32 s37, 0, s37")
    A("s_mov_b32 s31, 0")
    A("K2_pro:")
    issue()
    A(f"s_add_u32 s31, s31, 1\ns_cmp_lt_u32 s31, {R}\ns_cbranch_scc1 K2_pro")
    stamp(A,diag,1)
    A(f"s_waitcnt vmcnt({NI*(R-1)})")
    stamp(A,diag,2)
    A("s_barrier")
    A("s_mov_b32 s31, 0")
    A("K2_ploop:")
    A(f"s_waitcnt vmcnt({NI*(R-2)})\ns_barrier")
    issue()
    A(f"s_add_u32 s31, s31, 1\ns_cmp_lt_u32 s31, {nst-R}\ns_cbranch_scc1 K2_ploop")
    for k in range(R-2,-1,-1):
        A(f"s_waitcnt vmcnt({NI*k})\ns_barrier")
    A("s_barrier")
    if diag:
        stamp(A,diag,3); stamp(A,diag,4)
        A("s_lshl_b32 s58, s2, 3\ns_add_u32 s58, s58, s3\ns_add_u32 s58, s58, 2048")
        stamp_flush(A,diag,5,58,24,"p")
    A("K2_end:\ns_endpgm")
    return STG*R

def k3(A):
    A(".p2align 8\n.globl k3_kernel\n.type k3_kernel,@function\nk3_kernel:")
    A("s_cmp_ge_u32 s2, 128\ns_cbranch_scc1 K3_end")
    A("s_load_dwordx2 s[6:7], s[0:1], 24\ns_load_dwordx2 s[8:9], s[0:1], 40")
    A("v_lshrrev_b32 v1, 6, v0\nv_and_b32 v2, 63, v0\nv_readfirstlane_b32 s3, v1")
    A("s_waitcnt lgkmcnt(0)")
    srd(A,20,6,O_BYTES); srd(A,24,8,0x10000000)
    A(f"s_lshl_b32 s33, s2, 2\ns_add_u32 s33, s33, s3\ns_lshl_b32 s33, s33, 14\ns_add_u32 s33, s33, {P_OFF}\ns_add_u32 s34, s33, {128*65536}")
    A("v_lshlrev_b32 v3, 4, v2")
    for b in range(16):
        if b%4==0 and b: A("s_add_u32 s33, s33, 4096\ns_add_u32 s34, s34, 4096")
        A(f"buffer_load_dwordx4 {vr(16+4*b,4)}, v3, s[24:27], s33 offen offset:{(b%4)*1024}")
        A(f"buffer_load_dwordx4 {vr(80+4*b,4)}, v3, s[24:27], s34 offen offset:{(b%4)*1024}")
    A("s_lshr_b32 s12, s2, 3\ns_and_b32 s14, s2, 7\ns_lshr_b32 s28, s3, 1\ns_and_b32 s29, s3, 1")
    A("v_lshrrev_b32 v12, 4, v2\nv_and_b32 v3, 15, v2\nv_lshlrev_b32 v3, 11, v3\nv_lshlrev_b32 v12, 3, v12\nv_add_u32 v3, v3, v12")
    A("s_lshl_b32 s33, s12, 1\ns_add_u32 s33, s33, s28\ns_lshl_b32 s33, s33, 17\ns_lshl_b32 s13, s14, 8\ns_add_u32 s33, s33, s13\ns_lshl_b32 s34, s29, 7\ns_add_u32 s33, s33, s34")
    A("s_waitcnt vmcnt(0)")
    for r in range(64): A(f"v_add_f32 v{16+r}, v{16+r}, v{80+r}")
    n=0
    for i in range(4):
        for j in range(4):
            D=80+2*n; n+=1; S=16+(j*4+i)*4
            A(f"v_cvt_pk_bf16_f32 v{D}, v{S}, v{S+1}\nv_cvt_pk_bf16_f32 v{D+1}, v{S+2}, v{S+3}")
            A(f"buffer_store_dwordx2 {vr(D,2)}, v3, s[20:23], s33 offen offset:{j*32}")
        A("s_add_u32 s33, s33, 0x8000")
    A("K3_end:\ns_endpgm")

def build(BN=64, diag=False, extra_empty=0):
    B=Asm()
    k1(B,diag); lds2=k2(B,BN,diag)
    if BN==128: k3(B)
    if extra_empty:
        B(".p2align 8\n.globl e_kernel\n.type e_kernel,@function\ne_kernel:\ns_endpgm")
    A=Asm()
    A(HEADER.rstrip())
    A("; @launch kernel=k1_kernel grid=(256,1,1) block=(512,1,1) lds=135168")
    A(f"; @launch kernel=k2_kernel grid=(256,1,1) block=(512,1,1) lds={lds2}")
    if BN==128: A("; @launch kernel=k3_kernel grid=(128,1,1) block=(256,1,1) lds=0")
    for _ in range(extra_empty): A("; @launch kernel=e_kernel grid=(256,1,1) block=(64,1,1) lds=0")
    A('.amdgcn_target "amdgcn-amd-amdhsa--gfx950"\n.text')
    A(B.text().rstrip())
    A('.section .rodata,"a"')
    for n in ["k1_kernel","k2_kernel"]+(["k3_kernel"] if BN==128 else [])+(["e_kernel"] if extra_empty else []):
        A(".p2align 6"); A(kd(n))
    return A.text()

if __name__=="__main__":
    import argparse
    p=argparse.ArgumentParser(); p.add_argument("-o"); p.add_argument("--bn",type=int,default=64); p.add_argument("--diag",action="store_true"); p.add_argument("--empty",type=int,default=0)
    a=p.parse_args()
    open(a.o,"w").write(build(a.bn,a.diag,a.empty))
```

```python
import sys

class Asm:
    def __init__(self): self.L=[]
    def __call__(self, s):
        for l in s.split("\n"): self.L.append(l)
    def text(self): return "\n".join(self.L)+"\n"

HEADER = """; Kernarg layout (48 bytes): 0 x[2048,1024] bf16, 8 w1[1024,3584] bf16, 16 w2[3584,1024] bf16,
"""
def kd(name, vgpr=256, sgpr=96):
    return f""".amdhsa_kernel {name}
  .amdhsa_next_free_vgpr {vgpr}
  .amdhsa_next_free_sgpr {sgpr}
  .amdhsa_accum_offset {(vgpr+3)//4*4}
  .amdhsa_group_segment_fixed_size 0
  .amdhsa_kernarg_size 48
  .amdhsa_user_sgpr_count 2
  .amdhsa_user_sgpr_kernarg_segment_ptr 1
  .amdhsa_system_sgpr_workgroup_id_x 1
.end_amdhsa_kernel"""

def srd(A, d, b, nbytes):
    A(f"s_mov_b32 s{d}, s{b}\ns_and_b32 s{d+1}, s{b+1}, 0xffff\ns_mov_b32 s{d+2}, {nbytes}\ns_mov_b32 s{d+3}, 0x20000")

def vr(a,n): return f"v[{a}:{a+n-1}]"

X_BYTES=2048*1024*2; W_BYTES=1024*3584*2; H_BYTES=2048*3584*2; O_BYTES=2048*1024*2
H_OFF=0
P_OFF=16<<20
T_OFF=64<<20

def stamp(A, on, idx, sreg_wg=2):
    if on: A(f"s_memtime s[{60+2*idx}:{61+2*idx}]")

def stamp_flush(A, on, n, rowreg, srd_ws, label):
    if not on: return
    A("s_waitcnt lgkmcnt(0)")
    A(f"s_lshl_b32 s59, s{rowreg}, 6\ns_add_u32 s59, s59, {T_OFF}")
    A("v_mov_b32 v1, 0")
    for k in range(n):
        A(f"v_mov_b32 v2, s{60+2*k}\nbuffer_store_dword v2, v1, s[{srd_ws}:{srd_ws+3}], s59 offen offset:{4*k}")
    A("s_waitcnt vmcnt(0)")

def interleave(mf, rd, start=0, per=1):
    out=[]; k=0
    for n,m in enumerate(mf):
        out.append(m)
        if n>=start:
            for _ in range(per):
                if k<len(rd): out.append(rd[k]); k+=1
    out += rd[k:]
    return out

def k1(A, diag=False, nst=16):
    STG=45056; WOFF=16384; R=3
    A(".p2align 8\n.globl k1_kernel\n.type k1_kernel,@function\nk1_kernel:")
    A("s_cmp_ge_u32 s2, 256\ns_cbranch_scc1 K1_end")
    A("s_load_dwordx4 s[4:7], s[0:1], 0\ns_load_dwordx2 s[8:9], s[0:1], 40")
    stamp(A,diag,0)
    A("v_lshrrev_b32 v1, 6, v0\nv_and_b32 v2, 63, v0")
    A("v_readfirstlane_b32 s3, v1")
    A("s_and_b32 s10, s2, 7\ns_lshr_b32 s11, s2, 3")
    A("s_lshr_b32 s12, s10, 1\ns_lshl_b32 s12, s12, 2\ns_lshr_b32 s13, s11, 3\ns_add_u32 s12, s12, s13")
    A("s_and_b32 s13, s10, 1\ns_lshl_b32 s13, s13, 3\ns_and_b32 s14, s11, 7\ns_add_u32 s13, s13, s14")
    A("s_waitcnt lgkmcnt(0)")
    srd(A,16,4,X_BYTES); srd(A,20,6,W_BYTES); srd(A,24,8,0x10000000)
    A("s_cmp_ge_u32 s3, 4\ns_cbranch_scc1 K1_prod")
    ACC=16; F=[(128,144),(172,188)]
    vX0,vX1,vE,vO = 4,5,6,7
    bX0,bX1,bE,bO = 8,9,10,11
    A("s_setprio 1")
    A("s_lshr_b32 s28, s3, 1\ns_and_b32 s29, s3, 1")
    A("v_and_b32 v3, 15, v2\nv_lshrrev_b32 v12, 4, v2")
    A("v_lshrrev_b32 v13, 1, v3\nv_xor_b32 v13, v13, v12\nv_lshlrev_b32 v13, 4, v13")
    A("s_lshl_b32 s30, s28, 13\nv_lshlrev_b32 v14, 7, v3\nv_add3_u32 v%d, v13, v14, s30"%bX0)
    A(f"v_xor_b32 v{bX1}, 64, v{bX0}")
    A("v_lshrrev_b32 v13, 1, v12\nv_mul_u32_u24 v13, 7168, v13")
    A("v_and_b32 v14, 1, v12\nv_lshlrev_b32 v15, 9, v14\nv_add_u32 v13, v13, v15")
    A("v_bfe_u32 v15, v2, 2, 2\nv_lshlrev_b32 v15, 6, v15\nv_add_u32 v13, v13, v15")
    A("v_and_b32 v15, 3, v2\nv_lshlrev_b32 v15, 3, v15\nv_add_u32 v13, v13, v15")
    A("v_xor_b32 v14, s29, v14\nv_lshlrev_b32 v14, 5, v14")
    A(f"s_mul_i32 s30, s29, 3072\ns_add_u32 s30, s30, {WOFF}\nv_add3_u32 v{bE}, v13, v14, s30")
    A(f"v_xor_b32 v14, 32, v14\ns_lshl_b32 s30, s29, 12\ns_add_u32 s30, s30, {WOFF}\nv_add3_u32 v{bO}, v13, v14, s30")
    for a,b in ((vX0,bX0),(vX1,bX1),(vE,bE),(vO,bO)): A(f"v_mov_b32 v{a}, v{b}")
    for r in range(112): A(f"v_mov_b32 v{ACC+r}, 0")
    def reads(u, fs):
        X,W=F[fs]; L=[]
        xs=[f"ds_read_b128 {vr(X+4*i,4)}, v{vX1 if u else vX0} offset:{i*2048}" for i in range(4)]
        ws=[]
        for j in range(7):
            for hh in range(2):
                ws.append(f"ds_read_b64_tr_b16 {vr(W+4*j+2*hh,2)}, v{vO if j&1 else vE} offset:{u*14336+(j>>1)*1024+hh*256}")
        return ws[0:2]+xs+ws[2:]
    def mfmas(fs):
        X,W=F[fs]
        return [f"v_mfma_f32_16x16x32_bf16 {vr(ACC+(j*4+i)*4,4)}, {vr(W+4*j,4)}, {vr(X+4*i,4)}, {vr(ACC+(j*4+i)*4,4)}" for j in range(7) for i in range(4)]
    A("s_mov_b32 s31, 0\ns_mov_b32 s32, 0")
    A("s_barrier")
    stamp(A,diag,1)
    for l in reads(0,0): A(l)
    A(".p2align 3\nK1_cloop:")
    A("s_waitcnt lgkmcnt(0)")
    for l in interleave(mfmas(0), reads(1,1)): A(l)
    A(f"s_add_u32 s32, s32, {STG}\ns_cmp_eq_u32 s32, {STG*R}\ns_cselect_b32 s32, 0, s32")
    A("s_waitcnt lgkmcnt(0)\ns_barrier")
    for a,b in ((vX0,bX0),(vE,bE),(vO,bO),(vX1,bX1)): A(f"v_add_u32 v{a}, s32, v{b}")
    for l in interleave(mfmas(1), reads(0,0)): A(l)
    A(f"s_add_u32 s31, s31, 1\ns_cmp_lt_u32 s31, {nst}\ns_cbranch_scc1 K1_cloop")
    stamp(A,diag,2)
    A("s_waitcnt lgkmcnt(0)\ns_nop 7\ns_nop 7")
    A("s_mul_i32 s33, s12, 112\ns_mul_i32 s34, s13, 7\ns_add_u32 s33, s33, s34\ns_lshl_b32 s33, s33, 3")
    A("s_lshl_b32 s34, s28, 2\ns_add_u32 s33, s33, s34\ns_lshl_b32 s33, s33, 10")
    A(f"s_add_u32 s33, s33, {H_OFF}")
    A("s_mov_b32 s36, 0xbfb8aa3b")
    A("v_lshlrev_b32 v3, 4, v2")
    A("s_lshl_b32 s35, s29, 3\nv_add_u32 v12, s35, v3")
    T=216
    def silu4(src, dst, t):
        for r in range(4): A(f"v_mul_f32 v{t+r}, s36, v{src+r}")
        for r in range(4): A(f"v_exp_f32 v{t+r}, v{t+r}")
        for r in range(4): A(f"v_add_f32 v{t+r}, 1.0, v{t+r}")
        for r in range(4): A(f"v_rcp_f32 v{t+r}, v{t+r}")
        for r in range(4): A(f"v_mul_f32 v{t+r}, v{t+r}, v{src+r}")
        A(f"v_cvt_pk_bf16_f32 v{dst}, v{t}, v{t+1}\nv_cvt_pk_bf16_f32 v{dst+1}, v{t+2}, v{t+3}")
    for wf in range(2):
        if wf==0: A("s_cmp_eq_u32 s29, 0\ns_cbranch_scc0 K1_epi1")
        else: A("K1_epi1:")
        n=0
        pairs=[(0,1,0),(2,3,1),(4,5,2)] if wf==0 else [(1,2,4),(3,4,5),(5,6,6)]
        lone=6 if wf==0 else 0
        for (ja,jb,t) in pairs:
            A(f"s_add_u32 s37, s33, {t*8192}")
            for i in range(4):
                D=128+(n%8)*4; n+=1
                silu4(ACC+(ja*4+i)*4, D, T); silu4(ACC+(jb*4+i)*4, D+2, T+4)
                A(f"buffer_store_dwordx4 {vr(D,4)}, v3, s[24:27], s37 offen offset:{i*1024}")
        A(f"s_add_u32 s37, s33, {3*8192}")
        for i in range(4):
            D=128+(n%8)*4; n+=1
            silu4(ACC+(lone*4+i)*4, D, T)
            A(f"buffer_store_dwordx2 {vr(D,2)}, v12, s[24:27], s37 offen offset:{i*1024}")
        if wf==0: A("s_branch K1_cdone")
    A("K1_cdone:")
    if diag:
        stamp(A,diag,3); A("s_waitcnt vmcnt(0)"); stamp(A,diag,4)
        A("s_lshl_b32 s58, s2, 3\ns_add_u32 s58, s58, s3")
        stamp_flush(A,diag,5,58,24,"c")
    A("s_endpgm")
    A("K1_prod:")
    A("s_sub_u32 s28, s3, 4")
    A("v_lshrrev_b32 v3, 3, v2\nv_and_b32 v4, 7, v2\nv_lshrrev_b32 v5, 4, v2\nv_xor_b32 v4, v4, v5\nv_lshlrev_b32 v4, 4, v4")
    A("v_lshlrev_b32 v3, 11, v3\nv_add_u32 v3, v3, v4")
    A("s_lshl_b32 s30, s12, 7\ns_lshl_b32 s31, s28, 5\ns_add_u32 s30, s30, s31\ns_lshl_b32 s30, s30, 11")
    A("v_add_u32 v8, s30, v3")
    A("v_xor_b32 v9, 64, v8\nv_add_u32 v9, 0x4000, v9\nv_add_u32 v10, 0x8000, v8\nv_add_u32 v11, 0x8000, v9")
    A("v_lshrrev_b32 v3, 2, v2\nv_mul_u32_u24 v3, 7168, v3\nv_and_b32 v4, 3, v2\nv_lshrrev_b32 v5, 5, v2\nv_lshlrev_b32 v5, 1, v5\nv_xor_b32 v4, v4, v5\nv_lshlrev_b32 v4, 4, v4\nv_add_u32 v12, v3, v4")
    A("s_mul_i32 s33, s28, %d\ns_mul_i32 s34, s13, 448\ns_add_u32 s33, s33, s34"%(16*7168))
    A("s_mov_b32 s32, 0")
    A("s_lshl_b32 s35, s28, 12")
    A(f"s_mul_i32 s36, s28, 7168\ns_add_u32 s36, s36, {WOFF}")
    A("s_mov_b32 s37, 0")
    def issue():
        A("s_add_u32 s38, s37, s35\ns_add_u32 s39, s37, s36")
        for t in range(7):
            A(f"s_add_u32 m0, s39, {t*960}\ns_nop 0")
            A(f"buffer_load_dwordx4 v12, s[20:23], s33 offen offset:{t*64} lds")
        for n in range(4):
            A(f"s_add_u32 m0, s38, {n*1024}\ns_nop 0")
            A(f"buffer_load_dwordx4 v{8+n}, s[16:19], s32 offen lds")
        A(f"s_add_u32 s32, s32, 128\ns_add_u32 s33, s33, {64*7168}")
        A(f"s_add_u32 s37, s37, {STG}\ns_cmp_eq_u32 s37, {STG*R}\ns_cselect_b32 s37, 0, s37")
    A("s_mov_b32 s31, 0")
    A("K1_pro:")
    issue()
    A("s_add_u32 s31, s31, 1\ns_cmp_lt_u32 s31, 3\ns_cbranch_scc1 K1_pro")
    stamp(A,diag,1)
    A("s_waitcnt vmcnt(22)")
    stamp(A,diag,2)
    A("s_barrier")
    A("s_mov_b32 s31, 0")
    A("K1_ploop:")
    A("s_waitcnt vmcnt(11)\ns_barrier")
    issue()
    A(f"s_add_u32 s31, s31, 1\ns_cmp_lt_u32 s31, {nst-3}\ns_cbranch_scc1 K1_ploop")
    A("s_waitcnt vmcnt(11)\ns_barrier\ns_waitcnt vmcnt(0)\ns_barrier\ns_barrier")
    if diag:
        stamp(A,diag,3); stamp(A,diag,4)
        A("s_lshl_b32 s58, s2, 3\ns_add_u32 s58, s58, s3")
        stamp_flush(A,diag,5,58,24,"p")
    A("K1_end:\ns_endpgm")

def k2(A, BN=64, diag=False, R=None):
    split = (BN==128)
    NT = BN//32
    JW = BN//32
    WST = 64*BN*2
    STG = 16384+WST; WOFF=16384
    R = R or (5 if BN==64 else 4)
    nst = 28 if split else 56
    NWI = WST//1024//4
    NI = 4+NWI
    A(".p2align 8\n.globl k2_kernel\n.type k2_kernel,@function\nk2_kernel:")
    A("s_cmp_ge_u32 s2, 256\ns_cbranch_scc1 K2_end")
    A("s_load_dwordx4 s[4:7], s[0:1], 16\ns_load_dwordx2 s[8:9], s[0:1], 40")
    stamp(A,diag,0)
    A("v_lshrrev_b32 v1, 6, v0\nv_and_b32 v2, 63, v0")
    A("v_readfirstlane_b32 s3, v1")
    A("s_and_b32 s10, s2, 7\ns_lshr_b32 s11, s2, 3")
    A("s_lshr_b32 s12, s10, 1\ns_lshl_b32 s12, s12, 2\ns_lshr_b32 s13, s11, 3\ns_add_u32 s12, s12, s13")
    A("s_and_b32 s15, s10, 1\ns_and_b32 s14, s11, 7")
    if split:
        A("s_lshl_b32 s13, s14, 8")
        A("s_mul_i32 s40, s15, 56")
    else:
        A("s_lshl_b32 s13, s15, 3\ns_add_u32 s13, s13, s14\ns_lshl_b32 s13, s13, 7")
        A("s_mov_b32 s40, 0")
    A("s_waitcnt lgkmcnt(0)")
    srd(A,16,4,W_BYTES); srd(A,20,6,O_BYTES); srd(A,24,8,0x10000000)
    A("s_cmp_ge_u32 s3, 4\ns_cbranch_scc1 K2_prod")
    ACC=16; NA=16*JW
    F=[(96,112),(144,160)]
    vH,vE,vO=4,6,7; bH,bE,bO=8,10,11
    A("s_setprio 1")
    A("s_lshr_b32 s28, s3, 1\ns_and_b32 s29, s3, 1")
    A("v_lshrrev_b32 v12, 4, v2")
    A(f"s_lshl_b32 s30, s28, 12\nv_lshlrev_b32 v13, 4, v2\nv_add_u32 v{bH}, s30, v13")
    A(f"v_lshrrev_b32 v13, 1, v12\nv_mul_u32_u24 v13, {NT*512}, v13")
    A("v_and_b32 v14, 1, v12\nv_lshlrev_b32 v15, 8, v14\nv_add_u32 v13, v13, v15")
    A("v_bfe_u32 v15, v2, 2, 2\nv_lshlrev_b32 v15, 6, v15\nv_add_u32 v13, v13, v15")
    A("v_and_b32 v15, 3, v2\nv_lshlrev_b32 v15, 3, v15\nv_add_u32 v13, v13, v15")
    A("v_lshlrev_b32 v14, 5, v14")
    A(f"s_mul_i32 s30, s29, {(NT//2)*512}\ns_add_u32 s30, s30, {WOFF}\nv_add3_u32 v{bE}, v13, v14, s30")
    A(f"v_xor_b32 v{bO}, 32, v{bE}")
    for a,b in ((vH,bH),(vE,bE),(vO,bO)): A(f"v_mov_b32 v{a}, v{b}")
    for r in range(NA): A(f"v_mov_b32 v{ACC+r}, 0")
    def reads(u, fs):
        X,W=F[fs]
        xs=[f"ds_read_b128 {vr(X+4*i,4)}, v{vH} offset:{u*8192+i*1024}" for i in range(4)]
        ws=[]
        for j in range(JW):
            for hh in range(2):
                ws.append(f"ds_read_b64_tr_b16 {vr(W+4*j+2*hh,2)}, v{vO if j&1 else vE} offset:{(4*u+2*hh)*NT*512+(j>>1)*512}")
        return ws[0:2]+xs+ws[2:]
    def mfmas(fs):
        X,W=F[fs]
        return [f"v_mfma_f32_16x16x32_bf16 {vr(ACC+(j*4+i)*4,4)}, {vr(W+4*j,4)}, {vr(X+4*i,4)}, {vr(ACC+(j*4+i)*4,4)}" for j in range(JW) for i in range(4)]
    per = 2 if BN==64 else 1
    A("s_mov_b32 s31, 0\ns_mov_b32 s32, 0")
    A("s_barrier")
    stamp(A,diag,1)
    for l in reads(0,0): A(l)
    A(".p2align 3\nK2_cloop:")
    A("s_waitcnt lgkmcnt(0)")
    for l in interleave(mfmas(0), reads(1,1), per=per): A(l)
    A(f"s_add_u32 s32, s32, {STG}\ns_cmp_eq_u32 s32, {STG*R}\ns_cselect_b32 s32, 0, s32")
    A("s_waitcnt lgkmcnt(0)\ns_barrier")
    for a,b in ((vE,bE),(vH,bH),(vO,bO)): A(f"v_add_u32 v{a}, s32, v{b}")
    for l in interleave(mfmas(1), reads(0,0), per=per): A(l)
    A(f"s_add_u32 s31, s31, 1\ns_cmp_lt_u32 s31, {nst}\ns_cbranch_scc1 K2_cloop")
    stamp(A,diag,2)
    A("s_waitcnt lgkmcnt(0)\ns_nop 7\ns_nop 7")
    if not split:
        A("v_and_b32 v3, 15, v2\nv_lshlrev_b32 v3, 11, v3\nv_lshlrev_b32 v12, 3, v12\nv_add_u32 v3, v3, v12")
        A("s_lshl_b32 s33, s12, 1\ns_add_u32 s33, s33, s28\ns_lshl_b32 s33, s33, 17\ns_add_u32 s33, s33, s13")
        A(f"s_lshl_b32 s34, s29, 6\ns_add_u32 s33, s33, s34")
        n=0
        for i in range(4):
            for j in range(JW):
                D=96+2*n; n+=1; S=ACC+(j*4+i)*4
                A(f"v_cvt_pk_bf16_f32 v{D}, v{S}, v{S+1}\nv_cvt_pk_bf16_f32 v{D+1}, v{S+2}, v{S+3}")
                A(f"buffer_store_dwordx2 {vr(D,2)}, v3, s[20:23], s33 offen offset:{j*32}")
            A("s_add_u32 s33, s33, 0x8000")
    else:
        A("s_lshl_b32 s33, s15, 4\ns_add_u32 s33, s33, s12\ns_lshl_b32 s33, s33, 3\ns_add_u32 s33, s33, s14\ns_lshl_b32 s33, s33, 2\ns_add_u32 s33, s33, s3\ns_lshl_b32 s33, s33, 14")
        A(f"s_add_u32 s33, s33, {P_OFF}")
        A("v_lshlrev_b32 v3, 4, v2")
        for b in range(16):
            if b%4==0 and b: A("s_add_u32 s33, s33, 4096")
            A(f"buffer_store_dwordx4 {vr(ACC+4*b,4)}, v3, s[24:27], s33 offen offset:{(b%4)*1024}")
    if diag:
        stamp(A,diag,3); A("s_waitcnt vmcnt(0)"); stamp(A,diag,4)
        A("s_lshl_b32 s58, s2, 3\ns_add_u32 s58, s58, s3\ns_add_u32 s58, s58, 2048")
        stamp_flush(A,diag,5,58,24,"c")
    A("s_endpgm")
    A("K2_prod:")
    A("s_sub_u32 s28, s3, 4")
    A("v_lshlrev_b32 v8, 4, v2")
    A("v_bfe_u32 v3, v2, 2, 3\nv_lshlrev_b32 v3, 11, v3\nv_lshrrev_b32 v4, 5, v2\nv_lshlrev_b32 v4, 6, v4\nv_add_u32 v3, v3, v4")
    A("v_and_b32 v4, 3, v2\nv_bfe_u32 v5, v2, 4, 1\nv_lshlrev_b32 v5, 1, v5\nv_xor_b32 v4, v4, v5\nv_lshlrev_b32 v4, 4, v4\nv_add_u32 v12, v3, v4")
    A("v_add_u32 v13, 0x4000, v12")
    A(f"s_mul_i32 s32, s12, 112\ns_add_u32 s32, s32, s40\ns_lshl_b32 s32, s32, 13\ns_lshl_b32 s30, s28, 12\ns_add_u32 s32, s32, s30\ns_add_u32 s32, s32, {H_OFF}")
    A("s_lshl_b32 s33, s40, 16\ns_lshl_b32 s30, s28, 15\ns_add_u32 s33, s33, s30\ns_add_u32 s33, s33, s13")
    A("s_lshl_b32 s35, s28, 12")
    A(f"s_mul_i32 s36, s28, {2*NT*512}\ns_add_u32 s36, s36, {WOFF}")
    A("s_mov_b32 s37, 0")
    def issue():
        A("s_add_u32 s39, s37, s36")
        for n in range(NWI):
            o,tb = (n,0) if BN==64 else (n>>1,n&1)
            A(f"s_add_u32 m0, s39, {o*NT*512+tb*(1024-128)}\ns_nop 0")
            A(f"buffer_load_dwordx4 v{12+o}, s[16:19], s33 offen offset:{tb*128} lds")
        A("s_add_u32 m0, s37, s35\ns_nop 0")
        for n in range(4):
            A(f"buffer_load_dwordx4 v8, s[24:27], s32 offen offset:{n*1024} lds")
        A(f"s_add_u32 s32, s32, 16384\ns_add_u32 s33, s33, {64*2048}")
        A(f"s_add_u32 s37, s37, {STG}\ns_cmp_eq_u32 s37, {STG*R}\ns_cselect_b32 s37, 0, s37")
    A("s_mov_b32 s31, 0")
    A("K2_pro:")
    issue()
    A(f"s_add_u32 s31, s31, 1\ns_cmp_lt_u32 s31, {R}\ns_cbranch_scc1 K2_pro")
    stamp(A,diag,1)
    A(f"s_waitcnt vmcnt({NI*(R-1)})")
    stamp(A,diag,2)
    A("s_barrier")
    A("s_mov_b32 s31, 0")
    A("K2_ploop:")
    A(f"s_waitcnt vmcnt({NI*(R-2)})\ns_barrier")
    issue()
    A(f"s_add_u32 s31, s31, 1\ns_cmp_lt_u32 s31, {nst-R}\ns_cbranch_scc1 K2_ploop")
    for k in range(R-2,-1,-1):
        A(f"s_waitcnt vmcnt({NI*k})\ns_barrier")
    A("s_barrier")
    if diag:
        stamp(A,diag,3); stamp(A,diag,4)
        A("s_lshl_b32 s58, s2, 3\ns_add_u32 s58, s58, s3\ns_add_u32 s58, s58, 2048")
        stamp_flush(A,diag,5,58,24,"p")
    A("K2_end:\ns_endpgm")
    return STG*R

def k3(A):
    A(".p2align 8\n.globl k3_kernel\n.type k3_kernel,@function\nk3_kernel:")
    A("s_cmp_ge_u32 s2, 128\ns_cbranch_scc1 K3_end")
    A("s_load_dwordx2 s[6:7], s[0:1], 24\ns_load_dwordx2 s[8:9], s[0:1], 40")
    A("v_lshrrev_b32 v1, 6, v0\nv_and_b32 v2, 63, v0\nv_readfirstlane_b32 s3, v1")
    A("s_waitcnt lgkmcnt(0)")
    srd(A,20,6,O_BYTES); srd(A,24,8,0x10000000)
    A(f"s_lshl_b32 s33, s2, 2\ns_add_u32 s33, s33, s3\ns_lshl_b32 s33, s33, 14\ns_add_u32 s33, s33, {P_OFF}\ns_add_u32 s34, s33, {128*65536}")
    A("v_lshlrev_b32 v3, 4, v2")
    for b in range(16):
        if b%4==0 and b: A("s_add_u32 s33, s33, 4096\ns_add_u32 s34, s34, 4096")
        A(f"buffer_load_dwordx4 {vr(16+4*b,4)}, v3, s[24:27], s33 offen offset:{(b%4)*1024}")
        A(f"buffer_load_dwordx4 {vr(80+4*b,4)}, v3, s[24:27], s34 offen offset:{(b%4)*1024}")
    A("s_lshr_b32 s12, s2, 3\ns_and_b32 s14, s2, 7\ns_lshr_b32 s28, s3, 1\ns_and_b32 s29, s3, 1")
    A("v_lshrrev_b32 v12, 4, v2\nv_and_b32 v3, 15, v2\nv_lshlrev_b32 v3, 11, v3\nv_lshlrev_b32 v12, 3, v12\nv_add_u32 v3, v3, v12")
    A("s_lshl_b32 s33, s12, 1\ns_add_u32 s33, s33, s28\ns_lshl_b32 s33, s33, 17\ns_lshl_b32 s13, s14, 8\ns_add_u32 s33, s33, s13\ns_lshl_b32 s34, s29, 7\ns_add_u32 s33, s33, s34")
    A("s_waitcnt vmcnt(0)")
    for r in range(64): A(f"v_add_f32 v{16+r}, v{16+r}, v{80+r}")
    n=0
    for i in range(4):
        for j in range(4):
            D=80+2*n; n+=1; S=16+(j*4+i)*4
            A(f"v_cvt_pk_bf16_f32 v{D}, v{S}, v{S+1}\nv_cvt_pk_bf16_f32 v{D+1}, v{S+2}, v{S+3}")
            A(f"buffer_store_dwordx2 {vr(D,2)}, v3, s[20:23], s33 offen offset:{j*32}")
        A("s_add_u32 s33, s33, 0x8000")
    A("K3_end:\ns_endpgm")

def pf(A):
    A(".p2align 8\n.globl pf_kernel\n.type pf_kernel,@function\npf_kernel:")
    A("s_cmp_ge_u32 s2, 256\ns_cbranch_scc1 PF_end")
    A("s_load_dwordx4 s[4:7], s[0:1], 0\ns_load_dwordx2 s[8:9], s[0:1], 16")
    A("s_lshl_b32 s3, s2, 8\nv_add_u32 v1, s3, v0\nv_lshlrev_b32 v1, 7, v1")
    A("s_waitcnt lgkmcnt(0)")
    srd(A,16,4,X_BYTES); srd(A,20,6,W_BYTES); srd(A,24,8,W_BYTES)
    A("buffer_load_dword v2, v1, s[16:19], 0 offen\nbuffer_load_dword v3, v1, s[20:23], 0 offen\nbuffer_load_dword v4, v1, s[24:27], 0 offen")
    A("s_waitcnt vmcnt(0)")
    A("PF_end:\ns_endpgm")
def pw(A):
    A(".p2align 8\n.globl pw_kernel\n.type pw_kernel,@function\npw_kernel:")
    A("s_cmp_ge_u32 s2, 256\ns_cbranch_scc1 PW_end")
    A("s_load_dwordx2 s[8:9], s[0:1], 40")
    A("s_lshl_b32 s3, s2, 9\nv_add_u32 v1, s3, v0\nv_lshlrev_b32 v1, 7, v1")
    A("s_waitcnt lgkmcnt(0)")
    srd(A,24,8,H_BYTES)
    A("buffer_load_dword v4, v1, s[24:27], 0 offen")
    A("s_waitcnt vmcnt(0)")
    A("PW_end:\ns_endpgm")

def build(BN=64, diag=False, extra_empty=0, order=None):
    B=Asm()
    k1(B,diag); lds2=k2(B,BN,diag)
    if order:
        pf(B); pw(B)
        A=Asm(); A(HEADER.rstrip())
        cfg={'1':"k1_kernel grid=(256,1,1) block=(512,1,1) lds=135168",'2':f"k2_kernel grid=(256,1,1) block=(512,1,1) lds={lds2}",
             'p':"pf_kernel grid=(256,1,1) block=(256,1,1) lds=0",'w':"pw_kernel grid=(256,1,1) block=(512,1,1) lds=0"}
        for c in order: A("; @launch kernel="+cfg[c])
        A('.amdgcn_target "amdgcn-amd-amdhsa--gfx950"\n.text')
        A(B.text().rstrip())
        A('.section .rodata,"a"')
        for n in ["k1_kernel","k2_kernel","pf_kernel","pw_kernel"]:
            A(".p2align 6"); A(kd(n))
        return A.text()
    if BN==128: k3(B)
    if extra_empty:
        B(".p2align 8\n.globl e_kernel\n.type e_kernel,@function\ne_kernel:\ns_endpgm")
    A=Asm()
    A(HEADER.rstrip())
    A("; @launch kernel=k1_kernel grid=(256,1,1) block=(512,1,1) lds=135168")
    A(f"; @launch kernel=k2_kernel grid=(256,1,1) block=(512,1,1) lds={lds2}")
    if BN==128: A("; @launch kernel=k3_kernel grid=(128,1,1) block=(256,1,1) lds=0")
    for _ in range(extra_empty): A("; @launch kernel=e_kernel grid=(256,1,1) block=(64,1,1) lds=0")
    A('.amdgcn_target "amdgcn-amd-amdhsa--gfx950"\n.text')
    A(B.text().rstrip())
    A('.section .rodata,"a"')
    for n in ["k1_kernel","k2_kernel"]+(["k3_kernel"] if BN==128 else [])+(["e_kernel"] if extra_empty else []):
        A(".p2align 6"); A(kd(n))
    return A.text()

if __name__=="__main__":
    import argparse
    p=argparse.ArgumentParser(); p.add_argument("-o"); p.add_argument("--bn",type=int,default=64); p.add_argument("--diag",action="store_true"); p.add_argument("--empty",type=int,default=0); p.add_argument("--order")
    a=p.parse_args()
    open(a.o,"w").write(build(a.bn,a.diag,a.empty,a.order))
```

```python
import sys

class Asm:
    def __init__(self): self.L=[]
    def __call__(self, s):
        for l in s.split("\n"): self.L.append(l)
    def text(self): return "\n".join(self.L)+"\n"

HEADER = """; Kernarg layout (48 bytes): 0 x[2048,1024] bf16, 8 w1[1024,3584] bf16, 16 w2[3584,1024] bf16,
"""
def kd(name, vgpr=256, sgpr=96):
    return f""".amdhsa_kernel {name}
  .amdhsa_next_free_vgpr {vgpr}
  .amdhsa_next_free_sgpr {sgpr}
  .amdhsa_accum_offset {(vgpr+3)//4*4}
  .amdhsa_group_segment_fixed_size 0
  .amdhsa_kernarg_size 48
  .amdhsa_user_sgpr_count 2
  .amdhsa_user_sgpr_kernarg_segment_ptr 1
  .amdhsa_system_sgpr_workgroup_id_x 1
.end_amdhsa_kernel"""

def srd(A, d, b, nbytes):
    A(f"s_mov_b32 s{d}, s{b}\ns_and_b32 s{d+1}, s{b+1}, 0xffff\ns_mov_b32 s{d+2}, {nbytes}\ns_mov_b32 s{d+3}, 0x20000")

def vr(a,n): return f"v[{a}:{a+n-1}]"

X_BYTES=2048*1024*2; W_BYTES=1024*3584*2; H_BYTES=2048*3584*2; O_BYTES=2048*1024*2
H_OFF=0
P_OFF=16<<20
T_OFF=64<<20

def stamp(A, on, idx, sreg_wg=2):
    if on: A(f"s_memtime s[{60+2*idx}:{61+2*idx}]")

def stamp_flush(A, on, n, rowreg, srd_ws, label):
    if not on: return
    A("s_waitcnt lgkmcnt(0)")
    A(f"s_lshl_b32 s59, s{rowreg}, 6\ns_add_u32 s59, s59, {T_OFF}")
    A("v_mov_b32 v1, 0")
    for k in range(n):
        A(f"v_mov_b32 v2, s{60+2*k}\nbuffer_store_dword v2, v1, s[{srd_ws}:{srd_ws+3}], s59 offen offset:{4*k}")
    A("s_waitcnt vmcnt(0)")

def interleave(mf, rd, start=0, per=1):
    out=[]; k=0
    for n,m in enumerate(mf):
        out.append(m)
        if n>=start:
            for _ in range(per):
                if k<len(rd): out.append(rd[k]); k+=1
    out += rd[k:]
    return out

def k1(A, diag=False, nst=16):
    STG=45056; WOFF=16384; R=3
    A(".p2align 8\n.globl k1_kernel\n.type k1_kernel,@function\nk1_kernel:")
    A("s_cmp_ge_u32 s2, 256\ns_cbranch_scc1 K1_end")
    A("s_load_dwordx4 s[4:7], s[0:1], 0\ns_load_dwordx2 s[8:9], s[0:1], 40")
    stamp(A,diag,0)
    A("v_lshrrev_b32 v1, 6, v0\nv_and_b32 v2, 63, v0")
    A("v_readfirstlane_b32 s3, v1")
    A("s_and_b32 s10, s2, 7\ns_lshr_b32 s11, s2, 3")
    A("s_lshr_b32 s12, s10, 1\ns_lshl_b32 s12, s12, 2\ns_lshr_b32 s13, s11, 3\ns_add_u32 s12, s12, s13")
    A("s_and_b32 s13, s10, 1\ns_lshl_b32 s13, s13, 3\ns_and_b32 s14, s11, 7\ns_add_u32 s13, s13, s14")
    A("s_waitcnt lgkmcnt(0)")
    if diag: A("s_memrealtime s[72:73]")
    stamp(A,diag,5)
    srd(A,16,4,X_BYTES); srd(A,20,6,W_BYTES); srd(A,24,8,0x10000000)
    A("s_cmp_ge_u32 s3, 4\ns_cbranch_scc1 K1_prod")
    ACC=16; F=[(128,144),(172,188)]
    vX0,vX1,vE,vO = 4,5,6,7
    bX0,bX1,bE,bO = 8,9,10,11
    A("s_setprio 1")
    A("s_lshr_b32 s28, s3, 1\ns_and_b32 s29, s3, 1")
    A("v_and_b32 v3, 15, v2\nv_lshrrev_b32 v12, 4, v2")
    A("v_lshrrev_b32 v13, 1, v3\nv_xor_b32 v13, v13, v12\nv_lshlrev_b32 v13, 4, v13")
    A("s_lshl_b32 s30, s28, 13\nv_lshlrev_b32 v14, 7, v3\nv_add3_u32 v%d, v13, v14, s30"%bX0)
    A(f"v_xor_b32 v{bX1}, 64, v{bX0}")
    A("v_lshrrev_b32 v13, 1, v12\nv_mul_u32_u24 v13, 7168, v13")
    A("v_and_b32 v14, 1, v12\nv_lshlrev_b32 v15, 9, v14\nv_add_u32 v13, v13, v15")
    A("v_bfe_u32 v15, v2, 2, 2\nv_lshlrev_b32 v15, 6, v15\nv_add_u32 v13, v13, v15")
    A("v_and_b32 v15, 3, v2\nv_lshlrev_b32 v15, 3, v15\nv_add_u32 v13, v13, v15")
    A("v_xor_b32 v14, s29, v14\nv_lshlrev_b32 v14, 5, v14")
    A(f"s_mul_i32 s30, s29, 3072\ns_add_u32 s30, s30, {WOFF}\nv_add3_u32 v{bE}, v13, v14, s30")
    A(f"v_xor_b32 v14, 32, v14\ns_lshl_b32 s30, s29, 12\ns_add_u32 s30, s30, {WOFF}\nv_add3_u32 v{bO}, v13, v14, s30")
    for a,b in ((vX0,bX0),(vX1,bX1),(vE,bE),(vO,bO)): A(f"v_mov_b32 v{a}, v{b}")
    for r in range(112): A(f"v_mov_b32 v{ACC+r}, 0")
    def reads(u, fs):
        X,W=F[fs]; L=[]
        xs=[f"ds_read_b128 {vr(X+4*i,4)}, v{vX1 if u else vX0} offset:{i*2048}" for i in range(4)]
        ws=[]
        for j in range(7):
            for hh in range(2):
                ws.append(f"ds_read_b64_tr_b16 {vr(W+4*j+2*hh,2)}, v{vO if j&1 else vE} offset:{u*14336+(j>>1)*1024+hh*256}")
        return ws[0:2]+xs+ws[2:]
    def mfmas(fs):
        X,W=F[fs]
        return [f"v_mfma_f32_16x16x32_bf16 {vr(ACC+(j*4+i)*4,4)}, {vr(W+4*j,4)}, {vr(X+4*i,4)}, {vr(ACC+(j*4+i)*4,4)}" for j in range(7) for i in range(4)]
    A("s_mov_b32 s31, 0\ns_mov_b32 s32, 0")
    A("s_barrier")
    stamp(A,diag,1)
    for l in reads(0,0): A(l)
    A(".p2align 3\nK1_cloop:")
    A("s_waitcnt lgkmcnt(0)")
    for l in interleave(mfmas(0), reads(1,1)): A(l)
    A(f"s_add_u32 s32, s32, {STG}\ns_cmp_eq_u32 s32, {STG*R}\ns_cselect_b32 s32, 0, s32")
    A("s_waitcnt lgkmcnt(0)\ns_barrier")
    for a,b in ((vX0,bX0),(vE,bE),(vO,bO),(vX1,bX1)): A(f"v_add_u32 v{a}, s32, v{b}")
    for l in interleave(mfmas(1), reads(0,0)): A(l)
    A(f"s_add_u32 s31, s31, 1\ns_cmp_lt_u32 s31, {nst}\ns_cbranch_scc1 K1_cloop")
    stamp(A,diag,2)
    A("s_waitcnt lgkmcnt(0)\ns_nop 7\ns_nop 7")
    A("s_mul_i32 s33, s12, 112\ns_mul_i32 s34, s13, 7\ns_add_u32 s33, s33, s34\ns_lshl_b32 s33, s33, 3")
    A("s_lshl_b32 s34, s28, 2\ns_add_u32 s33, s33, s34\ns_lshl_b32 s33, s33, 10")
    A(f"s_add_u32 s33, s33, {H_OFF}")
    A("s_mov_b32 s36, 0xbfb8aa3b")
    A("v_lshlrev_b32 v3, 4, v2")
    A("s_lshl_b32 s35, s29, 3\nv_add_u32 v12, s35, v3")
    T=216
    def silu4(src, dst, t):
        for r in range(4): A(f"v_mul_f32 v{t+r}, s36, v{src+r}")
        for r in range(4): A(f"v_exp_f32 v{t+r}, v{t+r}")
        for r in range(4): A(f"v_add_f32 v{t+r}, 1.0, v{t+r}")
        for r in range(4): A(f"v_rcp_f32 v{t+r}, v{t+r}")
        for r in range(4): A(f"v_mul_f32 v{t+r}, v{t+r}, v{src+r}")
        A(f"v_cvt_pk_bf16_f32 v{dst}, v{t}, v{t+1}\nv_cvt_pk_bf16_f32 v{dst+1}, v{t+2}, v{t+3}")
    for wf in range(2):
        if wf==0: A("s_cmp_eq_u32 s29, 0\ns_cbranch_scc0 K1_epi1")
        else: A("K1_epi1:")
        n=0
        pairs=[(0,1,0),(2,3,1),(4,5,2)] if wf==0 else [(1,2,4),(3,4,5),(5,6,6)]
        lone=6 if wf==0 else 0
        for (ja,jb,t) in pairs:
            A(f"s_add_u32 s37, s33, {t*8192}")
            for i in range(4):
                D=128+(n%8)*4; n+=1
                silu4(ACC+(ja*4+i)*4, D, T); silu4(ACC+(jb*4+i)*4, D+2, T+4)
                A(f"buffer_store_dwordx4 {vr(D,4)}, v3, s[24:27], s37 offen offset:{i*1024}")
        A(f"s_add_u32 s37, s33, {3*8192}")
        for i in range(4):
            D=128+(n%8)*4; n+=1
            silu4(ACC+(lone*4+i)*4, D, T)
            A(f"buffer_store_dwordx2 {vr(D,2)}, v12, s[24:27], s37 offen offset:{i*1024}")
        if wf==0: A("s_branch K1_cdone")
    A("K1_cdone:")
    if diag:
        stamp(A,diag,3); A("s_waitcnt vmcnt(0)"); stamp(A,diag,4); A("s_memrealtime s[74:75]")
        A("s_lshl_b32 s58, s2, 3\ns_add_u32 s58, s58, s3")
        stamp_flush(A,diag,8,58,24,"c")
    A("s_endpgm")
    A("K1_prod:")
    A("s_sub_u32 s28, s3, 4")
    A("v_lshrrev_b32 v3, 3, v2\nv_and_b32 v4, 7, v2\nv_lshrrev_b32 v5, 4, v2\nv_xor_b32 v4, v4, v5\nv_lshlrev_b32 v4, 4, v4")
    A("v_lshlrev_b32 v3, 11, v3\nv_add_u32 v3, v3, v4")
    A("s_lshl_b32 s30, s12, 7\ns_lshl_b32 s31, s28, 5\ns_add_u32 s30, s30, s31\ns_lshl_b32 s30, s30, 11")
    A("v_add_u32 v8, s30, v3")
    A("v_xor_b32 v9, 64, v8\nv_add_u32 v9, 0x4000, v9\nv_add_u32 v10, 0x8000, v8\nv_add_u32 v11, 0x8000, v9")
    A("v_lshrrev_b32 v3, 2, v2\nv_mul_u32_u24 v3, 7168, v3\nv_and_b32 v4, 3, v2\nv_lshrrev_b32 v5, 5, v2\nv_lshlrev_b32 v5, 1, v5\nv_xor_b32 v4, v4, v5\nv_lshlrev_b32 v4, 4, v4\nv_add_u32 v12, v3, v4")
    A("s_mul_i32 s33, s28, %d\ns_mul_i32 s34, s13, 448\ns_add_u32 s33, s33, s34"%(16*7168))
    A("s_mov_b32 s32, 0")
    A("s_lshl_b32 s35, s28, 12")
    A(f"s_mul_i32 s36, s28, 7168\ns_add_u32 s36, s36, {WOFF}")
    A("s_mov_b32 s37, 0")
    def issue():
        A("s_add_u32 s38, s37, s35\ns_add_u32 s39, s37, s36")
        for t in range(7):
            A(f"s_add_u32 m0, s39, {t*960}\ns_nop 0")
            A(f"buffer_load_dwordx4 v12, s[20:23], s33 offen offset:{t*64} lds")
        for n in range(4):
            A(f"s_add_u32 m0, s38, {n*1024}\ns_nop 0")
            A(f"buffer_load_dwordx4 v{8+n}, s[16:19], s32 offen lds")
        A(f"s_add_u32 s32, s32, 128\ns_add_u32 s33, s33, {64*7168}")
        A(f"s_add_u32 s37, s37, {STG}\ns_cmp_eq_u32 s37, {STG*R}\ns_cselect_b32 s37, 0, s37")
    stamp(A,diag,4)
    A("s_mov_b32 s31, 0")
    A("K1_pro:")
    issue()
    A("s_add_u32 s31, s31, 1\ns_cmp_lt_u32 s31, 3\ns_cbranch_scc1 K1_pro")
    stamp(A,diag,1)
    A("s_waitcnt vmcnt(22)")
    stamp(A,diag,2)
    A("s_barrier")
    A("s_mov_b32 s31, 0")
    A("K1_ploop:")
    A("s_waitcnt vmcnt(11)\ns_barrier")
    issue()
    A(f"s_add_u32 s31, s31, 1\ns_cmp_lt_u32 s31, {nst-3}\ns_cbranch_scc1 K1_ploop")
    A("s_waitcnt vmcnt(11)\ns_barrier\ns_waitcnt vmcnt(0)\ns_barrier\ns_barrier")
    if diag:
        stamp(A,diag,3); A("s_memrealtime s[74:75]")
        A("s_lshl_b32 s58, s2, 3\ns_add_u32 s58, s58, s3")
        stamp_flush(A,diag,8,58,24,"p")
    A("K1_end:\ns_endpgm")

def k2(A, BN=64, diag=False, R=None):
    split = (BN==128)
    NT = BN//32
    JW = BN//32
    WST = 64*BN*2
    STG = 16384+WST; WOFF=16384
    R = R or (5 if BN==64 else 4)
    nst = 28 if split else 56
    NWI = WST//1024//4
    NI = 4+NWI
    A(".p2align 8\n.globl k2_kernel\n.type k2_kernel,@function\nk2_kernel:")
    A("s_cmp_ge_u32 s2, 256\ns_cbranch_scc1 K2_end")
    A("s_load_dwordx4 s[4:7], s[0:1], 16\ns_load_dwordx2 s[8:9], s[0:1], 40")
    stamp(A,diag,0)
    A("v_lshrrev_b32 v1, 6, v0\nv_and_b32 v2, 63, v0")
    A("v_readfirstlane_b32 s3, v1")
    A("s_and_b32 s10, s2, 7\ns_lshr_b32 s11, s2, 3")
    A("s_lshr_b32 s12, s10, 1\ns_lshl_b32 s12, s12, 2\ns_lshr_b32 s13, s11, 3\ns_add_u32 s12, s12, s13")
    A("s_and_b32 s15, s10, 1\ns_and_b32 s14, s11, 7")
    if split:
        A("s_lshl_b32 s13, s14, 8")
        A("s_mul_i32 s40, s15, 56")
    else:
        A("s_lshl_b32 s13, s15, 3\ns_add_u32 s13, s13, s14\ns_lshl_b32 s13, s13, 7")
        A("s_mov_b32 s40, 0")
    A("s_waitcnt lgkmcnt(0)")
    if diag: A("s_memrealtime s[72:73]")
    stamp(A,diag,5)
    srd(A,16,4,W_BYTES); srd(A,20,6,O_BYTES); srd(A,24,8,0x10000000)
    A("s_cmp_ge_u32 s3, 4\ns_cbranch_scc1 K2_prod")
    ACC=16; NA=16*JW
    F=[(96,112),(144,160)]
    vH,vE,vO=4,6,7; bH,bE,bO=8,10,11
    A("s_setprio 1")
    A("s_lshr_b32 s28, s3, 1\ns_and_b32 s29, s3, 1")
    A("v_lshrrev_b32 v12, 4, v2")
    A(f"s_lshl_b32 s30, s28, 12\nv_lshlrev_b32 v13, 4, v2\nv_add_u32 v{bH}, s30, v13")
    A(f"v_lshrrev_b32 v13, 1, v12\nv_mul_u32_u24 v13, {NT*512}, v13")
    A("v_and_b32 v14, 1, v12\nv_lshlrev_b32 v15, 8, v14\nv_add_u32 v13, v13, v15")
    A("v_bfe_u32 v15, v2, 2, 2\nv_lshlrev_b32 v15, 6, v15\nv_add_u32 v13, v13, v15")
    A("v_and_b32 v15, 3, v2\nv_lshlrev_b32 v15, 3, v15\nv_add_u32 v13, v13, v15")
    A("v_lshlrev_b32 v14, 5, v14")
    A(f"s_mul_i32 s30, s29, {(NT//2)*512}\ns_add_u32 s30, s30, {WOFF}\nv_add3_u32 v{bE}, v13, v14, s30")
    A(f"v_xor_b32 v{bO}, 32, v{bE}")
    for a,b in ((vH,bH),(vE,bE),(vO,bO)): A(f"v_mov_b32 v{a}, v{b}")
    for r in range(NA): A(f"v_mov_b32 v{ACC+r}, 0")
    def reads(u, fs):
        X,W=F[fs]
        xs=[f"ds_read_b128 {vr(X+4*i,4)}, v{vH} offset:{u*8192+i*1024}" for i in range(4)]
        ws=[]
        for j in range(JW):
            for hh in range(2):
                ws.append(f"ds_read_b64_tr_b16 {vr(W+4*j+2*hh,2)}, v{vO if j&1 else vE} offset:{(4*u+2*hh)*NT*512+(j>>1)*512}")
        return ws[0:2]+xs+ws[2:]
    def mfmas(fs):
        X,W=F[fs]
        return [f"v_mfma_f32_16x16x32_bf16 {vr(ACC+(j*4+i)*4,4)}, {vr(W+4*j,4)}, {vr(X+4*i,4)}, {vr(ACC+(j*4+i)*4,4)}" for j in range(JW) for i in range(4)]
    per = 2 if BN==64 else 1
    A("s_mov_b32 s31, 0\ns_mov_b32 s32, 0")
    A("s_barrier")
    stamp(A,diag,1)
    for l in reads(0,0): A(l)
    A(".p2align 3\nK2_cloop:")
    A("s_waitcnt lgkmcnt(0)")
    for l in interleave(mfmas(0), reads(1,1), per=per): A(l)
    A(f"s_add_u32 s32, s32, {STG}\ns_cmp_eq_u32 s32, {STG*R}\ns_cselect_b32 s32, 0, s32")
    A("s_waitcnt lgkmcnt(0)\ns_barrier")
    for a,b in ((vE,bE),(vH,bH),(vO,bO)): A(f"v_add_u32 v{a}, s32, v{b}")
    for l in interleave(mfmas(1), reads(0,0), per=per): A(l)
    A(f"s_add_u32 s31, s31, 1\ns_cmp_lt_u32 s31, {nst}\ns_cbranch_scc1 K2_cloop")
    stamp(A,diag,2)
    A("s_waitcnt lgkmcnt(0)\ns_nop 7\ns_nop 7")
    if not split:
        A("v_and_b32 v3, 15, v2\nv_lshlrev_b32 v3, 11, v3\nv_lshlrev_b32 v12, 3, v12\nv_add_u32 v3, v3, v12")
        A("s_lshl_b32 s33, s12, 1\ns_add_u32 s33, s33, s28\ns_lshl_b32 s33, s33, 17\ns_add_u32 s33, s33, s13")
        A(f"s_lshl_b32 s34, s29, 6\ns_add_u32 s33, s33, s34")
        n=0
        for i in range(4):
            for j in range(JW):
                D=96+2*n; n+=1; S=ACC+(j*4+i)*4
                A(f"v_cvt_pk_bf16_f32 v{D}, v{S}, v{S+1}\nv_cvt_pk_bf16_f32 v{D+1}, v{S+2}, v{S+3}")
                A(f"buffer_store_dwordx2 {vr(D,2)}, v3, s[20:23], s33 offen offset:{j*32}")
            A("s_add_u32 s33, s33, 0x8000")
    else:
        A("s_lshl_b32 s33, s15, 4\ns_add_u32 s33, s33, s12\ns_lshl_b32 s33, s33, 3\ns_add_u32 s33, s33, s14\ns_lshl_b32 s33, s33, 2\ns_add_u32 s33, s33, s3\ns_lshl_b32 s33, s33, 14")
        A(f"s_add_u32 s33, s33, {P_OFF}")
        A("v_lshlrev_b32 v3, 4, v2")
        for b in range(16):
            if b%4==0 and b: A("s_add_u32 s33, s33, 4096")
            A(f"buffer_store_dwordx4 {vr(ACC+4*b,4)}, v3, s[24:27], s33 offen offset:{(b%4)*1024}")
    if diag:
        stamp(A,diag,3); A("s_waitcnt vmcnt(0)"); stamp(A,diag,4); A("s_memrealtime s[74:75]")
        A("s_lshl_b32 s58, s2, 3\ns_add_u32 s58, s58, s3\ns_add_u32 s58, s58, 2048")
        stamp_flush(A,diag,8,58,24,"c")
    A("s_endpgm")
    A("K2_prod:")
    A("s_sub_u32 s28, s3, 4")
    A("v_lshlrev_b32 v8, 4, v2")
    A("v_bfe_u32 v3, v2, 2, 3\nv_lshlrev_b32 v3, 11, v3\nv_lshrrev_b32 v4, 5, v2\nv_lshlrev_b32 v4, 6, v4\nv_add_u32 v3, v3, v4")
    A("v_and_b32 v4, 3, v2\nv_bfe_u32 v5, v2, 4, 1\nv_lshlrev_b32 v5, 1, v5\nv_xor_b32 v4, v4, v5\nv_lshlrev_b32 v4, 4, v4\nv_add_u32 v12, v3, v4")
    A("v_add_u32 v13, 0x4000, v12")
    A(f"s_mul_i32 s32, s12, 112\ns_add_u32 s32, s32, s40\ns_lshl_b32 s32, s32, 13\ns_lshl_b32 s30, s28, 12\ns_add_u32 s32, s32, s30\ns_add_u32 s32, s32, {H_OFF}")
    A("s_lshl_b32 s33, s40, 16\ns_lshl_b32 s30, s28, 15\ns_add_u32 s33, s33, s30\ns_add_u32 s33, s33, s13")
    A("s_lshl_b32 s35, s28, 12")
    A(f"s_mul_i32 s36, s28, {2*NT*512}\ns_add_u32 s36, s36, {WOFF}")
    A("s_mov_b32 s37, 0")
    def issue():
        A("s_add_u32 s39, s37, s36")
        for n in range(NWI):
            o,tb = (n,0) if BN==64 else (n>>1,n&1)
            A(f"s_add_u32 m0, s39, {o*NT*512+tb*(1024-128)}\ns_nop 0")
            A(f"buffer_load_dwordx4 v{12+o}, s[16:19], s33 offen offset:{tb*128} lds")
        A("s_add_u32 m0, s37, s35\ns_nop 0")
        for n in range(4):
            A(f"buffer_load_dwordx4 v8, s[24:27], s32 offen offset:{n*1024} lds")
        A(f"s_add_u32 s32, s32, 16384\ns_add_u32 s33, s33, {64*2048}")
        A(f"s_add_u32 s37, s37, {STG}\ns_cmp_eq_u32 s37, {STG*R}\ns_cselect_b32 s37, 0, s37")
    A("s_mov_b32 s31, 0")
    A("K2_pro:")
    issue()
    A(f"s_add_u32 s31, s31, 1\ns_cmp_lt_u32 s31, {R}\ns_cbranch_scc1 K2_pro")
    stamp(A,diag,1)
    A(f"s_waitcnt vmcnt({NI*(R-1)})")
    stamp(A,diag,2)
    A("s_barrier")
    A("s_mov_b32 s31, 0")
    A("K2_ploop:")
    A(f"s_waitcnt vmcnt({NI*(R-2)})\ns_barrier")
    issue()
    A(f"s_add_u32 s31, s31, 1\ns_cmp_lt_u32 s31, {nst-R}\ns_cbranch_scc1 K2_ploop")
    for k in range(R-2,-1,-1):
        A(f"s_waitcnt vmcnt({NI*k})\ns_barrier")
    A("s_barrier")
    if diag:
        stamp(A,diag,3); stamp(A,diag,4); A("s_memrealtime s[74:75]")
        A("s_lshl_b32 s58, s2, 3\ns_add_u32 s58, s58, s3\ns_add_u32 s58, s58, 2048")
        stamp_flush(A,diag,8,58,24,"p")
    A("K2_end:\ns_endpgm")
    return STG*R

def k3(A):
    A(".p2align 8\n.globl k3_kernel\n.type k3_kernel,@function\nk3_kernel:")
    A("s_cmp_ge_u32 s2, 128\ns_cbranch_scc1 K3_end")
    A("s_load_dwordx2 s[6:7], s[0:1], 24\ns_load_dwordx2 s[8:9], s[0:1], 40")
    A("v_lshrrev_b32 v1, 6, v0\nv_and_b32 v2, 63, v0\nv_readfirstlane_b32 s3, v1")
    A("s_waitcnt lgkmcnt(0)")
    srd(A,20,6,O_BYTES); srd(A,24,8,0x10000000)
    A(f"s_lshl_b32 s33, s2, 2\ns_add_u32 s33, s33, s3\ns_lshl_b32 s33, s33, 14\ns_add_u32 s33, s33, {P_OFF}\ns_add_u32 s34, s33, {128*65536}")
    A("v_lshlrev_b32 v3, 4, v2")
    for b in range(16):
        if b%4==0 and b: A("s_add_u32 s33, s33, 4096\ns_add_u32 s34, s34, 4096")
        A(f"buffer_load_dwordx4 {vr(16+4*b,4)}, v3, s[24:27], s33 offen offset:{(b%4)*1024}")
        A(f"buffer_load_dwordx4 {vr(80+4*b,4)}, v3, s[24:27], s34 offen offset:{(b%4)*1024}")
    A("s_lshr_b32 s12, s2, 3\ns_and_b32 s14, s2, 7\ns_lshr_b32 s28, s3, 1\ns_and_b32 s29, s3, 1")
    A("v_lshrrev_b32 v12, 4, v2\nv_and_b32 v3, 15, v2\nv_lshlrev_b32 v3, 11, v3\nv_lshlrev_b32 v12, 3, v12\nv_add_u32 v3, v3, v12")
    A("s_lshl_b32 s33, s12, 1\ns_add_u32 s33, s33, s28\ns_lshl_b32 s33, s33, 17\ns_lshl_b32 s13, s14, 8\ns_add_u32 s33, s33, s13\ns_lshl_b32 s34, s29, 7\ns_add_u32 s33, s33, s34")
    A("s_waitcnt vmcnt(0)")
    for r in range(64): A(f"v_add_f32 v{16+r}, v{16+r}, v{80+r}")
    n=0
    for i in range(4):
        for j in range(4):
            D=80+2*n; n+=1; S=16+(j*4+i)*4
            A(f"v_cvt_pk_bf16_f32 v{D}, v{S}, v{S+1}\nv_cvt_pk_bf16_f32 v{D+1}, v{S+2}, v{S+3}")
            A(f"buffer_store_dwordx2 {vr(D,2)}, v3, s[20:23], s33 offen offset:{j*32}")
        A("s_add_u32 s33, s33, 0x8000")
    A("K3_end:\ns_endpgm")

def pf(A):
    A(".p2align 8\n.globl pf_kernel\n.type pf_kernel,@function\npf_kernel:")
    A("s_cmp_ge_u32 s2, 256\ns_cbranch_scc1 PF_end")
    A("s_load_dwordx4 s[4:7], s[0:1], 0\ns_load_dwordx2 s[8:9], s[0:1], 16")
    A("s_lshl_b32 s3, s2, 8\nv_add_u32 v1, s3, v0\nv_lshlrev_b32 v1, 7, v1")
    A("s_waitcnt lgkmcnt(0)")
    srd(A,16,4,X_BYTES); srd(A,20,6,W_BYTES); srd(A,24,8,W_BYTES)
    A("buffer_load_dword v2, v1, s[16:19], 0 offen\nbuffer_load_dword v3, v1, s[20:23], 0 offen\nbuffer_load_dword v4, v1, s[24:27], 0 offen")
    A("s_waitcnt vmcnt(0)")
    A("PF_end:\ns_endpgm")
def pw(A):
    A(".p2align 8\n.globl pw_kernel\n.type pw_kernel,@function\npw_kernel:")
    A("s_cmp_ge_u32 s2, 256\ns_cbranch_scc1 PW_end")
    A("s_load_dwordx2 s[8:9], s[0:1], 40")
    A("s_lshl_b32 s3, s2, 9\nv_add_u32 v1, s3, v0\nv_lshlrev_b32 v1, 7, v1")
    A("s_waitcnt lgkmcnt(0)")
    srd(A,24,8,H_BYTES)
    A("buffer_load_dword v4, v1, s[24:27], 0 offen")
    A("s_waitcnt vmcnt(0)")
    A("PW_end:\ns_endpgm")

def rd(A, name, ptroff, base, nbytes, aux):
    A(f".p2align 8\n.globl {name}\n.type {name},@function\n{name}:")
    A(f"s_cmp_ge_u32 s2, 256\ns_cbranch_scc1 {name}_end")
    A(f"s_load_dwordx2 s[8:9], s[0:1], {ptroff}")
    A("s_lshl_b32 s3, s2, 8\nv_add_u32 v1, s3, v0\nv_lshlrev_b32 v1, 7, v1")
    A("s_waitcnt lgkmcnt(0)")
    srd(A,24,8,0x10000000)
    for k in range(nbytes>>23):
        A(f"s_mov_b32 s3, {base+(k<<23)}\nbuffer_load_dword v4, v1, s[24:27], s3 offen {aux}")
    A("s_waitcnt vmcnt(0)")
    A(f"{name}_end:\ns_endpgm")

def build(BN=64, diag=False, extra_empty=0, order=None):
    B=Asm()
    k1(B,diag); lds2=k2(B,BN,diag)
    if order:
        pf(B); pw(B)
        rd(B,"ra_kernel",40,32<<20,64<<20,""); rd(B,"rb_kernel",40,32<<20,64<<20,"nt")
        rd(B,"rc_kernel",40,192<<20,64<<20,""); rd(B,"rd_kernel",40,192<<20,64<<20,"nt")
        A=Asm(); A(HEADER.rstrip())
        cfg={'1':"k1_kernel grid=(256,1,1) block=(512,1,1) lds=135168",'2':f"k2_kernel grid=(256,1,1) block=(512,1,1) lds={lds2}",
             'p':"pf_kernel grid=(256,1,1) block=(256,1,1) lds=0",'w':"pw_kernel grid=(256,1,1) block=(512,1,1) lds=0"}
        for c in "abcd": cfg[c]=f"r{c}_kernel grid=(256,1,1) block=(256,1,1) lds=0"
        for c in order: A("; @launch kernel="+cfg[c])
        A('.amdgcn_target "amdgcn-amd-amdhsa--gfx950"\n.text')
        A(B.text().rstrip())
        A('.section .rodata,"a"')
        for n in ["k1_kernel","k2_kernel","pf_kernel","pw_kernel","ra_kernel","rb_kernel","rc_kernel","rd_kernel"]:
            A(".p2align 6"); A(kd(n))
        return A.text()
    if BN==128: k3(B)
    if extra_empty:
        B(".p2align 8\n.globl e_kernel\n.type e_kernel,@function\ne_kernel:\ns_endpgm")
    A=Asm()
    A(HEADER.rstrip())
    A("; @launch kernel=k1_kernel grid=(256,1,1) block=(512,1,1) lds=135168")
    A(f"; @launch kernel=k2_kernel grid=(256,1,1) block=(512,1,1) lds={lds2}")
    if BN==128: A("; @launch kernel=k3_kernel grid=(128,1,1) block=(256,1,1) lds=0")
    for _ in range(extra_empty): A("; @launch kernel=e_kernel grid=(256,1,1) block=(64,1,1) lds=0")
    A('.amdgcn_target "amdgcn-amd-amdhsa--gfx950"\n.text')
    A(B.text().rstrip())
    A('.section .rodata,"a"')
    for n in ["k1_kernel","k2_kernel"]+(["k3_kernel"] if BN==128 else [])+(["e_kernel"] if extra_empty else []):
        A(".p2align 6"); A(kd(n))
    return A.text()

if __name__=="__main__":
    import argparse
    p=argparse.ArgumentParser(); p.add_argument("-o"); p.add_argument("--bn",type=int,default=64); p.add_argument("--diag",action="store_true"); p.add_argument("--empty",type=int,default=0); p.add_argument("--order")
    a=p.parse_args()
    open(a.o,"w").write(build(a.bn,a.diag,a.empty,a.order))
```

```python
import sys

class Asm:
    def __init__(self): self.L=[]
    def __call__(self, s):
        for l in s.split("\n"): self.L.append(l)
    def text(self): return "\n".join(self.L)+"\n"

HEADER = """; Kernarg layout (48 bytes): 0 x[2048,1024] bf16, 8 w1[1024,3584] bf16, 16 w2[3584,1024] bf16,
"""
def kd(name, vgpr=256, sgpr=96):
    return f""".amdhsa_kernel {name}
  .amdhsa_next_free_vgpr {vgpr}
  .amdhsa_next_free_sgpr {sgpr}
  .amdhsa_accum_offset {(vgpr+3)//4*4}
  .amdhsa_group_segment_fixed_size 0
  .amdhsa_kernarg_size 48
  .amdhsa_user_sgpr_count 2
  .amdhsa_user_sgpr_kernarg_segment_ptr 1
  .amdhsa_system_sgpr_workgroup_id_x 1
.end_amdhsa_kernel"""

def srd(A, d, b, nbytes):
    A(f"s_mov_b32 s{d}, s{b}\ns_and_b32 s{d+1}, s{b+1}, 0xffff\ns_mov_b32 s{d+2}, {nbytes}\ns_mov_b32 s{d+3}, 0x20000")

def vr(a,n): return f"v[{a}:{a+n-1}]"

X_BYTES=2048*1024*2; W_BYTES=1024*3584*2; H_BYTES=2048*3584*2; O_BYTES=2048*1024*2
H_OFF=0
P_OFF=16<<20
T_OFF=64<<20

def stamp(A, on, idx, sreg_wg=2):
    if on: A(f"s_memtime s[{44+2*idx}:{45+2*idx}]")

def stamp_flush(A, on, n, rowreg, srd_ws, label):
    if not on: return
    A("s_waitcnt lgkmcnt(0)")
    A(f"s_lshl_b32 s61, s{rowreg}, 8\ns_add_u32 s61, s61, {T_OFF}")
    A("v_mov_b32 v1, 0")
    for k in range(n):
        A(f"v_mov_b32 v2, s{44+2*k}\nbuffer_store_dword v2, v1, s[{srd_ws}:{srd_ws+3}], s61 offen offset:{4*k}")
    if label=="c":
        for k in range(32):
            A(f"v_mov_b32 v2, s{64+k}\nbuffer_store_dword v2, v1, s[{srd_ws}:{srd_ws+3}], s61 offen offset:{32+4*k}")
    A("s_waitcnt vmcnt(0)")

def interleave(mf, rd, start=0, per=1):
    out=[]; k=0
    for n,m in enumerate(mf):
        out.append(m)
        if n>=start:
            for _ in range(per):
                if k<len(rd): out.append(rd[k]); k+=1
    out += rd[k:]
    return out

def k1(A, diag=False, nst=16, rot=0, pfm=0, early=0):
    STG=45056; WOFF=16384; R=3
    A(".p2align 8\n.globl k1_kernel\n.type k1_kernel,@function\nk1_kernel:")
    A("s_cmp_ge_u32 s2, 256\ns_cbranch_scc1 K1_end")
    A("s_load_dwordx4 s[4:7], s[0:1], 0\ns_load_dwordx2 s[8:9], s[0:1], 40")
    stamp(A,diag,0)
    A("v_lshrrev_b32 v1, 6, v0\nv_and_b32 v2, 63, v0")
    A("v_readfirstlane_b32 s3, v1")
    A("s_and_b32 s10, s2, 7\ns_lshr_b32 s11, s2, 3")
    A("s_lshr_b32 s12, s10, 1\ns_lshl_b32 s12, s12, 2\ns_lshr_b32 s13, s11, 3\ns_add_u32 s12, s12, s13")
    A("s_and_b32 s13, s10, 1\ns_lshl_b32 s13, s13, 3\ns_and_b32 s14, s11, 7\ns_add_u32 s13, s13, s14")
    A("s_waitcnt lgkmcnt(0)")
    if diag: A("s_memrealtime s[56:57]")
    stamp(A,diag,5)
    srd(A,16,4,X_BYTES); srd(A,20,6,W_BYTES); srd(A,24,8,0x10000000)
    A("s_cmp_ge_u32 s3, 4\ns_cbranch_scc1 K1_prod")
    ACC=16; F=[(128,144),(172,188)]
    vX0,vX1,vE,vO = 4,5,6,7
    bX0,bX1,bE,bO = 8,9,10,11
    A("s_setprio 1")
    A("s_lshr_b32 s28, s3, 1\ns_and_b32 s29, s3, 1")
    A("v_and_b32 v3, 15, v2\nv_lshrrev_b32 v12, 4, v2")
    A("v_lshrrev_b32 v13, 1, v3\nv_xor_b32 v13, v13, v12\nv_lshlrev_b32 v13, 4, v13")
    A("s_lshl_b32 s30, s28, 13\nv_lshlrev_b32 v14, 7, v3\nv_add3_u32 v%d, v13, v14, s30"%bX0)
    A(f"v_xor_b32 v{bX1}, 64, v{bX0}")
    A("v_lshrrev_b32 v13, 1, v12\nv_mul_u32_u24 v13, 7168, v13")
    A("v_and_b32 v14, 1, v12\nv_lshlrev_b32 v15, 9, v14\nv_add_u32 v13, v13, v15")
    A("v_bfe_u32 v15, v2, 2, 2\nv_lshlrev_b32 v15, 6, v15\nv_add_u32 v13, v13, v15")
    A("v_and_b32 v15, 3, v2\nv_lshlrev_b32 v15, 3, v15\nv_add_u32 v13, v13, v15")
    A("v_xor_b32 v14, s29, v14\nv_lshlrev_b32 v14, 5, v14")
    A(f"s_mul_i32 s30, s29, 3072\ns_add_u32 s30, s30, {WOFF}\nv_add3_u32 v{bE}, v13, v14, s30")
    A(f"v_xor_b32 v14, 32, v14\ns_lshl_b32 s30, s29, 12\ns_add_u32 s30, s30, {WOFF}\nv_add3_u32 v{bO}, v13, v14, s30")
    for a,b in ((vX0,bX0),(vX1,bX1),(vE,bE),(vO,bO)): A(f"v_mov_b32 v{a}, v{b}")
    for r in range(112): A(f"v_mov_b32 v{ACC+r}, 0")
    def reads(u, fs):
        X,W=F[fs]; L=[]
        xs=[f"ds_read_b128 {vr(X+4*i,4)}, v{vX1 if u else vX0} offset:{i*2048}" for i in range(4)]
        ws=[]
        for j in range(7):
            for hh in range(2):
                ws.append(f"ds_read_b64_tr_b16 {vr(W+4*j+2*hh,2)}, v{vO if j&1 else vE} offset:{u*14336+(j>>1)*1024+hh*256}")
        return ws[0:2]+xs+ws[2:]
    def mfmas(fs):
        X,W=F[fs]
        return [f"v_mfma_f32_16x16x32_bf16 {vr(ACC+(j*4+i)*4,4)}, {vr(W+4*j,4)}, {vr(X+4*i,4)}, {vr(ACC+(j*4+i)*4,4)}" for j in range(7) for i in range(4)]
    A("s_mov_b32 s31, 0\ns_mov_b32 s32, 0")
    A("s_barrier")
    stamp(A,diag,1)
    for l in reads(0,0): A(l)
    A(".p2align 3\nK1_cloop:")
    if diag: A("s_memtime s[62:63]")
    A("s_waitcnt lgkmcnt(0)")
    if diag: A("s_mov_b32 m0, s31\ns_nop 0\ns_movreld_b32 s64, s62")
    for l in interleave(mfmas(0), reads(1,1)): A(l)
    A(f"s_add_u32 s32, s32, {STG}\ns_cmp_eq_u32 s32, {STG*R}\ns_cselect_b32 s32, 0, s32")
    A("s_waitcnt lgkmcnt(0)\ns_barrier")
    for a,b in ((vX0,bX0),(vE,bE),(vO,bO),(vX1,bX1)): A(f"v_add_u32 v{a}, s32, v{b}")
    for l in interleave(mfmas(1), reads(0,0)): A(l)
    A(f"s_add_u32 s31, s31, 1\ns_cmp_lt_u32 s31, {nst}\ns_cbranch_scc1 K1_cloop")
    stamp(A,diag,2)
    A("s_waitcnt lgkmcnt(0)\ns_nop 7\ns_nop 7")
    A("s_mul_i32 s33, s12, 112\ns_mul_i32 s34, s13, 7\ns_add_u32 s33, s33, s34\ns_lshl_b32 s33, s33, 3")
    A("s_lshl_b32 s34, s28, 2\ns_add_u32 s33, s33, s34\ns_lshl_b32 s33, s33, 10")
    A(f"s_add_u32 s33, s33, {H_OFF}")
    A("s_mov_b32 s36, 0xbfb8aa3b")
    A("v_lshlrev_b32 v3, 4, v2")
    A("s_lshl_b32 s35, s29, 3\nv_add_u32 v12, s35, v3")
    T=216
    def silu4(src, dst, t):
        for r in range(4): A(f"v_mul_f32 v{t+r}, s36, v{src+r}")
        for r in range(4): A(f"v_exp_f32 v{t+r}, v{t+r}")
        for r in range(4): A(f"v_add_f32 v{t+r}, 1.0, v{t+r}")
        for r in range(4): A(f"v_rcp_f32 v{t+r}, v{t+r}")
        for r in range(4): A(f"v_mul_f32 v{t+r}, v{t+r}, v{src+r}")
        A(f"v_cvt_pk_bf16_f32 v{dst}, v{t}, v{t+1}\nv_cvt_pk_bf16_f32 v{dst+1}, v{t+2}, v{t+3}")
    for wf in range(2):
        if wf==0: A("s_cmp_eq_u32 s29, 0\ns_cbranch_scc0 K1_epi1")
        else: A("K1_epi1:")
        n=0
        pairs=[(0,1,0),(2,3,1),(4,5,2)] if wf==0 else [(1,2,4),(3,4,5),(5,6,6)]
        lone=6 if wf==0 else 0
        for (ja,jb,t) in pairs:
            A(f"s_add_u32 s37, s33, {t*8192}")
            for i in range(4):
                D=128+(n%8)*4; n+=1
                silu4(ACC+(ja*4+i)*4, D, T); silu4(ACC+(jb*4+i)*4, D+2, T+4)
                A(f"buffer_store_dwordx4 {vr(D,4)}, v3, s[24:27], s37 offen offset:{i*1024}")
        A(f"s_add_u32 s37, s33, {3*8192}")
        for i in range(4):
            D=128+(n%8)*4; n+=1
            silu4(ACC+(lone*4+i)*4, D, T)
            A(f"buffer_store_dwordx2 {vr(D,2)}, v12, s[24:27], s37 offen offset:{i*1024}")
        if wf==0: A("s_branch K1_cdone")
    A("K1_cdone:")
    if diag:
        stamp(A,diag,3); A("s_waitcnt vmcnt(0)"); stamp(A,diag,4); A("s_memrealtime s[58:59]")
        A("s_lshl_b32 s60, s2, 3\ns_add_u32 s60, s60, s3")
        stamp_flush(A,diag,8,60,24,"c")
    A("s_endpgm")
    A("K1_prod:")
    A("s_sub_u32 s28, s3, 4")
    A("v_lshrrev_b32 v3, 3, v2\nv_and_b32 v4, 7, v2\nv_lshrrev_b32 v5, 4, v2\nv_xor_b32 v4, v4, v5\nv_lshlrev_b32 v4, 4, v4")
    A("v_lshlrev_b32 v3, 11, v3\nv_add_u32 v3, v3, v4")
    A("s_lshl_b32 s30, s12, 7\ns_lshl_b32 s31, s28, 5\ns_add_u32 s30, s30, s31\ns_lshl_b32 s30, s30, 11")
    A("v_add_u32 v8, s30, v3")
    A("v_xor_b32 v9, 64, v8\nv_add_u32 v9, 0x4000, v9\nv_add_u32 v10, 0x8000, v8\nv_add_u32 v11, 0x8000, v9")
    A("v_lshrrev_b32 v3, 2, v2\nv_mul_u32_u24 v3, 7168, v3\nv_and_b32 v4, 3, v2\nv_lshrrev_b32 v5, 5, v2\nv_lshlrev_b32 v5, 1, v5\nv_xor_b32 v4, v4, v5\nv_lshlrev_b32 v4, 4, v4\nv_add_u32 v12, v3, v4")
    A("s_mul_i32 s33, s28, %d\ns_mul_i32 s34, s13, 448\ns_add_u32 s33, s33, s34"%(16*7168))
    A("s_mov_b32 s32, 0")
    if rot:
        if rot==1:
            A("s_lshr_b32 s40, s10, 1\ns_and_b32 s41, s10, 1\ns_lshl_b32 s41, s41, 1\ns_add_u32 s40, s40, s41\ns_and_b32 s40, s40, 3\ns_lshl_b32 s40, s40, 2")
        elif rot==2:
            A("s_add_u32 s40, s12, s13\ns_and_b32 s40, s40, 15")
        elif rot==3:
            A("s_lshl_b32 s40, s10, 1")
        elif rot==4:
            A("s_add_u32 s40, s12, s13\ns_and_b32 s40, s40, 3\ns_lshl_b32 s40, s40, 2")
        A(f"s_lshl_b32 s32, s40, 7\ns_mul_i32 s41, s40, {64*7168}\ns_add_u32 s33, s33, s41")
    A("s_lshl_b32 s35, s28, 12")
    A(f"s_mul_i32 s36, s28, 7168\ns_add_u32 s36, s36, {WOFF}")
    A("s_mov_b32 s37, 0")
    def issue():
        A("s_add_u32 s38, s37, s35\ns_add_u32 s39, s37, s36")
        for t in range(7):
            A(f"s_add_u32 m0, s39, {t*960}\ns_nop 0")
            A(f"buffer_load_dwordx4 v12, s[20:23], s33 offen offset:{t*64} lds")
        for n in range(4):
            A(f"s_add_u32 m0, s38, {n*1024}\ns_nop 0")
            A(f"buffer_load_dwordx4 v{8+n}, s[16:19], s32 offen lds")
        A(f"s_add_u32 s32, s32, 128\ns_add_u32 s33, s33, {64*7168}")
        if rot: A(f"s_and_b32 s32, s32, 2047\ns_cselect_b32 s41, 0, {1024*7168}\ns_sub_u32 s33, s33, s41")
        A(f"s_add_u32 s37, s37, {STG}\ns_cmp_eq_u32 s37, {STG*R}\ns_cselect_b32 s37, 0, s37")
    stamp(A,diag,4)
    A("s_mov_b32 s31, 0")
    A("K1_pro:")
    issue()
    A(f"s_add_u32 s31, s31, 1\ns_cmp_lt_u32 s31, {2 if early else 3}\ns_cbranch_scc1 K1_pro")
    stamp(A,diag,1)
    A(f"s_waitcnt vmcnt({11 if early else 22})")
    stamp(A,diag,2)
    A("s_barrier")
    if early: issue()
    npf=0
    if pfm:
        A("v_and_b32 v14, 7, v2\nv_lshlrev_b32 v14, 11, v14\nv_bfe_u32 v15, v2, 3, 2\nv_lshlrev_b32 v15, 7, v15\nv_add_u32 v14, v14, v15")
        A("s_lshl_b32 s42, s2, 14\ns_lshl_b32 s43, s28, 9\ns_add_u32 s42, s42, s43")
        A("v_min_u32 v15, 55, v2\nv_lshlrev_b32 v15, 7, v15")
        A("s_lshl_b32 s43, s2, 2\ns_add_u32 s43, s43, s28\ns_mul_i32 s43, s43, 7168")
        A("buffer_load_dword v16, v15, s[20:23], s43 offen")
        A("buffer_load_dword v17, v14, s[16:19], s42 offen")
        npf=2
        A(f"s_waitcnt vmcnt({11+npf})\ns_barrier")
        issue()
    A(f"s_mov_b32 s31, {1 if pfm else 0}")
    A("K1_ploop:")
    A("s_waitcnt vmcnt(11)\ns_barrier")
    issue()
    A(f"s_add_u32 s31, s31, 1\ns_cmp_lt_u32 s31, {nst-3}\ns_cbranch_scc1 K1_ploop")
    A("s_waitcnt vmcnt(11)\ns_barrier\ns_waitcnt vmcnt(0)\ns_barrier\ns_barrier")
    if diag:
        stamp(A,diag,3); A("s_memrealtime s[58:59]")
        A("s_lshl_b32 s60, s2, 3\ns_add_u32 s60, s60, s3")
        stamp_flush(A,diag,8,60,24,"p")
    A("K1_end:\ns_endpgm")

def k2(A, BN=64, diag=False, R=None):
    split = (BN==128)
    NT = BN//32
    JW = BN//32
    WST = 64*BN*2
    STG = 16384+WST; WOFF=16384
    R = R or (5 if BN==64 else 4)
    nst = 28 if split else 56
    NWI = WST//1024//4
    NI = 4+NWI
    A(".p2align 8\n.globl k2_kernel\n.type k2_kernel,@function\nk2_kernel:")
    A("s_cmp_ge_u32 s2, 256\ns_cbranch_scc1 K2_end")
    A("s_load_dwordx4 s[4:7], s[0:1], 16\ns_load_dwordx2 s[8:9], s[0:1], 40")
    stamp(A,diag,0)
    A("v_lshrrev_b32 v1, 6, v0\nv_and_b32 v2, 63, v0")
    A("v_readfirstlane_b32 s3, v1")
    A("s_and_b32 s10, s2, 7\ns_lshr_b32 s11, s2, 3")
    A("s_lshr_b32 s12, s10, 1\ns_lshl_b32 s12, s12, 2\ns_lshr_b32 s13, s11, 3\ns_add_u32 s12, s12, s13")
    A("s_and_b32 s15, s10, 1\ns_and_b32 s14, s11, 7")
    if split:
        A("s_lshl_b32 s13, s14, 8")
        A("s_mul_i32 s40, s15, 56")
    else:
        A("s_lshl_b32 s13, s15, 3\ns_add_u32 s13, s13, s14\ns_lshl_b32 s13, s13, 7")
        A("s_mov_b32 s40, 0")
    A("s_waitcnt lgkmcnt(0)")
    if diag: A("s_memrealtime s[56:57]")
    stamp(A,diag,5)
    srd(A,16,4,W_BYTES); srd(A,20,6,O_BYTES); srd(A,24,8,0x10000000)
    A("s_cmp_ge_u32 s3, 4\ns_cbranch_scc1 K2_prod")
    ACC=16; NA=16*JW
    F=[(96,112),(144,160)]
    vH,vE,vO=4,6,7; bH,bE,bO=8,10,11
    A("s_setprio 1")
    A("s_lshr_b32 s28, s3, 1\ns_and_b32 s29, s3, 1")
    A("v_lshrrev_b32 v12, 4, v2")
    A(f"s_lshl_b32 s30, s28, 12\nv_lshlrev_b32 v13, 4, v2\nv_add_u32 v{bH}, s30, v13")
    A(f"v_lshrrev_b32 v13, 1, v12\nv_mul_u32_u24 v13, {NT*512}, v13")
    A("v_and_b32 v14, 1, v12\nv_lshlrev_b32 v15, 8, v14\nv_add_u32 v13, v13, v15")
    A("v_bfe_u32 v15, v2, 2, 2\nv_lshlrev_b32 v15, 6, v15\nv_add_u32 v13, v13, v15")
    A("v_and_b32 v15, 3, v2\nv_lshlrev_b32 v15, 3, v15\nv_add_u32 v13, v13, v15")
    A("v_lshlrev_b32 v14, 5, v14")
    A(f"s_mul_i32 s30, s29, {(NT//2)*512}\ns_add_u32 s30, s30, {WOFF}\nv_add3_u32 v{bE}, v13, v14, s30")
    A(f"v_xor_b32 v{bO}, 32, v{bE}")
    for a,b in ((vH,bH),(vE,bE),(vO,bO)): A(f"v_mov_b32 v{a}, v{b}")
    for r in range(NA): A(f"v_mov_b32 v{ACC+r}, 0")
    def reads(u, fs):
        X,W=F[fs]
        xs=[f"ds_read_b128 {vr(X+4*i,4)}, v{vH} offset:{u*8192+i*1024}" for i in range(4)]
        ws=[]
        for j in range(JW):
            for hh in range(2):
                ws.append(f"ds_read_b64_tr_b16 {vr(W+4*j+2*hh,2)}, v{vO if j&1 else vE} offset:{(4*u+2*hh)*NT*512+(j>>1)*512}")
        return ws[0:2]+xs+ws[2:]
    def mfmas(fs):
        X,W=F[fs]
        return [f"v_mfma_f32_16x16x32_bf16 {vr(ACC+(j*4+i)*4,4)}, {vr(W+4*j,4)}, {vr(X+4*i,4)}, {vr(ACC+(j*4+i)*4,4)}" for j in range(JW) for i in range(4)]
    per = 2 if BN==64 else 1
    A("s_mov_b32 s31, 0\ns_mov_b32 s32, 0")
    A("s_barrier")
    stamp(A,diag,1)
    for l in reads(0,0): A(l)
    A(".p2align 3\nK2_cloop:")
    if diag: A("s_memtime s[62:63]")
    A("s_waitcnt lgkmcnt(0)")
    if diag: A("s_mov_b32 m0, s31\ns_nop 0\ns_movreld_b32 s64, s62")
    for l in interleave(mfmas(0), reads(1,1), per=per): A(l)
    A(f"s_add_u32 s32, s32, {STG}\ns_cmp_eq_u32 s32, {STG*R}\ns_cselect_b32 s32, 0, s32")
    A("s_waitcnt lgkmcnt(0)\ns_barrier")
    for a,b in ((vE,bE),(vH,bH),(vO,bO)): A(f"v_add_u32 v{a}, s32, v{b}")
    for l in interleave(mfmas(1), reads(0,0), per=per): A(l)
    A(f"s_add_u32 s31, s31, 1\ns_cmp_lt_u32 s31, {nst}\ns_cbranch_scc1 K2_cloop")
    stamp(A,diag,2)
    A("s_waitcnt lgkmcnt(0)\ns_nop 7\ns_nop 7")
    if not split:
        A("v_and_b32 v3, 15, v2\nv_lshlrev_b32 v3, 11, v3\nv_lshlrev_b32 v12, 3, v12\nv_add_u32 v3, v3, v12")
        A("s_lshl_b32 s33, s12, 1\ns_add_u32 s33, s33, s28\ns_lshl_b32 s33, s33, 17\ns_add_u32 s33, s33, s13")
        A(f"s_lshl_b32 s34, s29, 6\ns_add_u32 s33, s33, s34")
        n=0
        for i in range(4):
            for j in range(JW):
                D=96+2*n; n+=1; S=ACC+(j*4+i)*4
                A(f"v_cvt_pk_bf16_f32 v{D}, v{S}, v{S+1}\nv_cvt_pk_bf16_f32 v{D+1}, v{S+2}, v{S+3}")
                A(f"buffer_store_dwordx2 {vr(D,2)}, v3, s[20:23], s33 offen offset:{j*32}")
            A("s_add_u32 s33, s33, 0x8000")
    else:
        A("s_lshl_b32 s33, s15, 4\ns_add_u32 s33, s33, s12\ns_lshl_b32 s33, s33, 3\ns_add_u32 s33, s33, s14\ns_lshl_b32 s33, s33, 2\ns_add_u32 s33, s33, s3\ns_lshl_b32 s33, s33, 14")
        A(f"s_add_u32 s33, s33, {P_OFF}")
        A("v_lshlrev_b32 v3, 4, v2")
        for b in range(16):
            if b%4==0 and b: A("s_add_u32 s33, s33, 4096")
            A(f"buffer_store_dwordx4 {vr(ACC+4*b,4)}, v3, s[24:27], s33 offen offset:{(b%4)*1024}")
    if diag:
        stamp(A,diag,3); A("s_waitcnt vmcnt(0)"); stamp(A,diag,4); A("s_memrealtime s[58:59]")
        A("s_lshl_b32 s60, s2, 3\ns_add_u32 s60, s60, s3\ns_add_u32 s60, s60, 2048")
        stamp_flush(A,diag,8,60,24,"c")
    A("s_endpgm")
    A("K2_prod:")
    A("s_sub_u32 s28, s3, 4")
    A("v_lshlrev_b32 v8, 4, v2")
    A("v_bfe_u32 v3, v2, 2, 3\nv_lshlrev_b32 v3, 11, v3\nv_lshrrev_b32 v4, 5, v2\nv_lshlrev_b32 v4, 6, v4\nv_add_u32 v3, v3, v4")
    A("v_and_b32 v4, 3, v2\nv_bfe_u32 v5, v2, 4, 1\nv_lshlrev_b32 v5, 1, v5\nv_xor_b32 v4, v4, v5\nv_lshlrev_b32 v4, 4, v4\nv_add_u32 v12, v3, v4")
    A("v_add_u32 v13, 0x4000, v12")
    A(f"s_mul_i32 s32, s12, 112\ns_add_u32 s32, s32, s40\ns_lshl_b32 s32, s32, 13\ns_lshl_b32 s30, s28, 12\ns_add_u32 s32, s32, s30\ns_add_u32 s32, s32, {H_OFF}")
    A("s_lshl_b32 s33, s40, 16\ns_lshl_b32 s30, s28, 15\ns_add_u32 s33, s33, s30\ns_add_u32 s33, s33, s13")
    A("s_lshl_b32 s35, s28, 12")
    A(f"s_mul_i32 s36, s28, {2*NT*512}\ns_add_u32 s36, s36, {WOFF}")
    A("s_mov_b32 s37, 0")
    def issue():
        A("s_add_u32 s39, s37, s36")
        for n in range(NWI):
            o,tb = (n,0) if BN==64 else (n>>1,n&1)
            A(f"s_add_u32 m0, s39, {o*NT*512+tb*(1024-128)}\ns_nop 0")
            A(f"buffer_load_dwordx4 v{12+o}, s[16:19], s33 offen offset:{tb*128} lds")
        A("s_add_u32 m0, s37, s35\ns_nop 0")
        for n in range(4):
            A(f"buffer_load_dwordx4 v8, s[24:27], s32 offen offset:{n*1024} lds")
        A(f"s_add_u32 s32, s32, 16384\ns_add_u32 s33, s33, {64*2048}")
        A(f"s_add_u32 s37, s37, {STG}\ns_cmp_eq_u32 s37, {STG*R}\ns_cselect_b32 s37, 0, s37")
    A("s_mov_b32 s31, 0")
    A("K2_pro:")
    issue()
    A(f"s_add_u32 s31, s31, 1\ns_cmp_lt_u32 s31, {R}\ns_cbranch_scc1 K2_pro")
    stamp(A,diag,1)
    A(f"s_waitcnt vmcnt({NI*(R-1)})")
    stamp(A,diag,2)
    A("s_barrier")
    A("s_mov_b32 s31, 0")
    A("K2_ploop:")
    A(f"s_waitcnt vmcnt({NI*(R-2)})\ns_barrier")
    issue()
    A(f"s_add_u32 s31, s31, 1\ns_cmp_lt_u32 s31, {nst-R}\ns_cbranch_scc1 K2_ploop")
    for k in range(R-2,-1,-1):
        A(f"s_waitcnt vmcnt({NI*k})\ns_barrier")
    A("s_barrier")
    if diag:
        stamp(A,diag,3); stamp(A,diag,4); A("s_memrealtime s[58:59]")
        A("s_lshl_b32 s60, s2, 3\ns_add_u32 s60, s60, s3\ns_add_u32 s60, s60, 2048")
        stamp_flush(A,diag,8,60,24,"p")
    A("K2_end:\ns_endpgm")
    return STG*R

def k3(A):
    A(".p2align 8\n.globl k3_kernel\n.type k3_kernel,@function\nk3_kernel:")
    A("s_cmp_ge_u32 s2, 128\ns_cbranch_scc1 K3_end")
    A("s_load_dwordx2 s[6:7], s[0:1], 24\ns_load_dwordx2 s[8:9], s[0:1], 40")
    A("v_lshrrev_b32 v1, 6, v0\nv_and_b32 v2, 63, v0\nv_readfirstlane_b32 s3, v1")
    A("s_waitcnt lgkmcnt(0)")
    srd(A,20,6,O_BYTES); srd(A,24,8,0x10000000)
    A(f"s_lshl_b32 s33, s2, 2\ns_add_u32 s33, s33, s3\ns_lshl_b32 s33, s33, 14\ns_add_u32 s33, s33, {P_OFF}\ns_add_u32 s34, s33, {128*65536}")
    A("v_lshlrev_b32 v3, 4, v2")
    for b in range(16):
        if b%4==0 and b: A("s_add_u32 s33, s33, 4096\ns_add_u32 s34, s34, 4096")
        A(f"buffer_load_dwordx4 {vr(16+4*b,4)}, v3, s[24:27], s33 offen offset:{(b%4)*1024}")
        A(f"buffer_load_dwordx4 {vr(80+4*b,4)}, v3, s[24:27], s34 offen offset:{(b%4)*1024}")
    A("s_lshr_b32 s12, s2, 3\ns_and_b32 s14, s2, 7\ns_lshr_b32 s28, s3, 1\ns_and_b32 s29, s3, 1")
    A("v_lshrrev_b32 v12, 4, v2\nv_and_b32 v3, 15, v2\nv_lshlrev_b32 v3, 11, v3\nv_lshlrev_b32 v12, 3, v12\nv_add_u32 v3, v3, v12")
    A("s_lshl_b32 s33, s12, 1\ns_add_u32 s33, s33, s28\ns_lshl_b32 s33, s33, 17\ns_lshl_b32 s13, s14, 8\ns_add_u32 s33, s33, s13\ns_lshl_b32 s34, s29, 7\ns_add_u32 s33, s33, s34")
    A("s_waitcnt vmcnt(0)")
    for r in range(64): A(f"v_add_f32 v{16+r}, v{16+r}, v{80+r}")
    n=0
    for i in range(4):
        for j in range(4):
            D=80+2*n; n+=1; S=16+(j*4+i)*4
            A(f"v_cvt_pk_bf16_f32 v{D}, v{S}, v{S+1}\nv_cvt_pk_bf16_f32 v{D+1}, v{S+2}, v{S+3}")
            A(f"buffer_store_dwordx2 {vr(D,2)}, v3, s[20:23], s33 offen offset:{j*32}")
        A("s_add_u32 s33, s33, 0x8000")
    A("K3_end:\ns_endpgm")

def pf(A):
    A(".p2align 8\n.globl pf_kernel\n.type pf_kernel,@function\npf_kernel:")
    A("s_cmp_ge_u32 s2, 256\ns_cbranch_scc1 PF_end")
    A("s_load_dwordx4 s[4:7], s[0:1], 0\ns_load_dwordx2 s[8:9], s[0:1], 16")
    A("s_lshl_b32 s3, s2, 8\nv_add_u32 v1, s3, v0\nv_lshlrev_b32 v1, 7, v1")
    A("s_waitcnt lgkmcnt(0)")
    srd(A,16,4,X_BYTES); srd(A,20,6,W_BYTES); srd(A,24,8,W_BYTES)
    A("buffer_load_dword v2, v1, s[16:19], 0 offen\nbuffer_load_dword v3, v1, s[20:23], 0 offen\nbuffer_load_dword v4, v1, s[24:27], 0 offen")
    A("s_waitcnt vmcnt(0)")
    A("PF_end:\ns_endpgm")
def pc(A):
    A(".p2align 8\n.globl pc_kernel\n.type pc_kernel,@function\npc_kernel:")
    A("s_cmp_ge_u32 s2, 256\ns_cbranch_scc1 PC_end")
    A("s_load_dwordx4 s[4:7], s[0:1], 0\ns_load_dwordx2 s[8:9], s[0:1], 16")
    A("s_getpc_b64 s[30:31]\nPC_here:\ns_sub_u32 s30, s30, PC_here-k1_kernel\ns_subb_u32 s31, s31, 0")
    A("v_lshlrev_b32 v5, 6, v0\nv_min_u32 v5, PC_here-k1_kernel, v5")
    A("global_load_dword v6, v5, s[30:31]")
    A("s_lshl_b32 s3, s2, 8\nv_add_u32 v1, s3, v0\nv_lshlrev_b32 v1, 7, v1")
    A("s_waitcnt lgkmcnt(0)")
    srd(A,16,4,X_BYTES); srd(A,20,6,W_BYTES); srd(A,24,8,W_BYTES)
    A("buffer_load_dword v2, v1, s[16:19], 0 offen\nbuffer_load_dword v3, v1, s[20:23], 0 offen\nbuffer_load_dword v4, v1, s[24:27], 0 offen")
    A("s_waitcnt vmcnt(0)")
    A("PC_end:\ns_endpgm")
def pw(A):
    A(".p2align 8\n.globl pw_kernel\n.type pw_kernel,@function\npw_kernel:")
    A("s_cmp_ge_u32 s2, 256\ns_cbranch_scc1 PW_end")
    A("s_load_dwordx2 s[8:9], s[0:1], 40")
    A("s_lshl_b32 s3, s2, 9\nv_add_u32 v1, s3, v0\nv_lshlrev_b32 v1, 7, v1")
    A("s_waitcnt lgkmcnt(0)")
    srd(A,24,8,H_BYTES)
    A("buffer_load_dword v4, v1, s[24:27], 0 offen")
    A("s_waitcnt vmcnt(0)")
    A("PW_end:\ns_endpgm")

def rd(A, name, ptroff, base, nbytes, aux):
    A(f".p2align 8\n.globl {name}\n.type {name},@function\n{name}:")
    A(f"s_cmp_ge_u32 s2, 256\ns_cbranch_scc1 {name}_end")
    A(f"s_load_dwordx2 s[8:9], s[0:1], {ptroff}")
    A("s_lshl_b32 s3, s2, 8\nv_add_u32 v1, s3, v0\nv_lshlrev_b32 v1, 7, v1")
    A("s_waitcnt lgkmcnt(0)")
    srd(A,24,8,0x10000000)
    for k in range(nbytes>>23):
        A(f"s_mov_b32 s3, {base+(k<<23)}\nbuffer_load_dword v4, v1, s[24:27], s3 offen {aux}")
    A("s_waitcnt vmcnt(0)")
    A(f"{name}_end:\ns_endpgm")

def build(BN=64, diag=False, extra_empty=0, order=None, **kw):
    B=Asm()
    k1(B,diag,**kw); lds2=k2(B,BN,diag)
    if order:
        pf(B); pw(B); pc(B)
        B('.p2align 8\n.globl e_kernel\n.type e_kernel,@function\ne_kernel:\ns_endpgm')
        rd(B,"ra_kernel",40,32<<20,64<<20,""); rd(B,"rb_kernel",40,32<<20,64<<20,"nt")
        rd(B,"rc_kernel",40,192<<20,64<<20,""); rd(B,"rd_kernel",40,192<<20,64<<20,"nt")
        A=Asm(); A(HEADER.rstrip())
        cfg={'1':"k1_kernel grid=(256,1,1) block=(512,1,1) lds=135168",'2':f"k2_kernel grid=(256,1,1) block=(512,1,1) lds={lds2}",
             'p':"pf_kernel grid=(256,1,1) block=(256,1,1) lds=0",'w':"pw_kernel grid=(256,1,1) block=(512,1,1) lds=0"}
        cfg['q']="pc_kernel grid=(256,1,1) block=(256,1,1) lds=0"; cfg['e']="e_kernel grid=(1,1,1) block=(64,1,1) lds=0"
        for c in "abcd": cfg[c]=f"r{c}_kernel grid=(256,1,1) block=(256,1,1) lds=0"
        for c in order: A("; @launch kernel="+cfg[c])
        A('.amdgcn_target "amdgcn-amd-amdhsa--gfx950"\n.text')
        A(B.text().rstrip())
        A('.section .rodata,"a"')
        for n in ["k1_kernel","k2_kernel","pf_kernel","pw_kernel","pc_kernel","e_kernel","ra_kernel","rb_kernel","rc_kernel","rd_kernel"]:
            A(".p2align 6"); A(kd(n))
        return A.text()
    if BN==128: k3(B)
    if extra_empty:
        B(".p2align 8\n.globl e_kernel\n.type e_kernel,@function\ne_kernel:\ns_endpgm")
    A=Asm()
    A(HEADER.rstrip())
    A("; @launch kernel=k1_kernel grid=(256,1,1) block=(512,1,1) lds=135168")
    A(f"; @launch kernel=k2_kernel grid=(256,1,1) block=(512,1,1) lds={lds2}")
    if BN==128: A("; @launch kernel=k3_kernel grid=(128,1,1) block=(256,1,1) lds=0")
    for _ in range(extra_empty): A("; @launch kernel=e_kernel grid=(256,1,1) block=(64,1,1) lds=0")
    A('.amdgcn_target "amdgcn-amd-amdhsa--gfx950"\n.text')
    A(B.text().rstrip())
    A('.section .rodata,"a"')
    for n in ["k1_kernel","k2_kernel"]+(["k3_kernel"] if BN==128 else [])+(["e_kernel"] if extra_empty else []):
        A(".p2align 6"); A(kd(n))
    return A.text()

if __name__=="__main__":
    import argparse
    p=argparse.ArgumentParser(); p.add_argument("-o"); p.add_argument("--bn",type=int,default=64); p.add_argument("--diag",action="store_true"); p.add_argument("--empty",type=int,default=0); p.add_argument("--order"); p.add_argument("--rot",type=int,default=0); p.add_argument("--pf",type=int,default=0); p.add_argument("--early",type=int,default=0)
    a=p.parse_args()
    open(a.o,"w").write(build(a.bn,a.diag,a.empty,a.order,rot=a.rot,pfm=a.pf,early=a.early))
```

```python
import sys, argparse
NAME="standalone__dense_activation_silu__prompt_kernel"
class Asm:
    def __init__(self): self.L=[]
    def __call__(self, s):
        for l in s.split("\n"): self.L.append(l)
    def text(self): return "\n".join(self.L)+"\n"
def vr(a,n): return f"v[{a}:{a+n-1}]"
def srd(A, d, b, nbytes):
    A(f"s_mov_b32 s{d}, s{b}\ns_and_b32 s{d+1}, s{b+1}, 0xffff\ns_mov_b32 s{d+2}, {nbytes}\ns_mov_b32 s{d+3}, 0x20000")
X_BYTES=2048*1024*2; W_BYTES=1024*3584*2; O_BYTES=2048*1024*2
H_OFF=0; P_OFF=16<<20; F_OFF=48<<20; F2_OFF=F_OFF+65536; T_OFF=64<<20
SX,SW1,SW2,SO,SD,SWS=16,20,24,28,32,36
sMt,sJ,sFt8,sFt,sLid=40,41,42,43,44
OOB=0x7ffffff0
SPIN=1<<17

def interleave(mf, rd, start=0, per=1):
    out=[]; k=0
    for n,m in enumerate(mf):
        out.append(m)
        if n>=start:
            for _ in range(per):
                if k<len(rd): out.append(rd[k]); k+=1
    return out+rd[k:]
def snake(NJ,NI): return [(j,(i if j%2==0 else NI-1-i)) for j in range(NJ) for i in range(NI)]

def build(diag=0, rot=0, pf1=1, pf2=1, pfc=1, silu_mode=0, outaux="sc1"):
    A=Asm()
    def stamp(k):
        if diag: A(f"s_memtime s[{64+2*k}:{65+2*k}]")
    def rstamp(k):
        if diag: A(f"s_memrealtime s[{64+2*k}:{65+2*k}]")
    def flush(n):
        if not diag: return
        A(f"s_waitcnt lgkmcnt(0)\ns_lshl_b32 s60, s2, 3\ns_add_u32 s60, s60, s3\ns_lshl_b32 s60, s60, 8\ns_add_u32 s60, s60, {T_OFF}\nv_mov_b32 v1, 0")
        for k in range(n):
            A(f"v_mov_b32 v2, s{64+2*k}\nbuffer_store_dword v2, v1, s[{SWS}:{SWS+3}], s60 offen offset:{4*k}")
        A("s_waitcnt vmcnt(0)")
    STG=45056; WOFF=16384
    A("""; Fused feed-forward: out = silu(x @ w1) @ w2, bf16 in/out, fp32 accumulate.
; @launch grid=(256,1,1) block=(512,1,1) lds=163840""")
    A('.amdgcn_target "amdgcn-amd-amdhsa--gfx950"\n.text')
    A(f".globl {NAME}\n.p2align 8\n.type {NAME},@function\n{NAME}:")
    A("s_load_dwordx8 s[4:11], s[0:1], 0\ns_load_dwordx4 s[12:15], s[0:1], 32")
    A("s_cmp_ge_u32 s2, 256\ns_cbranch_scc1 L_end")
    stamp(0); rstamp(14)
    A("v_lshrrev_b32 v1, 6, v0\nv_and_b32 v2, 63, v0")
    A("s_and_b32 s45, s2, 7\ns_lshr_b32 s46, s2, 3")
    A("v_readfirstlane_b32 s3, v1")
    A(f"s_lshr_b32 s{sMt}, s45, 1\ns_lshl_b32 s{sMt}, s{sMt}, 2\ns_lshr_b32 s47, s46, 3\ns_add_u32 s{sMt}, s{sMt}, s47")
    A(f"s_and_b32 s{sJ}, s45, 1\ns_and_b32 s{sFt8}, s46, 7\ns_lshl_b32 s{sFt}, s{sJ}, 3\ns_add_u32 s{sFt}, s{sFt}, s{sFt8}")
    A(f"s_lshl_b32 s{sLid}, s{sMt}, 4\ns_add_u32 s{sLid}, s{sLid}, s{sFt}")
    A("s_cmp_lt_u32 s3, 4\ns_cbranch_scc1 L_cons")
    sP,sKX,sKW,sLX,sLW,sRing,sCnt,sT0,sT1=46,47,48,49,50,51,52,53,54
    A(f"s_sub_u32 s{sP}, s3, 4")
    A("v_lshrrev_b32 v3, 2, v2\nv_mul_u32_u24 v3, 7168, v3\nv_and_b32 v4, 3, v2\nv_lshrrev_b32 v5, 5, v2\nv_lshlrev_b32 v5, 1, v5\nv_xor_b32 v4, v4, v5\nv_lshl_add_u32 v12, v4, 4, v3")
    A(f"s_mul_i32 s{sKW}, s{sP}, {16*7168}\ns_mul_i32 s{sT0}, s{sFt}, 448\ns_add_u32 s{sKW}, s{sKW}, s{sT0}")
    A("v_lshrrev_b32 v3, 3, v2\nv_and_b32 v4, 7, v2\nv_lshrrev_b32 v5, 4, v2\nv_xor_b32 v4, v4, v5\nv_lshlrev_b32 v4, 4, v4\nv_lshl_add_u32 v3, v3, 11, v4")
    A(f"s_lshl_b32 s{sT0}, s{sMt}, 18\ns_lshl_b32 s{sT1}, s{sP}, 16\ns_add_u32 s{sT0}, s{sT0}, s{sT1}\nv_add_u32 v8, s{sT0}, v3")
    A("v_xor_b32 v9, 64, v8\nv_add_u32 v9, 0x4000, v9\nv_add_u32 v10, 0x8000, v8\nv_add_u32 v11, 0x8000, v9")
    A(f"s_mov_b32 s{sKX}, 0")
    if rot:
        if rot==1: A(f"s_lshr_b32 s{sT0}, s45, 1\ns_lshl_b32 s{sT1}, s{sJ}, 1\ns_add_u32 s{sT0}, s{sT0}, s{sT1}\ns_and_b32 s{sT0}, s{sT0}, 3\ns_lshl_b32 s{sT0}, s{sT0}, 2")
        elif rot==2: A(f"s_add_u32 s{sT0}, s{sMt}, s{sFt}\ns_and_b32 s{sT0}, s{sT0}, 15")
        elif rot==3: A(f"s_lshl_b32 s{sT0}, s45, 1")
        A(f"s_lshl_b32 s{sKX}, s{sT0}, 7\ns_mul_i32 s{sT0}, s{sT0}, {64*7168}\ns_add_u32 s{sKW}, s{sKW}, s{sT0}")
    A(f"s_lshl_b32 s{sLX}, s{sP}, 12\ns_mul_i32 s{sLW}, s{sP}, 7168\ns_add_u32 s{sLW}, s{sLW}, {WOFF}\ns_mov_b32 s{sRing}, 0\ns_mov_b32 s{sCnt}, 0")
    A("s_waitcnt lgkmcnt(0)")
    srd(A,SW1,6,W_BYTES); srd(A,SX,4,X_BYTES)
    def issue1():
        A(f"s_add_u32 s{sT0}, s{sRing}, s{sLW}\ns_add_u32 s{sT1}, s{sRing}, s{sLX}\ns_mov_b32 m0, s{sT0}")
        A(f"s_add_u32 s{sRing}, s{sRing}, {STG}")
        for t in range(7):
            A(f"buffer_load_dwordx4 v12, s[{SW1}:{SW1+3}], s{sKW} offen offset:{t*64} lds")
            A(f"s_add_u32 m0, m0, 960" if t<6 else f"s_mov_b32 m0, s{sT1}")
            A("s_nop 0" if t else f"s_cmp_eq_u32 s{sRing}, {STG*3}")
            if t==0: A(f"s_cselect_b32 s{sRing}, 0, s{sRing}")
        for n in range(4):
            A(f"buffer_load_dwordx4 v{8+n}, s[{SX}:{SX+3}], s{sKX} offen lds")
            if n<3: A("s_add_u32 m0, m0, 1024\ns_nop 0")
        A(f"s_add_u32 s{sKX}, s{sKX}, 128\ns_add_u32 s{sKW}, s{sKW}, {64*7168}")
        if rot: A(f"s_and_b32 s{sKX}, s{sKX}, 2047\ns_cselect_b32 s{sT0}, 0, {1024*7168}\ns_sub_u32 s{sKW}, s{sKW}, s{sT0}")
    stamp(1)
    A("P1_pro:")
    issue1()
    A(f"s_add_u32 s{sCnt}, s{sCnt}, 1\ns_cmp_lt_u32 s{sCnt}, 2\ns_cbranch_scc1 P1_pro")
    npf=0
    if pf1:
        A("v_and_b32 v14, 7, v2\nv_lshlrev_b32 v14, 11, v14\nv_bfe_u32 v15, v2, 3, 2\nv_lshl_add_u32 v14, v15, 7, v14")
        A(f"s_lshl_b32 s{sT0}, s2, 14\ns_lshl_b32 s{sT1}, s{sP}, 9\ns_add_u32 s{sT0}, s{sT0}, s{sT1}")
        A("v_min_u32 v15, 55, v2\nv_lshlrev_b32 v15, 7, v15")
        A(f"s_lshl_b32 s{sT1}, s2, 2\ns_add_u32 s{sT1}, s{sT1}, s{sP}\ns_mul_i32 s{sT1}, s{sT1}, 7168")
        A(f"buffer_load_dword v16, v15, s[{SW1}:{SW1+3}], s{sT1} offen\nbuffer_load_dword v17, v14, s[{SX}:{SX+3}], s{sT0} offen")
        npf=2
    srd(A,SW2,8,W_BYTES); srd(A,SD,12,256); srd(A,SWS,14,0x10000000)
    sHp,sHalf=55,56
    A(f"s_lshr_b32 s{sHp}, s{sP}, 1\ns_and_b32 s{sHalf}, s{sP}, 1")
    A("v_subrev_u32 v5, 3, v2\nv_mul_u32_u24 v3, 37, v5\nv_lshrrev_b32 v3, 8, v3\nv_mul_u32_u24 v4, 7, v3\nv_sub_u32 v4, v5, v4\nv_add_u32 v4, 1, v4")
    A("v_cmp_gt_u32 vcc, 3, v2\ns_nop 1\nv_cndmask_b32 v3, v3, v2, vcc\nv_cndmask_b32 v4, v4, 0, vcc")
    A(f"v_add_u32 v4, s{sFt8}, v4\nv_and_b32 v4, 7, v4\nv_mul_u32_u24 v4, 7, v4\nv_add_u32 v4, v4, v3\ns_lshl_b32 s{sT0}, s{sHp}, 2\nv_add_u32 v4, s{sT0}, v4")
    A(f"v_subrev_u32 v5, 24, v2\nv_lshlrev_b32 v5, 1, v5\nv_add_u32 v5, s{sHp}, v5\nv_mul_u32_u24 v5, 7, v5\nv_add_u32 v5, 3, v5")
    A("v_cmp_gt_u32 vcc, 24, v2\ns_nop 1\nv_cndmask_b32 v4, v5, v4, vcc\nv_and_b32 v4, 63, v4")
    A(f"s_mul_i32 s{sT0}, s{sJ}, 56\nv_add_u32 v4, s{sT0}, v4")
    A(f"s_mul_i32 s{sT0}, s{sMt}, {112*8192}\ns_lshl_b32 s{sT1}, s{sHalf}, 12\ns_add_u32 s{sT0}, s{sT0}, s{sT1}\ns_add_u32 s{sT0}, s{sT0}, {H_OFF}")
    A(f"v_lshlrev_b32 v20, 13, v4\nv_add_u32 v20, s{sT0}, v20")
    A(f"s_lshl_b32 s{sT0}, s{sHalf}, 15\ns_lshl_b32 s{sT1}, s{sHalf}, 13\nv_mov_b32 v5, s{sT0}\nv_mov_b32 v6, s{sT1}\nv_cndmask_b32 v5, v6, v5, vcc")
    A(f"v_lshl_add_u32 v21, v4, 16, v5\ns_lshl_b32 s{sT0}, s{sFt8}, 8\nv_add_u32 v21, s{sT0}, v21")
    A("v_and_b32 v4, 3, v2\nv_bfe_u32 v5, v2, 4, 1\nv_lshlrev_b32 v6, 1, v5\nv_xor_b32 v4, v4, v6\nv_lshlrev_b32 v4, 4, v4")
    A("v_lshrrev_b32 v6, 5, v2\nv_lshl_add_u32 v4, v6, 6, v4")
    A("v_bfe_u32 v6, v2, 2, 3\nv_lshl_add_u32 v22, v6, 11, v4\nv_add_u32 v23, 0x4000, v22")
    A("v_lshl_add_u32 v24, v5, 13, v22\nv_add_u32 v25, 0x8000, v24")
    A("v_lshlrev_b32 v26, 4, v2")
    A(f"s_waitcnt vmcnt({11+npf})")
    stamp(2)
    A("s_barrier")
    issue1()
    A(f"s_waitcnt vmcnt({11+npf})\ns_mov_b32 s{sCnt}, 0\ns_branch P1_in")
    A("P1_loop:\ns_waitcnt vmcnt(11)\nP1_in:\ns_barrier")
    issue1()
    A(f"s_add_u32 s{sCnt}, s{sCnt}, 1\ns_cmp_lt_u32 s{sCnt}, 13\ns_cbranch_scc1 P1_loop")
    sW,sH,sSlot,sLW2,sLH=47,48,51,50,49
    A(f"s_lshl_b32 s{sLH}, s{sP}, 12\ns_add_u32 s{sLW2}, s{sLH}, 65536\ns_mov_b32 s{sCnt}, 0\ns_mov_b32 s{sSlot}, 0")
    def issueW(q=None):
        A(f"s_add_u32 m0, s{sLW2}, s{sSlot}\ns_nop 0")
        for n in range(4):
            o,tb=n>>1,n&1
            A(f"buffer_load_dwordx4 v{22+o}, s[{SW2}:{SW2+3}], s{sW} offen offset:{tb*128} lds")
            if n<3: A(f"s_add_u32 m0, m0, {896 if tb==0 else 1024+128}\ns_nop 0")
    def issueH():
        A(f"s_add_u32 m0, s{sLH}, s{sSlot}\ns_nop 0")
        for n in range(4): A(f"buffer_load_dwordx4 v26, s[{SWS}:{SWS+3}], s{sH} offen offset:{n*1024} sc1 lds")
    A(f"v_readlane_b32 s{sW}, v21, 0")
    A("s_waitcnt vmcnt(11)\ns_barrier")
    A("s_nop 2")
    issueW()
    n2=0
    if pf2:
        A(f"v_min_u32 v15, 55, v2\nv_lshlrev_b32 v15, 7, v15\ns_lshl_b32 s{sT1}, s2, 2\ns_add_u32 s{sT1}, s{sT1}, s{sP}\ns_mul_i32 s{sT1}, s{sT1}, 7168")
        A(f"buffer_load_dword v16, v15, s[{SW2}:{SW2+3}], s{sT1} offen")
        n2=1
    A(f"s_waitcnt vmcnt({4+n2})\ns_barrier")
    A("P2_w:")
    A(f"s_add_u32 s{sCnt}, s{sCnt}, 1\ns_add_u32 s{sSlot}, s{sSlot}, 16384\nv_readlane_b32 s{sW}, v21, s{sCnt}\ns_nop 2")
    issueW()
    A(f"s_cmp_lt_u32 s{sCnt}, 3\ns_cbranch_scc1 P2_w")
    A("s_barrier")
    A(f"v_readlane_b32 s{sH}, v20, 3")
    A(f"v_and_b32 v3, 3, v2\nv_lshlrev_b32 v3, 2, v3\ns_lshl_b32 s{sT0}, s{sMt}, 4\ns_mov_b32 s57, 0x01010101\ns_mov_b32 s58, 0")
    A("P2_hs:")
    A(f"buffer_load_dword v4, v3, s[{SD}:{SD+3}], s{sT0} offen sc1\ns_add_u32 s58, s58, 1\ns_waitcnt vmcnt(0)")
    A(f"v_cmp_ne_u32 vcc, s57, v4\ns_cmp_lt_u32 s58, {SPIN}\ns_cselect_b64 s[60:61], -1, 0\ns_and_b64 vcc, vcc, s[60:61]\ns_cbranch_scc1 P2_hs")
    stamp(3)
    A(f"v_and_b32 v3, 31, v2\nv_lshlrev_b32 v3, 2, v3\ns_lshr_b32 s59, s{sLid}, 3\ns_lshl_b32 s59, s59, 7\ns_add_u32 s59, s59, {F_OFF}")
    def poll(label, level):
        A(f"s_mov_b32 s58, 0\n{label}:")
        A(f"buffer_load_dword v4, v3, s[{SWS}:{SWS+3}], s59 offen sc1\ns_add_u32 s58, s58, 1\ns_waitcnt vmcnt(0)")
        A(f"v_cmp_gt_u32 vcc, {level}, v4\ns_cmp_lt_u32 s58, {SPIN}\ns_cselect_b64 s[60:61], -1, 0\ns_and_b64 vcc, vcc, s[60:61]\ns_cbranch_scc1 {label}")
    poll("P2_l1",1)
    stamp(4)
    issueH()
    A("s_barrier")
    A(f"s_mov_b32 s{sCnt}, 4")
    A("P2_loop:")
    A(f"v_readlane_b32 s{sW}, v21, s{sCnt}\nv_readlane_b32 s{sH}, v20, s{sCnt}")
    A(f"s_add_u32 s{sSlot}, s{sSlot}, 16384\ns_and_b32 s{sSlot}, s{sSlot}, 0xffff")
    A(f"s_cmp_eq_u32 s{sCnt}, 24\ns_cbranch_scc0 P2_a\nv_mov_b32 v22, v24\nv_mov_b32 v23, v25\nP2_a:")
    A("s_waitcnt vmcnt(16)\ns_barrier")
    A(f"s_cmp_eq_u32 s{sCnt}, 10\ns_cbranch_scc0 P2_b")
    A("v_cmp_gt_u32 vcc, 2, v4\ns_nop 4\ns_cbranch_vccz P2_b")
    poll("P2_l2",2)
    A("P2_b:")
    issueW(); issueH()
    A(f"s_cmp_eq_u32 s{sCnt}, 7\ns_cbranch_scc0 P2_c\nbuffer_load_dword v4, v3, s[{SWS}:{SWS+3}], s59 offen sc1\nP2_c:")
    A(f"s_add_u32 s{sCnt}, s{sCnt}, 1\ns_cmp_lt_u32 s{sCnt}, 28\ns_cbranch_scc1 P2_loop")
    A("s_waitcnt vmcnt(16)\ns_barrier\ns_waitcnt vmcnt(8)\ns_barrier\ns_waitcnt vmcnt(0)\ns_barrier\ns_barrier")
    if diag: stamp(5); rstamp(15); flush(16)
    A("s_endpgm")
    A(".p2align 6\nL_cons:")
    ACC=16; F=[(128,144),(172,188)]
    vX0,vX1,vE,vO,vL=4,5,6,7,8; bX0,bE,bL=9,10,11
    sWm,sWf,sIt,sRg,sA,sB,sC=46,47,48,49,50,51,52
    if pfc:
        A(f"s_getpc_b64 s[54:55]\nC_pc:\ns_sub_u32 s54, s54, C_pc-{NAME}\ns_subb_u32 s55, s55, 0")
        A(f"v_lshlrev_b32 v3, 7, v0\nv_min_u32 v3, L_end-{NAME}, v3\nglobal_load_dword v255, v3, s[54:55]")
    A("s_setprio 1")
    A(f"s_lshr_b32 s{sWm}, s3, 1\ns_and_b32 s{sWf}, s3, 1")
    A("v_and_b32 v3, 15, v2\nv_lshrrev_b32 v12, 4, v2")
    A("v_lshrrev_b32 v13, 1, v3\nv_xor_b32 v13, v13, v12\nv_lshlrev_b32 v13, 4, v13")
    A(f"s_lshl_b32 s{sA}, s{sWm}, 13\nv_lshlrev_b32 v14, 7, v3\nv_add3_u32 v{bX0}, v13, v14, s{sA}")
    A("v_lshrrev_b32 v13, 1, v12\nv_mul_u32_u24 v13, 7168, v13\nv_and_b32 v14, 1, v12\nv_mul_u32_u24 v14, 544, v14\nv_add_u32 v13, v13, v14")
    A("v_bfe_u32 v15, v2, 2, 2\nv_lshl_add_u32 v13, v15, 6, v13\nv_and_b32 v15, 3, v2\nv_lshl_add_u32 v13, v15, 3, v13")
    A(f"s_lshl_b32 s{sA}, s{sWf}, 12\ns_add_u32 s{sA}, s{sA}, {WOFF}\nv_add_u32 v{bE}, s{sA}, v13")
    A(f"s_lshl_b32 s{sA}, s{sWf}, 5\nv_xor_b32 v13, s{sA}, v13\nv_add_u32 v{bL}, {WOFF+3072}, v13")
    def upd(base):
        A(f"v_add_u32 v{vE}, {base}, v{bE}\nv_add_u32 v{vX0}, {base}, v{bX0}\nv_add_u32 v{vL}, {base}, v{bL}")
        A(f"v_xor_b32 v{vO}, 32, v{vE}\nv_xor_b32 v{vX1}, 64, v{vX0}")
    upd("0")
    A("s_waitcnt lgkmcnt(0)")
    srd(A,SO,10,O_BYTES); srd(A,SD,12,256); srd(A,SWS,14,0x10000000)
    A(f"s_lshl_b32 s{sA}, s{sLid}, 4\ns_add_u32 s{sA}, s{sA}, {F_OFF}\ns_lshl_b32 s{sB}, s{sLid}, 7\ns_add_u32 s{sB}, s{sB}, {F2_OFF-16}")
    A(f"v_mov_b32 v13, s{sA}\nv_mov_b32 v14, s{sB}\nv_cmp_gt_u32 vcc, 4, v0\ns_nop 1\nv_cndmask_b32 v13, v14, v13, vcc\nv_lshl_add_u32 v13, v0, 2, v13")
    A(f"v_mov_b32 v14, {OOB}\nv_cmp_gt_u32 vcc, 8, v0\ns_nop 1\nv_cndmask_b32 v13, v14, v13, vcc\nv_mov_b32 v14, 0")
    A(f"buffer_store_dword v14, v13, s[{SWS}:{SWS+3}], 0 offen sc1")
    for r in range(112): A(f"v_mov_b32 v{ACC+r}, 0")
    def reads1(u, fs):
        X,W=F[fs]
        xs=[f"ds_read_b128 {vr(X+4*i,4)}, v{vX1 if u else vX0} offset:{i*2048}" for i in range(4)]
        ws=[]
        for j in range(7):
            a,o=(vL,0) if j==6 else ((vO if j&1 else vE),(j>>1)*1024)
            for hh in range(2): ws.append(f"ds_read_b64_tr_b16 {vr(W+4*j+2*hh,2)}, v{a} offset:{u*14336+o+hh*256}")
        return ws[0:2]+xs+ws[2:]
    def mf1(fs):
        X,W=F[fs]
        return [f"v_mfma_f32_16x16x32_bf16 {vr(ACC+(j*4+i)*4,4)}, {vr(W+4*j,4)}, {vr(X+4*i,4)}, {vr(ACC+(j*4+i)*4,4)}" for j,i in snake(7,4)]
    A(f"s_mov_b32 s{sIt}, 0\ns_mov_b32 s{sRg}, 0")
    A("s_barrier")
    stamp(1)
    for l in reads1(0,0): A(l)
    A(".p2align 3\nC1_loop:")
    A("s_waitcnt lgkmcnt(0)")
    for l in interleave(mf1(0), reads1(1,1)): A(l)
    A(f"s_add_u32 s{sRg}, s{sRg}, {STG}\ns_cmp_eq_u32 s{sRg}, {STG*3}\ns_cselect_b32 s{sRg}, 0, s{sRg}")
    A("s_waitcnt lgkmcnt(0)\ns_barrier")
    upd(f"s{sRg}")
    for l in interleave(mf1(1), reads1(0,0)): A(l)
    A(f"s_cmp_eq_u32 s{sIt}, 3\ns_cbranch_scc1 C1_hs\nC1_back:")
    A(f"s_add_u32 s{sIt}, s{sIt}, 1\ns_cmp_lt_u32 s{sIt}, 16\ns_cbranch_scc1 C1_loop")
    stamp(2)
    A(f"s_mul_i32 s{sA}, s{sMt}, 112\ns_mul_i32 s{sB}, s{sFt}, 7\ns_add_u32 s{sA}, s{sA}, s{sB}\ns_lshl_b32 s{sA}, s{sA}, 13")
    A(f"s_lshl_b32 s{sB}, s{sWm}, 12\ns_add_u32 s{sA}, s{sA}, s{sB}\ns_add_u32 s{sC}, s{sA}, {H_OFF+3*8192}")
    A(f"s_lshl_b32 s{sB}, s{sWf}, 15\ns_add_u32 s{sA}, s{sA}, s{sB}\ns_add_u32 s{sA}, s{sA}, {H_OFF}")
    A("s_mov_b32 s53, 0xbfb8aa3b")
    A(f"v_lshlrev_b32 v3, 4, v2\ns_lshl_b32 s{sB}, s{sWf}, 13\ns_lshl_b32 s54, s{sWm}, 12\ns_add_u32 s{sB}, s{sB}, s54\nv_add_u32 v4, s{sB}, v3")
    A(f"v_and_b32 v5, 15, v2\nv_lshlrev_b32 v5, 4, v5\nv_bfe_u32 v6, v2, 4, 1\nv_lshl_add_u32 v5, v6, 10, v5\nv_lshrrev_b32 v6, 5, v2\nv_lshl_add_u32 v5, v6, 8, v5\ns_lshl_b32 s{sB}, s{sWf}, 9\nv_add_u32 v5, s{sB}, v5")
    A(f"s_lshl_b32 s56, s{sLid}, 4\ns_lshl_b32 s{sB}, s3, 2\ns_add_u32 s56, s56, s{sB}\ns_add_u32 s56, s56, {F_OFF}")
    A(f"v_mov_b32 v6, {OOB}\nv_cmp_eq_u32 vcc, 0, v2\ns_nop 1\nv_cndmask_b32 v6, v6, 0, vcc\nv_mov_b32 v7, 1")
    A("s_waitcnt lgkmcnt(0)")
    T=216
    def silu(srcs, dsts, t):
        n=len(srcs)
        for r in range(n): A(f"v_mul_f32 v{t+r}, s53, v{srcs[r]}")
        for r in range(n): A(f"v_exp_f32 v{t+r}, v{t+r}")
        for r in range(n): A(f"v_add_f32 v{t+r}, 1.0, v{t+r}")
        for r in range(n): A(f"v_rcp_f32 v{t+r}, v{t+r}")
        for r in range(n): A(f"v_mul_f32 v{t+r}, v{t+r}, v{srcs[r]}")
        for r in range(n//2): A(f"v_cvt_pk_bf16_f32 v{dsts[r]}, v{t+2*r}, v{t+2*r+1}")
    n=0
    for L in range(3):
        for i in range(4):
            D=128+(n%8)*4; n+=1
            a=ACC+((2*L)*4+i)*4; b=ACC+((2*L+1)*4+i)*4
            silu([a,a+1,a+2,a+3,b,b+1,b+2,b+3],[D,D+1,D+2,D+3],T)
            A(f"buffer_store_dwordx4 {vr(D,4)}, v3, s[{SWS}:{SWS+3}], s{sA} offen offset:{i*1024} sc1")
            A(f"ds_write_b128 v4, {vr(D,4)} offset:{L*16384+i*1024}")
        if L<2: A(f"s_add_u32 s{sA}, s{sA}, 8192")
    A(f"s_waitcnt vmcnt(8)\nbuffer_store_dword v7, v6, s[{SWS}:{SWS+3}], s56 offen sc1")
    for ip in range(2):
        D=128+(n%8)*4; n+=1
        a=ACC+(24+2*ip)*4; b=a+4
        silu([a,a+1,a+2,a+3,b,b+1,b+2,b+3],[D,D+1,D+2,D+3],T)
        A(f"s_nop 1\nv_permlane16_swap_b32 v{D}, v{D+2}\nv_permlane16_swap_b32 v{D+1}, v{D+3}")
        A(f"buffer_store_dwordx4 {vr(D,4)}, v5, s[{SWS}:{SWS+3}], s{sC} offen offset:{ip*2048} sc1")
    F2=[(160,176),(192,208)]; vH0,vH1=8,9; vE2,vO2=10,11
    A(f"s_lshl_b32 s{sA}, s{sWm}, 12\ns_lshl_b32 s{sB}, s{sJ}, 11\ns_add_u32 s{sA}, s{sA}, s{sB}\nv_add_u32 v{vH0}, s{sA}, v3\nv_xor_b32 v{vH1}, 0x800, v{vH0}")
    A("v_lshrrev_b32 v13, 5, v2\nv_lshlrev_b32 v13, 11, v13\nv_bfe_u32 v14, v2, 4, 1\nv_mul_u32_u24 v14, 288, v14\nv_add_u32 v13, v13, v14")
    A("v_bfe_u32 v15, v2, 2, 2\nv_lshl_add_u32 v13, v15, 6, v13\nv_and_b32 v15, 3, v2\nv_lshl_add_u32 v13, v15, 3, v13")
    A(f"s_lshl_b32 s{sA}, s{sWf}, 10\ns_add_u32 s{sA}, s{sA}, 65536\nv_add_u32 v{vE2}, s{sA}, v13\nv_xor_b32 v{vO2}, 32, v{vE2}")
    A(f"v_mov_b32 v7, 2\ns_mov_b32 s{sIt}, 0")
    def reads2(slot,u,fs):
        X,W=F2[fs]
        xs=[f"ds_read_b128 {vr(X+4*i,4)}, v{vH1 if i>>1 else vH0} offset:{slot*16384+u*8192+(i&1)*1024}" for i in range(4)]
        ws=[f"ds_read_b64_tr_b16 {vr(W+4*j+2*hh,2)}, v{vO2 if j&1 else vE2} offset:{slot*16384+(4*u+2*hh)*2048+(j>>1)*512}" for j in range(4) for hh in range(2)]
        return ws[0:2]+xs+ws[2:]
    def mf2(fs,zero=False):
        X,W=F2[fs]
        return [f"v_mfma_f32_16x16x32_bf16 {vr(ACC+(j*4+i)*4,4)}, {vr(W+4*j,4)}, {vr(X+4*i,4)}, {'0' if zero else vr(ACC+(j*4+i)*4,4)}" for j,i in snake(4,4)]
    A("s_waitcnt lgkmcnt(0)")
    stamp(3)
    A("s_barrier")
    stamp(4)
    for l in reads2(0,0,0): A(l)
    A("s_waitcnt lgkmcnt(0)")
    for l in interleave(mf2(0,True), reads2(0,1,1)): A(l)
    A("s_branch C2_in")
    A(".p2align 3\nC2_loop:")
    for slot in range(4):
        A("s_waitcnt lgkmcnt(0)")
        for l in interleave(mf2(0), reads2(slot,1,1)): A(l)
        if slot==0: A("C2_in:")
        A("s_waitcnt lgkmcnt(0)\ns_barrier")
        for l in interleave(mf2(1), reads2((slot+1)&3,0,0)): A(l)
        if slot==1:
            A(f"s_cmp_eq_u32 s{sIt}, 0\ns_cbranch_scc0 C2_nf\ns_waitcnt vmcnt(0)\nbuffer_store_dword v7, v6, s[{SWS}:{SWS+3}], s56 offen sc1\nC2_nf:")
    A(f"s_add_u32 s{sIt}, s{sIt}, 1\ns_cmp_lt_u32 s{sIt}, 7\ns_cbranch_scc1 C2_loop")
    stamp(5)
    A(f"s_lshl_b32 s{sA}, s{sLid}, 2\ns_add_u32 s{sA}, s{sA}, s3\ns_lshl_b32 s{sA}, s{sA}, 13\ns_add_u32 s{sA}, s{sA}, {P_OFF}")
    A(f"s_xor_b32 s{sB}, s{sA}, {8<<15}\ns_add_u32 s54, s{sA}, 4096\ns_add_u32 s55, s{sB}, 4096")
    A(f"s_lshl_b32 s56, s{sLid}, 7\ns_lshl_b32 s57, s3, 2\ns_add_u32 s56, s56, s57\ns_add_u32 s56, s56, {F2_OFF}\ns_xor_b32 s57, s56, {8<<7}")
    A("v_mov_b32 v12, 0\ns_mov_b32 s58, 0\ns_nop 3")
    for iv in (2,3):
        for j in range(4):
            A(f"buffer_store_dwordx4 {vr(ACC+(j*4+iv)*4,4)}, v3, s[{SWS}:{SWS+3}], s{sA if iv==2 else 54} offen offset:{j*1024} sc1")
    A("v_and_b32 v13, 15, v2\nv_lshlrev_b32 v13, 11, v13\nv_bfe_u32 v14, v2, 4, 1\nv_lshl_add_u32 v13, v14, 5, v13\nv_lshrrev_b32 v14, 5, v2\nv_lshl_add_u32 v13, v14, 4, v13")
    A(f"s_lshl_b32 s{sC}, s{sMt}, 2\ns_lshl_b32 s59, s{sWm}, 1\ns_add_u32 s{sC}, s{sC}, s59\ns_add_u32 s{sC}, s{sC}, s{sJ}\ns_lshl_b32 s{sC}, s{sC}, 16")
    A(f"s_lshl_b32 s59, s{sFt8}, 8\ns_add_u32 s{sC}, s{sC}, s59\ns_lshl_b32 s59, s{sWf}, 7\ns_add_u32 s{sC}, s{sC}, s59\ns_add_u32 s59, s{sC}, 0x8000")
    A("s_waitcnt vmcnt(0)")
    stamp(6)
    A(f"buffer_store_dword v7, v6, s[{SWS}:{SWS+3}], s56 offen sc1")
    A("C3_poll:")
    A(f"buffer_load_dword v14, v12, s[{SWS}:{SWS+3}], s57 offen sc1\ns_add_u32 s58, s58, 1\ns_waitcnt vmcnt(0)")
    A(f"v_cmp_ne_u32 vcc, 2, v14\ns_cmp_lt_u32 s58, {SPIN}\ns_cselect_b64 s[60:61], -1, 0\ns_and_b64 vcc, vcc, s[60:61]\ns_cbranch_scc1 C3_poll")
    stamp(7)
    RB=128
    for iv in range(2):
        for j in range(4):
            A(f"buffer_load_dwordx4 {vr(RB+(iv*4+j)*4,4)}, v3, s[{SWS}:{SWS+3}], s{sB if iv==0 else 55} offen offset:{j*1024} sc1")
    for iv in range(2):
        for jp in range(2):
            A(f"s_waitcnt vmcnt({6-(iv*4+jp*2)+(iv*2+jp)})")
            if iv==0 and jp==0: stamp(8)
            D=160+(iv*2+jp)*4
            for jj in range(2):
                j=2*jp+jj; S=ACC+(j*4+iv)*4; Rr=RB+(iv*4+j)*4
                for r in range(4): A(f"v_add_f32 v{S+r}, v{S+r}, v{Rr+r}")
                A(f"v_cvt_pk_bf16_f32 v{D+2*jj}, v{S}, v{S+1}\nv_cvt_pk_bf16_f32 v{D+2*jj+1}, v{S+2}, v{S+3}")
            A(f"s_nop 1\nv_permlane16_swap_b32 v{D}, v{D+2}\nv_permlane16_swap_b32 v{D+1}, v{D+3}")
            A(f"buffer_store_dwordx4 {vr(D,4)}, v13, s[{SO}:{SO+3}], s{sC if iv==0 else 59} offen offset:{jp*64} {outaux}")
    if diag:
        stamp(9); A("s_waitcnt vmcnt(0)"); stamp(10); rstamp(15); flush(16)
    A("s_endpgm")
    A("C1_hs:\ns_cmp_eq_u32 s3, 0\ns_cbranch_scc0 C1_back")
    A(f"s_and_b32 s{sA}, s{sLid}, 3\ns_lshl_b32 s{sA}, s{sA}, 3\ns_lshl_b32 s{sA}, 1, s{sA}\nv_mov_b32 v13, s{sA}")
    A(f"s_andn2_b32 s{sA}, s{sLid}, 3\nv_lshlrev_b32 v14, 8, v2\ns_waitcnt vmcnt(0)")
    A(f"buffer_atomic_or v13, v14, s[{SD}:{SD+3}], s{sA} offen\ns_branch C1_back")
    A("L_end:\ns_endpgm")
    A(f""".section .rodata,"a"
.p2align 6
.amdhsa_kernel {NAME}
  .amdhsa_next_free_vgpr 256
  .amdhsa_next_free_sgpr 96
  .amdhsa_accum_offset 256
  .amdhsa_group_segment_fixed_size 0
  .amdhsa_kernarg_size 48
  .amdhsa_user_sgpr_count 2
  .amdhsa_user_sgpr_kernarg_segment_ptr 1
  .amdhsa_system_sgpr_workgroup_id_x 1
.end_amdhsa_kernel""")
    return A.text()

if __name__=="__main__":
    p=argparse.ArgumentParser(); p.add_argument("-o")
    for k,d in (("diag",0),("rot",0),("pf1",1),("pf2",1),("pfc",1),("silu_mode",0)): p.add_argument("--"+k,type=int,default=d)
    p.add_argument("--outaux",default="sc1")
    a=vars(p.parse_args()); o=a.pop("o")
    open(o,"w").write(build(**a))
```

```python
import sys, argparse
NAME="standalone__dense_activation_silu__prompt_kernel"
class Asm:
    def __init__(self): self.L=[]
    def __call__(self, s):
        for l in s.split("\n"): self.L.append(l)
    def text(self): return "\n".join(self.L)+"\n"
def vr(a,n): return f"v[{a}:{a+n-1}]"
def srd(A, d, b, nbytes):
    A(f"s_mov_b32 s{d}, s{b}\ns_and_b32 s{d+1}, s{b+1}, 0xffff\ns_mov_b32 s{d+2}, {nbytes}\ns_mov_b32 s{d+3}, 0x20000")
X_BYTES=2048*1024*2; W_BYTES=1024*3584*2; O_BYTES=2048*1024*2
H_OFF=0; P_OFF=24<<20; F_OFF=48<<20; T_OFF=64<<20
SX,SW1,SW2,SO,SD,SWS=16,20,24,28,32,36
sMt,sJ,sFt8,sFt,sLid,sXcd,sDt=40,41,42,43,44,45,63
OOB=0x7ffffff0
SPIN=1<<17
def R4(s): return f"s[{s}:{s+3}]"

def interleave(mf, rd):
    out=[]; k=0
    for m in mf:
        out.append(m)
        if k<len(rd): out.append(rd[k]); k+=1
    return out+rd[k:]
def snake(JS,NI): return [(j,(i if n%2==0 else NI-1-i)) for n,j in enumerate(JS) for i in range(NI)]

def build(diag=0, rot=1, pf1=0, pf2=1, pfc=1, outaux="sc1", pfa=13, dswz=0, w1aux="", xaux="", w2aux="", l1st=1, l2st=4, stag=1, l1epi=1, rmask=1, f3=9, skew2=1, pfb=0, stag2=1, remap=1, spa=0, spb=13, spn=4, ack=6):
    A=Asm(); OOL=[]
    tm='s_memrealtime' if diag>=3 else 's_memtime'
    def stamp(k):
        if diag: A(f"{tm} s[{64+2*k}:{65+2*k}]")
    def rstamp(k):
        if diag: A(f"s_memrealtime s[{64+2*k}:{65+2*k}]")
    def sstamp():
        if diag in (2,3): A(f"{tm} s[90:91]\ns_waitcnt lgkmcnt(0)\nv_writelane_b32 v254, s90, m0\ns_add_u32 m0, m0, 1")
    def flush(n, cons=False):
        if not diag: return
        A(f"s_waitcnt lgkmcnt(0)\ns_lshl_b32 s60, s2, 3\ns_add_u32 s60, s60, s3\ns_lshl_b32 s60, s60, 8\ns_add_u32 s60, s60, {T_OFF}\nv_mov_b32 v1, 0")
        for k in range(n): A(f"v_mov_b32 v2, s{64+2*k}\nbuffer_store_dword v2, v1, {R4(SWS)}, s60 offen offset:{4*k}")
        if cons and diag>=2:
            A(f"v_and_b32 v1, 63, v0\nv_lshlrev_b32 v1, 2, v1\nv_mov_b32 v2, {OOB}\nv_cmp_gt_u32 vcc, 192, v1\ns_nop 1\nv_cndmask_b32 v1, v2, v1, vcc")
            A(f"buffer_store_dword v254, v1, {R4(SWS)}, s60 offen offset:64")
        A("s_waitcnt vmcnt(0)")
    def spin_tail(label):
        A(f"s_cmp_lt_u32 s58, {SPIN}\ns_cselect_b64 s[60:61], -1, 0\ns_and_b64 vcc, vcc, s[60:61]\ns_cbranch_scc1 {label}")
    WST=28672; WOFF=65536
    QS=5120 if remap else 4096
    CH=2*QS
    def physline(dst,g,tmp):
        if remap: A(f"v_add_u32 v{tmp}, 4, v{g}\nv_mul_u32_u24 v{tmp}, 37, v{tmp}\nv_lshrrev_b32 v{tmp}, 8, v{tmp}\nv_add_u32 v{tmp}, v{tmp}, v{g}\nv_lshlrev_b32 v{dst}, 7, v{tmp}")
        else: A(f"v_lshlrev_b32 v{dst}, 7, v{g}")
    def fragoffs(base):
        A("v_and_b32 v6, 7, v2\nv_lshlrev_b32 v6, 4, v6")
        for n in range(4):
            A(f"v_lshrrev_b32 v5, 3, v2\nv_add_u32 v5, {8*n}, v5"); physline(base+n,5,4); A(f"v_add_u32 v{base+n}, v{base+n}, v6")
    A("""; Fused feed-forward: out = silu(x @ w1) @ w2, bf16 in/out, fp32 accumulate.
; @launch grid=(256,1,1) block=(512,1,1) lds=151552""")
    A('.amdgcn_target "amdgcn-amd-amdhsa--gfx950"\n.text')
    A(f".globl {NAME}\n.p2align 8\n.type {NAME},@function\n{NAME}:")
    A("s_load_dwordx8 s[4:11], s[0:1], 0\ns_load_dwordx4 s[12:15], s[0:1], 32")
    A("s_cmp_ge_u32 s2, 256\ns_cbranch_scc1 L_end")
    stamp(0); rstamp(14)
    A("v_lshrrev_b32 v1, 6, v0\nv_and_b32 v2, 63, v0")
    A(f"s_and_b32 s{sXcd}, s2, 7\ns_lshr_b32 s46, s2, 3")
    A("v_readfirstlane_b32 s3, v1")
    A(f"s_lshr_b32 s{sMt}, s{sXcd}, 1\ns_lshl_b32 s{sMt}, s{sMt}, 2\ns_lshr_b32 s47, s46, 3\ns_add_u32 s{sMt}, s{sMt}, s47")
    A(f"s_and_b32 s{sJ}, s{sXcd}, 1\ns_and_b32 s{sFt8}, s46, 7\ns_lshl_b32 s{sFt}, s{sJ}, 3\ns_add_u32 s{sFt}, s{sFt}, s{sFt8}")
    A(f"s_lshl_b32 s{sLid}, s{sMt}, 4\ns_add_u32 s{sLid}, s{sLid}, s{sFt}\ns_xor_b32 s{sDt}, s{sFt8}, {dswz}")
    A("s_cmp_lt_u32 s3, 4\ns_cbranch_scc1 L_cons")
    sP,sKX,sKW,sLX,sLW,sRing,sCnt,sT0,sT1=46,47,48,49,50,51,52,53,54
    A(f"s_sub_u32 s{sP}, s3, 4\ns_and_b32 s{sT0}, s{sFt8}, 1\ns_lshl_b32 s{sT1}, s{sT0}, 6")
    A("v_bfe_u32 v3, v2, 2, 3\nv_mul_u32_u24 v3, 7168, v3\nv_lshrrev_b32 v5, 5, v2\nv_and_b32 v4, 3, v2\nv_lshlrev_b32 v4, 4, v4")
    A(f"v_lshl_add_u32 v6, v5, 6, v3\nv_add3_u32 v13, v6, v4, s{sT1}\nv_xor_b32 v14, 32, v13\nv_add_u32 v14, {8*7168}, v14")
    A(f"s_xor_b32 s{sT0}, s{sT0}, 1\ns_mul_i32 s{sT0}, s{sT0}, 384\nv_lshrrev_b32 v3, 2, v2\nv_mul_u32_u24 v3, 7168, v3\nv_lshlrev_b32 v5, 5, v5\nv_xor_b32 v4, v4, v5\nv_add3_u32 v12, v3, v4, s{sT0}")
    A(f"s_mul_i32 s{sKW}, s{sP}, {16*7168}\ns_mul_i32 s{sT0}, s{sFt}, 448\ns_add_u32 s{sKW}, s{sKW}, s{sT0}")
    A("v_lshrrev_b32 v3, 3, v2\nv_and_b32 v4, 7, v2\nv_lshrrev_b32 v5, 4, v2\nv_xor_b32 v4, v4, v5\nv_lshlrev_b32 v4, 4, v4\nv_lshl_add_u32 v3, v3, 11, v4")
    A(f"s_lshl_b32 s{sT0}, s{sMt}, 18\ns_lshl_b32 s{sT1}, s{sP}, 16\ns_add_u32 s{sT0}, s{sT0}, s{sT1}\nv_add_u32 v8, s{sT0}, v3")
    A("v_xor_b32 v9, 64, v8\nv_add_u32 v9, 0x4000, v9\nv_add_u32 v10, 0x8000, v8\nv_add_u32 v11, 0x8000, v9")
    A(f"s_mov_b32 s{sKX}, 0")
    if rot:
        if rot in (1,2,4):
            A(f"s_lshr_b32 s{sT0}, s{sXcd}, 1\ns_lshl_b32 s{sT1}, s{sJ}, 1\ns_add_u32 s{sT0}, s{sT0}, s{sT1}\ns_and_b32 s{sT0}, s{sT0}, 3\ns_lshl_b32 s{sT0}, s{sT0}, 2")
            if rot==4: A(f"s_and_b32 s{sT0}, s{sT0}, 8")
        else: A(f"s_mov_b32 s{sT0}, 0")
        if rot>=2: A(f"s_and_b32 s{sT1}, s{sMt}, 3\ns_add_u32 s{sT0}, s{sT0}, s{sT1}")
        A(f"s_lshl_b32 s{sKX}, s{sT0}, 7\ns_mul_i32 s{sT0}, s{sT0}, {64*7168}\ns_add_u32 s{sKW}, s{sKW}, s{sT0}")
    sRX=57
    A(f"s_lshl_b32 s{sLX}, s{sP}, 12\ns_mul_i32 s{sLW}, s{sP}, 7168\ns_add_u32 s{sLW}, s{sLW}, {WOFF}\ns_mov_b32 s{sRing}, {2*WST}\ns_mov_b32 s{sRX}, 0\ns_mov_b32 s{sCnt}, 0")
    if rot: A(f"s_add_u32 s58, s{sKW}, 0\ns_mul_i32 s59, s{sP}, {16*7168}\ns_mul_i32 s{sT0}, s{sFt}, 448\ns_add_u32 s59, s59, s{sT0}\ns_add_u32 s58, s59, {1024*7168}")
    A("s_waitcnt lgkmcnt(0)")
    srd(A,SW1,6,W_BYTES); srd(A,SX,4,X_BYTES)
    def issueW1():
        A(f"s_add_u32 m0, s{sRing}, s{sLW}\ns_add_u32 s{sRing}, s{sRing}, {WST}")
        for n in range(6):
            a,o=n>>1,n&1
            A(f"buffer_load_dwordx4 v{13+o}, {R4(SW1)}, s{sKW} offen offset:{a*128} {w1aux} lds")
            A(f"s_add_u32 m0, m0, {1024 if o==0 else (896 if a<2 else 1024+256)}")
            A("s_nop 0" if n else f"s_cmp_eq_u32 s{sRing}, {WST*3}\ns_cselect_b32 s{sRing}, 0, s{sRing}")
        A(f"buffer_load_dwordx4 v12, {R4(SW1)}, s{sKW} offen {w1aux} lds\ns_add_u32 s{sKW}, s{sKW}, {64*7168}")
        if rot: A(f"s_cmp_eq_u32 s{sKW}, s58\ns_cselect_b32 s{sKW}, s59, s{sKW}")
    def issueX():
        A(f"s_add_u32 m0, s{sRX}, s{sLX}\ns_add_u32 s{sRX}, s{sRX}, 16384")
        for n in range(4):
            A(f"buffer_load_dwordx4 v{8+n}, {R4(SX)}, s{sKX} offen {xaux} lds")
            if n<3: A("s_add_u32 m0, m0, 1024\n"+("s_nop 0" if n else f"s_and_b32 s{sRX}, s{sRX}, 0xffff"))
        A(f"s_add_u32 s{sKX}, s{sKX}, 128\ns_and_b32 s{sKX}, s{sKX}, 2047")
    stamp(1)
    A("P1_pro:")
    issueX(); issueW1()
    A(f"s_add_u32 s{sCnt}, s{sCnt}, 1\ns_cmp_lt_u32 s{sCnt}, 2\ns_cbranch_scc1 P1_pro")
    srd(A,SW2,8,W_BYTES); srd(A,SD,12,256); srd(A,SWS,14,0x10000000)
    sHp,sHalf=55,56
    def spf():
        if pf2!=3: return
        for k in range(4): A(f"s_load_dword s12, s[8:9], {k*64}")
        A(f"s_add_u32 s13, s13, 1\ns_and_b32 s{sT0}, s13, 7\ns_cselect_b32 s{sT0}, 0, {131072-2048}\ns_add_u32 s{sT0}, s{sT0}, 256\ns_add_u32 s8, s8, s{sT0}\ns_addc_u32 s9, s9, 0")
    if pf2==3:
        A(f"s_lshl_b32 s12, s2, 2\ns_add_u32 s12, s12, s{sP}")
        A(f"s_lshr_b32 s{sT0}, s12, 6\ns_mul_i32 s13, s{sT0}, 7\ns_and_b32 s{sT0}, s{sT0}, 1")
        A(f"s_xor_b32 s{sT1}, s{sT0}, 1\ns_mul_i32 s{sT1}, s{sT1}, 6\ns_add_u32 s{sT1}, s{sT1}, s13\ns_lshl_b32 s{sT1}, s{sT1}, 16\ns_and_b32 s14, s12, 63\ns_lshl_b32 s14, s14, 10\ns_add_u32 s{sT1}, s{sT1}, s14")
        A(f"s_add_u32 s14, s8, s{sT1}\ns_addc_u32 s15, s9, 0")
        A(f"s_add_u32 s13, s13, s{sT0}\ns_lshl_b32 s13, s13, 16\ns_and_b32 s12, s12, 63\ns_lshl_b32 s12, s12, 11\ns_add_u32 s13, s13, s12\ns_add_u32 s8, s8, s13\ns_addc_u32 s9, s9, 0\ns_mov_b32 s13, 0")
    A(f"s_lshr_b32 s{sHp}, s{sP}, 1\ns_and_b32 s{sHalf}, s{sP}, 1")
    A("v_subrev_u32 v5, 3, v2\nv_mul_u32_u24 v3, 37, v5\nv_lshrrev_b32 v3, 8, v3\nv_mul_u32_u24 v4, 7, v3\nv_sub_u32 v4, v5, v4")
    if skew2: A(f"s_and_b32 s{sT0}, s{sMt}, 3\ns_mul_i32 s{sT0}, s{sT0}, {3-skew2}\nv_add_u32 v4, s{sT0}, v4\nv_subrev_u32 v6, 7, v4\nv_min_u32 v4, v4, v6")
    A("v_add_u32 v4, 1, v4")
    A("v_cmp_gt_u32 vcc, 3, v2\ns_nop 1\nv_cndmask_b32 v3, v3, v2, vcc\nv_cndmask_b32 v4, v4, 0, vcc")
    A(f"v_add_u32 v4, s{sFt8}, v4\nv_and_b32 v4, 7, v4\nv_and_b32 v6, 1, v4\nv_mul_u32_u24 v4, 7, v4\nv_lshl_add_u32 v4, v3, 1, v4\nv_add3_u32 v4, v4, v6, s{sHp}")
    A(f"s_and_b32 s{sT0}, s{sMt}, {3 if skew2 else 0}\nv_add_u32 v5, s{sT0}, v2\nv_and_b32 v5, 3, v5\nv_mul_u32_u24 v5, 14, v5\nv_add3_u32 v5, v5, 6, s{sHp}")
    A("v_cmp_gt_u32 vcc, 24, v2\ns_nop 1\nv_cndmask_b32 v4, v5, v4, vcc\nv_and_b32 v4, 63, v4")
    A(f"s_mul_i32 s{sT0}, s{sJ}, 56\nv_add_u32 v4, s{sT0}, v4")
    A(f"s_mul_i32 s{sT0}, s{sMt}, {112*CH}\ns_mul_i32 s{sT1}, s{sHalf}, {QS}\ns_add_u32 s{sT0}, s{sT0}, s{sT1}")
    A(f"v_mul_u32_u24 v20, {CH}, v4\nv_add_u32 v20, s{sT0}, v20")
    A(f"s_lshl_b32 s{sT0}, s{sHalf}, 15\ns_lshl_b32 s{sT1}, s{sHalf}, 13\nv_mov_b32 v5, s{sT0}\nv_mov_b32 v6, s{sT1}\nv_cndmask_b32 v5, v6, v5, vcc")
    A(f"v_lshl_add_u32 v21, v4, 16, v5\ns_lshl_b32 s{sT0}, s{sDt}, 8\nv_add_u32 v21, s{sT0}, v21")
    A("v_and_b32 v4, 3, v2\nv_bfe_u32 v5, v2, 4, 1\nv_lshlrev_b32 v6, 1, v5\nv_xor_b32 v4, v4, v6\nv_lshlrev_b32 v4, 4, v4")
    A("v_lshrrev_b32 v6, 5, v2\nv_lshl_add_u32 v4, v6, 6, v4")
    A("v_bfe_u32 v6, v2, 2, 3\nv_lshl_add_u32 v22, v6, 11, v4\nv_add_u32 v23, 0x4000, v22")
    A("v_lshl_add_u32 v24, v5, 13, v22\nv_add_u32 v25, 0x8000, v24")
    fragoffs(26)
    A("s_waitcnt vmcnt(11)")
    stamp(2)
    A("s_barrier")
    issueX()
    A(f"s_mov_b32 s{sCnt}, 0\ns_branch P1_in")
    A("P1_loop:\ns_waitcnt vmcnt(15)\ns_barrier\nP1_in:")
    issueW1(); issueX()
    if pf2==3:
        A(f"s_sub_u32 s{sT0}, s{sCnt}, {spa}\ns_cmp_lt_u32 s{sT0}, {spb-spa}\ns_cbranch_scc0 P1_nspf")
        spf()
        A("P1_nspf:")
    A(f"s_add_u32 s{sCnt}, s{sCnt}, 1\ns_cmp_lt_u32 s{sCnt}, 13\ns_cbranch_scc1 P1_loop")
    A("s_waitcnt vmcnt(15)\ns_barrier")
    issueW1()
    sW,sH,sSlot,sLW2,sLH=47,48,51,50,49
    A(f"s_lshl_b32 s{sLH}, s{sP}, 12\ns_add_u32 s{sLW2}, s{sLH}, 65536\ns_mov_b32 s{sCnt}, 0\ns_mov_b32 s{sSlot}, 0")
    def issueW():
        A(f"s_add_u32 m0, s{sLW2}, s{sSlot}\ns_nop 0")
        for n in range(4):
            o,tb=n>>1,n&1
            A(f"buffer_load_dwordx4 v{22+o}, {R4(SW2)}, s{sW} offen offset:{tb*128} {w2aux} lds")
            if n<3: A(f"s_add_u32 m0, m0, {896 if tb==0 else 1024+128}\ns_nop 0")
    def issueH():
        A(f"s_add_u32 m0, s{sLH}, s{sSlot}\ns_nop 0")
        for n in range(4):
            A(f"buffer_load_dwordx4 v{26+n}, {R4(SWS)}, s{sH} offen sc1 lds")
            if n<3: A("s_add_u32 m0, m0, 1024\ns_nop 0")
    A(f"v_readlane_b32 s{sW}, v21, 0")
    A("s_waitcnt vmcnt(7)\ns_barrier")
    A("s_waitcnt vmcnt(0)\ns_barrier")
    issueW()
    A("s_barrier")
    A("P2_w:")
    A(f"s_add_u32 s{sCnt}, s{sCnt}, 1\ns_add_u32 s{sSlot}, s{sSlot}, 16384\nv_readlane_b32 s{sW}, v21, s{sCnt}\ns_nop 2")
    issueW()
    A(f"s_cmp_lt_u32 s{sCnt}, 3\ns_cbranch_scc1 P2_w")
    A(f"v_readlane_b32 s{sH}, v20, 3")
    A(f"v_and_b32 v3, 3, v2\nv_lshlrev_b32 v3, 2, v3\ns_lshl_b32 s{sT0}, s{sMt}, 4\ns_mov_b32 s57, 0x01010101\ns_mov_b32 s58, 0")
    A(f"s_cmp_eq_u32 s{sP}, 0\ns_cbranch_scc1 P2_hs\ns_waitcnt vmcnt(0)\ns_branch P2_hsd")
    A("P2_hs:")
    A(f"buffer_load_dword v4, v3, {R4(SD)}, s{sT0} offen sc1\ns_add_u32 s58, s58, 1\ns_waitcnt vmcnt(0)\nv_cmp_ne_u32 vcc, s57, v4")
    spin_tail("P2_hs")
    A("P2_hsd:")
    stamp(3)
    A(f"v_and_b32 v3, 31, v2\nv_lshlrev_b32 v3, 2, v3\ns_lshr_b32 s59, s{sLid}, 3\ns_lshl_b32 s59, s59, 8\ns_add_u32 s59, s59, {F_OFF}")
    PL=f"buffer_load_dword v4, v3, {R4(SWS)}, s59 offen sc1"
    A("s_barrier")
    A("s_mov_b32 s62, 0\ns_mov_b32 s58, 0")
    A(f"P2_l1:\n{PL}\ns_add_u32 s58, s58, 1")
    A("s_cmp_lt_u32 s62, 2\ns_cbranch_scc0 P2_l1w\ns_barrier\ns_add_u32 s62, s62, 1\nP2_l1w:\ns_waitcnt vmcnt(0)\nv_cmp_gt_u32 vcc, 1, v4")
    spin_tail("P2_l1")
    stamp(4)
    issueH()
    A(f"s_mov_b32 s{sCnt}, 4\ns_mov_b32 s57, 2")
    A("P2_loop:")
    A(f"v_readlane_b32 s{sW}, v21, s{sCnt}\nv_readlane_b32 s{sH}, v20, s{sCnt}")
    A(f"s_add_u32 s{sSlot}, s{sSlot}, 16384\ns_and_b32 s{sSlot}, s{sSlot}, 0xffff")
    A(f"s_cmp_eq_u32 s{sCnt}, 24\ns_cbranch_scc0 P2_a\nv_mov_b32 v22, v24\nv_mov_b32 v23, v25\nP2_a:")
    A("s_cmp_eq_u32 s62, 0\ns_cbranch_scc1 P2_bar\ns_sub_u32 s62, s62, 1\ns_branch P2_nobar")
    A("P2_bar:\ns_waitcnt vmcnt(16)\ns_barrier\nP2_nobar:")
    A(f"s_cmp_eq_u32 s{sCnt}, 9\ns_cselect_b32 s{sT0}, 1, 0\ns_cmp_eq_u32 s{sCnt}, 16\ns_cselect_b32 s{sT0}, 1, s{sT0}\ns_cmp_eq_u32 s{sT0}, 0\ns_cbranch_scc1 P2_np\n{PL}\nP2_np:")
    A(f"s_cmp_eq_u32 s{sCnt}, 10\ns_cselect_b32 s{sT0}, 1, 0\ns_cmp_eq_u32 s{sCnt}, 17\ns_cselect_b32 s{sT0}, 1, s{sT0}\ns_cmp_eq_u32 s{sT0}, 0\ns_cbranch_scc1 P2_b")
    A("s_waitcnt vmcnt(8)\nv_cmp_gt_u32 vcc, s57, v4\ns_mov_b32 s58, 0\ns_nop 3\ns_cbranch_vccz P2_ok")
    A(f"P2_l2:\n{PL}\ns_add_u32 s58, s58, 1\ns_waitcnt vmcnt(0)\nv_cmp_gt_u32 vcc, s57, v4")
    spin_tail("P2_l2")
    A("P2_ok:\ns_add_u32 s57, s57, 1")
    A("P2_b:")
    issueW(); issueH()
    if pf2==3:
        A("s_cmp_eq_u32 s13, 24\ns_cselect_b32 s8, s14, s8\ns_cselect_b32 s9, s15, s9\ns_cmp_lt_u32 s13, 28\ns_cbranch_scc0 P2_nspf")
        spf()
        A("P2_nspf:")
    A(f"s_add_u32 s{sCnt}, s{sCnt}, 1\ns_cmp_lt_u32 s{sCnt}, 28\ns_cbranch_scc1 P2_loop")
    A("s_waitcnt vmcnt(16)\ns_barrier\ns_waitcnt vmcnt(8)\ns_barrier\ns_waitcnt vmcnt(0)\ns_barrier")
    if diag: stamp(5); rstamp(15); flush(16)
    A("s_endpgm")
    A(".p2align 6\nL_cons:")
    ACC=16; F=[(128,144),(172,188)]
    vX0,vX1,vE,vO,vL=4,5,6,7,8; bX0,bE,bL=9,10,11
    sWm,sWf,sIt,sRg,sA,sB,sC=46,47,48,49,50,51,59
    if pfc:
        A(f"s_getpc_b64 s[54:55]\nC_pc:\ns_sub_u32 s54, s54, C_pc-{NAME}\ns_subb_u32 s55, s55, 0")
        A(f"v_lshlrev_b32 v3, 7, v0\nv_min_u32 v3, L_end-{NAME}, v3\nglobal_load_dword v255, v3, s[54:55]")
    if pf1==1:
        A(f"v_and_b32 v15, 31, v2\nv_lshlrev_b32 v15, 7, v15\ns_lshl_b32 s{sA}, s2, 2\ns_add_u32 s{sA}, s{sA}, s3\ns_lshl_b32 s{sA}, s{sA}, 12")
    if pf1==2:
        A(f"v_lshlrev_b32 v15, 7, v2\ns_lshr_b32 s{sA}, s2, 3\ns_lshl_b32 s{sA}, s{sA}, 2\ns_add_u32 s{sA}, s{sA}, s3\ns_lshl_b32 s{sA}, s{sA}, 13\ns_lshr_b32 s{sB}, s{sXcd}, 1\ns_lshl_b32 s{sB}, s{sB}, 20\ns_add_u32 s{sA}, s{sA}, s{sB}")
    A("s_waitcnt lgkmcnt(0)")
    if pf1:
        srd(A,SX,4,X_BYTES)
        A(f"buffer_load_dword v253, v15, {R4(SX)}, s{sA} offen")
    A("s_setprio 1")
    A(f"s_lshr_b32 s{sWm}, s3, 1\ns_and_b32 s{sWf}, s3, 1")
    A("v_and_b32 v3, 15, v2\nv_lshrrev_b32 v12, 4, v2")
    A("v_lshrrev_b32 v13, 1, v3\nv_xor_b32 v13, v13, v12\nv_lshlrev_b32 v13, 4, v13")
    A(f"s_lshl_b32 s{sA}, s{sWm}, 13\nv_lshlrev_b32 v14, 7, v3\nv_add3_u32 v{bX0}, v13, v14, s{sA}")
    A("v_lshrrev_b32 v13, 1, v12\nv_mul_u32_u24 v13, 7168, v13\nv_bfe_u32 v15, v2, 2, 2\nv_lshl_add_u32 v13, v15, 6, v13\nv_and_b32 v15, 3, v2\nv_lshl_add_u32 v13, v15, 3, v13")
    A(f"v_and_b32 v14, 1, v12\nv_mul_u32_u24 v15, 1056, v14\ns_lshl_b32 s{sA}, s{sWf}, 9\ns_add_u32 s{sA}, s{sA}, {WOFF}\nv_add3_u32 v{bE}, v13, v15, s{sA}")
    A(f"v_mul_u32_u24 v15, 544, v14\nv_add_u32 v13, v13, v15\ns_lshl_b32 s{sA}, s{sWf}, 5\nv_xor_b32 v13, s{sA}, v13\nv_add_u32 v{bL}, {WOFF+6144}, v13")
    VF=248
    fragoffs(VF)
    A(f"v_add_u32 v{vE}, {2*WST}, v{bE}\nv_mov_b32 v{vX0}, v{bX0}\nv_add_u32 v{vL}, {2*WST}, v{bL}\nv_xor_b32 v{vO}, 32, v{vE}\nv_xor_b32 v{vX1}, 64, v{vX0}")
    srd(A,SO,10,O_BYTES); srd(A,SD,12,256); srd(A,SWS,14,0x10000000); srd(A,SW2,8,W_BYTES)
    A("v_lshlrev_b32 v3, 4, v2")
    A(f"s_lshr_b32 s56, s{sLid}, 3\ns_lshl_b32 s56, s56, 8\ns_lshl_b32 s{sB}, s{sFt8}, 4\ns_add_u32 s56, s56, s{sB}\ns_lshl_b32 s{sB}, s3, 2\ns_add_u32 s56, s56, s{sB}\ns_add_u32 s56, s56, {F_OFF}")
    A(f"v_mov_b32 v1, {OOB}\nv_cmp_eq_u32 vcc, 0, v2\ns_nop 1\nv_cndmask_b32 v1, v1, 0, vcc")
    A(f"s_lshl_b32 s57, s{sLid}, 2\ns_add_u32 s57, s57, s3\ns_mul_i32 s57, s57, {QS}\ns_add_u32 s57, s57, {P_OFF}")
    for r in range(112): A(f"v_mov_b32 v{ACC+r}, 0")
    for r in range(4): A(f"v_mov_b32 v{244+r}, -1")
    def hook(it, body, name, reg=None):
        OOL.append(f"{name}:\n{body}\ns_branch {name}_b")
        return [f"s_cmp_eq_u32 s{reg or sIt}, {it}", f"s_cbranch_scc1 {name}\n{name}_b:"]
    def reads1(u, fs):
        X,W=F[fs]
        xs=[f"ds_read_b128 {vr(X+4*i,4)}, v{vX1 if u else vX0} offset:{i*2048}" for i in range(4)]
        ws=[]
        for j in range(7):
            a,o=(vL,0) if j==6 else ((vO if j&1 else vE),(j>>1)*2048)
            for hh in range(2): ws.append(f"ds_read_b64_tr_b16 {vr(W+4*j+2*hh,2)}, v{a} offset:{u*14336+o+hh*256}")
        return ws[0:2]+xs+ws[2:]
    def mf1(fs):
        X,W=F[fs]
        return [f"v_mfma_f32_16x16x32_bf16 {vr(ACC+(j*4+i)*4,4)}, {vr(W+4*j,4)}, {vr(X+4*i,4)}, {vr(ACC+(j*4+i)*4,4)}" for j,i in snake(range(7),4)]
    A(f"s_mov_b32 s{sIt}, 0\ns_mov_b32 s{sRg}, {2*WST}\ns_mov_b32 s52, 0\ns_add_u32 s62, s3, s{sFt8}\ns_and_b32 s62, s62, 3\ns_add_u32 s62, s62, {ack-5}")
    A(f"s_mul_i32 s61, s3, {pfb}\ns_add_u32 s61, s61, {pfa}")
    if pf2==2: A(f"v_min_u32 v15, 55, v2\nv_lshlrev_b32 v15, 7, v15\ns_lshl_b32 s{sA}, s2, 2\ns_add_u32 s{sA}, s{sA}, s3\ns_mul_i32 s{sA}, s{sA}, 7168\nbuffer_load_dword v255, v15, {R4(SW2)}, s{sA} offen")
    if diag in (2,3): A("s_mov_b32 m0, 0")
    A("s_barrier")
    stamp(1)
    for l in reads1(0,0): A(l)
    A("s_waitcnt lgkmcnt(0)")
    A(".p2align 3\nC1_loop:")
    sstamp()
    ex=[f"s_add_u32 s{sRg}, s{sRg}, {WST}\ns_add_u32 s52, s52, 16384", f"s_cmp_eq_u32 s{sRg}, {WST*3}\ns_cselect_b32 s{sRg}, 0, s{sRg}",
        f"v_add_u32 v{vE}, s{sRg}, v{bE}\ns_and_b32 s52, s52, 0xffff", f"v_add_u32 v{vX0}, s52, v{bX0}", f"v_add_u32 v{vL}, s{sRg}, v{bL}",
        f"v_xor_b32 v{vO}, 32, v{vE}", f"v_xor_b32 v{vX1}, 64, v{vX0}"]
    clr="\n".join([f"buffer_store_dwordx4 v[244:247], v{VF+i}, {R4(SWS)}, s57 offen sc1" for i in range(4)])
    clr=f"v_mov_b32 v13, 0\n{clr}\nbuffer_store_dword v13, v1, {R4(SWS)}, s56 offen sc1"
    ex+=hook("s62" if stag else 2,clr,"H1_clr")
    for l in interleave(mf1(0), reads1(1,1)+ex): A(l)
    A("s_waitcnt lgkmcnt(0)\ns_barrier")
    pub=(f"s_cmp_eq_u32 s3, 0\ns_cbranch_scc0 H1_pub_b\ns_and_b32 s{sA}, s{sLid}, 3\ns_lshl_b32 s{sA}, s{sA}, 3\ns_lshl_b32 s{sA}, 1, s{sA}\nv_mov_b32 v13, s{sA}\n"
         f"s_andn2_b32 s{sA}, s{sLid}, 3\nv_lshlrev_b32 v14, 8, v2\nbuffer_atomic_or v13, v14, {R4(SD)}, s{sA} offen")
    ex=hook(ack,"s_waitcnt vmcnt(0)","H1_ack")+hook(ack+1,pub,"H1_pub")
    if pf2==1:
        ex+=hook("s61",f"v_min_u32 v15, 55, v2\nv_lshlrev_b32 v15, 7, v15\ns_lshl_b32 s{sA}, s2, 2\ns_add_u32 s{sA}, s{sA}, s3\ns_mul_i32 s{sA}, s{sA}, 7168\nbuffer_load_dword v255, v15, {R4(SW2)}, s{sA} offen","H1_pf")
    ex+=[f"s_add_u32 s{sIt}, s{sIt}, 1", f"s_cmp_lt_u32 s{sIt}, 16"]
    x=interleave(mf1(1), reads1(0,0)+ex)
    assert x[-1].startswith("v_mfma")
    for l in x[:-1]: A(l)
    A("s_waitcnt lgkmcnt(0)"); A(x[-1])
    A("s_cbranch_scc1 C1_loop")
    stamp(2)
    sHA,sH3=50,51
    A(f"s_mul_i32 s{sHA}, s{sMt}, 112\ns_mul_i32 s{sH3}, s{sFt}, 7\ns_add_u32 s{sHA}, s{sHA}, s{sH3}\ns_and_b32 s52, s{sFt8}, 1")
    A(f"s_xor_b32 s53, s52, 1\ns_mul_i32 s53, s53, 6\ns_add_u32 s{sH3}, s{sHA}, s53\ns_add_u32 s{sHA}, s{sHA}, s52\ns_add_u32 s{sHA}, s{sHA}, s{sWf}")
    A(f"s_mul_i32 s52, s{sWm}, {QS}\ns_mul_i32 s{sHA}, s{sHA}, {CH}\ns_add_u32 s{sHA}, s{sHA}, s52\ns_mul_i32 s{sH3}, s{sH3}, {CH}\ns_add_u32 s{sH3}, s{sH3}, s52\ns_lshl_b32 s52, s{sWm}, 12")
    A(f"s_lshl_b32 s53, s{sWf}, 13\ns_add_u32 s52, s52, s53\nv_add_u32 v4, s52, v3")
    A(f"v_bfe_u32 v5, v2, 4, 1\nv_lshlrev_b32 v5, 3, v5\nv_lshrrev_b32 v6, 5, v2\nv_lshl_add_u32 v5, v6, 1, v5\nv_bfe_u32 v6, v2, 3, 1\ns_lshl_b32 s52, s{sWf}, 2\nv_add3_u32 v13, v5, v6, s52")
    A("v_add_u32 v14, 16, v13\nv_and_b32 v15, 7, v2\nv_lshlrev_b32 v15, 4, v15")
    physline(5,13,12); physline(6,14,12)
    A("v_add_u32 v5, v5, v15\nv_add_u32 v6, v6, v15")
    A("v_mov_b32 v7, 1\ns_mov_b32 s52, 0xbfb8aa3b\ns_mov_b32 s53, 0xbfb8aa3b\ns_mov_b32 s54, 1.0\ns_mov_b32 s55, 1.0")
    T=216
    def silu(a, b, D):
        t=T; src=[a,a+2,b,b+2]
        for r in range(4): A(f"v_pk_mul_f32 {vr(t+2*r,2)}, s[52:53], {vr(src[r],2)}")
        for r in range(8): A(f"v_exp_f32 v{t+r}, v{t+r}")
        for r in range(4): A(f"v_pk_add_f32 {vr(t+2*r,2)}, s[54:55], {vr(t+2*r,2)}")
        for r in range(8): A(f"v_rcp_f32 v{t+r}, v{t+r}")
        for r in range(4): A(f"v_pk_mul_f32 {vr(t+2*r,2)}, {vr(t+2*r,2)}, {vr(src[r],2)}")
        for r in range(4): A(f"v_cvt_pk_bf16_f32 v{D+r}, v{t+2*r}, v{t+2*r+1}")
    def gst(D,i): return f"buffer_store_dwordx4 {vr(D,4)}, v{VF+i}, {R4(SWS)}, s{sHA} offen sc1"
    FLAG=f"buffer_store_dword v7, v1, {R4(SWS)}, s56 offen sc1"
    DL=[232,128,144]; D3=224
    for L in range(3):
        for i in range(4):
            D=DL[L]+4*i
            silu(ACC+((2*L)*4+i)*4, ACC+((2*L+1)*4+i)*4, D)
            if L==0 or (L==2 and l1epi>=2): A(gst(D,i))
            A(f"ds_write_b128 v4, {vr(D,4)} offset:{L*16384+i*1024}")
        if L==1:
            stamp(11); A("s_waitcnt vmcnt(0)"); stamp(12)
            A(f"{FLAG}\ns_add_u32 s{sHA}, s{sHA}, {2*CH}")
            if l1epi:
                for i in range(4): A(gst(128+4*i,i))
                A(f"s_add_u32 s{sHA}, s{sHA}, {2*CH}")
    for ip in range(2):
        D=D3+4*ip; a=ACC+(24+2*ip)*4
        silu(a,a+4,D)
        A(f"s_nop 1\nv_permlane16_swap_b32 v{D}, v{D+2}\nv_permlane16_swap_b32 v{D+1}, v{D+3}")
        if l1epi>=3: A(f"buffer_store_dwordx4 {vr(D,4)}, v{5+ip}, {R4(SWS)}, s{sH3} offen sc1")
    F2=[(160,176),(192,208)]; vH=8; vW=[9,10,11,12]
    A(f"s_lshl_b32 s52, s{sWm}, 12\nv_add_u32 v{vH}, s52, v3")
    A("v_lshrrev_b32 v13, 5, v2\nv_lshlrev_b32 v13, 11, v13\nv_bfe_u32 v14, v2, 4, 1\nv_mul_u32_u24 v14, 288, v14\nv_add_u32 v13, v13, v14")
    A("v_bfe_u32 v15, v2, 2, 2\nv_lshl_add_u32 v13, v15, 6, v13\nv_and_b32 v15, 3, v2\nv_lshl_add_u32 v13, v15, 3, v13")
    A(f"s_lshl_b32 s52, s{sJ}, 1\ns_add_u32 s52, s52, s{sWf}\ns_lshl_b32 s52, s52, 9\ns_add_u32 s52, s52, 65536\nv_add_u32 v{vW[0]}, s52, v13")
    A(f"v_xor_b32 v{vW[1]}, 32, v{vW[0]}\nv_xor_b32 v{vW[2]}, 0x400, v{vW[0]}\nv_xor_b32 v{vW[3]}, 0x420, v{vW[0]}\nv_mov_b32 v7, 2\ns_mov_b32 s{sIt}, 0")
    A(f"s_add_u32 s62, s{sFt8}, s3\ns_and_b32 s62, s62, {rmask}\ns_add_u32 s62, s62, {l2st+5}")
    def rdH(X,slot,u): return [f"ds_read_b128 {vr(X+4*i,4)}, v{vH} offset:{slot*16384+u*8192+i*1024}" for i in range(4)]
    def rdW(W,slot,u,js): return [f"ds_read_b64_tr_b16 {vr(W+4*n+2*hh,2)}, v{vW[j]} offset:{slot*16384+(4*u+2*hh)*2048}" for n,j in enumerate(js) for hh in range(2)]
    def reads2(slot,u,fs):
        X,W=F2[fs]; ws=rdW(W,slot,u,range(4)); return ws[0:2]+rdH(X,slot,u)+ws[2:]
    def mfm(X,W,js,zero=False,w0=0):
        return [f"v_mfma_f32_16x16x32_bf16 {vr(ACC+(j*4+i)*4,4)}, {vr(W+4*(j-w0),4)}, {vr(X+4*i,4)}, {'0' if zero else vr(ACC+(j*4+i)*4,4)}" for j,i in snake(js,4)]
    def mf2(fs,zero=False): return mfm(F2[fs][0],F2[fs][1],range(4),zero)
    A("s_waitcnt lgkmcnt(0)")
    stamp(3)
    A("s_barrier")
    stamp(4)
    for l in reads2(0,0,0): A(l)
    sstamp()
    A("s_waitcnt lgkmcnt(0)")
    for l in interleave(mf2(0,True), reads2(0,1,1)): A(l)
    A("s_branch C2_in")
    dw={}; dws={}
    t3st=[f"buffer_store_dwordx4 {vr(D3+4*ip,4)}, v{5+ip}, {R4(SWS)}, s{sH3} offen sc1" for ip in range(2)]
    if not l1epi:
        dw[(l1st,0)]=gst(128,0)+"\n"+gst(132,1); dw[(l1st,1)]=gst(136,2)+"\n"+gst(140,3)+f"\ns_add_u32 s{sHA}, s{sHA}, {2*CH}"
        dw[(l1st+2,1)]=f"s_waitcnt vmcnt(0)\n{FLAG}"
    else:
        dw[(l1st,1)]=f"s_waitcnt vmcnt(0)\n{FLAG}"
    if l1epi>=2:
        if l1epi==2: dw[(l2st,0)]="\n".join(t3st)
        dw[(f3,1)]=f"v_mov_b32 v7, 3\ns_waitcnt vmcnt(0)\n{FLAG}"
    elif not stag2:
        dw[(l2st,0)]=gst(144,0)+"\n"+gst(148,1); dw[(l2st+1,0)]=gst(152,2)+"\n"+gst(156,3)+"\nv_mov_b32 v7, 3"
        dw[(l2st+2,0)]="\n".join(t3st)
        dw[(l2st+5,1)]=f"s_waitcnt vmcnt(0)\n{FLAG}"
    else:
        dw[(f3,1)]=f"v_mov_b32 v7, 3\ns_waitcnt vmcnt(0)\n{FLAG}"
        body=[gst(144+4*i,i) for i in range(4)]+t3st
        o="H2_st:\n"
        for n,b in enumerate(body):
            o+=f"s_cmp_eq_u32 s62, {5-n}\ns_cbranch_scc0 H2_st{n}\n{b}\nH2_st{n}:\n"
        o+="s_setpc_b64 s[54:55]"
        OOL.append(o)
    def hooks2(slot,u):
        ex=[]
        for (q,uu),body in sorted(dw.items()):
            if q%4==slot and uu==u: ex+=hook(q//4,body,f"H2_{q}_{uu}")
        if stag2 and l1epi<2 and u==0:
            ex+=["s_sub_u32 s62, s62, 1\ns_cmp_lt_u32 s62, 6", f"s_cbranch_scc1 H2_go{slot}\nH2_ns{slot}:"]
            OOL.append(f"H2_go{slot}:\ns_call_b64 s[54:55], H2_st\ns_branch H2_ns{slot}")
        assert len(ex)<=4, (slot,u,ex)
        return ex
    A(".p2align 3\nC2_loop:")
    for slot in range(4):
        sstamp()
        for l in interleave(mf2(0), reads2(slot,1,1)+hooks2(slot,0)): A(l)
        if slot==0: A("C2_in:")
        A("s_waitcnt lgkmcnt(0)\ns_barrier")
        ex=hooks2(slot,1)
        if slot==3: ex+=[f"s_add_u32 s{sIt}, s{sIt}, 1", f"s_cmp_lt_u32 s{sIt}, 6"]
        x=interleave(mf2(1), reads2((slot+1)&3,0,0)+ex)
        if x[-1].startswith("v_mfma"):
            for l in x[:-1]: A(l)
            A("s_waitcnt lgkmcnt(0)"); A(x[-1])
        else:
            for l in x: A(l)
            A("s_waitcnt lgkmcnt(0)")
    A("s_cbranch_scc1 C2_loop")
    stamp(13)
    if diag: A("s_waitcnt lgkmcnt(0)")
    G=[dict(H=[160,80],W=[184,96]), dict(H=[192,104],W=[208,216])]
    def rdS(g,slot,js,us=(0,1)):
        o=[]
        for u in us:
            w=rdW(G[g]['W'][u],slot,u,js); o+=w[0:2]+rdH(G[g]['H'][u],slot,u)+w[2:]
        return o
    def mfS(g,js): return mfm(G[g]['H'][0],G[g]['W'][0],js,w0=js[0])+mfm(G[g]['H'][1],G[g]['W'][1],js,w0=js[0])
    for l in rdS(0,0,(2,3),(1,)): A(l)
    A("s_barrier")
    m=mfS(0,(2,3)); r=rdS(1,1,(2,3))
    x=interleave(m[:8], r[:8])
    for l in x: A(l)
    A("s_waitcnt lgkmcnt(8)")
    for l in interleave(m[8:], r[8:]): A(l)
    for q in (1,2):
        A("s_waitcnt lgkmcnt(0)\ns_barrier")
        for l in interleave(mfS(q&1,(2,3)), rdS((q+1)&1,q+1,(2,3))): A(l)
    A("s_waitcnt lgkmcnt(0)")
    for l in interleave(mfS(1,(2,3)), rdS(0,0,(0,1))): A(l)
    stamp(5)
    A(f"s_mul_i32 s52, s{sJ}, {-2*32*QS}\ns_add_u32 s52, s52, {32*QS}\ns_add_u32 s52, s52, s57\ns_mov_b32 s53, -2")
    snd=[]
    for i in range(4):
        D=232+4*i
        for n,j in enumerate((2,3)):
            S=ACC+(j*4+i)*4
            snd+= [f"v_cvt_pk_bf16_f32 v{D+2*n}, v{S}, v{S+1}", f"v_cvt_pk_bf16_f32 v{D+2*n+1}, v{S+2}, v{S+3}"]
        snd+=[f"v_min_u32 v{D+r}, s53, v{D+r}" for r in range(4)]
        snd.append(f"buffer_store_dwordx4 {vr(D,4)}, v{VF+i}, {R4(SWS)}, s52 offen sc1")
    A("s_waitcnt lgkmcnt(0)")
    m=mfS(0,(0,1)); r=rdS(1,1,(0,1))
    k=0
    for n,mm_ in enumerate(m):
        A(mm_); A(r[n])
        if n>=3:
            for _ in range(3):
                if k<len(snd): A(snd[k]); k+=1
    while k<len(snd): A(snd[k]); k+=1
    stamp(6)
    for q in (1,2):
        A("s_waitcnt lgkmcnt(0)")
        for l in interleave(mfS(q&1,(0,1)), rdS((q+1)&1,q+1,(0,1))): A(l)
    A("s_waitcnt lgkmcnt(0)")
    RB=80
    LD=[f"buffer_load_dwordx4 {vr(RB+4*i,4)}, v{VF+i}, {R4(SWS)}, s57 offen sc1" for i in range(4)]
    adr=["v_and_b32 v13, 15, v2","v_lshlrev_b32 v13, 11, v13","v_bfe_u32 v14, v2, 4, 1","v_lshl_add_u32 v13, v14, 5, v13","v_lshrrev_b32 v14, 5, v2","v_lshl_add_u32 v13, v14, 4, v13",
         f"s_lshl_b32 s{sC}, s{sMt}, 1\ns_add_u32 s{sC}, s{sC}, s{sWm}", f"s_lshl_b32 s{sC}, s{sC}, 17\ns_lshl_b32 s52, s{sDt}, 8", f"s_add_u32 s{sC}, s{sC}, s52\ns_lshl_b32 s52, s{sJ}, 7",
         f"s_add_u32 s{sC}, s{sC}, s52\ns_lshl_b32 s52, s{sWf}, 6", f"s_add_u32 s{sC}, s{sC}, s52\ns_mov_b32 s58, 0"]
    for l in interleave(mfS(1,(0,1)), adr+LD): A(l)
    A("s_branch C3_chk")
    A("C3_poll:")
    for l in LD: A(l)
    A("C3_chk:\ns_add_u32 s58, s58, 1\ns_waitcnt vmcnt(0)")
    A(f"v_max3_u32 v14, v{RB}, v{RB+1}, v{RB+2}")
    for r in range(3,15,2): A(f"v_max3_u32 v14, v14, v{RB+r}, v{RB+r+1}")
    A(f"v_max_u32 v14, v14, v{RB+15}\nv_cmp_eq_u32 vcc, -1, v14")
    spin_tail("C3_poll")
    stamp(7); stamp(8)
    A("s_mov_b32 s53, 0xffff0000")
    for i in range(4):
        D=232+4*i
        for n in range(2):
            S=ACC+(n*4+i)*4
            for h in range(2):
                Rr=RB+4*i+2*n+h
                A(f"v_lshlrev_b32 v{T}, 16, v{Rr}\nv_and_b32 v{T+1}, s53, v{Rr}\nv_pk_add_f32 {vr(S+2*h,2)}, {vr(S+2*h,2)}, {vr(T,2)}")
                A(f"v_cvt_pk_bf16_f32 v{D+2*n+h}, v{S+2*h}, v{S+2*h+1}")
        A(f"s_nop 1\nv_permlane16_swap_b32 v{D}, v{D+2}\nv_permlane16_swap_b32 v{D+1}, v{D+3}")
        A(f"buffer_store_dwordx4 {vr(D,4)}, v13, {R4(SO)}, s{sC} offen {outaux}")
        if i<3: A(f"s_add_u32 s{sC}, s{sC}, 0x8000")
    if diag:
        stamp(9); A("s_waitcnt vmcnt(0)"); stamp(10); rstamp(15); flush(16,True)
    A("s_endpgm")
    for b in OOL: A(b)
    A("L_end:\ns_endpgm")
    A(f""".section .rodata,"a"
.p2align 6
.amdhsa_kernel {NAME}
  .amdhsa_next_free_vgpr 256
  .amdhsa_next_free_sgpr 96
  .amdhsa_accum_offset 256
  .amdhsa_group_segment_fixed_size 0
  .amdhsa_kernarg_size 48
  .amdhsa_user_sgpr_count 2
  .amdhsa_user_sgpr_kernarg_segment_ptr 1
  .amdhsa_system_sgpr_workgroup_id_x 1
.end_amdhsa_kernel""")
    return A.text()

if __name__=="__main__":
    import inspect
    p=argparse.ArgumentParser(); p.add_argument("-o")
    for k,v in inspect.signature(build).parameters.items():
        p.add_argument("--"+k,type=type(v.default),default=v.default)
    a=vars(p.parse_args()); o=a.pop("o")
    open(o,"w").write(build(**a))
```

```python
import sys, argparse
NAME="standalone__dense_activation_silu__prompt_kernel"
class Asm:
    def __init__(self): self.L=[]
    def __call__(self, s):
        for l in s.split("\n"): self.L.append(l)
    def text(self): return "\n".join(self.L)+"\n"
def vr(a,n): return f"v[{a}:{a+n-1}]"
def srd(A, d, b, nbytes):
    A(f"s_mov_b32 s{d}, s{b}\ns_and_b32 s{d+1}, s{b+1}, 0xffff\ns_mov_b32 s{d+2}, {nbytes}\ns_mov_b32 s{d+3}, 0x20000")
X_BYTES=2048*1024*2; W_BYTES=1024*3584*2; O_BYTES=2048*1024*2
H_OFF=0; P_OFF=24<<20; F_OFF=48<<20; T_OFF=64<<20
SX,SW1,SW2,SO,SD,SWS=16,20,24,28,32,36
sMt,sJ,sFt8,sFt,sLid,sXcd,sDt=40,41,42,43,44,45,63
OOB=0x7ffffff0
SPIN=1<<17
def R4(s): return f"s[{s}:{s+3}]"

def interleave(mf, rd):
    out=[]; k=0
    for m in mf:
        out.append(m)
        if k<len(rd): out.append(rd[k]); k+=1
    return out+rd[k:]
def snake(JS,NI): return [(j,(i if n%2==0 else NI-1-i)) for n,j in enumerate(JS) for i in range(NI)]

def build(diag=0, rot=1, pf1=0, pf2=1, pfc=1, outaux="sc1", pfa=13, dswz=0, w1aux="", xaux="", w2aux="", l1st=1, l2st=4, stag=1, l1epi=1, rmask=1, f3=9, skew2=1, pfb=0, stag2=1, remap=1, spa=0, spb=13, spn=4, ack=6):
    A=Asm(); OOL=[]
    tm='s_memrealtime' if diag>=3 else 's_memtime'
    def stamp(k):
        if diag: A(f"{tm} s[{64+2*k}:{65+2*k}]")
    def rstamp(k):
        if diag: A(f"s_memrealtime s[{64+2*k}:{65+2*k}]")
    def sstamp():
        if diag in (2,3): A(f"{tm} s[90:91]\ns_waitcnt lgkmcnt(0)\nv_writelane_b32 v254, s90, m0\ns_add_u32 m0, m0, 1")
    def flush(n, cons=False):
        if not diag: return
        if diag==5:
            ks=[1,2,12,4,13,5,7,10] if cons else [1,2,3,4,5]
            lab="DB_c" if cons else "DB_p"
            A(f"s_waitcnt lgkmcnt(0)\ns_and_b32 s60, s3, 3\ns_or_b32 s60, s60, s2\ns_cmp_eq_u32 s60, 0\ns_cbranch_scc0 {lab}\nv_lshlrev_b32 v1, 8, v2")
            for n_,k in enumerate(ks):
                A(f"s_sub_u32 s60, s{64+2*k}, s64\nv_mov_b32 v4, s60\nbuffer_store_dword v4, v1, {R4(SD)}, 0 offen offset:{4*(n_+(0 if cons else 8))} sc1")
            A(f"s_waitcnt vmcnt(0)\n{lab}:")
            return
        A(f"s_waitcnt lgkmcnt(0)\ns_lshl_b32 s60, s2, 3\ns_add_u32 s60, s60, s3\ns_lshl_b32 s60, s60, 8\ns_add_u32 s60, s60, {T_OFF}\nv_mov_b32 v1, 0")
        for k in range(n): A(f"v_mov_b32 v2, s{64+2*k}\nbuffer_store_dword v2, v1, {R4(SWS)}, s60 offen offset:{4*k}")
        if cons and diag>=2:
            A(f"v_and_b32 v1, 63, v0\nv_lshlrev_b32 v1, 2, v1\nv_mov_b32 v2, {OOB}\nv_cmp_gt_u32 vcc, 192, v1\ns_nop 1\nv_cndmask_b32 v1, v2, v1, vcc")
            A(f"buffer_store_dword v254, v1, {R4(SWS)}, s60 offen offset:64")
        A("s_waitcnt vmcnt(0)")
    def spin_tail(label):
        A(f"s_cmp_lt_u32 s58, {SPIN}\ns_cselect_b64 s[60:61], -1, 0\ns_and_b64 vcc, vcc, s[60:61]\ns_cbranch_scc1 {label}")
    WST=28672; WOFF=65536
    QS=5120 if remap else 4096
    CH=2*QS
    def physline(dst,g,tmp):
        if remap: A(f"v_add_u32 v{tmp}, 4, v{g}\nv_mul_u32_u24 v{tmp}, 37, v{tmp}\nv_lshrrev_b32 v{tmp}, 8, v{tmp}\nv_add_u32 v{tmp}, v{tmp}, v{g}\nv_lshlrev_b32 v{dst}, 7, v{tmp}")
        else: A(f"v_lshlrev_b32 v{dst}, 7, v{g}")
    def fragoffs(base):
        A("v_and_b32 v6, 7, v2\nv_lshlrev_b32 v6, 4, v6")
        for n in range(4):
            A(f"v_lshrrev_b32 v5, 3, v2\nv_add_u32 v5, {8*n}, v5"); physline(base+n,5,4); A(f"v_add_u32 v{base+n}, v{base+n}, v6")
    A("""; Fused feed-forward: out = silu(x @ w1) @ w2, bf16 in/out, fp32 accumulate.
; @launch grid=(256,1,1) block=(512,1,1) lds=151552""")
    A('.amdgcn_target "amdgcn-amd-amdhsa--gfx950"\n.text')
    A(f".globl {NAME}\n.p2align 8\n.type {NAME},@function\n{NAME}:")
    A("s_load_dwordx8 s[4:11], s[0:1], 0\ns_load_dwordx4 s[12:15], s[0:1], 32")
    A("s_cmp_ge_u32 s2, 256\ns_cbranch_scc1 L_end")
    stamp(0); rstamp(14)
    A("v_lshrrev_b32 v1, 6, v0\nv_and_b32 v2, 63, v0")
    A(f"s_and_b32 s{sXcd}, s2, 7\ns_lshr_b32 s46, s2, 3")
    A("v_readfirstlane_b32 s3, v1")
    A(f"s_lshr_b32 s{sMt}, s{sXcd}, 1\ns_lshl_b32 s{sMt}, s{sMt}, 2\ns_lshr_b32 s47, s46, 3\ns_add_u32 s{sMt}, s{sMt}, s47")
    A(f"s_and_b32 s{sJ}, s{sXcd}, 1\ns_and_b32 s{sFt8}, s46, 7\ns_lshl_b32 s{sFt}, s{sJ}, 3\ns_add_u32 s{sFt}, s{sFt}, s{sFt8}")
    A(f"s_lshl_b32 s{sLid}, s{sMt}, 4\ns_add_u32 s{sLid}, s{sLid}, s{sFt}\ns_xor_b32 s{sDt}, s{sFt8}, {dswz}")
    A("s_cmp_lt_u32 s3, 4\ns_cbranch_scc1 L_cons")
    sP,sKX,sKW,sLX,sLW,sRing,sCnt,sT0,sT1=46,47,48,49,50,51,52,53,54
    A(f"s_sub_u32 s{sP}, s3, 4\ns_and_b32 s{sT0}, s{sFt8}, 1\ns_lshl_b32 s{sT1}, s{sT0}, 6")
    A("v_bfe_u32 v3, v2, 2, 3\nv_mul_u32_u24 v3, 7168, v3\nv_lshrrev_b32 v5, 5, v2\nv_and_b32 v4, 3, v2\nv_lshlrev_b32 v4, 4, v4")
    A(f"v_lshl_add_u32 v6, v5, 6, v3\nv_add3_u32 v13, v6, v4, s{sT1}\nv_xor_b32 v14, 32, v13\nv_add_u32 v14, {8*7168}, v14")
    A(f"s_xor_b32 s{sT0}, s{sT0}, 1\ns_mul_i32 s{sT0}, s{sT0}, 384\nv_lshrrev_b32 v3, 2, v2\nv_mul_u32_u24 v3, 7168, v3\nv_lshlrev_b32 v5, 5, v5\nv_xor_b32 v4, v4, v5\nv_add3_u32 v12, v3, v4, s{sT0}")
    A(f"s_mul_i32 s{sKW}, s{sP}, {16*7168}\ns_mul_i32 s{sT0}, s{sFt}, 448\ns_add_u32 s{sKW}, s{sKW}, s{sT0}")
    A("v_lshrrev_b32 v3, 3, v2\nv_and_b32 v4, 7, v2\nv_lshrrev_b32 v5, 4, v2\nv_xor_b32 v4, v4, v5\nv_lshlrev_b32 v4, 4, v4\nv_lshl_add_u32 v3, v3, 11, v4")
    A(f"s_lshl_b32 s{sT0}, s{sMt}, 18\ns_lshl_b32 s{sT1}, s{sP}, 16\ns_add_u32 s{sT0}, s{sT0}, s{sT1}\nv_add_u32 v8, s{sT0}, v3")
    A("v_xor_b32 v9, 64, v8\nv_add_u32 v9, 0x4000, v9\nv_add_u32 v10, 0x8000, v8\nv_add_u32 v11, 0x8000, v9")
    A(f"s_mov_b32 s{sKX}, 0")
    if rot:
        if rot in (1,2,4):
            A(f"s_lshr_b32 s{sT0}, s{sXcd}, 1\ns_lshl_b32 s{sT1}, s{sJ}, 1\ns_add_u32 s{sT0}, s{sT0}, s{sT1}\ns_and_b32 s{sT0}, s{sT0}, 3\ns_lshl_b32 s{sT0}, s{sT0}, 2")
            if rot==4: A(f"s_and_b32 s{sT0}, s{sT0}, 8")
        else: A(f"s_mov_b32 s{sT0}, 0")
        if rot>=2: A(f"s_and_b32 s{sT1}, s{sMt}, 3\ns_add_u32 s{sT0}, s{sT0}, s{sT1}")
        A(f"s_lshl_b32 s{sKX}, s{sT0}, 7\ns_mul_i32 s{sT0}, s{sT0}, {64*7168}\ns_add_u32 s{sKW}, s{sKW}, s{sT0}")
    sRX=57
    A(f"s_lshl_b32 s{sLX}, s{sP}, 12\ns_mul_i32 s{sLW}, s{sP}, 7168\ns_add_u32 s{sLW}, s{sLW}, {WOFF}\ns_mov_b32 s{sRing}, {2*WST}\ns_mov_b32 s{sRX}, 0\ns_mov_b32 s{sCnt}, 0")
    if rot: A(f"s_add_u32 s58, s{sKW}, 0\ns_mul_i32 s59, s{sP}, {16*7168}\ns_mul_i32 s{sT0}, s{sFt}, 448\ns_add_u32 s59, s59, s{sT0}\ns_add_u32 s58, s59, {1024*7168}")
    A("s_waitcnt lgkmcnt(0)")
    srd(A,SW1,6,W_BYTES); srd(A,SX,4,X_BYTES)
    def issueW1():
        A(f"s_add_u32 m0, s{sRing}, s{sLW}\ns_add_u32 s{sRing}, s{sRing}, {WST}")
        for n in range(6):
            a,o=n>>1,n&1
            A(f"buffer_load_dwordx4 v{13+o}, {R4(SW1)}, s{sKW} offen offset:{a*128} {w1aux} lds")
            A(f"s_add_u32 m0, m0, {1024 if o==0 else (896 if a<2 else 1024+256)}")
            A("s_nop 0" if n else f"s_cmp_eq_u32 s{sRing}, {WST*3}\ns_cselect_b32 s{sRing}, 0, s{sRing}")
        A(f"buffer_load_dwordx4 v12, {R4(SW1)}, s{sKW} offen {w1aux} lds\ns_add_u32 s{sKW}, s{sKW}, {64*7168}")
        if rot: A(f"s_cmp_eq_u32 s{sKW}, s58\ns_cselect_b32 s{sKW}, s59, s{sKW}")
    def issueX():
        A(f"s_add_u32 m0, s{sRX}, s{sLX}\ns_add_u32 s{sRX}, s{sRX}, 16384")
        for n in range(4):
            A(f"buffer_load_dwordx4 v{8+n}, {R4(SX)}, s{sKX} offen {xaux} lds")
            if n<3: A("s_add_u32 m0, m0, 1024\n"+("s_nop 0" if n else f"s_and_b32 s{sRX}, s{sRX}, 0xffff"))
        A(f"s_add_u32 s{sKX}, s{sKX}, 128\ns_and_b32 s{sKX}, s{sKX}, 2047")
    stamp(1)
    A("P1_pro:")
    issueX(); issueW1()
    A(f"s_add_u32 s{sCnt}, s{sCnt}, 1\ns_cmp_lt_u32 s{sCnt}, 2\ns_cbranch_scc1 P1_pro")
    srd(A,SW2,8,W_BYTES); srd(A,SD,12,256); srd(A,SWS,14,0x10000000)
    sHp,sHalf=55,56
    def spf():
        if pf2!=3: return
        for k in range(4): A(f"s_load_dword s12, s[8:9], {k*64}")
        A(f"s_add_u32 s13, s13, 1\ns_and_b32 s{sT0}, s13, 7\ns_cselect_b32 s{sT0}, 0, {131072-2048}\ns_add_u32 s{sT0}, s{sT0}, 256\ns_add_u32 s8, s8, s{sT0}\ns_addc_u32 s9, s9, 0")
    if pf2==3:
        A(f"s_lshl_b32 s12, s2, 2\ns_add_u32 s12, s12, s{sP}")
        A(f"s_lshr_b32 s{sT0}, s12, 6\ns_mul_i32 s13, s{sT0}, 7\ns_and_b32 s{sT0}, s{sT0}, 1")
        A(f"s_xor_b32 s{sT1}, s{sT0}, 1\ns_mul_i32 s{sT1}, s{sT1}, 6\ns_add_u32 s{sT1}, s{sT1}, s13\ns_lshl_b32 s{sT1}, s{sT1}, 16\ns_and_b32 s14, s12, 63\ns_lshl_b32 s14, s14, 10\ns_add_u32 s{sT1}, s{sT1}, s14")
        A(f"s_add_u32 s14, s8, s{sT1}\ns_addc_u32 s15, s9, 0")
        A(f"s_add_u32 s13, s13, s{sT0}\ns_lshl_b32 s13, s13, 16\ns_and_b32 s12, s12, 63\ns_lshl_b32 s12, s12, 11\ns_add_u32 s13, s13, s12\ns_add_u32 s8, s8, s13\ns_addc_u32 s9, s9, 0\ns_mov_b32 s13, 0")
    A(f"s_lshr_b32 s{sHp}, s{sP}, 1\ns_and_b32 s{sHalf}, s{sP}, 1")
    A("v_subrev_u32 v5, 3, v2\nv_mul_u32_u24 v3, 37, v5\nv_lshrrev_b32 v3, 8, v3\nv_mul_u32_u24 v4, 7, v3\nv_sub_u32 v4, v5, v4")
    if skew2: A(f"s_and_b32 s{sT0}, s{sMt}, 3\ns_mul_i32 s{sT0}, s{sT0}, {3-skew2}\nv_add_u32 v4, s{sT0}, v4\nv_subrev_u32 v6, 7, v4\nv_min_u32 v4, v4, v6")
    A("v_add_u32 v4, 1, v4")
    A("v_cmp_gt_u32 vcc, 3, v2\ns_nop 1\nv_cndmask_b32 v3, v3, v2, vcc\nv_cndmask_b32 v4, v4, 0, vcc")
    A(f"v_add_u32 v4, s{sFt8}, v4\nv_and_b32 v4, 7, v4\nv_and_b32 v6, 1, v4\nv_mul_u32_u24 v4, 7, v4\nv_lshl_add_u32 v4, v3, 1, v4\nv_add3_u32 v4, v4, v6, s{sHp}")
    A(f"s_and_b32 s{sT0}, s{sMt}, {3 if skew2 else 0}\nv_add_u32 v5, s{sT0}, v2\nv_and_b32 v5, 3, v5\nv_mul_u32_u24 v5, 14, v5\nv_add3_u32 v5, v5, 6, s{sHp}")
    A("v_cmp_gt_u32 vcc, 24, v2\ns_nop 1\nv_cndmask_b32 v4, v5, v4, vcc\nv_and_b32 v4, 63, v4")
    A(f"s_mul_i32 s{sT0}, s{sJ}, 56\nv_add_u32 v4, s{sT0}, v4")
    A(f"s_mul_i32 s{sT0}, s{sMt}, {112*CH}\ns_mul_i32 s{sT1}, s{sHalf}, {QS}\ns_add_u32 s{sT0}, s{sT0}, s{sT1}")
    A(f"v_mul_u32_u24 v20, {CH}, v4\nv_add_u32 v20, s{sT0}, v20")
    A(f"s_lshl_b32 s{sT0}, s{sHalf}, 15\ns_lshl_b32 s{sT1}, s{sHalf}, 13\nv_mov_b32 v5, s{sT0}\nv_mov_b32 v6, s{sT1}\nv_cndmask_b32 v5, v6, v5, vcc")
    A(f"v_lshl_add_u32 v21, v4, 16, v5\ns_lshl_b32 s{sT0}, s{sDt}, 8\nv_add_u32 v21, s{sT0}, v21")
    A("v_and_b32 v4, 3, v2\nv_bfe_u32 v5, v2, 4, 1\nv_lshlrev_b32 v6, 1, v5\nv_xor_b32 v4, v4, v6\nv_lshlrev_b32 v4, 4, v4")
    A("v_lshrrev_b32 v6, 5, v2\nv_lshl_add_u32 v4, v6, 6, v4")
    A("v_bfe_u32 v6, v2, 2, 3\nv_lshl_add_u32 v22, v6, 11, v4\nv_add_u32 v23, 0x4000, v22")
    A("v_lshl_add_u32 v24, v5, 13, v22\nv_add_u32 v25, 0x8000, v24")
    fragoffs(26)
    A("s_waitcnt vmcnt(11)")
    stamp(2)
    A("s_barrier")
    issueX()
    A(f"s_mov_b32 s{sCnt}, 0\ns_branch P1_in")
    A("P1_loop:\ns_waitcnt vmcnt(15)\ns_barrier\nP1_in:")
    issueW1(); issueX()
    if pf2==3:
        A(f"s_sub_u32 s{sT0}, s{sCnt}, {spa}\ns_cmp_lt_u32 s{sT0}, {spb-spa}\ns_cbranch_scc0 P1_nspf")
        spf()
        A("P1_nspf:")
    A(f"s_add_u32 s{sCnt}, s{sCnt}, 1\ns_cmp_lt_u32 s{sCnt}, 13\ns_cbranch_scc1 P1_loop")
    A("s_waitcnt vmcnt(15)\ns_barrier")
    issueW1()
    sW,sH,sSlot,sLW2,sLH=47,48,51,50,49
    A(f"s_lshl_b32 s{sLH}, s{sP}, 12\ns_add_u32 s{sLW2}, s{sLH}, 65536\ns_mov_b32 s{sCnt}, 0\ns_mov_b32 s{sSlot}, 0")
    def issueW():
        A(f"s_add_u32 m0, s{sLW2}, s{sSlot}\ns_nop 0")
        for n in range(4):
            o,tb=n>>1,n&1
            A(f"buffer_load_dwordx4 v{22+o}, {R4(SW2)}, s{sW} offen offset:{tb*128} {w2aux} lds")
            if n<3: A(f"s_add_u32 m0, m0, {896 if tb==0 else 1024+128}\ns_nop 0")
    def issueH():
        A(f"s_add_u32 m0, s{sLH}, s{sSlot}\ns_nop 0")
        for n in range(4):
            A(f"buffer_load_dwordx4 v{26+n}, {R4(SWS)}, s{sH} offen sc1 lds")
            if n<3: A("s_add_u32 m0, m0, 1024\ns_nop 0")
    A(f"v_readlane_b32 s{sW}, v21, 0")
    A("s_waitcnt vmcnt(7)\ns_barrier")
    A("s_waitcnt vmcnt(0)\ns_barrier")
    issueW()
    A("s_barrier")
    A("P2_w:")
    A(f"s_add_u32 s{sCnt}, s{sCnt}, 1\ns_add_u32 s{sSlot}, s{sSlot}, 16384\nv_readlane_b32 s{sW}, v21, s{sCnt}\ns_nop 2")
    issueW()
    A(f"s_cmp_lt_u32 s{sCnt}, 3\ns_cbranch_scc1 P2_w")
    A(f"v_readlane_b32 s{sH}, v20, 3")
    A(f"v_and_b32 v3, 3, v2\nv_lshlrev_b32 v3, 2, v3\ns_lshl_b32 s{sT0}, s{sMt}, 4\ns_mov_b32 s57, 0x01010101\ns_mov_b32 s58, 0")
    A(f"s_cmp_eq_u32 s{sP}, 0\ns_cbranch_scc1 P2_hs\ns_waitcnt vmcnt(0)\ns_branch P2_hsd")
    A("P2_hs:")
    A(f"buffer_load_dword v4, v3, {R4(SD)}, s{sT0} offen sc1\ns_add_u32 s58, s58, 1\ns_waitcnt vmcnt(0)\nv_cmp_ne_u32 vcc, s57, v4")
    spin_tail("P2_hs")
    A("P2_hsd:")
    stamp(3)
    A(f"v_and_b32 v3, 31, v2\nv_lshlrev_b32 v3, 2, v3\ns_lshr_b32 s59, s{sLid}, 3\ns_lshl_b32 s59, s59, 8\ns_add_u32 s59, s59, {F_OFF}")
    PL=f"buffer_load_dword v4, v3, {R4(SWS)}, s59 offen sc1"
    A("s_barrier")
    A("s_mov_b32 s62, 0\ns_mov_b32 s58, 0")
    A(f"P2_l1:\n{PL}\ns_add_u32 s58, s58, 1")
    A("s_cmp_lt_u32 s62, 2\ns_cbranch_scc0 P2_l1w\ns_barrier\ns_add_u32 s62, s62, 1\nP2_l1w:\ns_waitcnt vmcnt(0)\nv_cmp_gt_u32 vcc, 1, v4")
    spin_tail("P2_l1")
    stamp(4)
    issueH()
    A(f"s_mov_b32 s{sCnt}, 4\ns_mov_b32 s57, 2")
    A("P2_loop:")
    A(f"v_readlane_b32 s{sW}, v21, s{sCnt}\nv_readlane_b32 s{sH}, v20, s{sCnt}")
    A(f"s_add_u32 s{sSlot}, s{sSlot}, 16384\ns_and_b32 s{sSlot}, s{sSlot}, 0xffff")
    A(f"s_cmp_eq_u32 s{sCnt}, 24\ns_cbranch_scc0 P2_a\nv_mov_b32 v22, v24\nv_mov_b32 v23, v25\nP2_a:")
    A("s_cmp_eq_u32 s62, 0\ns_cbranch_scc1 P2_bar\ns_sub_u32 s62, s62, 1\ns_branch P2_nobar")
    A("P2_bar:\ns_waitcnt vmcnt(16)\ns_barrier\nP2_nobar:")
    A(f"s_cmp_eq_u32 s{sCnt}, 9\ns_cselect_b32 s{sT0}, 1, 0\ns_cmp_eq_u32 s{sCnt}, 16\ns_cselect_b32 s{sT0}, 1, s{sT0}\ns_cmp_eq_u32 s{sT0}, 0\ns_cbranch_scc1 P2_np\n{PL}\nP2_np:")
    A(f"s_cmp_eq_u32 s{sCnt}, 10\ns_cselect_b32 s{sT0}, 1, 0\ns_cmp_eq_u32 s{sCnt}, 17\ns_cselect_b32 s{sT0}, 1, s{sT0}\ns_cmp_eq_u32 s{sT0}, 0\ns_cbranch_scc1 P2_b")
    A("s_waitcnt vmcnt(8)\nv_cmp_gt_u32 vcc, s57, v4\ns_mov_b32 s58, 0\ns_nop 3\ns_cbranch_vccz P2_ok")
    A(f"P2_l2:\n{PL}\ns_add_u32 s58, s58, 1\ns_waitcnt vmcnt(0)\nv_cmp_gt_u32 vcc, s57, v4")
    spin_tail("P2_l2")
    A("P2_ok:\ns_add_u32 s57, s57, 1")
    A("P2_b:")
    issueW(); issueH()
    if pf2==3:
        A("s_cmp_eq_u32 s13, 24\ns_cselect_b32 s8, s14, s8\ns_cselect_b32 s9, s15, s9\ns_cmp_lt_u32 s13, 28\ns_cbranch_scc0 P2_nspf")
        spf()
        A("P2_nspf:")
    A(f"s_add_u32 s{sCnt}, s{sCnt}, 1\ns_cmp_lt_u32 s{sCnt}, 28\ns_cbranch_scc1 P2_loop")
    A("s_waitcnt vmcnt(16)\ns_barrier\ns_waitcnt vmcnt(8)\ns_barrier\ns_waitcnt vmcnt(0)\ns_barrier")
    if diag: stamp(5); rstamp(15); flush(16)
    A("s_endpgm")
    A(".p2align 6\nL_cons:")
    ACC=16; F=[(128,144),(172,188)]
    vX0,vX1,vE,vO,vL=4,5,6,7,8; bX0,bE,bL=9,10,11
    sWm,sWf,sIt,sRg,sA,sB,sC=46,47,48,49,50,51,59
    if pfc:
        A(f"s_getpc_b64 s[54:55]\nC_pc:\ns_sub_u32 s54, s54, C_pc-{NAME}\ns_subb_u32 s55, s55, 0")
        A(f"v_lshlrev_b32 v3, 7, v0\nv_min_u32 v3, L_end-{NAME}, v3\nglobal_load_dword v255, v3, s[54:55]")
    if pf1==1:
        A(f"v_and_b32 v15, 31, v2\nv_lshlrev_b32 v15, 7, v15\ns_lshl_b32 s{sA}, s2, 2\ns_add_u32 s{sA}, s{sA}, s3\ns_lshl_b32 s{sA}, s{sA}, 12")
    if pf1==2:
        A(f"v_lshlrev_b32 v15, 7, v2\ns_lshr_b32 s{sA}, s2, 3\ns_lshl_b32 s{sA}, s{sA}, 2\ns_add_u32 s{sA}, s{sA}, s3\ns_lshl_b32 s{sA}, s{sA}, 13\ns_lshr_b32 s{sB}, s{sXcd}, 1\ns_lshl_b32 s{sB}, s{sB}, 20\ns_add_u32 s{sA}, s{sA}, s{sB}")
    A("s_waitcnt lgkmcnt(0)")
    if pf1:
        srd(A,SX,4,X_BYTES)
        A(f"buffer_load_dword v253, v15, {R4(SX)}, s{sA} offen")
    A("s_setprio 1")
    A(f"s_lshr_b32 s{sWm}, s3, 1\ns_and_b32 s{sWf}, s3, 1")
    A("v_and_b32 v3, 15, v2\nv_lshrrev_b32 v12, 4, v2")
    A("v_lshrrev_b32 v13, 1, v3\nv_xor_b32 v13, v13, v12\nv_lshlrev_b32 v13, 4, v13")
    A(f"s_lshl_b32 s{sA}, s{sWm}, 13\nv_lshlrev_b32 v14, 7, v3\nv_add3_u32 v{bX0}, v13, v14, s{sA}")
    A("v_lshrrev_b32 v13, 1, v12\nv_mul_u32_u24 v13, 7168, v13\nv_bfe_u32 v15, v2, 2, 2\nv_lshl_add_u32 v13, v15, 6, v13\nv_and_b32 v15, 3, v2\nv_lshl_add_u32 v13, v15, 3, v13")
    A(f"v_and_b32 v14, 1, v12\nv_mul_u32_u24 v15, 1056, v14\ns_lshl_b32 s{sA}, s{sWf}, 9\ns_add_u32 s{sA}, s{sA}, {WOFF}\nv_add3_u32 v{bE}, v13, v15, s{sA}")
    A(f"v_mul_u32_u24 v15, 544, v14\nv_add_u32 v13, v13, v15\ns_lshl_b32 s{sA}, s{sWf}, 5\nv_xor_b32 v13, s{sA}, v13\nv_add_u32 v{bL}, {WOFF+6144}, v13")
    VF=248
    fragoffs(VF)
    A(f"v_add_u32 v{vE}, {2*WST}, v{bE}\nv_mov_b32 v{vX0}, v{bX0}\nv_add_u32 v{vL}, {2*WST}, v{bL}\nv_xor_b32 v{vO}, 32, v{vE}\nv_xor_b32 v{vX1}, 64, v{vX0}")
    srd(A,SO,10,O_BYTES); srd(A,SD,12,256); srd(A,SWS,14,0x10000000); srd(A,SW2,8,W_BYTES)
    A("v_lshlrev_b32 v3, 4, v2")
    A(f"s_lshr_b32 s56, s{sLid}, 3\ns_lshl_b32 s56, s56, 8\ns_lshl_b32 s{sB}, s{sFt8}, 4\ns_add_u32 s56, s56, s{sB}\ns_lshl_b32 s{sB}, s3, 2\ns_add_u32 s56, s56, s{sB}\ns_add_u32 s56, s56, {F_OFF}")
    A(f"v_mov_b32 v1, {OOB}\nv_cmp_eq_u32 vcc, 0, v2\ns_nop 1\nv_cndmask_b32 v1, v1, 0, vcc")
    A(f"s_lshl_b32 s57, s{sLid}, 2\ns_add_u32 s57, s57, s3\ns_mul_i32 s57, s57, {QS}\ns_add_u32 s57, s57, {P_OFF}")
    for r in range(112): A(f"v_mov_b32 v{ACC+r}, 0")
    for r in range(4): A(f"v_mov_b32 v{244+r}, -1")
    def hook(it, body, name, reg=None):
        OOL.append(f"{name}:\n{body}\ns_branch {name}_b")
        return [f"s_cmp_eq_u32 s{reg or sIt}, {it}", f"s_cbranch_scc1 {name}\n{name}_b:"]
    def reads1(u, fs):
        X,W=F[fs]
        xs=[f"ds_read_b128 {vr(X+4*i,4)}, v{vX1 if u else vX0} offset:{i*2048}" for i in range(4)]
        ws=[]
        for j in range(7):
            a,o=(vL,0) if j==6 else ((vO if j&1 else vE),(j>>1)*2048)
            for hh in range(2): ws.append(f"ds_read_b64_tr_b16 {vr(W+4*j+2*hh,2)}, v{a} offset:{u*14336+o+hh*256}")
        return ws[0:2]+xs+ws[2:]
    def mf1(fs):
        X,W=F[fs]
        return [f"v_mfma_f32_16x16x32_bf16 {vr(ACC+(j*4+i)*4,4)}, {vr(W+4*j,4)}, {vr(X+4*i,4)}, {vr(ACC+(j*4+i)*4,4)}" for j,i in snake(range(7),4)]
    A(f"s_mov_b32 s{sIt}, 0\ns_mov_b32 s{sRg}, {2*WST}\ns_mov_b32 s52, 0\ns_add_u32 s62, s3, s{sFt8}\ns_and_b32 s62, s62, 3\ns_add_u32 s62, s62, {ack-5}")
    A(f"s_mul_i32 s61, s3, {pfb}\ns_add_u32 s61, s61, {pfa}")
    if pf2==2: A(f"v_min_u32 v15, 55, v2\nv_lshlrev_b32 v15, 7, v15\ns_lshl_b32 s{sA}, s2, 2\ns_add_u32 s{sA}, s{sA}, s3\ns_mul_i32 s{sA}, s{sA}, 7168\nbuffer_load_dword v255, v15, {R4(SW2)}, s{sA} offen")
    if diag in (2,3): A("s_mov_b32 m0, 0")
    A("s_barrier")
    stamp(1)
    for l in reads1(0,0): A(l)
    A("s_waitcnt lgkmcnt(0)")
    A(".p2align 3\nC1_loop:")
    sstamp()
    ex=[f"s_add_u32 s{sRg}, s{sRg}, {WST}\ns_add_u32 s52, s52, 16384", f"s_cmp_eq_u32 s{sRg}, {WST*3}\ns_cselect_b32 s{sRg}, 0, s{sRg}",
        f"v_add_u32 v{vE}, s{sRg}, v{bE}\ns_and_b32 s52, s52, 0xffff", f"v_add_u32 v{vX0}, s52, v{bX0}", f"v_add_u32 v{vL}, s{sRg}, v{bL}",
        f"v_xor_b32 v{vO}, 32, v{vE}", f"v_xor_b32 v{vX1}, 64, v{vX0}"]
    clr="\n".join([f"buffer_store_dwordx4 v[244:247], v{VF+i}, {R4(SWS)}, s57 offen sc1" for i in range(4)])
    clr=f"v_mov_b32 v13, 0\n{clr}\nbuffer_store_dword v13, v1, {R4(SWS)}, s56 offen sc1"
    ex+=hook("s62" if stag else 2,clr,"H1_clr")
    for l in interleave(mf1(0), reads1(1,1)+ex): A(l)
    A("s_waitcnt lgkmcnt(0)\ns_barrier")
    pub=(f"s_cmp_eq_u32 s3, 0\ns_cbranch_scc0 H1_pub_b\ns_and_b32 s{sA}, s{sLid}, 3\ns_lshl_b32 s{sA}, s{sA}, 3\ns_lshl_b32 s{sA}, 1, s{sA}\nv_mov_b32 v13, s{sA}\n"
         f"s_andn2_b32 s{sA}, s{sLid}, 3\nv_lshlrev_b32 v14, 8, v2\nbuffer_atomic_or v13, v14, {R4(SD)}, s{sA} offen")
    ex=hook(ack,"s_waitcnt vmcnt(0)","H1_ack")+hook(ack+1,pub,"H1_pub")
    if pf2==1:
        ex+=hook("s61",f"v_min_u32 v15, 55, v2\nv_lshlrev_b32 v15, 7, v15\ns_lshl_b32 s{sA}, s2, 2\ns_add_u32 s{sA}, s{sA}, s3\ns_mul_i32 s{sA}, s{sA}, 7168\nbuffer_load_dword v255, v15, {R4(SW2)}, s{sA} offen","H1_pf")
    ex+=[f"s_add_u32 s{sIt}, s{sIt}, 1", f"s_cmp_lt_u32 s{sIt}, 16"]
    x=interleave(mf1(1), reads1(0,0)+ex)
    assert x[-1].startswith("v_mfma")
    for l in x[:-1]: A(l)
    A("s_waitcnt lgkmcnt(0)"); A(x[-1])
    A("s_cbranch_scc1 C1_loop")
    stamp(2)
    sHA,sH3=50,51
    A(f"s_mul_i32 s{sHA}, s{sMt}, 112\ns_mul_i32 s{sH3}, s{sFt}, 7\ns_add_u32 s{sHA}, s{sHA}, s{sH3}\ns_and_b32 s52, s{sFt8}, 1")
    A(f"s_xor_b32 s53, s52, 1\ns_mul_i32 s53, s53, 6\ns_add_u32 s{sH3}, s{sHA}, s53\ns_add_u32 s{sHA}, s{sHA}, s52\ns_add_u32 s{sHA}, s{sHA}, s{sWf}")
    A(f"s_mul_i32 s52, s{sWm}, {QS}\ns_mul_i32 s{sHA}, s{sHA}, {CH}\ns_add_u32 s{sHA}, s{sHA}, s52\ns_mul_i32 s{sH3}, s{sH3}, {CH}\ns_add_u32 s{sH3}, s{sH3}, s52\ns_lshl_b32 s52, s{sWm}, 12")
    A(f"s_lshl_b32 s53, s{sWf}, 13\ns_add_u32 s52, s52, s53\nv_add_u32 v4, s52, v3")
    A(f"v_bfe_u32 v5, v2, 4, 1\nv_lshlrev_b32 v5, 3, v5\nv_lshrrev_b32 v6, 5, v2\nv_lshl_add_u32 v5, v6, 1, v5\nv_bfe_u32 v6, v2, 3, 1\ns_lshl_b32 s52, s{sWf}, 2\nv_add3_u32 v13, v5, v6, s52")
    A("v_add_u32 v14, 16, v13\nv_and_b32 v15, 7, v2\nv_lshlrev_b32 v15, 4, v15")
    physline(5,13,12); physline(6,14,12)
    A("v_add_u32 v5, v5, v15\nv_add_u32 v6, v6, v15")
    A("v_mov_b32 v7, 1\ns_mov_b32 s52, 0xbfb8aa3b\ns_mov_b32 s53, 0xbfb8aa3b\ns_mov_b32 s54, 1.0\ns_mov_b32 s55, 1.0")
    T=216
    def silu(a, b, D):
        t=T; src=[a,a+2,b,b+2]
        for r in range(4): A(f"v_pk_mul_f32 {vr(t+2*r,2)}, s[52:53], {vr(src[r],2)}")
        for r in range(8): A(f"v_exp_f32 v{t+r}, v{t+r}")
        for r in range(4): A(f"v_pk_add_f32 {vr(t+2*r,2)}, s[54:55], {vr(t+2*r,2)}")
        for r in range(8): A(f"v_rcp_f32 v{t+r}, v{t+r}")
        for r in range(4): A(f"v_pk_mul_f32 {vr(t+2*r,2)}, {vr(t+2*r,2)}, {vr(src[r],2)}")
        for r in range(4): A(f"v_cvt_pk_bf16_f32 v{D+r}, v{t+2*r}, v{t+2*r+1}")
    def gst(D,i): return f"buffer_store_dwordx4 {vr(D,4)}, v{VF+i}, {R4(SWS)}, s{sHA} offen sc1"
    FLAG=f"buffer_store_dword v7, v1, {R4(SWS)}, s56 offen sc1"
    DL=[232,128,144]; D3=224
    for L in range(3):
        for i in range(4):
            D=DL[L]+4*i
            silu(ACC+((2*L)*4+i)*4, ACC+((2*L+1)*4+i)*4, D)
            if L==0 or (L==2 and l1epi>=2): A(gst(D,i))
            A(f"ds_write_b128 v4, {vr(D,4)} offset:{L*16384+i*1024}")
        if L==1:
            stamp(11); A("s_waitcnt vmcnt(0)"); stamp(12)
            A(f"{FLAG}\ns_add_u32 s{sHA}, s{sHA}, {2*CH}")
            if l1epi:
                for i in range(4): A(gst(128+4*i,i))
                A(f"s_add_u32 s{sHA}, s{sHA}, {2*CH}")
    for ip in range(2):
        D=D3+4*ip; a=ACC+(24+2*ip)*4
        silu(a,a+4,D)
        A(f"s_nop 1\nv_permlane16_swap_b32 v{D}, v{D+2}\nv_permlane16_swap_b32 v{D+1}, v{D+3}")
        if l1epi>=3: A(f"buffer_store_dwordx4 {vr(D,4)}, v{5+ip}, {R4(SWS)}, s{sH3} offen sc1")
    F2=[(160,176),(192,208)]; vH=8; vW=[9,10,11,12]
    A(f"s_lshl_b32 s52, s{sWm}, 12\nv_add_u32 v{vH}, s52, v3")
    A("v_lshrrev_b32 v13, 5, v2\nv_lshlrev_b32 v13, 11, v13\nv_bfe_u32 v14, v2, 4, 1\nv_mul_u32_u24 v14, 288, v14\nv_add_u32 v13, v13, v14")
    A("v_bfe_u32 v15, v2, 2, 2\nv_lshl_add_u32 v13, v15, 6, v13\nv_and_b32 v15, 3, v2\nv_lshl_add_u32 v13, v15, 3, v13")
    A(f"s_lshl_b32 s52, s{sJ}, 1\ns_add_u32 s52, s52, s{sWf}\ns_lshl_b32 s52, s52, 9\ns_add_u32 s52, s52, 65536\nv_add_u32 v{vW[0]}, s52, v13")
    A(f"v_xor_b32 v{vW[1]}, 32, v{vW[0]}\nv_xor_b32 v{vW[2]}, 0x400, v{vW[0]}\nv_xor_b32 v{vW[3]}, 0x420, v{vW[0]}\nv_mov_b32 v7, 2\ns_mov_b32 s{sIt}, 0")
    A(f"s_add_u32 s62, s{sFt8}, s3\ns_and_b32 s62, s62, {rmask}\ns_add_u32 s62, s62, {l2st+5}")
    def rdH(X,slot,u): return [f"ds_read_b128 {vr(X+4*i,4)}, v{vH} offset:{slot*16384+u*8192+i*1024}" for i in range(4)]
    def rdW(W,slot,u,js): return [f"ds_read_b64_tr_b16 {vr(W+4*n+2*hh,2)}, v{vW[j]} offset:{slot*16384+(4*u+2*hh)*2048}" for n,j in enumerate(js) for hh in range(2)]
    def reads2(slot,u,fs):
        X,W=F2[fs]; ws=rdW(W,slot,u,range(4)); return ws[0:2]+rdH(X,slot,u)+ws[2:]
    def mfm(X,W,js,zero=False,w0=0):
        return [f"v_mfma_f32_16x16x32_bf16 {vr(ACC+(j*4+i)*4,4)}, {vr(W+4*(j-w0),4)}, {vr(X+4*i,4)}, {'0' if zero else vr(ACC+(j*4+i)*4,4)}" for j,i in snake(js,4)]
    def mf2(fs,zero=False): return mfm(F2[fs][0],F2[fs][1],range(4),zero)
    A("s_waitcnt lgkmcnt(0)")
    stamp(3)
    A("s_barrier")
    stamp(4)
    for l in reads2(0,0,0): A(l)
    sstamp()
    A("s_waitcnt lgkmcnt(0)")
    for l in interleave(mf2(0,True), reads2(0,1,1)): A(l)
    A("s_branch C2_in")
    dw={}; dws={}
    t3st=[f"buffer_store_dwordx4 {vr(D3+4*ip,4)}, v{5+ip}, {R4(SWS)}, s{sH3} offen sc1" for ip in range(2)]
    if not l1epi:
        dw[(l1st,0)]=gst(128,0)+"\n"+gst(132,1); dw[(l1st,1)]=gst(136,2)+"\n"+gst(140,3)+f"\ns_add_u32 s{sHA}, s{sHA}, {2*CH}"
        dw[(l1st+2,1)]=f"s_waitcnt vmcnt(0)\n{FLAG}"
    else:
        dw[(l1st,1)]=f"s_waitcnt vmcnt(0)\n{FLAG}"
    if l1epi>=2:
        if l1epi==2: dw[(l2st,0)]="\n".join(t3st)
        dw[(f3,1)]=f"v_mov_b32 v7, 3\ns_waitcnt vmcnt(0)\n{FLAG}"
    elif not stag2:
        dw[(l2st,0)]=gst(144,0)+"\n"+gst(148,1); dw[(l2st+1,0)]=gst(152,2)+"\n"+gst(156,3)+"\nv_mov_b32 v7, 3"
        dw[(l2st+2,0)]="\n".join(t3st)
        dw[(l2st+5,1)]=f"s_waitcnt vmcnt(0)\n{FLAG}"
    else:
        dw[(f3,1)]=f"v_mov_b32 v7, 3\ns_waitcnt vmcnt(0)\n{FLAG}"
        body=[gst(144+4*i,i) for i in range(4)]+t3st
        o="H2_st:\n"
        for n,b in enumerate(body):
            o+=f"s_cmp_eq_u32 s62, {5-n}\ns_cbranch_scc0 H2_st{n}\n{b}\nH2_st{n}:\n"
        o+="s_setpc_b64 s[54:55]"
        OOL.append(o)
    def hooks2(slot,u):
        ex=[]
        for (q,uu),body in sorted(dw.items()):
            if q%4==slot and uu==u: ex+=hook(q//4,body,f"H2_{q}_{uu}")
        if stag2 and l1epi<2 and u==0:
            ex+=["s_sub_u32 s62, s62, 1\ns_cmp_lt_u32 s62, 6", f"s_cbranch_scc1 H2_go{slot}\nH2_ns{slot}:"]
            OOL.append(f"H2_go{slot}:\ns_call_b64 s[54:55], H2_st\ns_branch H2_ns{slot}")
        assert len(ex)<=4, (slot,u,ex)
        return ex
    A(".p2align 3\nC2_loop:")
    for slot in range(4):
        sstamp()
        for l in interleave(mf2(0), reads2(slot,1,1)+hooks2(slot,0)): A(l)
        if slot==0: A("C2_in:")
        A("s_waitcnt lgkmcnt(0)\ns_barrier")
        ex=hooks2(slot,1)
        if slot==3: ex+=[f"s_add_u32 s{sIt}, s{sIt}, 1", f"s_cmp_lt_u32 s{sIt}, 6"]
        x=interleave(mf2(1), reads2((slot+1)&3,0,0)+ex)
        if x[-1].startswith("v_mfma"):
            for l in x[:-1]: A(l)
            A("s_waitcnt lgkmcnt(0)"); A(x[-1])
        else:
            for l in x: A(l)
            A("s_waitcnt lgkmcnt(0)")
    A("s_cbranch_scc1 C2_loop")
    stamp(13)
    if diag: A("s_waitcnt lgkmcnt(0)")
    G=[dict(H=[160,80],W=[184,96]), dict(H=[192,104],W=[208,216])]
    def rdS(g,slot,js,us=(0,1)):
        o=[]
        for u in us:
            w=rdW(G[g]['W'][u],slot,u,js); o+=w[0:2]+rdH(G[g]['H'][u],slot,u)+w[2:]
        return o
    def mfS(g,js): return mfm(G[g]['H'][0],G[g]['W'][0],js,w0=js[0])+mfm(G[g]['H'][1],G[g]['W'][1],js,w0=js[0])
    for l in rdS(0,0,(2,3),(1,)): A(l)
    A("s_barrier")
    m=mfS(0,(2,3)); r=rdS(1,1,(2,3))
    x=interleave(m[:8], r[:8])
    for l in x: A(l)
    A("s_waitcnt lgkmcnt(8)")
    for l in interleave(m[8:], r[8:]): A(l)
    for q in (1,2):
        A("s_waitcnt lgkmcnt(0)\ns_barrier")
        for l in interleave(mfS(q&1,(2,3)), rdS((q+1)&1,q+1,(2,3))): A(l)
    A("s_waitcnt lgkmcnt(0)")
    for l in interleave(mfS(1,(2,3)), rdS(0,0,(0,1))): A(l)
    stamp(5)
    A(f"s_mul_i32 s52, s{sJ}, {-2*32*QS}\ns_add_u32 s52, s52, {32*QS}\ns_add_u32 s52, s52, s57\ns_mov_b32 s53, -2")
    snd=[]
    for i in range(4):
        D=232+4*i
        for n,j in enumerate((2,3)):
            S=ACC+(j*4+i)*4
            snd+= [f"v_cvt_pk_bf16_f32 v{D+2*n}, v{S}, v{S+1}", f"v_cvt_pk_bf16_f32 v{D+2*n+1}, v{S+2}, v{S+3}"]
        snd+=[f"v_min_u32 v{D+r}, s53, v{D+r}" for r in range(4)]
        snd.append(f"buffer_store_dwordx4 {vr(D,4)}, v{VF+i}, {R4(SWS)}, s52 offen sc1")
    A("s_waitcnt lgkmcnt(0)")
    m=mfS(0,(0,1)); r=rdS(1,1,(0,1))
    k=0
    for n,mm_ in enumerate(m):
        A(mm_); A(r[n])
        if n>=3:
            for _ in range(3):
                if k<len(snd): A(snd[k]); k+=1
    while k<len(snd): A(snd[k]); k+=1
    stamp(6)
    for q in (1,2):
        A("s_waitcnt lgkmcnt(0)")
        for l in interleave(mfS(q&1,(0,1)), rdS((q+1)&1,q+1,(0,1))): A(l)
    A("s_waitcnt lgkmcnt(0)")
    RB=80
    LD=[f"buffer_load_dwordx4 {vr(RB+4*i,4)}, v{VF+i}, {R4(SWS)}, s57 offen sc1" for i in range(4)]
    adr=["v_and_b32 v13, 15, v2","v_lshlrev_b32 v13, 11, v13","v_bfe_u32 v14, v2, 4, 1","v_lshl_add_u32 v13, v14, 5, v13","v_lshrrev_b32 v14, 5, v2","v_lshl_add_u32 v13, v14, 4, v13",
         f"s_lshl_b32 s{sC}, s{sMt}, 1\ns_add_u32 s{sC}, s{sC}, s{sWm}", f"s_lshl_b32 s{sC}, s{sC}, 17\ns_lshl_b32 s52, s{sDt}, 8", f"s_add_u32 s{sC}, s{sC}, s52\ns_lshl_b32 s52, s{sJ}, 7",
         f"s_add_u32 s{sC}, s{sC}, s52\ns_lshl_b32 s52, s{sWf}, 6", f"s_add_u32 s{sC}, s{sC}, s52\ns_mov_b32 s58, 0"]
    for l in interleave(mfS(1,(0,1)), adr+LD): A(l)
    A("s_branch C3_chk")
    A("C3_poll:")
    for l in LD: A(l)
    A("C3_chk:\ns_add_u32 s58, s58, 1\ns_waitcnt vmcnt(0)")
    A(f"v_max3_u32 v14, v{RB}, v{RB+1}, v{RB+2}")
    for r in range(3,15,2): A(f"v_max3_u32 v14, v14, v{RB+r}, v{RB+r+1}")
    A(f"v_max_u32 v14, v14, v{RB+15}\nv_cmp_eq_u32 vcc, -1, v14")
    spin_tail("C3_poll")
    stamp(7); stamp(8)
    A("s_mov_b32 s53, 0xffff0000")
    for i in range(4):
        D=232+4*i
        for n in range(2):
            S=ACC+(n*4+i)*4
            for h in range(2):
                Rr=RB+4*i+2*n+h
                A(f"v_lshlrev_b32 v{T}, 16, v{Rr}\nv_and_b32 v{T+1}, s53, v{Rr}\nv_pk_add_f32 {vr(S+2*h,2)}, {vr(S+2*h,2)}, {vr(T,2)}")
                A(f"v_cvt_pk_bf16_f32 v{D+2*n+h}, v{S+2*h}, v{S+2*h+1}")
        A(f"s_nop 1\nv_permlane16_swap_b32 v{D}, v{D+2}\nv_permlane16_swap_b32 v{D+1}, v{D+3}")
        A(f"buffer_store_dwordx4 {vr(D,4)}, v13, {R4(SO)}, s{sC} offen {outaux}")
        if i<3: A(f"s_add_u32 s{sC}, s{sC}, 0x8000")
    if diag:
        stamp(9); A("s_waitcnt vmcnt(0)"); stamp(10); rstamp(15); flush(16,True)
    A("s_endpgm")
    for b in OOL: A(b)
    A("L_end:\ns_endpgm")
    A(f""".section .rodata,"a"
.p2align 6
.amdhsa_kernel {NAME}
  .amdhsa_next_free_vgpr 256
  .amdhsa_next_free_sgpr 96
  .amdhsa_accum_offset 256
  .amdhsa_group_segment_fixed_size 0
  .amdhsa_kernarg_size 48
  .amdhsa_user_sgpr_count 2
  .amdhsa_user_sgpr_kernarg_segment_ptr 1
  .amdhsa_system_sgpr_workgroup_id_x 1
.end_amdhsa_kernel""")
    return A.text()

if __name__=="__main__":
    import inspect
    p=argparse.ArgumentParser(); p.add_argument("-o")
    for k,v in inspect.signature(build).parameters.items():
        p.add_argument("--"+k,type=type(v.default),default=v.default)
    a=vars(p.parse_args()); o=a.pop("o")
    open(o,"w").write(build(**a))
```

```python
import sys, argparse
NAME="standalone__dense_activation_silu__prompt_kernel"
class Asm:
    def __init__(self): self.L=[]
    def __call__(self, s):
        for l in s.split("\n"): self.L.append(l)
    def text(self): return "\n".join(self.L)+"\n"
def vr(a,n): return f"v[{a}:{a+n-1}]"
def srd(A, d, b, nbytes):
    A(f"s_mov_b32 s{d}, s{b}\ns_and_b32 s{d+1}, s{b+1}, 0xffff\ns_mov_b32 s{d+2}, {nbytes}\ns_mov_b32 s{d+3}, 0x20000")
X_BYTES=2048*1024*2; W_BYTES=1024*3584*2; O_BYTES=2048*1024*2
H_OFF=0; P_OFF=24<<20; F_OFF=48<<20; T_OFF=64<<20
SX,SW1,SW2,SO,SD,SWS=16,20,24,28,32,36
sMt,sJ,sFt8,sFt,sLid,sXcd,sDt=40,41,42,43,44,45,63
OOB=0x7ffffff0
SPIN=1<<17
def R4(s): return f"s[{s}:{s+3}]"

def interleave(mf, rd):
    out=[]; k=0
    for m in mf:
        out.append(m)
        if k<len(rd): out.append(rd[k]); k+=1
    return out+rd[k:]
def snake(JS,NI): return [(j,(i if n%2==0 else NI-1-i)) for n,j in enumerate(JS) for i in range(NI)]

def build(diag=0, rot=1, pf1=0, pf2=1, pfc=1, outaux="sc1", pfa=13, dswz=0, w1aux="", xaux="", w2aux="", l1st=1, l2st=4, stag=1, l1epi=1, rmask=1, f3=9, skew2=1, pfb=0, stag2=1, remap=1, spa=0, spb=13, spn=4, ack=6, ldearly=1, pfi=0, w1s=6, sched=0, fch=6, pdelay=0):
    A=Asm(); OOL=[]
    tm='s_memrealtime' if diag>=3 else 's_memtime'
    def stamp(k):
        if diag: A(f"{tm} s[{64+2*k}:{65+2*k}]")
    def rstamp(k):
        if diag: A(f"s_memrealtime s[{64+2*k}:{65+2*k}]")
    def sstamp():
        if diag in (2,3): A(f"{tm} s[90:91]\ns_waitcnt lgkmcnt(0)\nv_writelane_b32 v254, s90, m0\ns_add_u32 m0, m0, 1")
    def flush(n, cons=False):
        if not diag: return
        if diag==5:
            ks=[1,2,12,4,13,5,7,10] if cons else [1,2,3,4,5]
            lab="DB_c" if cons else "DB_p"
            A(f"s_waitcnt lgkmcnt(0)\ns_and_b32 s60, s3, 3\ns_or_b32 s60, s60, s2\ns_cmp_eq_u32 s60, 0\ns_cbranch_scc0 {lab}\nv_lshlrev_b32 v1, 8, v2")
            for n_,k in enumerate(ks):
                A(f"s_sub_u32 s60, s{64+2*k}, s64\nv_mov_b32 v4, s60\nbuffer_store_dword v4, v1, {R4(SD)}, 0 offen offset:{4*(n_+(0 if cons else 8))} sc1")
            A(f"s_waitcnt vmcnt(0)\n{lab}:")
            return
        A(f"s_waitcnt lgkmcnt(0)\ns_lshl_b32 s60, s2, 3\ns_add_u32 s60, s60, s3\ns_lshl_b32 s60, s60, 8\ns_add_u32 s60, s60, {T_OFF}\nv_mov_b32 v1, 0")
        for k in range(n): A(f"v_mov_b32 v2, s{64+2*k}\nbuffer_store_dword v2, v1, {R4(SWS)}, s60 offen offset:{4*k}")
        if cons and diag>=2:
            A(f"v_and_b32 v1, 63, v0\nv_lshlrev_b32 v1, 2, v1\nv_mov_b32 v2, {OOB}\nv_cmp_gt_u32 vcc, 192, v1\ns_nop 1\nv_cndmask_b32 v1, v2, v1, vcc")
            A(f"buffer_store_dword v254, v1, {R4(SWS)}, s60 offen offset:64")
        A("s_waitcnt vmcnt(0)")
    def spin_tail(label):
        A(f"s_cmp_lt_u32 s58, {SPIN}\ns_cselect_b64 s[60:61], -1, 0\ns_and_b64 vcc, vcc, s[60:61]\ns_cbranch_scc1 {label}")
    WST=28672; WOFF=65536
    QS=5120 if remap else 4096
    CH=2*QS
    def physline(dst,g,tmp):
        if remap: A(f"v_add_u32 v{tmp}, 4, v{g}\nv_mul_u32_u24 v{tmp}, 37, v{tmp}\nv_lshrrev_b32 v{tmp}, 8, v{tmp}\nv_add_u32 v{tmp}, v{tmp}, v{g}\nv_lshlrev_b32 v{dst}, 7, v{tmp}")
        else: A(f"v_lshlrev_b32 v{dst}, 7, v{g}")
    def fragoffs(base):
        A("v_and_b32 v6, 7, v2\nv_lshlrev_b32 v6, 4, v6")
        for n in range(4):
            A(f"v_lshrrev_b32 v5, 3, v2\nv_add_u32 v5, {8*n}, v5"); physline(base+n,5,4); A(f"v_add_u32 v{base+n}, v{base+n}, v6")
    A("""; Fused feed-forward: out = silu(x @ w1) @ w2, bf16 in/out, fp32 accumulate.
; @launch grid=(256,1,1) block=(512,1,1) lds=151552""")
    A('.amdgcn_target "amdgcn-amd-amdhsa--gfx950"\n.text')
    A(f".globl {NAME}\n.p2align 8\n.type {NAME},@function\n{NAME}:")
    A("s_load_dwordx8 s[4:11], s[0:1], 0\ns_load_dwordx4 s[12:15], s[0:1], 32")
    A("s_cmp_ge_u32 s2, 256\ns_cbranch_scc1 L_end")
    stamp(0); rstamp(14)
    A("v_lshrrev_b32 v1, 6, v0\nv_and_b32 v2, 63, v0")
    A(f"s_and_b32 s{sXcd}, s2, 7\ns_lshr_b32 s46, s2, 3")
    A("v_readfirstlane_b32 s3, v1")
    A(f"s_lshr_b32 s{sMt}, s{sXcd}, 1\ns_lshl_b32 s{sMt}, s{sMt}, 2\ns_lshr_b32 s47, s46, 3\ns_add_u32 s{sMt}, s{sMt}, s47")
    A(f"s_and_b32 s{sJ}, s{sXcd}, 1\ns_and_b32 s{sFt8}, s46, 7\ns_lshl_b32 s{sFt}, s{sJ}, 3\ns_add_u32 s{sFt}, s{sFt}, s{sFt8}")
    A(f"s_lshl_b32 s{sLid}, s{sMt}, 4\ns_add_u32 s{sLid}, s{sLid}, s{sFt}\ns_xor_b32 s{sDt}, s{sFt8}, {dswz}")
    A("s_cmp_lt_u32 s3, 4\ns_cbranch_scc1 L_cons")
    sP,sKX,sKW,sLX,sLW,sRing,sCnt,sT0,sT1=46,47,48,49,50,51,52,53,54
    A(f"s_sub_u32 s{sP}, s3, 4\ns_and_b32 s{sT0}, s{sFt8}, 1\ns_lshl_b32 s{sT1}, s{sT0}, 6")
    A("v_bfe_u32 v3, v2, 2, 3\nv_mul_u32_u24 v3, 7168, v3\nv_lshrrev_b32 v5, 5, v2\nv_and_b32 v4, 3, v2\nv_lshlrev_b32 v4, 4, v4")
    A(f"v_lshl_add_u32 v6, v5, 6, v3\nv_add3_u32 v13, v6, v4, s{sT1}\nv_xor_b32 v14, 32, v13\nv_add_u32 v14, {8*7168}, v14")
    A(f"s_xor_b32 s{sT0}, s{sT0}, 1\ns_mul_i32 s{sT0}, s{sT0}, 384\nv_lshrrev_b32 v3, 2, v2\nv_mul_u32_u24 v3, 7168, v3\nv_lshlrev_b32 v5, 5, v5\nv_xor_b32 v4, v4, v5\nv_add3_u32 v12, v3, v4, s{sT0}")
    A(f"s_mul_i32 s{sKW}, s{sP}, {16*7168}\ns_mul_i32 s{sT0}, s{sFt}, 448\ns_add_u32 s{sKW}, s{sKW}, s{sT0}")
    A("v_lshrrev_b32 v3, 3, v2\nv_and_b32 v4, 7, v2\nv_lshrrev_b32 v5, 4, v2\nv_xor_b32 v4, v4, v5\nv_lshlrev_b32 v4, 4, v4\nv_lshl_add_u32 v3, v3, 11, v4")
    A(f"s_lshl_b32 s{sT0}, s{sMt}, 18\ns_lshl_b32 s{sT1}, s{sP}, 16\ns_add_u32 s{sT0}, s{sT0}, s{sT1}\nv_add_u32 v8, s{sT0}, v3")
    A("v_xor_b32 v9, 64, v8\nv_add_u32 v9, 0x4000, v9\nv_add_u32 v10, 0x8000, v8\nv_add_u32 v11, 0x8000, v9")
    A(f"s_mov_b32 s{sKX}, 0")
    if rot:
        if rot in (1,2,4,5,6):
            A(f"s_lshr_b32 s{sT0}, s{sXcd}, 1\ns_lshl_b32 s{sT1}, s{sJ}, 1\ns_add_u32 s{sT0}, s{sT0}, s{sT1}\ns_and_b32 s{sT0}, s{sT0}, 3\ns_lshl_b32 s{sT0}, s{sT0}, 2")
            if rot==4: A(f"s_and_b32 s{sT0}, s{sT0}, 8")
        else: A(f"s_mov_b32 s{sT0}, 0")
        if rot>=5: A(f"s_mov_b32 s62, s{sT0}\ns_mov_b32 s60, 0\ns_mov_b32 s61, 0")
        if rot>=2: A(f"s_and_b32 s{sT1}, s{sMt}, 3\ns_add_u32 s{sT0}, s{sT0}, s{sT1}")
        A(f"s_lshl_b32 s{sKX}, s{sT0}, 7\ns_mul_i32 s{sT0}, s{sT0}, {64*7168}\ns_add_u32 s{sKW}, s{sKW}, s{sT0}")
    sRX=57
    A(f"s_lshl_b32 s{sLX}, s{sP}, 12\ns_mul_i32 s{sLW}, s{sP}, 7168\ns_add_u32 s{sLW}, s{sLW}, {WOFF}\ns_mov_b32 s{sRing}, {2*WST}\ns_mov_b32 s{sRX}, 0\ns_mov_b32 s{sCnt}, 0")
    if rot: A(f"s_add_u32 s58, s{sKW}, 0\ns_mul_i32 s59, s{sP}, {16*7168}\ns_mul_i32 s{sT0}, s{sFt}, 448\ns_add_u32 s59, s59, s{sT0}\ns_add_u32 s58, s59, {1024*7168}")
    A("s_waitcnt lgkmcnt(0)")
    srd(A,SW1,6,W_BYTES); srd(A,SX,4,X_BYTES)
    def nextk(c):
        if rot==6:
            A(f"s_add_u32 s{c}, s{c}, 1\ns_and_b32 s{sT1}, s{c}, 8\ns_cselect_b32 s{sT0}, 3, 0\ns_xor_b32 s{sT0}, s{sT0}, s{sMt}\ns_and_b32 s{sT0}, s{sT0}, 3\ns_add_u32 s{sT0}, s{sT0}, s{c}\ns_and_b32 s{sT0}, s{sT0}, 7")
            A(f"s_add_u32 s{sT0}, s{sT0}, s{sT1}\ns_add_u32 s{sT0}, s{sT0}, s62\ns_and_b32 s{sT0}, s{sT0}, 15")
            return
        A(f"s_add_u32 s{c}, s{c}, 1\ns_add_u32 s{sT0}, s{c}, s{sMt}\ns_and_b32 s{sT0}, s{sT0}, 3\ns_and_b32 s{sT1}, s{c}, 12\ns_add_u32 s{sT0}, s{sT0}, s{sT1}\ns_add_u32 s{sT0}, s{sT0}, s62\ns_and_b32 s{sT0}, s{sT0}, 15")
    def issueW1():
        A(f"s_add_u32 m0, s{sRing}, s{sLW}\ns_add_u32 s{sRing}, s{sRing}, {WST}")
        for n in range(6):
            a,o=n>>1,n&1
            A(f"buffer_load_dwordx4 v{13+o}, {R4(SW1)}, s{sKW} offen offset:{a*128} {w1aux} lds")
            A(f"s_add_u32 m0, m0, {1024 if o==0 else (896 if a<2 else 1024+256)}")
            A("s_nop 0" if n else f"s_cmp_eq_u32 s{sRing}, {WST*3}\ns_cselect_b32 s{sRing}, 0, s{sRing}")
        A(f"buffer_load_dwordx4 v12, {R4(SW1)}, s{sKW} offen {w1aux} lds\ns_add_u32 s{sKW}, s{sKW}, {64*7168}")
        if rot>=5:
            nextk(60); A(f"s_mul_i32 s{sKW}, s{sT0}, {64*7168}\ns_add_u32 s{sKW}, s{sKW}, s59")
        elif rot: A(f"s_cmp_eq_u32 s{sKW}, s58\ns_cselect_b32 s{sKW}, s59, s{sKW}")
    def issueX():
        A(f"s_add_u32 m0, s{sRX}, s{sLX}\ns_add_u32 s{sRX}, s{sRX}, 16384")
        for n in range(4):
            A(f"buffer_load_dwordx4 v{8+n}, {R4(SX)}, s{sKX} offen {xaux} lds")
            if n<3: A("s_add_u32 m0, m0, 1024\n"+("s_nop 0" if n else f"s_and_b32 s{sRX}, s{sRX}, 0xffff"))
        if rot>=5:
            nextk(61); A(f"s_lshl_b32 s{sKX}, s{sT0}, 7")
        else: A(f"s_add_u32 s{sKX}, s{sKX}, 128\ns_and_b32 s{sKX}, s{sKX}, 2047")
    stamp(1)
    A("P1_pro:")
    issueX(); issueW1()
    A(f"s_add_u32 s{sCnt}, s{sCnt}, 1\ns_cmp_lt_u32 s{sCnt}, 2\ns_cbranch_scc1 P1_pro")
    srd(A,SW2,8,W_BYTES); srd(A,SWS,14,0x10000000)
    if diag==5: srd(A,SD,12,256)
    sHp,sHalf=55,56
    A(f"s_lshr_b32 s4, s{sLid}, 3\ns_lshl_b32 s4, s4, 10\ns_add_u32 s4, s4, {F_OFF+fch*128}\ns_add_u32 s4, s14, s4\ns_addc_u32 s5, s15, 0")
    A(f"s_lshl_b32 s6, s{sMt}, 4\ns_add_u32 s6, s12, s6\ns_addc_u32 s7, s13, 0")
    def spf():
        if pf2 not in (3,4): return
        for k in range(4): A(f"s_load_dword s12, s[8:9], {k*64}")
        A(f"s_add_u32 s13, s13, 1\ns_and_b32 s{sT0}, s13, 7\ns_cselect_b32 s{sT0}, 0, {131072-2048}\ns_add_u32 s{sT0}, s{sT0}, 256\ns_add_u32 s8, s8, s{sT0}\ns_addc_u32 s9, s9, 0")
    if pf2 in (3,4):
        A(f"s_lshl_b32 s12, s2, 2\ns_add_u32 s12, s12, s{sP}")
        A(f"s_lshr_b32 s{sT0}, s12, 6\ns_mul_i32 s13, s{sT0}, 7\ns_and_b32 s{sT0}, s{sT0}, 1")
        A(f"s_xor_b32 s{sT1}, s{sT0}, 1\ns_mul_i32 s{sT1}, s{sT1}, 6\ns_add_u32 s{sT1}, s{sT1}, s13\ns_lshl_b32 s{sT1}, s{sT1}, 16\ns_and_b32 s14, s12, 63\ns_lshl_b32 s14, s14, 10\ns_add_u32 s{sT1}, s{sT1}, s14")
        A(f"s_add_u32 s14, s8, s{sT1}\ns_addc_u32 s15, s9, 0")
        A(f"s_add_u32 s13, s13, s{sT0}\ns_lshl_b32 s13, s13, 16\ns_and_b32 s12, s12, 63\ns_lshl_b32 s12, s12, 11\ns_add_u32 s13, s13, s12\ns_add_u32 s8, s8, s13\ns_addc_u32 s9, s9, 0\ns_mov_b32 s13, 0")
    A(f"s_lshr_b32 s{sHp}, s{sP}, 1\ns_and_b32 s{sHalf}, s{sP}, 1")
    A("v_subrev_u32 v5, 3, v2\nv_mul_u32_u24 v3, 37, v5\nv_lshrrev_b32 v3, 8, v3\nv_mul_u32_u24 v4, 7, v3\nv_sub_u32 v4, v5, v4")
    if skew2==3: A(f"v_add_u32 v6, s{sMt}, v3\nv_and_b32 v6, 3, v6\nv_add_u32 v4, v6, v4\nv_subrev_u32 v6, 7, v4\nv_min_u32 v4, v4, v6")
    elif skew2: A(f"s_and_b32 s{sT0}, s{sMt}, 3\ns_mul_i32 s{sT0}, s{sT0}, {3-skew2}\nv_add_u32 v4, s{sT0}, v4\nv_subrev_u32 v6, 7, v4\nv_min_u32 v4, v4, v6")
    A("v_add_u32 v4, 1, v4")
    A("v_cmp_gt_u32 vcc, 3, v2\ns_nop 1\nv_cndmask_b32 v3, v3, v2, vcc\nv_cndmask_b32 v4, v4, 0, vcc")
    A(f"v_add_u32 v4, s{sFt8}, v4\nv_and_b32 v4, 7, v4\nv_and_b32 v6, 1, v4\nv_mul_u32_u24 v4, 7, v4\nv_lshl_add_u32 v4, v3, 1, v4\nv_add3_u32 v4, v4, v6, s{sHp}")
    A(f"s_and_b32 s{sT0}, s{sMt}, {3 if skew2 else 0}\nv_add_u32 v5, s{sT0}, v2\nv_and_b32 v5, 3, v5\nv_mul_u32_u24 v5, 14, v5\nv_add3_u32 v5, v5, 6, s{sHp}")
    A("v_cmp_gt_u32 vcc, 24, v2\ns_nop 1\nv_cndmask_b32 v4, v5, v4, vcc\nv_and_b32 v4, 63, v4")
    A(f"s_mul_i32 s{sT0}, s{sJ}, 56\nv_add_u32 v4, s{sT0}, v4")
    A(f"s_mul_i32 s{sT0}, s{sMt}, {112*CH}\ns_mul_i32 s{sT1}, s{sHalf}, {QS}\ns_add_u32 s{sT0}, s{sT0}, s{sT1}")
    A(f"v_mul_u32_u24 v20, {CH}, v4\nv_add_u32 v20, s{sT0}, v20")
    A(f"s_lshl_b32 s{sT0}, s{sHalf}, 15\ns_lshl_b32 s{sT1}, s{sHalf}, 13\nv_mov_b32 v5, s{sT0}\nv_mov_b32 v6, s{sT1}\nv_cndmask_b32 v5, v6, v5, vcc")
    A(f"v_lshl_add_u32 v21, v4, 16, v5\ns_lshl_b32 s{sT0}, s{sDt}, 8\nv_add_u32 v21, s{sT0}, v21")
    A("v_and_b32 v4, 3, v2\nv_bfe_u32 v5, v2, 4, 1\nv_lshlrev_b32 v6, 1, v5\nv_xor_b32 v4, v4, v6\nv_lshlrev_b32 v4, 4, v4")
    A("v_lshrrev_b32 v6, 5, v2\nv_lshl_add_u32 v4, v6, 6, v4")
    A("v_bfe_u32 v6, v2, 2, 3\nv_lshl_add_u32 v22, v6, 11, v4\nv_add_u32 v23, 0x4000, v22")
    A("v_lshl_add_u32 v24, v5, 13, v22\nv_add_u32 v25, 0x8000, v24")
    fragoffs(26)
    A("s_waitcnt vmcnt(11)")
    stamp(2)
    A("s_barrier")
    issueX()
    A(f"s_mov_b32 s{sCnt}, 0\ns_branch P1_in")
    A("P1_loop:\ns_waitcnt vmcnt(15)\ns_barrier\nP1_in:")
    issueW1(); issueX()
    if pf2==4:
        spf()
        A(f"s_cmp_lt_u32 s{sCnt}, 3\ns_cbranch_scc0 P1_nspf")
        spf()
        A("P1_nspf:")
    if pf2==3:
        A(f"s_sub_u32 s{sT0}, s{sCnt}, {spa}\ns_cmp_lt_u32 s{sT0}, {spb-spa}\ns_cbranch_scc0 P1_nspf")
        spf()
        A("P1_nspf:")
    A(f"s_add_u32 s{sCnt}, s{sCnt}, 1\ns_cmp_lt_u32 s{sCnt}, 13\ns_cbranch_scc1 P1_loop")
    A("s_waitcnt vmcnt(15)\ns_barrier")
    issueW1()
    sW,sH,sSlot,sLW2,sLH=47,48,51,50,49
    A(f"s_lshl_b32 s{sLH}, s{sP}, 12\ns_add_u32 s{sLW2}, s{sLH}, 65536\ns_mov_b32 s{sCnt}, 0\ns_mov_b32 s{sSlot}, 0")
    def issueW():
        A(f"s_add_u32 m0, s{sLW2}, s{sSlot}\ns_nop 0")
        for n in range(4):
            o,tb=n>>1,n&1
            A(f"buffer_load_dwordx4 v{22+o}, {R4(SW2)}, s{sW} offen offset:{tb*128} {w2aux} lds")
            if n<3: A(f"s_add_u32 m0, m0, {896 if tb==0 else 1024+128}\ns_nop 0")
    def issueH():
        A(f"s_add_u32 m0, s{sLH}, s{sSlot}\ns_nop 0")
        for n in range(4):
            A(f"buffer_load_dwordx4 v{26+n}, {R4(SWS)}, s{sH} offen sc1 lds")
            if n<3: A("s_add_u32 m0, m0, 1024\ns_nop 0")
    A(f"v_readlane_b32 s{sW}, v21, 0")
    A("s_waitcnt vmcnt(7)\ns_barrier")
    A(f"s_cmp_eq_u32 s{sP}, 0\ns_cbranch_scc0 P2_nh\ns_load_dwordx4 s[16:19], s[6:7], 0 glc\nP2_nh:")
    A("s_waitcnt vmcnt(0)\ns_barrier")
    issueW()
    A("s_barrier")
    A("P2_w:")
    A(f"s_add_u32 s{sCnt}, s{sCnt}, 1\ns_add_u32 s{sSlot}, s{sSlot}, 16384\nv_readlane_b32 s{sW}, v21, s{sCnt}\ns_nop 2")
    issueW()
    A(f"s_cmp_lt_u32 s{sCnt}, 3\ns_cbranch_scc1 P2_w")
    A(f"s_cmp_eq_u32 s{sP}, 0\ns_cbranch_scc0 P2_hsd\ns_mov_b32 s58, 0\ns_branch P2_hsw")
    A("P2_hs:\ns_load_dwordx4 s[16:19], s[6:7], 0 glc\ns_add_u32 s58, s58, 1\nP2_hsw:\ns_waitcnt lgkmcnt(0)")
    A(f"s_and_b32 s16, s16, s17\ns_and_b32 s18, s18, s19\ns_and_b32 s16, s16, s18\ns_cmp_ge_u32 s58, {SPIN}\ns_cbranch_scc1 P2_hsd\ns_cmp_eq_u32 s16, 0x01010101\ns_cbranch_scc0 P2_hs\nP2_hsd:")
    A(f"s_lshr_b32 s59, s{sLid}, 3\ns_lshl_b32 s59, s59, 10\ns_add_u32 s59, s59, {F_OFF+fch*128}\ns_lshl_b32 s{sT0}, s{sFt8}, 2")
    A(f"v_mov_b32 v5, {OOB}\nv_mov_b32 v6, s{sT0}\nv_cmp_eq_u32 vcc, 0, v2\nv_and_b32 v3, 7, v2\nv_lshlrev_b32 v3, 2, v3\nv_cndmask_b32 v6, v5, v6, vcc\nv_mov_b32 v5, 1")
    A(f"v_readlane_b32 s{sH}, v20, 3\ns_waitcnt vmcnt(0)")
    stamp(3)
    A("s_barrier")
    stamp(6)
    A(f"s_cmp_eq_u32 s{sP}, 1\ns_cbranch_scc0 P2_nf\nbuffer_store_dword v5, v6, {R4(SWS)}, s59 offen sc1\ns_nop 1\nv_mov_b32 v5, 7\nP2_nf:")
    A(f"s_cmp_eq_u32 s{sP}, 0\ns_cbranch_scc0 P2_go\ns_mov_b32 s58, 0")
    if pdelay: A(f"s_mov_b32 s16, 0\nP2_dl:\ns_add_u32 s16, s16, 1\ns_cmp_lt_u32 s16, {pdelay}\ns_cbranch_scc1 P2_dl")
    stamp(7)
    A("P2_l1:\ns_load_dwordx8 s[16:23], s[4:5], 0 glc\ns_add_u32 s58, s58, 1\ns_waitcnt lgkmcnt(0)")
    A("s_and_b64 s[16:17], s[16:17], s[18:19]\ns_and_b64 s[20:21], s[20:21], s[22:23]\ns_and_b64 s[16:17], s[16:17], s[20:21]\ns_and_b32 s16, s16, s17")
    A(f"s_cmp_ge_u32 s58, {SPIN}\ns_cbranch_scc1 P2_rdy\ns_bitcmp1_b32 s16, 0\ns_cbranch_scc0 P2_l1")
    A("P2_rdy:")
    if diag: stamp(9); A("s_mov_b32 s80, s58")
    A(f"s_mov_b32 m0, 49152\ns_mov_b32 s58, 0")
    A("P2_h3:")
    for n in range(4): A(f"buffer_load_dwordx4 v{26+n}, {R4(SWS)}, s{sH} offen sc1 lds\ns_add_u32 m0, m0, 1024\n"+("s_nop 0" if n<3 else f"s_add_u32 s{sH}, s{sH}, {QS}"))
    A("s_add_u32 s58, s58, 1\ns_cmp_lt_u32 s58, 4\ns_cbranch_scc1 P2_h3")
    A("P2_go:")
    stamp(4)
    PL=f"buffer_load_dword v4, v3, {R4(SWS)}, s59 offen sc1"
    A(f"s_mov_b32 s{sCnt}, 4\ns_mov_b32 s57, 7")
    A("P2_loop:")
    A(f"v_readlane_b32 s{sW}, v21, s{sCnt}\nv_readlane_b32 s{sH}, v20, s{sCnt}")
    A(f"s_add_u32 s{sSlot}, s{sSlot}, 16384\ns_and_b32 s{sSlot}, s{sSlot}, 0xffff")
    A(f"s_cmp_eq_u32 s{sCnt}, 24\ns_cbranch_scc0 P2_a\nv_mov_b32 v22, v24\nv_mov_b32 v23, v25\nP2_a:")
    A("s_waitcnt vmcnt(16)\ns_barrier")
    assert l1epi==3 or sched==9
    A(f"s_lshl_b32 s{sT0}, s{sP}, 8\ns_add_u32 s{sT0}, s{sT0}, s{sCnt}\ns_cmp_eq_u32 s{sT0}, {256+l1st+5}\ns_cbranch_scc0 P2_nf2\nbuffer_store_dword v5, v6, {R4(SWS)}, s59 offen sc1\nP2_nf2:")
    A(f"s_cmp_eq_u32 s{sCnt}, 9\ns_cbranch_scc0 P2_np\n{PL}\nP2_np:")
    A(f"s_cmp_eq_u32 s{sCnt}, 10\ns_cbranch_scc0 P2_b")
    A("s_waitcnt vmcnt(8)\nv_cmp_gt_u32 vcc, s57, v4\ns_mov_b32 s58, 0\ns_nop 3\ns_cbranch_vccz P2_ok")
    A(f"P2_l2:\n{PL}\ns_add_u32 s58, s58, 1\ns_waitcnt vmcnt(0)\nv_cmp_gt_u32 vcc, s57, v4")
    spin_tail("P2_l2")
    A("P2_ok:\ns_mov_b32 s57, 7")
    A("P2_b:")
    issueW(); issueH()
    if pf2==3:
        A("s_cmp_eq_u32 s13, 24\ns_cselect_b32 s8, s14, s8\ns_cselect_b32 s9, s15, s9\ns_cmp_lt_u32 s13, 28\ns_cbranch_scc0 P2_nspf")
        spf()
        A("P2_nspf:")
    A(f"s_add_u32 s{sCnt}, s{sCnt}, 1\ns_cmp_lt_u32 s{sCnt}, 28\ns_cbranch_scc1 P2_loop")
    A("s_waitcnt vmcnt(16)\ns_barrier\ns_waitcnt vmcnt(8)\ns_barrier\ns_waitcnt vmcnt(0)\ns_barrier")
    if diag: stamp(5); rstamp(15); flush(16)
    A("s_endpgm")
    A(".p2align 6\nL_cons:")
    ACC=16; F=[(128,144),(172,188)]
    vX0,vX1,vE,vO,vL=4,5,6,7,8; bX0,bE,bL=9,10,11
    sWm,sWf,sIt,sRg,sA,sB,sC=46,47,48,49,58,7,59
    sHA,sH3,sRX2,sClr,sPf=50,51,4,5,6
    vOwn,vT3,vH,vW=232,233,235,[236,237,238,239]
    if pfc:
        A(f"s_getpc_b64 s[54:55]\nC_pc:\ns_sub_u32 s54, s54, C_pc-{NAME}\ns_subb_u32 s55, s55, 0")
        A(f"v_lshlrev_b32 v3, 7, v0\nv_min_u32 v3, L_end-{NAME}, v3\nglobal_load_dword v255, v3, s[54:55]")
    if pf1==1:
        A(f"v_and_b32 v15, 31, v2\nv_lshlrev_b32 v15, 7, v15\ns_lshl_b32 s{sA}, s2, 2\ns_add_u32 s{sA}, s{sA}, s3\ns_lshl_b32 s{sA}, s{sA}, 12")
    if pf1==3:
        A(f"v_and_b32 v15, 7, v2\nv_lshlrev_b32 v15, 7, v15\nv_bfe_u32 v14, v2, 3, 1\nv_lshl_add_u32 v15, v14, 11, v15\ns_lshl_b32 s{sA}, s2, 2\ns_add_u32 s{sA}, s{sA}, s3\ns_lshl_b32 s{sA}, s{sA}, 12\nv_mov_b32 v252, v15")
    if pf1==2:
        A(f"v_lshlrev_b32 v15, 7, v2\ns_lshr_b32 s{sA}, s2, 3\ns_lshl_b32 s{sA}, s{sA}, 2\ns_add_u32 s{sA}, s{sA}, s3\ns_lshl_b32 s{sA}, s{sA}, 13\ns_lshr_b32 s{sB}, s{sXcd}, 1\ns_lshl_b32 s{sB}, s{sB}, 20\ns_add_u32 s{sA}, s{sA}, s{sB}")
    A("s_waitcnt lgkmcnt(0)")
    if pf1:
        srd(A,SX,4,X_BYTES)
        A(f"buffer_load_dword v253, v15, {R4(SX)}, s{sA} offen")
        if pf1==3: srd(A,SW1,6,W_BYTES)
    A("s_setprio 1")
    A(f"s_lshr_b32 s{sWm}, s3, 1\ns_and_b32 s{sWf}, s3, 1")
    A("v_and_b32 v3, 15, v2\nv_lshrrev_b32 v12, 4, v2")
    A("v_lshrrev_b32 v13, 1, v3\nv_xor_b32 v13, v13, v12\nv_lshlrev_b32 v13, 4, v13")
    A(f"s_lshl_b32 s{sA}, s{sWm}, 13\nv_lshlrev_b32 v14, 7, v3\nv_add3_u32 v{bX0}, v13, v14, s{sA}")
    A("v_lshrrev_b32 v13, 1, v12\nv_mul_u32_u24 v13, 7168, v13\nv_bfe_u32 v15, v2, 2, 2\nv_lshl_add_u32 v13, v15, 6, v13\nv_and_b32 v15, 3, v2\nv_lshl_add_u32 v13, v15, 3, v13")
    A(f"v_and_b32 v14, 1, v12\nv_mul_u32_u24 v15, 1056, v14\ns_lshl_b32 s{sA}, s{sWf}, 9\ns_add_u32 s{sA}, s{sA}, {WOFF}\nv_add3_u32 v{bE}, v13, v15, s{sA}")
    A(f"v_mul_u32_u24 v15, 544, v14\nv_add_u32 v13, v13, v15\ns_lshl_b32 s{sA}, s{sWf}, 5\nv_xor_b32 v13, s{sA}, v13\nv_add_u32 v{bL}, {WOFF+6144}, v13")
    VF=248
    fragoffs(VF)
    A(f"v_add_u32 v{vE}, {2*WST}, v{bE}\nv_mov_b32 v{vX0}, v{bX0}\nv_add_u32 v{vL}, {2*WST}, v{bL}\nv_xor_b32 v{vO}, 32, v{vE}\nv_xor_b32 v{vX1}, 64, v{vX0}")
    srd(A,SO,10,O_BYTES); srd(A,SD,12,256); srd(A,SWS,14,0x10000000); srd(A,SW2,8,W_BYTES)
    A("v_lshlrev_b32 v3, 4, v2")
    A(f"s_lshr_b32 s56, s{sLid}, 3\ns_lshl_b32 s56, s56, 10\ns_lshl_b32 s{sB}, s{sFt8}, 2\ns_add_u32 s56, s56, s{sB}\ns_add_u32 s56, s56, {F_OFF+fch*128}")
    A(f"v_mov_b32 v1, {OOB}\nv_cmp_eq_u32 vcc, 0, v2\ns_nop 1\nv_cndmask_b32 v1, v1, 0, vcc")
    A(f"s_lshl_b32 s57, s{sLid}, 2\ns_add_u32 s57, s57, s3\ns_mul_i32 s57, s57, {QS}\ns_add_u32 s57, s57, {P_OFF}")
    A(f"s_lshl_b32 s52, s{sWm}, 12\nv_add_u32 v{vH}, s52, v3")
    A("v_lshrrev_b32 v13, 5, v2\nv_lshlrev_b32 v13, 11, v13\nv_bfe_u32 v14, v2, 4, 1\nv_mul_u32_u24 v14, 288, v14\nv_add_u32 v13, v13, v14")
    A("v_bfe_u32 v15, v2, 2, 2\nv_lshl_add_u32 v13, v15, 6, v13\nv_and_b32 v15, 3, v2\nv_lshl_add_u32 v13, v15, 3, v13")
    A(f"s_lshl_b32 s52, s{sJ}, 1\ns_add_u32 s52, s52, s{sWf}\ns_lshl_b32 s52, s52, 9\ns_add_u32 s52, s52, 65536\nv_add_u32 v{vW[0]}, s52, v13")
    A(f"v_xor_b32 v{vW[1]}, 32, v{vW[0]}\nv_xor_b32 v{vW[2]}, 0x400, v{vW[0]}\nv_xor_b32 v{vW[3]}, 0x420, v{vW[0]}")
    A(f"s_add_u32 s62, s{sFt8}, s3\ns_and_b32 s62, s62, {rmask}\ns_add_u32 s62, s62, {l2st+5}")
    A(f"s_mul_i32 s{sHA}, s{sMt}, 112\ns_mul_i32 s{sH3}, s{sFt}, 7\ns_add_u32 s{sHA}, s{sHA}, s{sH3}\ns_and_b32 s52, s{sFt8}, 1")
    A(f"s_xor_b32 s53, s52, 1\ns_mul_i32 s53, s53, 6\ns_add_u32 s{sH3}, s{sHA}, s53\ns_add_u32 s{sHA}, s{sHA}, s52\ns_add_u32 s{sHA}, s{sHA}, s{sWf}")
    A(f"s_mul_i32 s52, s{sWm}, {QS}\ns_mul_i32 s{sHA}, s{sHA}, {CH}\ns_add_u32 s{sHA}, s{sHA}, s52\ns_mul_i32 s{sH3}, s{sH3}, {CH}\ns_add_u32 s{sH3}, s{sH3}, s52\ns_lshl_b32 s52, s{sWm}, 12")
    A(f"s_lshl_b32 s53, s{sWf}, 13\ns_add_u32 s52, s52, s53\nv_add_u32 v{vOwn}, s52, v3")
    A(f"v_bfe_u32 v13, v2, 4, 1\nv_lshlrev_b32 v13, 3, v13\nv_lshrrev_b32 v14, 5, v2\nv_lshl_add_u32 v13, v14, 1, v13\nv_bfe_u32 v14, v2, 3, 1\ns_lshl_b32 s52, s{sWf}, 2\nv_add3_u32 v13, v13, v14, s52")
    A("v_add_u32 v14, 16, v13\nv_and_b32 v15, 7, v2\nv_lshlrev_b32 v15, 4, v15")
    physline(vT3,13,12); physline(vT3+1,14,12)
    A(f"v_add_u32 v{vT3}, v{vT3}, v15\nv_add_u32 v{vT3+1}, v{vT3+1}, v15")
    A("v_mov_b32 v12, 1\ns_mov_b32 s52, 0xbfb8aa3b\ns_mov_b32 s53, 0xbfb8aa3b\ns_mov_b32 s54, 1.0\ns_mov_b32 s55, 1.0")
    for r in range(112): A(f"v_mov_b32 v{ACC+r}, 0")
    for r in range(4): A(f"v_mov_b32 v{244+r}, -1")
    def hook(it, body, name, reg=None):
        OOL.append(f"{name}:\n{body}\ns_branch {name}_b")
        return [f"s_cmp_eq_u32 s{reg or sIt}, {it}", f"s_cbranch_scc1 {name}\n{name}_b:"]
    def reads1(u, fs):
        X,W=F[fs]
        xs=[f"ds_read_b128 {vr(X+4*i,4)}, v{vX1 if u else vX0} offset:{i*2048}" for i in range(4)]
        ws=[]
        for j in range(7):
            a,o=(vL,0) if j==6 else ((vO if j&1 else vE),(j>>1)*2048)
            for hh in range(2): ws.append(f"ds_read_b64_tr_b16 {vr(W+4*j+2*hh,2)}, v{a} offset:{u*14336+o+hh*256}")
        return ws[0:2]+xs+ws[2:]
    def mf1(fs):
        X,W=F[fs]
        return [f"v_mfma_f32_16x16x32_bf16 {vr(ACC+(j*4+i)*4,4)}, {vr(W+4*j,4)}, {vr(X+4*i,4)}, {vr(ACC+(j*4+i)*4,4)}" for j,i in snake(range(7),4)]
    A(f"s_mov_b32 s{sIt}, 0\ns_mov_b32 s{sRg}, {2*WST}\ns_mov_b32 s{sRX2}, 0\ns_add_u32 s{sClr}, s3, s{sFt8}\ns_and_b32 s{sClr}, s{sClr}, 3\ns_add_u32 s{sClr}, s{sClr}, {ack-5}")
    A(f"s_mul_i32 s{sPf}, s3, {pfb}\ns_add_u32 s{sPf}, s{sPf}, {pfa}")
    if pf2==2: A(f"v_min_u32 v15, 55, v2\nv_lshlrev_b32 v15, 7, v15\ns_lshl_b32 s{sA}, s2, 2\ns_add_u32 s{sA}, s{sA}, s3\ns_mul_i32 s{sA}, s{sA}, 7168\nbuffer_load_dword v255, v15, {R4(SW2)}, s{sA} offen")
    if diag in (2,3): A("s_mov_b32 m0, 0")
    A("s_barrier")
    stamp(1)
    for l in reads1(0,0): A(l)
    A("s_waitcnt lgkmcnt(0)")
    A(".p2align 3\nC1_loop:")
    sstamp()
    ex=[f"s_add_u32 s{sRg}, s{sRg}, {WST}\ns_add_u32 s{sRX2}, s{sRX2}, 16384", f"s_cmp_eq_u32 s{sRg}, {WST*3}\ns_cselect_b32 s{sRg}, 0, s{sRg}",
        f"v_add_u32 v{vE}, s{sRg}, v{bE}\ns_and_b32 s{sRX2}, s{sRX2}, 0xffff", f"v_add_u32 v{vX0}, s{sRX2}, v{bX0}", f"v_add_u32 v{vL}, s{sRg}, v{bL}",
        f"v_xor_b32 v{vO}, 32, v{vE}", f"v_xor_b32 v{vX1}, 64, v{vX0}"]
    clr="\n".join([f"buffer_store_dwordx4 v[244:247], v{VF+i}, {R4(SWS)}, s57 offen sc1" for i in range(4)])
    clr=f"v_mov_b32 v13, 0\n{clr}\nbuffer_store_dword v13, v1, {R4(SWS)}, s56 offen sc1"
    ex+=hook(f"s{sClr}" if stag else 2,clr,"H1_clr")
    for l in interleave(mf1(0), reads1(1,1)+ex): A(l)
    A("s_waitcnt lgkmcnt(0)\ns_barrier")
    pub=(f"s_cmp_eq_u32 s3, 0\ns_cbranch_scc0 H1_pub_b\ns_and_b32 s{sA}, s{sLid}, 3\ns_lshl_b32 s{sA}, s{sA}, 3\ns_lshl_b32 s{sA}, 1, s{sA}\nv_mov_b32 v13, s{sA}\n"
         f"s_andn2_b32 s{sA}, s{sLid}, 3\nv_lshlrev_b32 v14, 8, v2\nbuffer_atomic_or v13, v14, {R4(SD)}, s{sA} offen")
    ex=hook(ack,"s_waitcnt vmcnt(0)","H1_ack")+hook(ack+1,pub,"H1_pub")
    if pf1==3:
        nl=(16-w1s)*64*56//1024
        ex+=hook(pfi,f"s_lshl_b32 s{sA}, s2, 2\ns_add_u32 s{sA}, s{sA}, s3\ns_mul_i32 s{sB}, s{sA}, {nl*128}\ns_add_u32 s{sB}, s{sB}, {w1s*64*7168}\ns_lshl_b32 s{sA}, s{sA}, 12\n"
                     f"v_min_u32 v15, {nl-1}, v2\nv_lshlrev_b32 v15, 7, v15\nbuffer_load_dword v255, v15, {R4(SW1)}, s{sB} offen\nbuffer_load_dword v253, v252, {R4(SX)}, s{sA} offen offset:1024","H1_pf1")
    if pf2==4:
        ex+=hook(f"s{sPf}",f"s_lshl_b32 s{sA}, s2, 2\ns_add_u32 s{sA}, s{sA}, s3\ns_lshr_b32 s{sB}, s{sA}, 6\ns_and_b32 s60, s{sB}, 1\ns_mul_i32 s{sB}, s{sB}, 7\n"
                     f"s_add_u32 s61, s{sB}, s60\ns_add_u32 s61, s61, 4\ns_lshl_b32 s61, s61, 16\ns_xor_b32 s60, s60, 1\ns_mul_i32 s60, s60, 6\ns_add_u32 s{sB}, s{sB}, s60\ns_lshl_b32 s{sB}, s{sB}, 16\n"
                     f"s_and_b32 s{sA}, s{sA}, 63\ns_lshl_b32 s60, s{sA}, 11\ns_add_u32 s61, s61, s60\ns_lshl_b32 s60, s{sA}, 10\ns_add_u32 s{sB}, s{sB}, s60\n"
                     f"v_and_b32 v15, 15, v2\nv_lshlrev_b32 v15, 7, v15\nv_and_b32 v14, 7, v2\nv_lshlrev_b32 v14, 7, v14\n"
                     f"buffer_load_dword v255, v15, {R4(SW2)}, s61 offen\nbuffer_load_dword v253, v14, {R4(SW2)}, s{sB} offen","H1_pf")
    if pf2==1:
        ex+=hook(f"s{sPf}",f"v_min_u32 v15, 55, v2\nv_lshlrev_b32 v15, 7, v15\ns_lshl_b32 s{sA}, s2, 2\ns_add_u32 s{sA}, s{sA}, s3\ns_mul_i32 s{sA}, s{sA}, 7168\nbuffer_load_dword v255, v15, {R4(SW2)}, s{sA} offen","H1_pf")
    ex+=[f"s_add_u32 s{sIt}, s{sIt}, 1", f"s_cmp_lt_u32 s{sIt}, 16"]
    x=interleave(mf1(1), reads1(0,0)+ex)
    if x[-1].startswith("v_mfma"):
        for l in x[:-1]: A(l)
        A("s_waitcnt lgkmcnt(0)"); A(x[-1])
    else:
        for l in x: A(l)
        A("s_waitcnt lgkmcnt(0)")
    A("s_cbranch_scc1 C1_loop")
    stamp(2)
    T=216
    def silu(a, b, D):
        t=T; src=[a,a+2,b,b+2]
        for r in range(4): A(f"v_pk_mul_f32 {vr(t+2*r,2)}, s[52:53], {vr(src[r],2)}")
        for r in range(8): A(f"v_exp_f32 v{t+r}, v{t+r}")
        for r in range(4): A(f"v_pk_add_f32 {vr(t+2*r,2)}, s[54:55], {vr(t+2*r,2)}")
        for r in range(8): A(f"v_rcp_f32 v{t+r}, v{t+r}")
        for r in range(4): A(f"v_pk_mul_f32 {vr(t+2*r,2)}, {vr(t+2*r,2)}, {vr(src[r],2)}")
        for r in range(4): A(f"v_cvt_pk_bf16_f32 v{D+r}, v{t+2*r}, v{t+2*r+1}")
    def gst(D,i): return f"buffer_store_dwordx4 {vr(D,4)}, v{VF+i}, {R4(SWS)}, s{sHA} offen sc1"
    FLAG="s_nop 0"
    DL=[160,128,144]; D3=224
    for L in range(3):
        for i in range(4):
            D=DL[L]+4*i
            silu(ACC+((2*L)*4+i)*4, ACC+((2*L+1)*4+i)*4, D)
            if L==0 or (L==2 and l1epi>=2): A(gst(D,i))
            A(f"ds_write_b128 v{vOwn}, {vr(D,4)} offset:{L*16384+i*1024}")
        if L==1:
            stamp(11); A("s_waitcnt vmcnt(0)"); stamp(12)
            A(f"{FLAG}\ns_add_u32 s{sHA}, s{sHA}, {2*CH}\ns_waitcnt lgkmcnt(0)\ns_barrier")
            if l1epi:
                for i in range(4): A(gst(128+4*i,i))
                A(f"s_add_u32 s{sHA}, s{sHA}, {2*CH}")
    F2=[(160,176),(192,208)]
    def rdH(X,slot,u): return [f"ds_read_b128 {vr(X+4*i,4)}, v{vH} offset:{slot*16384+u*8192+i*1024}" for i in range(4)]
    def rdW(W,slot,u,js): return [f"ds_read_b64_tr_b16 {vr(W+4*n+2*hh,2)}, v{vW[j]} offset:{slot*16384+(4*u+2*hh)*2048}" for n,j in enumerate(js) for hh in range(2)]
    def reads2(slot,u,fs):
        X,W=F2[fs]; ws=rdW(W,slot,u,range(4)); return ws[0:2]+rdH(X,slot,u)+ws[2:]
    def mfm(X,W,js,zero=False,w0=0):
        return [f"v_mfma_f32_16x16x32_bf16 {vr(ACC+(j*4+i)*4,4)}, {vr(W+4*(j-w0),4)}, {vr(X+4*i,4)}, {'0' if zero else vr(ACC+(j*4+i)*4,4)}" for j,i in snake(js,4)]
    def mf2(fs,zero=False): return mfm(F2[fs][0],F2[fs][1],range(4),zero)
    for l in reads2(0,0,0): A(l)
    for ip in range(2):
        D=D3+4*ip; a=ACC+(24+2*ip)*4
        silu(a,a+4,D)
        A(f"s_nop 1\nv_permlane16_swap_b32 v{D}, v{D+2}\nv_permlane16_swap_b32 v{D+1}, v{D+3}")
        if l1epi>=3: A(f"buffer_store_dwordx4 {vr(D,4)}, v{vT3+ip}, {R4(SWS)}, s{sH3} offen sc1")
    A(f"v_mov_b32 v12, {7 if l1epi==3 else 3}\ns_mov_b32 s{sIt}, 0")
    stamp(3); stamp(4)
    sstamp()
    A("s_waitcnt lgkmcnt(0)")
    for l in interleave(mf2(0,True), reads2(0,1,1)): A(l)
    A("s_branch C2_in")
    dw={}; dws={}
    t3st=[f"buffer_store_dwordx4 {vr(D3+4*ip,4)}, v{vT3+ip}, {R4(SWS)}, s{sH3} offen sc1" for ip in range(2)]
    ADV=f"\ns_add_u32 s{sHA}, s{sHA}, {2*CH}"
    L1s=[gst(128+4*i,i) for i in range(4)]; L2s=[gst(144+4*i,i) for i in range(4)]
    F3=f"s_waitcnt vmcnt(0)\n{FLAG}"; F7=f"v_mov_b32 v12, 7\ns_waitcnt vmcnt(0)\n{FLAG}"
    J="\n".join
    if sched==1:
        dw[(0,1)]=J(L1s[:2]); dw[(1,0)]=J(L1s[2:])+ADV; dw[(1,1)]=J(L2s[:2]); dw[(2,0)]=J(L2s[2:]); dw[(2,1)]=J(t3st); dw[(4,0)]=F7
    elif sched==2:
        dw[(0,1)]=J(L1s[:2]); dw[(1,0)]=J(L1s[2:])+ADV; dw[(3,0)]=F3
        dw[(3,1)]=L2s[0]; dw[(4,0)]=L2s[1]; dw[(4,1)]=L2s[2]; dw[(5,0)]=L2s[3]; dw[(5,1)]=t3st[0]; dw[(6,0)]=t3st[1]; dw[(10,0)]=F7
    elif sched==3:
        dw[(0,1)]=L1s[0]; dw[(1,0)]=L1s[1]; dw[(1,1)]=L1s[2]; dw[(2,0)]=L1s[3]+ADV; dw[(3,1)]=F3
        dw[(4,0)]=L2s[0]; dw[(4,1)]=L2s[1]; dw[(5,0)]=L2s[2]; dw[(5,1)]=L2s[3]; dw[(6,0)]=t3st[0]; dw[(6,1)]=t3st[1]; dw[(11,0)]=F7
    elif sched==4:
        dw[(0,1)]=J(L1s)+ADV; dw[(1,1)]=J(L2s); dw[(2,1)]=J(t3st); dw[(4,0)]=F7
    elif sched==9:
        dw[(1,1)]=F7
    elif sched==5:
        dw[(0,1)]=J(L2s[:2]); dw[(1,0)]=J(L2s[2:]); dw[(1,1)]=J(t3st); dw[(3,1)]=F7
    else:
        if not l1epi:
            dw[(l1st,0)]=gst(128,0)+"\n"+gst(132,1); dw[(l1st,1)]=gst(136,2)+"\n"+gst(140,3)+f"\ns_add_u32 s{sHA}, s{sHA}, {2*CH}"
            dw[(l1st+2,1)]=f"s_waitcnt vmcnt(0)\n{FLAG}"
        else:
            dw[(l1st,1)]=f"s_waitcnt vmcnt(0)\n{FLAG}"
        if l1epi>=2:
            if l1epi==2: dw[(l2st,0)]="\n".join(t3st)
            if l1epi==2: dw[(f3,1)]=f"v_mov_b32 v12, 7\ns_waitcnt vmcnt(0)\n{FLAG}"
        elif not stag2:
            dw[(l2st,0)]=gst(144,0)+"\n"+gst(148,1); dw[(l2st+1,0)]=gst(152,2)+"\n"+gst(156,3)+"\nv_mov_b32 v12, 7"
            dw[(l2st+2,0)]="\n".join(t3st)
            dw[(l2st+5,1)]=f"s_waitcnt vmcnt(0)\n{FLAG}"
        else:
            dw[(f3,1)]=f"v_mov_b32 v12, 7\ns_waitcnt vmcnt(0)\n{FLAG}"
            body=[gst(144+4*i,i) for i in range(4)]+t3st
            o="H2_st:\n"
            for n,b in enumerate(body):
                o+=f"s_cmp_eq_u32 s62, {5-n}\ns_cbranch_scc0 H2_st{n}\n{b}\nH2_st{n}:\n"
            o+="s_setpc_b64 s[54:55]"
            OOL.append(o)
    def hooks2(slot,u):
        ex=[]
        for (q,uu),body in sorted(dw.items()):
            if q%4==slot and uu==u: ex+=hook(q//4,body,f"H2_{q}_{uu}")
        if stag2 and l1epi<2 and u==0 and not sched:
            ex+=["s_sub_u32 s62, s62, 1\ns_cmp_lt_u32 s62, 6", f"s_cbranch_scc1 H2_go{slot}\nH2_ns{slot}:"]
            OOL.append(f"H2_go{slot}:\ns_call_b64 s[54:55], H2_st\ns_branch H2_ns{slot}")
        assert len(ex)<=4, (slot,u,ex)
        return ex
    A(".p2align 3\nC2_loop:")
    for slot in range(4):
        sstamp()
        for l in interleave(mf2(0), reads2(slot,1,1)+hooks2(slot,0)): A(l)
        if slot==0: A("C2_in:")
        A("s_waitcnt lgkmcnt(0)\ns_barrier")
        ex=hooks2(slot,1)
        if slot==3: ex+=[f"s_add_u32 s{sIt}, s{sIt}, 1", f"s_cmp_lt_u32 s{sIt}, 6"]
        x=interleave(mf2(1), reads2((slot+1)&3,0,0)+ex)
        if x[-1].startswith("v_mfma"):
            for l in x[:-1]: A(l)
            A("s_waitcnt lgkmcnt(0)"); A(x[-1])
        else:
            for l in x: A(l)
            A("s_waitcnt lgkmcnt(0)")
    A("s_cbranch_scc1 C2_loop")
    stamp(13)
    if diag: A("s_waitcnt lgkmcnt(0)")
    G=[dict(H=[160,80],W=[184,96]), dict(H=[192,104],W=[208,216])]
    def rdS(g,slot,js,us=(0,1)):
        o=[]
        for u in us:
            w=rdW(G[g]['W'][u],slot,u,js); o+=w[0:2]+rdH(G[g]['H'][u],slot,u)+w[2:]
        return o
    def mfS(g,js): return mfm(G[g]['H'][0],G[g]['W'][0],js,w0=js[0])+mfm(G[g]['H'][1],G[g]['W'][1],js,w0=js[0])
    for l in rdS(0,0,(2,3),(1,)): A(l)
    A("s_barrier")
    m=mfS(0,(2,3)); r=rdS(1,1,(2,3))
    x=interleave(m[:8], r[:8])
    for l in x: A(l)
    A("s_waitcnt lgkmcnt(8)")
    for l in interleave(m[8:], r[8:]): A(l)
    for q in (1,2):
        A("s_waitcnt lgkmcnt(0)\ns_barrier")
        for l in interleave(mfS(q&1,(2,3)), rdS((q+1)&1,q+1,(2,3))): A(l)
    A("s_waitcnt lgkmcnt(0)")
    for l in interleave(mfS(1,(2,3)), rdS(0,0,(0,1))): A(l)
    stamp(5)
    A(f"s_mul_i32 s52, s{sJ}, {-2*32*QS}\ns_add_u32 s52, s52, {32*QS}\ns_add_u32 s52, s52, s57\ns_mov_b32 s53, -2")
    snd=[]
    for i in range(4):
        D=128+4*i
        for n,j in enumerate((2,3)):
            S=ACC+(j*4+i)*4
            snd+= [f"v_cvt_pk_bf16_f32 v{D+2*n}, v{S}, v{S+1}", f"v_cvt_pk_bf16_f32 v{D+2*n+1}, v{S+2}, v{S+3}"]
        snd+=[f"v_min_u32 v{D+r}, s53, v{D+r}" for r in range(4)]
        snd.append(f"buffer_store_dwordx4 {vr(D,4)}, v{VF+i}, {R4(SWS)}, s52 offen sc1")
    A("s_waitcnt lgkmcnt(0)")
    m=mfS(0,(0,1)); r=rdS(1,1,(0,1))
    k=0
    for n,mm_ in enumerate(m):
        A(mm_); A(r[n])
        if n>=3:
            for _ in range(3):
                if k<len(snd): A(snd[k]); k+=1
    while k<len(snd): A(snd[k]); k+=1
    stamp(6)
    for q in (1,2):
        A("s_waitcnt lgkmcnt(0)")
        for l in interleave(mfS(q&1,(0,1)), rdS((q+1)&1,q+1,(0,1))): A(l)
    A("s_waitcnt lgkmcnt(0)")
    RB=80
    LD=[f"buffer_load_dwordx4 {vr(RB+4*i,4)}, v{VF+i}, {R4(SWS)}, s57 offen sc1" for i in range(4)]
    adr=["v_and_b32 v13, 15, v2","v_lshlrev_b32 v13, 11, v13","v_bfe_u32 v14, v2, 4, 1","v_lshl_add_u32 v13, v14, 5, v13","v_lshrrev_b32 v14, 5, v2","v_lshl_add_u32 v13, v14, 4, v13",
         f"s_lshl_b32 s{sC}, s{sMt}, 1\ns_add_u32 s{sC}, s{sC}, s{sWm}", f"s_lshl_b32 s{sC}, s{sC}, 17\ns_lshl_b32 s52, s{sDt}, 8", f"s_add_u32 s{sC}, s{sC}, s52\ns_lshl_b32 s52, s{sJ}, 7",
         f"s_add_u32 s{sC}, s{sC}, s52\ns_lshl_b32 s52, s{sWf}, 6", f"s_add_u32 s{sC}, s{sC}, s52\ns_mov_b32 s58, 0"]
    for l in interleave(mfS(1,(0,1)), (LD+adr) if ldearly else (adr+LD)): A(l)
    A("s_branch C3_chk")
    A("C3_poll:")
    for l in LD: A(l)
    A("C3_chk:\ns_add_u32 s58, s58, 1\ns_waitcnt vmcnt(0)")
    A(f"v_max3_u32 v14, v{RB}, v{RB+1}, v{RB+2}")
    for r in range(3,15,2): A(f"v_max3_u32 v14, v14, v{RB+r}, v{RB+r+1}")
    A(f"v_max_u32 v14, v14, v{RB+15}\nv_cmp_eq_u32 vcc, -1, v14")
    spin_tail("C3_poll")
    stamp(7); stamp(8)
    A("s_mov_b32 s53, 0xffff0000")
    for i in range(4):
        D=128+4*i
        for n in range(2):
            S=ACC+(n*4+i)*4
            for h in range(2):
                Rr=RB+4*i+2*n+h
                A(f"v_lshlrev_b32 v{T}, 16, v{Rr}\nv_and_b32 v{T+1}, s53, v{Rr}\nv_pk_add_f32 {vr(S+2*h,2)}, {vr(S+2*h,2)}, {vr(T,2)}")
                A(f"v_cvt_pk_bf16_f32 v{D+2*n+h}, v{S+2*h}, v{S+2*h+1}")
        A(f"s_nop 1\nv_permlane16_swap_b32 v{D}, v{D+2}\nv_permlane16_swap_b32 v{D+1}, v{D+3}")
        A(f"buffer_store_dwordx4 {vr(D,4)}, v13, {R4(SO)}, s{sC} offen {outaux}")
        if i<3: A(f"s_add_u32 s{sC}, s{sC}, 0x8000")
    if diag:
        stamp(9); A("s_waitcnt vmcnt(0)"); stamp(10); rstamp(15); flush(16,True)
    A("s_endpgm")
    for b in OOL: A(b)
    A("L_end:\ns_endpgm")
    A(f""".section .rodata,"a"
.p2align 6
.amdhsa_kernel {NAME}
  .amdhsa_next_free_vgpr 256
  .amdhsa_next_free_sgpr 96
  .amdhsa_accum_offset 256
  .amdhsa_group_segment_fixed_size 0
  .amdhsa_kernarg_size 48
  .amdhsa_user_sgpr_count 2
  .amdhsa_user_sgpr_kernarg_segment_ptr 1
  .amdhsa_system_sgpr_workgroup_id_x 1
.end_amdhsa_kernel""")
    return A.text()

if __name__=="__main__":
    import inspect
    p=argparse.ArgumentParser(); p.add_argument("-o")
    for k,v in inspect.signature(build).parameters.items():
        p.add_argument("--"+k,type=type(v.default),default=v.default)
    a=vars(p.parse_args()); o=a.pop("o")
    open(o,"w").write(build(**a))
```

```python
import sys, argparse
NAME="standalone__dense_activation_silu__prompt_kernel"
class Asm:
    def __init__(self): self.L=[]
    def __call__(self, s):
        for l in s.split("\n"): self.L.append(l)
    def text(self): return "\n".join(self.L)+"\n"
def vr(a,n): return f"v[{a}:{a+n-1}]"
def srd(A, d, b, nbytes):
    A(f"s_mov_b32 s{d}, s{b}\ns_and_b32 s{d+1}, s{b+1}, 0xffff\ns_mov_b32 s{d+2}, {nbytes}\ns_mov_b32 s{d+3}, 0x20000")
X_BYTES=2048*1024*2; W_BYTES=1024*3584*2; O_BYTES=2048*1024*2
H_OFF=0; P_OFF=24<<20; F_OFF=48<<20; T_OFF=64<<20
SX,SW1,SW2,SO,SD,SWS=16,20,24,28,32,36
sMt,sJ,sFt8,sFt,sLid,sXcd,sDt=40,41,42,43,44,45,63
OOB=0x7ffffff0
SPIN=1<<17
def R4(s): return f"s[{s}:{s+3}]"

def interleave(mf, rd):
    out=[]; k=0
    for m in mf:
        out.append(m)
        if k<len(rd): out.append(rd[k]); k+=1
    return out+rd[k:]
ORDER='ji'
def snake(JS,NI):
    JS=list(JS)
    if ORDER=='ij': return [(j,i) for i in range(NI) for j in (JS if i%2==0 else JS[::-1])]
    return [(j,(i if n%2==0 else NI-1-i)) for n,j in enumerate(JS) for i in range(NI)]

def build(diag=0, rot=1, pf1=0, pf2=1, pfc=1, outaux="sc1", pfa=13, dswz=0, w1aux="", xaux="", w2aux="", l1st=1, l2st=4, stag=1, l1epi=1, rmask=1, f3=9, skew2=1, pfb=0, stag2=1, remap=1, spa=0, spb=13, spn=4, ack=6, ldearly=1, pfi=0, w1s=6, sched=0, fch=6, pdelay=0, nb=4, clr0=0, dual=0, tlb=0, packfirst=1, spub=1, vpoll=0, hsi=12, hsglc='', cmask=1, cbase=1, walk=2, w2e=0, order='ji', esend=1, ldpos=0, fast=1):
    global ORDER; ORDER=order
    assert cbase+cmask<ack
    A=Asm(); OOL=[]
    tm='s_memrealtime' if diag>=3 else 's_memtime'
    def stamp(k):
        if diag: A(f"{tm} s[{64+2*k}:{65+2*k}]")
    def rstamp(k):
        if diag: A(f"s_memrealtime s[{64+2*k}:{65+2*k}]")
    def sstamp():
        if diag in (2,3): A(f"{tm} s[90:91]\ns_waitcnt lgkmcnt(0)\nv_writelane_b32 v254, s90, m0\ns_add_u32 m0, m0, 1")
    def flush(n, cons=False):
        if not diag: return
        if diag==5:
            ks=[1,2,12,4,13,5,7,10] if cons else [1,2,3,4,5]
            lab="DB_c" if cons else "DB_p"
            A(f"s_waitcnt lgkmcnt(0)\ns_and_b32 s60, s3, 3\ns_or_b32 s60, s60, s2\ns_cmp_eq_u32 s60, 0\ns_cbranch_scc0 {lab}\nv_lshlrev_b32 v1, 8, v2")
            for n_,k in enumerate(ks):
                A(f"s_sub_u32 s60, s{64+2*k}, s64\nv_mov_b32 v4, s60\nbuffer_store_dword v4, v1, {R4(SD)}, 0 offen offset:{4*(n_+(0 if cons else 8))} sc1")
            A(f"s_waitcnt vmcnt(0)\n{lab}:")
            return
        A(f"s_waitcnt lgkmcnt(0)\ns_lshl_b32 s60, s2, 3\ns_add_u32 s60, s60, s3\ns_lshl_b32 s60, s60, 8\ns_add_u32 s60, s60, {T_OFF}\nv_mov_b32 v1, 0")
        for k in range(n): A(f"v_mov_b32 v2, s{64+2*k}\nbuffer_store_dword v2, v1, {R4(SWS)}, s60 offen offset:{4*k}")
        if cons and diag>=2:
            A(f"v_and_b32 v1, 63, v0\nv_lshlrev_b32 v1, 2, v1\nv_mov_b32 v2, {OOB}\nv_cmp_gt_u32 vcc, 192, v1\ns_nop 1\nv_cndmask_b32 v1, v2, v1, vcc")
            A(f"buffer_store_dword v254, v1, {R4(SWS)}, s60 offen offset:64")
        A("s_waitcnt vmcnt(0)")
    PAD='@PAD@' if walk else 's_nop 0'
    def pad():
        if walk: A(PAD)
    def spin_tail(label):
        A(f"s_cmp_lt_u32 s58, {SPIN}\ns_cselect_b64 s[60:61], -1, 0\ns_and_b64 vcc, vcc, s[60:61]\ns_cbranch_scc1 {label}")
    WST=28672; WOFF=65536
    QS=5120 if remap else 4096
    CH=2*QS
    def physline(dst,g,tmp):
        if remap: A(f"v_add_u32 v{tmp}, 4, v{g}\nv_mul_u32_u24 v{tmp}, 37, v{tmp}\nv_lshrrev_b32 v{tmp}, 8, v{tmp}\nv_add_u32 v{tmp}, v{tmp}, v{g}\nv_lshlrev_b32 v{dst}, 7, v{tmp}")
        else: A(f"v_lshlrev_b32 v{dst}, 7, v{g}")
    def fragoffs(base):
        A("v_and_b32 v6, 7, v2\nv_lshlrev_b32 v6, 4, v6")
        for n in range(4):
            A(f"v_lshrrev_b32 v5, 3, v2\nv_add_u32 v5, {8*n}, v5"); physline(base+n,5,4); A(f"v_add_u32 v{base+n}, v{base+n}, v6")
    A("""; Fused feed-forward: out = silu(x @ w1) @ w2, bf16 in/out, fp32 accumulate.
; @launch grid=(256,1,1) block=(512,1,1) lds=151552""")
    A('.amdgcn_target "amdgcn-amd-amdhsa--gfx950"\n.text')
    A(f".globl {NAME}\n.p2align 8\n.type {NAME},@function\n{NAME}:")
    A("s_load_dwordx8 s[4:11], s[0:1], 0\ns_load_dwordx4 s[12:15], s[0:1], 32")
    A("s_cmp_ge_u32 s2, 256\ns_cbranch_scc1 L_end")
    stamp(0); rstamp(14)
    if fast and pfc:
        A(f"s_getpc_b64 s[54:55]\nC_pc:\nv_lshlrev_b32 v3, 7, v0\ns_sub_u32 s54, s54, C_pc-{NAME}\ns_subb_u32 s55, s55, 0")
        A(f"v_min_u32 v3, L_end-{NAME}, v3\nv_lshrrev_b32 v1, 6, v0\nglobal_load_dword v255, v3, s[54:55]\nv_and_b32 v2, 63, v0")
    else: A("v_lshrrev_b32 v1, 6, v0\nv_and_b32 v2, 63, v0")
    A(f"v_readfirstlane_b32 s3, v1\ns_and_b32 s{sXcd}, s2, 7\ns_lshr_b32 s46, s2, 3")
    dec1=f"s_lshr_b32 s{sMt}, s{sXcd}, 1\ns_lshl_b32 s{sMt}, s{sMt}, 2\ns_lshr_b32 s47, s46, 3\ns_add_u32 s{sMt}, s{sMt}, s47\ns_and_b32 s{sJ}, s{sXcd}, 1"
    dec2=(f"s_and_b32 s{sFt8}, s46, 7\ns_lshl_b32 s{sFt}, s{sJ}, 3\ns_add_u32 s{sFt}, s{sFt}, s{sFt8}\n"
          f"s_lshl_b32 s{sLid}, s{sMt}, 4\ns_add_u32 s{sLid}, s{sLid}, s{sFt}\ns_xor_b32 s{sDt}, s{sJ}, 1\ns_mul_i32 s{sDt}, s{sDt}, {dswz}\ns_xor_b32 s{sDt}, s{sDt}, s{sFt8}")
    A(dec1); A(dec2)
    if fast and pf1==1:
        A("s_cmp_lt_u32 s3, 4\ns_cbranch_scc0 L_prod")
        A("v_lshrrev_b32 v15, 1, v0\ns_lshl_b32 s58, s2, 7\nv_add_u32 v15, s58, v15\nv_lshlrev_b32 v15, 7, v15\ns_waitcnt lgkmcnt(0)\nglobal_load_dword v253, v15, s[4:5]\ns_branch L_cons\nL_prod:")
    else:
        A("s_cmp_lt_u32 s3, 4\ns_cbranch_scc1 L_cons")
    sP,sKX,sKW,sLX,sLW,sRing,sCnt,sT0,sT1=46,47,48,49,50,51,52,53,54
    A(f"s_sub_u32 s{sP}, s3, 4")
    A("v_lshrrev_b32 v3, 3, v2\nv_and_b32 v4, 7, v2\nv_lshrrev_b32 v5, 4, v2\nv_xor_b32 v4, v4, v5\nv_lshlrev_b32 v4, 4, v4\nv_lshl_add_u32 v3, v3, 11, v4")
    A(f"s_lshl_b32 s{sT0}, s{sMt}, 18\ns_lshl_b32 s{sT1}, s{sP}, 16\ns_add_u32 s{sT0}, s{sT0}, s{sT1}\nv_add_u32 v8, s{sT0}, v3")
    A("v_xor_b32 v9, 64, v8\nv_add_u32 v9, 0x4000, v9\nv_add_u32 v10, 0x8000, v8\nv_add_u32 v11, 0x8000, v9")
    if not rot: A(f"s_mov_b32 s{sKX}, 0\ns_mov_b32 s{sKW}, 0")
    if rot:
        if rot in (1,2,4,5,6,7,8):
            A(f"s_lshr_b32 s{sT0}, s{sXcd}, 1\ns_lshl_b32 s{sT1}, s{sJ}, 1\ns_add_u32 s{sT0}, s{sT0}, s{sT1}\ns_and_b32 s{sT0}, s{sT0}, 3\ns_lshl_b32 s{sT0}, s{sT0}, 2")
            if rot==4: A(f"s_and_b32 s{sT0}, s{sT0}, 8")
        else: A(f"s_mov_b32 s{sT0}, 0")
        if rot>=5: A(f"s_mov_b32 s62, s{sT0}\ns_mov_b32 s60, 0\ns_mov_b32 s61, 0")
        if rot in (7,8): A(f"s_and_b32 s{sT1}, s{sMt}, 1\ns_lshl_b32 s{sT1}, s{sT1}, {rot-7}\ns_add_u32 s{sT0}, s{sT0}, s{sT1}")
        elif rot>=2: A(f"s_and_b32 s{sT1}, s{sMt}, 3\ns_add_u32 s{sT0}, s{sT0}, s{sT1}")
        A(f"s_lshl_b32 s{sKX}, s{sT0}, 7\ns_mul_i32 s{sKW}, s{sT0}, {64*7168}")
    sRX=57
    A(f"s_lshl_b32 s{sLX}, s{sP}, 12\ns_mov_b32 s{sRX}, 0\ns_mov_b32 s{SX+2}, {X_BYTES}\ns_mov_b32 s{SX+3}, 0x20000")
    A(f"s_waitcnt lgkmcnt(0)\ns_mov_b32 s{SX}, s4\ns_and_b32 s{SX+1}, s5, 0xffff")
    def nextk(c):
        if rot in (7,8):
            A(f"s_add_u32 s{c}, s{c}, 1\ns_and_b32 s{sT1}, s{c}, 8\ns_cselect_b32 s{sT0}, 1, 0\ns_xor_b32 s{sT0}, s{sT0}, s{sMt}\ns_and_b32 s{sT0}, s{sT0}, 1\ns_lshl_b32 s{sT0}, s{sT0}, {rot-7}\ns_add_u32 s{sT0}, s{sT0}, s{c}\ns_and_b32 s{sT0}, s{sT0}, 7")
            A(f"s_add_u32 s{sT0}, s{sT0}, s{sT1}\ns_add_u32 s{sT0}, s{sT0}, s62\ns_and_b32 s{sT0}, s{sT0}, 15")
            return
        if rot==6:
            A(f"s_add_u32 s{c}, s{c}, 1\ns_and_b32 s{sT1}, s{c}, 8\ns_cselect_b32 s{sT0}, 3, 0\ns_xor_b32 s{sT0}, s{sT0}, s{sMt}\ns_and_b32 s{sT0}, s{sT0}, 3\ns_add_u32 s{sT0}, s{sT0}, s{c}\ns_and_b32 s{sT0}, s{sT0}, 7")
            A(f"s_add_u32 s{sT0}, s{sT0}, s{sT1}\ns_add_u32 s{sT0}, s{sT0}, s62\ns_and_b32 s{sT0}, s{sT0}, 15")
            return
        A(f"s_add_u32 s{c}, s{c}, 1\ns_add_u32 s{sT0}, s{c}, s{sMt}\ns_and_b32 s{sT0}, s{sT0}, 3\ns_and_b32 s{sT1}, s{c}, 12\ns_add_u32 s{sT0}, s{sT0}, s{sT1}\ns_add_u32 s{sT0}, s{sT0}, s62\ns_and_b32 s{sT0}, s{sT0}, 15")
    def issueW1():
        A(f"s_add_u32 m0, s{sRing}, s{sLW}\ns_add_u32 s{sRing}, s{sRing}, {WST}")
        for n in range(6):
            a,o=n>>1,n&1
            A(f"buffer_load_dwordx4 v{13+o}, {R4(SW1)}, s{sKW} offen offset:{a*128} {w1aux} lds")
            A(f"s_add_u32 m0, m0, {1024 if o==0 else (896 if a<2 else 1024+256)}")
            A("s_nop 0" if n else f"s_cmp_eq_u32 s{sRing}, {WST*3}\ns_cselect_b32 s{sRing}, 0, s{sRing}")
        A(f"buffer_load_dwordx4 v12, {R4(SW1)}, s{sKW} offen {w1aux} lds\ns_add_u32 s{sKW}, s{sKW}, {64*7168}")
        if rot>=5:
            nextk(60); A(f"s_mul_i32 s{sKW}, s{sT0}, {64*7168}\ns_add_u32 s{sKW}, s{sKW}, s59")
        elif rot: A(f"s_cmp_eq_u32 s{sKW}, s58\ns_cselect_b32 s{sKW}, s59, s{sKW}")
    def issueX():
        A(f"s_add_u32 m0, s{sRX}, s{sLX}\ns_add_u32 s{sRX}, s{sRX}, 16384")
        for n in range(4):
            A(f"buffer_load_dwordx4 v{8+n}, {R4(SX)}, s{sKX} offen {xaux} lds")
            if n<3: A("s_add_u32 m0, m0, 1024\n"+("s_nop 0" if n else f"s_and_b32 s{sRX}, s{sRX}, 0xffff"))
        if rot>=5:
            nextk(61); A(f"s_lshl_b32 s{sKX}, s{sT0}, 7")
        else: A(f"s_add_u32 s{sKX}, s{sKX}, 128\ns_and_b32 s{sKX}, s{sKX}, 2047")
    stamp(1)
    issueX()
    A(f"s_and_b32 s{sT0}, s{sFt8}, 1\ns_lshl_b32 s{sT1}, s{sT0}, 6")
    A("v_bfe_u32 v3, v2, 2, 3\nv_mul_u32_u24 v3, 7168, v3\nv_lshrrev_b32 v5, 5, v2\nv_and_b32 v4, 3, v2\nv_lshlrev_b32 v4, 4, v4")
    A(f"v_lshl_add_u32 v6, v5, 6, v3\nv_add3_u32 v13, v6, v4, s{sT1}\nv_xor_b32 v14, 32, v13\nv_add_u32 v14, {8*7168}, v14")
    A(f"s_xor_b32 s{sT0}, s{sT0}, 1\ns_mul_i32 s{sT0}, s{sT0}, 384\nv_lshrrev_b32 v3, 2, v2\nv_mul_u32_u24 v3, 7168, v3\nv_lshlrev_b32 v5, 5, v5\nv_xor_b32 v4, v4, v5\nv_add3_u32 v12, v3, v4, s{sT0}")
    A(f"s_mul_i32 s59, s{sP}, {16*7168}\ns_mul_i32 s{sT0}, s{sFt}, 448\ns_add_u32 s59, s59, s{sT0}\ns_add_u32 s{sKW}, s{sKW}, s59\ns_add_u32 s58, s59, {1024*7168}")
    A(f"s_mul_i32 s{sLW}, s{sP}, 7168\ns_add_u32 s{sLW}, s{sLW}, {WOFF}\ns_mov_b32 s{sRing}, {2*WST}")
    srd(A,SW1,6,W_BYTES)
    issueW1(); issueX(); issueW1()
    srd(A,SW2,8,W_BYTES); srd(A,SWS,14,0x10000000)
    if diag==5: srd(A,SD,12,256)
    sHp,sHalf=55,56
    if tlb:
        A(f"s_cmp_lt_u32 s2, {tlb}\ns_cbranch_scc0 P1_ntlb\ns_lshl_b32 s{sT0}, s{sP}, 21")
        A(f"s_add_u32 s4, s8, s{sT0}\ns_addc_u32 s5, s9, 0\ns_load_dword s0, s[4:5], 0")
        A(f"s_lshr_b32 s{sT1}, s{sT0}, 1\ns_add_u32 s4, s10, s{sT1}\ns_addc_u32 s5, s11, 0\ns_load_dword s0, s[4:5], 0")
        for b in (0, 8<<20, 16<<20, P_OFF, F_OFF):
            A(f"s_add_u32 s{sT1}, s{sT0}, {b}\ns_add_u32 s4, s14, s{sT1}\ns_addc_u32 s5, s15, 0\ns_load_dword s0, s[4:5], 0")
        A("P1_ntlb:")
    A(f"s_lshr_b32 s4, s{sLid}, 3\ns_lshl_b32 s4, s4, 10\ns_add_u32 s4, s4, {F_OFF+fch*128}\ns_add_u32 s4, s14, s4\ns_addc_u32 s5, s15, 0")
    A(f"s_lshl_b32 s6, s{sMt}, 4\ns_add_u32 s6, s12, s6\ns_addc_u32 s7, s13, 0")
    def spf():
        if pf2 not in (3,4): return
        for k in range(4): A(f"s_load_dword s12, s[8:9], {k*64}")
        A(f"s_add_u32 s13, s13, 1\ns_and_b32 s{sT0}, s13, 7\ns_cselect_b32 s{sT0}, 0, {131072-2048}\ns_add_u32 s{sT0}, s{sT0}, 256\ns_add_u32 s8, s8, s{sT0}\ns_addc_u32 s9, s9, 0")
    if pf2 in (3,4):
        A(f"s_lshl_b32 s12, s2, 2\ns_add_u32 s12, s12, s{sP}")
        A(f"s_lshr_b32 s{sT0}, s12, 6\ns_mul_i32 s13, s{sT0}, 7\ns_and_b32 s{sT0}, s{sT0}, 1")
        A(f"s_xor_b32 s{sT1}, s{sT0}, 1\ns_mul_i32 s{sT1}, s{sT1}, 6\ns_add_u32 s{sT1}, s{sT1}, s13\ns_lshl_b32 s{sT1}, s{sT1}, 16\ns_and_b32 s14, s12, 63\ns_lshl_b32 s14, s14, 10\ns_add_u32 s{sT1}, s{sT1}, s14")
        A(f"s_add_u32 s14, s8, s{sT1}\ns_addc_u32 s15, s9, 0")
        A(f"s_add_u32 s13, s13, s{sT0}\ns_lshl_b32 s13, s13, 16\ns_and_b32 s12, s12, 63\ns_lshl_b32 s12, s12, 11\ns_add_u32 s13, s13, s12\ns_add_u32 s8, s8, s13\ns_addc_u32 s9, s9, 0\ns_mov_b32 s13, 0")
    A(f"s_lshr_b32 s{sHp}, s{sP}, 1\ns_and_b32 s{sHalf}, s{sP}, 1")
    A("v_subrev_u32 v5, 3, v2\nv_mul_u32_u24 v3, 37, v5\nv_lshrrev_b32 v3, 8, v3\nv_mul_u32_u24 v4, 7, v3\nv_sub_u32 v4, v5, v4")
    if skew2==3: A(f"v_add_u32 v6, s{sMt}, v3\nv_and_b32 v6, 3, v6\nv_add_u32 v4, v6, v4\nv_subrev_u32 v6, 7, v4\nv_min_u32 v4, v4, v6")
    elif skew2: A(f"s_and_b32 s{sT0}, s{sMt}, 3\ns_mul_i32 s{sT0}, s{sT0}, {3-skew2}\nv_add_u32 v4, s{sT0}, v4\nv_subrev_u32 v6, 7, v4\nv_min_u32 v4, v4, v6")
    A("v_add_u32 v4, 1, v4")
    A("v_cmp_gt_u32 vcc, 3, v2\ns_nop 1\nv_cndmask_b32 v3, v3, v2, vcc\nv_cndmask_b32 v4, v4, 0, vcc")
    A(f"v_add_u32 v4, s{sFt8}, v4\nv_and_b32 v4, 7, v4\nv_and_b32 v6, 1, v4\nv_mul_u32_u24 v4, 7, v4\nv_lshl_add_u32 v4, v3, 1, v4\nv_add3_u32 v4, v4, v6, s{sHp}")
    A(f"s_and_b32 s{sT0}, s{sMt}, {3 if skew2 else 0}\nv_add_u32 v5, s{sT0}, v2\nv_and_b32 v5, 3, v5\nv_mul_u32_u24 v5, 14, v5\nv_add3_u32 v5, v5, 6, s{sHp}")
    A("v_cmp_gt_u32 vcc, 24, v2\ns_nop 1\nv_cndmask_b32 v4, v5, v4, vcc\nv_and_b32 v4, 63, v4")
    A(f"s_mul_i32 s{sT0}, s{sJ}, 56\nv_add_u32 v4, s{sT0}, v4")
    A(f"s_mul_i32 s{sT0}, s{sMt}, {112*CH}\ns_mul_i32 s{sT1}, s{sHalf}, {QS}\ns_add_u32 s{sT0}, s{sT0}, s{sT1}")
    A(f"v_mul_u32_u24 v20, {CH}, v4\nv_add_u32 v20, s{sT0}, v20")
    A(f"s_lshl_b32 s{sT0}, s{sHalf}, 15\ns_lshl_b32 s{sT1}, s{sHalf}, 13\nv_mov_b32 v5, s{sT0}\nv_mov_b32 v6, s{sT1}\nv_cndmask_b32 v5, v6, v5, vcc")
    A(f"v_lshl_add_u32 v21, v4, 16, v5\ns_lshl_b32 s{sT0}, s{sDt}, 8\nv_add_u32 v21, s{sT0}, v21")
    A("v_and_b32 v4, 3, v2\nv_bfe_u32 v5, v2, 4, 1\nv_lshlrev_b32 v6, 1, v5\nv_xor_b32 v4, v4, v6\nv_lshlrev_b32 v4, 4, v4")
    A("v_lshrrev_b32 v6, 5, v2\nv_lshl_add_u32 v4, v6, 6, v4")
    A("v_bfe_u32 v6, v2, 2, 3\nv_lshl_add_u32 v22, v6, 11, v4\nv_add_u32 v23, 0x4000, v22")
    A("v_lshl_add_u32 v24, v5, 13, v22\nv_add_u32 v25, 0x8000, v24")
    fragoffs(26)
    A("s_waitcnt vmcnt(11)")
    stamp(2)
    A("s_barrier")
    issueX()
    A(f"s_mov_b32 s{sCnt}, 0\ns_branch P1_in")
    A("P1_loop:\ns_waitcnt vmcnt(15)\ns_barrier\nP1_in:")
    issueW1(); issueX()
    if spub:
        A(f"s_lshl_b32 s{sT0}, s{sP}, 8\ns_add_u32 s{sT0}, s{sT0}, s{sCnt}\ns_cmp_eq_u32 s{sT0}, {512+ack+2}\ns_cbranch_scc0 P1_npub")
        A(f"s_and_b32 s0, s{sFt}, 3\ns_lshl_b32 s0, s0, 3\ns_lshl_b32 s0, 1, s0\ns_and_b32 s{sT0}, s{sFt}, 12\ns_atomic_or s0, s[6:7], s{sT0}\nP1_npub:")
    if hsi:
        assert pf2 not in (3,4)
        A(f"s_lshl_b32 s{sT0}, s{sP}, 8\ns_add_u32 s{sT0}, s{sT0}, s{sCnt}\ns_cmp_eq_u32 s{sT0}, {hsi}\ns_cbranch_scc0 P1_nh\ns_load_dwordx4 s[8:11], s[6:7], 0 {hsglc}\nP1_nh:")
    if pf2==4:
        spf()
        A(f"s_cmp_lt_u32 s{sCnt}, 3\ns_cbranch_scc0 P1_nspf")
        spf()
        A("P1_nspf:")
    if pf2==3:
        A(f"s_sub_u32 s{sT0}, s{sCnt}, {spa}\ns_cmp_lt_u32 s{sT0}, {spb-spa}\ns_cbranch_scc0 P1_nspf")
        spf()
        A("P1_nspf:")
    A(f"s_add_u32 s{sCnt}, s{sCnt}, 1\ns_cmp_lt_u32 s{sCnt}, 13\ns_cbranch_scc1 P1_loop")
    pad()
    A("s_waitcnt vmcnt(15)\ns_barrier")
    issueW1()
    sW,sH,sSlot,sLW2,sLH=47,48,51,50,49
    A(f"s_lshl_b32 s{sLH}, s{sP}, 12\ns_add_u32 s{sLW2}, s{sLH}, 65536\ns_mov_b32 s{sCnt}, 0\ns_mov_b32 s{sSlot}, 0")
    def issueW():
        A(f"s_add_u32 m0, s{sLW2}, s{sSlot}\ns_nop 0")
        for n in range(4):
            o,tb=n>>1,n&1
            A(f"buffer_load_dwordx4 v{22+o}, {R4(SW2)}, s{sW} offen offset:{tb*128} {w2aux} lds")
            if n<3: A(f"s_add_u32 m0, m0, {896 if tb==0 else 1024+128}\ns_nop 0")
    def issueH():
        A(f"s_add_u32 m0, s{sLH}, s{sSlot}\ns_nop 0")
        for n in range(4):
            A(f"buffer_load_dwordx4 v{26+n}, {R4(SWS)}, s{sH} offen sc1 lds")
            if n<3: A("s_add_u32 m0, m0, 1024\ns_nop 0")
    A(f"v_readlane_b32 s{sW}, v21, 0")
    A("s_waitcnt vmcnt(7)\ns_barrier")
    if not hsi: A(f"s_cmp_eq_u32 s{sP}, 0\ns_cbranch_scc0 P2_nh\ns_load_dwordx4 s[8:11], s[6:7], 0 glc\nP2_nh:")
    A("s_waitcnt vmcnt(0)\ns_barrier")
    def nextW(): A(f"s_add_u32 s{sCnt}, s{sCnt}, 1\ns_add_u32 s{sSlot}, s{sSlot}, 16384\nv_readlane_b32 s{sW}, v21, s{sCnt}\ns_nop 2")
    if w2e:
        A("s_branch P2_w0\nP2_w:"); nextW(); A("P2_w0:"); issueW()
        A(f"s_cmp_lt_u32 s{sCnt}, {w2e}\ns_cbranch_scc1 P2_w")
        A("s_barrier")
        pad()
        A("P2_w2:"); nextW(); issueW()
        A(f"s_cmp_lt_u32 s{sCnt}, 3\ns_cbranch_scc1 P2_w2")
    else:
        issueW()
        A("s_barrier")
        pad()
        A("P2_w:"); nextW(); issueW()
        A(f"s_cmp_lt_u32 s{sCnt}, 3\ns_cbranch_scc1 P2_w")
    A(f"s_cmp_eq_u32 s{sP}, 0\ns_cbranch_scc0 P2_hsd\ns_mov_b32 s58, 0\ns_branch P2_hsw")
    A("P2_hs:\ns_load_dwordx4 s[8:11], s[6:7], 0 glc\ns_add_u32 s58, s58, 1\nP2_hsw:\ns_waitcnt lgkmcnt(0)")
    A(f"s_and_b32 s8, s8, s9\ns_and_b32 s10, s10, s11\ns_and_b32 s8, s8, s10\ns_cmp_ge_u32 s58, {SPIN}\ns_cbranch_scc1 P2_hsd\ns_cmp_eq_u32 s8, 0x01010101\ns_cbranch_scc0 P2_hs\nP2_hsd:")
    A(f"s_lshr_b32 s59, s{sLid}, 3\ns_lshl_b32 s59, s59, 10\ns_add_u32 s59, s59, {F_OFF+fch*128}\ns_lshl_b32 s{sT0}, s{sFt8}, 2")
    A(f"v_mov_b32 v5, {OOB}\nv_mov_b32 v6, s{sT0}\nv_cmp_eq_u32 vcc, 0, v2\nv_and_b32 v3, 7, v2\nv_lshlrev_b32 v3, 2, v3\nv_cndmask_b32 v6, v5, v6, vcc\nv_mov_b32 v5, 1")
    A(f"v_readlane_b32 s{sH}, v20, 3\ns_waitcnt vmcnt(12)")
    stamp(3)
    A("s_barrier")
    stamp(6)
    A(f"s_cmp_eq_u32 s{sP}, 1\ns_cbranch_scc0 P2_nf\nbuffer_store_dword v5, v6, {R4(SWS)}, s59 offen sc1\ns_nop 1\nv_mov_b32 v5, 7\nP2_nf:")
    A(f"s_cmp_eq_u32 s{sP}, 0\ns_cbranch_scc1 P2_p0\ns_waitcnt vmcnt(0)\ns_branch P2_go\nP2_p0:\ns_mov_b32 s58, 0")
    if pdelay: A(f"s_mov_b32 s16, 0\nP2_dl:\ns_add_u32 s16, s16, 1\ns_cmp_lt_u32 s16, {pdelay}\ns_cbranch_scc1 P2_dl")
    stamp(7)
    if vpoll:
        A(f"P2_l1:\nbuffer_load_dword v4, v3, {R4(SWS)}, s59 offen sc1\ns_add_u32 s58, s58, 1\ns_waitcnt vmcnt(0)\nv_cmp_eq_u32 vcc, 0, v4")
        spin_tail("P2_l1")
    else:
        A("P2_l1:\ns_load_dwordx8 s[16:23], s[4:5], 0 glc\ns_add_u32 s58, s58, 1\ns_waitcnt lgkmcnt(0)")
        A("s_and_b64 s[16:17], s[16:17], s[18:19]\ns_and_b64 s[20:21], s[20:21], s[22:23]\ns_and_b64 s[16:17], s[16:17], s[20:21]\ns_and_b32 s16, s16, s17")
        A(f"s_cmp_ge_u32 s58, {SPIN}\ns_cbranch_scc1 P2_rdy\ns_bitcmp1_b32 s16, 0\ns_cbranch_scc0 P2_l1")
    A("P2_rdy:")
    if diag: stamp(9); A("s_mov_b32 s80, s58")
    A(f"s_mov_b32 m0, 49152\ns_mov_b32 s58, 0")
    A("P2_h3:")
    for n in range(4): A(f"buffer_load_dwordx4 v{26+n}, {R4(SWS)}, s{sH} offen sc1 lds\ns_add_u32 m0, m0, 1024\n"+("s_nop 0" if n<3 else f"s_add_u32 s{sH}, s{sH}, {QS}"))
    A("s_add_u32 s58, s58, 1\ns_cmp_lt_u32 s58, 4\ns_cbranch_scc1 P2_h3")
    A("P2_go:")
    pad()
    stamp(4)
    PL=f"buffer_load_dword v4, v3, {R4(SWS)}, s59 offen sc1"
    A(f"s_mov_b32 s{sCnt}, 4\ns_mov_b32 s57, 7")
    A("P2_loop:")
    A(f"v_readlane_b32 s{sW}, v21, s{sCnt}\nv_readlane_b32 s{sH}, v20, s{sCnt}")
    A(f"s_add_u32 s{sSlot}, s{sSlot}, 16384\ns_and_b32 s{sSlot}, s{sSlot}, 0xffff")
    A(f"s_cmp_eq_u32 s{sCnt}, 24\ns_cbranch_scc0 P2_a\nv_mov_b32 v22, v24\nv_mov_b32 v23, v25\nP2_a:")
    A("s_waitcnt vmcnt(16)\ns_barrier")
    assert l1epi==3 or sched==9
    A(f"s_lshl_b32 s{sT0}, s{sP}, 8\ns_add_u32 s{sT0}, s{sT0}, s{sCnt}\ns_cmp_eq_u32 s{sT0}, {256+l1st+5}\ns_cbranch_scc0 P2_nf2\nbuffer_store_dword v5, v6, {R4(SWS)}, s59 offen sc1\nP2_nf2:")
    A(f"s_cmp_eq_u32 s{sCnt}, 9\ns_cbranch_scc0 P2_np\n{PL}\nP2_np:")
    A(f"s_cmp_eq_u32 s{sCnt}, 10\ns_cbranch_scc0 P2_b")
    A("s_waitcnt vmcnt(8)\nv_cmp_gt_u32 vcc, s57, v4\ns_mov_b32 s58, 0\ns_nop 3\ns_cbranch_vccz P2_ok")
    A(f"P2_l2:\n{PL}\ns_add_u32 s58, s58, 1\ns_waitcnt vmcnt(0)\nv_cmp_gt_u32 vcc, s57, v4")
    spin_tail("P2_l2")
    A("P2_ok:\ns_mov_b32 s57, 7")
    A("P2_b:")
    pad()
    issueW(); issueH()
    if pf2==3:
        A("s_cmp_eq_u32 s13, 24\ns_cselect_b32 s8, s14, s8\ns_cselect_b32 s9, s15, s9\ns_cmp_lt_u32 s13, 28\ns_cbranch_scc0 P2_nspf")
        spf()
        A("P2_nspf:")
    A(f"s_add_u32 s{sCnt}, s{sCnt}, 1\ns_cmp_lt_u32 s{sCnt}, 28\ns_cbranch_scc1 P2_loop")
    A("s_waitcnt vmcnt(16)\ns_barrier\ns_waitcnt vmcnt(8)\ns_barrier\ns_waitcnt vmcnt(0)\ns_barrier")
    if diag: stamp(5); rstamp(15); flush(16)
    A("s_endpgm")
    A(".p2align 6\nL_cons:")
    ACC=16; F=[(128,144),(172,188)]
    vX0,vX1,vE,vO,vL=4,5,6,7,8; bX0,bE,bL=9,10,11
    sWm,sWf,sIt,sRg,sA,sB,sC=46,47,48,49,58,7,59
    sHA,sH3,sRX2,sClr,sPf=50,51,4,5,6
    vOwn,vT3,vH,vW=232,233,235,[236,237,238,239]
    if pfc and not fast:
        A(f"s_getpc_b64 s[54:55]\nC_pc:\ns_sub_u32 s54, s54, C_pc-{NAME}\ns_subb_u32 s55, s55, 0")
        A(f"v_lshlrev_b32 v3, 7, v0\nv_min_u32 v3, L_end-{NAME}, v3\nglobal_load_dword v255, v3, s[54:55]")
    if pf1==1 and not fast:
        A(f"v_and_b32 v15, 31, v2\nv_lshlrev_b32 v15, 7, v15\ns_lshl_b32 s{sA}, s2, 2\ns_add_u32 s{sA}, s{sA}, s3\ns_lshl_b32 s{sA}, s{sA}, 12")
    if pf1==3:
        A(f"v_and_b32 v15, 7, v2\nv_lshlrev_b32 v15, 7, v15\nv_bfe_u32 v14, v2, 3, 1\nv_lshl_add_u32 v15, v14, 11, v15\ns_lshl_b32 s{sA}, s2, 2\ns_add_u32 s{sA}, s{sA}, s3\ns_lshl_b32 s{sA}, s{sA}, 12\nv_mov_b32 v252, v15")
    if pf1==2:
        A(f"v_lshlrev_b32 v15, 7, v2\ns_lshr_b32 s{sA}, s2, 3\ns_lshl_b32 s{sA}, s{sA}, 2\ns_add_u32 s{sA}, s{sA}, s3\ns_lshl_b32 s{sA}, s{sA}, 13\ns_lshr_b32 s{sB}, s{sXcd}, 1\ns_lshl_b32 s{sB}, s{sB}, 20\ns_add_u32 s{sA}, s{sA}, s{sB}")
    A("s_waitcnt lgkmcnt(0)")
    if pf1 and not (fast and pf1==1):
        srd(A,SX,4,X_BYTES)
        A(f"buffer_load_dword v253, v15, {R4(SX)}, s{sA} offen")
        if pf1==3: srd(A,SW1,6,W_BYTES)
    A("s_setprio 1")
    A(f"s_lshr_b32 s{sWm}, s3, 1\ns_and_b32 s{sWf}, s3, 1")
    A("v_and_b32 v3, 15, v2\nv_lshrrev_b32 v12, 4, v2")
    A("v_lshrrev_b32 v13, 1, v3\nv_xor_b32 v13, v13, v12\nv_lshlrev_b32 v13, 4, v13")
    A(f"s_lshl_b32 s{sA}, s{sWm}, 13\nv_lshlrev_b32 v14, 7, v3\nv_add3_u32 v{bX0}, v13, v14, s{sA}")
    A("v_lshrrev_b32 v13, 1, v12\nv_mul_u32_u24 v13, 7168, v13\nv_bfe_u32 v15, v2, 2, 2\nv_lshl_add_u32 v13, v15, 6, v13\nv_and_b32 v15, 3, v2\nv_lshl_add_u32 v13, v15, 3, v13")
    A(f"v_and_b32 v14, 1, v12\nv_mul_u32_u24 v15, 1056, v14\ns_lshl_b32 s{sA}, s{sWf}, 9\ns_add_u32 s{sA}, s{sA}, {WOFF}\nv_add3_u32 v{bE}, v13, v15, s{sA}")
    A(f"v_mul_u32_u24 v15, 544, v14\nv_add_u32 v13, v13, v15\ns_lshl_b32 s{sA}, s{sWf}, 5\nv_xor_b32 v13, s{sA}, v13\nv_add_u32 v{bL}, {WOFF+6144}, v13")
    VF=248
    fragoffs(VF)
    A(f"v_add_u32 v{vE}, {2*WST}, v{bE}\nv_mov_b32 v{vX0}, v{bX0}\nv_add_u32 v{vL}, {2*WST}, v{bL}\nv_xor_b32 v{vO}, 32, v{vE}\nv_xor_b32 v{vX1}, 64, v{vX0}")
    srd(A,SO,10,O_BYTES); srd(A,SWS,14,0x10000000); srd(A,SW2,8,W_BYTES)
    if diag==5 or not spub: srd(A,SD,12,256)
    A("v_lshlrev_b32 v3, 4, v2")
    A(f"s_lshr_b32 s56, s{sLid}, 3\ns_lshl_b32 s56, s56, 10\ns_lshl_b32 s{sB}, s{sFt8}, 2\ns_add_u32 s56, s56, s{sB}\ns_add_u32 s56, s56, {F_OFF+fch*128}")
    A(f"v_mov_b32 v1, {OOB}\nv_cmp_eq_u32 vcc, 0, v2\ns_nop 1\nv_cndmask_b32 v1, v1, 0, vcc")
    A(f"s_andn2_b32 s57, s{sLid}, 7\ns_add_u32 s57, s57, s{sDt}\ns_lshl_b32 s57, s57, 2\ns_add_u32 s57, s57, s3\ns_mul_i32 s57, s57, {QS}\ns_add_u32 s57, s57, {P_OFF}")
    A(f"s_lshl_b32 s52, s{sWm}, 12\nv_add_u32 v{vH}, s52, v3")
    A("v_lshrrev_b32 v13, 5, v2\nv_lshlrev_b32 v13, 11, v13\nv_bfe_u32 v14, v2, 4, 1\nv_mul_u32_u24 v14, 288, v14\nv_add_u32 v13, v13, v14")
    A("v_bfe_u32 v15, v2, 2, 2\nv_lshl_add_u32 v13, v15, 6, v13\nv_and_b32 v15, 3, v2\nv_lshl_add_u32 v13, v15, 3, v13")
    A(f"s_lshl_b32 s52, s{sJ}, 1\ns_add_u32 s52, s52, s{sWf}\ns_lshl_b32 s52, s52, 9\ns_add_u32 s52, s52, 65536\nv_add_u32 v{vW[0]}, s52, v13")
    A(f"v_xor_b32 v{vW[1]}, 32, v{vW[0]}\nv_xor_b32 v{vW[2]}, 0x400, v{vW[0]}\nv_xor_b32 v{vW[3]}, 0x420, v{vW[0]}")
    A(f"s_add_u32 s62, s{sFt8}, s3\ns_and_b32 s62, s62, {rmask}\ns_add_u32 s62, s62, {l2st+5}")
    A(f"s_mul_i32 s{sHA}, s{sMt}, 112\ns_mul_i32 s{sH3}, s{sFt}, 7\ns_add_u32 s{sHA}, s{sHA}, s{sH3}\ns_and_b32 s52, s{sFt8}, 1")
    A(f"s_xor_b32 s53, s52, 1\ns_mul_i32 s53, s53, 6\ns_add_u32 s{sH3}, s{sHA}, s53\ns_add_u32 s{sHA}, s{sHA}, s52\ns_add_u32 s{sHA}, s{sHA}, s{sWf}")
    A(f"s_mul_i32 s52, s{sWm}, {QS}\ns_mul_i32 s{sHA}, s{sHA}, {CH}\ns_add_u32 s{sHA}, s{sHA}, s52\ns_mul_i32 s{sH3}, s{sH3}, {CH}\ns_add_u32 s{sH3}, s{sH3}, s52\ns_lshl_b32 s52, s{sWm}, 12")
    A(f"s_lshl_b32 s53, s{sWf}, 13\ns_add_u32 s52, s52, s53\nv_add_u32 v{vOwn}, s52, v3")
    A(f"v_bfe_u32 v13, v2, 4, 1\nv_lshlrev_b32 v13, 3, v13\nv_lshrrev_b32 v14, 5, v2\nv_lshl_add_u32 v13, v14, 1, v13\nv_bfe_u32 v14, v2, 3, 1\ns_lshl_b32 s52, s{sWf}, 2\nv_add3_u32 v13, v13, v14, s52")
    A("v_add_u32 v14, 16, v13\nv_and_b32 v15, 7, v2\nv_lshlrev_b32 v15, 4, v15")
    physline(vT3,13,12); physline(vT3+1,14,12)
    A(f"v_add_u32 v{vT3}, v{vT3}, v15\nv_add_u32 v{vT3+1}, v{vT3+1}, v15")
    A("v_mov_b32 v12, 1\ns_mov_b32 s52, 0xbfb8aa3b\ns_mov_b32 s53, 0xbfb8aa3b\ns_mov_b32 s54, 1.0\ns_mov_b32 s55, 1.0")
    for r in range(112): A(f"v_mov_b32 v{ACC+r}, 0")
    for r in range(4): A(f"v_mov_b32 v{244+r}, -1")
    def hook(it, body, name, reg=None):
        OOL.append(f"{name}:\n{body}\ns_branch {name}_b")
        return [f"s_cmp_eq_u32 s{reg or sIt}, {it}", f"s_cbranch_scc1 {name}\n{name}_b:"]
    def reads1(u, fs):
        X,W=F[fs]
        xs=[f"ds_read_b128 {vr(X+4*i,4)}, v{vX1 if u else vX0} offset:{i*2048}" for i in range(4)]
        ws=[]
        for j in range(7):
            a,o=(vL,0) if j==6 else ((vO if j&1 else vE),(j>>1)*2048)
            for hh in range(2): ws.append(f"ds_read_b64_tr_b16 {vr(W+4*j+2*hh,2)}, v{a} offset:{u*14336+o+hh*256}")
        return ws[0:2]+xs+ws[2:]
    def mf1(fs):
        X,W=F[fs]
        return [f"v_mfma_f32_16x16x32_bf16 {vr(ACC+(j*4+i)*4,4)}, {vr(W+4*j,4)}, {vr(X+4*i,4)}, {vr(ACC+(j*4+i)*4,4)}" for j,i in snake(range(7),4)]
    A(f"s_mov_b32 s{sIt}, 0\ns_mov_b32 s{sRg}, {2*WST}\ns_mov_b32 s{sRX2}, 0\ns_add_u32 s{sClr}, s3, s{sFt8}\ns_and_b32 s{sClr}, s{sClr}, {cmask}\ns_add_u32 s{sClr}, s{sClr}, {cbase}")
    A(f"s_mul_i32 s{sPf}, s3, {pfb}\ns_add_u32 s{sPf}, s{sPf}, {pfa}")
    if pf2==2: A(f"v_min_u32 v15, 55, v2\nv_lshlrev_b32 v15, 7, v15\ns_lshl_b32 s{sA}, s2, 2\ns_add_u32 s{sA}, s{sA}, s3\ns_mul_i32 s{sA}, s{sA}, 7168\nbuffer_load_dword v255, v15, {R4(SW2)}, s{sA} offen")
    if diag in (2,3): A("s_mov_b32 m0, 0")
    clr="\n".join([f"buffer_store_dwordx4 v[244:247], v{VF+i}, {R4(SWS)}, s57 offen sc1" for i in range(4)])
    clr=f"v_mov_b32 v13, 0\n{clr}\nbuffer_store_dword v13, v1, {R4(SWS)}, s56 offen sc1"
    if clr0: A(clr)
    if walk:
        A(f"s_cmp_ge_u32 s3, {walk}\ns_cbranch_scc1 C_walked\ns_waitcnt vmcnt({1 if pf1 else 0})\ns_mov_b64 exec, 0")
        for w in range(walk-1): A(f"s_cmp_eq_u32 s3, {w}\ns_cbranch_scc1 @START{w}@")
        A(f"s_branch @START{walk-1}@\nC_wret:\ns_mov_b64 exec, -1\nC_walked:")
    A("s_barrier")
    stamp(1)
    for l in reads1(0,0): A(l)
    A("s_waitcnt lgkmcnt(0)")
    A(".p2align 3\nC1_loop:")
    sstamp()
    ex=[f"s_add_u32 s{sRg}, s{sRg}, {WST}\ns_add_u32 s{sRX2}, s{sRX2}, 16384", f"s_cmp_eq_u32 s{sRg}, {WST*3}\ns_cselect_b32 s{sRg}, 0, s{sRg}",
        f"v_add_u32 v{vE}, s{sRg}, v{bE}\ns_and_b32 s{sRX2}, s{sRX2}, 0xffff", f"v_add_u32 v{vX0}, s{sRX2}, v{bX0}", f"v_add_u32 v{vL}, s{sRg}, v{bL}",
        f"v_xor_b32 v{vO}, 32, v{vE}", f"v_xor_b32 v{vX1}, 64, v{vX0}"]
    if not clr0: ex+=hook(f"s{sClr}" if stag else 2,clr,"H1_clr")
    for l in interleave(mf1(0), reads1(1,1)+ex): A(l)
    A("s_waitcnt lgkmcnt(0)\ns_barrier")
    pub=(f"s_cmp_eq_u32 s3, 0\ns_cbranch_scc0 H1_pub_b\ns_and_b32 s{sA}, s{sLid}, 3\ns_lshl_b32 s{sA}, s{sA}, 3\ns_lshl_b32 s{sA}, 1, s{sA}\nv_mov_b32 v13, s{sA}\n"
         f"s_andn2_b32 s{sA}, s{sLid}, 3\nv_lshlrev_b32 v14, 8, v2\nbuffer_atomic_or v13, v14, {R4(SD)}, s{sA} offen")
    ex=hook(ack,"s_waitcnt vmcnt(0)","H1_ack")+([] if spub else hook(ack+1,pub,"H1_pub"))
    if pf1==3:
        nl=(16-w1s)*64*56//1024
        ex+=hook(pfi,f"s_lshl_b32 s{sA}, s2, 2\ns_add_u32 s{sA}, s{sA}, s3\ns_mul_i32 s{sB}, s{sA}, {nl*128}\ns_add_u32 s{sB}, s{sB}, {w1s*64*7168}\ns_lshl_b32 s{sA}, s{sA}, 12\n"
                     f"v_min_u32 v15, {nl-1}, v2\nv_lshlrev_b32 v15, 7, v15\nbuffer_load_dword v255, v15, {R4(SW1)}, s{sB} offen\nbuffer_load_dword v253, v252, {R4(SX)}, s{sA} offen offset:1024","H1_pf1")
    if pf2==4:
        ex+=hook(f"s{sPf}",f"s_lshl_b32 s{sA}, s2, 2\ns_add_u32 s{sA}, s{sA}, s3\ns_lshr_b32 s{sB}, s{sA}, 6\ns_and_b32 s60, s{sB}, 1\ns_mul_i32 s{sB}, s{sB}, 7\n"
                     f"s_add_u32 s61, s{sB}, s60\ns_add_u32 s61, s61, 4\ns_lshl_b32 s61, s61, 16\ns_xor_b32 s60, s60, 1\ns_mul_i32 s60, s60, 6\ns_add_u32 s{sB}, s{sB}, s60\ns_lshl_b32 s{sB}, s{sB}, 16\n"
                     f"s_and_b32 s{sA}, s{sA}, 63\ns_lshl_b32 s60, s{sA}, 11\ns_add_u32 s61, s61, s60\ns_lshl_b32 s60, s{sA}, 10\ns_add_u32 s{sB}, s{sB}, s60\n"
                     f"v_and_b32 v15, 15, v2\nv_lshlrev_b32 v15, 7, v15\nv_and_b32 v14, 7, v2\nv_lshlrev_b32 v14, 7, v14\n"
                     f"buffer_load_dword v255, v15, {R4(SW2)}, s61 offen\nbuffer_load_dword v253, v14, {R4(SW2)}, s{sB} offen","H1_pf")
    if pf2==1:
        ex+=hook(f"s{sPf}",f"v_min_u32 v15, 55, v2\nv_lshlrev_b32 v15, 7, v15\ns_lshl_b32 s{sA}, s2, 2\ns_add_u32 s{sA}, s{sA}, s3\ns_mul_i32 s{sA}, s{sA}, 7168\nbuffer_load_dword v255, v15, {R4(SW2)}, s{sA} offen","H1_pf")
    ex+=([PAD] if walk else [])+[f"s_add_u32 s{sIt}, s{sIt}, 1", f"s_cmp_lt_u32 s{sIt}, 16"]
    x=interleave(mf1(1), reads1(0,0)+ex)
    if x[-1].startswith("v_mfma"):
        for l in x[:-1]: A(l)
        A("s_waitcnt lgkmcnt(0)"); A(x[-1])
    else:
        for l in x: A(l)
        A("s_waitcnt lgkmcnt(0)")
    A("s_cbranch_scc1 C1_loop")
    stamp(2)
    T=216
    def silu(a, b, D):
        t=T; src=[a,a+2,b,b+2]
        for r in range(4): A(f"v_pk_mul_f32 {vr(t+2*r,2)}, s[52:53], {vr(src[r],2)}")
        for r in range(8): A(f"v_exp_f32 v{t+r}, v{t+r}")
        for r in range(4): A(f"v_pk_add_f32 {vr(t+2*r,2)}, s[54:55], {vr(t+2*r,2)}")
        for r in range(8): A(f"v_rcp_f32 v{t+r}, v{t+r}")
        for r in range(4): A(f"v_pk_mul_f32 {vr(t+2*r,2)}, {vr(t+2*r,2)}, {vr(src[r],2)}")
        for r in range(4): A(f"v_cvt_pk_bf16_f32 v{D+r}, v{t+2*r}, v{t+2*r+1}")
    def gst(D,i): return f"buffer_store_dwordx4 {vr(D,4)}, v{VF+i}, {R4(SWS)}, s{sHA} offen sc1"
    FLAG="s_nop 0"
    DL=[160,128,144]; D3=224
    for L in range(3):
        for i in range(4):
            D=DL[L]+4*i
            if i%2==0: pad()
            silu(ACC+((2*L)*4+i)*4, ACC+((2*L+1)*4+i)*4, D)
            if L==0 or (L==2 and l1epi>=2) or (L==1 and i>=nb and l1epi): A(gst(D,i))
            A(f"ds_write_b128 v{vOwn}, {vr(D,4)} offset:{L*16384+i*1024}")
            if L==1 and i==nb-1:
                stamp(11); A("s_waitcnt vmcnt(0)"); stamp(12)
                A(f"s_add_u32 s{sHA}, s{sHA}, {2*CH}\ns_waitcnt lgkmcnt(0)\ns_barrier")
                if l1epi:
                    for k in range(nb): A(gst(128+4*k,k))
        if L==1 and l1epi: A(f"s_add_u32 s{sHA}, s{sHA}, {2*CH}")
    F2=[(160,176),(192,208)]
    def rdH(X,slot,u): return [f"ds_read_b128 {vr(X+4*i,4)}, v{vH} offset:{slot*16384+u*8192+i*1024}" for i in range(4)]
    def rdW(W,slot,u,js): return [f"ds_read_b64_tr_b16 {vr(W+4*n+2*hh,2)}, v{vW[j]} offset:{slot*16384+(4*u+2*hh)*2048}" for n,j in enumerate(js) for hh in range(2)]
    def reads2(slot,u,fs):
        X,W=F2[fs]; ws=rdW(W,slot,u,range(4)); return ws[0:2]+rdH(X,slot,u)+ws[2:]
    def mfm(X,W,js,zero=False,w0=0):
        return [f"v_mfma_f32_16x16x32_bf16 {vr(ACC+(j*4+i)*4,4)}, {vr(W+4*(j-w0),4)}, {vr(X+4*i,4)}, {'0' if zero else vr(ACC+(j*4+i)*4,4)}" for j,i in snake(js,4)]
    def mf2(fs,zero=False): return mfm(F2[fs][0],F2[fs][1],range(4),zero)
    for l in reads2(0,0,0): A(l)
    for ip in range(2):
        D=D3+4*ip; a=ACC+(24+2*ip)*4
        if ip==0: pad()
        silu(a,a+4,D)
        A(f"s_nop 1\nv_permlane16_swap_b32 v{D}, v{D+2}\nv_permlane16_swap_b32 v{D+1}, v{D+3}")
        if l1epi>=3: A(f"buffer_store_dwordx4 {vr(D,4)}, v{vT3+ip}, {R4(SWS)}, s{sH3} offen sc1")
    A(f"v_mov_b32 v12, {7 if l1epi==3 else 3}\ns_mov_b32 s{sIt}, 0")
    stamp(3); stamp(4)
    sstamp()
    A("s_waitcnt lgkmcnt(0)")
    for l in interleave(mf2(0,True), reads2(0,1,1)+([PAD] if walk else [])): A(l)
    A("s_branch C2_in")
    dw={}; dws={}
    t3st=[f"buffer_store_dwordx4 {vr(D3+4*ip,4)}, v{vT3+ip}, {R4(SWS)}, s{sH3} offen sc1" for ip in range(2)]
    ADV=f"\ns_add_u32 s{sHA}, s{sHA}, {2*CH}"
    L1s=[gst(128+4*i,i) for i in range(4)]; L2s=[gst(144+4*i,i) for i in range(4)]
    F3=f"s_waitcnt vmcnt(0)\n{FLAG}"; F7=f"v_mov_b32 v12, 7\ns_waitcnt vmcnt(0)\n{FLAG}"
    J="\n".join
    if sched==1:
        dw[(0,1)]=J(L1s[:2]); dw[(1,0)]=J(L1s[2:])+ADV; dw[(1,1)]=J(L2s[:2]); dw[(2,0)]=J(L2s[2:]); dw[(2,1)]=J(t3st); dw[(4,0)]=F7
    elif sched==2:
        dw[(0,1)]=J(L1s[:2]); dw[(1,0)]=J(L1s[2:])+ADV; dw[(3,0)]=F3
        dw[(3,1)]=L2s[0]; dw[(4,0)]=L2s[1]; dw[(4,1)]=L2s[2]; dw[(5,0)]=L2s[3]; dw[(5,1)]=t3st[0]; dw[(6,0)]=t3st[1]; dw[(10,0)]=F7
    elif sched==3:
        dw[(0,1)]=L1s[0]; dw[(1,0)]=L1s[1]; dw[(1,1)]=L1s[2]; dw[(2,0)]=L1s[3]+ADV; dw[(3,1)]=F3
        dw[(4,0)]=L2s[0]; dw[(4,1)]=L2s[1]; dw[(5,0)]=L2s[2]; dw[(5,1)]=L2s[3]; dw[(6,0)]=t3st[0]; dw[(6,1)]=t3st[1]; dw[(11,0)]=F7
    elif sched==4:
        dw[(0,1)]=J(L1s)+ADV; dw[(1,1)]=J(L2s); dw[(2,1)]=J(t3st); dw[(4,0)]=F7
    elif sched==9:
        dw[(1,1)]=F7
    elif sched==5:
        dw[(0,1)]=J(L2s[:2]); dw[(1,0)]=J(L2s[2:]); dw[(1,1)]=J(t3st); dw[(3,1)]=F7
    else:
        if not l1epi:
            dw[(l1st,0)]=gst(128,0)+"\n"+gst(132,1); dw[(l1st,1)]=gst(136,2)+"\n"+gst(140,3)+f"\ns_add_u32 s{sHA}, s{sHA}, {2*CH}"
            dw[(l1st+2,1)]=f"s_waitcnt vmcnt(0)\n{FLAG}"
        else:
            dw[(l1st,1)]=f"s_waitcnt vmcnt(0)\n{FLAG}"
        if l1epi>=2:
            if l1epi==2: dw[(l2st,0)]="\n".join(t3st)
            if l1epi==2: dw[(f3,1)]=f"v_mov_b32 v12, 7\ns_waitcnt vmcnt(0)\n{FLAG}"
        elif not stag2:
            dw[(l2st,0)]=gst(144,0)+"\n"+gst(148,1); dw[(l2st+1,0)]=gst(152,2)+"\n"+gst(156,3)+"\nv_mov_b32 v12, 7"
            dw[(l2st+2,0)]="\n".join(t3st)
            dw[(l2st+5,1)]=f"s_waitcnt vmcnt(0)\n{FLAG}"
        else:
            dw[(f3,1)]=f"v_mov_b32 v12, 7\ns_waitcnt vmcnt(0)\n{FLAG}"
            body=[gst(144+4*i,i) for i in range(4)]+t3st
            o="H2_st:\n"
            for n,b in enumerate(body):
                o+=f"s_cmp_eq_u32 s62, {5-n}\ns_cbranch_scc0 H2_st{n}\n{b}\nH2_st{n}:\n"
            o+="s_setpc_b64 s[54:55]"
            OOL.append(o)
    def hooks2(slot,u):
        ex=[]
        for (q,uu),body in sorted(dw.items()):
            if q%4==slot and uu==u: ex+=hook(q//4,body,f"H2_{q}_{uu}")
        if stag2 and l1epi<2 and u==0 and not sched:
            ex+=["s_sub_u32 s62, s62, 1\ns_cmp_lt_u32 s62, 6", f"s_cbranch_scc1 H2_go{slot}\nH2_ns{slot}:"]
            OOL.append(f"H2_go{slot}:\ns_call_b64 s[54:55], H2_st\ns_branch H2_ns{slot}")
        assert len(ex)<=4, (slot,u,ex)
        return ex
    A(".p2align 3\nC2_loop:")
    for slot in range(4):
        sstamp()
        for l in interleave(mf2(0), reads2(slot,1,1)+hooks2(slot,0)+([PAD] if walk else [])): A(l)
        if slot==0: A("C2_in:")
        A("s_waitcnt lgkmcnt(0)\ns_barrier")
        ex=hooks2(slot,1)
        if slot==3: ex+=[f"s_add_u32 s{sIt}, s{sIt}, 1", f"s_cmp_lt_u32 s{sIt}, 6"]
        x=interleave(mf2(1), reads2((slot+1)&3,0,0)+ex)
        if x[-1].startswith("v_mfma"):
            for l in x[:-1]: A(l)
            A("s_waitcnt lgkmcnt(0)"); A(x[-1])
        else:
            for l in x: A(l)
            A("s_waitcnt lgkmcnt(0)")
    A("s_cbranch_scc1 C2_loop")
    stamp(13)
    if diag: A("s_waitcnt lgkmcnt(0)")
    G=[dict(H=[160,80],W=[184,96]), dict(H=[192,104],W=[208,216])]
    def rdS(g,slot,js,us=(0,1)):
        o=[]
        for u in us:
            w=rdW(G[g]['W'][u],slot,u,js); o+=w[0:2]+rdH(G[g]['H'][u],slot,u)+w[2:]
        return o
    def mfS(g,js): return mfm(G[g]['H'][0],G[g]['W'][0],js,w0=js[0])+mfm(G[g]['H'][1],G[g]['W'][1],js,w0=js[0])
    for l in rdS(0,0,(2,3),(1,)): A(l)
    pad()
    A("s_barrier")
    m=mfS(0,(2,3)); r=rdS(1,1,(2,3))
    x=interleave(m[:8], r[:8])
    for l in x: A(l)
    A("s_waitcnt lgkmcnt(8)")
    for l in interleave(m[8:], r[8:]): A(l)
    for q in (1,2):
        if q==2: pad()
        A("s_waitcnt lgkmcnt(0)\ns_barrier")
        for l in interleave(mfS(q&1,(2,3)), rdS((q+1)&1,q+1,(2,3))): A(l)
    A(f"s_mul_i32 s52, s{sJ}, {-2*32*QS}\ns_add_u32 s52, s52, {32*QS}\ns_add_u32 s52, s52, s57\ns_mov_b32 s53, -2")
    sn=[]
    for i in range(4):
        D=128+4*i; t=[]
        for n,j in enumerate((2,3)):
            S=ACC+(j*4+i)*4
            t+= [f"v_cvt_pk_bf16_f32 v{D+2*n}, v{S}, v{S+1}", f"v_cvt_pk_bf16_f32 v{D+2*n+1}, v{S+2}, v{S+3}"]
        t+=[f"v_min_u32 v{D+r}, s53, v{D+r}" for r in range(4)]
        t.append(f"buffer_store_dwordx4 {vr(D,4)}, v{VF+i}, {R4(SWS)}, s52 offen sc1")
        sn.append(t)
    A("s_waitcnt lgkmcnt(0)")
    if esend:
        g=G[1]; r=rdS(0,0,(0,1)); k=0
        for i in range(4):
            for u,j in ((0,2),(0,3),(1,3),(1,2)):
                A(f"v_mfma_f32_16x16x32_bf16 {vr(ACC+(j*4+i)*4,4)}, {vr(g['W'][u]+4*(j-2),4)}, {vr(g['H'][u]+4*i,4)}, {vr(ACC+(j*4+i)*4,4)}")
                A(r[k]); k+=1
            if i>=1:
                for l in sn[i-1]: A(l)
        stamp(5)
        pad()
        A("s_waitcnt lgkmcnt(0)")
        m=mfS(0,(0,1)); r=rdS(1,1,(0,1))
        for n,mm_ in enumerate(m):
            A(mm_); A(r[n])
            if n==2:
                for l in sn[3]: A(l)
    else:
        for l in interleave(mfS(1,(2,3)), rdS(0,0,(0,1))): A(l)
        stamp(5)
        pad()
        snd=sum(sn,[])
        A("s_waitcnt lgkmcnt(0)")
        m=mfS(0,(0,1)); r=rdS(1,1,(0,1))
        k=0
        for n,mm_ in enumerate(m):
            A(mm_); A(r[n])
            if packfirst and n==1:
                A("s_nop 3")
                while k<len(snd): A(snd[k]); k+=1
            if n>=3:
                for _ in range(3):
                    if k<len(snd): A(snd[k]); k+=1
        while k<len(snd): A(snd[k]); k+=1
    stamp(6)
    RB=144 if dual else 80; RB2=224
    def LDs(b): return [f"buffer_load_dwordx4 {vr(b+4*i,4)}, v{VF+i}, {R4(SWS)}, s57 offen sc1" for i in range(4)]
    LD=LDs(RB)
    for q in (1,2):
        pad()
        A("s_waitcnt lgkmcnt(0)")
        x=interleave(mfS(q&1,(0,1)), rdS((q+1)&1,q+1,(0,1)))
        if dual==q:
            for n in range(4): x.insert(2+3*n+n,LD[n])
        for l in x: A(l)
    A("s_waitcnt lgkmcnt(0)")
    adr=["v_and_b32 v13, 15, v2","v_lshlrev_b32 v13, 11, v13","v_bfe_u32 v14, v2, 4, 1","v_lshl_add_u32 v13, v14, 5, v13","v_lshrrev_b32 v14, 5, v2","v_lshl_add_u32 v13, v14, 4, v13",
         f"s_lshl_b32 s{sC}, s{sMt}, 1\ns_add_u32 s{sC}, s{sC}, s{sWm}", f"s_lshl_b32 s{sC}, s{sC}, 17\ns_lshl_b32 s52, s{sDt}, 8", f"s_add_u32 s{sC}, s{sC}, s52\ns_lshl_b32 s52, s{sJ}, 7",
         f"s_add_u32 s{sC}, s{sC}, s52\ns_lshl_b32 s52, s{sWf}, 6", f"s_add_u32 s{sC}, s{sC}, s52\ns_mov_b32 s58, 0"]
    def chk():
        A(f"v_max3_u32 v14, v{RB}, v{RB+1}, v{RB+2}")
        for r in range(3,15,2): A(f"v_max3_u32 v14, v14, v{RB+r}, v{RB+r+1}")
        A(f"v_max_u32 v14, v14, v{RB+15}\nv_cmp_eq_u32 vcc, -1, v14")
    if dual:
        for l in interleave(mfS(1,(0,1)), LDs(80)+adr): A(l)
        A("s_waitcnt vmcnt(4)"); chk()
        A("s_nop 4\ns_cbranch_vccz C3_ok\ns_waitcnt vmcnt(0)")
        for r in range(16): A(f"v_mov_b32 v{RB+r}, v{80+r}")
    else:
        for l in interleave(mfS(1,(0,1)), adr[:ldpos]+LD+adr[ldpos:]): A(l)
    pad()
    A("s_branch C3_chk")
    A("C3_poll:")
    for l in LD: A(l)
    A("C3_chk:\ns_add_u32 s58, s58, 1\ns_waitcnt vmcnt(0)")
    chk()
    spin_tail("C3_poll")
    A("C3_ok:")
    stamp(7); stamp(8)
    A("s_mov_b32 s53, 0xffff0000")
    for i in range(4):
        D=128+4*i
        for n in range(2):
            S=ACC+(n*4+i)*4
            for h in range(2):
                Rr=RB+4*i+2*n+h
                A(f"v_lshlrev_b32 v{T}, 16, v{Rr}\nv_and_b32 v{T+1}, s53, v{Rr}\nv_pk_add_f32 {vr(S+2*h,2)}, {vr(S+2*h,2)}, {vr(T,2)}")
                A(f"v_cvt_pk_bf16_f32 v{D+2*n+h}, v{S+2*h}, v{S+2*h+1}")
        A(f"s_nop 1\nv_permlane16_swap_b32 v{D}, v{D+2}\nv_permlane16_swap_b32 v{D+1}, v{D+3}")
        A(f"buffer_store_dwordx4 {vr(D,4)}, v13, {R4(SO)}, s{sC} offen {outaux}")
        if i<3: A(f"s_add_u32 s{sC}, s{sC}, 0x8000")
        if i==0: pad()
    if diag:
        stamp(9); A("s_waitcnt vmcnt(0)"); stamp(10); rstamp(15); flush(16,True)
    A("s_endpgm")
    if walk: A(PAD+"\ns_endpgm")
    for b in OOL: A(b)
    A("L_end:\ns_endpgm")
    A(f""".section .rodata,"a"
.p2align 6
.amdhsa_kernel {NAME}
  .amdhsa_next_free_vgpr 256
  .amdhsa_next_free_sgpr 96
  .amdhsa_accum_offset 256
  .amdhsa_group_segment_fixed_size 0
  .amdhsa_kernarg_size 48
  .amdhsa_user_sgpr_count 2
  .amdhsa_user_sgpr_kernarg_segment_ptr 1
  .amdhsa_system_sgpr_workgroup_id_x 1
.end_amdhsa_kernel""")
    txt=A.text()
    if walk:
        n=txt.count("@PAD@"); parts=txt.split("@PAD@")
        starts=[round(w*n/walk) for w in range(walk)]
        out=parts[0]
        for k in range(n):
            nxt="C_wret" if (k+1==n or k+1 in starts) else f"PAD{k+1}"
            out+=f"PAD{k}:\ns_cbranch_execz {nxt}"+parts[k+1]
        for w in range(walk): out=out.replace(f"@START{w}@",f"PAD{starts[w]}")
        txt=out
    return txt

if __name__=="__main__":
    import inspect
    p=argparse.ArgumentParser(); p.add_argument("-o")
    for k,v in inspect.signature(build).parameters.items():
        p.add_argument("--"+k,type=type(v.default),default=v.default)
    a=vars(p.parse_args()); o=a.pop("o")
    open(o,"w").write(build(**a))
```

```python
import sys, argparse
NAME="standalone__dense_activation_silu__prompt_kernel"
class Asm:
    def __init__(self): self.L=[]
    def __call__(self, s):
        for l in s.split("\n"): self.L.append(l)
    def text(self): return "\n".join(self.L)+"\n"
def vr(a,n): return f"v[{a}:{a+n-1}]"
def srd(A, d, b, nbytes):
    A(f"s_mov_b32 s{d}, s{b}\ns_and_b32 s{d+1}, s{b+1}, 0xffff\ns_mov_b32 s{d+2}, {nbytes}\ns_mov_b32 s{d+3}, 0x20000")
X_BYTES=2048*1024*2; W_BYTES=1024*3584*2; O_BYTES=2048*1024*2
H_OFF=0; P_OFF=24<<20; F_OFF=48<<20; T_OFF=64<<20
SX,SW1,SW2,SO,SD,SWS=16,20,24,28,32,36
sMt,sJ,sFt8,sFt,sLid,sXcd,sDt=40,41,42,43,44,45,63
OOB=0x7ffffff0
SPIN=1<<17
def R4(s): return f"s[{s}:{s+3}]"

def interleave(mf, rd):
    out=[]; k=0
    for m in mf:
        out.append(m)
        if k<len(rd): out.append(rd[k]); k+=1
    return out+rd[k:]
ORDER='ji'
def snake(JS,NI):
    JS=list(JS)
    if ORDER=='ij': return [(j,i) for i in range(NI) for j in (JS if i%2==0 else JS[::-1])]
    return [(j,(i if n%2==0 else NI-1-i)) for n,j in enumerate(JS) for i in range(NI)]

def build(diag=0, rot=1, pf1=0, pf2=1, pfc=1, outaux="sc1", pfa=13, dswz=0, w1aux="", xaux="", w2aux="", l1st=1, l2st=4, stag=1, l1epi=1, rmask=1, f3=9, skew2=1, pfb=0, stag2=1, remap=1, spa=0, spb=13, spn=4, ack=6, ldearly=1, pfi=0, w1s=6, sched=0, fch=6, pdelay=0, nb=4, clr0=0, dual=0, tlb=0, packfirst=1, spub=1, vpoll=0, hsi=12, hsglc='', cmask=1, cbase=1, walk=2, w2e=0, order='ji', esend=1, ldpos=0, fast=1):
    global ORDER; ORDER=order
    assert cbase+cmask<ack
    A=Asm(); OOL=[]
    tm='s_memrealtime' if diag>=3 else 's_memtime'
    def stamp(k):
        if diag: A(f"{tm} s[{64+2*k}:{65+2*k}]")
    def rstamp(k):
        if diag: A(f"s_memrealtime s[{64+2*k}:{65+2*k}]")
    def sstamp():
        if diag in (2,3): A(f"{tm} s[90:91]\ns_waitcnt lgkmcnt(0)\nv_writelane_b32 v254, s90, m0\ns_add_u32 m0, m0, 1")
    def flush(n, cons=False):
        if not diag: return
        if diag==5:
            ks=[6,8,9,1,2,4,5,10] if cons else [1,8,2,3,4,5]
            lab="DB_c" if cons else "DB_p"
            A(f"s_waitcnt lgkmcnt(0)\ns_and_b32 s60, s3, 3\ns_or_b32 s60, s60, s2\ns_cmp_eq_u32 s60, 0\ns_cbranch_scc0 {lab}\nv_lshlrev_b32 v1, 8, v2")
            for n_,k in enumerate(ks):
                A(f"s_sub_u32 s60, s{64+2*k}, s64\nv_mov_b32 v4, s60\nbuffer_store_dword v4, v1, {R4(SD)}, 0 offen offset:{4*(n_+(0 if cons else 8))} sc1")
            A(f"s_waitcnt vmcnt(0)\n{lab}:")
            return
        A(f"s_waitcnt lgkmcnt(0)\ns_lshl_b32 s60, s2, 3\ns_add_u32 s60, s60, s3\ns_lshl_b32 s60, s60, 8\ns_add_u32 s60, s60, {T_OFF}\nv_mov_b32 v1, 0")
        for k in range(n): A(f"v_mov_b32 v2, s{64+2*k}\nbuffer_store_dword v2, v1, {R4(SWS)}, s60 offen offset:{4*k}")
        if cons and diag>=2:
            A(f"v_and_b32 v1, 63, v0\nv_lshlrev_b32 v1, 2, v1\nv_mov_b32 v2, {OOB}\nv_cmp_gt_u32 vcc, 192, v1\ns_nop 1\nv_cndmask_b32 v1, v2, v1, vcc")
            A(f"buffer_store_dword v254, v1, {R4(SWS)}, s60 offen offset:64")
        A("s_waitcnt vmcnt(0)")
    PAD='@PAD@' if walk else 's_nop 0'
    def pad():
        if walk: A(PAD)
    def spin_tail(label):
        A(f"s_cmp_lt_u32 s58, {SPIN}\ns_cselect_b64 s[60:61], -1, 0\ns_and_b64 vcc, vcc, s[60:61]\ns_cbranch_scc1 {label}")
    WST=28672; WOFF=65536
    QS=5120 if remap else 4096
    CH=2*QS
    def physline(dst,g,tmp):
        if remap: A(f"v_add_u32 v{tmp}, 4, v{g}\nv_mul_u32_u24 v{tmp}, 37, v{tmp}\nv_lshrrev_b32 v{tmp}, 8, v{tmp}\nv_add_u32 v{tmp}, v{tmp}, v{g}\nv_lshlrev_b32 v{dst}, 7, v{tmp}")
        else: A(f"v_lshlrev_b32 v{dst}, 7, v{g}")
    def fragoffs(base):
        A("v_and_b32 v6, 7, v2\nv_lshlrev_b32 v6, 4, v6")
        for n in range(4):
            A(f"v_lshrrev_b32 v5, 3, v2\nv_add_u32 v5, {8*n}, v5"); physline(base+n,5,4); A(f"v_add_u32 v{base+n}, v{base+n}, v6")
    A("""; Fused feed-forward: out = silu(x @ w1) @ w2, bf16 in/out, fp32 accumulate.
; @launch grid=(256,1,1) block=(512,1,1) lds=151552""")
    A('.amdgcn_target "amdgcn-amd-amdhsa--gfx950"\n.text')
    A(f".globl {NAME}\n.p2align 8\n.type {NAME},@function\n{NAME}:")
    A("s_load_dwordx8 s[4:11], s[0:1], 0\ns_load_dwordx4 s[12:15], s[0:1], 32")
    A("s_cmp_ge_u32 s2, 256\ns_cbranch_scc1 L_end")
    stamp(0); rstamp(14)
    if fast and pfc:
        A(f"s_getpc_b64 s[54:55]\nC_pc:\nv_lshlrev_b32 v3, 7, v0\ns_sub_u32 s54, s54, C_pc-{NAME}\ns_subb_u32 s55, s55, 0")
        A(f"v_min_u32 v3, L_end-{NAME}, v3\nv_lshrrev_b32 v1, 6, v0\nglobal_load_dword v255, v3, s[54:55]\nv_and_b32 v2, 63, v0")
    else: A("v_lshrrev_b32 v1, 6, v0\nv_and_b32 v2, 63, v0")
    A(f"v_readfirstlane_b32 s3, v1\ns_and_b32 s{sXcd}, s2, 7\ns_lshr_b32 s46, s2, 3")
    dec1=f"s_lshr_b32 s{sMt}, s{sXcd}, 1\ns_lshl_b32 s{sMt}, s{sMt}, 2\ns_lshr_b32 s47, s46, 3\ns_add_u32 s{sMt}, s{sMt}, s47\ns_and_b32 s{sJ}, s{sXcd}, 1"
    dec2=(f"s_and_b32 s{sFt8}, s46, 7\ns_lshl_b32 s{sFt}, s{sJ}, 3\ns_add_u32 s{sFt}, s{sFt}, s{sFt8}\n"
          f"s_lshl_b32 s{sLid}, s{sMt}, 4\ns_add_u32 s{sLid}, s{sLid}, s{sFt}\ns_xor_b32 s{sDt}, s{sJ}, 1\ns_mul_i32 s{sDt}, s{sDt}, {dswz}\ns_xor_b32 s{sDt}, s{sDt}, s{sFt8}")
    A(dec1); A(dec2)
    if fast and pf1==1:
        A("s_cmp_lt_u32 s3, 4\ns_cbranch_scc0 L_prod")
        A("v_lshrrev_b32 v15, 1, v0\ns_lshl_b32 s58, s2, 7\nv_add_u32 v15, s58, v15\nv_lshlrev_b32 v15, 7, v15\ns_waitcnt lgkmcnt(0)\nglobal_load_dword v253, v15, s[4:5]\ns_branch L_cons\nL_prod:")
    else:
        A("s_cmp_lt_u32 s3, 4\ns_cbranch_scc1 L_cons")
    sP,sKX,sKW,sLX,sLW,sRing,sCnt,sT0,sT1=46,47,48,49,50,51,52,53,54
    A(f"s_sub_u32 s{sP}, s3, 4")
    A("v_lshrrev_b32 v3, 3, v2\nv_and_b32 v4, 7, v2\nv_lshrrev_b32 v5, 4, v2\nv_xor_b32 v4, v4, v5\nv_lshlrev_b32 v4, 4, v4\nv_lshl_add_u32 v3, v3, 11, v4")
    A(f"s_lshl_b32 s{sT0}, s{sMt}, 18\ns_lshl_b32 s{sT1}, s{sP}, 16\ns_add_u32 s{sT0}, s{sT0}, s{sT1}\nv_add_u32 v8, s{sT0}, v3")
    A("v_xor_b32 v9, 64, v8\nv_add_u32 v9, 0x4000, v9\nv_add_u32 v10, 0x8000, v8\nv_add_u32 v11, 0x8000, v9")
    if not rot: A(f"s_mov_b32 s{sKX}, 0\ns_mov_b32 s{sKW}, 0")
    if rot:
        if rot in (1,2,4,5,6,7,8):
            A(f"s_lshr_b32 s{sT0}, s{sXcd}, 1\ns_lshl_b32 s{sT1}, s{sJ}, 1\ns_add_u32 s{sT0}, s{sT0}, s{sT1}\ns_and_b32 s{sT0}, s{sT0}, 3\ns_lshl_b32 s{sT0}, s{sT0}, 2")
            if rot==4: A(f"s_and_b32 s{sT0}, s{sT0}, 8")
        else: A(f"s_mov_b32 s{sT0}, 0")
        if rot>=5: A(f"s_mov_b32 s62, s{sT0}\ns_mov_b32 s60, 0\ns_mov_b32 s61, 0")
        if rot in (7,8): A(f"s_and_b32 s{sT1}, s{sMt}, 1\ns_lshl_b32 s{sT1}, s{sT1}, {rot-7}\ns_add_u32 s{sT0}, s{sT0}, s{sT1}")
        elif rot>=2: A(f"s_and_b32 s{sT1}, s{sMt}, 3\ns_add_u32 s{sT0}, s{sT0}, s{sT1}")
        A(f"s_lshl_b32 s{sKX}, s{sT0}, 7\ns_mul_i32 s{sKW}, s{sT0}, {64*7168}")
    sRX=57
    A(f"s_lshl_b32 s{sLX}, s{sP}, 12\ns_mov_b32 s{sRX}, 0\ns_mov_b32 s{SX+2}, {X_BYTES}\ns_mov_b32 s{SX+3}, 0x20000")
    A(f"s_waitcnt lgkmcnt(0)\ns_mov_b32 s{SX}, s4\ns_and_b32 s{SX+1}, s5, 0xffff")
    def nextk(c):
        if rot in (7,8):
            A(f"s_add_u32 s{c}, s{c}, 1\ns_and_b32 s{sT1}, s{c}, 8\ns_cselect_b32 s{sT0}, 1, 0\ns_xor_b32 s{sT0}, s{sT0}, s{sMt}\ns_and_b32 s{sT0}, s{sT0}, 1\ns_lshl_b32 s{sT0}, s{sT0}, {rot-7}\ns_add_u32 s{sT0}, s{sT0}, s{c}\ns_and_b32 s{sT0}, s{sT0}, 7")
            A(f"s_add_u32 s{sT0}, s{sT0}, s{sT1}\ns_add_u32 s{sT0}, s{sT0}, s62\ns_and_b32 s{sT0}, s{sT0}, 15")
            return
        if rot==6:
            A(f"s_add_u32 s{c}, s{c}, 1\ns_and_b32 s{sT1}, s{c}, 8\ns_cselect_b32 s{sT0}, 3, 0\ns_xor_b32 s{sT0}, s{sT0}, s{sMt}\ns_and_b32 s{sT0}, s{sT0}, 3\ns_add_u32 s{sT0}, s{sT0}, s{c}\ns_and_b32 s{sT0}, s{sT0}, 7")
            A(f"s_add_u32 s{sT0}, s{sT0}, s{sT1}\ns_add_u32 s{sT0}, s{sT0}, s62\ns_and_b32 s{sT0}, s{sT0}, 15")
            return
        A(f"s_add_u32 s{c}, s{c}, 1\ns_add_u32 s{sT0}, s{c}, s{sMt}\ns_and_b32 s{sT0}, s{sT0}, 3\ns_and_b32 s{sT1}, s{c}, 12\ns_add_u32 s{sT0}, s{sT0}, s{sT1}\ns_add_u32 s{sT0}, s{sT0}, s62\ns_and_b32 s{sT0}, s{sT0}, 15")
    def issueW1():
        A(f"s_add_u32 m0, s{sRing}, s{sLW}\ns_add_u32 s{sRing}, s{sRing}, {WST}")
        for n in range(6):
            a,o=n>>1,n&1
            A(f"buffer_load_dwordx4 v{13+o}, {R4(SW1)}, s{sKW} offen offset:{a*128} {w1aux} lds")
            A(f"s_add_u32 m0, m0, {1024 if o==0 else (896 if a<2 else 1024+256)}")
            A("s_nop 0" if n else f"s_cmp_eq_u32 s{sRing}, {WST*3}\ns_cselect_b32 s{sRing}, 0, s{sRing}")
        A(f"buffer_load_dwordx4 v12, {R4(SW1)}, s{sKW} offen {w1aux} lds\ns_add_u32 s{sKW}, s{sKW}, {64*7168}")
        if rot>=5:
            nextk(60); A(f"s_mul_i32 s{sKW}, s{sT0}, {64*7168}\ns_add_u32 s{sKW}, s{sKW}, s59")
        elif rot: A(f"s_cmp_eq_u32 s{sKW}, s58\ns_cselect_b32 s{sKW}, s59, s{sKW}")
    def issueX():
        A(f"s_add_u32 m0, s{sRX}, s{sLX}\ns_add_u32 s{sRX}, s{sRX}, 16384")
        for n in range(4):
            A(f"buffer_load_dwordx4 v{8+n}, {R4(SX)}, s{sKX} offen {xaux} lds")
            if n<3: A("s_add_u32 m0, m0, 1024\n"+("s_nop 0" if n else f"s_and_b32 s{sRX}, s{sRX}, 0xffff"))
        if rot>=5:
            nextk(61); A(f"s_lshl_b32 s{sKX}, s{sT0}, 7")
        else: A(f"s_add_u32 s{sKX}, s{sKX}, 128\ns_and_b32 s{sKX}, s{sKX}, 2047")
    stamp(1)
    issueX()
    A(f"s_and_b32 s{sT0}, s{sFt8}, 1\ns_lshl_b32 s{sT1}, s{sT0}, 6")
    A("v_bfe_u32 v3, v2, 2, 3\nv_mul_u32_u24 v3, 7168, v3\nv_lshrrev_b32 v5, 5, v2\nv_and_b32 v4, 3, v2\nv_lshlrev_b32 v4, 4, v4")
    A(f"v_lshl_add_u32 v6, v5, 6, v3\nv_add3_u32 v13, v6, v4, s{sT1}\nv_xor_b32 v14, 32, v13\nv_add_u32 v14, {8*7168}, v14")
    A(f"s_xor_b32 s{sT0}, s{sT0}, 1\ns_mul_i32 s{sT0}, s{sT0}, 384\nv_lshrrev_b32 v3, 2, v2\nv_mul_u32_u24 v3, 7168, v3\nv_lshlrev_b32 v5, 5, v5\nv_xor_b32 v4, v4, v5\nv_add3_u32 v12, v3, v4, s{sT0}")
    A(f"s_mul_i32 s59, s{sP}, {16*7168}\ns_mul_i32 s{sT0}, s{sFt}, 448\ns_add_u32 s59, s59, s{sT0}\ns_add_u32 s{sKW}, s{sKW}, s59\ns_add_u32 s58, s59, {1024*7168}")
    A(f"s_mul_i32 s{sLW}, s{sP}, 7168\ns_add_u32 s{sLW}, s{sLW}, {WOFF}\ns_mov_b32 s{sRing}, {2*WST}")
    srd(A,SW1,6,W_BYTES)
    issueW1(); issueX(); issueW1()
    srd(A,SW2,8,W_BYTES); srd(A,SWS,14,0x10000000)
    if diag==5: srd(A,SD,12,256)
    sHp,sHalf=55,56
    if tlb:
        A(f"s_cmp_lt_u32 s2, {tlb}\ns_cbranch_scc0 P1_ntlb\ns_lshl_b32 s{sT0}, s{sP}, 21")
        A(f"s_add_u32 s4, s8, s{sT0}\ns_addc_u32 s5, s9, 0\ns_load_dword s0, s[4:5], 0")
        A(f"s_lshr_b32 s{sT1}, s{sT0}, 1\ns_add_u32 s4, s10, s{sT1}\ns_addc_u32 s5, s11, 0\ns_load_dword s0, s[4:5], 0")
        for b in (0, 8<<20, 16<<20, P_OFF, F_OFF):
            A(f"s_add_u32 s{sT1}, s{sT0}, {b}\ns_add_u32 s4, s14, s{sT1}\ns_addc_u32 s5, s15, 0\ns_load_dword s0, s[4:5], 0")
        A("P1_ntlb:")
    A(f"s_lshr_b32 s4, s{sLid}, 3\ns_lshl_b32 s4, s4, 10\ns_add_u32 s4, s4, {F_OFF+fch*128}\ns_add_u32 s4, s14, s4\ns_addc_u32 s5, s15, 0")
    A(f"s_lshl_b32 s6, s{sMt}, 4\ns_add_u32 s6, s12, s6\ns_addc_u32 s7, s13, 0")
    def spf():
        if pf2 not in (3,4): return
        for k in range(4): A(f"s_load_dword s12, s[8:9], {k*64}")
        A(f"s_add_u32 s13, s13, 1\ns_and_b32 s{sT0}, s13, 7\ns_cselect_b32 s{sT0}, 0, {131072-2048}\ns_add_u32 s{sT0}, s{sT0}, 256\ns_add_u32 s8, s8, s{sT0}\ns_addc_u32 s9, s9, 0")
    if pf2 in (3,4):
        A(f"s_lshl_b32 s12, s2, 2\ns_add_u32 s12, s12, s{sP}")
        A(f"s_lshr_b32 s{sT0}, s12, 6\ns_mul_i32 s13, s{sT0}, 7\ns_and_b32 s{sT0}, s{sT0}, 1")
        A(f"s_xor_b32 s{sT1}, s{sT0}, 1\ns_mul_i32 s{sT1}, s{sT1}, 6\ns_add_u32 s{sT1}, s{sT1}, s13\ns_lshl_b32 s{sT1}, s{sT1}, 16\ns_and_b32 s14, s12, 63\ns_lshl_b32 s14, s14, 10\ns_add_u32 s{sT1}, s{sT1}, s14")
        A(f"s_add_u32 s14, s8, s{sT1}\ns_addc_u32 s15, s9, 0")
        A(f"s_add_u32 s13, s13, s{sT0}\ns_lshl_b32 s13, s13, 16\ns_and_b32 s12, s12, 63\ns_lshl_b32 s12, s12, 11\ns_add_u32 s13, s13, s12\ns_add_u32 s8, s8, s13\ns_addc_u32 s9, s9, 0\ns_mov_b32 s13, 0")
    A(f"s_lshr_b32 s{sHp}, s{sP}, 1\ns_and_b32 s{sHalf}, s{sP}, 1")
    A("v_subrev_u32 v5, 3, v2\nv_mul_u32_u24 v3, 37, v5\nv_lshrrev_b32 v3, 8, v3\nv_mul_u32_u24 v4, 7, v3\nv_sub_u32 v4, v5, v4")
    if skew2==3: A(f"v_add_u32 v6, s{sMt}, v3\nv_and_b32 v6, 3, v6\nv_add_u32 v4, v6, v4\nv_subrev_u32 v6, 7, v4\nv_min_u32 v4, v4, v6")
    elif skew2: A(f"s_and_b32 s{sT0}, s{sMt}, 3\ns_mul_i32 s{sT0}, s{sT0}, {3-skew2}\nv_add_u32 v4, s{sT0}, v4\nv_subrev_u32 v6, 7, v4\nv_min_u32 v4, v4, v6")
    A("v_add_u32 v4, 1, v4")
    A("v_cmp_gt_u32 vcc, 3, v2\ns_nop 1\nv_cndmask_b32 v3, v3, v2, vcc\nv_cndmask_b32 v4, v4, 0, vcc")
    A(f"v_add_u32 v4, s{sFt8}, v4\nv_and_b32 v4, 7, v4\nv_and_b32 v6, 1, v4\nv_mul_u32_u24 v4, 7, v4\nv_lshl_add_u32 v4, v3, 1, v4\nv_add3_u32 v4, v4, v6, s{sHp}")
    A(f"s_and_b32 s{sT0}, s{sMt}, {3 if skew2 else 0}\nv_add_u32 v5, s{sT0}, v2\nv_and_b32 v5, 3, v5\nv_mul_u32_u24 v5, 14, v5\nv_add3_u32 v5, v5, 6, s{sHp}")
    A("v_cmp_gt_u32 vcc, 24, v2\ns_nop 1\nv_cndmask_b32 v4, v5, v4, vcc\nv_and_b32 v4, 63, v4")
    A(f"s_mul_i32 s{sT0}, s{sJ}, 56\nv_add_u32 v4, s{sT0}, v4")
    A(f"s_mul_i32 s{sT0}, s{sMt}, {112*CH}\ns_mul_i32 s{sT1}, s{sHalf}, {QS}\ns_add_u32 s{sT0}, s{sT0}, s{sT1}")
    A(f"v_mul_u32_u24 v20, {CH}, v4\nv_add_u32 v20, s{sT0}, v20")
    A(f"s_lshl_b32 s{sT0}, s{sHalf}, 15\ns_lshl_b32 s{sT1}, s{sHalf}, 13\nv_mov_b32 v5, s{sT0}\nv_mov_b32 v6, s{sT1}\nv_cndmask_b32 v5, v6, v5, vcc")
    A(f"v_lshl_add_u32 v21, v4, 16, v5\ns_lshl_b32 s{sT0}, s{sDt}, 8\nv_add_u32 v21, s{sT0}, v21")
    A("v_and_b32 v4, 3, v2\nv_bfe_u32 v5, v2, 4, 1\nv_lshlrev_b32 v6, 1, v5\nv_xor_b32 v4, v4, v6\nv_lshlrev_b32 v4, 4, v4")
    A("v_lshrrev_b32 v6, 5, v2\nv_lshl_add_u32 v4, v6, 6, v4")
    A("v_bfe_u32 v6, v2, 2, 3\nv_lshl_add_u32 v22, v6, 11, v4\nv_add_u32 v23, 0x4000, v22")
    A("v_lshl_add_u32 v24, v5, 13, v22\nv_add_u32 v25, 0x8000, v24")
    fragoffs(26)
    if diag==5: stamp(8)
    A("s_waitcnt vmcnt(11)")
    stamp(2)
    A("s_barrier")
    issueX()
    A(f"s_mov_b32 s{sCnt}, 0\ns_branch P1_in")
    A("P1_loop:\ns_waitcnt vmcnt(15)\ns_barrier\nP1_in:")
    issueW1(); issueX()
    if spub:
        A(f"s_lshl_b32 s{sT0}, s{sP}, 8\ns_add_u32 s{sT0}, s{sT0}, s{sCnt}\ns_cmp_eq_u32 s{sT0}, {512+ack+2}\ns_cbranch_scc0 P1_npub")
        A(f"s_and_b32 s0, s{sFt}, 3\ns_lshl_b32 s0, s0, 3\ns_lshl_b32 s0, 1, s0\ns_and_b32 s{sT0}, s{sFt}, 12\ns_atomic_or s0, s[6:7], s{sT0}\nP1_npub:")
    if hsi:
        assert pf2 not in (3,4)
        A(f"s_lshl_b32 s{sT0}, s{sP}, 8\ns_add_u32 s{sT0}, s{sT0}, s{sCnt}\ns_cmp_eq_u32 s{sT0}, {hsi}\ns_cbranch_scc0 P1_nh\ns_load_dwordx4 s[8:11], s[6:7], 0 {hsglc}\nP1_nh:")
    if pf2==4:
        spf()
        A(f"s_cmp_lt_u32 s{sCnt}, 3\ns_cbranch_scc0 P1_nspf")
        spf()
        A("P1_nspf:")
    if pf2==3:
        A(f"s_sub_u32 s{sT0}, s{sCnt}, {spa}\ns_cmp_lt_u32 s{sT0}, {spb-spa}\ns_cbranch_scc0 P1_nspf")
        spf()
        A("P1_nspf:")
    A(f"s_add_u32 s{sCnt}, s{sCnt}, 1\ns_cmp_lt_u32 s{sCnt}, 13\ns_cbranch_scc1 P1_loop")
    pad()
    A("s_waitcnt vmcnt(15)\ns_barrier")
    issueW1()
    sW,sH,sSlot,sLW2,sLH=47,48,51,50,49
    A(f"s_lshl_b32 s{sLH}, s{sP}, 12\ns_add_u32 s{sLW2}, s{sLH}, 65536\ns_mov_b32 s{sCnt}, 0\ns_mov_b32 s{sSlot}, 0")
    def issueW():
        A(f"s_add_u32 m0, s{sLW2}, s{sSlot}\ns_nop 0")
        for n in range(4):
            o,tb=n>>1,n&1
            A(f"buffer_load_dwordx4 v{22+o}, {R4(SW2)}, s{sW} offen offset:{tb*128} {w2aux} lds")
            if n<3: A(f"s_add_u32 m0, m0, {896 if tb==0 else 1024+128}\ns_nop 0")
    def issueH():
        A(f"s_add_u32 m0, s{sLH}, s{sSlot}\ns_nop 0")
        for n in range(4):
            A(f"buffer_load_dwordx4 v{26+n}, {R4(SWS)}, s{sH} offen sc1 lds")
            if n<3: A("s_add_u32 m0, m0, 1024\ns_nop 0")
    A(f"v_readlane_b32 s{sW}, v21, 0")
    A("s_waitcnt vmcnt(7)\ns_barrier")
    if not hsi: A(f"s_cmp_eq_u32 s{sP}, 0\ns_cbranch_scc0 P2_nh\ns_load_dwordx4 s[8:11], s[6:7], 0 glc\nP2_nh:")
    A("s_waitcnt vmcnt(0)\ns_barrier")
    def nextW(): A(f"s_add_u32 s{sCnt}, s{sCnt}, 1\ns_add_u32 s{sSlot}, s{sSlot}, 16384\nv_readlane_b32 s{sW}, v21, s{sCnt}\ns_nop 2")
    if w2e:
        A("s_branch P2_w0\nP2_w:"); nextW(); A("P2_w0:"); issueW()
        A(f"s_cmp_lt_u32 s{sCnt}, {w2e}\ns_cbranch_scc1 P2_w")
        A("s_barrier")
        pad()
        A("P2_w2:"); nextW(); issueW()
        A(f"s_cmp_lt_u32 s{sCnt}, 3\ns_cbranch_scc1 P2_w2")
    else:
        issueW()
        A("s_barrier")
        pad()
        A("P2_w:"); nextW(); issueW()
        A(f"s_cmp_lt_u32 s{sCnt}, 3\ns_cbranch_scc1 P2_w")
    A(f"s_cmp_eq_u32 s{sP}, 0\ns_cbranch_scc0 P2_hsd\ns_mov_b32 s58, 0\ns_branch P2_hsw")
    A("P2_hs:\ns_load_dwordx4 s[8:11], s[6:7], 0 glc\ns_add_u32 s58, s58, 1\nP2_hsw:\ns_waitcnt lgkmcnt(0)")
    A(f"s_and_b32 s8, s8, s9\ns_and_b32 s10, s10, s11\ns_and_b32 s8, s8, s10\ns_cmp_ge_u32 s58, {SPIN}\ns_cbranch_scc1 P2_hsd\ns_cmp_eq_u32 s8, 0x01010101\ns_cbranch_scc0 P2_hs\nP2_hsd:")
    A(f"s_lshr_b32 s59, s{sLid}, 3\ns_lshl_b32 s59, s59, 10\ns_add_u32 s59, s59, {F_OFF+fch*128}\ns_lshl_b32 s{sT0}, s{sFt8}, 2")
    A(f"v_mov_b32 v5, {OOB}\nv_mov_b32 v6, s{sT0}\nv_cmp_eq_u32 vcc, 0, v2\nv_and_b32 v3, 7, v2\nv_lshlrev_b32 v3, 2, v3\nv_cndmask_b32 v6, v5, v6, vcc\nv_mov_b32 v5, 1")
    A(f"v_readlane_b32 s{sH}, v20, 3\ns_waitcnt vmcnt(12)")
    stamp(3)
    A("s_barrier")
    stamp(6)
    A(f"s_cmp_eq_u32 s{sP}, 1\ns_cbranch_scc0 P2_nf\nbuffer_store_dword v5, v6, {R4(SWS)}, s59 offen sc1\ns_nop 1\nv_mov_b32 v5, 7\nP2_nf:")
    A(f"s_cmp_eq_u32 s{sP}, 0\ns_cbranch_scc1 P2_p0\ns_waitcnt vmcnt(0)\ns_branch P2_go\nP2_p0:\ns_mov_b32 s58, 0")
    if pdelay: A(f"s_mov_b32 s16, 0\nP2_dl:\ns_add_u32 s16, s16, 1\ns_cmp_lt_u32 s16, {pdelay}\ns_cbranch_scc1 P2_dl")
    stamp(7)
    if vpoll:
        A(f"P2_l1:\nbuffer_load_dword v4, v3, {R4(SWS)}, s59 offen sc1\ns_add_u32 s58, s58, 1\ns_waitcnt vmcnt(0)\nv_cmp_eq_u32 vcc, 0, v4")
        spin_tail("P2_l1")
    else:
        A("P2_l1:\ns_load_dwordx8 s[16:23], s[4:5], 0 glc\ns_add_u32 s58, s58, 1\ns_waitcnt lgkmcnt(0)")
        A("s_and_b64 s[16:17], s[16:17], s[18:19]\ns_and_b64 s[20:21], s[20:21], s[22:23]\ns_and_b64 s[16:17], s[16:17], s[20:21]\ns_and_b32 s16, s16, s17")
        A(f"s_cmp_ge_u32 s58, {SPIN}\ns_cbranch_scc1 P2_rdy\ns_bitcmp1_b32 s16, 0\ns_cbranch_scc0 P2_l1")
    A("P2_rdy:")
    if diag and diag!=5: stamp(9); A("s_mov_b32 s80, s58")
    A(f"s_mov_b32 m0, 49152\ns_mov_b32 s58, 0")
    A("P2_h3:")
    for n in range(4): A(f"buffer_load_dwordx4 v{26+n}, {R4(SWS)}, s{sH} offen sc1 lds\ns_add_u32 m0, m0, 1024\n"+("s_nop 0" if n<3 else f"s_add_u32 s{sH}, s{sH}, {QS}"))
    A("s_add_u32 s58, s58, 1\ns_cmp_lt_u32 s58, 4\ns_cbranch_scc1 P2_h3")
    A("P2_go:")
    pad()
    stamp(4)
    PL=f"buffer_load_dword v4, v3, {R4(SWS)}, s59 offen sc1"
    A(f"s_mov_b32 s{sCnt}, 4\ns_mov_b32 s57, 7")
    A("P2_loop:")
    A(f"v_readlane_b32 s{sW}, v21, s{sCnt}\nv_readlane_b32 s{sH}, v20, s{sCnt}")
    A(f"s_add_u32 s{sSlot}, s{sSlot}, 16384\ns_and_b32 s{sSlot}, s{sSlot}, 0xffff")
    A(f"s_cmp_eq_u32 s{sCnt}, 24\ns_cbranch_scc0 P2_a\nv_mov_b32 v22, v24\nv_mov_b32 v23, v25\nP2_a:")
    A("s_waitcnt vmcnt(16)\ns_barrier")
    assert l1epi==3 or sched==9
    A(f"s_lshl_b32 s{sT0}, s{sP}, 8\ns_add_u32 s{sT0}, s{sT0}, s{sCnt}\ns_cmp_eq_u32 s{sT0}, {256+l1st+5}\ns_cbranch_scc0 P2_nf2\nbuffer_store_dword v5, v6, {R4(SWS)}, s59 offen sc1\nP2_nf2:")
    A(f"s_cmp_eq_u32 s{sCnt}, 9\ns_cbranch_scc0 P2_np\n{PL}\nP2_np:")
    A(f"s_cmp_eq_u32 s{sCnt}, 10\ns_cbranch_scc0 P2_b")
    A("s_waitcnt vmcnt(8)\nv_cmp_gt_u32 vcc, s57, v4\ns_mov_b32 s58, 0\ns_nop 3\ns_cbranch_vccz P2_ok")
    A(f"P2_l2:\n{PL}\ns_add_u32 s58, s58, 1\ns_waitcnt vmcnt(0)\nv_cmp_gt_u32 vcc, s57, v4")
    spin_tail("P2_l2")
    A("P2_ok:\ns_mov_b32 s57, 7")
    A("P2_b:")
    pad()
    issueW(); issueH()
    if pf2==3:
        A("s_cmp_eq_u32 s13, 24\ns_cselect_b32 s8, s14, s8\ns_cselect_b32 s9, s15, s9\ns_cmp_lt_u32 s13, 28\ns_cbranch_scc0 P2_nspf")
        spf()
        A("P2_nspf:")
    A(f"s_add_u32 s{sCnt}, s{sCnt}, 1\ns_cmp_lt_u32 s{sCnt}, 28\ns_cbranch_scc1 P2_loop")
    A("s_waitcnt vmcnt(16)\ns_barrier\ns_waitcnt vmcnt(8)\ns_barrier\ns_waitcnt vmcnt(0)\ns_barrier")
    if diag: stamp(5); rstamp(15); flush(16)
    A("s_endpgm")
    A(".p2align 6\nL_cons:")
    ACC=16; F=[(128,144),(172,188)]
    vX0,vX1,vE,vO,vL=4,5,6,7,8; bX0,bE,bL=9,10,11
    sWm,sWf,sIt,sRg,sA,sB,sC=46,47,48,49,58,7,59
    sHA,sH3,sRX2,sClr,sPf=50,51,4,5,6
    vOwn,vT3,vH,vW=232,233,235,[236,237,238,239]
    if pfc and not fast:
        A(f"s_getpc_b64 s[54:55]\nC_pc:\ns_sub_u32 s54, s54, C_pc-{NAME}\ns_subb_u32 s55, s55, 0")
        A(f"v_lshlrev_b32 v3, 7, v0\nv_min_u32 v3, L_end-{NAME}, v3\nglobal_load_dword v255, v3, s[54:55]")
    if pf1==1 and not fast:
        A(f"v_and_b32 v15, 31, v2\nv_lshlrev_b32 v15, 7, v15\ns_lshl_b32 s{sA}, s2, 2\ns_add_u32 s{sA}, s{sA}, s3\ns_lshl_b32 s{sA}, s{sA}, 12")
    if pf1==3:
        A(f"v_and_b32 v15, 7, v2\nv_lshlrev_b32 v15, 7, v15\nv_bfe_u32 v14, v2, 3, 1\nv_lshl_add_u32 v15, v14, 11, v15\ns_lshl_b32 s{sA}, s2, 2\ns_add_u32 s{sA}, s{sA}, s3\ns_lshl_b32 s{sA}, s{sA}, 12\nv_mov_b32 v252, v15")
    if pf1==2:
        A(f"v_lshlrev_b32 v15, 7, v2\ns_lshr_b32 s{sA}, s2, 3\ns_lshl_b32 s{sA}, s{sA}, 2\ns_add_u32 s{sA}, s{sA}, s3\ns_lshl_b32 s{sA}, s{sA}, 13\ns_lshr_b32 s{sB}, s{sXcd}, 1\ns_lshl_b32 s{sB}, s{sB}, 20\ns_add_u32 s{sA}, s{sA}, s{sB}")
    A("s_waitcnt lgkmcnt(0)")
    if pf1 and not (fast and pf1==1):
        srd(A,SX,4,X_BYTES)
        A(f"buffer_load_dword v253, v15, {R4(SX)}, s{sA} offen")
        if pf1==3: srd(A,SW1,6,W_BYTES)
    if diag==5: stamp(6)
    A("s_setprio 1")
    A(f"s_lshr_b32 s{sWm}, s3, 1\ns_and_b32 s{sWf}, s3, 1")
    A("v_and_b32 v3, 15, v2\nv_lshrrev_b32 v12, 4, v2")
    A("v_lshrrev_b32 v13, 1, v3\nv_xor_b32 v13, v13, v12\nv_lshlrev_b32 v13, 4, v13")
    A(f"s_lshl_b32 s{sA}, s{sWm}, 13\nv_lshlrev_b32 v14, 7, v3\nv_add3_u32 v{bX0}, v13, v14, s{sA}")
    A("v_lshrrev_b32 v13, 1, v12\nv_mul_u32_u24 v13, 7168, v13\nv_bfe_u32 v15, v2, 2, 2\nv_lshl_add_u32 v13, v15, 6, v13\nv_and_b32 v15, 3, v2\nv_lshl_add_u32 v13, v15, 3, v13")
    A(f"v_and_b32 v14, 1, v12\nv_mul_u32_u24 v15, 1056, v14\ns_lshl_b32 s{sA}, s{sWf}, 9\ns_add_u32 s{sA}, s{sA}, {WOFF}\nv_add3_u32 v{bE}, v13, v15, s{sA}")
    A(f"v_mul_u32_u24 v15, 544, v14\nv_add_u32 v13, v13, v15\ns_lshl_b32 s{sA}, s{sWf}, 5\nv_xor_b32 v13, s{sA}, v13\nv_add_u32 v{bL}, {WOFF+6144}, v13")
    VF=248
    fragoffs(VF)
    A(f"v_add_u32 v{vE}, {2*WST}, v{bE}\nv_mov_b32 v{vX0}, v{bX0}\nv_add_u32 v{vL}, {2*WST}, v{bL}\nv_xor_b32 v{vO}, 32, v{vE}\nv_xor_b32 v{vX1}, 64, v{vX0}")
    srd(A,SO,10,O_BYTES); srd(A,SWS,14,0x10000000); srd(A,SW2,8,W_BYTES)
    if diag==5 or not spub: srd(A,SD,12,256)
    A("v_lshlrev_b32 v3, 4, v2")
    A(f"s_lshr_b32 s56, s{sLid}, 3\ns_lshl_b32 s56, s56, 10\ns_lshl_b32 s{sB}, s{sFt8}, 2\ns_add_u32 s56, s56, s{sB}\ns_add_u32 s56, s56, {F_OFF+fch*128}")
    A(f"v_mov_b32 v1, {OOB}\nv_cmp_eq_u32 vcc, 0, v2\ns_nop 1\nv_cndmask_b32 v1, v1, 0, vcc")
    A(f"s_andn2_b32 s57, s{sLid}, 7\ns_add_u32 s57, s57, s{sDt}\ns_lshl_b32 s57, s57, 2\ns_add_u32 s57, s57, s3\ns_mul_i32 s57, s57, {QS}\ns_add_u32 s57, s57, {P_OFF}")
    A(f"s_lshl_b32 s52, s{sWm}, 12\nv_add_u32 v{vH}, s52, v3")
    A("v_lshrrev_b32 v13, 5, v2\nv_lshlrev_b32 v13, 11, v13\nv_bfe_u32 v14, v2, 4, 1\nv_mul_u32_u24 v14, 288, v14\nv_add_u32 v13, v13, v14")
    A("v_bfe_u32 v15, v2, 2, 2\nv_lshl_add_u32 v13, v15, 6, v13\nv_and_b32 v15, 3, v2\nv_lshl_add_u32 v13, v15, 3, v13")
    A(f"s_lshl_b32 s52, s{sJ}, 1\ns_add_u32 s52, s52, s{sWf}\ns_lshl_b32 s52, s52, 9\ns_add_u32 s52, s52, 65536\nv_add_u32 v{vW[0]}, s52, v13")
    A(f"v_xor_b32 v{vW[1]}, 32, v{vW[0]}\nv_xor_b32 v{vW[2]}, 0x400, v{vW[0]}\nv_xor_b32 v{vW[3]}, 0x420, v{vW[0]}")
    A(f"s_add_u32 s62, s{sFt8}, s3\ns_and_b32 s62, s62, {rmask}\ns_add_u32 s62, s62, {l2st+5}")
    A(f"s_mul_i32 s{sHA}, s{sMt}, 112\ns_mul_i32 s{sH3}, s{sFt}, 7\ns_add_u32 s{sHA}, s{sHA}, s{sH3}\ns_and_b32 s52, s{sFt8}, 1")
    A(f"s_xor_b32 s53, s52, 1\ns_mul_i32 s53, s53, 6\ns_add_u32 s{sH3}, s{sHA}, s53\ns_add_u32 s{sHA}, s{sHA}, s52\ns_add_u32 s{sHA}, s{sHA}, s{sWf}")
    A(f"s_mul_i32 s52, s{sWm}, {QS}\ns_mul_i32 s{sHA}, s{sHA}, {CH}\ns_add_u32 s{sHA}, s{sHA}, s52\ns_mul_i32 s{sH3}, s{sH3}, {CH}\ns_add_u32 s{sH3}, s{sH3}, s52\ns_lshl_b32 s52, s{sWm}, 12")
    A(f"s_lshl_b32 s53, s{sWf}, 13\ns_add_u32 s52, s52, s53\nv_add_u32 v{vOwn}, s52, v3")
    A(f"v_bfe_u32 v13, v2, 4, 1\nv_lshlrev_b32 v13, 3, v13\nv_lshrrev_b32 v14, 5, v2\nv_lshl_add_u32 v13, v14, 1, v13\nv_bfe_u32 v14, v2, 3, 1\ns_lshl_b32 s52, s{sWf}, 2\nv_add3_u32 v13, v13, v14, s52")
    A("v_add_u32 v14, 16, v13\nv_and_b32 v15, 7, v2\nv_lshlrev_b32 v15, 4, v15")
    physline(vT3,13,12); physline(vT3+1,14,12)
    A(f"v_add_u32 v{vT3}, v{vT3}, v15\nv_add_u32 v{vT3+1}, v{vT3+1}, v15")
    A("v_mov_b32 v12, 1\ns_mov_b32 s52, 0xbfb8aa3b\ns_mov_b32 s53, 0xbfb8aa3b\ns_mov_b32 s54, 1.0\ns_mov_b32 s55, 1.0")
    for r in range(112): A(f"v_mov_b32 v{ACC+r}, 0")
    for r in range(4): A(f"v_mov_b32 v{244+r}, -1")
    def hook(it, body, name, reg=None):
        OOL.append(f"{name}:\n{body}\ns_branch {name}_b")
        return [f"s_cmp_eq_u32 s{reg or sIt}, {it}", f"s_cbranch_scc1 {name}\n{name}_b:"]
    def reads1(u, fs):
        X,W=F[fs]
        xs=[f"ds_read_b128 {vr(X+4*i,4)}, v{vX1 if u else vX0} offset:{i*2048}" for i in range(4)]
        ws=[]
        for j in range(7):
            a,o=(vL,0) if j==6 else ((vO if j&1 else vE),(j>>1)*2048)
            for hh in range(2): ws.append(f"ds_read_b64_tr_b16 {vr(W+4*j+2*hh,2)}, v{a} offset:{u*14336+o+hh*256}")
        return ws[0:2]+xs+ws[2:]
    def mf1(fs):
        X,W=F[fs]
        return [f"v_mfma_f32_16x16x32_bf16 {vr(ACC+(j*4+i)*4,4)}, {vr(W+4*j,4)}, {vr(X+4*i,4)}, {vr(ACC+(j*4+i)*4,4)}" for j,i in snake(range(7),4)]
    A(f"s_mov_b32 s{sIt}, 0\ns_mov_b32 s{sRg}, {2*WST}\ns_mov_b32 s{sRX2}, 0\ns_add_u32 s{sClr}, s3, s{sFt8}\ns_and_b32 s{sClr}, s{sClr}, {cmask}\ns_add_u32 s{sClr}, s{sClr}, {cbase}")
    A(f"s_mul_i32 s{sPf}, s3, {pfb}\ns_add_u32 s{sPf}, s{sPf}, {pfa}")
    if pf2==2: A(f"v_min_u32 v15, 55, v2\nv_lshlrev_b32 v15, 7, v15\ns_lshl_b32 s{sA}, s2, 2\ns_add_u32 s{sA}, s{sA}, s3\ns_mul_i32 s{sA}, s{sA}, 7168\nbuffer_load_dword v255, v15, {R4(SW2)}, s{sA} offen")
    if diag in (2,3): A("s_mov_b32 m0, 0")
    clr="\n".join([f"buffer_store_dwordx4 v[244:247], v{VF+i}, {R4(SWS)}, s57 offen sc1" for i in range(4)])
    clr=f"v_mov_b32 v13, 0\n{clr}\nbuffer_store_dword v13, v1, {R4(SWS)}, s56 offen sc1"
    if clr0: A(clr)
    if diag==5: stamp(8)
    if walk:
        A(f"s_cmp_ge_u32 s3, {walk}\ns_cbranch_scc1 C_walked\ns_waitcnt vmcnt({1 if pf1 else 0})\ns_mov_b64 exec, 0")
        for w in range(walk-1): A(f"s_cmp_eq_u32 s3, {w}\ns_cbranch_scc1 @START{w}@")
        A(f"s_branch @START{walk-1}@\nC_wret:\ns_mov_b64 exec, -1\nC_walked:")
    if diag==5: stamp(9)
    A("s_barrier")
    stamp(1)
    for l in reads1(0,0): A(l)
    A("s_waitcnt lgkmcnt(0)")
    A(".p2align 3\nC1_loop:")
    sstamp()
    ex=[f"s_add_u32 s{sRg}, s{sRg}, {WST}\ns_add_u32 s{sRX2}, s{sRX2}, 16384", f"s_cmp_eq_u32 s{sRg}, {WST*3}\ns_cselect_b32 s{sRg}, 0, s{sRg}",
        f"v_add_u32 v{vE}, s{sRg}, v{bE}\ns_and_b32 s{sRX2}, s{sRX2}, 0xffff", f"v_add_u32 v{vX0}, s{sRX2}, v{bX0}", f"v_add_u32 v{vL}, s{sRg}, v{bL}",
        f"v_xor_b32 v{vO}, 32, v{vE}", f"v_xor_b32 v{vX1}, 64, v{vX0}"]
    if not clr0: ex+=hook(f"s{sClr}" if stag else 2,clr,"H1_clr")
    for l in interleave(mf1(0), reads1(1,1)+ex): A(l)
    A("s_waitcnt lgkmcnt(0)\ns_barrier")
    pub=(f"s_cmp_eq_u32 s3, 0\ns_cbranch_scc0 H1_pub_b\ns_and_b32 s{sA}, s{sLid}, 3\ns_lshl_b32 s{sA}, s{sA}, 3\ns_lshl_b32 s{sA}, 1, s{sA}\nv_mov_b32 v13, s{sA}\n"
         f"s_andn2_b32 s{sA}, s{sLid}, 3\nv_lshlrev_b32 v14, 8, v2\nbuffer_atomic_or v13, v14, {R4(SD)}, s{sA} offen")
    ex=hook(ack,"s_waitcnt vmcnt(0)","H1_ack")+([] if spub else hook(ack+1,pub,"H1_pub"))
    if pf1==3:
        nl=(16-w1s)*64*56//1024
        ex+=hook(pfi,f"s_lshl_b32 s{sA}, s2, 2\ns_add_u32 s{sA}, s{sA}, s3\ns_mul_i32 s{sB}, s{sA}, {nl*128}\ns_add_u32 s{sB}, s{sB}, {w1s*64*7168}\ns_lshl_b32 s{sA}, s{sA}, 12\n"
                     f"v_min_u32 v15, {nl-1}, v2\nv_lshlrev_b32 v15, 7, v15\nbuffer_load_dword v255, v15, {R4(SW1)}, s{sB} offen\nbuffer_load_dword v253, v252, {R4(SX)}, s{sA} offen offset:1024","H1_pf1")
    if pf2==4:
        ex+=hook(f"s{sPf}",f"s_lshl_b32 s{sA}, s2, 2\ns_add_u32 s{sA}, s{sA}, s3\ns_lshr_b32 s{sB}, s{sA}, 6\ns_and_b32 s60, s{sB}, 1\ns_mul_i32 s{sB}, s{sB}, 7\n"
                     f"s_add_u32 s61, s{sB}, s60\ns_add_u32 s61, s61, 4\ns_lshl_b32 s61, s61, 16\ns_xor_b32 s60, s60, 1\ns_mul_i32 s60, s60, 6\ns_add_u32 s{sB}, s{sB}, s60\ns_lshl_b32 s{sB}, s{sB}, 16\n"
                     f"s_and_b32 s{sA}, s{sA}, 63\ns_lshl_b32 s60, s{sA}, 11\ns_add_u32 s61, s61, s60\ns_lshl_b32 s60, s{sA}, 10\ns_add_u32 s{sB}, s{sB}, s60\n"
                     f"v_and_b32 v15, 15, v2\nv_lshlrev_b32 v15, 7, v15\nv_and_b32 v14, 7, v2\nv_lshlrev_b32 v14, 7, v14\n"
                     f"buffer_load_dword v255, v15, {R4(SW2)}, s61 offen\nbuffer_load_dword v253, v14, {R4(SW2)}, s{sB} offen","H1_pf")
    if pf2==1:
        ex+=hook(f"s{sPf}",f"v_min_u32 v15, 55, v2\nv_lshlrev_b32 v15, 7, v15\ns_lshl_b32 s{sA}, s2, 2\ns_add_u32 s{sA}, s{sA}, s3\ns_mul_i32 s{sA}, s{sA}, 7168\nbuffer_load_dword v255, v15, {R4(SW2)}, s{sA} offen","H1_pf")
    ex+=([PAD] if walk else [])+[f"s_add_u32 s{sIt}, s{sIt}, 1", f"s_cmp_lt_u32 s{sIt}, 16"]
    x=interleave(mf1(1), reads1(0,0)+ex)
    if x[-1].startswith("v_mfma"):
        for l in x[:-1]: A(l)
        A("s_waitcnt lgkmcnt(0)"); A(x[-1])
    else:
        for l in x: A(l)
        A("s_waitcnt lgkmcnt(0)")
    A("s_cbranch_scc1 C1_loop")
    stamp(2)
    T=216
    def silu(a, b, D):
        t=T; src=[a,a+2,b,b+2]
        for r in range(4): A(f"v_pk_mul_f32 {vr(t+2*r,2)}, s[52:53], {vr(src[r],2)}")
        for r in range(8): A(f"v_exp_f32 v{t+r}, v{t+r}")
        for r in range(4): A(f"v_pk_add_f32 {vr(t+2*r,2)}, s[54:55], {vr(t+2*r,2)}")
        for r in range(8): A(f"v_rcp_f32 v{t+r}, v{t+r}")
        for r in range(4): A(f"v_pk_mul_f32 {vr(t+2*r,2)}, {vr(t+2*r,2)}, {vr(src[r],2)}")
        for r in range(4): A(f"v_cvt_pk_bf16_f32 v{D+r}, v{t+2*r}, v{t+2*r+1}")
    def gst(D,i): return f"buffer_store_dwordx4 {vr(D,4)}, v{VF+i}, {R4(SWS)}, s{sHA} offen sc1"
    FLAG="s_nop 0"
    DL=[160,128,144]; D3=224
    for L in range(3):
        for i in range(4):
            D=DL[L]+4*i
            if i%2==0: pad()
            silu(ACC+((2*L)*4+i)*4, ACC+((2*L+1)*4+i)*4, D)
            if L==0 or (L==2 and l1epi>=2) or (L==1 and i>=nb and l1epi): A(gst(D,i))
            A(f"ds_write_b128 v{vOwn}, {vr(D,4)} offset:{L*16384+i*1024}")
            if L==1 and i==nb-1:
                stamp(11); A("s_waitcnt vmcnt(0)"); stamp(12)
                A(f"s_add_u32 s{sHA}, s{sHA}, {2*CH}\ns_waitcnt lgkmcnt(0)\ns_barrier")
                if l1epi:
                    for k in range(nb): A(gst(128+4*k,k))
        if L==1 and l1epi: A(f"s_add_u32 s{sHA}, s{sHA}, {2*CH}")
    F2=[(160,176),(192,208)]
    def rdH(X,slot,u): return [f"ds_read_b128 {vr(X+4*i,4)}, v{vH} offset:{slot*16384+u*8192+i*1024}" for i in range(4)]
    def rdW(W,slot,u,js): return [f"ds_read_b64_tr_b16 {vr(W+4*n+2*hh,2)}, v{vW[j]} offset:{slot*16384+(4*u+2*hh)*2048}" for n,j in enumerate(js) for hh in range(2)]
    def reads2(slot,u,fs):
        X,W=F2[fs]; ws=rdW(W,slot,u,range(4)); return ws[0:2]+rdH(X,slot,u)+ws[2:]
    def mfm(X,W,js,zero=False,w0=0):
        return [f"v_mfma_f32_16x16x32_bf16 {vr(ACC+(j*4+i)*4,4)}, {vr(W+4*(j-w0),4)}, {vr(X+4*i,4)}, {'0' if zero else vr(ACC+(j*4+i)*4,4)}" for j,i in snake(js,4)]
    def mf2(fs,zero=False): return mfm(F2[fs][0],F2[fs][1],range(4),zero)
    for l in reads2(0,0,0): A(l)
    for ip in range(2):
        D=D3+4*ip; a=ACC+(24+2*ip)*4
        if ip==0: pad()
        silu(a,a+4,D)
        A(f"s_nop 1\nv_permlane16_swap_b32 v{D}, v{D+2}\nv_permlane16_swap_b32 v{D+1}, v{D+3}")
        if l1epi>=3: A(f"buffer_store_dwordx4 {vr(D,4)}, v{vT3+ip}, {R4(SWS)}, s{sH3} offen sc1")
    A(f"v_mov_b32 v12, {7 if l1epi==3 else 3}\ns_mov_b32 s{sIt}, 0")
    stamp(3); stamp(4)
    sstamp()
    A("s_waitcnt lgkmcnt(0)")
    for l in interleave(mf2(0,True), reads2(0,1,1)+([PAD] if walk else [])): A(l)
    A("s_branch C2_in")
    dw={}; dws={}
    t3st=[f"buffer_store_dwordx4 {vr(D3+4*ip,4)}, v{vT3+ip}, {R4(SWS)}, s{sH3} offen sc1" for ip in range(2)]
    ADV=f"\ns_add_u32 s{sHA}, s{sHA}, {2*CH}"
    L1s=[gst(128+4*i,i) for i in range(4)]; L2s=[gst(144+4*i,i) for i in range(4)]
    F3=f"s_waitcnt vmcnt(0)\n{FLAG}"; F7=f"v_mov_b32 v12, 7\ns_waitcnt vmcnt(0)\n{FLAG}"
    J="\n".join
    if sched==1:
        dw[(0,1)]=J(L1s[:2]); dw[(1,0)]=J(L1s[2:])+ADV; dw[(1,1)]=J(L2s[:2]); dw[(2,0)]=J(L2s[2:]); dw[(2,1)]=J(t3st); dw[(4,0)]=F7
    elif sched==2:
        dw[(0,1)]=J(L1s[:2]); dw[(1,0)]=J(L1s[2:])+ADV; dw[(3,0)]=F3
        dw[(3,1)]=L2s[0]; dw[(4,0)]=L2s[1]; dw[(4,1)]=L2s[2]; dw[(5,0)]=L2s[3]; dw[(5,1)]=t3st[0]; dw[(6,0)]=t3st[1]; dw[(10,0)]=F7
    elif sched==3:
        dw[(0,1)]=L1s[0]; dw[(1,0)]=L1s[1]; dw[(1,1)]=L1s[2]; dw[(2,0)]=L1s[3]+ADV; dw[(3,1)]=F3
        dw[(4,0)]=L2s[0]; dw[(4,1)]=L2s[1]; dw[(5,0)]=L2s[2]; dw[(5,1)]=L2s[3]; dw[(6,0)]=t3st[0]; dw[(6,1)]=t3st[1]; dw[(11,0)]=F7
    elif sched==4:
        dw[(0,1)]=J(L1s)+ADV; dw[(1,1)]=J(L2s); dw[(2,1)]=J(t3st); dw[(4,0)]=F7
    elif sched==9:
        dw[(1,1)]=F7
    elif sched==5:
        dw[(0,1)]=J(L2s[:2]); dw[(1,0)]=J(L2s[2:]); dw[(1,1)]=J(t3st); dw[(3,1)]=F7
    else:
        if not l1epi:
            dw[(l1st,0)]=gst(128,0)+"\n"+gst(132,1); dw[(l1st,1)]=gst(136,2)+"\n"+gst(140,3)+f"\ns_add_u32 s{sHA}, s{sHA}, {2*CH}"
            dw[(l1st+2,1)]=f"s_waitcnt vmcnt(0)\n{FLAG}"
        else:
            dw[(l1st,1)]=f"s_waitcnt vmcnt(0)\n{FLAG}"
        if l1epi>=2:
            if l1epi==2: dw[(l2st,0)]="\n".join(t3st)
            if l1epi==2: dw[(f3,1)]=f"v_mov_b32 v12, 7\ns_waitcnt vmcnt(0)\n{FLAG}"
        elif not stag2:
            dw[(l2st,0)]=gst(144,0)+"\n"+gst(148,1); dw[(l2st+1,0)]=gst(152,2)+"\n"+gst(156,3)+"\nv_mov_b32 v12, 7"
            dw[(l2st+2,0)]="\n".join(t3st)
            dw[(l2st+5,1)]=f"s_waitcnt vmcnt(0)\n{FLAG}"
        else:
            dw[(f3,1)]=f"v_mov_b32 v12, 7\ns_waitcnt vmcnt(0)\n{FLAG}"
            body=[gst(144+4*i,i) for i in range(4)]+t3st
            o="H2_st:\n"
            for n,b in enumerate(body):
                o+=f"s_cmp_eq_u32 s62, {5-n}\ns_cbranch_scc0 H2_st{n}\n{b}\nH2_st{n}:\n"
            o+="s_setpc_b64 s[54:55]"
            OOL.append(o)
    def hooks2(slot,u):
        ex=[]
        for (q,uu),body in sorted(dw.items()):
            if q%4==slot and uu==u: ex+=hook(q//4,body,f"H2_{q}_{uu}")
        if stag2 and l1epi<2 and u==0 and not sched:
            ex+=["s_sub_u32 s62, s62, 1\ns_cmp_lt_u32 s62, 6", f"s_cbranch_scc1 H2_go{slot}\nH2_ns{slot}:"]
            OOL.append(f"H2_go{slot}:\ns_call_b64 s[54:55], H2_st\ns_branch H2_ns{slot}")
        assert len(ex)<=4, (slot,u,ex)
        return ex
    A(".p2align 3\nC2_loop:")
    for slot in range(4):
        sstamp()
        for l in interleave(mf2(0), reads2(slot,1,1)+hooks2(slot,0)+([PAD] if walk else [])): A(l)
        if slot==0: A("C2_in:")
        A("s_waitcnt lgkmcnt(0)\ns_barrier")
        ex=hooks2(slot,1)
        if slot==3: ex+=[f"s_add_u32 s{sIt}, s{sIt}, 1", f"s_cmp_lt_u32 s{sIt}, 6"]
        x=interleave(mf2(1), reads2((slot+1)&3,0,0)+ex)
        if x[-1].startswith("v_mfma"):
            for l in x[:-1]: A(l)
            A("s_waitcnt lgkmcnt(0)"); A(x[-1])
        else:
            for l in x: A(l)
            A("s_waitcnt lgkmcnt(0)")
    A("s_cbranch_scc1 C2_loop")
    stamp(13)
    if diag: A("s_waitcnt lgkmcnt(0)")
    G=[dict(H=[160,80],W=[184,96]), dict(H=[192,104],W=[208,216])]
    def rdS(g,slot,js,us=(0,1)):
        o=[]
        for u in us:
            w=rdW(G[g]['W'][u],slot,u,js); o+=w[0:2]+rdH(G[g]['H'][u],slot,u)+w[2:]
        return o
    def mfS(g,js): return mfm(G[g]['H'][0],G[g]['W'][0],js,w0=js[0])+mfm(G[g]['H'][1],G[g]['W'][1],js,w0=js[0])
    for l in rdS(0,0,(2,3),(1,)): A(l)
    pad()
    A("s_barrier")
    m=mfS(0,(2,3)); r=rdS(1,1,(2,3))
    x=interleave(m[:8], r[:8])
    for l in x: A(l)
    A("s_waitcnt lgkmcnt(8)")
    for l in interleave(m[8:], r[8:]): A(l)
    for q in (1,2):
        if q==2: pad()
        A("s_waitcnt lgkmcnt(0)\ns_barrier")
        for l in interleave(mfS(q&1,(2,3)), rdS((q+1)&1,q+1,(2,3))): A(l)
    A(f"s_mul_i32 s52, s{sJ}, {-2*32*QS}\ns_add_u32 s52, s52, {32*QS}\ns_add_u32 s52, s52, s57\ns_mov_b32 s53, -2")
    sn=[]
    for i in range(4):
        D=128+4*i; t=[]
        for n,j in enumerate((2,3)):
            S=ACC+(j*4+i)*4
            t+= [f"v_cvt_pk_bf16_f32 v{D+2*n}, v{S}, v{S+1}", f"v_cvt_pk_bf16_f32 v{D+2*n+1}, v{S+2}, v{S+3}"]
        t+=[f"v_min_u32 v{D+r}, s53, v{D+r}" for r in range(4)]
        t.append(f"buffer_store_dwordx4 {vr(D,4)}, v{VF+i}, {R4(SWS)}, s52 offen sc1")
        sn.append(t)
    A("s_waitcnt lgkmcnt(0)")
    if esend:
        g=G[1]; r=rdS(0,0,(0,1)); k=0
        for i in range(4):
            for u,j in ((0,2),(0,3),(1,3),(1,2)):
                A(f"v_mfma_f32_16x16x32_bf16 {vr(ACC+(j*4+i)*4,4)}, {vr(g['W'][u]+4*(j-2),4)}, {vr(g['H'][u]+4*i,4)}, {vr(ACC+(j*4+i)*4,4)}")
                A(r[k]); k+=1
            if i>=1:
                for l in sn[i-1]: A(l)
        stamp(5)
        pad()
        A("s_waitcnt lgkmcnt(0)")
        m=mfS(0,(0,1)); r=rdS(1,1,(0,1))
        for n,mm_ in enumerate(m):
            A(mm_); A(r[n])
            if n==2:
                for l in sn[3]: A(l)
    else:
        for l in interleave(mfS(1,(2,3)), rdS(0,0,(0,1))): A(l)
        stamp(5)
        pad()
        snd=sum(sn,[])
        A("s_waitcnt lgkmcnt(0)")
        m=mfS(0,(0,1)); r=rdS(1,1,(0,1))
        k=0
        for n,mm_ in enumerate(m):
            A(mm_); A(r[n])
            if packfirst and n==1:
                A("s_nop 3")
                while k<len(snd): A(snd[k]); k+=1
            if n>=3:
                for _ in range(3):
                    if k<len(snd): A(snd[k]); k+=1
        while k<len(snd): A(snd[k]); k+=1
    if diag!=5: stamp(6)
    RB=144 if dual else 80; RB2=224
    def LDs(b): return [f"buffer_load_dwordx4 {vr(b+4*i,4)}, v{VF+i}, {R4(SWS)}, s57 offen sc1" for i in range(4)]
    LD=LDs(RB)
    for q in (1,2):
        pad()
        A("s_waitcnt lgkmcnt(0)")
        x=interleave(mfS(q&1,(0,1)), rdS((q+1)&1,q+1,(0,1)))
        if dual==q:
            for n in range(4): x.insert(2+3*n+n,LD[n])
        for l in x: A(l)
    A("s_waitcnt lgkmcnt(0)")
    adr=["v_and_b32 v13, 15, v2","v_lshlrev_b32 v13, 11, v13","v_bfe_u32 v14, v2, 4, 1","v_lshl_add_u32 v13, v14, 5, v13","v_lshrrev_b32 v14, 5, v2","v_lshl_add_u32 v13, v14, 4, v13",
         f"s_lshl_b32 s{sC}, s{sMt}, 1\ns_add_u32 s{sC}, s{sC}, s{sWm}", f"s_lshl_b32 s{sC}, s{sC}, 17\ns_lshl_b32 s52, s{sDt}, 8", f"s_add_u32 s{sC}, s{sC}, s52\ns_lshl_b32 s52, s{sJ}, 7",
         f"s_add_u32 s{sC}, s{sC}, s52\ns_lshl_b32 s52, s{sWf}, 6", f"s_add_u32 s{sC}, s{sC}, s52\ns_mov_b32 s58, 0"]
    def chk():
        A(f"v_max3_u32 v14, v{RB}, v{RB+1}, v{RB+2}")
        for r in range(3,15,2): A(f"v_max3_u32 v14, v14, v{RB+r}, v{RB+r+1}")
        A(f"v_max_u32 v14, v14, v{RB+15}\nv_cmp_eq_u32 vcc, -1, v14")
    if dual:
        for l in interleave(mfS(1,(0,1)), LDs(80)+adr): A(l)
        A("s_waitcnt vmcnt(4)"); chk()
        A("s_nop 4\ns_cbranch_vccz C3_ok\ns_waitcnt vmcnt(0)")
        for r in range(16): A(f"v_mov_b32 v{RB+r}, v{80+r}")
    else:
        for l in interleave(mfS(1,(0,1)), adr[:ldpos]+LD+adr[ldpos:]): A(l)
    pad()
    A("s_branch C3_chk")
    A("C3_poll:")
    for l in LD: A(l)
    A("C3_chk:\ns_add_u32 s58, s58, 1\ns_waitcnt vmcnt(0)")
    chk()
    spin_tail("C3_poll")
    A("C3_ok:")
    stamp(7)
    if diag!=5: stamp(8)
    A("s_mov_b32 s53, 0xffff0000")
    for i in range(4):
        D=128+4*i
        for n in range(2):
            S=ACC+(n*4+i)*4
            for h in range(2):
                Rr=RB+4*i+2*n+h
                A(f"v_lshlrev_b32 v{T}, 16, v{Rr}\nv_and_b32 v{T+1}, s53, v{Rr}\nv_pk_add_f32 {vr(S+2*h,2)}, {vr(S+2*h,2)}, {vr(T,2)}")
                A(f"v_cvt_pk_bf16_f32 v{D+2*n+h}, v{S+2*h}, v{S+2*h+1}")
        A(f"s_nop 1\nv_permlane16_swap_b32 v{D}, v{D+2}\nv_permlane16_swap_b32 v{D+1}, v{D+3}")
        A(f"buffer_store_dwordx4 {vr(D,4)}, v13, {R4(SO)}, s{sC} offen {outaux}")
        if i<3: A(f"s_add_u32 s{sC}, s{sC}, 0x8000")
        if i==0: pad()
    if diag:
        if diag!=5: stamp(9)
        A("s_waitcnt vmcnt(0)"); stamp(10); rstamp(15); flush(16,True)
    A("s_endpgm")
    if walk: A(PAD+"\ns_endpgm")
    for b in OOL: A(b)
    A("L_end:\ns_endpgm")
    A(f""".section .rodata,"a"
.p2align 6
.amdhsa_kernel {NAME}
  .amdhsa_next_free_vgpr 256
  .amdhsa_next_free_sgpr 96
  .amdhsa_accum_offset 256
  .amdhsa_group_segment_fixed_size 0
  .amdhsa_kernarg_size 48
  .amdhsa_user_sgpr_count 2
  .amdhsa_user_sgpr_kernarg_segment_ptr 1
  .amdhsa_system_sgpr_workgroup_id_x 1
.end_amdhsa_kernel""")
    txt=A.text()
    if walk:
        n=txt.count("@PAD@"); parts=txt.split("@PAD@")
        starts=[round(w*n/walk) for w in range(walk)]
        out=parts[0]
        for k in range(n):
            nxt="C_wret" if (k+1==n or k+1 in starts) else f"PAD{k+1}"
            out+=f"PAD{k}:\ns_cbranch_execz {nxt}"+parts[k+1]
        for w in range(walk): out=out.replace(f"@START{w}@",f"PAD{starts[w]}")
        txt=out
    return txt

if __name__=="__main__":
    import inspect
    p=argparse.ArgumentParser(); p.add_argument("-o")
    for k,v in inspect.signature(build).parameters.items():
        p.add_argument("--"+k,type=type(v.default),default=v.default)
    a=vars(p.parse_args()); o=a.pop("o")
    open(o,"w").write(build(**a))
```

```python
import sys, argparse
NAME="standalone__dense_activation_silu__prompt_kernel"
class Asm:
    def __init__(self): self.L=[]
    def __call__(self, s):
        for l in s.split("\n"): self.L.append(l)
    def text(self): return "\n".join(self.L)+"\n"
def vr(a,n): return f"v[{a}:{a+n-1}]"
def srd(A, d, b, nbytes):
    A(f"s_mov_b32 s{d}, s{b}\ns_and_b32 s{d+1}, s{b+1}, 0xffff\ns_mov_b32 s{d+2}, {nbytes}\ns_mov_b32 s{d+3}, 0x20000")
X_BYTES=2048*1024*2; W_BYTES=1024*3584*2; O_BYTES=2048*1024*2
H_OFF=0; P_OFF=24<<20; F_OFF=48<<20; T_OFF=64<<20
SX,SW1,SW2,SO,SD,SWS=16,20,24,28,32,36
sMt,sJ,sFt8,sFt,sLid,sXcd,sDt=40,41,42,43,44,45,63
OOB=0x7ffffff0
SPIN=1<<17
def R4(s): return f"s[{s}:{s+3}]"

def interleave(mf, rd):
    out=[]; k=0
    for m in mf:
        out.append(m)
        if k<len(rd): out.append(rd[k]); k+=1
    return out+rd[k:]
ORDER='ji'
def snake(JS,NI):
    JS=list(JS)
    if ORDER=='ij': return [(j,i) for i in range(NI) for j in (JS if i%2==0 else JS[::-1])]
    return [(j,(i if n%2==0 else NI-1-i)) for n,j in enumerate(JS) for i in range(NI)]

def build(diag=0, rot=1, pf1=0, pf2=1, pfc=1, outaux="sc1", pfa=13, dswz=0, w1aux="", xaux="", w2aux="", l1st=1, l2st=4, stag=1, l1epi=1, rmask=1, f3=9, skew2=1, pfb=0, stag2=1, remap=1, spa=0, spb=13, spn=4, ack=6, ldearly=1, pfi=0, w1s=6, sched=0, fch=6, pdelay=0, nb=4, clr0=0, dual=0, tlb=0, packfirst=1, spub=1, vpoll=0, hsi=12, hsglc='', cmask=1, cbase=1, walk=2, w2e=0, order='ji', esend=1, ldpos=0, fast=1, la1=0, hd=4, la2=0, npoll=2, tearly=1):
    global ORDER; ORDER=order
    assert cbase+cmask<ack
    A=Asm(); OOL=[]
    tm='s_memrealtime' if diag>=3 else 's_memtime'
    def stamp(k):
        if diag: A(f"{tm} s[{64+2*k}:{65+2*k}]")
    def rstamp(k):
        if diag: A(f"s_memrealtime s[{64+2*k}:{65+2*k}]")
    def sstamp():
        if diag in (2,3): A(f"{tm} s[90:91]\ns_waitcnt lgkmcnt(0)\nv_writelane_b32 v254, s90, m0\ns_add_u32 m0, m0, 1")
    def flush(n, cons=False):
        if not diag: return
        if diag==5:
            ks=[6,8,9,1,2,4,5,10] if cons else [1,8,2,3,4,5]
            lab="DB_c" if cons else "DB_p"
            A(f"s_waitcnt lgkmcnt(0)\ns_and_b32 s60, s3, 3\ns_or_b32 s60, s60, s2\ns_cmp_eq_u32 s60, 0\ns_cbranch_scc0 {lab}\nv_lshlrev_b32 v1, 8, v2")
            for n_,k in enumerate(ks):
                A(f"s_sub_u32 s60, s{64+2*k}, s64\nv_mov_b32 v4, s60\nbuffer_store_dword v4, v1, {R4(SD)}, 0 offen offset:{4*(n_+(0 if cons else 8))} sc1")
            A(f"s_waitcnt vmcnt(0)\n{lab}:")
            return
        A(f"s_waitcnt lgkmcnt(0)\ns_lshl_b32 s60, s2, 3\ns_add_u32 s60, s60, s3\ns_lshl_b32 s60, s60, 8\ns_add_u32 s60, s60, {T_OFF}\nv_mov_b32 v1, 0")
        for k in range(n): A(f"v_mov_b32 v2, s{64+2*k}\nbuffer_store_dword v2, v1, {R4(SWS)}, s60 offen offset:{4*k}")
        if cons and diag>=2:
            A(f"v_and_b32 v1, 63, v0\nv_lshlrev_b32 v1, 2, v1\nv_mov_b32 v2, {OOB}\nv_cmp_gt_u32 vcc, 192, v1\ns_nop 1\nv_cndmask_b32 v1, v2, v1, vcc")
            A(f"buffer_store_dword v254, v1, {R4(SWS)}, s60 offen offset:64")
        A("s_waitcnt vmcnt(0)")
    PAD='@PAD@' if walk else 's_nop 0'
    def pad():
        if walk: A(PAD)
    def spin_tail(label):
        A(f"s_cmp_lt_u32 s58, {SPIN}\ns_cselect_b64 s[60:61], -1, 0\ns_and_b64 vcc, vcc, s[60:61]\ns_cbranch_scc1 {label}")
    WST=28672; WOFF=65536
    QS=5120 if remap else 4096
    CH=2*QS
    def physline(dst,g,tmp):
        if remap: A(f"v_add_u32 v{tmp}, 4, v{g}\nv_mul_u32_u24 v{tmp}, 37, v{tmp}\nv_lshrrev_b32 v{tmp}, 8, v{tmp}\nv_add_u32 v{tmp}, v{tmp}, v{g}\nv_lshlrev_b32 v{dst}, 7, v{tmp}")
        else: A(f"v_lshlrev_b32 v{dst}, 7, v{g}")
    def fragoffs(base):
        A("v_and_b32 v6, 7, v2\nv_lshlrev_b32 v6, 4, v6")
        for n in range(4):
            A(f"v_lshrrev_b32 v5, 3, v2\nv_add_u32 v5, {8*n}, v5"); physline(base+n,5,4); A(f"v_add_u32 v{base+n}, v{base+n}, v6")
    A("""; Fused feed-forward: out = silu(x @ w1) @ w2, bf16 in/out, fp32 accumulate.
; @launch grid=(256,1,1) block=(512,1,1) lds=151552""")
    A('.amdgcn_target "amdgcn-amd-amdhsa--gfx950"\n.text')
    A(f".globl {NAME}\n.p2align 8\n.type {NAME},@function\n{NAME}:")
    A("s_load_dwordx8 s[4:11], s[0:1], 0\ns_load_dwordx4 s[12:15], s[0:1], 32")
    A("s_cmp_ge_u32 s2, 256\ns_cbranch_scc1 L_end")
    stamp(0); rstamp(14)
    if fast and pfc:
        A(f"s_getpc_b64 s[54:55]\nC_pc:\nv_lshlrev_b32 v3, 7, v0\ns_sub_u32 s54, s54, C_pc-{NAME}\ns_subb_u32 s55, s55, 0")
        A(f"v_min_u32 v3, L_end-{NAME}, v3\nv_lshrrev_b32 v1, 6, v0\nglobal_load_dword v255, v3, s[54:55]\nv_and_b32 v2, 63, v0")
    else: A("v_lshrrev_b32 v1, 6, v0\nv_and_b32 v2, 63, v0")
    A(f"v_readfirstlane_b32 s3, v1\ns_and_b32 s{sXcd}, s2, 7\ns_lshr_b32 s46, s2, 3")
    dec1=f"s_lshr_b32 s{sMt}, s{sXcd}, 1\ns_lshl_b32 s{sMt}, s{sMt}, 2\ns_lshr_b32 s47, s46, 3\ns_add_u32 s{sMt}, s{sMt}, s47\ns_and_b32 s{sJ}, s{sXcd}, 1"
    dec2=(f"s_and_b32 s{sFt8}, s46, 7\ns_lshl_b32 s{sFt}, s{sJ}, 3\ns_add_u32 s{sFt}, s{sFt}, s{sFt8}\n"
          f"s_lshl_b32 s{sLid}, s{sMt}, 4\ns_add_u32 s{sLid}, s{sLid}, s{sFt}\ns_xor_b32 s{sDt}, s{sJ}, 1\ns_mul_i32 s{sDt}, s{sDt}, {dswz}\ns_xor_b32 s{sDt}, s{sDt}, s{sFt8}")
    A(dec1); A(dec2)
    if fast and pf1==1:
        A("s_cmp_lt_u32 s3, 4\ns_cbranch_scc0 L_prod")
        A("v_lshrrev_b32 v15, 1, v0\ns_lshl_b32 s58, s2, 7\nv_add_u32 v15, s58, v15\nv_lshlrev_b32 v15, 7, v15\ns_waitcnt lgkmcnt(0)\nglobal_load_dword v253, v15, s[4:5]\ns_branch L_cons\nL_prod:")
    else:
        A("s_cmp_lt_u32 s3, 4\ns_cbranch_scc1 L_cons")
    sP,sKX,sKW,sLX,sLW,sRing,sCnt,sT0,sT1=46,47,48,49,50,51,52,53,54
    A(f"s_sub_u32 s{sP}, s3, 4")
    A("v_lshrrev_b32 v3, 3, v2\nv_and_b32 v4, 7, v2\nv_lshrrev_b32 v5, 4, v2\nv_xor_b32 v4, v4, v5\nv_lshlrev_b32 v4, 4, v4\nv_lshl_add_u32 v3, v3, 11, v4")
    A(f"s_lshl_b32 s{sT0}, s{sMt}, 18\ns_lshl_b32 s{sT1}, s{sP}, 16\ns_add_u32 s{sT0}, s{sT0}, s{sT1}\nv_add_u32 v8, s{sT0}, v3")
    A("v_xor_b32 v9, 64, v8\nv_add_u32 v9, 0x4000, v9\nv_add_u32 v10, 0x8000, v8\nv_add_u32 v11, 0x8000, v9")
    if not rot: A(f"s_mov_b32 s{sKX}, 0\ns_mov_b32 s{sKW}, 0")
    if rot:
        if rot in (1,2,4,5,6,7,8):
            A(f"s_lshr_b32 s{sT0}, s{sXcd}, 1\ns_lshl_b32 s{sT1}, s{sJ}, 1\ns_add_u32 s{sT0}, s{sT0}, s{sT1}\ns_and_b32 s{sT0}, s{sT0}, 3\ns_lshl_b32 s{sT0}, s{sT0}, 2")
            if rot==4: A(f"s_and_b32 s{sT0}, s{sT0}, 8")
        else: A(f"s_mov_b32 s{sT0}, 0")
        if rot>=5: A(f"s_mov_b32 s62, s{sT0}\ns_mov_b32 s60, 0\ns_mov_b32 s61, 0")
        if rot in (7,8): A(f"s_and_b32 s{sT1}, s{sMt}, 1\ns_lshl_b32 s{sT1}, s{sT1}, {rot-7}\ns_add_u32 s{sT0}, s{sT0}, s{sT1}")
        elif rot>=2: A(f"s_and_b32 s{sT1}, s{sMt}, 3\ns_add_u32 s{sT0}, s{sT0}, s{sT1}")
        A(f"s_lshl_b32 s{sKX}, s{sT0}, 7\ns_mul_i32 s{sKW}, s{sT0}, {64*7168}")
    sRX=57
    A(f"s_lshl_b32 s{sLX}, s{sP}, 12\ns_mov_b32 s{sRX}, 0\ns_mov_b32 s{SX+2}, {X_BYTES}\ns_mov_b32 s{SX+3}, 0x20000")
    A(f"s_waitcnt lgkmcnt(0)\ns_mov_b32 s{SX}, s4\ns_and_b32 s{SX+1}, s5, 0xffff")
    def nextk(c):
        if rot in (7,8):
            A(f"s_add_u32 s{c}, s{c}, 1\ns_and_b32 s{sT1}, s{c}, 8\ns_cselect_b32 s{sT0}, 1, 0\ns_xor_b32 s{sT0}, s{sT0}, s{sMt}\ns_and_b32 s{sT0}, s{sT0}, 1\ns_lshl_b32 s{sT0}, s{sT0}, {rot-7}\ns_add_u32 s{sT0}, s{sT0}, s{c}\ns_and_b32 s{sT0}, s{sT0}, 7")
            A(f"s_add_u32 s{sT0}, s{sT0}, s{sT1}\ns_add_u32 s{sT0}, s{sT0}, s62\ns_and_b32 s{sT0}, s{sT0}, 15")
            return
        if rot==6:
            A(f"s_add_u32 s{c}, s{c}, 1\ns_and_b32 s{sT1}, s{c}, 8\ns_cselect_b32 s{sT0}, 3, 0\ns_xor_b32 s{sT0}, s{sT0}, s{sMt}\ns_and_b32 s{sT0}, s{sT0}, 3\ns_add_u32 s{sT0}, s{sT0}, s{c}\ns_and_b32 s{sT0}, s{sT0}, 7")
            A(f"s_add_u32 s{sT0}, s{sT0}, s{sT1}\ns_add_u32 s{sT0}, s{sT0}, s62\ns_and_b32 s{sT0}, s{sT0}, 15")
            return
        A(f"s_add_u32 s{c}, s{c}, 1\ns_add_u32 s{sT0}, s{c}, s{sMt}\ns_and_b32 s{sT0}, s{sT0}, 3\ns_and_b32 s{sT1}, s{c}, 12\ns_add_u32 s{sT0}, s{sT0}, s{sT1}\ns_add_u32 s{sT0}, s{sT0}, s62\ns_and_b32 s{sT0}, s{sT0}, 15")
    def issueW1(part=None):
        inc=[1024,896,1024,896,1024,1280]
        ns=range(7) if part is None else (range(hd) if part==0 else range(hd,7))
        if part!=1: A(f"s_add_u32 m0, s{sRing}, s{sLW}\ns_add_u32 s{sRing}, s{sRing}, {WST}")
        else: A("s_mov_b32 m0, s1\ns_nop 0")
        for n in ns:
            a,o=n>>1,n&1
            if n<6:
                A(f"buffer_load_dwordx4 v{13+o}, {R4(SW1)}, s{sKW} offen offset:{a*128} {w1aux} lds")
                if part==0 and n==hd-1: A(f"s_add_u32 s1, m0, {inc[n]}")
                else:
                    A(f"s_add_u32 m0, m0, {inc[n]}")
                    A("s_nop 0" if n else f"s_cmp_eq_u32 s{sRing}, {WST*3}\ns_cselect_b32 s{sRing}, 0, s{sRing}")
            else:
                A(f"buffer_load_dwordx4 v12, {R4(SW1)}, s{sKW} offen {w1aux} lds\ns_add_u32 s{sKW}, s{sKW}, {64*7168}")
                if rot>=5:
                    nextk(60); A(f"s_mul_i32 s{sKW}, s{sT0}, {64*7168}\ns_add_u32 s{sKW}, s{sKW}, s59")
                elif rot: A(f"s_cmp_eq_u32 s{sKW}, s58\ns_cselect_b32 s{sKW}, s59, s{sKW}")
    def issueX():
        A(f"s_add_u32 m0, s{sRX}, s{sLX}\ns_add_u32 s{sRX}, s{sRX}, 16384")
        for n in range(4):
            A(f"buffer_load_dwordx4 v{8+n}, {R4(SX)}, s{sKX} offen {xaux} lds")
            if n<3: A("s_add_u32 m0, m0, 1024\n"+("s_nop 0" if n else f"s_and_b32 s{sRX}, s{sRX}, 0xffff"))
        if rot>=5:
            nextk(61); A(f"s_lshl_b32 s{sKX}, s{sT0}, 7")
        else: A(f"s_add_u32 s{sKX}, s{sKX}, 128\ns_and_b32 s{sKX}, s{sKX}, 2047")
    stamp(1)
    issueX()
    A(f"s_and_b32 s{sT0}, s{sFt8}, 1\ns_lshl_b32 s{sT1}, s{sT0}, 6")
    A("v_bfe_u32 v3, v2, 2, 3\nv_mul_u32_u24 v3, 7168, v3\nv_lshrrev_b32 v5, 5, v2\nv_and_b32 v4, 3, v2\nv_lshlrev_b32 v4, 4, v4")
    A(f"v_lshl_add_u32 v6, v5, 6, v3\nv_add3_u32 v13, v6, v4, s{sT1}\nv_xor_b32 v14, 32, v13\nv_add_u32 v14, {8*7168}, v14")
    A(f"s_xor_b32 s{sT0}, s{sT0}, 1\ns_mul_i32 s{sT0}, s{sT0}, 384\nv_lshrrev_b32 v3, 2, v2\nv_mul_u32_u24 v3, 7168, v3\nv_lshlrev_b32 v5, 5, v5\nv_xor_b32 v4, v4, v5\nv_add3_u32 v12, v3, v4, s{sT0}")
    A(f"s_mul_i32 s59, s{sP}, {16*7168}\ns_mul_i32 s{sT0}, s{sFt}, 448\ns_add_u32 s59, s59, s{sT0}\ns_add_u32 s{sKW}, s{sKW}, s59\ns_add_u32 s58, s59, {1024*7168}")
    A(f"s_mul_i32 s{sLW}, s{sP}, 7168\ns_add_u32 s{sLW}, s{sLW}, {WOFF}\ns_mov_b32 s{sRing}, {2*WST}")
    srd(A,SW1,6,W_BYTES)
    if la1 or tearly: issueW1(0)
    else: issueW1(); issueX(); issueW1()
    srd(A,SW2,8,W_BYTES); srd(A,SWS,14,0x10000000)
    if diag==5: srd(A,SD,12,256)
    sHp,sHalf=55,56
    if tlb:
        A(f"s_cmp_lt_u32 s2, {tlb}\ns_cbranch_scc0 P1_ntlb\ns_lshl_b32 s{sT0}, s{sP}, 21")
        A(f"s_add_u32 s4, s8, s{sT0}\ns_addc_u32 s5, s9, 0\ns_load_dword s0, s[4:5], 0")
        A(f"s_lshr_b32 s{sT1}, s{sT0}, 1\ns_add_u32 s4, s10, s{sT1}\ns_addc_u32 s5, s11, 0\ns_load_dword s0, s[4:5], 0")
        for b in (0, 8<<20, 16<<20, P_OFF, F_OFF):
            A(f"s_add_u32 s{sT1}, s{sT0}, {b}\ns_add_u32 s4, s14, s{sT1}\ns_addc_u32 s5, s15, 0\ns_load_dword s0, s[4:5], 0")
        A("P1_ntlb:")
    A(f"s_lshr_b32 s4, s{sLid}, 3\ns_lshl_b32 s4, s4, 10\ns_add_u32 s4, s4, {F_OFF+fch*128}\ns_add_u32 s4, s14, s4\ns_addc_u32 s5, s15, 0")
    A(f"s_lshl_b32 s6, s{sMt}, 4\ns_add_u32 s6, s12, s6\ns_addc_u32 s7, s13, 0")
    def spf():
        if pf2 not in (3,4): return
        for k in range(4): A(f"s_load_dword s12, s[8:9], {k*64}")
        A(f"s_add_u32 s13, s13, 1\ns_and_b32 s{sT0}, s13, 7\ns_cselect_b32 s{sT0}, 0, {131072-2048}\ns_add_u32 s{sT0}, s{sT0}, 256\ns_add_u32 s8, s8, s{sT0}\ns_addc_u32 s9, s9, 0")
    if pf2 in (3,4):
        A(f"s_lshl_b32 s12, s2, 2\ns_add_u32 s12, s12, s{sP}")
        A(f"s_lshr_b32 s{sT0}, s12, 6\ns_mul_i32 s13, s{sT0}, 7\ns_and_b32 s{sT0}, s{sT0}, 1")
        A(f"s_xor_b32 s{sT1}, s{sT0}, 1\ns_mul_i32 s{sT1}, s{sT1}, 6\ns_add_u32 s{sT1}, s{sT1}, s13\ns_lshl_b32 s{sT1}, s{sT1}, 16\ns_and_b32 s14, s12, 63\ns_lshl_b32 s14, s14, 10\ns_add_u32 s{sT1}, s{sT1}, s14")
        A(f"s_add_u32 s14, s8, s{sT1}\ns_addc_u32 s15, s9, 0")
        A(f"s_add_u32 s13, s13, s{sT0}\ns_lshl_b32 s13, s13, 16\ns_and_b32 s12, s12, 63\ns_lshl_b32 s12, s12, 11\ns_add_u32 s13, s13, s12\ns_add_u32 s8, s8, s13\ns_addc_u32 s9, s9, 0\ns_mov_b32 s13, 0")
    A(f"s_lshr_b32 s{sHp}, s{sP}, 1\ns_and_b32 s{sHalf}, s{sP}, 1")
    A("v_subrev_u32 v5, 3, v2\nv_mul_u32_u24 v3, 37, v5\nv_lshrrev_b32 v3, 8, v3\nv_mul_u32_u24 v4, 7, v3\nv_sub_u32 v4, v5, v4")
    if skew2==3: A(f"v_add_u32 v6, s{sMt}, v3\nv_and_b32 v6, 3, v6\nv_add_u32 v4, v6, v4\nv_subrev_u32 v6, 7, v4\nv_min_u32 v4, v4, v6")
    elif skew2: A(f"s_and_b32 s{sT0}, s{sMt}, 3\ns_mul_i32 s{sT0}, s{sT0}, {3-skew2}\nv_add_u32 v4, s{sT0}, v4\nv_subrev_u32 v6, 7, v4\nv_min_u32 v4, v4, v6")
    A("v_add_u32 v4, 1, v4")
    A("v_cmp_gt_u32 vcc, 3, v2\ns_nop 1\nv_cndmask_b32 v3, v3, v2, vcc\nv_cndmask_b32 v4, v4, 0, vcc")
    A(f"v_add_u32 v4, s{sFt8}, v4\nv_and_b32 v4, 7, v4\nv_and_b32 v6, 1, v4\nv_mul_u32_u24 v4, 7, v4\nv_lshl_add_u32 v4, v3, 1, v4\nv_add3_u32 v4, v4, v6, s{sHp}")
    A(f"s_and_b32 s{sT0}, s{sMt}, {3 if skew2 else 0}\nv_add_u32 v5, s{sT0}, v2\nv_and_b32 v5, 3, v5\nv_mul_u32_u24 v5, 14, v5\nv_add3_u32 v5, v5, 6, s{sHp}")
    A("v_cmp_gt_u32 vcc, 24, v2\ns_nop 1\nv_cndmask_b32 v4, v5, v4, vcc\nv_and_b32 v4, 63, v4")
    A(f"s_mul_i32 s{sT0}, s{sJ}, 56\nv_add_u32 v4, s{sT0}, v4")
    A(f"s_mul_i32 s{sT0}, s{sMt}, {112*CH}\ns_mul_i32 s{sT1}, s{sHalf}, {QS}\ns_add_u32 s{sT0}, s{sT0}, s{sT1}")
    A(f"v_mul_u32_u24 v20, {CH}, v4\nv_add_u32 v20, s{sT0}, v20")
    A(f"s_lshl_b32 s{sT0}, s{sHalf}, 15\ns_lshl_b32 s{sT1}, s{sHalf}, 13\nv_mov_b32 v5, s{sT0}\nv_mov_b32 v6, s{sT1}\nv_cndmask_b32 v5, v6, v5, vcc")
    A(f"v_lshl_add_u32 v21, v4, 16, v5\ns_lshl_b32 s{sT0}, s{sDt}, 8\nv_add_u32 v21, s{sT0}, v21")
    A("v_and_b32 v4, 3, v2\nv_bfe_u32 v5, v2, 4, 1\nv_lshlrev_b32 v6, 1, v5\nv_xor_b32 v4, v4, v6\nv_lshlrev_b32 v4, 4, v4")
    A("v_lshrrev_b32 v6, 5, v2\nv_lshl_add_u32 v4, v6, 6, v4")
    A("v_bfe_u32 v6, v2, 2, 3\nv_lshl_add_u32 v22, v6, 11, v4\nv_add_u32 v23, 0x4000, v22")
    A("v_lshl_add_u32 v24, v5, 13, v22\nv_add_u32 v25, 0x8000, v24")
    fragoffs(26)
    if diag==5: stamp(8)
    if la1:
        A(f"s_mov_b32 s{sCnt}, -1\ns_branch P1_in")
        A(f"P1_loop:\ns_waitcnt vmcnt({4+hd})")
        if diag: A(f"s_cmp_eq_u32 s{sCnt}, 0\ns_cbranch_scc0 P1_ns"); stamp(2); A("P1_ns:")
        A("s_barrier\nP1_in:")
        issueW1(1); issueX(); issueW1(0)
    else:
        if tearly==1: issueW1(1); issueX(); issueW1()
        if tearly==2: issueW1(1); issueX(); issueW1(0)
        A(f"s_waitcnt vmcnt({4+hd if tearly==2 else 11})")
        stamp(2)
        A("s_barrier")
        if tearly==2: issueW1(1)
        issueX()
        A(f"s_mov_b32 s{sCnt}, 0\ns_branch P1_in")
        A("P1_loop:\ns_waitcnt vmcnt(15)\ns_barrier\nP1_in:")
        issueW1(); issueX()
    if spub:
        A(f"s_lshl_b32 s{sT0}, s{sP}, 8\ns_add_u32 s{sT0}, s{sT0}, s{sCnt}\ns_cmp_eq_u32 s{sT0}, {512+ack+2}\ns_cbranch_scc0 P1_npub")
        A(f"s_and_b32 s0, s{sFt}, 3\ns_lshl_b32 s0, s0, 3\ns_lshl_b32 s0, 1, s0\ns_and_b32 s{sT0}, s{sFt}, 12\ns_atomic_or s0, s[6:7], s{sT0}\nP1_npub:")
    if hsi:
        assert pf2 not in (3,4)
        A(f"s_lshl_b32 s{sT0}, s{sP}, 8\ns_add_u32 s{sT0}, s{sT0}, s{sCnt}\ns_cmp_eq_u32 s{sT0}, {hsi}\ns_cbranch_scc0 P1_nh\ns_load_dwordx4 s[8:11], s[6:7], 0 {hsglc}\nP1_nh:")
    if pf2==4:
        spf()
        A(f"s_cmp_lt_u32 s{sCnt}, 3\ns_cbranch_scc0 P1_nspf")
        spf()
        A("P1_nspf:")
    if pf2==3:
        A(f"s_sub_u32 s{sT0}, s{sCnt}, {spa}\ns_cmp_lt_u32 s{sT0}, {spb-spa}\ns_cbranch_scc0 P1_nspf")
        spf()
        A("P1_nspf:")
    A(f"s_add_u32 s{sCnt}, s{sCnt}, 1\ns_cmp_lt_u32 s{sCnt}, {14 if la1 else 13}\ns_cbranch_scc1 P1_loop")
    pad()
    A(f"s_waitcnt vmcnt({4+hd if la1 else 15})\ns_barrier")
    issueW1(1 if la1 else None)
    sW,sH,sSlot,sLW2,sLH=47,48,51,50,49
    A(f"s_lshl_b32 s{sLH}, s{sP}, 12\ns_add_u32 s{sLW2}, s{sLH}, 65536\ns_mov_b32 s{sCnt}, 0\ns_mov_b32 s{sSlot}, 0")
    def issueW():
        A(f"s_add_u32 m0, s{sLW2}, s{sSlot}\ns_nop 0")
        for n in range(4):
            o,tb=n>>1,n&1
            A(f"buffer_load_dwordx4 v{22+o}, {R4(SW2)}, s{sW} offen offset:{tb*128} {w2aux} lds")
            if n<3: A(f"s_add_u32 m0, m0, {896 if tb==0 else 1024+128}\ns_nop 0")
    def issueH():
        A(f"s_add_u32 m0, s{sLH}, s{sSlot}\ns_nop 0")
        for n in range(4):
            A(f"buffer_load_dwordx4 v{26+n}, {R4(SWS)}, s{sH} offen sc1 lds")
            if n<3: A("s_add_u32 m0, m0, 1024\ns_nop 0")
    A(f"v_readlane_b32 s{sW}, v21, 0")
    if not la1: A("s_waitcnt vmcnt(7)\ns_barrier")
    if not hsi: A(f"s_cmp_eq_u32 s{sP}, 0\ns_cbranch_scc0 P2_nh\ns_load_dwordx4 s[8:11], s[6:7], 0 glc\nP2_nh:")
    A("s_waitcnt vmcnt(0)\ns_barrier")
    def nextW(): A(f"s_add_u32 s{sCnt}, s{sCnt}, 1\ns_add_u32 s{sSlot}, s{sSlot}, 16384\nv_readlane_b32 s{sW}, v21, s{sCnt}\ns_nop 2")
    if w2e:
        A("s_branch P2_w0\nP2_w:"); nextW(); A("P2_w0:"); issueW()
        A(f"s_cmp_lt_u32 s{sCnt}, {w2e}\ns_cbranch_scc1 P2_w")
        A("s_barrier")
        pad()
        A("P2_w2:"); nextW(); issueW()
        A(f"s_cmp_lt_u32 s{sCnt}, 3\ns_cbranch_scc1 P2_w2")
    else:
        issueW()
        A("s_barrier")
        pad()
        A("P2_w:"); nextW(); issueW()
        A(f"s_cmp_lt_u32 s{sCnt}, 3\ns_cbranch_scc1 P2_w")
    A(f"s_cmp_eq_u32 s{sP}, 0\ns_cbranch_scc0 P2_hsd\ns_mov_b32 s58, 0\ns_branch P2_hsw")
    A("P2_hs:\ns_load_dwordx4 s[8:11], s[6:7], 0 glc\ns_add_u32 s58, s58, 1\nP2_hsw:\ns_waitcnt lgkmcnt(0)")
    A(f"s_and_b32 s8, s8, s9\ns_and_b32 s10, s10, s11\ns_and_b32 s8, s8, s10\ns_cmp_ge_u32 s58, {SPIN}\ns_cbranch_scc1 P2_hsd\ns_cmp_eq_u32 s8, 0x01010101\ns_cbranch_scc0 P2_hs\nP2_hsd:")
    A(f"s_lshr_b32 s59, s{sLid}, 3\ns_lshl_b32 s59, s59, 10\ns_add_u32 s59, s59, {F_OFF+fch*128}\ns_lshl_b32 s{sT0}, s{sFt8}, 2")
    A(f"v_mov_b32 v5, {OOB}\nv_mov_b32 v6, s{sT0}\nv_cmp_eq_u32 vcc, 0, v2\nv_and_b32 v3, 7, v2\nv_lshlrev_b32 v3, 2, v3\nv_cndmask_b32 v6, v5, v6, vcc\nv_mov_b32 v5, 1")
    A(f"v_readlane_b32 s{sH}, v20, 3\ns_waitcnt vmcnt(12)")
    stamp(3)
    A("s_barrier")
    stamp(6)
    A(f"s_cmp_eq_u32 s{sP}, 1\ns_cbranch_scc0 P2_nf\nbuffer_store_dword v5, v6, {R4(SWS)}, s59 offen sc1\ns_nop 1\nv_mov_b32 v5, 7\nP2_nf:")
    A(f"s_mov_b32 s62, 0\ns_cmp_eq_u32 s{sP}, 0\ns_cbranch_scc1 P2_p0\ns_waitcnt vmcnt(0)\ns_branch P2_go\nP2_p0:\ns_mov_b32 s58, 0")
    if pdelay: A(f"s_mov_b32 s16, 0\nP2_dl:\ns_add_u32 s16, s16, 1\ns_cmp_lt_u32 s16, {pdelay}\ns_cbranch_scc1 P2_dl")
    stamp(7)
    if vpoll:
        A(f"P2_l1:\nbuffer_load_dword v4, v3, {R4(SWS)}, s59 offen sc1\ns_add_u32 s58, s58, 1\ns_waitcnt vmcnt(0)\nv_cmp_eq_u32 vcc, 0, v4")
        spin_tail("P2_l1")
    else:
        A("P2_l1:\ns_load_dwordx8 s[16:23], s[4:5], 0 glc\ns_add_u32 s58, s58, 1\ns_waitcnt lgkmcnt(0)")
        A("s_and_b64 s[16:17], s[16:17], s[18:19]\ns_and_b64 s[20:21], s[20:21], s[22:23]\ns_and_b64 s[16:17], s[16:17], s[20:21]\ns_and_b32 s16, s16, s17")
        A(f"s_cmp_ge_u32 s58, {SPIN}\ns_cbranch_scc1 P2_rdy\ns_bitcmp1_b32 s16, 0\ns_cbranch_scc1 P2_rdy")
        if la2: A(f"s_cmp_eq_u32 s58, {npoll}\ns_cbranch_scc0 P2_l1\ns_waitcnt vmcnt(0)\ns_barrier\ns_mov_b32 s62, 1")
        A("s_branch P2_l1")
    A("P2_rdy:")
    if diag and diag!=5: stamp(9); A("s_mov_b32 s80, s58")
    A(f"s_mov_b32 m0, 49152\ns_mov_b32 s58, 0")
    A("P2_h3:")
    for n in range(4): A(f"buffer_load_dwordx4 v{26+n}, {R4(SWS)}, s{sH} offen sc1 lds\ns_add_u32 m0, m0, 1024\n"+("s_nop 0" if n<3 else f"s_add_u32 s{sH}, s{sH}, {QS}"))
    A("s_add_u32 s58, s58, 1\ns_cmp_lt_u32 s58, 4\ns_cbranch_scc1 P2_h3")
    A("P2_go:")
    pad()
    stamp(4)
    PL=f"buffer_load_dword v4, v3, {R4(SWS)}, s59 offen sc1"
    A(f"s_mov_b32 s{sCnt}, 4\ns_mov_b32 s57, 7")
    if la2: A("s_cmp_eq_u32 s62, 0\ns_cbranch_scc0 P2_loop\ns_waitcnt vmcnt(16)\ns_barrier")
    A("P2_loop:")
    A(f"v_readlane_b32 s{sW}, v21, s{sCnt}\nv_readlane_b32 s{sH}, v20, s{sCnt}")
    A(f"s_add_u32 s{sSlot}, s{sSlot}, 16384\ns_and_b32 s{sSlot}, s{sSlot}, 0xffff")
    A(f"s_cmp_eq_u32 s{sCnt}, 24\ns_cbranch_scc0 P2_a\nv_mov_b32 v22, v24\nv_mov_b32 v23, v25\nP2_a:")
    if la2: A(f"s_cmp_eq_u32 s{sCnt}, 4\ns_cbranch_scc1 P2_nw\ns_waitcnt vmcnt(8)\nP2_nw:\ns_barrier")
    else: A("s_waitcnt vmcnt(16)\ns_barrier")
    assert l1epi==3 or sched==9
    A(f"s_lshl_b32 s{sT0}, s{sP}, 8\ns_add_u32 s{sT0}, s{sT0}, s{sCnt}\ns_cmp_eq_u32 s{sT0}, {256+l1st+(4 if la2 else 5)}\ns_cbranch_scc0 P2_nf2\nbuffer_store_dword v5, v6, {R4(SWS)}, s59 offen sc1\nP2_nf2:")
    A(f"s_cmp_eq_u32 s{sCnt}, 9\ns_cbranch_scc0 P2_np\n{PL}\nP2_np:")
    A(f"s_cmp_eq_u32 s{sCnt}, 10\ns_cbranch_scc0 P2_b")
    A("s_waitcnt vmcnt(8)\nv_cmp_gt_u32 vcc, s57, v4\ns_mov_b32 s58, 0\ns_nop 3\ns_cbranch_vccz P2_ok")
    A(f"P2_l2:\n{PL}\ns_add_u32 s58, s58, 1\ns_waitcnt vmcnt(0)\nv_cmp_gt_u32 vcc, s57, v4")
    spin_tail("P2_l2")
    A("P2_ok:\ns_mov_b32 s57, 7")
    A("P2_b:")
    pad()
    issueW(); issueH()
    if pf2==3:
        A("s_cmp_eq_u32 s13, 24\ns_cselect_b32 s8, s14, s8\ns_cselect_b32 s9, s15, s9\ns_cmp_lt_u32 s13, 28\ns_cbranch_scc0 P2_nspf")
        spf()
        A("P2_nspf:")
    A(f"s_add_u32 s{sCnt}, s{sCnt}, 1\ns_cmp_lt_u32 s{sCnt}, 28\ns_cbranch_scc1 P2_loop")
    A(("" if la2 else "s_waitcnt vmcnt(16)\ns_barrier\n")+"s_waitcnt vmcnt(8)\ns_barrier\ns_waitcnt vmcnt(0)\ns_barrier")
    if diag: stamp(5); rstamp(15); flush(16)
    A("s_endpgm")
    A(".p2align 6\nL_cons:")
    ACC=16; F=[(128,144),(172,188)]
    vX0,vX1,vE,vO,vL=4,5,6,7,8; bX0,bE,bL=9,10,11
    sWm,sWf,sIt,sRg,sA,sB,sC=46,47,48,49,58,7,59
    sHA,sH3,sRX2,sClr,sPf=50,51,4,5,6
    vOwn,vT3,vH,vW=232,233,235,[236,237,238,239]
    if pfc and not fast:
        A(f"s_getpc_b64 s[54:55]\nC_pc:\ns_sub_u32 s54, s54, C_pc-{NAME}\ns_subb_u32 s55, s55, 0")
        A(f"v_lshlrev_b32 v3, 7, v0\nv_min_u32 v3, L_end-{NAME}, v3\nglobal_load_dword v255, v3, s[54:55]")
    if pf1==1 and not fast:
        A(f"v_and_b32 v15, 31, v2\nv_lshlrev_b32 v15, 7, v15\ns_lshl_b32 s{sA}, s2, 2\ns_add_u32 s{sA}, s{sA}, s3\ns_lshl_b32 s{sA}, s{sA}, 12")
    if pf1==3:
        A(f"v_and_b32 v15, 7, v2\nv_lshlrev_b32 v15, 7, v15\nv_bfe_u32 v14, v2, 3, 1\nv_lshl_add_u32 v15, v14, 11, v15\ns_lshl_b32 s{sA}, s2, 2\ns_add_u32 s{sA}, s{sA}, s3\ns_lshl_b32 s{sA}, s{sA}, 12\nv_mov_b32 v252, v15")
    if pf1==2:
        A(f"v_lshlrev_b32 v15, 7, v2\ns_lshr_b32 s{sA}, s2, 3\ns_lshl_b32 s{sA}, s{sA}, 2\ns_add_u32 s{sA}, s{sA}, s3\ns_lshl_b32 s{sA}, s{sA}, 13\ns_lshr_b32 s{sB}, s{sXcd}, 1\ns_lshl_b32 s{sB}, s{sB}, 20\ns_add_u32 s{sA}, s{sA}, s{sB}")
    A("s_waitcnt lgkmcnt(0)")
    if pf1 and not (fast and pf1==1):
        srd(A,SX,4,X_BYTES)
        A(f"buffer_load_dword v253, v15, {R4(SX)}, s{sA} offen")
        if pf1==3: srd(A,SW1,6,W_BYTES)
    if diag==5: stamp(6)
    A("s_setprio 1")
    A(f"s_lshr_b32 s{sWm}, s3, 1\ns_and_b32 s{sWf}, s3, 1")
    A("v_and_b32 v3, 15, v2\nv_lshrrev_b32 v12, 4, v2")
    A("v_lshrrev_b32 v13, 1, v3\nv_xor_b32 v13, v13, v12\nv_lshlrev_b32 v13, 4, v13")
    A(f"s_lshl_b32 s{sA}, s{sWm}, 13\nv_lshlrev_b32 v14, 7, v3\nv_add3_u32 v{bX0}, v13, v14, s{sA}")
    A("v_lshrrev_b32 v13, 1, v12\nv_mul_u32_u24 v13, 7168, v13\nv_bfe_u32 v15, v2, 2, 2\nv_lshl_add_u32 v13, v15, 6, v13\nv_and_b32 v15, 3, v2\nv_lshl_add_u32 v13, v15, 3, v13")
    A(f"v_and_b32 v14, 1, v12\nv_mul_u32_u24 v15, 1056, v14\ns_lshl_b32 s{sA}, s{sWf}, 9\ns_add_u32 s{sA}, s{sA}, {WOFF}\nv_add3_u32 v{bE}, v13, v15, s{sA}")
    A(f"v_mul_u32_u24 v15, 544, v14\nv_add_u32 v13, v13, v15\ns_lshl_b32 s{sA}, s{sWf}, 5\nv_xor_b32 v13, s{sA}, v13\nv_add_u32 v{bL}, {WOFF+6144}, v13")
    VF=248
    fragoffs(VF)
    A(f"v_add_u32 v{vE}, {2*WST}, v{bE}\nv_mov_b32 v{vX0}, v{bX0}\nv_add_u32 v{vL}, {2*WST}, v{bL}\nv_xor_b32 v{vO}, 32, v{vE}\nv_xor_b32 v{vX1}, 64, v{vX0}")
    srd(A,SO,10,O_BYTES); srd(A,SWS,14,0x10000000); srd(A,SW2,8,W_BYTES)
    if diag==5 or not spub: srd(A,SD,12,256)
    A("v_lshlrev_b32 v3, 4, v2")
    A(f"s_lshr_b32 s56, s{sLid}, 3\ns_lshl_b32 s56, s56, 10\ns_lshl_b32 s{sB}, s{sFt8}, 2\ns_add_u32 s56, s56, s{sB}\ns_add_u32 s56, s56, {F_OFF+fch*128}")
    A(f"v_mov_b32 v1, {OOB}\nv_cmp_eq_u32 vcc, 0, v2\ns_nop 1\nv_cndmask_b32 v1, v1, 0, vcc")
    A(f"s_andn2_b32 s57, s{sLid}, 7\ns_add_u32 s57, s57, s{sDt}\ns_lshl_b32 s57, s57, 2\ns_add_u32 s57, s57, s3\ns_mul_i32 s57, s57, {QS}\ns_add_u32 s57, s57, {P_OFF}")
    A(f"s_lshl_b32 s52, s{sWm}, 12\nv_add_u32 v{vH}, s52, v3")
    A("v_lshrrev_b32 v13, 5, v2\nv_lshlrev_b32 v13, 11, v13\nv_bfe_u32 v14, v2, 4, 1\nv_mul_u32_u24 v14, 288, v14\nv_add_u32 v13, v13, v14")
    A("v_bfe_u32 v15, v2, 2, 2\nv_lshl_add_u32 v13, v15, 6, v13\nv_and_b32 v15, 3, v2\nv_lshl_add_u32 v13, v15, 3, v13")
    A(f"s_lshl_b32 s52, s{sJ}, 1\ns_add_u32 s52, s52, s{sWf}\ns_lshl_b32 s52, s52, 9\ns_add_u32 s52, s52, 65536\nv_add_u32 v{vW[0]}, s52, v13")
    A(f"v_xor_b32 v{vW[1]}, 32, v{vW[0]}\nv_xor_b32 v{vW[2]}, 0x400, v{vW[0]}\nv_xor_b32 v{vW[3]}, 0x420, v{vW[0]}")
    A(f"s_add_u32 s62, s{sFt8}, s3\ns_and_b32 s62, s62, {rmask}\ns_add_u32 s62, s62, {l2st+5}")
    A(f"s_mul_i32 s{sHA}, s{sMt}, 112\ns_mul_i32 s{sH3}, s{sFt}, 7\ns_add_u32 s{sHA}, s{sHA}, s{sH3}\ns_and_b32 s52, s{sFt8}, 1")
    A(f"s_xor_b32 s53, s52, 1\ns_mul_i32 s53, s53, 6\ns_add_u32 s{sH3}, s{sHA}, s53\ns_add_u32 s{sHA}, s{sHA}, s52\ns_add_u32 s{sHA}, s{sHA}, s{sWf}")
    A(f"s_mul_i32 s52, s{sWm}, {QS}\ns_mul_i32 s{sHA}, s{sHA}, {CH}\ns_add_u32 s{sHA}, s{sHA}, s52\ns_mul_i32 s{sH3}, s{sH3}, {CH}\ns_add_u32 s{sH3}, s{sH3}, s52\ns_lshl_b32 s52, s{sWm}, 12")
    A(f"s_lshl_b32 s53, s{sWf}, 13\ns_add_u32 s52, s52, s53\nv_add_u32 v{vOwn}, s52, v3")
    A(f"v_bfe_u32 v13, v2, 4, 1\nv_lshlrev_b32 v13, 3, v13\nv_lshrrev_b32 v14, 5, v2\nv_lshl_add_u32 v13, v14, 1, v13\nv_bfe_u32 v14, v2, 3, 1\ns_lshl_b32 s52, s{sWf}, 2\nv_add3_u32 v13, v13, v14, s52")
    A("v_add_u32 v14, 16, v13\nv_and_b32 v15, 7, v2\nv_lshlrev_b32 v15, 4, v15")
    physline(vT3,13,12); physline(vT3+1,14,12)
    A(f"v_add_u32 v{vT3}, v{vT3}, v15\nv_add_u32 v{vT3+1}, v{vT3+1}, v15")
    A("v_mov_b32 v12, 1\ns_mov_b32 s52, 0xbfb8aa3b\ns_mov_b32 s53, 0xbfb8aa3b\ns_mov_b32 s54, 1.0\ns_mov_b32 s55, 1.0")
    for r in range(112): A(f"v_mov_b32 v{ACC+r}, 0")
    for r in range(4): A(f"v_mov_b32 v{244+r}, -1")
    def hook(it, body, name, reg=None):
        OOL.append(f"{name}:\n{body}\ns_branch {name}_b")
        return [f"s_cmp_eq_u32 s{reg or sIt}, {it}", f"s_cbranch_scc1 {name}\n{name}_b:"]
    def reads1(u, fs):
        X,W=F[fs]
        xs=[f"ds_read_b128 {vr(X+4*i,4)}, v{vX1 if u else vX0} offset:{i*2048}" for i in range(4)]
        ws=[]
        for j in range(7):
            a,o=(vL,0) if j==6 else ((vO if j&1 else vE),(j>>1)*2048)
            for hh in range(2): ws.append(f"ds_read_b64_tr_b16 {vr(W+4*j+2*hh,2)}, v{a} offset:{u*14336+o+hh*256}")
        return ws[0:2]+xs+ws[2:]
    def mf1(fs):
        X,W=F[fs]
        return [f"v_mfma_f32_16x16x32_bf16 {vr(ACC+(j*4+i)*4,4)}, {vr(W+4*j,4)}, {vr(X+4*i,4)}, {vr(ACC+(j*4+i)*4,4)}" for j,i in snake(range(7),4)]
    A(f"s_mov_b32 s{sIt}, 0\ns_mov_b32 s{sRg}, {2*WST}\ns_mov_b32 s{sRX2}, 0\ns_add_u32 s{sClr}, s3, s{sFt8}\ns_and_b32 s{sClr}, s{sClr}, {cmask}\ns_add_u32 s{sClr}, s{sClr}, {cbase}")
    A(f"s_mul_i32 s{sPf}, s3, {pfb}\ns_add_u32 s{sPf}, s{sPf}, {pfa}")
    if pf2==2: A(f"v_min_u32 v15, 55, v2\nv_lshlrev_b32 v15, 7, v15\ns_lshl_b32 s{sA}, s2, 2\ns_add_u32 s{sA}, s{sA}, s3\ns_mul_i32 s{sA}, s{sA}, 7168\nbuffer_load_dword v255, v15, {R4(SW2)}, s{sA} offen")
    if diag in (2,3): A("s_mov_b32 m0, 0")
    clr="\n".join([f"buffer_store_dwordx4 v[244:247], v{VF+i}, {R4(SWS)}, s57 offen sc1" for i in range(4)])
    clr=f"v_mov_b32 v13, 0\n{clr}\nbuffer_store_dword v13, v1, {R4(SWS)}, s56 offen sc1"
    if clr0: A(clr)
    if diag==5: stamp(8)
    if walk:
        A(f"s_cmp_ge_u32 s3, {walk}\ns_cbranch_scc1 C_walked\ns_waitcnt vmcnt({1 if pf1 else 0})\ns_mov_b64 exec, 0")
        for w in range(walk-1): A(f"s_cmp_eq_u32 s3, {w}\ns_cbranch_scc1 @START{w}@")
        A(f"s_branch @START{walk-1}@\nC_wret:\ns_mov_b64 exec, -1\nC_walked:")
    if diag==5: stamp(9)
    A("s_barrier")
    stamp(1)
    for l in reads1(0,0): A(l)
    A("s_waitcnt lgkmcnt(0)")
    A(".p2align 3\nC1_loop:")
    sstamp()
    ex=[f"s_add_u32 s{sRg}, s{sRg}, {WST}\ns_add_u32 s{sRX2}, s{sRX2}, 16384", f"s_cmp_eq_u32 s{sRg}, {WST*3}\ns_cselect_b32 s{sRg}, 0, s{sRg}",
        f"v_add_u32 v{vE}, s{sRg}, v{bE}\ns_and_b32 s{sRX2}, s{sRX2}, 0xffff", f"v_add_u32 v{vX0}, s{sRX2}, v{bX0}", f"v_add_u32 v{vL}, s{sRg}, v{bL}",
        f"v_xor_b32 v{vO}, 32, v{vE}", f"v_xor_b32 v{vX1}, 64, v{vX0}"]
    if not clr0: ex+=hook(f"s{sClr}" if stag else 2,clr,"H1_clr")
    for l in interleave(mf1(0), reads1(1,1)+ex): A(l)
    A("s_waitcnt lgkmcnt(0)\ns_barrier")
    pub=(f"s_cmp_eq_u32 s3, 0\ns_cbranch_scc0 H1_pub_b\ns_and_b32 s{sA}, s{sLid}, 3\ns_lshl_b32 s{sA}, s{sA}, 3\ns_lshl_b32 s{sA}, 1, s{sA}\nv_mov_b32 v13, s{sA}\n"
         f"s_andn2_b32 s{sA}, s{sLid}, 3\nv_lshlrev_b32 v14, 8, v2\nbuffer_atomic_or v13, v14, {R4(SD)}, s{sA} offen")
    ex=hook(ack,"s_waitcnt vmcnt(0)","H1_ack")+([] if spub else hook(ack+1,pub,"H1_pub"))
    if pf1==3:
        nl=(16-w1s)*64*56//1024
        ex+=hook(pfi,f"s_lshl_b32 s{sA}, s2, 2\ns_add_u32 s{sA}, s{sA}, s3\ns_mul_i32 s{sB}, s{sA}, {nl*128}\ns_add_u32 s{sB}, s{sB}, {w1s*64*7168}\ns_lshl_b32 s{sA}, s{sA}, 12\n"
                     f"v_min_u32 v15, {nl-1}, v2\nv_lshlrev_b32 v15, 7, v15\nbuffer_load_dword v255, v15, {R4(SW1)}, s{sB} offen\nbuffer_load_dword v253, v252, {R4(SX)}, s{sA} offen offset:1024","H1_pf1")
    if pf2==4:
        ex+=hook(f"s{sPf}",f"s_lshl_b32 s{sA}, s2, 2\ns_add_u32 s{sA}, s{sA}, s3\ns_lshr_b32 s{sB}, s{sA}, 6\ns_and_b32 s60, s{sB}, 1\ns_mul_i32 s{sB}, s{sB}, 7\n"
                     f"s_add_u32 s61, s{sB}, s60\ns_add_u32 s61, s61, 4\ns_lshl_b32 s61, s61, 16\ns_xor_b32 s60, s60, 1\ns_mul_i32 s60, s60, 6\ns_add_u32 s{sB}, s{sB}, s60\ns_lshl_b32 s{sB}, s{sB}, 16\n"
                     f"s_and_b32 s{sA}, s{sA}, 63\ns_lshl_b32 s60, s{sA}, 11\ns_add_u32 s61, s61, s60\ns_lshl_b32 s60, s{sA}, 10\ns_add_u32 s{sB}, s{sB}, s60\n"
                     f"v_and_b32 v15, 15, v2\nv_lshlrev_b32 v15, 7, v15\nv_and_b32 v14, 7, v2\nv_lshlrev_b32 v14, 7, v14\n"
                     f"buffer_load_dword v255, v15, {R4(SW2)}, s61 offen\nbuffer_load_dword v253, v14, {R4(SW2)}, s{sB} offen","H1_pf")
    if pf2==1:
        ex+=hook(f"s{sPf}",f"v_min_u32 v15, 55, v2\nv_lshlrev_b32 v15, 7, v15\ns_lshl_b32 s{sA}, s2, 2\ns_add_u32 s{sA}, s{sA}, s3\ns_mul_i32 s{sA}, s{sA}, 7168\nbuffer_load_dword v255, v15, {R4(SW2)}, s{sA} offen","H1_pf")
    ex+=([PAD] if walk else [])+[f"s_add_u32 s{sIt}, s{sIt}, 1", f"s_cmp_lt_u32 s{sIt}, 16"]
    x=interleave(mf1(1), reads1(0,0)+ex)
    if x[-1].startswith("v_mfma"):
        for l in x[:-1]: A(l)
        A("s_waitcnt lgkmcnt(0)"); A(x[-1])
    else:
        for l in x: A(l)
        A("s_waitcnt lgkmcnt(0)")
    A("s_cbranch_scc1 C1_loop")
    stamp(2)
    T=216
    def silu(a, b, D):
        t=T; src=[a,a+2,b,b+2]
        for r in range(4): A(f"v_pk_mul_f32 {vr(t+2*r,2)}, s[52:53], {vr(src[r],2)}")
        for r in range(8): A(f"v_exp_f32 v{t+r}, v{t+r}")
        for r in range(4): A(f"v_pk_add_f32 {vr(t+2*r,2)}, s[54:55], {vr(t+2*r,2)}")
        for r in range(8): A(f"v_rcp_f32 v{t+r}, v{t+r}")
        for r in range(4): A(f"v_pk_mul_f32 {vr(t+2*r,2)}, {vr(t+2*r,2)}, {vr(src[r],2)}")
        for r in range(4): A(f"v_cvt_pk_bf16_f32 v{D+r}, v{t+2*r}, v{t+2*r+1}")
    def gst(D,i): return f"buffer_store_dwordx4 {vr(D,4)}, v{VF+i}, {R4(SWS)}, s{sHA} offen sc1"
    FLAG="s_nop 0"
    DL=[160,128,144]; D3=224
    for L in range(3):
        for i in range(4):
            D=DL[L]+4*i
            if i%2==0: pad()
            silu(ACC+((2*L)*4+i)*4, ACC+((2*L+1)*4+i)*4, D)
            if L==0 or (L==2 and l1epi>=2) or (L==1 and i>=nb and l1epi): A(gst(D,i))
            A(f"ds_write_b128 v{vOwn}, {vr(D,4)} offset:{L*16384+i*1024}")
            if L==1 and i==nb-1:
                stamp(11); A("s_waitcnt vmcnt(0)"); stamp(12)
                A(f"s_add_u32 s{sHA}, s{sHA}, {2*CH}\ns_waitcnt lgkmcnt(0)\ns_barrier")
                if l1epi:
                    for k in range(nb): A(gst(128+4*k,k))
        if L==1 and l1epi: A(f"s_add_u32 s{sHA}, s{sHA}, {2*CH}")
    F2=[(160,176),(192,208)]
    def rdH(X,slot,u): return [f"ds_read_b128 {vr(X+4*i,4)}, v{vH} offset:{slot*16384+u*8192+i*1024}" for i in range(4)]
    def rdW(W,slot,u,js): return [f"ds_read_b64_tr_b16 {vr(W+4*n+2*hh,2)}, v{vW[j]} offset:{slot*16384+(4*u+2*hh)*2048}" for n,j in enumerate(js) for hh in range(2)]
    def reads2(slot,u,fs):
        X,W=F2[fs]; ws=rdW(W,slot,u,range(4)); return ws[0:2]+rdH(X,slot,u)+ws[2:]
    def mfm(X,W,js,zero=False,w0=0):
        return [f"v_mfma_f32_16x16x32_bf16 {vr(ACC+(j*4+i)*4,4)}, {vr(W+4*(j-w0),4)}, {vr(X+4*i,4)}, {'0' if zero else vr(ACC+(j*4+i)*4,4)}" for j,i in snake(js,4)]
    def mf2(fs,zero=False): return mfm(F2[fs][0],F2[fs][1],range(4),zero)
    for l in reads2(0,0,0): A(l)
    for ip in range(2):
        D=D3+4*ip; a=ACC+(24+2*ip)*4
        if ip==0: pad()
        silu(a,a+4,D)
        A(f"s_nop 1\nv_permlane16_swap_b32 v{D}, v{D+2}\nv_permlane16_swap_b32 v{D+1}, v{D+3}")
        if l1epi>=3: A(f"buffer_store_dwordx4 {vr(D,4)}, v{vT3+ip}, {R4(SWS)}, s{sH3} offen sc1")
    A(f"v_mov_b32 v12, {7 if l1epi==3 else 3}\ns_mov_b32 s{sIt}, 0")
    stamp(3); stamp(4)
    sstamp()
    A("s_waitcnt lgkmcnt(0)")
    for l in interleave(mf2(0,True), reads2(0,1,1)+([PAD] if walk else [])): A(l)
    A("s_branch C2_in")
    dw={}; dws={}
    t3st=[f"buffer_store_dwordx4 {vr(D3+4*ip,4)}, v{vT3+ip}, {R4(SWS)}, s{sH3} offen sc1" for ip in range(2)]
    ADV=f"\ns_add_u32 s{sHA}, s{sHA}, {2*CH}"
    L1s=[gst(128+4*i,i) for i in range(4)]; L2s=[gst(144+4*i,i) for i in range(4)]
    F3=f"s_waitcnt vmcnt(0)\n{FLAG}"; F7=f"v_mov_b32 v12, 7\ns_waitcnt vmcnt(0)\n{FLAG}"
    J="\n".join
    if sched==1:
        dw[(0,1)]=J(L1s[:2]); dw[(1,0)]=J(L1s[2:])+ADV; dw[(1,1)]=J(L2s[:2]); dw[(2,0)]=J(L2s[2:]); dw[(2,1)]=J(t3st); dw[(4,0)]=F7
    elif sched==2:
        dw[(0,1)]=J(L1s[:2]); dw[(1,0)]=J(L1s[2:])+ADV; dw[(3,0)]=F3
        dw[(3,1)]=L2s[0]; dw[(4,0)]=L2s[1]; dw[(4,1)]=L2s[2]; dw[(5,0)]=L2s[3]; dw[(5,1)]=t3st[0]; dw[(6,0)]=t3st[1]; dw[(10,0)]=F7
    elif sched==3:
        dw[(0,1)]=L1s[0]; dw[(1,0)]=L1s[1]; dw[(1,1)]=L1s[2]; dw[(2,0)]=L1s[3]+ADV; dw[(3,1)]=F3
        dw[(4,0)]=L2s[0]; dw[(4,1)]=L2s[1]; dw[(5,0)]=L2s[2]; dw[(5,1)]=L2s[3]; dw[(6,0)]=t3st[0]; dw[(6,1)]=t3st[1]; dw[(11,0)]=F7
    elif sched==4:
        dw[(0,1)]=J(L1s)+ADV; dw[(1,1)]=J(L2s); dw[(2,1)]=J(t3st); dw[(4,0)]=F7
    elif sched==9:
        dw[(1,1)]=F7
    elif sched==5:
        dw[(0,1)]=J(L2s[:2]); dw[(1,0)]=J(L2s[2:]); dw[(1,1)]=J(t3st); dw[(3,1)]=F7
    else:
        if not l1epi:
            dw[(l1st,0)]=gst(128,0)+"\n"+gst(132,1); dw[(l1st,1)]=gst(136,2)+"\n"+gst(140,3)+f"\ns_add_u32 s{sHA}, s{sHA}, {2*CH}"
            dw[(l1st+2,1)]=f"s_waitcnt vmcnt(0)\n{FLAG}"
        else:
            dw[(l1st,1)]=f"s_waitcnt vmcnt(0)\n{FLAG}"
        if l1epi>=2:
            if l1epi==2: dw[(l2st,0)]="\n".join(t3st)
            if l1epi==2: dw[(f3,1)]=f"v_mov_b32 v12, 7\ns_waitcnt vmcnt(0)\n{FLAG}"
        elif not stag2:
            dw[(l2st,0)]=gst(144,0)+"\n"+gst(148,1); dw[(l2st+1,0)]=gst(152,2)+"\n"+gst(156,3)+"\nv_mov_b32 v12, 7"
            dw[(l2st+2,0)]="\n".join(t3st)
            dw[(l2st+5,1)]=f"s_waitcnt vmcnt(0)\n{FLAG}"
        else:
            dw[(f3,1)]=f"v_mov_b32 v12, 7\ns_waitcnt vmcnt(0)\n{FLAG}"
            body=[gst(144+4*i,i) for i in range(4)]+t3st
            o="H2_st:\n"
            for n,b in enumerate(body):
                o+=f"s_cmp_eq_u32 s62, {5-n}\ns_cbranch_scc0 H2_st{n}\n{b}\nH2_st{n}:\n"
            o+="s_setpc_b64 s[54:55]"
            OOL.append(o)
    def hooks2(slot,u):
        ex=[]
        for (q,uu),body in sorted(dw.items()):
            if q%4==slot and uu==u: ex+=hook(q//4,body,f"H2_{q}_{uu}")
        if stag2 and l1epi<2 and u==0 and not sched:
            ex+=["s_sub_u32 s62, s62, 1\ns_cmp_lt_u32 s62, 6", f"s_cbranch_scc1 H2_go{slot}\nH2_ns{slot}:"]
            OOL.append(f"H2_go{slot}:\ns_call_b64 s[54:55], H2_st\ns_branch H2_ns{slot}")
        assert len(ex)<=4, (slot,u,ex)
        return ex
    A(".p2align 3\nC2_loop:")
    for slot in range(4):
        sstamp()
        for l in interleave(mf2(0), reads2(slot,1,1)+hooks2(slot,0)+([PAD] if walk else [])): A(l)
        if slot==0: A("C2_in:")
        A("s_waitcnt lgkmcnt(0)\ns_barrier")
        ex=hooks2(slot,1)
        if slot==3: ex+=[f"s_add_u32 s{sIt}, s{sIt}, 1", f"s_cmp_lt_u32 s{sIt}, 6"]
        x=interleave(mf2(1), reads2((slot+1)&3,0,0)+ex)
        if x[-1].startswith("v_mfma"):
            for l in x[:-1]: A(l)
            A("s_waitcnt lgkmcnt(0)"); A(x[-1])
        else:
            for l in x: A(l)
            A("s_waitcnt lgkmcnt(0)")
    A("s_cbranch_scc1 C2_loop")
    stamp(13)
    if diag: A("s_waitcnt lgkmcnt(0)")
    G=[dict(H=[160,80],W=[184,96]), dict(H=[192,104],W=[208,216])]
    def rdS(g,slot,js,us=(0,1)):
        o=[]
        for u in us:
            w=rdW(G[g]['W'][u],slot,u,js); o+=w[0:2]+rdH(G[g]['H'][u],slot,u)+w[2:]
        return o
    def mfS(g,js): return mfm(G[g]['H'][0],G[g]['W'][0],js,w0=js[0])+mfm(G[g]['H'][1],G[g]['W'][1],js,w0=js[0])
    for l in rdS(0,0,(2,3),(1,)): A(l)
    pad()
    A("s_barrier")
    m=mfS(0,(2,3)); r=rdS(1,1,(2,3))
    x=interleave(m[:8], r[:8])
    for l in x: A(l)
    A("s_waitcnt lgkmcnt(8)")
    for l in interleave(m[8:], r[8:]): A(l)
    for q in (1,2):
        if q==2: pad()
        A("s_waitcnt lgkmcnt(0)\ns_barrier")
        for l in interleave(mfS(q&1,(2,3)), rdS((q+1)&1,q+1,(2,3))): A(l)
    A(f"s_mul_i32 s52, s{sJ}, {-2*32*QS}\ns_add_u32 s52, s52, {32*QS}\ns_add_u32 s52, s52, s57\ns_mov_b32 s53, -2")
    sn=[]
    for i in range(4):
        D=128+4*i; t=[]
        for n,j in enumerate((2,3)):
            S=ACC+(j*4+i)*4
            t+= [f"v_cvt_pk_bf16_f32 v{D+2*n}, v{S}, v{S+1}", f"v_cvt_pk_bf16_f32 v{D+2*n+1}, v{S+2}, v{S+3}"]
        t+=[f"v_min_u32 v{D+r}, s53, v{D+r}" for r in range(4)]
        t.append(f"buffer_store_dwordx4 {vr(D,4)}, v{VF+i}, {R4(SWS)}, s52 offen sc1")
        sn.append(t)
    A("s_waitcnt lgkmcnt(0)")
    if esend:
        g=G[1]; r=rdS(0,0,(0,1)); k=0
        for i in range(4):
            for u,j in ((0,2),(0,3),(1,3),(1,2)):
                A(f"v_mfma_f32_16x16x32_bf16 {vr(ACC+(j*4+i)*4,4)}, {vr(g['W'][u]+4*(j-2),4)}, {vr(g['H'][u]+4*i,4)}, {vr(ACC+(j*4+i)*4,4)}")
                A(r[k]); k+=1
            if i>=1:
                for l in sn[i-1]: A(l)
        stamp(5)
        pad()
        A("s_waitcnt lgkmcnt(0)")
        m=mfS(0,(0,1)); r=rdS(1,1,(0,1))
        for n,mm_ in enumerate(m):
            A(mm_); A(r[n])
            if n==2:
                for l in sn[3]: A(l)
    else:
        for l in interleave(mfS(1,(2,3)), rdS(0,0,(0,1))): A(l)
        stamp(5)
        pad()
        snd=sum(sn,[])
        A("s_waitcnt lgkmcnt(0)")
        m=mfS(0,(0,1)); r=rdS(1,1,(0,1))
        k=0
        for n,mm_ in enumerate(m):
            A(mm_); A(r[n])
            if packfirst and n==1:
                A("s_nop 3")
                while k<len(snd): A(snd[k]); k+=1
            if n>=3:
                for _ in range(3):
                    if k<len(snd): A(snd[k]); k+=1
        while k<len(snd): A(snd[k]); k+=1
    if diag!=5: stamp(6)
    RB=144 if dual else 80; RB2=224
    def LDs(b): return [f"buffer_load_dwordx4 {vr(b+4*i,4)}, v{VF+i}, {R4(SWS)}, s57 offen sc1" for i in range(4)]
    LD=LDs(RB)
    for q in (1,2):
        pad()
        A("s_waitcnt lgkmcnt(0)")
        x=interleave(mfS(q&1,(0,1)), rdS((q+1)&1,q+1,(0,1)))
        if dual==q:
            for n in range(4): x.insert(2+3*n+n,LD[n])
        for l in x: A(l)
    A("s_waitcnt lgkmcnt(0)")
    adr=["v_and_b32 v13, 15, v2","v_lshlrev_b32 v13, 11, v13","v_bfe_u32 v14, v2, 4, 1","v_lshl_add_u32 v13, v14, 5, v13","v_lshrrev_b32 v14, 5, v2","v_lshl_add_u32 v13, v14, 4, v13",
         f"s_lshl_b32 s{sC}, s{sMt}, 1\ns_add_u32 s{sC}, s{sC}, s{sWm}", f"s_lshl_b32 s{sC}, s{sC}, 17\ns_lshl_b32 s52, s{sDt}, 8", f"s_add_u32 s{sC}, s{sC}, s52\ns_lshl_b32 s52, s{sJ}, 7",
         f"s_add_u32 s{sC}, s{sC}, s52\ns_lshl_b32 s52, s{sWf}, 6", f"s_add_u32 s{sC}, s{sC}, s52\ns_mov_b32 s58, 0"]
    def chk():
        A(f"v_max3_u32 v14, v{RB}, v{RB+1}, v{RB+2}")
        for r in range(3,15,2): A(f"v_max3_u32 v14, v14, v{RB+r}, v{RB+r+1}")
        A(f"v_max_u32 v14, v14, v{RB+15}\nv_cmp_eq_u32 vcc, -1, v14")
    if dual:
        for l in interleave(mfS(1,(0,1)), LDs(80)+adr): A(l)
        A("s_waitcnt vmcnt(4)"); chk()
        A("s_nop 4\ns_cbranch_vccz C3_ok\ns_waitcnt vmcnt(0)")
        for r in range(16): A(f"v_mov_b32 v{RB+r}, v{80+r}")
    else:
        for l in interleave(mfS(1,(0,1)), adr[:ldpos]+LD+adr[ldpos:]): A(l)
    pad()
    A("s_branch C3_chk")
    A("C3_poll:")
    for l in LD: A(l)
    A("C3_chk:\ns_add_u32 s58, s58, 1\ns_waitcnt vmcnt(0)")
    chk()
    spin_tail("C3_poll")
    A("C3_ok:")
    stamp(7)
    if diag!=5: stamp(8)
    A("s_mov_b32 s53, 0xffff0000")
    for i in range(4):
        D=128+4*i
        for n in range(2):
            S=ACC+(n*4+i)*4
            for h in range(2):
                Rr=RB+4*i+2*n+h
                A(f"v_lshlrev_b32 v{T}, 16, v{Rr}\nv_and_b32 v{T+1}, s53, v{Rr}\nv_pk_add_f32 {vr(S+2*h,2)}, {vr(S+2*h,2)}, {vr(T,2)}")
                A(f"v_cvt_pk_bf16_f32 v{D+2*n+h}, v{S+2*h}, v{S+2*h+1}")
        A(f"s_nop 1\nv_permlane16_swap_b32 v{D}, v{D+2}\nv_permlane16_swap_b32 v{D+1}, v{D+3}")
        A(f"buffer_store_dwordx4 {vr(D,4)}, v13, {R4(SO)}, s{sC} offen {outaux}")
        if i<3: A(f"s_add_u32 s{sC}, s{sC}, 0x8000")
        if i==0: pad()
    if diag:
        if diag!=5: stamp(9)
        A("s_waitcnt vmcnt(0)"); stamp(10); rstamp(15); flush(16,True)
    A("s_endpgm")
    if walk: A(PAD+"\ns_endpgm")
    for b in OOL: A(b)
    A("L_end:\ns_endpgm")
    A(f""".section .rodata,"a"
.p2align 6
.amdhsa_kernel {NAME}
  .amdhsa_next_free_vgpr 256
  .amdhsa_next_free_sgpr 96
  .amdhsa_accum_offset 256
  .amdhsa_group_segment_fixed_size 0
  .amdhsa_kernarg_size 48
  .amdhsa_user_sgpr_count 2
  .amdhsa_user_sgpr_kernarg_segment_ptr 1
  .amdhsa_system_sgpr_workgroup_id_x 1
.end_amdhsa_kernel""")
    txt=A.text()
    if walk:
        n=txt.count("@PAD@"); parts=txt.split("@PAD@")
        starts=[round(w*n/walk) for w in range(walk)]
        out=parts[0]
        for k in range(n):
            nxt="C_wret" if (k+1==n or k+1 in starts) else f"PAD{k+1}"
            out+=f"PAD{k}:\ns_cbranch_execz {nxt}"+parts[k+1]
        for w in range(walk): out=out.replace(f"@START{w}@",f"PAD{starts[w]}")
        txt=out
    return txt

if __name__=="__main__":
    import inspect
    p=argparse.ArgumentParser(); p.add_argument("-o")
    for k,v in inspect.signature(build).parameters.items():
        p.add_argument("--"+k,type=type(v.default),default=v.default)
    a=vars(p.parse_args()); o=a.pop("o")
    open(o,"w").write(build(**a))
```

```python
import sys, argparse
NAME="standalone__dense_activation_silu__prompt_kernel"
class Asm:
    def __init__(self): self.L=[]
    def __call__(self, s):
        for l in s.split("\n"): self.L.append(l)
    def text(self): return "\n".join(self.L)+"\n"
def vr(a,n): return f"v[{a}:{a+n-1}]"
def srd(A, d, b, nbytes):
    A(f"s_mov_b32 s{d}, s{b}\ns_and_b32 s{d+1}, s{b+1}, 0xffff\ns_mov_b32 s{d+2}, {nbytes}\ns_mov_b32 s{d+3}, 0x20000")
X_BYTES=2048*1024*2; W_BYTES=1024*3584*2; O_BYTES=2048*1024*2
H_OFF=0; P_OFF=24<<20; F_OFF=48<<20; T_OFF=64<<20
SX,SW1,SW2,SO,SD,SWS=16,20,24,28,32,36
sMt,sJ,sFt8,sFt,sLid,sXcd,sDt=40,41,42,43,44,45,63
OOB=0x7ffffff0
SPIN=1<<17
def R4(s): return f"s[{s}:{s+3}]"

def interleave(mf, rd):
    out=[]; k=0
    for m in mf:
        out.append(m)
        if k<len(rd): out.append(rd[k]); k+=1
    return out+rd[k:]
ORDER='ji'
def snake(JS,NI):
    JS=list(JS)
    if ORDER=='ij': return [(j,i) for i in range(NI) for j in (JS if i%2==0 else JS[::-1])]
    return [(j,(i if n%2==0 else NI-1-i)) for n,j in enumerate(JS) for i in range(NI)]

def build(diag=0, rot=1, pf1=0, pf2=1, pfc=1, outaux="sc1", pfa=13, dswz=0, w1aux="", xaux="", w2aux="", l1st=1, l2st=4, stag=1, l1epi=1, rmask=1, f3=9, skew2=1, pfb=0, stag2=1, remap=1, spa=0, spb=13, spn=4, ack=6, ldearly=1, pfi=0, w1s=6, sched=0, fch=6, pdelay=0, nb=4, clr0=0, dual=0, tlb=0, packfirst=1, spub=1, vpoll=0, hsi=12, hsglc='', cmask=1, cbase=1, walk=2, w2e=0, order='ji', esend=1, ldpos=0, fast=1, la1=0, hd=4, la2=0, npoll=2, tearly=2, nsh=0, two=0, tight2=1, tight1=1):
    global ORDER; ORDER=order
    assert ack+2<=12 and cbase+cmask<ack and nsh<=(4 if two else ack+2)
    A=Asm(); OOL=[]
    tm='s_memrealtime' if diag>=3 else 's_memtime'
    def stamp(k):
        if diag: A(f"{tm} s[{64+2*k}:{65+2*k}]")
    def rstamp(k):
        if diag: A(f"s_memrealtime s[{64+2*k}:{65+2*k}]")
    def sstamp():
        if diag in (2,3): A(f"{tm} s[90:91]\ns_waitcnt lgkmcnt(0)\nv_writelane_b32 v254, s90, m0\ns_add_u32 m0, m0, 1")
    def flush(n, cons=False):
        if not diag: return
        if diag==5:
            ks=[6,8,9,1,2,4,5,10] if cons else [1,8,2,3,4,5]
            lab="DB_c" if cons else "DB_p"
            A(f"s_waitcnt lgkmcnt(0)\ns_and_b32 s60, s3, 3\ns_or_b32 s60, s60, s2\ns_cmp_eq_u32 s60, 0\ns_cbranch_scc0 {lab}\nv_lshlrev_b32 v1, 8, v2")
            for n_,k in enumerate(ks):
                A(f"s_sub_u32 s60, s{64+2*k}, s64\nv_mov_b32 v4, s60\nbuffer_store_dword v4, v1, {R4(SD)}, 0 offen offset:{4*(n_+(0 if cons else 8))} sc1")
            A(f"s_waitcnt vmcnt(0)\n{lab}:")
            return
        A(f"s_waitcnt lgkmcnt(0)\ns_lshl_b32 s60, s2, 3\ns_add_u32 s60, s60, s3\ns_lshl_b32 s60, s60, 8\ns_add_u32 s60, s60, {T_OFF}\nv_mov_b32 v1, 0")
        for k in range(n): A(f"v_mov_b32 v2, s{64+2*k}\nbuffer_store_dword v2, v1, {R4(SWS)}, s60 offen offset:{4*k}")
        if cons and diag>=2:
            A(f"v_and_b32 v1, 63, v0\nv_lshlrev_b32 v1, 2, v1\nv_mov_b32 v2, {OOB}\nv_cmp_gt_u32 vcc, 192, v1\ns_nop 1\nv_cndmask_b32 v1, v2, v1, vcc")
            A(f"buffer_store_dword v254, v1, {R4(SWS)}, s60 offen offset:64")
        A("s_waitcnt vmcnt(0)")
    PAD='@PAD@' if walk else 's_nop 0'
    def pad():
        if walk: A(PAD)
    def spin_tail(label):
        A(f"s_cmp_lt_u32 s58, {SPIN}\ns_cselect_b64 s[60:61], -1, 0\ns_and_b64 vcc, vcc, s[60:61]\ns_cbranch_scc1 {label}")
    WST=28672; WOFF=65536
    QS=5120 if remap else 4096
    CH=2*QS
    def physline(dst,g,tmp):
        if remap: A(f"v_add_u32 v{tmp}, 4, v{g}\nv_mul_u32_u24 v{tmp}, 37, v{tmp}\nv_lshrrev_b32 v{tmp}, 8, v{tmp}\nv_add_u32 v{tmp}, v{tmp}, v{g}\nv_lshlrev_b32 v{dst}, 7, v{tmp}")
        else: A(f"v_lshlrev_b32 v{dst}, 7, v{g}")
    def fragoffs(base):
        A("v_and_b32 v6, 7, v2\nv_lshlrev_b32 v6, 4, v6")
        for n in range(4):
            A(f"v_lshrrev_b32 v5, 3, v2\nv_add_u32 v5, {8*n}, v5"); physline(base+n,5,4); A(f"v_add_u32 v{base+n}, v{base+n}, v6")
    A("""; Fused feed-forward: out = silu(x @ w1) @ w2, bf16 in/out, fp32 accumulate.
; @launch grid=(256,1,1) block=(512,1,1) lds=151552""")
    A('.amdgcn_target "amdgcn-amd-amdhsa--gfx950"\n.text')
    A(f".globl {NAME}\n.p2align 8\n.type {NAME},@function\n{NAME}:")
    A("s_load_dwordx8 s[4:11], s[0:1], 0\ns_load_dwordx4 s[12:15], s[0:1], 32")
    A("s_cmp_ge_u32 s2, 256\ns_cbranch_scc1 L_end")
    stamp(0); rstamp(14)
    if fast and pfc:
        A(f"s_getpc_b64 s[54:55]\nC_pc:\nv_lshlrev_b32 v3, 7, v0\ns_sub_u32 s54, s54, C_pc-{NAME}\ns_subb_u32 s55, s55, 0")
        A(f"v_min_u32 v3, L_end-{NAME}, v3\nv_lshrrev_b32 v1, 6, v0\nglobal_load_dword v255, v3, s[54:55]\nv_and_b32 v2, 63, v0")
    else: A("v_lshrrev_b32 v1, 6, v0\nv_and_b32 v2, 63, v0")
    A(f"v_readfirstlane_b32 s3, v1\ns_and_b32 s{sXcd}, s2, 7\ns_lshr_b32 s46, s2, 3")
    dec1=f"s_lshr_b32 s{sMt}, s{sXcd}, 1\ns_lshl_b32 s{sMt}, s{sMt}, 2\ns_lshr_b32 s47, s46, 3\ns_add_u32 s{sMt}, s{sMt}, s47\ns_and_b32 s{sJ}, s{sXcd}, 1"
    dec2=(f"s_and_b32 s{sFt8}, s46, 7\ns_lshl_b32 s{sFt}, s{sJ}, 3\ns_add_u32 s{sFt}, s{sFt}, s{sFt8}\n"
          f"s_lshl_b32 s{sLid}, s{sMt}, 4\ns_add_u32 s{sLid}, s{sLid}, s{sFt}\ns_xor_b32 s{sDt}, s{sJ}, 1\ns_mul_i32 s{sDt}, s{sDt}, {dswz}\ns_xor_b32 s{sDt}, s{sDt}, s{sFt8}")
    A(dec1); A(dec2)
    if fast and pf1==1:
        A("s_cmp_lt_u32 s3, 4\ns_cbranch_scc0 L_prod")
        A("v_lshrrev_b32 v15, 1, v0\ns_lshl_b32 s58, s2, 7\nv_add_u32 v15, s58, v15\nv_lshlrev_b32 v15, 7, v15\ns_waitcnt lgkmcnt(0)\nglobal_load_dword v253, v15, s[4:5]\ns_branch L_cons\nL_prod:")
    else:
        A("s_cmp_lt_u32 s3, 4\ns_cbranch_scc1 L_cons")
    sP,sKX,sKW,sLX,sLW,sRing,sCnt,sT0,sT1=46,47,48,49,50,51,52,53,54
    A(f"s_sub_u32 s{sP}, s3, 4")
    A("v_lshrrev_b32 v3, 3, v2\nv_and_b32 v4, 7, v2\nv_lshrrev_b32 v5, 4, v2\nv_xor_b32 v4, v4, v5\nv_lshlrev_b32 v4, 4, v4\nv_lshl_add_u32 v3, v3, 11, v4")
    A(f"s_lshl_b32 s{sT0}, s{sMt}, 18\ns_lshl_b32 s{sT1}, s{sP}, 16\ns_add_u32 s{sT0}, s{sT0}, s{sT1}\nv_add_u32 v8, s{sT0}, v3")
    A("v_xor_b32 v9, 64, v8\nv_add_u32 v9, 0x4000, v9\nv_add_u32 v10, 0x8000, v8\nv_add_u32 v11, 0x8000, v9")
    if not rot: A(f"s_mov_b32 s{sKX}, 0\ns_mov_b32 s{sKW}, 0")
    if rot:
        if rot in (1,2,4,5,6,7,8):
            A(f"s_lshr_b32 s{sT0}, s{sXcd}, 1\ns_lshl_b32 s{sT1}, s{sJ}, 1\ns_add_u32 s{sT0}, s{sT0}, s{sT1}\ns_and_b32 s{sT0}, s{sT0}, 3\ns_lshl_b32 s{sT0}, s{sT0}, 2")
            if rot==4: A(f"s_and_b32 s{sT0}, s{sT0}, 8")
        else: A(f"s_mov_b32 s{sT0}, 0")
        if rot>=5: A(f"s_mov_b32 s62, s{sT0}\ns_mov_b32 s60, 0\ns_mov_b32 s61, 0")
        if rot in (7,8): A(f"s_and_b32 s{sT1}, s{sMt}, 1\ns_lshl_b32 s{sT1}, s{sT1}, {rot-7}\ns_add_u32 s{sT0}, s{sT0}, s{sT1}")
        elif rot>=2: A(f"s_and_b32 s{sT1}, s{sMt}, 3\ns_add_u32 s{sT0}, s{sT0}, s{sT1}")
        A(f"s_lshl_b32 s{sKX}, s{sT0}, 7\ns_mul_i32 s{sKW}, s{sT0}, {64*7168}")
    sRX=57
    A(f"s_lshl_b32 s{sLX}, s{sP}, 12\ns_mov_b32 s{sRX}, 0\ns_mov_b32 s{SX+2}, {X_BYTES}\ns_mov_b32 s{SX+3}, 0x20000")
    A(f"s_waitcnt lgkmcnt(0)\ns_mov_b32 s{SX}, s4\ns_and_b32 s{SX+1}, s5, 0xffff")
    def nextk(c):
        if rot in (7,8):
            A(f"s_add_u32 s{c}, s{c}, 1\ns_and_b32 s{sT1}, s{c}, 8\ns_cselect_b32 s{sT0}, 1, 0\ns_xor_b32 s{sT0}, s{sT0}, s{sMt}\ns_and_b32 s{sT0}, s{sT0}, 1\ns_lshl_b32 s{sT0}, s{sT0}, {rot-7}\ns_add_u32 s{sT0}, s{sT0}, s{c}\ns_and_b32 s{sT0}, s{sT0}, 7")
            A(f"s_add_u32 s{sT0}, s{sT0}, s{sT1}\ns_add_u32 s{sT0}, s{sT0}, s62\ns_and_b32 s{sT0}, s{sT0}, 15")
            return
        if rot==6:
            A(f"s_add_u32 s{c}, s{c}, 1\ns_and_b32 s{sT1}, s{c}, 8\ns_cselect_b32 s{sT0}, 3, 0\ns_xor_b32 s{sT0}, s{sT0}, s{sMt}\ns_and_b32 s{sT0}, s{sT0}, 3\ns_add_u32 s{sT0}, s{sT0}, s{c}\ns_and_b32 s{sT0}, s{sT0}, 7")
            A(f"s_add_u32 s{sT0}, s{sT0}, s{sT1}\ns_add_u32 s{sT0}, s{sT0}, s62\ns_and_b32 s{sT0}, s{sT0}, 15")
            return
        A(f"s_add_u32 s{c}, s{c}, 1\ns_add_u32 s{sT0}, s{c}, s{sMt}\ns_and_b32 s{sT0}, s{sT0}, 3\ns_and_b32 s{sT1}, s{c}, 12\ns_add_u32 s{sT0}, s{sT0}, s{sT1}\ns_add_u32 s{sT0}, s{sT0}, s62\ns_and_b32 s{sT0}, s{sT0}, 15")
    def issueW1(part=None):
        inc=[1024,896,1024,896,1024,1280]
        ns=range(7) if part is None else (range(hd) if part==0 else range(hd,7))
        if part!=1: A(f"s_add_u32 m0, s{sRing}, s{sLW}\ns_add_u32 s{sRing}, s{sRing}, {WST}")
        else: A("s_mov_b32 m0, s1\ns_nop 0")
        for n in ns:
            a,o=n>>1,n&1
            if n<6:
                A(f"buffer_load_dwordx4 v{13+o}, {R4(SW1)}, s{sKW} offen offset:{a*128} {w1aux} lds")
                if part==0 and n==hd-1: A(f"s_add_u32 s1, m0, {inc[n]}")
                else:
                    A(f"s_add_u32 m0, m0, {inc[n]}")
                    A("s_nop 0" if n else f"s_cmp_eq_u32 s{sRing}, {WST*3}\ns_cselect_b32 s{sRing}, 0, s{sRing}")
            else:
                A(f"buffer_load_dwordx4 v12, {R4(SW1)}, s{sKW} offen {w1aux} lds\ns_add_u32 s{sKW}, s{sKW}, {64*7168}")
                if rot>=5:
                    nextk(60); A(f"s_mul_i32 s{sKW}, s{sT0}, {64*7168}\ns_add_u32 s{sKW}, s{sKW}, s59")
                elif rot: A(f"s_cmp_eq_u32 s{sKW}, s58\ns_cselect_b32 s{sKW}, s59, s{sKW}")
    def issueX():
        A(f"s_add_u32 m0, s{sRX}, s{sLX}\ns_add_u32 s{sRX}, s{sRX}, 16384")
        for n in range(4):
            A(f"buffer_load_dwordx4 v{8+n}, {R4(SX)}, s{sKX} offen {xaux} lds")
            if n<3: A("s_add_u32 m0, m0, 1024\n"+("s_nop 0" if n else f"s_and_b32 s{sRX}, s{sRX}, 0xffff"))
        if tight1: pass
        elif rot>=5:
            nextk(61); A(f"s_lshl_b32 s{sKX}, s{sT0}, 7")
        else: A(f"s_add_u32 s{sKX}, s{sKX}, 128\ns_and_b32 s{sKX}, s{sKX}, 2047")
    stamp(1)
    issueX()
    A(f"s_and_b32 s{sT0}, s{sFt8}, 1\ns_lshl_b32 s{sT1}, s{sT0}, 6")
    A("v_bfe_u32 v3, v2, 2, 3\nv_mul_u32_u24 v3, 7168, v3\nv_lshrrev_b32 v5, 5, v2\nv_and_b32 v4, 3, v2\nv_lshlrev_b32 v4, 4, v4")
    A(f"v_lshl_add_u32 v6, v5, 6, v3\nv_add3_u32 v13, v6, v4, s{sT1}\nv_xor_b32 v14, 32, v13\nv_add_u32 v14, {8*7168}, v14")
    A(f"s_xor_b32 s{sT0}, s{sT0}, 1\ns_mul_i32 s{sT0}, s{sT0}, 384\nv_lshrrev_b32 v3, 2, v2\nv_mul_u32_u24 v3, 7168, v3\nv_lshlrev_b32 v5, 5, v5\nv_xor_b32 v4, v4, v5\nv_add3_u32 v12, v3, v4, s{sT0}")
    A(f"s_mul_i32 s59, s{sP}, {16*7168}\ns_mul_i32 s{sT0}, s{sFt}, 448\ns_add_u32 s59, s59, s{sT0}\ns_add_u32 s{sKW}, s{sKW}, s59\ns_add_u32 s58, s59, {1024*7168}")
    A(f"s_mul_i32 s{sLW}, s{sP}, 7168\ns_add_u32 s{sLW}, s{sLW}, {WOFF}\ns_mov_b32 s{sRing}, {2*WST}")
    srd(A,SW1,6,W_BYTES)
    if la1 or tearly: issueW1(0)
    else: issueW1(); issueX(); issueW1()
    srd(A,SW2,8,W_BYTES); srd(A,SWS,14,0x10000000)
    if diag==5: srd(A,SD,12,256)
    sHp,sHalf=55,56
    if tlb:
        A(f"s_cmp_lt_u32 s2, {tlb}\ns_cbranch_scc0 P1_ntlb\ns_lshl_b32 s{sT0}, s{sP}, 21")
        A(f"s_add_u32 s4, s8, s{sT0}\ns_addc_u32 s5, s9, 0\ns_load_dword s0, s[4:5], 0")
        A(f"s_lshr_b32 s{sT1}, s{sT0}, 1\ns_add_u32 s4, s10, s{sT1}\ns_addc_u32 s5, s11, 0\ns_load_dword s0, s[4:5], 0")
        for b in (0, 8<<20, 16<<20, P_OFF, F_OFF):
            A(f"s_add_u32 s{sT1}, s{sT0}, {b}\ns_add_u32 s4, s14, s{sT1}\ns_addc_u32 s5, s15, 0\ns_load_dword s0, s[4:5], 0")
        A("P1_ntlb:")
    A(f"s_lshr_b32 s4, s{sLid}, 3\ns_lshl_b32 s4, s4, 10\ns_add_u32 s4, s4, {F_OFF+fch*128}\ns_add_u32 s4, s14, s4\ns_addc_u32 s5, s15, 0")
    A(f"s_lshl_b32 s6, s{sMt}, 4\ns_add_u32 s6, s12, s6\ns_addc_u32 s7, s13, 0")
    def spf():
        if pf2 not in (3,4): return
        for k in range(4): A(f"s_load_dword s12, s[8:9], {k*64}")
        A(f"s_add_u32 s13, s13, 1\ns_and_b32 s{sT0}, s13, 7\ns_cselect_b32 s{sT0}, 0, {131072-2048}\ns_add_u32 s{sT0}, s{sT0}, 256\ns_add_u32 s8, s8, s{sT0}\ns_addc_u32 s9, s9, 0")
    if pf2 in (3,4):
        A(f"s_lshl_b32 s12, s2, 2\ns_add_u32 s12, s12, s{sP}")
        A(f"s_lshr_b32 s{sT0}, s12, 6\ns_mul_i32 s13, s{sT0}, 7\ns_and_b32 s{sT0}, s{sT0}, 1")
        A(f"s_xor_b32 s{sT1}, s{sT0}, 1\ns_mul_i32 s{sT1}, s{sT1}, 6\ns_add_u32 s{sT1}, s{sT1}, s13\ns_lshl_b32 s{sT1}, s{sT1}, 16\ns_and_b32 s14, s12, 63\ns_lshl_b32 s14, s14, 10\ns_add_u32 s{sT1}, s{sT1}, s14")
        A(f"s_add_u32 s14, s8, s{sT1}\ns_addc_u32 s15, s9, 0")
        A(f"s_add_u32 s13, s13, s{sT0}\ns_lshl_b32 s13, s13, 16\ns_and_b32 s12, s12, 63\ns_lshl_b32 s12, s12, 11\ns_add_u32 s13, s13, s12\ns_add_u32 s8, s8, s13\ns_addc_u32 s9, s9, 0\ns_mov_b32 s13, 0")
    A(f"s_lshr_b32 s{sHp}, s{sP}, 1\ns_and_b32 s{sHalf}, s{sP}, 1")
    A("v_subrev_u32 v5, 3, v2\nv_mul_u32_u24 v3, 37, v5\nv_lshrrev_b32 v3, 8, v3\nv_mul_u32_u24 v4, 7, v3\nv_sub_u32 v4, v5, v4")
    if skew2==3: A(f"v_add_u32 v6, s{sMt}, v3\nv_and_b32 v6, 3, v6\nv_add_u32 v4, v6, v4\nv_subrev_u32 v6, 7, v4\nv_min_u32 v4, v4, v6")
    elif skew2: A(f"s_and_b32 s{sT0}, s{sMt}, 3\ns_mul_i32 s{sT0}, s{sT0}, {3-skew2}\nv_add_u32 v4, s{sT0}, v4\nv_subrev_u32 v6, 7, v4\nv_min_u32 v4, v4, v6")
    A("v_add_u32 v4, 1, v4")
    A("v_cmp_gt_u32 vcc, 3, v2\ns_nop 1\nv_cndmask_b32 v3, v3, v2, vcc\nv_cndmask_b32 v4, v4, 0, vcc")
    A(f"v_add_u32 v4, s{sFt8}, v4\nv_and_b32 v4, 7, v4\nv_and_b32 v6, 1, v4\nv_mul_u32_u24 v4, 7, v4\nv_lshl_add_u32 v4, v3, 1, v4\nv_add3_u32 v4, v4, v6, s{sHp}")
    A(f"s_and_b32 s{sT0}, s{sMt}, {3 if skew2 else 0}\nv_add_u32 v5, s{sT0}, v2\nv_and_b32 v5, 3, v5\nv_mul_u32_u24 v5, 14, v5\nv_add3_u32 v5, v5, 6, s{sHp}")
    A("v_cmp_gt_u32 vcc, 24, v2\ns_nop 1\nv_cndmask_b32 v4, v5, v4, vcc\nv_and_b32 v4, 63, v4")
    A(f"s_mul_i32 s{sT0}, s{sJ}, 56\nv_add_u32 v4, s{sT0}, v4")
    A(f"s_mul_i32 s{sT0}, s{sMt}, {112*CH}\ns_mul_i32 s{sT1}, s{sHalf}, {QS}\ns_add_u32 s{sT0}, s{sT0}, s{sT1}")
    A(f"v_mul_u32_u24 v20, {CH}, v4\nv_add_u32 v20, s{sT0}, v20")
    A(f"s_lshl_b32 s{sT0}, s{sHalf}, 15\ns_lshl_b32 s{sT1}, s{sHalf}, 13\nv_mov_b32 v5, s{sT0}\nv_mov_b32 v6, s{sT1}\nv_cndmask_b32 v5, v6, v5, vcc")
    A(f"v_lshl_add_u32 v21, v4, 16, v5\ns_lshl_b32 s{sT0}, s{sDt}, 8\nv_add_u32 v21, s{sT0}, v21")
    A("v_and_b32 v4, 3, v2\nv_bfe_u32 v5, v2, 4, 1\nv_lshlrev_b32 v6, 1, v5\nv_xor_b32 v4, v4, v6\nv_lshlrev_b32 v4, 4, v4")
    A("v_lshrrev_b32 v6, 5, v2\nv_lshl_add_u32 v4, v6, 6, v4")
    A("v_bfe_u32 v6, v2, 2, 3\nv_lshl_add_u32 v22, v6, 11, v4\nv_add_u32 v23, 0x4000, v22")
    A("v_lshl_add_u32 v24, v5, 13, v22\nv_add_u32 v25, 0x8000, v24")
    fragoffs(26)
    if tight1:
        assert rot==8 and tearly==2 and not nsh and not la1 and spub and hsi and not two
        A(f"v_bfe_u32 v3, v2, 3, 1\nv_xor_b32 v3, s{sMt}, v3\nv_and_b32 v3, 1, v3\nv_lshl_add_u32 v3, v3, 1, v2\nv_and_b32 v3, 7, v3\nv_and_b32 v4, 8, v2\nv_add3_u32 v3, v3, v4, s62\nv_and_b32 v3, 15, v3")
        A(f"v_lshlrev_b32 v30, 7, v3\nv_mul_u32_u24 v31, {64*7168}, v3\nv_add_u32 v31, s59, v31")
    if diag==5: stamp(8)
    if tight1:
        xl=[f"buffer_load_dwordx4 v{8+n}, {R4(SX)}, s{sKX} offen {xaux} lds" for n in range(4)]
        wl=[f"buffer_load_dwordx4 v{13+(n&1)}, {R4(SW1)}, s{sKW} offen offset:{(n>>1)*128} {w1aux} lds" for n in range(6)]+[f"buffer_load_dwordx4 v12, {R4(SW1)}, s{sKW} offen {w1aux} lds"]
        inc=[1024,896,1024,896,1024,1280]
        def Wt(): A(f"s_mov_b32 m0, s1\ns_nop 0\n{wl[4]}\ns_add_u32 m0, m0, {inc[4]}\ns_nop 0\n{wl[5]}\ns_add_u32 m0, m0, {inc[5]}\ns_nop 0\n{wl[6]}")
        def Xs(fill):
            A(f"s_add_u32 m0, s{sRX}, s{sLX}\ns_add_u32 s{sRX}, s{sRX}, 16384")
            for n in range(4):
                A(xl[n])
                if n<3: A(f"s_add_u32 m0, m0, 1024\n{fill[n]}")
        assert hd==4
        andx=f"s_and_b32 s{sRX}, s{sRX}, 0xffff"
        A(f"v_readlane_b32 s{sKX}, v30, 1")
        Wt(); Xs([f"v_readlane_b32 s{sKW}, v31, 1", andx, "s_nop 0"])
        issueW1(0)
        A(f"v_readlane_b32 s{sKX}, v30, 2\ns_waitcnt vmcnt(8)")
        stamp(2)
        A("s_barrier")
        Wt(); Xs([f"v_readlane_b32 s{sKW}, v31, 2", andx, f"s_mov_b32 s{sCnt}, 2"])
        A(f"s_mov_b32 s0, {(1<<(ack+2+3))|(1<<(hsi+3))}\ns_add_u32 m0, s{sRing}, s{sLW}\ns_branch P1_w")
        A(".p2align 3\nP1_loop:")
        A(f"s_bitcmp1_b32 s0, s{sCnt}\ns_cbranch_scc1 P1_hk\nP1_hkb:")
        Xs([f"v_readlane_b32 s{sKW}, v31, s{sCnt}", andx, "s_nop 0"])
        A(f"s_add_u32 m0, s{sRing}, s{sLW}\ns_waitcnt vmcnt(15)\ns_barrier\nP1_w:")
        fill=[f"s_add_u32 s{sCnt}, s{sCnt}, 1", f"s_add_u32 s{sRing}, s{sRing}, {WST}", f"v_readlane_b32 s{sKX}, v30, s{sCnt}",
              f"s_cmp_eq_u32 s{sRing}, {WST*3}\ns_cselect_b32 s{sRing}, 0, s{sRing}", "s_nop 0", f"s_cmp_lt_u32 s{sCnt}, 16"]
        for n in range(7):
            A(wl[n])
            if n<6: A(f"s_add_u32 m0, m0, {inc[n]}\n{fill[n]}")
        A("s_cbranch_scc1 P1_loop\ns_branch P1_done")
        A(f"P1_hk:\ns_cmp_eq_u32 s{sCnt}, {hsi+3}\ns_cbranch_scc0 P1_hk1\ns_cmp_eq_u32 s{sP}, 0\ns_cbranch_scc0 P1_hkb\ns_load_dwordx4 s[8:11], s[6:7], 0 {hsglc}\ns_branch P1_hkb")
        A(f"P1_hk1:\ns_cmp_eq_u32 s{sP}, 2\ns_cbranch_scc0 P1_hkb\ns_and_b32 s1, s{sFt}, 3\ns_lshl_b32 s1, s1, 3\ns_lshl_b32 s1, 1, s1\ns_and_b32 s{sT0}, s{sFt}, 12\ns_atomic_or s1, s[6:7], s{sT0}\ns_branch P1_hkb")
        A("P1_done:")
        pad()
    else:
        if la1:
            A(f"s_mov_b32 s{sCnt}, -1\ns_branch P1_in")
            A(f"P1_loop:\ns_waitcnt vmcnt({4+hd})")
            if diag: A(f"s_cmp_eq_u32 s{sCnt}, 0\ns_cbranch_scc0 P1_ns"); stamp(2); A("P1_ns:")
            A("s_barrier\nP1_in:")
            issueW1(1); issueX(); issueW1(0)
        else:
            if nsh:
                A(f"s_mov_b32 s{sCnt}, -1\ns_branch P1_shin\nP1_sh:\ns_waitcnt vmcnt({4+hd})")
                if diag: A(f"s_cmp_eq_u32 s{sCnt}, 0\ns_cbranch_scc0 P1_ns"); stamp(2); A("P1_ns:")
                A("s_barrier\nP1_shin:")
                issueW1(1); issueX()
                A(f"s_cmp_eq_u32 s{sCnt}, {nsh}\ns_cbranch_scc1 P1_in")
                issueW1(0)
                A(f"s_add_u32 s{sCnt}, s{sCnt}, 1\ns_branch P1_sh")
            else:
                if tearly==1: issueW1(1); issueX(); issueW1()
                if tearly==2: issueW1(1); issueX(); issueW1(0)
                A(f"s_waitcnt vmcnt({4+hd if tearly==2 else 11})")
                stamp(2)
                A("s_barrier")
                if tearly==2: issueW1(1)
                issueX()
                A(f"s_mov_b32 s{sCnt}, 0\ns_branch P1_in")
            A("P1_loop:\ns_waitcnt vmcnt(15)\ns_barrier\nP1_in:")
            issueW1(); issueX()
        if spub and two:
            A(f"s_lshl_b32 s{sT0}, s{sP}, 8\ns_add_u32 s{sT0}, s{sT0}, s{sCnt}\ns_cmp_eq_u32 s{sT0}, {512+4}\ns_cselect_b32 s0, 1, 0\ns_cmp_eq_u32 s{sT0}, {512+ack+2}\ns_cselect_b32 s0, 2, s0\ns_cmp_eq_u32 s0, 0\ns_cbranch_scc1 P1_npub")
            A(f"s_and_b32 s{sT0}, s{sFt}, 3\ns_lshl_b32 s{sT0}, s{sT0}, 3\ns_lshl_b32 s0, s0, s{sT0}\ns_and_b32 s{sT0}, s{sFt}, 12\ns_atomic_or s0, s[6:7], s{sT0}\nP1_npub:")
        elif spub:
            A(f"s_lshl_b32 s{sT0}, s{sP}, 8\ns_add_u32 s{sT0}, s{sT0}, s{sCnt}\ns_cmp_eq_u32 s{sT0}, {512+ack+2}\ns_cbranch_scc0 P1_npub")
            A(f"s_and_b32 s0, s{sFt}, 3\ns_lshl_b32 s0, s0, 3\ns_lshl_b32 s0, 1, s0\ns_and_b32 s{sT0}, s{sFt}, 12\ns_atomic_or s0, s[6:7], s{sT0}\nP1_npub:")
        if hsi:
            assert pf2 not in (3,4)
            A(f"s_lshl_b32 s{sT0}, s{sP}, 8\ns_add_u32 s{sT0}, s{sT0}, s{sCnt}\ns_cmp_eq_u32 s{sT0}, {hsi}\ns_cbranch_scc0 P1_nh\ns_load_dwordx4 s[8:11], s[6:7], 0 {hsglc}\nP1_nh:")
        if pf2==4:
            spf()
            A(f"s_cmp_lt_u32 s{sCnt}, 3\ns_cbranch_scc0 P1_nspf")
            spf()
            A("P1_nspf:")
        if pf2==3:
            A(f"s_sub_u32 s{sT0}, s{sCnt}, {spa}\ns_cmp_lt_u32 s{sT0}, {spb-spa}\ns_cbranch_scc0 P1_nspf")
            spf()
            A("P1_nspf:")
        A(f"s_add_u32 s{sCnt}, s{sCnt}, 1\ns_cmp_lt_u32 s{sCnt}, {14 if la1 else 13}\ns_cbranch_scc1 P1_loop")
        pad()
        A(f"s_waitcnt vmcnt({4+hd if la1 else 15})\ns_barrier")
        issueW1(1 if la1 else None)
    sW,sH,sSlot,sLW2,sLH=47,48,51,50,49
    A(f"s_lshl_b32 s{sLH}, s{sP}, 12\ns_add_u32 s{sLW2}, s{sLH}, 65536\ns_mov_b32 s{sCnt}, 0\ns_mov_b32 s{sSlot}, 0")
    def issueW():
        A(f"s_add_u32 m0, s{sLW2}, s{sSlot}\ns_nop 0")
        for n in range(4):
            o,tb=n>>1,n&1
            A(f"buffer_load_dwordx4 v{22+o}, {R4(SW2)}, s{sW} offen offset:{tb*128} {w2aux} lds")
            if n<3: A(f"s_add_u32 m0, m0, {896 if tb==0 else 1024+128}\ns_nop 0")
    def issueH():
        A(f"s_add_u32 m0, s{sLH}, s{sSlot}\ns_nop 0")
        for n in range(4):
            A(f"buffer_load_dwordx4 v{26+n}, {R4(SWS)}, s{sH} offen sc1 lds")
            if n<3: A("s_add_u32 m0, m0, 1024\ns_nop 0")
    A(f"v_readlane_b32 s{sW}, v21, 0")
    if not la1: A("s_waitcnt vmcnt(7)\ns_barrier")
    if not hsi: A(f"s_cmp_eq_u32 s{sP}, 0\ns_cbranch_scc0 P2_nh\ns_load_dwordx4 s[8:11], s[6:7], 0 glc\nP2_nh:")
    A("s_waitcnt vmcnt(0)\ns_barrier")
    def nextW(): A(f"s_add_u32 s{sCnt}, s{sCnt}, 1\ns_add_u32 s{sSlot}, s{sSlot}, 16384\nv_readlane_b32 s{sW}, v21, s{sCnt}\ns_nop 2")
    if w2e:
        A("s_branch P2_w0\nP2_w:"); nextW(); A("P2_w0:"); issueW()
        A(f"s_cmp_lt_u32 s{sCnt}, {w2e}\ns_cbranch_scc1 P2_w")
        A("s_barrier")
        pad()
        A("P2_w2:"); nextW(); issueW()
        A(f"s_cmp_lt_u32 s{sCnt}, 3\ns_cbranch_scc1 P2_w2")
    else:
        issueW()
        A("s_barrier")
        pad()
        A("P2_w:"); nextW(); issueW()
        A(f"s_cmp_lt_u32 s{sCnt}, 3\ns_cbranch_scc1 P2_w")
    A(f"s_cmp_eq_u32 s{sP}, 0\ns_cbranch_scc0 P2_hsd\ns_mov_b32 s58, 0\ns_branch P2_hsw")
    A("P2_hs:\ns_load_dwordx4 s[8:11], s[6:7], 0 glc\ns_add_u32 s58, s58, 1\nP2_hsw:\ns_waitcnt lgkmcnt(0)")
    A(f"s_and_b32 s8, s8, s9\ns_and_b32 s10, s10, s11\ns_and_b32 s8, s8, s10\ns_and_b32 s8, s8, 0x01010101\ns_cmp_ge_u32 s58, {SPIN}\ns_cbranch_scc1 P2_hsd\ns_cmp_eq_u32 s8, 0x01010101\ns_cbranch_scc0 P2_hs\nP2_hsd:")
    A(f"s_lshr_b32 s59, s{sLid}, 3\ns_lshl_b32 s59, s59, 10\ns_add_u32 s59, s59, {F_OFF+fch*128}\ns_lshl_b32 s{sT0}, s{sFt8}, 2")
    A(f"v_mov_b32 v5, {OOB}\nv_mov_b32 v6, s{sT0}\nv_cmp_eq_u32 vcc, 0, v2\nv_and_b32 v3, 7, v2\nv_lshlrev_b32 v3, 2, v3\nv_cndmask_b32 v6, v5, v6, vcc\nv_mov_b32 v5, 1")
    A(f"v_readlane_b32 s{sH}, v20, 3\ns_waitcnt vmcnt(12)")
    stamp(3)
    A("s_barrier")
    stamp(6)
    A(f"s_cmp_eq_u32 s{sP}, 1\ns_cbranch_scc0 P2_nf\nbuffer_store_dword v5, v6, {R4(SWS)}, s59 offen sc1\ns_nop 1\nv_mov_b32 v5, 7\nP2_nf:")
    A(f"s_mov_b32 s62, 0\ns_cmp_eq_u32 s{sP}, 0\ns_cbranch_scc1 P2_p0\ns_waitcnt vmcnt(0)\ns_branch P2_go\nP2_p0:\ns_mov_b32 s58, 0")
    if pdelay: A(f"s_mov_b32 s16, 0\nP2_dl:\ns_add_u32 s16, s16, 1\ns_cmp_lt_u32 s16, {pdelay}\ns_cbranch_scc1 P2_dl")
    stamp(7)
    if vpoll:
        A(f"P2_l1:\nbuffer_load_dword v4, v3, {R4(SWS)}, s59 offen sc1\ns_add_u32 s58, s58, 1\ns_waitcnt vmcnt(0)\nv_cmp_eq_u32 vcc, 0, v4")
        spin_tail("P2_l1")
    else:
        A("P2_l1:\ns_load_dwordx8 s[16:23], s[4:5], 0 glc\ns_add_u32 s58, s58, 1\ns_waitcnt lgkmcnt(0)")
        A("s_and_b64 s[16:17], s[16:17], s[18:19]\ns_and_b64 s[20:21], s[20:21], s[22:23]\ns_and_b64 s[16:17], s[16:17], s[20:21]\ns_and_b32 s16, s16, s17")
        A(f"s_cmp_ge_u32 s58, {SPIN}\ns_cbranch_scc1 P2_rdy\ns_bitcmp1_b32 s16, 0\ns_cbranch_scc1 P2_rdy")
        if la2: A(f"s_cmp_eq_u32 s58, {npoll}\ns_cbranch_scc0 P2_l1\ns_waitcnt vmcnt(0)\ns_barrier\ns_mov_b32 s62, 1")
        A("s_branch P2_l1")
    A("P2_rdy:")
    if diag and diag!=5: stamp(9); A("s_mov_b32 s80, s58")
    A(f"s_mov_b32 m0, 49152\ns_mov_b32 s58, 0")
    A("P2_h3:")
    for n in range(4): A(f"buffer_load_dwordx4 v{26+n}, {R4(SWS)}, s{sH} offen sc1 lds\ns_add_u32 m0, m0, 1024\n"+("s_nop 0" if n<3 else f"s_add_u32 s{sH}, s{sH}, {QS}"))
    A("s_add_u32 s58, s58, 1\ns_cmp_lt_u32 s58, 4\ns_cbranch_scc1 P2_h3")
    A("P2_go:")
    pad()
    stamp(4)
    PL=f"buffer_load_dword v4, v3, {R4(SWS)}, s59 offen sc1"
    POOL=[]
    if tight2:
        assert not la2 and not two and pf2 not in (3,4) and l1epi==3
        mask=(1<<(l1st+5))|(1<<9)|(1<<10)|(1<<23)
        wl=[f"buffer_load_dwordx4 v{22+(n>>1)}, {R4(SW2)}, s{sW} offen offset:{(n&1)*128} {w2aux} lds" for n in range(4)]
        hl=[f"buffer_load_dwordx4 v{26+n}, {R4(SWS)}, s{sH} offen sc1 lds" for n in range(4)]
        A(f"s_mov_b32 s{sCnt}, 4\ns_mov_b32 s57, {mask}\nv_readlane_b32 s{sW}, v21, 4\ns_mov_b32 s{sSlot}, 0\ns_mov_b32 m0, s{sLW2}\ns_branch P2_bar")
        A(".p2align 3\nP2_loop:")
        A(f"s_bitcmp1_b32 s57, s{sCnt}\ns_cbranch_scc1 P2_hk\nP2_hkb:")
        A(f"s_add_u32 m0, s{sLH}, s{sSlot}\ns_add_u32 s{sCnt}, s{sCnt}, 1")
        A(f"{hl[0]}\ns_add_u32 m0, m0, 1024\nv_readlane_b32 s{sW}, v21, s{sCnt}")
        A(f"{hl[1]}\ns_add_u32 m0, m0, 1024\ns_add_u32 s{sSlot}, s{sSlot}, 16384")
        A(f"{hl[2]}\ns_add_u32 m0, m0, 1024\ns_and_b32 s{sSlot}, s{sSlot}, 0xffff")
        A(f"{hl[3]}\ns_add_u32 m0, s{sLW2}, s{sSlot}\nP2_bar:\ns_waitcnt vmcnt(16)\ns_barrier")
        A(f"s_cmp_lt_u32 s{sCnt}, 28\ns_cbranch_scc0 P2_out")
        A(f"{wl[0]}\ns_add_u32 m0, m0, 896\nv_readlane_b32 s{sH}, v20, s{sCnt}")
        A(f"{wl[1]}\ns_add_u32 m0, m0, 1152\ns_nop 0")
        A(f"{wl[2]}\ns_add_u32 m0, m0, 896\ns_nop 0")
        A(f"{wl[3]}\ns_branch P2_loop")
        A("P2_hk:"); pad()
        A(f"s_cmp_eq_u32 s{sCnt}, 23\ns_cbranch_scc0 P2_hk1\nv_mov_b32 v22, v24\nv_mov_b32 v23, v25\ns_branch P2_hkb")
        A(f"P2_hk1:\ns_cmp_eq_u32 s{sCnt}, 9\ns_cbranch_scc0 P2_hk2\n{PL}\ns_branch P2_hkb")
        A(f"P2_hk2:\ns_cmp_eq_u32 s{sCnt}, 10\ns_cbranch_scc1 P2_hk3\ns_cmp_eq_u32 s{sP}, 1\ns_cbranch_scc0 P2_hkb\nbuffer_store_dword v5, v6, {R4(SWS)}, s59 offen sc1\ns_branch P2_hkb")
        A("P2_hk3:\ns_waitcnt vmcnt(8)\nv_cmp_gt_u32 vcc, 7, v4\ns_mov_b32 s58, 0\ns_nop 3\ns_cbranch_vccz P2_hkb")
        A(f"P2_l2:\n{PL}\ns_add_u32 s58, s58, 1\ns_waitcnt vmcnt(0)\nv_cmp_gt_u32 vcc, 7, v4")
        spin_tail("P2_l2")
        A("s_branch P2_hkb\nP2_out:")
    else:
        A(f"s_mov_b32 s{sCnt}, 4\ns_mov_b32 s57, 7")
        if la2: A("s_cmp_eq_u32 s62, 0\ns_cbranch_scc0 P2_loop\ns_waitcnt vmcnt(16)\ns_barrier")
        A("P2_loop:")
        A(f"v_readlane_b32 s{sW}, v21, s{sCnt}\nv_readlane_b32 s{sH}, v20, s{sCnt}")
        A(f"s_add_u32 s{sSlot}, s{sSlot}, 16384\ns_and_b32 s{sSlot}, s{sSlot}, 0xffff")
        A(f"s_cmp_eq_u32 s{sCnt}, 24\ns_cbranch_scc0 P2_a\nv_mov_b32 v22, v24\nv_mov_b32 v23, v25\nP2_a:")
        if la2: A(f"s_cmp_eq_u32 s{sCnt}, 4\ns_cbranch_scc1 P2_nw\ns_waitcnt vmcnt(8)\nP2_nw:\ns_barrier")
        else: A("s_waitcnt vmcnt(16)\ns_barrier")
        assert l1epi==3 or sched==9
        A(f"s_lshl_b32 s{sT0}, s{sP}, 8\ns_add_u32 s{sT0}, s{sT0}, s{sCnt}\ns_cmp_eq_u32 s{sT0}, {256+l1st+(4 if la2 else 5)}\ns_cbranch_scc0 P2_nf2\nbuffer_store_dword v5, v6, {R4(SWS)}, s59 offen sc1\nP2_nf2:")
        if two:
            A(f"s_cmp_eq_u32 s{sT0}, 14\ns_cbranch_scc0 P2_n2a\ns_load_dwordx4 s[8:11], s[6:7], 0 glc\nP2_n2a:")
            A(f"s_cmp_eq_u32 s{sT0}, 20\ns_cbranch_scc0 P2_n2b\ns_mov_b32 s58, 0\ns_branch P2_h2w\nP2_h2:\ns_load_dwordx4 s[8:11], s[6:7], 0 glc\ns_add_u32 s58, s58, 1\nP2_h2w:\ns_waitcnt lgkmcnt(0)")
            A(f"s_and_b32 s8, s8, s9\ns_and_b32 s10, s10, s11\ns_and_b32 s8, s8, s10\ns_cmp_ge_u32 s58, {SPIN}\ns_cbranch_scc1 P2_n2b\ns_cmp_eq_u32 s8, 0x03030303\ns_cbranch_scc0 P2_h2\nP2_n2b:")
        A(f"s_cmp_eq_u32 s{sCnt}, 9\ns_cbranch_scc0 P2_np\n{PL}\nP2_np:")
        A(f"s_cmp_eq_u32 s{sCnt}, 10\ns_cbranch_scc0 P2_b")
        A("s_waitcnt vmcnt(8)\nv_cmp_gt_u32 vcc, s57, v4\ns_mov_b32 s58, 0\ns_nop 3\ns_cbranch_vccz P2_ok")
        A(f"P2_l2:\n{PL}\ns_add_u32 s58, s58, 1\ns_waitcnt vmcnt(0)\nv_cmp_gt_u32 vcc, s57, v4")
        spin_tail("P2_l2")
        A("P2_ok:\ns_mov_b32 s57, 7")
        A("P2_b:")
        pad()
        issueW(); issueH()
        if pf2==3:
            A("s_cmp_eq_u32 s13, 24\ns_cselect_b32 s8, s14, s8\ns_cselect_b32 s9, s15, s9\ns_cmp_lt_u32 s13, 28\ns_cbranch_scc0 P2_nspf")
            spf()
            A("P2_nspf:")
        A(f"s_add_u32 s{sCnt}, s{sCnt}, 1\ns_cmp_lt_u32 s{sCnt}, 28\ns_cbranch_scc1 P2_loop")
    A(("" if (la2 or tight2) else "s_waitcnt vmcnt(16)\ns_barrier\n")+"s_waitcnt vmcnt(8)\ns_barrier\ns_waitcnt vmcnt(0)\ns_barrier")
    if diag: stamp(5); rstamp(15); flush(16)
    A("s_endpgm")
    A(".p2align 6\nL_cons:")
    ACC=16; F=[(128,144),(172,188)]
    vX0,vX1,vE,vO,vL=4,5,6,7,8; bX0,bE,bL=9,10,11
    sWm,sWf,sIt,sRg,sA,sB,sC=46,47,48,49,58,7,59
    sHA,sH3,sRX2,sClr,sPf=50,51,4,5,6
    vOwn,vT3,vH,vW=232,233,235,[236,237,238,239]
    if pfc and not fast:
        A(f"s_getpc_b64 s[54:55]\nC_pc:\ns_sub_u32 s54, s54, C_pc-{NAME}\ns_subb_u32 s55, s55, 0")
        A(f"v_lshlrev_b32 v3, 7, v0\nv_min_u32 v3, L_end-{NAME}, v3\nglobal_load_dword v255, v3, s[54:55]")
    if pf1==1 and not fast:
        A(f"v_and_b32 v15, 31, v2\nv_lshlrev_b32 v15, 7, v15\ns_lshl_b32 s{sA}, s2, 2\ns_add_u32 s{sA}, s{sA}, s3\ns_lshl_b32 s{sA}, s{sA}, 12")
    if pf1==3:
        A(f"v_and_b32 v15, 7, v2\nv_lshlrev_b32 v15, 7, v15\nv_bfe_u32 v14, v2, 3, 1\nv_lshl_add_u32 v15, v14, 11, v15\ns_lshl_b32 s{sA}, s2, 2\ns_add_u32 s{sA}, s{sA}, s3\ns_lshl_b32 s{sA}, s{sA}, 12\nv_mov_b32 v252, v15")
    if pf1==2:
        A(f"v_lshlrev_b32 v15, 7, v2\ns_lshr_b32 s{sA}, s2, 3\ns_lshl_b32 s{sA}, s{sA}, 2\ns_add_u32 s{sA}, s{sA}, s3\ns_lshl_b32 s{sA}, s{sA}, 13\ns_lshr_b32 s{sB}, s{sXcd}, 1\ns_lshl_b32 s{sB}, s{sB}, 20\ns_add_u32 s{sA}, s{sA}, s{sB}")
    A("s_waitcnt lgkmcnt(0)")
    if pf1 and not (fast and pf1==1):
        srd(A,SX,4,X_BYTES)
        A(f"buffer_load_dword v253, v15, {R4(SX)}, s{sA} offen")
        if pf1==3: srd(A,SW1,6,W_BYTES)
    if diag==5: stamp(6)
    A("s_setprio 1")
    A(f"s_lshr_b32 s{sWm}, s3, 1\ns_and_b32 s{sWf}, s3, 1")
    A("v_and_b32 v3, 15, v2\nv_lshrrev_b32 v12, 4, v2")
    A("v_lshrrev_b32 v13, 1, v3\nv_xor_b32 v13, v13, v12\nv_lshlrev_b32 v13, 4, v13")
    A(f"s_lshl_b32 s{sA}, s{sWm}, 13\nv_lshlrev_b32 v14, 7, v3\nv_add3_u32 v{bX0}, v13, v14, s{sA}")
    A("v_lshrrev_b32 v13, 1, v12\nv_mul_u32_u24 v13, 7168, v13\nv_bfe_u32 v15, v2, 2, 2\nv_lshl_add_u32 v13, v15, 6, v13\nv_and_b32 v15, 3, v2\nv_lshl_add_u32 v13, v15, 3, v13")
    A(f"v_and_b32 v14, 1, v12\nv_mul_u32_u24 v15, 1056, v14\ns_lshl_b32 s{sA}, s{sWf}, 9\ns_add_u32 s{sA}, s{sA}, {WOFF}\nv_add3_u32 v{bE}, v13, v15, s{sA}")
    A(f"v_mul_u32_u24 v15, 544, v14\nv_add_u32 v13, v13, v15\ns_lshl_b32 s{sA}, s{sWf}, 5\nv_xor_b32 v13, s{sA}, v13\nv_add_u32 v{bL}, {WOFF+6144}, v13")
    VF=248
    fragoffs(VF)
    A(f"v_add_u32 v{vE}, {2*WST}, v{bE}\nv_mov_b32 v{vX0}, v{bX0}\nv_add_u32 v{vL}, {2*WST}, v{bL}\nv_xor_b32 v{vO}, 32, v{vE}\nv_xor_b32 v{vX1}, 64, v{vX0}")
    srd(A,SO,10,O_BYTES); srd(A,SWS,14,0x10000000); srd(A,SW2,8,W_BYTES)
    if diag==5 or not spub: srd(A,SD,12,256)
    A("v_lshlrev_b32 v3, 4, v2")
    A(f"s_lshr_b32 s56, s{sLid}, 3\ns_lshl_b32 s56, s56, 10\ns_lshl_b32 s{sB}, s{sFt8}, 2\ns_add_u32 s56, s56, s{sB}\ns_add_u32 s56, s56, {F_OFF+fch*128}")
    A(f"v_mov_b32 v1, {OOB}\nv_cmp_eq_u32 vcc, 0, v2\ns_nop 1\nv_cndmask_b32 v1, v1, 0, vcc")
    A(f"s_andn2_b32 s57, s{sLid}, 7\ns_add_u32 s57, s57, s{sDt}\ns_lshl_b32 s57, s57, 2\ns_add_u32 s57, s57, s3\ns_mul_i32 s57, s57, {QS}\ns_add_u32 s57, s57, {P_OFF}")
    A(f"s_lshl_b32 s52, s{sWm}, 12\nv_add_u32 v{vH}, s52, v3")
    A("v_lshrrev_b32 v13, 5, v2\nv_lshlrev_b32 v13, 11, v13\nv_bfe_u32 v14, v2, 4, 1\nv_mul_u32_u24 v14, 288, v14\nv_add_u32 v13, v13, v14")
    A("v_bfe_u32 v15, v2, 2, 2\nv_lshl_add_u32 v13, v15, 6, v13\nv_and_b32 v15, 3, v2\nv_lshl_add_u32 v13, v15, 3, v13")
    A(f"s_lshl_b32 s52, s{sJ}, 1\ns_add_u32 s52, s52, s{sWf}\ns_lshl_b32 s52, s52, 9\ns_add_u32 s52, s52, 65536\nv_add_u32 v{vW[0]}, s52, v13")
    A(f"v_xor_b32 v{vW[1]}, 32, v{vW[0]}\nv_xor_b32 v{vW[2]}, 0x400, v{vW[0]}\nv_xor_b32 v{vW[3]}, 0x420, v{vW[0]}")
    A(f"s_add_u32 s62, s{sFt8}, s3\ns_and_b32 s62, s62, {rmask}\ns_add_u32 s62, s62, {l2st+5}")
    A(f"s_mul_i32 s{sHA}, s{sMt}, 112\ns_mul_i32 s{sH3}, s{sFt}, 7\ns_add_u32 s{sHA}, s{sHA}, s{sH3}\ns_and_b32 s52, s{sFt8}, 1")
    A(f"s_xor_b32 s53, s52, 1\ns_mul_i32 s53, s53, 6\ns_add_u32 s{sH3}, s{sHA}, s53\ns_add_u32 s{sHA}, s{sHA}, s52\ns_add_u32 s{sHA}, s{sHA}, s{sWf}")
    A(f"s_mul_i32 s52, s{sWm}, {QS}\ns_mul_i32 s{sHA}, s{sHA}, {CH}\ns_add_u32 s{sHA}, s{sHA}, s52\ns_mul_i32 s{sH3}, s{sH3}, {CH}\ns_add_u32 s{sH3}, s{sH3}, s52\ns_lshl_b32 s52, s{sWm}, 12")
    A(f"s_lshl_b32 s53, s{sWf}, 13\ns_add_u32 s52, s52, s53\nv_add_u32 v{vOwn}, s52, v3")
    A(f"v_bfe_u32 v13, v2, 4, 1\nv_lshlrev_b32 v13, 3, v13\nv_lshrrev_b32 v14, 5, v2\nv_lshl_add_u32 v13, v14, 1, v13\nv_bfe_u32 v14, v2, 3, 1\ns_lshl_b32 s52, s{sWf}, 2\nv_add3_u32 v13, v13, v14, s52")
    A("v_add_u32 v14, 16, v13\nv_and_b32 v15, 7, v2\nv_lshlrev_b32 v15, 4, v15")
    physline(vT3,13,12); physline(vT3+1,14,12)
    A(f"v_add_u32 v{vT3}, v{vT3}, v15\nv_add_u32 v{vT3+1}, v{vT3+1}, v15")
    A("v_mov_b32 v12, 1\ns_mov_b32 s52, 0xbfb8aa3b\ns_mov_b32 s53, 0xbfb8aa3b\ns_mov_b32 s54, 1.0\ns_mov_b32 s55, 1.0")
    for r in range(112): A(f"v_mov_b32 v{ACC+r}, 0")
    for r in range(4): A(f"v_mov_b32 v{244+r}, -1")
    def hook(it, body, name, reg=None):
        OOL.append(f"{name}:\n{body}\ns_branch {name}_b")
        return [f"s_cmp_eq_u32 s{reg or sIt}, {it}", f"s_cbranch_scc1 {name}\n{name}_b:"]
    def reads1(u, fs):
        X,W=F[fs]
        xs=[f"ds_read_b128 {vr(X+4*i,4)}, v{vX1 if u else vX0} offset:{i*2048}" for i in range(4)]
        ws=[]
        for j in range(7):
            a,o=(vL,0) if j==6 else ((vO if j&1 else vE),(j>>1)*2048)
            for hh in range(2): ws.append(f"ds_read_b64_tr_b16 {vr(W+4*j+2*hh,2)}, v{a} offset:{u*14336+o+hh*256}")
        return ws[0:2]+xs+ws[2:]
    def mf1(fs):
        X,W=F[fs]
        return [f"v_mfma_f32_16x16x32_bf16 {vr(ACC+(j*4+i)*4,4)}, {vr(W+4*j,4)}, {vr(X+4*i,4)}, {vr(ACC+(j*4+i)*4,4)}" for j,i in snake(range(7),4)]
    A(f"s_mov_b32 s{sIt}, 0\ns_mov_b32 s{sRg}, {2*WST}\ns_mov_b32 s{sRX2}, 0\ns_add_u32 s{sClr}, s3, s{sFt8}\ns_and_b32 s{sClr}, s{sClr}, {cmask}\ns_add_u32 s{sClr}, s{sClr}, {cbase}")
    if two: A(f"s_mov_b32 s0, {1|4|(1<<ack)}")
    A(f"s_mul_i32 s{sPf}, s3, {pfb}\ns_add_u32 s{sPf}, s{sPf}, {pfa}")
    if pf2==2: A(f"v_min_u32 v15, 55, v2\nv_lshlrev_b32 v15, 7, v15\ns_lshl_b32 s{sA}, s2, 2\ns_add_u32 s{sA}, s{sA}, s3\ns_mul_i32 s{sA}, s{sA}, 7168\nbuffer_load_dword v255, v15, {R4(SW2)}, s{sA} offen")
    if diag in (2,3): A("s_mov_b32 m0, 0")
    clr="\n".join([f"buffer_store_dwordx4 v[244:247], v{VF+i}, {R4(SWS)}, s57 offen sc1" for i in range(4)])
    fclr=f"v_mov_b32 v13, 0\nbuffer_store_dword v13, v1, {R4(SWS)}, s56 offen sc1"
    if not two: clr=clr+"\n"+fclr
    if clr0: A(clr)
    if diag==5: stamp(8)
    if walk:
        A(f"s_cmp_ge_u32 s3, {walk}\ns_cbranch_scc1 C_walked\ns_waitcnt vmcnt({1 if pf1 else 0})\ns_mov_b64 exec, 0")
        for w in range(walk-1): A(f"s_cmp_eq_u32 s3, {w}\ns_cbranch_scc1 @START{w}@")
        A(f"s_branch @START{walk-1}@\nC_wret:\ns_mov_b64 exec, -1\nC_walked:")
    if diag==5: stamp(9)
    A("s_barrier")
    stamp(1)
    for l in reads1(0,0): A(l)
    A("s_waitcnt lgkmcnt(0)")
    A(".p2align 3\nC1_loop:")
    sstamp()
    ex=[f"s_add_u32 s{sRg}, s{sRg}, {WST}\ns_add_u32 s{sRX2}, s{sRX2}, 16384", f"s_cmp_eq_u32 s{sRg}, {WST*3}\ns_cselect_b32 s{sRg}, 0, s{sRg}",
        f"v_add_u32 v{vE}, s{sRg}, v{bE}\ns_and_b32 s{sRX2}, s{sRX2}, 0xffff", f"v_add_u32 v{vX0}, s{sRX2}, v{bX0}", f"v_add_u32 v{vL}, s{sRg}, v{bL}",
        f"v_xor_b32 v{vO}, 32, v{vE}", f"v_xor_b32 v{vX1}, 64, v{vX0}"]
    if not clr0: ex+=hook(f"s{sClr}" if stag else 2,clr,"H1_clr")
    for l in interleave(mf1(0), reads1(1,1)+ex): A(l)
    A("s_waitcnt lgkmcnt(0)\ns_barrier")
    pub=(f"s_cmp_eq_u32 s3, 0\ns_cbranch_scc0 H1_pub_b\ns_and_b32 s{sA}, s{sLid}, 3\ns_lshl_b32 s{sA}, s{sA}, 3\ns_lshl_b32 s{sA}, 1, s{sA}\nv_mov_b32 v13, s{sA}\n"
         f"s_andn2_b32 s{sA}, s{sLid}, 3\nv_lshlrev_b32 v14, 8, v2\nbuffer_atomic_or v13, v14, {R4(SD)}, s{sA} offen")
    if two:
        h=hook(0,f"s_cmp_eq_u32 s{sIt}, 0\ns_cbranch_scc1 H1_fc\ns_waitcnt vmcnt(0)\ns_branch H1_ack_b\nH1_fc:\n{fclr}","H1_ack")
        h[0]=f"s_bitcmp1_b32 s0, s{sIt}"
    else: h=hook(ack,"s_waitcnt vmcnt(0)","H1_ack")
    ex=h+([] if spub else hook(ack+1,pub,"H1_pub"))
    if pf1==3:
        nl=(16-w1s)*64*56//1024
        ex+=hook(pfi,f"s_lshl_b32 s{sA}, s2, 2\ns_add_u32 s{sA}, s{sA}, s3\ns_mul_i32 s{sB}, s{sA}, {nl*128}\ns_add_u32 s{sB}, s{sB}, {w1s*64*7168}\ns_lshl_b32 s{sA}, s{sA}, 12\n"
                     f"v_min_u32 v15, {nl-1}, v2\nv_lshlrev_b32 v15, 7, v15\nbuffer_load_dword v255, v15, {R4(SW1)}, s{sB} offen\nbuffer_load_dword v253, v252, {R4(SX)}, s{sA} offen offset:1024","H1_pf1")
    if pf2==4:
        ex+=hook(f"s{sPf}",f"s_lshl_b32 s{sA}, s2, 2\ns_add_u32 s{sA}, s{sA}, s3\ns_lshr_b32 s{sB}, s{sA}, 6\ns_and_b32 s60, s{sB}, 1\ns_mul_i32 s{sB}, s{sB}, 7\n"
                     f"s_add_u32 s61, s{sB}, s60\ns_add_u32 s61, s61, 4\ns_lshl_b32 s61, s61, 16\ns_xor_b32 s60, s60, 1\ns_mul_i32 s60, s60, 6\ns_add_u32 s{sB}, s{sB}, s60\ns_lshl_b32 s{sB}, s{sB}, 16\n"
                     f"s_and_b32 s{sA}, s{sA}, 63\ns_lshl_b32 s60, s{sA}, 11\ns_add_u32 s61, s61, s60\ns_lshl_b32 s60, s{sA}, 10\ns_add_u32 s{sB}, s{sB}, s60\n"
                     f"v_and_b32 v15, 15, v2\nv_lshlrev_b32 v15, 7, v15\nv_and_b32 v14, 7, v2\nv_lshlrev_b32 v14, 7, v14\n"
                     f"buffer_load_dword v255, v15, {R4(SW2)}, s61 offen\nbuffer_load_dword v253, v14, {R4(SW2)}, s{sB} offen","H1_pf")
    if pf2==1:
        ex+=hook(f"s{sPf}",f"v_min_u32 v15, 55, v2\nv_lshlrev_b32 v15, 7, v15\ns_lshl_b32 s{sA}, s2, 2\ns_add_u32 s{sA}, s{sA}, s3\ns_mul_i32 s{sA}, s{sA}, 7168\nbuffer_load_dword v255, v15, {R4(SW2)}, s{sA} offen","H1_pf")
    ex+=([PAD] if walk else [])+[f"s_add_u32 s{sIt}, s{sIt}, 1", f"s_cmp_lt_u32 s{sIt}, 16"]
    x=interleave(mf1(1), reads1(0,0)+ex)
    if x[-1].startswith("v_mfma"):
        for l in x[:-1]: A(l)
        A("s_waitcnt lgkmcnt(0)"); A(x[-1])
    else:
        for l in x: A(l)
        A("s_waitcnt lgkmcnt(0)")
    A("s_cbranch_scc1 C1_loop")
    stamp(2)
    T=216
    def silu(a, b, D):
        t=T; src=[a,a+2,b,b+2]
        for r in range(4): A(f"v_pk_mul_f32 {vr(t+2*r,2)}, s[52:53], {vr(src[r],2)}")
        for r in range(8): A(f"v_exp_f32 v{t+r}, v{t+r}")
        for r in range(4): A(f"v_pk_add_f32 {vr(t+2*r,2)}, s[54:55], {vr(t+2*r,2)}")
        for r in range(8): A(f"v_rcp_f32 v{t+r}, v{t+r}")
        for r in range(4): A(f"v_pk_mul_f32 {vr(t+2*r,2)}, {vr(t+2*r,2)}, {vr(src[r],2)}")
        for r in range(4): A(f"v_cvt_pk_bf16_f32 v{D+r}, v{t+2*r}, v{t+2*r+1}")
    def gst(D,i): return f"buffer_store_dwordx4 {vr(D,4)}, v{VF+i}, {R4(SWS)}, s{sHA} offen sc1"
    FLAG="s_nop 0"
    DL=[160,128,144]; D3=224
    for L in range(3):
        for i in range(4):
            D=DL[L]+4*i
            if i%2==0: pad()
            silu(ACC+((2*L)*4+i)*4, ACC+((2*L+1)*4+i)*4, D)
            if L==0 or (L==2 and l1epi>=2) or (L==1 and i>=nb and l1epi): A(gst(D,i))
            A(f"ds_write_b128 v{vOwn}, {vr(D,4)} offset:{L*16384+i*1024}")
            if L==1 and i==nb-1:
                stamp(11); A("s_waitcnt vmcnt(0)"); stamp(12)
                A(f"s_add_u32 s{sHA}, s{sHA}, {2*CH}\ns_waitcnt lgkmcnt(0)\ns_barrier")
                if l1epi:
                    for k in range(nb): A(gst(128+4*k,k))
        if L==1 and l1epi: A(f"s_add_u32 s{sHA}, s{sHA}, {2*CH}")
    F2=[(160,176),(192,208)]
    def rdH(X,slot,u): return [f"ds_read_b128 {vr(X+4*i,4)}, v{vH} offset:{slot*16384+u*8192+i*1024}" for i in range(4)]
    def rdW(W,slot,u,js): return [f"ds_read_b64_tr_b16 {vr(W+4*n+2*hh,2)}, v{vW[j]} offset:{slot*16384+(4*u+2*hh)*2048}" for n,j in enumerate(js) for hh in range(2)]
    def reads2(slot,u,fs):
        X,W=F2[fs]; ws=rdW(W,slot,u,range(4)); return ws[0:2]+rdH(X,slot,u)+ws[2:]
    def mfm(X,W,js,zero=False,w0=0):
        return [f"v_mfma_f32_16x16x32_bf16 {vr(ACC+(j*4+i)*4,4)}, {vr(W+4*(j-w0),4)}, {vr(X+4*i,4)}, {'0' if zero else vr(ACC+(j*4+i)*4,4)}" for j,i in snake(js,4)]
    def mf2(fs,zero=False): return mfm(F2[fs][0],F2[fs][1],range(4),zero)
    for l in reads2(0,0,0): A(l)
    for ip in range(2):
        D=D3+4*ip; a=ACC+(24+2*ip)*4
        if ip==0: pad()
        silu(a,a+4,D)
        A(f"s_nop 1\nv_permlane16_swap_b32 v{D}, v{D+2}\nv_permlane16_swap_b32 v{D+1}, v{D+3}")
        if l1epi>=3: A(f"buffer_store_dwordx4 {vr(D,4)}, v{vT3+ip}, {R4(SWS)}, s{sH3} offen sc1")
    A(f"v_mov_b32 v12, {7 if l1epi==3 else 3}\ns_mov_b32 s{sIt}, 0")
    stamp(3); stamp(4)
    sstamp()
    A("s_waitcnt lgkmcnt(0)")
    for l in interleave(mf2(0,True), reads2(0,1,1)+([PAD] if walk else [])): A(l)
    A("s_branch C2_in")
    dw={}; dws={}
    t3st=[f"buffer_store_dwordx4 {vr(D3+4*ip,4)}, v{vT3+ip}, {R4(SWS)}, s{sH3} offen sc1" for ip in range(2)]
    ADV=f"\ns_add_u32 s{sHA}, s{sHA}, {2*CH}"
    L1s=[gst(128+4*i,i) for i in range(4)]; L2s=[gst(144+4*i,i) for i in range(4)]
    F3=f"s_waitcnt vmcnt(0)\n{FLAG}"; F7=f"v_mov_b32 v12, 7\ns_waitcnt vmcnt(0)\n{FLAG}"
    J="\n".join
    if sched==1:
        dw[(0,1)]=J(L1s[:2]); dw[(1,0)]=J(L1s[2:])+ADV; dw[(1,1)]=J(L2s[:2]); dw[(2,0)]=J(L2s[2:]); dw[(2,1)]=J(t3st); dw[(4,0)]=F7
    elif sched==2:
        dw[(0,1)]=J(L1s[:2]); dw[(1,0)]=J(L1s[2:])+ADV; dw[(3,0)]=F3
        dw[(3,1)]=L2s[0]; dw[(4,0)]=L2s[1]; dw[(4,1)]=L2s[2]; dw[(5,0)]=L2s[3]; dw[(5,1)]=t3st[0]; dw[(6,0)]=t3st[1]; dw[(10,0)]=F7
    elif sched==3:
        dw[(0,1)]=L1s[0]; dw[(1,0)]=L1s[1]; dw[(1,1)]=L1s[2]; dw[(2,0)]=L1s[3]+ADV; dw[(3,1)]=F3
        dw[(4,0)]=L2s[0]; dw[(4,1)]=L2s[1]; dw[(5,0)]=L2s[2]; dw[(5,1)]=L2s[3]; dw[(6,0)]=t3st[0]; dw[(6,1)]=t3st[1]; dw[(11,0)]=F7
    elif sched==4:
        dw[(0,1)]=J(L1s)+ADV; dw[(1,1)]=J(L2s); dw[(2,1)]=J(t3st); dw[(4,0)]=F7
    elif sched==9:
        dw[(1,1)]=F7
    elif sched==5:
        dw[(0,1)]=J(L2s[:2]); dw[(1,0)]=J(L2s[2:]); dw[(1,1)]=J(t3st); dw[(3,1)]=F7
    else:
        if not l1epi:
            dw[(l1st,0)]=gst(128,0)+"\n"+gst(132,1); dw[(l1st,1)]=gst(136,2)+"\n"+gst(140,3)+f"\ns_add_u32 s{sHA}, s{sHA}, {2*CH}"
            dw[(l1st+2,1)]=f"s_waitcnt vmcnt(0)\n{FLAG}"
        else:
            dw[(l1st,1)]=f"s_waitcnt vmcnt(0)\n{FLAG}"
        if l1epi>=2:
            if l1epi==2: dw[(l2st,0)]="\n".join(t3st)
            if l1epi==2: dw[(f3,1)]=f"v_mov_b32 v12, 7\ns_waitcnt vmcnt(0)\n{FLAG}"
        elif not stag2:
            dw[(l2st,0)]=gst(144,0)+"\n"+gst(148,1); dw[(l2st+1,0)]=gst(152,2)+"\n"+gst(156,3)+"\nv_mov_b32 v12, 7"
            dw[(l2st+2,0)]="\n".join(t3st)
            dw[(l2st+5,1)]=f"s_waitcnt vmcnt(0)\n{FLAG}"
        else:
            dw[(f3,1)]=f"v_mov_b32 v12, 7\ns_waitcnt vmcnt(0)\n{FLAG}"
            body=[gst(144+4*i,i) for i in range(4)]+t3st
            o="H2_st:\n"
            for n,b in enumerate(body):
                o+=f"s_cmp_eq_u32 s62, {5-n}\ns_cbranch_scc0 H2_st{n}\n{b}\nH2_st{n}:\n"
            o+="s_setpc_b64 s[54:55]"
            OOL.append(o)
    def hooks2(slot,u):
        ex=[]
        for (q,uu),body in sorted(dw.items()):
            if q%4==slot and uu==u: ex+=hook(q//4,body,f"H2_{q}_{uu}")
        if stag2 and l1epi<2 and u==0 and not sched:
            ex+=["s_sub_u32 s62, s62, 1\ns_cmp_lt_u32 s62, 6", f"s_cbranch_scc1 H2_go{slot}\nH2_ns{slot}:"]
            OOL.append(f"H2_go{slot}:\ns_call_b64 s[54:55], H2_st\ns_branch H2_ns{slot}")
        assert len(ex)<=4, (slot,u,ex)
        return ex
    A(".p2align 3\nC2_loop:")
    for slot in range(4):
        sstamp()
        for l in interleave(mf2(0), reads2(slot,1,1)+hooks2(slot,0)+([PAD] if walk else [])): A(l)
        if slot==0: A("C2_in:")
        A("s_waitcnt lgkmcnt(0)\ns_barrier")
        ex=hooks2(slot,1)
        if slot==3: ex+=[f"s_add_u32 s{sIt}, s{sIt}, 1", f"s_cmp_lt_u32 s{sIt}, 6"]
        x=interleave(mf2(1), reads2((slot+1)&3,0,0)+ex)
        if x[-1].startswith("v_mfma"):
            for l in x[:-1]: A(l)
            A("s_waitcnt lgkmcnt(0)"); A(x[-1])
        else:
            for l in x: A(l)
            A("s_waitcnt lgkmcnt(0)")
    A("s_cbranch_scc1 C2_loop")
    stamp(13)
    if diag: A("s_waitcnt lgkmcnt(0)")
    G=[dict(H=[160,80],W=[184,96]), dict(H=[192,104],W=[208,216])]
    def rdS(g,slot,js,us=(0,1)):
        o=[]
        for u in us:
            w=rdW(G[g]['W'][u],slot,u,js); o+=w[0:2]+rdH(G[g]['H'][u],slot,u)+w[2:]
        return o
    def mfS(g,js): return mfm(G[g]['H'][0],G[g]['W'][0],js,w0=js[0])+mfm(G[g]['H'][1],G[g]['W'][1],js,w0=js[0])
    for l in rdS(0,0,(2,3),(1,)): A(l)
    pad()
    A("s_barrier")
    m=mfS(0,(2,3)); r=rdS(1,1,(2,3))
    x=interleave(m[:8], r[:8])
    for l in x: A(l)
    A("s_waitcnt lgkmcnt(8)")
    for l in interleave(m[8:], r[8:]): A(l)
    for q in (1,2):
        if q==2: pad()
        A("s_waitcnt lgkmcnt(0)\ns_barrier")
        for l in interleave(mfS(q&1,(2,3)), rdS((q+1)&1,q+1,(2,3))): A(l)
    A(f"s_mul_i32 s52, s{sJ}, {-2*32*QS}\ns_add_u32 s52, s52, {32*QS}\ns_add_u32 s52, s52, s57\ns_mov_b32 s53, -2")
    sn=[]
    for i in range(4):
        D=128+4*i; t=[]
        for n,j in enumerate((2,3)):
            S=ACC+(j*4+i)*4
            t+= [f"v_cvt_pk_bf16_f32 v{D+2*n}, v{S}, v{S+1}", f"v_cvt_pk_bf16_f32 v{D+2*n+1}, v{S+2}, v{S+3}"]
        t+=[f"v_min_u32 v{D+r}, s53, v{D+r}" for r in range(4)]
        t.append(f"buffer_store_dwordx4 {vr(D,4)}, v{VF+i}, {R4(SWS)}, s52 offen sc1")
        sn.append(t)
    A("s_waitcnt lgkmcnt(0)")
    if esend:
        g=G[1]; r=rdS(0,0,(0,1)); k=0
        for i in range(4):
            for u,j in ((0,2),(0,3),(1,3),(1,2)):
                A(f"v_mfma_f32_16x16x32_bf16 {vr(ACC+(j*4+i)*4,4)}, {vr(g['W'][u]+4*(j-2),4)}, {vr(g['H'][u]+4*i,4)}, {vr(ACC+(j*4+i)*4,4)}")
                A(r[k]); k+=1
            if i>=1:
                for l in sn[i-1]: A(l)
        stamp(5)
        pad()
        A("s_waitcnt lgkmcnt(0)")
        m=mfS(0,(0,1)); r=rdS(1,1,(0,1))
        for n,mm_ in enumerate(m):
            A(mm_); A(r[n])
            if n==2:
                for l in sn[3]: A(l)
    else:
        for l in interleave(mfS(1,(2,3)), rdS(0,0,(0,1))): A(l)
        stamp(5)
        pad()
        snd=sum(sn,[])
        A("s_waitcnt lgkmcnt(0)")
        m=mfS(0,(0,1)); r=rdS(1,1,(0,1))
        k=0
        for n,mm_ in enumerate(m):
            A(mm_); A(r[n])
            if packfirst and n==1:
                A("s_nop 3")
                while k<len(snd): A(snd[k]); k+=1
            if n>=3:
                for _ in range(3):
                    if k<len(snd): A(snd[k]); k+=1
        while k<len(snd): A(snd[k]); k+=1
    if diag!=5: stamp(6)
    RB=144 if dual else 80; RB2=224
    def LDs(b): return [f"buffer_load_dwordx4 {vr(b+4*i,4)}, v{VF+i}, {R4(SWS)}, s57 offen sc1" for i in range(4)]
    LD=LDs(RB)
    for q in (1,2):
        pad()
        A("s_waitcnt lgkmcnt(0)")
        x=interleave(mfS(q&1,(0,1)), rdS((q+1)&1,q+1,(0,1)))
        if dual==q:
            for n in range(4): x.insert(2+3*n+n,LD[n])
        for l in x: A(l)
    A("s_waitcnt lgkmcnt(0)")
    adr=["v_and_b32 v13, 15, v2","v_lshlrev_b32 v13, 11, v13","v_bfe_u32 v14, v2, 4, 1","v_lshl_add_u32 v13, v14, 5, v13","v_lshrrev_b32 v14, 5, v2","v_lshl_add_u32 v13, v14, 4, v13",
         f"s_lshl_b32 s{sC}, s{sMt}, 1\ns_add_u32 s{sC}, s{sC}, s{sWm}", f"s_lshl_b32 s{sC}, s{sC}, 17\ns_lshl_b32 s52, s{sDt}, 8", f"s_add_u32 s{sC}, s{sC}, s52\ns_lshl_b32 s52, s{sJ}, 7",
         f"s_add_u32 s{sC}, s{sC}, s52\ns_lshl_b32 s52, s{sWf}, 6", f"s_add_u32 s{sC}, s{sC}, s52\ns_mov_b32 s58, 0"]
    def chk():
        A(f"v_max3_u32 v14, v{RB}, v{RB+1}, v{RB+2}")
        for r in range(3,15,2): A(f"v_max3_u32 v14, v14, v{RB+r}, v{RB+r+1}")
        A(f"v_max_u32 v14, v14, v{RB+15}\nv_cmp_eq_u32 vcc, -1, v14")
    if dual:
        for l in interleave(mfS(1,(0,1)), LDs(80)+adr): A(l)
        A("s_waitcnt vmcnt(4)"); chk()
        A("s_nop 4\ns_cbranch_vccz C3_ok\ns_waitcnt vmcnt(0)")
        for r in range(16): A(f"v_mov_b32 v{RB+r}, v{80+r}")
    else:
        for l in interleave(mfS(1,(0,1)), adr[:ldpos]+LD+adr[ldpos:]): A(l)
    pad()
    A("s_branch C3_chk")
    A("C3_poll:")
    for l in LD: A(l)
    A("C3_chk:\ns_add_u32 s58, s58, 1\ns_waitcnt vmcnt(0)")
    chk()
    spin_tail("C3_poll")
    A("C3_ok:")
    stamp(7)
    if diag!=5: stamp(8)
    A("s_mov_b32 s53, 0xffff0000")
    for i in range(4):
        D=128+4*i
        for n in range(2):
            S=ACC+(n*4+i)*4
            for h in range(2):
                Rr=RB+4*i+2*n+h
                A(f"v_lshlrev_b32 v{T}, 16, v{Rr}\nv_and_b32 v{T+1}, s53, v{Rr}\nv_pk_add_f32 {vr(S+2*h,2)}, {vr(S+2*h,2)}, {vr(T,2)}")
                A(f"v_cvt_pk_bf16_f32 v{D+2*n+h}, v{S+2*h}, v{S+2*h+1}")
        A(f"s_nop 1\nv_permlane16_swap_b32 v{D}, v{D+2}\nv_permlane16_swap_b32 v{D+1}, v{D+3}")
        A(f"buffer_store_dwordx4 {vr(D,4)}, v13, {R4(SO)}, s{sC} offen {outaux}")
        if i<3: A(f"s_add_u32 s{sC}, s{sC}, 0x8000")
        if i==0: pad()
    if diag:
        if diag!=5: stamp(9)
        A("s_waitcnt vmcnt(0)"); stamp(10); rstamp(15); flush(16,True)
    A("s_endpgm")
    if walk: A(PAD+"\ns_endpgm")
    for b in OOL: A(b)
    A("L_end:\ns_endpgm")
    A(f""".section .rodata,"a"
.p2align 6
.amdhsa_kernel {NAME}
  .amdhsa_next_free_vgpr 256
  .amdhsa_next_free_sgpr 96
  .amdhsa_accum_offset 256
  .amdhsa_group_segment_fixed_size 0
  .amdhsa_kernarg_size 48
  .amdhsa_user_sgpr_count 2
  .amdhsa_user_sgpr_kernarg_segment_ptr 1
  .amdhsa_system_sgpr_workgroup_id_x 1
.end_amdhsa_kernel""")
    txt=A.text()
    if walk:
        n=txt.count("@PAD@"); parts=txt.split("@PAD@")
        starts=[round(w*n/walk) for w in range(walk)]
        out=parts[0]
        for k in range(n):
            nxt="C_wret" if (k+1==n or k+1 in starts) else f"PAD{k+1}"
            out+=f"PAD{k}:\ns_cbranch_execz {nxt}"+parts[k+1]
        for w in range(walk): out=out.replace(f"@START{w}@",f"PAD{starts[w]}")
        txt=out
    return txt

if __name__=="__main__":
    import inspect
    p=argparse.ArgumentParser(); p.add_argument("-o")
    for k,v in inspect.signature(build).parameters.items():
        p.add_argument("--"+k,type=type(v.default),default=v.default)
    a=vars(p.parse_args()); o=a.pop("o")
    open(o,"w").write(build(**a))
```

```python
import sys, argparse
NAME="standalone__dense_activation_silu__prompt_kernel"
class Asm:
    def __init__(self): self.L=[]
    def __call__(self, s):
        for l in s.split("\n"): self.L.append(l)
    def text(self): return "\n".join(self.L)+"\n"
def vr(a,n): return f"v[{a}:{a+n-1}]"
def srd(A, d, b, nbytes):
    A(f"s_mov_b32 s{d}, s{b}\ns_and_b32 s{d+1}, s{b+1}, 0xffff\ns_mov_b32 s{d+2}, {nbytes}\ns_mov_b32 s{d+3}, 0x20000")
X_BYTES=2048*1024*2; W_BYTES=1024*3584*2; O_BYTES=2048*1024*2
H_OFF=0; P_OFF=24<<20; F_OFF=48<<20; T_OFF=64<<20
SX,SW1,SW2,SO,SD,SWS=16,20,24,28,32,36
sMt,sJ,sFt8,sFt,sLid,sXcd,sDt=40,41,42,43,44,45,63
OOB=0x7ffffff0
SPIN=1<<17
def R4(s): return f"s[{s}:{s+3}]"

def interleave(mf, rd):
    out=[]; k=0
    for m in mf:
        out.append(m)
        if k<len(rd): out.append(rd[k]); k+=1
    return out+rd[k:]
ORDER='ji'
def snake(JS,NI):
    JS=list(JS)
    if ORDER=='ij': return [(j,i) for i in range(NI) for j in (JS if i%2==0 else JS[::-1])]
    return [(j,(i if n%2==0 else NI-1-i)) for n,j in enumerate(JS) for i in range(NI)]

def build(diag=0, rot=1, pf1=0, pf2=1, pfc=1, outaux="sc1", pfa=13, dswz=0, w1aux="", xaux="", w2aux="", l1st=1, l2st=4, stag=1, l1epi=1, rmask=1, f3=9, skew2=1, pfb=0, stag2=1, remap=1, spa=0, spb=13, spn=4, ack=6, ldearly=1, pfi=0, w1s=6, sched=0, fch=6, pdelay=0, nb=4, clr0=0, dual=0, tlb=0, packfirst=1, spub=1, vpoll=0, hsi=12, hsglc='', cmask=1, cbase=1, walk=2, w2e=0, order='ji', esend=1, ldpos=0, fast=1, la1=0, hd=4, la2=0, npoll=2, tearly=2, nsh=0, two=0, tight2=1, tight1=1, lead=1, tl=0, tlw=16, tl0=0):
    global ORDER; ORDER=order
    assert ack+2!=hsi and tl not in (ack+5,hsi+3) and ack+2<=12 and cbase+cmask<ack and nsh<=(4 if two else ack+2)
    A=Asm(); OOL=[]
    tm='s_memrealtime' if diag>=3 else 's_memtime'
    def stamp(k):
        if diag: A(f"{tm} s[{64+2*k}:{65+2*k}]")
    def rstamp(k):
        if diag: A(f"s_memrealtime s[{64+2*k}:{65+2*k}]")
    def sstamp():
        if diag in (2,3): A(f"{tm} s[90:91]\ns_waitcnt lgkmcnt(0)\nv_writelane_b32 v254, s90, m0\ns_add_u32 m0, m0, 1")
    def flush(n, cons=False):
        if not diag: return
        if diag==5:
            ks=[6,8,9,1,2,4,5,10] if cons else [1,8,2,3,4,5]
            lab="DB_c" if cons else "DB_p"
            A(f"s_waitcnt lgkmcnt(0)\ns_and_b32 s60, s3, 3\ns_or_b32 s60, s60, s2\ns_cmp_eq_u32 s60, 0\ns_cbranch_scc0 {lab}\nv_lshlrev_b32 v1, 8, v2")
            for n_,k in enumerate(ks):
                A(f"s_sub_u32 s60, s{64+2*k}, s64\nv_mov_b32 v4, s60\nbuffer_store_dword v4, v1, {R4(SD)}, 0 offen offset:{4*(n_+(0 if cons else 8))} sc1")
            A(f"s_waitcnt vmcnt(0)\n{lab}:")
            return
        A(f"s_waitcnt lgkmcnt(0)\ns_lshl_b32 s60, s2, 3\ns_add_u32 s60, s60, s3\ns_lshl_b32 s60, s60, 8\ns_add_u32 s60, s60, {T_OFF}\nv_mov_b32 v1, 0")
        for k in range(n): A(f"v_mov_b32 v2, s{64+2*k}\nbuffer_store_dword v2, v1, {R4(SWS)}, s60 offen offset:{4*k}")
        if cons and diag>=2:
            A(f"v_and_b32 v1, 63, v0\nv_lshlrev_b32 v1, 2, v1\nv_mov_b32 v2, {OOB}\nv_cmp_gt_u32 vcc, 192, v1\ns_nop 1\nv_cndmask_b32 v1, v2, v1, vcc")
            A(f"buffer_store_dword v254, v1, {R4(SWS)}, s60 offen offset:64")
        A("s_waitcnt vmcnt(0)")
    PAD='@PAD@' if walk else 's_nop 0'
    def pad():
        if walk: A(PAD)
    def spin_tail(label):
        A(f"s_cmp_lt_u32 s58, {SPIN}\ns_cselect_b64 s[60:61], -1, 0\ns_and_b64 vcc, vcc, s[60:61]\ns_cbranch_scc1 {label}")
    WST=28672; WOFF=65536
    QS=5120 if remap else 4096
    CH=2*QS
    def physline(dst,g,tmp):
        if remap: A(f"v_add_u32 v{tmp}, 4, v{g}\nv_mul_u32_u24 v{tmp}, 37, v{tmp}\nv_lshrrev_b32 v{tmp}, 8, v{tmp}\nv_add_u32 v{tmp}, v{tmp}, v{g}\nv_lshlrev_b32 v{dst}, 7, v{tmp}")
        else: A(f"v_lshlrev_b32 v{dst}, 7, v{g}")
    def fragoffs(base):
        A("v_and_b32 v6, 7, v2\nv_lshlrev_b32 v6, 4, v6")
        for n in range(4):
            A(f"v_lshrrev_b32 v5, 3, v2\nv_add_u32 v5, {8*n}, v5"); physline(base+n,5,4); A(f"v_add_u32 v{base+n}, v{base+n}, v6")
    A("""; Fused feed-forward: out = silu(x @ w1) @ w2, bf16 in/out, fp32 accumulate.
; @launch grid=(256,1,1) block=(512,1,1) lds=151552""")
    A('.amdgcn_target "amdgcn-amd-amdhsa--gfx950"\n.text')
    A(f".globl {NAME}\n.p2align 8\n.type {NAME},@function\n{NAME}:")
    A("s_load_dwordx8 s[4:11], s[0:1], 0\ns_load_dwordx4 s[12:15], s[0:1], 32")
    A("s_cmp_ge_u32 s2, 256\ns_cbranch_scc1 L_end")
    stamp(0); rstamp(14)
    if fast and pfc:
        A(f"s_getpc_b64 s[54:55]\nC_pc:\nv_lshlrev_b32 v3, 7, v0\ns_sub_u32 s54, s54, C_pc-{NAME}\ns_subb_u32 s55, s55, 0")
        A(f"v_min_u32 v3, L_end-{NAME}, v3\nv_lshrrev_b32 v1, 6, v0\nglobal_load_dword v255, v3, s[54:55]\nv_and_b32 v2, 63, v0")
    else: A("v_lshrrev_b32 v1, 6, v0\nv_and_b32 v2, 63, v0")
    A(f"v_readfirstlane_b32 s3, v1\ns_and_b32 s{sXcd}, s2, 7\ns_lshr_b32 s46, s2, 3")
    dec1=f"s_lshr_b32 s{sMt}, s{sXcd}, 1\ns_lshl_b32 s{sMt}, s{sMt}, 2\ns_lshr_b32 s47, s46, 3\ns_add_u32 s{sMt}, s{sMt}, s47\ns_and_b32 s{sJ}, s{sXcd}, 1"
    dec2=(f"s_and_b32 s{sFt8}, s46, 7\ns_lshl_b32 s{sFt}, s{sJ}, 3\ns_add_u32 s{sFt}, s{sFt}, s{sFt8}\n"
          f"s_lshl_b32 s{sLid}, s{sMt}, 4\ns_add_u32 s{sLid}, s{sLid}, s{sFt}\ns_xor_b32 s{sDt}, s{sJ}, 1\ns_mul_i32 s{sDt}, s{sDt}, {dswz}\ns_xor_b32 s{sDt}, s{sDt}, s{sFt8}")
    A(dec1); A(dec2)
    if fast and pf1==1:
        A("s_cmp_lt_u32 s3, 4\ns_cbranch_scc0 L_prod")
        A("v_lshrrev_b32 v15, 1, v0\ns_lshl_b32 s58, s2, 7\nv_add_u32 v15, s58, v15\nv_lshlrev_b32 v15, 7, v15\ns_waitcnt lgkmcnt(0)\nglobal_load_dword v253, v15, s[4:5]\ns_branch L_cons\nL_prod:")
    else:
        A("s_cmp_lt_u32 s3, 4\ns_cbranch_scc1 L_cons")
    sP,sKX,sKW,sLX,sLW,sRing,sCnt,sT0,sT1=46,47,48,49,50,51,52,53,54
    A(f"s_sub_u32 s{sP}, s3, 4")
    A("v_lshrrev_b32 v3, 3, v2\nv_and_b32 v4, 7, v2\nv_lshrrev_b32 v5, 4, v2\nv_xor_b32 v4, v4, v5\nv_lshlrev_b32 v4, 4, v4\nv_lshl_add_u32 v3, v3, 11, v4")
    A(f"s_lshl_b32 s{sT0}, s{sMt}, 18\ns_lshl_b32 s{sT1}, s{sP}, 16\ns_add_u32 s{sT0}, s{sT0}, s{sT1}\nv_add_u32 v8, s{sT0}, v3")
    A("v_xor_b32 v9, 64, v8\nv_add_u32 v9, 0x4000, v9\nv_add_u32 v10, 0x8000, v8\nv_add_u32 v11, 0x8000, v9")
    if not rot: A(f"s_mov_b32 s{sKX}, 0\ns_mov_b32 s{sKW}, 0")
    if rot:
        if rot in (1,2,4,5,6,7,8):
            A(f"s_lshr_b32 s{sT0}, s{sXcd}, 1\ns_lshl_b32 s{sT1}, s{sJ}, 1\ns_add_u32 s{sT0}, s{sT0}, s{sT1}\ns_and_b32 s{sT0}, s{sT0}, 3\ns_lshl_b32 s{sT0}, s{sT0}, 2")
            if rot==4: A(f"s_and_b32 s{sT0}, s{sT0}, 8")
        else: A(f"s_mov_b32 s{sT0}, 0")
        if rot>=5: A(f"s_mov_b32 s62, s{sT0}\ns_mov_b32 s60, 0\ns_mov_b32 s61, 0")
        if rot in (7,8): A(f"s_and_b32 s{sT1}, s{sMt}, 1\ns_lshl_b32 s{sT1}, s{sT1}, {rot-7}\ns_add_u32 s{sT0}, s{sT0}, s{sT1}")
        elif rot>=2: A(f"s_and_b32 s{sT1}, s{sMt}, 3\ns_add_u32 s{sT0}, s{sT0}, s{sT1}")
        A(f"s_lshl_b32 s{sKX}, s{sT0}, 7\ns_mul_i32 s{sKW}, s{sT0}, {64*7168}")
    sRX=57
    A(f"s_lshl_b32 s{sLX}, s{sP}, 12\ns_mov_b32 s{sRX}, 0\ns_mov_b32 s{SX+2}, {X_BYTES}\ns_mov_b32 s{SX+3}, 0x20000")
    A(f"s_waitcnt lgkmcnt(0)\ns_mov_b32 s{SX}, s4\ns_and_b32 s{SX+1}, s5, 0xffff")
    def nextk(c):
        if rot in (7,8):
            A(f"s_add_u32 s{c}, s{c}, 1\ns_and_b32 s{sT1}, s{c}, 8\ns_cselect_b32 s{sT0}, 1, 0\ns_xor_b32 s{sT0}, s{sT0}, s{sMt}\ns_and_b32 s{sT0}, s{sT0}, 1\ns_lshl_b32 s{sT0}, s{sT0}, {rot-7}\ns_add_u32 s{sT0}, s{sT0}, s{c}\ns_and_b32 s{sT0}, s{sT0}, 7")
            A(f"s_add_u32 s{sT0}, s{sT0}, s{sT1}\ns_add_u32 s{sT0}, s{sT0}, s62\ns_and_b32 s{sT0}, s{sT0}, 15")
            return
        if rot==6:
            A(f"s_add_u32 s{c}, s{c}, 1\ns_and_b32 s{sT1}, s{c}, 8\ns_cselect_b32 s{sT0}, 3, 0\ns_xor_b32 s{sT0}, s{sT0}, s{sMt}\ns_and_b32 s{sT0}, s{sT0}, 3\ns_add_u32 s{sT0}, s{sT0}, s{c}\ns_and_b32 s{sT0}, s{sT0}, 7")
            A(f"s_add_u32 s{sT0}, s{sT0}, s{sT1}\ns_add_u32 s{sT0}, s{sT0}, s62\ns_and_b32 s{sT0}, s{sT0}, 15")
            return
        A(f"s_add_u32 s{c}, s{c}, 1\ns_add_u32 s{sT0}, s{c}, s{sMt}\ns_and_b32 s{sT0}, s{sT0}, 3\ns_and_b32 s{sT1}, s{c}, 12\ns_add_u32 s{sT0}, s{sT0}, s{sT1}\ns_add_u32 s{sT0}, s{sT0}, s62\ns_and_b32 s{sT0}, s{sT0}, 15")
    def issueW1(part=None):
        inc=[1024,896,1024,896,1024,1280]
        ns=range(7) if part is None else (range(hd) if part==0 else range(hd,7))
        if part!=1: A(f"s_add_u32 m0, s{sRing}, s{sLW}\ns_add_u32 s{sRing}, s{sRing}, {WST}")
        else: A("s_mov_b32 m0, s1\ns_nop 0")
        for n in ns:
            a,o=n>>1,n&1
            if n<6:
                A(f"buffer_load_dwordx4 v{13+o}, {R4(SW1)}, s{sKW} offen offset:{a*128} {w1aux} lds")
                if part==0 and n==hd-1: A(f"s_add_u32 s1, m0, {inc[n]}")
                else:
                    A(f"s_add_u32 m0, m0, {inc[n]}")
                    A("s_nop 0" if n else f"s_cmp_eq_u32 s{sRing}, {WST*3}\ns_cselect_b32 s{sRing}, 0, s{sRing}")
            else:
                A(f"buffer_load_dwordx4 v12, {R4(SW1)}, s{sKW} offen {w1aux} lds\ns_add_u32 s{sKW}, s{sKW}, {64*7168}")
                if rot>=5:
                    nextk(60); A(f"s_mul_i32 s{sKW}, s{sT0}, {64*7168}\ns_add_u32 s{sKW}, s{sKW}, s59")
                elif rot: A(f"s_cmp_eq_u32 s{sKW}, s58\ns_cselect_b32 s{sKW}, s59, s{sKW}")
    def issueX():
        A(f"s_add_u32 m0, s{sRX}, s{sLX}\ns_add_u32 s{sRX}, s{sRX}, 16384")
        for n in range(4):
            A(f"buffer_load_dwordx4 v{8+n}, {R4(SX)}, s{sKX} offen {xaux} lds")
            if n<3: A("s_add_u32 m0, m0, 1024\n"+("s_nop 0" if n else f"s_and_b32 s{sRX}, s{sRX}, 0xffff"))
        if tight1: pass
        elif rot>=5:
            nextk(61); A(f"s_lshl_b32 s{sKX}, s{sT0}, 7")
        else: A(f"s_add_u32 s{sKX}, s{sKX}, 128\ns_and_b32 s{sKX}, s{sKX}, 2047")
    stamp(1)
    issueX()
    A(f"s_and_b32 s{sT0}, s{sFt8}, 1\ns_lshl_b32 s{sT1}, s{sT0}, 6")
    A("v_bfe_u32 v3, v2, 2, 3\nv_mul_u32_u24 v3, 7168, v3\nv_lshrrev_b32 v5, 5, v2\nv_and_b32 v4, 3, v2\nv_lshlrev_b32 v4, 4, v4")
    A(f"v_lshl_add_u32 v6, v5, 6, v3\nv_add3_u32 v13, v6, v4, s{sT1}\nv_xor_b32 v14, 32, v13\nv_add_u32 v14, {8*7168}, v14")
    A(f"s_xor_b32 s{sT0}, s{sT0}, 1\ns_mul_i32 s{sT0}, s{sT0}, 384\nv_lshrrev_b32 v3, 2, v2\nv_mul_u32_u24 v3, 7168, v3\nv_lshlrev_b32 v5, 5, v5\nv_xor_b32 v4, v4, v5\nv_add3_u32 v12, v3, v4, s{sT0}")
    A(f"s_mul_i32 s59, s{sP}, {16*7168}\ns_mul_i32 s{sT0}, s{sFt}, 448\ns_add_u32 s59, s59, s{sT0}\ns_add_u32 s{sKW}, s{sKW}, s59\ns_add_u32 s58, s59, {1024*7168}")
    A(f"s_mul_i32 s{sLW}, s{sP}, 7168\ns_add_u32 s{sLW}, s{sLW}, {WOFF}\ns_mov_b32 s{sRing}, {2*WST}")
    srd(A,SW1,6,W_BYTES)
    if la1 or tearly: issueW1(0)
    else: issueW1(); issueX(); issueW1()
    srd(A,SW2,8,W_BYTES); srd(A,SWS,14,0x10000000)
    if diag==5: srd(A,SD,12,256)
    sHp,sHalf=55,56
    if tlb:
        A(f"s_cmp_lt_u32 s2, {tlb}\ns_cbranch_scc0 P1_ntlb\ns_lshl_b32 s{sT0}, s{sP}, 21")
        A(f"s_add_u32 s4, s8, s{sT0}\ns_addc_u32 s5, s9, 0\ns_load_dword s0, s[4:5], 0")
        A(f"s_lshr_b32 s{sT1}, s{sT0}, 1\ns_add_u32 s4, s10, s{sT1}\ns_addc_u32 s5, s11, 0\ns_load_dword s0, s[4:5], 0")
        for b in (0, 8<<20, 16<<20, P_OFF, F_OFF):
            A(f"s_add_u32 s{sT1}, s{sT0}, {b}\ns_add_u32 s4, s14, s{sT1}\ns_addc_u32 s5, s15, 0\ns_load_dword s0, s[4:5], 0")
        A("P1_ntlb:")
    if tl0:
        A(f"s_cmp_lt_u32 s2, {tlw}\ns_cbranch_scc0 P1_nt0\ns_lshl_b32 s{sT0}, s{sP}, 21\ns_add_u32 s{sT0}, s{sT0}, {P_OFF}\ns_cmp_eq_u32 s{sP}, 3\ns_cselect_b32 s{sT0}, {F_OFF}, s{sT0}")
        A(f"s_add_u32 s4, s14, s{sT0}\ns_addc_u32 s5, s15, 0\ns_load_dword s0, s[4:5], 0\nP1_nt0:")
    A(f"s_lshr_b32 s4, s{sLid}, 3\ns_lshl_b32 s4, s4, 10\ns_add_u32 s4, s4, {F_OFF+fch*128}\ns_add_u32 s4, s14, s4\ns_addc_u32 s5, s15, 0")
    A(f"s_lshl_b32 s6, s{sMt}, 4\ns_add_u32 s6, s12, s6\ns_addc_u32 s7, s13, 0")
    def spf():
        if pf2 not in (3,4): return
        for k in range(4): A(f"s_load_dword s12, s[8:9], {k*64}")
        A(f"s_add_u32 s13, s13, 1\ns_and_b32 s{sT0}, s13, 7\ns_cselect_b32 s{sT0}, 0, {131072-2048}\ns_add_u32 s{sT0}, s{sT0}, 256\ns_add_u32 s8, s8, s{sT0}\ns_addc_u32 s9, s9, 0")
    if pf2 in (3,4):
        A(f"s_lshl_b32 s12, s2, 2\ns_add_u32 s12, s12, s{sP}")
        A(f"s_lshr_b32 s{sT0}, s12, 6\ns_mul_i32 s13, s{sT0}, 7\ns_and_b32 s{sT0}, s{sT0}, 1")
        A(f"s_xor_b32 s{sT1}, s{sT0}, 1\ns_mul_i32 s{sT1}, s{sT1}, 6\ns_add_u32 s{sT1}, s{sT1}, s13\ns_lshl_b32 s{sT1}, s{sT1}, 16\ns_and_b32 s14, s12, 63\ns_lshl_b32 s14, s14, 10\ns_add_u32 s{sT1}, s{sT1}, s14")
        A(f"s_add_u32 s14, s8, s{sT1}\ns_addc_u32 s15, s9, 0")
        A(f"s_add_u32 s13, s13, s{sT0}\ns_lshl_b32 s13, s13, 16\ns_and_b32 s12, s12, 63\ns_lshl_b32 s12, s12, 11\ns_add_u32 s13, s13, s12\ns_add_u32 s8, s8, s13\ns_addc_u32 s9, s9, 0\ns_mov_b32 s13, 0")
    A(f"s_lshr_b32 s{sHp}, s{sP}, 1\ns_and_b32 s{sHalf}, s{sP}, 1")
    A("v_subrev_u32 v5, 3, v2\nv_mul_u32_u24 v3, 37, v5\nv_lshrrev_b32 v3, 8, v3\nv_mul_u32_u24 v4, 7, v3\nv_sub_u32 v4, v5, v4")
    if skew2==3: A(f"v_add_u32 v6, s{sMt}, v3\nv_and_b32 v6, 3, v6\nv_add_u32 v4, v6, v4\nv_subrev_u32 v6, 7, v4\nv_min_u32 v4, v4, v6")
    elif skew2: A(f"s_and_b32 s{sT0}, s{sMt}, 3\ns_mul_i32 s{sT0}, s{sT0}, {3-skew2}\nv_add_u32 v4, s{sT0}, v4\nv_subrev_u32 v6, 7, v4\nv_min_u32 v4, v4, v6")
    A("v_add_u32 v4, 1, v4")
    A("v_cmp_gt_u32 vcc, 3, v2\ns_nop 1\nv_cndmask_b32 v3, v3, v2, vcc\nv_cndmask_b32 v4, v4, 0, vcc")
    A(f"v_add_u32 v4, s{sFt8}, v4\nv_and_b32 v4, 7, v4\nv_and_b32 v6, 1, v4\nv_mul_u32_u24 v4, 7, v4\nv_lshl_add_u32 v4, v3, 1, v4\nv_add3_u32 v4, v4, v6, s{sHp}")
    A(f"s_and_b32 s{sT0}, s{sMt}, {3 if skew2 else 0}\nv_add_u32 v5, s{sT0}, v2\nv_and_b32 v5, 3, v5\nv_mul_u32_u24 v5, 14, v5\nv_add3_u32 v5, v5, 6, s{sHp}")
    A("v_cmp_gt_u32 vcc, 24, v2\ns_nop 1\nv_cndmask_b32 v4, v5, v4, vcc\nv_and_b32 v4, 63, v4")
    A(f"s_mul_i32 s{sT0}, s{sJ}, 56\nv_add_u32 v4, s{sT0}, v4")
    A(f"s_mul_i32 s{sT0}, s{sMt}, {112*CH}\ns_mul_i32 s{sT1}, s{sHalf}, {QS}\ns_add_u32 s{sT0}, s{sT0}, s{sT1}")
    A(f"v_mul_u32_u24 v20, {CH}, v4\nv_add_u32 v20, s{sT0}, v20")
    A(f"s_lshl_b32 s{sT0}, s{sHalf}, 15\ns_lshl_b32 s{sT1}, s{sHalf}, 13\nv_mov_b32 v5, s{sT0}\nv_mov_b32 v6, s{sT1}\nv_cndmask_b32 v5, v6, v5, vcc")
    A(f"v_lshl_add_u32 v21, v4, 16, v5\ns_lshl_b32 s{sT0}, s{sDt}, 8\nv_add_u32 v21, s{sT0}, v21")
    A("v_and_b32 v4, 3, v2\nv_bfe_u32 v5, v2, 4, 1\nv_lshlrev_b32 v6, 1, v5\nv_xor_b32 v4, v4, v6\nv_lshlrev_b32 v4, 4, v4")
    A("v_lshrrev_b32 v6, 5, v2\nv_lshl_add_u32 v4, v6, 6, v4")
    A("v_bfe_u32 v6, v2, 2, 3\nv_lshl_add_u32 v22, v6, 11, v4\nv_add_u32 v23, 0x4000, v22")
    A("v_lshl_add_u32 v24, v5, 13, v22\nv_add_u32 v25, 0x8000, v24")
    fragoffs(26)
    if tight1:
        assert rot==8 and tearly==2 and not nsh and not la1 and spub and hsi and not two
        A(f"v_bfe_u32 v3, v2, 3, 1\nv_xor_b32 v3, s{sMt}, v3\nv_and_b32 v3, 1, v3\nv_lshl_add_u32 v3, v3, 1, v2\nv_and_b32 v3, 7, v3\nv_and_b32 v4, 8, v2\nv_add3_u32 v3, v3, v4, s62\nv_and_b32 v3, 15, v3")
        A(f"v_lshlrev_b32 v30, 7, v3\nv_mul_u32_u24 v31, {64*7168}, v3\nv_add_u32 v31, s59, v31")
    if diag==5: stamp(8)
    if tight1:
        xl=[f"buffer_load_dwordx4 v{8+n}, {R4(SX)}, s{sKX} offen {xaux} lds" for n in range(4)]
        wl=[f"buffer_load_dwordx4 v{13+(n&1)}, {R4(SW1)}, s{sKW} offen offset:{(n>>1)*128} {w1aux} lds" for n in range(6)]+[f"buffer_load_dwordx4 v12, {R4(SW1)}, s{sKW} offen {w1aux} lds"]
        inc=[1024,896,1024,896,1024,1280]
        def Wt(): A(f"s_mov_b32 m0, s1\ns_nop 0\n{wl[4]}\ns_add_u32 m0, m0, {inc[4]}\ns_nop 0\n{wl[5]}\ns_add_u32 m0, m0, {inc[5]}\ns_nop 0\n{wl[6]}")
        def Xs(fill):
            A(f"s_add_u32 m0, s{sRX}, s{sLX}\ns_add_u32 s{sRX}, s{sRX}, 16384")
            for n in range(4):
                A(xl[n])
                if n<3: A(f"s_add_u32 m0, m0, 1024\n{fill[n]}")
        assert hd==4
        andx=f"s_and_b32 s{sRX}, s{sRX}, 0xffff"
        A(f"v_readlane_b32 s{sKX}, v30, 1")
        Wt(); Xs([f"v_readlane_b32 s{sKW}, v31, 1", andx, "s_nop 0"])
        issueW1(0)
        A(f"v_readlane_b32 s{sKX}, v30, 2\ns_waitcnt vmcnt(8)")
        stamp(2)
        A("s_barrier")
        Wt(); Xs([f"v_readlane_b32 s{sKW}, v31, 2", andx, f"s_mov_b32 s{sCnt}, 2"])
        A(f"s_mov_b32 s61, {(1<<(ack+2+3))|(1<<(hsi+3))|((1<<tl) if tl else 0)}\ns_add_u32 m0, s{sRing}, s{sLW}\ns_branch P1_w")
        A(".p2align 3\nP1_loop:")
        A(f"s_bitcmp1_b32 s61, s{sCnt}\ns_cbranch_scc1 P1_hk\nP1_hkb:")
        Xs([f"v_readlane_b32 s{sKW}, v31, s{sCnt}", andx, "s_nop 0"])
        A(f"s_add_u32 m0, s{sRing}, s{sLW}\ns_waitcnt vmcnt(15)\ns_barrier\nP1_w:")
        fill=[f"s_add_u32 s{sCnt}, s{sCnt}, 1", f"s_add_u32 s{sRing}, s{sRing}, {WST}", f"v_readlane_b32 s{sKX}, v30, s{sCnt}",
              f"s_cmp_eq_u32 s{sRing}, {WST*3}\ns_cselect_b32 s{sRing}, 0, s{sRing}", "s_nop 0", f"s_cmp_lt_u32 s{sCnt}, 16"]
        for n in range(7):
            A(wl[n])
            if n<6: A(f"s_add_u32 m0, m0, {inc[n]}\n{fill[n]}")
        A("s_cbranch_scc1 P1_loop\ns_branch P1_done")
        A("P1_hk:")
        if tl:
            A(f"s_cmp_eq_u32 s{sCnt}, {tl}\ns_cbranch_scc0 P1_hk0\ns_cmp_lt_u32 s2, {tlw}\ns_cbranch_scc0 P1_hkb\ns_lshl_b32 s{sT0}, s{sP}, 21")
            A(f"s_add_u32 s12, s8, s{sT0}\ns_addc_u32 s13, s9, 0\ns_load_dword s0, s[12:13], 0")
            A(f"s_lshr_b32 s{sT1}, s{sT0}, 1\ns_add_u32 s12, s10, s{sT1}\ns_addc_u32 s13, s11, 0\ns_load_dword s0, s[12:13], 0")
            for b in (0, 8<<20, 16<<20):
                A(f"s_add_u32 s{sT1}, s{sT0}, {b}\ns_add_u32 s12, s14, s{sT1}\ns_addc_u32 s13, s15, 0\ns_load_dword s0, s[12:13], 0")
            A("s_branch P1_hkb\nP1_hk0:")
        A(f"s_cmp_eq_u32 s{sCnt}, {hsi+3}\ns_cbranch_scc0 P1_hk1\ns_cmp_eq_u32 s{sP}, 0\ns_cbranch_scc0 P1_hkb\ns_load_dwordx4 s[28:31], s[6:7], 0 {hsglc}\ns_branch P1_hkb")
        if lead: A(f"P1_hk1:\ns_lshl_b32 s1, s{sFt}, 2\ns_add_u32 s1, s1, s{sP}\ns_cmp_eq_u32 s1, 2\ns_cbranch_scc0 P1_hkb\ns_mov_b32 s1, 1\ns_atomic_or s1, s[6:7], 0\ns_branch P1_hkb")
        else: A(f"P1_hk1:\ns_cmp_eq_u32 s{sP}, 2\ns_cbranch_scc0 P1_hkb\ns_and_b32 s1, s{sFt}, 3\ns_lshl_b32 s1, s1, 3\ns_lshl_b32 s1, 1, s1\ns_and_b32 s{sT0}, s{sFt}, 12\ns_atomic_or s1, s[6:7], s{sT0}\ns_branch P1_hkb")
        A("P1_done:")
        pad()
    else:
        if la1:
            A(f"s_mov_b32 s{sCnt}, -1\ns_branch P1_in")
            A(f"P1_loop:\ns_waitcnt vmcnt({4+hd})")
            if diag: A(f"s_cmp_eq_u32 s{sCnt}, 0\ns_cbranch_scc0 P1_ns"); stamp(2); A("P1_ns:")
            A("s_barrier\nP1_in:")
            issueW1(1); issueX(); issueW1(0)
        else:
            if nsh:
                A(f"s_mov_b32 s{sCnt}, -1\ns_branch P1_shin\nP1_sh:\ns_waitcnt vmcnt({4+hd})")
                if diag: A(f"s_cmp_eq_u32 s{sCnt}, 0\ns_cbranch_scc0 P1_ns"); stamp(2); A("P1_ns:")
                A("s_barrier\nP1_shin:")
                issueW1(1); issueX()
                A(f"s_cmp_eq_u32 s{sCnt}, {nsh}\ns_cbranch_scc1 P1_in")
                issueW1(0)
                A(f"s_add_u32 s{sCnt}, s{sCnt}, 1\ns_branch P1_sh")
            else:
                if tearly==1: issueW1(1); issueX(); issueW1()
                if tearly==2: issueW1(1); issueX(); issueW1(0)
                A(f"s_waitcnt vmcnt({4+hd if tearly==2 else 11})")
                stamp(2)
                A("s_barrier")
                if tearly==2: issueW1(1)
                issueX()
                A(f"s_mov_b32 s{sCnt}, 0\ns_branch P1_in")
            A("P1_loop:\ns_waitcnt vmcnt(15)\ns_barrier\nP1_in:")
            issueW1(); issueX()
        if spub and two:
            A(f"s_lshl_b32 s{sT0}, s{sP}, 8\ns_add_u32 s{sT0}, s{sT0}, s{sCnt}\ns_cmp_eq_u32 s{sT0}, {512+4}\ns_cselect_b32 s0, 1, 0\ns_cmp_eq_u32 s{sT0}, {512+ack+2}\ns_cselect_b32 s0, 2, s0\ns_cmp_eq_u32 s0, 0\ns_cbranch_scc1 P1_npub")
            A(f"s_and_b32 s{sT0}, s{sFt}, 3\ns_lshl_b32 s{sT0}, s{sT0}, 3\ns_lshl_b32 s0, s0, s{sT0}\ns_and_b32 s{sT0}, s{sFt}, 12\ns_atomic_or s0, s[6:7], s{sT0}\nP1_npub:")
        elif spub:
            A(f"s_lshl_b32 s{sT0}, s{sP}, 8\ns_add_u32 s{sT0}, s{sT0}, s{sCnt}\ns_cmp_eq_u32 s{sT0}, {512+ack+2}\ns_cbranch_scc0 P1_npub")
            A(f"s_and_b32 s0, s{sFt}, 3\ns_lshl_b32 s0, s0, 3\ns_lshl_b32 s0, 1, s0\ns_and_b32 s{sT0}, s{sFt}, 12\ns_atomic_or s0, s[6:7], s{sT0}\nP1_npub:")
        if hsi:
            assert pf2 not in (3,4)
            A(f"s_lshl_b32 s{sT0}, s{sP}, 8\ns_add_u32 s{sT0}, s{sT0}, s{sCnt}\ns_cmp_eq_u32 s{sT0}, {hsi}\ns_cbranch_scc0 P1_nh\ns_load_dwordx4 s[28:31], s[6:7], 0 {hsglc}\nP1_nh:")
        if pf2==4:
            spf()
            A(f"s_cmp_lt_u32 s{sCnt}, 3\ns_cbranch_scc0 P1_nspf")
            spf()
            A("P1_nspf:")
        if pf2==3:
            A(f"s_sub_u32 s{sT0}, s{sCnt}, {spa}\ns_cmp_lt_u32 s{sT0}, {spb-spa}\ns_cbranch_scc0 P1_nspf")
            spf()
            A("P1_nspf:")
        A(f"s_add_u32 s{sCnt}, s{sCnt}, 1\ns_cmp_lt_u32 s{sCnt}, {14 if la1 else 13}\ns_cbranch_scc1 P1_loop")
        pad()
        A(f"s_waitcnt vmcnt({4+hd if la1 else 15})\ns_barrier")
        issueW1(1 if la1 else None)
    sW,sH,sSlot,sLW2,sLH=47,48,51,50,49
    A(f"s_lshl_b32 s{sLH}, s{sP}, 12\ns_add_u32 s{sLW2}, s{sLH}, 65536\ns_mov_b32 s{sCnt}, 0\ns_mov_b32 s{sSlot}, 0")
    def issueW():
        A(f"s_add_u32 m0, s{sLW2}, s{sSlot}\ns_nop 0")
        for n in range(4):
            o,tb=n>>1,n&1
            A(f"buffer_load_dwordx4 v{22+o}, {R4(SW2)}, s{sW} offen offset:{tb*128} {w2aux} lds")
            if n<3: A(f"s_add_u32 m0, m0, {896 if tb==0 else 1024+128}\ns_nop 0")
    def issueH():
        A(f"s_add_u32 m0, s{sLH}, s{sSlot}\ns_nop 0")
        for n in range(4):
            A(f"buffer_load_dwordx4 v{26+n}, {R4(SWS)}, s{sH} offen sc1 lds")
            if n<3: A("s_add_u32 m0, m0, 1024\ns_nop 0")
    A(f"v_readlane_b32 s{sW}, v21, 0")
    if not la1: A("s_waitcnt vmcnt(7)\ns_barrier")
    if not hsi: A(f"s_cmp_eq_u32 s{sP}, 0\ns_cbranch_scc0 P2_nh\ns_load_dwordx4 s[28:31], s[6:7], 0 glc\nP2_nh:")
    A("s_waitcnt vmcnt(0)\ns_barrier")
    def nextW(): A(f"s_add_u32 s{sCnt}, s{sCnt}, 1\ns_add_u32 s{sSlot}, s{sSlot}, 16384\nv_readlane_b32 s{sW}, v21, s{sCnt}\ns_nop 2")
    if w2e:
        A("s_branch P2_w0\nP2_w:"); nextW(); A("P2_w0:"); issueW()
        A(f"s_cmp_lt_u32 s{sCnt}, {w2e}\ns_cbranch_scc1 P2_w")
        A("s_barrier")
        pad()
        A("P2_w2:"); nextW(); issueW()
        A(f"s_cmp_lt_u32 s{sCnt}, 3\ns_cbranch_scc1 P2_w2")
    else:
        issueW()
        A("s_barrier")
        pad()
        A("P2_w:"); nextW(); issueW()
        A(f"s_cmp_lt_u32 s{sCnt}, 3\ns_cbranch_scc1 P2_w")
    A(f"s_cmp_eq_u32 s{sP}, 0\ns_cbranch_scc0 P2_hsd\ns_mov_b32 s58, 0\ns_branch P2_hsw")
    A("P2_hs:\ns_load_dwordx4 s[28:31], s[6:7], 0 glc\ns_add_u32 s58, s58, 1\nP2_hsw:\ns_waitcnt lgkmcnt(0)")
    if lead: A(f"s_cmp_ge_u32 s58, {SPIN}\ns_cbranch_scc1 P2_hsd\ns_cmp_eq_u32 s28, 1\ns_cbranch_scc0 P2_hs\nP2_hsd:")
    else:
        A(f"s_and_b32 s28, s28, s29\ns_and_b32 s30, s30, s31\ns_and_b32 s28, s28, s30\ns_and_b32 s28, s28, 0x01010101\ns_cmp_ge_u32 s58, {SPIN}\ns_cbranch_scc1 P2_hsd\ns_cmp_eq_u32 s28, 0x01010101\ns_cbranch_scc0 P2_hs\nP2_hsd:")
    A(f"s_lshr_b32 s59, s{sLid}, 3\ns_lshl_b32 s59, s59, 10\ns_add_u32 s59, s59, {F_OFF+fch*128}\ns_lshl_b32 s{sT0}, s{sFt8}, 2")
    A(f"v_mov_b32 v5, {OOB}\nv_mov_b32 v6, s{sT0}\nv_cmp_eq_u32 vcc, 0, v2\nv_and_b32 v3, 7, v2\nv_lshlrev_b32 v3, 2, v3\nv_cndmask_b32 v6, v5, v6, vcc\nv_mov_b32 v5, 1")
    A(f"v_readlane_b32 s{sH}, v20, 3\ns_waitcnt vmcnt(12)")
    stamp(3)
    A("s_barrier")
    stamp(6)
    A(f"s_cmp_eq_u32 s{sP}, 1\ns_cbranch_scc0 P2_nf\nbuffer_store_dword v5, v6, {R4(SWS)}, s59 offen sc1\ns_nop 1\nv_mov_b32 v5, 7\nP2_nf:")
    A(f"s_mov_b32 s62, 0\ns_cmp_eq_u32 s{sP}, 0\ns_cbranch_scc1 P2_p0\ns_waitcnt vmcnt(0)\ns_branch P2_go\nP2_p0:\ns_mov_b32 s58, 0")
    if pdelay: A(f"s_mov_b32 s16, 0\nP2_dl:\ns_add_u32 s16, s16, 1\ns_cmp_lt_u32 s16, {pdelay}\ns_cbranch_scc1 P2_dl")
    stamp(7)
    if vpoll:
        A(f"P2_l1:\nbuffer_load_dword v4, v3, {R4(SWS)}, s59 offen sc1\ns_add_u32 s58, s58, 1\ns_waitcnt vmcnt(0)\nv_cmp_eq_u32 vcc, 0, v4")
        spin_tail("P2_l1")
    else:
        A("P2_l1:\ns_load_dwordx8 s[16:23], s[4:5], 0 glc\ns_add_u32 s58, s58, 1\ns_waitcnt lgkmcnt(0)")
        A("s_and_b64 s[16:17], s[16:17], s[18:19]\ns_and_b64 s[20:21], s[20:21], s[22:23]\ns_and_b64 s[16:17], s[16:17], s[20:21]\ns_and_b32 s16, s16, s17")
        A(f"s_cmp_ge_u32 s58, {SPIN}\ns_cbranch_scc1 P2_rdy\ns_bitcmp1_b32 s16, 0\ns_cbranch_scc1 P2_rdy")
        if la2: A(f"s_cmp_eq_u32 s58, {npoll}\ns_cbranch_scc0 P2_l1\ns_waitcnt vmcnt(0)\ns_barrier\ns_mov_b32 s62, 1")
        A("s_branch P2_l1")
    A("P2_rdy:")
    if diag and diag!=5: stamp(9); A("s_mov_b32 s80, s58")
    A(f"s_mov_b32 m0, 49152\ns_mov_b32 s58, 0")
    A("P2_h3:")
    for n in range(4): A(f"buffer_load_dwordx4 v{26+n}, {R4(SWS)}, s{sH} offen sc1 lds\ns_add_u32 m0, m0, 1024\n"+("s_nop 0" if n<3 else f"s_add_u32 s{sH}, s{sH}, {QS}"))
    A("s_add_u32 s58, s58, 1\ns_cmp_lt_u32 s58, 4\ns_cbranch_scc1 P2_h3")
    A("P2_go:")
    pad()
    stamp(4)
    PL=f"buffer_load_dword v4, v3, {R4(SWS)}, s59 offen sc1"
    POOL=[]
    if tight2:
        assert not la2 and not two and pf2 not in (3,4) and l1epi==3
        mask=(1<<(l1st+5))|(1<<9)|(1<<10)|(1<<23)|(((1<<14)|(1<<20)) if lead else 0)
        wl=[f"buffer_load_dwordx4 v{22+(n>>1)}, {R4(SW2)}, s{sW} offen offset:{(n&1)*128} {w2aux} lds" for n in range(4)]
        hl=[f"buffer_load_dwordx4 v{26+n}, {R4(SWS)}, s{sH} offen sc1 lds" for n in range(4)]
        A(f"s_mov_b32 s{sCnt}, 4\ns_mov_b32 s57, {mask}\nv_readlane_b32 s{sW}, v21, 4\ns_mov_b32 s{sSlot}, 0\ns_mov_b32 m0, s{sLW2}\ns_branch P2_bar")
        A(".p2align 3\nP2_loop:")
        A(f"s_bitcmp1_b32 s57, s{sCnt}\ns_cbranch_scc1 P2_hk\nP2_hkb:")
        A(f"s_add_u32 m0, s{sLH}, s{sSlot}\ns_add_u32 s{sCnt}, s{sCnt}, 1")
        A(f"{hl[0]}\ns_add_u32 m0, m0, 1024\nv_readlane_b32 s{sW}, v21, s{sCnt}")
        A(f"{hl[1]}\ns_add_u32 m0, m0, 1024\ns_add_u32 s{sSlot}, s{sSlot}, 16384")
        A(f"{hl[2]}\ns_add_u32 m0, m0, 1024\ns_and_b32 s{sSlot}, s{sSlot}, 0xffff")
        A(f"{hl[3]}\ns_add_u32 m0, s{sLW2}, s{sSlot}\nP2_bar:\ns_waitcnt vmcnt(16)\ns_barrier")
        A(f"s_cmp_lt_u32 s{sCnt}, 28\ns_cbranch_scc0 P2_out")
        A(f"{wl[0]}\ns_add_u32 m0, m0, 896\nv_readlane_b32 s{sH}, v20, s{sCnt}")
        A(f"{wl[1]}\ns_add_u32 m0, m0, 1152\ns_nop 0")
        A(f"{wl[2]}\ns_add_u32 m0, m0, 896\ns_nop 0")
        A(f"{wl[3]}\ns_branch P2_loop")
        A("P2_hk:"); pad()
        A(f"s_cmp_eq_u32 s{sCnt}, 23\ns_cbranch_scc0 P2_hk1\nv_mov_b32 v22, v24\nv_mov_b32 v23, v25\ns_branch P2_hkb")
        A("P2_hk1:")
        if lead:
            A(f"s_cmp_lt_u32 s{sCnt}, 14\ns_cbranch_scc1 P2_hk1a\ns_cmp_eq_u32 s{sP}, 0\ns_cbranch_scc0 P2_hkb\ns_mov_b32 s58, 0\ns_cmp_eq_u32 s{sCnt}, 20\ns_cbranch_scc1 P2_pw")
            A(f"s_xor_b32 s4, s4, 1024\ns_xor_b32 s{sT0}, s{sFt8}, {dswz}\ns_lshl_b32 s{sT0}, s{sT0}, 2\ns_add_u32 s4, s4, s{sT0}\ns_load_dword s28, s[4:5], 0 glc\ns_branch P2_hkb")
            A(f"P2_pl:\ns_load_dword s28, s[4:5], 0 glc\ns_add_u32 s58, s58, 1\nP2_pw:\ns_waitcnt lgkmcnt(0)\ns_cmp_ge_u32 s58, {SPIN}\ns_cbranch_scc1 P2_hkb\ns_cmp_eq_u32 s28, 0\ns_cbranch_scc1 P2_pl\ns_branch P2_hkb\nP2_hk1a:")
        A(f"s_cmp_eq_u32 s{sCnt}, 9\ns_cbranch_scc0 P2_hk2\n{PL}\ns_branch P2_hkb")
        A(f"P2_hk2:\ns_cmp_eq_u32 s{sCnt}, 10\ns_cbranch_scc1 P2_hk3\ns_cmp_eq_u32 s{sP}, 1\ns_cbranch_scc0 P2_hkb\nbuffer_store_dword v5, v6, {R4(SWS)}, s59 offen sc1\ns_branch P2_hkb")
        A("P2_hk3:\ns_waitcnt vmcnt(8)\nv_cmp_gt_u32 vcc, 7, v4\ns_mov_b32 s58, 0\ns_nop 3\ns_cbranch_vccz P2_hkb")
        A(f"P2_l2:\n{PL}\ns_add_u32 s58, s58, 1\ns_waitcnt vmcnt(0)\nv_cmp_gt_u32 vcc, 7, v4")
        spin_tail("P2_l2")
        A("s_branch P2_hkb\nP2_out:")
    else:
        A(f"s_mov_b32 s{sCnt}, 4\ns_mov_b32 s57, 7")
        if la2: A("s_cmp_eq_u32 s62, 0\ns_cbranch_scc0 P2_loop\ns_waitcnt vmcnt(16)\ns_barrier")
        A("P2_loop:")
        A(f"v_readlane_b32 s{sW}, v21, s{sCnt}\nv_readlane_b32 s{sH}, v20, s{sCnt}")
        A(f"s_add_u32 s{sSlot}, s{sSlot}, 16384\ns_and_b32 s{sSlot}, s{sSlot}, 0xffff")
        A(f"s_cmp_eq_u32 s{sCnt}, 24\ns_cbranch_scc0 P2_a\nv_mov_b32 v22, v24\nv_mov_b32 v23, v25\nP2_a:")
        if la2: A(f"s_cmp_eq_u32 s{sCnt}, 4\ns_cbranch_scc1 P2_nw\ns_waitcnt vmcnt(8)\nP2_nw:\ns_barrier")
        else: A("s_waitcnt vmcnt(16)\ns_barrier")
        assert l1epi==3 or sched==9
        A(f"s_lshl_b32 s{sT0}, s{sP}, 8\ns_add_u32 s{sT0}, s{sT0}, s{sCnt}\ns_cmp_eq_u32 s{sT0}, {256+l1st+(4 if la2 else 5)}\ns_cbranch_scc0 P2_nf2\nbuffer_store_dword v5, v6, {R4(SWS)}, s59 offen sc1\nP2_nf2:")
        if two:
            A(f"s_cmp_eq_u32 s{sT0}, 14\ns_cbranch_scc0 P2_n2a\ns_load_dwordx4 s[28:31], s[6:7], 0 glc\nP2_n2a:")
            A(f"s_cmp_eq_u32 s{sT0}, 20\ns_cbranch_scc0 P2_n2b\ns_mov_b32 s58, 0\ns_branch P2_h2w\nP2_h2:\ns_load_dwordx4 s[28:31], s[6:7], 0 glc\ns_add_u32 s58, s58, 1\nP2_h2w:\ns_waitcnt lgkmcnt(0)")
            A(f"s_and_b32 s28, s28, s29\ns_and_b32 s30, s30, s31\ns_and_b32 s28, s28, s30\ns_cmp_ge_u32 s58, {SPIN}\ns_cbranch_scc1 P2_n2b\ns_cmp_eq_u32 s28, 0x03030303\ns_cbranch_scc0 P2_h2\nP2_n2b:")
        A(f"s_cmp_eq_u32 s{sCnt}, 9\ns_cbranch_scc0 P2_np\n{PL}\nP2_np:")
        A(f"s_cmp_eq_u32 s{sCnt}, 10\ns_cbranch_scc0 P2_b")
        A("s_waitcnt vmcnt(8)\nv_cmp_gt_u32 vcc, s57, v4\ns_mov_b32 s58, 0\ns_nop 3\ns_cbranch_vccz P2_ok")
        A(f"P2_l2:\n{PL}\ns_add_u32 s58, s58, 1\ns_waitcnt vmcnt(0)\nv_cmp_gt_u32 vcc, s57, v4")
        spin_tail("P2_l2")
        A("P2_ok:\ns_mov_b32 s57, 7")
        A("P2_b:")
        pad()
        issueW(); issueH()
        if pf2==3:
            A("s_cmp_eq_u32 s13, 24\ns_cselect_b32 s8, s14, s8\ns_cselect_b32 s9, s15, s9\ns_cmp_lt_u32 s13, 28\ns_cbranch_scc0 P2_nspf")
            spf()
            A("P2_nspf:")
        A(f"s_add_u32 s{sCnt}, s{sCnt}, 1\ns_cmp_lt_u32 s{sCnt}, 28\ns_cbranch_scc1 P2_loop")
    A(("" if (la2 or tight2) else "s_waitcnt vmcnt(16)\ns_barrier\n")+"s_waitcnt vmcnt(8)\ns_barrier\ns_waitcnt vmcnt(0)\ns_barrier")
    if diag: stamp(5); rstamp(15); flush(16)
    A("s_endpgm")
    A(".p2align 6\nL_cons:")
    ACC=16; F=[(128,144),(172,188)]
    vX0,vX1,vE,vO,vL=4,5,6,7,8; bX0,bE,bL=9,10,11
    sWm,sWf,sIt,sRg,sA,sB,sC=46,47,48,49,58,7,59
    sHA,sH3,sRX2,sClr,sPf=50,51,4,5,6
    vOwn,vT3,vH,vW=232,233,235,[236,237,238,239]
    if pfc and not fast:
        A(f"s_getpc_b64 s[54:55]\nC_pc:\ns_sub_u32 s54, s54, C_pc-{NAME}\ns_subb_u32 s55, s55, 0")
        A(f"v_lshlrev_b32 v3, 7, v0\nv_min_u32 v3, L_end-{NAME}, v3\nglobal_load_dword v255, v3, s[54:55]")
    if pf1==1 and not fast:
        A(f"v_and_b32 v15, 31, v2\nv_lshlrev_b32 v15, 7, v15\ns_lshl_b32 s{sA}, s2, 2\ns_add_u32 s{sA}, s{sA}, s3\ns_lshl_b32 s{sA}, s{sA}, 12")
    if pf1==3:
        A(f"v_and_b32 v15, 7, v2\nv_lshlrev_b32 v15, 7, v15\nv_bfe_u32 v14, v2, 3, 1\nv_lshl_add_u32 v15, v14, 11, v15\ns_lshl_b32 s{sA}, s2, 2\ns_add_u32 s{sA}, s{sA}, s3\ns_lshl_b32 s{sA}, s{sA}, 12\nv_mov_b32 v252, v15")
    if pf1==2:
        A(f"v_lshlrev_b32 v15, 7, v2\ns_lshr_b32 s{sA}, s2, 3\ns_lshl_b32 s{sA}, s{sA}, 2\ns_add_u32 s{sA}, s{sA}, s3\ns_lshl_b32 s{sA}, s{sA}, 13\ns_lshr_b32 s{sB}, s{sXcd}, 1\ns_lshl_b32 s{sB}, s{sB}, 20\ns_add_u32 s{sA}, s{sA}, s{sB}")
    A("s_waitcnt lgkmcnt(0)")
    if pf1 and not (fast and pf1==1):
        srd(A,SX,4,X_BYTES)
        A(f"buffer_load_dword v253, v15, {R4(SX)}, s{sA} offen")
        if pf1==3: srd(A,SW1,6,W_BYTES)
    if diag==5: stamp(6)
    A("s_setprio 1")
    A(f"s_lshr_b32 s{sWm}, s3, 1\ns_and_b32 s{sWf}, s3, 1")
    A("v_and_b32 v3, 15, v2\nv_lshrrev_b32 v12, 4, v2")
    A("v_lshrrev_b32 v13, 1, v3\nv_xor_b32 v13, v13, v12\nv_lshlrev_b32 v13, 4, v13")
    A(f"s_lshl_b32 s{sA}, s{sWm}, 13\nv_lshlrev_b32 v14, 7, v3\nv_add3_u32 v{bX0}, v13, v14, s{sA}")
    A("v_lshrrev_b32 v13, 1, v12\nv_mul_u32_u24 v13, 7168, v13\nv_bfe_u32 v15, v2, 2, 2\nv_lshl_add_u32 v13, v15, 6, v13\nv_and_b32 v15, 3, v2\nv_lshl_add_u32 v13, v15, 3, v13")
    A(f"v_and_b32 v14, 1, v12\nv_mul_u32_u24 v15, 1056, v14\ns_lshl_b32 s{sA}, s{sWf}, 9\ns_add_u32 s{sA}, s{sA}, {WOFF}\nv_add3_u32 v{bE}, v13, v15, s{sA}")
    A(f"v_mul_u32_u24 v15, 544, v14\nv_add_u32 v13, v13, v15\ns_lshl_b32 s{sA}, s{sWf}, 5\nv_xor_b32 v13, s{sA}, v13\nv_add_u32 v{bL}, {WOFF+6144}, v13")
    VF=248
    fragoffs(VF)
    A(f"v_add_u32 v{vE}, {2*WST}, v{bE}\nv_mov_b32 v{vX0}, v{bX0}\nv_add_u32 v{vL}, {2*WST}, v{bL}\nv_xor_b32 v{vO}, 32, v{vE}\nv_xor_b32 v{vX1}, 64, v{vX0}")
    srd(A,SO,10,O_BYTES); srd(A,SWS,14,0x10000000); srd(A,SW2,8,W_BYTES)
    if diag==5 or not spub: srd(A,SD,12,256)
    A("v_lshlrev_b32 v3, 4, v2")
    A(f"s_lshr_b32 s56, s{sLid}, 3\ns_lshl_b32 s56, s56, 10\ns_lshl_b32 s{sB}, s{sFt8}, 2\ns_add_u32 s56, s56, s{sB}\ns_add_u32 s56, s56, {F_OFF+fch*128}")
    if lead:
        A(f"s_cmp_eq_u32 s{sFt}, 0\ns_cselect_b32 s{sB}, 16, 0\nv_lshrrev_b32 v13, 3, v2\nv_lshlrev_b32 v13, 10, v13\nv_and_b32 v1, 7, v2\nv_lshl_add_u32 v13, v1, 2, v13")
        A(f"v_mov_b32 v1, {OOB}\nv_cmp_gt_u32 vcc, s{sB}, v2\ns_nop 1\nv_cndmask_b32 v1, v1, v13, vcc")
    else:
        A(f"v_mov_b32 v1, {OOB}\nv_cmp_eq_u32 vcc, 0, v2\ns_nop 1\nv_cndmask_b32 v1, v1, 0, vcc")
    A(f"s_andn2_b32 s57, s{sLid}, 7\ns_add_u32 s57, s57, s{sDt}\ns_lshl_b32 s57, s57, 2\ns_add_u32 s57, s57, s3\ns_mul_i32 s57, s57, {QS}\ns_add_u32 s57, s57, {P_OFF}")
    A(f"s_lshl_b32 s52, s{sWm}, 12\nv_add_u32 v{vH}, s52, v3")
    A("v_lshrrev_b32 v13, 5, v2\nv_lshlrev_b32 v13, 11, v13\nv_bfe_u32 v14, v2, 4, 1\nv_mul_u32_u24 v14, 288, v14\nv_add_u32 v13, v13, v14")
    A("v_bfe_u32 v15, v2, 2, 2\nv_lshl_add_u32 v13, v15, 6, v13\nv_and_b32 v15, 3, v2\nv_lshl_add_u32 v13, v15, 3, v13")
    A(f"s_lshl_b32 s52, s{sJ}, 1\ns_add_u32 s52, s52, s{sWf}\ns_lshl_b32 s52, s52, 9\ns_add_u32 s52, s52, 65536\nv_add_u32 v{vW[0]}, s52, v13")
    A(f"v_xor_b32 v{vW[1]}, 32, v{vW[0]}\nv_xor_b32 v{vW[2]}, 0x400, v{vW[0]}\nv_xor_b32 v{vW[3]}, 0x420, v{vW[0]}")
    A(f"s_add_u32 s62, s{sFt8}, s3\ns_and_b32 s62, s62, {rmask}\ns_add_u32 s62, s62, {l2st+5}")
    A(f"s_mul_i32 s{sHA}, s{sMt}, 112\ns_mul_i32 s{sH3}, s{sFt}, 7\ns_add_u32 s{sHA}, s{sHA}, s{sH3}\ns_and_b32 s52, s{sFt8}, 1")
    A(f"s_xor_b32 s53, s52, 1\ns_mul_i32 s53, s53, 6\ns_add_u32 s{sH3}, s{sHA}, s53\ns_add_u32 s{sHA}, s{sHA}, s52\ns_add_u32 s{sHA}, s{sHA}, s{sWf}")
    A(f"s_mul_i32 s52, s{sWm}, {QS}\ns_mul_i32 s{sHA}, s{sHA}, {CH}\ns_add_u32 s{sHA}, s{sHA}, s52\ns_mul_i32 s{sH3}, s{sH3}, {CH}\ns_add_u32 s{sH3}, s{sH3}, s52\ns_lshl_b32 s52, s{sWm}, 12")
    A(f"s_lshl_b32 s53, s{sWf}, 13\ns_add_u32 s52, s52, s53\nv_add_u32 v{vOwn}, s52, v3")
    A(f"v_bfe_u32 v13, v2, 4, 1\nv_lshlrev_b32 v13, 3, v13\nv_lshrrev_b32 v14, 5, v2\nv_lshl_add_u32 v13, v14, 1, v13\nv_bfe_u32 v14, v2, 3, 1\ns_lshl_b32 s52, s{sWf}, 2\nv_add3_u32 v13, v13, v14, s52")
    A("v_add_u32 v14, 16, v13\nv_and_b32 v15, 7, v2\nv_lshlrev_b32 v15, 4, v15")
    physline(vT3,13,12); physline(vT3+1,14,12)
    A(f"v_add_u32 v{vT3}, v{vT3}, v15\nv_add_u32 v{vT3+1}, v{vT3+1}, v15")
    A("v_mov_b32 v12, 1\ns_mov_b32 s52, 0xbfb8aa3b\ns_mov_b32 s53, 0xbfb8aa3b\ns_mov_b32 s54, 1.0\ns_mov_b32 s55, 1.0")
    for r in range(112): A(f"v_mov_b32 v{ACC+r}, 0")
    for r in range(4): A(f"v_mov_b32 v{244+r}, -1")
    def hook(it, body, name, reg=None):
        OOL.append(f"{name}:\n{body}\ns_branch {name}_b")
        return [f"s_cmp_eq_u32 s{reg or sIt}, {it}", f"s_cbranch_scc1 {name}\n{name}_b:"]
    def reads1(u, fs):
        X,W=F[fs]
        xs=[f"ds_read_b128 {vr(X+4*i,4)}, v{vX1 if u else vX0} offset:{i*2048}" for i in range(4)]
        ws=[]
        for j in range(7):
            a,o=(vL,0) if j==6 else ((vO if j&1 else vE),(j>>1)*2048)
            for hh in range(2): ws.append(f"ds_read_b64_tr_b16 {vr(W+4*j+2*hh,2)}, v{a} offset:{u*14336+o+hh*256}")
        return ws[0:2]+xs+ws[2:]
    def mf1(fs):
        X,W=F[fs]
        return [f"v_mfma_f32_16x16x32_bf16 {vr(ACC+(j*4+i)*4,4)}, {vr(W+4*j,4)}, {vr(X+4*i,4)}, {vr(ACC+(j*4+i)*4,4)}" for j,i in snake(range(7),4)]
    A(f"s_mov_b32 s{sIt}, 0\ns_mov_b32 s{sRg}, {2*WST}\ns_mov_b32 s{sRX2}, 0\ns_add_u32 s{sClr}, s3, s{sFt8}\ns_and_b32 s{sClr}, s{sClr}, {cmask}\ns_add_u32 s{sClr}, s{sClr}, {cbase}")
    if two: A(f"s_mov_b32 s0, {1|4|(1<<ack)}")
    A(f"s_mul_i32 s{sPf}, s3, {pfb}\ns_add_u32 s{sPf}, s{sPf}, {pfa}")
    if pf2==2: A(f"v_min_u32 v15, 55, v2\nv_lshlrev_b32 v15, 7, v15\ns_lshl_b32 s{sA}, s2, 2\ns_add_u32 s{sA}, s{sA}, s3\ns_mul_i32 s{sA}, s{sA}, 7168\nbuffer_load_dword v255, v15, {R4(SW2)}, s{sA} offen")
    if diag in (2,3): A("s_mov_b32 m0, 0")
    clr="\n".join([f"buffer_store_dwordx4 v[244:247], v{VF+i}, {R4(SWS)}, s57 offen sc1" for i in range(4)])
    fclr=f"v_mov_b32 v13, 0\nbuffer_store_dword v13, v1, {R4(SWS)}, s56 offen sc1"
    if not two: clr=clr+"\n"+fclr
    if clr0: A(clr)
    if diag==5: stamp(8)
    if walk:
        A(f"s_cmp_ge_u32 s3, {walk}\ns_cbranch_scc1 C_walked\ns_waitcnt vmcnt({1 if pf1 else 0})\ns_mov_b64 exec, 0")
        for w in range(walk-1): A(f"s_cmp_eq_u32 s3, {w}\ns_cbranch_scc1 @START{w}@")
        A(f"s_branch @START{walk-1}@\nC_wret:\ns_mov_b64 exec, -1\nC_walked:")
    if diag==5: stamp(9)
    A("s_barrier")
    stamp(1)
    for l in reads1(0,0): A(l)
    A("s_waitcnt lgkmcnt(0)")
    A(".p2align 3\nC1_loop:")
    sstamp()
    ex=[f"s_add_u32 s{sRg}, s{sRg}, {WST}\ns_add_u32 s{sRX2}, s{sRX2}, 16384", f"s_cmp_eq_u32 s{sRg}, {WST*3}\ns_cselect_b32 s{sRg}, 0, s{sRg}",
        f"v_add_u32 v{vE}, s{sRg}, v{bE}\ns_and_b32 s{sRX2}, s{sRX2}, 0xffff", f"v_add_u32 v{vX0}, s{sRX2}, v{bX0}", f"v_add_u32 v{vL}, s{sRg}, v{bL}",
        f"v_xor_b32 v{vO}, 32, v{vE}", f"v_xor_b32 v{vX1}, 64, v{vX0}"]
    if not clr0: ex+=hook(f"s{sClr}" if stag else 2,clr,"H1_clr")
    for l in interleave(mf1(0), reads1(1,1)+ex): A(l)
    A("s_waitcnt lgkmcnt(0)\ns_barrier")
    pub=(f"s_cmp_eq_u32 s3, 0\ns_cbranch_scc0 H1_pub_b\ns_and_b32 s{sA}, s{sLid}, 3\ns_lshl_b32 s{sA}, s{sA}, 3\ns_lshl_b32 s{sA}, 1, s{sA}\nv_mov_b32 v13, s{sA}\n"
         f"s_andn2_b32 s{sA}, s{sLid}, 3\nv_lshlrev_b32 v14, 8, v2\nbuffer_atomic_or v13, v14, {R4(SD)}, s{sA} offen")
    if two:
        h=hook(0,f"s_cmp_eq_u32 s{sIt}, 0\ns_cbranch_scc1 H1_fc\ns_waitcnt vmcnt(0)\ns_branch H1_ack_b\nH1_fc:\n{fclr}","H1_ack")
        h[0]=f"s_bitcmp1_b32 s0, s{sIt}"
    else: h=hook(ack,"s_waitcnt vmcnt(0)","H1_ack")
    ex=h+([] if spub else hook(ack+1,pub,"H1_pub"))
    if pf1==3:
        nl=(16-w1s)*64*56//1024
        ex+=hook(pfi,f"s_lshl_b32 s{sA}, s2, 2\ns_add_u32 s{sA}, s{sA}, s3\ns_mul_i32 s{sB}, s{sA}, {nl*128}\ns_add_u32 s{sB}, s{sB}, {w1s*64*7168}\ns_lshl_b32 s{sA}, s{sA}, 12\n"
                     f"v_min_u32 v15, {nl-1}, v2\nv_lshlrev_b32 v15, 7, v15\nbuffer_load_dword v255, v15, {R4(SW1)}, s{sB} offen\nbuffer_load_dword v253, v252, {R4(SX)}, s{sA} offen offset:1024","H1_pf1")
    if pf2==4:
        ex+=hook(f"s{sPf}",f"s_lshl_b32 s{sA}, s2, 2\ns_add_u32 s{sA}, s{sA}, s3\ns_lshr_b32 s{sB}, s{sA}, 6\ns_and_b32 s60, s{sB}, 1\ns_mul_i32 s{sB}, s{sB}, 7\n"
                     f"s_add_u32 s61, s{sB}, s60\ns_add_u32 s61, s61, 4\ns_lshl_b32 s61, s61, 16\ns_xor_b32 s60, s60, 1\ns_mul_i32 s60, s60, 6\ns_add_u32 s{sB}, s{sB}, s60\ns_lshl_b32 s{sB}, s{sB}, 16\n"
                     f"s_and_b32 s{sA}, s{sA}, 63\ns_lshl_b32 s60, s{sA}, 11\ns_add_u32 s61, s61, s60\ns_lshl_b32 s60, s{sA}, 10\ns_add_u32 s{sB}, s{sB}, s60\n"
                     f"v_and_b32 v15, 15, v2\nv_lshlrev_b32 v15, 7, v15\nv_and_b32 v14, 7, v2\nv_lshlrev_b32 v14, 7, v14\n"
                     f"buffer_load_dword v255, v15, {R4(SW2)}, s61 offen\nbuffer_load_dword v253, v14, {R4(SW2)}, s{sB} offen","H1_pf")
    if pf2==1:
        ex+=hook(f"s{sPf}",f"v_min_u32 v15, 55, v2\nv_lshlrev_b32 v15, 7, v15\ns_lshl_b32 s{sA}, s2, 2\ns_add_u32 s{sA}, s{sA}, s3\ns_mul_i32 s{sA}, s{sA}, 7168\nbuffer_load_dword v255, v15, {R4(SW2)}, s{sA} offen","H1_pf")
    ex+=([PAD] if walk else [])+[f"s_add_u32 s{sIt}, s{sIt}, 1", f"s_cmp_lt_u32 s{sIt}, 16"]
    x=interleave(mf1(1), reads1(0,0)+ex)
    if x[-1].startswith("v_mfma"):
        for l in x[:-1]: A(l)
        A("s_waitcnt lgkmcnt(0)"); A(x[-1])
    else:
        for l in x: A(l)
        A("s_waitcnt lgkmcnt(0)")
    A("s_cbranch_scc1 C1_loop")
    stamp(2)
    T=216
    def silu(a, b, D):
        t=T; src=[a,a+2,b,b+2]
        for r in range(4): A(f"v_pk_mul_f32 {vr(t+2*r,2)}, s[52:53], {vr(src[r],2)}")
        for r in range(8): A(f"v_exp_f32 v{t+r}, v{t+r}")
        for r in range(4): A(f"v_pk_add_f32 {vr(t+2*r,2)}, s[54:55], {vr(t+2*r,2)}")
        for r in range(8): A(f"v_rcp_f32 v{t+r}, v{t+r}")
        for r in range(4): A(f"v_pk_mul_f32 {vr(t+2*r,2)}, {vr(t+2*r,2)}, {vr(src[r],2)}")
        for r in range(4): A(f"v_cvt_pk_bf16_f32 v{D+r}, v{t+2*r}, v{t+2*r+1}")
    def gst(D,i): return f"buffer_store_dwordx4 {vr(D,4)}, v{VF+i}, {R4(SWS)}, s{sHA} offen sc1"
    FLAG="s_nop 0"
    DL=[160,128,144]; D3=224
    for L in range(3):
        for i in range(4):
            D=DL[L]+4*i
            if i%2==0: pad()
            silu(ACC+((2*L)*4+i)*4, ACC+((2*L+1)*4+i)*4, D)
            if L==0 or (L==2 and l1epi>=2) or (L==1 and i>=nb and l1epi): A(gst(D,i))
            A(f"ds_write_b128 v{vOwn}, {vr(D,4)} offset:{L*16384+i*1024}")
            if L==1 and i==nb-1:
                stamp(11); A("s_waitcnt vmcnt(0)"); stamp(12)
                A(f"s_add_u32 s{sHA}, s{sHA}, {2*CH}\ns_waitcnt lgkmcnt(0)\ns_barrier")
                if l1epi:
                    for k in range(nb): A(gst(128+4*k,k))
        if L==1 and l1epi: A(f"s_add_u32 s{sHA}, s{sHA}, {2*CH}")
    F2=[(160,176),(192,208)]
    def rdH(X,slot,u): return [f"ds_read_b128 {vr(X+4*i,4)}, v{vH} offset:{slot*16384+u*8192+i*1024}" for i in range(4)]
    def rdW(W,slot,u,js): return [f"ds_read_b64_tr_b16 {vr(W+4*n+2*hh,2)}, v{vW[j]} offset:{slot*16384+(4*u+2*hh)*2048}" for n,j in enumerate(js) for hh in range(2)]
    def reads2(slot,u,fs):
        X,W=F2[fs]; ws=rdW(W,slot,u,range(4)); return ws[0:2]+rdH(X,slot,u)+ws[2:]
    def mfm(X,W,js,zero=False,w0=0):
        return [f"v_mfma_f32_16x16x32_bf16 {vr(ACC+(j*4+i)*4,4)}, {vr(W+4*(j-w0),4)}, {vr(X+4*i,4)}, {'0' if zero else vr(ACC+(j*4+i)*4,4)}" for j,i in snake(js,4)]
    def mf2(fs,zero=False): return mfm(F2[fs][0],F2[fs][1],range(4),zero)
    for l in reads2(0,0,0): A(l)
    for ip in range(2):
        D=D3+4*ip; a=ACC+(24+2*ip)*4
        if ip==0: pad()
        silu(a,a+4,D)
        A(f"s_nop 1\nv_permlane16_swap_b32 v{D}, v{D+2}\nv_permlane16_swap_b32 v{D+1}, v{D+3}")
        if l1epi>=3: A(f"buffer_store_dwordx4 {vr(D,4)}, v{vT3+ip}, {R4(SWS)}, s{sH3} offen sc1")
    A(f"v_mov_b32 v12, {7 if l1epi==3 else 3}\ns_mov_b32 s{sIt}, 0")
    stamp(3); stamp(4)
    sstamp()
    A("s_waitcnt lgkmcnt(0)")
    for l in interleave(mf2(0,True), reads2(0,1,1)+([PAD] if walk else [])): A(l)
    A("s_branch C2_in")
    dw={}; dws={}
    t3st=[f"buffer_store_dwordx4 {vr(D3+4*ip,4)}, v{vT3+ip}, {R4(SWS)}, s{sH3} offen sc1" for ip in range(2)]
    ADV=f"\ns_add_u32 s{sHA}, s{sHA}, {2*CH}"
    L1s=[gst(128+4*i,i) for i in range(4)]; L2s=[gst(144+4*i,i) for i in range(4)]
    F3=f"s_waitcnt vmcnt(0)\n{FLAG}"; F7=f"v_mov_b32 v12, 7\ns_waitcnt vmcnt(0)\n{FLAG}"
    J="\n".join
    if sched==1:
        dw[(0,1)]=J(L1s[:2]); dw[(1,0)]=J(L1s[2:])+ADV; dw[(1,1)]=J(L2s[:2]); dw[(2,0)]=J(L2s[2:]); dw[(2,1)]=J(t3st); dw[(4,0)]=F7
    elif sched==2:
        dw[(0,1)]=J(L1s[:2]); dw[(1,0)]=J(L1s[2:])+ADV; dw[(3,0)]=F3
        dw[(3,1)]=L2s[0]; dw[(4,0)]=L2s[1]; dw[(4,1)]=L2s[2]; dw[(5,0)]=L2s[3]; dw[(5,1)]=t3st[0]; dw[(6,0)]=t3st[1]; dw[(10,0)]=F7
    elif sched==3:
        dw[(0,1)]=L1s[0]; dw[(1,0)]=L1s[1]; dw[(1,1)]=L1s[2]; dw[(2,0)]=L1s[3]+ADV; dw[(3,1)]=F3
        dw[(4,0)]=L2s[0]; dw[(4,1)]=L2s[1]; dw[(5,0)]=L2s[2]; dw[(5,1)]=L2s[3]; dw[(6,0)]=t3st[0]; dw[(6,1)]=t3st[1]; dw[(11,0)]=F7
    elif sched==4:
        dw[(0,1)]=J(L1s)+ADV; dw[(1,1)]=J(L2s); dw[(2,1)]=J(t3st); dw[(4,0)]=F7
    elif sched==9:
        dw[(1,1)]=F7
    elif sched==5:
        dw[(0,1)]=J(L2s[:2]); dw[(1,0)]=J(L2s[2:]); dw[(1,1)]=J(t3st); dw[(3,1)]=F7
    else:
        if not l1epi:
            dw[(l1st,0)]=gst(128,0)+"\n"+gst(132,1); dw[(l1st,1)]=gst(136,2)+"\n"+gst(140,3)+f"\ns_add_u32 s{sHA}, s{sHA}, {2*CH}"
            dw[(l1st+2,1)]=f"s_waitcnt vmcnt(0)\n{FLAG}"
        else:
            dw[(l1st,1)]=f"s_waitcnt vmcnt(0)\n{FLAG}"
        if l1epi>=2:
            if l1epi==2: dw[(l2st,0)]="\n".join(t3st)
            if l1epi==2: dw[(f3,1)]=f"v_mov_b32 v12, 7\ns_waitcnt vmcnt(0)\n{FLAG}"
        elif not stag2:
            dw[(l2st,0)]=gst(144,0)+"\n"+gst(148,1); dw[(l2st+1,0)]=gst(152,2)+"\n"+gst(156,3)+"\nv_mov_b32 v12, 7"
            dw[(l2st+2,0)]="\n".join(t3st)
            dw[(l2st+5,1)]=f"s_waitcnt vmcnt(0)\n{FLAG}"
        else:
            dw[(f3,1)]=f"v_mov_b32 v12, 7\ns_waitcnt vmcnt(0)\n{FLAG}"
            body=[gst(144+4*i,i) for i in range(4)]+t3st
            o="H2_st:\n"
            for n,b in enumerate(body):
                o+=f"s_cmp_eq_u32 s62, {5-n}\ns_cbranch_scc0 H2_st{n}\n{b}\nH2_st{n}:\n"
            o+="s_setpc_b64 s[54:55]"
            OOL.append(o)
    def hooks2(slot,u):
        ex=[]
        for (q,uu),body in sorted(dw.items()):
            if q%4==slot and uu==u: ex+=hook(q//4,body,f"H2_{q}_{uu}")
        if stag2 and l1epi<2 and u==0 and not sched:
            ex+=["s_sub_u32 s62, s62, 1\ns_cmp_lt_u32 s62, 6", f"s_cbranch_scc1 H2_go{slot}\nH2_ns{slot}:"]
            OOL.append(f"H2_go{slot}:\ns_call_b64 s[54:55], H2_st\ns_branch H2_ns{slot}")
        assert len(ex)<=4, (slot,u,ex)
        return ex
    A(".p2align 3\nC2_loop:")
    for slot in range(4):
        sstamp()
        for l in interleave(mf2(0), reads2(slot,1,1)+hooks2(slot,0)+([PAD] if walk else [])): A(l)
        if slot==0: A("C2_in:")
        A("s_waitcnt lgkmcnt(0)\ns_barrier")
        ex=hooks2(slot,1)
        if slot==3: ex+=[f"s_add_u32 s{sIt}, s{sIt}, 1", f"s_cmp_lt_u32 s{sIt}, 6"]
        x=interleave(mf2(1), reads2((slot+1)&3,0,0)+ex)
        if x[-1].startswith("v_mfma"):
            for l in x[:-1]: A(l)
            A("s_waitcnt lgkmcnt(0)"); A(x[-1])
        else:
            for l in x: A(l)
            A("s_waitcnt lgkmcnt(0)")
    A("s_cbranch_scc1 C2_loop")
    stamp(13)
    if diag: A("s_waitcnt lgkmcnt(0)")
    G=[dict(H=[160,80],W=[184,96]), dict(H=[192,104],W=[208,216])]
    def rdS(g,slot,js,us=(0,1)):
        o=[]
        for u in us:
            w=rdW(G[g]['W'][u],slot,u,js); o+=w[0:2]+rdH(G[g]['H'][u],slot,u)+w[2:]
        return o
    def mfS(g,js): return mfm(G[g]['H'][0],G[g]['W'][0],js,w0=js[0])+mfm(G[g]['H'][1],G[g]['W'][1],js,w0=js[0])
    for l in rdS(0,0,(2,3),(1,)): A(l)
    pad()
    A("s_barrier")
    m=mfS(0,(2,3)); r=rdS(1,1,(2,3))
    x=interleave(m[:8], r[:8])
    for l in x: A(l)
    A("s_waitcnt lgkmcnt(8)")
    for l in interleave(m[8:], r[8:]): A(l)
    for q in (1,2):
        if q==2: pad()
        A("s_waitcnt lgkmcnt(0)\ns_barrier")
        for l in interleave(mfS(q&1,(2,3)), rdS((q+1)&1,q+1,(2,3))): A(l)
    A(f"s_mul_i32 s52, s{sJ}, {-2*32*QS}\ns_add_u32 s52, s52, {32*QS}\ns_add_u32 s52, s52, s57\ns_mov_b32 s53, -2")
    sn=[]
    for i in range(4):
        D=128+4*i; t=[]
        for n,j in enumerate((2,3)):
            S=ACC+(j*4+i)*4
            t+= [f"v_cvt_pk_bf16_f32 v{D+2*n}, v{S}, v{S+1}", f"v_cvt_pk_bf16_f32 v{D+2*n+1}, v{S+2}, v{S+3}"]
        t+=[f"v_min_u32 v{D+r}, s53, v{D+r}" for r in range(4)]
        t.append(f"buffer_store_dwordx4 {vr(D,4)}, v{VF+i}, {R4(SWS)}, s52 offen sc1")
        sn.append(t)
    A("s_waitcnt lgkmcnt(0)")
    if esend:
        g=G[1]; r=rdS(0,0,(0,1)); k=0
        for i in range(4):
            for u,j in ((0,2),(0,3),(1,3),(1,2)):
                A(f"v_mfma_f32_16x16x32_bf16 {vr(ACC+(j*4+i)*4,4)}, {vr(g['W'][u]+4*(j-2),4)}, {vr(g['H'][u]+4*i,4)}, {vr(ACC+(j*4+i)*4,4)}")
                A(r[k]); k+=1
            if i>=1:
                for l in sn[i-1]: A(l)
        stamp(5)
        pad()
        A("s_waitcnt lgkmcnt(0)")
        m=mfS(0,(0,1)); r=rdS(1,1,(0,1))
        for n,mm_ in enumerate(m):
            A(mm_); A(r[n])
            if n==2:
                for l in sn[3]: A(l)
    else:
        for l in interleave(mfS(1,(2,3)), rdS(0,0,(0,1))): A(l)
        stamp(5)
        pad()
        snd=sum(sn,[])
        A("s_waitcnt lgkmcnt(0)")
        m=mfS(0,(0,1)); r=rdS(1,1,(0,1))
        k=0
        for n,mm_ in enumerate(m):
            A(mm_); A(r[n])
            if packfirst and n==1:
                A("s_nop 3")
                while k<len(snd): A(snd[k]); k+=1
            if n>=3:
                for _ in range(3):
                    if k<len(snd): A(snd[k]); k+=1
        while k<len(snd): A(snd[k]); k+=1
    if diag!=5: stamp(6)
    RB=144 if dual else 80; RB2=224
    def LDs(b): return [f"buffer_load_dwordx4 {vr(b+4*i,4)}, v{VF+i}, {R4(SWS)}, s57 offen sc1" for i in range(4)]
    LD=LDs(RB)
    for q in (1,2):
        pad()
        A("s_waitcnt lgkmcnt(0)")
        x=interleave(mfS(q&1,(0,1)), rdS((q+1)&1,q+1,(0,1)))
        if dual==q:
            for n in range(4): x.insert(2+3*n+n,LD[n])
        for l in x: A(l)
    A("s_waitcnt lgkmcnt(0)")
    adr=["v_and_b32 v13, 15, v2","v_lshlrev_b32 v13, 11, v13","v_bfe_u32 v14, v2, 4, 1","v_lshl_add_u32 v13, v14, 5, v13","v_lshrrev_b32 v14, 5, v2","v_lshl_add_u32 v13, v14, 4, v13",
         f"s_lshl_b32 s{sC}, s{sMt}, 1\ns_add_u32 s{sC}, s{sC}, s{sWm}", f"s_lshl_b32 s{sC}, s{sC}, 17\ns_lshl_b32 s52, s{sDt}, 8", f"s_add_u32 s{sC}, s{sC}, s52\ns_lshl_b32 s52, s{sJ}, 7",
         f"s_add_u32 s{sC}, s{sC}, s52\ns_lshl_b32 s52, s{sWf}, 6", f"s_add_u32 s{sC}, s{sC}, s52\ns_mov_b32 s58, 0"]
    def chk():
        A(f"v_max3_u32 v14, v{RB}, v{RB+1}, v{RB+2}")
        for r in range(3,15,2): A(f"v_max3_u32 v14, v14, v{RB+r}, v{RB+r+1}")
        A(f"v_max_u32 v14, v14, v{RB+15}\nv_cmp_eq_u32 vcc, -1, v14")
    if dual:
        for l in interleave(mfS(1,(0,1)), LDs(80)+adr): A(l)
        A("s_waitcnt vmcnt(4)"); chk()
        A("s_nop 4\ns_cbranch_vccz C3_ok\ns_waitcnt vmcnt(0)")
        for r in range(16): A(f"v_mov_b32 v{RB+r}, v{80+r}")
    else:
        for l in interleave(mfS(1,(0,1)), adr[:ldpos]+LD+adr[ldpos:]): A(l)
    pad()
    A("s_branch C3_chk")
    A("C3_poll:")
    for l in LD: A(l)
    A("C3_chk:\ns_add_u32 s58, s58, 1\ns_waitcnt vmcnt(0)")
    chk()
    spin_tail("C3_poll")
    A("C3_ok:")
    stamp(7)
    if diag!=5: stamp(8)
    A("s_mov_b32 s53, 0xffff0000")
    for i in range(4):
        D=128+4*i
        for n in range(2):
            S=ACC+(n*4+i)*4
            for h in range(2):
                Rr=RB+4*i+2*n+h
                A(f"v_lshlrev_b32 v{T}, 16, v{Rr}\nv_and_b32 v{T+1}, s53, v{Rr}\nv_pk_add_f32 {vr(S+2*h,2)}, {vr(S+2*h,2)}, {vr(T,2)}")
                A(f"v_cvt_pk_bf16_f32 v{D+2*n+h}, v{S+2*h}, v{S+2*h+1}")
        A(f"s_nop 1\nv_permlane16_swap_b32 v{D}, v{D+2}\nv_permlane16_swap_b32 v{D+1}, v{D+3}")
        A(f"buffer_store_dwordx4 {vr(D,4)}, v13, {R4(SO)}, s{sC} offen {outaux}")
        if i<3: A(f"s_add_u32 s{sC}, s{sC}, 0x8000")
        if i==0: pad()
    if diag:
        if diag!=5: stamp(9)
        A("s_waitcnt vmcnt(0)"); stamp(10); rstamp(15); flush(16,True)
    A("s_endpgm")
    if walk: A(PAD+"\ns_endpgm")
    for b in OOL: A(b)
    A("L_end:\ns_endpgm")
    A(f""".section .rodata,"a"
.p2align 6
.amdhsa_kernel {NAME}
  .amdhsa_next_free_vgpr 256
  .amdhsa_next_free_sgpr 96
  .amdhsa_accum_offset 256
  .amdhsa_group_segment_fixed_size 0
  .amdhsa_kernarg_size 48
  .amdhsa_user_sgpr_count 2
  .amdhsa_user_sgpr_kernarg_segment_ptr 1
  .amdhsa_system_sgpr_workgroup_id_x 1
.end_amdhsa_kernel""")
    txt=A.text()
    if walk:
        n=txt.count("@PAD@"); parts=txt.split("@PAD@")
        starts=[round(w*n/walk) for w in range(walk)]
        out=parts[0]
        for k in range(n):
            nxt="C_wret" if (k+1==n or k+1 in starts) else f"PAD{k+1}"
            out+=f"PAD{k}:\ns_cbranch_execz {nxt}"+parts[k+1]
        for w in range(walk): out=out.replace(f"@START{w}@",f"PAD{starts[w]}")
        txt=out
    return txt

if __name__=="__main__":
    import inspect
    p=argparse.ArgumentParser(); p.add_argument("-o")
    for k,v in inspect.signature(build).parameters.items():
        p.add_argument("--"+k,type=type(v.default),default=v.default)
    a=vars(p.parse_args()); o=a.pop("o")
    open(o,"w").write(build(**a))
```

```python
import sys, argparse
NAME="standalone__dense_activation_silu__prompt_kernel"
class Asm:
    def __init__(self): self.L=[]
    def __call__(self, s):
        for l in s.split("\n"): self.L.append(l)
    def text(self): return "\n".join(self.L)+"\n"
def vr(a,n): return f"v[{a}:{a+n-1}]"
def srd(A, d, b, nbytes):
    A(f"s_mov_b32 s{d}, s{b}\ns_and_b32 s{d+1}, s{b+1}, 0xffff\ns_mov_b32 s{d+2}, {nbytes}\ns_mov_b32 s{d+3}, 0x20000")
X_BYTES=2048*1024*2; W_BYTES=1024*3584*2; O_BYTES=2048*1024*2
H_OFF=0; P_OFF=24<<20; F_OFF=48<<20; T_OFF=64<<20
SX,SW1,SW2,SO,SD,SWS=16,20,24,28,32,36
sMt,sJ,sFt8,sFt,sLid,sXcd,sDt=40,41,42,43,44,45,63
OOB=0x7ffffff0
SPIN=1<<17
def R4(s): return f"s[{s}:{s+3}]"

def interleave(mf, rd):
    out=[]; k=0
    for m in mf:
        out.append(m)
        if k<len(rd): out.append(rd[k]); k+=1
    return out+rd[k:]
ORDER='ji'
def snake(JS,NI):
    JS=list(JS)
    if ORDER=='ij': return [(j,i) for i in range(NI) for j in (JS if i%2==0 else JS[::-1])]
    return [(j,(i if n%2==0 else NI-1-i)) for n,j in enumerate(JS) for i in range(NI)]

def build(diag=0, rot=1, pf1=0, pf2=1, pfc=1, outaux="sc1", pfa=13, dswz=0, w1aux="", xaux="", w2aux="", l1st=1, l2st=4, stag=1, l1epi=1, rmask=1, f3=9, skew2=1, pfb=0, stag2=1, remap=1, spa=0, spb=13, spn=4, ack=6, ldearly=1, pfi=0, w1s=6, sched=0, fch=6, pdelay=0, nb=4, clr0=0, dual=0, tlb=0, packfirst=1, spub=1, vpoll=0, hsi=12, hsglc='', cmask=1, cbase=1, walk=2, w2e=0, order='ji', esend=1, ldpos=0, fast=1, la1=0, hd=4, la2=0, npoll=2, tearly=2, nsh=0, two=0, tight2=1, tight1=1, lead=1, tl=0, tlw=16, tl0=0, sep=1):
    global ORDER; ORDER=order
    assert ack+2!=hsi and tl not in (ack+5,hsi+3) and ack+2<=12 and (cbase+cmask<ack or sep) and nsh<=(4 if two else ack+2)
    A=Asm(); OOL=[]
    tm='s_memrealtime' if diag>=3 else 's_memtime'
    def stamp(k):
        if diag: A(f"{tm} s[{64+2*k}:{65+2*k}]")
    def rstamp(k):
        if diag: A(f"s_memrealtime s[{64+2*k}:{65+2*k}]")
    def sstamp():
        if diag==6: A(f"s_memtime s[90:91]\ns_memrealtime s[88:89]\ns_waitcnt lgkmcnt(0)\nv_writelane_b32 v254, s90, m0\nv_writelane_b32 v252, s88, m0\ns_add_u32 m0, m0, 1")
        if diag in (2,3): A(f"{tm} s[90:91]\ns_waitcnt lgkmcnt(0)\nv_writelane_b32 v254, s90, m0\ns_add_u32 m0, m0, 1")
    def flush(n, cons=False):
        if not diag: return
        if diag==5:
            ks=[6,8,9,1,2,4,5,10] if cons else [1,8,2,3,4,5]
            lab="DB_c" if cons else "DB_p"
            A(f"s_waitcnt lgkmcnt(0)\ns_and_b32 s60, s3, 3\ns_or_b32 s60, s60, s2\ns_cmp_eq_u32 s60, 0\ns_cbranch_scc0 {lab}\nv_lshlrev_b32 v1, 8, v2")
            for n_,k in enumerate(ks):
                A(f"s_sub_u32 s60, s{64+2*k}, s64\nv_mov_b32 v4, s60\nbuffer_store_dword v4, v1, {R4(SD)}, 0 offen offset:{4*(n_+(0 if cons else 8))} sc1")
            A(f"s_waitcnt vmcnt(0)\n{lab}:")
            return
        A(f"s_waitcnt lgkmcnt(0)\ns_lshl_b32 s60, s2, 3\ns_add_u32 s60, s60, s3\ns_lshl_b32 s60, s60, 8\ns_add_u32 s60, s60, {T_OFF}\nv_mov_b32 v1, 0")
        for k in range(n): A(f"v_mov_b32 v2, s{64+2*k}\nbuffer_store_dword v2, v1, {R4(SWS)}, s60 offen offset:{4*k}")
        if cons and diag>=2:
            A(f"v_and_b32 v1, 63, v0\nv_lshlrev_b32 v1, 2, v1\nv_mov_b32 v2, {OOB}\nv_cmp_gt_u32 vcc, 192, v1\ns_nop 1\nv_cndmask_b32 v1, v2, v1, vcc")
            A(f"buffer_store_dword v254, v1, {R4(SWS)}, s60 offen offset:64")
            if diag==6: A(f"s_add_u32 s60, s60, 0x80000\nbuffer_store_dword v252, v1, {R4(SWS)}, s60 offen offset:64")
        A("s_waitcnt vmcnt(0)")
    PAD='@PAD@' if walk else 's_nop 0'
    def pad():
        if walk: A(PAD)
    def spin_tail(label):
        A(f"s_cmp_lt_u32 s58, {SPIN}\ns_cselect_b64 s[60:61], -1, 0\ns_and_b64 vcc, vcc, s[60:61]\ns_cbranch_scc1 {label}")
    WST=28672; WOFF=65536
    QS=5120 if remap else 4096
    CH=2*QS
    def physline(dst,g,tmp):
        if remap: A(f"v_add_u32 v{tmp}, 4, v{g}\nv_mul_u32_u24 v{tmp}, 37, v{tmp}\nv_lshrrev_b32 v{tmp}, 8, v{tmp}\nv_add_u32 v{tmp}, v{tmp}, v{g}\nv_lshlrev_b32 v{dst}, 7, v{tmp}")
        else: A(f"v_lshlrev_b32 v{dst}, 7, v{g}")
    def fragoffs(base):
        A("v_and_b32 v6, 7, v2\nv_lshlrev_b32 v6, 4, v6")
        for n in range(4):
            A(f"v_lshrrev_b32 v5, 3, v2\nv_add_u32 v5, {8*n}, v5"); physline(base+n,5,4); A(f"v_add_u32 v{base+n}, v{base+n}, v6")
    A("""; Fused feed-forward: out = silu(x @ w1) @ w2, bf16 in/out, fp32 accumulate.
; @launch grid=(256,1,1) block=(512,1,1) lds=151552""")
    A('.amdgcn_target "amdgcn-amd-amdhsa--gfx950"\n.text')
    A(f".globl {NAME}\n.p2align 8\n.type {NAME},@function\n{NAME}:")
    A("s_load_dwordx8 s[4:11], s[0:1], 0\ns_load_dwordx4 s[12:15], s[0:1], 32")
    A("s_cmp_ge_u32 s2, 256\ns_cbranch_scc1 L_end")
    stamp(0); rstamp(14)
    if fast and pfc:
        A(f"s_getpc_b64 s[54:55]\nC_pc:\nv_lshlrev_b32 v3, 7, v0\ns_sub_u32 s54, s54, C_pc-{NAME}\ns_subb_u32 s55, s55, 0")
        A(f"v_min_u32 v3, L_end-{NAME}, v3\nv_lshrrev_b32 v1, 6, v0\nglobal_load_dword v255, v3, s[54:55]\nv_and_b32 v2, 63, v0")
    else: A("v_lshrrev_b32 v1, 6, v0\nv_and_b32 v2, 63, v0")
    A(f"v_readfirstlane_b32 s3, v1\ns_and_b32 s{sXcd}, s2, 7\ns_lshr_b32 s46, s2, 3")
    dec1=f"s_lshr_b32 s{sMt}, s{sXcd}, 1\ns_lshl_b32 s{sMt}, s{sMt}, 2\ns_lshr_b32 s47, s46, 3\ns_add_u32 s{sMt}, s{sMt}, s47\ns_and_b32 s{sJ}, s{sXcd}, 1"
    dec2=(f"s_and_b32 s{sFt8}, s46, 7\ns_lshl_b32 s{sFt}, s{sJ}, 3\ns_add_u32 s{sFt}, s{sFt}, s{sFt8}\n"
          f"s_lshl_b32 s{sLid}, s{sMt}, 4\ns_add_u32 s{sLid}, s{sLid}, s{sFt}\ns_xor_b32 s{sDt}, s{sJ}, 1\ns_mul_i32 s{sDt}, s{sDt}, {dswz}\ns_xor_b32 s{sDt}, s{sDt}, s{sFt8}")
    A(dec1); A(dec2)
    if fast and pf1==1:
        A("s_cmp_lt_u32 s3, 4\ns_cbranch_scc0 L_prod")
        A("v_lshrrev_b32 v15, 1, v0\ns_lshl_b32 s58, s2, 7\nv_add_u32 v15, s58, v15\nv_lshlrev_b32 v15, 7, v15\ns_waitcnt lgkmcnt(0)\nglobal_load_dword v253, v15, s[4:5]\ns_branch L_cons\nL_prod:")
    else:
        A("s_cmp_lt_u32 s3, 4\ns_cbranch_scc1 L_cons")
    sP,sKX,sKW,sLX,sLW,sRing,sCnt,sT0,sT1=46,47,48,49,50,51,52,53,54
    A(f"s_sub_u32 s{sP}, s3, 4")
    A("v_lshrrev_b32 v3, 3, v2\nv_and_b32 v4, 7, v2\nv_lshrrev_b32 v5, 4, v2\nv_xor_b32 v4, v4, v5\nv_lshlrev_b32 v4, 4, v4\nv_lshl_add_u32 v3, v3, 11, v4")
    A(f"s_lshl_b32 s{sT0}, s{sMt}, 18\ns_lshl_b32 s{sT1}, s{sP}, 16\ns_add_u32 s{sT0}, s{sT0}, s{sT1}\nv_add_u32 v8, s{sT0}, v3")
    A("v_xor_b32 v9, 64, v8\nv_add_u32 v9, 0x4000, v9\nv_add_u32 v10, 0x8000, v8\nv_add_u32 v11, 0x8000, v9")
    if not rot: A(f"s_mov_b32 s{sKX}, 0\ns_mov_b32 s{sKW}, 0")
    if rot:
        if rot in (1,2,4,5,6,7,8):
            A(f"s_lshr_b32 s{sT0}, s{sXcd}, 1\ns_lshl_b32 s{sT1}, s{sJ}, 1\ns_add_u32 s{sT0}, s{sT0}, s{sT1}\ns_and_b32 s{sT0}, s{sT0}, 3\ns_lshl_b32 s{sT0}, s{sT0}, 2")
            if rot==4: A(f"s_and_b32 s{sT0}, s{sT0}, 8")
        else: A(f"s_mov_b32 s{sT0}, 0")
        if rot>=5: A(f"s_mov_b32 s62, s{sT0}\ns_mov_b32 s60, 0\ns_mov_b32 s61, 0")
        if rot in (7,8): A(f"s_and_b32 s{sT1}, s{sMt}, 1\ns_lshl_b32 s{sT1}, s{sT1}, {rot-7}\ns_add_u32 s{sT0}, s{sT0}, s{sT1}")
        elif rot>=2: A(f"s_and_b32 s{sT1}, s{sMt}, 3\ns_add_u32 s{sT0}, s{sT0}, s{sT1}")
        A(f"s_lshl_b32 s{sKX}, s{sT0}, 7\ns_mul_i32 s{sKW}, s{sT0}, {64*7168}")
    sRX=57
    A(f"s_lshl_b32 s{sLX}, s{sP}, 12\ns_mov_b32 s{sRX}, 0\ns_mov_b32 s{SX+2}, {X_BYTES}\ns_mov_b32 s{SX+3}, 0x20000")
    A(f"s_waitcnt lgkmcnt(0)\ns_mov_b32 s{SX}, s4\ns_and_b32 s{SX+1}, s5, 0xffff")
    def nextk(c):
        if rot in (7,8):
            A(f"s_add_u32 s{c}, s{c}, 1\ns_and_b32 s{sT1}, s{c}, 8\ns_cselect_b32 s{sT0}, 1, 0\ns_xor_b32 s{sT0}, s{sT0}, s{sMt}\ns_and_b32 s{sT0}, s{sT0}, 1\ns_lshl_b32 s{sT0}, s{sT0}, {rot-7}\ns_add_u32 s{sT0}, s{sT0}, s{c}\ns_and_b32 s{sT0}, s{sT0}, 7")
            A(f"s_add_u32 s{sT0}, s{sT0}, s{sT1}\ns_add_u32 s{sT0}, s{sT0}, s62\ns_and_b32 s{sT0}, s{sT0}, 15")
            return
        if rot==6:
            A(f"s_add_u32 s{c}, s{c}, 1\ns_and_b32 s{sT1}, s{c}, 8\ns_cselect_b32 s{sT0}, 3, 0\ns_xor_b32 s{sT0}, s{sT0}, s{sMt}\ns_and_b32 s{sT0}, s{sT0}, 3\ns_add_u32 s{sT0}, s{sT0}, s{c}\ns_and_b32 s{sT0}, s{sT0}, 7")
            A(f"s_add_u32 s{sT0}, s{sT0}, s{sT1}\ns_add_u32 s{sT0}, s{sT0}, s62\ns_and_b32 s{sT0}, s{sT0}, 15")
            return
        A(f"s_add_u32 s{c}, s{c}, 1\ns_add_u32 s{sT0}, s{c}, s{sMt}\ns_and_b32 s{sT0}, s{sT0}, 3\ns_and_b32 s{sT1}, s{c}, 12\ns_add_u32 s{sT0}, s{sT0}, s{sT1}\ns_add_u32 s{sT0}, s{sT0}, s62\ns_and_b32 s{sT0}, s{sT0}, 15")
    def issueW1(part=None):
        inc=[1024,896,1024,896,1024,1280]
        ns=range(7) if part is None else (range(hd) if part==0 else range(hd,7))
        if part!=1: A(f"s_add_u32 m0, s{sRing}, s{sLW}\ns_add_u32 s{sRing}, s{sRing}, {WST}")
        else: A("s_mov_b32 m0, s1\ns_nop 0")
        for n in ns:
            a,o=n>>1,n&1
            if n<6:
                A(f"buffer_load_dwordx4 v{13+o}, {R4(SW1)}, s{sKW} offen offset:{a*128} {w1aux} lds")
                if part==0 and n==hd-1: A(f"s_add_u32 s1, m0, {inc[n]}")
                else:
                    A(f"s_add_u32 m0, m0, {inc[n]}")
                    A("s_nop 0" if n else f"s_cmp_eq_u32 s{sRing}, {WST*3}\ns_cselect_b32 s{sRing}, 0, s{sRing}")
            else:
                A(f"buffer_load_dwordx4 v12, {R4(SW1)}, s{sKW} offen {w1aux} lds\ns_add_u32 s{sKW}, s{sKW}, {64*7168}")
                if rot>=5:
                    nextk(60); A(f"s_mul_i32 s{sKW}, s{sT0}, {64*7168}\ns_add_u32 s{sKW}, s{sKW}, s59")
                elif rot: A(f"s_cmp_eq_u32 s{sKW}, s58\ns_cselect_b32 s{sKW}, s59, s{sKW}")
    def issueX():
        A(f"s_add_u32 m0, s{sRX}, s{sLX}\ns_add_u32 s{sRX}, s{sRX}, 16384")
        for n in range(4):
            A(f"buffer_load_dwordx4 v{8+n}, {R4(SX)}, s{sKX} offen {xaux} lds")
            if n<3: A("s_add_u32 m0, m0, 1024\n"+("s_nop 0" if n else f"s_and_b32 s{sRX}, s{sRX}, 0xffff"))
        if tight1: pass
        elif rot>=5:
            nextk(61); A(f"s_lshl_b32 s{sKX}, s{sT0}, 7")
        else: A(f"s_add_u32 s{sKX}, s{sKX}, 128\ns_and_b32 s{sKX}, s{sKX}, 2047")
    stamp(1)
    issueX()
    A(f"s_and_b32 s{sT0}, s{sFt8}, 1\ns_lshl_b32 s{sT1}, s{sT0}, 6")
    A("v_bfe_u32 v3, v2, 2, 3\nv_mul_u32_u24 v3, 7168, v3\nv_lshrrev_b32 v5, 5, v2\nv_and_b32 v4, 3, v2\nv_lshlrev_b32 v4, 4, v4")
    A(f"v_lshl_add_u32 v6, v5, 6, v3\nv_add3_u32 v13, v6, v4, s{sT1}\nv_xor_b32 v14, 32, v13\nv_add_u32 v14, {8*7168}, v14")
    A(f"s_xor_b32 s{sT0}, s{sT0}, 1\ns_mul_i32 s{sT0}, s{sT0}, 384\nv_lshrrev_b32 v3, 2, v2\nv_mul_u32_u24 v3, 7168, v3\nv_lshlrev_b32 v5, 5, v5\nv_xor_b32 v4, v4, v5\nv_add3_u32 v12, v3, v4, s{sT0}")
    A(f"s_mul_i32 s59, s{sP}, {16*7168}\ns_mul_i32 s{sT0}, s{sFt}, 448\ns_add_u32 s59, s59, s{sT0}\ns_add_u32 s{sKW}, s{sKW}, s59\ns_add_u32 s58, s59, {1024*7168}")
    A(f"s_mul_i32 s{sLW}, s{sP}, 7168\ns_add_u32 s{sLW}, s{sLW}, {WOFF}\ns_mov_b32 s{sRing}, {2*WST}")
    srd(A,SW1,6,W_BYTES)
    if la1 or tearly: issueW1(0)
    else: issueW1(); issueX(); issueW1()
    srd(A,SW2,8,W_BYTES); srd(A,SWS,14,0x10000000)
    if diag==5: srd(A,SD,12,256)
    sHp,sHalf=55,56
    if tlb:
        A(f"s_cmp_lt_u32 s2, {tlb}\ns_cbranch_scc0 P1_ntlb\ns_lshl_b32 s{sT0}, s{sP}, 21")
        A(f"s_add_u32 s4, s8, s{sT0}\ns_addc_u32 s5, s9, 0\ns_load_dword s0, s[4:5], 0")
        A(f"s_lshr_b32 s{sT1}, s{sT0}, 1\ns_add_u32 s4, s10, s{sT1}\ns_addc_u32 s5, s11, 0\ns_load_dword s0, s[4:5], 0")
        for b in (0, 8<<20, 16<<20, P_OFF, F_OFF):
            A(f"s_add_u32 s{sT1}, s{sT0}, {b}\ns_add_u32 s4, s14, s{sT1}\ns_addc_u32 s5, s15, 0\ns_load_dword s0, s[4:5], 0")
        A("P1_ntlb:")
    if tl0:
        A(f"s_cmp_lt_u32 s2, {tlw}\ns_cbranch_scc0 P1_nt0\ns_lshl_b32 s{sT0}, s{sP}, 21\ns_add_u32 s{sT0}, s{sT0}, {P_OFF}\ns_cmp_eq_u32 s{sP}, 3\ns_cselect_b32 s{sT0}, {F_OFF}, s{sT0}")
        A(f"s_add_u32 s4, s14, s{sT0}\ns_addc_u32 s5, s15, 0\ns_load_dword s0, s[4:5], 0\nP1_nt0:")
    A(f"s_lshr_b32 s4, s{sLid}, 3\ns_lshl_b32 s4, s4, 10\ns_add_u32 s4, s4, {F_OFF+fch*128}\ns_add_u32 s4, s14, s4\ns_addc_u32 s5, s15, 0")
    A(f"s_lshl_b32 s6, s{sMt}, 4\ns_add_u32 s6, s12, s6\ns_addc_u32 s7, s13, 0")
    def spf():
        if pf2 not in (3,4): return
        for k in range(4): A(f"s_load_dword s12, s[8:9], {k*64}")
        A(f"s_add_u32 s13, s13, 1\ns_and_b32 s{sT0}, s13, 7\ns_cselect_b32 s{sT0}, 0, {131072-2048}\ns_add_u32 s{sT0}, s{sT0}, 256\ns_add_u32 s8, s8, s{sT0}\ns_addc_u32 s9, s9, 0")
    if pf2 in (3,4):
        A(f"s_lshl_b32 s12, s2, 2\ns_add_u32 s12, s12, s{sP}")
        A(f"s_lshr_b32 s{sT0}, s12, 6\ns_mul_i32 s13, s{sT0}, 7\ns_and_b32 s{sT0}, s{sT0}, 1")
        A(f"s_xor_b32 s{sT1}, s{sT0}, 1\ns_mul_i32 s{sT1}, s{sT1}, 6\ns_add_u32 s{sT1}, s{sT1}, s13\ns_lshl_b32 s{sT1}, s{sT1}, 16\ns_and_b32 s14, s12, 63\ns_lshl_b32 s14, s14, 10\ns_add_u32 s{sT1}, s{sT1}, s14")
        A(f"s_add_u32 s14, s8, s{sT1}\ns_addc_u32 s15, s9, 0")
        A(f"s_add_u32 s13, s13, s{sT0}\ns_lshl_b32 s13, s13, 16\ns_and_b32 s12, s12, 63\ns_lshl_b32 s12, s12, 11\ns_add_u32 s13, s13, s12\ns_add_u32 s8, s8, s13\ns_addc_u32 s9, s9, 0\ns_mov_b32 s13, 0")
    A(f"s_lshr_b32 s{sHp}, s{sP}, 1\ns_and_b32 s{sHalf}, s{sP}, 1")
    A("v_subrev_u32 v5, 3, v2\nv_mul_u32_u24 v3, 37, v5\nv_lshrrev_b32 v3, 8, v3\nv_mul_u32_u24 v4, 7, v3\nv_sub_u32 v4, v5, v4")
    if skew2==3: A(f"v_add_u32 v6, s{sMt}, v3\nv_and_b32 v6, 3, v6\nv_add_u32 v4, v6, v4\nv_subrev_u32 v6, 7, v4\nv_min_u32 v4, v4, v6")
    elif skew2: A(f"s_and_b32 s{sT0}, s{sMt}, 3\ns_mul_i32 s{sT0}, s{sT0}, {3-skew2}\nv_add_u32 v4, s{sT0}, v4\nv_subrev_u32 v6, 7, v4\nv_min_u32 v4, v4, v6")
    A("v_add_u32 v4, 1, v4")
    A("v_cmp_gt_u32 vcc, 3, v2\ns_nop 1\nv_cndmask_b32 v3, v3, v2, vcc\nv_cndmask_b32 v4, v4, 0, vcc")
    A(f"v_add_u32 v4, s{sFt8}, v4\nv_and_b32 v4, 7, v4\nv_and_b32 v6, 1, v4\nv_mul_u32_u24 v4, 7, v4\nv_lshl_add_u32 v4, v3, 1, v4\nv_add3_u32 v4, v4, v6, s{sHp}")
    A(f"s_and_b32 s{sT0}, s{sMt}, {3 if skew2 else 0}\nv_add_u32 v5, s{sT0}, v2\nv_and_b32 v5, 3, v5\nv_mul_u32_u24 v5, 14, v5\nv_add3_u32 v5, v5, 6, s{sHp}")
    A("v_cmp_gt_u32 vcc, 24, v2\ns_nop 1\nv_cndmask_b32 v4, v5, v4, vcc\nv_and_b32 v4, 63, v4")
    A(f"s_mul_i32 s{sT0}, s{sJ}, 56\nv_add_u32 v4, s{sT0}, v4")
    A(f"s_mul_i32 s{sT0}, s{sMt}, {112*CH}\ns_mul_i32 s{sT1}, s{sHalf}, {QS}\ns_add_u32 s{sT0}, s{sT0}, s{sT1}")
    A(f"v_mul_u32_u24 v20, {CH}, v4\nv_add_u32 v20, s{sT0}, v20")
    A(f"s_lshl_b32 s{sT0}, s{sHalf}, 15\ns_lshl_b32 s{sT1}, s{sHalf}, 13\nv_mov_b32 v5, s{sT0}\nv_mov_b32 v6, s{sT1}\nv_cndmask_b32 v5, v6, v5, vcc")
    A(f"v_lshl_add_u32 v21, v4, 16, v5\ns_lshl_b32 s{sT0}, s{sDt}, 8\nv_add_u32 v21, s{sT0}, v21")
    A("v_and_b32 v4, 3, v2\nv_bfe_u32 v5, v2, 4, 1\nv_lshlrev_b32 v6, 1, v5\nv_xor_b32 v4, v4, v6\nv_lshlrev_b32 v4, 4, v4")
    A("v_lshrrev_b32 v6, 5, v2\nv_lshl_add_u32 v4, v6, 6, v4")
    A("v_bfe_u32 v6, v2, 2, 3\nv_lshl_add_u32 v22, v6, 11, v4\nv_add_u32 v23, 0x4000, v22")
    A("v_lshl_add_u32 v24, v5, 13, v22\nv_add_u32 v25, 0x8000, v24")
    fragoffs(26)
    if tight1:
        assert rot==8 and tearly==2 and not nsh and not la1 and spub and hsi and not two
        A(f"v_bfe_u32 v3, v2, 3, 1\nv_xor_b32 v3, s{sMt}, v3\nv_and_b32 v3, 1, v3\nv_lshl_add_u32 v3, v3, 1, v2\nv_and_b32 v3, 7, v3\nv_and_b32 v4, 8, v2\nv_add3_u32 v3, v3, v4, s62\nv_and_b32 v3, 15, v3")
        A(f"v_lshlrev_b32 v30, 7, v3\nv_mul_u32_u24 v31, {64*7168}, v3\nv_add_u32 v31, s59, v31")
    if diag==5: stamp(8)
    if tight1:
        xl=[f"buffer_load_dwordx4 v{8+n}, {R4(SX)}, s{sKX} offen {xaux} lds" for n in range(4)]
        wl=[f"buffer_load_dwordx4 v{13+(n&1)}, {R4(SW1)}, s{sKW} offen offset:{(n>>1)*128} {w1aux} lds" for n in range(6)]+[f"buffer_load_dwordx4 v12, {R4(SW1)}, s{sKW} offen {w1aux} lds"]
        inc=[1024,896,1024,896,1024,1280]
        def Wt(): A(f"s_mov_b32 m0, s1\ns_nop 0\n{wl[4]}\ns_add_u32 m0, m0, {inc[4]}\ns_nop 0\n{wl[5]}\ns_add_u32 m0, m0, {inc[5]}\ns_nop 0\n{wl[6]}")
        def Xs(fill):
            A(f"s_add_u32 m0, s{sRX}, s{sLX}\ns_add_u32 s{sRX}, s{sRX}, 16384")
            for n in range(4):
                A(xl[n])
                if n<3: A(f"s_add_u32 m0, m0, 1024\n{fill[n]}")
        assert hd==4
        andx=f"s_and_b32 s{sRX}, s{sRX}, 0xffff"
        A(f"v_readlane_b32 s{sKX}, v30, 1")
        Wt(); Xs([f"v_readlane_b32 s{sKW}, v31, 1", andx, "s_nop 0"])
        issueW1(0)
        A(f"v_readlane_b32 s{sKX}, v30, 2\ns_waitcnt vmcnt(8)")
        stamp(2)
        A("s_barrier")
        Wt(); Xs([f"v_readlane_b32 s{sKW}, v31, 2", andx, f"s_mov_b32 s{sCnt}, 2"])
        A(f"s_mov_b32 s61, {(1<<(ack+2+3))|(1<<(hsi+3))|((1<<tl) if tl else 0)}\ns_add_u32 m0, s{sRing}, s{sLW}\ns_branch P1_w")
        A(".p2align 3\nP1_loop:")
        A(f"s_bitcmp1_b32 s61, s{sCnt}\ns_cbranch_scc1 P1_hk\nP1_hkb:")
        Xs([f"v_readlane_b32 s{sKW}, v31, s{sCnt}", andx, "s_nop 0"])
        A(f"s_add_u32 m0, s{sRing}, s{sLW}\ns_waitcnt vmcnt(15)\ns_barrier\nP1_w:")
        fill=[f"s_add_u32 s{sCnt}, s{sCnt}, 1", f"s_add_u32 s{sRing}, s{sRing}, {WST}", f"v_readlane_b32 s{sKX}, v30, s{sCnt}",
              f"s_cmp_eq_u32 s{sRing}, {WST*3}\ns_cselect_b32 s{sRing}, 0, s{sRing}", "s_nop 0", f"s_cmp_lt_u32 s{sCnt}, 16"]
        for n in range(7):
            A(wl[n])
            if n<6: A(f"s_add_u32 m0, m0, {inc[n]}\n{fill[n]}")
        A("s_cbranch_scc1 P1_loop\ns_branch P1_done")
        A("P1_hk:")
        if tl:
            A(f"s_cmp_eq_u32 s{sCnt}, {tl}\ns_cbranch_scc0 P1_hk0\ns_cmp_lt_u32 s2, {tlw}\ns_cbranch_scc0 P1_hkb\ns_lshl_b32 s{sT0}, s{sP}, 21")
            A(f"s_add_u32 s12, s8, s{sT0}\ns_addc_u32 s13, s9, 0\ns_load_dword s0, s[12:13], 0")
            A(f"s_lshr_b32 s{sT1}, s{sT0}, 1\ns_add_u32 s12, s10, s{sT1}\ns_addc_u32 s13, s11, 0\ns_load_dword s0, s[12:13], 0")
            for b in (0, 8<<20, 16<<20):
                A(f"s_add_u32 s{sT1}, s{sT0}, {b}\ns_add_u32 s12, s14, s{sT1}\ns_addc_u32 s13, s15, 0\ns_load_dword s0, s[12:13], 0")
            A("s_branch P1_hkb\nP1_hk0:")
        A(f"s_cmp_eq_u32 s{sCnt}, {hsi+3}\ns_cbranch_scc0 P1_hk1\ns_cmp_eq_u32 s{sP}, 0\ns_cbranch_scc0 P1_hkb\ns_load_dwordx4 s[28:31], s[6:7], 0 {hsglc}\ns_branch P1_hkb")
        if lead: A(f"P1_hk1:\ns_lshl_b32 s1, s{sFt}, 2\ns_add_u32 s1, s1, s{sP}\ns_cmp_eq_u32 s1, 2\ns_cbranch_scc0 P1_hkb\ns_mov_b32 s1, 1\ns_atomic_or s1, s[6:7], 0\ns_branch P1_hkb")
        else: A(f"P1_hk1:\ns_cmp_eq_u32 s{sP}, 2\ns_cbranch_scc0 P1_hkb\ns_and_b32 s1, s{sFt}, 3\ns_lshl_b32 s1, s1, 3\ns_lshl_b32 s1, 1, s1\ns_and_b32 s{sT0}, s{sFt}, 12\ns_atomic_or s1, s[6:7], s{sT0}\ns_branch P1_hkb")
        A("P1_done:")
        pad()
    else:
        if la1:
            A(f"s_mov_b32 s{sCnt}, -1\ns_branch P1_in")
            A(f"P1_loop:\ns_waitcnt vmcnt({4+hd})")
            if diag: A(f"s_cmp_eq_u32 s{sCnt}, 0\ns_cbranch_scc0 P1_ns"); stamp(2); A("P1_ns:")
            A("s_barrier\nP1_in:")
            issueW1(1); issueX(); issueW1(0)
        else:
            if nsh:
                A(f"s_mov_b32 s{sCnt}, -1\ns_branch P1_shin\nP1_sh:\ns_waitcnt vmcnt({4+hd})")
                if diag: A(f"s_cmp_eq_u32 s{sCnt}, 0\ns_cbranch_scc0 P1_ns"); stamp(2); A("P1_ns:")
                A("s_barrier\nP1_shin:")
                issueW1(1); issueX()
                A(f"s_cmp_eq_u32 s{sCnt}, {nsh}\ns_cbranch_scc1 P1_in")
                issueW1(0)
                A(f"s_add_u32 s{sCnt}, s{sCnt}, 1\ns_branch P1_sh")
            else:
                if tearly==1: issueW1(1); issueX(); issueW1()
                if tearly==2: issueW1(1); issueX(); issueW1(0)
                A(f"s_waitcnt vmcnt({4+hd if tearly==2 else 11})")
                stamp(2)
                A("s_barrier")
                if tearly==2: issueW1(1)
                issueX()
                A(f"s_mov_b32 s{sCnt}, 0\ns_branch P1_in")
            A("P1_loop:\ns_waitcnt vmcnt(15)\ns_barrier\nP1_in:")
            issueW1(); issueX()
        if spub and two:
            A(f"s_lshl_b32 s{sT0}, s{sP}, 8\ns_add_u32 s{sT0}, s{sT0}, s{sCnt}\ns_cmp_eq_u32 s{sT0}, {512+4}\ns_cselect_b32 s0, 1, 0\ns_cmp_eq_u32 s{sT0}, {512+ack+2}\ns_cselect_b32 s0, 2, s0\ns_cmp_eq_u32 s0, 0\ns_cbranch_scc1 P1_npub")
            A(f"s_and_b32 s{sT0}, s{sFt}, 3\ns_lshl_b32 s{sT0}, s{sT0}, 3\ns_lshl_b32 s0, s0, s{sT0}\ns_and_b32 s{sT0}, s{sFt}, 12\ns_atomic_or s0, s[6:7], s{sT0}\nP1_npub:")
        elif spub:
            A(f"s_lshl_b32 s{sT0}, s{sP}, 8\ns_add_u32 s{sT0}, s{sT0}, s{sCnt}\ns_cmp_eq_u32 s{sT0}, {512+ack+2}\ns_cbranch_scc0 P1_npub")
            A(f"s_and_b32 s0, s{sFt}, 3\ns_lshl_b32 s0, s0, 3\ns_lshl_b32 s0, 1, s0\ns_and_b32 s{sT0}, s{sFt}, 12\ns_atomic_or s0, s[6:7], s{sT0}\nP1_npub:")
        if hsi:
            assert pf2 not in (3,4)
            A(f"s_lshl_b32 s{sT0}, s{sP}, 8\ns_add_u32 s{sT0}, s{sT0}, s{sCnt}\ns_cmp_eq_u32 s{sT0}, {hsi}\ns_cbranch_scc0 P1_nh\ns_load_dwordx4 s[28:31], s[6:7], 0 {hsglc}\nP1_nh:")
        if pf2==4:
            spf()
            A(f"s_cmp_lt_u32 s{sCnt}, 3\ns_cbranch_scc0 P1_nspf")
            spf()
            A("P1_nspf:")
        if pf2==3:
            A(f"s_sub_u32 s{sT0}, s{sCnt}, {spa}\ns_cmp_lt_u32 s{sT0}, {spb-spa}\ns_cbranch_scc0 P1_nspf")
            spf()
            A("P1_nspf:")
        A(f"s_add_u32 s{sCnt}, s{sCnt}, 1\ns_cmp_lt_u32 s{sCnt}, {14 if la1 else 13}\ns_cbranch_scc1 P1_loop")
        pad()
        A(f"s_waitcnt vmcnt({4+hd if la1 else 15})\ns_barrier")
        issueW1(1 if la1 else None)
    sW,sH,sSlot,sLW2,sLH=47,48,51,50,49
    A(f"s_lshl_b32 s{sLH}, s{sP}, 12\ns_add_u32 s{sLW2}, s{sLH}, 65536\ns_mov_b32 s{sCnt}, 0\ns_mov_b32 s{sSlot}, 0")
    def issueW():
        A(f"s_add_u32 m0, s{sLW2}, s{sSlot}\ns_nop 0")
        for n in range(4):
            o,tb=n>>1,n&1
            A(f"buffer_load_dwordx4 v{22+o}, {R4(SW2)}, s{sW} offen offset:{tb*128} {w2aux} lds")
            if n<3: A(f"s_add_u32 m0, m0, {896 if tb==0 else 1024+128}\ns_nop 0")
    def issueH():
        A(f"s_add_u32 m0, s{sLH}, s{sSlot}\ns_nop 0")
        for n in range(4):
            A(f"buffer_load_dwordx4 v{26+n}, {R4(SWS)}, s{sH} offen sc1 lds")
            if n<3: A("s_add_u32 m0, m0, 1024\ns_nop 0")
    A(f"v_readlane_b32 s{sW}, v21, 0")
    if not la1: A("s_waitcnt vmcnt(7)\ns_barrier")
    if not hsi: A(f"s_cmp_eq_u32 s{sP}, 0\ns_cbranch_scc0 P2_nh\ns_load_dwordx4 s[28:31], s[6:7], 0 glc\nP2_nh:")
    A("s_waitcnt vmcnt(0)\ns_barrier")
    def nextW(): A(f"s_add_u32 s{sCnt}, s{sCnt}, 1\ns_add_u32 s{sSlot}, s{sSlot}, 16384\nv_readlane_b32 s{sW}, v21, s{sCnt}\ns_nop 2")
    if w2e:
        A("s_branch P2_w0\nP2_w:"); nextW(); A("P2_w0:"); issueW()
        A(f"s_cmp_lt_u32 s{sCnt}, {w2e}\ns_cbranch_scc1 P2_w")
        A("s_barrier")
        pad()
        A("P2_w2:"); nextW(); issueW()
        A(f"s_cmp_lt_u32 s{sCnt}, 3\ns_cbranch_scc1 P2_w2")
    else:
        issueW()
        A("s_barrier")
        pad()
        A("P2_w:"); nextW(); issueW()
        A(f"s_cmp_lt_u32 s{sCnt}, 3\ns_cbranch_scc1 P2_w")
    A(f"s_cmp_eq_u32 s{sP}, 0\ns_cbranch_scc0 P2_hsd\ns_mov_b32 s58, 0\ns_branch P2_hsw")
    A("P2_hs:\ns_load_dwordx4 s[28:31], s[6:7], 0 glc\ns_add_u32 s58, s58, 1\nP2_hsw:\ns_waitcnt lgkmcnt(0)")
    if lead: A(f"s_cmp_ge_u32 s58, {SPIN}\ns_cbranch_scc1 P2_hsd\ns_cmp_eq_u32 s28, 1\ns_cbranch_scc0 P2_hs\nP2_hsd:")
    else:
        A(f"s_and_b32 s28, s28, s29\ns_and_b32 s30, s30, s31\ns_and_b32 s28, s28, s30\ns_and_b32 s28, s28, 0x01010101\ns_cmp_ge_u32 s58, {SPIN}\ns_cbranch_scc1 P2_hsd\ns_cmp_eq_u32 s28, 0x01010101\ns_cbranch_scc0 P2_hs\nP2_hsd:")
    A(f"s_lshr_b32 s59, s{sLid}, 3\ns_lshl_b32 s59, s59, 10\ns_add_u32 s59, s59, {F_OFF+fch*128}\ns_lshl_b32 s{sT0}, s{sFt8}, 2")
    A(f"v_mov_b32 v5, {OOB}\nv_mov_b32 v6, s{sT0}\nv_cmp_eq_u32 vcc, 0, v2\nv_and_b32 v3, 7, v2\nv_lshlrev_b32 v3, 2, v3\nv_cndmask_b32 v6, v5, v6, vcc\nv_mov_b32 v5, 1")
    A(f"v_readlane_b32 s{sH}, v20, 3\ns_waitcnt vmcnt(12)")
    stamp(3)
    A("s_barrier")
    stamp(6)
    A(f"s_cmp_eq_u32 s{sP}, 1\ns_cbranch_scc0 P2_nf\nbuffer_store_dword v5, v6, {R4(SWS)}, s59 offen sc1\ns_nop 1\nv_mov_b32 v5, 7\nP2_nf:")
    A(f"s_mov_b32 s62, 0\ns_cmp_eq_u32 s{sP}, 0\ns_cbranch_scc1 P2_p0\ns_waitcnt vmcnt(0)\ns_branch P2_go\nP2_p0:\ns_mov_b32 s58, 0")
    if pdelay: A(f"s_mov_b32 s16, 0\nP2_dl:\ns_add_u32 s16, s16, 1\ns_cmp_lt_u32 s16, {pdelay}\ns_cbranch_scc1 P2_dl")
    stamp(7)
    if vpoll:
        A(f"P2_l1:\nbuffer_load_dword v4, v3, {R4(SWS)}, s59 offen sc1\ns_add_u32 s58, s58, 1\ns_waitcnt vmcnt(0)\nv_cmp_eq_u32 vcc, 0, v4")
        spin_tail("P2_l1")
    else:
        A("P2_l1:\ns_load_dwordx8 s[16:23], s[4:5], 0 glc\ns_add_u32 s58, s58, 1\ns_waitcnt lgkmcnt(0)")
        A("s_and_b64 s[16:17], s[16:17], s[18:19]\ns_and_b64 s[20:21], s[20:21], s[22:23]\ns_and_b64 s[16:17], s[16:17], s[20:21]\ns_and_b32 s16, s16, s17")
        A(f"s_cmp_ge_u32 s58, {SPIN}\ns_cbranch_scc1 P2_rdy\ns_bitcmp1_b32 s16, 0\ns_cbranch_scc1 P2_rdy")
        if la2: A(f"s_cmp_eq_u32 s58, {npoll}\ns_cbranch_scc0 P2_l1\ns_waitcnt vmcnt(0)\ns_barrier\ns_mov_b32 s62, 1")
        A("s_branch P2_l1")
    A("P2_rdy:")
    if diag and diag!=5: stamp(9); A("s_mov_b32 s80, s58")
    A(f"s_mov_b32 m0, 49152\ns_mov_b32 s58, 0")
    A("P2_h3:")
    for n in range(4): A(f"buffer_load_dwordx4 v{26+n}, {R4(SWS)}, s{sH} offen sc1 lds\ns_add_u32 m0, m0, 1024\n"+("s_nop 0" if n<3 else f"s_add_u32 s{sH}, s{sH}, {QS}"))
    A("s_add_u32 s58, s58, 1\ns_cmp_lt_u32 s58, 4\ns_cbranch_scc1 P2_h3")
    A("P2_go:")
    pad()
    stamp(4)
    PL=f"buffer_load_dword v4, v3, {R4(SWS)}, s59 offen sc1"
    POOL=[]
    if tight2:
        assert not la2 and not two and pf2 not in (3,4) and l1epi==3
        mask=(1<<(l1st+5))|(1<<9)|(1<<10)|(1<<23)|(((1<<14)|(1<<20)) if lead else 0)
        wl=[f"buffer_load_dwordx4 v{22+(n>>1)}, {R4(SW2)}, s{sW} offen offset:{(n&1)*128} {w2aux} lds" for n in range(4)]
        hl=[f"buffer_load_dwordx4 v{26+n}, {R4(SWS)}, s{sH} offen sc1 lds" for n in range(4)]
        A(f"s_mov_b32 s{sCnt}, 4\ns_mov_b32 s57, {mask}\nv_readlane_b32 s{sW}, v21, 4\ns_mov_b32 s{sSlot}, 0\ns_mov_b32 m0, s{sLW2}\ns_branch P2_bar")
        A(".p2align 3\nP2_loop:")
        A(f"s_bitcmp1_b32 s57, s{sCnt}\ns_cbranch_scc1 P2_hk\nP2_hkb:")
        A(f"s_add_u32 m0, s{sLH}, s{sSlot}\ns_add_u32 s{sCnt}, s{sCnt}, 1")
        A(f"{hl[0]}\ns_add_u32 m0, m0, 1024\nv_readlane_b32 s{sW}, v21, s{sCnt}")
        A(f"{hl[1]}\ns_add_u32 m0, m0, 1024\ns_add_u32 s{sSlot}, s{sSlot}, 16384")
        A(f"{hl[2]}\ns_add_u32 m0, m0, 1024\ns_and_b32 s{sSlot}, s{sSlot}, 0xffff")
        A(f"{hl[3]}\ns_add_u32 m0, s{sLW2}, s{sSlot}\nP2_bar:\ns_waitcnt vmcnt(16)\ns_barrier")
        A(f"s_cmp_lt_u32 s{sCnt}, 28\ns_cbranch_scc0 P2_out")
        A(f"{wl[0]}\ns_add_u32 m0, m0, 896\nv_readlane_b32 s{sH}, v20, s{sCnt}")
        A(f"{wl[1]}\ns_add_u32 m0, m0, 1152\ns_nop 0")
        A(f"{wl[2]}\ns_add_u32 m0, m0, 896\ns_nop 0")
        A(f"{wl[3]}\ns_branch P2_loop")
        A("P2_hk:"); pad()
        A(f"s_cmp_eq_u32 s{sCnt}, 23\ns_cbranch_scc0 P2_hk1\nv_mov_b32 v22, v24\nv_mov_b32 v23, v25\ns_branch P2_hkb")
        A("P2_hk1:")
        if lead:
            A(f"s_cmp_lt_u32 s{sCnt}, 14\ns_cbranch_scc1 P2_hk1a\ns_cmp_eq_u32 s{sP}, 0\ns_cbranch_scc0 P2_hkb\ns_mov_b32 s58, 0\ns_cmp_eq_u32 s{sCnt}, 20\ns_cbranch_scc1 P2_pw")
            A(f"s_xor_b32 s4, s4, 1024\ns_xor_b32 s{sT0}, s{sFt8}, {dswz}\ns_lshl_b32 s{sT0}, s{sT0}, 2\ns_add_u32 s4, s4, s{sT0}\ns_load_dword s28, s[4:5], 0 glc\ns_branch P2_hkb")
            A(f"P2_pl:\ns_load_dword s28, s[4:5], 0 glc\ns_add_u32 s58, s58, 1\nP2_pw:\ns_waitcnt lgkmcnt(0)\ns_cmp_ge_u32 s58, {SPIN}\ns_cbranch_scc1 P2_hkb\ns_cmp_eq_u32 s28, 0\ns_cbranch_scc1 P2_pl\ns_branch P2_hkb\nP2_hk1a:")
        A(f"s_cmp_eq_u32 s{sCnt}, 9\ns_cbranch_scc0 P2_hk2\n{PL}\ns_branch P2_hkb")
        A(f"P2_hk2:\ns_cmp_eq_u32 s{sCnt}, 10\ns_cbranch_scc1 P2_hk3\ns_cmp_eq_u32 s{sP}, 1\ns_cbranch_scc0 P2_hkb\nbuffer_store_dword v5, v6, {R4(SWS)}, s59 offen sc1\ns_branch P2_hkb")
        A("P2_hk3:\ns_waitcnt vmcnt(8)\nv_cmp_gt_u32 vcc, 7, v4\ns_mov_b32 s58, 0\ns_nop 3\ns_cbranch_vccz P2_hkb")
        A(f"P2_l2:\n{PL}\ns_add_u32 s58, s58, 1\ns_waitcnt vmcnt(0)\nv_cmp_gt_u32 vcc, 7, v4")
        spin_tail("P2_l2")
        A("s_branch P2_hkb\nP2_out:")
    else:
        A(f"s_mov_b32 s{sCnt}, 4\ns_mov_b32 s57, 7")
        if la2: A("s_cmp_eq_u32 s62, 0\ns_cbranch_scc0 P2_loop\ns_waitcnt vmcnt(16)\ns_barrier")
        A("P2_loop:")
        A(f"v_readlane_b32 s{sW}, v21, s{sCnt}\nv_readlane_b32 s{sH}, v20, s{sCnt}")
        A(f"s_add_u32 s{sSlot}, s{sSlot}, 16384\ns_and_b32 s{sSlot}, s{sSlot}, 0xffff")
        A(f"s_cmp_eq_u32 s{sCnt}, 24\ns_cbranch_scc0 P2_a\nv_mov_b32 v22, v24\nv_mov_b32 v23, v25\nP2_a:")
        if la2: A(f"s_cmp_eq_u32 s{sCnt}, 4\ns_cbranch_scc1 P2_nw\ns_waitcnt vmcnt(8)\nP2_nw:\ns_barrier")
        else: A("s_waitcnt vmcnt(16)\ns_barrier")
        assert l1epi==3 or sched==9
        A(f"s_lshl_b32 s{sT0}, s{sP}, 8\ns_add_u32 s{sT0}, s{sT0}, s{sCnt}\ns_cmp_eq_u32 s{sT0}, {256+l1st+(4 if la2 else 5)}\ns_cbranch_scc0 P2_nf2\nbuffer_store_dword v5, v6, {R4(SWS)}, s59 offen sc1\nP2_nf2:")
        if two:
            A(f"s_cmp_eq_u32 s{sT0}, 14\ns_cbranch_scc0 P2_n2a\ns_load_dwordx4 s[28:31], s[6:7], 0 glc\nP2_n2a:")
            A(f"s_cmp_eq_u32 s{sT0}, 20\ns_cbranch_scc0 P2_n2b\ns_mov_b32 s58, 0\ns_branch P2_h2w\nP2_h2:\ns_load_dwordx4 s[28:31], s[6:7], 0 glc\ns_add_u32 s58, s58, 1\nP2_h2w:\ns_waitcnt lgkmcnt(0)")
            A(f"s_and_b32 s28, s28, s29\ns_and_b32 s30, s30, s31\ns_and_b32 s28, s28, s30\ns_cmp_ge_u32 s58, {SPIN}\ns_cbranch_scc1 P2_n2b\ns_cmp_eq_u32 s28, 0x03030303\ns_cbranch_scc0 P2_h2\nP2_n2b:")
        A(f"s_cmp_eq_u32 s{sCnt}, 9\ns_cbranch_scc0 P2_np\n{PL}\nP2_np:")
        A(f"s_cmp_eq_u32 s{sCnt}, 10\ns_cbranch_scc0 P2_b")
        A("s_waitcnt vmcnt(8)\nv_cmp_gt_u32 vcc, s57, v4\ns_mov_b32 s58, 0\ns_nop 3\ns_cbranch_vccz P2_ok")
        A(f"P2_l2:\n{PL}\ns_add_u32 s58, s58, 1\ns_waitcnt vmcnt(0)\nv_cmp_gt_u32 vcc, s57, v4")
        spin_tail("P2_l2")
        A("P2_ok:\ns_mov_b32 s57, 7")
        A("P2_b:")
        pad()
        issueW(); issueH()
        if pf2==3:
            A("s_cmp_eq_u32 s13, 24\ns_cselect_b32 s8, s14, s8\ns_cselect_b32 s9, s15, s9\ns_cmp_lt_u32 s13, 28\ns_cbranch_scc0 P2_nspf")
            spf()
            A("P2_nspf:")
        A(f"s_add_u32 s{sCnt}, s{sCnt}, 1\ns_cmp_lt_u32 s{sCnt}, 28\ns_cbranch_scc1 P2_loop")
    A(("" if (la2 or tight2) else "s_waitcnt vmcnt(16)\ns_barrier\n")+"s_waitcnt vmcnt(8)\ns_barrier\ns_waitcnt vmcnt(0)\ns_barrier")
    if diag: stamp(5); rstamp(15); flush(16)
    A("s_endpgm")
    A(".p2align 6\nL_cons:")
    ACC=16; F=[(128,144),(172,188)]
    vX0,vX1,vE,vO,vL=4,5,6,7,8; bX0,bE,bL=9,10,11
    sWm,sWf,sIt,sRg,sA,sB,sC=46,47,48,49,58,7,59
    sHA,sH3,sRX2,sClr,sPf=50,51,4,5,6
    vOwn,vT3,vH,vW=232,233,235,[236,237,238,239]
    if pfc and not fast:
        A(f"s_getpc_b64 s[54:55]\nC_pc:\ns_sub_u32 s54, s54, C_pc-{NAME}\ns_subb_u32 s55, s55, 0")
        A(f"v_lshlrev_b32 v3, 7, v0\nv_min_u32 v3, L_end-{NAME}, v3\nglobal_load_dword v255, v3, s[54:55]")
    if pf1==1 and not fast:
        A(f"v_and_b32 v15, 31, v2\nv_lshlrev_b32 v15, 7, v15\ns_lshl_b32 s{sA}, s2, 2\ns_add_u32 s{sA}, s{sA}, s3\ns_lshl_b32 s{sA}, s{sA}, 12")
    if pf1==3:
        A(f"v_and_b32 v15, 7, v2\nv_lshlrev_b32 v15, 7, v15\nv_bfe_u32 v14, v2, 3, 1\nv_lshl_add_u32 v15, v14, 11, v15\ns_lshl_b32 s{sA}, s2, 2\ns_add_u32 s{sA}, s{sA}, s3\ns_lshl_b32 s{sA}, s{sA}, 12\nv_mov_b32 v252, v15")
    if pf1==2:
        A(f"v_lshlrev_b32 v15, 7, v2\ns_lshr_b32 s{sA}, s2, 3\ns_lshl_b32 s{sA}, s{sA}, 2\ns_add_u32 s{sA}, s{sA}, s3\ns_lshl_b32 s{sA}, s{sA}, 13\ns_lshr_b32 s{sB}, s{sXcd}, 1\ns_lshl_b32 s{sB}, s{sB}, 20\ns_add_u32 s{sA}, s{sA}, s{sB}")
    A("s_waitcnt lgkmcnt(0)")
    if pf1 and not (fast and pf1==1):
        srd(A,SX,4,X_BYTES)
        A(f"buffer_load_dword v253, v15, {R4(SX)}, s{sA} offen")
        if pf1==3: srd(A,SW1,6,W_BYTES)
    if diag==5: stamp(6)
    A("s_setprio 1")
    A(f"s_lshr_b32 s{sWm}, s3, 1\ns_and_b32 s{sWf}, s3, 1")
    A("v_and_b32 v3, 15, v2\nv_lshrrev_b32 v12, 4, v2")
    A("v_lshrrev_b32 v13, 1, v3\nv_xor_b32 v13, v13, v12\nv_lshlrev_b32 v13, 4, v13")
    A(f"s_lshl_b32 s{sA}, s{sWm}, 13\nv_lshlrev_b32 v14, 7, v3\nv_add3_u32 v{bX0}, v13, v14, s{sA}")
    A("v_lshrrev_b32 v13, 1, v12\nv_mul_u32_u24 v13, 7168, v13\nv_bfe_u32 v15, v2, 2, 2\nv_lshl_add_u32 v13, v15, 6, v13\nv_and_b32 v15, 3, v2\nv_lshl_add_u32 v13, v15, 3, v13")
    A(f"v_and_b32 v14, 1, v12\nv_mul_u32_u24 v15, 1056, v14\ns_lshl_b32 s{sA}, s{sWf}, 9\ns_add_u32 s{sA}, s{sA}, {WOFF}\nv_add3_u32 v{bE}, v13, v15, s{sA}")
    A(f"v_mul_u32_u24 v15, 544, v14\nv_add_u32 v13, v13, v15\ns_lshl_b32 s{sA}, s{sWf}, 5\nv_xor_b32 v13, s{sA}, v13\nv_add_u32 v{bL}, {WOFF+6144}, v13")
    VF=248
    fragoffs(VF)
    A(f"v_add_u32 v{vE}, {2*WST}, v{bE}\nv_mov_b32 v{vX0}, v{bX0}\nv_add_u32 v{vL}, {2*WST}, v{bL}\nv_xor_b32 v{vO}, 32, v{vE}\nv_xor_b32 v{vX1}, 64, v{vX0}")
    srd(A,SO,10,O_BYTES); srd(A,SWS,14,0x10000000); srd(A,SW2,8,W_BYTES)
    if diag==5 or not spub: srd(A,SD,12,256)
    A("v_lshlrev_b32 v3, 4, v2")
    A(f"s_lshr_b32 s56, s{sLid}, 3\ns_lshl_b32 s56, s56, 10\ns_lshl_b32 s{sB}, s{sFt8}, 2\ns_add_u32 s56, s56, s{sB}\ns_add_u32 s56, s56, {F_OFF+fch*128}")
    if lead:
        A(f"s_cmp_eq_u32 s{sFt}, 0\ns_cselect_b32 s{sB}, 16, 0\nv_lshrrev_b32 v13, 3, v2\nv_lshlrev_b32 v13, 10, v13\nv_and_b32 v1, 7, v2\nv_lshl_add_u32 v13, v1, 2, v13")
        A(f"v_mov_b32 v1, {OOB}\nv_cmp_gt_u32 vcc, s{sB}, v2\ns_nop 1\nv_cndmask_b32 v1, v1, v13, vcc")
    else:
        A(f"v_mov_b32 v1, {OOB}\nv_cmp_eq_u32 vcc, 0, v2\ns_nop 1\nv_cndmask_b32 v1, v1, 0, vcc")
    A(f"s_andn2_b32 s57, s{sLid}, 7\ns_add_u32 s57, s57, s{sDt}\ns_lshl_b32 s57, s57, 2\ns_add_u32 s57, s57, s3\ns_mul_i32 s57, s57, {QS}\ns_add_u32 s57, s57, {P_OFF}")
    A(f"s_lshl_b32 s52, s{sWm}, 12\nv_add_u32 v{vH}, s52, v3")
    A("v_lshrrev_b32 v13, 5, v2\nv_lshlrev_b32 v13, 11, v13\nv_bfe_u32 v14, v2, 4, 1\nv_mul_u32_u24 v14, 288, v14\nv_add_u32 v13, v13, v14")
    A("v_bfe_u32 v15, v2, 2, 2\nv_lshl_add_u32 v13, v15, 6, v13\nv_and_b32 v15, 3, v2\nv_lshl_add_u32 v13, v15, 3, v13")
    A(f"s_lshl_b32 s52, s{sJ}, 1\ns_add_u32 s52, s52, s{sWf}\ns_lshl_b32 s52, s52, 9\ns_add_u32 s52, s52, 65536\nv_add_u32 v{vW[0]}, s52, v13")
    A(f"v_xor_b32 v{vW[1]}, 32, v{vW[0]}\nv_xor_b32 v{vW[2]}, 0x400, v{vW[0]}\nv_xor_b32 v{vW[3]}, 0x420, v{vW[0]}")
    A(f"s_add_u32 s62, s{sFt8}, s3\ns_and_b32 s62, s62, {rmask}\ns_add_u32 s62, s62, {l2st+5}")
    A(f"s_mul_i32 s{sHA}, s{sMt}, 112\ns_mul_i32 s{sH3}, s{sFt}, 7\ns_add_u32 s{sHA}, s{sHA}, s{sH3}\ns_and_b32 s52, s{sFt8}, 1")
    A(f"s_xor_b32 s53, s52, 1\ns_mul_i32 s53, s53, 6\ns_add_u32 s{sH3}, s{sHA}, s53\ns_add_u32 s{sHA}, s{sHA}, s52\ns_add_u32 s{sHA}, s{sHA}, s{sWf}")
    A(f"s_mul_i32 s52, s{sWm}, {QS}\ns_mul_i32 s{sHA}, s{sHA}, {CH}\ns_add_u32 s{sHA}, s{sHA}, s52\ns_mul_i32 s{sH3}, s{sH3}, {CH}\ns_add_u32 s{sH3}, s{sH3}, s52\ns_lshl_b32 s52, s{sWm}, 12")
    A(f"s_lshl_b32 s53, s{sWf}, 13\ns_add_u32 s52, s52, s53\nv_add_u32 v{vOwn}, s52, v3")
    A(f"v_bfe_u32 v13, v2, 4, 1\nv_lshlrev_b32 v13, 3, v13\nv_lshrrev_b32 v14, 5, v2\nv_lshl_add_u32 v13, v14, 1, v13\nv_bfe_u32 v14, v2, 3, 1\ns_lshl_b32 s52, s{sWf}, 2\nv_add3_u32 v13, v13, v14, s52")
    A("v_add_u32 v14, 16, v13\nv_and_b32 v15, 7, v2\nv_lshlrev_b32 v15, 4, v15")
    physline(vT3,13,12); physline(vT3+1,14,12)
    A(f"v_add_u32 v{vT3}, v{vT3}, v15\nv_add_u32 v{vT3+1}, v{vT3+1}, v15")
    A("v_mov_b32 v12, 1\ns_mov_b32 s52, 0xbfb8aa3b\ns_mov_b32 s53, 0xbfb8aa3b\ns_mov_b32 s54, 1.0\ns_mov_b32 s55, 1.0")
    for r in range(112): A(f"v_mov_b32 v{ACC+r}, 0")
    for r in range(4): A(f"v_mov_b32 v{244+r}, -1")
    def hook(it, body, name, reg=None):
        OOL.append(f"{name}:\n{body}\ns_branch {name}_b")
        return [f"s_cmp_eq_u32 s{reg or sIt}, {it}", f"s_cbranch_scc1 {name}\n{name}_b:"]
    def reads1(u, fs):
        X,W=F[fs]
        xs=[f"ds_read_b128 {vr(X+4*i,4)}, v{vX1 if u else vX0} offset:{i*2048}" for i in range(4)]
        ws=[]
        for j in range(7):
            a,o=(vL,0) if j==6 else ((vO if j&1 else vE),(j>>1)*2048)
            for hh in range(2): ws.append(f"ds_read_b64_tr_b16 {vr(W+4*j+2*hh,2)}, v{a} offset:{u*14336+o+hh*256}")
        return ws[0:2]+xs+ws[2:]
    def mf1(fs):
        X,W=F[fs]
        return [f"v_mfma_f32_16x16x32_bf16 {vr(ACC+(j*4+i)*4,4)}, {vr(W+4*j,4)}, {vr(X+4*i,4)}, {vr(ACC+(j*4+i)*4,4)}" for j,i in snake(range(7),4)]
    A(f"s_mov_b32 s{sIt}, 0\ns_mov_b32 s{sRg}, {2*WST}\ns_mov_b32 s{sRX2}, 0\ns_lshl_b32 s{sClr}, s3, {1 if cmask==7 else 0}\ns_add_u32 s{sClr}, s{sClr}, s{sFt8}\ns_and_b32 s{sClr}, s{sClr}, {cmask}\ns_add_u32 s{sClr}, s{sClr}, {cbase}")
    if two: A(f"s_mov_b32 s0, {1|4|(1<<ack)}")
    A(f"s_mul_i32 s{sPf}, s3, {pfb}\ns_add_u32 s{sPf}, s{sPf}, {pfa}")
    if pf2==2: A(f"v_min_u32 v15, 55, v2\nv_lshlrev_b32 v15, 7, v15\ns_lshl_b32 s{sA}, s2, 2\ns_add_u32 s{sA}, s{sA}, s3\ns_mul_i32 s{sA}, s{sA}, 7168\nbuffer_load_dword v255, v15, {R4(SW2)}, s{sA} offen")
    if diag in (2,3,6): A("s_mov_b32 m0, 0")
    clr="\n".join([f"buffer_store_dwordx4 v[244:247], v{VF+i}, {R4(SWS)}, s57 offen sc1" for i in range(4)])
    fclr=f"v_mov_b32 v13, 0\nbuffer_store_dword v13, v1, {R4(SWS)}, s56 offen sc1"
    if sep: assert lead; A(fclr)
    elif not two: clr=clr+"\n"+fclr
    if clr0: A(clr)
    if diag==5: stamp(8)
    if walk:
        A(f"s_cmp_ge_u32 s3, {walk}\ns_cbranch_scc1 C_walked\ns_waitcnt vmcnt({(1 if pf1 else 0)+(1 if sep else 0)})\ns_mov_b64 exec, 0")
        for w in range(walk-1): A(f"s_cmp_eq_u32 s3, {w}\ns_cbranch_scc1 @START{w}@")
        A(f"s_branch @START{walk-1}@\nC_wret:\ns_mov_b64 exec, -1\nC_walked:")
    if diag==5: stamp(9)
    A("s_barrier")
    stamp(1)
    for l in reads1(0,0): A(l)
    A("s_waitcnt lgkmcnt(0)")
    A(".p2align 3\nC1_loop:")
    sstamp()
    ex=[f"s_add_u32 s{sRg}, s{sRg}, {WST}\ns_add_u32 s{sRX2}, s{sRX2}, 16384", f"s_cmp_eq_u32 s{sRg}, {WST*3}\ns_cselect_b32 s{sRg}, 0, s{sRg}",
        f"v_add_u32 v{vE}, s{sRg}, v{bE}\ns_and_b32 s{sRX2}, s{sRX2}, 0xffff", f"v_add_u32 v{vX0}, s{sRX2}, v{bX0}", f"v_add_u32 v{vL}, s{sRg}, v{bL}",
        f"v_xor_b32 v{vO}, 32, v{vE}", f"v_xor_b32 v{vX1}, 64, v{vX0}"]
    if not clr0: ex+=hook(f"s{sClr}" if stag else 2,clr,"H1_clr")
    for l in interleave(mf1(0), reads1(1,1)+ex): A(l)
    A("s_waitcnt lgkmcnt(0)\ns_barrier")
    pub=(f"s_cmp_eq_u32 s3, 0\ns_cbranch_scc0 H1_pub_b\ns_and_b32 s{sA}, s{sLid}, 3\ns_lshl_b32 s{sA}, s{sA}, 3\ns_lshl_b32 s{sA}, 1, s{sA}\nv_mov_b32 v13, s{sA}\n"
         f"s_andn2_b32 s{sA}, s{sLid}, 3\nv_lshlrev_b32 v14, 8, v2\nbuffer_atomic_or v13, v14, {R4(SD)}, s{sA} offen")
    if two:
        h=hook(0,f"s_cmp_eq_u32 s{sIt}, 0\ns_cbranch_scc1 H1_fc\ns_waitcnt vmcnt(0)\ns_branch H1_ack_b\nH1_fc:\n{fclr}","H1_ack")
        h[0]=f"s_bitcmp1_b32 s0, s{sIt}"
    else: h=hook(ack,"s_waitcnt vmcnt(0)","H1_ack")
    ex=h+([] if spub else hook(ack+1,pub,"H1_pub"))
    if pf1==3:
        nl=(16-w1s)*64*56//1024
        ex+=hook(pfi,f"s_lshl_b32 s{sA}, s2, 2\ns_add_u32 s{sA}, s{sA}, s3\ns_mul_i32 s{sB}, s{sA}, {nl*128}\ns_add_u32 s{sB}, s{sB}, {w1s*64*7168}\ns_lshl_b32 s{sA}, s{sA}, 12\n"
                     f"v_min_u32 v15, {nl-1}, v2\nv_lshlrev_b32 v15, 7, v15\nbuffer_load_dword v255, v15, {R4(SW1)}, s{sB} offen\nbuffer_load_dword v253, v252, {R4(SX)}, s{sA} offen offset:1024","H1_pf1")
    if pf2==4:
        ex+=hook(f"s{sPf}",f"s_lshl_b32 s{sA}, s2, 2\ns_add_u32 s{sA}, s{sA}, s3\ns_lshr_b32 s{sB}, s{sA}, 6\ns_and_b32 s60, s{sB}, 1\ns_mul_i32 s{sB}, s{sB}, 7\n"
                     f"s_add_u32 s61, s{sB}, s60\ns_add_u32 s61, s61, 4\ns_lshl_b32 s61, s61, 16\ns_xor_b32 s60, s60, 1\ns_mul_i32 s60, s60, 6\ns_add_u32 s{sB}, s{sB}, s60\ns_lshl_b32 s{sB}, s{sB}, 16\n"
                     f"s_and_b32 s{sA}, s{sA}, 63\ns_lshl_b32 s60, s{sA}, 11\ns_add_u32 s61, s61, s60\ns_lshl_b32 s60, s{sA}, 10\ns_add_u32 s{sB}, s{sB}, s60\n"
                     f"v_and_b32 v15, 15, v2\nv_lshlrev_b32 v15, 7, v15\nv_and_b32 v14, 7, v2\nv_lshlrev_b32 v14, 7, v14\n"
                     f"buffer_load_dword v255, v15, {R4(SW2)}, s61 offen\nbuffer_load_dword v253, v14, {R4(SW2)}, s{sB} offen","H1_pf")
    if pf2==1:
        ex+=hook(f"s{sPf}",f"v_min_u32 v15, 55, v2\nv_lshlrev_b32 v15, 7, v15\ns_lshl_b32 s{sA}, s2, 2\ns_add_u32 s{sA}, s{sA}, s3\ns_mul_i32 s{sA}, s{sA}, 7168\nbuffer_load_dword v255, v15, {R4(SW2)}, s{sA} offen","H1_pf")
    ex+=([PAD] if walk else [])+[f"s_add_u32 s{sIt}, s{sIt}, 1", f"s_cmp_lt_u32 s{sIt}, 16"]
    x=interleave(mf1(1), reads1(0,0)+ex)
    if x[-1].startswith("v_mfma"):
        for l in x[:-1]: A(l)
        A("s_waitcnt lgkmcnt(0)"); A(x[-1])
    else:
        for l in x: A(l)
        A("s_waitcnt lgkmcnt(0)")
    A("s_cbranch_scc1 C1_loop")
    stamp(2)
    T=216
    def silu(a, b, D):
        t=T; src=[a,a+2,b,b+2]
        for r in range(4): A(f"v_pk_mul_f32 {vr(t+2*r,2)}, s[52:53], {vr(src[r],2)}")
        for r in range(8): A(f"v_exp_f32 v{t+r}, v{t+r}")
        for r in range(4): A(f"v_pk_add_f32 {vr(t+2*r,2)}, s[54:55], {vr(t+2*r,2)}")
        for r in range(8): A(f"v_rcp_f32 v{t+r}, v{t+r}")
        for r in range(4): A(f"v_pk_mul_f32 {vr(t+2*r,2)}, {vr(t+2*r,2)}, {vr(src[r],2)}")
        for r in range(4): A(f"v_cvt_pk_bf16_f32 v{D+r}, v{t+2*r}, v{t+2*r+1}")
    def gst(D,i): return f"buffer_store_dwordx4 {vr(D,4)}, v{VF+i}, {R4(SWS)}, s{sHA} offen sc1"
    FLAG="s_nop 0"
    DL=[160,128,144]; D3=224
    for L in range(3):
        for i in range(4):
            D=DL[L]+4*i
            if i%2==0: pad()
            silu(ACC+((2*L)*4+i)*4, ACC+((2*L+1)*4+i)*4, D)
            if L==0 or (L==2 and l1epi>=2) or (L==1 and i>=nb and l1epi): A(gst(D,i))
            A(f"ds_write_b128 v{vOwn}, {vr(D,4)} offset:{L*16384+i*1024}")
            if L==1 and i==nb-1:
                stamp(11); A("s_waitcnt vmcnt(0)"); stamp(12)
                A(f"s_add_u32 s{sHA}, s{sHA}, {2*CH}\ns_waitcnt lgkmcnt(0)\ns_barrier")
                if l1epi:
                    for k in range(nb): A(gst(128+4*k,k))
        if L==1 and l1epi: A(f"s_add_u32 s{sHA}, s{sHA}, {2*CH}")
    F2=[(160,176),(192,208)]
    def rdH(X,slot,u): return [f"ds_read_b128 {vr(X+4*i,4)}, v{vH} offset:{slot*16384+u*8192+i*1024}" for i in range(4)]
    def rdW(W,slot,u,js): return [f"ds_read_b64_tr_b16 {vr(W+4*n+2*hh,2)}, v{vW[j]} offset:{slot*16384+(4*u+2*hh)*2048}" for n,j in enumerate(js) for hh in range(2)]
    def reads2(slot,u,fs):
        X,W=F2[fs]; ws=rdW(W,slot,u,range(4)); return ws[0:2]+rdH(X,slot,u)+ws[2:]
    def mfm(X,W,js,zero=False,w0=0):
        return [f"v_mfma_f32_16x16x32_bf16 {vr(ACC+(j*4+i)*4,4)}, {vr(W+4*(j-w0),4)}, {vr(X+4*i,4)}, {'0' if zero else vr(ACC+(j*4+i)*4,4)}" for j,i in snake(js,4)]
    def mf2(fs,zero=False): return mfm(F2[fs][0],F2[fs][1],range(4),zero)
    for l in reads2(0,0,0): A(l)
    for ip in range(2):
        D=D3+4*ip; a=ACC+(24+2*ip)*4
        if ip==0: pad()
        silu(a,a+4,D)
        A(f"s_nop 1\nv_permlane16_swap_b32 v{D}, v{D+2}\nv_permlane16_swap_b32 v{D+1}, v{D+3}")
        if l1epi>=3: A(f"buffer_store_dwordx4 {vr(D,4)}, v{vT3+ip}, {R4(SWS)}, s{sH3} offen sc1")
    A(f"v_mov_b32 v12, {7 if l1epi==3 else 3}\ns_mov_b32 s{sIt}, 0")
    stamp(3); stamp(4)
    sstamp()
    A("s_waitcnt lgkmcnt(0)")
    for l in interleave(mf2(0,True), reads2(0,1,1)+([PAD] if walk else [])): A(l)
    A("s_branch C2_in")
    dw={}; dws={}
    t3st=[f"buffer_store_dwordx4 {vr(D3+4*ip,4)}, v{vT3+ip}, {R4(SWS)}, s{sH3} offen sc1" for ip in range(2)]
    ADV=f"\ns_add_u32 s{sHA}, s{sHA}, {2*CH}"
    L1s=[gst(128+4*i,i) for i in range(4)]; L2s=[gst(144+4*i,i) for i in range(4)]
    F3=f"s_waitcnt vmcnt(0)\n{FLAG}"; F7=f"v_mov_b32 v12, 7\ns_waitcnt vmcnt(0)\n{FLAG}"
    J="\n".join
    if sched==1:
        dw[(0,1)]=J(L1s[:2]); dw[(1,0)]=J(L1s[2:])+ADV; dw[(1,1)]=J(L2s[:2]); dw[(2,0)]=J(L2s[2:]); dw[(2,1)]=J(t3st); dw[(4,0)]=F7
    elif sched==2:
        dw[(0,1)]=J(L1s[:2]); dw[(1,0)]=J(L1s[2:])+ADV; dw[(3,0)]=F3
        dw[(3,1)]=L2s[0]; dw[(4,0)]=L2s[1]; dw[(4,1)]=L2s[2]; dw[(5,0)]=L2s[3]; dw[(5,1)]=t3st[0]; dw[(6,0)]=t3st[1]; dw[(10,0)]=F7
    elif sched==3:
        dw[(0,1)]=L1s[0]; dw[(1,0)]=L1s[1]; dw[(1,1)]=L1s[2]; dw[(2,0)]=L1s[3]+ADV; dw[(3,1)]=F3
        dw[(4,0)]=L2s[0]; dw[(4,1)]=L2s[1]; dw[(5,0)]=L2s[2]; dw[(5,1)]=L2s[3]; dw[(6,0)]=t3st[0]; dw[(6,1)]=t3st[1]; dw[(11,0)]=F7
    elif sched==4:
        dw[(0,1)]=J(L1s)+ADV; dw[(1,1)]=J(L2s); dw[(2,1)]=J(t3st); dw[(4,0)]=F7
    elif sched==9:
        dw[(1,1)]=F7
    elif sched==5:
        dw[(0,1)]=J(L2s[:2]); dw[(1,0)]=J(L2s[2:]); dw[(1,1)]=J(t3st); dw[(3,1)]=F7
    else:
        if not l1epi:
            dw[(l1st,0)]=gst(128,0)+"\n"+gst(132,1); dw[(l1st,1)]=gst(136,2)+"\n"+gst(140,3)+f"\ns_add_u32 s{sHA}, s{sHA}, {2*CH}"
            dw[(l1st+2,1)]=f"s_waitcnt vmcnt(0)\n{FLAG}"
        else:
            dw[(l1st,1)]=f"s_waitcnt vmcnt(0)\n{FLAG}"
        if l1epi>=2:
            if l1epi==2: dw[(l2st,0)]="\n".join(t3st)
            if l1epi==2: dw[(f3,1)]=f"v_mov_b32 v12, 7\ns_waitcnt vmcnt(0)\n{FLAG}"
        elif not stag2:
            dw[(l2st,0)]=gst(144,0)+"\n"+gst(148,1); dw[(l2st+1,0)]=gst(152,2)+"\n"+gst(156,3)+"\nv_mov_b32 v12, 7"
            dw[(l2st+2,0)]="\n".join(t3st)
            dw[(l2st+5,1)]=f"s_waitcnt vmcnt(0)\n{FLAG}"
        else:
            dw[(f3,1)]=f"v_mov_b32 v12, 7\ns_waitcnt vmcnt(0)\n{FLAG}"
            body=[gst(144+4*i,i) for i in range(4)]+t3st
            o="H2_st:\n"
            for n,b in enumerate(body):
                o+=f"s_cmp_eq_u32 s62, {5-n}\ns_cbranch_scc0 H2_st{n}\n{b}\nH2_st{n}:\n"
            o+="s_setpc_b64 s[54:55]"
            OOL.append(o)
    def hooks2(slot,u):
        ex=[]
        for (q,uu),body in sorted(dw.items()):
            if q%4==slot and uu==u: ex+=hook(q//4,body,f"H2_{q}_{uu}")
        if stag2 and l1epi<2 and u==0 and not sched:
            ex+=["s_sub_u32 s62, s62, 1\ns_cmp_lt_u32 s62, 6", f"s_cbranch_scc1 H2_go{slot}\nH2_ns{slot}:"]
            OOL.append(f"H2_go{slot}:\ns_call_b64 s[54:55], H2_st\ns_branch H2_ns{slot}")
        assert len(ex)<=4, (slot,u,ex)
        return ex
    A(".p2align 3\nC2_loop:")
    for slot in range(4):
        sstamp()
        for l in interleave(mf2(0), reads2(slot,1,1)+hooks2(slot,0)+([PAD] if walk else [])): A(l)
        if slot==0: A("C2_in:")
        A("s_waitcnt lgkmcnt(0)\ns_barrier")
        ex=hooks2(slot,1)
        if slot==3: ex+=[f"s_add_u32 s{sIt}, s{sIt}, 1", f"s_cmp_lt_u32 s{sIt}, 6"]
        x=interleave(mf2(1), reads2((slot+1)&3,0,0)+ex)
        if x[-1].startswith("v_mfma"):
            for l in x[:-1]: A(l)
            A("s_waitcnt lgkmcnt(0)"); A(x[-1])
        else:
            for l in x: A(l)
            A("s_waitcnt lgkmcnt(0)")
    A("s_cbranch_scc1 C2_loop")
    stamp(13)
    if diag: A("s_waitcnt lgkmcnt(0)")
    G=[dict(H=[160,80],W=[184,96]), dict(H=[192,104],W=[208,216])]
    def rdS(g,slot,js,us=(0,1)):
        o=[]
        for u in us:
            w=rdW(G[g]['W'][u],slot,u,js); o+=w[0:2]+rdH(G[g]['H'][u],slot,u)+w[2:]
        return o
    def mfS(g,js): return mfm(G[g]['H'][0],G[g]['W'][0],js,w0=js[0])+mfm(G[g]['H'][1],G[g]['W'][1],js,w0=js[0])
    for l in rdS(0,0,(2,3),(1,)): A(l)
    pad()
    A("s_barrier")
    m=mfS(0,(2,3)); r=rdS(1,1,(2,3))
    x=interleave(m[:8], r[:8])
    for l in x: A(l)
    A("s_waitcnt lgkmcnt(8)")
    for l in interleave(m[8:], r[8:]): A(l)
    for q in (1,2):
        if q==2: pad()
        A("s_waitcnt lgkmcnt(0)\ns_barrier")
        for l in interleave(mfS(q&1,(2,3)), rdS((q+1)&1,q+1,(2,3))): A(l)
    A(f"s_mul_i32 s52, s{sJ}, {-2*32*QS}\ns_add_u32 s52, s52, {32*QS}\ns_add_u32 s52, s52, s57\ns_mov_b32 s53, -2")
    sn=[]
    for i in range(4):
        D=128+4*i; t=[]
        for n,j in enumerate((2,3)):
            S=ACC+(j*4+i)*4
            t+= [f"v_cvt_pk_bf16_f32 v{D+2*n}, v{S}, v{S+1}", f"v_cvt_pk_bf16_f32 v{D+2*n+1}, v{S+2}, v{S+3}"]
        t+=[f"v_min_u32 v{D+r}, s53, v{D+r}" for r in range(4)]
        t.append(f"buffer_store_dwordx4 {vr(D,4)}, v{VF+i}, {R4(SWS)}, s52 offen sc1")
        sn.append(t)
    A("s_waitcnt lgkmcnt(0)")
    if esend:
        g=G[1]; r=rdS(0,0,(0,1)); k=0
        for i in range(4):
            for u,j in ((0,2),(0,3),(1,3),(1,2)):
                A(f"v_mfma_f32_16x16x32_bf16 {vr(ACC+(j*4+i)*4,4)}, {vr(g['W'][u]+4*(j-2),4)}, {vr(g['H'][u]+4*i,4)}, {vr(ACC+(j*4+i)*4,4)}")
                A(r[k]); k+=1
            if i>=1:
                for l in sn[i-1]: A(l)
        stamp(5)
        pad()
        A("s_waitcnt lgkmcnt(0)")
        m=mfS(0,(0,1)); r=rdS(1,1,(0,1))
        for n,mm_ in enumerate(m):
            A(mm_); A(r[n])
            if n==2:
                for l in sn[3]: A(l)
    else:
        for l in interleave(mfS(1,(2,3)), rdS(0,0,(0,1))): A(l)
        stamp(5)
        pad()
        snd=sum(sn,[])
        A("s_waitcnt lgkmcnt(0)")
        m=mfS(0,(0,1)); r=rdS(1,1,(0,1))
        k=0
        for n,mm_ in enumerate(m):
            A(mm_); A(r[n])
            if packfirst and n==1:
                A("s_nop 3")
                while k<len(snd): A(snd[k]); k+=1
            if n>=3:
                for _ in range(3):
                    if k<len(snd): A(snd[k]); k+=1
        while k<len(snd): A(snd[k]); k+=1
    if diag!=5: stamp(6)
    RB=144 if dual else 80; RB2=224
    def LDs(b): return [f"buffer_load_dwordx4 {vr(b+4*i,4)}, v{VF+i}, {R4(SWS)}, s57 offen sc1" for i in range(4)]
    LD=LDs(RB)
    for q in (1,2):
        pad()
        A("s_waitcnt lgkmcnt(0)")
        x=interleave(mfS(q&1,(0,1)), rdS((q+1)&1,q+1,(0,1)))
        if dual==q:
            for n in range(4): x.insert(2+3*n+n,LD[n])
        for l in x: A(l)
    A("s_waitcnt lgkmcnt(0)")
    adr=["v_and_b32 v13, 15, v2","v_lshlrev_b32 v13, 11, v13","v_bfe_u32 v14, v2, 4, 1","v_lshl_add_u32 v13, v14, 5, v13","v_lshrrev_b32 v14, 5, v2","v_lshl_add_u32 v13, v14, 4, v13",
         f"s_lshl_b32 s{sC}, s{sMt}, 1\ns_add_u32 s{sC}, s{sC}, s{sWm}", f"s_lshl_b32 s{sC}, s{sC}, 17\ns_lshl_b32 s52, s{sDt}, 8", f"s_add_u32 s{sC}, s{sC}, s52\ns_lshl_b32 s52, s{sJ}, 7",
         f"s_add_u32 s{sC}, s{sC}, s52\ns_lshl_b32 s52, s{sWf}, 6", f"s_add_u32 s{sC}, s{sC}, s52\ns_mov_b32 s58, 0"]
    def chk():
        A(f"v_max3_u32 v14, v{RB}, v{RB+1}, v{RB+2}")
        for r in range(3,15,2): A(f"v_max3_u32 v14, v14, v{RB+r}, v{RB+r+1}")
        A(f"v_max_u32 v14, v14, v{RB+15}\nv_cmp_eq_u32 vcc, -1, v14")
    if dual:
        for l in interleave(mfS(1,(0,1)), LDs(80)+adr): A(l)
        A("s_waitcnt vmcnt(4)"); chk()
        A("s_nop 4\ns_cbranch_vccz C3_ok\ns_waitcnt vmcnt(0)")
        for r in range(16): A(f"v_mov_b32 v{RB+r}, v{80+r}")
    else:
        for l in interleave(mfS(1,(0,1)), adr[:ldpos]+LD+adr[ldpos:]): A(l)
    pad()
    A("s_branch C3_chk")
    A("C3_poll:")
    for l in LD: A(l)
    A("C3_chk:\ns_add_u32 s58, s58, 1\ns_waitcnt vmcnt(0)")
    chk()
    spin_tail("C3_poll")
    A("C3_ok:")
    stamp(7)
    if diag!=5: stamp(8)
    A("s_mov_b32 s53, 0xffff0000")
    for i in range(4):
        D=128+4*i
        for n in range(2):
            S=ACC+(n*4+i)*4
            for h in range(2):
                Rr=RB+4*i+2*n+h
                A(f"v_lshlrev_b32 v{T}, 16, v{Rr}\nv_and_b32 v{T+1}, s53, v{Rr}\nv_pk_add_f32 {vr(S+2*h,2)}, {vr(S+2*h,2)}, {vr(T,2)}")
                A(f"v_cvt_pk_bf16_f32 v{D+2*n+h}, v{S+2*h}, v{S+2*h+1}")
        A(f"s_nop 1\nv_permlane16_swap_b32 v{D}, v{D+2}\nv_permlane16_swap_b32 v{D+1}, v{D+3}")
        A(f"buffer_store_dwordx4 {vr(D,4)}, v13, {R4(SO)}, s{sC} offen {outaux}")
        if i<3: A(f"s_add_u32 s{sC}, s{sC}, 0x8000")
        if i==0: pad()
    if diag:
        if diag!=5: stamp(9)
        A("s_waitcnt vmcnt(0)"); stamp(10); rstamp(15); flush(16,True)
    A("s_endpgm")
    if walk: A(PAD+"\ns_endpgm")
    for b in OOL: A(b)
    A("L_end:\ns_endpgm")
    A(f""".section .rodata,"a"
.p2align 6
.amdhsa_kernel {NAME}
  .amdhsa_next_free_vgpr 256
  .amdhsa_next_free_sgpr 96
  .amdhsa_accum_offset 256
  .amdhsa_group_segment_fixed_size 0
  .amdhsa_kernarg_size 48
  .amdhsa_user_sgpr_count 2
  .amdhsa_user_sgpr_kernarg_segment_ptr 1
  .amdhsa_system_sgpr_workgroup_id_x 1
.end_amdhsa_kernel""")
    txt=A.text()
    if walk:
        n=txt.count("@PAD@"); parts=txt.split("@PAD@")
        starts=[round(w*n/walk) for w in range(walk)]
        out=parts[0]
        for k in range(n):
            nxt="C_wret" if (k+1==n or k+1 in starts) else f"PAD{k+1}"
            out+=f"PAD{k}:\ns_cbranch_execz {nxt}"+parts[k+1]
        for w in range(walk): out=out.replace(f"@START{w}@",f"PAD{starts[w]}")
        txt=out
    return txt

if __name__=="__main__":
    import inspect
    p=argparse.ArgumentParser(); p.add_argument("-o")
    for k,v in inspect.signature(build).parameters.items():
        p.add_argument("--"+k,type=type(v.default),default=v.default)
    a=vars(p.parse_args()); o=a.pop("o")
    open(o,"w").write(build(**a))
```

```python
import sys, argparse
NAME="standalone__dense_activation_silu__prompt_kernel"
class Asm:
    def __init__(self): self.L=[]
    def __call__(self, s):
        for l in s.split("\n"): self.L.append(l)
    def text(self): return "\n".join(self.L)+"\n"
def vr(a,n): return f"v[{a}:{a+n-1}]"
def srd(A, d, b, nbytes):
    A(f"s_mov_b32 s{d}, s{b}\ns_and_b32 s{d+1}, s{b+1}, 0xffff\ns_mov_b32 s{d+2}, {nbytes}\ns_mov_b32 s{d+3}, 0x20000")
X_BYTES=2048*1024*2; W_BYTES=1024*3584*2; O_BYTES=2048*1024*2
H_OFF=0; P_OFF=24<<20; F_OFF=48<<20; T_OFF=64<<20
SX,SW1,SW2,SO,SD,SWS=16,20,24,28,32,36
sMt,sJ,sFt8,sFt,sLid,sXcd,sDt=40,41,42,43,44,45,63
OOB=0x7ffffff0
SPIN=1<<17
def R4(s): return f"s[{s}:{s+3}]"

def interleave(mf, rd):
    out=[]; k=0
    for m in mf:
        out.append(m)
        if k<len(rd): out.append(rd[k]); k+=1
    return out+rd[k:]
ORDER='ji'
def snake(JS,NI):
    JS=list(JS)
    if ORDER=='ij': return [(j,i) for i in range(NI) for j in (JS if i%2==0 else JS[::-1])]
    return [(j,(i if n%2==0 else NI-1-i)) for n,j in enumerate(JS) for i in range(NI)]

def build(diag=0, rot=1, pf1=0, pf2=1, pfc=1, outaux="sc1", pfa=13, dswz=0, w1aux="", xaux="", w2aux="", l1st=1, l2st=4, stag=1, l1epi=1, rmask=1, f3=9, skew2=1, pfb=0, stag2=1, remap=1, spa=0, spb=13, spn=4, ack=6, ldearly=1, pfi=0, w1s=6, sched=0, fch=6, pdelay=0, nb=4, clr0=0, dual=0, tlb=0, packfirst=1, spub=1, vpoll=0, hsi=12, hsglc='', cmask=1, cbase=1, walk=2, w2e=0, order='ji', esend=1, ldpos=0, fast=1, la1=0, hd=4, la2=0, npoll=2, tearly=2, nsh=0, two=0, tight2=1, tight1=1, lead=1, tl=0, tlw=16, tl0=0, sep=1, xp_it=0, xp_n=0, late=-1):
    global ORDER; ORDER=order
    assert ack+2!=hsi and tl not in (ack+5,hsi+3) and ack+2<=12 and (cbase+cmask<ack or sep) and nsh<=(4 if two else ack+2)
    A=Asm(); A_main=A; OOL=[]
    tm='s_memrealtime' if diag>=3 else 's_memtime'
    def stamp(k):
        if diag: A(f"{tm} s[{64+2*k}:{65+2*k}]")
    def rstamp(k):
        if diag: A(f"s_memrealtime s[{64+2*k}:{65+2*k}]")
    def sstamp():
        if diag==6: A(f"s_memtime s[90:91]\ns_memrealtime s[88:89]\ns_waitcnt lgkmcnt(0)\nv_writelane_b32 v254, s90, m0\nv_writelane_b32 v252, s88, m0\ns_add_u32 m0, m0, 1")
        if diag in (2,3): A(f"{tm} s[90:91]\ns_waitcnt lgkmcnt(0)\nv_writelane_b32 v254, s90, m0\ns_add_u32 m0, m0, 1")
    def flush(n, cons=False):
        if not diag: return
        if diag==5:
            ks=[6,8,9,1,2,4,5,10] if cons else [1,8,2,3,4,5]
            lab="DB_c" if cons else "DB_p"
            A(f"s_waitcnt lgkmcnt(0)\ns_and_b32 s60, s3, 3\ns_or_b32 s60, s60, s2\ns_cmp_eq_u32 s60, 0\ns_cbranch_scc0 {lab}\nv_lshlrev_b32 v1, 8, v2")
            for n_,k in enumerate(ks):
                A(f"s_sub_u32 s60, s{64+2*k}, s64\nv_mov_b32 v4, s60\nbuffer_store_dword v4, v1, {R4(SD)}, 0 offen offset:{4*(n_+(0 if cons else 8))} sc1")
            A(f"s_waitcnt vmcnt(0)\n{lab}:")
            return
        A(f"s_waitcnt lgkmcnt(0)\ns_lshl_b32 s60, s2, 3\ns_add_u32 s60, s60, s3\ns_lshl_b32 s60, s60, 8\ns_add_u32 s60, s60, {T_OFF}\nv_mov_b32 v1, 0")
        for k in range(n): A(f"v_mov_b32 v2, s{64+2*k}\nbuffer_store_dword v2, v1, {R4(SWS)}, s60 offen offset:{4*k}")
        if cons and diag>=2:
            A(f"v_and_b32 v1, 63, v0\nv_lshlrev_b32 v1, 2, v1\nv_mov_b32 v2, {OOB}\nv_cmp_gt_u32 vcc, 192, v1\ns_nop 1\nv_cndmask_b32 v1, v2, v1, vcc")
            A(f"buffer_store_dword v254, v1, {R4(SWS)}, s60 offen offset:64")
            if diag==6: A(f"s_add_u32 s60, s60, 0x80000\nbuffer_store_dword v252, v1, {R4(SWS)}, s60 offen offset:64")
        A("s_waitcnt vmcnt(0)")
    PAD='@PAD@' if walk else 's_nop 0'
    def pad():
        if walk: A(PAD)
    def spin_tail(label):
        A(f"s_cmp_lt_u32 s58, {SPIN}\ns_cselect_b64 s[60:61], -1, 0\ns_and_b64 vcc, vcc, s[60:61]\ns_cbranch_scc1 {label}")
    WST=28672; WOFF=65536
    QS=5120 if remap else 4096
    CH=2*QS
    def physline(dst,g,tmp,A=None):
        A=A or A_main
        if remap: A(f"v_add_u32 v{tmp}, 4, v{g}\nv_mul_u32_u24 v{tmp}, 37, v{tmp}\nv_lshrrev_b32 v{tmp}, 8, v{tmp}\nv_add_u32 v{tmp}, v{tmp}, v{g}\nv_lshlrev_b32 v{dst}, 7, v{tmp}")
        else: A(f"v_lshlrev_b32 v{dst}, 7, v{g}")
    def fragoffs(base):
        A("v_and_b32 v6, 7, v2\nv_lshlrev_b32 v6, 4, v6")
        for n in range(4):
            A(f"v_lshrrev_b32 v5, 3, v2\nv_add_u32 v5, {8*n}, v5"); physline(base+n,5,4); A(f"v_add_u32 v{base+n}, v{base+n}, v6")
    A("""; Fused feed-forward: out = silu(x @ w1) @ w2, bf16 in/out, fp32 accumulate.
; @launch grid=(256,1,1) block=(512,1,1) lds=151552""")
    A('.amdgcn_target "amdgcn-amd-amdhsa--gfx950"\n.text')
    A(f".globl {NAME}\n.p2align 8\n.type {NAME},@function\n{NAME}:")
    A("s_load_dwordx8 s[4:11], s[0:1], 0\ns_load_dwordx4 s[12:15], s[0:1], 32")
    A("s_cmp_ge_u32 s2, 256\ns_cbranch_scc1 L_end")
    stamp(0); rstamp(14)
    if fast and pfc:
        A(f"s_getpc_b64 s[54:55]\nC_pc:\nv_lshlrev_b32 v3, 7, v0\ns_sub_u32 s54, s54, C_pc-{NAME}\ns_subb_u32 s55, s55, 0")
        A(f"v_min_u32 v3, L_end-{NAME}, v3\nv_lshrrev_b32 v1, 6, v0\nglobal_load_dword v255, v3, s[54:55]\nv_and_b32 v2, 63, v0")
    else: A("v_lshrrev_b32 v1, 6, v0\nv_and_b32 v2, 63, v0")
    A(f"v_readfirstlane_b32 s3, v1\ns_and_b32 s{sXcd}, s2, 7\ns_lshr_b32 s46, s2, 3")
    dec1=f"s_lshr_b32 s{sMt}, s{sXcd}, 1\ns_lshl_b32 s{sMt}, s{sMt}, 2\ns_lshr_b32 s47, s46, 3\ns_add_u32 s{sMt}, s{sMt}, s47\ns_and_b32 s{sJ}, s{sXcd}, 1"
    dec2=(f"s_and_b32 s{sFt8}, s46, 7\ns_lshl_b32 s{sFt}, s{sJ}, 3\ns_add_u32 s{sFt}, s{sFt}, s{sFt8}\n"
          f"s_lshl_b32 s{sLid}, s{sMt}, 4\ns_add_u32 s{sLid}, s{sLid}, s{sFt}\ns_xor_b32 s{sDt}, s{sJ}, 1\ns_mul_i32 s{sDt}, s{sDt}, {dswz}\ns_xor_b32 s{sDt}, s{sDt}, s{sFt8}")
    A(dec1); A(dec2)
    if fast and pf1==1:
        A("s_cmp_lt_u32 s3, 4\ns_cbranch_scc0 L_prod")
        A("v_lshrrev_b32 v15, 1, v0\ns_lshl_b32 s58, s2, 7\nv_add_u32 v15, s58, v15\nv_lshlrev_b32 v15, 7, v15\ns_waitcnt lgkmcnt(0)\nglobal_load_dword v253, v15, s[4:5]\ns_branch L_cons\nL_prod:")
    else:
        A("s_cmp_lt_u32 s3, 4\ns_cbranch_scc1 L_cons")
    sP,sKX,sKW,sLX,sLW,sRing,sCnt,sT0,sT1=46,47,48,49,50,51,52,53,54
    A(f"s_sub_u32 s{sP}, s3, 4")
    A("v_lshrrev_b32 v3, 3, v2\nv_and_b32 v4, 7, v2\nv_lshrrev_b32 v5, 4, v2\nv_xor_b32 v4, v4, v5\nv_lshlrev_b32 v4, 4, v4\nv_lshl_add_u32 v3, v3, 11, v4")
    A(f"s_lshl_b32 s{sT0}, s{sMt}, 18\ns_lshl_b32 s{sT1}, s{sP}, 16\ns_add_u32 s{sT0}, s{sT0}, s{sT1}\nv_add_u32 v8, s{sT0}, v3")
    A("v_xor_b32 v9, 64, v8\nv_add_u32 v9, 0x4000, v9\nv_add_u32 v10, 0x8000, v8\nv_add_u32 v11, 0x8000, v9")
    if not rot: A(f"s_mov_b32 s{sKX}, 0\ns_mov_b32 s{sKW}, 0")
    if rot:
        if rot in (1,2,4,5,6,7,8):
            A(f"s_lshr_b32 s{sT0}, s{sXcd}, 1\ns_lshl_b32 s{sT1}, s{sJ}, 1\ns_add_u32 s{sT0}, s{sT0}, s{sT1}\ns_and_b32 s{sT0}, s{sT0}, 3\ns_lshl_b32 s{sT0}, s{sT0}, 2")
            if rot==4: A(f"s_and_b32 s{sT0}, s{sT0}, 8")
        else: A(f"s_mov_b32 s{sT0}, 0")
        if rot>=5: A(f"s_mov_b32 s62, s{sT0}\ns_mov_b32 s60, 0\ns_mov_b32 s61, 0")
        if rot in (7,8): A(f"s_and_b32 s{sT1}, s{sMt}, 1\ns_lshl_b32 s{sT1}, s{sT1}, {rot-7}\ns_add_u32 s{sT0}, s{sT0}, s{sT1}")
        elif rot>=2: A(f"s_and_b32 s{sT1}, s{sMt}, 3\ns_add_u32 s{sT0}, s{sT0}, s{sT1}")
        A(f"s_lshl_b32 s{sKX}, s{sT0}, 7\ns_mul_i32 s{sKW}, s{sT0}, {64*7168}")
    sRX=57
    A(f"s_lshl_b32 s{sLX}, s{sP}, 12\ns_mov_b32 s{sRX}, 0\ns_mov_b32 s{SX+2}, {X_BYTES}\ns_mov_b32 s{SX+3}, 0x20000")
    A(f"s_waitcnt lgkmcnt(0)\ns_mov_b32 s{SX}, s4\ns_and_b32 s{SX+1}, s5, 0xffff")
    def nextk(c):
        if rot in (7,8):
            A(f"s_add_u32 s{c}, s{c}, 1\ns_and_b32 s{sT1}, s{c}, 8\ns_cselect_b32 s{sT0}, 1, 0\ns_xor_b32 s{sT0}, s{sT0}, s{sMt}\ns_and_b32 s{sT0}, s{sT0}, 1\ns_lshl_b32 s{sT0}, s{sT0}, {rot-7}\ns_add_u32 s{sT0}, s{sT0}, s{c}\ns_and_b32 s{sT0}, s{sT0}, 7")
            A(f"s_add_u32 s{sT0}, s{sT0}, s{sT1}\ns_add_u32 s{sT0}, s{sT0}, s62\ns_and_b32 s{sT0}, s{sT0}, 15")
            return
        if rot==6:
            A(f"s_add_u32 s{c}, s{c}, 1\ns_and_b32 s{sT1}, s{c}, 8\ns_cselect_b32 s{sT0}, 3, 0\ns_xor_b32 s{sT0}, s{sT0}, s{sMt}\ns_and_b32 s{sT0}, s{sT0}, 3\ns_add_u32 s{sT0}, s{sT0}, s{c}\ns_and_b32 s{sT0}, s{sT0}, 7")
            A(f"s_add_u32 s{sT0}, s{sT0}, s{sT1}\ns_add_u32 s{sT0}, s{sT0}, s62\ns_and_b32 s{sT0}, s{sT0}, 15")
            return
        A(f"s_add_u32 s{c}, s{c}, 1\ns_add_u32 s{sT0}, s{c}, s{sMt}\ns_and_b32 s{sT0}, s{sT0}, 3\ns_and_b32 s{sT1}, s{c}, 12\ns_add_u32 s{sT0}, s{sT0}, s{sT1}\ns_add_u32 s{sT0}, s{sT0}, s62\ns_and_b32 s{sT0}, s{sT0}, 15")
    def issueW1(part=None):
        inc=[1024,896,1024,896,1024,1280]
        ns=range(7) if part is None else (range(hd) if part==0 else range(hd,7))
        if part!=1: A(f"s_add_u32 m0, s{sRing}, s{sLW}\ns_add_u32 s{sRing}, s{sRing}, {WST}")
        else: A("s_mov_b32 m0, s1\ns_nop 0")
        for n in ns:
            a,o=n>>1,n&1
            if n<6:
                A(f"buffer_load_dwordx4 v{13+o}, {R4(SW1)}, s{sKW} offen offset:{a*128} {w1aux} lds")
                if part==0 and n==hd-1: A(f"s_add_u32 s1, m0, {inc[n]}")
                else:
                    A(f"s_add_u32 m0, m0, {inc[n]}")
                    A("s_nop 0" if n else f"s_cmp_eq_u32 s{sRing}, {WST*3}\ns_cselect_b32 s{sRing}, 0, s{sRing}")
            else:
                A(f"buffer_load_dwordx4 v12, {R4(SW1)}, s{sKW} offen {w1aux} lds\ns_add_u32 s{sKW}, s{sKW}, {64*7168}")
                if rot>=5:
                    nextk(60); A(f"s_mul_i32 s{sKW}, s{sT0}, {64*7168}\ns_add_u32 s{sKW}, s{sKW}, s59")
                elif rot: A(f"s_cmp_eq_u32 s{sKW}, s58\ns_cselect_b32 s{sKW}, s59, s{sKW}")
    def issueX():
        A(f"s_add_u32 m0, s{sRX}, s{sLX}\ns_add_u32 s{sRX}, s{sRX}, 16384")
        for n in range(4):
            A(f"buffer_load_dwordx4 v{8+n}, {R4(SX)}, s{sKX} offen {xaux} lds")
            if n<3: A("s_add_u32 m0, m0, 1024\n"+("s_nop 0" if n else f"s_and_b32 s{sRX}, s{sRX}, 0xffff"))
        if tight1: pass
        elif rot>=5:
            nextk(61); A(f"s_lshl_b32 s{sKX}, s{sT0}, 7")
        else: A(f"s_add_u32 s{sKX}, s{sKX}, 128\ns_and_b32 s{sKX}, s{sKX}, 2047")
    stamp(1)
    issueX()
    A(f"s_and_b32 s{sT0}, s{sFt8}, 1\ns_lshl_b32 s{sT1}, s{sT0}, 6")
    A("v_bfe_u32 v3, v2, 2, 3\nv_mul_u32_u24 v3, 7168, v3\nv_lshrrev_b32 v5, 5, v2\nv_and_b32 v4, 3, v2\nv_lshlrev_b32 v4, 4, v4")
    A(f"v_lshl_add_u32 v6, v5, 6, v3\nv_add3_u32 v13, v6, v4, s{sT1}\nv_xor_b32 v14, 32, v13\nv_add_u32 v14, {8*7168}, v14")
    A(f"s_xor_b32 s{sT0}, s{sT0}, 1\ns_mul_i32 s{sT0}, s{sT0}, 384\nv_lshrrev_b32 v3, 2, v2\nv_mul_u32_u24 v3, 7168, v3\nv_lshlrev_b32 v5, 5, v5\nv_xor_b32 v4, v4, v5\nv_add3_u32 v12, v3, v4, s{sT0}")
    A(f"s_mul_i32 s59, s{sP}, {16*7168}\ns_mul_i32 s{sT0}, s{sFt}, 448\ns_add_u32 s59, s59, s{sT0}\ns_add_u32 s{sKW}, s{sKW}, s59\ns_add_u32 s58, s59, {1024*7168}")
    A(f"s_mul_i32 s{sLW}, s{sP}, 7168\ns_add_u32 s{sLW}, s{sLW}, {WOFF}\ns_mov_b32 s{sRing}, {2*WST}")
    srd(A,SW1,6,W_BYTES)
    if la1 or tearly: issueW1(0)
    else: issueW1(); issueX(); issueW1()
    srd(A,SW2,8,W_BYTES); srd(A,SWS,14,0x10000000)
    if diag==5: srd(A,SD,12,256)
    sHp,sHalf=55,56
    if tlb:
        A(f"s_cmp_lt_u32 s2, {tlb}\ns_cbranch_scc0 P1_ntlb\ns_lshl_b32 s{sT0}, s{sP}, 21")
        A(f"s_add_u32 s4, s8, s{sT0}\ns_addc_u32 s5, s9, 0\ns_load_dword s0, s[4:5], 0")
        A(f"s_lshr_b32 s{sT1}, s{sT0}, 1\ns_add_u32 s4, s10, s{sT1}\ns_addc_u32 s5, s11, 0\ns_load_dword s0, s[4:5], 0")
        for b in (0, 8<<20, 16<<20, P_OFF, F_OFF):
            A(f"s_add_u32 s{sT1}, s{sT0}, {b}\ns_add_u32 s4, s14, s{sT1}\ns_addc_u32 s5, s15, 0\ns_load_dword s0, s[4:5], 0")
        A("P1_ntlb:")
    if tl0:
        A(f"s_cmp_lt_u32 s2, {tlw}\ns_cbranch_scc0 P1_nt0\ns_lshl_b32 s{sT0}, s{sP}, 21\ns_add_u32 s{sT0}, s{sT0}, {P_OFF}\ns_cmp_eq_u32 s{sP}, 3\ns_cselect_b32 s{sT0}, {F_OFF}, s{sT0}")
        A(f"s_add_u32 s4, s14, s{sT0}\ns_addc_u32 s5, s15, 0\ns_load_dword s0, s[4:5], 0\nP1_nt0:")
    A(f"s_lshr_b32 s4, s{sLid}, 3\ns_lshl_b32 s4, s4, 10\ns_add_u32 s4, s4, {F_OFF+fch*128}\ns_add_u32 s4, s14, s4\ns_addc_u32 s5, s15, 0")
    A(f"s_lshl_b32 s6, s{sMt}, 4\ns_add_u32 s6, s12, s6\ns_addc_u32 s7, s13, 0")
    def spf():
        if pf2 not in (3,4): return
        for k in range(4): A(f"s_load_dword s12, s[8:9], {k*64}")
        A(f"s_add_u32 s13, s13, 1\ns_and_b32 s{sT0}, s13, 7\ns_cselect_b32 s{sT0}, 0, {131072-2048}\ns_add_u32 s{sT0}, s{sT0}, 256\ns_add_u32 s8, s8, s{sT0}\ns_addc_u32 s9, s9, 0")
    if pf2 in (3,4):
        A(f"s_lshl_b32 s12, s2, 2\ns_add_u32 s12, s12, s{sP}")
        A(f"s_lshr_b32 s{sT0}, s12, 6\ns_mul_i32 s13, s{sT0}, 7\ns_and_b32 s{sT0}, s{sT0}, 1")
        A(f"s_xor_b32 s{sT1}, s{sT0}, 1\ns_mul_i32 s{sT1}, s{sT1}, 6\ns_add_u32 s{sT1}, s{sT1}, s13\ns_lshl_b32 s{sT1}, s{sT1}, 16\ns_and_b32 s14, s12, 63\ns_lshl_b32 s14, s14, 10\ns_add_u32 s{sT1}, s{sT1}, s14")
        A(f"s_add_u32 s14, s8, s{sT1}\ns_addc_u32 s15, s9, 0")
        A(f"s_add_u32 s13, s13, s{sT0}\ns_lshl_b32 s13, s13, 16\ns_and_b32 s12, s12, 63\ns_lshl_b32 s12, s12, 11\ns_add_u32 s13, s13, s12\ns_add_u32 s8, s8, s13\ns_addc_u32 s9, s9, 0\ns_mov_b32 s13, 0")
    A(f"s_lshr_b32 s{sHp}, s{sP}, 1\ns_and_b32 s{sHalf}, s{sP}, 1")
    A("v_subrev_u32 v5, 3, v2\nv_mul_u32_u24 v3, 37, v5\nv_lshrrev_b32 v3, 8, v3\nv_mul_u32_u24 v4, 7, v3\nv_sub_u32 v4, v5, v4")
    if skew2==3: A(f"v_add_u32 v6, s{sMt}, v3\nv_and_b32 v6, 3, v6\nv_add_u32 v4, v6, v4\nv_subrev_u32 v6, 7, v4\nv_min_u32 v4, v4, v6")
    elif skew2: A(f"s_and_b32 s{sT0}, s{sMt}, 3\ns_mul_i32 s{sT0}, s{sT0}, {3-skew2}\nv_add_u32 v4, s{sT0}, v4\nv_subrev_u32 v6, 7, v4\nv_min_u32 v4, v4, v6")
    A("v_add_u32 v4, 1, v4")
    A("v_cmp_gt_u32 vcc, 3, v2\ns_nop 1\nv_cndmask_b32 v3, v3, v2, vcc\nv_cndmask_b32 v4, v4, 0, vcc")
    A(f"v_add_u32 v4, s{sFt8}, v4\nv_and_b32 v4, 7, v4\nv_and_b32 v6, 1, v4\nv_mul_u32_u24 v4, 7, v4\nv_lshl_add_u32 v4, v3, 1, v4\nv_add3_u32 v4, v4, v6, s{sHp}")
    A(f"s_and_b32 s{sT0}, s{sMt}, {3 if skew2 else 0}\nv_add_u32 v5, s{sT0}, v2\nv_and_b32 v5, 3, v5\nv_mul_u32_u24 v5, 14, v5\nv_add3_u32 v5, v5, 6, s{sHp}")
    A("v_cmp_gt_u32 vcc, 24, v2\ns_nop 1\nv_cndmask_b32 v4, v5, v4, vcc\nv_and_b32 v4, 63, v4")
    A(f"s_mul_i32 s{sT0}, s{sJ}, 56\nv_add_u32 v4, s{sT0}, v4")
    A(f"s_mul_i32 s{sT0}, s{sMt}, {112*CH}\ns_mul_i32 s{sT1}, s{sHalf}, {QS}\ns_add_u32 s{sT0}, s{sT0}, s{sT1}")
    A(f"v_mul_u32_u24 v20, {CH}, v4\nv_add_u32 v20, s{sT0}, v20")
    A(f"s_lshl_b32 s{sT0}, s{sHalf}, 15\ns_lshl_b32 s{sT1}, s{sHalf}, 13\nv_mov_b32 v5, s{sT0}\nv_mov_b32 v6, s{sT1}\nv_cndmask_b32 v5, v6, v5, vcc")
    A(f"v_lshl_add_u32 v21, v4, 16, v5\ns_lshl_b32 s{sT0}, s{sDt}, 8\nv_add_u32 v21, s{sT0}, v21")
    A("v_and_b32 v4, 3, v2\nv_bfe_u32 v5, v2, 4, 1\nv_lshlrev_b32 v6, 1, v5\nv_xor_b32 v4, v4, v6\nv_lshlrev_b32 v4, 4, v4")
    A("v_lshrrev_b32 v6, 5, v2\nv_lshl_add_u32 v4, v6, 6, v4")
    A("v_bfe_u32 v6, v2, 2, 3\nv_lshl_add_u32 v22, v6, 11, v4\nv_add_u32 v23, 0x4000, v22")
    A("v_lshl_add_u32 v24, v5, 13, v22\nv_add_u32 v25, 0x8000, v24")
    fragoffs(26)
    if tight1:
        assert rot==8 and tearly==2 and not nsh and not la1 and spub and hsi and not two
        A(f"v_bfe_u32 v3, v2, 3, 1\nv_xor_b32 v3, s{sMt}, v3\nv_and_b32 v3, 1, v3\nv_lshl_add_u32 v3, v3, 1, v2\nv_and_b32 v3, 7, v3\nv_and_b32 v4, 8, v2\nv_add3_u32 v3, v3, v4, s62\nv_and_b32 v3, 15, v3")
        A(f"v_lshlrev_b32 v30, 7, v3\nv_mul_u32_u24 v31, {64*7168}, v3\nv_add_u32 v31, s59, v31")
    if diag==5: stamp(8)
    if tight1:
        xl=[f"buffer_load_dwordx4 v{8+n}, {R4(SX)}, s{sKX} offen {xaux} lds" for n in range(4)]
        wl=[f"buffer_load_dwordx4 v{13+(n&1)}, {R4(SW1)}, s{sKW} offen offset:{(n>>1)*128} {w1aux} lds" for n in range(6)]+[f"buffer_load_dwordx4 v12, {R4(SW1)}, s{sKW} offen {w1aux} lds"]
        inc=[1024,896,1024,896,1024,1280]
        def Wt(): A(f"s_mov_b32 m0, s1\ns_nop 0\n{wl[4]}\ns_add_u32 m0, m0, {inc[4]}\ns_nop 0\n{wl[5]}\ns_add_u32 m0, m0, {inc[5]}\ns_nop 0\n{wl[6]}")
        def Xs(fill):
            A(f"s_add_u32 m0, s{sRX}, s{sLX}\ns_add_u32 s{sRX}, s{sRX}, 16384")
            for n in range(4):
                A(xl[n])
                if n<3: A(f"s_add_u32 m0, m0, 1024\n{fill[n]}")
        assert hd==4
        andx=f"s_and_b32 s{sRX}, s{sRX}, 0xffff"
        A(f"v_readlane_b32 s{sKX}, v30, 1")
        Wt(); Xs([f"v_readlane_b32 s{sKW}, v31, 1", andx, "s_nop 0"])
        issueW1(0)
        A(f"v_readlane_b32 s{sKX}, v30, 2\ns_waitcnt vmcnt(8)")
        stamp(2)
        A("s_barrier")
        Wt(); Xs([f"v_readlane_b32 s{sKW}, v31, 2", andx, f"s_mov_b32 s{sCnt}, 2"])
        A(f"s_mov_b32 s61, {(1<<(ack+2+3))|(1<<(hsi+3))|((1<<tl) if tl else 0)}\ns_add_u32 m0, s{sRing}, s{sLW}\ns_branch P1_w")
        A(".p2align 3\nP1_loop:")
        A(f"s_bitcmp1_b32 s61, s{sCnt}\ns_cbranch_scc1 P1_hk\nP1_hkb:")
        Xs([f"v_readlane_b32 s{sKW}, v31, s{sCnt}", andx, "s_nop 0"])
        A(f"s_add_u32 m0, s{sRing}, s{sLW}\ns_waitcnt vmcnt(15)\ns_barrier\nP1_w:")
        fill=[f"s_add_u32 s{sCnt}, s{sCnt}, 1", f"s_add_u32 s{sRing}, s{sRing}, {WST}", f"v_readlane_b32 s{sKX}, v30, s{sCnt}",
              f"s_cmp_eq_u32 s{sRing}, {WST*3}\ns_cselect_b32 s{sRing}, 0, s{sRing}", "s_nop 0", f"s_cmp_lt_u32 s{sCnt}, 16"]
        for n in range(7):
            A(wl[n])
            if n<6: A(f"s_add_u32 m0, m0, {inc[n]}\n{fill[n]}")
        A("s_cbranch_scc1 P1_loop\ns_branch P1_done")
        A("P1_hk:")
        if tl:
            A(f"s_cmp_eq_u32 s{sCnt}, {tl}\ns_cbranch_scc0 P1_hk0\ns_cmp_lt_u32 s2, {tlw}\ns_cbranch_scc0 P1_hkb\ns_lshl_b32 s{sT0}, s{sP}, 21")
            A(f"s_add_u32 s12, s8, s{sT0}\ns_addc_u32 s13, s9, 0\ns_load_dword s0, s[12:13], 0")
            A(f"s_lshr_b32 s{sT1}, s{sT0}, 1\ns_add_u32 s12, s10, s{sT1}\ns_addc_u32 s13, s11, 0\ns_load_dword s0, s[12:13], 0")
            for b in (0, 8<<20, 16<<20):
                A(f"s_add_u32 s{sT1}, s{sT0}, {b}\ns_add_u32 s12, s14, s{sT1}\ns_addc_u32 s13, s15, 0\ns_load_dword s0, s[12:13], 0")
            A("s_branch P1_hkb\nP1_hk0:")
        A(f"s_cmp_eq_u32 s{sCnt}, {hsi+3}\ns_cbranch_scc0 P1_hk1\ns_cmp_eq_u32 s{sP}, 0\ns_cbranch_scc0 P1_hkb\ns_load_dwordx4 s[28:31], s[6:7], 0 {hsglc}\ns_branch P1_hkb")
        if lead: A(f"P1_hk1:\ns_lshl_b32 s1, s{sFt}, 2\ns_add_u32 s1, s1, s{sP}\ns_cmp_eq_u32 s1, 2\ns_cbranch_scc0 P1_hkb\ns_mov_b32 s1, 1\ns_atomic_or s1, s[6:7], 0\ns_branch P1_hkb")
        else: A(f"P1_hk1:\ns_cmp_eq_u32 s{sP}, 2\ns_cbranch_scc0 P1_hkb\ns_and_b32 s1, s{sFt}, 3\ns_lshl_b32 s1, s1, 3\ns_lshl_b32 s1, 1, s1\ns_and_b32 s{sT0}, s{sFt}, 12\ns_atomic_or s1, s[6:7], s{sT0}\ns_branch P1_hkb")
        A("P1_done:")
        pad()
    else:
        if la1:
            A(f"s_mov_b32 s{sCnt}, -1\ns_branch P1_in")
            A(f"P1_loop:\ns_waitcnt vmcnt({4+hd})")
            if diag: A(f"s_cmp_eq_u32 s{sCnt}, 0\ns_cbranch_scc0 P1_ns"); stamp(2); A("P1_ns:")
            A("s_barrier\nP1_in:")
            issueW1(1); issueX(); issueW1(0)
        else:
            if nsh:
                A(f"s_mov_b32 s{sCnt}, -1\ns_branch P1_shin\nP1_sh:\ns_waitcnt vmcnt({4+hd})")
                if diag: A(f"s_cmp_eq_u32 s{sCnt}, 0\ns_cbranch_scc0 P1_ns"); stamp(2); A("P1_ns:")
                A("s_barrier\nP1_shin:")
                issueW1(1); issueX()
                A(f"s_cmp_eq_u32 s{sCnt}, {nsh}\ns_cbranch_scc1 P1_in")
                issueW1(0)
                A(f"s_add_u32 s{sCnt}, s{sCnt}, 1\ns_branch P1_sh")
            else:
                if tearly==1: issueW1(1); issueX(); issueW1()
                if tearly==2: issueW1(1); issueX(); issueW1(0)
                A(f"s_waitcnt vmcnt({4+hd if tearly==2 else 11})")
                stamp(2)
                A("s_barrier")
                if tearly==2: issueW1(1)
                issueX()
                A(f"s_mov_b32 s{sCnt}, 0\ns_branch P1_in")
            A("P1_loop:\ns_waitcnt vmcnt(15)\ns_barrier\nP1_in:")
            issueW1(); issueX()
        if spub and two:
            A(f"s_lshl_b32 s{sT0}, s{sP}, 8\ns_add_u32 s{sT0}, s{sT0}, s{sCnt}\ns_cmp_eq_u32 s{sT0}, {512+4}\ns_cselect_b32 s0, 1, 0\ns_cmp_eq_u32 s{sT0}, {512+ack+2}\ns_cselect_b32 s0, 2, s0\ns_cmp_eq_u32 s0, 0\ns_cbranch_scc1 P1_npub")
            A(f"s_and_b32 s{sT0}, s{sFt}, 3\ns_lshl_b32 s{sT0}, s{sT0}, 3\ns_lshl_b32 s0, s0, s{sT0}\ns_and_b32 s{sT0}, s{sFt}, 12\ns_atomic_or s0, s[6:7], s{sT0}\nP1_npub:")
        elif spub:
            A(f"s_lshl_b32 s{sT0}, s{sP}, 8\ns_add_u32 s{sT0}, s{sT0}, s{sCnt}\ns_cmp_eq_u32 s{sT0}, {512+ack+2}\ns_cbranch_scc0 P1_npub")
            A(f"s_and_b32 s0, s{sFt}, 3\ns_lshl_b32 s0, s0, 3\ns_lshl_b32 s0, 1, s0\ns_and_b32 s{sT0}, s{sFt}, 12\ns_atomic_or s0, s[6:7], s{sT0}\nP1_npub:")
        if hsi:
            assert pf2 not in (3,4)
            A(f"s_lshl_b32 s{sT0}, s{sP}, 8\ns_add_u32 s{sT0}, s{sT0}, s{sCnt}\ns_cmp_eq_u32 s{sT0}, {hsi}\ns_cbranch_scc0 P1_nh\ns_load_dwordx4 s[28:31], s[6:7], 0 {hsglc}\nP1_nh:")
        if pf2==4:
            spf()
            A(f"s_cmp_lt_u32 s{sCnt}, 3\ns_cbranch_scc0 P1_nspf")
            spf()
            A("P1_nspf:")
        if pf2==3:
            A(f"s_sub_u32 s{sT0}, s{sCnt}, {spa}\ns_cmp_lt_u32 s{sT0}, {spb-spa}\ns_cbranch_scc0 P1_nspf")
            spf()
            A("P1_nspf:")
        A(f"s_add_u32 s{sCnt}, s{sCnt}, 1\ns_cmp_lt_u32 s{sCnt}, {14 if la1 else 13}\ns_cbranch_scc1 P1_loop")
        pad()
        A(f"s_waitcnt vmcnt({4+hd if la1 else 15})\ns_barrier")
        issueW1(1 if la1 else None)
    sW,sH,sSlot,sLW2,sLH=47,48,51,50,49
    A(f"s_lshl_b32 s{sLH}, s{sP}, 12\ns_add_u32 s{sLW2}, s{sLH}, 65536\ns_mov_b32 s{sCnt}, 0\ns_mov_b32 s{sSlot}, 0")
    def issueW():
        A(f"s_add_u32 m0, s{sLW2}, s{sSlot}\ns_nop 0")
        for n in range(4):
            o,tb=n>>1,n&1
            A(f"buffer_load_dwordx4 v{22+o}, {R4(SW2)}, s{sW} offen offset:{tb*128} {w2aux} lds")
            if n<3: A(f"s_add_u32 m0, m0, {896 if tb==0 else 1024+128}\ns_nop 0")
    def issueH():
        A(f"s_add_u32 m0, s{sLH}, s{sSlot}\ns_nop 0")
        for n in range(4):
            A(f"buffer_load_dwordx4 v{26+n}, {R4(SWS)}, s{sH} offen sc1 lds")
            if n<3: A("s_add_u32 m0, m0, 1024\ns_nop 0")
    A(f"v_readlane_b32 s{sW}, v21, 0")
    if not la1: A("s_waitcnt vmcnt(7)\ns_barrier")
    if not hsi: A(f"s_cmp_eq_u32 s{sP}, 0\ns_cbranch_scc0 P2_nh\ns_load_dwordx4 s[28:31], s[6:7], 0 glc\nP2_nh:")
    A("s_waitcnt vmcnt(0)\ns_barrier")
    def nextW(): A(f"s_add_u32 s{sCnt}, s{sCnt}, 1\ns_add_u32 s{sSlot}, s{sSlot}, 16384\nv_readlane_b32 s{sW}, v21, s{sCnt}\ns_nop 2")
    if w2e:
        A("s_branch P2_w0\nP2_w:"); nextW(); A("P2_w0:"); issueW()
        A(f"s_cmp_lt_u32 s{sCnt}, {w2e}\ns_cbranch_scc1 P2_w")
        A("s_barrier")
        pad()
        A("P2_w2:"); nextW(); issueW()
        A(f"s_cmp_lt_u32 s{sCnt}, 3\ns_cbranch_scc1 P2_w2")
    else:
        issueW()
        A("s_barrier")
        pad()
        A("P2_w:"); nextW(); issueW()
        A(f"s_cmp_lt_u32 s{sCnt}, 3\ns_cbranch_scc1 P2_w")
    A(f"s_cmp_eq_u32 s{sP}, 0\ns_cbranch_scc0 P2_hsd\ns_mov_b32 s58, 0\ns_branch P2_hsw")
    A("P2_hs:\ns_load_dwordx4 s[28:31], s[6:7], 0 glc\ns_add_u32 s58, s58, 1\nP2_hsw:\ns_waitcnt lgkmcnt(0)")
    if lead: A(f"s_cmp_ge_u32 s58, {SPIN}\ns_cbranch_scc1 P2_hsd\ns_cmp_eq_u32 s28, 1\ns_cbranch_scc0 P2_hs\nP2_hsd:")
    else:
        A(f"s_and_b32 s28, s28, s29\ns_and_b32 s30, s30, s31\ns_and_b32 s28, s28, s30\ns_and_b32 s28, s28, 0x01010101\ns_cmp_ge_u32 s58, {SPIN}\ns_cbranch_scc1 P2_hsd\ns_cmp_eq_u32 s28, 0x01010101\ns_cbranch_scc0 P2_hs\nP2_hsd:")
    A(f"s_lshr_b32 s59, s{sLid}, 3\ns_lshl_b32 s59, s59, 10\ns_add_u32 s59, s59, {F_OFF+fch*128}\ns_lshl_b32 s{sT0}, s{sFt8}, 2")
    A(f"v_mov_b32 v5, {OOB}\nv_mov_b32 v6, s{sT0}\nv_cmp_eq_u32 vcc, 0, v2\nv_and_b32 v3, 7, v2\nv_lshlrev_b32 v3, 2, v3\nv_cndmask_b32 v6, v5, v6, vcc\nv_mov_b32 v5, 1")
    A(f"v_readlane_b32 s{sH}, v20, 3\ns_waitcnt vmcnt(12)")
    stamp(3)
    A("s_barrier")
    stamp(6)
    A(f"s_cmp_eq_u32 s{sP}, 1\ns_cbranch_scc0 P2_nf\nbuffer_store_dword v5, v6, {R4(SWS)}, s59 offen sc1\ns_nop 1\nv_mov_b32 v5, 7\nP2_nf:")
    A(f"s_mov_b32 s62, 0\ns_cmp_eq_u32 s{sP}, 0\ns_cbranch_scc1 P2_p0\ns_waitcnt vmcnt(0)\ns_branch P2_go\nP2_p0:\ns_mov_b32 s58, 0")
    if pdelay: A(f"s_mov_b32 s16, 0\nP2_dl:\ns_add_u32 s16, s16, 1\ns_cmp_lt_u32 s16, {pdelay}\ns_cbranch_scc1 P2_dl")
    stamp(7)
    if vpoll:
        A(f"P2_l1:\nbuffer_load_dword v4, v3, {R4(SWS)}, s59 offen sc1\ns_add_u32 s58, s58, 1\ns_waitcnt vmcnt(0)\nv_cmp_eq_u32 vcc, 0, v4")
        spin_tail("P2_l1")
    else:
        A("P2_l1:\ns_load_dwordx8 s[16:23], s[4:5], 0 glc\ns_add_u32 s58, s58, 1\ns_waitcnt lgkmcnt(0)")
        A("s_and_b64 s[16:17], s[16:17], s[18:19]\ns_and_b64 s[20:21], s[20:21], s[22:23]\ns_and_b64 s[16:17], s[16:17], s[20:21]\ns_and_b32 s16, s16, s17")
        A(f"s_cmp_ge_u32 s58, {SPIN}\ns_cbranch_scc1 P2_rdy\ns_bitcmp1_b32 s16, 0\ns_cbranch_scc1 P2_rdy")
        if la2: A(f"s_cmp_eq_u32 s58, {npoll}\ns_cbranch_scc0 P2_l1\ns_waitcnt vmcnt(0)\ns_barrier\ns_mov_b32 s62, 1")
        A("s_branch P2_l1")
    A("P2_rdy:")
    if diag and diag!=5: stamp(9); A("s_mov_b32 s80, s58")
    A(f"s_mov_b32 m0, 49152\ns_mov_b32 s58, 0")
    A("P2_h3:")
    for n in range(4): A(f"buffer_load_dwordx4 v{26+n}, {R4(SWS)}, s{sH} offen sc1 lds\ns_add_u32 m0, m0, 1024\n"+("s_nop 0" if n<3 else f"s_add_u32 s{sH}, s{sH}, {QS}"))
    A("s_add_u32 s58, s58, 1\ns_cmp_lt_u32 s58, 4\ns_cbranch_scc1 P2_h3")
    A("P2_go:")
    pad()
    stamp(4)
    PL=f"buffer_load_dword v4, v3, {R4(SWS)}, s59 offen sc1"
    POOL=[]
    if tight2:
        assert not la2 and not two and pf2 not in (3,4) and l1epi==3
        mask=(1<<(l1st+5))|(1<<9)|(1<<10)|(1<<23)|(((1<<14)|(1<<20)) if lead else 0)
        wl=[f"buffer_load_dwordx4 v{22+(n>>1)}, {R4(SW2)}, s{sW} offen offset:{(n&1)*128} {w2aux} lds" for n in range(4)]
        hl=[f"buffer_load_dwordx4 v{26+n}, {R4(SWS)}, s{sH} offen sc1 lds" for n in range(4)]
        A(f"s_mov_b32 s{sCnt}, 4\ns_mov_b32 s57, {mask}\nv_readlane_b32 s{sW}, v21, 4\ns_mov_b32 s{sSlot}, 0\ns_mov_b32 m0, s{sLW2}\ns_branch P2_bar")
        A(".p2align 3\nP2_loop:")
        A(f"s_bitcmp1_b32 s57, s{sCnt}\ns_cbranch_scc1 P2_hk\nP2_hkb:")
        A(f"s_add_u32 m0, s{sLH}, s{sSlot}\ns_add_u32 s{sCnt}, s{sCnt}, 1")
        A(f"{hl[0]}\ns_add_u32 m0, m0, 1024\nv_readlane_b32 s{sW}, v21, s{sCnt}")
        A(f"{hl[1]}\ns_add_u32 m0, m0, 1024\ns_add_u32 s{sSlot}, s{sSlot}, 16384")
        A(f"{hl[2]}\ns_add_u32 m0, m0, 1024\ns_and_b32 s{sSlot}, s{sSlot}, 0xffff")
        A(f"{hl[3]}\ns_add_u32 m0, s{sLW2}, s{sSlot}\nP2_bar:\ns_waitcnt vmcnt(16)\ns_barrier")
        A(f"s_cmp_lt_u32 s{sCnt}, 28\ns_cbranch_scc0 P2_out")
        A(f"{wl[0]}\ns_add_u32 m0, m0, 896\nv_readlane_b32 s{sH}, v20, s{sCnt}")
        A(f"{wl[1]}\ns_add_u32 m0, m0, 1152\ns_nop 0")
        A(f"{wl[2]}\ns_add_u32 m0, m0, 896\ns_nop 0")
        A(f"{wl[3]}\ns_branch P2_loop")
        A("P2_hk:"); pad()
        A(f"s_cmp_eq_u32 s{sCnt}, 23\ns_cbranch_scc0 P2_hk1\nv_mov_b32 v22, v24\nv_mov_b32 v23, v25\ns_branch P2_hkb")
        A("P2_hk1:")
        if lead:
            A(f"s_cmp_lt_u32 s{sCnt}, 14\ns_cbranch_scc1 P2_hk1a\ns_cmp_eq_u32 s{sP}, 0\ns_cbranch_scc0 P2_hkb\ns_mov_b32 s58, 0\ns_cmp_eq_u32 s{sCnt}, 20\ns_cbranch_scc1 P2_pw")
            A(f"s_xor_b32 s4, s4, 1024\ns_xor_b32 s{sT0}, s{sFt8}, {dswz}\ns_lshl_b32 s{sT0}, s{sT0}, 2\ns_add_u32 s4, s4, s{sT0}\ns_load_dword s28, s[4:5], 0 glc\ns_branch P2_hkb")
            A(f"P2_pl:\ns_load_dword s28, s[4:5], 0 glc\ns_add_u32 s58, s58, 1\nP2_pw:\ns_waitcnt lgkmcnt(0)\ns_cmp_ge_u32 s58, {SPIN}\ns_cbranch_scc1 P2_hkb\ns_cmp_eq_u32 s28, 0\ns_cbranch_scc1 P2_pl\ns_branch P2_hkb\nP2_hk1a:")
        A(f"s_cmp_eq_u32 s{sCnt}, 9\ns_cbranch_scc0 P2_hk2\n{PL}\ns_branch P2_hkb")
        A(f"P2_hk2:\ns_cmp_eq_u32 s{sCnt}, 10\ns_cbranch_scc1 P2_hk3\ns_cmp_eq_u32 s{sP}, 1\ns_cbranch_scc0 P2_hkb\nbuffer_store_dword v5, v6, {R4(SWS)}, s59 offen sc1\ns_branch P2_hkb")
        A("P2_hk3:\ns_waitcnt vmcnt(8)\nv_cmp_gt_u32 vcc, 7, v4\ns_mov_b32 s58, 0\ns_nop 3\ns_cbranch_vccz P2_hkb")
        A(f"P2_l2:\n{PL}\ns_add_u32 s58, s58, 1\ns_waitcnt vmcnt(0)\nv_cmp_gt_u32 vcc, 7, v4")
        spin_tail("P2_l2")
        A("s_branch P2_hkb\nP2_out:")
    else:
        A(f"s_mov_b32 s{sCnt}, 4\ns_mov_b32 s57, 7")
        if la2: A("s_cmp_eq_u32 s62, 0\ns_cbranch_scc0 P2_loop\ns_waitcnt vmcnt(16)\ns_barrier")
        A("P2_loop:")
        A(f"v_readlane_b32 s{sW}, v21, s{sCnt}\nv_readlane_b32 s{sH}, v20, s{sCnt}")
        A(f"s_add_u32 s{sSlot}, s{sSlot}, 16384\ns_and_b32 s{sSlot}, s{sSlot}, 0xffff")
        A(f"s_cmp_eq_u32 s{sCnt}, 24\ns_cbranch_scc0 P2_a\nv_mov_b32 v22, v24\nv_mov_b32 v23, v25\nP2_a:")
        if la2: A(f"s_cmp_eq_u32 s{sCnt}, 4\ns_cbranch_scc1 P2_nw\ns_waitcnt vmcnt(8)\nP2_nw:\ns_barrier")
        else: A("s_waitcnt vmcnt(16)\ns_barrier")
        assert l1epi==3 or sched==9
        A(f"s_lshl_b32 s{sT0}, s{sP}, 8\ns_add_u32 s{sT0}, s{sT0}, s{sCnt}\ns_cmp_eq_u32 s{sT0}, {256+l1st+(4 if la2 else 5)}\ns_cbranch_scc0 P2_nf2\nbuffer_store_dword v5, v6, {R4(SWS)}, s59 offen sc1\nP2_nf2:")
        if two:
            A(f"s_cmp_eq_u32 s{sT0}, 14\ns_cbranch_scc0 P2_n2a\ns_load_dwordx4 s[28:31], s[6:7], 0 glc\nP2_n2a:")
            A(f"s_cmp_eq_u32 s{sT0}, 20\ns_cbranch_scc0 P2_n2b\ns_mov_b32 s58, 0\ns_branch P2_h2w\nP2_h2:\ns_load_dwordx4 s[28:31], s[6:7], 0 glc\ns_add_u32 s58, s58, 1\nP2_h2w:\ns_waitcnt lgkmcnt(0)")
            A(f"s_and_b32 s28, s28, s29\ns_and_b32 s30, s30, s31\ns_and_b32 s28, s28, s30\ns_cmp_ge_u32 s58, {SPIN}\ns_cbranch_scc1 P2_n2b\ns_cmp_eq_u32 s28, 0x03030303\ns_cbranch_scc0 P2_h2\nP2_n2b:")
        A(f"s_cmp_eq_u32 s{sCnt}, 9\ns_cbranch_scc0 P2_np\n{PL}\nP2_np:")
        A(f"s_cmp_eq_u32 s{sCnt}, 10\ns_cbranch_scc0 P2_b")
        A("s_waitcnt vmcnt(8)\nv_cmp_gt_u32 vcc, s57, v4\ns_mov_b32 s58, 0\ns_nop 3\ns_cbranch_vccz P2_ok")
        A(f"P2_l2:\n{PL}\ns_add_u32 s58, s58, 1\ns_waitcnt vmcnt(0)\nv_cmp_gt_u32 vcc, s57, v4")
        spin_tail("P2_l2")
        A("P2_ok:\ns_mov_b32 s57, 7")
        A("P2_b:")
        pad()
        issueW(); issueH()
        if pf2==3:
            A("s_cmp_eq_u32 s13, 24\ns_cselect_b32 s8, s14, s8\ns_cselect_b32 s9, s15, s9\ns_cmp_lt_u32 s13, 28\ns_cbranch_scc0 P2_nspf")
            spf()
            A("P2_nspf:")
        A(f"s_add_u32 s{sCnt}, s{sCnt}, 1\ns_cmp_lt_u32 s{sCnt}, 28\ns_cbranch_scc1 P2_loop")
    A(("" if (la2 or tight2) else "s_waitcnt vmcnt(16)\ns_barrier\n")+"s_waitcnt vmcnt(8)\ns_barrier\ns_waitcnt vmcnt(0)\ns_barrier")
    if diag: stamp(5); rstamp(15); flush(16)
    A("s_endpgm")
    A(".p2align 6\nL_cons:")
    ACC=16; F=[(128,144),(172,188)]
    vX0,vX1,vE,vO,vL=4,5,6,7,8; bX0,bE,bL=9,10,11
    sWm,sWf,sIt,sRg,sA,sB,sC=46,47,48,49,58,7,59
    sHA,sH3,sRX2,sClr,sPf=50,51,4,5,6
    vOwn,vT3,vH,vW=232,233,235,[236,237,238,239]
    if pfc and not fast:
        A(f"s_getpc_b64 s[54:55]\nC_pc:\ns_sub_u32 s54, s54, C_pc-{NAME}\ns_subb_u32 s55, s55, 0")
        A(f"v_lshlrev_b32 v3, 7, v0\nv_min_u32 v3, L_end-{NAME}, v3\nglobal_load_dword v255, v3, s[54:55]")
    if pf1==1 and not fast:
        A(f"v_and_b32 v15, 31, v2\nv_lshlrev_b32 v15, 7, v15\ns_lshl_b32 s{sA}, s2, 2\ns_add_u32 s{sA}, s{sA}, s3\ns_lshl_b32 s{sA}, s{sA}, 12")
    if pf1==3:
        A(f"v_and_b32 v15, 7, v2\nv_lshlrev_b32 v15, 7, v15\nv_bfe_u32 v14, v2, 3, 1\nv_lshl_add_u32 v15, v14, 11, v15\ns_lshl_b32 s{sA}, s2, 2\ns_add_u32 s{sA}, s{sA}, s3\ns_lshl_b32 s{sA}, s{sA}, 12\nv_mov_b32 v252, v15")
    if pf1==2:
        A(f"v_lshlrev_b32 v15, 7, v2\ns_lshr_b32 s{sA}, s2, 3\ns_lshl_b32 s{sA}, s{sA}, 2\ns_add_u32 s{sA}, s{sA}, s3\ns_lshl_b32 s{sA}, s{sA}, 13\ns_lshr_b32 s{sB}, s{sXcd}, 1\ns_lshl_b32 s{sB}, s{sB}, 20\ns_add_u32 s{sA}, s{sA}, s{sB}")
    A("s_waitcnt lgkmcnt(0)")
    if pf1 and not (fast and pf1==1):
        srd(A,SX,4,X_BYTES)
        A(f"buffer_load_dword v253, v15, {R4(SX)}, s{sA} offen")
        if pf1==3: srd(A,SW1,6,W_BYTES)
    if diag==5: stamp(6)
    A("s_setprio 1")
    A(f"s_lshr_b32 s{sWm}, s3, 1\ns_and_b32 s{sWf}, s3, 1")
    A("v_and_b32 v3, 15, v2\nv_lshrrev_b32 v12, 4, v2")
    A("v_lshrrev_b32 v13, 1, v3\nv_xor_b32 v13, v13, v12\nv_lshlrev_b32 v13, 4, v13")
    A(f"s_lshl_b32 s{sA}, s{sWm}, 13\nv_lshlrev_b32 v14, 7, v3\nv_add3_u32 v{bX0}, v13, v14, s{sA}")
    A("v_lshrrev_b32 v13, 1, v12\nv_mul_u32_u24 v13, 7168, v13\nv_bfe_u32 v15, v2, 2, 2\nv_lshl_add_u32 v13, v15, 6, v13\nv_and_b32 v15, 3, v2\nv_lshl_add_u32 v13, v15, 3, v13")
    A(f"v_and_b32 v14, 1, v12\nv_mul_u32_u24 v15, 1056, v14\ns_lshl_b32 s{sA}, s{sWf}, 9\ns_add_u32 s{sA}, s{sA}, {WOFF}\nv_add3_u32 v{bE}, v13, v15, s{sA}")
    A(f"v_mul_u32_u24 v15, 544, v14\nv_add_u32 v13, v13, v15\ns_lshl_b32 s{sA}, s{sWf}, 5\nv_xor_b32 v13, s{sA}, v13\nv_add_u32 v{bL}, {WOFF+6144}, v13")
    VF=248
    fragoffs(VF)
    A(f"v_add_u32 v{vE}, {2*WST}, v{bE}\nv_mov_b32 v{vX0}, v{bX0}\nv_add_u32 v{vL}, {2*WST}, v{bL}\nv_xor_b32 v{vO}, 32, v{vE}\nv_xor_b32 v{vX1}, 64, v{vX0}")
    srd(A,SO,10,O_BYTES); srd(A,SWS,14,0x10000000); srd(A,SW2,8,W_BYTES)
    if diag==5 or not spub: srd(A,SD,12,256)
    A("v_lshlrev_b32 v3, 4, v2")
    A(f"s_lshr_b32 s56, s{sLid}, 3\ns_lshl_b32 s56, s56, 10\ns_lshl_b32 s{sB}, s{sFt8}, 2\ns_add_u32 s56, s56, s{sB}\ns_add_u32 s56, s56, {F_OFF+fch*128}")
    if lead:
        A(f"s_cmp_eq_u32 s{sFt}, 0\ns_cselect_b32 s{sB}, 16, 0\nv_lshrrev_b32 v13, 3, v2\nv_lshlrev_b32 v13, 10, v13\nv_and_b32 v1, 7, v2\nv_lshl_add_u32 v13, v1, 2, v13")
        A(f"v_mov_b32 v1, {OOB}\nv_cmp_gt_u32 vcc, s{sB}, v2\ns_nop 1\nv_cndmask_b32 v1, v1, v13, vcc")
    else:
        A(f"v_mov_b32 v1, {OOB}\nv_cmp_eq_u32 vcc, 0, v2\ns_nop 1\nv_cndmask_b32 v1, v1, 0, vcc")
    A(f"s_andn2_b32 s57, s{sLid}, 7\ns_add_u32 s57, s57, s{sDt}\ns_lshl_b32 s57, s57, 2\ns_add_u32 s57, s57, s3\ns_mul_i32 s57, s57, {QS}\ns_add_u32 s57, s57, {P_OFF}")
    A0=A
    if late>=0: A=Asm()
    A(f"s_lshl_b32 s52, s{sWm}, 12\nv_add_u32 v{vH}, s52, v3")
    A("v_lshrrev_b32 v13, 5, v2\nv_lshlrev_b32 v13, 11, v13\nv_bfe_u32 v14, v2, 4, 1\nv_mul_u32_u24 v14, 288, v14\nv_add_u32 v13, v13, v14")
    A("v_bfe_u32 v15, v2, 2, 2\nv_lshl_add_u32 v13, v15, 6, v13\nv_and_b32 v15, 3, v2\nv_lshl_add_u32 v13, v15, 3, v13")
    A(f"s_lshl_b32 s52, s{sJ}, 1\ns_add_u32 s52, s52, s{sWf}\ns_lshl_b32 s52, s52, 9\ns_add_u32 s52, s52, 65536\nv_add_u32 v{vW[0]}, s52, v13")
    A(f"v_xor_b32 v{vW[1]}, 32, v{vW[0]}\nv_xor_b32 v{vW[2]}, 0x400, v{vW[0]}\nv_xor_b32 v{vW[3]}, 0x420, v{vW[0]}")
    A(f"s_add_u32 s62, s{sFt8}, s3\ns_and_b32 s62, s62, {rmask}\ns_add_u32 s62, s62, {l2st+5}")
    A(f"s_mul_i32 s{sHA}, s{sMt}, 112\ns_mul_i32 s{sH3}, s{sFt}, 7\ns_add_u32 s{sHA}, s{sHA}, s{sH3}\ns_and_b32 s52, s{sFt8}, 1")
    A(f"s_xor_b32 s53, s52, 1\ns_mul_i32 s53, s53, 6\ns_add_u32 s{sH3}, s{sHA}, s53\ns_add_u32 s{sHA}, s{sHA}, s52\ns_add_u32 s{sHA}, s{sHA}, s{sWf}")
    A(f"s_mul_i32 s52, s{sWm}, {QS}\ns_mul_i32 s{sHA}, s{sHA}, {CH}\ns_add_u32 s{sHA}, s{sHA}, s52\ns_mul_i32 s{sH3}, s{sH3}, {CH}\ns_add_u32 s{sH3}, s{sH3}, s52\ns_lshl_b32 s52, s{sWm}, 12")
    A(f"s_lshl_b32 s53, s{sWf}, 13\ns_add_u32 s52, s52, s53\nv_add_u32 v{vOwn}, s52, v3")
    A(f"v_bfe_u32 v13, v2, 4, 1\nv_lshlrev_b32 v13, 3, v13\nv_lshrrev_b32 v14, 5, v2\nv_lshl_add_u32 v13, v14, 1, v13\nv_bfe_u32 v14, v2, 3, 1\ns_lshl_b32 s52, s{sWf}, 2\nv_add3_u32 v13, v13, v14, s52")
    A("v_add_u32 v14, 16, v13\nv_and_b32 v15, 7, v2\nv_lshlrev_b32 v15, 4, v15")
    physline(vT3,13,12,A); physline(vT3+1,14,12,A)
    A(f"v_add_u32 v{vT3}, v{vT3}, v15\nv_add_u32 v{vT3+1}, v{vT3+1}, v15")
    A("v_mov_b32 v12, 1\ns_mov_b32 s52, 0xbfb8aa3b\ns_mov_b32 s53, 0xbfb8aa3b\ns_mov_b32 s54, 1.0\ns_mov_b32 s55, 1.0")
    if late>=0:
        LATE=A.text().rstrip(); A=A0
        A(f"v_mov_b32 v{vT3}, {OOB}\nv_mov_b32 v{vT3+1}, {OOB}")
    for r in range(112): A(f"v_mov_b32 v{ACC+r}, 0")
    for r in range(4): A(f"v_mov_b32 v{244+r}, -1")
    def hook(it, body, name, reg=None):
        OOL.append(f"{name}:\n{body}\ns_branch {name}_b")
        return [f"s_cmp_eq_u32 s{reg or sIt}, {it}", f"s_cbranch_scc1 {name}\n{name}_b:"]
    def reads1(u, fs):
        X,W=F[fs]
        xs=[f"ds_read_b128 {vr(X+4*i,4)}, v{vX1 if u else vX0} offset:{i*2048}" for i in range(4)]
        ws=[]
        for j in range(7):
            a,o=(vL,0) if j==6 else ((vO if j&1 else vE),(j>>1)*2048)
            for hh in range(2): ws.append(f"ds_read_b64_tr_b16 {vr(W+4*j+2*hh,2)}, v{a} offset:{u*14336+o+hh*256}")
        return ws[0:2]+xs+ws[2:]
    def mf1(fs):
        X,W=F[fs]
        return [f"v_mfma_f32_16x16x32_bf16 {vr(ACC+(j*4+i)*4,4)}, {vr(W+4*j,4)}, {vr(X+4*i,4)}, {vr(ACC+(j*4+i)*4,4)}" for j,i in snake(range(7),4)]
    A(f"s_mov_b32 s{sIt}, 0\ns_mov_b32 s{sRg}, {2*WST}\ns_mov_b32 s{sRX2}, 0\ns_lshl_b32 s{sClr}, s3, {1 if cmask==7 else 0}\ns_add_u32 s{sClr}, s{sClr}, s{sFt8}\ns_and_b32 s{sClr}, s{sClr}, {cmask}\ns_add_u32 s{sClr}, s{sClr}, {cbase}")
    if two: A(f"s_mov_b32 s0, {1|4|(1<<ack)}")
    A(f"s_mul_i32 s{sPf}, s3, {pfb}\ns_add_u32 s{sPf}, s{sPf}, {pfa}")
    if pf2==2: A(f"v_min_u32 v15, 55, v2\nv_lshlrev_b32 v15, 7, v15\ns_lshl_b32 s{sA}, s2, 2\ns_add_u32 s{sA}, s{sA}, s3\ns_mul_i32 s{sA}, s{sA}, 7168\nbuffer_load_dword v255, v15, {R4(SW2)}, s{sA} offen")
    if diag in (2,3,6): A("s_mov_b32 m0, 0")
    clr="\n".join([f"buffer_store_dwordx4 v[244:247], v{VF+i}, {R4(SWS)}, s57 offen sc1" for i in range(4)])
    fclr=f"v_mov_b32 v13, 0\nbuffer_store_dword v13, v1, {R4(SWS)}, s56 offen sc1"
    if sep: assert lead; A(fclr)
    elif not two: clr=clr+"\n"+fclr
    if clr0: A(clr)
    if diag==5: stamp(8)
    if walk:
        A(f"s_cmp_ge_u32 s3, {walk}\ns_cbranch_scc1 C_walked\ns_waitcnt vmcnt({(1 if pf1 else 0)+(1 if sep else 0)})\ns_mov_b64 exec, 0")
        for w in range(walk-1): A(f"s_cmp_eq_u32 s3, {w}\ns_cbranch_scc1 @START{w}@")
        A(f"s_branch @START{walk-1}@\nC_wret:\ns_mov_b64 exec, -1\nC_walked:")
    if diag==5: stamp(9)
    A("s_barrier")
    stamp(1)
    for l in reads1(0,0): A(l)
    A("s_waitcnt lgkmcnt(0)")
    A(".p2align 3\nC1_loop:")
    sstamp()
    ex=[f"s_add_u32 s{sRg}, s{sRg}, {WST}\ns_add_u32 s{sRX2}, s{sRX2}, 16384", f"s_cmp_eq_u32 s{sRg}, {WST*3}\ns_cselect_b32 s{sRg}, 0, s{sRg}",
        f"v_add_u32 v{vE}, s{sRg}, v{bE}\ns_and_b32 s{sRX2}, s{sRX2}, 0xffff", f"v_add_u32 v{vX0}, s{sRX2}, v{bX0}", f"v_add_u32 v{vL}, s{sRg}, v{bL}",
        f"v_xor_b32 v{vO}, 32, v{vE}", f"v_xor_b32 v{vX1}, 64, v{vX0}"]
    if not clr0: ex+=hook(f"s{sClr}" if stag else 2,clr,"H1_clr")
    for l in interleave(mf1(0), reads1(1,1)+ex): A(l)
    A("s_waitcnt lgkmcnt(0)\ns_barrier")
    pub=(f"s_cmp_eq_u32 s3, 0\ns_cbranch_scc0 H1_pub_b\ns_and_b32 s{sA}, s{sLid}, 3\ns_lshl_b32 s{sA}, s{sA}, 3\ns_lshl_b32 s{sA}, 1, s{sA}\nv_mov_b32 v13, s{sA}\n"
         f"s_andn2_b32 s{sA}, s{sLid}, 3\nv_lshlrev_b32 v14, 8, v2\nbuffer_atomic_or v13, v14, {R4(SD)}, s{sA} offen")
    if two:
        h=hook(0,f"s_cmp_eq_u32 s{sIt}, 0\ns_cbranch_scc1 H1_fc\ns_waitcnt vmcnt(0)\ns_branch H1_ack_b\nH1_fc:\n{fclr}","H1_ack")
        h[0]=f"s_bitcmp1_b32 s0, s{sIt}"
    else: h=hook(ack,"s_waitcnt vmcnt(0)","H1_ack")
    ex=h+([] if spub else hook(ack+1,pub,"H1_pub"))
    if late>=0: ex+=hook(late,(PAD+"\n" if walk else "")+LATE,"H1_late")
    if xp_n: ex+=hook(xp_it,f"s_sleep {xp_n}","H1_xp")
    if pf1==3:
        nl=(16-w1s)*64*56//1024
        ex+=hook(pfi,f"s_lshl_b32 s{sA}, s2, 2\ns_add_u32 s{sA}, s{sA}, s3\ns_mul_i32 s{sB}, s{sA}, {nl*128}\ns_add_u32 s{sB}, s{sB}, {w1s*64*7168}\ns_lshl_b32 s{sA}, s{sA}, 12\n"
                     f"v_min_u32 v15, {nl-1}, v2\nv_lshlrev_b32 v15, 7, v15\nbuffer_load_dword v255, v15, {R4(SW1)}, s{sB} offen\nbuffer_load_dword v253, v252, {R4(SX)}, s{sA} offen offset:1024","H1_pf1")
    if pf2==4:
        ex+=hook(f"s{sPf}",f"s_lshl_b32 s{sA}, s2, 2\ns_add_u32 s{sA}, s{sA}, s3\ns_lshr_b32 s{sB}, s{sA}, 6\ns_and_b32 s60, s{sB}, 1\ns_mul_i32 s{sB}, s{sB}, 7\n"
                     f"s_add_u32 s61, s{sB}, s60\ns_add_u32 s61, s61, 4\ns_lshl_b32 s61, s61, 16\ns_xor_b32 s60, s60, 1\ns_mul_i32 s60, s60, 6\ns_add_u32 s{sB}, s{sB}, s60\ns_lshl_b32 s{sB}, s{sB}, 16\n"
                     f"s_and_b32 s{sA}, s{sA}, 63\ns_lshl_b32 s60, s{sA}, 11\ns_add_u32 s61, s61, s60\ns_lshl_b32 s60, s{sA}, 10\ns_add_u32 s{sB}, s{sB}, s60\n"
                     f"v_and_b32 v15, 15, v2\nv_lshlrev_b32 v15, 7, v15\nv_and_b32 v14, 7, v2\nv_lshlrev_b32 v14, 7, v14\n"
                     f"buffer_load_dword v255, v15, {R4(SW2)}, s61 offen\nbuffer_load_dword v253, v14, {R4(SW2)}, s{sB} offen","H1_pf")
    if pf2==1:
        ex+=hook(f"s{sPf}",f"v_min_u32 v15, 55, v2\nv_lshlrev_b32 v15, 7, v15\ns_lshl_b32 s{sA}, s2, 2\ns_add_u32 s{sA}, s{sA}, s3\ns_mul_i32 s{sA}, s{sA}, 7168\nbuffer_load_dword v255, v15, {R4(SW2)}, s{sA} offen","H1_pf")
    ex+=([PAD] if walk else [])+[f"s_add_u32 s{sIt}, s{sIt}, 1", f"s_cmp_lt_u32 s{sIt}, 16"]
    x=interleave(mf1(1), reads1(0,0)+ex)
    if x[-1].startswith("v_mfma"):
        for l in x[:-1]: A(l)
        A("s_waitcnt lgkmcnt(0)"); A(x[-1])
    else:
        for l in x: A(l)
        A("s_waitcnt lgkmcnt(0)")
    A("s_cbranch_scc1 C1_loop")
    stamp(2)
    T=216
    def silu(a, b, D):
        t=T; src=[a,a+2,b,b+2]
        for r in range(4): A(f"v_pk_mul_f32 {vr(t+2*r,2)}, s[52:53], {vr(src[r],2)}")
        for r in range(8): A(f"v_exp_f32 v{t+r}, v{t+r}")
        for r in range(4): A(f"v_pk_add_f32 {vr(t+2*r,2)}, s[54:55], {vr(t+2*r,2)}")
        for r in range(8): A(f"v_rcp_f32 v{t+r}, v{t+r}")
        for r in range(4): A(f"v_pk_mul_f32 {vr(t+2*r,2)}, {vr(t+2*r,2)}, {vr(src[r],2)}")
        for r in range(4): A(f"v_cvt_pk_bf16_f32 v{D+r}, v{t+2*r}, v{t+2*r+1}")
    def gst(D,i): return f"buffer_store_dwordx4 {vr(D,4)}, v{VF+i}, {R4(SWS)}, s{sHA} offen sc1"
    FLAG="s_nop 0"
    DL=[160,128,144]; D3=224
    for L in range(3):
        for i in range(4):
            D=DL[L]+4*i
            if i%2==0: pad()
            silu(ACC+((2*L)*4+i)*4, ACC+((2*L+1)*4+i)*4, D)
            if L==0 or (L==2 and l1epi>=2) or (L==1 and i>=nb and l1epi): A(gst(D,i))
            A(f"ds_write_b128 v{vOwn}, {vr(D,4)} offset:{L*16384+i*1024}")
            if L==1 and i==nb-1:
                stamp(11); A("s_waitcnt vmcnt(0)"); stamp(12)
                A(f"s_add_u32 s{sHA}, s{sHA}, {2*CH}\ns_waitcnt lgkmcnt(0)\ns_barrier")
                if l1epi:
                    for k in range(nb): A(gst(128+4*k,k))
        if L==1 and l1epi: A(f"s_add_u32 s{sHA}, s{sHA}, {2*CH}")
    F2=[(160,176),(192,208)]
    def rdH(X,slot,u): return [f"ds_read_b128 {vr(X+4*i,4)}, v{vH} offset:{slot*16384+u*8192+i*1024}" for i in range(4)]
    def rdW(W,slot,u,js): return [f"ds_read_b64_tr_b16 {vr(W+4*n+2*hh,2)}, v{vW[j]} offset:{slot*16384+(4*u+2*hh)*2048}" for n,j in enumerate(js) for hh in range(2)]
    def reads2(slot,u,fs):
        X,W=F2[fs]; ws=rdW(W,slot,u,range(4)); return ws[0:2]+rdH(X,slot,u)+ws[2:]
    def mfm(X,W,js,zero=False,w0=0):
        return [f"v_mfma_f32_16x16x32_bf16 {vr(ACC+(j*4+i)*4,4)}, {vr(W+4*(j-w0),4)}, {vr(X+4*i,4)}, {'0' if zero else vr(ACC+(j*4+i)*4,4)}" for j,i in snake(js,4)]
    def mf2(fs,zero=False): return mfm(F2[fs][0],F2[fs][1],range(4),zero)
    for l in reads2(0,0,0): A(l)
    for ip in range(2):
        D=D3+4*ip; a=ACC+(24+2*ip)*4
        if ip==0: pad()
        silu(a,a+4,D)
        A(f"s_nop 1\nv_permlane16_swap_b32 v{D}, v{D+2}\nv_permlane16_swap_b32 v{D+1}, v{D+3}")
        if l1epi>=3: A(f"buffer_store_dwordx4 {vr(D,4)}, v{vT3+ip}, {R4(SWS)}, s{sH3} offen sc1")
    A(f"v_mov_b32 v12, {7 if l1epi==3 else 3}\ns_mov_b32 s{sIt}, 0")
    stamp(3); stamp(4)
    sstamp()
    A("s_waitcnt lgkmcnt(0)")
    for l in interleave(mf2(0,True), reads2(0,1,1)+([PAD] if walk else [])): A(l)
    A("s_branch C2_in")
    dw={}; dws={}
    t3st=[f"buffer_store_dwordx4 {vr(D3+4*ip,4)}, v{vT3+ip}, {R4(SWS)}, s{sH3} offen sc1" for ip in range(2)]
    ADV=f"\ns_add_u32 s{sHA}, s{sHA}, {2*CH}"
    L1s=[gst(128+4*i,i) for i in range(4)]; L2s=[gst(144+4*i,i) for i in range(4)]
    F3=f"s_waitcnt vmcnt(0)\n{FLAG}"; F7=f"v_mov_b32 v12, 7\ns_waitcnt vmcnt(0)\n{FLAG}"
    J="\n".join
    if sched==1:
        dw[(0,1)]=J(L1s[:2]); dw[(1,0)]=J(L1s[2:])+ADV; dw[(1,1)]=J(L2s[:2]); dw[(2,0)]=J(L2s[2:]); dw[(2,1)]=J(t3st); dw[(4,0)]=F7
    elif sched==2:
        dw[(0,1)]=J(L1s[:2]); dw[(1,0)]=J(L1s[2:])+ADV; dw[(3,0)]=F3
        dw[(3,1)]=L2s[0]; dw[(4,0)]=L2s[1]; dw[(4,1)]=L2s[2]; dw[(5,0)]=L2s[3]; dw[(5,1)]=t3st[0]; dw[(6,0)]=t3st[1]; dw[(10,0)]=F7
    elif sched==3:
        dw[(0,1)]=L1s[0]; dw[(1,0)]=L1s[1]; dw[(1,1)]=L1s[2]; dw[(2,0)]=L1s[3]+ADV; dw[(3,1)]=F3
        dw[(4,0)]=L2s[0]; dw[(4,1)]=L2s[1]; dw[(5,0)]=L2s[2]; dw[(5,1)]=L2s[3]; dw[(6,0)]=t3st[0]; dw[(6,1)]=t3st[1]; dw[(11,0)]=F7
    elif sched==4:
        dw[(0,1)]=J(L1s)+ADV; dw[(1,1)]=J(L2s); dw[(2,1)]=J(t3st); dw[(4,0)]=F7
    elif sched==9:
        dw[(1,1)]=F7
    elif sched==5:
        dw[(0,1)]=J(L2s[:2]); dw[(1,0)]=J(L2s[2:]); dw[(1,1)]=J(t3st); dw[(3,1)]=F7
    else:
        if not l1epi:
            dw[(l1st,0)]=gst(128,0)+"\n"+gst(132,1); dw[(l1st,1)]=gst(136,2)+"\n"+gst(140,3)+f"\ns_add_u32 s{sHA}, s{sHA}, {2*CH}"
            dw[(l1st+2,1)]=f"s_waitcnt vmcnt(0)\n{FLAG}"
        else:
            dw[(l1st,1)]=f"s_waitcnt vmcnt(0)\n{FLAG}"
        if l1epi>=2:
            if l1epi==2: dw[(l2st,0)]="\n".join(t3st)
            if l1epi==2: dw[(f3,1)]=f"v_mov_b32 v12, 7\ns_waitcnt vmcnt(0)\n{FLAG}"
        elif not stag2:
            dw[(l2st,0)]=gst(144,0)+"\n"+gst(148,1); dw[(l2st+1,0)]=gst(152,2)+"\n"+gst(156,3)+"\nv_mov_b32 v12, 7"
            dw[(l2st+2,0)]="\n".join(t3st)
            dw[(l2st+5,1)]=f"s_waitcnt vmcnt(0)\n{FLAG}"
        else:
            dw[(f3,1)]=f"v_mov_b32 v12, 7\ns_waitcnt vmcnt(0)\n{FLAG}"
            body=[gst(144+4*i,i) for i in range(4)]+t3st
            o="H2_st:\n"
            for n,b in enumerate(body):
                o+=f"s_cmp_eq_u32 s62, {5-n}\ns_cbranch_scc0 H2_st{n}\n{b}\nH2_st{n}:\n"
            o+="s_setpc_b64 s[54:55]"
            OOL.append(o)
    def hooks2(slot,u):
        ex=[]
        for (q,uu),body in sorted(dw.items()):
            if q%4==slot and uu==u: ex+=hook(q//4,body,f"H2_{q}_{uu}")
        if stag2 and l1epi<2 and u==0 and not sched:
            ex+=["s_sub_u32 s62, s62, 1\ns_cmp_lt_u32 s62, 6", f"s_cbranch_scc1 H2_go{slot}\nH2_ns{slot}:"]
            OOL.append(f"H2_go{slot}:\ns_call_b64 s[54:55], H2_st\ns_branch H2_ns{slot}")
        assert len(ex)<=4, (slot,u,ex)
        return ex
    A(".p2align 3\nC2_loop:")
    for slot in range(4):
        sstamp()
        for l in interleave(mf2(0), reads2(slot,1,1)+hooks2(slot,0)+([PAD] if walk else [])): A(l)
        if slot==0: A("C2_in:")
        A("s_waitcnt lgkmcnt(0)\ns_barrier")
        ex=hooks2(slot,1)
        if slot==3: ex+=[f"s_add_u32 s{sIt}, s{sIt}, 1", f"s_cmp_lt_u32 s{sIt}, 6"]
        x=interleave(mf2(1), reads2((slot+1)&3,0,0)+ex)
        if x[-1].startswith("v_mfma"):
            for l in x[:-1]: A(l)
            A("s_waitcnt lgkmcnt(0)"); A(x[-1])
        else:
            for l in x: A(l)
            A("s_waitcnt lgkmcnt(0)")
    A("s_cbranch_scc1 C2_loop")
    stamp(13)
    if diag: A("s_waitcnt lgkmcnt(0)")
    G=[dict(H=[160,80],W=[184,96]), dict(H=[192,104],W=[208,216])]
    def rdS(g,slot,js,us=(0,1)):
        o=[]
        for u in us:
            w=rdW(G[g]['W'][u],slot,u,js); o+=w[0:2]+rdH(G[g]['H'][u],slot,u)+w[2:]
        return o
    def mfS(g,js): return mfm(G[g]['H'][0],G[g]['W'][0],js,w0=js[0])+mfm(G[g]['H'][1],G[g]['W'][1],js,w0=js[0])
    for l in rdS(0,0,(2,3),(1,)): A(l)
    pad()
    A("s_barrier")
    m=mfS(0,(2,3)); r=rdS(1,1,(2,3))
    x=interleave(m[:8], r[:8])
    for l in x: A(l)
    A("s_waitcnt lgkmcnt(8)")
    for l in interleave(m[8:], r[8:]): A(l)
    for q in (1,2):
        if q==2: pad()
        A("s_waitcnt lgkmcnt(0)\ns_barrier")
        for l in interleave(mfS(q&1,(2,3)), rdS((q+1)&1,q+1,(2,3))): A(l)
    A(f"s_mul_i32 s52, s{sJ}, {-2*32*QS}\ns_add_u32 s52, s52, {32*QS}\ns_add_u32 s52, s52, s57\ns_mov_b32 s53, -2")
    sn=[]
    for i in range(4):
        D=128+4*i; t=[]
        for n,j in enumerate((2,3)):
            S=ACC+(j*4+i)*4
            t+= [f"v_cvt_pk_bf16_f32 v{D+2*n}, v{S}, v{S+1}", f"v_cvt_pk_bf16_f32 v{D+2*n+1}, v{S+2}, v{S+3}"]
        t+=[f"v_min_u32 v{D+r}, s53, v{D+r}" for r in range(4)]
        t.append(f"buffer_store_dwordx4 {vr(D,4)}, v{VF+i}, {R4(SWS)}, s52 offen sc1")
        sn.append(t)
    A("s_waitcnt lgkmcnt(0)")
    if esend:
        g=G[1]; r=rdS(0,0,(0,1)); k=0
        for i in range(4):
            for u,j in ((0,2),(0,3),(1,3),(1,2)):
                A(f"v_mfma_f32_16x16x32_bf16 {vr(ACC+(j*4+i)*4,4)}, {vr(g['W'][u]+4*(j-2),4)}, {vr(g['H'][u]+4*i,4)}, {vr(ACC+(j*4+i)*4,4)}")
                A(r[k]); k+=1
            if i>=1:
                for l in sn[i-1]: A(l)
        stamp(5)
        pad()
        A("s_waitcnt lgkmcnt(0)")
        m=mfS(0,(0,1)); r=rdS(1,1,(0,1))
        for n,mm_ in enumerate(m):
            A(mm_); A(r[n])
            if n==2:
                for l in sn[3]: A(l)
    else:
        for l in interleave(mfS(1,(2,3)), rdS(0,0,(0,1))): A(l)
        stamp(5)
        pad()
        snd=sum(sn,[])
        A("s_waitcnt lgkmcnt(0)")
        m=mfS(0,(0,1)); r=rdS(1,1,(0,1))
        k=0
        for n,mm_ in enumerate(m):
            A(mm_); A(r[n])
            if packfirst and n==1:
                A("s_nop 3")
                while k<len(snd): A(snd[k]); k+=1
            if n>=3:
                for _ in range(3):
                    if k<len(snd): A(snd[k]); k+=1
        while k<len(snd): A(snd[k]); k+=1
    if diag!=5: stamp(6)
    RB=144 if dual else 80; RB2=224
    def LDs(b): return [f"buffer_load_dwordx4 {vr(b+4*i,4)}, v{VF+i}, {R4(SWS)}, s57 offen sc1" for i in range(4)]
    LD=LDs(RB)
    for q in (1,2):
        pad()
        A("s_waitcnt lgkmcnt(0)")
        x=interleave(mfS(q&1,(0,1)), rdS((q+1)&1,q+1,(0,1)))
        if dual==q:
            for n in range(4): x.insert(2+3*n+n,LD[n])
        for l in x: A(l)
    A("s_waitcnt lgkmcnt(0)")
    adr=["v_and_b32 v13, 15, v2","v_lshlrev_b32 v13, 11, v13","v_bfe_u32 v14, v2, 4, 1","v_lshl_add_u32 v13, v14, 5, v13","v_lshrrev_b32 v14, 5, v2","v_lshl_add_u32 v13, v14, 4, v13",
         f"s_lshl_b32 s{sC}, s{sMt}, 1\ns_add_u32 s{sC}, s{sC}, s{sWm}", f"s_lshl_b32 s{sC}, s{sC}, 17\ns_lshl_b32 s52, s{sDt}, 8", f"s_add_u32 s{sC}, s{sC}, s52\ns_lshl_b32 s52, s{sJ}, 7",
         f"s_add_u32 s{sC}, s{sC}, s52\ns_lshl_b32 s52, s{sWf}, 6", f"s_add_u32 s{sC}, s{sC}, s52\ns_mov_b32 s58, 0"]
    def chk():
        A(f"v_max3_u32 v14, v{RB}, v{RB+1}, v{RB+2}")
        for r in range(3,15,2): A(f"v_max3_u32 v14, v14, v{RB+r}, v{RB+r+1}")
        A(f"v_max_u32 v14, v14, v{RB+15}\nv_cmp_eq_u32 vcc, -1, v14")
    if dual:
        for l in interleave(mfS(1,(0,1)), LDs(80)+adr): A(l)
        A("s_waitcnt vmcnt(4)"); chk()
        A("s_nop 4\ns_cbranch_vccz C3_ok\ns_waitcnt vmcnt(0)")
        for r in range(16): A(f"v_mov_b32 v{RB+r}, v{80+r}")
    else:
        for l in interleave(mfS(1,(0,1)), adr[:ldpos]+LD+adr[ldpos:]): A(l)
    pad()
    A("s_branch C3_chk")
    A("C3_poll:")
    for l in LD: A(l)
    A("C3_chk:\ns_add_u32 s58, s58, 1\ns_waitcnt vmcnt(0)")
    chk()
    spin_tail("C3_poll")
    A("C3_ok:")
    stamp(7)
    if diag!=5: stamp(8)
    A("s_mov_b32 s53, 0xffff0000")
    for i in range(4):
        D=128+4*i
        for n in range(2):
            S=ACC+(n*4+i)*4
            for h in range(2):
                Rr=RB+4*i+2*n+h
                A(f"v_lshlrev_b32 v{T}, 16, v{Rr}\nv_and_b32 v{T+1}, s53, v{Rr}\nv_pk_add_f32 {vr(S+2*h,2)}, {vr(S+2*h,2)}, {vr(T,2)}")
                A(f"v_cvt_pk_bf16_f32 v{D+2*n+h}, v{S+2*h}, v{S+2*h+1}")
        A(f"s_nop 1\nv_permlane16_swap_b32 v{D}, v{D+2}\nv_permlane16_swap_b32 v{D+1}, v{D+3}")
        A(f"buffer_store_dwordx4 {vr(D,4)}, v13, {R4(SO)}, s{sC} offen {outaux}")
        if i<3: A(f"s_add_u32 s{sC}, s{sC}, 0x8000")
        if i==0: pad()
    if diag:
        if diag!=5: stamp(9)
        A("s_waitcnt vmcnt(0)"); stamp(10); rstamp(15); flush(16,True)
    A("s_endpgm")
    if walk: A(PAD+"\ns_endpgm")
    for b in OOL: A(b)
    A("L_end:\ns_endpgm")
    A(f""".section .rodata,"a"
.p2align 6
.amdhsa_kernel {NAME}
  .amdhsa_next_free_vgpr 256
  .amdhsa_next_free_sgpr 96
  .amdhsa_accum_offset 256
  .amdhsa_group_segment_fixed_size 0
  .amdhsa_kernarg_size 48
  .amdhsa_user_sgpr_count 2
  .amdhsa_user_sgpr_kernarg_segment_ptr 1
  .amdhsa_system_sgpr_workgroup_id_x 1
.end_amdhsa_kernel""")
    txt=A.text()
    if walk:
        n=txt.count("@PAD@"); parts=txt.split("@PAD@")
        starts=[round(w*n/walk) for w in range(walk)]
        out=parts[0]
        for k in range(n):
            nxt="C_wret" if (k+1==n or k+1 in starts) else f"PAD{k+1}"
            out+=f"PAD{k}:\ns_cbranch_execz {nxt}"+parts[k+1]
        for w in range(walk): out=out.replace(f"@START{w}@",f"PAD{starts[w]}")
        txt=out
    return txt

if __name__=="__main__":
    import inspect
    p=argparse.ArgumentParser(); p.add_argument("-o")
    for k,v in inspect.signature(build).parameters.items():
        p.add_argument("--"+k,type=type(v.default),default=v.default)
    a=vars(p.parse_args()); o=a.pop("o")
    open(o,"w").write(build(**a))
```

```python
import sys, argparse
NAME="standalone__dense_activation_silu__prompt_kernel"
class Asm:
    def __init__(self): self.L=[]
    def __call__(self, s):
        for l in s.split("\n"): self.L.append(l)
    def text(self): return "\n".join(self.L)+"\n"
def vr(a,n): return f"v[{a}:{a+n-1}]"
def srd(A, d, b, nbytes):
    A(f"s_mov_b32 s{d}, s{b}\ns_and_b32 s{d+1}, s{b+1}, 0xffff\ns_mov_b32 s{d+2}, {nbytes}\ns_mov_b32 s{d+3}, 0x20000")
X_BYTES=2048*1024*2; W_BYTES=1024*3584*2; O_BYTES=2048*1024*2
H_OFF=0; P_OFF=24<<20; F_OFF=48<<20; T_OFF=64<<20
SX,SW1,SW2,SO,SD,SWS=16,20,24,28,32,36
sMt,sJ,sFt8,sFt,sLid,sXcd,sDt=40,41,42,43,44,45,63
OOB=0x7ffffff0
SPIN=1<<17
def R4(s): return f"s[{s}:{s+3}]"

def interleave(mf, rd):
    out=[]; k=0
    for m in mf:
        out.append(m)
        if k<len(rd): out.append(rd[k]); k+=1
    return out+rd[k:]
ORDER='ji'
def snake(JS,NI):
    JS=list(JS)
    if ORDER=='ij': return [(j,i) for i in range(NI) for j in (JS if i%2==0 else JS[::-1])]
    return [(j,(i if n%2==0 else NI-1-i)) for n,j in enumerate(JS) for i in range(NI)]

def build(diag=0, rot=1, pf1=0, pf2=1, pfc=1, outaux="sc1", pfa=13, dswz=0, w1aux="", xaux="", w2aux="", l1st=1, l2st=4, stag=1, l1epi=1, rmask=1, f3=9, skew2=1, pfb=0, stag2=1, remap=1, spa=0, spb=13, spn=4, ack=6, ldearly=1, pfi=0, w1s=6, sched=0, fch=6, pdelay=0, nb=4, clr0=0, dual=0, tlb=0, packfirst=1, spub=1, vpoll=0, hsi=12, hsglc='', cmask=1, cbase=1, walk=2, w2e=0, order='ji', esend=1, ldpos=0, fast=1, la1=0, hd=4, la2=0, npoll=2, tearly=2, nsh=0, two=0, tight2=1, tight1=1, lead=1, tl=0, tlw=16, tl0=0, sep=1, xp_it=0, xp_n=0, late=-1, sl2=0, cprio=1, pprio=0, al=3, pj=1, w6=0, late2=0):
    global ORDER; ORDER=order
    assert ack+2!=hsi and tl not in (ack+5,hsi+3) and ack+2<=12 and (cbase+cmask<ack or sep) and nsh<=(4 if two else ack+2)
    A=Asm(); A_main=A; OOL=[]
    tm='s_memrealtime' if diag>=3 else 's_memtime'
    def stamp(k):
        if diag: A(f"{tm} s[{64+2*k}:{65+2*k}]")
    def rstamp(k):
        if diag: A(f"s_memrealtime s[{64+2*k}:{65+2*k}]")
    def sstamp():
        if diag==6: A(f"s_memtime s[90:91]\ns_memrealtime s[88:89]\ns_waitcnt lgkmcnt(0)\nv_writelane_b32 v254, s90, m0\nv_writelane_b32 v252, s88, m0\ns_add_u32 m0, m0, 1")
        if diag in (2,3): A(f"{tm} s[90:91]\ns_waitcnt lgkmcnt(0)\nv_writelane_b32 v254, s90, m0\ns_add_u32 m0, m0, 1")
    def flush(n, cons=False):
        if not diag: return
        if diag==5:
            ks=[6,8,9,1,2,4,5,10] if cons else [1,8,2,3,4,5]
            lab="DB_c" if cons else "DB_p"
            A(f"s_waitcnt lgkmcnt(0)\ns_and_b32 s60, s3, 3\ns_or_b32 s60, s60, s2\ns_cmp_eq_u32 s60, 0\ns_cbranch_scc0 {lab}\nv_lshlrev_b32 v1, 8, v2")
            for n_,k in enumerate(ks):
                A(f"s_sub_u32 s60, s{64+2*k}, s64\nv_mov_b32 v4, s60\nbuffer_store_dword v4, v1, {R4(SD)}, 0 offen offset:{4*(n_+(0 if cons else 8))} sc1")
            A(f"s_waitcnt vmcnt(0)\n{lab}:")
            return
        A(f"s_waitcnt lgkmcnt(0)\ns_lshl_b32 s60, s2, 3\ns_add_u32 s60, s60, s3\ns_lshl_b32 s60, s60, 8\ns_add_u32 s60, s60, {T_OFF}\nv_mov_b32 v1, 0")
        for k in range(n): A(f"v_mov_b32 v2, s{64+2*k}\nbuffer_store_dword v2, v1, {R4(SWS)}, s60 offen offset:{4*k}")
        if cons and diag>=2:
            A(f"v_and_b32 v1, 63, v0\nv_lshlrev_b32 v1, 2, v1\nv_mov_b32 v2, {OOB}\nv_cmp_gt_u32 vcc, 192, v1\ns_nop 1\nv_cndmask_b32 v1, v2, v1, vcc")
            A(f"buffer_store_dword v254, v1, {R4(SWS)}, s60 offen offset:64")
            if diag==6: A(f"s_add_u32 s60, s60, 0x80000\nbuffer_store_dword v252, v1, {R4(SWS)}, s60 offen offset:64")
        A("s_waitcnt vmcnt(0)")
    PAD='@PAD@' if walk else 's_nop 0'
    def pad():
        if walk: A(PAD)
    def spin_tail(label):
        A(f"s_cmp_lt_u32 s58, {SPIN}\ns_cselect_b64 s[60:61], -1, 0\ns_and_b64 vcc, vcc, s[60:61]\ns_cbranch_scc1 {label}")
    WST=28672; WOFF=65536
    QS=5120 if remap else 4096
    CH=2*QS
    def physline(dst,g,tmp,A=None):
        A=A or A_main
        if remap: A(f"v_add_u32 v{tmp}, 4, v{g}\nv_mul_u32_u24 v{tmp}, 37, v{tmp}\nv_lshrrev_b32 v{tmp}, 8, v{tmp}\nv_add_u32 v{tmp}, v{tmp}, v{g}\nv_lshlrev_b32 v{dst}, 7, v{tmp}")
        else: A(f"v_lshlrev_b32 v{dst}, 7, v{g}")
    def fragoffs(base,A=None,t=(4,5,6)):
        A=A or A_main
        A(f"v_and_b32 v{t[2]}, 7, v2\nv_lshlrev_b32 v{t[2]}, 4, v{t[2]}")
        for n in range(4):
            A(f"v_lshrrev_b32 v{t[1]}, 3, v2\nv_add_u32 v{t[1]}, {8*n}, v{t[1]}"); physline(base+n,t[1],t[0],A); A(f"v_add_u32 v{base+n}, v{base+n}, v{t[2]}")
    A("""; Fused feed-forward: out = silu(x @ w1) @ w2, bf16 in/out, fp32 accumulate.
; Kernarg (48 bytes): 0 x[2048,1024], 8 w1[1024,3584], 16 w2[3584,1024], 24 out[2048,1024], 32 debug(256B), 40 ws
; 256 workgroups, one per CU; waves 0-3 compute (MFMA), waves 4-7 stream tiles into LDS.
; @launch grid=(256,1,1) block=(512,1,1) lds="""+("163840" if w6 else "151552"))
    A('.amdgcn_target "amdgcn-amd-amdhsa--gfx950"\n.text')
    A(f".globl {NAME}\n.p2align 8\n.type {NAME},@function\n{NAME}:")
    A("s_load_dwordx8 s[4:11], s[0:1], 0\ns_load_dwordx4 s[12:15], s[0:1], 32")
    A("s_cmp_ge_u32 s2, 256\ns_cbranch_scc1 L_end")
    stamp(0); rstamp(14)
    if fast and pfc:
        A(f"s_getpc_b64 s[54:55]\nC_pc:\nv_lshlrev_b32 v3, 7, v0\ns_sub_u32 s54, s54, C_pc-{NAME}\ns_subb_u32 s55, s55, 0")
        A(f"v_min_u32 v3, L_end-{NAME}, v3\nv_lshrrev_b32 v1, 6, v0\nglobal_load_dword v255, v3, s[54:55]\nv_and_b32 v2, 63, v0")
    else: A("v_lshrrev_b32 v1, 6, v0\nv_and_b32 v2, 63, v0")
    A(f"v_readfirstlane_b32 s3, v1\ns_and_b32 s{sXcd}, s2, 7\ns_lshr_b32 s46, s2, 3")
    dec1=f"s_lshr_b32 s{sMt}, s{sXcd}, 1\ns_lshl_b32 s{sMt}, s{sMt}, 2\ns_lshr_b32 s47, s46, 3\ns_add_u32 s{sMt}, s{sMt}, s47\ns_and_b32 s{sJ}, s{sXcd}, 1"
    dec2=(f"s_and_b32 s{sFt8}, s46, 7\ns_lshl_b32 s{sFt}, s{sJ}, 3\ns_add_u32 s{sFt}, s{sFt}, s{sFt8}\n"
          f"s_lshl_b32 s{sLid}, s{sMt}, 4\ns_add_u32 s{sLid}, s{sLid}, s{sFt}\ns_xor_b32 s{sDt}, s{sJ}, 1\ns_mul_i32 s{sDt}, s{sDt}, {dswz}\ns_xor_b32 s{sDt}, s{sDt}, s{sFt8}")
    A(dec1); A(dec2)
    if fast and pf1==5:
        A("s_cmp_lt_u32 s3, 4\ns_cbranch_scc0 L_prod")
        A(f"s_lshr_b32 s58, s{sXcd}, 1\ns_lshl_b32 s59, s58, 2\ns_lshl_b32 s58, s58, 5\ns_add_u32 s58, s58, s46\ns_lshl_b32 s58, s58, 1\ns_add_u32 s58, s58, s{sJ}\ns_lshl_b32 s58, s58, 14")
        A("v_bfe_u32 v15, v0, 2, 3\nv_add_u32 v15, s59, v15\nv_and_b32 v15, 15, v15\nv_lshlrev_b32 v15, 7, v15\nv_lshrrev_b32 v14, 5, v0\nv_lshl_add_u32 v15, v14, 11, v15\nv_add_u32 v252, s58, v15")
        A("s_waitcnt lgkmcnt(0)\nglobal_load_dword v253, v252, s[4:5]\ns_branch L_cons\nL_prod:")
    elif fast and pf1==1:
        A("s_cmp_lt_u32 s3, 4\ns_cbranch_scc0 L_prod")
        A("v_lshrrev_b32 v15, 1, v0\ns_lshl_b32 s58, s2, 7\nv_add_u32 v15, s58, v15\nv_lshlrev_b32 v15, 7, v15\ns_waitcnt lgkmcnt(0)\nglobal_load_dword v253, v15, s[4:5]\ns_branch L_cons\nL_prod:")
    else:
        A("s_cmp_lt_u32 s3, 4\ns_cbranch_scc1 L_cons")
    sP,sKX,sKW,sLX,sLW,sRing,sCnt,sT0,sT1=46,47,48,49,50,51,52,53,54
    A(f"s_sub_u32 s{sP}, s3, 4")
    if pprio: A(f"s_setprio {pprio}")
    A("v_lshrrev_b32 v3, 3, v2\nv_and_b32 v4, 7, v2\nv_lshrrev_b32 v5, 4, v2\nv_xor_b32 v4, v4, v5\nv_lshlrev_b32 v4, 4, v4\nv_lshl_add_u32 v3, v3, 11, v4")
    A(f"s_lshl_b32 s{sT0}, s{sMt}, 18\ns_lshl_b32 s{sT1}, s{sP}, 16\ns_add_u32 s{sT0}, s{sT0}, s{sT1}\nv_add_u32 v8, s{sT0}, v3")
    A("v_xor_b32 v9, 64, v8\nv_add_u32 v9, 0x4000, v9\nv_add_u32 v10, 0x8000, v8\nv_add_u32 v11, 0x8000, v9")
    if not rot: A(f"s_mov_b32 s{sKX}, 0\ns_mov_b32 s{sKW}, 0")
    if rot:
        if rot in (1,2,4,5,6,7,8):
            if pj: A(f"s_lshr_b32 s{sT0}, s{sXcd}, 1\ns_lshl_b32 s{sT1}, s{sJ}, 1\ns_add_u32 s{sT0}, s{sT0}, s{sT1}\ns_and_b32 s{sT0}, s{sT0}, 3\ns_lshl_b32 s{sT0}, s{sT0}, 2")
            else: A(f"s_lshr_b32 s{sT0}, s{sXcd}, 1\ns_lshl_b32 s{sT0}, s{sT0}, 2")
            if rot==4: A(f"s_and_b32 s{sT0}, s{sT0}, 8")
        else: A(f"s_mov_b32 s{sT0}, 0")
        if rot>=5: A(f"s_mov_b32 s62, s{sT0}\ns_mov_b32 s60, 0\ns_mov_b32 s61, 0")
        if rot in (7,8): A(f"s_and_b32 s{sT1}, s{sMt}, 1\ns_lshl_b32 s{sT1}, s{sT1}, {rot-7}\ns_add_u32 s{sT0}, s{sT0}, s{sT1}")
        elif rot>=2: A(f"s_and_b32 s{sT1}, s{sMt}, 3\ns_add_u32 s{sT0}, s{sT0}, s{sT1}")
        A(f"s_lshl_b32 s{sKX}, s{sT0}, 7\ns_mul_i32 s{sKW}, s{sT0}, {64*7168}")
    sRX=57
    A(f"s_lshl_b32 s{sLX}, s{sP}, 12\ns_mov_b32 s{sRX}, 0\ns_mov_b32 s{SX+2}, {X_BYTES}\ns_mov_b32 s{SX+3}, 0x20000")
    A(f"s_waitcnt lgkmcnt(0)\ns_mov_b32 s{SX}, s4\ns_and_b32 s{SX+1}, s5, 0xffff")
    def nextk(c):
        if rot in (7,8):
            A(f"s_add_u32 s{c}, s{c}, 1\ns_and_b32 s{sT1}, s{c}, 8\ns_cselect_b32 s{sT0}, 1, 0\ns_xor_b32 s{sT0}, s{sT0}, s{sMt}\ns_and_b32 s{sT0}, s{sT0}, 1\ns_lshl_b32 s{sT0}, s{sT0}, {rot-7}\ns_add_u32 s{sT0}, s{sT0}, s{c}\ns_and_b32 s{sT0}, s{sT0}, 7")
            A(f"s_add_u32 s{sT0}, s{sT0}, s{sT1}\ns_add_u32 s{sT0}, s{sT0}, s62\ns_and_b32 s{sT0}, s{sT0}, 15")
            return
        if rot==6:
            A(f"s_add_u32 s{c}, s{c}, 1\ns_and_b32 s{sT1}, s{c}, 8\ns_cselect_b32 s{sT0}, 3, 0\ns_xor_b32 s{sT0}, s{sT0}, s{sMt}\ns_and_b32 s{sT0}, s{sT0}, 3\ns_add_u32 s{sT0}, s{sT0}, s{c}\ns_and_b32 s{sT0}, s{sT0}, 7")
            A(f"s_add_u32 s{sT0}, s{sT0}, s{sT1}\ns_add_u32 s{sT0}, s{sT0}, s62\ns_and_b32 s{sT0}, s{sT0}, 15")
            return
        A(f"s_add_u32 s{c}, s{c}, 1\ns_add_u32 s{sT0}, s{c}, s{sMt}\ns_and_b32 s{sT0}, s{sT0}, 3\ns_and_b32 s{sT1}, s{c}, 12\ns_add_u32 s{sT0}, s{sT0}, s{sT1}\ns_add_u32 s{sT0}, s{sT0}, s62\ns_and_b32 s{sT0}, s{sT0}, 15")
    def issueW1(part=None):
        inc=[1024,896,1024,896,1024,1280]
        ns=range(7) if part is None else (range(hd) if part==0 else range(hd,7))
        if part!=1: A(f"s_add_u32 m0, s{sRing}, s{sLW}\ns_add_u32 s{sRing}, s{sRing}, {WST}")
        else: A("s_mov_b32 m0, s1\ns_nop 0")
        for n in ns:
            a,o=n>>1,n&1
            if n<6:
                A(f"buffer_load_dwordx4 v{13+o}, {R4(SW1)}, s{sKW} offen offset:{a*128} {w1aux} lds")
                if part==0 and n==hd-1: A(f"s_add_u32 s1, m0, {inc[n]}")
                else:
                    A(f"s_add_u32 m0, m0, {inc[n]}")
                    A("s_nop 0" if n else f"s_cmp_eq_u32 s{sRing}, {WST*3}\ns_cselect_b32 s{sRing}, 0, s{sRing}")
            else:
                A(f"buffer_load_dwordx4 v12, {R4(SW1)}, s{sKW} offen {w1aux} lds\ns_add_u32 s{sKW}, s{sKW}, {64*7168}")
                if rot>=5:
                    nextk(60); A(f"s_mul_i32 s{sKW}, s{sT0}, {64*7168}\ns_add_u32 s{sKW}, s{sKW}, s59")
                elif rot: A(f"s_cmp_eq_u32 s{sKW}, s58\ns_cselect_b32 s{sKW}, s59, s{sKW}")
    def issueX():
        A(f"s_add_u32 m0, s{sRX}, s{sLX}\ns_add_u32 s{sRX}, s{sRX}, 16384")
        for n in range(4):
            A(f"buffer_load_dwordx4 v{8+n}, {R4(SX)}, s{sKX} offen {xaux} lds")
            if n<3: A("s_add_u32 m0, m0, 1024\n"+("s_nop 0" if n else f"s_and_b32 s{sRX}, s{sRX}, 0xffff"))
        if tight1: pass
        elif rot>=5:
            nextk(61); A(f"s_lshl_b32 s{sKX}, s{sT0}, 7")
        else: A(f"s_add_u32 s{sKX}, s{sKX}, 128\ns_and_b32 s{sKX}, s{sKX}, 2047")
    stamp(1)
    issueX()
    A(f"s_and_b32 s{sT0}, s{sFt8}, 1\ns_lshl_b32 s{sT1}, s{sT0}, 6")
    A("v_bfe_u32 v3, v2, 2, 3\nv_mul_u32_u24 v3, 7168, v3\nv_lshrrev_b32 v5, 5, v2\nv_and_b32 v4, 3, v2\nv_lshlrev_b32 v4, 4, v4")
    A(f"v_lshl_add_u32 v6, v5, 6, v3\nv_add3_u32 v13, v6, v4, s{sT1}\nv_xor_b32 v14, 32, v13\nv_add_u32 v14, {8*7168}, v14")
    A(f"s_xor_b32 s{sT0}, s{sT0}, 1\ns_mul_i32 s{sT0}, s{sT0}, 384\nv_lshrrev_b32 v3, 2, v2\nv_mul_u32_u24 v3, 7168, v3\nv_lshlrev_b32 v5, 5, v5\nv_xor_b32 v4, v4, v5\nv_add3_u32 v12, v3, v4, s{sT0}")
    A(f"s_mul_i32 s59, s{sP}, {16*7168}\ns_mul_i32 s{sT0}, s{sFt}, 448\ns_add_u32 s59, s59, s{sT0}\ns_add_u32 s{sKW}, s{sKW}, s59\ns_add_u32 s58, s59, {1024*7168}")
    A(f"s_mul_i32 s{sLW}, s{sP}, 7168\ns_add_u32 s{sLW}, s{sLW}, {WOFF}\ns_mov_b32 s{sRing}, {2*WST}")
    srd(A,SW1,6,W_BYTES)
    if la1 or tearly: issueW1(0)
    else: issueW1(); issueX(); issueW1()
    srd(A,SW2,8,W_BYTES); srd(A,SWS,14,0x10000000)
    if diag==5: srd(A,SD,12,256)
    sHp,sHalf=55,56
    if tlb:
        A(f"s_cmp_lt_u32 s2, {tlb}\ns_cbranch_scc0 P1_ntlb\ns_lshl_b32 s{sT0}, s{sP}, 21")
        A(f"s_add_u32 s4, s8, s{sT0}\ns_addc_u32 s5, s9, 0\ns_load_dword s0, s[4:5], 0")
        A(f"s_lshr_b32 s{sT1}, s{sT0}, 1\ns_add_u32 s4, s10, s{sT1}\ns_addc_u32 s5, s11, 0\ns_load_dword s0, s[4:5], 0")
        for b in (0, 8<<20, 16<<20, P_OFF, F_OFF):
            A(f"s_add_u32 s{sT1}, s{sT0}, {b}\ns_add_u32 s4, s14, s{sT1}\ns_addc_u32 s5, s15, 0\ns_load_dword s0, s[4:5], 0")
        A("P1_ntlb:")
    if tl0:
        A(f"s_cmp_lt_u32 s2, {tlw}\ns_cbranch_scc0 P1_nt0\ns_lshl_b32 s{sT0}, s{sP}, 21\ns_add_u32 s{sT0}, s{sT0}, {P_OFF}\ns_cmp_eq_u32 s{sP}, 3\ns_cselect_b32 s{sT0}, {F_OFF}, s{sT0}")
        A(f"s_add_u32 s4, s14, s{sT0}\ns_addc_u32 s5, s15, 0\ns_load_dword s0, s[4:5], 0\nP1_nt0:")
    A(f"s_lshr_b32 s4, s{sLid}, 3\ns_lshl_b32 s4, s4, 10\ns_add_u32 s4, s4, {F_OFF+fch*128}\ns_add_u32 s4, s14, s4\ns_addc_u32 s5, s15, 0")
    A(f"s_lshl_b32 s6, s{sMt}, 4\ns_add_u32 s6, s12, s6\ns_addc_u32 s7, s13, 0")
    def spf():
        if pf2 not in (3,4): return
        for k in range(4): A(f"s_load_dword s12, s[8:9], {k*64}")
        A(f"s_add_u32 s13, s13, 1\ns_and_b32 s{sT0}, s13, 7\ns_cselect_b32 s{sT0}, 0, {131072-2048}\ns_add_u32 s{sT0}, s{sT0}, 256\ns_add_u32 s8, s8, s{sT0}\ns_addc_u32 s9, s9, 0")
    if pf2 in (3,4):
        A(f"s_lshl_b32 s12, s2, 2\ns_add_u32 s12, s12, s{sP}")
        A(f"s_lshr_b32 s{sT0}, s12, 6\ns_mul_i32 s13, s{sT0}, 7\ns_and_b32 s{sT0}, s{sT0}, 1")
        A(f"s_xor_b32 s{sT1}, s{sT0}, 1\ns_mul_i32 s{sT1}, s{sT1}, 6\ns_add_u32 s{sT1}, s{sT1}, s13\ns_lshl_b32 s{sT1}, s{sT1}, 16\ns_and_b32 s14, s12, 63\ns_lshl_b32 s14, s14, 10\ns_add_u32 s{sT1}, s{sT1}, s14")
        A(f"s_add_u32 s14, s8, s{sT1}\ns_addc_u32 s15, s9, 0")
        A(f"s_add_u32 s13, s13, s{sT0}\ns_lshl_b32 s13, s13, 16\ns_and_b32 s12, s12, 63\ns_lshl_b32 s12, s12, 11\ns_add_u32 s13, s13, s12\ns_add_u32 s8, s8, s13\ns_addc_u32 s9, s9, 0\ns_mov_b32 s13, 0")
    A(f"s_lshr_b32 s{sHp}, s{sP}, 1\ns_and_b32 s{sHalf}, s{sP}, 1")
    A("v_subrev_u32 v5, 3, v2\nv_mul_u32_u24 v3, 37, v5\nv_lshrrev_b32 v3, 8, v3\nv_mul_u32_u24 v4, 7, v3\nv_sub_u32 v4, v5, v4")
    if skew2==3: A(f"v_add_u32 v6, s{sMt}, v3\nv_and_b32 v6, 3, v6\nv_add_u32 v4, v6, v4\nv_subrev_u32 v6, 7, v4\nv_min_u32 v4, v4, v6")
    elif skew2: A(f"s_and_b32 s{sT0}, s{sMt}, 3\ns_mul_i32 s{sT0}, s{sT0}, {3-skew2}\nv_add_u32 v4, s{sT0}, v4\nv_subrev_u32 v6, 7, v4\nv_min_u32 v4, v4, v6")
    A("v_add_u32 v4, 1, v4")
    A("v_cmp_gt_u32 vcc, 3, v2\ns_nop 1\nv_cndmask_b32 v3, v3, v2, vcc\nv_cndmask_b32 v4, v4, 0, vcc")
    A(f"v_add_u32 v4, s{sFt8}, v4\nv_and_b32 v4, 7, v4\nv_and_b32 v6, 1, v4\nv_mul_u32_u24 v4, 7, v4\nv_lshl_add_u32 v4, v3, 1, v4\nv_add3_u32 v4, v4, v6, s{sHp}")
    A(f"s_and_b32 s{sT0}, s{sMt}, {3 if skew2 else 0}\nv_add_u32 v5, s{sT0}, v2\nv_and_b32 v5, 3, v5\nv_mul_u32_u24 v5, 14, v5\nv_add3_u32 v5, v5, 6, s{sHp}")
    A("v_cmp_gt_u32 vcc, 24, v2\ns_nop 1\nv_cndmask_b32 v4, v5, v4, vcc\nv_and_b32 v4, 63, v4")
    A(f"s_mul_i32 s{sT0}, s{sJ}, 56\nv_add_u32 v4, s{sT0}, v4")
    A(f"s_mul_i32 s{sT0}, s{sMt}, {112*CH}\ns_mul_i32 s{sT1}, s{sHalf}, {QS}\ns_add_u32 s{sT0}, s{sT0}, s{sT1}")
    A(f"v_mul_u32_u24 v20, {CH}, v4\nv_add_u32 v20, s{sT0}, v20")
    A(f"s_lshl_b32 s{sT0}, s{sHalf}, 15\ns_lshl_b32 s{sT1}, s{sHalf}, 13\nv_mov_b32 v5, s{sT0}\nv_mov_b32 v6, s{sT1}\nv_cndmask_b32 v5, v6, v5, vcc")
    A(f"v_lshl_add_u32 v21, v4, 16, v5\ns_lshl_b32 s{sT0}, s{sDt}, 8\nv_add_u32 v21, s{sT0}, v21")
    A("v_and_b32 v4, 3, v2\nv_bfe_u32 v5, v2, 4, 1\nv_lshlrev_b32 v6, 1, v5\nv_xor_b32 v4, v4, v6\nv_lshlrev_b32 v4, 4, v4")
    A("v_lshrrev_b32 v6, 5, v2\nv_lshl_add_u32 v4, v6, 6, v4")
    A("v_bfe_u32 v6, v2, 2, 3\nv_lshl_add_u32 v22, v6, 11, v4\nv_add_u32 v23, 0x4000, v22")
    A("v_lshl_add_u32 v24, v5, 13, v22\nv_add_u32 v25, 0x8000, v24")
    fragoffs(26)
    if tight1:
        assert rot==8 and tearly==2 and not nsh and not la1 and spub and hsi and not two
        A(f"v_bfe_u32 v3, v2, 3, 1\nv_xor_b32 v3, s{sMt}, v3\nv_and_b32 v3, 1, v3\nv_lshl_add_u32 v3, v3, 1, v2\nv_and_b32 v3, 7, v3\nv_and_b32 v4, 8, v2\nv_add3_u32 v3, v3, v4, s62\nv_and_b32 v3, 15, v3")
        A(f"v_lshlrev_b32 v30, 7, v3\nv_mul_u32_u24 v31, {64*7168}, v3\nv_add_u32 v31, s59, v31")
    if diag==5: stamp(8)
    if tight1:
        xl=[f"buffer_load_dwordx4 v{8+n}, {R4(SX)}, s{sKX} offen {xaux} lds" for n in range(4)]
        wl=[f"buffer_load_dwordx4 v{13+(n&1)}, {R4(SW1)}, s{sKW} offen offset:{(n>>1)*128} {w1aux} lds" for n in range(6)]+[f"buffer_load_dwordx4 v12, {R4(SW1)}, s{sKW} offen {w1aux} lds"]
        inc=[1024,896,1024,896,1024,1280]
        def Wt(): A(f"s_mov_b32 m0, s1\ns_nop 0\n{wl[4]}\ns_add_u32 m0, m0, {inc[4]}\ns_nop 0\n{wl[5]}\ns_add_u32 m0, m0, {inc[5]}\ns_nop 0\n{wl[6]}")
        def Xs(fill):
            A(f"s_add_u32 m0, s{sRX}, s{sLX}\ns_add_u32 s{sRX}, s{sRX}, 16384")
            for n in range(4):
                A(xl[n])
                if n<3: A(f"s_add_u32 m0, m0, 1024\n{fill[n]}")
        assert hd==4
        andx=f"s_and_b32 s{sRX}, s{sRX}, 0xffff"
        A(f"v_readlane_b32 s{sKX}, v30, 1")
        Wt(); Xs([f"v_readlane_b32 s{sKW}, v31, 1", andx, "s_nop 0"])
        issueW1(0)
        A(f"v_readlane_b32 s{sKX}, v30, 2\ns_waitcnt vmcnt(8)")
        stamp(2)
        A("s_barrier")
        Wt(); Xs([f"v_readlane_b32 s{sKW}, v31, 2", andx, f"s_mov_b32 s{sCnt}, 2"])
        A(f"s_mov_b32 s61, {(1<<(ack+2+3))|(1<<(hsi+3))|((1<<tl) if tl else 0)}\ns_add_u32 m0, s{sRing}, s{sLW}\ns_branch P1_w")
        A(f".p2align {al}\nP1_loop:")
        A(f"s_bitcmp1_b32 s61, s{sCnt}\ns_cbranch_scc1 P1_hk\nP1_hkb:")
        Xs([f"v_readlane_b32 s{sKW}, v31, s{sCnt}", andx, "s_nop 0"])
        A(f"s_add_u32 m0, s{sRing}, s{sLW}\ns_waitcnt vmcnt(15)\ns_barrier\nP1_w:")
        fill=[f"s_add_u32 s{sCnt}, s{sCnt}, 1", f"s_add_u32 s{sRing}, s{sRing}, {WST}", f"v_readlane_b32 s{sKX}, v30, s{sCnt}",
              f"s_cmp_eq_u32 s{sRing}, {WST*3}\ns_cselect_b32 s{sRing}, 0, s{sRing}", "s_nop 0", f"s_cmp_lt_u32 s{sCnt}, 16"]
        for n in range(7):
            A(wl[n])
            if n<6: A(f"s_add_u32 m0, m0, {inc[n]}\n{fill[n]}")
        A("s_cbranch_scc1 P1_loop\ns_branch P1_done")
        A("P1_hk:")
        if tl:
            A(f"s_cmp_eq_u32 s{sCnt}, {tl}\ns_cbranch_scc0 P1_hk0\ns_cmp_lt_u32 s2, {tlw}\ns_cbranch_scc0 P1_hkb\ns_lshl_b32 s{sT0}, s{sP}, 21")
            A(f"s_add_u32 s12, s8, s{sT0}\ns_addc_u32 s13, s9, 0\ns_load_dword s0, s[12:13], 0")
            A(f"s_lshr_b32 s{sT1}, s{sT0}, 1\ns_add_u32 s12, s10, s{sT1}\ns_addc_u32 s13, s11, 0\ns_load_dword s0, s[12:13], 0")
            for b in (0, 8<<20, 16<<20):
                A(f"s_add_u32 s{sT1}, s{sT0}, {b}\ns_add_u32 s12, s14, s{sT1}\ns_addc_u32 s13, s15, 0\ns_load_dword s0, s[12:13], 0")
            A("s_branch P1_hkb\nP1_hk0:")
        A(f"s_cmp_eq_u32 s{sCnt}, {hsi+3}\ns_cbranch_scc0 P1_hk1\ns_cmp_eq_u32 s{sP}, 0\ns_cbranch_scc0 P1_hkb\ns_load_dwordx4 s[28:31], s[6:7], 0 {hsglc}\ns_branch P1_hkb")
        if lead: A(f"P1_hk1:\ns_lshl_b32 s1, s{sFt}, 2\ns_add_u32 s1, s1, s{sP}\ns_cmp_eq_u32 s1, 2\ns_cbranch_scc0 P1_hkb\ns_mov_b32 s1, 1\ns_atomic_or s1, s[6:7], 0\ns_branch P1_hkb")
        else: A(f"P1_hk1:\ns_cmp_eq_u32 s{sP}, 2\ns_cbranch_scc0 P1_hkb\ns_and_b32 s1, s{sFt}, 3\ns_lshl_b32 s1, s1, 3\ns_lshl_b32 s1, 1, s1\ns_and_b32 s{sT0}, s{sFt}, 12\ns_atomic_or s1, s[6:7], s{sT0}\ns_branch P1_hkb")
        A("P1_done:")
        pad()
    else:
        if la1:
            A(f"s_mov_b32 s{sCnt}, -1\ns_branch P1_in")
            A(f"P1_loop:\ns_waitcnt vmcnt({4+hd})")
            if diag: A(f"s_cmp_eq_u32 s{sCnt}, 0\ns_cbranch_scc0 P1_ns"); stamp(2); A("P1_ns:")
            A("s_barrier\nP1_in:")
            issueW1(1); issueX(); issueW1(0)
        else:
            if nsh:
                A(f"s_mov_b32 s{sCnt}, -1\ns_branch P1_shin\nP1_sh:\ns_waitcnt vmcnt({4+hd})")
                if diag: A(f"s_cmp_eq_u32 s{sCnt}, 0\ns_cbranch_scc0 P1_ns"); stamp(2); A("P1_ns:")
                A("s_barrier\nP1_shin:")
                issueW1(1); issueX()
                A(f"s_cmp_eq_u32 s{sCnt}, {nsh}\ns_cbranch_scc1 P1_in")
                issueW1(0)
                A(f"s_add_u32 s{sCnt}, s{sCnt}, 1\ns_branch P1_sh")
            else:
                if tearly==1: issueW1(1); issueX(); issueW1()
                if tearly==2: issueW1(1); issueX(); issueW1(0)
                A(f"s_waitcnt vmcnt({4+hd if tearly==2 else 11})")
                stamp(2)
                A("s_barrier")
                if tearly==2: issueW1(1)
                issueX()
                A(f"s_mov_b32 s{sCnt}, 0\ns_branch P1_in")
            A("P1_loop:\ns_waitcnt vmcnt(15)\ns_barrier\nP1_in:")
            issueW1(); issueX()
        if spub and two:
            A(f"s_lshl_b32 s{sT0}, s{sP}, 8\ns_add_u32 s{sT0}, s{sT0}, s{sCnt}\ns_cmp_eq_u32 s{sT0}, {512+4}\ns_cselect_b32 s0, 1, 0\ns_cmp_eq_u32 s{sT0}, {512+ack+2}\ns_cselect_b32 s0, 2, s0\ns_cmp_eq_u32 s0, 0\ns_cbranch_scc1 P1_npub")
            A(f"s_and_b32 s{sT0}, s{sFt}, 3\ns_lshl_b32 s{sT0}, s{sT0}, 3\ns_lshl_b32 s0, s0, s{sT0}\ns_and_b32 s{sT0}, s{sFt}, 12\ns_atomic_or s0, s[6:7], s{sT0}\nP1_npub:")
        elif spub:
            A(f"s_lshl_b32 s{sT0}, s{sP}, 8\ns_add_u32 s{sT0}, s{sT0}, s{sCnt}\ns_cmp_eq_u32 s{sT0}, {512+ack+2}\ns_cbranch_scc0 P1_npub")
            A(f"s_and_b32 s0, s{sFt}, 3\ns_lshl_b32 s0, s0, 3\ns_lshl_b32 s0, 1, s0\ns_and_b32 s{sT0}, s{sFt}, 12\ns_atomic_or s0, s[6:7], s{sT0}\nP1_npub:")
        if hsi:
            assert pf2 not in (3,4)
            A(f"s_lshl_b32 s{sT0}, s{sP}, 8\ns_add_u32 s{sT0}, s{sT0}, s{sCnt}\ns_cmp_eq_u32 s{sT0}, {hsi}\ns_cbranch_scc0 P1_nh\ns_load_dwordx4 s[28:31], s[6:7], 0 {hsglc}\nP1_nh:")
        if pf2==4:
            spf()
            A(f"s_cmp_lt_u32 s{sCnt}, 3\ns_cbranch_scc0 P1_nspf")
            spf()
            A("P1_nspf:")
        if pf2==3:
            A(f"s_sub_u32 s{sT0}, s{sCnt}, {spa}\ns_cmp_lt_u32 s{sT0}, {spb-spa}\ns_cbranch_scc0 P1_nspf")
            spf()
            A("P1_nspf:")
        A(f"s_add_u32 s{sCnt}, s{sCnt}, 1\ns_cmp_lt_u32 s{sCnt}, {14 if la1 else 13}\ns_cbranch_scc1 P1_loop")
        pad()
        A(f"s_waitcnt vmcnt({4+hd if la1 else 15})\ns_barrier")
        issueW1(1 if la1 else None)
    sW,sH,sSlot,sLW2,sLH=47,48,51,50,49
    A(f"s_lshl_b32 s{sLH}, s{sP}, 12\ns_add_u32 s{sLW2}, s{sLH}, 65536\ns_mov_b32 s{sCnt}, 0\ns_mov_b32 s{sSlot}, 0")
    def issueW():
        A(f"s_add_u32 m0, s{sLW2}, s{sSlot}\ns_nop 0")
        for n in range(4):
            o,tb=n>>1,n&1
            A(f"buffer_load_dwordx4 v{22+o}, {R4(SW2)}, s{sW} offen offset:{tb*128} {w2aux} lds")
            if n<3: A(f"s_add_u32 m0, m0, {896 if tb==0 else 1024+128}\ns_nop 0")
    def issueH():
        A(f"s_add_u32 m0, s{sLH}, s{sSlot}\ns_nop 0")
        for n in range(4):
            A(f"buffer_load_dwordx4 v{26+n}, {R4(SWS)}, s{sH} offen sc1 lds")
            if n<3: A("s_add_u32 m0, m0, 1024\ns_nop 0")
    A(f"v_readlane_b32 s{sW}, v21, 0")
    if not la1: A("s_waitcnt vmcnt(7)\ns_barrier")
    if not hsi: A(f"s_cmp_eq_u32 s{sP}, 0\ns_cbranch_scc0 P2_nh\ns_load_dwordx4 s[28:31], s[6:7], 0 glc\nP2_nh:")
    A("s_waitcnt vmcnt(0)\ns_barrier")
    def nextW(): A(f"s_add_u32 s{sCnt}, s{sCnt}, 1\ns_add_u32 s{sSlot}, s{sSlot}, 16384\nv_readlane_b32 s{sW}, v21, s{sCnt}\ns_nop 2")
    if w2e:
        A("s_branch P2_w0\nP2_w:"); nextW(); A("P2_w0:"); issueW()
        A(f"s_cmp_lt_u32 s{sCnt}, {w2e}\ns_cbranch_scc1 P2_w")
        A("s_barrier")
        pad()
        A("P2_w2:"); nextW(); issueW()
        A(f"s_cmp_lt_u32 s{sCnt}, 3\ns_cbranch_scc1 P2_w2")
    else:
        issueW()
        A("s_barrier")
        pad()
        A("P2_w:"); nextW(); issueW()
        A(f"s_cmp_lt_u32 s{sCnt}, {5 if w6==1 else 3}\ns_cbranch_scc1 P2_w")
    A(f"s_cmp_eq_u32 s{sP}, 0\ns_cbranch_scc0 P2_hsd\ns_mov_b32 s58, 0\ns_branch P2_hsw")
    A("P2_hs:\ns_load_dwordx4 s[28:31], s[6:7], 0 glc\ns_add_u32 s58, s58, 1\nP2_hsw:\ns_waitcnt lgkmcnt(0)")
    if lead: A(f"s_cmp_ge_u32 s58, {SPIN}\ns_cbranch_scc1 P2_hsd\ns_cmp_eq_u32 s28, 1\ns_cbranch_scc0 P2_hs\nP2_hsd:")
    else:
        A(f"s_and_b32 s28, s28, s29\ns_and_b32 s30, s30, s31\ns_and_b32 s28, s28, s30\ns_and_b32 s28, s28, 0x01010101\ns_cmp_ge_u32 s58, {SPIN}\ns_cbranch_scc1 P2_hsd\ns_cmp_eq_u32 s28, 0x01010101\ns_cbranch_scc0 P2_hs\nP2_hsd:")
    A(f"s_lshr_b32 s59, s{sLid}, 3\ns_lshl_b32 s59, s59, 10\ns_add_u32 s59, s59, {F_OFF+fch*128}\ns_lshl_b32 s{sT0}, s{sFt8}, 2")
    A(f"v_mov_b32 v5, {OOB}\nv_mov_b32 v6, s{sT0}\nv_cmp_eq_u32 vcc, 0, v2\nv_and_b32 v3, 7, v2\nv_lshlrev_b32 v3, 2, v3\nv_cndmask_b32 v6, v5, v6, vcc\nv_mov_b32 v5, 1")
    A(f"v_readlane_b32 s{sH}, v20, 3\ns_waitcnt vmcnt({20 if w6==1 else 12})")
    stamp(3)
    A("s_barrier")
    stamp(6)
    A(f"s_cmp_eq_u32 s{sP}, 1\ns_cbranch_scc0 P2_nf\nbuffer_store_dword v5, v6, {R4(SWS)}, s59 offen sc1\ns_nop 1\nv_mov_b32 v5, 7\nP2_nf:")
    if w6==2:
        A("P2_w45:"); nextW(); issueW()
        A(f"s_cmp_lt_u32 s{sCnt}, 5\ns_cbranch_scc1 P2_w45")
    A(f"s_mov_b32 s62, 0\ns_cmp_eq_u32 s{sP}, 0\ns_cbranch_scc1 P2_p0\ns_waitcnt vmcnt({8 if w6==2 else 0})\ns_branch P2_go\nP2_p0:\ns_mov_b32 s58, 0")
    if pdelay: A(f"s_mov_b32 s16, 0\nP2_dl:\ns_add_u32 s16, s16, 1\ns_cmp_lt_u32 s16, {pdelay}\ns_cbranch_scc1 P2_dl")
    stamp(7)
    if vpoll:
        A(f"P2_l1:\nbuffer_load_dword v4, v3, {R4(SWS)}, s59 offen sc1\ns_add_u32 s58, s58, 1\ns_waitcnt vmcnt(0)\nv_cmp_eq_u32 vcc, 0, v4")
        spin_tail("P2_l1")
    else:
        A("P2_l1:\ns_load_dwordx8 s[16:23], s[4:5], 0 glc\ns_add_u32 s58, s58, 1\ns_waitcnt lgkmcnt(0)")
        A("s_and_b64 s[16:17], s[16:17], s[18:19]\ns_and_b64 s[20:21], s[20:21], s[22:23]\ns_and_b64 s[16:17], s[16:17], s[20:21]\ns_and_b32 s16, s16, s17")
        A(f"s_cmp_ge_u32 s58, {SPIN}\ns_cbranch_scc1 P2_rdy\ns_bitcmp1_b32 s16, 0\ns_cbranch_scc1 P2_rdy")
        if la2: A(f"s_cmp_eq_u32 s58, {npoll}\ns_cbranch_scc0 P2_l1\ns_waitcnt vmcnt(0)\ns_barrier\ns_mov_b32 s62, 1")
        A("s_branch P2_l1")
    A("P2_rdy:")
    if diag and diag!=5: stamp(9); A("s_mov_b32 s80, s58")
    A(f"s_mov_b32 m0, 49152\ns_mov_b32 s58, 0")
    A("P2_h3:")
    for n in range(4): A(f"buffer_load_dwordx4 v{26+n}, {R4(SWS)}, s{sH} offen sc1 lds\ns_add_u32 m0, m0, 1024\n"+("s_nop 0" if n<3 else f"s_add_u32 s{sH}, s{sH}, {QS}"))
    A("s_add_u32 s58, s58, 1\ns_cmp_lt_u32 s58, 4\ns_cbranch_scc1 P2_h3")
    A("P2_go:")
    pad()
    stamp(4)
    PL=f"buffer_load_dword v4, v3, {R4(SWS)}, s59 offen sc1"
    POOL=[]
    if tight2:
        assert not la2 and not two and pf2 not in (3,4) and l1epi==3
        mask=(1<<(l1st+5))|(1<<9)|(1<<(8 if sl2 else 10))|(1<<(21 if w6 else 23))|(((1<<14)|(1<<20)) if lead else 0)
        wl=[f"buffer_load_dwordx4 v{22+(n>>1)}, {R4(SW2)}, s{sW} offen offset:{(n&1)*128} {w2aux} lds" for n in range(4)]
        hl=[f"buffer_load_dwordx4 v{26+n}, {R4(SWS)}, s{sH} offen sc1 lds" for n in range(4)]
        if w6:
            sWs=62
            A(f"s_mov_b32 s{sCnt}, 4\ns_mov_b32 s57, {mask}\nv_readlane_b32 s{sW}, v21, 6\ns_mov_b32 s{sSlot}, 0\ns_mov_b32 s{sWs}, 0\ns_mov_b32 m0, s{sLW2}\ns_branch P2_bar")
            A(f".p2align {al}\nP2_loop:")
            A(f"s_bitcmp1_b32 s57, s{sCnt}\ns_cbranch_scc1 P2_hk\nP2_hkb:")
            def Hs(f):
                A(f"s_add_u32 m0, s{sLH}, s{sSlot}\ns_add_u32 s{sCnt}, s{sCnt}, 1")
                A(f"{hl[0]}\ns_add_u32 m0, m0, 1024\n{f[0]}")
                A(f"{hl[1]}\ns_add_u32 m0, m0, 1024\ns_add_u32 s{sSlot}, s{sSlot}, 16384")
                A(f"{hl[2]}\ns_add_u32 m0, m0, 1024\ns_and_b32 s{sSlot}, s{sSlot}, 0xffff")
                A(hl[3])
            Hs([f"v_readlane_b32 s{sW}, v21, s{sT1}"])
            A(f"s_add_u32 m0, s{sLW2}, s{sWs}\nP2_bar:\ns_waitcnt vmcnt(16)\ns_barrier")
            A(f"s_cmp_lt_u32 s{sCnt}, 26\ns_cbranch_scc0 P2_out")
            A(f"{wl[0]}\ns_add_u32 m0, m0, 896\nv_readlane_b32 s{sH}, v20, s{sCnt}")
            A(f"{wl[1]}\ns_add_u32 m0, m0, 1152\ns_add_u32 s{sWs}, s{sWs}, 16384")
            A(f"{wl[2]}\ns_add_u32 m0, m0, 896\ns_add_u32 s{sT1}, s{sCnt}, 3")
            A(f"{wl[3]}\ns_cmp_eq_u32 s{sWs}, {6*16384}\ns_cselect_b32 s{sWs}, 0, s{sWs}\ns_branch P2_loop")
        else:
            A(f"s_mov_b32 s{sCnt}, 4\ns_mov_b32 s57, {mask}\nv_readlane_b32 s{sW}, v21, 4\ns_mov_b32 s{sSlot}, 0\ns_mov_b32 m0, s{sLW2}\ns_branch P2_bar")
            A(f".p2align {al}\nP2_loop:")
            A(f"s_bitcmp1_b32 s57, s{sCnt}\ns_cbranch_scc1 P2_hk\nP2_hkb:")
            A(f"s_add_u32 m0, s{sLH}, s{sSlot}\ns_add_u32 s{sCnt}, s{sCnt}, 1")
            A(f"{hl[0]}\ns_add_u32 m0, m0, 1024\nv_readlane_b32 s{sW}, v21, s{sCnt}")
            A(f"{hl[1]}\ns_add_u32 m0, m0, 1024\ns_add_u32 s{sSlot}, s{sSlot}, 16384")
            A(f"{hl[2]}\ns_add_u32 m0, m0, 1024\ns_and_b32 s{sSlot}, s{sSlot}, 0xffff")
            A(f"{hl[3]}\ns_add_u32 m0, s{sLW2}, s{sSlot}\nP2_bar:\ns_waitcnt vmcnt(16)\ns_barrier")
            A(f"s_cmp_lt_u32 s{sCnt}, 28\ns_cbranch_scc0 P2_out")
            A(f"{wl[0]}\ns_add_u32 m0, m0, 896\nv_readlane_b32 s{sH}, v20, s{sCnt}")
            A(f"{wl[1]}\ns_add_u32 m0, m0, 1152\ns_nop 0")
            A(f"{wl[2]}\ns_add_u32 m0, m0, 896\ns_nop 0")
            A(f"{wl[3]}\ns_branch P2_loop")
        A("P2_hk:"); pad()
        A(f"s_cmp_eq_u32 s{sCnt}, {21 if w6 else 23}\ns_cbranch_scc0 P2_hk1\nv_mov_b32 v22, v24\nv_mov_b32 v23, v25\ns_branch P2_hkb")
        A("P2_hk1:")
        if lead:
            A(f"s_cmp_lt_u32 s{sCnt}, 14\ns_cbranch_scc1 P2_hk1a\ns_cmp_eq_u32 s{sP}, 0\ns_cbranch_scc0 P2_hkb\ns_mov_b32 s58, 0\ns_cmp_eq_u32 s{sCnt}, 20\ns_cbranch_scc1 P2_pw")
            A(f"s_xor_b32 s4, s4, 1024\ns_xor_b32 s{sT0}, s{sFt8}, {dswz}\ns_lshl_b32 s{sT0}, s{sT0}, 2\ns_add_u32 s4, s4, s{sT0}\ns_load_dword s28, s[4:5], 0 glc\ns_branch P2_hkb")
            A(f"P2_pl:\ns_load_dword s28, s[4:5], 0 glc\ns_add_u32 s58, s58, 1\nP2_pw:\ns_waitcnt lgkmcnt(0)\ns_cmp_ge_u32 s58, {SPIN}\ns_cbranch_scc1 P2_hkb\ns_cmp_eq_u32 s28, 0\ns_cbranch_scc1 P2_pl\ns_branch P2_hkb\nP2_hk1a:")
        if sl2:
            assert l1st+5<8
            A(f"s_cmp_lt_u32 s{sCnt}, 8\ns_cbranch_scc0 P2_hk2\ns_cmp_eq_u32 s{sP}, 1\ns_cbranch_scc0 P2_hkb\nbuffer_store_dword v5, v6, {R4(SWS)}, s59 offen sc1\ns_branch P2_hkb")
            A(f"P2_hk2:\ns_cmp_eq_u32 s{sP}, 0\ns_cbranch_scc0 P2_hkb\ns_mov_b32 s58, 0\ns_cmp_eq_u32 s{sCnt}, 9\ns_cbranch_scc1 P2_l2w\ns_load_dwordx8 s[16:23], s[4:5], 0 glc\ns_branch P2_hkb")
            A("P2_l2:\ns_load_dwordx8 s[16:23], s[4:5], 0 glc\ns_add_u32 s58, s58, 1\nP2_l2w:\ns_waitcnt lgkmcnt(0)")
            A("s_and_b64 s[16:17], s[16:17], s[18:19]\ns_and_b64 s[20:21], s[20:21], s[22:23]\ns_and_b64 s[16:17], s[16:17], s[20:21]\ns_and_b32 s16, s16, s17")
            A(f"s_cmp_ge_u32 s58, {SPIN}\ns_cbranch_scc1 P2_hkb\ns_cmp_eq_u32 s16, 7\ns_cbranch_scc0 P2_l2")
        else:
            A(f"s_cmp_eq_u32 s{sCnt}, 9\ns_cbranch_scc0 P2_hk2\n{PL}\ns_branch P2_hkb")
            A(f"P2_hk2:\ns_cmp_eq_u32 s{sCnt}, 10\ns_cbranch_scc1 P2_hk3\ns_cmp_eq_u32 s{sP}, 1\ns_cbranch_scc0 P2_hkb\nbuffer_store_dword v5, v6, {R4(SWS)}, s59 offen sc1\ns_branch P2_hkb")
            A("P2_hk3:\ns_waitcnt vmcnt(8)\nv_cmp_gt_u32 vcc, 7, v4\ns_mov_b32 s58, 0\ns_nop 3\ns_cbranch_vccz P2_hkb")
            A(f"P2_l2:\n{PL}\ns_add_u32 s58, s58, 1\ns_waitcnt vmcnt(0)\nv_cmp_gt_u32 vcc, 7, v4")
            spin_tail("P2_l2")
        A("s_branch P2_hkb\nP2_out:")
        if w6:
            A(f"v_readlane_b32 s{sH}, v20, 26\ns_nop 2"); Hs(["s_nop 0"])
            A(f"v_readlane_b32 s{sH}, v20, 27\ns_waitcnt vmcnt(12)\ns_barrier\ns_nop 0"); Hs(["s_nop 0"])
            A("s_waitcnt vmcnt(8)\ns_barrier\ns_waitcnt vmcnt(4)\ns_barrier\ns_waitcnt vmcnt(0)\ns_barrier")
    else:
        A(f"s_mov_b32 s{sCnt}, 4\ns_mov_b32 s57, 7")
        if la2: A("s_cmp_eq_u32 s62, 0\ns_cbranch_scc0 P2_loop\ns_waitcnt vmcnt(16)\ns_barrier")
        A("P2_loop:")
        A(f"v_readlane_b32 s{sW}, v21, s{sCnt}\nv_readlane_b32 s{sH}, v20, s{sCnt}")
        A(f"s_add_u32 s{sSlot}, s{sSlot}, 16384\ns_and_b32 s{sSlot}, s{sSlot}, 0xffff")
        A(f"s_cmp_eq_u32 s{sCnt}, 24\ns_cbranch_scc0 P2_a\nv_mov_b32 v22, v24\nv_mov_b32 v23, v25\nP2_a:")
        if la2: A(f"s_cmp_eq_u32 s{sCnt}, 4\ns_cbranch_scc1 P2_nw\ns_waitcnt vmcnt(8)\nP2_nw:\ns_barrier")
        else: A("s_waitcnt vmcnt(16)\ns_barrier")
        assert l1epi==3 or sched==9
        A(f"s_lshl_b32 s{sT0}, s{sP}, 8\ns_add_u32 s{sT0}, s{sT0}, s{sCnt}\ns_cmp_eq_u32 s{sT0}, {256+l1st+(4 if la2 else 5)}\ns_cbranch_scc0 P2_nf2\nbuffer_store_dword v5, v6, {R4(SWS)}, s59 offen sc1\nP2_nf2:")
        if two:
            A(f"s_cmp_eq_u32 s{sT0}, 14\ns_cbranch_scc0 P2_n2a\ns_load_dwordx4 s[28:31], s[6:7], 0 glc\nP2_n2a:")
            A(f"s_cmp_eq_u32 s{sT0}, 20\ns_cbranch_scc0 P2_n2b\ns_mov_b32 s58, 0\ns_branch P2_h2w\nP2_h2:\ns_load_dwordx4 s[28:31], s[6:7], 0 glc\ns_add_u32 s58, s58, 1\nP2_h2w:\ns_waitcnt lgkmcnt(0)")
            A(f"s_and_b32 s28, s28, s29\ns_and_b32 s30, s30, s31\ns_and_b32 s28, s28, s30\ns_cmp_ge_u32 s58, {SPIN}\ns_cbranch_scc1 P2_n2b\ns_cmp_eq_u32 s28, 0x03030303\ns_cbranch_scc0 P2_h2\nP2_n2b:")
        A(f"s_cmp_eq_u32 s{sCnt}, 9\ns_cbranch_scc0 P2_np\n{PL}\nP2_np:")
        A(f"s_cmp_eq_u32 s{sCnt}, 10\ns_cbranch_scc0 P2_b")
        A("s_waitcnt vmcnt(8)\nv_cmp_gt_u32 vcc, s57, v4\ns_mov_b32 s58, 0\ns_nop 3\ns_cbranch_vccz P2_ok")
        A(f"P2_l2:\n{PL}\ns_add_u32 s58, s58, 1\ns_waitcnt vmcnt(0)\nv_cmp_gt_u32 vcc, s57, v4")
        spin_tail("P2_l2")
        A("P2_ok:\ns_mov_b32 s57, 7")
        A("P2_b:")
        pad()
        issueW(); issueH()
        if pf2==3:
            A("s_cmp_eq_u32 s13, 24\ns_cselect_b32 s8, s14, s8\ns_cselect_b32 s9, s15, s9\ns_cmp_lt_u32 s13, 28\ns_cbranch_scc0 P2_nspf")
            spf()
            A("P2_nspf:")
        A(f"s_add_u32 s{sCnt}, s{sCnt}, 1\ns_cmp_lt_u32 s{sCnt}, 28\ns_cbranch_scc1 P2_loop")
    if not w6: A(("" if (la2 or tight2) else "s_waitcnt vmcnt(16)\ns_barrier\n")+"s_waitcnt vmcnt(8)\ns_barrier\ns_waitcnt vmcnt(0)\ns_barrier")
    if diag: stamp(5); rstamp(15); flush(16)
    A("s_endpgm")
    A(".p2align 6\nL_cons:")
    ACC=16; F=[(128,144),(172,188)]
    vX0,vX1,vE,vO,vL=4,5,6,7,8; bX0,bE,bL=9,10,11
    sWm,sWf,sIt,sRg,sA,sB,sC=46,47,48,49,58,7,59
    sHA,sH3,sRX2,sClr,sPf=50,51,4,5,6
    vOwn,vT3,vH,vW=232,233,235,[236,237,238,239]
    if pfc and not fast:
        A(f"s_getpc_b64 s[54:55]\nC_pc:\ns_sub_u32 s54, s54, C_pc-{NAME}\ns_subb_u32 s55, s55, 0")
        A(f"v_lshlrev_b32 v3, 7, v0\nv_min_u32 v3, L_end-{NAME}, v3\nglobal_load_dword v255, v3, s[54:55]")
    if pf1==1 and not fast:
        A(f"v_and_b32 v15, 31, v2\nv_lshlrev_b32 v15, 7, v15\ns_lshl_b32 s{sA}, s2, 2\ns_add_u32 s{sA}, s{sA}, s3\ns_lshl_b32 s{sA}, s{sA}, 12")
    if pf1==3:
        A(f"v_and_b32 v15, 7, v2\nv_lshlrev_b32 v15, 7, v15\nv_bfe_u32 v14, v2, 3, 1\nv_lshl_add_u32 v15, v14, 11, v15\ns_lshl_b32 s{sA}, s2, 2\ns_add_u32 s{sA}, s{sA}, s3\ns_lshl_b32 s{sA}, s{sA}, 12\nv_mov_b32 v252, v15")
    if pf1==2:
        A(f"v_lshlrev_b32 v15, 7, v2\ns_lshr_b32 s{sA}, s2, 3\ns_lshl_b32 s{sA}, s{sA}, 2\ns_add_u32 s{sA}, s{sA}, s3\ns_lshl_b32 s{sA}, s{sA}, 13\ns_lshr_b32 s{sB}, s{sXcd}, 1\ns_lshl_b32 s{sB}, s{sB}, 20\ns_add_u32 s{sA}, s{sA}, s{sB}")
    A("s_waitcnt lgkmcnt(0)")
    if pf1==5: srd(A,SX,4,X_BYTES)
    elif pf1 and not (fast and pf1==1):
        srd(A,SX,4,X_BYTES)
        A(f"buffer_load_dword v253, v15, {R4(SX)}, s{sA} offen")
        if pf1==3: srd(A,SW1,6,W_BYTES)
    if diag==5: stamp(6)
    if cprio: A(f"s_setprio {cprio}")
    A(f"s_lshr_b32 s{sWm}, s3, 1\ns_and_b32 s{sWf}, s3, 1")
    A("v_and_b32 v3, 15, v2\nv_lshrrev_b32 v12, 4, v2")
    A("v_lshrrev_b32 v13, 1, v3\nv_xor_b32 v13, v13, v12\nv_lshlrev_b32 v13, 4, v13")
    A(f"s_lshl_b32 s{sA}, s{sWm}, 13\nv_lshlrev_b32 v14, 7, v3\nv_add3_u32 v{bX0}, v13, v14, s{sA}")
    A("v_lshrrev_b32 v13, 1, v12\nv_mul_u32_u24 v13, 7168, v13\nv_bfe_u32 v15, v2, 2, 2\nv_lshl_add_u32 v13, v15, 6, v13\nv_and_b32 v15, 3, v2\nv_lshl_add_u32 v13, v15, 3, v13")
    A(f"v_and_b32 v14, 1, v12\nv_mul_u32_u24 v15, 1056, v14\ns_lshl_b32 s{sA}, s{sWf}, 9\ns_add_u32 s{sA}, s{sA}, {WOFF}\nv_add3_u32 v{bE}, v13, v15, s{sA}")
    A(f"v_mul_u32_u24 v15, 544, v14\nv_add_u32 v13, v13, v15\ns_lshl_b32 s{sA}, s{sWf}, 5\nv_xor_b32 v13, s{sA}, v13\nv_add_u32 v{bL}, {WOFF+6144}, v13")
    VF=248
    if late2:
        for n in range(4): A(f"v_mov_b32 v{VF+n}, {OOB}")
    else: fragoffs(VF)
    A(f"v_add_u32 v{vE}, {2*WST}, v{bE}\nv_mov_b32 v{vX0}, v{bX0}\nv_add_u32 v{vL}, {2*WST}, v{bL}\nv_xor_b32 v{vO}, 32, v{vE}\nv_xor_b32 v{vX1}, 64, v{vX0}")
    srd(A,SO,10,O_BYTES); srd(A,SWS,14,0x10000000); srd(A,SW2,8,W_BYTES)
    if diag==5 or not spub: srd(A,SD,12,256)
    A("v_lshlrev_b32 v3, 4, v2")
    A(f"s_lshr_b32 s56, s{sLid}, 3\ns_lshl_b32 s56, s56, 10\ns_lshl_b32 s{sB}, s{sFt8}, 2\ns_add_u32 s56, s56, s{sB}\ns_add_u32 s56, s56, {F_OFF+fch*128}")
    if lead:
        A(f"s_cmp_eq_u32 s{sFt}, 0\ns_cselect_b32 s{sB}, 16, 0\nv_lshrrev_b32 v13, 3, v2\nv_lshlrev_b32 v13, 10, v13\nv_and_b32 v1, 7, v2\nv_lshl_add_u32 v13, v1, 2, v13")
        A(f"v_mov_b32 v1, {OOB}\nv_cmp_gt_u32 vcc, s{sB}, v2\ns_nop 1\nv_cndmask_b32 v1, v1, v13, vcc")
    else:
        A(f"v_mov_b32 v1, {OOB}\nv_cmp_eq_u32 vcc, 0, v2\ns_nop 1\nv_cndmask_b32 v1, v1, 0, vcc")
    A(f"s_andn2_b32 s57, s{sLid}, 7\ns_add_u32 s57, s57, s{sDt}\ns_lshl_b32 s57, s57, 2\ns_add_u32 s57, s57, s3\ns_mul_i32 s57, s57, {QS}\ns_add_u32 s57, s57, {P_OFF}")
    A0=A
    if late>=0: A=Asm()
    if late2: assert 0<=late<cbase; fragoffs(VF,A,(13,14,15))
    A(f"s_lshl_b32 s52, s{sWm}, 12\nv_add_u32 v{vH}, s52, v3")
    A("v_lshrrev_b32 v13, 5, v2\nv_lshlrev_b32 v13, 11, v13\nv_bfe_u32 v14, v2, 4, 1\nv_mul_u32_u24 v14, 288, v14\nv_add_u32 v13, v13, v14")
    A("v_bfe_u32 v15, v2, 2, 2\nv_lshl_add_u32 v13, v15, 6, v13\nv_and_b32 v15, 3, v2\nv_lshl_add_u32 v13, v15, 3, v13")
    A(f"s_lshl_b32 s52, s{sJ}, 1\ns_add_u32 s52, s52, s{sWf}\ns_lshl_b32 s52, s52, 9\ns_add_u32 s52, s52, 65536\nv_add_u32 v{vW[0]}, s52, v13")
    A(f"v_xor_b32 v{vW[1]}, 32, v{vW[0]}\nv_xor_b32 v{vW[2]}, 0x400, v{vW[0]}\nv_xor_b32 v{vW[3]}, 0x420, v{vW[0]}")
    A(f"s_add_u32 s62, s{sFt8}, s3\ns_and_b32 s62, s62, {rmask}\ns_add_u32 s62, s62, {l2st+5}")
    A(f"s_mul_i32 s{sHA}, s{sMt}, 112\ns_mul_i32 s{sH3}, s{sFt}, 7\ns_add_u32 s{sHA}, s{sHA}, s{sH3}\ns_and_b32 s52, s{sFt8}, 1")
    A(f"s_xor_b32 s53, s52, 1\ns_mul_i32 s53, s53, 6\ns_add_u32 s{sH3}, s{sHA}, s53\ns_add_u32 s{sHA}, s{sHA}, s52\ns_add_u32 s{sHA}, s{sHA}, s{sWf}")
    A(f"s_mul_i32 s52, s{sWm}, {QS}\ns_mul_i32 s{sHA}, s{sHA}, {CH}\ns_add_u32 s{sHA}, s{sHA}, s52\ns_mul_i32 s{sH3}, s{sH3}, {CH}\ns_add_u32 s{sH3}, s{sH3}, s52\ns_lshl_b32 s52, s{sWm}, 12")
    A(f"s_lshl_b32 s53, s{sWf}, 13\ns_add_u32 s52, s52, s53\nv_add_u32 v{vOwn}, s52, v3")
    A(f"v_bfe_u32 v13, v2, 4, 1\nv_lshlrev_b32 v13, 3, v13\nv_lshrrev_b32 v14, 5, v2\nv_lshl_add_u32 v13, v14, 1, v13\nv_bfe_u32 v14, v2, 3, 1\ns_lshl_b32 s52, s{sWf}, 2\nv_add3_u32 v13, v13, v14, s52")
    A("v_add_u32 v14, 16, v13\nv_and_b32 v15, 7, v2\nv_lshlrev_b32 v15, 4, v15")
    physline(vT3,13,12,A); physline(vT3+1,14,12,A)
    A(f"v_add_u32 v{vT3}, v{vT3}, v15\nv_add_u32 v{vT3+1}, v{vT3+1}, v15")
    A("v_mov_b32 v12, 1\ns_mov_b32 s52, 0xbfb8aa3b\ns_mov_b32 s53, 0xbfb8aa3b\ns_mov_b32 s54, 1.0\ns_mov_b32 s55, 1.0")
    if late>=0:
        LATE=A.text().rstrip(); A=A0
        A(f"v_mov_b32 v{vT3}, {OOB}\nv_mov_b32 v{vT3+1}, {OOB}")
    for r in range(112): A(f"v_mov_b32 v{ACC+r}, 0")
    for r in range(4): A(f"v_mov_b32 v{244+r}, -1")
    def hook(it, body, name, reg=None):
        OOL.append(f"{name}:\n{body}\ns_branch {name}_b")
        return [f"s_cmp_eq_u32 s{reg or sIt}, {it}", f"s_cbranch_scc1 {name}\n{name}_b:"]
    def reads1(u, fs):
        X,W=F[fs]
        xs=[f"ds_read_b128 {vr(X+4*i,4)}, v{vX1 if u else vX0} offset:{i*2048}" for i in range(4)]
        ws=[]
        for j in range(7):
            a,o=(vL,0) if j==6 else ((vO if j&1 else vE),(j>>1)*2048)
            for hh in range(2): ws.append(f"ds_read_b64_tr_b16 {vr(W+4*j+2*hh,2)}, v{a} offset:{u*14336+o+hh*256}")
        return ws[0:2]+xs+ws[2:]
    def mf1(fs):
        X,W=F[fs]
        return [f"v_mfma_f32_16x16x32_bf16 {vr(ACC+(j*4+i)*4,4)}, {vr(W+4*j,4)}, {vr(X+4*i,4)}, {vr(ACC+(j*4+i)*4,4)}" for j,i in snake(range(7),4)]
    A(f"s_mov_b32 s{sIt}, 0\ns_mov_b32 s{sRg}, {2*WST}\ns_mov_b32 s{sRX2}, 0\ns_lshl_b32 s{sClr}, s3, {1 if cmask==7 else 0}\ns_add_u32 s{sClr}, s{sClr}, s{sFt8}\ns_and_b32 s{sClr}, s{sClr}, {cmask}\ns_add_u32 s{sClr}, s{sClr}, {cbase}")
    if two: A(f"s_mov_b32 s0, {1|4|(1<<ack)}")
    A(f"s_mul_i32 s{sPf}, s3, {pfb}\ns_add_u32 s{sPf}, s{sPf}, {pfa}")
    if pf2==2: A(f"v_min_u32 v15, 55, v2\nv_lshlrev_b32 v15, 7, v15\ns_lshl_b32 s{sA}, s2, 2\ns_add_u32 s{sA}, s{sA}, s3\ns_mul_i32 s{sA}, s{sA}, 7168\nbuffer_load_dword v255, v15, {R4(SW2)}, s{sA} offen")
    if diag in (2,3,6): A("s_mov_b32 m0, 0")
    clr="\n".join([f"buffer_store_dwordx4 v[244:247], v{VF+i}, {R4(SWS)}, s57 offen sc1" for i in range(4)])
    fclr=f"v_mov_b32 v13, 0\nbuffer_store_dword v13, v1, {R4(SWS)}, s56 offen sc1"
    if sep: assert lead; A(fclr)
    elif not two: clr=clr+"\n"+fclr
    if clr0: A(clr)
    if diag==5: stamp(8)
    if walk:
        A(f"s_cmp_ge_u32 s3, {walk}\ns_cbranch_scc1 C_walked\ns_waitcnt vmcnt({(1 if pf1 else 0)+(1 if sep else 0)})\ns_mov_b64 exec, 0")
        for w in range(walk-1): A(f"s_cmp_eq_u32 s3, {w}\ns_cbranch_scc1 @START{w}@")
        A(f"s_branch @START{walk-1}@\nC_wret:\ns_mov_b64 exec, -1\nC_walked:")
    if diag==5: stamp(9)
    A("s_barrier")
    stamp(1)
    for l in reads1(0,0): A(l)
    A("s_waitcnt lgkmcnt(0)")
    A(f".p2align {al}\nC1_loop:")
    sstamp()
    ex=[f"s_add_u32 s{sRg}, s{sRg}, {WST}\ns_add_u32 s{sRX2}, s{sRX2}, 16384", f"s_cmp_eq_u32 s{sRg}, {WST*3}\ns_cselect_b32 s{sRg}, 0, s{sRg}",
        f"v_add_u32 v{vE}, s{sRg}, v{bE}\ns_and_b32 s{sRX2}, s{sRX2}, 0xffff", f"v_add_u32 v{vX0}, s{sRX2}, v{bX0}", f"v_add_u32 v{vL}, s{sRg}, v{bL}",
        f"v_xor_b32 v{vO}, 32, v{vE}", f"v_xor_b32 v{vX1}, 64, v{vX0}"]
    if not clr0: ex+=hook(f"s{sClr}" if stag else 2,clr,"H1_clr")
    for l in interleave(mf1(0), reads1(1,1)+ex): A(l)
    A("s_waitcnt lgkmcnt(0)\ns_barrier")
    pub=(f"s_cmp_eq_u32 s3, 0\ns_cbranch_scc0 H1_pub_b\ns_and_b32 s{sA}, s{sLid}, 3\ns_lshl_b32 s{sA}, s{sA}, 3\ns_lshl_b32 s{sA}, 1, s{sA}\nv_mov_b32 v13, s{sA}\n"
         f"s_andn2_b32 s{sA}, s{sLid}, 3\nv_lshlrev_b32 v14, 8, v2\nbuffer_atomic_or v13, v14, {R4(SD)}, s{sA} offen")
    if two:
        h=hook(0,f"s_cmp_eq_u32 s{sIt}, 0\ns_cbranch_scc1 H1_fc\ns_waitcnt vmcnt(0)\ns_branch H1_ack_b\nH1_fc:\n{fclr}","H1_ack")
        h[0]=f"s_bitcmp1_b32 s0, s{sIt}"
    else: h=hook(ack,"s_waitcnt vmcnt(0)","H1_ack")
    ex=h+([] if spub else hook(ack+1,pub,"H1_pub"))
    if late>=0: ex+=hook(late,(PAD+"\n" if walk else "")+LATE,"H1_late")
    if xp_n: ex+=hook(xp_it,f"s_sleep {xp_n}","H1_xp")
    if pf1==5: ex+=hook(pfi,f"v_xor_b32 v252, 0x400, v252\ns_nop 0\nbuffer_load_dword v253, v252, {R4(SX)}, 0 offen","H1_pf1")
    if pf1==3:
        nl=(16-w1s)*64*56//1024
        ex+=hook(pfi,f"s_lshl_b32 s{sA}, s2, 2\ns_add_u32 s{sA}, s{sA}, s3\ns_mul_i32 s{sB}, s{sA}, {nl*128}\ns_add_u32 s{sB}, s{sB}, {w1s*64*7168}\ns_lshl_b32 s{sA}, s{sA}, 12\n"
                     f"v_min_u32 v15, {nl-1}, v2\nv_lshlrev_b32 v15, 7, v15\nbuffer_load_dword v255, v15, {R4(SW1)}, s{sB} offen\nbuffer_load_dword v253, v252, {R4(SX)}, s{sA} offen offset:1024","H1_pf1")
    if pf2==4:
        ex+=hook(f"s{sPf}",f"s_lshl_b32 s{sA}, s2, 2\ns_add_u32 s{sA}, s{sA}, s3\ns_lshr_b32 s{sB}, s{sA}, 6\ns_and_b32 s60, s{sB}, 1\ns_mul_i32 s{sB}, s{sB}, 7\n"
                     f"s_add_u32 s61, s{sB}, s60\ns_add_u32 s61, s61, 4\ns_lshl_b32 s61, s61, 16\ns_xor_b32 s60, s60, 1\ns_mul_i32 s60, s60, 6\ns_add_u32 s{sB}, s{sB}, s60\ns_lshl_b32 s{sB}, s{sB}, 16\n"
                     f"s_and_b32 s{sA}, s{sA}, 63\ns_lshl_b32 s60, s{sA}, 11\ns_add_u32 s61, s61, s60\ns_lshl_b32 s60, s{sA}, 10\ns_add_u32 s{sB}, s{sB}, s60\n"
                     f"v_and_b32 v15, 15, v2\nv_lshlrev_b32 v15, 7, v15\nv_and_b32 v14, 7, v2\nv_lshlrev_b32 v14, 7, v14\n"
                     f"buffer_load_dword v255, v15, {R4(SW2)}, s61 offen\nbuffer_load_dword v253, v14, {R4(SW2)}, s{sB} offen","H1_pf")
    if pf2==1:
        ex+=hook(f"s{sPf}",f"v_min_u32 v15, 55, v2\nv_lshlrev_b32 v15, 7, v15\ns_lshl_b32 s{sA}, s2, 2\ns_add_u32 s{sA}, s{sA}, s3\ns_mul_i32 s{sA}, s{sA}, 7168\nbuffer_load_dword v255, v15, {R4(SW2)}, s{sA} offen","H1_pf")
    ex+=([PAD] if walk else [])+[f"s_add_u32 s{sIt}, s{sIt}, 1", f"s_cmp_lt_u32 s{sIt}, 16"]
    x=interleave(mf1(1), reads1(0,0)+ex)
    if x[-1].startswith("v_mfma"):
        for l in x[:-1]: A(l)
        A("s_waitcnt lgkmcnt(0)"); A(x[-1])
    else:
        for l in x: A(l)
        A("s_waitcnt lgkmcnt(0)")
    A("s_cbranch_scc1 C1_loop")
    stamp(2)
    T=216
    def silu(a, b, D):
        t=T; src=[a,a+2,b,b+2]
        for r in range(4): A(f"v_pk_mul_f32 {vr(t+2*r,2)}, s[52:53], {vr(src[r],2)}")
        for r in range(8): A(f"v_exp_f32 v{t+r}, v{t+r}")
        for r in range(4): A(f"v_pk_add_f32 {vr(t+2*r,2)}, s[54:55], {vr(t+2*r,2)}")
        for r in range(8): A(f"v_rcp_f32 v{t+r}, v{t+r}")
        for r in range(4): A(f"v_pk_mul_f32 {vr(t+2*r,2)}, {vr(t+2*r,2)}, {vr(src[r],2)}")
        for r in range(4): A(f"v_cvt_pk_bf16_f32 v{D+r}, v{t+2*r}, v{t+2*r+1}")
    def gst(D,i): return f"buffer_store_dwordx4 {vr(D,4)}, v{VF+i}, {R4(SWS)}, s{sHA} offen sc1"
    FLAG="s_nop 0"
    DL=[160,128,144]; D3=224
    for L in range(3):
        for i in range(4):
            D=DL[L]+4*i
            if i%2==0: pad()
            silu(ACC+((2*L)*4+i)*4, ACC+((2*L+1)*4+i)*4, D)
            if L==0 or (L==2 and l1epi>=2) or (L==1 and i>=nb and l1epi): A(gst(D,i))
            A(f"ds_write_b128 v{vOwn}, {vr(D,4)} offset:{L*16384+i*1024}")
            if L==1 and i==nb-1:
                stamp(11); A("s_waitcnt vmcnt(0)"); stamp(12)
                A(f"s_add_u32 s{sHA}, s{sHA}, {2*CH}\ns_waitcnt lgkmcnt(0)\ns_barrier")
                if l1epi:
                    for k in range(nb): A(gst(128+4*k,k))
        if L==1 and l1epi: A(f"s_add_u32 s{sHA}, s{sHA}, {2*CH}")
    F2=[(160,176),(192,208)]
    def rdH(X,slot,u): return [f"ds_read_b128 {vr(X+4*i,4)}, v{vH} offset:{slot*16384+u*8192+i*1024}" for i in range(4)]
    DYN=[w6]
    def rdW(W,slot,u,js): return [f"ds_read_b64_tr_b16 {vr(W+4*n+2*hh,2)}, v{vW[j]} offset:{(0 if DYN[0] else slot)*16384+(4*u+2*hh)*2048}" for n,j in enumerate(js) for hh in range(2)]
    WU=[f"v_add_u32 v{vW[0]}, s{sRg}, v240", f"v_xor_b32 v{vW[1]}, 32, v{vW[0]}", f"v_xor_b32 v{vW[2]}, 0x400, v{vW[0]}", f"v_xor_b32 v{vW[3]}, 0x420, v{vW[0]}"] if w6 else []
    WS=[f"s_add_u32 s{sRg}, s{sRg}, 16384", f"s_cmp_eq_u32 s{sRg}, {6*16384}\ns_cselect_b32 s{sRg}, 0, s{sRg}"] if w6 else []
    def reads2(slot,u,fs):
        X,W=F2[fs]; ws=rdW(W,slot,u,range(4)); return ws[0:2]+rdH(X,slot,u)+ws[2:]
    def mfm(X,W,js,zero=False,w0=0):
        return [f"v_mfma_f32_16x16x32_bf16 {vr(ACC+(j*4+i)*4,4)}, {vr(W+4*(j-w0),4)}, {vr(X+4*i,4)}, {'0' if zero else vr(ACC+(j*4+i)*4,4)}" for j,i in snake(js,4)]
    def mf2(fs,zero=False): return mfm(F2[fs][0],F2[fs][1],range(4),zero)
    for l in reads2(0,0,0): A(l)
    for ip in range(2):
        D=D3+4*ip; a=ACC+(24+2*ip)*4
        if ip==0: pad()
        silu(a,a+4,D)
        A(f"s_nop 1\nv_permlane16_swap_b32 v{D}, v{D+2}\nv_permlane16_swap_b32 v{D+1}, v{D+3}")
        if l1epi>=3: A(f"buffer_store_dwordx4 {vr(D,4)}, v{vT3+ip}, {R4(SWS)}, s{sH3} offen sc1")
    A(f"v_mov_b32 v12, {7 if l1epi==3 else 3}\ns_mov_b32 s{sIt}, 0")
    if w6: A(f"v_mov_b32 v240, v{vW[0]}\ns_mov_b32 s{sRg}, 16384")
    stamp(3); stamp(4)
    sstamp()
    A("s_waitcnt lgkmcnt(0)")
    for l in interleave(mf2(0,True), reads2(0,1,1)+(WU if w6 else ([PAD] if walk else []))): A(l)
    A("s_branch C2_in")
    dw={}; dws={}
    t3st=[f"buffer_store_dwordx4 {vr(D3+4*ip,4)}, v{vT3+ip}, {R4(SWS)}, s{sH3} offen sc1" for ip in range(2)]
    ADV=f"\ns_add_u32 s{sHA}, s{sHA}, {2*CH}"
    L1s=[gst(128+4*i,i) for i in range(4)]; L2s=[gst(144+4*i,i) for i in range(4)]
    F3=f"s_waitcnt vmcnt(0)\n{FLAG}"; F7=f"v_mov_b32 v12, 7\ns_waitcnt vmcnt(0)\n{FLAG}"
    J="\n".join
    if sched==1:
        dw[(0,1)]=J(L1s[:2]); dw[(1,0)]=J(L1s[2:])+ADV; dw[(1,1)]=J(L2s[:2]); dw[(2,0)]=J(L2s[2:]); dw[(2,1)]=J(t3st); dw[(4,0)]=F7
    elif sched==2:
        dw[(0,1)]=J(L1s[:2]); dw[(1,0)]=J(L1s[2:])+ADV; dw[(3,0)]=F3
        dw[(3,1)]=L2s[0]; dw[(4,0)]=L2s[1]; dw[(4,1)]=L2s[2]; dw[(5,0)]=L2s[3]; dw[(5,1)]=t3st[0]; dw[(6,0)]=t3st[1]; dw[(10,0)]=F7
    elif sched==3:
        dw[(0,1)]=L1s[0]; dw[(1,0)]=L1s[1]; dw[(1,1)]=L1s[2]; dw[(2,0)]=L1s[3]+ADV; dw[(3,1)]=F3
        dw[(4,0)]=L2s[0]; dw[(4,1)]=L2s[1]; dw[(5,0)]=L2s[2]; dw[(5,1)]=L2s[3]; dw[(6,0)]=t3st[0]; dw[(6,1)]=t3st[1]; dw[(11,0)]=F7
    elif sched==4:
        dw[(0,1)]=J(L1s)+ADV; dw[(1,1)]=J(L2s); dw[(2,1)]=J(t3st); dw[(4,0)]=F7
    elif sched==9:
        dw[(1,1)]=F7
    elif sched==5:
        dw[(0,1)]=J(L2s[:2]); dw[(1,0)]=J(L2s[2:]); dw[(1,1)]=J(t3st); dw[(3,1)]=F7
    else:
        if not l1epi:
            dw[(l1st,0)]=gst(128,0)+"\n"+gst(132,1); dw[(l1st,1)]=gst(136,2)+"\n"+gst(140,3)+f"\ns_add_u32 s{sHA}, s{sHA}, {2*CH}"
            dw[(l1st+2,1)]=f"s_waitcnt vmcnt(0)\n{FLAG}"
        else:
            dw[(l1st,1)]=f"s_waitcnt vmcnt(0)\n{FLAG}"
        if l1epi>=2:
            if l1epi==2: dw[(l2st,0)]="\n".join(t3st)
            if l1epi==2: dw[(f3,1)]=f"v_mov_b32 v12, 7\ns_waitcnt vmcnt(0)\n{FLAG}"
        elif not stag2:
            dw[(l2st,0)]=gst(144,0)+"\n"+gst(148,1); dw[(l2st+1,0)]=gst(152,2)+"\n"+gst(156,3)+"\nv_mov_b32 v12, 7"
            dw[(l2st+2,0)]="\n".join(t3st)
            dw[(l2st+5,1)]=f"s_waitcnt vmcnt(0)\n{FLAG}"
        else:
            dw[(f3,1)]=f"v_mov_b32 v12, 7\ns_waitcnt vmcnt(0)\n{FLAG}"
            body=[gst(144+4*i,i) for i in range(4)]+t3st
            o="H2_st:\n"
            for n,b in enumerate(body):
                o+=f"s_cmp_eq_u32 s62, {5-n}\ns_cbranch_scc0 H2_st{n}\n{b}\nH2_st{n}:\n"
            o+="s_setpc_b64 s[54:55]"
            OOL.append(o)
    def hooks2(slot,u):
        ex=[]
        for (q,uu),body in sorted(dw.items()):
            if q%4==slot and uu==u: ex+=hook(q//4,body,f"H2_{q}_{uu}")
        if stag2 and l1epi<2 and u==0 and not sched:
            ex+=["s_sub_u32 s62, s62, 1\ns_cmp_lt_u32 s62, 6", f"s_cbranch_scc1 H2_go{slot}\nH2_ns{slot}:"]
            OOL.append(f"H2_go{slot}:\ns_call_b64 s[54:55], H2_st\ns_branch H2_ns{slot}")
        assert len(ex)<=4, (slot,u,ex)
        return ex
    A(f".p2align {al}\nC2_loop:")
    for slot in range(4):
        sstamp()
        for l in interleave(mf2(0), reads2(slot,1,1)+hooks2(slot,0)+(WU if w6 else ([PAD] if walk else []))): A(l)
        if slot==0: A("C2_in:")
        A("s_waitcnt lgkmcnt(0)\ns_barrier")
        ex=WS+hooks2(slot,1)
        if w6 and walk and len(ex)<=3 and slot!=3: ex=ex+[PAD]
        if slot==3: ex+=[f"s_add_u32 s{sIt}, s{sIt}, 1", f"s_cmp_lt_u32 s{sIt}, 6"]
        x=interleave(mf2(1), reads2((slot+1)&3,0,0)+ex)
        if x[-1].startswith("v_mfma"):
            for l in x[:-1]: A(l)
            A("s_waitcnt lgkmcnt(0)"); A(x[-1])
        else:
            for l in x: A(l)
            A("s_waitcnt lgkmcnt(0)")
    A("s_cbranch_scc1 C2_loop")
    stamp(13)
    if diag: A("s_waitcnt lgkmcnt(0)")
    DYN[0]=0
    G=[dict(H=[160,80],W=[184,96]), dict(H=[192,104],W=[208,216])]
    def rdS(g,slot,js,us=(0,1)):
        o=[]
        for u in us:
            w=rdW(G[g]['W'][u],slot,u,js); o+=w[0:2]+rdH(G[g]['H'][u],slot,u)+w[2:]
        return o
    def mfS(g,js): return mfm(G[g]['H'][0],G[g]['W'][0],js,w0=js[0])+mfm(G[g]['H'][1],G[g]['W'][1],js,w0=js[0])
    for l in rdS(0,0,(2,3),(1,)): A(l)
    pad()
    A("s_barrier")
    m=mfS(0,(2,3)); r=rdS(1,1,(2,3))
    x=interleave(m[:8], r[:8])
    for l in x: A(l)
    A("s_waitcnt lgkmcnt(8)")
    for l in interleave(m[8:], r[8:]): A(l)
    for q in (1,2):
        if q==2: pad()
        A("s_waitcnt lgkmcnt(0)\ns_barrier")
        for l in interleave(mfS(q&1,(2,3)), rdS((q+1)&1,q+1,(2,3))): A(l)
    A(f"s_mul_i32 s52, s{sJ}, {-2*32*QS}\ns_add_u32 s52, s52, {32*QS}\ns_add_u32 s52, s52, s57\ns_mov_b32 s53, -2")
    sn=[]
    for i in range(4):
        D=128+4*i; t=[]
        for n,j in enumerate((2,3)):
            S=ACC+(j*4+i)*4
            t+= [f"v_cvt_pk_bf16_f32 v{D+2*n}, v{S}, v{S+1}", f"v_cvt_pk_bf16_f32 v{D+2*n+1}, v{S+2}, v{S+3}"]
        t+=[f"v_min_u32 v{D+r}, s53, v{D+r}" for r in range(4)]
        t.append(f"buffer_store_dwordx4 {vr(D,4)}, v{VF+i}, {R4(SWS)}, s52 offen sc1")
        sn.append(t)
    A("s_waitcnt lgkmcnt(0)")
    if esend:
        g=G[1]; r=rdS(0,0,(0,1)); k=0
        for i in range(4):
            for u,j in ((0,2),(0,3),(1,3),(1,2)):
                A(f"v_mfma_f32_16x16x32_bf16 {vr(ACC+(j*4+i)*4,4)}, {vr(g['W'][u]+4*(j-2),4)}, {vr(g['H'][u]+4*i,4)}, {vr(ACC+(j*4+i)*4,4)}")
                A(r[k]); k+=1
            if i>=1:
                for l in sn[i-1]: A(l)
        stamp(5)
        pad()
        A("s_waitcnt lgkmcnt(0)")
        m=mfS(0,(0,1)); r=rdS(1,1,(0,1))
        for n,mm_ in enumerate(m):
            A(mm_); A(r[n])
            if n==2:
                for l in sn[3]: A(l)
    else:
        for l in interleave(mfS(1,(2,3)), rdS(0,0,(0,1))): A(l)
        stamp(5)
        pad()
        snd=sum(sn,[])
        A("s_waitcnt lgkmcnt(0)")
        m=mfS(0,(0,1)); r=rdS(1,1,(0,1))
        k=0
        for n,mm_ in enumerate(m):
            A(mm_); A(r[n])
            if packfirst and n==1:
                A("s_nop 3")
                while k<len(snd): A(snd[k]); k+=1
            if n>=3:
                for _ in range(3):
                    if k<len(snd): A(snd[k]); k+=1
        while k<len(snd): A(snd[k]); k+=1
    if diag!=5: stamp(6)
    RB=144 if dual else 80; RB2=224
    def LDs(b): return [f"buffer_load_dwordx4 {vr(b+4*i,4)}, v{VF+i}, {R4(SWS)}, s57 offen sc1" for i in range(4)]
    LD=LDs(RB)
    for q in (1,2):
        pad()
        A("s_waitcnt lgkmcnt(0)")
        x=interleave(mfS(q&1,(0,1)), rdS((q+1)&1,q+1,(0,1)))
        if dual==q:
            for n in range(4): x.insert(2+3*n+n,LD[n])
        for l in x: A(l)
    A("s_waitcnt lgkmcnt(0)")
    adr=["v_and_b32 v13, 15, v2","v_lshlrev_b32 v13, 11, v13","v_bfe_u32 v14, v2, 4, 1","v_lshl_add_u32 v13, v14, 5, v13","v_lshrrev_b32 v14, 5, v2","v_lshl_add_u32 v13, v14, 4, v13",
         f"s_lshl_b32 s{sC}, s{sMt}, 1\ns_add_u32 s{sC}, s{sC}, s{sWm}", f"s_lshl_b32 s{sC}, s{sC}, 17\ns_lshl_b32 s52, s{sDt}, 8", f"s_add_u32 s{sC}, s{sC}, s52\ns_lshl_b32 s52, s{sJ}, 7",
         f"s_add_u32 s{sC}, s{sC}, s52\ns_lshl_b32 s52, s{sWf}, 6", f"s_add_u32 s{sC}, s{sC}, s52\ns_mov_b32 s58, 0"]
    def chk():
        A(f"v_max3_u32 v14, v{RB}, v{RB+1}, v{RB+2}")
        for r in range(3,15,2): A(f"v_max3_u32 v14, v14, v{RB+r}, v{RB+r+1}")
        A(f"v_max_u32 v14, v14, v{RB+15}\nv_cmp_eq_u32 vcc, -1, v14")
    if dual:
        for l in interleave(mfS(1,(0,1)), LDs(80)+adr): A(l)
        A("s_waitcnt vmcnt(4)"); chk()
        A("s_nop 4\ns_cbranch_vccz C3_ok\ns_waitcnt vmcnt(0)")
        for r in range(16): A(f"v_mov_b32 v{RB+r}, v{80+r}")
    else:
        for l in interleave(mfS(1,(0,1)), adr[:ldpos]+LD+adr[ldpos:]): A(l)
    if diag and diag!=5: stamp(8)
    pad()
    A("s_branch C3_chk")
    A("C3_poll:")
    for l in LD: A(l)
    A("C3_chk:\ns_add_u32 s58, s58, 1\ns_waitcnt vmcnt(0)")
    chk()
    spin_tail("C3_poll")
    A("C3_ok:")
    stamp(7)
    if diag: A("s_mov_b32 s86, s58")
    A("s_mov_b32 s53, 0xffff0000")
    for i in range(4):
        D=128+4*i
        for n in range(2):
            S=ACC+(n*4+i)*4
            for h in range(2):
                Rr=RB+4*i+2*n+h
                A(f"v_lshlrev_b32 v{T}, 16, v{Rr}\nv_and_b32 v{T+1}, s53, v{Rr}\nv_pk_add_f32 {vr(S+2*h,2)}, {vr(S+2*h,2)}, {vr(T,2)}")
                A(f"v_cvt_pk_bf16_f32 v{D+2*n+h}, v{S+2*h}, v{S+2*h+1}")
        A(f"s_nop 1\nv_permlane16_swap_b32 v{D}, v{D+2}\nv_permlane16_swap_b32 v{D+1}, v{D+3}")
        A(f"buffer_store_dwordx4 {vr(D,4)}, v13, {R4(SO)}, s{sC} offen {outaux}")
        if i<3: A(f"s_add_u32 s{sC}, s{sC}, 0x8000")
        if i==0: pad()
    if diag:
        if diag!=5: stamp(9)
        A("s_waitcnt vmcnt(0)"); stamp(10); rstamp(15); flush(16,True)
    A("s_endpgm")
    if walk: A(PAD+"\ns_endpgm")
    for b in OOL: A(b)
    A("L_end:\ns_endpgm")
    A(f""".section .rodata,"a"
.p2align 6
.amdhsa_kernel {NAME}
  .amdhsa_next_free_vgpr 256
  .amdhsa_next_free_sgpr 96
  .amdhsa_accum_offset 256
  .amdhsa_group_segment_fixed_size 0
  .amdhsa_kernarg_size 48
  .amdhsa_user_sgpr_count 2
  .amdhsa_user_sgpr_kernarg_segment_ptr 1
  .amdhsa_system_sgpr_workgroup_id_x 1
.end_amdhsa_kernel""")
    txt=A.text()
    if walk:
        n=txt.count("@PAD@"); parts=txt.split("@PAD@")
        starts=[round(w*n/walk) for w in range(walk)]
        out=parts[0]
        for k in range(n):
            nxt="C_wret" if (k+1==n or k+1 in starts) else f"PAD{k+1}"
            out+=f"PAD{k}:\ns_cbranch_execz {nxt}"+parts[k+1]
        for w in range(walk): out=out.replace(f"@START{w}@",f"PAD{starts[w]}")
        txt=out
    return txt

if __name__=="__main__":
    import inspect
    p=argparse.ArgumentParser(); p.add_argument("-o")
    for k,v in inspect.signature(build).parameters.items():
        p.add_argument("--"+k,type=type(v.default),default=v.default)
    a=vars(p.parse_args()); o=a.pop("o")
    open(o,"w").write(build(**a))
```

```python
import sys, argparse
NAME="standalone__dense_activation_silu__prompt_kernel"
class Asm:
    def __init__(self): self.L=[]
    def __call__(self, s):
        for l in s.split("\n"): self.L.append(l)
    def text(self): return "\n".join(self.L)+"\n"
def vr(a,n): return f"v[{a}:{a+n-1}]"
def srd(A, d, b, nbytes):
    A(f"s_mov_b32 s{d}, s{b}\ns_and_b32 s{d+1}, s{b+1}, 0xffff\ns_mov_b32 s{d+2}, {nbytes}\ns_mov_b32 s{d+3}, 0x20000")
X_BYTES=2048*1024*2; W_BYTES=1024*3584*2; O_BYTES=2048*1024*2
H_OFF=0; P_OFF=24<<20; F_OFF=48<<20; T_OFF=64<<20
SX,SW1,SW2,SO,SD,SWS=16,20,24,28,32,36
sMt,sJ,sFt8,sFt,sLid,sXcd,sDt=40,41,42,43,44,45,63
OOB=0x7ffffff0
SPIN=1<<17
def R4(s): return f"s[{s}:{s+3}]"

def interleave(mf, rd):
    out=[]; k=0
    for m in mf:
        out.append(m)
        if k<len(rd): out.append(rd[k]); k+=1
    return out+rd[k:]
ORDER='ji'
def snake(JS,NI):
    JS=list(JS)
    if ORDER=='ij': return [(j,i) for i in range(NI) for j in (JS if i%2==0 else JS[::-1])]
    return [(j,(i if n%2==0 else NI-1-i)) for n,j in enumerate(JS) for i in range(NI)]

def build(diag=0, rot=1, pf1=0, pf2=1, pfc=1, outaux="sc1", pfa=13, dswz=0, w1aux="", xaux="", w2aux="", l1st=1, l2st=4, stag=1, l1epi=1, rmask=1, f3=9, skew2=1, pfb=0, stag2=1, remap=1, spa=0, spb=13, spn=4, ack=6, ldearly=1, pfi=0, w1s=6, sched=0, fch=6, pdelay=0, nb=4, clr0=0, dual=0, tlb=0, packfirst=1, spub=1, vpoll=0, hsi=12, hsglc='', cmask=1, cbase=1, walk=2, w2e=0, order='ji', esend=1, ldpos=0, fast=1, la1=0, hd=4, la2=0, npoll=2, tearly=2, nsh=0, two=0, tight2=1, tight1=1, lead=1, tl=0, tlw=16, tl0=0, sep=1, xp_it=0, xp_n=0, late=-1, sl2=0, cprio=1, pprio=0, al=3, pj=1, w6=0, late2=0, pcw=0):
    global ORDER; ORDER=order
    assert ack+2!=hsi and tl not in (ack+5,hsi+3) and ack+2<=12 and (cbase+cmask<ack or sep) and nsh<=(4 if two else ack+2)
    A=Asm(); A_main=A; OOL=[]
    tm='s_memrealtime' if diag>=3 else 's_memtime'
    def stamp(k):
        if diag: A(f"{tm} s[{64+2*k}:{65+2*k}]")
    def rstamp(k):
        if diag: A(f"s_memrealtime s[{64+2*k}:{65+2*k}]")
    def sstamp():
        if diag==6: A(f"s_memtime s[90:91]\ns_memrealtime s[88:89]\ns_waitcnt lgkmcnt(0)\nv_writelane_b32 v254, s90, m0\nv_writelane_b32 v252, s88, m0\ns_add_u32 m0, m0, 1")
        if diag in (2,3): A(f"{tm} s[90:91]\ns_waitcnt lgkmcnt(0)\nv_writelane_b32 v254, s90, m0\ns_add_u32 m0, m0, 1")
    def flush(n, cons=False):
        if not diag: return
        if diag==5:
            ks=[6,8,9,1,2,4,5,10] if cons else [1,8,2,3,4,5]
            lab="DB_c" if cons else "DB_p"
            A(f"s_waitcnt lgkmcnt(0)\ns_and_b32 s60, s3, 3\ns_or_b32 s60, s60, s2\ns_cmp_eq_u32 s60, 0\ns_cbranch_scc0 {lab}\nv_lshlrev_b32 v1, 8, v2")
            for n_,k in enumerate(ks):
                A(f"s_sub_u32 s60, s{64+2*k}, s64\nv_mov_b32 v4, s60\nbuffer_store_dword v4, v1, {R4(SD)}, 0 offen offset:{4*(n_+(0 if cons else 8))} sc1")
            A(f"s_waitcnt vmcnt(0)\n{lab}:")
            return
        A(f"s_waitcnt lgkmcnt(0)\ns_lshl_b32 s60, s2, 3\ns_add_u32 s60, s60, s3\ns_lshl_b32 s60, s60, 8\ns_add_u32 s60, s60, {T_OFF}\nv_mov_b32 v1, 0")
        for k in range(n): A(f"v_mov_b32 v2, s{64+2*k}\nbuffer_store_dword v2, v1, {R4(SWS)}, s60 offen offset:{4*k}")
        if cons and diag>=2:
            A(f"v_and_b32 v1, 63, v0\nv_lshlrev_b32 v1, 2, v1\nv_mov_b32 v2, {OOB}\nv_cmp_gt_u32 vcc, 192, v1\ns_nop 1\nv_cndmask_b32 v1, v2, v1, vcc")
            A(f"buffer_store_dword v254, v1, {R4(SWS)}, s60 offen offset:64")
            if diag==6: A(f"s_add_u32 s60, s60, 0x80000\nbuffer_store_dword v252, v1, {R4(SWS)}, s60 offen offset:64")
        A("s_waitcnt vmcnt(0)")
    PAD='@PAD@' if walk else 's_nop 0'
    def pad():
        if walk: A(PAD)
    def spin_tail(label):
        A(f"s_cmp_lt_u32 s58, {SPIN}\ns_cselect_b64 s[60:61], -1, 0\ns_and_b64 vcc, vcc, s[60:61]\ns_cbranch_scc1 {label}")
    WST=28672; WOFF=65536
    QS=5120 if remap else 4096
    CH=2*QS
    def physline(dst,g,tmp,A=None):
        A=A or A_main
        if remap: A(f"v_add_u32 v{tmp}, 4, v{g}\nv_mul_u32_u24 v{tmp}, 37, v{tmp}\nv_lshrrev_b32 v{tmp}, 8, v{tmp}\nv_add_u32 v{tmp}, v{tmp}, v{g}\nv_lshlrev_b32 v{dst}, 7, v{tmp}")
        else: A(f"v_lshlrev_b32 v{dst}, 7, v{g}")
    def fragoffs(base,A=None,t=(4,5,6)):
        A=A or A_main
        A(f"v_and_b32 v{t[2]}, 7, v2\nv_lshlrev_b32 v{t[2]}, 4, v{t[2]}")
        for n in range(4):
            A(f"v_lshrrev_b32 v{t[1]}, 3, v2\nv_add_u32 v{t[1]}, {8*n}, v{t[1]}"); physline(base+n,t[1],t[0],A); A(f"v_add_u32 v{base+n}, v{base+n}, v{t[2]}")
    A("""; Fused feed-forward: out = silu(x @ w1) @ w2, bf16 in/out, fp32 accumulate.
; Kernarg (48 bytes): 0 x[2048,1024], 8 w1[1024,3584], 16 w2[3584,1024], 24 out[2048,1024], 32 debug(256B), 40 ws
; 256 workgroups, one per CU; waves 0-3 compute (MFMA), waves 4-7 stream tiles into LDS.
; @launch grid=(256,1,1) block=(512,1,1) lds="""+("163840" if w6 else "151552"))
    A('.amdgcn_target "amdgcn-amd-amdhsa--gfx950"\n.text')
    A(f".globl {NAME}\n.p2align 8\n.type {NAME},@function\n{NAME}:")
    A("s_load_dwordx8 s[4:11], s[0:1], 0\ns_load_dwordx4 s[12:15], s[0:1], 32")
    A("s_cmp_ge_u32 s2, 256\ns_cbranch_scc1 L_end")
    stamp(0); rstamp(14)
    if fast and pfc:
        A(f"s_getpc_b64 s[54:55]\nC_pc:\nv_lshlrev_b32 v3, 7, v0\ns_sub_u32 s54, s54, C_pc-{NAME}\ns_subb_u32 s55, s55, 0")
        if pcw:
            A(f"s_cmp_lt_u32 s2, {pcw}\ns_cselect_b32 s3, L_end-{NAME}, 0\nv_min_u32 v3, s3, v3\nv_lshrrev_b32 v1, 6, v0\nglobal_load_dword v255, v3, s[54:55]\nv_and_b32 v2, 63, v0")
        else: A(f"v_min_u32 v3, L_end-{NAME}, v3\nv_lshrrev_b32 v1, 6, v0\nglobal_load_dword v255, v3, s[54:55]\nv_and_b32 v2, 63, v0")
    else: A("v_lshrrev_b32 v1, 6, v0\nv_and_b32 v2, 63, v0")
    A(f"v_readfirstlane_b32 s3, v1\ns_and_b32 s{sXcd}, s2, 7\ns_lshr_b32 s46, s2, 3")
    dec1=f"s_lshr_b32 s{sMt}, s{sXcd}, 1\ns_lshl_b32 s{sMt}, s{sMt}, 2\ns_lshr_b32 s47, s46, 3\ns_add_u32 s{sMt}, s{sMt}, s47\ns_and_b32 s{sJ}, s{sXcd}, 1"
    dec2=(f"s_and_b32 s{sFt8}, s46, 7\ns_lshl_b32 s{sFt}, s{sJ}, 3\ns_add_u32 s{sFt}, s{sFt}, s{sFt8}\n"
          f"s_lshl_b32 s{sLid}, s{sMt}, 4\ns_add_u32 s{sLid}, s{sLid}, s{sFt}\ns_xor_b32 s{sDt}, s{sJ}, 1\ns_mul_i32 s{sDt}, s{sDt}, {dswz}\ns_xor_b32 s{sDt}, s{sDt}, s{sFt8}")
    A(dec1); A(dec2)
    if fast and pf1==5:
        A("s_cmp_lt_u32 s3, 4\ns_cbranch_scc0 L_prod")
        A(f"s_lshr_b32 s58, s{sXcd}, 1\ns_lshl_b32 s59, s58, 2\ns_lshl_b32 s58, s58, 5\ns_add_u32 s58, s58, s46\ns_lshl_b32 s58, s58, 1\ns_add_u32 s58, s58, s{sJ}\ns_lshl_b32 s58, s58, 14")
        A("v_bfe_u32 v15, v0, 2, 3\nv_add_u32 v15, s59, v15\nv_and_b32 v15, 15, v15\nv_lshlrev_b32 v15, 7, v15\nv_lshrrev_b32 v14, 5, v0\nv_lshl_add_u32 v15, v14, 11, v15\nv_add_u32 v252, s58, v15")
        A("s_waitcnt lgkmcnt(0)\nglobal_load_dword v253, v252, s[4:5]\ns_branch L_cons\nL_prod:")
    elif fast and pf1==1:
        A("s_cmp_lt_u32 s3, 4\ns_cbranch_scc0 L_prod")
        A("v_lshrrev_b32 v15, 1, v0\ns_lshl_b32 s58, s2, 7\nv_add_u32 v15, s58, v15\nv_lshlrev_b32 v15, 7, v15\ns_waitcnt lgkmcnt(0)\nglobal_load_dword v253, v15, s[4:5]\ns_branch L_cons\nL_prod:")
    else:
        A("s_cmp_lt_u32 s3, 4\ns_cbranch_scc1 L_cons")
    sP,sKX,sKW,sLX,sLW,sRing,sCnt,sT0,sT1=46,47,48,49,50,51,52,53,54
    A(f"s_sub_u32 s{sP}, s3, 4")
    if pprio: A(f"s_setprio {pprio}")
    A("v_lshrrev_b32 v3, 3, v2\nv_and_b32 v4, 7, v2\nv_lshrrev_b32 v5, 4, v2\nv_xor_b32 v4, v4, v5\nv_lshlrev_b32 v4, 4, v4\nv_lshl_add_u32 v3, v3, 11, v4")
    A(f"s_lshl_b32 s{sT0}, s{sMt}, 18\ns_lshl_b32 s{sT1}, s{sP}, 16\ns_add_u32 s{sT0}, s{sT0}, s{sT1}\nv_add_u32 v8, s{sT0}, v3")
    A("v_xor_b32 v9, 64, v8\nv_add_u32 v9, 0x4000, v9\nv_add_u32 v10, 0x8000, v8\nv_add_u32 v11, 0x8000, v9")
    if not rot: A(f"s_mov_b32 s{sKX}, 0\ns_mov_b32 s{sKW}, 0")
    if rot:
        if rot in (1,2,4,5,6,7,8):
            if pj: A(f"s_lshr_b32 s{sT0}, s{sXcd}, 1\ns_lshl_b32 s{sT1}, s{sJ}, 1\ns_add_u32 s{sT0}, s{sT0}, s{sT1}\ns_and_b32 s{sT0}, s{sT0}, 3\ns_lshl_b32 s{sT0}, s{sT0}, 2")
            else: A(f"s_lshr_b32 s{sT0}, s{sXcd}, 1\ns_lshl_b32 s{sT0}, s{sT0}, 2")
            if rot==4: A(f"s_and_b32 s{sT0}, s{sT0}, 8")
        else: A(f"s_mov_b32 s{sT0}, 0")
        if rot>=5: A(f"s_mov_b32 s62, s{sT0}\ns_mov_b32 s60, 0\ns_mov_b32 s61, 0")
        if rot in (7,8): A(f"s_and_b32 s{sT1}, s{sMt}, 1\ns_lshl_b32 s{sT1}, s{sT1}, {rot-7}\ns_add_u32 s{sT0}, s{sT0}, s{sT1}")
        elif rot>=2: A(f"s_and_b32 s{sT1}, s{sMt}, 3\ns_add_u32 s{sT0}, s{sT0}, s{sT1}")
        A(f"s_lshl_b32 s{sKX}, s{sT0}, 7\ns_mul_i32 s{sKW}, s{sT0}, {64*7168}")
    sRX=57
    A(f"s_lshl_b32 s{sLX}, s{sP}, 12\ns_mov_b32 s{sRX}, 0\ns_mov_b32 s{SX+2}, {X_BYTES}\ns_mov_b32 s{SX+3}, 0x20000")
    A(f"s_waitcnt lgkmcnt(0)\ns_mov_b32 s{SX}, s4\ns_and_b32 s{SX+1}, s5, 0xffff")
    def nextk(c):
        if rot in (7,8):
            A(f"s_add_u32 s{c}, s{c}, 1\ns_and_b32 s{sT1}, s{c}, 8\ns_cselect_b32 s{sT0}, 1, 0\ns_xor_b32 s{sT0}, s{sT0}, s{sMt}\ns_and_b32 s{sT0}, s{sT0}, 1\ns_lshl_b32 s{sT0}, s{sT0}, {rot-7}\ns_add_u32 s{sT0}, s{sT0}, s{c}\ns_and_b32 s{sT0}, s{sT0}, 7")
            A(f"s_add_u32 s{sT0}, s{sT0}, s{sT1}\ns_add_u32 s{sT0}, s{sT0}, s62\ns_and_b32 s{sT0}, s{sT0}, 15")
            return
        if rot==6:
            A(f"s_add_u32 s{c}, s{c}, 1\ns_and_b32 s{sT1}, s{c}, 8\ns_cselect_b32 s{sT0}, 3, 0\ns_xor_b32 s{sT0}, s{sT0}, s{sMt}\ns_and_b32 s{sT0}, s{sT0}, 3\ns_add_u32 s{sT0}, s{sT0}, s{c}\ns_and_b32 s{sT0}, s{sT0}, 7")
            A(f"s_add_u32 s{sT0}, s{sT0}, s{sT1}\ns_add_u32 s{sT0}, s{sT0}, s62\ns_and_b32 s{sT0}, s{sT0}, 15")
            return
        A(f"s_add_u32 s{c}, s{c}, 1\ns_add_u32 s{sT0}, s{c}, s{sMt}\ns_and_b32 s{sT0}, s{sT0}, 3\ns_and_b32 s{sT1}, s{c}, 12\ns_add_u32 s{sT0}, s{sT0}, s{sT1}\ns_add_u32 s{sT0}, s{sT0}, s62\ns_and_b32 s{sT0}, s{sT0}, 15")
    def issueW1(part=None):
        inc=[1024,896,1024,896,1024,1280]
        ns=range(7) if part is None else (range(hd) if part==0 else range(hd,7))
        if part!=1: A(f"s_add_u32 m0, s{sRing}, s{sLW}\ns_add_u32 s{sRing}, s{sRing}, {WST}")
        else: A("s_mov_b32 m0, s1\ns_nop 0")
        for n in ns:
            a,o=n>>1,n&1
            if n<6:
                A(f"buffer_load_dwordx4 v{13+o}, {R4(SW1)}, s{sKW} offen offset:{a*128} {w1aux} lds")
                if part==0 and n==hd-1: A(f"s_add_u32 s1, m0, {inc[n]}")
                else:
                    A(f"s_add_u32 m0, m0, {inc[n]}")
                    A("s_nop 0" if n else f"s_cmp_eq_u32 s{sRing}, {WST*3}\ns_cselect_b32 s{sRing}, 0, s{sRing}")
            else:
                A(f"buffer_load_dwordx4 v12, {R4(SW1)}, s{sKW} offen {w1aux} lds\ns_add_u32 s{sKW}, s{sKW}, {64*7168}")
                if rot>=5:
                    nextk(60); A(f"s_mul_i32 s{sKW}, s{sT0}, {64*7168}\ns_add_u32 s{sKW}, s{sKW}, s59")
                elif rot: A(f"s_cmp_eq_u32 s{sKW}, s58\ns_cselect_b32 s{sKW}, s59, s{sKW}")
    def issueX():
        A(f"s_add_u32 m0, s{sRX}, s{sLX}\ns_add_u32 s{sRX}, s{sRX}, 16384")
        for n in range(4):
            A(f"buffer_load_dwordx4 v{8+n}, {R4(SX)}, s{sKX} offen {xaux} lds")
            if n<3: A("s_add_u32 m0, m0, 1024\n"+("s_nop 0" if n else f"s_and_b32 s{sRX}, s{sRX}, 0xffff"))
        if tight1: pass
        elif rot>=5:
            nextk(61); A(f"s_lshl_b32 s{sKX}, s{sT0}, 7")
        else: A(f"s_add_u32 s{sKX}, s{sKX}, 128\ns_and_b32 s{sKX}, s{sKX}, 2047")
    stamp(1)
    issueX()
    A(f"s_and_b32 s{sT0}, s{sFt8}, 1\ns_lshl_b32 s{sT1}, s{sT0}, 6")
    A("v_bfe_u32 v3, v2, 2, 3\nv_mul_u32_u24 v3, 7168, v3\nv_lshrrev_b32 v5, 5, v2\nv_and_b32 v4, 3, v2\nv_lshlrev_b32 v4, 4, v4")
    A(f"v_lshl_add_u32 v6, v5, 6, v3\nv_add3_u32 v13, v6, v4, s{sT1}\nv_xor_b32 v14, 32, v13\nv_add_u32 v14, {8*7168}, v14")
    A(f"s_xor_b32 s{sT0}, s{sT0}, 1\ns_mul_i32 s{sT0}, s{sT0}, 384\nv_lshrrev_b32 v3, 2, v2\nv_mul_u32_u24 v3, 7168, v3\nv_lshlrev_b32 v5, 5, v5\nv_xor_b32 v4, v4, v5\nv_add3_u32 v12, v3, v4, s{sT0}")
    A(f"s_mul_i32 s59, s{sP}, {16*7168}\ns_mul_i32 s{sT0}, s{sFt}, 448\ns_add_u32 s59, s59, s{sT0}\ns_add_u32 s{sKW}, s{sKW}, s59\ns_add_u32 s58, s59, {1024*7168}")
    A(f"s_mul_i32 s{sLW}, s{sP}, 7168\ns_add_u32 s{sLW}, s{sLW}, {WOFF}\ns_mov_b32 s{sRing}, {2*WST}")
    srd(A,SW1,6,W_BYTES)
    if la1 or tearly: issueW1(0)
    else: issueW1(); issueX(); issueW1()
    srd(A,SW2,8,W_BYTES); srd(A,SWS,14,0x10000000)
    if diag==5: srd(A,SD,12,256)
    sHp,sHalf=55,56
    if tlb:
        A(f"s_cmp_lt_u32 s2, {tlb}\ns_cbranch_scc0 P1_ntlb\ns_lshl_b32 s{sT0}, s{sP}, 21")
        A(f"s_add_u32 s4, s8, s{sT0}\ns_addc_u32 s5, s9, 0\ns_load_dword s0, s[4:5], 0")
        A(f"s_lshr_b32 s{sT1}, s{sT0}, 1\ns_add_u32 s4, s10, s{sT1}\ns_addc_u32 s5, s11, 0\ns_load_dword s0, s[4:5], 0")
        for b in (0, 8<<20, 16<<20, P_OFF, F_OFF):
            A(f"s_add_u32 s{sT1}, s{sT0}, {b}\ns_add_u32 s4, s14, s{sT1}\ns_addc_u32 s5, s15, 0\ns_load_dword s0, s[4:5], 0")
        A("P1_ntlb:")
    if tl0:
        A(f"s_cmp_lt_u32 s2, {tlw}\ns_cbranch_scc0 P1_nt0\ns_lshl_b32 s{sT0}, s{sP}, 21\ns_add_u32 s{sT0}, s{sT0}, {P_OFF}\ns_cmp_eq_u32 s{sP}, 3\ns_cselect_b32 s{sT0}, {F_OFF}, s{sT0}")
        A(f"s_add_u32 s4, s14, s{sT0}\ns_addc_u32 s5, s15, 0\ns_load_dword s0, s[4:5], 0\nP1_nt0:")
    A(f"s_lshr_b32 s4, s{sLid}, 3\ns_lshl_b32 s4, s4, 10\ns_add_u32 s4, s4, {F_OFF+fch*128}\ns_add_u32 s4, s14, s4\ns_addc_u32 s5, s15, 0")
    A(f"s_lshl_b32 s6, s{sMt}, 4\ns_add_u32 s6, s12, s6\ns_addc_u32 s7, s13, 0")
    def spf():
        if pf2 not in (3,4): return
        for k in range(4): A(f"s_load_dword s12, s[8:9], {k*64}")
        A(f"s_add_u32 s13, s13, 1\ns_and_b32 s{sT0}, s13, 7\ns_cselect_b32 s{sT0}, 0, {131072-2048}\ns_add_u32 s{sT0}, s{sT0}, 256\ns_add_u32 s8, s8, s{sT0}\ns_addc_u32 s9, s9, 0")
    if pf2 in (3,4):
        A(f"s_lshl_b32 s12, s2, 2\ns_add_u32 s12, s12, s{sP}")
        A(f"s_lshr_b32 s{sT0}, s12, 6\ns_mul_i32 s13, s{sT0}, 7\ns_and_b32 s{sT0}, s{sT0}, 1")
        A(f"s_xor_b32 s{sT1}, s{sT0}, 1\ns_mul_i32 s{sT1}, s{sT1}, 6\ns_add_u32 s{sT1}, s{sT1}, s13\ns_lshl_b32 s{sT1}, s{sT1}, 16\ns_and_b32 s14, s12, 63\ns_lshl_b32 s14, s14, 10\ns_add_u32 s{sT1}, s{sT1}, s14")
        A(f"s_add_u32 s14, s8, s{sT1}\ns_addc_u32 s15, s9, 0")
        A(f"s_add_u32 s13, s13, s{sT0}\ns_lshl_b32 s13, s13, 16\ns_and_b32 s12, s12, 63\ns_lshl_b32 s12, s12, 11\ns_add_u32 s13, s13, s12\ns_add_u32 s8, s8, s13\ns_addc_u32 s9, s9, 0\ns_mov_b32 s13, 0")
    A(f"s_lshr_b32 s{sHp}, s{sP}, 1\ns_and_b32 s{sHalf}, s{sP}, 1")
    A("v_subrev_u32 v5, 3, v2\nv_mul_u32_u24 v3, 37, v5\nv_lshrrev_b32 v3, 8, v3\nv_mul_u32_u24 v4, 7, v3\nv_sub_u32 v4, v5, v4")
    if skew2==3: A(f"v_add_u32 v6, s{sMt}, v3\nv_and_b32 v6, 3, v6\nv_add_u32 v4, v6, v4\nv_subrev_u32 v6, 7, v4\nv_min_u32 v4, v4, v6")
    elif skew2: A(f"s_and_b32 s{sT0}, s{sMt}, 3\ns_mul_i32 s{sT0}, s{sT0}, {3-skew2}\nv_add_u32 v4, s{sT0}, v4\nv_subrev_u32 v6, 7, v4\nv_min_u32 v4, v4, v6")
    A("v_add_u32 v4, 1, v4")
    A("v_cmp_gt_u32 vcc, 3, v2\ns_nop 1\nv_cndmask_b32 v3, v3, v2, vcc\nv_cndmask_b32 v4, v4, 0, vcc")
    A(f"v_add_u32 v4, s{sFt8}, v4\nv_and_b32 v4, 7, v4\nv_and_b32 v6, 1, v4\nv_mul_u32_u24 v4, 7, v4\nv_lshl_add_u32 v4, v3, 1, v4\nv_add3_u32 v4, v4, v6, s{sHp}")
    A(f"s_and_b32 s{sT0}, s{sMt}, {3 if skew2 else 0}\nv_add_u32 v5, s{sT0}, v2\nv_and_b32 v5, 3, v5\nv_mul_u32_u24 v5, 14, v5\nv_add3_u32 v5, v5, 6, s{sHp}")
    A("v_cmp_gt_u32 vcc, 24, v2\ns_nop 1\nv_cndmask_b32 v4, v5, v4, vcc\nv_and_b32 v4, 63, v4")
    A(f"s_mul_i32 s{sT0}, s{sJ}, 56\nv_add_u32 v4, s{sT0}, v4")
    A(f"s_mul_i32 s{sT0}, s{sMt}, {112*CH}\ns_mul_i32 s{sT1}, s{sHalf}, {QS}\ns_add_u32 s{sT0}, s{sT0}, s{sT1}")
    A(f"v_mul_u32_u24 v20, {CH}, v4\nv_add_u32 v20, s{sT0}, v20")
    A(f"s_lshl_b32 s{sT0}, s{sHalf}, 15\ns_lshl_b32 s{sT1}, s{sHalf}, 13\nv_mov_b32 v5, s{sT0}\nv_mov_b32 v6, s{sT1}\nv_cndmask_b32 v5, v6, v5, vcc")
    A(f"v_lshl_add_u32 v21, v4, 16, v5\ns_lshl_b32 s{sT0}, s{sDt}, 8\nv_add_u32 v21, s{sT0}, v21")
    A("v_and_b32 v4, 3, v2\nv_bfe_u32 v5, v2, 4, 1\nv_lshlrev_b32 v6, 1, v5\nv_xor_b32 v4, v4, v6\nv_lshlrev_b32 v4, 4, v4")
    A("v_lshrrev_b32 v6, 5, v2\nv_lshl_add_u32 v4, v6, 6, v4")
    A("v_bfe_u32 v6, v2, 2, 3\nv_lshl_add_u32 v22, v6, 11, v4\nv_add_u32 v23, 0x4000, v22")
    A("v_lshl_add_u32 v24, v5, 13, v22\nv_add_u32 v25, 0x8000, v24")
    fragoffs(26)
    if tight1:
        assert rot==8 and tearly==2 and not nsh and not la1 and spub and hsi and not two
        A(f"v_bfe_u32 v3, v2, 3, 1\nv_xor_b32 v3, s{sMt}, v3\nv_and_b32 v3, 1, v3\nv_lshl_add_u32 v3, v3, 1, v2\nv_and_b32 v3, 7, v3\nv_and_b32 v4, 8, v2\nv_add3_u32 v3, v3, v4, s62\nv_and_b32 v3, 15, v3")
        A(f"v_lshlrev_b32 v30, 7, v3\nv_mul_u32_u24 v31, {64*7168}, v3\nv_add_u32 v31, s59, v31")
    if diag==5: stamp(8)
    if tight1:
        xl=[f"buffer_load_dwordx4 v{8+n}, {R4(SX)}, s{sKX} offen {xaux} lds" for n in range(4)]
        wl=[f"buffer_load_dwordx4 v{13+(n&1)}, {R4(SW1)}, s{sKW} offen offset:{(n>>1)*128} {w1aux} lds" for n in range(6)]+[f"buffer_load_dwordx4 v12, {R4(SW1)}, s{sKW} offen {w1aux} lds"]
        inc=[1024,896,1024,896,1024,1280]
        def Wt(): A(f"s_mov_b32 m0, s1\ns_nop 0\n{wl[4]}\ns_add_u32 m0, m0, {inc[4]}\ns_nop 0\n{wl[5]}\ns_add_u32 m0, m0, {inc[5]}\ns_nop 0\n{wl[6]}")
        def Xs(fill):
            A(f"s_add_u32 m0, s{sRX}, s{sLX}\ns_add_u32 s{sRX}, s{sRX}, 16384")
            for n in range(4):
                A(xl[n])
                if n<3: A(f"s_add_u32 m0, m0, 1024\n{fill[n]}")
        assert hd==4
        andx=f"s_and_b32 s{sRX}, s{sRX}, 0xffff"
        A(f"v_readlane_b32 s{sKX}, v30, 1")
        Wt(); Xs([f"v_readlane_b32 s{sKW}, v31, 1", andx, "s_nop 0"])
        issueW1(0)
        A(f"v_readlane_b32 s{sKX}, v30, 2\ns_waitcnt vmcnt(8)")
        stamp(2)
        A("s_barrier")
        Wt(); Xs([f"v_readlane_b32 s{sKW}, v31, 2", andx, f"s_mov_b32 s{sCnt}, 2"])
        A(f"s_mov_b32 s61, {(1<<(ack+2+3))|(1<<(hsi+3))|((1<<tl) if tl else 0)}\ns_add_u32 m0, s{sRing}, s{sLW}\ns_branch P1_w")
        A(f".p2align {al}\nP1_loop:")
        A(f"s_bitcmp1_b32 s61, s{sCnt}\ns_cbranch_scc1 P1_hk\nP1_hkb:")
        Xs([f"v_readlane_b32 s{sKW}, v31, s{sCnt}", andx, "s_nop 0"])
        A(f"s_add_u32 m0, s{sRing}, s{sLW}\ns_waitcnt vmcnt(15)\ns_barrier\nP1_w:")
        fill=[f"s_add_u32 s{sCnt}, s{sCnt}, 1", f"s_add_u32 s{sRing}, s{sRing}, {WST}", f"v_readlane_b32 s{sKX}, v30, s{sCnt}",
              f"s_cmp_eq_u32 s{sRing}, {WST*3}\ns_cselect_b32 s{sRing}, 0, s{sRing}", "s_nop 0", f"s_cmp_lt_u32 s{sCnt}, 16"]
        for n in range(7):
            A(wl[n])
            if n<6: A(f"s_add_u32 m0, m0, {inc[n]}\n{fill[n]}")
        A("s_cbranch_scc1 P1_loop\ns_branch P1_done")
        A("P1_hk:")
        if tl:
            A(f"s_cmp_eq_u32 s{sCnt}, {tl}\ns_cbranch_scc0 P1_hk0\ns_cmp_lt_u32 s2, {tlw}\ns_cbranch_scc0 P1_hkb\ns_lshl_b32 s{sT0}, s{sP}, 21")
            A(f"s_add_u32 s12, s8, s{sT0}\ns_addc_u32 s13, s9, 0\ns_load_dword s0, s[12:13], 0")
            A(f"s_lshr_b32 s{sT1}, s{sT0}, 1\ns_add_u32 s12, s10, s{sT1}\ns_addc_u32 s13, s11, 0\ns_load_dword s0, s[12:13], 0")
            for b in (0, 8<<20, 16<<20):
                A(f"s_add_u32 s{sT1}, s{sT0}, {b}\ns_add_u32 s12, s14, s{sT1}\ns_addc_u32 s13, s15, 0\ns_load_dword s0, s[12:13], 0")
            A("s_branch P1_hkb\nP1_hk0:")
        A(f"s_cmp_eq_u32 s{sCnt}, {hsi+3}\ns_cbranch_scc0 P1_hk1\ns_cmp_eq_u32 s{sP}, 0\ns_cbranch_scc0 P1_hkb\ns_load_dwordx4 s[28:31], s[6:7], 0 {hsglc}\ns_branch P1_hkb")
        if lead: A(f"P1_hk1:\ns_lshl_b32 s1, s{sFt}, 2\ns_add_u32 s1, s1, s{sP}\ns_cmp_eq_u32 s1, 2\ns_cbranch_scc0 P1_hkb\ns_mov_b32 s1, 1\ns_atomic_or s1, s[6:7], 0\ns_branch P1_hkb")
        else: A(f"P1_hk1:\ns_cmp_eq_u32 s{sP}, 2\ns_cbranch_scc0 P1_hkb\ns_and_b32 s1, s{sFt}, 3\ns_lshl_b32 s1, s1, 3\ns_lshl_b32 s1, 1, s1\ns_and_b32 s{sT0}, s{sFt}, 12\ns_atomic_or s1, s[6:7], s{sT0}\ns_branch P1_hkb")
        A("P1_done:")
        pad()
    else:
        if la1:
            A(f"s_mov_b32 s{sCnt}, -1\ns_branch P1_in")
            A(f"P1_loop:\ns_waitcnt vmcnt({4+hd})")
            if diag: A(f"s_cmp_eq_u32 s{sCnt}, 0\ns_cbranch_scc0 P1_ns"); stamp(2); A("P1_ns:")
            A("s_barrier\nP1_in:")
            issueW1(1); issueX(); issueW1(0)
        else:
            if nsh:
                A(f"s_mov_b32 s{sCnt}, -1\ns_branch P1_shin\nP1_sh:\ns_waitcnt vmcnt({4+hd})")
                if diag: A(f"s_cmp_eq_u32 s{sCnt}, 0\ns_cbranch_scc0 P1_ns"); stamp(2); A("P1_ns:")
                A("s_barrier\nP1_shin:")
                issueW1(1); issueX()
                A(f"s_cmp_eq_u32 s{sCnt}, {nsh}\ns_cbranch_scc1 P1_in")
                issueW1(0)
                A(f"s_add_u32 s{sCnt}, s{sCnt}, 1\ns_branch P1_sh")
            else:
                if tearly==1: issueW1(1); issueX(); issueW1()
                if tearly==2: issueW1(1); issueX(); issueW1(0)
                A(f"s_waitcnt vmcnt({4+hd if tearly==2 else 11})")
                stamp(2)
                A("s_barrier")
                if tearly==2: issueW1(1)
                issueX()
                A(f"s_mov_b32 s{sCnt}, 0\ns_branch P1_in")
            A("P1_loop:\ns_waitcnt vmcnt(15)\ns_barrier\nP1_in:")
            issueW1(); issueX()
        if spub and two:
            A(f"s_lshl_b32 s{sT0}, s{sP}, 8\ns_add_u32 s{sT0}, s{sT0}, s{sCnt}\ns_cmp_eq_u32 s{sT0}, {512+4}\ns_cselect_b32 s0, 1, 0\ns_cmp_eq_u32 s{sT0}, {512+ack+2}\ns_cselect_b32 s0, 2, s0\ns_cmp_eq_u32 s0, 0\ns_cbranch_scc1 P1_npub")
            A(f"s_and_b32 s{sT0}, s{sFt}, 3\ns_lshl_b32 s{sT0}, s{sT0}, 3\ns_lshl_b32 s0, s0, s{sT0}\ns_and_b32 s{sT0}, s{sFt}, 12\ns_atomic_or s0, s[6:7], s{sT0}\nP1_npub:")
        elif spub:
            A(f"s_lshl_b32 s{sT0}, s{sP}, 8\ns_add_u32 s{sT0}, s{sT0}, s{sCnt}\ns_cmp_eq_u32 s{sT0}, {512+ack+2}\ns_cbranch_scc0 P1_npub")
            A(f"s_and_b32 s0, s{sFt}, 3\ns_lshl_b32 s0, s0, 3\ns_lshl_b32 s0, 1, s0\ns_and_b32 s{sT0}, s{sFt}, 12\ns_atomic_or s0, s[6:7], s{sT0}\nP1_npub:")
        if hsi:
            assert pf2 not in (3,4)
            A(f"s_lshl_b32 s{sT0}, s{sP}, 8\ns_add_u32 s{sT0}, s{sT0}, s{sCnt}\ns_cmp_eq_u32 s{sT0}, {hsi}\ns_cbranch_scc0 P1_nh\ns_load_dwordx4 s[28:31], s[6:7], 0 {hsglc}\nP1_nh:")
        if pf2==4:
            spf()
            A(f"s_cmp_lt_u32 s{sCnt}, 3\ns_cbranch_scc0 P1_nspf")
            spf()
            A("P1_nspf:")
        if pf2==3:
            A(f"s_sub_u32 s{sT0}, s{sCnt}, {spa}\ns_cmp_lt_u32 s{sT0}, {spb-spa}\ns_cbranch_scc0 P1_nspf")
            spf()
            A("P1_nspf:")
        A(f"s_add_u32 s{sCnt}, s{sCnt}, 1\ns_cmp_lt_u32 s{sCnt}, {14 if la1 else 13}\ns_cbranch_scc1 P1_loop")
        pad()
        A(f"s_waitcnt vmcnt({4+hd if la1 else 15})\ns_barrier")
        issueW1(1 if la1 else None)
    sW,sH,sSlot,sLW2,sLH=47,48,51,50,49
    A(f"s_lshl_b32 s{sLH}, s{sP}, 12\ns_add_u32 s{sLW2}, s{sLH}, 65536\ns_mov_b32 s{sCnt}, 0\ns_mov_b32 s{sSlot}, 0")
    def issueW():
        A(f"s_add_u32 m0, s{sLW2}, s{sSlot}\ns_nop 0")
        for n in range(4):
            o,tb=n>>1,n&1
            A(f"buffer_load_dwordx4 v{22+o}, {R4(SW2)}, s{sW} offen offset:{tb*128} {w2aux} lds")
            if n<3: A(f"s_add_u32 m0, m0, {896 if tb==0 else 1024+128}\ns_nop 0")
    def issueH():
        A(f"s_add_u32 m0, s{sLH}, s{sSlot}\ns_nop 0")
        for n in range(4):
            A(f"buffer_load_dwordx4 v{26+n}, {R4(SWS)}, s{sH} offen sc1 lds")
            if n<3: A("s_add_u32 m0, m0, 1024\ns_nop 0")
    A(f"v_readlane_b32 s{sW}, v21, 0")
    if not la1: A("s_waitcnt vmcnt(7)\ns_barrier")
    if not hsi: A(f"s_cmp_eq_u32 s{sP}, 0\ns_cbranch_scc0 P2_nh\ns_load_dwordx4 s[28:31], s[6:7], 0 glc\nP2_nh:")
    A("s_waitcnt vmcnt(0)\ns_barrier")
    def nextW(): A(f"s_add_u32 s{sCnt}, s{sCnt}, 1\ns_add_u32 s{sSlot}, s{sSlot}, 16384\nv_readlane_b32 s{sW}, v21, s{sCnt}\ns_nop 2")
    if w2e:
        A("s_branch P2_w0\nP2_w:"); nextW(); A("P2_w0:"); issueW()
        A(f"s_cmp_lt_u32 s{sCnt}, {w2e}\ns_cbranch_scc1 P2_w")
        A("s_barrier")
        pad()
        A("P2_w2:"); nextW(); issueW()
        A(f"s_cmp_lt_u32 s{sCnt}, 3\ns_cbranch_scc1 P2_w2")
    else:
        issueW()
        A("s_barrier")
        pad()
        A("P2_w:"); nextW(); issueW()
        A(f"s_cmp_lt_u32 s{sCnt}, {5 if w6==1 else 3}\ns_cbranch_scc1 P2_w")
    A(f"s_cmp_eq_u32 s{sP}, 0\ns_cbranch_scc0 P2_hsd\ns_mov_b32 s58, 0\ns_branch P2_hsw")
    A("P2_hs:\ns_load_dwordx4 s[28:31], s[6:7], 0 glc\ns_add_u32 s58, s58, 1\nP2_hsw:\ns_waitcnt lgkmcnt(0)")
    if lead: A(f"s_cmp_ge_u32 s58, {SPIN}\ns_cbranch_scc1 P2_hsd\ns_cmp_eq_u32 s28, 1\ns_cbranch_scc0 P2_hs\nP2_hsd:")
    else:
        A(f"s_and_b32 s28, s28, s29\ns_and_b32 s30, s30, s31\ns_and_b32 s28, s28, s30\ns_and_b32 s28, s28, 0x01010101\ns_cmp_ge_u32 s58, {SPIN}\ns_cbranch_scc1 P2_hsd\ns_cmp_eq_u32 s28, 0x01010101\ns_cbranch_scc0 P2_hs\nP2_hsd:")
    A(f"s_lshr_b32 s59, s{sLid}, 3\ns_lshl_b32 s59, s59, 10\ns_add_u32 s59, s59, {F_OFF+fch*128}\ns_lshl_b32 s{sT0}, s{sFt8}, 2")
    A(f"v_mov_b32 v5, {OOB}\nv_mov_b32 v6, s{sT0}\nv_cmp_eq_u32 vcc, 0, v2\nv_and_b32 v3, 7, v2\nv_lshlrev_b32 v3, 2, v3\nv_cndmask_b32 v6, v5, v6, vcc\nv_mov_b32 v5, 1")
    A(f"v_readlane_b32 s{sH}, v20, 3\ns_waitcnt vmcnt({20 if w6==1 else 12})")
    stamp(3)
    A("s_barrier")
    stamp(6)
    A(f"s_cmp_eq_u32 s{sP}, 1\ns_cbranch_scc0 P2_nf\nbuffer_store_dword v5, v6, {R4(SWS)}, s59 offen sc1\ns_nop 1\nv_mov_b32 v5, 7\nP2_nf:")
    if w6==2:
        A("P2_w45:"); nextW(); issueW()
        A(f"s_cmp_lt_u32 s{sCnt}, 5\ns_cbranch_scc1 P2_w45")
    A(f"s_mov_b32 s62, 0\ns_cmp_eq_u32 s{sP}, 0\ns_cbranch_scc1 P2_p0\ns_waitcnt vmcnt({8 if w6==2 else 0})\ns_branch P2_go\nP2_p0:\ns_mov_b32 s58, 0")
    if pdelay: A(f"s_mov_b32 s16, 0\nP2_dl:\ns_add_u32 s16, s16, 1\ns_cmp_lt_u32 s16, {pdelay}\ns_cbranch_scc1 P2_dl")
    stamp(7)
    if vpoll:
        A(f"P2_l1:\nbuffer_load_dword v4, v3, {R4(SWS)}, s59 offen sc1\ns_add_u32 s58, s58, 1\ns_waitcnt vmcnt(0)\nv_cmp_eq_u32 vcc, 0, v4")
        spin_tail("P2_l1")
    else:
        A("P2_l1:\ns_load_dwordx8 s[16:23], s[4:5], 0 glc\ns_add_u32 s58, s58, 1\ns_waitcnt lgkmcnt(0)")
        A("s_and_b64 s[16:17], s[16:17], s[18:19]\ns_and_b64 s[20:21], s[20:21], s[22:23]\ns_and_b64 s[16:17], s[16:17], s[20:21]\ns_and_b32 s16, s16, s17")
        A(f"s_cmp_ge_u32 s58, {SPIN}\ns_cbranch_scc1 P2_rdy\ns_bitcmp1_b32 s16, 0\ns_cbranch_scc1 P2_rdy")
        if la2: A(f"s_cmp_eq_u32 s58, {npoll}\ns_cbranch_scc0 P2_l1\ns_waitcnt vmcnt(0)\ns_barrier\ns_mov_b32 s62, 1")
        A("s_branch P2_l1")
    A("P2_rdy:")
    if diag and diag!=5: stamp(9); A("s_mov_b32 s80, s58")
    A(f"s_mov_b32 m0, 49152\ns_mov_b32 s58, 0")
    A("P2_h3:")
    for n in range(4): A(f"buffer_load_dwordx4 v{26+n}, {R4(SWS)}, s{sH} offen sc1 lds\ns_add_u32 m0, m0, 1024\n"+("s_nop 0" if n<3 else f"s_add_u32 s{sH}, s{sH}, {QS}"))
    A("s_add_u32 s58, s58, 1\ns_cmp_lt_u32 s58, 4\ns_cbranch_scc1 P2_h3")
    A("P2_go:")
    pad()
    stamp(4)
    PL=f"buffer_load_dword v4, v3, {R4(SWS)}, s59 offen sc1"
    POOL=[]
    if tight2:
        assert not la2 and not two and pf2 not in (3,4) and l1epi==3
        mask=(1<<(l1st+5))|(1<<9)|(1<<(8 if sl2 else 10))|(1<<(21 if w6 else 23))|(((1<<14)|(1<<20)) if lead else 0)
        wl=[f"buffer_load_dwordx4 v{22+(n>>1)}, {R4(SW2)}, s{sW} offen offset:{(n&1)*128} {w2aux} lds" for n in range(4)]
        hl=[f"buffer_load_dwordx4 v{26+n}, {R4(SWS)}, s{sH} offen sc1 lds" for n in range(4)]
        if w6:
            sWs=62
            A(f"s_mov_b32 s{sCnt}, 4\ns_mov_b32 s57, {mask}\nv_readlane_b32 s{sW}, v21, 6\ns_mov_b32 s{sSlot}, 0\ns_mov_b32 s{sWs}, 0\ns_mov_b32 m0, s{sLW2}\ns_branch P2_bar")
            A(f".p2align {al}\nP2_loop:")
            A(f"s_bitcmp1_b32 s57, s{sCnt}\ns_cbranch_scc1 P2_hk\nP2_hkb:")
            def Hs(f):
                A(f"s_add_u32 m0, s{sLH}, s{sSlot}\ns_add_u32 s{sCnt}, s{sCnt}, 1")
                A(f"{hl[0]}\ns_add_u32 m0, m0, 1024\n{f[0]}")
                A(f"{hl[1]}\ns_add_u32 m0, m0, 1024\ns_add_u32 s{sSlot}, s{sSlot}, 16384")
                A(f"{hl[2]}\ns_add_u32 m0, m0, 1024\ns_and_b32 s{sSlot}, s{sSlot}, 0xffff")
                A(hl[3])
            Hs([f"v_readlane_b32 s{sW}, v21, s{sT1}"])
            A(f"s_add_u32 m0, s{sLW2}, s{sWs}\nP2_bar:\ns_waitcnt vmcnt(16)\ns_barrier")
            A(f"s_cmp_lt_u32 s{sCnt}, 26\ns_cbranch_scc0 P2_out")
            A(f"{wl[0]}\ns_add_u32 m0, m0, 896\nv_readlane_b32 s{sH}, v20, s{sCnt}")
            A(f"{wl[1]}\ns_add_u32 m0, m0, 1152\ns_add_u32 s{sWs}, s{sWs}, 16384")
            A(f"{wl[2]}\ns_add_u32 m0, m0, 896\ns_add_u32 s{sT1}, s{sCnt}, 3")
            A(f"{wl[3]}\ns_cmp_eq_u32 s{sWs}, {6*16384}\ns_cselect_b32 s{sWs}, 0, s{sWs}\ns_branch P2_loop")
        else:
            A(f"s_mov_b32 s{sCnt}, 4\ns_mov_b32 s57, {mask}\nv_readlane_b32 s{sW}, v21, 4\ns_mov_b32 s{sSlot}, 0\ns_mov_b32 m0, s{sLW2}\ns_branch P2_bar")
            A(f".p2align {al}\nP2_loop:")
            A(f"s_bitcmp1_b32 s57, s{sCnt}\ns_cbranch_scc1 P2_hk\nP2_hkb:")
            A(f"s_add_u32 m0, s{sLH}, s{sSlot}\ns_add_u32 s{sCnt}, s{sCnt}, 1")
            A(f"{hl[0]}\ns_add_u32 m0, m0, 1024\nv_readlane_b32 s{sW}, v21, s{sCnt}")
            A(f"{hl[1]}\ns_add_u32 m0, m0, 1024\ns_add_u32 s{sSlot}, s{sSlot}, 16384")
            A(f"{hl[2]}\ns_add_u32 m0, m0, 1024\ns_and_b32 s{sSlot}, s{sSlot}, 0xffff")
            A(f"{hl[3]}\ns_add_u32 m0, s{sLW2}, s{sSlot}\nP2_bar:\ns_waitcnt vmcnt(16)\ns_barrier")
            A(f"s_cmp_lt_u32 s{sCnt}, 28\ns_cbranch_scc0 P2_out")
            A(f"{wl[0]}\ns_add_u32 m0, m0, 896\nv_readlane_b32 s{sH}, v20, s{sCnt}")
            A(f"{wl[1]}\ns_add_u32 m0, m0, 1152\ns_nop 0")
            A(f"{wl[2]}\ns_add_u32 m0, m0, 896\ns_nop 0")
            A(f"{wl[3]}\ns_branch P2_loop")
        A("P2_hk:"); pad()
        A(f"s_cmp_eq_u32 s{sCnt}, {21 if w6 else 23}\ns_cbranch_scc0 P2_hk1\nv_mov_b32 v22, v24\nv_mov_b32 v23, v25\ns_branch P2_hkb")
        A("P2_hk1:")
        if lead:
            A(f"s_cmp_lt_u32 s{sCnt}, 14\ns_cbranch_scc1 P2_hk1a\ns_cmp_eq_u32 s{sP}, 0\ns_cbranch_scc0 P2_hkb\ns_mov_b32 s58, 0\ns_cmp_eq_u32 s{sCnt}, 20\ns_cbranch_scc1 P2_pw")
            A(f"s_xor_b32 s4, s4, 1024\ns_xor_b32 s{sT0}, s{sFt8}, {dswz}\ns_lshl_b32 s{sT0}, s{sT0}, 2\ns_add_u32 s4, s4, s{sT0}\ns_load_dword s28, s[4:5], 0 glc\ns_branch P2_hkb")
            A(f"P2_pl:\ns_load_dword s28, s[4:5], 0 glc\ns_add_u32 s58, s58, 1\nP2_pw:\ns_waitcnt lgkmcnt(0)\ns_cmp_ge_u32 s58, {SPIN}\ns_cbranch_scc1 P2_hkb\ns_cmp_eq_u32 s28, 0\ns_cbranch_scc1 P2_pl\ns_branch P2_hkb\nP2_hk1a:")
        if sl2:
            assert l1st+5<8
            A(f"s_cmp_lt_u32 s{sCnt}, 8\ns_cbranch_scc0 P2_hk2\ns_cmp_eq_u32 s{sP}, 1\ns_cbranch_scc0 P2_hkb\nbuffer_store_dword v5, v6, {R4(SWS)}, s59 offen sc1\ns_branch P2_hkb")
            A(f"P2_hk2:\ns_cmp_eq_u32 s{sP}, 0\ns_cbranch_scc0 P2_hkb\ns_mov_b32 s58, 0\ns_cmp_eq_u32 s{sCnt}, 9\ns_cbranch_scc1 P2_l2w\ns_load_dwordx8 s[16:23], s[4:5], 0 glc\ns_branch P2_hkb")
            A("P2_l2:\ns_load_dwordx8 s[16:23], s[4:5], 0 glc\ns_add_u32 s58, s58, 1\nP2_l2w:\ns_waitcnt lgkmcnt(0)")
            A("s_and_b64 s[16:17], s[16:17], s[18:19]\ns_and_b64 s[20:21], s[20:21], s[22:23]\ns_and_b64 s[16:17], s[16:17], s[20:21]\ns_and_b32 s16, s16, s17")
            A(f"s_cmp_ge_u32 s58, {SPIN}\ns_cbranch_scc1 P2_hkb\ns_cmp_eq_u32 s16, 7\ns_cbranch_scc0 P2_l2")
        else:
            A(f"s_cmp_eq_u32 s{sCnt}, 9\ns_cbranch_scc0 P2_hk2\n{PL}\ns_branch P2_hkb")
            A(f"P2_hk2:\ns_cmp_eq_u32 s{sCnt}, 10\ns_cbranch_scc1 P2_hk3\ns_cmp_eq_u32 s{sP}, 1\ns_cbranch_scc0 P2_hkb\nbuffer_store_dword v5, v6, {R4(SWS)}, s59 offen sc1\ns_branch P2_hkb")
            A("P2_hk3:\ns_waitcnt vmcnt(8)\nv_cmp_gt_u32 vcc, 7, v4\ns_mov_b32 s58, 0\ns_nop 3\ns_cbranch_vccz P2_hkb")
            A(f"P2_l2:\n{PL}\ns_add_u32 s58, s58, 1\ns_waitcnt vmcnt(0)\nv_cmp_gt_u32 vcc, 7, v4")
            spin_tail("P2_l2")
        A("s_branch P2_hkb\nP2_out:")
        if w6:
            A(f"v_readlane_b32 s{sH}, v20, 26\ns_nop 2"); Hs(["s_nop 0"])
            A(f"v_readlane_b32 s{sH}, v20, 27\ns_waitcnt vmcnt(12)\ns_barrier\ns_nop 0"); Hs(["s_nop 0"])
            A("s_waitcnt vmcnt(8)\ns_barrier\ns_waitcnt vmcnt(4)\ns_barrier\ns_waitcnt vmcnt(0)\ns_barrier")
    else:
        A(f"s_mov_b32 s{sCnt}, 4\ns_mov_b32 s57, 7")
        if la2: A("s_cmp_eq_u32 s62, 0\ns_cbranch_scc0 P2_loop\ns_waitcnt vmcnt(16)\ns_barrier")
        A("P2_loop:")
        A(f"v_readlane_b32 s{sW}, v21, s{sCnt}\nv_readlane_b32 s{sH}, v20, s{sCnt}")
        A(f"s_add_u32 s{sSlot}, s{sSlot}, 16384\ns_and_b32 s{sSlot}, s{sSlot}, 0xffff")
        A(f"s_cmp_eq_u32 s{sCnt}, 24\ns_cbranch_scc0 P2_a\nv_mov_b32 v22, v24\nv_mov_b32 v23, v25\nP2_a:")
        if la2: A(f"s_cmp_eq_u32 s{sCnt}, 4\ns_cbranch_scc1 P2_nw\ns_waitcnt vmcnt(8)\nP2_nw:\ns_barrier")
        else: A("s_waitcnt vmcnt(16)\ns_barrier")
        assert l1epi==3 or sched==9
        A(f"s_lshl_b32 s{sT0}, s{sP}, 8\ns_add_u32 s{sT0}, s{sT0}, s{sCnt}\ns_cmp_eq_u32 s{sT0}, {256+l1st+(4 if la2 else 5)}\ns_cbranch_scc0 P2_nf2\nbuffer_store_dword v5, v6, {R4(SWS)}, s59 offen sc1\nP2_nf2:")
        if two:
            A(f"s_cmp_eq_u32 s{sT0}, 14\ns_cbranch_scc0 P2_n2a\ns_load_dwordx4 s[28:31], s[6:7], 0 glc\nP2_n2a:")
            A(f"s_cmp_eq_u32 s{sT0}, 20\ns_cbranch_scc0 P2_n2b\ns_mov_b32 s58, 0\ns_branch P2_h2w\nP2_h2:\ns_load_dwordx4 s[28:31], s[6:7], 0 glc\ns_add_u32 s58, s58, 1\nP2_h2w:\ns_waitcnt lgkmcnt(0)")
            A(f"s_and_b32 s28, s28, s29\ns_and_b32 s30, s30, s31\ns_and_b32 s28, s28, s30\ns_cmp_ge_u32 s58, {SPIN}\ns_cbranch_scc1 P2_n2b\ns_cmp_eq_u32 s28, 0x03030303\ns_cbranch_scc0 P2_h2\nP2_n2b:")
        A(f"s_cmp_eq_u32 s{sCnt}, 9\ns_cbranch_scc0 P2_np\n{PL}\nP2_np:")
        A(f"s_cmp_eq_u32 s{sCnt}, 10\ns_cbranch_scc0 P2_b")
        A("s_waitcnt vmcnt(8)\nv_cmp_gt_u32 vcc, s57, v4\ns_mov_b32 s58, 0\ns_nop 3\ns_cbranch_vccz P2_ok")
        A(f"P2_l2:\n{PL}\ns_add_u32 s58, s58, 1\ns_waitcnt vmcnt(0)\nv_cmp_gt_u32 vcc, s57, v4")
        spin_tail("P2_l2")
        A("P2_ok:\ns_mov_b32 s57, 7")
        A("P2_b:")
        pad()
        issueW(); issueH()
        if pf2==3:
            A("s_cmp_eq_u32 s13, 24\ns_cselect_b32 s8, s14, s8\ns_cselect_b32 s9, s15, s9\ns_cmp_lt_u32 s13, 28\ns_cbranch_scc0 P2_nspf")
            spf()
            A("P2_nspf:")
        A(f"s_add_u32 s{sCnt}, s{sCnt}, 1\ns_cmp_lt_u32 s{sCnt}, 28\ns_cbranch_scc1 P2_loop")
    if not w6: A(("" if (la2 or tight2) else "s_waitcnt vmcnt(16)\ns_barrier\n")+"s_waitcnt vmcnt(8)\ns_barrier\ns_waitcnt vmcnt(0)\ns_barrier")
    if diag: stamp(5); rstamp(15); flush(16)
    A("s_endpgm")
    A(".p2align 6\nL_cons:")
    ACC=16; F=[(128,144),(172,188)]
    vX0,vX1,vE,vO,vL=4,5,6,7,8; bX0,bE,bL=9,10,11
    sWm,sWf,sIt,sRg,sA,sB,sC=46,47,48,49,58,7,59
    sHA,sH3,sRX2,sClr,sPf=50,51,4,5,6
    vOwn,vT3,vH,vW=232,233,235,[236,237,238,239]
    if pfc and not fast:
        A(f"s_getpc_b64 s[54:55]\nC_pc:\ns_sub_u32 s54, s54, C_pc-{NAME}\ns_subb_u32 s55, s55, 0")
        A(f"v_lshlrev_b32 v3, 7, v0\nv_min_u32 v3, L_end-{NAME}, v3\nglobal_load_dword v255, v3, s[54:55]")
    if pf1==1 and not fast:
        A(f"v_and_b32 v15, 31, v2\nv_lshlrev_b32 v15, 7, v15\ns_lshl_b32 s{sA}, s2, 2\ns_add_u32 s{sA}, s{sA}, s3\ns_lshl_b32 s{sA}, s{sA}, 12")
    if pf1==3:
        A(f"v_and_b32 v15, 7, v2\nv_lshlrev_b32 v15, 7, v15\nv_bfe_u32 v14, v2, 3, 1\nv_lshl_add_u32 v15, v14, 11, v15\ns_lshl_b32 s{sA}, s2, 2\ns_add_u32 s{sA}, s{sA}, s3\ns_lshl_b32 s{sA}, s{sA}, 12\nv_mov_b32 v252, v15")
    if pf1==2:
        A(f"v_lshlrev_b32 v15, 7, v2\ns_lshr_b32 s{sA}, s2, 3\ns_lshl_b32 s{sA}, s{sA}, 2\ns_add_u32 s{sA}, s{sA}, s3\ns_lshl_b32 s{sA}, s{sA}, 13\ns_lshr_b32 s{sB}, s{sXcd}, 1\ns_lshl_b32 s{sB}, s{sB}, 20\ns_add_u32 s{sA}, s{sA}, s{sB}")
    A("s_waitcnt lgkmcnt(0)")
    if pf1==5: srd(A,SX,4,X_BYTES)
    elif pf1 and not (fast and pf1==1):
        srd(A,SX,4,X_BYTES)
        A(f"buffer_load_dword v253, v15, {R4(SX)}, s{sA} offen")
        if pf1==3: srd(A,SW1,6,W_BYTES)
    if diag==5: stamp(6)
    if cprio: A(f"s_setprio {cprio}")
    A(f"s_lshr_b32 s{sWm}, s3, 1\ns_and_b32 s{sWf}, s3, 1")
    A("v_and_b32 v3, 15, v2\nv_lshrrev_b32 v12, 4, v2")
    A("v_lshrrev_b32 v13, 1, v3\nv_xor_b32 v13, v13, v12\nv_lshlrev_b32 v13, 4, v13")
    A(f"s_lshl_b32 s{sA}, s{sWm}, 13\nv_lshlrev_b32 v14, 7, v3\nv_add3_u32 v{bX0}, v13, v14, s{sA}")
    A("v_lshrrev_b32 v13, 1, v12\nv_mul_u32_u24 v13, 7168, v13\nv_bfe_u32 v15, v2, 2, 2\nv_lshl_add_u32 v13, v15, 6, v13\nv_and_b32 v15, 3, v2\nv_lshl_add_u32 v13, v15, 3, v13")
    A(f"v_and_b32 v14, 1, v12\nv_mul_u32_u24 v15, 1056, v14\ns_lshl_b32 s{sA}, s{sWf}, 9\ns_add_u32 s{sA}, s{sA}, {WOFF}\nv_add3_u32 v{bE}, v13, v15, s{sA}")
    A(f"v_mul_u32_u24 v15, 544, v14\nv_add_u32 v13, v13, v15\ns_lshl_b32 s{sA}, s{sWf}, 5\nv_xor_b32 v13, s{sA}, v13\nv_add_u32 v{bL}, {WOFF+6144}, v13")
    VF=248
    if late2:
        for n in range(4): A(f"v_mov_b32 v{VF+n}, {OOB}")
    else: fragoffs(VF)
    A(f"v_add_u32 v{vE}, {2*WST}, v{bE}\nv_mov_b32 v{vX0}, v{bX0}\nv_add_u32 v{vL}, {2*WST}, v{bL}\nv_xor_b32 v{vO}, 32, v{vE}\nv_xor_b32 v{vX1}, 64, v{vX0}")
    srd(A,SO,10,O_BYTES); srd(A,SWS,14,0x10000000); srd(A,SW2,8,W_BYTES)
    if diag==5 or not spub: srd(A,SD,12,256)
    A("v_lshlrev_b32 v3, 4, v2")
    A(f"s_lshr_b32 s56, s{sLid}, 3\ns_lshl_b32 s56, s56, 10\ns_lshl_b32 s{sB}, s{sFt8}, 2\ns_add_u32 s56, s56, s{sB}\ns_add_u32 s56, s56, {F_OFF+fch*128}")
    if lead:
        A(f"s_cmp_eq_u32 s{sFt}, 0\ns_cselect_b32 s{sB}, 16, 0\nv_lshrrev_b32 v13, 3, v2\nv_lshlrev_b32 v13, 10, v13\nv_and_b32 v1, 7, v2\nv_lshl_add_u32 v13, v1, 2, v13")
        A(f"v_mov_b32 v1, {OOB}\nv_cmp_gt_u32 vcc, s{sB}, v2\ns_nop 1\nv_cndmask_b32 v1, v1, v13, vcc")
    else:
        A(f"v_mov_b32 v1, {OOB}\nv_cmp_eq_u32 vcc, 0, v2\ns_nop 1\nv_cndmask_b32 v1, v1, 0, vcc")
    A(f"s_andn2_b32 s57, s{sLid}, 7\ns_add_u32 s57, s57, s{sDt}\ns_lshl_b32 s57, s57, 2\ns_add_u32 s57, s57, s3\ns_mul_i32 s57, s57, {QS}\ns_add_u32 s57, s57, {P_OFF}")
    A0=A
    if late>=0: A=Asm()
    if late2: assert 0<=late<cbase; fragoffs(VF,A,(13,14,15))
    A(f"s_lshl_b32 s52, s{sWm}, 12\nv_add_u32 v{vH}, s52, v3")
    A("v_lshrrev_b32 v13, 5, v2\nv_lshlrev_b32 v13, 11, v13\nv_bfe_u32 v14, v2, 4, 1\nv_mul_u32_u24 v14, 288, v14\nv_add_u32 v13, v13, v14")
    A("v_bfe_u32 v15, v2, 2, 2\nv_lshl_add_u32 v13, v15, 6, v13\nv_and_b32 v15, 3, v2\nv_lshl_add_u32 v13, v15, 3, v13")
    A(f"s_lshl_b32 s52, s{sJ}, 1\ns_add_u32 s52, s52, s{sWf}\ns_lshl_b32 s52, s52, 9\ns_add_u32 s52, s52, 65536\nv_add_u32 v{vW[0]}, s52, v13")
    A(f"v_xor_b32 v{vW[1]}, 32, v{vW[0]}\nv_xor_b32 v{vW[2]}, 0x400, v{vW[0]}\nv_xor_b32 v{vW[3]}, 0x420, v{vW[0]}")
    A(f"s_add_u32 s62, s{sFt8}, s3\ns_and_b32 s62, s62, {rmask}\ns_add_u32 s62, s62, {l2st+5}")
    A(f"s_mul_i32 s{sHA}, s{sMt}, 112\ns_mul_i32 s{sH3}, s{sFt}, 7\ns_add_u32 s{sHA}, s{sHA}, s{sH3}\ns_and_b32 s52, s{sFt8}, 1")
    A(f"s_xor_b32 s53, s52, 1\ns_mul_i32 s53, s53, 6\ns_add_u32 s{sH3}, s{sHA}, s53\ns_add_u32 s{sHA}, s{sHA}, s52\ns_add_u32 s{sHA}, s{sHA}, s{sWf}")
    A(f"s_mul_i32 s52, s{sWm}, {QS}\ns_mul_i32 s{sHA}, s{sHA}, {CH}\ns_add_u32 s{sHA}, s{sHA}, s52\ns_mul_i32 s{sH3}, s{sH3}, {CH}\ns_add_u32 s{sH3}, s{sH3}, s52\ns_lshl_b32 s52, s{sWm}, 12")
    A(f"s_lshl_b32 s53, s{sWf}, 13\ns_add_u32 s52, s52, s53\nv_add_u32 v{vOwn}, s52, v3")
    A(f"v_bfe_u32 v13, v2, 4, 1\nv_lshlrev_b32 v13, 3, v13\nv_lshrrev_b32 v14, 5, v2\nv_lshl_add_u32 v13, v14, 1, v13\nv_bfe_u32 v14, v2, 3, 1\ns_lshl_b32 s52, s{sWf}, 2\nv_add3_u32 v13, v13, v14, s52")
    A("v_add_u32 v14, 16, v13\nv_and_b32 v15, 7, v2\nv_lshlrev_b32 v15, 4, v15")
    physline(vT3,13,12,A); physline(vT3+1,14,12,A)
    A(f"v_add_u32 v{vT3}, v{vT3}, v15\nv_add_u32 v{vT3+1}, v{vT3+1}, v15")
    A("v_mov_b32 v12, 1\ns_mov_b32 s52, 0xbfb8aa3b\ns_mov_b32 s53, 0xbfb8aa3b\ns_mov_b32 s54, 1.0\ns_mov_b32 s55, 1.0")
    if late>=0:
        LATE=A.text().rstrip(); A=A0
        A(f"v_mov_b32 v{vT3}, {OOB}\nv_mov_b32 v{vT3+1}, {OOB}")
    for r in range(112): A(f"v_mov_b32 v{ACC+r}, 0")
    for r in range(4): A(f"v_mov_b32 v{244+r}, -1")
    def hook(it, body, name, reg=None):
        OOL.append(f"{name}:\n{body}\ns_branch {name}_b")
        return [f"s_cmp_eq_u32 s{reg or sIt}, {it}", f"s_cbranch_scc1 {name}\n{name}_b:"]
    def reads1(u, fs):
        X,W=F[fs]
        xs=[f"ds_read_b128 {vr(X+4*i,4)}, v{vX1 if u else vX0} offset:{i*2048}" for i in range(4)]
        ws=[]
        for j in range(7):
            a,o=(vL,0) if j==6 else ((vO if j&1 else vE),(j>>1)*2048)
            for hh in range(2): ws.append(f"ds_read_b64_tr_b16 {vr(W+4*j+2*hh,2)}, v{a} offset:{u*14336+o+hh*256}")
        return ws[0:2]+xs+ws[2:]
    def mf1(fs):
        X,W=F[fs]
        return [f"v_mfma_f32_16x16x32_bf16 {vr(ACC+(j*4+i)*4,4)}, {vr(W+4*j,4)}, {vr(X+4*i,4)}, {vr(ACC+(j*4+i)*4,4)}" for j,i in snake(range(7),4)]
    A(f"s_mov_b32 s{sIt}, 0\ns_mov_b32 s{sRg}, {2*WST}\ns_mov_b32 s{sRX2}, 0\ns_lshl_b32 s{sClr}, s3, {1 if cmask==7 else 0}\ns_add_u32 s{sClr}, s{sClr}, s{sFt8}\ns_and_b32 s{sClr}, s{sClr}, {cmask}\ns_add_u32 s{sClr}, s{sClr}, {cbase}")
    if two: A(f"s_mov_b32 s0, {1|4|(1<<ack)}")
    A(f"s_mul_i32 s{sPf}, s3, {pfb}\ns_add_u32 s{sPf}, s{sPf}, {pfa}")
    if pf2==2: A(f"v_min_u32 v15, 55, v2\nv_lshlrev_b32 v15, 7, v15\ns_lshl_b32 s{sA}, s2, 2\ns_add_u32 s{sA}, s{sA}, s3\ns_mul_i32 s{sA}, s{sA}, 7168\nbuffer_load_dword v255, v15, {R4(SW2)}, s{sA} offen")
    if diag in (2,3,6): A("s_mov_b32 m0, 0")
    clr="\n".join([f"buffer_store_dwordx4 v[244:247], v{VF+i}, {R4(SWS)}, s57 offen sc1" for i in range(4)])
    fclr=f"v_mov_b32 v13, 0\nbuffer_store_dword v13, v1, {R4(SWS)}, s56 offen sc1"
    if sep: assert lead; A(fclr)
    elif not two: clr=clr+"\n"+fclr
    if clr0: A(clr)
    if diag==5: stamp(8)
    if walk:
        A(f"s_cmp_ge_u32 s3, {walk}\ns_cbranch_scc1 C_walked\ns_waitcnt vmcnt({(1 if pf1 and not pcw else 0)+(1 if sep else 0)})\ns_mov_b64 exec, 0")
        for w in range(walk-1): A(f"s_cmp_eq_u32 s3, {w}\ns_cbranch_scc1 @START{w}@")
        A(f"s_branch @START{walk-1}@\nC_wret:\ns_mov_b64 exec, -1\nC_walked:")
    if diag==5: stamp(9)
    A("s_barrier")
    stamp(1)
    for l in reads1(0,0): A(l)
    A("s_waitcnt lgkmcnt(0)")
    A(f".p2align {al}\nC1_loop:")
    sstamp()
    ex=[f"s_add_u32 s{sRg}, s{sRg}, {WST}\ns_add_u32 s{sRX2}, s{sRX2}, 16384", f"s_cmp_eq_u32 s{sRg}, {WST*3}\ns_cselect_b32 s{sRg}, 0, s{sRg}",
        f"v_add_u32 v{vE}, s{sRg}, v{bE}\ns_and_b32 s{sRX2}, s{sRX2}, 0xffff", f"v_add_u32 v{vX0}, s{sRX2}, v{bX0}", f"v_add_u32 v{vL}, s{sRg}, v{bL}",
        f"v_xor_b32 v{vO}, 32, v{vE}", f"v_xor_b32 v{vX1}, 64, v{vX0}"]
    if not clr0: ex+=hook(f"s{sClr}" if stag else 2,clr,"H1_clr")
    for l in interleave(mf1(0), reads1(1,1)+ex): A(l)
    A("s_waitcnt lgkmcnt(0)\ns_barrier")
    pub=(f"s_cmp_eq_u32 s3, 0\ns_cbranch_scc0 H1_pub_b\ns_and_b32 s{sA}, s{sLid}, 3\ns_lshl_b32 s{sA}, s{sA}, 3\ns_lshl_b32 s{sA}, 1, s{sA}\nv_mov_b32 v13, s{sA}\n"
         f"s_andn2_b32 s{sA}, s{sLid}, 3\nv_lshlrev_b32 v14, 8, v2\nbuffer_atomic_or v13, v14, {R4(SD)}, s{sA} offen")
    if two:
        h=hook(0,f"s_cmp_eq_u32 s{sIt}, 0\ns_cbranch_scc1 H1_fc\ns_waitcnt vmcnt(0)\ns_branch H1_ack_b\nH1_fc:\n{fclr}","H1_ack")
        h[0]=f"s_bitcmp1_b32 s0, s{sIt}"
    else: h=hook(ack,"s_waitcnt vmcnt(0)","H1_ack")
    ex=h+([] if spub else hook(ack+1,pub,"H1_pub"))
    if late>=0: ex+=hook(late,(PAD+"\n" if walk else "")+LATE,"H1_late")
    if xp_n: ex+=hook(xp_it,f"s_sleep {xp_n}","H1_xp")
    if pf1==5: ex+=hook(pfi,f"v_xor_b32 v252, 0x400, v252\ns_nop 0\nbuffer_load_dword v253, v252, {R4(SX)}, 0 offen","H1_pf1")
    if pf1==3:
        nl=(16-w1s)*64*56//1024
        ex+=hook(pfi,f"s_lshl_b32 s{sA}, s2, 2\ns_add_u32 s{sA}, s{sA}, s3\ns_mul_i32 s{sB}, s{sA}, {nl*128}\ns_add_u32 s{sB}, s{sB}, {w1s*64*7168}\ns_lshl_b32 s{sA}, s{sA}, 12\n"
                     f"v_min_u32 v15, {nl-1}, v2\nv_lshlrev_b32 v15, 7, v15\nbuffer_load_dword v255, v15, {R4(SW1)}, s{sB} offen\nbuffer_load_dword v253, v252, {R4(SX)}, s{sA} offen offset:1024","H1_pf1")
    if pf2==4:
        ex+=hook(f"s{sPf}",f"s_lshl_b32 s{sA}, s2, 2\ns_add_u32 s{sA}, s{sA}, s3\ns_lshr_b32 s{sB}, s{sA}, 6\ns_and_b32 s60, s{sB}, 1\ns_mul_i32 s{sB}, s{sB}, 7\n"
                     f"s_add_u32 s61, s{sB}, s60\ns_add_u32 s61, s61, 4\ns_lshl_b32 s61, s61, 16\ns_xor_b32 s60, s60, 1\ns_mul_i32 s60, s60, 6\ns_add_u32 s{sB}, s{sB}, s60\ns_lshl_b32 s{sB}, s{sB}, 16\n"
                     f"s_and_b32 s{sA}, s{sA}, 63\ns_lshl_b32 s60, s{sA}, 11\ns_add_u32 s61, s61, s60\ns_lshl_b32 s60, s{sA}, 10\ns_add_u32 s{sB}, s{sB}, s60\n"
                     f"v_and_b32 v15, 15, v2\nv_lshlrev_b32 v15, 7, v15\nv_and_b32 v14, 7, v2\nv_lshlrev_b32 v14, 7, v14\n"
                     f"buffer_load_dword v255, v15, {R4(SW2)}, s61 offen\nbuffer_load_dword v253, v14, {R4(SW2)}, s{sB} offen","H1_pf")
    if pf2==1:
        ex+=hook(f"s{sPf}",f"v_min_u32 v15, 55, v2\nv_lshlrev_b32 v15, 7, v15\ns_lshl_b32 s{sA}, s2, 2\ns_add_u32 s{sA}, s{sA}, s3\ns_mul_i32 s{sA}, s{sA}, 7168\nbuffer_load_dword v255, v15, {R4(SW2)}, s{sA} offen","H1_pf")
    ex+=([PAD] if walk else [])+[f"s_add_u32 s{sIt}, s{sIt}, 1", f"s_cmp_lt_u32 s{sIt}, 16"]
    x=interleave(mf1(1), reads1(0,0)+ex)
    if x[-1].startswith("v_mfma"):
        for l in x[:-1]: A(l)
        A("s_waitcnt lgkmcnt(0)"); A(x[-1])
    else:
        for l in x: A(l)
        A("s_waitcnt lgkmcnt(0)")
    A("s_cbranch_scc1 C1_loop")
    stamp(2)
    T=216
    def silu(a, b, D):
        t=T; src=[a,a+2,b,b+2]
        for r in range(4): A(f"v_pk_mul_f32 {vr(t+2*r,2)}, s[52:53], {vr(src[r],2)}")
        for r in range(8): A(f"v_exp_f32 v{t+r}, v{t+r}")
        for r in range(4): A(f"v_pk_add_f32 {vr(t+2*r,2)}, s[54:55], {vr(t+2*r,2)}")
        for r in range(8): A(f"v_rcp_f32 v{t+r}, v{t+r}")
        for r in range(4): A(f"v_pk_mul_f32 {vr(t+2*r,2)}, {vr(t+2*r,2)}, {vr(src[r],2)}")
        for r in range(4): A(f"v_cvt_pk_bf16_f32 v{D+r}, v{t+2*r}, v{t+2*r+1}")
    def gst(D,i): return f"buffer_store_dwordx4 {vr(D,4)}, v{VF+i}, {R4(SWS)}, s{sHA} offen sc1"
    FLAG="s_nop 0"
    DL=[160,128,144]; D3=224
    for L in range(3):
        for i in range(4):
            D=DL[L]+4*i
            if i%2==0: pad()
            silu(ACC+((2*L)*4+i)*4, ACC+((2*L+1)*4+i)*4, D)
            if L==0 or (L==2 and l1epi>=2) or (L==1 and i>=nb and l1epi): A(gst(D,i))
            A(f"ds_write_b128 v{vOwn}, {vr(D,4)} offset:{L*16384+i*1024}")
            if L==1 and i==nb-1:
                stamp(11); A("s_waitcnt vmcnt(0)"); stamp(12)
                A(f"s_add_u32 s{sHA}, s{sHA}, {2*CH}\ns_waitcnt lgkmcnt(0)\ns_barrier")
                if l1epi:
                    for k in range(nb): A(gst(128+4*k,k))
        if L==1 and l1epi: A(f"s_add_u32 s{sHA}, s{sHA}, {2*CH}")
    F2=[(160,176),(192,208)]
    def rdH(X,slot,u): return [f"ds_read_b128 {vr(X+4*i,4)}, v{vH} offset:{slot*16384+u*8192+i*1024}" for i in range(4)]
    DYN=[w6]
    def rdW(W,slot,u,js): return [f"ds_read_b64_tr_b16 {vr(W+4*n+2*hh,2)}, v{vW[j]} offset:{(0 if DYN[0] else slot)*16384+(4*u+2*hh)*2048}" for n,j in enumerate(js) for hh in range(2)]
    WU=[f"v_add_u32 v{vW[0]}, s{sRg}, v240", f"v_xor_b32 v{vW[1]}, 32, v{vW[0]}", f"v_xor_b32 v{vW[2]}, 0x400, v{vW[0]}", f"v_xor_b32 v{vW[3]}, 0x420, v{vW[0]}"] if w6 else []
    WS=[f"s_add_u32 s{sRg}, s{sRg}, 16384", f"s_cmp_eq_u32 s{sRg}, {6*16384}\ns_cselect_b32 s{sRg}, 0, s{sRg}"] if w6 else []
    def reads2(slot,u,fs):
        X,W=F2[fs]; ws=rdW(W,slot,u,range(4)); return ws[0:2]+rdH(X,slot,u)+ws[2:]
    def mfm(X,W,js,zero=False,w0=0):
        return [f"v_mfma_f32_16x16x32_bf16 {vr(ACC+(j*4+i)*4,4)}, {vr(W+4*(j-w0),4)}, {vr(X+4*i,4)}, {'0' if zero else vr(ACC+(j*4+i)*4,4)}" for j,i in snake(js,4)]
    def mf2(fs,zero=False): return mfm(F2[fs][0],F2[fs][1],range(4),zero)
    for l in reads2(0,0,0): A(l)
    for ip in range(2):
        D=D3+4*ip; a=ACC+(24+2*ip)*4
        if ip==0: pad()
        silu(a,a+4,D)
        A(f"s_nop 1\nv_permlane16_swap_b32 v{D}, v{D+2}\nv_permlane16_swap_b32 v{D+1}, v{D+3}")
        if l1epi>=3: A(f"buffer_store_dwordx4 {vr(D,4)}, v{vT3+ip}, {R4(SWS)}, s{sH3} offen sc1")
    A(f"v_mov_b32 v12, {7 if l1epi==3 else 3}\ns_mov_b32 s{sIt}, 0")
    if w6: A(f"v_mov_b32 v240, v{vW[0]}\ns_mov_b32 s{sRg}, 16384")
    stamp(3); stamp(4)
    sstamp()
    A("s_waitcnt lgkmcnt(0)")
    for l in interleave(mf2(0,True), reads2(0,1,1)+(WU if w6 else ([PAD] if walk else []))): A(l)
    A("s_branch C2_in")
    dw={}; dws={}
    t3st=[f"buffer_store_dwordx4 {vr(D3+4*ip,4)}, v{vT3+ip}, {R4(SWS)}, s{sH3} offen sc1" for ip in range(2)]
    ADV=f"\ns_add_u32 s{sHA}, s{sHA}, {2*CH}"
    L1s=[gst(128+4*i,i) for i in range(4)]; L2s=[gst(144+4*i,i) for i in range(4)]
    F3=f"s_waitcnt vmcnt(0)\n{FLAG}"; F7=f"v_mov_b32 v12, 7\ns_waitcnt vmcnt(0)\n{FLAG}"
    J="\n".join
    if sched==1:
        dw[(0,1)]=J(L1s[:2]); dw[(1,0)]=J(L1s[2:])+ADV; dw[(1,1)]=J(L2s[:2]); dw[(2,0)]=J(L2s[2:]); dw[(2,1)]=J(t3st); dw[(4,0)]=F7
    elif sched==2:
        dw[(0,1)]=J(L1s[:2]); dw[(1,0)]=J(L1s[2:])+ADV; dw[(3,0)]=F3
        dw[(3,1)]=L2s[0]; dw[(4,0)]=L2s[1]; dw[(4,1)]=L2s[2]; dw[(5,0)]=L2s[3]; dw[(5,1)]=t3st[0]; dw[(6,0)]=t3st[1]; dw[(10,0)]=F7
    elif sched==3:
        dw[(0,1)]=L1s[0]; dw[(1,0)]=L1s[1]; dw[(1,1)]=L1s[2]; dw[(2,0)]=L1s[3]+ADV; dw[(3,1)]=F3
        dw[(4,0)]=L2s[0]; dw[(4,1)]=L2s[1]; dw[(5,0)]=L2s[2]; dw[(5,1)]=L2s[3]; dw[(6,0)]=t3st[0]; dw[(6,1)]=t3st[1]; dw[(11,0)]=F7
    elif sched==4:
        dw[(0,1)]=J(L1s)+ADV; dw[(1,1)]=J(L2s); dw[(2,1)]=J(t3st); dw[(4,0)]=F7
    elif sched==9:
        dw[(1,1)]=F7
    elif sched==5:
        dw[(0,1)]=J(L2s[:2]); dw[(1,0)]=J(L2s[2:]); dw[(1,1)]=J(t3st); dw[(3,1)]=F7
    else:
        if not l1epi:
            dw[(l1st,0)]=gst(128,0)+"\n"+gst(132,1); dw[(l1st,1)]=gst(136,2)+"\n"+gst(140,3)+f"\ns_add_u32 s{sHA}, s{sHA}, {2*CH}"
            dw[(l1st+2,1)]=f"s_waitcnt vmcnt(0)\n{FLAG}"
        else:
            dw[(l1st,1)]=f"s_waitcnt vmcnt(0)\n{FLAG}"
        if l1epi>=2:
            if l1epi==2: dw[(l2st,0)]="\n".join(t3st)
            if l1epi==2: dw[(f3,1)]=f"v_mov_b32 v12, 7\ns_waitcnt vmcnt(0)\n{FLAG}"
        elif not stag2:
            dw[(l2st,0)]=gst(144,0)+"\n"+gst(148,1); dw[(l2st+1,0)]=gst(152,2)+"\n"+gst(156,3)+"\nv_mov_b32 v12, 7"
            dw[(l2st+2,0)]="\n".join(t3st)
            dw[(l2st+5,1)]=f"s_waitcnt vmcnt(0)\n{FLAG}"
        else:
            dw[(f3,1)]=f"v_mov_b32 v12, 7\ns_waitcnt vmcnt(0)\n{FLAG}"
            body=[gst(144+4*i,i) for i in range(4)]+t3st
            o="H2_st:\n"
            for n,b in enumerate(body):
                o+=f"s_cmp_eq_u32 s62, {5-n}\ns_cbranch_scc0 H2_st{n}\n{b}\nH2_st{n}:\n"
            o+="s_setpc_b64 s[54:55]"
            OOL.append(o)
    def hooks2(slot,u):
        ex=[]
        for (q,uu),body in sorted(dw.items()):
            if q%4==slot and uu==u: ex+=hook(q//4,body,f"H2_{q}_{uu}")
        if stag2 and l1epi<2 and u==0 and not sched:
            ex+=["s_sub_u32 s62, s62, 1\ns_cmp_lt_u32 s62, 6", f"s_cbranch_scc1 H2_go{slot}\nH2_ns{slot}:"]
            OOL.append(f"H2_go{slot}:\ns_call_b64 s[54:55], H2_st\ns_branch H2_ns{slot}")
        assert len(ex)<=4, (slot,u,ex)
        return ex
    A(f".p2align {al}\nC2_loop:")
    for slot in range(4):
        sstamp()
        for l in interleave(mf2(0), reads2(slot,1,1)+hooks2(slot,0)+(WU if w6 else ([PAD] if walk else []))): A(l)
        if slot==0: A("C2_in:")
        A("s_waitcnt lgkmcnt(0)\ns_barrier")
        ex=WS+hooks2(slot,1)
        if w6 and walk and len(ex)<=3 and slot!=3: ex=ex+[PAD]
        if slot==3: ex+=[f"s_add_u32 s{sIt}, s{sIt}, 1", f"s_cmp_lt_u32 s{sIt}, 6"]
        x=interleave(mf2(1), reads2((slot+1)&3,0,0)+ex)
        if x[-1].startswith("v_mfma"):
            for l in x[:-1]: A(l)
            A("s_waitcnt lgkmcnt(0)"); A(x[-1])
        else:
            for l in x: A(l)
            A("s_waitcnt lgkmcnt(0)")
    A("s_cbranch_scc1 C2_loop")
    stamp(13)
    if diag: A("s_waitcnt lgkmcnt(0)")
    DYN[0]=0
    G=[dict(H=[160,80],W=[184,96]), dict(H=[192,104],W=[208,216])]
    def rdS(g,slot,js,us=(0,1)):
        o=[]
        for u in us:
            w=rdW(G[g]['W'][u],slot,u,js); o+=w[0:2]+rdH(G[g]['H'][u],slot,u)+w[2:]
        return o
    def mfS(g,js): return mfm(G[g]['H'][0],G[g]['W'][0],js,w0=js[0])+mfm(G[g]['H'][1],G[g]['W'][1],js,w0=js[0])
    for l in rdS(0,0,(2,3),(1,)): A(l)
    pad()
    A("s_barrier")
    m=mfS(0,(2,3)); r=rdS(1,1,(2,3))
    x=interleave(m[:8], r[:8])
    for l in x: A(l)
    A("s_waitcnt lgkmcnt(8)")
    for l in interleave(m[8:], r[8:]): A(l)
    for q in (1,2):
        if q==2: pad()
        A("s_waitcnt lgkmcnt(0)\ns_barrier")
        for l in interleave(mfS(q&1,(2,3)), rdS((q+1)&1,q+1,(2,3))): A(l)
    A(f"s_mul_i32 s52, s{sJ}, {-2*32*QS}\ns_add_u32 s52, s52, {32*QS}\ns_add_u32 s52, s52, s57\ns_mov_b32 s53, -2")
    sn=[]
    for i in range(4):
        D=128+4*i; t=[]
        for n,j in enumerate((2,3)):
            S=ACC+(j*4+i)*4
            t+= [f"v_cvt_pk_bf16_f32 v{D+2*n}, v{S}, v{S+1}", f"v_cvt_pk_bf16_f32 v{D+2*n+1}, v{S+2}, v{S+3}"]
        t+=[f"v_min_u32 v{D+r}, s53, v{D+r}" for r in range(4)]
        t.append(f"buffer_store_dwordx4 {vr(D,4)}, v{VF+i}, {R4(SWS)}, s52 offen sc1")
        sn.append(t)
    A("s_waitcnt lgkmcnt(0)")
    if esend:
        g=G[1]; r=rdS(0,0,(0,1)); k=0
        for i in range(4):
            for u,j in ((0,2),(0,3),(1,3),(1,2)):
                A(f"v_mfma_f32_16x16x32_bf16 {vr(ACC+(j*4+i)*4,4)}, {vr(g['W'][u]+4*(j-2),4)}, {vr(g['H'][u]+4*i,4)}, {vr(ACC+(j*4+i)*4,4)}")
                A(r[k]); k+=1
            if i>=1:
                for l in sn[i-1]: A(l)
        stamp(5)
        pad()
        A("s_waitcnt lgkmcnt(0)")
        m=mfS(0,(0,1)); r=rdS(1,1,(0,1))
        for n,mm_ in enumerate(m):
            A(mm_); A(r[n])
            if n==2:
                for l in sn[3]: A(l)
    else:
        for l in interleave(mfS(1,(2,3)), rdS(0,0,(0,1))): A(l)
        stamp(5)
        pad()
        snd=sum(sn,[])
        A("s_waitcnt lgkmcnt(0)")
        m=mfS(0,(0,1)); r=rdS(1,1,(0,1))
        k=0
        for n,mm_ in enumerate(m):
            A(mm_); A(r[n])
            if packfirst and n==1:
                A("s_nop 3")
                while k<len(snd): A(snd[k]); k+=1
            if n>=3:
                for _ in range(3):
                    if k<len(snd): A(snd[k]); k+=1
        while k<len(snd): A(snd[k]); k+=1
    if diag!=5: stamp(6)
    RB=144 if dual else 80; RB2=224
    def LDs(b): return [f"buffer_load_dwordx4 {vr(b+4*i,4)}, v{VF+i}, {R4(SWS)}, s57 offen sc1" for i in range(4)]
    LD=LDs(RB)
    for q in (1,2):
        pad()
        A("s_waitcnt lgkmcnt(0)")
        x=interleave(mfS(q&1,(0,1)), rdS((q+1)&1,q+1,(0,1)))
        if dual==q:
            for n in range(4): x.insert(2+3*n+n,LD[n])
        for l in x: A(l)
    A("s_waitcnt lgkmcnt(0)")
    adr=["v_and_b32 v13, 15, v2","v_lshlrev_b32 v13, 11, v13","v_bfe_u32 v14, v2, 4, 1","v_lshl_add_u32 v13, v14, 5, v13","v_lshrrev_b32 v14, 5, v2","v_lshl_add_u32 v13, v14, 4, v13",
         f"s_lshl_b32 s{sC}, s{sMt}, 1\ns_add_u32 s{sC}, s{sC}, s{sWm}", f"s_lshl_b32 s{sC}, s{sC}, 17\ns_lshl_b32 s52, s{sDt}, 8", f"s_add_u32 s{sC}, s{sC}, s52\ns_lshl_b32 s52, s{sJ}, 7",
         f"s_add_u32 s{sC}, s{sC}, s52\ns_lshl_b32 s52, s{sWf}, 6", f"s_add_u32 s{sC}, s{sC}, s52\ns_mov_b32 s58, 0"]
    def chk():
        A(f"v_max3_u32 v14, v{RB}, v{RB+1}, v{RB+2}")
        for r in range(3,15,2): A(f"v_max3_u32 v14, v14, v{RB+r}, v{RB+r+1}")
        A(f"v_max_u32 v14, v14, v{RB+15}\nv_cmp_eq_u32 vcc, -1, v14")
    if dual:
        for l in interleave(mfS(1,(0,1)), LDs(80)+adr): A(l)
        A("s_waitcnt vmcnt(4)"); chk()
        A("s_nop 4\ns_cbranch_vccz C3_ok\ns_waitcnt vmcnt(0)")
        for r in range(16): A(f"v_mov_b32 v{RB+r}, v{80+r}")
    else:
        for l in interleave(mfS(1,(0,1)), adr[:ldpos]+LD+adr[ldpos:]): A(l)
    if diag and diag!=5: stamp(8)
    pad()
    A("s_branch C3_chk")
    A("C3_poll:")
    for l in LD: A(l)
    A("C3_chk:\ns_add_u32 s58, s58, 1\ns_waitcnt vmcnt(0)")
    chk()
    spin_tail("C3_poll")
    A("C3_ok:")
    stamp(7)
    if diag: A("s_mov_b32 s86, s58")
    A("s_mov_b32 s53, 0xffff0000")
    for i in range(4):
        D=128+4*i
        for n in range(2):
            S=ACC+(n*4+i)*4
            for h in range(2):
                Rr=RB+4*i+2*n+h
                A(f"v_lshlrev_b32 v{T}, 16, v{Rr}\nv_and_b32 v{T+1}, s53, v{Rr}\nv_pk_add_f32 {vr(S+2*h,2)}, {vr(S+2*h,2)}, {vr(T,2)}")
                A(f"v_cvt_pk_bf16_f32 v{D+2*n+h}, v{S+2*h}, v{S+2*h+1}")
        A(f"s_nop 1\nv_permlane16_swap_b32 v{D}, v{D+2}\nv_permlane16_swap_b32 v{D+1}, v{D+3}")
        A(f"buffer_store_dwordx4 {vr(D,4)}, v13, {R4(SO)}, s{sC} offen {outaux}")
        if i<3: A(f"s_add_u32 s{sC}, s{sC}, 0x8000")
        if i==0: pad()
    if diag:
        if diag!=5: stamp(9)
        A("s_waitcnt vmcnt(0)"); stamp(10); rstamp(15); flush(16,True)
    A("s_endpgm")
    if walk: A(PAD+"\ns_endpgm")
    for b in OOL: A(b)
    A("L_end:\ns_endpgm")
    A(f""".section .rodata,"a"
.p2align 6
.amdhsa_kernel {NAME}
  .amdhsa_next_free_vgpr 256
  .amdhsa_next_free_sgpr 96
  .amdhsa_accum_offset 256
  .amdhsa_group_segment_fixed_size 0
  .amdhsa_kernarg_size 48
  .amdhsa_user_sgpr_count 2
  .amdhsa_user_sgpr_kernarg_segment_ptr 1
  .amdhsa_system_sgpr_workgroup_id_x 1
.end_amdhsa_kernel""")
    txt=A.text()
    if walk:
        n=txt.count("@PAD@"); parts=txt.split("@PAD@")
        starts=[round(w*n/walk) for w in range(walk)]
        out=parts[0]
        for k in range(n):
            nxt="C_wret" if (k+1==n or k+1 in starts) else f"PAD{k+1}"
            out+=f"PAD{k}:\ns_cbranch_execz {nxt}"+parts[k+1]
        for w in range(walk): out=out.replace(f"@START{w}@",f"PAD{starts[w]}")
        txt=out
    return txt

if __name__=="__main__":
    import inspect
    p=argparse.ArgumentParser(); p.add_argument("-o")
    for k,v in inspect.signature(build).parameters.items():
        p.add_argument("--"+k,type=type(v.default),default=v.default)
    a=vars(p.parse_args()); o=a.pop("o")
    open(o,"w").write(build(**a))
```

```python
import sys, argparse
NAME="standalone__dense_activation_silu__prompt_kernel"
class Asm:
    def __init__(self): self.L=[]
    def __call__(self, s):
        for l in s.split("\n"): self.L.append(l)
    def text(self): return "\n".join(self.L)+"\n"
def vr(a,n): return f"v[{a}:{a+n-1}]"
def srd(A, d, b, nbytes):
    A(f"s_mov_b32 s{d}, s{b}\ns_and_b32 s{d+1}, s{b+1}, 0xffff\ns_mov_b32 s{d+2}, {nbytes}\ns_mov_b32 s{d+3}, 0x20000")
X_BYTES=2048*1024*2; W_BYTES=1024*3584*2; O_BYTES=2048*1024*2
H_OFF=0; P_OFF=24<<20; F_OFF=48<<20; T_OFF=64<<20
SX,SW1,SW2,SO,SD,SWS=16,20,24,28,32,36
sMt,sJ,sFt8,sFt,sLid,sXcd,sDt=40,41,42,43,44,45,63
OOB=0x7ffffff0
SPIN=1<<17
def R4(s): return f"s[{s}:{s+3}]"

def interleave(mf, rd):
    out=[]; k=0
    for m in mf:
        out.append(m)
        if k<len(rd): out.append(rd[k]); k+=1
    return out+rd[k:]
ORDER='ji'
def snake(JS,NI):
    JS=list(JS)
    if ORDER=='ij': return [(j,i) for i in range(NI) for j in (JS if i%2==0 else JS[::-1])]
    return [(j,(i if n%2==0 else NI-1-i)) for n,j in enumerate(JS) for i in range(NI)]

def build(diag=0, rot=1, pf1=0, pf2=1, pfc=1, outaux="sc1", pfa=13, dswz=0, w1aux="", xaux="", w2aux="", l1st=1, l2st=4, stag=1, l1epi=1, rmask=1, f3=9, skew2=1, pfb=0, stag2=1, remap=1, spa=0, spb=13, spn=4, ack=6, ldearly=1, pfi=0, w1s=6, sched=0, fch=6, pdelay=0, nb=4, clr0=0, dual=0, tlb=0, packfirst=1, spub=1, vpoll=0, hsi=12, hsglc='', cmask=1, cbase=1, walk=2, w2e=0, order='ji', esend=1, ldpos=0, fast=1, la1=0, hd=4, la2=0, npoll=2, tearly=2, nsh=0, two=0, tight2=1, tight1=1, lead=1, tl=0, tlw=16, tl0=0, sep=1, xp_it=0, xp_n=0, late=-1, sl2=0, cprio=1, pprio=0, al=3, pj=1, w6=0, late2=0, pcw=0, pipe=0, wsplit=0, cw=0):
    global ORDER; ORDER=order
    assert ack+2!=hsi and tl not in (ack+5,hsi+3) and ack+2<=12 and (cbase+cmask<ack or sep) and nsh<=(4 if two else ack+2)
    A=Asm(); A_main=A; OOL=[]
    tm='s_memrealtime' if diag>=3 else 's_memtime'
    def stamp(k):
        if diag: A(f"{tm} s[{64+2*k}:{65+2*k}]")
    def rstamp(k):
        if diag: A(f"s_memrealtime s[{64+2*k}:{65+2*k}]")
    def sstamp():
        if diag==6: A(f"s_memtime s[90:91]\ns_memrealtime s[88:89]\ns_waitcnt lgkmcnt(0)\nv_writelane_b32 v254, s90, m0\nv_writelane_b32 v252, s88, m0\ns_add_u32 m0, m0, 1")
        if diag in (2,3): A(f"{tm} s[90:91]\ns_waitcnt lgkmcnt(0)\nv_writelane_b32 v254, s90, m0\ns_add_u32 m0, m0, 1")
    def flush(n, cons=False):
        if not diag: return
        if diag==5:
            ks=[6,8,9,1,2,4,5,10] if cons else [1,8,2,3,4,5]
            lab="DB_c" if cons else "DB_p"
            A(f"s_waitcnt lgkmcnt(0)\ns_and_b32 s60, s3, 3\ns_or_b32 s60, s60, s2\ns_cmp_eq_u32 s60, 0\ns_cbranch_scc0 {lab}\nv_lshlrev_b32 v1, 8, v2")
            for n_,k in enumerate(ks):
                A(f"s_sub_u32 s60, s{64+2*k}, s64\nv_mov_b32 v4, s60\nbuffer_store_dword v4, v1, {R4(SD)}, 0 offen offset:{4*(n_+(0 if cons else 8))} sc1")
            A(f"s_waitcnt vmcnt(0)\n{lab}:")
            return
        A(f"s_waitcnt lgkmcnt(0)\ns_lshl_b32 s60, s2, 3\ns_add_u32 s60, s60, s3\ns_lshl_b32 s60, s60, 8\ns_add_u32 s60, s60, {T_OFF}\nv_mov_b32 v1, 0")
        for k in range(n): A(f"v_mov_b32 v2, s{64+2*k}\nbuffer_store_dword v2, v1, {R4(SWS)}, s60 offen offset:{4*k}")
        if cons and diag>=2:
            A(f"v_and_b32 v1, 63, v0\nv_lshlrev_b32 v1, 2, v1\nv_mov_b32 v2, {OOB}\nv_cmp_gt_u32 vcc, 192, v1\ns_nop 1\nv_cndmask_b32 v1, v2, v1, vcc")
            A(f"buffer_store_dword v254, v1, {R4(SWS)}, s60 offen offset:64")
            if diag==6: A(f"s_add_u32 s60, s60, 0x80000\nbuffer_store_dword v252, v1, {R4(SWS)}, s60 offen offset:64")
        A("s_waitcnt vmcnt(0)")
    PAD='@PAD@' if walk else 's_nop 0'
    def pad():
        if walk: A(PAD)
    def spin_tail(label):
        A(f"s_cmp_lt_u32 s58, {SPIN}\ns_cselect_b64 s[60:61], -1, 0\ns_and_b64 vcc, vcc, s[60:61]\ns_cbranch_scc1 {label}")
    WST=28672; WOFF=65536
    QS=5120 if remap else 4096
    CH=2*QS
    def physline(dst,g,tmp,A=None):
        A=A or A_main
        if remap: A(f"v_add_u32 v{tmp}, 4, v{g}\nv_mul_u32_u24 v{tmp}, 37, v{tmp}\nv_lshrrev_b32 v{tmp}, 8, v{tmp}\nv_add_u32 v{tmp}, v{tmp}, v{g}\nv_lshlrev_b32 v{dst}, 7, v{tmp}")
        else: A(f"v_lshlrev_b32 v{dst}, 7, v{g}")
    def fragoffs(base,A=None,t=(4,5,6)):
        A=A or A_main
        A(f"v_and_b32 v{t[2]}, 7, v2\nv_lshlrev_b32 v{t[2]}, 4, v{t[2]}")
        for n in range(4):
            A(f"v_lshrrev_b32 v{t[1]}, 3, v2\nv_add_u32 v{t[1]}, {8*n}, v{t[1]}"); physline(base+n,t[1],t[0],A); A(f"v_add_u32 v{base+n}, v{base+n}, v{t[2]}")
    A("""; Fused feed-forward: out = silu(x @ w1) @ w2, bf16 in/out, fp32 accumulate.
; Kernarg (48 bytes): 0 x[2048,1024], 8 w1[1024,3584], 16 w2[3584,1024], 24 out[2048,1024], 32 debug(256B), 40 ws
; 256 workgroups, one per CU; waves 0-3 compute (MFMA), waves 4-7 stream tiles into LDS.
; @launch grid=(256,1,1) block=(512,1,1) lds="""+("163840" if w6 else "151552"))
    A('.amdgcn_target "amdgcn-amd-amdhsa--gfx950"\n.text')
    A(f".globl {NAME}\n.p2align 8\n.type {NAME},@function\n{NAME}:")
    A("s_load_dwordx8 s[4:11], s[0:1], 0\ns_load_dwordx4 s[12:15], s[0:1], 32")
    A("s_cmp_ge_u32 s2, 256\ns_cbranch_scc1 L_end")
    stamp(0); rstamp(14)
    if fast and pfc:
        A(f"s_getpc_b64 s[54:55]\nC_pc:\nv_lshlrev_b32 v3, 7, v0\ns_sub_u32 s54, s54, C_pc-{NAME}\ns_subb_u32 s55, s55, 0")
        if pcw:
            A(f"s_cmp_lt_u32 s2, {pcw}\ns_cselect_b32 s3, L_end-{NAME}, 0\nv_min_u32 v3, s3, v3\nv_lshrrev_b32 v1, 6, v0\nglobal_load_dword v255, v3, s[54:55]\nv_and_b32 v2, 63, v0")
        else: A(f"v_min_u32 v3, L_end-{NAME}, v3\nv_lshrrev_b32 v1, 6, v0\nglobal_load_dword v255, v3, s[54:55]\nv_and_b32 v2, 63, v0")
    else: A("v_lshrrev_b32 v1, 6, v0\nv_and_b32 v2, 63, v0")
    A(f"v_readfirstlane_b32 s3, v1\ns_and_b32 s{sXcd}, s2, 7\ns_lshr_b32 s46, s2, 3")
    dec1=f"s_lshr_b32 s{sMt}, s{sXcd}, 1\ns_lshl_b32 s{sMt}, s{sMt}, 2\ns_lshr_b32 s47, s46, 3\ns_add_u32 s{sMt}, s{sMt}, s47\ns_and_b32 s{sJ}, s{sXcd}, 1"
    dec2=(f"s_and_b32 s{sFt8}, s46, 7\ns_lshl_b32 s{sFt}, s{sJ}, 3\ns_add_u32 s{sFt}, s{sFt}, s{sFt8}\n"
          f"s_lshl_b32 s{sLid}, s{sMt}, 4\ns_add_u32 s{sLid}, s{sLid}, s{sFt}\ns_xor_b32 s{sDt}, s{sJ}, 1\ns_mul_i32 s{sDt}, s{sDt}, {dswz}\ns_xor_b32 s{sDt}, s{sDt}, s{sFt8}")
    A(dec1); A(dec2)
    if fast and pf1==5:
        A("s_cmp_lt_u32 s3, 4\ns_cbranch_scc0 L_prod")
        A(f"s_lshr_b32 s58, s{sXcd}, 1\ns_lshl_b32 s59, s58, 2\ns_lshl_b32 s58, s58, 5\ns_add_u32 s58, s58, s46\ns_lshl_b32 s58, s58, 1\ns_add_u32 s58, s58, s{sJ}\ns_lshl_b32 s58, s58, 14")
        A("v_bfe_u32 v15, v0, 2, 3\nv_add_u32 v15, s59, v15\nv_and_b32 v15, 15, v15\nv_lshlrev_b32 v15, 7, v15\nv_lshrrev_b32 v14, 5, v0\nv_lshl_add_u32 v15, v14, 11, v15\nv_add_u32 v252, s58, v15")
        A("s_waitcnt lgkmcnt(0)\nglobal_load_dword v253, v252, s[4:5]\ns_branch L_cons\nL_prod:")
    elif fast and pf1==1:
        A("s_cmp_lt_u32 s3, 4\ns_cbranch_scc0 L_prod")
        A("v_lshrrev_b32 v15, 1, v0\ns_lshl_b32 s58, s2, 7\nv_add_u32 v15, s58, v15\nv_lshlrev_b32 v15, 7, v15\ns_waitcnt lgkmcnt(0)\nglobal_load_dword v253, v15, s[4:5]\ns_branch L_cons\nL_prod:")
    else:
        A("s_cmp_lt_u32 s3, 4\ns_cbranch_scc1 L_cons")
    sP,sKX,sKW,sLX,sLW,sRing,sCnt,sT0,sT1=46,47,48,49,50,51,52,53,54
    A(f"s_sub_u32 s{sP}, s3, 4")
    if pprio: A(f"s_setprio {pprio}")
    A("v_lshrrev_b32 v3, 3, v2\nv_and_b32 v4, 7, v2\nv_lshrrev_b32 v5, 4, v2\nv_xor_b32 v4, v4, v5\nv_lshlrev_b32 v4, 4, v4\nv_lshl_add_u32 v3, v3, 11, v4")
    A(f"s_lshl_b32 s{sT0}, s{sMt}, 18\ns_lshl_b32 s{sT1}, s{sP}, 16\ns_add_u32 s{sT0}, s{sT0}, s{sT1}\nv_add_u32 v8, s{sT0}, v3")
    A("v_xor_b32 v9, 64, v8\nv_add_u32 v9, 0x4000, v9\nv_add_u32 v10, 0x8000, v8\nv_add_u32 v11, 0x8000, v9")
    if not rot: A(f"s_mov_b32 s{sKX}, 0\ns_mov_b32 s{sKW}, 0")
    if rot:
        if rot in (1,2,4,5,6,7,8):
            if pj: A(f"s_lshr_b32 s{sT0}, s{sXcd}, 1\ns_lshl_b32 s{sT1}, s{sJ}, 1\ns_add_u32 s{sT0}, s{sT0}, s{sT1}\ns_and_b32 s{sT0}, s{sT0}, 3\ns_lshl_b32 s{sT0}, s{sT0}, 2")
            else: A(f"s_lshr_b32 s{sT0}, s{sXcd}, 1\ns_lshl_b32 s{sT0}, s{sT0}, 2")
            if rot==4: A(f"s_and_b32 s{sT0}, s{sT0}, 8")
        else: A(f"s_mov_b32 s{sT0}, 0")
        if rot>=5: A(f"s_mov_b32 s62, s{sT0}\ns_mov_b32 s60, 0\ns_mov_b32 s61, 0")
        if rot in (7,8): A(f"s_and_b32 s{sT1}, s{sMt}, 1\ns_lshl_b32 s{sT1}, s{sT1}, {rot-7}\ns_add_u32 s{sT0}, s{sT0}, s{sT1}")
        elif rot>=2: A(f"s_and_b32 s{sT1}, s{sMt}, 3\ns_add_u32 s{sT0}, s{sT0}, s{sT1}")
        A(f"s_lshl_b32 s{sKX}, s{sT0}, 7\ns_mul_i32 s{sKW}, s{sT0}, {64*7168}")
    sRX=57
    A(f"s_lshl_b32 s{sLX}, s{sP}, 12\ns_mov_b32 s{sRX}, 0\ns_mov_b32 s{SX+2}, {X_BYTES}\ns_mov_b32 s{SX+3}, 0x20000")
    A(f"s_waitcnt lgkmcnt(0)\ns_mov_b32 s{SX}, s4\ns_and_b32 s{SX+1}, s5, 0xffff")
    def nextk(c):
        if rot in (7,8):
            A(f"s_add_u32 s{c}, s{c}, 1\ns_and_b32 s{sT1}, s{c}, 8\ns_cselect_b32 s{sT0}, 1, 0\ns_xor_b32 s{sT0}, s{sT0}, s{sMt}\ns_and_b32 s{sT0}, s{sT0}, 1\ns_lshl_b32 s{sT0}, s{sT0}, {rot-7}\ns_add_u32 s{sT0}, s{sT0}, s{c}\ns_and_b32 s{sT0}, s{sT0}, 7")
            A(f"s_add_u32 s{sT0}, s{sT0}, s{sT1}\ns_add_u32 s{sT0}, s{sT0}, s62\ns_and_b32 s{sT0}, s{sT0}, 15")
            return
        if rot==6:
            A(f"s_add_u32 s{c}, s{c}, 1\ns_and_b32 s{sT1}, s{c}, 8\ns_cselect_b32 s{sT0}, 3, 0\ns_xor_b32 s{sT0}, s{sT0}, s{sMt}\ns_and_b32 s{sT0}, s{sT0}, 3\ns_add_u32 s{sT0}, s{sT0}, s{c}\ns_and_b32 s{sT0}, s{sT0}, 7")
            A(f"s_add_u32 s{sT0}, s{sT0}, s{sT1}\ns_add_u32 s{sT0}, s{sT0}, s62\ns_and_b32 s{sT0}, s{sT0}, 15")
            return
        A(f"s_add_u32 s{c}, s{c}, 1\ns_add_u32 s{sT0}, s{c}, s{sMt}\ns_and_b32 s{sT0}, s{sT0}, 3\ns_and_b32 s{sT1}, s{c}, 12\ns_add_u32 s{sT0}, s{sT0}, s{sT1}\ns_add_u32 s{sT0}, s{sT0}, s62\ns_and_b32 s{sT0}, s{sT0}, 15")
    def issueW1(part=None):
        inc=[1024,896,1024,896,1024,1280]
        ns=range(7) if part is None else (range(hd) if part==0 else range(hd,7))
        if part!=1: A(f"s_add_u32 m0, s{sRing}, s{sLW}\ns_add_u32 s{sRing}, s{sRing}, {WST}")
        else: A("s_mov_b32 m0, s1\ns_nop 0")
        for n in ns:
            a,o=n>>1,n&1
            if n<6:
                A(f"buffer_load_dwordx4 v{13+o}, {R4(SW1)}, s{sKW} offen offset:{a*128} {w1aux} lds")
                if part==0 and n==hd-1: A(f"s_add_u32 s1, m0, {inc[n]}")
                else:
                    A(f"s_add_u32 m0, m0, {inc[n]}")
                    A("s_nop 0" if n else f"s_cmp_eq_u32 s{sRing}, {WST*3}\ns_cselect_b32 s{sRing}, 0, s{sRing}")
            else:
                A(f"buffer_load_dwordx4 v12, {R4(SW1)}, s{sKW} offen {w1aux} lds\ns_add_u32 s{sKW}, s{sKW}, {64*7168}")
                if rot>=5:
                    nextk(60); A(f"s_mul_i32 s{sKW}, s{sT0}, {64*7168}\ns_add_u32 s{sKW}, s{sKW}, s59")
                elif rot: A(f"s_cmp_eq_u32 s{sKW}, s58\ns_cselect_b32 s{sKW}, s59, s{sKW}")
    def issueX():
        A(f"s_add_u32 m0, s{sRX}, s{sLX}\ns_add_u32 s{sRX}, s{sRX}, 16384")
        for n in range(4):
            A(f"buffer_load_dwordx4 v{8+n}, {R4(SX)}, s{sKX} offen {xaux} lds")
            if n<3: A("s_add_u32 m0, m0, 1024\n"+("s_nop 0" if n else f"s_and_b32 s{sRX}, s{sRX}, 0xffff"))
        if tight1: pass
        elif rot>=5:
            nextk(61); A(f"s_lshl_b32 s{sKX}, s{sT0}, 7")
        else: A(f"s_add_u32 s{sKX}, s{sKX}, 128\ns_and_b32 s{sKX}, s{sKX}, 2047")
    stamp(1)
    issueX()
    A(f"s_and_b32 s{sT0}, s{sFt8}, 1\ns_lshl_b32 s{sT1}, s{sT0}, 6")
    A("v_bfe_u32 v3, v2, 2, 3\nv_mul_u32_u24 v3, 7168, v3\nv_lshrrev_b32 v5, 5, v2\nv_and_b32 v4, 3, v2\nv_lshlrev_b32 v4, 4, v4")
    A(f"v_lshl_add_u32 v6, v5, 6, v3\nv_add3_u32 v13, v6, v4, s{sT1}\nv_xor_b32 v14, 32, v13\nv_add_u32 v14, {8*7168}, v14")
    A(f"s_xor_b32 s{sT0}, s{sT0}, 1\ns_mul_i32 s{sT0}, s{sT0}, 384\nv_lshrrev_b32 v3, 2, v2\nv_mul_u32_u24 v3, 7168, v3\nv_lshlrev_b32 v5, 5, v5\nv_xor_b32 v4, v4, v5\nv_add3_u32 v12, v3, v4, s{sT0}")
    A(f"s_mul_i32 s59, s{sP}, {16*7168}\ns_mul_i32 s{sT0}, s{sFt}, 448\ns_add_u32 s59, s59, s{sT0}\ns_add_u32 s{sKW}, s{sKW}, s59\ns_add_u32 s58, s59, {1024*7168}")
    A(f"s_mul_i32 s{sLW}, s{sP}, 7168\ns_add_u32 s{sLW}, s{sLW}, {WOFF}\ns_mov_b32 s{sRing}, {2*WST}")
    srd(A,SW1,6,W_BYTES)
    if la1 or tearly: issueW1(0)
    else: issueW1(); issueX(); issueW1()
    srd(A,SW2,8,W_BYTES); srd(A,SWS,14,0x10000000)
    if diag==5: srd(A,SD,12,256)
    sHp,sHalf=55,56
    if tlb:
        A(f"s_cmp_lt_u32 s2, {tlb}\ns_cbranch_scc0 P1_ntlb\ns_lshl_b32 s{sT0}, s{sP}, 21")
        A(f"s_add_u32 s4, s8, s{sT0}\ns_addc_u32 s5, s9, 0\ns_load_dword s0, s[4:5], 0")
        A(f"s_lshr_b32 s{sT1}, s{sT0}, 1\ns_add_u32 s4, s10, s{sT1}\ns_addc_u32 s5, s11, 0\ns_load_dword s0, s[4:5], 0")
        for b in (0, 8<<20, 16<<20, P_OFF, F_OFF):
            A(f"s_add_u32 s{sT1}, s{sT0}, {b}\ns_add_u32 s4, s14, s{sT1}\ns_addc_u32 s5, s15, 0\ns_load_dword s0, s[4:5], 0")
        A("P1_ntlb:")
    if tl0:
        A(f"s_cmp_lt_u32 s2, {tlw}\ns_cbranch_scc0 P1_nt0\ns_lshl_b32 s{sT0}, s{sP}, 21\ns_add_u32 s{sT0}, s{sT0}, {P_OFF}\ns_cmp_eq_u32 s{sP}, 3\ns_cselect_b32 s{sT0}, {F_OFF}, s{sT0}")
        A(f"s_add_u32 s4, s14, s{sT0}\ns_addc_u32 s5, s15, 0\ns_load_dword s0, s[4:5], 0\nP1_nt0:")
    A(f"s_lshr_b32 s4, s{sLid}, 3\ns_lshl_b32 s4, s4, 10\ns_add_u32 s4, s4, {F_OFF+fch*128}\ns_add_u32 s4, s14, s4\ns_addc_u32 s5, s15, 0")
    A(f"s_lshl_b32 s6, s{sMt}, 4\ns_add_u32 s6, s12, s6\ns_addc_u32 s7, s13, 0")
    def spf():
        if pf2 not in (3,4): return
        for k in range(4): A(f"s_load_dword s12, s[8:9], {k*64}")
        A(f"s_add_u32 s13, s13, 1\ns_and_b32 s{sT0}, s13, 7\ns_cselect_b32 s{sT0}, 0, {131072-2048}\ns_add_u32 s{sT0}, s{sT0}, 256\ns_add_u32 s8, s8, s{sT0}\ns_addc_u32 s9, s9, 0")
    if pf2 in (3,4):
        A(f"s_lshl_b32 s12, s2, 2\ns_add_u32 s12, s12, s{sP}")
        A(f"s_lshr_b32 s{sT0}, s12, 6\ns_mul_i32 s13, s{sT0}, 7\ns_and_b32 s{sT0}, s{sT0}, 1")
        A(f"s_xor_b32 s{sT1}, s{sT0}, 1\ns_mul_i32 s{sT1}, s{sT1}, 6\ns_add_u32 s{sT1}, s{sT1}, s13\ns_lshl_b32 s{sT1}, s{sT1}, 16\ns_and_b32 s14, s12, 63\ns_lshl_b32 s14, s14, 10\ns_add_u32 s{sT1}, s{sT1}, s14")
        A(f"s_add_u32 s14, s8, s{sT1}\ns_addc_u32 s15, s9, 0")
        A(f"s_add_u32 s13, s13, s{sT0}\ns_lshl_b32 s13, s13, 16\ns_and_b32 s12, s12, 63\ns_lshl_b32 s12, s12, 11\ns_add_u32 s13, s13, s12\ns_add_u32 s8, s8, s13\ns_addc_u32 s9, s9, 0\ns_mov_b32 s13, 0")
    A(f"s_lshr_b32 s{sHp}, s{sP}, 1\ns_and_b32 s{sHalf}, s{sP}, 1")
    A("v_subrev_u32 v5, 3, v2\nv_mul_u32_u24 v3, 37, v5\nv_lshrrev_b32 v3, 8, v3\nv_mul_u32_u24 v4, 7, v3\nv_sub_u32 v4, v5, v4")
    if skew2==3: A(f"v_add_u32 v6, s{sMt}, v3\nv_and_b32 v6, 3, v6\nv_add_u32 v4, v6, v4\nv_subrev_u32 v6, 7, v4\nv_min_u32 v4, v4, v6")
    elif skew2: A(f"s_and_b32 s{sT0}, s{sMt}, 3\ns_mul_i32 s{sT0}, s{sT0}, {3-skew2}\nv_add_u32 v4, s{sT0}, v4\nv_subrev_u32 v6, 7, v4\nv_min_u32 v4, v4, v6")
    A("v_add_u32 v4, 1, v4")
    A("v_cmp_gt_u32 vcc, 3, v2\ns_nop 1\nv_cndmask_b32 v3, v3, v2, vcc\nv_cndmask_b32 v4, v4, 0, vcc")
    A(f"v_add_u32 v4, s{sFt8}, v4\nv_and_b32 v4, 7, v4\nv_and_b32 v6, 1, v4\nv_mul_u32_u24 v4, 7, v4\nv_lshl_add_u32 v4, v3, 1, v4\nv_add3_u32 v4, v4, v6, s{sHp}")
    A(f"s_and_b32 s{sT0}, s{sMt}, {3 if skew2 else 0}\nv_add_u32 v5, s{sT0}, v2\nv_and_b32 v5, 3, v5\nv_mul_u32_u24 v5, 14, v5\nv_add3_u32 v5, v5, 6, s{sHp}")
    A("v_cmp_gt_u32 vcc, 24, v2\ns_nop 1\nv_cndmask_b32 v4, v5, v4, vcc\nv_and_b32 v4, 63, v4")
    A(f"s_mul_i32 s{sT0}, s{sJ}, 56\nv_add_u32 v4, s{sT0}, v4")
    A(f"s_mul_i32 s{sT0}, s{sMt}, {112*CH}\ns_mul_i32 s{sT1}, s{sHalf}, {QS}\ns_add_u32 s{sT0}, s{sT0}, s{sT1}")
    A(f"v_mul_u32_u24 v20, {CH}, v4\nv_add_u32 v20, s{sT0}, v20")
    A(f"s_lshl_b32 s{sT0}, s{sHalf}, 15\ns_lshl_b32 s{sT1}, s{sHalf}, 13\nv_mov_b32 v5, s{sT0}\nv_mov_b32 v6, s{sT1}\nv_cndmask_b32 v5, v6, v5, vcc")
    A(f"v_lshl_add_u32 v21, v4, 16, v5\ns_lshl_b32 s{sT0}, s{sDt}, 8\nv_add_u32 v21, s{sT0}, v21")
    A("v_and_b32 v4, 3, v2\nv_bfe_u32 v5, v2, 4, 1\nv_lshlrev_b32 v6, 1, v5\nv_xor_b32 v4, v4, v6\nv_lshlrev_b32 v4, 4, v4")
    A("v_lshrrev_b32 v6, 5, v2\nv_lshl_add_u32 v4, v6, 6, v4")
    A("v_bfe_u32 v6, v2, 2, 3\nv_lshl_add_u32 v22, v6, 11, v4\nv_add_u32 v23, 0x4000, v22")
    A("v_lshl_add_u32 v24, v5, 13, v22\nv_add_u32 v25, 0x8000, v24")
    fragoffs(26)
    if tight1:
        assert rot==8 and tearly==2 and not nsh and not la1 and spub and hsi and not two
        A(f"v_bfe_u32 v3, v2, 3, 1\nv_xor_b32 v3, s{sMt}, v3\nv_and_b32 v3, 1, v3\nv_lshl_add_u32 v3, v3, 1, v2\nv_and_b32 v3, 7, v3\nv_and_b32 v4, 8, v2\nv_add3_u32 v3, v3, v4, s62\nv_and_b32 v3, 15, v3")
        A(f"v_lshlrev_b32 v30, 7, v3\nv_mul_u32_u24 v31, {64*7168}, v3\nv_add_u32 v31, s59, v31")
    if diag==5: stamp(8)
    if tight1:
        xl=[f"buffer_load_dwordx4 v{8+n}, {R4(SX)}, s{sKX} offen {xaux} lds" for n in range(4)]
        wl=[f"buffer_load_dwordx4 v{13+(n&1)}, {R4(SW1)}, s{sKW} offen offset:{(n>>1)*128} {w1aux} lds" for n in range(6)]+[f"buffer_load_dwordx4 v12, {R4(SW1)}, s{sKW} offen {w1aux} lds"]
        inc=[1024,896,1024,896,1024,1280]
        def Wt(): A(f"s_mov_b32 m0, s1\ns_nop 0\n{wl[4]}\ns_add_u32 m0, m0, {inc[4]}\ns_nop 0\n{wl[5]}\ns_add_u32 m0, m0, {inc[5]}\ns_nop 0\n{wl[6]}")
        def Xs(fill):
            A(f"s_add_u32 m0, s{sRX}, s{sLX}\ns_add_u32 s{sRX}, s{sRX}, 16384")
            for n in range(4):
                A(xl[n])
                if n<3: A(f"s_add_u32 m0, m0, 1024\n{fill[n]}")
        assert hd==4
        andx=f"s_and_b32 s{sRX}, s{sRX}, 0xffff"
        A(f"v_readlane_b32 s{sKX}, v30, 1")
        Wt(); Xs([f"v_readlane_b32 s{sKW}, v31, 1", andx, "s_nop 0"])
        issueW1(0)
        A(f"v_readlane_b32 s{sKX}, v30, 2\ns_waitcnt vmcnt(8)")
        stamp(2)
        A("s_barrier")
        Wt(); Xs([f"v_readlane_b32 s{sKW}, v31, 2", andx, f"s_mov_b32 s{sCnt}, 2"])
        A(f"s_mov_b32 s61, {(1<<(ack+2+3))|(1<<(hsi+3))|((1<<tl) if tl else 0)}\ns_add_u32 m0, s{sRing}, s{sLW}\ns_branch P1_w")
        A(f".p2align {al}\nP1_loop:")
        A(f"s_bitcmp1_b32 s61, s{sCnt}\ns_cbranch_scc1 P1_hk\nP1_hkb:")
        Xs([f"v_readlane_b32 s{sKW}, v31, s{sCnt}", andx, "s_nop 0"])
        A(f"s_add_u32 m0, s{sRing}, s{sLW}\ns_waitcnt vmcnt(15)\ns_barrier\nP1_w:")
        fill=[f"s_add_u32 s{sCnt}, s{sCnt}, 1", f"s_add_u32 s{sRing}, s{sRing}, {WST}", f"v_readlane_b32 s{sKX}, v30, s{sCnt}",
              f"s_cmp_eq_u32 s{sRing}, {WST*3}\ns_cselect_b32 s{sRing}, 0, s{sRing}", "s_nop 0", f"s_cmp_lt_u32 s{sCnt}, 16"]
        for n in range(7):
            A(wl[n])
            if n<6: A(f"s_add_u32 m0, m0, {inc[n]}\n{fill[n]}")
        A("s_cbranch_scc1 P1_loop\ns_branch P1_done")
        A("P1_hk:")
        if tl:
            A(f"s_cmp_eq_u32 s{sCnt}, {tl}\ns_cbranch_scc0 P1_hk0\ns_cmp_lt_u32 s2, {tlw}\ns_cbranch_scc0 P1_hkb\ns_lshl_b32 s{sT0}, s{sP}, 21")
            A(f"s_add_u32 s12, s8, s{sT0}\ns_addc_u32 s13, s9, 0\ns_load_dword s0, s[12:13], 0")
            A(f"s_lshr_b32 s{sT1}, s{sT0}, 1\ns_add_u32 s12, s10, s{sT1}\ns_addc_u32 s13, s11, 0\ns_load_dword s0, s[12:13], 0")
            for b in (0, 8<<20, 16<<20):
                A(f"s_add_u32 s{sT1}, s{sT0}, {b}\ns_add_u32 s12, s14, s{sT1}\ns_addc_u32 s13, s15, 0\ns_load_dword s0, s[12:13], 0")
            A("s_branch P1_hkb\nP1_hk0:")
        A(f"s_cmp_eq_u32 s{sCnt}, {hsi+3}\ns_cbranch_scc0 P1_hk1\ns_cmp_eq_u32 s{sP}, 0\ns_cbranch_scc0 P1_hkb\ns_load_dwordx4 s[28:31], s[6:7], 0 {hsglc}\ns_branch P1_hkb")
        if lead: A(f"P1_hk1:\ns_lshl_b32 s1, s{sFt}, 2\ns_add_u32 s1, s1, s{sP}\ns_cmp_eq_u32 s1, 2\ns_cbranch_scc0 P1_hkb\ns_mov_b32 s1, 1\ns_atomic_or s1, s[6:7], 0\ns_branch P1_hkb")
        else: A(f"P1_hk1:\ns_cmp_eq_u32 s{sP}, 2\ns_cbranch_scc0 P1_hkb\ns_and_b32 s1, s{sFt}, 3\ns_lshl_b32 s1, s1, 3\ns_lshl_b32 s1, 1, s1\ns_and_b32 s{sT0}, s{sFt}, 12\ns_atomic_or s1, s[6:7], s{sT0}\ns_branch P1_hkb")
        A("P1_done:")
        pad()
    else:
        if la1:
            A(f"s_mov_b32 s{sCnt}, -1\ns_branch P1_in")
            A(f"P1_loop:\ns_waitcnt vmcnt({4+hd})")
            if diag: A(f"s_cmp_eq_u32 s{sCnt}, 0\ns_cbranch_scc0 P1_ns"); stamp(2); A("P1_ns:")
            A("s_barrier\nP1_in:")
            issueW1(1); issueX(); issueW1(0)
        else:
            if nsh:
                A(f"s_mov_b32 s{sCnt}, -1\ns_branch P1_shin\nP1_sh:\ns_waitcnt vmcnt({4+hd})")
                if diag: A(f"s_cmp_eq_u32 s{sCnt}, 0\ns_cbranch_scc0 P1_ns"); stamp(2); A("P1_ns:")
                A("s_barrier\nP1_shin:")
                issueW1(1); issueX()
                A(f"s_cmp_eq_u32 s{sCnt}, {nsh}\ns_cbranch_scc1 P1_in")
                issueW1(0)
                A(f"s_add_u32 s{sCnt}, s{sCnt}, 1\ns_branch P1_sh")
            else:
                if tearly==1: issueW1(1); issueX(); issueW1()
                if tearly==2: issueW1(1); issueX(); issueW1(0)
                A(f"s_waitcnt vmcnt({4+hd if tearly==2 else 11})")
                stamp(2)
                A("s_barrier")
                if tearly==2: issueW1(1)
                issueX()
                A(f"s_mov_b32 s{sCnt}, 0\ns_branch P1_in")
            A("P1_loop:\ns_waitcnt vmcnt(15)\ns_barrier\nP1_in:")
            issueW1(); issueX()
        if spub and two:
            A(f"s_lshl_b32 s{sT0}, s{sP}, 8\ns_add_u32 s{sT0}, s{sT0}, s{sCnt}\ns_cmp_eq_u32 s{sT0}, {512+4}\ns_cselect_b32 s0, 1, 0\ns_cmp_eq_u32 s{sT0}, {512+ack+2}\ns_cselect_b32 s0, 2, s0\ns_cmp_eq_u32 s0, 0\ns_cbranch_scc1 P1_npub")
            A(f"s_and_b32 s{sT0}, s{sFt}, 3\ns_lshl_b32 s{sT0}, s{sT0}, 3\ns_lshl_b32 s0, s0, s{sT0}\ns_and_b32 s{sT0}, s{sFt}, 12\ns_atomic_or s0, s[6:7], s{sT0}\nP1_npub:")
        elif spub:
            A(f"s_lshl_b32 s{sT0}, s{sP}, 8\ns_add_u32 s{sT0}, s{sT0}, s{sCnt}\ns_cmp_eq_u32 s{sT0}, {512+ack+2}\ns_cbranch_scc0 P1_npub")
            A(f"s_and_b32 s0, s{sFt}, 3\ns_lshl_b32 s0, s0, 3\ns_lshl_b32 s0, 1, s0\ns_and_b32 s{sT0}, s{sFt}, 12\ns_atomic_or s0, s[6:7], s{sT0}\nP1_npub:")
        if hsi:
            assert pf2 not in (3,4)
            A(f"s_lshl_b32 s{sT0}, s{sP}, 8\ns_add_u32 s{sT0}, s{sT0}, s{sCnt}\ns_cmp_eq_u32 s{sT0}, {hsi}\ns_cbranch_scc0 P1_nh\ns_load_dwordx4 s[28:31], s[6:7], 0 {hsglc}\nP1_nh:")
        if pf2==4:
            spf()
            A(f"s_cmp_lt_u32 s{sCnt}, 3\ns_cbranch_scc0 P1_nspf")
            spf()
            A("P1_nspf:")
        if pf2==3:
            A(f"s_sub_u32 s{sT0}, s{sCnt}, {spa}\ns_cmp_lt_u32 s{sT0}, {spb-spa}\ns_cbranch_scc0 P1_nspf")
            spf()
            A("P1_nspf:")
        A(f"s_add_u32 s{sCnt}, s{sCnt}, 1\ns_cmp_lt_u32 s{sCnt}, {14 if la1 else 13}\ns_cbranch_scc1 P1_loop")
        pad()
        A(f"s_waitcnt vmcnt({4+hd if la1 else 15})\ns_barrier")
        issueW1(1 if la1 else None)
    sW,sH,sSlot,sLW2,sLH=47,48,51,50,49
    A(f"s_lshl_b32 s{sLH}, s{sP}, 12\ns_add_u32 s{sLW2}, s{sLH}, 65536\ns_mov_b32 s{sCnt}, 0\ns_mov_b32 s{sSlot}, 0")
    def issueW():
        A(f"s_add_u32 m0, s{sLW2}, s{sSlot}\ns_nop 0")
        for n in range(4):
            o,tb=n>>1,n&1
            A(f"buffer_load_dwordx4 v{22+o}, {R4(SW2)}, s{sW} offen offset:{tb*128} {w2aux} lds")
            if n<3: A(f"s_add_u32 m0, m0, {896 if tb==0 else 1024+128}\ns_nop 0")
    def issueH():
        A(f"s_add_u32 m0, s{sLH}, s{sSlot}\ns_nop 0")
        for n in range(4):
            A(f"buffer_load_dwordx4 v{26+n}, {R4(SWS)}, s{sH} offen sc1 lds")
            if n<3: A("s_add_u32 m0, m0, 1024\ns_nop 0")
    A(f"v_readlane_b32 s{sW}, v21, 0")
    if not la1: A("s_waitcnt vmcnt(7)\ns_barrier")
    if not hsi: A(f"s_cmp_eq_u32 s{sP}, 0\ns_cbranch_scc0 P2_nh\ns_load_dwordx4 s[28:31], s[6:7], 0 glc\nP2_nh:")
    A("s_waitcnt vmcnt(0)\ns_barrier")
    def nextW(): A(f"s_add_u32 s{sCnt}, s{sCnt}, 1\ns_add_u32 s{sSlot}, s{sSlot}, 16384\nv_readlane_b32 s{sW}, v21, s{sCnt}\ns_nop 2")
    if w2e:
        A("s_branch P2_w0\nP2_w:"); nextW(); A("P2_w0:"); issueW()
        A(f"s_cmp_lt_u32 s{sCnt}, {w2e}\ns_cbranch_scc1 P2_w")
        A("s_barrier")
        pad()
        A("P2_w2:"); nextW(); issueW()
        A(f"s_cmp_lt_u32 s{sCnt}, 3\ns_cbranch_scc1 P2_w2")
    else:
        issueW()
        A("s_barrier")
        pad()
        A("P2_w:"); nextW(); issueW()
        A(f"s_cmp_lt_u32 s{sCnt}, {5 if w6==1 else 3}\ns_cbranch_scc1 P2_w")
    A(f"s_cmp_eq_u32 s{sP}, 0\ns_cbranch_scc0 P2_hsd\ns_mov_b32 s58, 0\ns_branch P2_hsw")
    A("P2_hs:\ns_load_dwordx4 s[28:31], s[6:7], 0 glc\ns_add_u32 s58, s58, 1\nP2_hsw:\ns_waitcnt lgkmcnt(0)")
    if lead: A(f"s_cmp_ge_u32 s58, {SPIN}\ns_cbranch_scc1 P2_hsd\ns_cmp_eq_u32 s28, 1\ns_cbranch_scc0 P2_hs\nP2_hsd:")
    else:
        A(f"s_and_b32 s28, s28, s29\ns_and_b32 s30, s30, s31\ns_and_b32 s28, s28, s30\ns_and_b32 s28, s28, 0x01010101\ns_cmp_ge_u32 s58, {SPIN}\ns_cbranch_scc1 P2_hsd\ns_cmp_eq_u32 s28, 0x01010101\ns_cbranch_scc0 P2_hs\nP2_hsd:")
    A(f"s_lshr_b32 s59, s{sLid}, 3\ns_lshl_b32 s59, s59, 10\ns_add_u32 s59, s59, {F_OFF+fch*128}\ns_lshl_b32 s{sT0}, s{sFt8}, 2")
    A(f"v_mov_b32 v5, {OOB}\nv_mov_b32 v6, s{sT0}\nv_cmp_eq_u32 vcc, 0, v2\nv_and_b32 v3, 7, v2\nv_lshlrev_b32 v3, 2, v3\nv_cndmask_b32 v6, v5, v6, vcc\nv_mov_b32 v5, 1")
    A(f"v_readlane_b32 s{sH}, v20, 3\ns_waitcnt vmcnt({20 if w6==1 else 12})")
    stamp(3)
    A("s_barrier")
    stamp(6)
    A(f"s_cmp_eq_u32 s{sP}, 1\ns_cbranch_scc0 P2_nf\nbuffer_store_dword v5, v6, {R4(SWS)}, s59 offen sc1\ns_nop 1\nv_mov_b32 v5, 7\nP2_nf:")
    if w6==2:
        A("P2_w45:"); nextW(); issueW()
        A(f"s_cmp_lt_u32 s{sCnt}, 5\ns_cbranch_scc1 P2_w45")
    A(f"s_mov_b32 s62, 0\ns_cmp_eq_u32 s{sP}, 0\ns_cbranch_scc1 P2_p0\ns_waitcnt vmcnt({8 if w6==2 else 0})\ns_branch P2_go\nP2_p0:\ns_mov_b32 s58, 0")
    if pdelay: A(f"s_mov_b32 s16, 0\nP2_dl:\ns_add_u32 s16, s16, 1\ns_cmp_lt_u32 s16, {pdelay}\ns_cbranch_scc1 P2_dl")
    stamp(7)
    if vpoll:
        A(f"P2_l1:\nbuffer_load_dword v4, v3, {R4(SWS)}, s59 offen sc1\ns_add_u32 s58, s58, 1\ns_waitcnt vmcnt(0)\nv_cmp_eq_u32 vcc, 0, v4")
        spin_tail("P2_l1")
    else:
        A("P2_l1:\ns_load_dwordx8 s[16:23], s[4:5], 0 glc\ns_add_u32 s58, s58, 1\ns_waitcnt lgkmcnt(0)")
        A("s_and_b64 s[16:17], s[16:17], s[18:19]\ns_and_b64 s[20:21], s[20:21], s[22:23]\ns_and_b64 s[16:17], s[16:17], s[20:21]\ns_and_b32 s16, s16, s17")
        A(f"s_cmp_ge_u32 s58, {SPIN}\ns_cbranch_scc1 P2_rdy\ns_bitcmp1_b32 s16, 0\ns_cbranch_scc1 P2_rdy")
        if la2: A(f"s_cmp_eq_u32 s58, {npoll}\ns_cbranch_scc0 P2_l1\ns_waitcnt vmcnt(0)\ns_barrier\ns_mov_b32 s62, 1")
        A("s_branch P2_l1")
    A("P2_rdy:")
    if diag and diag!=5: stamp(9); A("s_mov_b32 s80, s58")
    A(f"s_mov_b32 m0, 49152\ns_mov_b32 s58, 0")
    A("P2_h3:")
    for n in range(4): A(f"buffer_load_dwordx4 v{26+n}, {R4(SWS)}, s{sH} offen sc1 lds\ns_add_u32 m0, m0, 1024\n"+("s_nop 0" if n<3 else f"s_add_u32 s{sH}, s{sH}, {QS}"))
    A("s_add_u32 s58, s58, 1\ns_cmp_lt_u32 s58, 4\ns_cbranch_scc1 P2_h3")
    A("P2_go:")
    pad()
    stamp(4)
    PL=f"buffer_load_dword v4, v3, {R4(SWS)}, s59 offen sc1"
    POOL=[]
    if tight2:
        assert not la2 and not two and pf2 not in (3,4) and l1epi==3
        mask=(1<<(l1st+5))|(1<<9)|(1<<(8 if sl2 else 10))|(1<<(21 if w6 else 23))|(((1<<14)|(1<<20)) if lead else 0)
        wl=[f"buffer_load_dwordx4 v{22+(n>>1)}, {R4(SW2)}, s{sW} offen offset:{(n&1)*128} {w2aux} lds" for n in range(4)]
        hl=[f"buffer_load_dwordx4 v{26+n}, {R4(SWS)}, s{sH} offen sc1 lds" for n in range(4)]
        if w6:
            sWs=62
            A(f"s_mov_b32 s{sCnt}, 4\ns_mov_b32 s57, {mask}\nv_readlane_b32 s{sW}, v21, 6\ns_mov_b32 s{sSlot}, 0\ns_mov_b32 s{sWs}, 0\ns_mov_b32 m0, s{sLW2}\ns_branch P2_bar")
            A(f".p2align {al}\nP2_loop:")
            A(f"s_bitcmp1_b32 s57, s{sCnt}\ns_cbranch_scc1 P2_hk\nP2_hkb:")
            def Hs(f):
                A(f"s_add_u32 m0, s{sLH}, s{sSlot}\ns_add_u32 s{sCnt}, s{sCnt}, 1")
                A(f"{hl[0]}\ns_add_u32 m0, m0, 1024\n{f[0]}")
                A(f"{hl[1]}\ns_add_u32 m0, m0, 1024\ns_add_u32 s{sSlot}, s{sSlot}, 16384")
                A(f"{hl[2]}\ns_add_u32 m0, m0, 1024\ns_and_b32 s{sSlot}, s{sSlot}, 0xffff")
                A(hl[3])
            Hs([f"v_readlane_b32 s{sW}, v21, s{sT1}"])
            A(f"s_add_u32 m0, s{sLW2}, s{sWs}\nP2_bar:\ns_waitcnt vmcnt(16)\ns_barrier")
            A(f"s_cmp_lt_u32 s{sCnt}, 26\ns_cbranch_scc0 P2_out")
            A(f"{wl[0]}\ns_add_u32 m0, m0, 896\nv_readlane_b32 s{sH}, v20, s{sCnt}")
            A(f"{wl[1]}\ns_add_u32 m0, m0, 1152\ns_add_u32 s{sWs}, s{sWs}, 16384")
            A(f"{wl[2]}\ns_add_u32 m0, m0, 896\ns_add_u32 s{sT1}, s{sCnt}, 3")
            A(f"{wl[3]}\ns_cmp_eq_u32 s{sWs}, {6*16384}\ns_cselect_b32 s{sWs}, 0, s{sWs}\ns_branch P2_loop")
        else:
            A(f"s_mov_b32 s{sCnt}, 4\ns_mov_b32 s57, {mask}\nv_readlane_b32 s{sW}, v21, 4\ns_mov_b32 s{sSlot}, 0\ns_mov_b32 m0, s{sLW2}\ns_branch P2_bar")
            A(f".p2align {al}\nP2_loop:")
            A(f"s_bitcmp1_b32 s57, s{sCnt}\ns_cbranch_scc1 P2_hk\nP2_hkb:")
            A(f"s_add_u32 m0, s{sLH}, s{sSlot}\ns_add_u32 s{sCnt}, s{sCnt}, 1")
            A(f"{hl[0]}\ns_add_u32 m0, m0, 1024\nv_readlane_b32 s{sW}, v21, s{sCnt}")
            A(f"{hl[1]}\ns_add_u32 m0, m0, 1024\ns_add_u32 s{sSlot}, s{sSlot}, 16384")
            A(f"{hl[2]}\ns_add_u32 m0, m0, 1024\ns_and_b32 s{sSlot}, s{sSlot}, 0xffff")
            A(f"{hl[3]}\ns_add_u32 m0, s{sLW2}, s{sSlot}\nP2_bar:\ns_waitcnt vmcnt(16)\ns_barrier")
            A(f"s_cmp_lt_u32 s{sCnt}, {24 if wsplit else 28}\ns_cbranch_scc0 P2_out")
            A(f"{wl[0]}\ns_add_u32 m0, m0, 896\nv_readlane_b32 s{sH}, v20, s{sCnt}")
            A(f"{wl[1]}\ns_add_u32 m0, m0, 1152\ns_nop 0")
            A(f"{wl[2]}\ns_add_u32 m0, m0, 896\ns_nop 0")
            A(f"{wl[3]}\ns_branch P2_loop")
        A("P2_hk:"); pad()
        A(f"s_cmp_eq_u32 s{sCnt}, {21 if w6 else 23}\ns_cbranch_scc0 P2_hk1\nv_mov_b32 v22, v24\nv_mov_b32 v23, v25\ns_branch P2_hkb")
        A("P2_hk1:")
        if lead:
            A(f"s_cmp_lt_u32 s{sCnt}, 14\ns_cbranch_scc1 P2_hk1a\ns_cmp_eq_u32 s{sP}, 0\ns_cbranch_scc0 P2_hkb\ns_mov_b32 s58, 0\ns_cmp_eq_u32 s{sCnt}, 20\ns_cbranch_scc1 P2_pw")
            A(f"s_xor_b32 s4, s4, 1024\ns_xor_b32 s{sT0}, s{sFt8}, {dswz}\ns_lshl_b32 s{sT0}, s{sT0}, 2\ns_add_u32 s4, s4, s{sT0}\ns_load_dword s28, s[4:5], 0 glc\ns_branch P2_hkb")
            A(f"P2_pl:\ns_load_dword s28, s[4:5], 0 glc\ns_add_u32 s58, s58, 1\nP2_pw:\ns_waitcnt lgkmcnt(0)\ns_cmp_ge_u32 s58, {SPIN}\ns_cbranch_scc1 P2_hkb\ns_cmp_eq_u32 s28, 0\ns_cbranch_scc1 P2_pl\ns_branch P2_hkb\nP2_hk1a:")
        if sl2:
            assert l1st+5<8
            A(f"s_cmp_lt_u32 s{sCnt}, 8\ns_cbranch_scc0 P2_hk2\ns_cmp_eq_u32 s{sP}, 1\ns_cbranch_scc0 P2_hkb\nbuffer_store_dword v5, v6, {R4(SWS)}, s59 offen sc1\ns_branch P2_hkb")
            A(f"P2_hk2:\ns_cmp_eq_u32 s{sP}, 0\ns_cbranch_scc0 P2_hkb\ns_mov_b32 s58, 0\ns_cmp_eq_u32 s{sCnt}, 9\ns_cbranch_scc1 P2_l2w\ns_load_dwordx8 s[16:23], s[4:5], 0 glc\ns_branch P2_hkb")
            A("P2_l2:\ns_load_dwordx8 s[16:23], s[4:5], 0 glc\ns_add_u32 s58, s58, 1\nP2_l2w:\ns_waitcnt lgkmcnt(0)")
            A("s_and_b64 s[16:17], s[16:17], s[18:19]\ns_and_b64 s[20:21], s[20:21], s[22:23]\ns_and_b64 s[16:17], s[16:17], s[20:21]\ns_and_b32 s16, s16, s17")
            A(f"s_cmp_ge_u32 s58, {SPIN}\ns_cbranch_scc1 P2_hkb\ns_cmp_eq_u32 s16, 7\ns_cbranch_scc0 P2_l2")
        else:
            A(f"s_cmp_eq_u32 s{sCnt}, 9\ns_cbranch_scc0 P2_hk2\n{PL}\ns_branch P2_hkb")
            A(f"P2_hk2:\ns_cmp_eq_u32 s{sCnt}, 10\ns_cbranch_scc1 P2_hk3\ns_cmp_eq_u32 s{sP}, 1\ns_cbranch_scc0 P2_hkb\nbuffer_store_dword v5, v6, {R4(SWS)}, s59 offen sc1\ns_branch P2_hkb")
            A("P2_hk3:\ns_waitcnt vmcnt(8)\nv_cmp_gt_u32 vcc, 7, v4\ns_mov_b32 s58, 0\ns_nop 3\ns_cbranch_vccz P2_hkb")
            A(f"P2_l2:\n{PL}\ns_add_u32 s58, s58, 1\ns_waitcnt vmcnt(0)\nv_cmp_gt_u32 vcc, 7, v4")
            spin_tail("P2_l2")
        A("s_branch P2_hkb\nP2_out:")
        if wsplit:
            assert not w6
            def Wh(q,keep):
                A(f"v_readlane_b32 s{sW}, v21, {q}\ns_add_u32 m0, s{9 if keep else 8}, {(q&3)*16384}\ns_nop 2\ns_add_u32 s{sW}, s{sW}, s{11 if keep else 10}")
                A(f"buffer_load_dwordx4 v22, {R4(SW2)}, s{sW} offen {w2aux} lds\ns_add_u32 m0, m0, 2048\ns_nop 0\nbuffer_load_dwordx4 v23, {R4(SW2)}, s{sW} offen {w2aux} lds")
            def Hq(q):
                A(f"s_add_u32 m0, s{sLH}, {(q&3)*16384}\ns_nop 0")
                for n in range(4):
                    A(hl[n])
                    if n<3: A("s_add_u32 m0, m0, 1024\ns_nop 0")
            A(f"s_lshl_b32 s11, s{sJ}, 7\ns_xor_b32 s10, s11, 128\ns_lshl_b32 s9, s{sJ}, 10\ns_xor_b32 s8, s9, 1024\ns_add_u32 s8, s8, s{sLW2}\ns_add_u32 s9, s9, s{sLW2}")
            for q,w in ((24,14),(25,12),(26,12),(27,12)):
                A(f"v_readlane_b32 s{sH}, v20, {q}"); Wh(q,0); Hq(q)
                if q==25: pad()
                A(f"s_waitcnt vmcnt({w})\ns_barrier")
            Wh(24,1); Wh(25,1); A("s_waitcnt vmcnt(10)\ns_barrier")
            Wh(26,1); Wh(27,1); A("s_waitcnt vmcnt(8)\ns_barrier\ns_waitcnt vmcnt(6)\ns_barrier\ns_waitcnt vmcnt(0)\ns_barrier")
        if w6:
            A(f"v_readlane_b32 s{sH}, v20, 26\ns_nop 2"); Hs(["s_nop 0"])
            A(f"v_readlane_b32 s{sH}, v20, 27\ns_waitcnt vmcnt(12)\ns_barrier\ns_nop 0"); Hs(["s_nop 0"])
            A("s_waitcnt vmcnt(8)\ns_barrier\ns_waitcnt vmcnt(4)\ns_barrier\ns_waitcnt vmcnt(0)\ns_barrier")
    else:
        A(f"s_mov_b32 s{sCnt}, 4\ns_mov_b32 s57, 7")
        if la2: A("s_cmp_eq_u32 s62, 0\ns_cbranch_scc0 P2_loop\ns_waitcnt vmcnt(16)\ns_barrier")
        A("P2_loop:")
        A(f"v_readlane_b32 s{sW}, v21, s{sCnt}\nv_readlane_b32 s{sH}, v20, s{sCnt}")
        A(f"s_add_u32 s{sSlot}, s{sSlot}, 16384\ns_and_b32 s{sSlot}, s{sSlot}, 0xffff")
        A(f"s_cmp_eq_u32 s{sCnt}, 24\ns_cbranch_scc0 P2_a\nv_mov_b32 v22, v24\nv_mov_b32 v23, v25\nP2_a:")
        if la2: A(f"s_cmp_eq_u32 s{sCnt}, 4\ns_cbranch_scc1 P2_nw\ns_waitcnt vmcnt(8)\nP2_nw:\ns_barrier")
        else: A("s_waitcnt vmcnt(16)\ns_barrier")
        assert l1epi==3 or sched==9
        A(f"s_lshl_b32 s{sT0}, s{sP}, 8\ns_add_u32 s{sT0}, s{sT0}, s{sCnt}\ns_cmp_eq_u32 s{sT0}, {256+l1st+(4 if la2 else 5)}\ns_cbranch_scc0 P2_nf2\nbuffer_store_dword v5, v6, {R4(SWS)}, s59 offen sc1\nP2_nf2:")
        if two:
            A(f"s_cmp_eq_u32 s{sT0}, 14\ns_cbranch_scc0 P2_n2a\ns_load_dwordx4 s[28:31], s[6:7], 0 glc\nP2_n2a:")
            A(f"s_cmp_eq_u32 s{sT0}, 20\ns_cbranch_scc0 P2_n2b\ns_mov_b32 s58, 0\ns_branch P2_h2w\nP2_h2:\ns_load_dwordx4 s[28:31], s[6:7], 0 glc\ns_add_u32 s58, s58, 1\nP2_h2w:\ns_waitcnt lgkmcnt(0)")
            A(f"s_and_b32 s28, s28, s29\ns_and_b32 s30, s30, s31\ns_and_b32 s28, s28, s30\ns_cmp_ge_u32 s58, {SPIN}\ns_cbranch_scc1 P2_n2b\ns_cmp_eq_u32 s28, 0x03030303\ns_cbranch_scc0 P2_h2\nP2_n2b:")
        A(f"s_cmp_eq_u32 s{sCnt}, 9\ns_cbranch_scc0 P2_np\n{PL}\nP2_np:")
        A(f"s_cmp_eq_u32 s{sCnt}, 10\ns_cbranch_scc0 P2_b")
        A("s_waitcnt vmcnt(8)\nv_cmp_gt_u32 vcc, s57, v4\ns_mov_b32 s58, 0\ns_nop 3\ns_cbranch_vccz P2_ok")
        A(f"P2_l2:\n{PL}\ns_add_u32 s58, s58, 1\ns_waitcnt vmcnt(0)\nv_cmp_gt_u32 vcc, s57, v4")
        spin_tail("P2_l2")
        A("P2_ok:\ns_mov_b32 s57, 7")
        A("P2_b:")
        pad()
        issueW(); issueH()
        if pf2==3:
            A("s_cmp_eq_u32 s13, 24\ns_cselect_b32 s8, s14, s8\ns_cselect_b32 s9, s15, s9\ns_cmp_lt_u32 s13, 28\ns_cbranch_scc0 P2_nspf")
            spf()
            A("P2_nspf:")
        A(f"s_add_u32 s{sCnt}, s{sCnt}, 1\ns_cmp_lt_u32 s{sCnt}, 28\ns_cbranch_scc1 P2_loop")
    if not w6 and not wsplit: A(("" if (la2 or tight2) else "s_waitcnt vmcnt(16)\ns_barrier\n")+"s_waitcnt vmcnt(8)\ns_barrier\ns_waitcnt vmcnt(0)\ns_barrier")
    if diag: stamp(5); rstamp(15); flush(16)
    A("s_endpgm")
    A(".p2align 6\nL_cons:")
    ACC=16; F=[(128,144),(172,188)]
    vX0,vX1,vE,vO,vL=4,5,6,7,8; bX0,bE,bL=9,10,11
    sWm,sWf,sIt,sRg,sA,sB,sC=46,47,48,49,58,7,59
    sHA,sH3,sRX2,sClr,sPf=50,51,4,5,6
    vOwn,vT3,vH,vW=232,233,235,[236,237,238,239]
    if pfc and not fast:
        A(f"s_getpc_b64 s[54:55]\nC_pc:\ns_sub_u32 s54, s54, C_pc-{NAME}\ns_subb_u32 s55, s55, 0")
        A(f"v_lshlrev_b32 v3, 7, v0\nv_min_u32 v3, L_end-{NAME}, v3\nglobal_load_dword v255, v3, s[54:55]")
    if pf1==1 and not fast:
        A(f"v_and_b32 v15, 31, v2\nv_lshlrev_b32 v15, 7, v15\ns_lshl_b32 s{sA}, s2, 2\ns_add_u32 s{sA}, s{sA}, s3\ns_lshl_b32 s{sA}, s{sA}, 12")
    if pf1==3:
        A(f"v_and_b32 v15, 7, v2\nv_lshlrev_b32 v15, 7, v15\nv_bfe_u32 v14, v2, 3, 1\nv_lshl_add_u32 v15, v14, 11, v15\ns_lshl_b32 s{sA}, s2, 2\ns_add_u32 s{sA}, s{sA}, s3\ns_lshl_b32 s{sA}, s{sA}, 12\nv_mov_b32 v252, v15")
    if pf1==2:
        A(f"v_lshlrev_b32 v15, 7, v2\ns_lshr_b32 s{sA}, s2, 3\ns_lshl_b32 s{sA}, s{sA}, 2\ns_add_u32 s{sA}, s{sA}, s3\ns_lshl_b32 s{sA}, s{sA}, 13\ns_lshr_b32 s{sB}, s{sXcd}, 1\ns_lshl_b32 s{sB}, s{sB}, 20\ns_add_u32 s{sA}, s{sA}, s{sB}")
    A("s_waitcnt lgkmcnt(0)")
    if pf1==5: srd(A,SX,4,X_BYTES)
    elif pf1 and not (fast and pf1==1):
        srd(A,SX,4,X_BYTES)
        A(f"buffer_load_dword v253, v15, {R4(SX)}, s{sA} offen")
        if pf1==3: srd(A,SW1,6,W_BYTES)
    if diag==5: stamp(6)
    if cprio: A(f"s_setprio {cprio}")
    A(f"s_lshr_b32 s{sWm}, s3, 1\ns_and_b32 s{sWf}, s3, 1")
    A("v_and_b32 v3, 15, v2\nv_lshrrev_b32 v12, 4, v2")
    A("v_lshrrev_b32 v13, 1, v3\nv_xor_b32 v13, v13, v12\nv_lshlrev_b32 v13, 4, v13")
    A(f"s_lshl_b32 s{sA}, s{sWm}, 13\nv_lshlrev_b32 v14, 7, v3\nv_add3_u32 v{bX0}, v13, v14, s{sA}")
    A("v_lshrrev_b32 v13, 1, v12\nv_mul_u32_u24 v13, 7168, v13\nv_bfe_u32 v15, v2, 2, 2\nv_lshl_add_u32 v13, v15, 6, v13\nv_and_b32 v15, 3, v2\nv_lshl_add_u32 v13, v15, 3, v13")
    A(f"v_and_b32 v14, 1, v12\nv_mul_u32_u24 v15, 1056, v14\ns_lshl_b32 s{sA}, s{sWf}, 9\ns_add_u32 s{sA}, s{sA}, {WOFF}\nv_add3_u32 v{bE}, v13, v15, s{sA}")
    A(f"v_mul_u32_u24 v15, 544, v14\nv_add_u32 v13, v13, v15\ns_lshl_b32 s{sA}, s{sWf}, 5\nv_xor_b32 v13, s{sA}, v13\nv_add_u32 v{bL}, {WOFF+6144}, v13")
    VF=248
    if late2:
        for n in range(4): A(f"v_mov_b32 v{VF+n}, {OOB}")
    else: fragoffs(VF)
    A(f"v_add_u32 v{vE}, {2*WST}, v{bE}\nv_mov_b32 v{vX0}, v{bX0}\nv_add_u32 v{vL}, {2*WST}, v{bL}\nv_xor_b32 v{vO}, 32, v{vE}\nv_xor_b32 v{vX1}, 64, v{vX0}")
    srd(A,SO,10,O_BYTES); srd(A,SWS,14,0x10000000); srd(A,SW2,8,W_BYTES)
    if diag==5 or not spub: srd(A,SD,12,256)
    A("v_lshlrev_b32 v3, 4, v2")
    A(f"s_lshr_b32 s56, s{sLid}, 3\ns_lshl_b32 s56, s56, 10\ns_lshl_b32 s{sB}, s{sFt8}, 2\ns_add_u32 s56, s56, s{sB}\ns_add_u32 s56, s56, {F_OFF+fch*128}")
    if lead:
        A(f"s_cmp_eq_u32 s{sFt}, 0\ns_cselect_b32 s{sB}, 16, 0\nv_lshrrev_b32 v13, 3, v2\nv_lshlrev_b32 v13, 10, v13\nv_and_b32 v1, 7, v2\nv_lshl_add_u32 v13, v1, 2, v13")
        A(f"v_mov_b32 v1, {OOB}\nv_cmp_gt_u32 vcc, s{sB}, v2\ns_nop 1\nv_cndmask_b32 v1, v1, v13, vcc")
    else:
        A(f"v_mov_b32 v1, {OOB}\nv_cmp_eq_u32 vcc, 0, v2\ns_nop 1\nv_cndmask_b32 v1, v1, 0, vcc")
    A(f"s_andn2_b32 s57, s{sLid}, 7\ns_add_u32 s57, s57, s{sDt}\ns_lshl_b32 s57, s57, 2\ns_add_u32 s57, s57, s3\ns_mul_i32 s57, s57, {QS}\ns_add_u32 s57, s57, {P_OFF}")
    A0=A
    if late>=0: A=Asm()
    if late2: assert 0<=late<cbase; fragoffs(VF,A,(13,14,15))
    A(f"s_lshl_b32 s52, s{sWm}, 12\nv_add_u32 v{vH}, s52, v3")
    A("v_lshrrev_b32 v13, 5, v2\nv_lshlrev_b32 v13, 11, v13\nv_bfe_u32 v14, v2, 4, 1\nv_mul_u32_u24 v14, 288, v14\nv_add_u32 v13, v13, v14")
    A("v_bfe_u32 v15, v2, 2, 2\nv_lshl_add_u32 v13, v15, 6, v13\nv_and_b32 v15, 3, v2\nv_lshl_add_u32 v13, v15, 3, v13")
    A(f"s_lshl_b32 s52, s{sJ}, 1\ns_add_u32 s52, s52, s{sWf}\ns_lshl_b32 s52, s52, 9\ns_add_u32 s52, s52, 65536\nv_add_u32 v{vW[0]}, s52, v13")
    A(f"v_xor_b32 v{vW[1]}, 32, v{vW[0]}\nv_xor_b32 v{vW[2]}, 0x400, v{vW[0]}\nv_xor_b32 v{vW[3]}, 0x420, v{vW[0]}")
    A(f"s_add_u32 s62, s{sFt8}, s3\ns_and_b32 s62, s62, {rmask}\ns_add_u32 s62, s62, {l2st+5}")
    A(f"s_mul_i32 s{sHA}, s{sMt}, 112\ns_mul_i32 s{sH3}, s{sFt}, 7\ns_add_u32 s{sHA}, s{sHA}, s{sH3}\ns_and_b32 s52, s{sFt8}, 1")
    A(f"s_xor_b32 s53, s52, 1\ns_mul_i32 s53, s53, 6\ns_add_u32 s{sH3}, s{sHA}, s53\ns_add_u32 s{sHA}, s{sHA}, s52\ns_add_u32 s{sHA}, s{sHA}, s{sWf}")
    A(f"s_mul_i32 s52, s{sWm}, {QS}\ns_mul_i32 s{sHA}, s{sHA}, {CH}\ns_add_u32 s{sHA}, s{sHA}, s52\ns_mul_i32 s{sH3}, s{sH3}, {CH}\ns_add_u32 s{sH3}, s{sH3}, s52\ns_lshl_b32 s52, s{sWm}, 12")
    A(f"s_lshl_b32 s53, s{sWf}, 13\ns_add_u32 s52, s52, s53\nv_add_u32 v{vOwn}, s52, v3")
    A(f"v_bfe_u32 v13, v2, 4, 1\nv_lshlrev_b32 v13, 3, v13\nv_lshrrev_b32 v14, 5, v2\nv_lshl_add_u32 v13, v14, 1, v13\nv_bfe_u32 v14, v2, 3, 1\ns_lshl_b32 s52, s{sWf}, 2\nv_add3_u32 v13, v13, v14, s52")
    A("v_add_u32 v14, 16, v13\nv_and_b32 v15, 7, v2\nv_lshlrev_b32 v15, 4, v15")
    physline(vT3,13,12,A); physline(vT3+1,14,12,A)
    A(f"v_add_u32 v{vT3}, v{vT3}, v15\nv_add_u32 v{vT3+1}, v{vT3+1}, v15")
    A("v_mov_b32 v12, 1\ns_mov_b32 s52, 0xbfb8aa3b\ns_mov_b32 s53, 0xbfb8aa3b\ns_mov_b32 s54, 1.0\ns_mov_b32 s55, 1.0")
    if late>=0:
        LATE=A.text().rstrip(); A=A0
        A(f"v_mov_b32 v{vT3}, {OOB}\nv_mov_b32 v{vT3+1}, {OOB}")
    for r in range(112): A(f"v_mov_b32 v{ACC+r}, 0")
    for r in range(4): A(f"v_mov_b32 v{244+r}, -1")
    def hook(it, body, name, reg=None):
        OOL.append(f"{name}:\n{body}\ns_branch {name}_b")
        return [f"s_cmp_eq_u32 s{reg or sIt}, {it}", f"s_cbranch_scc1 {name}\n{name}_b:"]
    def reads1(u, fs):
        X,W=F[fs]
        xs=[f"ds_read_b128 {vr(X+4*i,4)}, v{vX1 if u else vX0} offset:{i*2048}" for i in range(4)]
        ws=[]
        for j in range(7):
            a,o=(vL,0) if j==6 else ((vO if j&1 else vE),(j>>1)*2048)
            for hh in range(2): ws.append(f"ds_read_b64_tr_b16 {vr(W+4*j+2*hh,2)}, v{a} offset:{u*14336+o+hh*256}")
        return ws[0:2]+xs+ws[2:]
    def mf1(fs):
        X,W=F[fs]
        return [f"v_mfma_f32_16x16x32_bf16 {vr(ACC+(j*4+i)*4,4)}, {vr(W+4*j,4)}, {vr(X+4*i,4)}, {vr(ACC+(j*4+i)*4,4)}" for j,i in snake(range(7),4)]
    A(f"s_mov_b32 s{sIt}, 0\ns_mov_b32 s{sRg}, {2*WST}\ns_mov_b32 s{sRX2}, 0\ns_lshl_b32 s{sClr}, s3, {1 if cmask==7 else 0}\ns_add_u32 s{sClr}, s{sClr}, s{sFt8}\ns_and_b32 s{sClr}, s{sClr}, {cmask}\ns_add_u32 s{sClr}, s{sClr}, {cbase}")
    if two: A(f"s_mov_b32 s0, {1|4|(1<<ack)}")
    A(f"s_mul_i32 s{sPf}, s3, {pfb}\ns_add_u32 s{sPf}, s{sPf}, {pfa}")
    if pf2==2: A(f"v_min_u32 v15, 55, v2\nv_lshlrev_b32 v15, 7, v15\ns_lshl_b32 s{sA}, s2, 2\ns_add_u32 s{sA}, s{sA}, s3\ns_mul_i32 s{sA}, s{sA}, 7168\nbuffer_load_dword v255, v15, {R4(SW2)}, s{sA} offen")
    if diag in (2,3,6): A("s_mov_b32 m0, 0")
    clr="\n".join([f"buffer_store_dwordx4 v[244:247], v{VF+i}, {R4(SWS)}, s57 offen sc1" for i in range(4)])
    fclr=f"v_mov_b32 v13, 0\nbuffer_store_dword v13, v1, {R4(SWS)}, s56 offen sc1"
    if sep: assert lead; A(fclr)
    elif not two: clr=clr+"\n"+fclr
    if clr0: A(clr)
    if diag==5: stamp(8)
    if walk:
        A(f"s_cmp_ge_u32 s3, {walk}\ns_cbranch_scc1 C_walked\ns_waitcnt vmcnt({(1 if pf1 and not pcw else 0)+(1 if sep else 0)})\ns_mov_b64 exec, 0")
        for w in range(walk-1): A(f"s_cmp_eq_u32 s3, {w}\ns_cbranch_scc1 @START{w}@")
        A(f"s_branch @START{walk-1}@\nC_wret:\ns_mov_b64 exec, -1\nC_walked:")
    if diag==5: stamp(9)
    A("s_barrier")
    stamp(1)
    for l in reads1(0,0): A(l)
    A("s_waitcnt lgkmcnt(0)")
    A(f".p2align {al}\nC1_loop:")
    sstamp()
    ex=[f"s_add_u32 s{sRg}, s{sRg}, {WST}\ns_add_u32 s{sRX2}, s{sRX2}, 16384", f"s_cmp_eq_u32 s{sRg}, {WST*3}\ns_cselect_b32 s{sRg}, 0, s{sRg}",
        f"v_add_u32 v{vE}, s{sRg}, v{bE}\ns_and_b32 s{sRX2}, s{sRX2}, 0xffff", f"v_add_u32 v{vX0}, s{sRX2}, v{bX0}", f"v_add_u32 v{vL}, s{sRg}, v{bL}",
        f"v_xor_b32 v{vO}, 32, v{vE}", f"v_xor_b32 v{vX1}, 64, v{vX0}"]
    if not clr0: ex+=hook(f"s{sClr}" if stag else 2,clr,"H1_clr")
    for l in interleave(mf1(0), reads1(1,1)+ex): A(l)
    A("s_waitcnt lgkmcnt(0)\ns_barrier")
    pub=(f"s_cmp_eq_u32 s3, 0\ns_cbranch_scc0 H1_pub_b\ns_and_b32 s{sA}, s{sLid}, 3\ns_lshl_b32 s{sA}, s{sA}, 3\ns_lshl_b32 s{sA}, 1, s{sA}\nv_mov_b32 v13, s{sA}\n"
         f"s_andn2_b32 s{sA}, s{sLid}, 3\nv_lshlrev_b32 v14, 8, v2\nbuffer_atomic_or v13, v14, {R4(SD)}, s{sA} offen")
    if two:
        h=hook(0,f"s_cmp_eq_u32 s{sIt}, 0\ns_cbranch_scc1 H1_fc\ns_waitcnt vmcnt(0)\ns_branch H1_ack_b\nH1_fc:\n{fclr}","H1_ack")
        h[0]=f"s_bitcmp1_b32 s0, s{sIt}"
    else: h=hook(ack,"s_waitcnt vmcnt(0)","H1_ack")
    ex=h+([] if spub else hook(ack+1,pub,"H1_pub"))
    if late>=0: ex+=hook(late,(PAD+"\n" if walk else "")+LATE,"H1_late")
    if xp_n: ex+=hook(xp_it,f"s_sleep {xp_n}","H1_xp")
    if pf1==5: ex+=hook(pfi,f"v_xor_b32 v252, 0x400, v252\ns_nop 0\nbuffer_load_dword v253, v252, {R4(SX)}, 0 offen","H1_pf1")
    if pf1==3:
        nl=(16-w1s)*64*56//1024
        ex+=hook(pfi,f"s_lshl_b32 s{sA}, s2, 2\ns_add_u32 s{sA}, s{sA}, s3\ns_mul_i32 s{sB}, s{sA}, {nl*128}\ns_add_u32 s{sB}, s{sB}, {w1s*64*7168}\ns_lshl_b32 s{sA}, s{sA}, 12\n"
                     f"v_min_u32 v15, {nl-1}, v2\nv_lshlrev_b32 v15, 7, v15\nbuffer_load_dword v255, v15, {R4(SW1)}, s{sB} offen\nbuffer_load_dword v253, v252, {R4(SX)}, s{sA} offen offset:1024","H1_pf1")
    if pf2==4:
        ex+=hook(f"s{sPf}",f"s_lshl_b32 s{sA}, s2, 2\ns_add_u32 s{sA}, s{sA}, s3\ns_lshr_b32 s{sB}, s{sA}, 6\ns_and_b32 s60, s{sB}, 1\ns_mul_i32 s{sB}, s{sB}, 7\n"
                     f"s_add_u32 s61, s{sB}, s60\ns_add_u32 s61, s61, 4\ns_lshl_b32 s61, s61, 16\ns_xor_b32 s60, s60, 1\ns_mul_i32 s60, s60, 6\ns_add_u32 s{sB}, s{sB}, s60\ns_lshl_b32 s{sB}, s{sB}, 16\n"
                     f"s_and_b32 s{sA}, s{sA}, 63\ns_lshl_b32 s60, s{sA}, 11\ns_add_u32 s61, s61, s60\ns_lshl_b32 s60, s{sA}, 10\ns_add_u32 s{sB}, s{sB}, s60\n"
                     f"v_and_b32 v15, 15, v2\nv_lshlrev_b32 v15, 7, v15\nv_and_b32 v14, 7, v2\nv_lshlrev_b32 v14, 7, v14\n"
                     f"buffer_load_dword v255, v15, {R4(SW2)}, s61 offen\nbuffer_load_dword v253, v14, {R4(SW2)}, s{sB} offen","H1_pf")
    if pf2==1:
        ex+=hook(f"s{sPf}",f"v_min_u32 v15, 55, v2\nv_lshlrev_b32 v15, 7, v15\ns_lshl_b32 s{sA}, s2, 2\ns_add_u32 s{sA}, s{sA}, s3\ns_mul_i32 s{sA}, s{sA}, 7168\nbuffer_load_dword v255, v15, {R4(SW2)}, s{sA} offen","H1_pf")
    ex+=([PAD] if walk else [])+[f"s_add_u32 s{sIt}, s{sIt}, 1", f"s_cmp_lt_u32 s{sIt}, 16"]
    x=interleave(mf1(1), reads1(0,0)+ex)
    if x[-1].startswith("v_mfma"):
        for l in x[:-1]: A(l)
        A("s_waitcnt lgkmcnt(0)"); A(x[-1])
    else:
        for l in x: A(l)
        A("s_waitcnt lgkmcnt(0)")
    A("s_cbranch_scc1 C1_loop")
    stamp(2)
    T=216
    PEND=[]
    def silu(a, b, D):
        t=T; src=[a,a+2,b,b+2]
        for r in range(4): A(f"v_pk_mul_f32 {vr(t+2*r,2)}, s[52:53], {vr(src[r],2)}")
        for r in range(8):
            A(f"v_exp_f32 v{t+r}, v{t+r}")
            if r in (1,5) and PEND: A(PEND.pop(0))
        for r in range(4): A(f"v_pk_add_f32 {vr(t+2*r,2)}, s[54:55], {vr(t+2*r,2)}")
        for r in range(8):
            A(f"v_rcp_f32 v{t+r}, v{t+r}")
            if r in (1,5) and PEND: A(PEND.pop(0))
        for r in range(4): A(f"v_pk_mul_f32 {vr(t+2*r,2)}, {vr(t+2*r,2)}, {vr(src[r],2)}")
        for r in range(4): A(f"v_cvt_pk_bf16_f32 v{D+r}, v{t+2*r}, v{t+2*r+1}")
    def later(x):
        if pipe: PEND.append(x)
        else: A(x)
    def flushp():
        while PEND: A(PEND.pop(0))
    def gst(D,i): return f"buffer_store_dwordx4 {vr(D,4)}, v{VF+i}, {R4(SWS)}, s{sHA} offen sc1"
    FLAG="s_nop 0"
    DL=[160,128,144]; D3=224
    for L in range(3):
        for i in range(4):
            D=DL[L]+4*i
            if i%2==0: pad()
            silu(ACC+((2*L)*4+i)*4, ACC+((2*L+1)*4+i)*4, D)
            if L==0 or (L==2 and l1epi>=2) or (L==1 and i>=nb and l1epi): later(gst(D,i))
            later(f"ds_write_b128 v{vOwn}, {vr(D,4)} offset:{L*16384+i*1024}")
            if L==0 and i==3: later(f"s_add_u32 s{sHA}, s{sHA}, {2*CH}")
            if L==1 and i==nb-1:
                flushp()
                stamp(11); A("s_waitcnt vmcnt(0)"); stamp(12)
                A(f"s_waitcnt lgkmcnt(0)\ns_barrier")
                if l1epi:
                    if pipe==2:
                        for k in range(0,nb,2): later(gst(128+4*k,k)+"\n"+gst(132+4*k,k+1))
                    else:
                        for k in range(nb): A(gst(128+4*k,k))
        if L==1 and l1epi: later(f"s_add_u32 s{sHA}, s{sHA}, {2*CH}")
    F2=[(160,176),(192,208)]
    def rdH(X,slot,u): return [f"ds_read_b128 {vr(X+4*i,4)}, v{vH} offset:{slot*16384+u*8192+i*1024}" for i in range(4)]
    DYN=[w6]
    def rdW(W,slot,u,js): return [f"ds_read_b64_tr_b16 {vr(W+4*n+2*hh,2)}, v{vW[j]} offset:{(0 if DYN[0] else slot)*16384+(4*u+2*hh)*2048}" for n,j in enumerate(js) for hh in range(2)]
    WU=[f"v_add_u32 v{vW[0]}, s{sRg}, v240", f"v_xor_b32 v{vW[1]}, 32, v{vW[0]}", f"v_xor_b32 v{vW[2]}, 0x400, v{vW[0]}", f"v_xor_b32 v{vW[3]}, 0x420, v{vW[0]}"] if w6 else []
    WS=[f"s_add_u32 s{sRg}, s{sRg}, 16384", f"s_cmp_eq_u32 s{sRg}, {6*16384}\ns_cselect_b32 s{sRg}, 0, s{sRg}"] if w6 else []
    def reads2(slot,u,fs):
        X,W=F2[fs]; ws=rdW(W,slot,u,range(4)); return ws[0:2]+rdH(X,slot,u)+ws[2:]
    def mfm(X,W,js,zero=False,w0=0):
        return [f"v_mfma_f32_16x16x32_bf16 {vr(ACC+(j*4+i)*4,4)}, {vr(W+4*(j-w0),4)}, {vr(X+4*i,4)}, {'0' if zero else vr(ACC+(j*4+i)*4,4)}" for j,i in snake(js,4)]
    def mf2(fs,zero=False): return mfm(F2[fs][0],F2[fs][1],range(4),zero)
    for l in reads2(0,0,0): A(l)
    for ip in range(2):
        D=D3+4*ip; a=ACC+(24+2*ip)*4
        if ip==0: pad()
        silu(a,a+4,D)
        A(f"s_nop 1\nv_permlane16_swap_b32 v{D}, v{D+2}\nv_permlane16_swap_b32 v{D+1}, v{D+3}")
        if l1epi>=3: later(f"buffer_store_dwordx4 {vr(D,4)}, v{vT3+ip}, {R4(SWS)}, s{sH3} offen sc1")
    flushp()
    A(f"v_mov_b32 v12, {7 if l1epi==3 else 3}\ns_mov_b32 s{sIt}, 0")
    if w6: A(f"v_mov_b32 v240, v{vW[0]}\ns_mov_b32 s{sRg}, 16384")
    stamp(3); stamp(4)
    sstamp()
    A("s_waitcnt lgkmcnt(0)")
    for l in interleave(mf2(0,True), reads2(0,1,1)+(WU if w6 else ([PAD] if walk else []))): A(l)
    A("s_branch C2_in")
    dw={}; dws={}
    t3st=[f"buffer_store_dwordx4 {vr(D3+4*ip,4)}, v{vT3+ip}, {R4(SWS)}, s{sH3} offen sc1" for ip in range(2)]
    ADV=f"\ns_add_u32 s{sHA}, s{sHA}, {2*CH}"
    L1s=[gst(128+4*i,i) for i in range(4)]; L2s=[gst(144+4*i,i) for i in range(4)]
    F3=f"s_waitcnt vmcnt(0)\n{FLAG}"; F7=f"v_mov_b32 v12, 7\ns_waitcnt vmcnt(0)\n{FLAG}"
    J="\n".join
    if sched==1:
        dw[(0,1)]=J(L1s[:2]); dw[(1,0)]=J(L1s[2:])+ADV; dw[(1,1)]=J(L2s[:2]); dw[(2,0)]=J(L2s[2:]); dw[(2,1)]=J(t3st); dw[(4,0)]=F7
    elif sched==2:
        dw[(0,1)]=J(L1s[:2]); dw[(1,0)]=J(L1s[2:])+ADV; dw[(3,0)]=F3
        dw[(3,1)]=L2s[0]; dw[(4,0)]=L2s[1]; dw[(4,1)]=L2s[2]; dw[(5,0)]=L2s[3]; dw[(5,1)]=t3st[0]; dw[(6,0)]=t3st[1]; dw[(10,0)]=F7
    elif sched==3:
        dw[(0,1)]=L1s[0]; dw[(1,0)]=L1s[1]; dw[(1,1)]=L1s[2]; dw[(2,0)]=L1s[3]+ADV; dw[(3,1)]=F3
        dw[(4,0)]=L2s[0]; dw[(4,1)]=L2s[1]; dw[(5,0)]=L2s[2]; dw[(5,1)]=L2s[3]; dw[(6,0)]=t3st[0]; dw[(6,1)]=t3st[1]; dw[(11,0)]=F7
    elif sched==4:
        dw[(0,1)]=J(L1s)+ADV; dw[(1,1)]=J(L2s); dw[(2,1)]=J(t3st); dw[(4,0)]=F7
    elif sched==9:
        dw[(1,1)]=F7
    elif sched==5:
        dw[(0,1)]=J(L2s[:2]); dw[(1,0)]=J(L2s[2:]); dw[(1,1)]=J(t3st); dw[(3,1)]=F7
    else:
        if not l1epi:
            dw[(l1st,0)]=gst(128,0)+"\n"+gst(132,1); dw[(l1st,1)]=gst(136,2)+"\n"+gst(140,3)+f"\ns_add_u32 s{sHA}, s{sHA}, {2*CH}"
            dw[(l1st+2,1)]=f"s_waitcnt vmcnt(0)\n{FLAG}"
        else:
            dw[(l1st,1)]=f"s_waitcnt vmcnt(0)\n{FLAG}"
        if l1epi>=2:
            if l1epi==2: dw[(l2st,0)]="\n".join(t3st)
            if l1epi==2: dw[(f3,1)]=f"v_mov_b32 v12, 7\ns_waitcnt vmcnt(0)\n{FLAG}"
        elif not stag2:
            dw[(l2st,0)]=gst(144,0)+"\n"+gst(148,1); dw[(l2st+1,0)]=gst(152,2)+"\n"+gst(156,3)+"\nv_mov_b32 v12, 7"
            dw[(l2st+2,0)]="\n".join(t3st)
            dw[(l2st+5,1)]=f"s_waitcnt vmcnt(0)\n{FLAG}"
        else:
            dw[(f3,1)]=f"v_mov_b32 v12, 7\ns_waitcnt vmcnt(0)\n{FLAG}"
            body=[gst(144+4*i,i) for i in range(4)]+t3st
            o="H2_st:\n"
            for n,b in enumerate(body):
                o+=f"s_cmp_eq_u32 s62, {5-n}\ns_cbranch_scc0 H2_st{n}\n{b}\nH2_st{n}:\n"
            o+="s_setpc_b64 s[54:55]"
            OOL.append(o)
    def hooks2(slot,u):
        ex=[]
        for (q,uu),body in sorted(dw.items()):
            if q%4==slot and uu==u: ex+=hook(q//4,body,f"H2_{q}_{uu}")
        if stag2 and l1epi<2 and u==0 and not sched:
            ex+=["s_sub_u32 s62, s62, 1\ns_cmp_lt_u32 s62, 6", f"s_cbranch_scc1 H2_go{slot}\nH2_ns{slot}:"]
            OOL.append(f"H2_go{slot}:\ns_call_b64 s[54:55], H2_st\ns_branch H2_ns{slot}")
        assert len(ex)<=4, (slot,u,ex)
        return ex
    A(f".p2align {al}\nC2_loop:")
    for slot in range(4):
        sstamp()
        for l in interleave(mf2(0), reads2(slot,1,1)+hooks2(slot,0)+(WU if w6 else ([PAD] if walk else []))): A(l)
        if slot==0: A("C2_in:")
        A("s_waitcnt lgkmcnt(0)\ns_barrier")
        ex=WS+hooks2(slot,1)
        if w6 and walk and len(ex)<=3 and slot!=3: ex=ex+[PAD]
        if slot==3: ex+=[f"s_add_u32 s{sIt}, s{sIt}, 1", f"s_cmp_lt_u32 s{sIt}, 6"]
        x=interleave(mf2(1), reads2((slot+1)&3,0,0)+ex)
        if x[-1].startswith("v_mfma"):
            for l in x[:-1]: A(l)
            A("s_waitcnt lgkmcnt(0)"); A(x[-1])
        else:
            for l in x: A(l)
            A("s_waitcnt lgkmcnt(0)")
    A("s_cbranch_scc1 C2_loop")
    stamp(13)
    if diag: A("s_waitcnt lgkmcnt(0)")
    DYN[0]=0
    G=[dict(H=[160,80],W=[184,96]), dict(H=[192,104],W=[208,216])]
    def rdS(g,slot,js,us=(0,1)):
        o=[]
        for u in us:
            w=rdW(G[g]['W'][u],slot,u,js); o+=w[0:2]+rdH(G[g]['H'][u],slot,u)+w[2:]
        return o
    def mfS(g,js): return mfm(G[g]['H'][0],G[g]['W'][0],js,w0=js[0])+mfm(G[g]['H'][1],G[g]['W'][1],js,w0=js[0])
    for l in rdS(0,0,(2,3),(1,)): A(l)
    pad()
    A("s_barrier")
    m=mfS(0,(2,3)); r=rdS(1,1,(2,3))
    x=interleave(m[:8], r[:8])
    for l in x: A(l)
    A("s_waitcnt lgkmcnt(8)")
    for l in interleave(m[8:], r[8:]): A(l)
    for q in (1,2):
        if q==2: pad()
        A(f"s_waitcnt lgkmcnt({8 if cw else 0})\ns_barrier")
        x=interleave(mfS(q&1,(2,3)), rdS((q+1)&1,q+1,(2,3)))
        if cw: x.insert(16,"s_waitcnt lgkmcnt(8)")
        for l in x: A(l)
    A(f"s_mul_i32 s52, s{sJ}, {-2*32*QS}\ns_add_u32 s52, s52, {32*QS}\ns_add_u32 s52, s52, s57\ns_mov_b32 s53, -2")
    sn=[]
    for i in range(4):
        D=128+4*i; t=[]
        for n,j in enumerate((2,3)):
            S=ACC+(j*4+i)*4
            t+= [f"v_cvt_pk_bf16_f32 v{D+2*n}, v{S}, v{S+1}", f"v_cvt_pk_bf16_f32 v{D+2*n+1}, v{S+2}, v{S+3}"]
        t+=[f"v_min_u32 v{D+r}, s53, v{D+r}" for r in range(4)]
        t.append(f"buffer_store_dwordx4 {vr(D,4)}, v{VF+i}, {R4(SWS)}, s52 offen sc1")
        sn.append(t)
    A("s_waitcnt lgkmcnt(0)")
    if wsplit: assert esend; A("s_barrier")
    if esend:
        g=G[1]; r=rdS(0,0,(0,1)); k=0
        for i in range(4):
            for u,j in ((0,2),(0,3),(1,3),(1,2)):
                A(f"v_mfma_f32_16x16x32_bf16 {vr(ACC+(j*4+i)*4,4)}, {vr(g['W'][u]+4*(j-2),4)}, {vr(g['H'][u]+4*i,4)}, {vr(ACC+(j*4+i)*4,4)}")
                A(r[k]); k+=1
            if i>=1:
                for l in sn[i-1]: A(l)
        stamp(5)
        pad()
        A("s_waitcnt lgkmcnt(0)")
        if wsplit: A("s_barrier")
        m=mfS(0,(0,1)); r=rdS(1,1,(0,1))
        for n,mm_ in enumerate(m):
            A(mm_); A(r[n])
            if n==2:
                for l in sn[3]: A(l)
    else:
        for l in interleave(mfS(1,(2,3)), rdS(0,0,(0,1))): A(l)
        stamp(5)
        pad()
        snd=sum(sn,[])
        A("s_waitcnt lgkmcnt(0)")
        m=mfS(0,(0,1)); r=rdS(1,1,(0,1))
        k=0
        for n,mm_ in enumerate(m):
            A(mm_); A(r[n])
            if packfirst and n==1:
                A("s_nop 3")
                while k<len(snd): A(snd[k]); k+=1
            if n>=3:
                for _ in range(3):
                    if k<len(snd): A(snd[k]); k+=1
        while k<len(snd): A(snd[k]); k+=1
    if diag!=5 and not cw: stamp(6)
    RB=144 if dual else 80; RB2=224
    def LDs(b): return [f"buffer_load_dwordx4 {vr(b+4*i,4)}, v{VF+i}, {R4(SWS)}, s57 offen sc1" for i in range(4)]
    LD=LDs(RB)
    for q in (1,2):
        pad()
        A(f"s_waitcnt lgkmcnt({8 if cw else 0})")
        x=interleave(mfS(q&1,(0,1)), rdS((q+1)&1,q+1,(0,1)))
        if cw: assert not dual; x.insert(16,"s_waitcnt lgkmcnt(8)")
        if dual==q:
            for n in range(4): x.insert(2+3*n+n,LD[n])
        for l in x: A(l)
    A(f"s_waitcnt lgkmcnt({8 if cw else 0})")
    adr=["v_and_b32 v13, 15, v2","v_lshlrev_b32 v13, 11, v13","v_bfe_u32 v14, v2, 4, 1","v_lshl_add_u32 v13, v14, 5, v13","v_lshrrev_b32 v14, 5, v2","v_lshl_add_u32 v13, v14, 4, v13",
         f"s_lshl_b32 s{sC}, s{sMt}, 1\ns_add_u32 s{sC}, s{sC}, s{sWm}", f"s_lshl_b32 s{sC}, s{sC}, 17\ns_lshl_b32 s52, s{sDt}, 8", f"s_add_u32 s{sC}, s{sC}, s52\ns_lshl_b32 s52, s{sJ}, 7",
         f"s_add_u32 s{sC}, s{sC}, s52\ns_lshl_b32 s52, s{sWf}, 6", f"s_add_u32 s{sC}, s{sC}, s52\ns_mov_b32 s58, 0"]
    def chk():
        A(f"v_max3_u32 v14, v{RB}, v{RB+1}, v{RB+2}")
        for r in range(3,15,2): A(f"v_max3_u32 v14, v14, v{RB+r}, v{RB+r+1}")
        A(f"v_max_u32 v14, v14, v{RB+15}\nv_cmp_eq_u32 vcc, -1, v14")
    if dual:
        for l in interleave(mfS(1,(0,1)), LDs(80)+adr): A(l)
        A("s_waitcnt vmcnt(4)"); chk()
        A("s_nop 4\ns_cbranch_vccz C3_ok\ns_waitcnt vmcnt(0)")
        for r in range(16): A(f"v_mov_b32 v{RB+r}, v{80+r}")
    else:
        x=interleave(mfS(1,(0,1)), adr[:ldpos]+LD+adr[ldpos:])
        if cw: x.insert(16,"s_waitcnt lgkmcnt(0)")
        for l in x: A(l)
    if diag and diag!=5: stamp(8)
    pad()
    A("s_branch C3_chk")
    A("C3_poll:")
    for l in LD: A(l)
    A("C3_chk:\ns_add_u32 s58, s58, 1\ns_waitcnt vmcnt(0)")
    chk()
    spin_tail("C3_poll")
    A("C3_ok:")
    stamp(7)
    if diag==4: A("s_mov_b32 s86, s58")
    A("s_mov_b32 s53, 0xffff0000")
    for i in range(4):
        D=128+4*i
        for n in range(2):
            S=ACC+(n*4+i)*4
            for h in range(2):
                Rr=RB+4*i+2*n+h
                A(f"v_lshlrev_b32 v{T}, 16, v{Rr}\nv_and_b32 v{T+1}, s53, v{Rr}\nv_pk_add_f32 {vr(S+2*h,2)}, {vr(S+2*h,2)}, {vr(T,2)}")
                A(f"v_cvt_pk_bf16_f32 v{D+2*n+h}, v{S+2*h}, v{S+2*h+1}")
        A(f"s_nop 1\nv_permlane16_swap_b32 v{D}, v{D+2}\nv_permlane16_swap_b32 v{D+1}, v{D+3}")
        A(f"buffer_store_dwordx4 {vr(D,4)}, v13, {R4(SO)}, s{sC} offen {outaux}")
        if i<3: A(f"s_add_u32 s{sC}, s{sC}, 0x8000")
        if i==0: pad()
    if diag:
        if diag!=5: stamp(9)
        A("s_waitcnt vmcnt(0)"); stamp(10); rstamp(15); flush(16,True)
    A("s_endpgm")
    if walk: A(PAD+"\ns_endpgm")
    for b in OOL: A(b)
    A("L_end:\ns_endpgm")
    A(f""".section .rodata,"a"
.p2align 6
.amdhsa_kernel {NAME}
  .amdhsa_next_free_vgpr 256
  .amdhsa_next_free_sgpr 96
  .amdhsa_accum_offset 256
  .amdhsa_group_segment_fixed_size 0
  .amdhsa_kernarg_size 48
  .amdhsa_user_sgpr_count 2
  .amdhsa_user_sgpr_kernarg_segment_ptr 1
  .amdhsa_system_sgpr_workgroup_id_x 1
.end_amdhsa_kernel""")
    txt=A.text()
    if walk:
        n=txt.count("@PAD@"); parts=txt.split("@PAD@")
        starts=[round(w*n/walk) for w in range(walk)]
        out=parts[0]
        for k in range(n):
            nxt="C_wret" if (k+1==n or k+1 in starts) else f"PAD{k+1}"
            out+=f"PAD{k}:\ns_cbranch_execz {nxt}"+parts[k+1]
        for w in range(walk): out=out.replace(f"@START{w}@",f"PAD{starts[w]}")
        txt=out
    return txt

if __name__=="__main__":
    import inspect
    p=argparse.ArgumentParser(); p.add_argument("-o")
    for k,v in inspect.signature(build).parameters.items():
        p.add_argument("--"+k,type=type(v.default),default=v.default)
    a=vars(p.parse_args()); o=a.pop("o")
    open(o,"w").write(build(**a))
```

```python
import sys, argparse
NAME="standalone__dense_activation_silu__prompt_kernel"
class Asm:
    def __init__(self): self.L=[]
    def __call__(self, s):
        for l in s.split("\n"): self.L.append(l)
    def text(self): return "\n".join(self.L)+"\n"
def vr(a,n): return f"v[{a}:{a+n-1}]"
def srd(A, d, b, nbytes):
    A(f"s_mov_b32 s{d}, s{b}\ns_and_b32 s{d+1}, s{b+1}, 0xffff\ns_mov_b32 s{d+2}, {nbytes}\ns_mov_b32 s{d+3}, 0x20000")
X_BYTES=2048*1024*2; W_BYTES=1024*3584*2; O_BYTES=2048*1024*2
H_OFF=0; P_OFF=24<<20; F_OFF=48<<20; T_OFF=64<<20
SX,SW1,SW2,SO,SD,SWS=16,20,24,28,32,36
sMt,sJ,sFt8,sFt,sLid,sXcd,sDt=40,41,42,43,44,45,63
OOB=0x7ffffff0
SPIN=1<<17
def R4(s): return f"s[{s}:{s+3}]"

def interleave(mf, rd):
    out=[]; k=0
    for m in mf:
        out.append(m)
        if k<len(rd): out.append(rd[k]); k+=1
    return out+rd[k:]
ORDER='ji'
def snake(JS,NI):
    JS=list(JS)
    if ORDER=='ij': return [(j,i) for i in range(NI) for j in (JS if i%2==0 else JS[::-1])]
    return [(j,(i if n%2==0 else NI-1-i)) for n,j in enumerate(JS) for i in range(NI)]

def build(diag=0, rot=1, pf1=0, pf2=1, pfc=1, outaux="sc1", pfa=13, dswz=0, w1aux="", xaux="", w2aux="", l1st=1, l2st=4, stag=1, l1epi=1, rmask=1, f3=9, skew2=1, pfb=0, stag2=1, remap=1, spa=0, spb=13, spn=4, ack=6, ldearly=1, pfi=0, w1s=6, sched=0, fch=6, pdelay=0, nb=4, clr0=0, dual=0, tlb=0, packfirst=1, spub=1, vpoll=0, hsi=12, hsglc='', cmask=1, cbase=1, walk=2, w2e=0, order='ji', esend=1, ldpos=0, fast=1, la1=0, hd=4, la2=0, npoll=2, tearly=2, nsh=0, two=0, tight2=1, tight1=1, lead=1, tl=0, tlw=16, tl0=0, sep=1, xp_it=0, xp_n=0, late=-1, sl2=0, cprio=1, pprio=0, al=3, pj=1, w6=0, late2=0, pcw=0, pipe=0, wsplit=0, cw=0, zc=0, wlate=0):
    global ORDER; ORDER=order
    assert ack+2!=hsi and tl not in (ack+5,hsi+3) and ack+2<=12 and (cbase+cmask<ack or sep) and nsh<=(4 if two else ack+2)
    A=Asm(); A_main=A; OOL=[]
    tm='s_memrealtime' if diag>=3 else 's_memtime'
    def stamp(k):
        if diag: A(f"{tm} s[{64+2*k}:{65+2*k}]")
    def rstamp(k):
        if diag: A(f"s_memrealtime s[{64+2*k}:{65+2*k}]")
    def sstamp():
        if diag==6: A(f"s_memtime s[90:91]\ns_memrealtime s[88:89]\ns_waitcnt lgkmcnt(0)\nv_writelane_b32 v254, s90, m0\nv_writelane_b32 v252, s88, m0\ns_add_u32 m0, m0, 1")
        if diag in (2,3): A(f"{tm} s[90:91]\ns_waitcnt lgkmcnt(0)\nv_writelane_b32 v254, s90, m0\ns_add_u32 m0, m0, 1")
    def flush(n, cons=False):
        if not diag: return
        if diag==5:
            ks=[6,8,9,1,2,4,5,10] if cons else [1,8,2,3,4,5]
            lab="DB_c" if cons else "DB_p"
            A(f"s_waitcnt lgkmcnt(0)\ns_and_b32 s60, s3, 3\ns_or_b32 s60, s60, s2\ns_cmp_eq_u32 s60, 0\ns_cbranch_scc0 {lab}\nv_lshlrev_b32 v1, 8, v2")
            for n_,k in enumerate(ks):
                A(f"s_sub_u32 s60, s{64+2*k}, s64\nv_mov_b32 v4, s60\nbuffer_store_dword v4, v1, {R4(SD)}, 0 offen offset:{4*(n_+(0 if cons else 8))} sc1")
            A(f"s_waitcnt vmcnt(0)\n{lab}:")
            return
        A(f"s_waitcnt lgkmcnt(0)\ns_lshl_b32 s60, s2, 3\ns_add_u32 s60, s60, s3\ns_lshl_b32 s60, s60, 8\ns_add_u32 s60, s60, {T_OFF}\nv_mov_b32 v1, 0")
        for k in range(n): A(f"v_mov_b32 v2, s{64+2*k}\nbuffer_store_dword v2, v1, {R4(SWS)}, s60 offen offset:{4*k}")
        if cons and diag>=2:
            A(f"v_and_b32 v1, 63, v0\nv_lshlrev_b32 v1, 2, v1\nv_mov_b32 v2, {OOB}\nv_cmp_gt_u32 vcc, 192, v1\ns_nop 1\nv_cndmask_b32 v1, v2, v1, vcc")
            A(f"buffer_store_dword v254, v1, {R4(SWS)}, s60 offen offset:64")
            if diag==6: A(f"s_add_u32 s60, s60, 0x80000\nbuffer_store_dword v252, v1, {R4(SWS)}, s60 offen offset:64")
        A("s_waitcnt vmcnt(0)")
    PAD='@PAD@' if walk else 's_nop 0'
    def pad():
        if walk: A(PAD)
    def spin_tail(label):
        A(f"s_cmp_lt_u32 s58, {SPIN}\ns_cselect_b64 s[60:61], -1, 0\ns_and_b64 vcc, vcc, s[60:61]\ns_cbranch_scc1 {label}")
    WST=28672; WOFF=65536
    QS=5120 if remap else 4096
    CH=2*QS
    def physline(dst,g,tmp,A=None):
        A=A or A_main
        if remap: A(f"v_add_u32 v{tmp}, 4, v{g}\nv_mul_u32_u24 v{tmp}, 37, v{tmp}\nv_lshrrev_b32 v{tmp}, 8, v{tmp}\nv_add_u32 v{tmp}, v{tmp}, v{g}\nv_lshlrev_b32 v{dst}, 7, v{tmp}")
        else: A(f"v_lshlrev_b32 v{dst}, 7, v{g}")
    def fragoffs(base,A=None,t=(4,5,6)):
        A=A or A_main
        A(f"v_and_b32 v{t[2]}, 7, v2\nv_lshlrev_b32 v{t[2]}, 4, v{t[2]}")
        for n in range(4):
            A(f"v_lshrrev_b32 v{t[1]}, 3, v2\nv_add_u32 v{t[1]}, {8*n}, v{t[1]}"); physline(base+n,t[1],t[0],A); A(f"v_add_u32 v{base+n}, v{base+n}, v{t[2]}")
    A("""; Fused feed-forward: out = silu(x @ w1) @ w2, bf16 in/out, fp32 accumulate.
; Kernarg (48 bytes): 0 x[2048,1024], 8 w1[1024,3584], 16 w2[3584,1024], 24 out[2048,1024], 32 debug(256B), 40 ws
; 256 workgroups, one per CU; waves 0-3 compute (MFMA), waves 4-7 stream tiles into LDS.
; @launch grid=(256,1,1) block=(512,1,1) lds="""+("163840" if w6 else "151552"))
    A('.amdgcn_target "amdgcn-amd-amdhsa--gfx950"\n.text')
    A(f".globl {NAME}\n.p2align 8\n.type {NAME},@function\n{NAME}:")
    A("s_load_dwordx8 s[4:11], s[0:1], 0\ns_load_dwordx4 s[12:15], s[0:1], 32")
    A("s_cmp_ge_u32 s2, 256\ns_cbranch_scc1 L_end")
    stamp(0); rstamp(14)
    if fast and pfc:
        A(f"s_getpc_b64 s[54:55]\nC_pc:\nv_lshlrev_b32 v3, 7, v0\ns_sub_u32 s54, s54, C_pc-{NAME}\ns_subb_u32 s55, s55, 0")
        if pcw:
            A(f"s_cmp_lt_u32 s2, {pcw}\ns_cselect_b32 s3, L_end-{NAME}, 0\nv_min_u32 v3, s3, v3\nv_lshrrev_b32 v1, 6, v0\nglobal_load_dword v255, v3, s[54:55]\nv_and_b32 v2, 63, v0")
        else: A(f"v_min_u32 v3, L_end-{NAME}, v3\nv_lshrrev_b32 v1, 6, v0\nglobal_load_dword v255, v3, s[54:55]\nv_and_b32 v2, 63, v0")
    else: A("v_lshrrev_b32 v1, 6, v0\nv_and_b32 v2, 63, v0")
    A(f"v_readfirstlane_b32 s3, v1\ns_and_b32 s{sXcd}, s2, 7\ns_lshr_b32 s46, s2, 3")
    dec1=f"s_lshr_b32 s{sMt}, s{sXcd}, 1\ns_lshl_b32 s{sMt}, s{sMt}, 2\ns_lshr_b32 s47, s46, 3\ns_add_u32 s{sMt}, s{sMt}, s47\ns_and_b32 s{sJ}, s{sXcd}, 1"
    dec2=(f"s_and_b32 s{sFt8}, s46, 7\ns_lshl_b32 s{sFt}, s{sJ}, 3\ns_add_u32 s{sFt}, s{sFt}, s{sFt8}\n"
          f"s_lshl_b32 s{sLid}, s{sMt}, 4\ns_add_u32 s{sLid}, s{sLid}, s{sFt}\ns_xor_b32 s{sDt}, s{sJ}, 1\ns_mul_i32 s{sDt}, s{sDt}, {dswz}\ns_xor_b32 s{sDt}, s{sDt}, s{sFt8}")
    A(dec1); A(dec2)
    if fast and pf1==5:
        A("s_cmp_lt_u32 s3, 4\ns_cbranch_scc0 L_prod")
        A(f"s_lshr_b32 s58, s{sXcd}, 1\ns_lshl_b32 s59, s58, 2\ns_lshl_b32 s58, s58, 5\ns_add_u32 s58, s58, s46\ns_lshl_b32 s58, s58, 1\ns_add_u32 s58, s58, s{sJ}\ns_lshl_b32 s58, s58, 14")
        A("v_bfe_u32 v15, v0, 2, 3\nv_add_u32 v15, s59, v15\nv_and_b32 v15, 15, v15\nv_lshlrev_b32 v15, 7, v15\nv_lshrrev_b32 v14, 5, v0\nv_lshl_add_u32 v15, v14, 11, v15\nv_add_u32 v252, s58, v15")
        A("s_waitcnt lgkmcnt(0)\nglobal_load_dword v253, v252, s[4:5]\ns_branch L_cons\nL_prod:")
    elif fast and pf1==1:
        A("s_cmp_lt_u32 s3, 4\ns_cbranch_scc0 L_prod")
        A("v_lshrrev_b32 v15, 1, v0\ns_lshl_b32 s58, s2, 7\nv_add_u32 v15, s58, v15\nv_lshlrev_b32 v15, 7, v15\ns_waitcnt lgkmcnt(0)\nglobal_load_dword v253, v15, s[4:5]\ns_branch L_cons\nL_prod:")
    else:
        A("s_cmp_lt_u32 s3, 4\ns_cbranch_scc1 L_cons")
    sP,sKX,sKW,sLX,sLW,sRing,sCnt,sT0,sT1=46,47,48,49,50,51,52,53,54
    A(f"s_sub_u32 s{sP}, s3, 4")
    if pprio: A(f"s_setprio {pprio}")
    A("v_lshrrev_b32 v3, 3, v2\nv_and_b32 v4, 7, v2\nv_lshrrev_b32 v5, 4, v2\nv_xor_b32 v4, v4, v5\nv_lshlrev_b32 v4, 4, v4\nv_lshl_add_u32 v3, v3, 11, v4")
    A(f"s_lshl_b32 s{sT0}, s{sMt}, 18\ns_lshl_b32 s{sT1}, s{sP}, 16\ns_add_u32 s{sT0}, s{sT0}, s{sT1}\nv_add_u32 v8, s{sT0}, v3")
    A("v_xor_b32 v9, 64, v8\nv_add_u32 v9, 0x4000, v9\nv_add_u32 v10, 0x8000, v8\nv_add_u32 v11, 0x8000, v9")
    if not rot: A(f"s_mov_b32 s{sKX}, 0\ns_mov_b32 s{sKW}, 0")
    if rot:
        if rot in (1,2,4,5,6,7,8):
            if pj: A(f"s_lshr_b32 s{sT0}, s{sXcd}, 1\ns_lshl_b32 s{sT1}, s{sJ}, 1\ns_add_u32 s{sT0}, s{sT0}, s{sT1}\ns_and_b32 s{sT0}, s{sT0}, 3\ns_lshl_b32 s{sT0}, s{sT0}, 2")
            else: A(f"s_lshr_b32 s{sT0}, s{sXcd}, 1\ns_lshl_b32 s{sT0}, s{sT0}, 2")
            if rot==4: A(f"s_and_b32 s{sT0}, s{sT0}, 8")
        else: A(f"s_mov_b32 s{sT0}, 0")
        if rot>=5: A(f"s_mov_b32 s62, s{sT0}\ns_mov_b32 s60, 0\ns_mov_b32 s61, 0")
        if rot in (7,8): A(f"s_and_b32 s{sT1}, s{sMt}, 1\ns_lshl_b32 s{sT1}, s{sT1}, {rot-7}\ns_add_u32 s{sT0}, s{sT0}, s{sT1}")
        elif rot>=2: A(f"s_and_b32 s{sT1}, s{sMt}, 3\ns_add_u32 s{sT0}, s{sT0}, s{sT1}")
        A(f"s_lshl_b32 s{sKX}, s{sT0}, 7\ns_mul_i32 s{sKW}, s{sT0}, {64*7168}")
    sRX=57
    A(f"s_lshl_b32 s{sLX}, s{sP}, 12\ns_mov_b32 s{sRX}, 0\ns_mov_b32 s{SX+2}, {X_BYTES}\ns_mov_b32 s{SX+3}, 0x20000")
    A(f"s_waitcnt lgkmcnt(0)\ns_mov_b32 s{SX}, s4\ns_and_b32 s{SX+1}, s5, 0xffff")
    def nextk(c):
        if rot in (7,8):
            A(f"s_add_u32 s{c}, s{c}, 1\ns_and_b32 s{sT1}, s{c}, 8\ns_cselect_b32 s{sT0}, 1, 0\ns_xor_b32 s{sT0}, s{sT0}, s{sMt}\ns_and_b32 s{sT0}, s{sT0}, 1\ns_lshl_b32 s{sT0}, s{sT0}, {rot-7}\ns_add_u32 s{sT0}, s{sT0}, s{c}\ns_and_b32 s{sT0}, s{sT0}, 7")
            A(f"s_add_u32 s{sT0}, s{sT0}, s{sT1}\ns_add_u32 s{sT0}, s{sT0}, s62\ns_and_b32 s{sT0}, s{sT0}, 15")
            return
        if rot==6:
            A(f"s_add_u32 s{c}, s{c}, 1\ns_and_b32 s{sT1}, s{c}, 8\ns_cselect_b32 s{sT0}, 3, 0\ns_xor_b32 s{sT0}, s{sT0}, s{sMt}\ns_and_b32 s{sT0}, s{sT0}, 3\ns_add_u32 s{sT0}, s{sT0}, s{c}\ns_and_b32 s{sT0}, s{sT0}, 7")
            A(f"s_add_u32 s{sT0}, s{sT0}, s{sT1}\ns_add_u32 s{sT0}, s{sT0}, s62\ns_and_b32 s{sT0}, s{sT0}, 15")
            return
        A(f"s_add_u32 s{c}, s{c}, 1\ns_add_u32 s{sT0}, s{c}, s{sMt}\ns_and_b32 s{sT0}, s{sT0}, 3\ns_and_b32 s{sT1}, s{c}, 12\ns_add_u32 s{sT0}, s{sT0}, s{sT1}\ns_add_u32 s{sT0}, s{sT0}, s62\ns_and_b32 s{sT0}, s{sT0}, 15")
    def issueW1(part=None):
        inc=[1024,896,1024,896,1024,1280]
        ns=range(7) if part is None else (range(hd) if part==0 else range(hd,7))
        if part!=1: A(f"s_add_u32 m0, s{sRing}, s{sLW}\ns_add_u32 s{sRing}, s{sRing}, {WST}")
        else: A("s_mov_b32 m0, s1\ns_nop 0")
        for n in ns:
            a,o=n>>1,n&1
            if n<6:
                A(f"buffer_load_dwordx4 v{13+o}, {R4(SW1)}, s{sKW} offen offset:{a*128} {w1aux} lds")
                if part==0 and n==hd-1: A(f"s_add_u32 s1, m0, {inc[n]}")
                else:
                    A(f"s_add_u32 m0, m0, {inc[n]}")
                    A("s_nop 0" if n else f"s_cmp_eq_u32 s{sRing}, {WST*3}\ns_cselect_b32 s{sRing}, 0, s{sRing}")
            else:
                A(f"buffer_load_dwordx4 v12, {R4(SW1)}, s{sKW} offen {w1aux} lds\ns_add_u32 s{sKW}, s{sKW}, {64*7168}")
                if rot>=5:
                    nextk(60); A(f"s_mul_i32 s{sKW}, s{sT0}, {64*7168}\ns_add_u32 s{sKW}, s{sKW}, s59")
                elif rot: A(f"s_cmp_eq_u32 s{sKW}, s58\ns_cselect_b32 s{sKW}, s59, s{sKW}")
    def issueX():
        A(f"s_add_u32 m0, s{sRX}, s{sLX}\ns_add_u32 s{sRX}, s{sRX}, 16384")
        for n in range(4):
            A(f"buffer_load_dwordx4 v{8+n}, {R4(SX)}, s{sKX} offen {xaux} lds")
            if n<3: A("s_add_u32 m0, m0, 1024\n"+("s_nop 0" if n else f"s_and_b32 s{sRX}, s{sRX}, 0xffff"))
        if tight1: pass
        elif rot>=5:
            nextk(61); A(f"s_lshl_b32 s{sKX}, s{sT0}, 7")
        else: A(f"s_add_u32 s{sKX}, s{sKX}, 128\ns_and_b32 s{sKX}, s{sKX}, 2047")
    stamp(1)
    issueX()
    A(f"s_and_b32 s{sT0}, s{sFt8}, 1\ns_lshl_b32 s{sT1}, s{sT0}, 6")
    A("v_bfe_u32 v3, v2, 2, 3\nv_mul_u32_u24 v3, 7168, v3\nv_lshrrev_b32 v5, 5, v2\nv_and_b32 v4, 3, v2\nv_lshlrev_b32 v4, 4, v4")
    A(f"v_lshl_add_u32 v6, v5, 6, v3\nv_add3_u32 v13, v6, v4, s{sT1}\nv_xor_b32 v14, 32, v13\nv_add_u32 v14, {8*7168}, v14")
    A(f"s_xor_b32 s{sT0}, s{sT0}, 1\ns_mul_i32 s{sT0}, s{sT0}, 384\nv_lshrrev_b32 v3, 2, v2\nv_mul_u32_u24 v3, 7168, v3\nv_lshlrev_b32 v5, 5, v5\nv_xor_b32 v4, v4, v5\nv_add3_u32 v12, v3, v4, s{sT0}")
    A(f"s_mul_i32 s59, s{sP}, {16*7168}\ns_mul_i32 s{sT0}, s{sFt}, 448\ns_add_u32 s59, s59, s{sT0}\ns_add_u32 s{sKW}, s{sKW}, s59\ns_add_u32 s58, s59, {1024*7168}")
    A(f"s_mul_i32 s{sLW}, s{sP}, 7168\ns_add_u32 s{sLW}, s{sLW}, {WOFF}\ns_mov_b32 s{sRing}, {2*WST}")
    srd(A,SW1,6,W_BYTES)
    if la1 or tearly: issueW1(0)
    else: issueW1(); issueX(); issueW1()
    srd(A,SW2,8,W_BYTES); srd(A,SWS,14,0x10000000)
    if diag==5: srd(A,SD,12,256)
    sHp,sHalf=55,56
    if tlb:
        A(f"s_cmp_lt_u32 s2, {tlb}\ns_cbranch_scc0 P1_ntlb\ns_lshl_b32 s{sT0}, s{sP}, 21")
        A(f"s_add_u32 s4, s8, s{sT0}\ns_addc_u32 s5, s9, 0\ns_load_dword s0, s[4:5], 0")
        A(f"s_lshr_b32 s{sT1}, s{sT0}, 1\ns_add_u32 s4, s10, s{sT1}\ns_addc_u32 s5, s11, 0\ns_load_dword s0, s[4:5], 0")
        for b in (0, 8<<20, 16<<20, P_OFF, F_OFF):
            A(f"s_add_u32 s{sT1}, s{sT0}, {b}\ns_add_u32 s4, s14, s{sT1}\ns_addc_u32 s5, s15, 0\ns_load_dword s0, s[4:5], 0")
        A("P1_ntlb:")
    if tl0:
        A(f"s_cmp_lt_u32 s2, {tlw}\ns_cbranch_scc0 P1_nt0\ns_lshl_b32 s{sT0}, s{sP}, 21\ns_add_u32 s{sT0}, s{sT0}, {P_OFF}\ns_cmp_eq_u32 s{sP}, 3\ns_cselect_b32 s{sT0}, {F_OFF}, s{sT0}")
        A(f"s_add_u32 s4, s14, s{sT0}\ns_addc_u32 s5, s15, 0\ns_load_dword s0, s[4:5], 0\nP1_nt0:")
    A(f"s_lshr_b32 s4, s{sLid}, 3\ns_lshl_b32 s4, s4, 10\ns_add_u32 s4, s4, {F_OFF+fch*128}\ns_add_u32 s4, s14, s4\ns_addc_u32 s5, s15, 0")
    A(f"s_lshl_b32 s6, s{sMt}, 4\ns_add_u32 s6, s12, s6\ns_addc_u32 s7, s13, 0")
    def spf():
        if pf2 not in (3,4): return
        for k in range(4): A(f"s_load_dword s12, s[8:9], {k*64}")
        A(f"s_add_u32 s13, s13, 1\ns_and_b32 s{sT0}, s13, 7\ns_cselect_b32 s{sT0}, 0, {131072-2048}\ns_add_u32 s{sT0}, s{sT0}, 256\ns_add_u32 s8, s8, s{sT0}\ns_addc_u32 s9, s9, 0")
    if pf2 in (3,4):
        A(f"s_lshl_b32 s12, s2, 2\ns_add_u32 s12, s12, s{sP}")
        A(f"s_lshr_b32 s{sT0}, s12, 6\ns_mul_i32 s13, s{sT0}, 7\ns_and_b32 s{sT0}, s{sT0}, 1")
        A(f"s_xor_b32 s{sT1}, s{sT0}, 1\ns_mul_i32 s{sT1}, s{sT1}, 6\ns_add_u32 s{sT1}, s{sT1}, s13\ns_lshl_b32 s{sT1}, s{sT1}, 16\ns_and_b32 s14, s12, 63\ns_lshl_b32 s14, s14, 10\ns_add_u32 s{sT1}, s{sT1}, s14")
        A(f"s_add_u32 s14, s8, s{sT1}\ns_addc_u32 s15, s9, 0")
        A(f"s_add_u32 s13, s13, s{sT0}\ns_lshl_b32 s13, s13, 16\ns_and_b32 s12, s12, 63\ns_lshl_b32 s12, s12, 11\ns_add_u32 s13, s13, s12\ns_add_u32 s8, s8, s13\ns_addc_u32 s9, s9, 0\ns_mov_b32 s13, 0")
    A(f"s_lshr_b32 s{sHp}, s{sP}, 1\ns_and_b32 s{sHalf}, s{sP}, 1")
    A("v_subrev_u32 v5, 3, v2\nv_mul_u32_u24 v3, 37, v5\nv_lshrrev_b32 v3, 8, v3\nv_mul_u32_u24 v4, 7, v3\nv_sub_u32 v4, v5, v4")
    if skew2==3: A(f"v_add_u32 v6, s{sMt}, v3\nv_and_b32 v6, 3, v6\nv_add_u32 v4, v6, v4\nv_subrev_u32 v6, 7, v4\nv_min_u32 v4, v4, v6")
    elif skew2: A(f"s_and_b32 s{sT0}, s{sMt}, 3\ns_mul_i32 s{sT0}, s{sT0}, {3-skew2}\nv_add_u32 v4, s{sT0}, v4\nv_subrev_u32 v6, 7, v4\nv_min_u32 v4, v4, v6")
    A("v_add_u32 v4, 1, v4")
    A("v_cmp_gt_u32 vcc, 3, v2\ns_nop 1\nv_cndmask_b32 v3, v3, v2, vcc\nv_cndmask_b32 v4, v4, 0, vcc")
    A(f"v_add_u32 v4, s{sFt8}, v4\nv_and_b32 v4, 7, v4\nv_and_b32 v6, 1, v4\nv_mul_u32_u24 v4, 7, v4\nv_lshl_add_u32 v4, v3, 1, v4\nv_add3_u32 v4, v4, v6, s{sHp}")
    A(f"s_and_b32 s{sT0}, s{sMt}, {3 if skew2 else 0}\nv_add_u32 v5, s{sT0}, v2\nv_and_b32 v5, 3, v5\nv_mul_u32_u24 v5, 14, v5\nv_add3_u32 v5, v5, 6, s{sHp}")
    A("v_cmp_gt_u32 vcc, 24, v2\ns_nop 1\nv_cndmask_b32 v4, v5, v4, vcc\nv_and_b32 v4, 63, v4")
    A(f"s_mul_i32 s{sT0}, s{sJ}, 56\nv_add_u32 v4, s{sT0}, v4")
    A(f"s_mul_i32 s{sT0}, s{sMt}, {112*CH}\ns_mul_i32 s{sT1}, s{sHalf}, {QS}\ns_add_u32 s{sT0}, s{sT0}, s{sT1}")
    A(f"v_mul_u32_u24 v20, {CH}, v4\nv_add_u32 v20, s{sT0}, v20")
    A(f"s_lshl_b32 s{sT0}, s{sHalf}, 15\ns_lshl_b32 s{sT1}, s{sHalf}, 13\nv_mov_b32 v5, s{sT0}\nv_mov_b32 v6, s{sT1}\nv_cndmask_b32 v5, v6, v5, vcc")
    A(f"v_lshl_add_u32 v21, v4, 16, v5\ns_lshl_b32 s{sT0}, s{sDt}, 8\nv_add_u32 v21, s{sT0}, v21")
    A("v_and_b32 v4, 3, v2\nv_bfe_u32 v5, v2, 4, 1\nv_lshlrev_b32 v6, 1, v5\nv_xor_b32 v4, v4, v6\nv_lshlrev_b32 v4, 4, v4")
    A("v_lshrrev_b32 v6, 5, v2\nv_lshl_add_u32 v4, v6, 6, v4")
    A("v_bfe_u32 v6, v2, 2, 3\nv_lshl_add_u32 v22, v6, 11, v4\nv_add_u32 v23, 0x4000, v22")
    A("v_lshl_add_u32 v24, v5, 13, v22\nv_add_u32 v25, 0x8000, v24")
    fragoffs(26)
    if tight1:
        assert rot==8 and tearly==2 and not nsh and not la1 and spub and hsi and not two
        A(f"v_bfe_u32 v3, v2, 3, 1\nv_xor_b32 v3, s{sMt}, v3\nv_and_b32 v3, 1, v3\nv_lshl_add_u32 v3, v3, 1, v2\nv_and_b32 v3, 7, v3\nv_and_b32 v4, 8, v2\nv_add3_u32 v3, v3, v4, s62\nv_and_b32 v3, 15, v3")
        A(f"v_lshlrev_b32 v30, 7, v3\nv_mul_u32_u24 v31, {64*7168}, v3\nv_add_u32 v31, s59, v31")
    if diag==5: stamp(8)
    if tight1:
        xl=[f"buffer_load_dwordx4 v{8+n}, {R4(SX)}, s{sKX} offen {xaux} lds" for n in range(4)]
        wl=[f"buffer_load_dwordx4 v{13+(n&1)}, {R4(SW1)}, s{sKW} offen offset:{(n>>1)*128} {w1aux} lds" for n in range(6)]+[f"buffer_load_dwordx4 v12, {R4(SW1)}, s{sKW} offen {w1aux} lds"]
        inc=[1024,896,1024,896,1024,1280]
        def Wt(): A(f"s_mov_b32 m0, s1\ns_nop 0\n{wl[4]}\ns_add_u32 m0, m0, {inc[4]}\ns_nop 0\n{wl[5]}\ns_add_u32 m0, m0, {inc[5]}\ns_nop 0\n{wl[6]}")
        def Xs(fill):
            A(f"s_add_u32 m0, s{sRX}, s{sLX}\ns_add_u32 s{sRX}, s{sRX}, 16384")
            for n in range(4):
                A(xl[n])
                if n<3: A(f"s_add_u32 m0, m0, 1024\n{fill[n]}")
        assert hd==4
        andx=f"s_and_b32 s{sRX}, s{sRX}, 0xffff"
        A(f"v_readlane_b32 s{sKX}, v30, 1")
        Wt(); Xs([f"v_readlane_b32 s{sKW}, v31, 1", andx, "s_nop 0"])
        issueW1(0)
        A(f"v_readlane_b32 s{sKX}, v30, 2\ns_waitcnt vmcnt(8)")
        stamp(2)
        A("s_barrier")
        Wt(); Xs([f"v_readlane_b32 s{sKW}, v31, 2", andx, f"s_mov_b32 s{sCnt}, 2"])
        A(f"s_mov_b32 s61, {(1<<(ack+2+3))|(1<<(hsi+3))|((1<<tl) if tl else 0)}\ns_add_u32 m0, s{sRing}, s{sLW}\ns_branch P1_w")
        A(f".p2align {al}\nP1_loop:")
        A(f"s_bitcmp1_b32 s61, s{sCnt}\ns_cbranch_scc1 P1_hk\nP1_hkb:")
        Xs([f"v_readlane_b32 s{sKW}, v31, s{sCnt}", andx, "s_nop 0"])
        A(f"s_add_u32 m0, s{sRing}, s{sLW}\ns_waitcnt vmcnt(15)\ns_barrier\nP1_w:")
        fill=[f"s_add_u32 s{sCnt}, s{sCnt}, 1", f"s_add_u32 s{sRing}, s{sRing}, {WST}", f"v_readlane_b32 s{sKX}, v30, s{sCnt}",
              f"s_cmp_eq_u32 s{sRing}, {WST*3}\ns_cselect_b32 s{sRing}, 0, s{sRing}", "s_nop 0", f"s_cmp_lt_u32 s{sCnt}, 16"]
        for n in range(7):
            A(wl[n])
            if n<6: A(f"s_add_u32 m0, m0, {inc[n]}\n{fill[n]}")
        A("s_cbranch_scc1 P1_loop\ns_branch P1_done")
        A("P1_hk:")
        if tl:
            A(f"s_cmp_eq_u32 s{sCnt}, {tl}\ns_cbranch_scc0 P1_hk0\ns_cmp_lt_u32 s2, {tlw}\ns_cbranch_scc0 P1_hkb\ns_lshl_b32 s{sT0}, s{sP}, 21")
            A(f"s_add_u32 s12, s8, s{sT0}\ns_addc_u32 s13, s9, 0\ns_load_dword s0, s[12:13], 0")
            A(f"s_lshr_b32 s{sT1}, s{sT0}, 1\ns_add_u32 s12, s10, s{sT1}\ns_addc_u32 s13, s11, 0\ns_load_dword s0, s[12:13], 0")
            for b in (0, 8<<20, 16<<20):
                A(f"s_add_u32 s{sT1}, s{sT0}, {b}\ns_add_u32 s12, s14, s{sT1}\ns_addc_u32 s13, s15, 0\ns_load_dword s0, s[12:13], 0")
            A("s_branch P1_hkb\nP1_hk0:")
        A(f"s_cmp_eq_u32 s{sCnt}, {hsi+3}\ns_cbranch_scc0 P1_hk1\ns_cmp_eq_u32 s{sP}, 0\ns_cbranch_scc0 P1_hkb\ns_load_dwordx4 s[28:31], s[6:7], 0 {hsglc}\ns_branch P1_hkb")
        if lead: A(f"P1_hk1:\ns_lshl_b32 s1, s{sFt}, 2\ns_add_u32 s1, s1, s{sP}\ns_cmp_eq_u32 s1, 2\ns_cbranch_scc0 P1_hkb\ns_mov_b32 s1, 1\ns_atomic_or s1, s[6:7], 0\ns_branch P1_hkb")
        else: A(f"P1_hk1:\ns_cmp_eq_u32 s{sP}, 2\ns_cbranch_scc0 P1_hkb\ns_and_b32 s1, s{sFt}, 3\ns_lshl_b32 s1, s1, 3\ns_lshl_b32 s1, 1, s1\ns_and_b32 s{sT0}, s{sFt}, 12\ns_atomic_or s1, s[6:7], s{sT0}\ns_branch P1_hkb")
        A("P1_done:")
        pad()
    else:
        if la1:
            A(f"s_mov_b32 s{sCnt}, -1\ns_branch P1_in")
            A(f"P1_loop:\ns_waitcnt vmcnt({4+hd})")
            if diag: A(f"s_cmp_eq_u32 s{sCnt}, 0\ns_cbranch_scc0 P1_ns"); stamp(2); A("P1_ns:")
            A("s_barrier\nP1_in:")
            issueW1(1); issueX(); issueW1(0)
        else:
            if nsh:
                A(f"s_mov_b32 s{sCnt}, -1\ns_branch P1_shin\nP1_sh:\ns_waitcnt vmcnt({4+hd})")
                if diag: A(f"s_cmp_eq_u32 s{sCnt}, 0\ns_cbranch_scc0 P1_ns"); stamp(2); A("P1_ns:")
                A("s_barrier\nP1_shin:")
                issueW1(1); issueX()
                A(f"s_cmp_eq_u32 s{sCnt}, {nsh}\ns_cbranch_scc1 P1_in")
                issueW1(0)
                A(f"s_add_u32 s{sCnt}, s{sCnt}, 1\ns_branch P1_sh")
            else:
                if tearly==1: issueW1(1); issueX(); issueW1()
                if tearly==2: issueW1(1); issueX(); issueW1(0)
                A(f"s_waitcnt vmcnt({4+hd if tearly==2 else 11})")
                stamp(2)
                A("s_barrier")
                if tearly==2: issueW1(1)
                issueX()
                A(f"s_mov_b32 s{sCnt}, 0\ns_branch P1_in")
            A("P1_loop:\ns_waitcnt vmcnt(15)\ns_barrier\nP1_in:")
            issueW1(); issueX()
        if spub and two:
            A(f"s_lshl_b32 s{sT0}, s{sP}, 8\ns_add_u32 s{sT0}, s{sT0}, s{sCnt}\ns_cmp_eq_u32 s{sT0}, {512+4}\ns_cselect_b32 s0, 1, 0\ns_cmp_eq_u32 s{sT0}, {512+ack+2}\ns_cselect_b32 s0, 2, s0\ns_cmp_eq_u32 s0, 0\ns_cbranch_scc1 P1_npub")
            A(f"s_and_b32 s{sT0}, s{sFt}, 3\ns_lshl_b32 s{sT0}, s{sT0}, 3\ns_lshl_b32 s0, s0, s{sT0}\ns_and_b32 s{sT0}, s{sFt}, 12\ns_atomic_or s0, s[6:7], s{sT0}\nP1_npub:")
        elif spub:
            A(f"s_lshl_b32 s{sT0}, s{sP}, 8\ns_add_u32 s{sT0}, s{sT0}, s{sCnt}\ns_cmp_eq_u32 s{sT0}, {512+ack+2}\ns_cbranch_scc0 P1_npub")
            A(f"s_and_b32 s0, s{sFt}, 3\ns_lshl_b32 s0, s0, 3\ns_lshl_b32 s0, 1, s0\ns_and_b32 s{sT0}, s{sFt}, 12\ns_atomic_or s0, s[6:7], s{sT0}\nP1_npub:")
        if hsi:
            assert pf2 not in (3,4)
            A(f"s_lshl_b32 s{sT0}, s{sP}, 8\ns_add_u32 s{sT0}, s{sT0}, s{sCnt}\ns_cmp_eq_u32 s{sT0}, {hsi}\ns_cbranch_scc0 P1_nh\ns_load_dwordx4 s[28:31], s[6:7], 0 {hsglc}\nP1_nh:")
        if pf2==4:
            spf()
            A(f"s_cmp_lt_u32 s{sCnt}, 3\ns_cbranch_scc0 P1_nspf")
            spf()
            A("P1_nspf:")
        if pf2==3:
            A(f"s_sub_u32 s{sT0}, s{sCnt}, {spa}\ns_cmp_lt_u32 s{sT0}, {spb-spa}\ns_cbranch_scc0 P1_nspf")
            spf()
            A("P1_nspf:")
        A(f"s_add_u32 s{sCnt}, s{sCnt}, 1\ns_cmp_lt_u32 s{sCnt}, {14 if la1 else 13}\ns_cbranch_scc1 P1_loop")
        pad()
        A(f"s_waitcnt vmcnt({4+hd if la1 else 15})\ns_barrier")
        issueW1(1 if la1 else None)
    sW,sH,sSlot,sLW2,sLH=47,48,51,50,49
    A(f"s_lshl_b32 s{sLH}, s{sP}, 12\ns_add_u32 s{sLW2}, s{sLH}, 65536\ns_mov_b32 s{sCnt}, 0\ns_mov_b32 s{sSlot}, 0")
    def issueW():
        A(f"s_add_u32 m0, s{sLW2}, s{sSlot}\ns_nop 0")
        for n in range(4):
            o,tb=n>>1,n&1
            A(f"buffer_load_dwordx4 v{22+o}, {R4(SW2)}, s{sW} offen offset:{tb*128} {w2aux} lds")
            if n<3: A(f"s_add_u32 m0, m0, {896 if tb==0 else 1024+128}\ns_nop 0")
    def issueH():
        A(f"s_add_u32 m0, s{sLH}, s{sSlot}\ns_nop 0")
        for n in range(4):
            A(f"buffer_load_dwordx4 v{26+n}, {R4(SWS)}, s{sH} offen sc1 lds")
            if n<3: A("s_add_u32 m0, m0, 1024\ns_nop 0")
    A(f"v_readlane_b32 s{sW}, v21, 0")
    if not la1: A("s_waitcnt vmcnt(7)\ns_barrier")
    if not hsi: A(f"s_cmp_eq_u32 s{sP}, 0\ns_cbranch_scc0 P2_nh\ns_load_dwordx4 s[28:31], s[6:7], 0 glc\nP2_nh:")
    A("s_waitcnt vmcnt(0)\ns_barrier")
    def nextW(): A(f"s_add_u32 s{sCnt}, s{sCnt}, 1\ns_add_u32 s{sSlot}, s{sSlot}, 16384\nv_readlane_b32 s{sW}, v21, s{sCnt}\ns_nop 2")
    if w2e:
        A("s_branch P2_w0\nP2_w:"); nextW(); A("P2_w0:"); issueW()
        A(f"s_cmp_lt_u32 s{sCnt}, {w2e}\ns_cbranch_scc1 P2_w")
        A("s_barrier")
        pad()
        A("P2_w2:"); nextW(); issueW()
        A(f"s_cmp_lt_u32 s{sCnt}, 3\ns_cbranch_scc1 P2_w2")
    else:
        issueW()
        A("s_barrier")
        pad()
        A("P2_w:"); nextW(); issueW()
        A(f"s_cmp_lt_u32 s{sCnt}, {5 if w6==1 else 3}\ns_cbranch_scc1 P2_w")
    A(f"s_cmp_eq_u32 s{sP}, 0\ns_cbranch_scc0 P2_hsd\ns_mov_b32 s58, 0\ns_branch P2_hsw")
    A("P2_hs:\ns_load_dwordx4 s[28:31], s[6:7], 0 glc\ns_add_u32 s58, s58, 1\nP2_hsw:\ns_waitcnt lgkmcnt(0)")
    if lead: A(f"s_cmp_ge_u32 s58, {SPIN}\ns_cbranch_scc1 P2_hsd\ns_cmp_eq_u32 s28, 1\ns_cbranch_scc0 P2_hs\nP2_hsd:")
    else:
        A(f"s_and_b32 s28, s28, s29\ns_and_b32 s30, s30, s31\ns_and_b32 s28, s28, s30\ns_and_b32 s28, s28, 0x01010101\ns_cmp_ge_u32 s58, {SPIN}\ns_cbranch_scc1 P2_hsd\ns_cmp_eq_u32 s28, 0x01010101\ns_cbranch_scc0 P2_hs\nP2_hsd:")
    A(f"s_lshr_b32 s59, s{sLid}, 3\ns_lshl_b32 s59, s59, 10\ns_add_u32 s59, s59, {F_OFF+fch*128}\ns_lshl_b32 s{sT0}, s{sFt8}, 2")
    A(f"v_mov_b32 v5, {OOB}\nv_mov_b32 v6, s{sT0}\nv_cmp_eq_u32 vcc, 0, v2\nv_and_b32 v3, 7, v2\nv_lshlrev_b32 v3, 2, v3\nv_cndmask_b32 v6, v5, v6, vcc\nv_mov_b32 v5, 1")
    A(f"v_readlane_b32 s{sH}, v20, 3\ns_waitcnt vmcnt({20 if w6==1 else 12})")
    stamp(3)
    A("s_barrier")
    stamp(6)
    A(f"s_cmp_eq_u32 s{sP}, 1\ns_cbranch_scc0 P2_nf\nbuffer_store_dword v5, v6, {R4(SWS)}, s59 offen sc1\ns_nop 1\nv_mov_b32 v5, 7\nP2_nf:")
    if w6==2:
        A("P2_w45:"); nextW(); issueW()
        A(f"s_cmp_lt_u32 s{sCnt}, 5\ns_cbranch_scc1 P2_w45")
    A(f"s_mov_b32 s62, 0\ns_cmp_eq_u32 s{sP}, 0\ns_cbranch_scc1 P2_p0\ns_waitcnt vmcnt({8 if w6==2 else 0})\ns_branch P2_go\nP2_p0:\ns_mov_b32 s58, 0")
    if pdelay: A(f"s_mov_b32 s16, 0\nP2_dl:\ns_add_u32 s16, s16, 1\ns_cmp_lt_u32 s16, {pdelay}\ns_cbranch_scc1 P2_dl")
    stamp(7)
    if vpoll:
        A(f"P2_l1:\nbuffer_load_dword v4, v3, {R4(SWS)}, s59 offen sc1\ns_add_u32 s58, s58, 1\ns_waitcnt vmcnt(0)\nv_cmp_eq_u32 vcc, 0, v4")
        spin_tail("P2_l1")
    else:
        A("P2_l1:\ns_load_dwordx8 s[16:23], s[4:5], 0 glc\ns_add_u32 s58, s58, 1\ns_waitcnt lgkmcnt(0)")
        A("s_and_b64 s[16:17], s[16:17], s[18:19]\ns_and_b64 s[20:21], s[20:21], s[22:23]\ns_and_b64 s[16:17], s[16:17], s[20:21]\ns_and_b32 s16, s16, s17")
        A(f"s_cmp_ge_u32 s58, {SPIN}\ns_cbranch_scc1 P2_rdy\ns_bitcmp1_b32 s16, 0\ns_cbranch_scc1 P2_rdy")
        if la2: A(f"s_cmp_eq_u32 s58, {npoll}\ns_cbranch_scc0 P2_l1\ns_waitcnt vmcnt(0)\ns_barrier\ns_mov_b32 s62, 1")
        A("s_branch P2_l1")
    A("P2_rdy:")
    if diag and diag!=5: stamp(9); A("s_mov_b32 s80, s58")
    A(f"s_mov_b32 m0, 49152\ns_mov_b32 s58, 0")
    A("P2_h3:")
    for n in range(4): A(f"buffer_load_dwordx4 v{26+n}, {R4(SWS)}, s{sH} offen sc1 lds\ns_add_u32 m0, m0, 1024\n"+("s_nop 0" if n<3 else f"s_add_u32 s{sH}, s{sH}, {QS}"))
    A("s_add_u32 s58, s58, 1\ns_cmp_lt_u32 s58, 4\ns_cbranch_scc1 P2_h3")
    A("P2_go:")
    pad()
    stamp(4)
    PL=f"buffer_load_dword v4, v3, {R4(SWS)}, s59 offen sc1"
    POOL=[]
    if tight2:
        assert not la2 and not two and pf2 not in (3,4) and l1epi==3
        mask=(1<<(l1st+5))|(1<<9)|(1<<(8 if sl2 else 10))|(1<<(21 if w6 else 23))|(((1<<14)|(1<<20)) if lead else 0)
        wl=[f"buffer_load_dwordx4 v{22+(n>>1)}, {R4(SW2)}, s{sW} offen offset:{(n&1)*128} {w2aux} lds" for n in range(4)]
        hl=[f"buffer_load_dwordx4 v{26+n}, {R4(SWS)}, s{sH} offen sc1 lds" for n in range(4)]
        if w6:
            sWs=62
            A(f"s_mov_b32 s{sCnt}, 4\ns_mov_b32 s57, {mask}\nv_readlane_b32 s{sW}, v21, 6\ns_mov_b32 s{sSlot}, 0\ns_mov_b32 s{sWs}, 0\ns_mov_b32 m0, s{sLW2}\ns_branch P2_bar")
            A(f".p2align {al}\nP2_loop:")
            A(f"s_bitcmp1_b32 s57, s{sCnt}\ns_cbranch_scc1 P2_hk\nP2_hkb:")
            def Hs(f):
                A(f"s_add_u32 m0, s{sLH}, s{sSlot}\ns_add_u32 s{sCnt}, s{sCnt}, 1")
                A(f"{hl[0]}\ns_add_u32 m0, m0, 1024\n{f[0]}")
                A(f"{hl[1]}\ns_add_u32 m0, m0, 1024\ns_add_u32 s{sSlot}, s{sSlot}, 16384")
                A(f"{hl[2]}\ns_add_u32 m0, m0, 1024\ns_and_b32 s{sSlot}, s{sSlot}, 0xffff")
                A(hl[3])
            Hs([f"v_readlane_b32 s{sW}, v21, s{sT1}"])
            A(f"s_add_u32 m0, s{sLW2}, s{sWs}\nP2_bar:\ns_waitcnt vmcnt(16)\ns_barrier")
            A(f"s_cmp_lt_u32 s{sCnt}, 26\ns_cbranch_scc0 P2_out")
            A(f"{wl[0]}\ns_add_u32 m0, m0, 896\nv_readlane_b32 s{sH}, v20, s{sCnt}")
            A(f"{wl[1]}\ns_add_u32 m0, m0, 1152\ns_add_u32 s{sWs}, s{sWs}, 16384")
            A(f"{wl[2]}\ns_add_u32 m0, m0, 896\ns_add_u32 s{sT1}, s{sCnt}, 3")
            A(f"{wl[3]}\ns_cmp_eq_u32 s{sWs}, {6*16384}\ns_cselect_b32 s{sWs}, 0, s{sWs}\ns_branch P2_loop")
        else:
            A(f"s_mov_b32 s{sCnt}, 4\ns_mov_b32 s57, {mask}\nv_readlane_b32 s{sW}, v21, 4\ns_mov_b32 s{sSlot}, 0\ns_mov_b32 m0, s{sLW2}\ns_branch P2_bar")
            A(f".p2align {al}\nP2_loop:")
            A(f"s_bitcmp1_b32 s57, s{sCnt}\ns_cbranch_scc1 P2_hk\nP2_hkb:")
            A(f"s_add_u32 m0, s{sLH}, s{sSlot}\ns_add_u32 s{sCnt}, s{sCnt}, 1")
            A(f"{hl[0]}\ns_add_u32 m0, m0, 1024\nv_readlane_b32 s{sW}, v21, s{sCnt}")
            A(f"{hl[1]}\ns_add_u32 m0, m0, 1024\ns_add_u32 s{sSlot}, s{sSlot}, 16384")
            A(f"{hl[2]}\ns_add_u32 m0, m0, 1024\ns_and_b32 s{sSlot}, s{sSlot}, 0xffff")
            A(f"{hl[3]}\ns_add_u32 m0, s{sLW2}, s{sSlot}\nP2_bar:\ns_waitcnt vmcnt(16)\ns_barrier")
            A(f"s_cmp_lt_u32 s{sCnt}, {24 if wsplit else 28}\ns_cbranch_scc0 P2_out")
            A(f"{wl[0]}\ns_add_u32 m0, m0, 896\nv_readlane_b32 s{sH}, v20, s{sCnt}")
            A(f"{wl[1]}\ns_add_u32 m0, m0, 1152\ns_nop 0")
            A(f"{wl[2]}\ns_add_u32 m0, m0, 896\ns_nop 0")
            A(f"{wl[3]}\ns_branch P2_loop")
        A("P2_hk:"); pad()
        A(f"s_cmp_eq_u32 s{sCnt}, {21 if w6 else 23}\ns_cbranch_scc0 P2_hk1\nv_mov_b32 v22, v24\nv_mov_b32 v23, v25\ns_branch P2_hkb")
        A("P2_hk1:")
        if lead:
            A(f"s_cmp_lt_u32 s{sCnt}, 14\ns_cbranch_scc1 P2_hk1a\ns_cmp_eq_u32 s{sP}, 0\ns_cbranch_scc0 P2_hkb\ns_mov_b32 s58, 0\ns_cmp_eq_u32 s{sCnt}, 20\ns_cbranch_scc1 P2_pw")
            A(f"s_xor_b32 s4, s4, 1024\ns_xor_b32 s{sT0}, s{sFt8}, {dswz}\ns_lshl_b32 s{sT0}, s{sT0}, 2\ns_add_u32 s4, s4, s{sT0}\ns_load_dword s28, s[4:5], 0 glc\ns_branch P2_hkb")
            A(f"P2_pl:\ns_load_dword s28, s[4:5], 0 glc\ns_add_u32 s58, s58, 1\nP2_pw:\ns_waitcnt lgkmcnt(0)\ns_cmp_ge_u32 s58, {SPIN}\ns_cbranch_scc1 P2_hkb\ns_cmp_eq_u32 s28, 0\ns_cbranch_scc1 P2_pl\ns_branch P2_hkb\nP2_hk1a:")
        if sl2:
            assert l1st+5<8
            A(f"s_cmp_lt_u32 s{sCnt}, 8\ns_cbranch_scc0 P2_hk2\ns_cmp_eq_u32 s{sP}, 1\ns_cbranch_scc0 P2_hkb\nbuffer_store_dword v5, v6, {R4(SWS)}, s59 offen sc1\ns_branch P2_hkb")
            A(f"P2_hk2:\ns_cmp_eq_u32 s{sP}, 0\ns_cbranch_scc0 P2_hkb\ns_mov_b32 s58, 0\ns_cmp_eq_u32 s{sCnt}, 9\ns_cbranch_scc1 P2_l2w\ns_load_dwordx8 s[16:23], s[4:5], 0 glc\ns_branch P2_hkb")
            A("P2_l2:\ns_load_dwordx8 s[16:23], s[4:5], 0 glc\ns_add_u32 s58, s58, 1\nP2_l2w:\ns_waitcnt lgkmcnt(0)")
            A("s_and_b64 s[16:17], s[16:17], s[18:19]\ns_and_b64 s[20:21], s[20:21], s[22:23]\ns_and_b64 s[16:17], s[16:17], s[20:21]\ns_and_b32 s16, s16, s17")
            A(f"s_cmp_ge_u32 s58, {SPIN}\ns_cbranch_scc1 P2_hkb\ns_cmp_eq_u32 s16, 7\ns_cbranch_scc0 P2_l2")
        else:
            A(f"s_cmp_eq_u32 s{sCnt}, 9\ns_cbranch_scc0 P2_hk2\n{PL}\ns_branch P2_hkb")
            A(f"P2_hk2:\ns_cmp_eq_u32 s{sCnt}, 10\ns_cbranch_scc1 P2_hk3\ns_cmp_eq_u32 s{sP}, 1\ns_cbranch_scc0 P2_hkb\nbuffer_store_dword v5, v6, {R4(SWS)}, s59 offen sc1\ns_branch P2_hkb")
            A("P2_hk3:\ns_waitcnt vmcnt(8)\nv_cmp_gt_u32 vcc, 7, v4\ns_mov_b32 s58, 0\ns_nop 3\ns_cbranch_vccz P2_hkb")
            A(f"P2_l2:\n{PL}\ns_add_u32 s58, s58, 1\ns_waitcnt vmcnt(0)\nv_cmp_gt_u32 vcc, 7, v4")
            spin_tail("P2_l2")
        A("s_branch P2_hkb\nP2_out:")
        if wsplit:
            assert not w6
            def Wh(q,keep):
                A(f"v_readlane_b32 s{sW}, v21, {q}\ns_add_u32 m0, s{9 if keep else 8}, {(q&3)*16384}\ns_nop 2\ns_add_u32 s{sW}, s{sW}, s{11 if keep else 10}")
                A(f"buffer_load_dwordx4 v22, {R4(SW2)}, s{sW} offen {w2aux} lds\ns_add_u32 m0, m0, 2048\ns_nop 0\nbuffer_load_dwordx4 v23, {R4(SW2)}, s{sW} offen {w2aux} lds")
            def Hq(q):
                A(f"s_add_u32 m0, s{sLH}, {(q&3)*16384}\ns_nop 0")
                for n in range(4):
                    A(hl[n])
                    if n<3: A("s_add_u32 m0, m0, 1024\ns_nop 0")
            A(f"s_lshl_b32 s11, s{sJ}, 7\ns_xor_b32 s10, s11, 128\ns_lshl_b32 s9, s{sJ}, 10\ns_xor_b32 s8, s9, 1024\ns_add_u32 s8, s8, s{sLW2}\ns_add_u32 s9, s9, s{sLW2}")
            for q,w in ((24,14),(25,12),(26,12),(27,12)):
                A(f"v_readlane_b32 s{sH}, v20, {q}"); Wh(q,0); Hq(q)
                if q==25: pad()
                A(f"s_waitcnt vmcnt({w})\ns_barrier")
            Wh(24,1); Wh(25,1); A("s_waitcnt vmcnt(10)\ns_barrier")
            Wh(26,1); Wh(27,1); A("s_waitcnt vmcnt(8)\ns_barrier\ns_waitcnt vmcnt(6)\ns_barrier\ns_waitcnt vmcnt(0)\ns_barrier")
        if w6:
            A(f"v_readlane_b32 s{sH}, v20, 26\ns_nop 2"); Hs(["s_nop 0"])
            A(f"v_readlane_b32 s{sH}, v20, 27\ns_waitcnt vmcnt(12)\ns_barrier\ns_nop 0"); Hs(["s_nop 0"])
            A("s_waitcnt vmcnt(8)\ns_barrier\ns_waitcnt vmcnt(4)\ns_barrier\ns_waitcnt vmcnt(0)\ns_barrier")
    else:
        A(f"s_mov_b32 s{sCnt}, 4\ns_mov_b32 s57, 7")
        if la2: A("s_cmp_eq_u32 s62, 0\ns_cbranch_scc0 P2_loop\ns_waitcnt vmcnt(16)\ns_barrier")
        A("P2_loop:")
        A(f"v_readlane_b32 s{sW}, v21, s{sCnt}\nv_readlane_b32 s{sH}, v20, s{sCnt}")
        A(f"s_add_u32 s{sSlot}, s{sSlot}, 16384\ns_and_b32 s{sSlot}, s{sSlot}, 0xffff")
        A(f"s_cmp_eq_u32 s{sCnt}, 24\ns_cbranch_scc0 P2_a\nv_mov_b32 v22, v24\nv_mov_b32 v23, v25\nP2_a:")
        if la2: A(f"s_cmp_eq_u32 s{sCnt}, 4\ns_cbranch_scc1 P2_nw\ns_waitcnt vmcnt(8)\nP2_nw:\ns_barrier")
        else: A("s_waitcnt vmcnt(16)\ns_barrier")
        assert l1epi==3 or sched==9
        A(f"s_lshl_b32 s{sT0}, s{sP}, 8\ns_add_u32 s{sT0}, s{sT0}, s{sCnt}\ns_cmp_eq_u32 s{sT0}, {256+l1st+(4 if la2 else 5)}\ns_cbranch_scc0 P2_nf2\nbuffer_store_dword v5, v6, {R4(SWS)}, s59 offen sc1\nP2_nf2:")
        if two:
            A(f"s_cmp_eq_u32 s{sT0}, 14\ns_cbranch_scc0 P2_n2a\ns_load_dwordx4 s[28:31], s[6:7], 0 glc\nP2_n2a:")
            A(f"s_cmp_eq_u32 s{sT0}, 20\ns_cbranch_scc0 P2_n2b\ns_mov_b32 s58, 0\ns_branch P2_h2w\nP2_h2:\ns_load_dwordx4 s[28:31], s[6:7], 0 glc\ns_add_u32 s58, s58, 1\nP2_h2w:\ns_waitcnt lgkmcnt(0)")
            A(f"s_and_b32 s28, s28, s29\ns_and_b32 s30, s30, s31\ns_and_b32 s28, s28, s30\ns_cmp_ge_u32 s58, {SPIN}\ns_cbranch_scc1 P2_n2b\ns_cmp_eq_u32 s28, 0x03030303\ns_cbranch_scc0 P2_h2\nP2_n2b:")
        A(f"s_cmp_eq_u32 s{sCnt}, 9\ns_cbranch_scc0 P2_np\n{PL}\nP2_np:")
        A(f"s_cmp_eq_u32 s{sCnt}, 10\ns_cbranch_scc0 P2_b")
        A("s_waitcnt vmcnt(8)\nv_cmp_gt_u32 vcc, s57, v4\ns_mov_b32 s58, 0\ns_nop 3\ns_cbranch_vccz P2_ok")
        A(f"P2_l2:\n{PL}\ns_add_u32 s58, s58, 1\ns_waitcnt vmcnt(0)\nv_cmp_gt_u32 vcc, s57, v4")
        spin_tail("P2_l2")
        A("P2_ok:\ns_mov_b32 s57, 7")
        A("P2_b:")
        pad()
        issueW(); issueH()
        if pf2==3:
            A("s_cmp_eq_u32 s13, 24\ns_cselect_b32 s8, s14, s8\ns_cselect_b32 s9, s15, s9\ns_cmp_lt_u32 s13, 28\ns_cbranch_scc0 P2_nspf")
            spf()
            A("P2_nspf:")
        A(f"s_add_u32 s{sCnt}, s{sCnt}, 1\ns_cmp_lt_u32 s{sCnt}, 28\ns_cbranch_scc1 P2_loop")
    if not w6 and not wsplit: A(("" if (la2 or tight2) else "s_waitcnt vmcnt(16)\ns_barrier\n")+"s_waitcnt vmcnt(8)\ns_barrier\ns_waitcnt vmcnt(0)\ns_barrier")
    if diag: stamp(5); rstamp(15); flush(16)
    A("s_endpgm")
    A(".p2align 6\nL_cons:")
    ACC=16; F=[(128,144),(172,188)]
    vX0,vX1,vE,vO,vL=4,5,6,7,8; bX0,bE,bL=9,10,11
    sWm,sWf,sIt,sRg,sA,sB,sC=46,47,48,49,58,7,59
    sHA,sH3,sRX2,sClr,sPf=50,51,4,5,6
    vOwn,vT3,vH,vW=232,233,235,[236,237,238,239]
    if pfc and not fast:
        A(f"s_getpc_b64 s[54:55]\nC_pc:\ns_sub_u32 s54, s54, C_pc-{NAME}\ns_subb_u32 s55, s55, 0")
        A(f"v_lshlrev_b32 v3, 7, v0\nv_min_u32 v3, L_end-{NAME}, v3\nglobal_load_dword v255, v3, s[54:55]")
    if pf1==1 and not fast:
        A(f"v_and_b32 v15, 31, v2\nv_lshlrev_b32 v15, 7, v15\ns_lshl_b32 s{sA}, s2, 2\ns_add_u32 s{sA}, s{sA}, s3\ns_lshl_b32 s{sA}, s{sA}, 12")
    if pf1==3:
        A(f"v_and_b32 v15, 7, v2\nv_lshlrev_b32 v15, 7, v15\nv_bfe_u32 v14, v2, 3, 1\nv_lshl_add_u32 v15, v14, 11, v15\ns_lshl_b32 s{sA}, s2, 2\ns_add_u32 s{sA}, s{sA}, s3\ns_lshl_b32 s{sA}, s{sA}, 12\nv_mov_b32 v252, v15")
    if pf1==2:
        A(f"v_lshlrev_b32 v15, 7, v2\ns_lshr_b32 s{sA}, s2, 3\ns_lshl_b32 s{sA}, s{sA}, 2\ns_add_u32 s{sA}, s{sA}, s3\ns_lshl_b32 s{sA}, s{sA}, 13\ns_lshr_b32 s{sB}, s{sXcd}, 1\ns_lshl_b32 s{sB}, s{sB}, 20\ns_add_u32 s{sA}, s{sA}, s{sB}")
    A("s_waitcnt lgkmcnt(0)")
    if pf1==5: srd(A,SX,4,X_BYTES)
    elif pf1 and not (fast and pf1==1):
        srd(A,SX,4,X_BYTES)
        A(f"buffer_load_dword v253, v15, {R4(SX)}, s{sA} offen")
        if pf1==3: srd(A,SW1,6,W_BYTES)
    if diag==5: stamp(6)
    if cprio: A(f"s_setprio {cprio}")
    A(f"s_lshr_b32 s{sWm}, s3, 1\ns_and_b32 s{sWf}, s3, 1")
    A("v_and_b32 v3, 15, v2\nv_lshrrev_b32 v12, 4, v2")
    A("v_lshrrev_b32 v13, 1, v3\nv_xor_b32 v13, v13, v12\nv_lshlrev_b32 v13, 4, v13")
    A(f"s_lshl_b32 s{sA}, s{sWm}, 13\nv_lshlrev_b32 v14, 7, v3\nv_add3_u32 v{bX0}, v13, v14, s{sA}")
    A("v_lshrrev_b32 v13, 1, v12\nv_mul_u32_u24 v13, 7168, v13\nv_bfe_u32 v15, v2, 2, 2\nv_lshl_add_u32 v13, v15, 6, v13\nv_and_b32 v15, 3, v2\nv_lshl_add_u32 v13, v15, 3, v13")
    A(f"v_and_b32 v14, 1, v12\nv_mul_u32_u24 v15, 1056, v14\ns_lshl_b32 s{sA}, s{sWf}, 9\ns_add_u32 s{sA}, s{sA}, {WOFF}\nv_add3_u32 v{bE}, v13, v15, s{sA}")
    A(f"v_mul_u32_u24 v15, 544, v14\nv_add_u32 v13, v13, v15\ns_lshl_b32 s{sA}, s{sWf}, 5\nv_xor_b32 v13, s{sA}, v13\nv_add_u32 v{bL}, {WOFF+6144}, v13")
    VF=248
    if late2:
        for n in range(4): A(f"v_mov_b32 v{VF+n}, {OOB}")
    else: fragoffs(VF)
    A(f"v_add_u32 v{vE}, {2*WST}, v{bE}\nv_mov_b32 v{vX0}, v{bX0}\nv_add_u32 v{vL}, {2*WST}, v{bL}\nv_xor_b32 v{vO}, 32, v{vE}\nv_xor_b32 v{vX1}, 64, v{vX0}")
    srd(A,SO,10,O_BYTES); srd(A,SWS,14,0x10000000); srd(A,SW2,8,W_BYTES)
    if diag==5 or not spub: srd(A,SD,12,256)
    A("v_lshlrev_b32 v3, 4, v2")
    A(f"s_lshr_b32 s56, s{sLid}, 3\ns_lshl_b32 s56, s56, 10\ns_lshl_b32 s{sB}, s{sFt8}, 2\ns_add_u32 s56, s56, s{sB}\ns_add_u32 s56, s56, {F_OFF+fch*128}")
    if lead:
        A(f"s_cmp_eq_u32 s{sFt}, 0\ns_cselect_b32 s{sB}, 16, 0\nv_lshrrev_b32 v13, 3, v2\nv_lshlrev_b32 v13, 10, v13\nv_and_b32 v1, 7, v2\nv_lshl_add_u32 v13, v1, 2, v13")
        A(f"v_mov_b32 v1, {OOB}\nv_cmp_gt_u32 vcc, s{sB}, v2\ns_nop 1\nv_cndmask_b32 v1, v1, v13, vcc")
    else:
        A(f"v_mov_b32 v1, {OOB}\nv_cmp_eq_u32 vcc, 0, v2\ns_nop 1\nv_cndmask_b32 v1, v1, 0, vcc")
    A(f"s_andn2_b32 s57, s{sLid}, 7\ns_add_u32 s57, s57, s{sDt}\ns_lshl_b32 s57, s57, 2\ns_add_u32 s57, s57, s3\ns_mul_i32 s57, s57, {QS}\ns_add_u32 s57, s57, {P_OFF}")
    A0=A
    if late>=0: A=Asm()
    if late2: assert 0<=late<cbase; fragoffs(VF,A,(13,14,15))
    A(f"s_lshl_b32 s52, s{sWm}, 12\nv_add_u32 v{vH}, s52, v3")
    A("v_lshrrev_b32 v13, 5, v2\nv_lshlrev_b32 v13, 11, v13\nv_bfe_u32 v14, v2, 4, 1\nv_mul_u32_u24 v14, 288, v14\nv_add_u32 v13, v13, v14")
    A("v_bfe_u32 v15, v2, 2, 2\nv_lshl_add_u32 v13, v15, 6, v13\nv_and_b32 v15, 3, v2\nv_lshl_add_u32 v13, v15, 3, v13")
    A(f"s_lshl_b32 s52, s{sJ}, 1\ns_add_u32 s52, s52, s{sWf}\ns_lshl_b32 s52, s52, 9\ns_add_u32 s52, s52, 65536\nv_add_u32 v{vW[0]}, s52, v13")
    A(f"v_xor_b32 v{vW[1]}, 32, v{vW[0]}\nv_xor_b32 v{vW[2]}, 0x400, v{vW[0]}\nv_xor_b32 v{vW[3]}, 0x420, v{vW[0]}")
    A(f"s_add_u32 s62, s{sFt8}, s3\ns_and_b32 s62, s62, {rmask}\ns_add_u32 s62, s62, {l2st+5}")
    A(f"s_mul_i32 s{sHA}, s{sMt}, 112\ns_mul_i32 s{sH3}, s{sFt}, 7\ns_add_u32 s{sHA}, s{sHA}, s{sH3}\ns_and_b32 s52, s{sFt8}, 1")
    A(f"s_xor_b32 s53, s52, 1\ns_mul_i32 s53, s53, 6\ns_add_u32 s{sH3}, s{sHA}, s53\ns_add_u32 s{sHA}, s{sHA}, s52\ns_add_u32 s{sHA}, s{sHA}, s{sWf}")
    A(f"s_mul_i32 s52, s{sWm}, {QS}\ns_mul_i32 s{sHA}, s{sHA}, {CH}\ns_add_u32 s{sHA}, s{sHA}, s52\ns_mul_i32 s{sH3}, s{sH3}, {CH}\ns_add_u32 s{sH3}, s{sH3}, s52\ns_lshl_b32 s52, s{sWm}, 12")
    A(f"s_lshl_b32 s53, s{sWf}, 13\ns_add_u32 s52, s52, s53\nv_add_u32 v{vOwn}, s52, v3")
    A(f"v_bfe_u32 v13, v2, 4, 1\nv_lshlrev_b32 v13, 3, v13\nv_lshrrev_b32 v14, 5, v2\nv_lshl_add_u32 v13, v14, 1, v13\nv_bfe_u32 v14, v2, 3, 1\ns_lshl_b32 s52, s{sWf}, 2\nv_add3_u32 v13, v13, v14, s52")
    A("v_add_u32 v14, 16, v13\nv_and_b32 v15, 7, v2\nv_lshlrev_b32 v15, 4, v15")
    physline(vT3,13,12,A); physline(vT3+1,14,12,A)
    A(f"v_add_u32 v{vT3}, v{vT3}, v15\nv_add_u32 v{vT3+1}, v{vT3+1}, v15")
    A("v_mov_b32 v12, 1\ns_mov_b32 s52, 0xbfb8aa3b\ns_mov_b32 s53, 0xbfb8aa3b\ns_mov_b32 s54, 1.0\ns_mov_b32 s55, 1.0")
    if late>=0:
        LATE=A.text().rstrip(); A=A0
        A(f"v_mov_b32 v{vT3}, {OOB}\nv_mov_b32 v{vT3+1}, {OOB}")
    if not zc:
        for r in range(112): A(f"v_mov_b32 v{ACC+r}, 0")
    for r in range(4): A(f"v_mov_b32 v{244+r}, -1")
    def hook(it, body, name, reg=None):
        OOL.append(f"{name}:\n{body}\ns_branch {name}_b")
        return [f"s_cmp_eq_u32 s{reg or sIt}, {it}", f"s_cbranch_scc1 {name}\n{name}_b:"]
    def reads1(u, fs):
        X,W=F[fs]
        xs=[f"ds_read_b128 {vr(X+4*i,4)}, v{vX1 if u else vX0} offset:{i*2048}" for i in range(4)]
        ws=[]
        for j in range(7):
            a,o=(vL,0) if j==6 else ((vO if j&1 else vE),(j>>1)*2048)
            for hh in range(2): ws.append(f"ds_read_b64_tr_b16 {vr(W+4*j+2*hh,2)}, v{a} offset:{u*14336+o+hh*256}")
        return ws[0:2]+xs+ws[2:]
    def mf1(fs,zero=False):
        X,W=F[fs]
        return [f"v_mfma_f32_16x16x32_bf16 {vr(ACC+(j*4+i)*4,4)}, {vr(W+4*j,4)}, {vr(X+4*i,4)}, {'0' if zero else vr(ACC+(j*4+i)*4,4)}" for j,i in snake(range(7),4)]
    A(f"s_mov_b32 s{sIt}, 0\ns_mov_b32 s{sRg}, {2*WST}\ns_mov_b32 s{sRX2}, 0\ns_lshl_b32 s{sClr}, s3, {1 if cmask==7 else 0}\ns_add_u32 s{sClr}, s{sClr}, s{sFt8}\ns_and_b32 s{sClr}, s{sClr}, {cmask}\ns_add_u32 s{sClr}, s{sClr}, {cbase}")
    if two: A(f"s_mov_b32 s0, {1|4|(1<<ack)}")
    A(f"s_mul_i32 s{sPf}, s3, {pfb}\ns_add_u32 s{sPf}, s{sPf}, {pfa}")
    if pf2==2: A(f"v_min_u32 v15, 55, v2\nv_lshlrev_b32 v15, 7, v15\ns_lshl_b32 s{sA}, s2, 2\ns_add_u32 s{sA}, s{sA}, s3\ns_mul_i32 s{sA}, s{sA}, 7168\nbuffer_load_dword v255, v15, {R4(SW2)}, s{sA} offen")
    if diag in (2,3,6): A("s_mov_b32 m0, 0")
    clr="\n".join([f"buffer_store_dwordx4 v[244:247], v{VF+i}, {R4(SWS)}, s57 offen sc1" for i in range(4)])
    fclr=f"v_mov_b32 v13, 0\nbuffer_store_dword v13, v1, {R4(SWS)}, s56 offen sc1"
    if sep: assert lead; A(fclr)
    elif not two: clr=clr+"\n"+fclr
    if clr0: A(clr)
    if diag==5: stamp(8)
    WK=""
    if walk:
        WK=f"s_cmp_ge_u32 s3, {walk}\ns_cbranch_scc1 C_walked\n"+("" if wlate else f"s_waitcnt vmcnt({(1 if pf1 and not pcw else 0)+(1 if sep else 0)})\n")+"s_mov_b64 exec, 0\n"
        for w in range(walk-1): WK+=f"s_cmp_eq_u32 s3, {w}\ns_cbranch_scc1 @START{w}@\n"
        WK+=f"s_branch @START{walk-1}@\nC_wret:\ns_mov_b64 exec, -1\nC_walked:"
        if not wlate: A(WK)
    if diag==5: stamp(9)
    A("s_barrier")
    stamp(1)
    for l in reads1(0,0): A(l)
    A("s_waitcnt lgkmcnt(0)")
    ex=[f"s_add_u32 s{sRg}, s{sRg}, {WST}\ns_add_u32 s{sRX2}, s{sRX2}, 16384", f"s_cmp_eq_u32 s{sRg}, {WST*3}\ns_cselect_b32 s{sRg}, 0, s{sRg}",
        f"v_add_u32 v{vE}, s{sRg}, v{bE}\ns_and_b32 s{sRX2}, s{sRX2}, 0xffff", f"v_add_u32 v{vX0}, s{sRX2}, v{bX0}", f"v_add_u32 v{vL}, s{sRg}, v{bL}",
        f"v_xor_b32 v{vO}, 32, v{vE}", f"v_xor_b32 v{vX1}, 64, v{vX0}"]
    if zc:
        assert cbase>0
        sstamp()
        for l in interleave(mf1(0,True), reads1(1,1)+ex): A(l)
        A("s_branch C1_in")
    A(f".p2align {al}\nC1_loop:")
    sstamp()
    if not clr0: ex+=hook(f"s{sClr}" if stag else 2,clr,"H1_clr")
    for l in interleave(mf1(0), reads1(1,1)+ex): A(l)
    A("C1_in:\ns_waitcnt lgkmcnt(0)\ns_barrier")
    pub=(f"s_cmp_eq_u32 s3, 0\ns_cbranch_scc0 H1_pub_b\ns_and_b32 s{sA}, s{sLid}, 3\ns_lshl_b32 s{sA}, s{sA}, 3\ns_lshl_b32 s{sA}, 1, s{sA}\nv_mov_b32 v13, s{sA}\n"
         f"s_andn2_b32 s{sA}, s{sLid}, 3\nv_lshlrev_b32 v14, 8, v2\nbuffer_atomic_or v13, v14, {R4(SD)}, s{sA} offen")
    if two:
        h=hook(0,f"s_cmp_eq_u32 s{sIt}, 0\ns_cbranch_scc1 H1_fc\ns_waitcnt vmcnt(0)\ns_branch H1_ack_b\nH1_fc:\n{fclr}","H1_ack")
        h[0]=f"s_bitcmp1_b32 s0, s{sIt}"
    else: h=hook(ack,"s_waitcnt vmcnt(0)","H1_ack")
    ex=h+([] if spub else hook(ack+1,pub,"H1_pub"))
    if late>=0: ex+=hook(late,(PAD+"\n" if walk else "")+LATE+("\n"+WK if wlate else ""),"H1_late")
    if xp_n: ex+=hook(xp_it,f"s_sleep {xp_n}","H1_xp")
    if pf1==5: ex+=hook(pfi,f"v_xor_b32 v252, 0x400, v252\ns_nop 0\nbuffer_load_dword v253, v252, {R4(SX)}, 0 offen","H1_pf1")
    if pf1==3:
        nl=(16-w1s)*64*56//1024
        ex+=hook(pfi,f"s_lshl_b32 s{sA}, s2, 2\ns_add_u32 s{sA}, s{sA}, s3\ns_mul_i32 s{sB}, s{sA}, {nl*128}\ns_add_u32 s{sB}, s{sB}, {w1s*64*7168}\ns_lshl_b32 s{sA}, s{sA}, 12\n"
                     f"v_min_u32 v15, {nl-1}, v2\nv_lshlrev_b32 v15, 7, v15\nbuffer_load_dword v255, v15, {R4(SW1)}, s{sB} offen\nbuffer_load_dword v253, v252, {R4(SX)}, s{sA} offen offset:1024","H1_pf1")
    if pf2==4:
        ex+=hook(f"s{sPf}",f"s_lshl_b32 s{sA}, s2, 2\ns_add_u32 s{sA}, s{sA}, s3\ns_lshr_b32 s{sB}, s{sA}, 6\ns_and_b32 s60, s{sB}, 1\ns_mul_i32 s{sB}, s{sB}, 7\n"
                     f"s_add_u32 s61, s{sB}, s60\ns_add_u32 s61, s61, 4\ns_lshl_b32 s61, s61, 16\ns_xor_b32 s60, s60, 1\ns_mul_i32 s60, s60, 6\ns_add_u32 s{sB}, s{sB}, s60\ns_lshl_b32 s{sB}, s{sB}, 16\n"
                     f"s_and_b32 s{sA}, s{sA}, 63\ns_lshl_b32 s60, s{sA}, 11\ns_add_u32 s61, s61, s60\ns_lshl_b32 s60, s{sA}, 10\ns_add_u32 s{sB}, s{sB}, s60\n"
                     f"v_and_b32 v15, 15, v2\nv_lshlrev_b32 v15, 7, v15\nv_and_b32 v14, 7, v2\nv_lshlrev_b32 v14, 7, v14\n"
                     f"buffer_load_dword v255, v15, {R4(SW2)}, s61 offen\nbuffer_load_dword v253, v14, {R4(SW2)}, s{sB} offen","H1_pf")
    if pf2==1:
        ex+=hook(f"s{sPf}",f"v_min_u32 v15, 55, v2\nv_lshlrev_b32 v15, 7, v15\ns_lshl_b32 s{sA}, s2, 2\ns_add_u32 s{sA}, s{sA}, s3\ns_mul_i32 s{sA}, s{sA}, 7168\nbuffer_load_dword v255, v15, {R4(SW2)}, s{sA} offen","H1_pf")
    ex+=([PAD] if walk else [])+[f"s_add_u32 s{sIt}, s{sIt}, 1", f"s_cmp_lt_u32 s{sIt}, 16"]
    x=interleave(mf1(1), reads1(0,0)+ex)
    if x[-1].startswith("v_mfma"):
        for l in x[:-1]: A(l)
        A("s_waitcnt lgkmcnt(0)"); A(x[-1])
    else:
        for l in x: A(l)
        A("s_waitcnt lgkmcnt(0)")
    A("s_cbranch_scc1 C1_loop")
    stamp(2)
    T=216
    PEND=[]
    def silu(a, b, D):
        t=T; src=[a,a+2,b,b+2]
        for r in range(4): A(f"v_pk_mul_f32 {vr(t+2*r,2)}, s[52:53], {vr(src[r],2)}")
        for r in range(8):
            A(f"v_exp_f32 v{t+r}, v{t+r}")
            if r in (1,5) and PEND: A(PEND.pop(0))
        for r in range(4): A(f"v_pk_add_f32 {vr(t+2*r,2)}, s[54:55], {vr(t+2*r,2)}")
        for r in range(8):
            A(f"v_rcp_f32 v{t+r}, v{t+r}")
            if r in (1,5) and PEND: A(PEND.pop(0))
        for r in range(4): A(f"v_pk_mul_f32 {vr(t+2*r,2)}, {vr(t+2*r,2)}, {vr(src[r],2)}")
        for r in range(4): A(f"v_cvt_pk_bf16_f32 v{D+r}, v{t+2*r}, v{t+2*r+1}")
    def later(x):
        if pipe: PEND.append(x)
        else: A(x)
    def flushp():
        while PEND: A(PEND.pop(0))
    def gst(D,i): return f"buffer_store_dwordx4 {vr(D,4)}, v{VF+i}, {R4(SWS)}, s{sHA} offen sc1"
    FLAG="s_nop 0"
    DL=[160,128,144]; D3=224
    for L in range(3):
        for i in range(4):
            D=DL[L]+4*i
            if i%2==0: pad()
            silu(ACC+((2*L)*4+i)*4, ACC+((2*L+1)*4+i)*4, D)
            if L==0 or (L==2 and l1epi>=2) or (L==1 and i>=nb and l1epi): later(gst(D,i))
            later(f"ds_write_b128 v{vOwn}, {vr(D,4)} offset:{L*16384+i*1024}")
            if L==0 and i==3: later(f"s_add_u32 s{sHA}, s{sHA}, {2*CH}")
            if L==1 and i==nb-1:
                flushp()
                stamp(11); A("s_waitcnt vmcnt(0)"); stamp(12)
                A(f"s_waitcnt lgkmcnt(0)\ns_barrier")
                if l1epi:
                    if pipe==2:
                        for k in range(0,nb,2): later(gst(128+4*k,k)+"\n"+gst(132+4*k,k+1))
                    else:
                        for k in range(nb): A(gst(128+4*k,k))
        if L==1 and l1epi: later(f"s_add_u32 s{sHA}, s{sHA}, {2*CH}")
    F2=[(160,176),(192,208)]
    def rdH(X,slot,u): return [f"ds_read_b128 {vr(X+4*i,4)}, v{vH} offset:{slot*16384+u*8192+i*1024}" for i in range(4)]
    DYN=[w6]
    def rdW(W,slot,u,js): return [f"ds_read_b64_tr_b16 {vr(W+4*n+2*hh,2)}, v{vW[j]} offset:{(0 if DYN[0] else slot)*16384+(4*u+2*hh)*2048}" for n,j in enumerate(js) for hh in range(2)]
    WU=[f"v_add_u32 v{vW[0]}, s{sRg}, v240", f"v_xor_b32 v{vW[1]}, 32, v{vW[0]}", f"v_xor_b32 v{vW[2]}, 0x400, v{vW[0]}", f"v_xor_b32 v{vW[3]}, 0x420, v{vW[0]}"] if w6 else []
    WS=[f"s_add_u32 s{sRg}, s{sRg}, 16384", f"s_cmp_eq_u32 s{sRg}, {6*16384}\ns_cselect_b32 s{sRg}, 0, s{sRg}"] if w6 else []
    def reads2(slot,u,fs):
        X,W=F2[fs]; ws=rdW(W,slot,u,range(4)); return ws[0:2]+rdH(X,slot,u)+ws[2:]
    def mfm(X,W,js,zero=False,w0=0):
        return [f"v_mfma_f32_16x16x32_bf16 {vr(ACC+(j*4+i)*4,4)}, {vr(W+4*(j-w0),4)}, {vr(X+4*i,4)}, {'0' if zero else vr(ACC+(j*4+i)*4,4)}" for j,i in snake(js,4)]
    def mf2(fs,zero=False): return mfm(F2[fs][0],F2[fs][1],range(4),zero)
    for l in reads2(0,0,0): A(l)
    for ip in range(2):
        D=D3+4*ip; a=ACC+(24+2*ip)*4
        if ip==0: pad()
        silu(a,a+4,D)
        A(f"s_nop 1\nv_permlane16_swap_b32 v{D}, v{D+2}\nv_permlane16_swap_b32 v{D+1}, v{D+3}")
        if l1epi>=3: later(f"buffer_store_dwordx4 {vr(D,4)}, v{vT3+ip}, {R4(SWS)}, s{sH3} offen sc1")
    flushp()
    A(f"v_mov_b32 v12, {7 if l1epi==3 else 3}\ns_mov_b32 s{sIt}, 0")
    if w6: A(f"v_mov_b32 v240, v{vW[0]}\ns_mov_b32 s{sRg}, 16384")
    stamp(3); stamp(4)
    sstamp()
    A("s_waitcnt lgkmcnt(0)")
    for l in interleave(mf2(0,True), reads2(0,1,1)+(WU if w6 else ([PAD] if walk else []))): A(l)
    A("s_branch C2_in")
    dw={}; dws={}
    t3st=[f"buffer_store_dwordx4 {vr(D3+4*ip,4)}, v{vT3+ip}, {R4(SWS)}, s{sH3} offen sc1" for ip in range(2)]
    ADV=f"\ns_add_u32 s{sHA}, s{sHA}, {2*CH}"
    L1s=[gst(128+4*i,i) for i in range(4)]; L2s=[gst(144+4*i,i) for i in range(4)]
    F3=f"s_waitcnt vmcnt(0)\n{FLAG}"; F7=f"v_mov_b32 v12, 7\ns_waitcnt vmcnt(0)\n{FLAG}"
    J="\n".join
    if sched==1:
        dw[(0,1)]=J(L1s[:2]); dw[(1,0)]=J(L1s[2:])+ADV; dw[(1,1)]=J(L2s[:2]); dw[(2,0)]=J(L2s[2:]); dw[(2,1)]=J(t3st); dw[(4,0)]=F7
    elif sched==2:
        dw[(0,1)]=J(L1s[:2]); dw[(1,0)]=J(L1s[2:])+ADV; dw[(3,0)]=F3
        dw[(3,1)]=L2s[0]; dw[(4,0)]=L2s[1]; dw[(4,1)]=L2s[2]; dw[(5,0)]=L2s[3]; dw[(5,1)]=t3st[0]; dw[(6,0)]=t3st[1]; dw[(10,0)]=F7
    elif sched==3:
        dw[(0,1)]=L1s[0]; dw[(1,0)]=L1s[1]; dw[(1,1)]=L1s[2]; dw[(2,0)]=L1s[3]+ADV; dw[(3,1)]=F3
        dw[(4,0)]=L2s[0]; dw[(4,1)]=L2s[1]; dw[(5,0)]=L2s[2]; dw[(5,1)]=L2s[3]; dw[(6,0)]=t3st[0]; dw[(6,1)]=t3st[1]; dw[(11,0)]=F7
    elif sched==4:
        dw[(0,1)]=J(L1s)+ADV; dw[(1,1)]=J(L2s); dw[(2,1)]=J(t3st); dw[(4,0)]=F7
    elif sched==9:
        dw[(1,1)]=F7
    elif sched==5:
        dw[(0,1)]=J(L2s[:2]); dw[(1,0)]=J(L2s[2:]); dw[(1,1)]=J(t3st); dw[(3,1)]=F7
    else:
        if not l1epi:
            dw[(l1st,0)]=gst(128,0)+"\n"+gst(132,1); dw[(l1st,1)]=gst(136,2)+"\n"+gst(140,3)+f"\ns_add_u32 s{sHA}, s{sHA}, {2*CH}"
            dw[(l1st+2,1)]=f"s_waitcnt vmcnt(0)\n{FLAG}"
        else:
            dw[(l1st,1)]=f"s_waitcnt vmcnt(0)\n{FLAG}"
        if l1epi>=2:
            if l1epi==2: dw[(l2st,0)]="\n".join(t3st)
            if l1epi==2: dw[(f3,1)]=f"v_mov_b32 v12, 7\ns_waitcnt vmcnt(0)\n{FLAG}"
        elif not stag2:
            dw[(l2st,0)]=gst(144,0)+"\n"+gst(148,1); dw[(l2st+1,0)]=gst(152,2)+"\n"+gst(156,3)+"\nv_mov_b32 v12, 7"
            dw[(l2st+2,0)]="\n".join(t3st)
            dw[(l2st+5,1)]=f"s_waitcnt vmcnt(0)\n{FLAG}"
        else:
            dw[(f3,1)]=f"v_mov_b32 v12, 7\ns_waitcnt vmcnt(0)\n{FLAG}"
            body=[gst(144+4*i,i) for i in range(4)]+t3st
            o="H2_st:\n"
            for n,b in enumerate(body):
                o+=f"s_cmp_eq_u32 s62, {5-n}\ns_cbranch_scc0 H2_st{n}\n{b}\nH2_st{n}:\n"
            o+="s_setpc_b64 s[54:55]"
            OOL.append(o)
    def hooks2(slot,u):
        ex=[]
        for (q,uu),body in sorted(dw.items()):
            if q%4==slot and uu==u: ex+=hook(q//4,body,f"H2_{q}_{uu}")
        if stag2 and l1epi<2 and u==0 and not sched:
            ex+=["s_sub_u32 s62, s62, 1\ns_cmp_lt_u32 s62, 6", f"s_cbranch_scc1 H2_go{slot}\nH2_ns{slot}:"]
            OOL.append(f"H2_go{slot}:\ns_call_b64 s[54:55], H2_st\ns_branch H2_ns{slot}")
        assert len(ex)<=4, (slot,u,ex)
        return ex
    A(f".p2align {al}\nC2_loop:")
    for slot in range(4):
        sstamp()
        for l in interleave(mf2(0), reads2(slot,1,1)+hooks2(slot,0)+(WU if w6 else ([PAD] if walk else []))): A(l)
        if slot==0: A("C2_in:")
        A("s_waitcnt lgkmcnt(0)\ns_barrier")
        ex=WS+hooks2(slot,1)
        if w6 and walk and len(ex)<=3 and slot!=3: ex=ex+[PAD]
        if slot==3: ex+=[f"s_add_u32 s{sIt}, s{sIt}, 1", f"s_cmp_lt_u32 s{sIt}, 6"]
        x=interleave(mf2(1), reads2((slot+1)&3,0,0)+ex)
        if x[-1].startswith("v_mfma"):
            for l in x[:-1]: A(l)
            A("s_waitcnt lgkmcnt(0)"); A(x[-1])
        else:
            for l in x: A(l)
            A("s_waitcnt lgkmcnt(0)")
    A("s_cbranch_scc1 C2_loop")
    stamp(13)
    if diag: A("s_waitcnt lgkmcnt(0)")
    DYN[0]=0
    G=[dict(H=[160,80],W=[184,96]), dict(H=[192,104],W=[208,216])]
    def rdS(g,slot,js,us=(0,1)):
        o=[]
        for u in us:
            w=rdW(G[g]['W'][u],slot,u,js); o+=w[0:2]+rdH(G[g]['H'][u],slot,u)+w[2:]
        return o
    def mfS(g,js): return mfm(G[g]['H'][0],G[g]['W'][0],js,w0=js[0])+mfm(G[g]['H'][1],G[g]['W'][1],js,w0=js[0])
    for l in rdS(0,0,(2,3),(1,)): A(l)
    pad()
    A("s_barrier")
    m=mfS(0,(2,3)); r=rdS(1,1,(2,3))
    x=interleave(m[:8], r[:8])
    for l in x: A(l)
    A("s_waitcnt lgkmcnt(8)")
    for l in interleave(m[8:], r[8:]): A(l)
    for q in (1,2):
        if q==2: pad()
        A(f"s_waitcnt lgkmcnt({8 if cw else 0})\ns_barrier")
        x=interleave(mfS(q&1,(2,3)), rdS((q+1)&1,q+1,(2,3)))
        if cw: x.insert(16,"s_waitcnt lgkmcnt(8)")
        for l in x: A(l)
    A(f"s_mul_i32 s52, s{sJ}, {-2*32*QS}\ns_add_u32 s52, s52, {32*QS}\ns_add_u32 s52, s52, s57\ns_mov_b32 s53, -2")
    sn=[]
    for i in range(4):
        D=128+4*i; t=[]
        for n,j in enumerate((2,3)):
            S=ACC+(j*4+i)*4
            t+= [f"v_cvt_pk_bf16_f32 v{D+2*n}, v{S}, v{S+1}", f"v_cvt_pk_bf16_f32 v{D+2*n+1}, v{S+2}, v{S+3}"]
        t+=[f"v_min_u32 v{D+r}, s53, v{D+r}" for r in range(4)]
        t.append(f"buffer_store_dwordx4 {vr(D,4)}, v{VF+i}, {R4(SWS)}, s52 offen sc1")
        sn.append(t)
    A("s_waitcnt lgkmcnt(0)")
    if wsplit: assert esend; A("s_barrier")
    if esend:
        g=G[1]; r=rdS(0,0,(0,1)); k=0
        for i in range(4):
            for u,j in ((0,2),(0,3),(1,3),(1,2)):
                A(f"v_mfma_f32_16x16x32_bf16 {vr(ACC+(j*4+i)*4,4)}, {vr(g['W'][u]+4*(j-2),4)}, {vr(g['H'][u]+4*i,4)}, {vr(ACC+(j*4+i)*4,4)}")
                A(r[k]); k+=1
            if i>=1:
                for l in sn[i-1]: A(l)
        stamp(5)
        pad()
        A("s_waitcnt lgkmcnt(0)")
        if wsplit: A("s_barrier")
        m=mfS(0,(0,1)); r=rdS(1,1,(0,1))
        for n,mm_ in enumerate(m):
            A(mm_); A(r[n])
            if n==2:
                for l in sn[3]: A(l)
    else:
        for l in interleave(mfS(1,(2,3)), rdS(0,0,(0,1))): A(l)
        stamp(5)
        pad()
        snd=sum(sn,[])
        A("s_waitcnt lgkmcnt(0)")
        m=mfS(0,(0,1)); r=rdS(1,1,(0,1))
        k=0
        for n,mm_ in enumerate(m):
            A(mm_); A(r[n])
            if packfirst and n==1:
                A("s_nop 3")
                while k<len(snd): A(snd[k]); k+=1
            if n>=3:
                for _ in range(3):
                    if k<len(snd): A(snd[k]); k+=1
        while k<len(snd): A(snd[k]); k+=1
    if diag!=5 and not cw: stamp(6)
    RB=144 if dual else 80; RB2=224
    def LDs(b): return [f"buffer_load_dwordx4 {vr(b+4*i,4)}, v{VF+i}, {R4(SWS)}, s57 offen sc1" for i in range(4)]
    LD=LDs(RB)
    for q in (1,2):
        pad()
        A(f"s_waitcnt lgkmcnt({8 if cw else 0})")
        x=interleave(mfS(q&1,(0,1)), rdS((q+1)&1,q+1,(0,1)))
        if cw: assert not dual; x.insert(16,"s_waitcnt lgkmcnt(8)")
        if dual==q:
            for n in range(4): x.insert(2+3*n+n,LD[n])
        for l in x: A(l)
    A(f"s_waitcnt lgkmcnt({8 if cw else 0})")
    adr=["v_and_b32 v13, 15, v2","v_lshlrev_b32 v13, 11, v13","v_bfe_u32 v14, v2, 4, 1","v_lshl_add_u32 v13, v14, 5, v13","v_lshrrev_b32 v14, 5, v2","v_lshl_add_u32 v13, v14, 4, v13",
         f"s_lshl_b32 s{sC}, s{sMt}, 1\ns_add_u32 s{sC}, s{sC}, s{sWm}", f"s_lshl_b32 s{sC}, s{sC}, 17\ns_lshl_b32 s52, s{sDt}, 8", f"s_add_u32 s{sC}, s{sC}, s52\ns_lshl_b32 s52, s{sJ}, 7",
         f"s_add_u32 s{sC}, s{sC}, s52\ns_lshl_b32 s52, s{sWf}, 6", f"s_add_u32 s{sC}, s{sC}, s52\ns_mov_b32 s58, 0"]
    def chk():
        A(f"v_max3_u32 v14, v{RB}, v{RB+1}, v{RB+2}")
        for r in range(3,15,2): A(f"v_max3_u32 v14, v14, v{RB+r}, v{RB+r+1}")
        A(f"v_max_u32 v14, v14, v{RB+15}\nv_cmp_eq_u32 vcc, -1, v14")
    if dual:
        for l in interleave(mfS(1,(0,1)), LDs(80)+adr): A(l)
        A("s_waitcnt vmcnt(4)"); chk()
        A("s_nop 4\ns_cbranch_vccz C3_ok\ns_waitcnt vmcnt(0)")
        for r in range(16): A(f"v_mov_b32 v{RB+r}, v{80+r}")
    else:
        x=interleave(mfS(1,(0,1)), adr[:ldpos]+LD+adr[ldpos:])
        if cw: x.insert(16,"s_waitcnt lgkmcnt(0)")
        for l in x: A(l)
    if diag and diag!=5: stamp(8)
    pad()
    A("s_branch C3_chk")
    A("C3_poll:")
    for l in LD: A(l)
    A("C3_chk:\ns_add_u32 s58, s58, 1\ns_waitcnt vmcnt(0)")
    chk()
    spin_tail("C3_poll")
    A("C3_ok:")
    stamp(7)
    if diag==4: A("s_mov_b32 s86, s58")
    A("s_mov_b32 s53, 0xffff0000")
    for i in range(4):
        D=128+4*i
        for n in range(2):
            S=ACC+(n*4+i)*4
            for h in range(2):
                Rr=RB+4*i+2*n+h
                A(f"v_lshlrev_b32 v{T}, 16, v{Rr}\nv_and_b32 v{T+1}, s53, v{Rr}\nv_pk_add_f32 {vr(S+2*h,2)}, {vr(S+2*h,2)}, {vr(T,2)}")
                A(f"v_cvt_pk_bf16_f32 v{D+2*n+h}, v{S+2*h}, v{S+2*h+1}")
        A(f"s_nop 1\nv_permlane16_swap_b32 v{D}, v{D+2}\nv_permlane16_swap_b32 v{D+1}, v{D+3}")
        A(f"buffer_store_dwordx4 {vr(D,4)}, v13, {R4(SO)}, s{sC} offen {outaux}")
        if i<3: A(f"s_add_u32 s{sC}, s{sC}, 0x8000")
        if i==0: pad()
    if diag:
        if diag!=5: stamp(9)
        A("s_waitcnt vmcnt(0)"); stamp(10); rstamp(15); flush(16,True)
    A("s_endpgm")
    if walk: A(PAD+"\ns_endpgm")
    for b in OOL: A(b)
    A("L_end:\ns_endpgm")
    A(f""".section .rodata,"a"
.p2align 6
.amdhsa_kernel {NAME}
  .amdhsa_next_free_vgpr 256
  .amdhsa_next_free_sgpr 96
  .amdhsa_accum_offset 256
  .amdhsa_group_segment_fixed_size 0
  .amdhsa_kernarg_size 48
  .amdhsa_user_sgpr_count 2
  .amdhsa_user_sgpr_kernarg_segment_ptr 1
  .amdhsa_system_sgpr_workgroup_id_x 1
.end_amdhsa_kernel""")
    txt=A.text()
    if walk:
        n=txt.count("@PAD@"); parts=txt.split("@PAD@")
        starts=[round(w*n/walk) for w in range(walk)]
        out=parts[0]
        for k in range(n):
            nxt="C_wret" if (k+1==n or k+1 in starts) else f"PAD{k+1}"
            out+=f"PAD{k}:\ns_cbranch_execz {nxt}"+parts[k+1]
        for w in range(walk): out=out.replace(f"@START{w}@",f"PAD{starts[w]}")
        txt=out
    return txt

if __name__=="__main__":
    import inspect
    p=argparse.ArgumentParser(); p.add_argument("-o")
    for k,v in inspect.signature(build).parameters.items():
        p.add_argument("--"+k,type=type(v.default),default=v.default)
    a=vars(p.parse_args()); o=a.pop("o")
    open(o,"w").write(build(**a))
```

```python
import sys, argparse
NAME="standalone__dense_activation_silu__prompt_kernel"
class Asm:
    def __init__(self): self.L=[]
    def __call__(self, s):
        for l in s.split("\n"): self.L.append(l)
    def text(self): return "\n".join(self.L)+"\n"
def vr(a,n): return f"v[{a}:{a+n-1}]"
def srd(A, d, b, nbytes):
    A(f"s_mov_b32 s{d}, s{b}\ns_and_b32 s{d+1}, s{b+1}, 0xffff\ns_mov_b32 s{d+2}, {nbytes}\ns_mov_b32 s{d+3}, 0x20000")
X_BYTES=2048*1024*2; W_BYTES=1024*3584*2; O_BYTES=2048*1024*2
H_OFF=0; P_OFF=24<<20; F_OFF=48<<20; T_OFF=64<<20
SX,SW1,SW2,SO,SD,SWS=16,20,24,28,32,36
sMt,sJ,sFt8,sFt,sLid,sXcd,sDt=40,41,42,43,44,45,63
OOB=0x7ffffff0
SPIN=1<<17
def R4(s): return f"s[{s}:{s+3}]"

def interleave(mf, rd):
    out=[]; k=0
    for m in mf:
        out.append(m)
        if k<len(rd): out.append(rd[k]); k+=1
    return out+rd[k:]
ORDER='ji'
def snake(JS,NI):
    JS=list(JS)
    if ORDER=='ij': return [(j,i) for i in range(NI) for j in (JS if i%2==0 else JS[::-1])]
    return [(j,(i if n%2==0 else NI-1-i)) for n,j in enumerate(JS) for i in range(NI)]

def build(diag=0, rot=1, pf1=0, pf2=1, pfc=1, outaux="sc1", pfa=13, dswz=0, w1aux="", xaux="", w2aux="", l1st=1, l2st=4, stag=1, l1epi=1, rmask=1, f3=9, skew2=1, pfb=0, stag2=1, remap=1, spa=0, spb=13, spn=4, ack=6, ldearly=1, pfi=0, w1s=6, sched=0, fch=6, pdelay=0, nb=4, clr0=0, dual=0, tlb=0, packfirst=1, spub=1, vpoll=0, hsi=12, hsglc='', cmask=1, cbase=1, walk=2, w2e=0, order='ji', esend=1, ldpos=0, fast=1, la1=0, hd=4, la2=0, npoll=2, tearly=2, nsh=0, two=0, tight2=1, tight1=1, lead=1, tl=0, tlw=16, tl0=0, sep=1, xp_it=0, xp_n=0, late=-1, sl2=0, cprio=1, pprio=0, al=3, pj=1, w6=0, late2=0, pcw=0, pipe=0, wsplit=0, cw=0, zc=0, wlate=0, pskip=0, wnw=0):
    global ORDER; ORDER=order
    assert ack+2!=hsi and tl not in (ack+5,hsi+3) and ack+2<=12 and (cbase+cmask<ack or sep) and nsh<=(4 if two else ack+2)
    A=Asm(); A_main=A; OOL=[]
    tm='s_memrealtime' if diag>=3 else 's_memtime'
    def stamp(k):
        if diag: A(f"{tm} s[{64+2*k}:{65+2*k}]")
    def rstamp(k):
        if diag: A(f"s_memrealtime s[{64+2*k}:{65+2*k}]")
    def sstamp():
        if diag==6: A(f"s_memtime s[90:91]\ns_memrealtime s[88:89]\ns_waitcnt lgkmcnt(0)\nv_writelane_b32 v254, s90, m0\nv_writelane_b32 v252, s88, m0\ns_add_u32 m0, m0, 1")
        if diag in (2,3): A(f"{tm} s[90:91]\ns_waitcnt lgkmcnt(0)\nv_writelane_b32 v254, s90, m0\ns_add_u32 m0, m0, 1")
    def flush(n, cons=False):
        if not diag: return
        if diag==5:
            ks=[6,8,9,1,2,4,5,10] if cons else [1,8,2,3,4,5]
            lab="DB_c" if cons else "DB_p"
            A(f"s_waitcnt lgkmcnt(0)\ns_and_b32 s60, s3, 3\ns_or_b32 s60, s60, s2\ns_cmp_eq_u32 s60, 0\ns_cbranch_scc0 {lab}\nv_lshlrev_b32 v1, 8, v2")
            for n_,k in enumerate(ks):
                A(f"s_sub_u32 s60, s{64+2*k}, s64\nv_mov_b32 v4, s60\nbuffer_store_dword v4, v1, {R4(SD)}, 0 offen offset:{4*(n_+(0 if cons else 8))} sc1")
            A(f"s_waitcnt vmcnt(0)\n{lab}:")
            return
        A(f"s_waitcnt lgkmcnt(0)\ns_lshl_b32 s60, s2, 3\ns_add_u32 s60, s60, s3\ns_lshl_b32 s60, s60, 8\ns_add_u32 s60, s60, {T_OFF}\nv_mov_b32 v1, 0")
        for k in range(n): A(f"v_mov_b32 v2, s{64+2*k}\nbuffer_store_dword v2, v1, {R4(SWS)}, s60 offen offset:{4*k}")
        if cons and diag>=2:
            A(f"v_and_b32 v1, 63, v0\nv_lshlrev_b32 v1, 2, v1\nv_mov_b32 v2, {OOB}\nv_cmp_gt_u32 vcc, 192, v1\ns_nop 1\nv_cndmask_b32 v1, v2, v1, vcc")
            A(f"buffer_store_dword v254, v1, {R4(SWS)}, s60 offen offset:64")
            if diag==6: A(f"s_add_u32 s60, s60, 0x80000\nbuffer_store_dword v252, v1, {R4(SWS)}, s60 offen offset:64")
        A("s_waitcnt vmcnt(0)")
    PAD='@PAD@' if walk else 's_nop 0'
    def pad():
        if walk: A(PAD)
    def spin_tail(label):
        A(f"s_cmp_lt_u32 s58, {SPIN}\ns_cselect_b64 s[60:61], -1, 0\ns_and_b64 vcc, vcc, s[60:61]\ns_cbranch_scc1 {label}")
    WST=28672; WOFF=65536
    QS=5120 if remap else 4096
    CH=2*QS
    def physline(dst,g,tmp,A=None):
        A=A or A_main
        if remap: A(f"v_add_u32 v{tmp}, 4, v{g}\nv_mul_u32_u24 v{tmp}, 37, v{tmp}\nv_lshrrev_b32 v{tmp}, 8, v{tmp}\nv_add_u32 v{tmp}, v{tmp}, v{g}\nv_lshlrev_b32 v{dst}, 7, v{tmp}")
        else: A(f"v_lshlrev_b32 v{dst}, 7, v{g}")
    def fragoffs(base,A=None,t=(4,5,6)):
        A=A or A_main
        A(f"v_and_b32 v{t[2]}, 7, v2\nv_lshlrev_b32 v{t[2]}, 4, v{t[2]}")
        for n in range(4):
            A(f"v_lshrrev_b32 v{t[1]}, 3, v2\nv_add_u32 v{t[1]}, {8*n}, v{t[1]}"); physline(base+n,t[1],t[0],A); A(f"v_add_u32 v{base+n}, v{base+n}, v{t[2]}")
    A("""; Fused feed-forward: out = silu(x @ w1) @ w2, bf16 in/out, fp32 accumulate.
; Kernarg (48 bytes): 0 x[2048,1024], 8 w1[1024,3584], 16 w2[3584,1024], 24 out[2048,1024], 32 debug(256B), 40 ws
; 256 workgroups, one per CU; waves 0-3 compute (MFMA), waves 4-7 stream tiles into LDS.
; @launch grid=(256,1,1) block=(512,1,1) lds="""+("163840" if w6 else "151552"))
    A('.amdgcn_target "amdgcn-amd-amdhsa--gfx950"\n.text')
    A(f".globl {NAME}\n.p2align 8\n.type {NAME},@function\n{NAME}:")
    A("s_load_dwordx8 s[4:11], s[0:1], 0\ns_load_dwordx4 s[12:15], s[0:1], 32")
    A("s_cmp_ge_u32 s2, 256\ns_cbranch_scc1 L_end")
    stamp(0); rstamp(14)
    if fast and pfc and pskip:
        A(f"v_lshrrev_b32 v1, 6, v0\nv_and_b32 v2, 63, v0\ns_cmp_lt_u32 s2, {pcw}\ns_cbranch_scc1 L_pfc\nL_pfcb:")
        PFC=(f"L_pfc:\ns_getpc_b64 s[54:55]\nC_pc:\nv_lshlrev_b32 v3, 7, v0\ns_sub_u32 s54, s54, C_pc-{NAME}\ns_subb_u32 s55, s55, 0\n"
             f"v_min_u32 v3, L_end-{NAME}, v3\ns_nop 0\nglobal_load_dword v255, v3, s[54:55]\ns_branch L_pfcb")
    elif fast and pfc:
        A(f"s_getpc_b64 s[54:55]\nC_pc:\nv_lshlrev_b32 v3, 7, v0\ns_sub_u32 s54, s54, C_pc-{NAME}\ns_subb_u32 s55, s55, 0")
        if pcw:
            A(f"s_cmp_lt_u32 s2, {pcw}\ns_cselect_b32 s3, L_end-{NAME}, 0\nv_min_u32 v3, s3, v3\nv_lshrrev_b32 v1, 6, v0\nglobal_load_dword v255, v3, s[54:55]\nv_and_b32 v2, 63, v0")
        else: A(f"v_min_u32 v3, L_end-{NAME}, v3\nv_lshrrev_b32 v1, 6, v0\nglobal_load_dword v255, v3, s[54:55]\nv_and_b32 v2, 63, v0")
    else: A("v_lshrrev_b32 v1, 6, v0\nv_and_b32 v2, 63, v0")
    A(f"v_readfirstlane_b32 s3, v1\ns_and_b32 s{sXcd}, s2, 7\ns_lshr_b32 s46, s2, 3")
    dec1=f"s_lshr_b32 s{sMt}, s{sXcd}, 1\ns_lshl_b32 s{sMt}, s{sMt}, 2\ns_lshr_b32 s47, s46, 3\ns_add_u32 s{sMt}, s{sMt}, s47\ns_and_b32 s{sJ}, s{sXcd}, 1"
    dec2=(f"s_and_b32 s{sFt8}, s46, 7\ns_lshl_b32 s{sFt}, s{sJ}, 3\ns_add_u32 s{sFt}, s{sFt}, s{sFt8}\n"
          f"s_lshl_b32 s{sLid}, s{sMt}, 4\ns_add_u32 s{sLid}, s{sLid}, s{sFt}\ns_xor_b32 s{sDt}, s{sJ}, 1\ns_mul_i32 s{sDt}, s{sDt}, {dswz}\ns_xor_b32 s{sDt}, s{sDt}, s{sFt8}")
    A(dec1); A(dec2)
    if fast and pf1==5:
        A("s_cmp_lt_u32 s3, 4\ns_cbranch_scc0 L_prod")
        A(f"s_lshr_b32 s58, s{sXcd}, 1\ns_lshl_b32 s59, s58, 2\ns_lshl_b32 s58, s58, 5\ns_add_u32 s58, s58, s46\ns_lshl_b32 s58, s58, 1\ns_add_u32 s58, s58, s{sJ}\ns_lshl_b32 s58, s58, 14")
        A("v_bfe_u32 v15, v0, 2, 3\nv_add_u32 v15, s59, v15\nv_and_b32 v15, 15, v15\nv_lshlrev_b32 v15, 7, v15\nv_lshrrev_b32 v14, 5, v0\nv_lshl_add_u32 v15, v14, 11, v15\nv_add_u32 v252, s58, v15")
        A("s_waitcnt lgkmcnt(0)\nglobal_load_dword v253, v252, s[4:5]\ns_branch L_cons")
        if pfc and pskip: A(PFC)
        A("L_prod:")
    elif fast and pf1==1:
        A("s_cmp_lt_u32 s3, 4\ns_cbranch_scc0 L_prod")
        A("v_lshrrev_b32 v15, 1, v0\ns_lshl_b32 s58, s2, 7\nv_add_u32 v15, s58, v15\nv_lshlrev_b32 v15, 7, v15\ns_waitcnt lgkmcnt(0)\nglobal_load_dword v253, v15, s[4:5]\ns_branch L_cons\nL_prod:")
    else:
        A("s_cmp_lt_u32 s3, 4\ns_cbranch_scc1 L_cons")
    sP,sKX,sKW,sLX,sLW,sRing,sCnt,sT0,sT1=46,47,48,49,50,51,52,53,54
    A(f"s_sub_u32 s{sP}, s3, 4")
    if pprio: A(f"s_setprio {pprio}")
    A("v_lshrrev_b32 v3, 3, v2\nv_and_b32 v4, 7, v2\nv_lshrrev_b32 v5, 4, v2\nv_xor_b32 v4, v4, v5\nv_lshlrev_b32 v4, 4, v4\nv_lshl_add_u32 v3, v3, 11, v4")
    A(f"s_lshl_b32 s{sT0}, s{sMt}, 18\ns_lshl_b32 s{sT1}, s{sP}, 16\ns_add_u32 s{sT0}, s{sT0}, s{sT1}\nv_add_u32 v8, s{sT0}, v3")
    A("v_xor_b32 v9, 64, v8\nv_add_u32 v9, 0x4000, v9\nv_add_u32 v10, 0x8000, v8\nv_add_u32 v11, 0x8000, v9")
    if not rot: A(f"s_mov_b32 s{sKX}, 0\ns_mov_b32 s{sKW}, 0")
    if rot:
        if rot in (1,2,4,5,6,7,8):
            if pj: A(f"s_lshr_b32 s{sT0}, s{sXcd}, 1\ns_lshl_b32 s{sT1}, s{sJ}, 1\ns_add_u32 s{sT0}, s{sT0}, s{sT1}\ns_and_b32 s{sT0}, s{sT0}, 3\ns_lshl_b32 s{sT0}, s{sT0}, 2")
            else: A(f"s_lshr_b32 s{sT0}, s{sXcd}, 1\ns_lshl_b32 s{sT0}, s{sT0}, 2")
            if rot==4: A(f"s_and_b32 s{sT0}, s{sT0}, 8")
        else: A(f"s_mov_b32 s{sT0}, 0")
        if rot>=5: A(f"s_mov_b32 s62, s{sT0}\ns_mov_b32 s60, 0\ns_mov_b32 s61, 0")
        if rot in (7,8): A(f"s_and_b32 s{sT1}, s{sMt}, 1\ns_lshl_b32 s{sT1}, s{sT1}, {rot-7}\ns_add_u32 s{sT0}, s{sT0}, s{sT1}")
        elif rot>=2: A(f"s_and_b32 s{sT1}, s{sMt}, 3\ns_add_u32 s{sT0}, s{sT0}, s{sT1}")
        A(f"s_lshl_b32 s{sKX}, s{sT0}, 7\ns_mul_i32 s{sKW}, s{sT0}, {64*7168}")
    sRX=57
    A(f"s_lshl_b32 s{sLX}, s{sP}, 12\ns_mov_b32 s{sRX}, 0\ns_mov_b32 s{SX+2}, {X_BYTES}\ns_mov_b32 s{SX+3}, 0x20000")
    A(f"s_waitcnt lgkmcnt(0)\ns_mov_b32 s{SX}, s4\ns_and_b32 s{SX+1}, s5, 0xffff")
    def nextk(c):
        if rot in (7,8):
            A(f"s_add_u32 s{c}, s{c}, 1\ns_and_b32 s{sT1}, s{c}, 8\ns_cselect_b32 s{sT0}, 1, 0\ns_xor_b32 s{sT0}, s{sT0}, s{sMt}\ns_and_b32 s{sT0}, s{sT0}, 1\ns_lshl_b32 s{sT0}, s{sT0}, {rot-7}\ns_add_u32 s{sT0}, s{sT0}, s{c}\ns_and_b32 s{sT0}, s{sT0}, 7")
            A(f"s_add_u32 s{sT0}, s{sT0}, s{sT1}\ns_add_u32 s{sT0}, s{sT0}, s62\ns_and_b32 s{sT0}, s{sT0}, 15")
            return
        if rot==6:
            A(f"s_add_u32 s{c}, s{c}, 1\ns_and_b32 s{sT1}, s{c}, 8\ns_cselect_b32 s{sT0}, 3, 0\ns_xor_b32 s{sT0}, s{sT0}, s{sMt}\ns_and_b32 s{sT0}, s{sT0}, 3\ns_add_u32 s{sT0}, s{sT0}, s{c}\ns_and_b32 s{sT0}, s{sT0}, 7")
            A(f"s_add_u32 s{sT0}, s{sT0}, s{sT1}\ns_add_u32 s{sT0}, s{sT0}, s62\ns_and_b32 s{sT0}, s{sT0}, 15")
            return
        A(f"s_add_u32 s{c}, s{c}, 1\ns_add_u32 s{sT0}, s{c}, s{sMt}\ns_and_b32 s{sT0}, s{sT0}, 3\ns_and_b32 s{sT1}, s{c}, 12\ns_add_u32 s{sT0}, s{sT0}, s{sT1}\ns_add_u32 s{sT0}, s{sT0}, s62\ns_and_b32 s{sT0}, s{sT0}, 15")
    def issueW1(part=None):
        inc=[1024,896,1024,896,1024,1280]
        ns=range(7) if part is None else (range(hd) if part==0 else range(hd,7))
        if part!=1: A(f"s_add_u32 m0, s{sRing}, s{sLW}\ns_add_u32 s{sRing}, s{sRing}, {WST}")
        else: A("s_mov_b32 m0, s1\ns_nop 0")
        for n in ns:
            a,o=n>>1,n&1
            if n<6:
                A(f"buffer_load_dwordx4 v{13+o}, {R4(SW1)}, s{sKW} offen offset:{a*128} {w1aux} lds")
                if part==0 and n==hd-1: A(f"s_add_u32 s1, m0, {inc[n]}")
                else:
                    A(f"s_add_u32 m0, m0, {inc[n]}")
                    A("s_nop 0" if n else f"s_cmp_eq_u32 s{sRing}, {WST*3}\ns_cselect_b32 s{sRing}, 0, s{sRing}")
            else:
                A(f"buffer_load_dwordx4 v12, {R4(SW1)}, s{sKW} offen {w1aux} lds\ns_add_u32 s{sKW}, s{sKW}, {64*7168}")
                if rot>=5:
                    nextk(60); A(f"s_mul_i32 s{sKW}, s{sT0}, {64*7168}\ns_add_u32 s{sKW}, s{sKW}, s59")
                elif rot: A(f"s_cmp_eq_u32 s{sKW}, s58\ns_cselect_b32 s{sKW}, s59, s{sKW}")
    def issueX():
        A(f"s_add_u32 m0, s{sRX}, s{sLX}\ns_add_u32 s{sRX}, s{sRX}, 16384")
        for n in range(4):
            A(f"buffer_load_dwordx4 v{8+n}, {R4(SX)}, s{sKX} offen {xaux} lds")
            if n<3: A("s_add_u32 m0, m0, 1024\n"+("s_nop 0" if n else f"s_and_b32 s{sRX}, s{sRX}, 0xffff"))
        if tight1: pass
        elif rot>=5:
            nextk(61); A(f"s_lshl_b32 s{sKX}, s{sT0}, 7")
        else: A(f"s_add_u32 s{sKX}, s{sKX}, 128\ns_and_b32 s{sKX}, s{sKX}, 2047")
    stamp(1)
    issueX()
    A(f"s_and_b32 s{sT0}, s{sFt8}, 1\ns_lshl_b32 s{sT1}, s{sT0}, 6")
    A("v_bfe_u32 v3, v2, 2, 3\nv_mul_u32_u24 v3, 7168, v3\nv_lshrrev_b32 v5, 5, v2\nv_and_b32 v4, 3, v2\nv_lshlrev_b32 v4, 4, v4")
    A(f"v_lshl_add_u32 v6, v5, 6, v3\nv_add3_u32 v13, v6, v4, s{sT1}\nv_xor_b32 v14, 32, v13\nv_add_u32 v14, {8*7168}, v14")
    A(f"s_xor_b32 s{sT0}, s{sT0}, 1\ns_mul_i32 s{sT0}, s{sT0}, 384\nv_lshrrev_b32 v3, 2, v2\nv_mul_u32_u24 v3, 7168, v3\nv_lshlrev_b32 v5, 5, v5\nv_xor_b32 v4, v4, v5\nv_add3_u32 v12, v3, v4, s{sT0}")
    A(f"s_mul_i32 s59, s{sP}, {16*7168}\ns_mul_i32 s{sT0}, s{sFt}, 448\ns_add_u32 s59, s59, s{sT0}\ns_add_u32 s{sKW}, s{sKW}, s59\ns_add_u32 s58, s59, {1024*7168}")
    A(f"s_mul_i32 s{sLW}, s{sP}, 7168\ns_add_u32 s{sLW}, s{sLW}, {WOFF}\ns_mov_b32 s{sRing}, {2*WST}")
    srd(A,SW1,6,W_BYTES)
    if la1 or tearly: issueW1(0)
    else: issueW1(); issueX(); issueW1()
    srd(A,SW2,8,W_BYTES); srd(A,SWS,14,0x10000000)
    if diag==5: srd(A,SD,12,256)
    sHp,sHalf=55,56
    if tlb:
        A(f"s_cmp_lt_u32 s2, {tlb}\ns_cbranch_scc0 P1_ntlb\ns_lshl_b32 s{sT0}, s{sP}, 21")
        A(f"s_add_u32 s4, s8, s{sT0}\ns_addc_u32 s5, s9, 0\ns_load_dword s0, s[4:5], 0")
        A(f"s_lshr_b32 s{sT1}, s{sT0}, 1\ns_add_u32 s4, s10, s{sT1}\ns_addc_u32 s5, s11, 0\ns_load_dword s0, s[4:5], 0")
        for b in (0, 8<<20, 16<<20, P_OFF, F_OFF):
            A(f"s_add_u32 s{sT1}, s{sT0}, {b}\ns_add_u32 s4, s14, s{sT1}\ns_addc_u32 s5, s15, 0\ns_load_dword s0, s[4:5], 0")
        A("P1_ntlb:")
    if tl0:
        A(f"s_cmp_lt_u32 s2, {tlw}\ns_cbranch_scc0 P1_nt0\ns_lshl_b32 s{sT0}, s{sP}, 21\ns_add_u32 s{sT0}, s{sT0}, {P_OFF}\ns_cmp_eq_u32 s{sP}, 3\ns_cselect_b32 s{sT0}, {F_OFF}, s{sT0}")
        A(f"s_add_u32 s4, s14, s{sT0}\ns_addc_u32 s5, s15, 0\ns_load_dword s0, s[4:5], 0\nP1_nt0:")
    A(f"s_lshr_b32 s4, s{sLid}, 3\ns_lshl_b32 s4, s4, 10\ns_add_u32 s4, s4, {F_OFF+fch*128}\ns_add_u32 s4, s14, s4\ns_addc_u32 s5, s15, 0")
    A(f"s_lshl_b32 s6, s{sMt}, 4\ns_add_u32 s6, s12, s6\ns_addc_u32 s7, s13, 0")
    def spf():
        if pf2 not in (3,4): return
        for k in range(4): A(f"s_load_dword s12, s[8:9], {k*64}")
        A(f"s_add_u32 s13, s13, 1\ns_and_b32 s{sT0}, s13, 7\ns_cselect_b32 s{sT0}, 0, {131072-2048}\ns_add_u32 s{sT0}, s{sT0}, 256\ns_add_u32 s8, s8, s{sT0}\ns_addc_u32 s9, s9, 0")
    if pf2 in (3,4):
        A(f"s_lshl_b32 s12, s2, 2\ns_add_u32 s12, s12, s{sP}")
        A(f"s_lshr_b32 s{sT0}, s12, 6\ns_mul_i32 s13, s{sT0}, 7\ns_and_b32 s{sT0}, s{sT0}, 1")
        A(f"s_xor_b32 s{sT1}, s{sT0}, 1\ns_mul_i32 s{sT1}, s{sT1}, 6\ns_add_u32 s{sT1}, s{sT1}, s13\ns_lshl_b32 s{sT1}, s{sT1}, 16\ns_and_b32 s14, s12, 63\ns_lshl_b32 s14, s14, 10\ns_add_u32 s{sT1}, s{sT1}, s14")
        A(f"s_add_u32 s14, s8, s{sT1}\ns_addc_u32 s15, s9, 0")
        A(f"s_add_u32 s13, s13, s{sT0}\ns_lshl_b32 s13, s13, 16\ns_and_b32 s12, s12, 63\ns_lshl_b32 s12, s12, 11\ns_add_u32 s13, s13, s12\ns_add_u32 s8, s8, s13\ns_addc_u32 s9, s9, 0\ns_mov_b32 s13, 0")
    A(f"s_lshr_b32 s{sHp}, s{sP}, 1\ns_and_b32 s{sHalf}, s{sP}, 1")
    A("v_subrev_u32 v5, 3, v2\nv_mul_u32_u24 v3, 37, v5\nv_lshrrev_b32 v3, 8, v3\nv_mul_u32_u24 v4, 7, v3\nv_sub_u32 v4, v5, v4")
    if skew2==3: A(f"v_add_u32 v6, s{sMt}, v3\nv_and_b32 v6, 3, v6\nv_add_u32 v4, v6, v4\nv_subrev_u32 v6, 7, v4\nv_min_u32 v4, v4, v6")
    elif skew2: A(f"s_and_b32 s{sT0}, s{sMt}, 3\ns_mul_i32 s{sT0}, s{sT0}, {3-skew2}\nv_add_u32 v4, s{sT0}, v4\nv_subrev_u32 v6, 7, v4\nv_min_u32 v4, v4, v6")
    A("v_add_u32 v4, 1, v4")
    A("v_cmp_gt_u32 vcc, 3, v2\ns_nop 1\nv_cndmask_b32 v3, v3, v2, vcc\nv_cndmask_b32 v4, v4, 0, vcc")
    A(f"v_add_u32 v4, s{sFt8}, v4\nv_and_b32 v4, 7, v4\nv_and_b32 v6, 1, v4\nv_mul_u32_u24 v4, 7, v4\nv_lshl_add_u32 v4, v3, 1, v4\nv_add3_u32 v4, v4, v6, s{sHp}")
    A(f"s_and_b32 s{sT0}, s{sMt}, {3 if skew2 else 0}\nv_add_u32 v5, s{sT0}, v2\nv_and_b32 v5, 3, v5\nv_mul_u32_u24 v5, 14, v5\nv_add3_u32 v5, v5, 6, s{sHp}")
    A("v_cmp_gt_u32 vcc, 24, v2\ns_nop 1\nv_cndmask_b32 v4, v5, v4, vcc\nv_and_b32 v4, 63, v4")
    A(f"s_mul_i32 s{sT0}, s{sJ}, 56\nv_add_u32 v4, s{sT0}, v4")
    A(f"s_mul_i32 s{sT0}, s{sMt}, {112*CH}\ns_mul_i32 s{sT1}, s{sHalf}, {QS}\ns_add_u32 s{sT0}, s{sT0}, s{sT1}")
    A(f"v_mul_u32_u24 v20, {CH}, v4\nv_add_u32 v20, s{sT0}, v20")
    A(f"s_lshl_b32 s{sT0}, s{sHalf}, 15\ns_lshl_b32 s{sT1}, s{sHalf}, 13\nv_mov_b32 v5, s{sT0}\nv_mov_b32 v6, s{sT1}\nv_cndmask_b32 v5, v6, v5, vcc")
    A(f"v_lshl_add_u32 v21, v4, 16, v5\ns_lshl_b32 s{sT0}, s{sDt}, 8\nv_add_u32 v21, s{sT0}, v21")
    A("v_and_b32 v4, 3, v2\nv_bfe_u32 v5, v2, 4, 1\nv_lshlrev_b32 v6, 1, v5\nv_xor_b32 v4, v4, v6\nv_lshlrev_b32 v4, 4, v4")
    A("v_lshrrev_b32 v6, 5, v2\nv_lshl_add_u32 v4, v6, 6, v4")
    A("v_bfe_u32 v6, v2, 2, 3\nv_lshl_add_u32 v22, v6, 11, v4\nv_add_u32 v23, 0x4000, v22")
    A("v_lshl_add_u32 v24, v5, 13, v22\nv_add_u32 v25, 0x8000, v24")
    fragoffs(26)
    if tight1:
        assert rot==8 and tearly==2 and not nsh and not la1 and spub and hsi and not two
        A(f"v_bfe_u32 v3, v2, 3, 1\nv_xor_b32 v3, s{sMt}, v3\nv_and_b32 v3, 1, v3\nv_lshl_add_u32 v3, v3, 1, v2\nv_and_b32 v3, 7, v3\nv_and_b32 v4, 8, v2\nv_add3_u32 v3, v3, v4, s62\nv_and_b32 v3, 15, v3")
        A(f"v_lshlrev_b32 v30, 7, v3\nv_mul_u32_u24 v31, {64*7168}, v3\nv_add_u32 v31, s59, v31")
    if diag==5: stamp(8)
    if tight1:
        xl=[f"buffer_load_dwordx4 v{8+n}, {R4(SX)}, s{sKX} offen {xaux} lds" for n in range(4)]
        wl=[f"buffer_load_dwordx4 v{13+(n&1)}, {R4(SW1)}, s{sKW} offen offset:{(n>>1)*128} {w1aux} lds" for n in range(6)]+[f"buffer_load_dwordx4 v12, {R4(SW1)}, s{sKW} offen {w1aux} lds"]
        inc=[1024,896,1024,896,1024,1280]
        def Wt(): A(f"s_mov_b32 m0, s1\ns_nop 0\n{wl[4]}\ns_add_u32 m0, m0, {inc[4]}\ns_nop 0\n{wl[5]}\ns_add_u32 m0, m0, {inc[5]}\ns_nop 0\n{wl[6]}")
        def Xs(fill):
            A(f"s_add_u32 m0, s{sRX}, s{sLX}\ns_add_u32 s{sRX}, s{sRX}, 16384")
            for n in range(4):
                A(xl[n])
                if n<3: A(f"s_add_u32 m0, m0, 1024\n{fill[n]}")
        assert hd==4
        andx=f"s_and_b32 s{sRX}, s{sRX}, 0xffff"
        A(f"v_readlane_b32 s{sKX}, v30, 1")
        Wt(); Xs([f"v_readlane_b32 s{sKW}, v31, 1", andx, "s_nop 0"])
        issueW1(0)
        A(f"v_readlane_b32 s{sKX}, v30, 2\ns_waitcnt vmcnt(8)")
        stamp(2)
        A("s_barrier")
        Wt(); Xs([f"v_readlane_b32 s{sKW}, v31, 2", andx, f"s_mov_b32 s{sCnt}, 2"])
        A(f"s_mov_b32 s61, {(1<<(ack+2+3))|(1<<(hsi+3))|((1<<tl) if tl else 0)}\ns_add_u32 m0, s{sRing}, s{sLW}\ns_branch P1_w")
        A(f".p2align {al}\nP1_loop:")
        A(f"s_bitcmp1_b32 s61, s{sCnt}\ns_cbranch_scc1 P1_hk\nP1_hkb:")
        Xs([f"v_readlane_b32 s{sKW}, v31, s{sCnt}", andx, "s_nop 0"])
        A(f"s_add_u32 m0, s{sRing}, s{sLW}\ns_waitcnt vmcnt(15)\ns_barrier\nP1_w:")
        fill=[f"s_add_u32 s{sCnt}, s{sCnt}, 1", f"s_add_u32 s{sRing}, s{sRing}, {WST}", f"v_readlane_b32 s{sKX}, v30, s{sCnt}",
              f"s_cmp_eq_u32 s{sRing}, {WST*3}\ns_cselect_b32 s{sRing}, 0, s{sRing}", "s_nop 0", f"s_cmp_lt_u32 s{sCnt}, 16"]
        for n in range(7):
            A(wl[n])
            if n<6: A(f"s_add_u32 m0, m0, {inc[n]}\n{fill[n]}")
        A("s_cbranch_scc1 P1_loop\ns_branch P1_done")
        A("P1_hk:")
        if tl:
            A(f"s_cmp_eq_u32 s{sCnt}, {tl}\ns_cbranch_scc0 P1_hk0\ns_cmp_lt_u32 s2, {tlw}\ns_cbranch_scc0 P1_hkb\ns_lshl_b32 s{sT0}, s{sP}, 21")
            A(f"s_add_u32 s12, s8, s{sT0}\ns_addc_u32 s13, s9, 0\ns_load_dword s0, s[12:13], 0")
            A(f"s_lshr_b32 s{sT1}, s{sT0}, 1\ns_add_u32 s12, s10, s{sT1}\ns_addc_u32 s13, s11, 0\ns_load_dword s0, s[12:13], 0")
            for b in (0, 8<<20, 16<<20):
                A(f"s_add_u32 s{sT1}, s{sT0}, {b}\ns_add_u32 s12, s14, s{sT1}\ns_addc_u32 s13, s15, 0\ns_load_dword s0, s[12:13], 0")
            A("s_branch P1_hkb\nP1_hk0:")
        A(f"s_cmp_eq_u32 s{sCnt}, {hsi+3}\ns_cbranch_scc0 P1_hk1\ns_cmp_eq_u32 s{sP}, 0\ns_cbranch_scc0 P1_hkb\ns_load_dwordx4 s[28:31], s[6:7], 0 {hsglc}\ns_branch P1_hkb")
        if lead: A(f"P1_hk1:\ns_lshl_b32 s1, s{sFt}, 2\ns_add_u32 s1, s1, s{sP}\ns_cmp_eq_u32 s1, 2\ns_cbranch_scc0 P1_hkb\ns_mov_b32 s1, 1\ns_atomic_or s1, s[6:7], 0\ns_branch P1_hkb")
        else: A(f"P1_hk1:\ns_cmp_eq_u32 s{sP}, 2\ns_cbranch_scc0 P1_hkb\ns_and_b32 s1, s{sFt}, 3\ns_lshl_b32 s1, s1, 3\ns_lshl_b32 s1, 1, s1\ns_and_b32 s{sT0}, s{sFt}, 12\ns_atomic_or s1, s[6:7], s{sT0}\ns_branch P1_hkb")
        A("P1_done:")
        pad()
    else:
        if la1:
            A(f"s_mov_b32 s{sCnt}, -1\ns_branch P1_in")
            A(f"P1_loop:\ns_waitcnt vmcnt({4+hd})")
            if diag: A(f"s_cmp_eq_u32 s{sCnt}, 0\ns_cbranch_scc0 P1_ns"); stamp(2); A("P1_ns:")
            A("s_barrier\nP1_in:")
            issueW1(1); issueX(); issueW1(0)
        else:
            if nsh:
                A(f"s_mov_b32 s{sCnt}, -1\ns_branch P1_shin\nP1_sh:\ns_waitcnt vmcnt({4+hd})")
                if diag: A(f"s_cmp_eq_u32 s{sCnt}, 0\ns_cbranch_scc0 P1_ns"); stamp(2); A("P1_ns:")
                A("s_barrier\nP1_shin:")
                issueW1(1); issueX()
                A(f"s_cmp_eq_u32 s{sCnt}, {nsh}\ns_cbranch_scc1 P1_in")
                issueW1(0)
                A(f"s_add_u32 s{sCnt}, s{sCnt}, 1\ns_branch P1_sh")
            else:
                if tearly==1: issueW1(1); issueX(); issueW1()
                if tearly==2: issueW1(1); issueX(); issueW1(0)
                A(f"s_waitcnt vmcnt({4+hd if tearly==2 else 11})")
                stamp(2)
                A("s_barrier")
                if tearly==2: issueW1(1)
                issueX()
                A(f"s_mov_b32 s{sCnt}, 0\ns_branch P1_in")
            A("P1_loop:\ns_waitcnt vmcnt(15)\ns_barrier\nP1_in:")
            issueW1(); issueX()
        if spub and two:
            A(f"s_lshl_b32 s{sT0}, s{sP}, 8\ns_add_u32 s{sT0}, s{sT0}, s{sCnt}\ns_cmp_eq_u32 s{sT0}, {512+4}\ns_cselect_b32 s0, 1, 0\ns_cmp_eq_u32 s{sT0}, {512+ack+2}\ns_cselect_b32 s0, 2, s0\ns_cmp_eq_u32 s0, 0\ns_cbranch_scc1 P1_npub")
            A(f"s_and_b32 s{sT0}, s{sFt}, 3\ns_lshl_b32 s{sT0}, s{sT0}, 3\ns_lshl_b32 s0, s0, s{sT0}\ns_and_b32 s{sT0}, s{sFt}, 12\ns_atomic_or s0, s[6:7], s{sT0}\nP1_npub:")
        elif spub:
            A(f"s_lshl_b32 s{sT0}, s{sP}, 8\ns_add_u32 s{sT0}, s{sT0}, s{sCnt}\ns_cmp_eq_u32 s{sT0}, {512+ack+2}\ns_cbranch_scc0 P1_npub")
            A(f"s_and_b32 s0, s{sFt}, 3\ns_lshl_b32 s0, s0, 3\ns_lshl_b32 s0, 1, s0\ns_and_b32 s{sT0}, s{sFt}, 12\ns_atomic_or s0, s[6:7], s{sT0}\nP1_npub:")
        if hsi:
            assert pf2 not in (3,4)
            A(f"s_lshl_b32 s{sT0}, s{sP}, 8\ns_add_u32 s{sT0}, s{sT0}, s{sCnt}\ns_cmp_eq_u32 s{sT0}, {hsi}\ns_cbranch_scc0 P1_nh\ns_load_dwordx4 s[28:31], s[6:7], 0 {hsglc}\nP1_nh:")
        if pf2==4:
            spf()
            A(f"s_cmp_lt_u32 s{sCnt}, 3\ns_cbranch_scc0 P1_nspf")
            spf()
            A("P1_nspf:")
        if pf2==3:
            A(f"s_sub_u32 s{sT0}, s{sCnt}, {spa}\ns_cmp_lt_u32 s{sT0}, {spb-spa}\ns_cbranch_scc0 P1_nspf")
            spf()
            A("P1_nspf:")
        A(f"s_add_u32 s{sCnt}, s{sCnt}, 1\ns_cmp_lt_u32 s{sCnt}, {14 if la1 else 13}\ns_cbranch_scc1 P1_loop")
        pad()
        A(f"s_waitcnt vmcnt({4+hd if la1 else 15})\ns_barrier")
        issueW1(1 if la1 else None)
    sW,sH,sSlot,sLW2,sLH=47,48,51,50,49
    A(f"s_lshl_b32 s{sLH}, s{sP}, 12\ns_add_u32 s{sLW2}, s{sLH}, 65536\ns_mov_b32 s{sCnt}, 0\ns_mov_b32 s{sSlot}, 0")
    def issueW():
        A(f"s_add_u32 m0, s{sLW2}, s{sSlot}\ns_nop 0")
        for n in range(4):
            o,tb=n>>1,n&1
            A(f"buffer_load_dwordx4 v{22+o}, {R4(SW2)}, s{sW} offen offset:{tb*128} {w2aux} lds")
            if n<3: A(f"s_add_u32 m0, m0, {896 if tb==0 else 1024+128}\ns_nop 0")
    def issueH():
        A(f"s_add_u32 m0, s{sLH}, s{sSlot}\ns_nop 0")
        for n in range(4):
            A(f"buffer_load_dwordx4 v{26+n}, {R4(SWS)}, s{sH} offen sc1 lds")
            if n<3: A("s_add_u32 m0, m0, 1024\ns_nop 0")
    A(f"v_readlane_b32 s{sW}, v21, 0")
    if not la1: A("s_waitcnt vmcnt(7)\ns_barrier")
    if not hsi: A(f"s_cmp_eq_u32 s{sP}, 0\ns_cbranch_scc0 P2_nh\ns_load_dwordx4 s[28:31], s[6:7], 0 glc\nP2_nh:")
    A("s_waitcnt vmcnt(0)\ns_barrier")
    def nextW(): A(f"s_add_u32 s{sCnt}, s{sCnt}, 1\ns_add_u32 s{sSlot}, s{sSlot}, 16384\nv_readlane_b32 s{sW}, v21, s{sCnt}\ns_nop 2")
    if w2e:
        A("s_branch P2_w0\nP2_w:"); nextW(); A("P2_w0:"); issueW()
        A(f"s_cmp_lt_u32 s{sCnt}, {w2e}\ns_cbranch_scc1 P2_w")
        A("s_barrier")
        pad()
        A("P2_w2:"); nextW(); issueW()
        A(f"s_cmp_lt_u32 s{sCnt}, 3\ns_cbranch_scc1 P2_w2")
    else:
        issueW()
        A("s_barrier")
        pad()
        A("P2_w:"); nextW(); issueW()
        A(f"s_cmp_lt_u32 s{sCnt}, {5 if w6==1 else 3}\ns_cbranch_scc1 P2_w")
    A(f"s_cmp_eq_u32 s{sP}, 0\ns_cbranch_scc0 P2_hsd\ns_mov_b32 s58, 0\ns_branch P2_hsw")
    A("P2_hs:\ns_load_dwordx4 s[28:31], s[6:7], 0 glc\ns_add_u32 s58, s58, 1\nP2_hsw:\ns_waitcnt lgkmcnt(0)")
    if lead: A(f"s_cmp_ge_u32 s58, {SPIN}\ns_cbranch_scc1 P2_hsd\ns_cmp_eq_u32 s28, 1\ns_cbranch_scc0 P2_hs\nP2_hsd:")
    else:
        A(f"s_and_b32 s28, s28, s29\ns_and_b32 s30, s30, s31\ns_and_b32 s28, s28, s30\ns_and_b32 s28, s28, 0x01010101\ns_cmp_ge_u32 s58, {SPIN}\ns_cbranch_scc1 P2_hsd\ns_cmp_eq_u32 s28, 0x01010101\ns_cbranch_scc0 P2_hs\nP2_hsd:")
    A(f"s_lshr_b32 s59, s{sLid}, 3\ns_lshl_b32 s59, s59, 10\ns_add_u32 s59, s59, {F_OFF+fch*128}\ns_lshl_b32 s{sT0}, s{sFt8}, 2")
    A(f"v_mov_b32 v5, {OOB}\nv_mov_b32 v6, s{sT0}\nv_cmp_eq_u32 vcc, 0, v2\nv_and_b32 v3, 7, v2\nv_lshlrev_b32 v3, 2, v3\nv_cndmask_b32 v6, v5, v6, vcc\nv_mov_b32 v5, 1")
    A(f"v_readlane_b32 s{sH}, v20, 3\ns_waitcnt vmcnt({20 if w6==1 else 12})")
    stamp(3)
    A("s_barrier")
    stamp(6)
    A(f"s_cmp_eq_u32 s{sP}, 1\ns_cbranch_scc0 P2_nf\nbuffer_store_dword v5, v6, {R4(SWS)}, s59 offen sc1\ns_nop 1\nv_mov_b32 v5, 7\nP2_nf:")
    if w6==2:
        A("P2_w45:"); nextW(); issueW()
        A(f"s_cmp_lt_u32 s{sCnt}, 5\ns_cbranch_scc1 P2_w45")
    A(f"s_mov_b32 s62, 0\ns_cmp_eq_u32 s{sP}, 0\ns_cbranch_scc1 P2_p0\ns_waitcnt vmcnt({8 if w6==2 else 0})\ns_branch P2_go\nP2_p0:\ns_mov_b32 s58, 0")
    if pdelay: A(f"s_mov_b32 s16, 0\nP2_dl:\ns_add_u32 s16, s16, 1\ns_cmp_lt_u32 s16, {pdelay}\ns_cbranch_scc1 P2_dl")
    stamp(7)
    if vpoll:
        A(f"P2_l1:\nbuffer_load_dword v4, v3, {R4(SWS)}, s59 offen sc1\ns_add_u32 s58, s58, 1\ns_waitcnt vmcnt(0)\nv_cmp_eq_u32 vcc, 0, v4")
        spin_tail("P2_l1")
    else:
        A("P2_l1:\ns_load_dwordx8 s[16:23], s[4:5], 0 glc\ns_add_u32 s58, s58, 1\ns_waitcnt lgkmcnt(0)")
        A("s_and_b64 s[16:17], s[16:17], s[18:19]\ns_and_b64 s[20:21], s[20:21], s[22:23]\ns_and_b64 s[16:17], s[16:17], s[20:21]\ns_and_b32 s16, s16, s17")
        A(f"s_cmp_ge_u32 s58, {SPIN}\ns_cbranch_scc1 P2_rdy\ns_bitcmp1_b32 s16, 0\ns_cbranch_scc1 P2_rdy")
        if la2: A(f"s_cmp_eq_u32 s58, {npoll}\ns_cbranch_scc0 P2_l1\ns_waitcnt vmcnt(0)\ns_barrier\ns_mov_b32 s62, 1")
        A("s_branch P2_l1")
    A("P2_rdy:")
    if diag and diag!=5: stamp(9); A("s_mov_b32 s80, s58")
    A(f"s_mov_b32 m0, 49152\ns_mov_b32 s58, 0")
    A("P2_h3:")
    for n in range(4): A(f"buffer_load_dwordx4 v{26+n}, {R4(SWS)}, s{sH} offen sc1 lds\ns_add_u32 m0, m0, 1024\n"+("s_nop 0" if n<3 else f"s_add_u32 s{sH}, s{sH}, {QS}"))
    A("s_add_u32 s58, s58, 1\ns_cmp_lt_u32 s58, 4\ns_cbranch_scc1 P2_h3")
    A("P2_go:")
    pad()
    stamp(4)
    PL=f"buffer_load_dword v4, v3, {R4(SWS)}, s59 offen sc1"
    POOL=[]
    if tight2:
        assert not la2 and not two and pf2 not in (3,4) and l1epi==3
        mask=(1<<(l1st+5))|(1<<9)|(1<<(8 if sl2 else 10))|(1<<(21 if w6 else 23))|(((1<<14)|(1<<20)) if lead else 0)
        wl=[f"buffer_load_dwordx4 v{22+(n>>1)}, {R4(SW2)}, s{sW} offen offset:{(n&1)*128} {w2aux} lds" for n in range(4)]
        hl=[f"buffer_load_dwordx4 v{26+n}, {R4(SWS)}, s{sH} offen sc1 lds" for n in range(4)]
        if w6:
            sWs=62
            A(f"s_mov_b32 s{sCnt}, 4\ns_mov_b32 s57, {mask}\nv_readlane_b32 s{sW}, v21, 6\ns_mov_b32 s{sSlot}, 0\ns_mov_b32 s{sWs}, 0\ns_mov_b32 m0, s{sLW2}\ns_branch P2_bar")
            A(f".p2align {al}\nP2_loop:")
            A(f"s_bitcmp1_b32 s57, s{sCnt}\ns_cbranch_scc1 P2_hk\nP2_hkb:")
            def Hs(f):
                A(f"s_add_u32 m0, s{sLH}, s{sSlot}\ns_add_u32 s{sCnt}, s{sCnt}, 1")
                A(f"{hl[0]}\ns_add_u32 m0, m0, 1024\n{f[0]}")
                A(f"{hl[1]}\ns_add_u32 m0, m0, 1024\ns_add_u32 s{sSlot}, s{sSlot}, 16384")
                A(f"{hl[2]}\ns_add_u32 m0, m0, 1024\ns_and_b32 s{sSlot}, s{sSlot}, 0xffff")
                A(hl[3])
            Hs([f"v_readlane_b32 s{sW}, v21, s{sT1}"])
            A(f"s_add_u32 m0, s{sLW2}, s{sWs}\nP2_bar:\ns_waitcnt vmcnt(16)\ns_barrier")
            A(f"s_cmp_lt_u32 s{sCnt}, 26\ns_cbranch_scc0 P2_out")
            A(f"{wl[0]}\ns_add_u32 m0, m0, 896\nv_readlane_b32 s{sH}, v20, s{sCnt}")
            A(f"{wl[1]}\ns_add_u32 m0, m0, 1152\ns_add_u32 s{sWs}, s{sWs}, 16384")
            A(f"{wl[2]}\ns_add_u32 m0, m0, 896\ns_add_u32 s{sT1}, s{sCnt}, 3")
            A(f"{wl[3]}\ns_cmp_eq_u32 s{sWs}, {6*16384}\ns_cselect_b32 s{sWs}, 0, s{sWs}\ns_branch P2_loop")
        else:
            A(f"s_mov_b32 s{sCnt}, 4\ns_mov_b32 s57, {mask}\nv_readlane_b32 s{sW}, v21, 4\ns_mov_b32 s{sSlot}, 0\ns_mov_b32 m0, s{sLW2}\ns_branch P2_bar")
            A(f".p2align {al}\nP2_loop:")
            A(f"s_bitcmp1_b32 s57, s{sCnt}\ns_cbranch_scc1 P2_hk\nP2_hkb:")
            A(f"s_add_u32 m0, s{sLH}, s{sSlot}\ns_add_u32 s{sCnt}, s{sCnt}, 1")
            A(f"{hl[0]}\ns_add_u32 m0, m0, 1024\nv_readlane_b32 s{sW}, v21, s{sCnt}")
            A(f"{hl[1]}\ns_add_u32 m0, m0, 1024\ns_add_u32 s{sSlot}, s{sSlot}, 16384")
            A(f"{hl[2]}\ns_add_u32 m0, m0, 1024\ns_and_b32 s{sSlot}, s{sSlot}, 0xffff")
            A(f"{hl[3]}\ns_add_u32 m0, s{sLW2}, s{sSlot}\nP2_bar:\ns_waitcnt vmcnt(16)\ns_barrier")
            A(f"s_cmp_lt_u32 s{sCnt}, {24 if wsplit else 28}\ns_cbranch_scc0 P2_out")
            A(f"{wl[0]}\ns_add_u32 m0, m0, 896\nv_readlane_b32 s{sH}, v20, s{sCnt}")
            A(f"{wl[1]}\ns_add_u32 m0, m0, 1152\ns_nop 0")
            A(f"{wl[2]}\ns_add_u32 m0, m0, 896\ns_nop 0")
            A(f"{wl[3]}\ns_branch P2_loop")
        A("P2_hk:"); pad()
        A(f"s_cmp_eq_u32 s{sCnt}, {21 if w6 else 23}\ns_cbranch_scc0 P2_hk1\nv_mov_b32 v22, v24\nv_mov_b32 v23, v25\ns_branch P2_hkb")
        A("P2_hk1:")
        if lead:
            A(f"s_cmp_lt_u32 s{sCnt}, 14\ns_cbranch_scc1 P2_hk1a\ns_cmp_eq_u32 s{sP}, 0\ns_cbranch_scc0 P2_hkb\ns_mov_b32 s58, 0\ns_cmp_eq_u32 s{sCnt}, 20\ns_cbranch_scc1 P2_pw")
            A(f"s_xor_b32 s4, s4, 1024\ns_xor_b32 s{sT0}, s{sFt8}, {dswz}\ns_lshl_b32 s{sT0}, s{sT0}, 2\ns_add_u32 s4, s4, s{sT0}\ns_load_dword s28, s[4:5], 0 glc\ns_branch P2_hkb")
            A(f"P2_pl:\ns_load_dword s28, s[4:5], 0 glc\ns_add_u32 s58, s58, 1\nP2_pw:\ns_waitcnt lgkmcnt(0)\ns_cmp_ge_u32 s58, {SPIN}\ns_cbranch_scc1 P2_hkb\ns_cmp_eq_u32 s28, 0\ns_cbranch_scc1 P2_pl\ns_branch P2_hkb\nP2_hk1a:")
        if sl2:
            assert l1st+5<8
            A(f"s_cmp_lt_u32 s{sCnt}, 8\ns_cbranch_scc0 P2_hk2\ns_cmp_eq_u32 s{sP}, 1\ns_cbranch_scc0 P2_hkb\nbuffer_store_dword v5, v6, {R4(SWS)}, s59 offen sc1\ns_branch P2_hkb")
            A(f"P2_hk2:\ns_cmp_eq_u32 s{sP}, 0\ns_cbranch_scc0 P2_hkb\ns_mov_b32 s58, 0\ns_cmp_eq_u32 s{sCnt}, 9\ns_cbranch_scc1 P2_l2w\ns_load_dwordx8 s[16:23], s[4:5], 0 glc\ns_branch P2_hkb")
            A("P2_l2:\ns_load_dwordx8 s[16:23], s[4:5], 0 glc\ns_add_u32 s58, s58, 1\nP2_l2w:\ns_waitcnt lgkmcnt(0)")
            A("s_and_b64 s[16:17], s[16:17], s[18:19]\ns_and_b64 s[20:21], s[20:21], s[22:23]\ns_and_b64 s[16:17], s[16:17], s[20:21]\ns_and_b32 s16, s16, s17")
            A(f"s_cmp_ge_u32 s58, {SPIN}\ns_cbranch_scc1 P2_hkb\ns_cmp_eq_u32 s16, 7\ns_cbranch_scc0 P2_l2")
        else:
            A(f"s_cmp_eq_u32 s{sCnt}, 9\ns_cbranch_scc0 P2_hk2\n{PL}\ns_branch P2_hkb")
            A(f"P2_hk2:\ns_cmp_eq_u32 s{sCnt}, 10\ns_cbranch_scc1 P2_hk3\ns_cmp_eq_u32 s{sP}, 1\ns_cbranch_scc0 P2_hkb\nbuffer_store_dword v5, v6, {R4(SWS)}, s59 offen sc1\ns_branch P2_hkb")
            A("P2_hk3:\ns_waitcnt vmcnt(8)\nv_cmp_gt_u32 vcc, 7, v4\ns_mov_b32 s58, 0\ns_nop 3\ns_cbranch_vccz P2_hkb")
            A(f"P2_l2:\n{PL}\ns_add_u32 s58, s58, 1\ns_waitcnt vmcnt(0)\nv_cmp_gt_u32 vcc, 7, v4")
            spin_tail("P2_l2")
        A("s_branch P2_hkb\nP2_out:")
        if wsplit:
            assert not w6
            def Wh(q,keep):
                A(f"v_readlane_b32 s{sW}, v21, {q}\ns_add_u32 m0, s{9 if keep else 8}, {(q&3)*16384}\ns_nop 2\ns_add_u32 s{sW}, s{sW}, s{11 if keep else 10}")
                A(f"buffer_load_dwordx4 v22, {R4(SW2)}, s{sW} offen {w2aux} lds\ns_add_u32 m0, m0, 2048\ns_nop 0\nbuffer_load_dwordx4 v23, {R4(SW2)}, s{sW} offen {w2aux} lds")
            def Hq(q):
                A(f"s_add_u32 m0, s{sLH}, {(q&3)*16384}\ns_nop 0")
                for n in range(4):
                    A(hl[n])
                    if n<3: A("s_add_u32 m0, m0, 1024\ns_nop 0")
            A(f"s_lshl_b32 s11, s{sJ}, 7\ns_xor_b32 s10, s11, 128\ns_lshl_b32 s9, s{sJ}, 10\ns_xor_b32 s8, s9, 1024\ns_add_u32 s8, s8, s{sLW2}\ns_add_u32 s9, s9, s{sLW2}")
            for q,w in ((24,14),(25,12),(26,12),(27,12)):
                A(f"v_readlane_b32 s{sH}, v20, {q}"); Wh(q,0); Hq(q)
                if q==25: pad()
                A(f"s_waitcnt vmcnt({w})\ns_barrier")
            Wh(24,1); Wh(25,1); A("s_waitcnt vmcnt(10)\ns_barrier")
            Wh(26,1); Wh(27,1); A("s_waitcnt vmcnt(8)\ns_barrier\ns_waitcnt vmcnt(6)\ns_barrier\ns_waitcnt vmcnt(0)\ns_barrier")
        if w6:
            A(f"v_readlane_b32 s{sH}, v20, 26\ns_nop 2"); Hs(["s_nop 0"])
            A(f"v_readlane_b32 s{sH}, v20, 27\ns_waitcnt vmcnt(12)\ns_barrier\ns_nop 0"); Hs(["s_nop 0"])
            A("s_waitcnt vmcnt(8)\ns_barrier\ns_waitcnt vmcnt(4)\ns_barrier\ns_waitcnt vmcnt(0)\ns_barrier")
    else:
        A(f"s_mov_b32 s{sCnt}, 4\ns_mov_b32 s57, 7")
        if la2: A("s_cmp_eq_u32 s62, 0\ns_cbranch_scc0 P2_loop\ns_waitcnt vmcnt(16)\ns_barrier")
        A("P2_loop:")
        A(f"v_readlane_b32 s{sW}, v21, s{sCnt}\nv_readlane_b32 s{sH}, v20, s{sCnt}")
        A(f"s_add_u32 s{sSlot}, s{sSlot}, 16384\ns_and_b32 s{sSlot}, s{sSlot}, 0xffff")
        A(f"s_cmp_eq_u32 s{sCnt}, 24\ns_cbranch_scc0 P2_a\nv_mov_b32 v22, v24\nv_mov_b32 v23, v25\nP2_a:")
        if la2: A(f"s_cmp_eq_u32 s{sCnt}, 4\ns_cbranch_scc1 P2_nw\ns_waitcnt vmcnt(8)\nP2_nw:\ns_barrier")
        else: A("s_waitcnt vmcnt(16)\ns_barrier")
        assert l1epi==3 or sched==9
        A(f"s_lshl_b32 s{sT0}, s{sP}, 8\ns_add_u32 s{sT0}, s{sT0}, s{sCnt}\ns_cmp_eq_u32 s{sT0}, {256+l1st+(4 if la2 else 5)}\ns_cbranch_scc0 P2_nf2\nbuffer_store_dword v5, v6, {R4(SWS)}, s59 offen sc1\nP2_nf2:")
        if two:
            A(f"s_cmp_eq_u32 s{sT0}, 14\ns_cbranch_scc0 P2_n2a\ns_load_dwordx4 s[28:31], s[6:7], 0 glc\nP2_n2a:")
            A(f"s_cmp_eq_u32 s{sT0}, 20\ns_cbranch_scc0 P2_n2b\ns_mov_b32 s58, 0\ns_branch P2_h2w\nP2_h2:\ns_load_dwordx4 s[28:31], s[6:7], 0 glc\ns_add_u32 s58, s58, 1\nP2_h2w:\ns_waitcnt lgkmcnt(0)")
            A(f"s_and_b32 s28, s28, s29\ns_and_b32 s30, s30, s31\ns_and_b32 s28, s28, s30\ns_cmp_ge_u32 s58, {SPIN}\ns_cbranch_scc1 P2_n2b\ns_cmp_eq_u32 s28, 0x03030303\ns_cbranch_scc0 P2_h2\nP2_n2b:")
        A(f"s_cmp_eq_u32 s{sCnt}, 9\ns_cbranch_scc0 P2_np\n{PL}\nP2_np:")
        A(f"s_cmp_eq_u32 s{sCnt}, 10\ns_cbranch_scc0 P2_b")
        A("s_waitcnt vmcnt(8)\nv_cmp_gt_u32 vcc, s57, v4\ns_mov_b32 s58, 0\ns_nop 3\ns_cbranch_vccz P2_ok")
        A(f"P2_l2:\n{PL}\ns_add_u32 s58, s58, 1\ns_waitcnt vmcnt(0)\nv_cmp_gt_u32 vcc, s57, v4")
        spin_tail("P2_l2")
        A("P2_ok:\ns_mov_b32 s57, 7")
        A("P2_b:")
        pad()
        issueW(); issueH()
        if pf2==3:
            A("s_cmp_eq_u32 s13, 24\ns_cselect_b32 s8, s14, s8\ns_cselect_b32 s9, s15, s9\ns_cmp_lt_u32 s13, 28\ns_cbranch_scc0 P2_nspf")
            spf()
            A("P2_nspf:")
        A(f"s_add_u32 s{sCnt}, s{sCnt}, 1\ns_cmp_lt_u32 s{sCnt}, 28\ns_cbranch_scc1 P2_loop")
    if not w6 and not wsplit: A(("" if (la2 or tight2) else "s_waitcnt vmcnt(16)\ns_barrier\n")+"s_waitcnt vmcnt(8)\ns_barrier\ns_waitcnt vmcnt(0)\ns_barrier")
    if diag: stamp(5); rstamp(15); flush(16)
    A("s_endpgm")
    A(".p2align 6\nL_cons:")
    ACC=16; F=[(128,144),(172,188)]
    vX0,vX1,vE,vO,vL=4,5,6,7,8; bX0,bE,bL=9,10,11
    sWm,sWf,sIt,sRg,sA,sB,sC=46,47,48,49,58,7,59
    sHA,sH3,sRX2,sClr,sPf=50,51,4,5,6
    vOwn,vT3,vH,vW=232,233,235,[236,237,238,239]
    if pfc and not fast:
        A(f"s_getpc_b64 s[54:55]\nC_pc:\ns_sub_u32 s54, s54, C_pc-{NAME}\ns_subb_u32 s55, s55, 0")
        A(f"v_lshlrev_b32 v3, 7, v0\nv_min_u32 v3, L_end-{NAME}, v3\nglobal_load_dword v255, v3, s[54:55]")
    if pf1==1 and not fast:
        A(f"v_and_b32 v15, 31, v2\nv_lshlrev_b32 v15, 7, v15\ns_lshl_b32 s{sA}, s2, 2\ns_add_u32 s{sA}, s{sA}, s3\ns_lshl_b32 s{sA}, s{sA}, 12")
    if pf1==3:
        A(f"v_and_b32 v15, 7, v2\nv_lshlrev_b32 v15, 7, v15\nv_bfe_u32 v14, v2, 3, 1\nv_lshl_add_u32 v15, v14, 11, v15\ns_lshl_b32 s{sA}, s2, 2\ns_add_u32 s{sA}, s{sA}, s3\ns_lshl_b32 s{sA}, s{sA}, 12\nv_mov_b32 v252, v15")
    if pf1==2:
        A(f"v_lshlrev_b32 v15, 7, v2\ns_lshr_b32 s{sA}, s2, 3\ns_lshl_b32 s{sA}, s{sA}, 2\ns_add_u32 s{sA}, s{sA}, s3\ns_lshl_b32 s{sA}, s{sA}, 13\ns_lshr_b32 s{sB}, s{sXcd}, 1\ns_lshl_b32 s{sB}, s{sB}, 20\ns_add_u32 s{sA}, s{sA}, s{sB}")
    A("s_waitcnt lgkmcnt(0)")
    if pf1==5: srd(A,SX,4,X_BYTES)
    elif pf1 and not (fast and pf1==1):
        srd(A,SX,4,X_BYTES)
        A(f"buffer_load_dword v253, v15, {R4(SX)}, s{sA} offen")
        if pf1==3: srd(A,SW1,6,W_BYTES)
    if diag==5: stamp(6)
    if cprio: A(f"s_setprio {cprio}")
    A(f"s_lshr_b32 s{sWm}, s3, 1\ns_and_b32 s{sWf}, s3, 1")
    A("v_and_b32 v3, 15, v2\nv_lshrrev_b32 v12, 4, v2")
    A("v_lshrrev_b32 v13, 1, v3\nv_xor_b32 v13, v13, v12\nv_lshlrev_b32 v13, 4, v13")
    A(f"s_lshl_b32 s{sA}, s{sWm}, 13\nv_lshlrev_b32 v14, 7, v3\nv_add3_u32 v{bX0}, v13, v14, s{sA}")
    A("v_lshrrev_b32 v13, 1, v12\nv_mul_u32_u24 v13, 7168, v13\nv_bfe_u32 v15, v2, 2, 2\nv_lshl_add_u32 v13, v15, 6, v13\nv_and_b32 v15, 3, v2\nv_lshl_add_u32 v13, v15, 3, v13")
    A(f"v_and_b32 v14, 1, v12\nv_mul_u32_u24 v15, 1056, v14\ns_lshl_b32 s{sA}, s{sWf}, 9\ns_add_u32 s{sA}, s{sA}, {WOFF}\nv_add3_u32 v{bE}, v13, v15, s{sA}")
    A(f"v_mul_u32_u24 v15, 544, v14\nv_add_u32 v13, v13, v15\ns_lshl_b32 s{sA}, s{sWf}, 5\nv_xor_b32 v13, s{sA}, v13\nv_add_u32 v{bL}, {WOFF+6144}, v13")
    VF=248
    if late2:
        for n in range(4): A(f"v_mov_b32 v{VF+n}, {OOB}")
    else: fragoffs(VF)
    A(f"v_add_u32 v{vE}, {2*WST}, v{bE}\nv_mov_b32 v{vX0}, v{bX0}\nv_add_u32 v{vL}, {2*WST}, v{bL}\nv_xor_b32 v{vO}, 32, v{vE}\nv_xor_b32 v{vX1}, 64, v{vX0}")
    srd(A,SO,10,O_BYTES); srd(A,SWS,14,0x10000000); srd(A,SW2,8,W_BYTES)
    if diag==5 or not spub: srd(A,SD,12,256)
    A("v_lshlrev_b32 v3, 4, v2")
    A(f"s_lshr_b32 s56, s{sLid}, 3\ns_lshl_b32 s56, s56, 10\ns_lshl_b32 s{sB}, s{sFt8}, 2\ns_add_u32 s56, s56, s{sB}\ns_add_u32 s56, s56, {F_OFF+fch*128}")
    if lead:
        A(f"s_cmp_eq_u32 s{sFt}, 0\ns_cselect_b32 s{sB}, 16, 0\nv_lshrrev_b32 v13, 3, v2\nv_lshlrev_b32 v13, 10, v13\nv_and_b32 v1, 7, v2\nv_lshl_add_u32 v13, v1, 2, v13")
        A(f"v_mov_b32 v1, {OOB}\nv_cmp_gt_u32 vcc, s{sB}, v2\ns_nop 1\nv_cndmask_b32 v1, v1, v13, vcc")
    else:
        A(f"v_mov_b32 v1, {OOB}\nv_cmp_eq_u32 vcc, 0, v2\ns_nop 1\nv_cndmask_b32 v1, v1, 0, vcc")
    A(f"s_andn2_b32 s57, s{sLid}, 7\ns_add_u32 s57, s57, s{sDt}\ns_lshl_b32 s57, s57, 2\ns_add_u32 s57, s57, s3\ns_mul_i32 s57, s57, {QS}\ns_add_u32 s57, s57, {P_OFF}")
    A0=A
    if late>=0: A=Asm()
    if late2: assert 0<=late<cbase; fragoffs(VF,A,(13,14,15))
    A(f"s_lshl_b32 s52, s{sWm}, 12\nv_add_u32 v{vH}, s52, v3")
    A("v_lshrrev_b32 v13, 5, v2\nv_lshlrev_b32 v13, 11, v13\nv_bfe_u32 v14, v2, 4, 1\nv_mul_u32_u24 v14, 288, v14\nv_add_u32 v13, v13, v14")
    A("v_bfe_u32 v15, v2, 2, 2\nv_lshl_add_u32 v13, v15, 6, v13\nv_and_b32 v15, 3, v2\nv_lshl_add_u32 v13, v15, 3, v13")
    A(f"s_lshl_b32 s52, s{sJ}, 1\ns_add_u32 s52, s52, s{sWf}\ns_lshl_b32 s52, s52, 9\ns_add_u32 s52, s52, 65536\nv_add_u32 v{vW[0]}, s52, v13")
    A(f"v_xor_b32 v{vW[1]}, 32, v{vW[0]}\nv_xor_b32 v{vW[2]}, 0x400, v{vW[0]}\nv_xor_b32 v{vW[3]}, 0x420, v{vW[0]}")
    A(f"s_add_u32 s62, s{sFt8}, s3\ns_and_b32 s62, s62, {rmask}\ns_add_u32 s62, s62, {l2st+5}")
    A(f"s_mul_i32 s{sHA}, s{sMt}, 112\ns_mul_i32 s{sH3}, s{sFt}, 7\ns_add_u32 s{sHA}, s{sHA}, s{sH3}\ns_and_b32 s52, s{sFt8}, 1")
    A(f"s_xor_b32 s53, s52, 1\ns_mul_i32 s53, s53, 6\ns_add_u32 s{sH3}, s{sHA}, s53\ns_add_u32 s{sHA}, s{sHA}, s52\ns_add_u32 s{sHA}, s{sHA}, s{sWf}")
    A(f"s_mul_i32 s52, s{sWm}, {QS}\ns_mul_i32 s{sHA}, s{sHA}, {CH}\ns_add_u32 s{sHA}, s{sHA}, s52\ns_mul_i32 s{sH3}, s{sH3}, {CH}\ns_add_u32 s{sH3}, s{sH3}, s52\ns_lshl_b32 s52, s{sWm}, 12")
    A(f"s_lshl_b32 s53, s{sWf}, 13\ns_add_u32 s52, s52, s53\nv_add_u32 v{vOwn}, s52, v3")
    A(f"v_bfe_u32 v13, v2, 4, 1\nv_lshlrev_b32 v13, 3, v13\nv_lshrrev_b32 v14, 5, v2\nv_lshl_add_u32 v13, v14, 1, v13\nv_bfe_u32 v14, v2, 3, 1\ns_lshl_b32 s52, s{sWf}, 2\nv_add3_u32 v13, v13, v14, s52")
    A("v_add_u32 v14, 16, v13\nv_and_b32 v15, 7, v2\nv_lshlrev_b32 v15, 4, v15")
    physline(vT3,13,12,A); physline(vT3+1,14,12,A)
    A(f"v_add_u32 v{vT3}, v{vT3}, v15\nv_add_u32 v{vT3+1}, v{vT3+1}, v15")
    A("v_mov_b32 v12, 1\ns_mov_b32 s52, 0xbfb8aa3b\ns_mov_b32 s53, 0xbfb8aa3b\ns_mov_b32 s54, 1.0\ns_mov_b32 s55, 1.0")
    if late>=0:
        LATE=A.text().rstrip(); A=A0
        A(f"v_mov_b32 v{vT3}, {OOB}\nv_mov_b32 v{vT3+1}, {OOB}")
    if not zc:
        for r in range(112): A(f"v_mov_b32 v{ACC+r}, 0")
    for r in range(4): A(f"v_mov_b32 v{244+r}, -1")
    def hook(it, body, name, reg=None):
        OOL.append(f"{name}:\n{body}\ns_branch {name}_b")
        return [f"s_cmp_eq_u32 s{reg or sIt}, {it}", f"s_cbranch_scc1 {name}\n{name}_b:"]
    def reads1(u, fs):
        X,W=F[fs]
        xs=[f"ds_read_b128 {vr(X+4*i,4)}, v{vX1 if u else vX0} offset:{i*2048}" for i in range(4)]
        ws=[]
        for j in range(7):
            a,o=(vL,0) if j==6 else ((vO if j&1 else vE),(j>>1)*2048)
            for hh in range(2): ws.append(f"ds_read_b64_tr_b16 {vr(W+4*j+2*hh,2)}, v{a} offset:{u*14336+o+hh*256}")
        return ws[0:2]+xs+ws[2:]
    def mf1(fs,zero=False):
        X,W=F[fs]
        return [f"v_mfma_f32_16x16x32_bf16 {vr(ACC+(j*4+i)*4,4)}, {vr(W+4*j,4)}, {vr(X+4*i,4)}, {'0' if zero else vr(ACC+(j*4+i)*4,4)}" for j,i in snake(range(7),4)]
    A(f"s_mov_b32 s{sIt}, 0\ns_mov_b32 s{sRg}, {2*WST}\ns_mov_b32 s{sRX2}, 0\ns_lshl_b32 s{sClr}, s3, {1 if cmask==7 else 0}\ns_add_u32 s{sClr}, s{sClr}, s{sFt8}\ns_and_b32 s{sClr}, s{sClr}, {cmask}\ns_add_u32 s{sClr}, s{sClr}, {cbase}")
    if two: A(f"s_mov_b32 s0, {1|4|(1<<ack)}")
    A(f"s_mul_i32 s{sPf}, s3, {pfb}\ns_add_u32 s{sPf}, s{sPf}, {pfa}")
    if pf2==2: A(f"v_min_u32 v15, 55, v2\nv_lshlrev_b32 v15, 7, v15\ns_lshl_b32 s{sA}, s2, 2\ns_add_u32 s{sA}, s{sA}, s3\ns_mul_i32 s{sA}, s{sA}, 7168\nbuffer_load_dword v255, v15, {R4(SW2)}, s{sA} offen")
    if diag in (2,3,6): A("s_mov_b32 m0, 0")
    clr="\n".join([f"buffer_store_dwordx4 v[244:247], v{VF+i}, {R4(SWS)}, s57 offen sc1" for i in range(4)])
    fclr=f"v_mov_b32 v13, 0\nbuffer_store_dword v13, v1, {R4(SWS)}, s56 offen sc1"
    if sep: assert lead; A(fclr)
    elif not two: clr=clr+"\n"+fclr
    if clr0: A(clr)
    if diag==5: stamp(8)
    WK=""
    if walk:
        WK=f"s_cmp_ge_u32 s3, {walk}\ns_cbranch_scc1 C_walked\n"+("" if (wlate or wnw) else f"s_waitcnt vmcnt({(1 if pf1 and not pcw else 0)+(1 if sep else 0)})\n")+"s_mov_b64 exec, 0\n"
        for w in range(walk-1): WK+=f"s_cmp_eq_u32 s3, {w}\ns_cbranch_scc1 @START{w}@\n"
        WK+=f"s_branch @START{walk-1}@\nC_wret:\ns_mov_b64 exec, -1\nC_walked:"
        if not wlate: A(WK)
    if diag==5: stamp(9)
    A("s_barrier")
    stamp(1)
    for l in reads1(0,0): A(l)
    A("s_waitcnt lgkmcnt(0)")
    ex=[f"s_add_u32 s{sRg}, s{sRg}, {WST}\ns_add_u32 s{sRX2}, s{sRX2}, 16384", f"s_cmp_eq_u32 s{sRg}, {WST*3}\ns_cselect_b32 s{sRg}, 0, s{sRg}",
        f"v_add_u32 v{vE}, s{sRg}, v{bE}\ns_and_b32 s{sRX2}, s{sRX2}, 0xffff", f"v_add_u32 v{vX0}, s{sRX2}, v{bX0}", f"v_add_u32 v{vL}, s{sRg}, v{bL}",
        f"v_xor_b32 v{vO}, 32, v{vE}", f"v_xor_b32 v{vX1}, 64, v{vX0}"]
    if zc:
        assert cbase>0
        sstamp()
        for l in interleave(mf1(0,True), reads1(1,1)+ex): A(l)
        A("s_branch C1_in")
    A(f".p2align {al}\nC1_loop:")
    sstamp()
    if not clr0: ex+=hook(f"s{sClr}" if stag else 2,clr,"H1_clr")
    for l in interleave(mf1(0), reads1(1,1)+ex): A(l)
    A("C1_in:\ns_waitcnt lgkmcnt(0)\ns_barrier")
    pub=(f"s_cmp_eq_u32 s3, 0\ns_cbranch_scc0 H1_pub_b\ns_and_b32 s{sA}, s{sLid}, 3\ns_lshl_b32 s{sA}, s{sA}, 3\ns_lshl_b32 s{sA}, 1, s{sA}\nv_mov_b32 v13, s{sA}\n"
         f"s_andn2_b32 s{sA}, s{sLid}, 3\nv_lshlrev_b32 v14, 8, v2\nbuffer_atomic_or v13, v14, {R4(SD)}, s{sA} offen")
    if two:
        h=hook(0,f"s_cmp_eq_u32 s{sIt}, 0\ns_cbranch_scc1 H1_fc\ns_waitcnt vmcnt(0)\ns_branch H1_ack_b\nH1_fc:\n{fclr}","H1_ack")
        h[0]=f"s_bitcmp1_b32 s0, s{sIt}"
    else: h=hook(ack,"s_waitcnt vmcnt(0)","H1_ack")
    ex=h+([] if spub else hook(ack+1,pub,"H1_pub"))
    if late>=0: ex+=hook(late,(PAD+"\n" if walk else "")+LATE+("\n"+WK if wlate else ""),"H1_late")
    if xp_n: ex+=hook(xp_it,f"s_sleep {xp_n}","H1_xp")
    if pf1==5: ex+=hook(pfi,f"v_xor_b32 v252, 0x400, v252\ns_nop 0\nbuffer_load_dword v253, v252, {R4(SX)}, 0 offen","H1_pf1")
    if pf1==3:
        nl=(16-w1s)*64*56//1024
        ex+=hook(pfi,f"s_lshl_b32 s{sA}, s2, 2\ns_add_u32 s{sA}, s{sA}, s3\ns_mul_i32 s{sB}, s{sA}, {nl*128}\ns_add_u32 s{sB}, s{sB}, {w1s*64*7168}\ns_lshl_b32 s{sA}, s{sA}, 12\n"
                     f"v_min_u32 v15, {nl-1}, v2\nv_lshlrev_b32 v15, 7, v15\nbuffer_load_dword v255, v15, {R4(SW1)}, s{sB} offen\nbuffer_load_dword v253, v252, {R4(SX)}, s{sA} offen offset:1024","H1_pf1")
    if pf2==4:
        ex+=hook(f"s{sPf}",f"s_lshl_b32 s{sA}, s2, 2\ns_add_u32 s{sA}, s{sA}, s3\ns_lshr_b32 s{sB}, s{sA}, 6\ns_and_b32 s60, s{sB}, 1\ns_mul_i32 s{sB}, s{sB}, 7\n"
                     f"s_add_u32 s61, s{sB}, s60\ns_add_u32 s61, s61, 4\ns_lshl_b32 s61, s61, 16\ns_xor_b32 s60, s60, 1\ns_mul_i32 s60, s60, 6\ns_add_u32 s{sB}, s{sB}, s60\ns_lshl_b32 s{sB}, s{sB}, 16\n"
                     f"s_and_b32 s{sA}, s{sA}, 63\ns_lshl_b32 s60, s{sA}, 11\ns_add_u32 s61, s61, s60\ns_lshl_b32 s60, s{sA}, 10\ns_add_u32 s{sB}, s{sB}, s60\n"
                     f"v_and_b32 v15, 15, v2\nv_lshlrev_b32 v15, 7, v15\nv_and_b32 v14, 7, v2\nv_lshlrev_b32 v14, 7, v14\n"
                     f"buffer_load_dword v255, v15, {R4(SW2)}, s61 offen\nbuffer_load_dword v253, v14, {R4(SW2)}, s{sB} offen","H1_pf")
    if pf2==1:
        ex+=hook(f"s{sPf}",f"v_min_u32 v15, 55, v2\nv_lshlrev_b32 v15, 7, v15\ns_lshl_b32 s{sA}, s2, 2\ns_add_u32 s{sA}, s{sA}, s3\ns_mul_i32 s{sA}, s{sA}, 7168\nbuffer_load_dword v255, v15, {R4(SW2)}, s{sA} offen","H1_pf")
    ex+=([PAD] if walk else [])+[f"s_add_u32 s{sIt}, s{sIt}, 1", f"s_cmp_lt_u32 s{sIt}, 16"]
    x=interleave(mf1(1), reads1(0,0)+ex)
    if x[-1].startswith("v_mfma"):
        for l in x[:-1]: A(l)
        A("s_waitcnt lgkmcnt(0)"); A(x[-1])
    else:
        for l in x: A(l)
        A("s_waitcnt lgkmcnt(0)")
    A("s_cbranch_scc1 C1_loop")
    stamp(2)
    T=216
    PEND=[]
    def silu(a, b, D):
        t=T; src=[a,a+2,b,b+2]
        for r in range(4): A(f"v_pk_mul_f32 {vr(t+2*r,2)}, s[52:53], {vr(src[r],2)}")
        for r in range(8):
            A(f"v_exp_f32 v{t+r}, v{t+r}")
            if r in (1,5) and PEND: A(PEND.pop(0))
        for r in range(4): A(f"v_pk_add_f32 {vr(t+2*r,2)}, s[54:55], {vr(t+2*r,2)}")
        for r in range(8):
            A(f"v_rcp_f32 v{t+r}, v{t+r}")
            if r in (1,5) and PEND: A(PEND.pop(0))
        for r in range(4): A(f"v_pk_mul_f32 {vr(t+2*r,2)}, {vr(t+2*r,2)}, {vr(src[r],2)}")
        for r in range(4): A(f"v_cvt_pk_bf16_f32 v{D+r}, v{t+2*r}, v{t+2*r+1}")
    def later(x):
        if pipe: PEND.append(x)
        else: A(x)
    def flushp():
        while PEND: A(PEND.pop(0))
    def gst(D,i): return f"buffer_store_dwordx4 {vr(D,4)}, v{VF+i}, {R4(SWS)}, s{sHA} offen sc1"
    FLAG="s_nop 0"
    DL=[160,128,144]; D3=224
    for L in range(3):
        for i in range(4):
            D=DL[L]+4*i
            if i%2==0: pad()
            silu(ACC+((2*L)*4+i)*4, ACC+((2*L+1)*4+i)*4, D)
            if L==0 or (L==2 and l1epi>=2) or (L==1 and i>=nb and l1epi): later(gst(D,i))
            later(f"ds_write_b128 v{vOwn}, {vr(D,4)} offset:{L*16384+i*1024}")
            if L==0 and i==3: later(f"s_add_u32 s{sHA}, s{sHA}, {2*CH}")
            if L==1 and i==nb-1:
                flushp()
                stamp(11); A("s_waitcnt vmcnt(0)"); stamp(12)
                A(f"s_waitcnt lgkmcnt(0)\ns_barrier")
                if l1epi:
                    if pipe==2:
                        for k in range(0,nb,2): later(gst(128+4*k,k)+"\n"+gst(132+4*k,k+1))
                    else:
                        for k in range(nb): A(gst(128+4*k,k))
        if L==1 and l1epi: later(f"s_add_u32 s{sHA}, s{sHA}, {2*CH}")
    F2=[(160,176),(192,208)]
    def rdH(X,slot,u): return [f"ds_read_b128 {vr(X+4*i,4)}, v{vH} offset:{slot*16384+u*8192+i*1024}" for i in range(4)]
    DYN=[w6]
    def rdW(W,slot,u,js): return [f"ds_read_b64_tr_b16 {vr(W+4*n+2*hh,2)}, v{vW[j]} offset:{(0 if DYN[0] else slot)*16384+(4*u+2*hh)*2048}" for n,j in enumerate(js) for hh in range(2)]
    WU=[f"v_add_u32 v{vW[0]}, s{sRg}, v240", f"v_xor_b32 v{vW[1]}, 32, v{vW[0]}", f"v_xor_b32 v{vW[2]}, 0x400, v{vW[0]}", f"v_xor_b32 v{vW[3]}, 0x420, v{vW[0]}"] if w6 else []
    WS=[f"s_add_u32 s{sRg}, s{sRg}, 16384", f"s_cmp_eq_u32 s{sRg}, {6*16384}\ns_cselect_b32 s{sRg}, 0, s{sRg}"] if w6 else []
    def reads2(slot,u,fs):
        X,W=F2[fs]; ws=rdW(W,slot,u,range(4)); return ws[0:2]+rdH(X,slot,u)+ws[2:]
    def mfm(X,W,js,zero=False,w0=0):
        return [f"v_mfma_f32_16x16x32_bf16 {vr(ACC+(j*4+i)*4,4)}, {vr(W+4*(j-w0),4)}, {vr(X+4*i,4)}, {'0' if zero else vr(ACC+(j*4+i)*4,4)}" for j,i in snake(js,4)]
    def mf2(fs,zero=False): return mfm(F2[fs][0],F2[fs][1],range(4),zero)
    for l in reads2(0,0,0): A(l)
    for ip in range(2):
        D=D3+4*ip; a=ACC+(24+2*ip)*4
        if ip==0: pad()
        silu(a,a+4,D)
        A(f"s_nop 1\nv_permlane16_swap_b32 v{D}, v{D+2}\nv_permlane16_swap_b32 v{D+1}, v{D+3}")
        if l1epi>=3: later(f"buffer_store_dwordx4 {vr(D,4)}, v{vT3+ip}, {R4(SWS)}, s{sH3} offen sc1")
    flushp()
    A(f"v_mov_b32 v12, {7 if l1epi==3 else 3}\ns_mov_b32 s{sIt}, 0")
    if w6: A(f"v_mov_b32 v240, v{vW[0]}\ns_mov_b32 s{sRg}, 16384")
    stamp(3); stamp(4)
    sstamp()
    A("s_waitcnt lgkmcnt(0)")
    for l in interleave(mf2(0,True), reads2(0,1,1)+(WU if w6 else ([PAD] if walk else []))): A(l)
    A("s_branch C2_in")
    dw={}; dws={}
    t3st=[f"buffer_store_dwordx4 {vr(D3+4*ip,4)}, v{vT3+ip}, {R4(SWS)}, s{sH3} offen sc1" for ip in range(2)]
    ADV=f"\ns_add_u32 s{sHA}, s{sHA}, {2*CH}"
    L1s=[gst(128+4*i,i) for i in range(4)]; L2s=[gst(144+4*i,i) for i in range(4)]
    F3=f"s_waitcnt vmcnt(0)\n{FLAG}"; F7=f"v_mov_b32 v12, 7\ns_waitcnt vmcnt(0)\n{FLAG}"
    J="\n".join
    if sched==1:
        dw[(0,1)]=J(L1s[:2]); dw[(1,0)]=J(L1s[2:])+ADV; dw[(1,1)]=J(L2s[:2]); dw[(2,0)]=J(L2s[2:]); dw[(2,1)]=J(t3st); dw[(4,0)]=F7
    elif sched==2:
        dw[(0,1)]=J(L1s[:2]); dw[(1,0)]=J(L1s[2:])+ADV; dw[(3,0)]=F3
        dw[(3,1)]=L2s[0]; dw[(4,0)]=L2s[1]; dw[(4,1)]=L2s[2]; dw[(5,0)]=L2s[3]; dw[(5,1)]=t3st[0]; dw[(6,0)]=t3st[1]; dw[(10,0)]=F7
    elif sched==3:
        dw[(0,1)]=L1s[0]; dw[(1,0)]=L1s[1]; dw[(1,1)]=L1s[2]; dw[(2,0)]=L1s[3]+ADV; dw[(3,1)]=F3
        dw[(4,0)]=L2s[0]; dw[(4,1)]=L2s[1]; dw[(5,0)]=L2s[2]; dw[(5,1)]=L2s[3]; dw[(6,0)]=t3st[0]; dw[(6,1)]=t3st[1]; dw[(11,0)]=F7
    elif sched==4:
        dw[(0,1)]=J(L1s)+ADV; dw[(1,1)]=J(L2s); dw[(2,1)]=J(t3st); dw[(4,0)]=F7
    elif sched==9:
        dw[(1,1)]=F7
    elif sched==5:
        dw[(0,1)]=J(L2s[:2]); dw[(1,0)]=J(L2s[2:]); dw[(1,1)]=J(t3st); dw[(3,1)]=F7
    else:
        if not l1epi:
            dw[(l1st,0)]=gst(128,0)+"\n"+gst(132,1); dw[(l1st,1)]=gst(136,2)+"\n"+gst(140,3)+f"\ns_add_u32 s{sHA}, s{sHA}, {2*CH}"
            dw[(l1st+2,1)]=f"s_waitcnt vmcnt(0)\n{FLAG}"
        else:
            dw[(l1st,1)]=f"s_waitcnt vmcnt(0)\n{FLAG}"
        if l1epi>=2:
            if l1epi==2: dw[(l2st,0)]="\n".join(t3st)
            if l1epi==2: dw[(f3,1)]=f"v_mov_b32 v12, 7\ns_waitcnt vmcnt(0)\n{FLAG}"
        elif not stag2:
            dw[(l2st,0)]=gst(144,0)+"\n"+gst(148,1); dw[(l2st+1,0)]=gst(152,2)+"\n"+gst(156,3)+"\nv_mov_b32 v12, 7"
            dw[(l2st+2,0)]="\n".join(t3st)
            dw[(l2st+5,1)]=f"s_waitcnt vmcnt(0)\n{FLAG}"
        else:
            dw[(f3,1)]=f"v_mov_b32 v12, 7\ns_waitcnt vmcnt(0)\n{FLAG}"
            body=[gst(144+4*i,i) for i in range(4)]+t3st
            o="H2_st:\n"
            for n,b in enumerate(body):
                o+=f"s_cmp_eq_u32 s62, {5-n}\ns_cbranch_scc0 H2_st{n}\n{b}\nH2_st{n}:\n"
            o+="s_setpc_b64 s[54:55]"
            OOL.append(o)
    def hooks2(slot,u):
        ex=[]
        for (q,uu),body in sorted(dw.items()):
            if q%4==slot and uu==u: ex+=hook(q//4,body,f"H2_{q}_{uu}")
        if stag2 and l1epi<2 and u==0 and not sched:
            ex+=["s_sub_u32 s62, s62, 1\ns_cmp_lt_u32 s62, 6", f"s_cbranch_scc1 H2_go{slot}\nH2_ns{slot}:"]
            OOL.append(f"H2_go{slot}:\ns_call_b64 s[54:55], H2_st\ns_branch H2_ns{slot}")
        assert len(ex)<=4, (slot,u,ex)
        return ex
    A(f".p2align {al}\nC2_loop:")
    for slot in range(4):
        sstamp()
        for l in interleave(mf2(0), reads2(slot,1,1)+hooks2(slot,0)+(WU if w6 else ([PAD] if walk else []))): A(l)
        if slot==0: A("C2_in:")
        A("s_waitcnt lgkmcnt(0)\ns_barrier")
        ex=WS+hooks2(slot,1)
        if w6 and walk and len(ex)<=3 and slot!=3: ex=ex+[PAD]
        if slot==3: ex+=[f"s_add_u32 s{sIt}, s{sIt}, 1", f"s_cmp_lt_u32 s{sIt}, 6"]
        x=interleave(mf2(1), reads2((slot+1)&3,0,0)+ex)
        if x[-1].startswith("v_mfma"):
            for l in x[:-1]: A(l)
            A("s_waitcnt lgkmcnt(0)"); A(x[-1])
        else:
            for l in x: A(l)
            A("s_waitcnt lgkmcnt(0)")
    A("s_cbranch_scc1 C2_loop")
    stamp(13)
    if diag: A("s_waitcnt lgkmcnt(0)")
    DYN[0]=0
    G=[dict(H=[160,80],W=[184,96]), dict(H=[192,104],W=[208,216])]
    def rdS(g,slot,js,us=(0,1)):
        o=[]
        for u in us:
            w=rdW(G[g]['W'][u],slot,u,js); o+=w[0:2]+rdH(G[g]['H'][u],slot,u)+w[2:]
        return o
    def mfS(g,js): return mfm(G[g]['H'][0],G[g]['W'][0],js,w0=js[0])+mfm(G[g]['H'][1],G[g]['W'][1],js,w0=js[0])
    for l in rdS(0,0,(2,3),(1,)): A(l)
    pad()
    A("s_barrier")
    m=mfS(0,(2,3)); r=rdS(1,1,(2,3))
    x=interleave(m[:8], r[:8])
    for l in x: A(l)
    A("s_waitcnt lgkmcnt(8)")
    for l in interleave(m[8:], r[8:]): A(l)
    for q in (1,2):
        if q==2: pad()
        A(f"s_waitcnt lgkmcnt({8 if cw else 0})\ns_barrier")
        x=interleave(mfS(q&1,(2,3)), rdS((q+1)&1,q+1,(2,3)))
        if cw: x.insert(16,"s_waitcnt lgkmcnt(8)")
        for l in x: A(l)
    A(f"s_mul_i32 s52, s{sJ}, {-2*32*QS}\ns_add_u32 s52, s52, {32*QS}\ns_add_u32 s52, s52, s57\ns_mov_b32 s53, -2")
    sn=[]
    for i in range(4):
        D=128+4*i; t=[]
        for n,j in enumerate((2,3)):
            S=ACC+(j*4+i)*4
            t+= [f"v_cvt_pk_bf16_f32 v{D+2*n}, v{S}, v{S+1}", f"v_cvt_pk_bf16_f32 v{D+2*n+1}, v{S+2}, v{S+3}"]
        t+=[f"v_min_u32 v{D+r}, s53, v{D+r}" for r in range(4)]
        t.append(f"buffer_store_dwordx4 {vr(D,4)}, v{VF+i}, {R4(SWS)}, s52 offen sc1")
        sn.append(t)
    A("s_waitcnt lgkmcnt(0)")
    if wsplit: assert esend; A("s_barrier")
    if esend:
        g=G[1]; r=rdS(0,0,(0,1)); k=0
        for i in range(4):
            for u,j in ((0,2),(0,3),(1,3),(1,2)):
                A(f"v_mfma_f32_16x16x32_bf16 {vr(ACC+(j*4+i)*4,4)}, {vr(g['W'][u]+4*(j-2),4)}, {vr(g['H'][u]+4*i,4)}, {vr(ACC+(j*4+i)*4,4)}")
                A(r[k]); k+=1
            if i>=1:
                for l in sn[i-1]: A(l)
        stamp(5)
        pad()
        A("s_waitcnt lgkmcnt(0)")
        if wsplit: A("s_barrier")
        m=mfS(0,(0,1)); r=rdS(1,1,(0,1))
        for n,mm_ in enumerate(m):
            A(mm_); A(r[n])
            if n==2:
                for l in sn[3]: A(l)
    else:
        for l in interleave(mfS(1,(2,3)), rdS(0,0,(0,1))): A(l)
        stamp(5)
        pad()
        snd=sum(sn,[])
        A("s_waitcnt lgkmcnt(0)")
        m=mfS(0,(0,1)); r=rdS(1,1,(0,1))
        k=0
        for n,mm_ in enumerate(m):
            A(mm_); A(r[n])
            if packfirst and n==1:
                A("s_nop 3")
                while k<len(snd): A(snd[k]); k+=1
            if n>=3:
                for _ in range(3):
                    if k<len(snd): A(snd[k]); k+=1
        while k<len(snd): A(snd[k]); k+=1
    if diag!=5 and not cw: stamp(6)
    RB=144 if dual else 80; RB2=224
    def LDs(b): return [f"buffer_load_dwordx4 {vr(b+4*i,4)}, v{VF+i}, {R4(SWS)}, s57 offen sc1" for i in range(4)]
    LD=LDs(RB)
    for q in (1,2):
        pad()
        A(f"s_waitcnt lgkmcnt({8 if cw else 0})")
        x=interleave(mfS(q&1,(0,1)), rdS((q+1)&1,q+1,(0,1)))
        if cw: assert not dual; x.insert(16,"s_waitcnt lgkmcnt(8)")
        if dual==q:
            for n in range(4): x.insert(2+3*n+n,LD[n])
        for l in x: A(l)
    A(f"s_waitcnt lgkmcnt({8 if cw else 0})")
    adr=["v_and_b32 v13, 15, v2","v_lshlrev_b32 v13, 11, v13","v_bfe_u32 v14, v2, 4, 1","v_lshl_add_u32 v13, v14, 5, v13","v_lshrrev_b32 v14, 5, v2","v_lshl_add_u32 v13, v14, 4, v13",
         f"s_lshl_b32 s{sC}, s{sMt}, 1\ns_add_u32 s{sC}, s{sC}, s{sWm}", f"s_lshl_b32 s{sC}, s{sC}, 17\ns_lshl_b32 s52, s{sDt}, 8", f"s_add_u32 s{sC}, s{sC}, s52\ns_lshl_b32 s52, s{sJ}, 7",
         f"s_add_u32 s{sC}, s{sC}, s52\ns_lshl_b32 s52, s{sWf}, 6", f"s_add_u32 s{sC}, s{sC}, s52\ns_mov_b32 s58, 0"]
    def chk():
        A(f"v_max3_u32 v14, v{RB}, v{RB+1}, v{RB+2}")
        for r in range(3,15,2): A(f"v_max3_u32 v14, v14, v{RB+r}, v{RB+r+1}")
        A(f"v_max_u32 v14, v14, v{RB+15}\nv_cmp_eq_u32 vcc, -1, v14")
    if dual:
        for l in interleave(mfS(1,(0,1)), LDs(80)+adr): A(l)
        A("s_waitcnt vmcnt(4)"); chk()
        A("s_nop 4\ns_cbranch_vccz C3_ok\ns_waitcnt vmcnt(0)")
        for r in range(16): A(f"v_mov_b32 v{RB+r}, v{80+r}")
    else:
        x=interleave(mfS(1,(0,1)), adr[:ldpos]+LD+adr[ldpos:])
        if cw: x.insert(16,"s_waitcnt lgkmcnt(0)")
        for l in x: A(l)
    if diag and diag!=5: stamp(8)
    pad()
    A("s_branch C3_chk")
    A("C3_poll:")
    for l in LD: A(l)
    A("C3_chk:\ns_add_u32 s58, s58, 1\ns_waitcnt vmcnt(0)")
    chk()
    spin_tail("C3_poll")
    A("C3_ok:")
    stamp(7)
    if diag==4: A("s_mov_b32 s86, s58")
    A("s_mov_b32 s53, 0xffff0000")
    for i in range(4):
        D=128+4*i
        for n in range(2):
            S=ACC+(n*4+i)*4
            for h in range(2):
                Rr=RB+4*i+2*n+h
                A(f"v_lshlrev_b32 v{T}, 16, v{Rr}\nv_and_b32 v{T+1}, s53, v{Rr}\nv_pk_add_f32 {vr(S+2*h,2)}, {vr(S+2*h,2)}, {vr(T,2)}")
                A(f"v_cvt_pk_bf16_f32 v{D+2*n+h}, v{S+2*h}, v{S+2*h+1}")
        A(f"s_nop 1\nv_permlane16_swap_b32 v{D}, v{D+2}\nv_permlane16_swap_b32 v{D+1}, v{D+3}")
        A(f"buffer_store_dwordx4 {vr(D,4)}, v13, {R4(SO)}, s{sC} offen {outaux}")
        if i<3: A(f"s_add_u32 s{sC}, s{sC}, 0x8000")
        if i==0: pad()
    if diag:
        if diag!=5: stamp(9)
        A("s_waitcnt vmcnt(0)"); stamp(10); rstamp(15); flush(16,True)
    A("s_endpgm")
    if walk: A(PAD+"\ns_endpgm")
    for b in OOL: A(b)
    A("L_end:\ns_endpgm")
    A(f""".section .rodata,"a"
.p2align 6
.amdhsa_kernel {NAME}
  .amdhsa_next_free_vgpr 256
  .amdhsa_next_free_sgpr 96
  .amdhsa_accum_offset 256
  .amdhsa_group_segment_fixed_size 0
  .amdhsa_kernarg_size 48
  .amdhsa_user_sgpr_count 2
  .amdhsa_user_sgpr_kernarg_segment_ptr 1
  .amdhsa_system_sgpr_workgroup_id_x 1
.end_amdhsa_kernel""")
    txt=A.text()
    if walk:
        n=txt.count("@PAD@"); parts=txt.split("@PAD@")
        starts=[round(w*n/walk) for w in range(walk)]
        out=parts[0]
        for k in range(n):
            nxt="C_wret" if (k+1==n or k+1 in starts) else f"PAD{k+1}"
            out+=f"PAD{k}:\ns_cbranch_execz {nxt}"+parts[k+1]
        for w in range(walk): out=out.replace(f"@START{w}@",f"PAD{starts[w]}")
        txt=out
    return txt

if __name__=="__main__":
    import inspect
    p=argparse.ArgumentParser(); p.add_argument("-o")
    for k,v in inspect.signature(build).parameters.items():
        p.add_argument("--"+k,type=type(v.default),default=v.default)
    a=vars(p.parse_args()); o=a.pop("o")
    open(o,"w").write(build(**a))
```

```python
import sys, argparse
NAME="standalone__dense_activation_silu__prompt_kernel"
class Asm:
    def __init__(self): self.L=[]
    def __call__(self, s):
        for l in s.split("\n"): self.L.append(l)
    def text(self): return "\n".join(self.L)+"\n"
def vr(a,n): return f"v[{a}:{a+n-1}]"
def srd(A, d, b, nbytes):
    A(f"s_mov_b32 s{d}, s{b}\ns_and_b32 s{d+1}, s{b+1}, 0xffff\ns_mov_b32 s{d+2}, {nbytes}\ns_mov_b32 s{d+3}, 0x20000")
X_BYTES=2048*1024*2; W_BYTES=1024*3584*2; O_BYTES=2048*1024*2
H_OFF=0; P_OFF=24<<20; F_OFF=48<<20; T_OFF=64<<20
SX,SW1,SW2,SO,SD,SWS=16,20,24,28,32,36
sMt,sJ,sFt8,sFt,sLid,sXcd,sDt=40,41,42,43,44,45,63
OOB=0x7ffffff0
SPIN=1<<17
def R4(s): return f"s[{s}:{s+3}]"

def interleave(mf, rd):
    out=[]; k=0
    for m in mf:
        out.append(m)
        if k<len(rd): out.append(rd[k]); k+=1
    return out+rd[k:]
ORDER='ji'
def snake(JS,NI):
    JS=list(JS)
    if ORDER=='ij': return [(j,i) for i in range(NI) for j in (JS if i%2==0 else JS[::-1])]
    return [(j,(i if n%2==0 else NI-1-i)) for n,j in enumerate(JS) for i in range(NI)]

def build(diag=0, rot=8, pf1=5, pf2=1, pfc=1, outaux="sc1", pfa=12, dswz=0, w1aux="", xaux="", w2aux="", l1st=1, l2st=4, stag=1, l1epi=3, rmask=1, f3=9, skew2=3, pfb=0, stag2=1, remap=1, spa=0, spb=13, spn=4, ack=4, ldearly=1, pfi=2, w1s=6, sched=0, fch=6, pdelay=0, nb=2, clr0=0, dual=0, tlb=0, packfirst=1, spub=1, vpoll=0, hsi=12, hsglc='', cmask=0, cbase=1, walk=4, w2e=2, order='ji', esend=1, ldpos=0, fast=1, la1=0, hd=4, la2=0, npoll=2, tearly=2, nsh=0, two=0, tight2=1, tight1=1, lead=1, tl=0, tlw=16, tl0=0, sep=1, xp_it=0, xp_n=0, late=0, sl2=0, cprio=1, pprio=3, al=3, pj=0, w6=0, late2=1, pcw=16, pipe=0, wsplit=1, cw=1, zc=1, wlate=0, pskip=0, wnw=0, pp1=-1, ppt=-1, pp2=-1):
    global ORDER; ORDER=order
    assert ack+2!=hsi and tl not in (ack+5,hsi+3) and ack+2<=12 and (cbase+cmask<ack or sep) and nsh<=(4 if two else ack+2)
    A=Asm(); A_main=A; OOL=[]
    tm='s_memrealtime' if diag>=3 else 's_memtime'
    def stamp(k):
        if diag: A(f"{tm} s[{64+2*k}:{65+2*k}]")
    def rstamp(k):
        if diag: A(f"s_memrealtime s[{64+2*k}:{65+2*k}]")
    def sstamp():
        if diag==6: A(f"s_memtime s[90:91]\ns_memrealtime s[88:89]\ns_waitcnt lgkmcnt(0)\nv_writelane_b32 v254, s90, m0\nv_writelane_b32 v252, s88, m0\ns_add_u32 m0, m0, 1")
        if diag in (2,3): A(f"{tm} s[90:91]\ns_waitcnt lgkmcnt(0)\nv_writelane_b32 v254, s90, m0\ns_add_u32 m0, m0, 1")
    def flush(n, cons=False):
        if not diag: return
        if diag==5:
            ks=[6,8,9,1,2,4,5,10] if cons else [1,8,2,3,4,5]
            lab="DB_c" if cons else "DB_p"
            A(f"s_waitcnt lgkmcnt(0)\ns_and_b32 s60, s3, 3\ns_or_b32 s60, s60, s2\ns_cmp_eq_u32 s60, 0\ns_cbranch_scc0 {lab}\nv_lshlrev_b32 v1, 8, v2")
            for n_,k in enumerate(ks):
                A(f"s_sub_u32 s60, s{64+2*k}, s64\nv_mov_b32 v4, s60\nbuffer_store_dword v4, v1, {R4(SD)}, 0 offen offset:{4*(n_+(0 if cons else 8))} sc1")
            A(f"s_waitcnt vmcnt(0)\n{lab}:")
            return
        A(f"s_waitcnt lgkmcnt(0)\ns_lshl_b32 s60, s2, 3\ns_add_u32 s60, s60, s3\ns_lshl_b32 s60, s60, 8\ns_add_u32 s60, s60, {T_OFF}\nv_mov_b32 v1, 0")
        for k in range(n): A(f"v_mov_b32 v2, s{64+2*k}\nbuffer_store_dword v2, v1, {R4(SWS)}, s60 offen offset:{4*k}")
        if cons and diag>=2:
            A(f"v_and_b32 v1, 63, v0\nv_lshlrev_b32 v1, 2, v1\nv_mov_b32 v2, {OOB}\nv_cmp_gt_u32 vcc, 192, v1\ns_nop 1\nv_cndmask_b32 v1, v2, v1, vcc")
            A(f"buffer_store_dword v254, v1, {R4(SWS)}, s60 offen offset:64")
            if diag==6: A(f"s_add_u32 s60, s60, 0x80000\nbuffer_store_dword v252, v1, {R4(SWS)}, s60 offen offset:64")
        A("s_waitcnt vmcnt(0)")
    PAD='@PAD@' if walk else 's_nop 0'
    def pad():
        if walk: A(PAD)
    def spin_tail(label):
        A(f"s_cmp_lt_u32 s58, {SPIN}\ns_cselect_b64 s[60:61], -1, 0\ns_and_b64 vcc, vcc, s[60:61]\ns_cbranch_scc1 {label}")
    WST=28672; WOFF=65536
    QS=5120 if remap else 4096
    CH=2*QS
    def physline(dst,g,tmp,A=None):
        A=A or A_main
        if remap: A(f"v_add_u32 v{tmp}, 4, v{g}\nv_mul_u32_u24 v{tmp}, 37, v{tmp}\nv_lshrrev_b32 v{tmp}, 8, v{tmp}\nv_add_u32 v{tmp}, v{tmp}, v{g}\nv_lshlrev_b32 v{dst}, 7, v{tmp}")
        else: A(f"v_lshlrev_b32 v{dst}, 7, v{g}")
    def fragoffs(base,A=None,t=(4,5,6)):
        A=A or A_main
        A(f"v_and_b32 v{t[2]}, 7, v2\nv_lshlrev_b32 v{t[2]}, 4, v{t[2]}")
        for n in range(4):
            A(f"v_lshrrev_b32 v{t[1]}, 3, v2\nv_add_u32 v{t[1]}, {8*n}, v{t[1]}"); physline(base+n,t[1],t[0],A); A(f"v_add_u32 v{base+n}, v{base+n}, v{t[2]}")
    A("""; Fused feed-forward  out = silu(x @ w1) @ w2   (bf16 in/out, fp32 accumulation), one launch.
; Kernarg (48 bytes): 0 x[2048,1024]  8 w1[1024,3584]  16 w2[3584,1024]  24 out[2048,1024]  32 debug(256 B)  40 ws
; 256 workgroups, one per CU.  Waves 0-3 compute (16x16x32 MFMA), waves 4-7 stream tiles into LDS rings.
;   phase 1: h[128 x 224] = silu(x[128 x 1024] @ w1[1024 x 224]); h goes to LDS (own chunks) and, write-through, to ws
;   phase 2: partial[128 x 128] over one half of F; the 8 workgroups of a row block hand h over with flags in ws
;            (flags are reset by the row leader in this launch and announced through debug before anyone trusts them)
;   end    : the two K halves swap half tiles through ws (inbox reset to a sentinel by its owner), add and store out
; PADn labels are instruction-cache landing pads: a wave with EXEC = 0 hops over them once, touching no memory.
; @launch grid=(256,1,1) block=(512,1,1) lds="""+("163840" if w6 else "151552"))
    A('.amdgcn_target "amdgcn-amd-amdhsa--gfx950"\n.text')
    A(f".globl {NAME}\n.p2align 8\n.type {NAME},@function\n{NAME}:")
    A("s_load_dwordx8 s[4:11], s[0:1], 0\ns_load_dwordx4 s[12:15], s[0:1], 32")
    A("s_cmp_ge_u32 s2, 256\ns_cbranch_scc1 L_end")
    stamp(0); rstamp(14)
    if fast and pfc and pskip:
        A(f"v_lshrrev_b32 v1, 6, v0\nv_and_b32 v2, 63, v0\ns_cmp_lt_u32 s2, {pcw}\ns_cbranch_scc1 L_pfc\nL_pfcb:")
        PFC=(f"L_pfc:\ns_getpc_b64 s[54:55]\nC_pc:\nv_lshlrev_b32 v3, 7, v0\ns_sub_u32 s54, s54, C_pc-{NAME}\ns_subb_u32 s55, s55, 0\n"
             f"v_min_u32 v3, L_end-{NAME}, v3\ns_nop 0\nglobal_load_dword v255, v3, s[54:55]\ns_branch L_pfcb")
    elif fast and pfc:
        A(f"s_getpc_b64 s[54:55]\nC_pc:\nv_lshlrev_b32 v3, 7, v0\ns_sub_u32 s54, s54, C_pc-{NAME}\ns_subb_u32 s55, s55, 0")
        if pcw:
            A(f"s_cmp_lt_u32 s2, {pcw}\ns_cselect_b32 s3, L_end-{NAME}, 0\nv_min_u32 v3, s3, v3\nv_lshrrev_b32 v1, 6, v0\nglobal_load_dword v255, v3, s[54:55]\nv_and_b32 v2, 63, v0")
        else: A(f"v_min_u32 v3, L_end-{NAME}, v3\nv_lshrrev_b32 v1, 6, v0\nglobal_load_dword v255, v3, s[54:55]\nv_and_b32 v2, 63, v0")
    else: A("v_lshrrev_b32 v1, 6, v0\nv_and_b32 v2, 63, v0")
    A(f"v_readfirstlane_b32 s3, v1\ns_and_b32 s{sXcd}, s2, 7\ns_lshr_b32 s46, s2, 3")
    dec1=f"s_lshr_b32 s{sMt}, s{sXcd}, 1\ns_lshl_b32 s{sMt}, s{sMt}, 2\ns_lshr_b32 s47, s46, 3\ns_add_u32 s{sMt}, s{sMt}, s47\ns_and_b32 s{sJ}, s{sXcd}, 1"
    dec2=(f"s_and_b32 s{sFt8}, s46, 7\ns_lshl_b32 s{sFt}, s{sJ}, 3\ns_add_u32 s{sFt}, s{sFt}, s{sFt8}\n"
          f"s_lshl_b32 s{sLid}, s{sMt}, 4\ns_add_u32 s{sLid}, s{sLid}, s{sFt}\ns_xor_b32 s{sDt}, s{sJ}, 1\ns_mul_i32 s{sDt}, s{sDt}, {dswz}\ns_xor_b32 s{sDt}, s{sDt}, s{sFt8}")
    A(dec1); A(dec2)
    if fast and pf1==5:
        A("s_cmp_lt_u32 s3, 4\ns_cbranch_scc0 L_prod")
        A(f"s_lshr_b32 s58, s{sXcd}, 1\ns_lshl_b32 s59, s58, 2\ns_lshl_b32 s58, s58, 5\ns_add_u32 s58, s58, s46\ns_lshl_b32 s58, s58, 1\ns_add_u32 s58, s58, s{sJ}\ns_lshl_b32 s58, s58, 14")
        A("v_bfe_u32 v15, v0, 2, 3\nv_add_u32 v15, s59, v15\nv_and_b32 v15, 15, v15\nv_lshlrev_b32 v15, 7, v15\nv_lshrrev_b32 v14, 5, v0\nv_lshl_add_u32 v15, v14, 11, v15\nv_add_u32 v252, s58, v15")
        A("s_waitcnt lgkmcnt(0)\nglobal_load_dword v253, v252, s[4:5]\ns_branch L_cons")
        if pfc and pskip: A(PFC)
        A("L_prod:")
    elif fast and pf1==1:
        A("s_cmp_lt_u32 s3, 4\ns_cbranch_scc0 L_prod")
        A("v_lshrrev_b32 v15, 1, v0\ns_lshl_b32 s58, s2, 7\nv_add_u32 v15, s58, v15\nv_lshlrev_b32 v15, 7, v15\ns_waitcnt lgkmcnt(0)\nglobal_load_dword v253, v15, s[4:5]\ns_branch L_cons\nL_prod:")
    else:
        A("s_cmp_lt_u32 s3, 4\ns_cbranch_scc1 L_cons")
    sP,sKX,sKW,sLX,sLW,sRing,sCnt,sT0,sT1=46,47,48,49,50,51,52,53,54
    A(f"s_sub_u32 s{sP}, s3, 4")
    if pprio: A(f"s_setprio {pprio}")
    A("v_lshrrev_b32 v3, 3, v2\nv_and_b32 v4, 7, v2\nv_lshrrev_b32 v5, 4, v2\nv_xor_b32 v4, v4, v5\nv_lshlrev_b32 v4, 4, v4\nv_lshl_add_u32 v3, v3, 11, v4")
    A(f"s_lshl_b32 s{sT0}, s{sMt}, 18\ns_lshl_b32 s{sT1}, s{sP}, 16\ns_add_u32 s{sT0}, s{sT0}, s{sT1}\nv_add_u32 v8, s{sT0}, v3")
    A("v_xor_b32 v9, 64, v8\nv_add_u32 v9, 0x4000, v9\nv_add_u32 v10, 0x8000, v8\nv_add_u32 v11, 0x8000, v9")
    if not rot: A(f"s_mov_b32 s{sKX}, 0\ns_mov_b32 s{sKW}, 0")
    if rot:
        if rot in (1,2,4,5,6,7,8):
            if pj: A(f"s_lshr_b32 s{sT0}, s{sXcd}, 1\ns_lshl_b32 s{sT1}, s{sJ}, 1\ns_add_u32 s{sT0}, s{sT0}, s{sT1}\ns_and_b32 s{sT0}, s{sT0}, 3\ns_lshl_b32 s{sT0}, s{sT0}, 2")
            else: A(f"s_lshr_b32 s{sT0}, s{sXcd}, 1\ns_lshl_b32 s{sT0}, s{sT0}, 2")
            if rot==4: A(f"s_and_b32 s{sT0}, s{sT0}, 8")
        else: A(f"s_mov_b32 s{sT0}, 0")
        if rot>=5: A(f"s_mov_b32 s62, s{sT0}\ns_mov_b32 s60, 0\ns_mov_b32 s61, 0")
        if rot in (7,8): A(f"s_and_b32 s{sT1}, s{sMt}, 1\ns_lshl_b32 s{sT1}, s{sT1}, {rot-7}\ns_add_u32 s{sT0}, s{sT0}, s{sT1}")
        elif rot>=2: A(f"s_and_b32 s{sT1}, s{sMt}, 3\ns_add_u32 s{sT0}, s{sT0}, s{sT1}")
        A(f"s_lshl_b32 s{sKX}, s{sT0}, 7\ns_mul_i32 s{sKW}, s{sT0}, {64*7168}")
    sRX=57
    A(f"s_lshl_b32 s{sLX}, s{sP}, 12\ns_mov_b32 s{sRX}, 0\ns_mov_b32 s{SX+2}, {X_BYTES}\ns_mov_b32 s{SX+3}, 0x20000")
    A(f"s_waitcnt lgkmcnt(0)\ns_mov_b32 s{SX}, s4\ns_and_b32 s{SX+1}, s5, 0xffff")
    def nextk(c):
        if rot in (7,8):
            A(f"s_add_u32 s{c}, s{c}, 1\ns_and_b32 s{sT1}, s{c}, 8\ns_cselect_b32 s{sT0}, 1, 0\ns_xor_b32 s{sT0}, s{sT0}, s{sMt}\ns_and_b32 s{sT0}, s{sT0}, 1\ns_lshl_b32 s{sT0}, s{sT0}, {rot-7}\ns_add_u32 s{sT0}, s{sT0}, s{c}\ns_and_b32 s{sT0}, s{sT0}, 7")
            A(f"s_add_u32 s{sT0}, s{sT0}, s{sT1}\ns_add_u32 s{sT0}, s{sT0}, s62\ns_and_b32 s{sT0}, s{sT0}, 15")
            return
        if rot==6:
            A(f"s_add_u32 s{c}, s{c}, 1\ns_and_b32 s{sT1}, s{c}, 8\ns_cselect_b32 s{sT0}, 3, 0\ns_xor_b32 s{sT0}, s{sT0}, s{sMt}\ns_and_b32 s{sT0}, s{sT0}, 3\ns_add_u32 s{sT0}, s{sT0}, s{c}\ns_and_b32 s{sT0}, s{sT0}, 7")
            A(f"s_add_u32 s{sT0}, s{sT0}, s{sT1}\ns_add_u32 s{sT0}, s{sT0}, s62\ns_and_b32 s{sT0}, s{sT0}, 15")
            return
        A(f"s_add_u32 s{c}, s{c}, 1\ns_add_u32 s{sT0}, s{c}, s{sMt}\ns_and_b32 s{sT0}, s{sT0}, 3\ns_and_b32 s{sT1}, s{c}, 12\ns_add_u32 s{sT0}, s{sT0}, s{sT1}\ns_add_u32 s{sT0}, s{sT0}, s62\ns_and_b32 s{sT0}, s{sT0}, 15")
    def issueW1(part=None):
        inc=[1024,896,1024,896,1024,1280]
        ns=range(7) if part is None else (range(hd) if part==0 else range(hd,7))
        if part!=1: A(f"s_add_u32 m0, s{sRing}, s{sLW}\ns_add_u32 s{sRing}, s{sRing}, {WST}")
        else: A("s_mov_b32 m0, s1\ns_nop 0")
        for n in ns:
            a,o=n>>1,n&1
            if n<6:
                A(f"buffer_load_dwordx4 v{13+o}, {R4(SW1)}, s{sKW} offen offset:{a*128} {w1aux} lds")
                if part==0 and n==hd-1: A(f"s_add_u32 s1, m0, {inc[n]}")
                else:
                    A(f"s_add_u32 m0, m0, {inc[n]}")
                    A("s_nop 0" if n else f"s_cmp_eq_u32 s{sRing}, {WST*3}\ns_cselect_b32 s{sRing}, 0, s{sRing}")
            else:
                A(f"buffer_load_dwordx4 v12, {R4(SW1)}, s{sKW} offen {w1aux} lds\ns_add_u32 s{sKW}, s{sKW}, {64*7168}")
                if rot>=5:
                    nextk(60); A(f"s_mul_i32 s{sKW}, s{sT0}, {64*7168}\ns_add_u32 s{sKW}, s{sKW}, s59")
                elif rot: A(f"s_cmp_eq_u32 s{sKW}, s58\ns_cselect_b32 s{sKW}, s59, s{sKW}")
    def issueX():
        A(f"s_add_u32 m0, s{sRX}, s{sLX}\ns_add_u32 s{sRX}, s{sRX}, 16384")
        for n in range(4):
            A(f"buffer_load_dwordx4 v{8+n}, {R4(SX)}, s{sKX} offen {xaux} lds")
            if n<3: A("s_add_u32 m0, m0, 1024\n"+("s_nop 0" if n else f"s_and_b32 s{sRX}, s{sRX}, 0xffff"))
        if tight1: pass
        elif rot>=5:
            nextk(61); A(f"s_lshl_b32 s{sKX}, s{sT0}, 7")
        else: A(f"s_add_u32 s{sKX}, s{sKX}, 128\ns_and_b32 s{sKX}, s{sKX}, 2047")
    stamp(1)
    issueX()
    A(f"s_and_b32 s{sT0}, s{sFt8}, 1\ns_lshl_b32 s{sT1}, s{sT0}, 6")
    A("v_bfe_u32 v3, v2, 2, 3\nv_mul_u32_u24 v3, 7168, v3\nv_lshrrev_b32 v5, 5, v2\nv_and_b32 v4, 3, v2\nv_lshlrev_b32 v4, 4, v4")
    A(f"v_lshl_add_u32 v6, v5, 6, v3\nv_add3_u32 v13, v6, v4, s{sT1}\nv_xor_b32 v14, 32, v13\nv_add_u32 v14, {8*7168}, v14")
    A(f"s_xor_b32 s{sT0}, s{sT0}, 1\ns_mul_i32 s{sT0}, s{sT0}, 384\nv_lshrrev_b32 v3, 2, v2\nv_mul_u32_u24 v3, 7168, v3\nv_lshlrev_b32 v5, 5, v5\nv_xor_b32 v4, v4, v5\nv_add3_u32 v12, v3, v4, s{sT0}")
    A(f"s_mul_i32 s59, s{sP}, {16*7168}\ns_mul_i32 s{sT0}, s{sFt}, 448\ns_add_u32 s59, s59, s{sT0}\ns_add_u32 s{sKW}, s{sKW}, s59\ns_add_u32 s58, s59, {1024*7168}")
    A(f"s_mul_i32 s{sLW}, s{sP}, 7168\ns_add_u32 s{sLW}, s{sLW}, {WOFF}\ns_mov_b32 s{sRing}, {2*WST}")
    srd(A,SW1,6,W_BYTES)
    if la1 or tearly: issueW1(0)
    else: issueW1(); issueX(); issueW1()
    srd(A,SW2,8,W_BYTES); srd(A,SWS,14,0x10000000)
    if diag==5: srd(A,SD,12,256)
    sHp,sHalf=55,56
    if tlb:
        A(f"s_cmp_lt_u32 s2, {tlb}\ns_cbranch_scc0 P1_ntlb\ns_lshl_b32 s{sT0}, s{sP}, 21")
        A(f"s_add_u32 s4, s8, s{sT0}\ns_addc_u32 s5, s9, 0\ns_load_dword s0, s[4:5], 0")
        A(f"s_lshr_b32 s{sT1}, s{sT0}, 1\ns_add_u32 s4, s10, s{sT1}\ns_addc_u32 s5, s11, 0\ns_load_dword s0, s[4:5], 0")
        for b in (0, 8<<20, 16<<20, P_OFF, F_OFF):
            A(f"s_add_u32 s{sT1}, s{sT0}, {b}\ns_add_u32 s4, s14, s{sT1}\ns_addc_u32 s5, s15, 0\ns_load_dword s0, s[4:5], 0")
        A("P1_ntlb:")
    if tl0:
        A(f"s_cmp_lt_u32 s2, {tlw}\ns_cbranch_scc0 P1_nt0\ns_lshl_b32 s{sT0}, s{sP}, 21\ns_add_u32 s{sT0}, s{sT0}, {P_OFF}\ns_cmp_eq_u32 s{sP}, 3\ns_cselect_b32 s{sT0}, {F_OFF}, s{sT0}")
        A(f"s_add_u32 s4, s14, s{sT0}\ns_addc_u32 s5, s15, 0\ns_load_dword s0, s[4:5], 0\nP1_nt0:")
    A(f"s_lshr_b32 s4, s{sLid}, 3\ns_lshl_b32 s4, s4, 10\ns_add_u32 s4, s4, {F_OFF+fch*128}\ns_add_u32 s4, s14, s4\ns_addc_u32 s5, s15, 0")
    A(f"s_lshl_b32 s6, s{sMt}, 4\ns_add_u32 s6, s12, s6\ns_addc_u32 s7, s13, 0")
    def spf():
        if pf2 not in (3,4): return
        for k in range(4): A(f"s_load_dword s12, s[8:9], {k*64}")
        A(f"s_add_u32 s13, s13, 1\ns_and_b32 s{sT0}, s13, 7\ns_cselect_b32 s{sT0}, 0, {131072-2048}\ns_add_u32 s{sT0}, s{sT0}, 256\ns_add_u32 s8, s8, s{sT0}\ns_addc_u32 s9, s9, 0")
    if pf2 in (3,4):
        A(f"s_lshl_b32 s12, s2, 2\ns_add_u32 s12, s12, s{sP}")
        A(f"s_lshr_b32 s{sT0}, s12, 6\ns_mul_i32 s13, s{sT0}, 7\ns_and_b32 s{sT0}, s{sT0}, 1")
        A(f"s_xor_b32 s{sT1}, s{sT0}, 1\ns_mul_i32 s{sT1}, s{sT1}, 6\ns_add_u32 s{sT1}, s{sT1}, s13\ns_lshl_b32 s{sT1}, s{sT1}, 16\ns_and_b32 s14, s12, 63\ns_lshl_b32 s14, s14, 10\ns_add_u32 s{sT1}, s{sT1}, s14")
        A(f"s_add_u32 s14, s8, s{sT1}\ns_addc_u32 s15, s9, 0")
        A(f"s_add_u32 s13, s13, s{sT0}\ns_lshl_b32 s13, s13, 16\ns_and_b32 s12, s12, 63\ns_lshl_b32 s12, s12, 11\ns_add_u32 s13, s13, s12\ns_add_u32 s8, s8, s13\ns_addc_u32 s9, s9, 0\ns_mov_b32 s13, 0")
    A(f"s_lshr_b32 s{sHp}, s{sP}, 1\ns_and_b32 s{sHalf}, s{sP}, 1")
    A("v_subrev_u32 v5, 3, v2\nv_mul_u32_u24 v3, 37, v5\nv_lshrrev_b32 v3, 8, v3\nv_mul_u32_u24 v4, 7, v3\nv_sub_u32 v4, v5, v4")
    if skew2==3: A(f"v_add_u32 v6, s{sMt}, v3\nv_and_b32 v6, 3, v6\nv_add_u32 v4, v6, v4\nv_subrev_u32 v6, 7, v4\nv_min_u32 v4, v4, v6")
    elif skew2: A(f"s_and_b32 s{sT0}, s{sMt}, 3\ns_mul_i32 s{sT0}, s{sT0}, {3-skew2}\nv_add_u32 v4, s{sT0}, v4\nv_subrev_u32 v6, 7, v4\nv_min_u32 v4, v4, v6")
    A("v_add_u32 v4, 1, v4")
    A("v_cmp_gt_u32 vcc, 3, v2\ns_nop 1\nv_cndmask_b32 v3, v3, v2, vcc\nv_cndmask_b32 v4, v4, 0, vcc")
    A(f"v_add_u32 v4, s{sFt8}, v4\nv_and_b32 v4, 7, v4\nv_and_b32 v6, 1, v4\nv_mul_u32_u24 v4, 7, v4\nv_lshl_add_u32 v4, v3, 1, v4\nv_add3_u32 v4, v4, v6, s{sHp}")
    A(f"s_and_b32 s{sT0}, s{sMt}, {3 if skew2 else 0}\nv_add_u32 v5, s{sT0}, v2\nv_and_b32 v5, 3, v5\nv_mul_u32_u24 v5, 14, v5\nv_add3_u32 v5, v5, 6, s{sHp}")
    A("v_cmp_gt_u32 vcc, 24, v2\ns_nop 1\nv_cndmask_b32 v4, v5, v4, vcc\nv_and_b32 v4, 63, v4")
    A(f"s_mul_i32 s{sT0}, s{sJ}, 56\nv_add_u32 v4, s{sT0}, v4")
    A(f"s_mul_i32 s{sT0}, s{sMt}, {112*CH}\ns_mul_i32 s{sT1}, s{sHalf}, {QS}\ns_add_u32 s{sT0}, s{sT0}, s{sT1}")
    A(f"v_mul_u32_u24 v20, {CH}, v4\nv_add_u32 v20, s{sT0}, v20")
    A(f"s_lshl_b32 s{sT0}, s{sHalf}, 15\ns_lshl_b32 s{sT1}, s{sHalf}, 13\nv_mov_b32 v5, s{sT0}\nv_mov_b32 v6, s{sT1}\nv_cndmask_b32 v5, v6, v5, vcc")
    A(f"v_lshl_add_u32 v21, v4, 16, v5\ns_lshl_b32 s{sT0}, s{sDt}, 8\nv_add_u32 v21, s{sT0}, v21")
    A("v_and_b32 v4, 3, v2\nv_bfe_u32 v5, v2, 4, 1\nv_lshlrev_b32 v6, 1, v5\nv_xor_b32 v4, v4, v6\nv_lshlrev_b32 v4, 4, v4")
    A("v_lshrrev_b32 v6, 5, v2\nv_lshl_add_u32 v4, v6, 6, v4")
    A("v_bfe_u32 v6, v2, 2, 3\nv_lshl_add_u32 v22, v6, 11, v4\nv_add_u32 v23, 0x4000, v22")
    A("v_lshl_add_u32 v24, v5, 13, v22\nv_add_u32 v25, 0x8000, v24")
    fragoffs(26)
    if tight1:
        assert rot==8 and tearly==2 and not nsh and not la1 and spub and hsi and not two
        A(f"v_bfe_u32 v3, v2, 3, 1\nv_xor_b32 v3, s{sMt}, v3\nv_and_b32 v3, 1, v3\nv_lshl_add_u32 v3, v3, 1, v2\nv_and_b32 v3, 7, v3\nv_and_b32 v4, 8, v2\nv_add3_u32 v3, v3, v4, s62\nv_and_b32 v3, 15, v3")
        A(f"v_lshlrev_b32 v30, 7, v3\nv_mul_u32_u24 v31, {64*7168}, v3\nv_add_u32 v31, s59, v31")
    if diag==5: stamp(8)
    if tight1:
        xl=[f"buffer_load_dwordx4 v{8+n}, {R4(SX)}, s{sKX} offen {xaux} lds" for n in range(4)]
        wl=[f"buffer_load_dwordx4 v{13+(n&1)}, {R4(SW1)}, s{sKW} offen offset:{(n>>1)*128} {w1aux} lds" for n in range(6)]+[f"buffer_load_dwordx4 v12, {R4(SW1)}, s{sKW} offen {w1aux} lds"]
        inc=[1024,896,1024,896,1024,1280]
        def Wt(): A(f"s_mov_b32 m0, s1\ns_nop 0\n{wl[4]}\ns_add_u32 m0, m0, {inc[4]}\ns_nop 0\n{wl[5]}\ns_add_u32 m0, m0, {inc[5]}\ns_nop 0\n{wl[6]}")
        def Xs(fill):
            A(f"s_add_u32 m0, s{sRX}, s{sLX}\ns_add_u32 s{sRX}, s{sRX}, 16384")
            for n in range(4):
                A(xl[n])
                if n<3: A(f"s_add_u32 m0, m0, 1024\n{fill[n]}")
        assert hd==4
        andx=f"s_and_b32 s{sRX}, s{sRX}, 0xffff"
        A(f"v_readlane_b32 s{sKX}, v30, 1")
        Wt(); Xs([f"v_readlane_b32 s{sKW}, v31, 1", andx, "s_nop 0"])
        issueW1(0)
        A(f"v_readlane_b32 s{sKX}, v30, 2\ns_waitcnt vmcnt(8)")
        stamp(2)
        A("s_barrier")
        Wt(); Xs([f"v_readlane_b32 s{sKW}, v31, 2", andx, f"s_mov_b32 s{sCnt}, 2"])
        if pp1>=0: A(f"s_setprio {pp1}")
        A(f"s_mov_b32 s61, {(1<<(ack+2+3))|(1<<(hsi+3))|((1<<tl) if tl else 0)}\ns_add_u32 m0, s{sRing}, s{sLW}\ns_branch P1_w")
        A(f".p2align {al}\nP1_loop:")
        A(f"s_bitcmp1_b32 s61, s{sCnt}\ns_cbranch_scc1 P1_hk\nP1_hkb:")
        Xs([f"v_readlane_b32 s{sKW}, v31, s{sCnt}", andx, "s_nop 0"])
        A(f"s_add_u32 m0, s{sRing}, s{sLW}\ns_waitcnt vmcnt(15)\ns_barrier\nP1_w:")
        fill=[f"s_add_u32 s{sCnt}, s{sCnt}, 1", f"s_add_u32 s{sRing}, s{sRing}, {WST}", f"v_readlane_b32 s{sKX}, v30, s{sCnt}",
              f"s_cmp_eq_u32 s{sRing}, {WST*3}\ns_cselect_b32 s{sRing}, 0, s{sRing}", "s_nop 0", f"s_cmp_lt_u32 s{sCnt}, 16"]
        for n in range(7):
            A(wl[n])
            if n<6: A(f"s_add_u32 m0, m0, {inc[n]}\n{fill[n]}")
        A("s_cbranch_scc1 P1_loop\ns_branch P1_done")
        A("P1_hk:")
        if tl:
            A(f"s_cmp_eq_u32 s{sCnt}, {tl}\ns_cbranch_scc0 P1_hk0\ns_cmp_lt_u32 s2, {tlw}\ns_cbranch_scc0 P1_hkb\ns_lshl_b32 s{sT0}, s{sP}, 21")
            A(f"s_add_u32 s12, s8, s{sT0}\ns_addc_u32 s13, s9, 0\ns_load_dword s0, s[12:13], 0")
            A(f"s_lshr_b32 s{sT1}, s{sT0}, 1\ns_add_u32 s12, s10, s{sT1}\ns_addc_u32 s13, s11, 0\ns_load_dword s0, s[12:13], 0")
            for b in (0, 8<<20, 16<<20):
                A(f"s_add_u32 s{sT1}, s{sT0}, {b}\ns_add_u32 s12, s14, s{sT1}\ns_addc_u32 s13, s15, 0\ns_load_dword s0, s[12:13], 0")
            A("s_branch P1_hkb\nP1_hk0:")
        A(f"s_cmp_eq_u32 s{sCnt}, {hsi+3}\ns_cbranch_scc0 P1_hk1\ns_cmp_eq_u32 s{sP}, 0\ns_cbranch_scc0 P1_hkb\ns_load_dwordx4 s[28:31], s[6:7], 0 {hsglc}\ns_branch P1_hkb")
        if lead: A(f"P1_hk1:\ns_lshl_b32 s1, s{sFt}, 2\ns_add_u32 s1, s1, s{sP}\ns_cmp_eq_u32 s1, 2\ns_cbranch_scc0 P1_hkb\ns_mov_b32 s1, 1\ns_atomic_add s1, s[6:7], 0\ns_branch P1_hkb")
        else: A(f"P1_hk1:\ns_cmp_eq_u32 s{sP}, 2\ns_cbranch_scc0 P1_hkb\ns_and_b32 s1, s{sFt}, 3\ns_lshl_b32 s1, s1, 3\ns_lshl_b32 s1, 1, s1\ns_and_b32 s{sT0}, s{sFt}, 12\ns_atomic_or s1, s[6:7], s{sT0}\ns_branch P1_hkb")
        A("P1_done:")
        if ppt>=0: A(f"s_setprio {ppt}")
        pad()
    else:
        if la1:
            A(f"s_mov_b32 s{sCnt}, -1\ns_branch P1_in")
            A(f"P1_loop:\ns_waitcnt vmcnt({4+hd})")
            if diag: A(f"s_cmp_eq_u32 s{sCnt}, 0\ns_cbranch_scc0 P1_ns"); stamp(2); A("P1_ns:")
            A("s_barrier\nP1_in:")
            issueW1(1); issueX(); issueW1(0)
        else:
            if nsh:
                A(f"s_mov_b32 s{sCnt}, -1\ns_branch P1_shin\nP1_sh:\ns_waitcnt vmcnt({4+hd})")
                if diag: A(f"s_cmp_eq_u32 s{sCnt}, 0\ns_cbranch_scc0 P1_ns"); stamp(2); A("P1_ns:")
                A("s_barrier\nP1_shin:")
                issueW1(1); issueX()
                A(f"s_cmp_eq_u32 s{sCnt}, {nsh}\ns_cbranch_scc1 P1_in")
                issueW1(0)
                A(f"s_add_u32 s{sCnt}, s{sCnt}, 1\ns_branch P1_sh")
            else:
                if tearly==1: issueW1(1); issueX(); issueW1()
                if tearly==2: issueW1(1); issueX(); issueW1(0)
                A(f"s_waitcnt vmcnt({4+hd if tearly==2 else 11})")
                stamp(2)
                A("s_barrier")
                if tearly==2: issueW1(1)
                issueX()
                A(f"s_mov_b32 s{sCnt}, 0\ns_branch P1_in")
            A("P1_loop:\ns_waitcnt vmcnt(15)\ns_barrier\nP1_in:")
            issueW1(); issueX()
        if spub and two:
            A(f"s_lshl_b32 s{sT0}, s{sP}, 8\ns_add_u32 s{sT0}, s{sT0}, s{sCnt}\ns_cmp_eq_u32 s{sT0}, {512+4}\ns_cselect_b32 s0, 1, 0\ns_cmp_eq_u32 s{sT0}, {512+ack+2}\ns_cselect_b32 s0, 2, s0\ns_cmp_eq_u32 s0, 0\ns_cbranch_scc1 P1_npub")
            A(f"s_and_b32 s{sT0}, s{sFt}, 3\ns_lshl_b32 s{sT0}, s{sT0}, 3\ns_lshl_b32 s0, s0, s{sT0}\ns_and_b32 s{sT0}, s{sFt}, 12\ns_atomic_or s0, s[6:7], s{sT0}\nP1_npub:")
        elif spub:
            A(f"s_lshl_b32 s{sT0}, s{sP}, 8\ns_add_u32 s{sT0}, s{sT0}, s{sCnt}\ns_cmp_eq_u32 s{sT0}, {512+ack+2}\ns_cbranch_scc0 P1_npub")
            A(f"s_and_b32 s0, s{sFt}, 3\ns_lshl_b32 s0, s0, 3\ns_lshl_b32 s0, 1, s0\ns_and_b32 s{sT0}, s{sFt}, 12\ns_atomic_or s0, s[6:7], s{sT0}\nP1_npub:")
        if hsi:
            assert pf2 not in (3,4)
            A(f"s_lshl_b32 s{sT0}, s{sP}, 8\ns_add_u32 s{sT0}, s{sT0}, s{sCnt}\ns_cmp_eq_u32 s{sT0}, {hsi}\ns_cbranch_scc0 P1_nh\ns_load_dwordx4 s[28:31], s[6:7], 0 {hsglc}\nP1_nh:")
        if pf2==4:
            spf()
            A(f"s_cmp_lt_u32 s{sCnt}, 3\ns_cbranch_scc0 P1_nspf")
            spf()
            A("P1_nspf:")
        if pf2==3:
            A(f"s_sub_u32 s{sT0}, s{sCnt}, {spa}\ns_cmp_lt_u32 s{sT0}, {spb-spa}\ns_cbranch_scc0 P1_nspf")
            spf()
            A("P1_nspf:")
        A(f"s_add_u32 s{sCnt}, s{sCnt}, 1\ns_cmp_lt_u32 s{sCnt}, {14 if la1 else 13}\ns_cbranch_scc1 P1_loop")
        pad()
        A(f"s_waitcnt vmcnt({4+hd if la1 else 15})\ns_barrier")
        issueW1(1 if la1 else None)
    sW,sH,sSlot,sLW2,sLH=47,48,51,50,49
    A(f"s_lshl_b32 s{sLH}, s{sP}, 12\ns_add_u32 s{sLW2}, s{sLH}, 65536\ns_mov_b32 s{sCnt}, 0\ns_mov_b32 s{sSlot}, 0")
    def issueW():
        A(f"s_add_u32 m0, s{sLW2}, s{sSlot}\ns_nop 0")
        for n in range(4):
            o,tb=n>>1,n&1
            A(f"buffer_load_dwordx4 v{22+o}, {R4(SW2)}, s{sW} offen offset:{tb*128} {w2aux} lds")
            if n<3: A(f"s_add_u32 m0, m0, {896 if tb==0 else 1024+128}\ns_nop 0")
    def issueH():
        A(f"s_add_u32 m0, s{sLH}, s{sSlot}\ns_nop 0")
        for n in range(4):
            A(f"buffer_load_dwordx4 v{26+n}, {R4(SWS)}, s{sH} offen sc1 lds")
            if n<3: A("s_add_u32 m0, m0, 1024\ns_nop 0")
    A(f"v_readlane_b32 s{sW}, v21, 0")
    if not la1: A("s_waitcnt vmcnt(7)\ns_barrier")
    if not hsi: A(f"s_cmp_eq_u32 s{sP}, 0\ns_cbranch_scc0 P2_nh\ns_load_dwordx4 s[28:31], s[6:7], 0 glc\nP2_nh:")
    A("s_waitcnt vmcnt(0)\ns_barrier")
    def nextW(): A(f"s_add_u32 s{sCnt}, s{sCnt}, 1\ns_add_u32 s{sSlot}, s{sSlot}, 16384\nv_readlane_b32 s{sW}, v21, s{sCnt}\ns_nop 2")
    if w2e:
        A("s_branch P2_w0\nP2_w:"); nextW(); A("P2_w0:"); issueW()
        A(f"s_cmp_lt_u32 s{sCnt}, {w2e}\ns_cbranch_scc1 P2_w")
        A("s_barrier")
        pad()
        A("P2_w2:"); nextW(); issueW()
        A(f"s_cmp_lt_u32 s{sCnt}, 3\ns_cbranch_scc1 P2_w2")
    else:
        issueW()
        A("s_barrier")
        pad()
        A("P2_w:"); nextW(); issueW()
        A(f"s_cmp_lt_u32 s{sCnt}, {5 if w6==1 else 3}\ns_cbranch_scc1 P2_w")
    A(f"s_cmp_eq_u32 s{sP}, 0\ns_cbranch_scc0 P2_hsd\ns_mov_b32 s58, 0\ns_branch P2_hsw")
    A("P2_hs:\ns_load_dwordx4 s[28:31], s[6:7], 0 glc\ns_add_u32 s58, s58, 1\nP2_hsw:\ns_waitcnt lgkmcnt(0)")
    if lead: A(f"s_cmp_ge_u32 s58, {SPIN}\ns_cbranch_scc1 P2_hsd\ns_cmp_eq_u32 s28, 0\ns_cbranch_scc1 P2_hs\nP2_hsd:")
    else:
        A(f"s_and_b32 s28, s28, s29\ns_and_b32 s30, s30, s31\ns_and_b32 s28, s28, s30\ns_and_b32 s28, s28, 0x01010101\ns_cmp_ge_u32 s58, {SPIN}\ns_cbranch_scc1 P2_hsd\ns_cmp_eq_u32 s28, 0x01010101\ns_cbranch_scc0 P2_hs\nP2_hsd:")
    A(f"s_lshr_b32 s59, s{sLid}, 3\ns_lshl_b32 s59, s59, 10\ns_add_u32 s59, s59, {F_OFF+fch*128}\ns_lshl_b32 s{sT0}, s{sFt8}, 2")
    A(f"v_mov_b32 v5, {OOB}\nv_mov_b32 v6, s{sT0}\nv_cmp_eq_u32 vcc, 0, v2\nv_and_b32 v3, 7, v2\nv_lshlrev_b32 v3, 2, v3\nv_cndmask_b32 v6, v5, v6, vcc\nv_mov_b32 v5, 1")
    A(f"v_readlane_b32 s{sH}, v20, 3\ns_waitcnt vmcnt({20 if w6==1 else 12})")
    stamp(3)
    A("s_barrier")
    stamp(6)
    A(f"s_cmp_eq_u32 s{sP}, 1\ns_cbranch_scc0 P2_nf\nbuffer_store_dword v5, v6, {R4(SWS)}, s59 offen sc1\ns_nop 1\nv_mov_b32 v5, 7\nP2_nf:")
    if w6==2:
        A("P2_w45:"); nextW(); issueW()
        A(f"s_cmp_lt_u32 s{sCnt}, 5\ns_cbranch_scc1 P2_w45")
    A(f"s_mov_b32 s62, 0\ns_cmp_eq_u32 s{sP}, 0\ns_cbranch_scc1 P2_p0\ns_waitcnt vmcnt({8 if w6==2 else 0})\ns_branch P2_go\nP2_p0:\ns_mov_b32 s58, 0")
    if pdelay: A(f"s_mov_b32 s16, 0\nP2_dl:\ns_add_u32 s16, s16, 1\ns_cmp_lt_u32 s16, {pdelay}\ns_cbranch_scc1 P2_dl")
    stamp(7)
    if vpoll:
        A(f"P2_l1:\nbuffer_load_dword v4, v3, {R4(SWS)}, s59 offen sc1\ns_add_u32 s58, s58, 1\ns_waitcnt vmcnt(0)\nv_cmp_eq_u32 vcc, 0, v4")
        spin_tail("P2_l1")
    else:
        A("P2_l1:\ns_load_dwordx8 s[16:23], s[4:5], 0 glc\ns_add_u32 s58, s58, 1\ns_waitcnt lgkmcnt(0)")
        A("s_and_b64 s[16:17], s[16:17], s[18:19]\ns_and_b64 s[20:21], s[20:21], s[22:23]\ns_and_b64 s[16:17], s[16:17], s[20:21]\ns_and_b32 s16, s16, s17")
        A(f"s_cmp_ge_u32 s58, {SPIN}\ns_cbranch_scc1 P2_rdy\ns_bitcmp1_b32 s16, 0\ns_cbranch_scc1 P2_rdy")
        if la2: A(f"s_cmp_eq_u32 s58, {npoll}\ns_cbranch_scc0 P2_l1\ns_waitcnt vmcnt(0)\ns_barrier\ns_mov_b32 s62, 1")
        A("s_branch P2_l1")
    A("P2_rdy:")
    if diag and diag!=5: stamp(9); A("s_mov_b32 s80, s58")
    A(f"s_mov_b32 m0, 49152\ns_mov_b32 s58, 0")
    A("P2_h3:")
    for n in range(4): A(f"buffer_load_dwordx4 v{26+n}, {R4(SWS)}, s{sH} offen sc1 lds\ns_add_u32 m0, m0, 1024\n"+("s_nop 0" if n<3 else f"s_add_u32 s{sH}, s{sH}, {QS}"))
    A("s_add_u32 s58, s58, 1\ns_cmp_lt_u32 s58, 4\ns_cbranch_scc1 P2_h3")
    A("P2_go:")
    if pp2>=0: A(f"s_setprio {pp2}")
    pad()
    stamp(4)
    PL=f"buffer_load_dword v4, v3, {R4(SWS)}, s59 offen sc1"
    POOL=[]
    if tight2:
        assert not la2 and not two and pf2 not in (3,4) and l1epi==3
        mask=(1<<(l1st+5))|(1<<9)|(1<<(8 if sl2 else 10))|(1<<(21 if w6 else 23))|(((1<<14)|(1<<20)) if lead else 0)
        wl=[f"buffer_load_dwordx4 v{22+(n>>1)}, {R4(SW2)}, s{sW} offen offset:{(n&1)*128} {w2aux} lds" for n in range(4)]
        hl=[f"buffer_load_dwordx4 v{26+n}, {R4(SWS)}, s{sH} offen sc1 lds" for n in range(4)]
        if w6:
            sWs=62
            A(f"s_mov_b32 s{sCnt}, 4\ns_mov_b32 s57, {mask}\nv_readlane_b32 s{sW}, v21, 6\ns_mov_b32 s{sSlot}, 0\ns_mov_b32 s{sWs}, 0\ns_mov_b32 m0, s{sLW2}\ns_branch P2_bar")
            A(f".p2align {al}\nP2_loop:")
            A(f"s_bitcmp1_b32 s57, s{sCnt}\ns_cbranch_scc1 P2_hk\nP2_hkb:")
            def Hs(f):
                A(f"s_add_u32 m0, s{sLH}, s{sSlot}\ns_add_u32 s{sCnt}, s{sCnt}, 1")
                A(f"{hl[0]}\ns_add_u32 m0, m0, 1024\n{f[0]}")
                A(f"{hl[1]}\ns_add_u32 m0, m0, 1024\ns_add_u32 s{sSlot}, s{sSlot}, 16384")
                A(f"{hl[2]}\ns_add_u32 m0, m0, 1024\ns_and_b32 s{sSlot}, s{sSlot}, 0xffff")
                A(hl[3])
            Hs([f"v_readlane_b32 s{sW}, v21, s{sT1}"])
            A(f"s_add_u32 m0, s{sLW2}, s{sWs}\nP2_bar:\ns_waitcnt vmcnt(16)\ns_barrier")
            A(f"s_cmp_lt_u32 s{sCnt}, 26\ns_cbranch_scc0 P2_out")
            A(f"{wl[0]}\ns_add_u32 m0, m0, 896\nv_readlane_b32 s{sH}, v20, s{sCnt}")
            A(f"{wl[1]}\ns_add_u32 m0, m0, 1152\ns_add_u32 s{sWs}, s{sWs}, 16384")
            A(f"{wl[2]}\ns_add_u32 m0, m0, 896\ns_add_u32 s{sT1}, s{sCnt}, 3")
            A(f"{wl[3]}\ns_cmp_eq_u32 s{sWs}, {6*16384}\ns_cselect_b32 s{sWs}, 0, s{sWs}\ns_branch P2_loop")
        else:
            A(f"s_mov_b32 s{sCnt}, 4\ns_mov_b32 s57, {mask}\nv_readlane_b32 s{sW}, v21, 4\ns_mov_b32 s{sSlot}, 0\ns_mov_b32 m0, s{sLW2}\ns_branch P2_bar")
            A(f".p2align {al}\nP2_loop:")
            A(f"s_bitcmp1_b32 s57, s{sCnt}\ns_cbranch_scc1 P2_hk\nP2_hkb:")
            A(f"s_add_u32 m0, s{sLH}, s{sSlot}\ns_add_u32 s{sCnt}, s{sCnt}, 1")
            A(f"{hl[0]}\ns_add_u32 m0, m0, 1024\nv_readlane_b32 s{sW}, v21, s{sCnt}")
            A(f"{hl[1]}\ns_add_u32 m0, m0, 1024\ns_add_u32 s{sSlot}, s{sSlot}, 16384")
            A(f"{hl[2]}\ns_add_u32 m0, m0, 1024\ns_and_b32 s{sSlot}, s{sSlot}, 0xffff")
            A(f"{hl[3]}\ns_add_u32 m0, s{sLW2}, s{sSlot}\nP2_bar:\ns_waitcnt vmcnt(16)\ns_barrier")
            A(f"s_cmp_lt_u32 s{sCnt}, {24 if wsplit else 28}\ns_cbranch_scc0 P2_out")
            A(f"{wl[0]}\ns_add_u32 m0, m0, 896\nv_readlane_b32 s{sH}, v20, s{sCnt}")
            A(f"{wl[1]}\ns_add_u32 m0, m0, 1152\ns_nop 0")
            A(f"{wl[2]}\ns_add_u32 m0, m0, 896\ns_nop 0")
            A(f"{wl[3]}\ns_branch P2_loop")
        A("P2_hk:"); pad()
        A(f"s_cmp_eq_u32 s{sCnt}, {21 if w6 else 23}\ns_cbranch_scc0 P2_hk1\nv_mov_b32 v22, v24\nv_mov_b32 v23, v25\ns_branch P2_hkb")
        A("P2_hk1:")
        if lead:
            A(f"s_cmp_lt_u32 s{sCnt}, 14\ns_cbranch_scc1 P2_hk1a\ns_cmp_eq_u32 s{sP}, 0\ns_cbranch_scc0 P2_hkb\ns_mov_b32 s58, 0\ns_cmp_eq_u32 s{sCnt}, 20\ns_cbranch_scc1 P2_pw")
            A(f"s_xor_b32 s4, s4, 1024\ns_xor_b32 s{sT0}, s{sFt8}, {dswz}\ns_lshl_b32 s{sT0}, s{sT0}, 2\ns_add_u32 s4, s4, s{sT0}\ns_load_dword s28, s[4:5], 0 glc\ns_branch P2_hkb")
            A(f"P2_pl:\ns_load_dword s28, s[4:5], 0 glc\ns_add_u32 s58, s58, 1\nP2_pw:\ns_waitcnt lgkmcnt(0)\ns_cmp_ge_u32 s58, {SPIN}\ns_cbranch_scc1 P2_hkb\ns_cmp_eq_u32 s28, 0\ns_cbranch_scc1 P2_pl\ns_branch P2_hkb\nP2_hk1a:")
        if sl2:
            assert l1st+5<8
            A(f"s_cmp_lt_u32 s{sCnt}, 8\ns_cbranch_scc0 P2_hk2\ns_cmp_eq_u32 s{sP}, 1\ns_cbranch_scc0 P2_hkb\nbuffer_store_dword v5, v6, {R4(SWS)}, s59 offen sc1\ns_branch P2_hkb")
            A(f"P2_hk2:\ns_cmp_eq_u32 s{sP}, 0\ns_cbranch_scc0 P2_hkb\ns_mov_b32 s58, 0\ns_cmp_eq_u32 s{sCnt}, 9\ns_cbranch_scc1 P2_l2w\ns_load_dwordx8 s[16:23], s[4:5], 0 glc\ns_branch P2_hkb")
            A("P2_l2:\ns_load_dwordx8 s[16:23], s[4:5], 0 glc\ns_add_u32 s58, s58, 1\nP2_l2w:\ns_waitcnt lgkmcnt(0)")
            A("s_and_b64 s[16:17], s[16:17], s[18:19]\ns_and_b64 s[20:21], s[20:21], s[22:23]\ns_and_b64 s[16:17], s[16:17], s[20:21]\ns_and_b32 s16, s16, s17")
            A(f"s_cmp_ge_u32 s58, {SPIN}\ns_cbranch_scc1 P2_hkb\ns_cmp_eq_u32 s16, 7\ns_cbranch_scc0 P2_l2")
        else:
            A(f"s_cmp_eq_u32 s{sCnt}, 9\ns_cbranch_scc0 P2_hk2\n{PL}\ns_branch P2_hkb")
            A(f"P2_hk2:\ns_cmp_eq_u32 s{sCnt}, 10\ns_cbranch_scc1 P2_hk3\ns_cmp_eq_u32 s{sP}, 1\ns_cbranch_scc0 P2_hkb\nbuffer_store_dword v5, v6, {R4(SWS)}, s59 offen sc1\ns_branch P2_hkb")
            A("P2_hk3:\ns_waitcnt vmcnt(8)\nv_cmp_gt_u32 vcc, 7, v4\ns_mov_b32 s58, 0\ns_nop 3\ns_cbranch_vccz P2_hkb")
            A(f"P2_l2:\n{PL}\ns_add_u32 s58, s58, 1\ns_waitcnt vmcnt(0)\nv_cmp_gt_u32 vcc, 7, v4")
            spin_tail("P2_l2")
        A("s_branch P2_hkb\nP2_out:")
        if wsplit:
            assert not w6
            def Wh(q,keep):
                A(f"v_readlane_b32 s{sW}, v21, {q}\ns_add_u32 m0, s{9 if keep else 8}, {(q&3)*16384}\ns_nop 2\ns_add_u32 s{sW}, s{sW}, s{11 if keep else 10}")
                A(f"buffer_load_dwordx4 v22, {R4(SW2)}, s{sW} offen {w2aux} lds\ns_add_u32 m0, m0, 2048\ns_nop 0\nbuffer_load_dwordx4 v23, {R4(SW2)}, s{sW} offen {w2aux} lds")
            def Hq(q):
                A(f"s_add_u32 m0, s{sLH}, {(q&3)*16384}\ns_nop 0")
                for n in range(4):
                    A(hl[n])
                    if n<3: A("s_add_u32 m0, m0, 1024\ns_nop 0")
            A(f"s_lshl_b32 s11, s{sJ}, 7\ns_xor_b32 s10, s11, 128\ns_lshl_b32 s9, s{sJ}, 10\ns_xor_b32 s8, s9, 1024\ns_add_u32 s8, s8, s{sLW2}\ns_add_u32 s9, s9, s{sLW2}")
            for q,w in ((24,14),(25,12),(26,12),(27,12)):
                A(f"v_readlane_b32 s{sH}, v20, {q}"); Wh(q,0); Hq(q)
                if q==25: pad()
                A(f"s_waitcnt vmcnt({w})\ns_barrier")
            Wh(24,1); Wh(25,1); A("s_waitcnt vmcnt(10)\ns_barrier")
            Wh(26,1); Wh(27,1); A("s_waitcnt vmcnt(8)\ns_barrier\ns_waitcnt vmcnt(6)\ns_barrier\ns_waitcnt vmcnt(0)\ns_barrier")
        if w6:
            A(f"v_readlane_b32 s{sH}, v20, 26\ns_nop 2"); Hs(["s_nop 0"])
            A(f"v_readlane_b32 s{sH}, v20, 27\ns_waitcnt vmcnt(12)\ns_barrier\ns_nop 0"); Hs(["s_nop 0"])
            A("s_waitcnt vmcnt(8)\ns_barrier\ns_waitcnt vmcnt(4)\ns_barrier\ns_waitcnt vmcnt(0)\ns_barrier")
    else:
        A(f"s_mov_b32 s{sCnt}, 4\ns_mov_b32 s57, 7")
        if la2: A("s_cmp_eq_u32 s62, 0\ns_cbranch_scc0 P2_loop\ns_waitcnt vmcnt(16)\ns_barrier")
        A("P2_loop:")
        A(f"v_readlane_b32 s{sW}, v21, s{sCnt}\nv_readlane_b32 s{sH}, v20, s{sCnt}")
        A(f"s_add_u32 s{sSlot}, s{sSlot}, 16384\ns_and_b32 s{sSlot}, s{sSlot}, 0xffff")
        A(f"s_cmp_eq_u32 s{sCnt}, 24\ns_cbranch_scc0 P2_a\nv_mov_b32 v22, v24\nv_mov_b32 v23, v25\nP2_a:")
        if la2: A(f"s_cmp_eq_u32 s{sCnt}, 4\ns_cbranch_scc1 P2_nw\ns_waitcnt vmcnt(8)\nP2_nw:\ns_barrier")
        else: A("s_waitcnt vmcnt(16)\ns_barrier")
        assert l1epi==3 or sched==9
        A(f"s_lshl_b32 s{sT0}, s{sP}, 8\ns_add_u32 s{sT0}, s{sT0}, s{sCnt}\ns_cmp_eq_u32 s{sT0}, {256+l1st+(4 if la2 else 5)}\ns_cbranch_scc0 P2_nf2\nbuffer_store_dword v5, v6, {R4(SWS)}, s59 offen sc1\nP2_nf2:")
        if two:
            A(f"s_cmp_eq_u32 s{sT0}, 14\ns_cbranch_scc0 P2_n2a\ns_load_dwordx4 s[28:31], s[6:7], 0 glc\nP2_n2a:")
            A(f"s_cmp_eq_u32 s{sT0}, 20\ns_cbranch_scc0 P2_n2b\ns_mov_b32 s58, 0\ns_branch P2_h2w\nP2_h2:\ns_load_dwordx4 s[28:31], s[6:7], 0 glc\ns_add_u32 s58, s58, 1\nP2_h2w:\ns_waitcnt lgkmcnt(0)")
            A(f"s_and_b32 s28, s28, s29\ns_and_b32 s30, s30, s31\ns_and_b32 s28, s28, s30\ns_cmp_ge_u32 s58, {SPIN}\ns_cbranch_scc1 P2_n2b\ns_cmp_eq_u32 s28, 0x03030303\ns_cbranch_scc0 P2_h2\nP2_n2b:")
        A(f"s_cmp_eq_u32 s{sCnt}, 9\ns_cbranch_scc0 P2_np\n{PL}\nP2_np:")
        A(f"s_cmp_eq_u32 s{sCnt}, 10\ns_cbranch_scc0 P2_b")
        A("s_waitcnt vmcnt(8)\nv_cmp_gt_u32 vcc, s57, v4\ns_mov_b32 s58, 0\ns_nop 3\ns_cbranch_vccz P2_ok")
        A(f"P2_l2:\n{PL}\ns_add_u32 s58, s58, 1\ns_waitcnt vmcnt(0)\nv_cmp_gt_u32 vcc, s57, v4")
        spin_tail("P2_l2")
        A("P2_ok:\ns_mov_b32 s57, 7")
        A("P2_b:")
        pad()
        issueW(); issueH()
        if pf2==3:
            A("s_cmp_eq_u32 s13, 24\ns_cselect_b32 s8, s14, s8\ns_cselect_b32 s9, s15, s9\ns_cmp_lt_u32 s13, 28\ns_cbranch_scc0 P2_nspf")
            spf()
            A("P2_nspf:")
        A(f"s_add_u32 s{sCnt}, s{sCnt}, 1\ns_cmp_lt_u32 s{sCnt}, 28\ns_cbranch_scc1 P2_loop")
    if not w6 and not wsplit: A(("" if (la2 or tight2) else "s_waitcnt vmcnt(16)\ns_barrier\n")+"s_waitcnt vmcnt(8)\ns_barrier\ns_waitcnt vmcnt(0)\ns_barrier")
    if diag: stamp(5); rstamp(15); flush(16)
    A("s_endpgm")
    A(".p2align 6\nL_cons:")
    ACC=16; F=[(128,144),(172,188)]
    vX0,vX1,vE,vO,vL=4,5,6,7,8; bX0,bE,bL=9,10,11
    sWm,sWf,sIt,sRg,sA,sB,sC=46,47,48,49,58,7,59
    sHA,sH3,sRX2,sClr,sPf=50,51,4,5,6
    vOwn,vT3,vH,vW=232,233,235,[236,237,238,239]
    if pfc and not fast:
        A(f"s_getpc_b64 s[54:55]\nC_pc:\ns_sub_u32 s54, s54, C_pc-{NAME}\ns_subb_u32 s55, s55, 0")
        A(f"v_lshlrev_b32 v3, 7, v0\nv_min_u32 v3, L_end-{NAME}, v3\nglobal_load_dword v255, v3, s[54:55]")
    if pf1==1 and not fast:
        A(f"v_and_b32 v15, 31, v2\nv_lshlrev_b32 v15, 7, v15\ns_lshl_b32 s{sA}, s2, 2\ns_add_u32 s{sA}, s{sA}, s3\ns_lshl_b32 s{sA}, s{sA}, 12")
    if pf1==3:
        A(f"v_and_b32 v15, 7, v2\nv_lshlrev_b32 v15, 7, v15\nv_bfe_u32 v14, v2, 3, 1\nv_lshl_add_u32 v15, v14, 11, v15\ns_lshl_b32 s{sA}, s2, 2\ns_add_u32 s{sA}, s{sA}, s3\ns_lshl_b32 s{sA}, s{sA}, 12\nv_mov_b32 v252, v15")
    if pf1==2:
        A(f"v_lshlrev_b32 v15, 7, v2\ns_lshr_b32 s{sA}, s2, 3\ns_lshl_b32 s{sA}, s{sA}, 2\ns_add_u32 s{sA}, s{sA}, s3\ns_lshl_b32 s{sA}, s{sA}, 13\ns_lshr_b32 s{sB}, s{sXcd}, 1\ns_lshl_b32 s{sB}, s{sB}, 20\ns_add_u32 s{sA}, s{sA}, s{sB}")
    A("s_waitcnt lgkmcnt(0)")
    if pf1==5: srd(A,SX,4,X_BYTES)
    elif pf1 and not (fast and pf1==1):
        srd(A,SX,4,X_BYTES)
        A(f"buffer_load_dword v253, v15, {R4(SX)}, s{sA} offen")
        if pf1==3: srd(A,SW1,6,W_BYTES)
    if diag==5: stamp(6)
    if cprio: A(f"s_setprio {cprio}")
    A(f"s_lshr_b32 s{sWm}, s3, 1\ns_and_b32 s{sWf}, s3, 1")
    A("v_and_b32 v3, 15, v2\nv_lshrrev_b32 v12, 4, v2")
    A("v_lshrrev_b32 v13, 1, v3\nv_xor_b32 v13, v13, v12\nv_lshlrev_b32 v13, 4, v13")
    A(f"s_lshl_b32 s{sA}, s{sWm}, 13\nv_lshlrev_b32 v14, 7, v3\nv_add3_u32 v{bX0}, v13, v14, s{sA}")
    A("v_lshrrev_b32 v13, 1, v12\nv_mul_u32_u24 v13, 7168, v13\nv_bfe_u32 v15, v2, 2, 2\nv_lshl_add_u32 v13, v15, 6, v13\nv_and_b32 v15, 3, v2\nv_lshl_add_u32 v13, v15, 3, v13")
    A(f"v_and_b32 v14, 1, v12\nv_mul_u32_u24 v15, 1056, v14\ns_lshl_b32 s{sA}, s{sWf}, 9\ns_add_u32 s{sA}, s{sA}, {WOFF}\nv_add3_u32 v{bE}, v13, v15, s{sA}")
    A(f"v_mul_u32_u24 v15, 544, v14\nv_add_u32 v13, v13, v15\ns_lshl_b32 s{sA}, s{sWf}, 5\nv_xor_b32 v13, s{sA}, v13\nv_add_u32 v{bL}, {WOFF+6144}, v13")
    VF=248
    if late2:
        for n in range(4): A(f"v_mov_b32 v{VF+n}, {OOB}")
    else: fragoffs(VF)
    A(f"v_add_u32 v{vE}, {2*WST}, v{bE}\nv_mov_b32 v{vX0}, v{bX0}\nv_add_u32 v{vL}, {2*WST}, v{bL}\nv_xor_b32 v{vO}, 32, v{vE}\nv_xor_b32 v{vX1}, 64, v{vX0}")
    srd(A,SO,10,O_BYTES); srd(A,SWS,14,0x10000000); srd(A,SW2,8,W_BYTES)
    if diag==5 or not spub: srd(A,SD,12,256)
    A("v_lshlrev_b32 v3, 4, v2")
    A(f"s_lshr_b32 s56, s{sLid}, 3\ns_lshl_b32 s56, s56, 10\ns_lshl_b32 s{sB}, s{sFt8}, 2\ns_add_u32 s56, s56, s{sB}\ns_add_u32 s56, s56, {F_OFF+fch*128}")
    if lead:
        A(f"s_cmp_eq_u32 s{sFt}, 0\ns_cselect_b32 s{sB}, 16, 0\nv_lshrrev_b32 v13, 3, v2\nv_lshlrev_b32 v13, 10, v13\nv_and_b32 v1, 7, v2\nv_lshl_add_u32 v13, v1, 2, v13")
        A(f"v_mov_b32 v1, {OOB}\nv_cmp_gt_u32 vcc, s{sB}, v2\ns_nop 1\nv_cndmask_b32 v1, v1, v13, vcc")
    else:
        A(f"v_mov_b32 v1, {OOB}\nv_cmp_eq_u32 vcc, 0, v2\ns_nop 1\nv_cndmask_b32 v1, v1, 0, vcc")
    A(f"s_andn2_b32 s57, s{sLid}, 7\ns_add_u32 s57, s57, s{sDt}\ns_lshl_b32 s57, s57, 2\ns_add_u32 s57, s57, s3\ns_mul_i32 s57, s57, {QS}\ns_add_u32 s57, s57, {P_OFF}")
    A0=A
    if late>=0: A=Asm()
    if late2: assert 0<=late<cbase; fragoffs(VF,A,(13,14,15))
    A(f"s_lshl_b32 s52, s{sWm}, 12\nv_add_u32 v{vH}, s52, v3")
    A("v_lshrrev_b32 v13, 5, v2\nv_lshlrev_b32 v13, 11, v13\nv_bfe_u32 v14, v2, 4, 1\nv_mul_u32_u24 v14, 288, v14\nv_add_u32 v13, v13, v14")
    A("v_bfe_u32 v15, v2, 2, 2\nv_lshl_add_u32 v13, v15, 6, v13\nv_and_b32 v15, 3, v2\nv_lshl_add_u32 v13, v15, 3, v13")
    A(f"s_lshl_b32 s52, s{sJ}, 1\ns_add_u32 s52, s52, s{sWf}\ns_lshl_b32 s52, s52, 9\ns_add_u32 s52, s52, 65536\nv_add_u32 v{vW[0]}, s52, v13")
    A(f"v_xor_b32 v{vW[1]}, 32, v{vW[0]}\nv_xor_b32 v{vW[2]}, 0x400, v{vW[0]}\nv_xor_b32 v{vW[3]}, 0x420, v{vW[0]}")
    A(f"s_add_u32 s62, s{sFt8}, s3\ns_and_b32 s62, s62, {rmask}\ns_add_u32 s62, s62, {l2st+5}")
    A(f"s_mul_i32 s{sHA}, s{sMt}, 112\ns_mul_i32 s{sH3}, s{sFt}, 7\ns_add_u32 s{sHA}, s{sHA}, s{sH3}\ns_and_b32 s52, s{sFt8}, 1")
    A(f"s_xor_b32 s53, s52, 1\ns_mul_i32 s53, s53, 6\ns_add_u32 s{sH3}, s{sHA}, s53\ns_add_u32 s{sHA}, s{sHA}, s52\ns_add_u32 s{sHA}, s{sHA}, s{sWf}")
    A(f"s_mul_i32 s52, s{sWm}, {QS}\ns_mul_i32 s{sHA}, s{sHA}, {CH}\ns_add_u32 s{sHA}, s{sHA}, s52\ns_mul_i32 s{sH3}, s{sH3}, {CH}\ns_add_u32 s{sH3}, s{sH3}, s52\ns_lshl_b32 s52, s{sWm}, 12")
    A(f"s_lshl_b32 s53, s{sWf}, 13\ns_add_u32 s52, s52, s53\nv_add_u32 v{vOwn}, s52, v3")
    A(f"v_bfe_u32 v13, v2, 4, 1\nv_lshlrev_b32 v13, 3, v13\nv_lshrrev_b32 v14, 5, v2\nv_lshl_add_u32 v13, v14, 1, v13\nv_bfe_u32 v14, v2, 3, 1\ns_lshl_b32 s52, s{sWf}, 2\nv_add3_u32 v13, v13, v14, s52")
    A("v_add_u32 v14, 16, v13\nv_and_b32 v15, 7, v2\nv_lshlrev_b32 v15, 4, v15")
    physline(vT3,13,12,A); physline(vT3+1,14,12,A)
    A(f"v_add_u32 v{vT3}, v{vT3}, v15\nv_add_u32 v{vT3+1}, v{vT3+1}, v15")
    A("v_mov_b32 v12, 1\ns_mov_b32 s52, 0xbfb8aa3b\ns_mov_b32 s53, 0xbfb8aa3b\ns_mov_b32 s54, 1.0\ns_mov_b32 s55, 1.0")
    if late>=0:
        LATE=A.text().rstrip(); A=A0
        A(f"v_mov_b32 v{vT3}, {OOB}\nv_mov_b32 v{vT3+1}, {OOB}")
    if not zc:
        for r in range(112): A(f"v_mov_b32 v{ACC+r}, 0")
    for r in range(4): A(f"v_mov_b32 v{244+r}, -1")
    def hook(it, body, name, reg=None):
        OOL.append(f"{name}:\n{body}\ns_branch {name}_b")
        return [f"s_cmp_eq_u32 s{reg or sIt}, {it}", f"s_cbranch_scc1 {name}\n{name}_b:"]
    def reads1(u, fs):
        X,W=F[fs]
        xs=[f"ds_read_b128 {vr(X+4*i,4)}, v{vX1 if u else vX0} offset:{i*2048}" for i in range(4)]
        ws=[]
        for j in range(7):
            a,o=(vL,0) if j==6 else ((vO if j&1 else vE),(j>>1)*2048)
            for hh in range(2): ws.append(f"ds_read_b64_tr_b16 {vr(W+4*j+2*hh,2)}, v{a} offset:{u*14336+o+hh*256}")
        return ws[0:2]+xs+ws[2:]
    def mf1(fs,zero=False):
        X,W=F[fs]
        return [f"v_mfma_f32_16x16x32_bf16 {vr(ACC+(j*4+i)*4,4)}, {vr(W+4*j,4)}, {vr(X+4*i,4)}, {'0' if zero else vr(ACC+(j*4+i)*4,4)}" for j,i in snake(range(7),4)]
    A(f"s_mov_b32 s{sIt}, 0\ns_mov_b32 s{sRg}, {2*WST}\ns_mov_b32 s{sRX2}, 0\ns_lshl_b32 s{sClr}, s3, {1 if cmask==7 else 0}\ns_add_u32 s{sClr}, s{sClr}, s{sFt8}\ns_and_b32 s{sClr}, s{sClr}, {cmask}\ns_add_u32 s{sClr}, s{sClr}, {cbase}")
    if two: A(f"s_mov_b32 s0, {1|4|(1<<ack)}")
    A(f"s_mul_i32 s{sPf}, s3, {pfb}\ns_add_u32 s{sPf}, s{sPf}, {pfa}")
    if pf2==2: A(f"v_min_u32 v15, 55, v2\nv_lshlrev_b32 v15, 7, v15\ns_lshl_b32 s{sA}, s2, 2\ns_add_u32 s{sA}, s{sA}, s3\ns_mul_i32 s{sA}, s{sA}, 7168\nbuffer_load_dword v255, v15, {R4(SW2)}, s{sA} offen")
    if diag in (2,3,6): A("s_mov_b32 m0, 0")
    clr="\n".join([f"buffer_store_dwordx4 v[244:247], v{VF+i}, {R4(SWS)}, s57 offen sc1" for i in range(4)])
    fclr=f"v_mov_b32 v13, 0\nbuffer_store_dword v13, v1, {R4(SWS)}, s56 offen sc1"
    if sep: assert lead; A(fclr)
    elif not two: clr=clr+"\n"+fclr
    if clr0: A(clr)
    if diag==5: stamp(8)
    WK=""
    if walk:
        WK=f"s_cmp_ge_u32 s3, {walk}\ns_cbranch_scc1 C_walked\n"+("" if (wlate or wnw) else f"s_waitcnt vmcnt({(1 if pf1 and not pcw else 0)+(1 if sep else 0)})\n")+"s_mov_b64 exec, 0\n"
        for w in range(walk-1): WK+=f"s_cmp_eq_u32 s3, {w}\ns_cbranch_scc1 @START{w}@\n"
        WK+=f"s_branch @START{walk-1}@\nC_wret:\ns_mov_b64 exec, -1\nC_walked:"
        if not wlate: A(WK)
    if diag==5: stamp(9)
    A("s_barrier")
    stamp(1)
    for l in reads1(0,0): A(l)
    A("s_waitcnt lgkmcnt(0)")
    ex=[f"s_add_u32 s{sRg}, s{sRg}, {WST}\ns_add_u32 s{sRX2}, s{sRX2}, 16384", f"s_cmp_eq_u32 s{sRg}, {WST*3}\ns_cselect_b32 s{sRg}, 0, s{sRg}",
        f"v_add_u32 v{vE}, s{sRg}, v{bE}\ns_and_b32 s{sRX2}, s{sRX2}, 0xffff", f"v_add_u32 v{vX0}, s{sRX2}, v{bX0}", f"v_add_u32 v{vL}, s{sRg}, v{bL}",
        f"v_xor_b32 v{vO}, 32, v{vE}", f"v_xor_b32 v{vX1}, 64, v{vX0}"]
    if zc:
        assert cbase>0
        sstamp()
        for l in interleave(mf1(0,True), reads1(1,1)+ex): A(l)
        A("s_branch C1_in")
    A(f".p2align {al}\nC1_loop:")
    sstamp()
    if not clr0: ex+=hook(f"s{sClr}" if stag else 2,clr,"H1_clr")
    for l in interleave(mf1(0), reads1(1,1)+ex): A(l)
    A("C1_in:\ns_waitcnt lgkmcnt(0)\ns_barrier")
    pub=(f"s_cmp_eq_u32 s3, 0\ns_cbranch_scc0 H1_pub_b\ns_and_b32 s{sA}, s{sLid}, 3\ns_lshl_b32 s{sA}, s{sA}, 3\ns_lshl_b32 s{sA}, 1, s{sA}\nv_mov_b32 v13, s{sA}\n"
         f"s_andn2_b32 s{sA}, s{sLid}, 3\nv_lshlrev_b32 v14, 8, v2\nbuffer_atomic_or v13, v14, {R4(SD)}, s{sA} offen")
    if two:
        h=hook(0,f"s_cmp_eq_u32 s{sIt}, 0\ns_cbranch_scc1 H1_fc\ns_waitcnt vmcnt(0)\ns_branch H1_ack_b\nH1_fc:\n{fclr}","H1_ack")
        h[0]=f"s_bitcmp1_b32 s0, s{sIt}"
    else: h=hook(ack,"s_waitcnt vmcnt(0)","H1_ack")
    ex=h+([] if spub else hook(ack+1,pub,"H1_pub"))
    if late>=0: ex+=hook(late,(PAD+"\n" if walk else "")+LATE+("\n"+WK if wlate else ""),"H1_late")
    if xp_n: ex+=hook(xp_it,f"s_sleep {xp_n}","H1_xp")
    if pf1==5: ex+=hook(pfi,f"v_xor_b32 v252, 0x400, v252\ns_nop 0\nbuffer_load_dword v253, v252, {R4(SX)}, 0 offen","H1_pf1")
    if pf1==3:
        nl=(16-w1s)*64*56//1024
        ex+=hook(pfi,f"s_lshl_b32 s{sA}, s2, 2\ns_add_u32 s{sA}, s{sA}, s3\ns_mul_i32 s{sB}, s{sA}, {nl*128}\ns_add_u32 s{sB}, s{sB}, {w1s*64*7168}\ns_lshl_b32 s{sA}, s{sA}, 12\n"
                     f"v_min_u32 v15, {nl-1}, v2\nv_lshlrev_b32 v15, 7, v15\nbuffer_load_dword v255, v15, {R4(SW1)}, s{sB} offen\nbuffer_load_dword v253, v252, {R4(SX)}, s{sA} offen offset:1024","H1_pf1")
    if pf2==4:
        ex+=hook(f"s{sPf}",f"s_lshl_b32 s{sA}, s2, 2\ns_add_u32 s{sA}, s{sA}, s3\ns_lshr_b32 s{sB}, s{sA}, 6\ns_and_b32 s60, s{sB}, 1\ns_mul_i32 s{sB}, s{sB}, 7\n"
                     f"s_add_u32 s61, s{sB}, s60\ns_add_u32 s61, s61, 4\ns_lshl_b32 s61, s61, 16\ns_xor_b32 s60, s60, 1\ns_mul_i32 s60, s60, 6\ns_add_u32 s{sB}, s{sB}, s60\ns_lshl_b32 s{sB}, s{sB}, 16\n"
                     f"s_and_b32 s{sA}, s{sA}, 63\ns_lshl_b32 s60, s{sA}, 11\ns_add_u32 s61, s61, s60\ns_lshl_b32 s60, s{sA}, 10\ns_add_u32 s{sB}, s{sB}, s60\n"
                     f"v_and_b32 v15, 15, v2\nv_lshlrev_b32 v15, 7, v15\nv_and_b32 v14, 7, v2\nv_lshlrev_b32 v14, 7, v14\n"
                     f"buffer_load_dword v255, v15, {R4(SW2)}, s61 offen\nbuffer_load_dword v253, v14, {R4(SW2)}, s{sB} offen","H1_pf")
    if pf2==1:
        ex+=hook(f"s{sPf}",f"v_min_u32 v15, 55, v2\nv_lshlrev_b32 v15, 7, v15\ns_lshl_b32 s{sA}, s2, 2\ns_add_u32 s{sA}, s{sA}, s3\ns_mul_i32 s{sA}, s{sA}, 7168\nbuffer_load_dword v255, v15, {R4(SW2)}, s{sA} offen","H1_pf")
    ex+=([PAD] if walk else [])+[f"s_add_u32 s{sIt}, s{sIt}, 1", f"s_cmp_lt_u32 s{sIt}, 16"]
    x=interleave(mf1(1), reads1(0,0)+ex)
    if x[-1].startswith("v_mfma"):
        for l in x[:-1]: A(l)
        A("s_waitcnt lgkmcnt(0)"); A(x[-1])
    else:
        for l in x: A(l)
        A("s_waitcnt lgkmcnt(0)")
    A("s_cbranch_scc1 C1_loop")
    stamp(2)
    T=216
    PEND=[]
    def silu(a, b, D):
        t=T; src=[a,a+2,b,b+2]
        for r in range(4): A(f"v_pk_mul_f32 {vr(t+2*r,2)}, s[52:53], {vr(src[r],2)}")
        for r in range(8):
            A(f"v_exp_f32 v{t+r}, v{t+r}")
            if r in (1,5) and PEND: A(PEND.pop(0))
        for r in range(4): A(f"v_pk_add_f32 {vr(t+2*r,2)}, s[54:55], {vr(t+2*r,2)}")
        for r in range(8):
            A(f"v_rcp_f32 v{t+r}, v{t+r}")
            if r in (1,5) and PEND: A(PEND.pop(0))
        for r in range(4): A(f"v_pk_mul_f32 {vr(t+2*r,2)}, {vr(t+2*r,2)}, {vr(src[r],2)}")
        for r in range(4): A(f"v_cvt_pk_bf16_f32 v{D+r}, v{t+2*r}, v{t+2*r+1}")
    def later(x):
        if pipe: PEND.append(x)
        else: A(x)
    def flushp():
        while PEND: A(PEND.pop(0))
    def gst(D,i): return f"buffer_store_dwordx4 {vr(D,4)}, v{VF+i}, {R4(SWS)}, s{sHA} offen sc1"
    FLAG="s_nop 0"
    DL=[160,128,144]; D3=224
    for L in range(3):
        for i in range(4):
            D=DL[L]+4*i
            if i%2==0: pad()
            silu(ACC+((2*L)*4+i)*4, ACC+((2*L+1)*4+i)*4, D)
            if L==0 or (L==2 and l1epi>=2) or (L==1 and i>=nb and l1epi): later(gst(D,i))
            later(f"ds_write_b128 v{vOwn}, {vr(D,4)} offset:{L*16384+i*1024}")
            if L==0 and i==3: later(f"s_add_u32 s{sHA}, s{sHA}, {2*CH}")
            if L==1 and i==nb-1:
                flushp()
                stamp(11); A("s_waitcnt vmcnt(0)"); stamp(12)
                A(f"s_waitcnt lgkmcnt(0)\ns_barrier")
                if l1epi:
                    if pipe==2:
                        for k in range(0,nb,2): later(gst(128+4*k,k)+"\n"+gst(132+4*k,k+1))
                    else:
                        for k in range(nb): A(gst(128+4*k,k))
        if L==1 and l1epi: later(f"s_add_u32 s{sHA}, s{sHA}, {2*CH}")
    F2=[(160,176),(192,208)]
    def rdH(X,slot,u): return [f"ds_read_b128 {vr(X+4*i,4)}, v{vH} offset:{slot*16384+u*8192+i*1024}" for i in range(4)]
    DYN=[w6]
    def rdW(W,slot,u,js): return [f"ds_read_b64_tr_b16 {vr(W+4*n+2*hh,2)}, v{vW[j]} offset:{(0 if DYN[0] else slot)*16384+(4*u+2*hh)*2048}" for n,j in enumerate(js) for hh in range(2)]
    WU=[f"v_add_u32 v{vW[0]}, s{sRg}, v240", f"v_xor_b32 v{vW[1]}, 32, v{vW[0]}", f"v_xor_b32 v{vW[2]}, 0x400, v{vW[0]}", f"v_xor_b32 v{vW[3]}, 0x420, v{vW[0]}"] if w6 else []
    WS=[f"s_add_u32 s{sRg}, s{sRg}, 16384", f"s_cmp_eq_u32 s{sRg}, {6*16384}\ns_cselect_b32 s{sRg}, 0, s{sRg}"] if w6 else []
    def reads2(slot,u,fs):
        X,W=F2[fs]; ws=rdW(W,slot,u,range(4)); return ws[0:2]+rdH(X,slot,u)+ws[2:]
    def mfm(X,W,js,zero=False,w0=0):
        return [f"v_mfma_f32_16x16x32_bf16 {vr(ACC+(j*4+i)*4,4)}, {vr(W+4*(j-w0),4)}, {vr(X+4*i,4)}, {'0' if zero else vr(ACC+(j*4+i)*4,4)}" for j,i in snake(js,4)]
    def mf2(fs,zero=False): return mfm(F2[fs][0],F2[fs][1],range(4),zero)
    for l in reads2(0,0,0): A(l)
    for ip in range(2):
        D=D3+4*ip; a=ACC+(24+2*ip)*4
        if ip==0: pad()
        silu(a,a+4,D)
        A(f"s_nop 1\nv_permlane16_swap_b32 v{D}, v{D+2}\nv_permlane16_swap_b32 v{D+1}, v{D+3}")
        if l1epi>=3: later(f"buffer_store_dwordx4 {vr(D,4)}, v{vT3+ip}, {R4(SWS)}, s{sH3} offen sc1")
    flushp()
    A(f"v_mov_b32 v12, {7 if l1epi==3 else 3}\ns_mov_b32 s{sIt}, 0")
    if w6: A(f"v_mov_b32 v240, v{vW[0]}\ns_mov_b32 s{sRg}, 16384")
    stamp(3); stamp(4)
    sstamp()
    A("s_waitcnt lgkmcnt(0)")
    for l in interleave(mf2(0,True), reads2(0,1,1)+(WU if w6 else ([PAD] if walk else []))): A(l)
    A("s_branch C2_in")
    dw={}; dws={}
    t3st=[f"buffer_store_dwordx4 {vr(D3+4*ip,4)}, v{vT3+ip}, {R4(SWS)}, s{sH3} offen sc1" for ip in range(2)]
    ADV=f"\ns_add_u32 s{sHA}, s{sHA}, {2*CH}"
    L1s=[gst(128+4*i,i) for i in range(4)]; L2s=[gst(144+4*i,i) for i in range(4)]
    F3=f"s_waitcnt vmcnt(0)\n{FLAG}"; F7=f"v_mov_b32 v12, 7\ns_waitcnt vmcnt(0)\n{FLAG}"
    J="\n".join
    if sched==1:
        dw[(0,1)]=J(L1s[:2]); dw[(1,0)]=J(L1s[2:])+ADV; dw[(1,1)]=J(L2s[:2]); dw[(2,0)]=J(L2s[2:]); dw[(2,1)]=J(t3st); dw[(4,0)]=F7
    elif sched==2:
        dw[(0,1)]=J(L1s[:2]); dw[(1,0)]=J(L1s[2:])+ADV; dw[(3,0)]=F3
        dw[(3,1)]=L2s[0]; dw[(4,0)]=L2s[1]; dw[(4,1)]=L2s[2]; dw[(5,0)]=L2s[3]; dw[(5,1)]=t3st[0]; dw[(6,0)]=t3st[1]; dw[(10,0)]=F7
    elif sched==3:
        dw[(0,1)]=L1s[0]; dw[(1,0)]=L1s[1]; dw[(1,1)]=L1s[2]; dw[(2,0)]=L1s[3]+ADV; dw[(3,1)]=F3
        dw[(4,0)]=L2s[0]; dw[(4,1)]=L2s[1]; dw[(5,0)]=L2s[2]; dw[(5,1)]=L2s[3]; dw[(6,0)]=t3st[0]; dw[(6,1)]=t3st[1]; dw[(11,0)]=F7
    elif sched==4:
        dw[(0,1)]=J(L1s)+ADV; dw[(1,1)]=J(L2s); dw[(2,1)]=J(t3st); dw[(4,0)]=F7
    elif sched==9:
        dw[(1,1)]=F7
    elif sched==5:
        dw[(0,1)]=J(L2s[:2]); dw[(1,0)]=J(L2s[2:]); dw[(1,1)]=J(t3st); dw[(3,1)]=F7
    else:
        if not l1epi:
            dw[(l1st,0)]=gst(128,0)+"\n"+gst(132,1); dw[(l1st,1)]=gst(136,2)+"\n"+gst(140,3)+f"\ns_add_u32 s{sHA}, s{sHA}, {2*CH}"
            dw[(l1st+2,1)]=f"s_waitcnt vmcnt(0)\n{FLAG}"
        else:
            dw[(l1st,1)]=f"s_waitcnt vmcnt(0)\n{FLAG}"
        if l1epi>=2:
            if l1epi==2: dw[(l2st,0)]="\n".join(t3st)
            if l1epi==2: dw[(f3,1)]=f"v_mov_b32 v12, 7\ns_waitcnt vmcnt(0)\n{FLAG}"
        elif not stag2:
            dw[(l2st,0)]=gst(144,0)+"\n"+gst(148,1); dw[(l2st+1,0)]=gst(152,2)+"\n"+gst(156,3)+"\nv_mov_b32 v12, 7"
            dw[(l2st+2,0)]="\n".join(t3st)
            dw[(l2st+5,1)]=f"s_waitcnt vmcnt(0)\n{FLAG}"
        else:
            dw[(f3,1)]=f"v_mov_b32 v12, 7\ns_waitcnt vmcnt(0)\n{FLAG}"
            body=[gst(144+4*i,i) for i in range(4)]+t3st
            o="H2_st:\n"
            for n,b in enumerate(body):
                o+=f"s_cmp_eq_u32 s62, {5-n}\ns_cbranch_scc0 H2_st{n}\n{b}\nH2_st{n}:\n"
            o+="s_setpc_b64 s[54:55]"
            OOL.append(o)
    def hooks2(slot,u):
        ex=[]
        for (q,uu),body in sorted(dw.items()):
            if q%4==slot and uu==u: ex+=hook(q//4,body,f"H2_{q}_{uu}")
        if stag2 and l1epi<2 and u==0 and not sched:
            ex+=["s_sub_u32 s62, s62, 1\ns_cmp_lt_u32 s62, 6", f"s_cbranch_scc1 H2_go{slot}\nH2_ns{slot}:"]
            OOL.append(f"H2_go{slot}:\ns_call_b64 s[54:55], H2_st\ns_branch H2_ns{slot}")
        assert len(ex)<=4, (slot,u,ex)
        return ex
    A(f".p2align {al}\nC2_loop:")
    for slot in range(4):
        sstamp()
        for l in interleave(mf2(0), reads2(slot,1,1)+hooks2(slot,0)+(WU if w6 else ([PAD] if walk else []))): A(l)
        if slot==0: A("C2_in:")
        A("s_waitcnt lgkmcnt(0)\ns_barrier")
        ex=WS+hooks2(slot,1)
        if w6 and walk and len(ex)<=3 and slot!=3: ex=ex+[PAD]
        if slot==3: ex+=[f"s_add_u32 s{sIt}, s{sIt}, 1", f"s_cmp_lt_u32 s{sIt}, 6"]
        x=interleave(mf2(1), reads2((slot+1)&3,0,0)+ex)
        if x[-1].startswith("v_mfma"):
            for l in x[:-1]: A(l)
            A("s_waitcnt lgkmcnt(0)"); A(x[-1])
        else:
            for l in x: A(l)
            A("s_waitcnt lgkmcnt(0)")
    A("s_cbranch_scc1 C2_loop")
    stamp(13)
    if diag: A("s_waitcnt lgkmcnt(0)")
    DYN[0]=0
    G=[dict(H=[160,80],W=[184,96]), dict(H=[192,104],W=[208,216])]
    def rdS(g,slot,js,us=(0,1)):
        o=[]
        for u in us:
            w=rdW(G[g]['W'][u],slot,u,js); o+=w[0:2]+rdH(G[g]['H'][u],slot,u)+w[2:]
        return o
    def mfS(g,js): return mfm(G[g]['H'][0],G[g]['W'][0],js,w0=js[0])+mfm(G[g]['H'][1],G[g]['W'][1],js,w0=js[0])
    for l in rdS(0,0,(2,3),(1,)): A(l)
    pad()
    A("s_barrier")
    m=mfS(0,(2,3)); r=rdS(1,1,(2,3))
    x=interleave(m[:8], r[:8])
    for l in x: A(l)
    A("s_waitcnt lgkmcnt(8)")
    for l in interleave(m[8:], r[8:]): A(l)
    for q in (1,2):
        if q==2: pad()
        A(f"s_waitcnt lgkmcnt({8 if cw else 0})\ns_barrier")
        x=interleave(mfS(q&1,(2,3)), rdS((q+1)&1,q+1,(2,3)))
        if cw: x.insert(16,"s_waitcnt lgkmcnt(8)")
        for l in x: A(l)
    A(f"s_mul_i32 s52, s{sJ}, {-2*32*QS}\ns_add_u32 s52, s52, {32*QS}\ns_add_u32 s52, s52, s57\ns_mov_b32 s53, -2")
    sn=[]
    for i in range(4):
        D=128+4*i; t=[]
        for n,j in enumerate((2,3)):
            S=ACC+(j*4+i)*4
            t+= [f"v_cvt_pk_bf16_f32 v{D+2*n}, v{S}, v{S+1}", f"v_cvt_pk_bf16_f32 v{D+2*n+1}, v{S+2}, v{S+3}"]
        t+=[f"v_min_u32 v{D+r}, s53, v{D+r}" for r in range(4)]
        t.append(f"buffer_store_dwordx4 {vr(D,4)}, v{VF+i}, {R4(SWS)}, s52 offen sc1")
        sn.append(t)
    A("s_waitcnt lgkmcnt(0)")
    if wsplit: assert esend; A("s_barrier")
    if esend:
        g=G[1]; r=rdS(0,0,(0,1)); k=0
        for i in range(4):
            for u,j in ((0,2),(0,3),(1,3),(1,2)):
                A(f"v_mfma_f32_16x16x32_bf16 {vr(ACC+(j*4+i)*4,4)}, {vr(g['W'][u]+4*(j-2),4)}, {vr(g['H'][u]+4*i,4)}, {vr(ACC+(j*4+i)*4,4)}")
                A(r[k]); k+=1
            if i>=1:
                for l in sn[i-1]: A(l)
        stamp(5)
        pad()
        A("s_waitcnt lgkmcnt(0)")
        if wsplit: A("s_barrier")
        m=mfS(0,(0,1)); r=rdS(1,1,(0,1))
        for n,mm_ in enumerate(m):
            A(mm_); A(r[n])
            if n==2:
                for l in sn[3]: A(l)
    else:
        for l in interleave(mfS(1,(2,3)), rdS(0,0,(0,1))): A(l)
        stamp(5)
        pad()
        snd=sum(sn,[])
        A("s_waitcnt lgkmcnt(0)")
        m=mfS(0,(0,1)); r=rdS(1,1,(0,1))
        k=0
        for n,mm_ in enumerate(m):
            A(mm_); A(r[n])
            if packfirst and n==1:
                A("s_nop 3")
                while k<len(snd): A(snd[k]); k+=1
            if n>=3:
                for _ in range(3):
                    if k<len(snd): A(snd[k]); k+=1
        while k<len(snd): A(snd[k]); k+=1
    if diag!=5 and not cw: stamp(6)
    RB=144 if dual else 80; RB2=224
    def LDs(b): return [f"buffer_load_dwordx4 {vr(b+4*i,4)}, v{VF+i}, {R4(SWS)}, s57 offen sc1" for i in range(4)]
    LD=LDs(RB)
    for q in (1,2):
        pad()
        A(f"s_waitcnt lgkmcnt({8 if cw else 0})")
        x=interleave(mfS(q&1,(0,1)), rdS((q+1)&1,q+1,(0,1)))
        if cw: assert not dual; x.insert(16,"s_waitcnt lgkmcnt(8)")
        if dual==q:
            for n in range(4): x.insert(2+3*n+n,LD[n])
        for l in x: A(l)
    A(f"s_waitcnt lgkmcnt({8 if cw else 0})")
    adr=["v_and_b32 v13, 15, v2","v_lshlrev_b32 v13, 11, v13","v_bfe_u32 v14, v2, 4, 1","v_lshl_add_u32 v13, v14, 5, v13","v_lshrrev_b32 v14, 5, v2","v_lshl_add_u32 v13, v14, 4, v13",
         f"s_lshl_b32 s{sC}, s{sMt}, 1\ns_add_u32 s{sC}, s{sC}, s{sWm}", f"s_lshl_b32 s{sC}, s{sC}, 17\ns_lshl_b32 s52, s{sDt}, 8", f"s_add_u32 s{sC}, s{sC}, s52\ns_lshl_b32 s52, s{sJ}, 7",
         f"s_add_u32 s{sC}, s{sC}, s52\ns_lshl_b32 s52, s{sWf}, 6", f"s_add_u32 s{sC}, s{sC}, s52\ns_mov_b32 s58, 0"]
    def chk():
        A(f"v_max3_u32 v14, v{RB}, v{RB+1}, v{RB+2}")
        for r in range(3,15,2): A(f"v_max3_u32 v14, v14, v{RB+r}, v{RB+r+1}")
        A(f"v_max_u32 v14, v14, v{RB+15}\nv_cmp_eq_u32 vcc, -1, v14")
    if dual:
        for l in interleave(mfS(1,(0,1)), LDs(80)+adr): A(l)
        A("s_waitcnt vmcnt(4)"); chk()
        A("s_nop 4\ns_cbranch_vccz C3_ok\ns_waitcnt vmcnt(0)")
        for r in range(16): A(f"v_mov_b32 v{RB+r}, v{80+r}")
    else:
        x=interleave(mfS(1,(0,1)), adr[:ldpos]+LD+adr[ldpos:])
        if cw: x.insert(16,"s_waitcnt lgkmcnt(0)")
        for l in x: A(l)
    if diag and diag!=5: stamp(8)
    pad()
    A("s_branch C3_chk")
    A("C3_poll:")
    for l in LD: A(l)
    A("C3_chk:\ns_add_u32 s58, s58, 1\ns_waitcnt vmcnt(0)")
    chk()
    spin_tail("C3_poll")
    A("C3_ok:")
    stamp(7)
    if diag==4: A("s_mov_b32 s86, s58")
    A("s_mov_b32 s53, 0xffff0000")
    for i in range(4):
        D=128+4*i
        for n in range(2):
            S=ACC+(n*4+i)*4
            for h in range(2):
                Rr=RB+4*i+2*n+h
                A(f"v_lshlrev_b32 v{T}, 16, v{Rr}\nv_and_b32 v{T+1}, s53, v{Rr}\nv_pk_add_f32 {vr(S+2*h,2)}, {vr(S+2*h,2)}, {vr(T,2)}")
                A(f"v_cvt_pk_bf16_f32 v{D+2*n+h}, v{S+2*h}, v{S+2*h+1}")
        A(f"s_nop 1\nv_permlane16_swap_b32 v{D}, v{D+2}\nv_permlane16_swap_b32 v{D+1}, v{D+3}")
        A(f"buffer_store_dwordx4 {vr(D,4)}, v13, {R4(SO)}, s{sC} offen {outaux}")
        if i<3: A(f"s_add_u32 s{sC}, s{sC}, 0x8000")
        if i==0: pad()
    if diag:
        if diag!=5: stamp(9)
        A("s_waitcnt vmcnt(0)"); stamp(10); rstamp(15); flush(16,True)
    A("s_endpgm")
    if walk: A(PAD+"\ns_endpgm")
    for b in OOL: A(b)
    A("L_end:\ns_endpgm")
    A(f""".section .rodata,"a"
.p2align 6
.amdhsa_kernel {NAME}
  .amdhsa_next_free_vgpr 256
  .amdhsa_next_free_sgpr 96
  .amdhsa_accum_offset 256
  .amdhsa_group_segment_fixed_size 0
  .amdhsa_kernarg_size 48
  .amdhsa_user_sgpr_count 2
  .amdhsa_user_sgpr_kernarg_segment_ptr 1
  .amdhsa_system_sgpr_workgroup_id_x 1
.end_amdhsa_kernel""")
    txt=A.text()
    if walk:
        n=txt.count("@PAD@"); parts=txt.split("@PAD@")
        starts=[round(w*n/walk) for w in range(walk)]
        out=parts[0]
        for k in range(n):
            nxt="C_wret" if (k+1==n or k+1 in starts) else f"PAD{k+1}"
            out+=f"PAD{k}:\ns_cbranch_execz {nxt}"+parts[k+1]
        for w in range(walk): out=out.replace(f"@START{w}@",f"PAD{starts[w]}")
        txt=out
    return txt

if __name__=="__main__":
    import inspect
    p=argparse.ArgumentParser(); p.add_argument("-o")
    for k,v in inspect.signature(build).parameters.items():
        p.add_argument("--"+k,type=type(v.default),default=v.default)
    a=vars(p.parse_args()); o=a.pop("o")
    open(o,"w").write(build(**a))
```

```python
import sys, argparse
NAME="standalone__dense_activation_silu__prompt_kernel"
class Asm:
    def __init__(self): self.L=[]
    def __call__(self, s):
        for l in s.split("\n"): self.L.append(l)
    def text(self): return "\n".join(self.L)+"\n"
def vr(a,n): return f"v[{a}:{a+n-1}]"
def srd(A, d, b, nbytes):
    A(f"s_mov_b32 s{d}, s{b}\ns_and_b32 s{d+1}, s{b+1}, 0xffff\ns_mov_b32 s{d+2}, {nbytes}\ns_mov_b32 s{d+3}, 0x20000")
X_BYTES=2048*1024*2; W_BYTES=1024*3584*2; O_BYTES=2048*1024*2
H_OFF=0; P_OFF=24<<20; F_OFF=48<<20; T_OFF=64<<20
SX,SW1,SW2,SO,SD,SWS=16,20,24,28,32,36
sMt,sJ,sFt8,sFt,sLid,sXcd,sDt=40,41,42,43,44,45,63
OOB=0x7ffffff0
SPIN=1<<17
def R4(s): return f"s[{s}:{s+3}]"

def interleave(mf, rd):
    out=[]; k=0
    for m in mf:
        out.append(m)
        if k<len(rd): out.append(rd[k]); k+=1
    return out+rd[k:]
ORDER='ji'
def snake(JS,NI):
    JS=list(JS)
    if ORDER=='ij': return [(j,i) for i in range(NI) for j in (JS if i%2==0 else JS[::-1])]
    return [(j,(i if n%2==0 else NI-1-i)) for n,j in enumerate(JS) for i in range(NI)]

def build(diag=0, rot=8, pf1=5, pf2=1, pfc=1, outaux="sc1", pfa=12, dswz=0, w1aux="", xaux="", w2aux="", l1st=1, l2st=4, stag=1, l1epi=3, rmask=1, f3=9, skew2=3, pfb=0, stag2=1, remap=1, spa=0, spb=13, spn=4, ack=4, ldearly=1, pfi=2, w1s=6, sched=0, fch=6, pdelay=0, nb=2, clr0=0, dual=0, tlb=0, packfirst=1, spub=1, vpoll=0, hsi=12, hsglc='', cmask=0, cbase=1, walk=4, w2e=2, order='ji', esend=1, ldpos=0, fast=1, la1=0, hd=4, la2=0, npoll=2, tearly=2, nsh=0, two=0, tight2=1, tight1=1, lead=1, tl=0, tlw=16, tl0=0, sep=1, xp_it=0, xp_n=0, late=0, sl2=0, cprio=1, pprio=3, al=3, pj=0, w6=0, late2=1, pcw=16, pipe=0, wsplit=1, cw=1, zc=1, wlate=0, pskip=0, wnw=0, pp1=-1, ppt=-1, pp2=-1, otr=1, padn=2, cal=6, dense=0, epad=1, ab=0):
    global ORDER; ORDER=order
    assert ack+2!=hsi and tl not in (ack+5,hsi+3) and ack+2<=12 and (cbase+cmask<ack or sep) and nsh<=(4 if two else ack+2)
    A=Asm(); A_main=A; OOL=[]
    tm='s_memrealtime' if diag>=3 else 's_memtime'
    def stamp(k):
        if diag: A(f"{tm} s[{64+2*k}:{65+2*k}]")
    def rstamp(k):
        if diag: A(f"s_memrealtime s[{64+2*k}:{65+2*k}]")
    def sstamp():
        if diag==6: A(f"s_memtime s[90:91]\ns_memrealtime s[88:89]\ns_waitcnt lgkmcnt(0)\nv_writelane_b32 v254, s90, m0\nv_writelane_b32 v252, s88, m0\ns_add_u32 m0, m0, 1")
        if diag in (2,3): A(f"{tm} s[90:91]\ns_waitcnt lgkmcnt(0)\nv_writelane_b32 v254, s90, m0\ns_add_u32 m0, m0, 1")
    def flush(n, cons=False):
        if not diag: return
        if diag==5:
            ks=[6,8,9,1,2,4,5,10] if cons else [1,8,2,3,4,5]
            lab="DB_c" if cons else "DB_p"
            A(f"s_waitcnt lgkmcnt(0)\ns_and_b32 s60, s3, 3\ns_or_b32 s60, s60, s2\ns_cmp_eq_u32 s60, 0\ns_cbranch_scc0 {lab}\nv_lshlrev_b32 v1, 8, v2")
            for n_,k in enumerate(ks):
                A(f"s_sub_u32 s60, s{64+2*k}, s64\nv_mov_b32 v4, s60\nbuffer_store_dword v4, v1, {R4(SD)}, 0 offen offset:{4*(n_+(0 if cons else 8))} sc1")
            A(f"s_waitcnt vmcnt(0)\n{lab}:")
            return
        A(f"s_waitcnt lgkmcnt(0)\ns_lshl_b32 s60, s2, 3\ns_add_u32 s60, s60, s3\ns_lshl_b32 s60, s60, 8\ns_add_u32 s60, s60, {T_OFF}\nv_mov_b32 v1, 0")
        for k in range(n): A(f"v_mov_b32 v2, s{64+2*k}\nbuffer_store_dword v2, v1, {R4(SWS)}, s60 offen offset:{4*k}")
        if cons and diag>=2:
            A(f"v_and_b32 v1, 63, v0\nv_lshlrev_b32 v1, 2, v1\nv_mov_b32 v2, {OOB}\nv_cmp_gt_u32 vcc, 192, v1\ns_nop 1\nv_cndmask_b32 v1, v2, v1, vcc")
            A(f"buffer_store_dword v254, v1, {R4(SWS)}, s60 offen offset:64")
            if diag==6: A(f"s_add_u32 s60, s60, 0x80000\nbuffer_store_dword v252, v1, {R4(SWS)}, s60 offen offset:64")
        A("s_waitcnt vmcnt(0)")
    PAD='@PAD@' if walk else 's_nop 0'
    def pad():
        if walk: A(PAD)
    def spin_tail(label):
        A(f"s_cmp_lt_u32 s58, {SPIN}\ns_cselect_b64 s[60:61], -1, 0\ns_and_b64 vcc, vcc, s[60:61]\ns_cbranch_scc1 {label}")
    WST=28672; WOFF=65536
    QS=5120 if remap else 4096
    CH=2*QS
    def physline(dst,g,tmp,A=None):
        A=A or A_main
        if remap: A(f"v_add_u32 v{tmp}, 4, v{g}\nv_mul_u32_u24 v{tmp}, 37, v{tmp}\nv_lshrrev_b32 v{tmp}, 8, v{tmp}\nv_add_u32 v{tmp}, v{tmp}, v{g}\nv_lshlrev_b32 v{dst}, 7, v{tmp}")
        else: A(f"v_lshlrev_b32 v{dst}, 7, v{g}")
    def fragoffs(base,A=None,t=(4,5,6)):
        A=A or A_main
        A(f"v_and_b32 v{t[2]}, 7, v2\nv_lshlrev_b32 v{t[2]}, 4, v{t[2]}")
        for n in range(4):
            A(f"v_lshrrev_b32 v{t[1]}, 3, v2\nv_add_u32 v{t[1]}, {8*n}, v{t[1]}"); physline(base+n,t[1],t[0],A); A(f"v_add_u32 v{base+n}, v{base+n}, v{t[2]}")
    A("""; Fused feed-forward  out = silu(x @ w1) @ w2   (bf16 in/out, fp32 accumulation), one launch.
; Kernarg (48 bytes): 0 x[2048,1024]  8 w1[1024,3584]  16 w2[3584,1024]  24 out[2048,1024]  32 debug(256 B)  40 ws
; 256 workgroups, one per CU.  Waves 0-3 compute (16x16x32 MFMA), waves 4-7 stream tiles into LDS rings.
;   phase 1: h[128 x 224] = silu(x[128 x 1024] @ w1[1024 x 224]); h goes to LDS (own chunks) and, write-through, to ws
;   phase 2: partial[128 x 128] over one half of F; the 8 workgroups of a row block hand h over with flags in ws
;            (flags are reset by the row leader in this launch and announced through debug before anyone trusts them)
;   end    : the two K halves swap half tiles through ws (inbox reset to a sentinel by its owner), add and store out
; PADn labels are instruction-cache landing pads: a wave with EXEC = 0 hops over them once, touching no memory.
; @launch grid=(256,1,1) block=(512,1,1) lds="""+("163840" if w6 else "151552"))
    A('.amdgcn_target "amdgcn-amd-amdhsa--gfx950"\n.text')
    A(f".globl {NAME}\n.p2align 8\n.type {NAME},@function\n{NAME}:")
    A("s_load_dwordx8 s[4:11], s[0:1], 0\ns_load_dwordx4 s[12:15], s[0:1], 32")
    A("s_cmp_ge_u32 s2, 256\ns_cbranch_scc1 L_end")
    stamp(0); rstamp(14)
    if fast and pfc and pskip:
        A(f"v_lshrrev_b32 v1, 6, v0\nv_and_b32 v2, 63, v0\ns_cmp_lt_u32 s2, {pcw}\ns_cbranch_scc1 L_pfc\nL_pfcb:")
        PFC=(f"L_pfc:\ns_getpc_b64 s[54:55]\nC_pc:\nv_lshlrev_b32 v3, 7, v0\ns_sub_u32 s54, s54, C_pc-{NAME}\ns_subb_u32 s55, s55, 0\n"
             f"v_min_u32 v3, L_end-{NAME}, v3\ns_nop 0\nglobal_load_dword v255, v3, s[54:55]\ns_branch L_pfcb")
    elif fast and pfc:
        A(f"s_getpc_b64 s[54:55]\nC_pc:\nv_lshlrev_b32 v3, 7, v0\ns_sub_u32 s54, s54, C_pc-{NAME}\ns_subb_u32 s55, s55, 0")
        if pcw:
            A(f"s_cmp_lt_u32 s2, {pcw}\ns_cselect_b32 s3, L_end-{NAME}, 0\nv_min_u32 v3, s3, v3\nv_lshrrev_b32 v1, 6, v0\nglobal_load_dword v255, v3, s[54:55]\nv_and_b32 v2, 63, v0")
        else: A(f"v_min_u32 v3, L_end-{NAME}, v3\nv_lshrrev_b32 v1, 6, v0\nglobal_load_dword v255, v3, s[54:55]\nv_and_b32 v2, 63, v0")
    else: A("v_lshrrev_b32 v1, 6, v0\nv_and_b32 v2, 63, v0")
    A(f"v_readfirstlane_b32 s3, v1\ns_and_b32 s{sXcd}, s2, 7\ns_lshr_b32 s46, s2, 3")
    dec1=f"s_lshr_b32 s{sMt}, s{sXcd}, 1\ns_lshl_b32 s{sMt}, s{sMt}, 2\ns_lshr_b32 s47, s46, 3\ns_add_u32 s{sMt}, s{sMt}, s47\ns_and_b32 s{sJ}, s{sXcd}, 1"
    dec2=(f"s_and_b32 s{sFt8}, s46, 7\ns_lshl_b32 s{sFt}, s{sJ}, 3\ns_add_u32 s{sFt}, s{sFt}, s{sFt8}\n"
          f"s_lshl_b32 s{sLid}, s{sMt}, 4\ns_add_u32 s{sLid}, s{sLid}, s{sFt}\ns_xor_b32 s{sDt}, s{sJ}, 1\ns_mul_i32 s{sDt}, s{sDt}, {dswz}\ns_xor_b32 s{sDt}, s{sDt}, s{sFt8}")
    A(dec1); A(dec2)
    if fast and pf1==5:
        A("s_cmp_lt_u32 s3, 4\ns_cbranch_scc0 L_prod")
        A(f"s_lshr_b32 s58, s{sXcd}, 1\ns_lshl_b32 s59, s58, 2\ns_lshl_b32 s58, s58, 5\ns_add_u32 s58, s58, s46\ns_lshl_b32 s58, s58, 1\ns_add_u32 s58, s58, s{sJ}\ns_lshl_b32 s58, s58, 14")
        A("v_bfe_u32 v15, v0, 2, 3\nv_add_u32 v15, s59, v15\nv_and_b32 v15, 15, v15\nv_lshlrev_b32 v15, 7, v15\nv_lshrrev_b32 v14, 5, v0\nv_lshl_add_u32 v15, v14, 11, v15\nv_add_u32 v252, s58, v15")
        A("s_waitcnt lgkmcnt(0)\nglobal_load_dword v253, v252, s[4:5]\ns_branch L_cons")
        if pfc and pskip: A(PFC)
        A("L_prod:")
    elif fast and pf1==1:
        A("s_cmp_lt_u32 s3, 4\ns_cbranch_scc0 L_prod")
        A("v_lshrrev_b32 v15, 1, v0\ns_lshl_b32 s58, s2, 7\nv_add_u32 v15, s58, v15\nv_lshlrev_b32 v15, 7, v15\ns_waitcnt lgkmcnt(0)\nglobal_load_dword v253, v15, s[4:5]\ns_branch L_cons\nL_prod:")
    else:
        A("s_cmp_lt_u32 s3, 4\ns_cbranch_scc1 L_cons")
    sP,sKX,sKW,sLX,sLW,sRing,sCnt,sT0,sT1=46,47,48,49,50,51,52,53,54
    A(f"s_sub_u32 s{sP}, s3, 4")
    if pprio: A(f"s_setprio {pprio}")
    A("v_lshrrev_b32 v3, 3, v2\nv_and_b32 v4, 7, v2\nv_lshrrev_b32 v5, 4, v2\nv_xor_b32 v4, v4, v5\nv_lshlrev_b32 v4, 4, v4\nv_lshl_add_u32 v3, v3, 11, v4")
    A(f"s_lshl_b32 s{sT0}, s{sMt}, 18\ns_lshl_b32 s{sT1}, s{sP}, 16\ns_add_u32 s{sT0}, s{sT0}, s{sT1}\nv_add_u32 v8, s{sT0}, v3")
    A("v_xor_b32 v9, 64, v8\nv_add_u32 v9, 0x4000, v9\nv_add_u32 v10, 0x8000, v8\nv_add_u32 v11, 0x8000, v9")
    if not rot: A(f"s_mov_b32 s{sKX}, 0\ns_mov_b32 s{sKW}, 0")
    if rot:
        if rot in (1,2,4,5,6,7,8):
            if pj: A(f"s_lshr_b32 s{sT0}, s{sXcd}, 1\ns_lshl_b32 s{sT1}, s{sJ}, 1\ns_add_u32 s{sT0}, s{sT0}, s{sT1}\ns_and_b32 s{sT0}, s{sT0}, 3\ns_lshl_b32 s{sT0}, s{sT0}, 2")
            else: A(f"s_lshr_b32 s{sT0}, s{sXcd}, 1\ns_lshl_b32 s{sT0}, s{sT0}, 2")
            if rot==4: A(f"s_and_b32 s{sT0}, s{sT0}, 8")
        else: A(f"s_mov_b32 s{sT0}, 0")
        if rot>=5: A(f"s_mov_b32 s62, s{sT0}\ns_mov_b32 s60, 0\ns_mov_b32 s61, 0")
        if rot in (7,8): A(f"s_and_b32 s{sT1}, s{sMt}, 1\ns_lshl_b32 s{sT1}, s{sT1}, {rot-7}\ns_add_u32 s{sT0}, s{sT0}, s{sT1}")
        elif rot>=2: A(f"s_and_b32 s{sT1}, s{sMt}, 3\ns_add_u32 s{sT0}, s{sT0}, s{sT1}")
        A(f"s_lshl_b32 s{sKX}, s{sT0}, 7\ns_mul_i32 s{sKW}, s{sT0}, {64*7168}")
    sRX=57
    A(f"s_lshl_b32 s{sLX}, s{sP}, 12\ns_mov_b32 s{sRX}, 0\ns_mov_b32 s{SX+2}, {X_BYTES}\ns_mov_b32 s{SX+3}, 0x20000")
    A(f"s_waitcnt lgkmcnt(0)\ns_mov_b32 s{SX}, s4\ns_and_b32 s{SX+1}, s5, 0xffff")
    def nextk(c):
        if rot in (7,8):
            A(f"s_add_u32 s{c}, s{c}, 1\ns_and_b32 s{sT1}, s{c}, 8\ns_cselect_b32 s{sT0}, 1, 0\ns_xor_b32 s{sT0}, s{sT0}, s{sMt}\ns_and_b32 s{sT0}, s{sT0}, 1\ns_lshl_b32 s{sT0}, s{sT0}, {rot-7}\ns_add_u32 s{sT0}, s{sT0}, s{c}\ns_and_b32 s{sT0}, s{sT0}, 7")
            A(f"s_add_u32 s{sT0}, s{sT0}, s{sT1}\ns_add_u32 s{sT0}, s{sT0}, s62\ns_and_b32 s{sT0}, s{sT0}, 15")
            return
        if rot==6:
            A(f"s_add_u32 s{c}, s{c}, 1\ns_and_b32 s{sT1}, s{c}, 8\ns_cselect_b32 s{sT0}, 3, 0\ns_xor_b32 s{sT0}, s{sT0}, s{sMt}\ns_and_b32 s{sT0}, s{sT0}, 3\ns_add_u32 s{sT0}, s{sT0}, s{c}\ns_and_b32 s{sT0}, s{sT0}, 7")
            A(f"s_add_u32 s{sT0}, s{sT0}, s{sT1}\ns_add_u32 s{sT0}, s{sT0}, s62\ns_and_b32 s{sT0}, s{sT0}, 15")
            return
        A(f"s_add_u32 s{c}, s{c}, 1\ns_add_u32 s{sT0}, s{c}, s{sMt}\ns_and_b32 s{sT0}, s{sT0}, 3\ns_and_b32 s{sT1}, s{c}, 12\ns_add_u32 s{sT0}, s{sT0}, s{sT1}\ns_add_u32 s{sT0}, s{sT0}, s62\ns_and_b32 s{sT0}, s{sT0}, 15")
    def issueW1(part=None):
        inc=[1024,896,1024,896,1024,1280]
        ns=range(7) if part is None else (range(hd) if part==0 else range(hd,7))
        if part!=1: A(f"s_add_u32 m0, s{sRing}, s{sLW}\ns_add_u32 s{sRing}, s{sRing}, {WST}")
        else: A("s_mov_b32 m0, s1\ns_nop 0")
        for n in ns:
            a,o=n>>1,n&1
            if n<6:
                A(f"buffer_load_dwordx4 v{13+o}, {R4(SW1)}, s{sKW} offen offset:{a*128} {w1aux} lds")
                if part==0 and n==hd-1: A(f"s_add_u32 s1, m0, {inc[n]}")
                else:
                    A(f"s_add_u32 m0, m0, {inc[n]}")
                    A("s_nop 0" if n else f"s_cmp_eq_u32 s{sRing}, {WST*3}\ns_cselect_b32 s{sRing}, 0, s{sRing}")
            else:
                A(f"buffer_load_dwordx4 v12, {R4(SW1)}, s{sKW} offen {w1aux} lds\ns_add_u32 s{sKW}, s{sKW}, {64*7168}")
                if rot>=5:
                    nextk(60); A(f"s_mul_i32 s{sKW}, s{sT0}, {64*7168}\ns_add_u32 s{sKW}, s{sKW}, s59")
                elif rot: A(f"s_cmp_eq_u32 s{sKW}, s58\ns_cselect_b32 s{sKW}, s59, s{sKW}")
    def issueX():
        A(f"s_add_u32 m0, s{sRX}, s{sLX}\ns_add_u32 s{sRX}, s{sRX}, 16384")
        for n in range(4):
            A(f"buffer_load_dwordx4 v{8+n}, {R4(SX)}, s{sKX} offen {xaux} lds")
            if n<3: A("s_add_u32 m0, m0, 1024\n"+("s_nop 0" if n else f"s_and_b32 s{sRX}, s{sRX}, 0xffff"))
        if tight1: pass
        elif rot>=5:
            nextk(61); A(f"s_lshl_b32 s{sKX}, s{sT0}, 7")
        else: A(f"s_add_u32 s{sKX}, s{sKX}, 128\ns_and_b32 s{sKX}, s{sKX}, 2047")
    stamp(1)
    issueX()
    A(f"s_and_b32 s{sT0}, s{sFt8}, 1\ns_lshl_b32 s{sT1}, s{sT0}, 6")
    A("v_bfe_u32 v3, v2, 2, 3\nv_mul_u32_u24 v3, 7168, v3\nv_lshrrev_b32 v5, 5, v2\nv_and_b32 v4, 3, v2\nv_lshlrev_b32 v4, 4, v4")
    A(f"v_lshl_add_u32 v6, v5, 6, v3\nv_add3_u32 v13, v6, v4, s{sT1}\nv_xor_b32 v14, 32, v13\nv_add_u32 v14, {8*7168}, v14")
    A(f"s_xor_b32 s{sT0}, s{sT0}, 1\ns_mul_i32 s{sT0}, s{sT0}, 384\nv_lshrrev_b32 v3, 2, v2\nv_mul_u32_u24 v3, 7168, v3\nv_lshlrev_b32 v5, 5, v5\nv_xor_b32 v4, v4, v5\nv_add3_u32 v12, v3, v4, s{sT0}")
    A(f"s_mul_i32 s59, s{sP}, {16*7168}\ns_mul_i32 s{sT0}, s{sFt}, 448\ns_add_u32 s59, s59, s{sT0}\ns_add_u32 s{sKW}, s{sKW}, s59\ns_add_u32 s58, s59, {1024*7168}")
    A(f"s_mul_i32 s{sLW}, s{sP}, 7168\ns_add_u32 s{sLW}, s{sLW}, {WOFF}\ns_mov_b32 s{sRing}, {2*WST}")
    srd(A,SW1,6,W_BYTES)
    if la1 or tearly: issueW1(0)
    else: issueW1(); issueX(); issueW1()
    srd(A,SW2,8,W_BYTES); srd(A,SWS,14,0x10000000)
    if diag==5: srd(A,SD,12,256)
    sHp,sHalf=55,56
    if tlb:
        A(f"s_cmp_lt_u32 s2, {tlb}\ns_cbranch_scc0 P1_ntlb\ns_lshl_b32 s{sT0}, s{sP}, 21")
        A(f"s_add_u32 s4, s8, s{sT0}\ns_addc_u32 s5, s9, 0\ns_load_dword s0, s[4:5], 0")
        A(f"s_lshr_b32 s{sT1}, s{sT0}, 1\ns_add_u32 s4, s10, s{sT1}\ns_addc_u32 s5, s11, 0\ns_load_dword s0, s[4:5], 0")
        for b in (0, 8<<20, 16<<20, P_OFF, F_OFF):
            A(f"s_add_u32 s{sT1}, s{sT0}, {b}\ns_add_u32 s4, s14, s{sT1}\ns_addc_u32 s5, s15, 0\ns_load_dword s0, s[4:5], 0")
        A("P1_ntlb:")
    if tl0:
        A(f"s_cmp_lt_u32 s2, {tlw}\ns_cbranch_scc0 P1_nt0\ns_lshl_b32 s{sT0}, s{sP}, 21\ns_add_u32 s{sT0}, s{sT0}, {P_OFF}\ns_cmp_eq_u32 s{sP}, 3\ns_cselect_b32 s{sT0}, {F_OFF}, s{sT0}")
        A(f"s_add_u32 s4, s14, s{sT0}\ns_addc_u32 s5, s15, 0\ns_load_dword s0, s[4:5], 0\nP1_nt0:")
    A(f"s_lshr_b32 s4, s{sLid}, 3\ns_lshl_b32 s4, s4, 10\ns_add_u32 s4, s4, {F_OFF+fch*128}\ns_add_u32 s4, s14, s4\ns_addc_u32 s5, s15, 0")
    A(f"s_lshl_b32 s6, s{sMt}, 4\ns_add_u32 s6, s12, s6\ns_addc_u32 s7, s13, 0")
    def spf():
        if pf2 not in (3,4): return
        for k in range(4): A(f"s_load_dword s12, s[8:9], {k*64}")
        A(f"s_add_u32 s13, s13, 1\ns_and_b32 s{sT0}, s13, 7\ns_cselect_b32 s{sT0}, 0, {131072-2048}\ns_add_u32 s{sT0}, s{sT0}, 256\ns_add_u32 s8, s8, s{sT0}\ns_addc_u32 s9, s9, 0")
    if pf2 in (3,4):
        A(f"s_lshl_b32 s12, s2, 2\ns_add_u32 s12, s12, s{sP}")
        A(f"s_lshr_b32 s{sT0}, s12, 6\ns_mul_i32 s13, s{sT0}, 7\ns_and_b32 s{sT0}, s{sT0}, 1")
        A(f"s_xor_b32 s{sT1}, s{sT0}, 1\ns_mul_i32 s{sT1}, s{sT1}, 6\ns_add_u32 s{sT1}, s{sT1}, s13\ns_lshl_b32 s{sT1}, s{sT1}, 16\ns_and_b32 s14, s12, 63\ns_lshl_b32 s14, s14, 10\ns_add_u32 s{sT1}, s{sT1}, s14")
        A(f"s_add_u32 s14, s8, s{sT1}\ns_addc_u32 s15, s9, 0")
        A(f"s_add_u32 s13, s13, s{sT0}\ns_lshl_b32 s13, s13, 16\ns_and_b32 s12, s12, 63\ns_lshl_b32 s12, s12, 11\ns_add_u32 s13, s13, s12\ns_add_u32 s8, s8, s13\ns_addc_u32 s9, s9, 0\ns_mov_b32 s13, 0")
    A(f"s_lshr_b32 s{sHp}, s{sP}, 1\ns_and_b32 s{sHalf}, s{sP}, 1")
    A("v_subrev_u32 v5, 3, v2\nv_mul_u32_u24 v3, 37, v5\nv_lshrrev_b32 v3, 8, v3\nv_mul_u32_u24 v4, 7, v3\nv_sub_u32 v4, v5, v4")
    if skew2==3: A(f"v_add_u32 v6, s{sMt}, v3\nv_and_b32 v6, 3, v6\nv_add_u32 v4, v6, v4\nv_subrev_u32 v6, 7, v4\nv_min_u32 v4, v4, v6")
    elif skew2: A(f"s_and_b32 s{sT0}, s{sMt}, 3\ns_mul_i32 s{sT0}, s{sT0}, {3-skew2}\nv_add_u32 v4, s{sT0}, v4\nv_subrev_u32 v6, 7, v4\nv_min_u32 v4, v4, v6")
    A("v_add_u32 v4, 1, v4")
    A("v_cmp_gt_u32 vcc, 3, v2\ns_nop 1\nv_cndmask_b32 v3, v3, v2, vcc\nv_cndmask_b32 v4, v4, 0, vcc")
    A(f"v_add_u32 v4, s{sFt8}, v4\nv_and_b32 v4, 7, v4\nv_and_b32 v6, 1, v4\nv_mul_u32_u24 v4, 7, v4\nv_lshl_add_u32 v4, v3, 1, v4\nv_add3_u32 v4, v4, v6, s{sHp}")
    A(f"s_and_b32 s{sT0}, s{sMt}, {3 if skew2 else 0}\nv_add_u32 v5, s{sT0}, v2\nv_and_b32 v5, 3, v5\nv_mul_u32_u24 v5, 14, v5\nv_add3_u32 v5, v5, 6, s{sHp}")
    A("v_cmp_gt_u32 vcc, 24, v2\ns_nop 1\nv_cndmask_b32 v4, v5, v4, vcc\nv_and_b32 v4, 63, v4")
    A(f"s_mul_i32 s{sT0}, s{sJ}, 56\nv_add_u32 v4, s{sT0}, v4")
    A(f"s_mul_i32 s{sT0}, s{sMt}, {112*CH}\ns_mul_i32 s{sT1}, s{sHalf}, {QS}\ns_add_u32 s{sT0}, s{sT0}, s{sT1}")
    A(f"v_mul_u32_u24 v20, {CH}, v4\nv_add_u32 v20, s{sT0}, v20")
    A(f"s_lshl_b32 s{sT0}, s{sHalf}, 15\ns_lshl_b32 s{sT1}, s{sHalf}, 13\nv_mov_b32 v5, s{sT0}\nv_mov_b32 v6, s{sT1}\nv_cndmask_b32 v5, v6, v5, vcc")
    A(f"v_lshl_add_u32 v21, v4, 16, v5\ns_lshl_b32 s{sT0}, s{sDt}, 8\nv_add_u32 v21, s{sT0}, v21")
    A("v_and_b32 v4, 3, v2\nv_bfe_u32 v5, v2, 4, 1\nv_lshlrev_b32 v6, 1, v5\nv_xor_b32 v4, v4, v6\nv_lshlrev_b32 v4, 4, v4")
    A("v_lshrrev_b32 v6, 5, v2\nv_lshl_add_u32 v4, v6, 6, v4")
    A("v_bfe_u32 v6, v2, 2, 3\nv_lshl_add_u32 v22, v6, 11, v4\nv_add_u32 v23, 0x4000, v22")
    A("v_lshl_add_u32 v24, v5, 13, v22\nv_add_u32 v25, 0x8000, v24")
    fragoffs(26)
    if tight1:
        assert rot==8 and tearly==2 and not nsh and not la1 and spub and hsi and not two
        A(f"v_bfe_u32 v3, v2, 3, 1\nv_xor_b32 v3, s{sMt}, v3\nv_and_b32 v3, 1, v3\nv_lshl_add_u32 v3, v3, 1, v2\nv_and_b32 v3, 7, v3\nv_and_b32 v4, 8, v2\nv_add3_u32 v3, v3, v4, s62\nv_and_b32 v3, 15, v3")
        A(f"v_lshlrev_b32 v30, 7, v3\nv_mul_u32_u24 v31, {64*7168}, v3\nv_add_u32 v31, s59, v31")
    if diag==5: stamp(8)
    if tight1:
        xl=[f"buffer_load_dwordx4 v{8+n}, {R4(SX)}, s{sKX} offen {xaux} lds" for n in range(4)]
        wl=[f"buffer_load_dwordx4 v{13+(n&1)}, {R4(SW1)}, s{sKW} offen offset:{(n>>1)*128} {w1aux} lds" for n in range(6)]+[f"buffer_load_dwordx4 v12, {R4(SW1)}, s{sKW} offen {w1aux} lds"]
        inc=[1024,896,1024,896,1024,1280]
        def Wt(): A(f"s_mov_b32 m0, s1\ns_nop 0\n{wl[4]}\ns_add_u32 m0, m0, {inc[4]}\ns_nop 0\n{wl[5]}\ns_add_u32 m0, m0, {inc[5]}\ns_nop 0\n{wl[6]}")
        def Xs(fill):
            A(f"s_add_u32 m0, s{sRX}, s{sLX}\ns_add_u32 s{sRX}, s{sRX}, 16384")
            for n in range(4):
                A(xl[n])
                if n<3: A(f"s_add_u32 m0, m0, 1024\n{fill[n]}")
        assert hd==4
        andx=f"s_and_b32 s{sRX}, s{sRX}, 0xffff"
        A(f"v_readlane_b32 s{sKX}, v30, 1")
        Wt(); Xs([f"v_readlane_b32 s{sKW}, v31, 1", andx, "s_nop 0"])
        issueW1(0)
        A(f"v_readlane_b32 s{sKX}, v30, 2\ns_waitcnt vmcnt(8)")
        stamp(2)
        A("s_barrier")
        Wt(); Xs([f"v_readlane_b32 s{sKW}, v31, 2", andx, f"s_mov_b32 s{sCnt}, 2"])
        if pp1>=0: A(f"s_setprio {pp1}")
        A(f"s_mov_b32 s61, {(1<<(ack+2+3))|(1<<(hsi+3))|((1<<tl) if tl else 0)}\ns_add_u32 m0, s{sRing}, s{sLW}\ns_branch P1_w")
        A(f".p2align {al}\nP1_loop:")
        A(f"s_bitcmp1_b32 s61, s{sCnt}\ns_cbranch_scc1 P1_hk\nP1_hkb:")
        Xs([f"v_readlane_b32 s{sKW}, v31, s{sCnt}", andx, "s_nop 0"])
        A(f"s_add_u32 m0, s{sRing}, s{sLW}\ns_waitcnt vmcnt(15)\ns_barrier\nP1_w:")
        fill=[f"s_add_u32 s{sCnt}, s{sCnt}, 1", f"s_add_u32 s{sRing}, s{sRing}, {WST}", f"v_readlane_b32 s{sKX}, v30, s{sCnt}",
              f"s_cmp_eq_u32 s{sRing}, {WST*3}\ns_cselect_b32 s{sRing}, 0, s{sRing}", "s_nop 0", f"s_cmp_lt_u32 s{sCnt}, 16"]
        for n in range(7):
            A(wl[n])
            if n<6: A(f"s_add_u32 m0, m0, {inc[n]}\n{fill[n]}")
        A("s_cbranch_scc1 P1_loop\ns_branch P1_done")
        A("P1_hk:")
        if tl:
            A(f"s_cmp_eq_u32 s{sCnt}, {tl}\ns_cbranch_scc0 P1_hk0\ns_cmp_lt_u32 s2, {tlw}\ns_cbranch_scc0 P1_hkb\ns_lshl_b32 s{sT0}, s{sP}, 21")
            A(f"s_add_u32 s12, s8, s{sT0}\ns_addc_u32 s13, s9, 0\ns_load_dword s0, s[12:13], 0")
            A(f"s_lshr_b32 s{sT1}, s{sT0}, 1\ns_add_u32 s12, s10, s{sT1}\ns_addc_u32 s13, s11, 0\ns_load_dword s0, s[12:13], 0")
            for b in (0, 8<<20, 16<<20):
                A(f"s_add_u32 s{sT1}, s{sT0}, {b}\ns_add_u32 s12, s14, s{sT1}\ns_addc_u32 s13, s15, 0\ns_load_dword s0, s[12:13], 0")
            A("s_branch P1_hkb\nP1_hk0:")
        A(f"s_cmp_eq_u32 s{sCnt}, {hsi+3}\ns_cbranch_scc0 P1_hk1\ns_cmp_eq_u32 s{sP}, 0\ns_cbranch_scc0 P1_hkb\ns_load_dwordx4 s[28:31], s[6:7], 0 {hsglc}\ns_branch P1_hkb")
        if lead: A(f"P1_hk1:\ns_lshl_b32 s1, s{sFt}, 2\ns_add_u32 s1, s1, s{sP}\ns_cmp_eq_u32 s1, 2\ns_cbranch_scc0 P1_hkb\ns_mov_b32 s1, 1\ns_atomic_add s1, s[6:7], 0\ns_branch P1_hkb")
        else: A(f"P1_hk1:\ns_cmp_eq_u32 s{sP}, 2\ns_cbranch_scc0 P1_hkb\ns_and_b32 s1, s{sFt}, 3\ns_lshl_b32 s1, s1, 3\ns_lshl_b32 s1, 1, s1\ns_and_b32 s{sT0}, s{sFt}, 12\ns_atomic_or s1, s[6:7], s{sT0}\ns_branch P1_hkb")
        A("P1_done:")
        if ppt>=0: A(f"s_setprio {ppt}")
        pad()
    else:
        if la1:
            A(f"s_mov_b32 s{sCnt}, -1\ns_branch P1_in")
            A(f"P1_loop:\ns_waitcnt vmcnt({4+hd})")
            if diag: A(f"s_cmp_eq_u32 s{sCnt}, 0\ns_cbranch_scc0 P1_ns"); stamp(2); A("P1_ns:")
            A("s_barrier\nP1_in:")
            issueW1(1); issueX(); issueW1(0)
        else:
            if nsh:
                A(f"s_mov_b32 s{sCnt}, -1\ns_branch P1_shin\nP1_sh:\ns_waitcnt vmcnt({4+hd})")
                if diag: A(f"s_cmp_eq_u32 s{sCnt}, 0\ns_cbranch_scc0 P1_ns"); stamp(2); A("P1_ns:")
                A("s_barrier\nP1_shin:")
                issueW1(1); issueX()
                A(f"s_cmp_eq_u32 s{sCnt}, {nsh}\ns_cbranch_scc1 P1_in")
                issueW1(0)
                A(f"s_add_u32 s{sCnt}, s{sCnt}, 1\ns_branch P1_sh")
            else:
                if tearly==1: issueW1(1); issueX(); issueW1()
                if tearly==2: issueW1(1); issueX(); issueW1(0)
                A(f"s_waitcnt vmcnt({4+hd if tearly==2 else 11})")
                stamp(2)
                A("s_barrier")
                if tearly==2: issueW1(1)
                issueX()
                A(f"s_mov_b32 s{sCnt}, 0\ns_branch P1_in")
            A("P1_loop:\ns_waitcnt vmcnt(15)\ns_barrier\nP1_in:")
            issueW1(); issueX()
        if spub and two:
            A(f"s_lshl_b32 s{sT0}, s{sP}, 8\ns_add_u32 s{sT0}, s{sT0}, s{sCnt}\ns_cmp_eq_u32 s{sT0}, {512+4}\ns_cselect_b32 s0, 1, 0\ns_cmp_eq_u32 s{sT0}, {512+ack+2}\ns_cselect_b32 s0, 2, s0\ns_cmp_eq_u32 s0, 0\ns_cbranch_scc1 P1_npub")
            A(f"s_and_b32 s{sT0}, s{sFt}, 3\ns_lshl_b32 s{sT0}, s{sT0}, 3\ns_lshl_b32 s0, s0, s{sT0}\ns_and_b32 s{sT0}, s{sFt}, 12\ns_atomic_or s0, s[6:7], s{sT0}\nP1_npub:")
        elif spub:
            A(f"s_lshl_b32 s{sT0}, s{sP}, 8\ns_add_u32 s{sT0}, s{sT0}, s{sCnt}\ns_cmp_eq_u32 s{sT0}, {512+ack+2}\ns_cbranch_scc0 P1_npub")
            A(f"s_and_b32 s0, s{sFt}, 3\ns_lshl_b32 s0, s0, 3\ns_lshl_b32 s0, 1, s0\ns_and_b32 s{sT0}, s{sFt}, 12\ns_atomic_or s0, s[6:7], s{sT0}\nP1_npub:")
        if hsi:
            assert pf2 not in (3,4)
            A(f"s_lshl_b32 s{sT0}, s{sP}, 8\ns_add_u32 s{sT0}, s{sT0}, s{sCnt}\ns_cmp_eq_u32 s{sT0}, {hsi}\ns_cbranch_scc0 P1_nh\ns_load_dwordx4 s[28:31], s[6:7], 0 {hsglc}\nP1_nh:")
        if pf2==4:
            spf()
            A(f"s_cmp_lt_u32 s{sCnt}, 3\ns_cbranch_scc0 P1_nspf")
            spf()
            A("P1_nspf:")
        if pf2==3:
            A(f"s_sub_u32 s{sT0}, s{sCnt}, {spa}\ns_cmp_lt_u32 s{sT0}, {spb-spa}\ns_cbranch_scc0 P1_nspf")
            spf()
            A("P1_nspf:")
        A(f"s_add_u32 s{sCnt}, s{sCnt}, 1\ns_cmp_lt_u32 s{sCnt}, {14 if la1 else 13}\ns_cbranch_scc1 P1_loop")
        pad()
        A(f"s_waitcnt vmcnt({4+hd if la1 else 15})\ns_barrier")
        issueW1(1 if la1 else None)
    sW,sH,sSlot,sLW2,sLH=47,48,51,50,49
    A(f"s_lshl_b32 s{sLH}, s{sP}, 12\ns_add_u32 s{sLW2}, s{sLH}, 65536\ns_mov_b32 s{sCnt}, 0\ns_mov_b32 s{sSlot}, 0")
    def issueW():
        A(f"s_add_u32 m0, s{sLW2}, s{sSlot}\ns_nop 0")
        for n in range(4):
            o,tb=n>>1,n&1
            A(f"buffer_load_dwordx4 v{22+o}, {R4(SW2)}, s{sW} offen offset:{tb*128} {w2aux} lds")
            if n<3: A(f"s_add_u32 m0, m0, {896 if tb==0 else 1024+128}\ns_nop 0")
    def issueH():
        A(f"s_add_u32 m0, s{sLH}, s{sSlot}\ns_nop 0")
        for n in range(4):
            A(f"buffer_load_dwordx4 v{26+n}, {R4(SWS)}, s{sH} offen sc1 lds")
            if n<3: A("s_add_u32 m0, m0, 1024\ns_nop 0")
    A(f"v_readlane_b32 s{sW}, v21, 0")
    if not la1: A("s_waitcnt vmcnt(7)\ns_barrier")
    if not hsi: A(f"s_cmp_eq_u32 s{sP}, 0\ns_cbranch_scc0 P2_nh\ns_load_dwordx4 s[28:31], s[6:7], 0 glc\nP2_nh:")
    A("s_waitcnt vmcnt(0)\ns_barrier")
    def nextW(): A(f"s_add_u32 s{sCnt}, s{sCnt}, 1\ns_add_u32 s{sSlot}, s{sSlot}, 16384\nv_readlane_b32 s{sW}, v21, s{sCnt}\ns_nop 2")
    if ab:
        issueW(); pad()
    elif w2e:
        A("s_branch P2_w0\nP2_w:"); nextW(); A("P2_w0:"); issueW()
        A(f"s_cmp_lt_u32 s{sCnt}, {w2e}\ns_cbranch_scc1 P2_w")
        A("s_barrier")
        pad()
        A("P2_w2:"); nextW(); issueW()
        A(f"s_cmp_lt_u32 s{sCnt}, 3\ns_cbranch_scc1 P2_w2")
    else:
        issueW()
        A("s_barrier")
        pad()
        A("P2_w:"); nextW(); issueW()
        A(f"s_cmp_lt_u32 s{sCnt}, {5 if w6==1 else 3}\ns_cbranch_scc1 P2_w")
    A(f"s_cmp_eq_u32 s{sP}, 0\ns_cbranch_scc0 P2_hsd\ns_mov_b32 s58, 0\ns_branch P2_hsw")
    A("P2_hs:\ns_load_dwordx4 s[28:31], s[6:7], 0 glc\ns_add_u32 s58, s58, 1\nP2_hsw:\ns_waitcnt lgkmcnt(0)")
    if lead: A(f"s_cmp_ge_u32 s58, {SPIN}\ns_cbranch_scc1 P2_hsd\ns_cmp_eq_u32 s28, 0\ns_cbranch_scc1 P2_hs\nP2_hsd:")
    else:
        A(f"s_and_b32 s28, s28, s29\ns_and_b32 s30, s30, s31\ns_and_b32 s28, s28, s30\ns_and_b32 s28, s28, 0x01010101\ns_cmp_ge_u32 s58, {SPIN}\ns_cbranch_scc1 P2_hsd\ns_cmp_eq_u32 s28, 0x01010101\ns_cbranch_scc0 P2_hs\nP2_hsd:")
    A(f"s_lshr_b32 s59, s{sLid}, 3\ns_lshl_b32 s59, s59, 10\ns_add_u32 s59, s59, {F_OFF+fch*128}\ns_lshl_b32 s{sT0}, s{sFt8}, 2")
    A(f"v_mov_b32 v5, {OOB}\nv_mov_b32 v6, s{sT0}\nv_cmp_eq_u32 vcc, 0, v2\nv_and_b32 v3, 7, v2\nv_lshlrev_b32 v3, 2, v3\nv_cndmask_b32 v6, v5, v6, vcc\nv_mov_b32 v5, 1")
    A(f"v_readlane_b32 s{sH}, v20, 3\ns_waitcnt vmcnt({0 if ab else (20 if w6==1 else 12)})")
    stamp(3)
    A("s_barrier")
    stamp(6)
    A(f"s_cmp_eq_u32 s{sP}, 1\ns_cbranch_scc0 P2_nf\nbuffer_store_dword v5, v6, {R4(SWS)}, s59 offen sc1\ns_nop 1\nv_mov_b32 v5, 7\nP2_nf:")
    if ab:
        A("P2_w:"); nextW(); issueW()
        A(f"s_cmp_lt_u32 s{sCnt}, 2\ns_cbranch_scc1 P2_w\ns_barrier")
        nextW(); issueW()
    if w6==2:
        A("P2_w45:"); nextW(); issueW()
        A(f"s_cmp_lt_u32 s{sCnt}, 5\ns_cbranch_scc1 P2_w45")
    A(f"s_mov_b32 s62, 0\ns_cmp_eq_u32 s{sP}, 0\ns_cbranch_scc1 P2_p0\ns_waitcnt vmcnt({8 if w6==2 else 0})\ns_branch P2_go\nP2_p0:\ns_mov_b32 s58, 0")
    if pdelay: A(f"s_mov_b32 s16, 0\nP2_dl:\ns_add_u32 s16, s16, 1\ns_cmp_lt_u32 s16, {pdelay}\ns_cbranch_scc1 P2_dl")
    stamp(7)
    if vpoll:
        A(f"P2_l1:\nbuffer_load_dword v4, v3, {R4(SWS)}, s59 offen sc1\ns_add_u32 s58, s58, 1\ns_waitcnt vmcnt(0)\nv_cmp_eq_u32 vcc, 0, v4")
        spin_tail("P2_l1")
    else:
        A("P2_l1:\ns_load_dwordx8 s[16:23], s[4:5], 0 glc\ns_add_u32 s58, s58, 1\ns_waitcnt lgkmcnt(0)")
        A("s_and_b64 s[16:17], s[16:17], s[18:19]\ns_and_b64 s[20:21], s[20:21], s[22:23]\ns_and_b64 s[16:17], s[16:17], s[20:21]\ns_and_b32 s16, s16, s17")
        A(f"s_cmp_ge_u32 s58, {SPIN}\ns_cbranch_scc1 P2_rdy\ns_bitcmp1_b32 s16, 0\ns_cbranch_scc1 P2_rdy")
        if la2: A(f"s_cmp_eq_u32 s58, {npoll}\ns_cbranch_scc0 P2_l1\ns_waitcnt vmcnt(0)\ns_barrier\ns_mov_b32 s62, 1")
        A("s_branch P2_l1")
    A("P2_rdy:")
    if diag and diag!=5: stamp(9); A("s_mov_b32 s80, s58")
    A(f"s_mov_b32 m0, 49152\ns_mov_b32 s58, 0")
    A("P2_h3:")
    for n in range(4): A(f"buffer_load_dwordx4 v{26+n}, {R4(SWS)}, s{sH} offen sc1 lds\ns_add_u32 m0, m0, 1024\n"+("s_nop 0" if n<3 else f"s_add_u32 s{sH}, s{sH}, {QS}"))
    A("s_add_u32 s58, s58, 1\ns_cmp_lt_u32 s58, 4\ns_cbranch_scc1 P2_h3")
    A("P2_go:")
    if pp2>=0: A(f"s_setprio {pp2}")
    pad()
    stamp(4)
    PL=f"buffer_load_dword v4, v3, {R4(SWS)}, s59 offen sc1"
    POOL=[]
    if tight2:
        assert not la2 and not two and pf2 not in (3,4) and l1epi==3
        mask=(1<<(l1st+5))|(1<<9)|(1<<(8 if sl2 else 10))|(1<<(21 if w6 else 23))|(((1<<14)|(1<<20)) if lead else 0)
        wl=[f"buffer_load_dwordx4 v{22+(n>>1)}, {R4(SW2)}, s{sW} offen offset:{(n&1)*128} {w2aux} lds" for n in range(4)]
        hl=[f"buffer_load_dwordx4 v{26+n}, {R4(SWS)}, s{sH} offen sc1 lds" for n in range(4)]
        if w6:
            sWs=62
            A(f"s_mov_b32 s{sCnt}, 4\ns_mov_b32 s57, {mask}\nv_readlane_b32 s{sW}, v21, 6\ns_mov_b32 s{sSlot}, 0\ns_mov_b32 s{sWs}, 0\ns_mov_b32 m0, s{sLW2}\ns_branch P2_bar")
            A(f".p2align {al}\nP2_loop:")
            A(f"s_bitcmp1_b32 s57, s{sCnt}\ns_cbranch_scc1 P2_hk\nP2_hkb:")
            def Hs(f):
                A(f"s_add_u32 m0, s{sLH}, s{sSlot}\ns_add_u32 s{sCnt}, s{sCnt}, 1")
                A(f"{hl[0]}\ns_add_u32 m0, m0, 1024\n{f[0]}")
                A(f"{hl[1]}\ns_add_u32 m0, m0, 1024\ns_add_u32 s{sSlot}, s{sSlot}, 16384")
                A(f"{hl[2]}\ns_add_u32 m0, m0, 1024\ns_and_b32 s{sSlot}, s{sSlot}, 0xffff")
                A(hl[3])
            Hs([f"v_readlane_b32 s{sW}, v21, s{sT1}"])
            A(f"s_add_u32 m0, s{sLW2}, s{sWs}\nP2_bar:\ns_waitcnt vmcnt(16)\ns_barrier")
            A(f"s_cmp_lt_u32 s{sCnt}, 26\ns_cbranch_scc0 P2_out")
            A(f"{wl[0]}\ns_add_u32 m0, m0, 896\nv_readlane_b32 s{sH}, v20, s{sCnt}")
            A(f"{wl[1]}\ns_add_u32 m0, m0, 1152\ns_add_u32 s{sWs}, s{sWs}, 16384")
            A(f"{wl[2]}\ns_add_u32 m0, m0, 896\ns_add_u32 s{sT1}, s{sCnt}, 3")
            A(f"{wl[3]}\ns_cmp_eq_u32 s{sWs}, {6*16384}\ns_cselect_b32 s{sWs}, 0, s{sWs}\ns_branch P2_loop")
        else:
            A(f"s_mov_b32 s{sCnt}, 4\ns_mov_b32 s57, {mask}\nv_readlane_b32 s{sW}, v21, 4\ns_mov_b32 s{sSlot}, 0\ns_mov_b32 m0, s{sLW2}\ns_branch P2_bar")
            A(f".p2align {al}\nP2_loop:")
            A(f"s_bitcmp1_b32 s57, s{sCnt}\ns_cbranch_scc1 P2_hk\nP2_hkb:")
            A(f"s_add_u32 m0, s{sLH}, s{sSlot}\ns_add_u32 s{sCnt}, s{sCnt}, 1")
            A(f"{hl[0]}\ns_add_u32 m0, m0, 1024\nv_readlane_b32 s{sW}, v21, s{sCnt}")
            A(f"{hl[1]}\ns_add_u32 m0, m0, 1024\ns_add_u32 s{sSlot}, s{sSlot}, 16384")
            A(f"{hl[2]}\ns_add_u32 m0, m0, 1024\ns_and_b32 s{sSlot}, s{sSlot}, 0xffff")
            A(f"{hl[3]}\ns_add_u32 m0, s{sLW2}, s{sSlot}\nP2_bar:\ns_waitcnt vmcnt(16)\ns_barrier")
            A(f"s_cmp_lt_u32 s{sCnt}, {24 if wsplit else 28}\ns_cbranch_scc0 P2_out")
            A(f"{wl[0]}\ns_add_u32 m0, m0, 896\nv_readlane_b32 s{sH}, v20, s{sCnt}")
            A(f"{wl[1]}\ns_add_u32 m0, m0, 1152\ns_nop 0")
            A(f"{wl[2]}\ns_add_u32 m0, m0, 896\ns_nop 0")
            A(f"{wl[3]}\ns_branch P2_loop")
        A("P2_hk:"); pad()
        A(f"s_cmp_eq_u32 s{sCnt}, {21 if w6 else 23}\ns_cbranch_scc0 P2_hk1\nv_mov_b32 v22, v24\nv_mov_b32 v23, v25\ns_branch P2_hkb")
        A("P2_hk1:")
        if lead:
            A(f"s_cmp_lt_u32 s{sCnt}, 14\ns_cbranch_scc1 P2_hk1a\ns_cmp_eq_u32 s{sP}, 0\ns_cbranch_scc0 P2_hkb\ns_mov_b32 s58, 0\ns_cmp_eq_u32 s{sCnt}, 20\ns_cbranch_scc1 P2_pw")
            A(f"s_xor_b32 s4, s4, 1024\ns_xor_b32 s{sT0}, s{sFt8}, {dswz}\ns_lshl_b32 s{sT0}, s{sT0}, 2\ns_add_u32 s4, s4, s{sT0}\ns_load_dword s28, s[4:5], 0 glc\ns_branch P2_hkb")
            A(f"P2_pl:\ns_load_dword s28, s[4:5], 0 glc\ns_add_u32 s58, s58, 1\nP2_pw:\ns_waitcnt lgkmcnt(0)\ns_cmp_ge_u32 s58, {SPIN}\ns_cbranch_scc1 P2_hkb\ns_cmp_eq_u32 s28, 0\ns_cbranch_scc1 P2_pl\ns_branch P2_hkb\nP2_hk1a:")
        if sl2:
            assert l1st+5<8
            A(f"s_cmp_lt_u32 s{sCnt}, 8\ns_cbranch_scc0 P2_hk2\ns_cmp_eq_u32 s{sP}, 1\ns_cbranch_scc0 P2_hkb\nbuffer_store_dword v5, v6, {R4(SWS)}, s59 offen sc1\ns_branch P2_hkb")
            A(f"P2_hk2:\ns_cmp_eq_u32 s{sP}, 0\ns_cbranch_scc0 P2_hkb\ns_mov_b32 s58, 0\ns_cmp_eq_u32 s{sCnt}, 9\ns_cbranch_scc1 P2_l2w\ns_load_dwordx8 s[16:23], s[4:5], 0 glc\ns_branch P2_hkb")
            A("P2_l2:\ns_load_dwordx8 s[16:23], s[4:5], 0 glc\ns_add_u32 s58, s58, 1\nP2_l2w:\ns_waitcnt lgkmcnt(0)")
            A("s_and_b64 s[16:17], s[16:17], s[18:19]\ns_and_b64 s[20:21], s[20:21], s[22:23]\ns_and_b64 s[16:17], s[16:17], s[20:21]\ns_and_b32 s16, s16, s17")
            A(f"s_cmp_ge_u32 s58, {SPIN}\ns_cbranch_scc1 P2_hkb\ns_cmp_eq_u32 s16, 7\ns_cbranch_scc0 P2_l2")
        else:
            A(f"s_cmp_eq_u32 s{sCnt}, 9\ns_cbranch_scc0 P2_hk2\n{PL}\ns_branch P2_hkb")
            A(f"P2_hk2:\ns_cmp_eq_u32 s{sCnt}, 10\ns_cbranch_scc1 P2_hk3\ns_cmp_eq_u32 s{sP}, 1\ns_cbranch_scc0 P2_hkb\nbuffer_store_dword v5, v6, {R4(SWS)}, s59 offen sc1\ns_branch P2_hkb")
            A("P2_hk3:\ns_waitcnt vmcnt(8)\nv_cmp_gt_u32 vcc, 7, v4\ns_mov_b32 s58, 0\ns_nop 3\ns_cbranch_vccz P2_hkb")
            A(f"P2_l2:\n{PL}\ns_add_u32 s58, s58, 1\ns_waitcnt vmcnt(0)\nv_cmp_gt_u32 vcc, 7, v4")
            spin_tail("P2_l2")
        A("s_branch P2_hkb\nP2_out:")
        if wsplit:
            assert not w6
            def Wh(q,keep):
                A(f"v_readlane_b32 s{sW}, v21, {q}\ns_add_u32 m0, s{9 if keep else 8}, {(q&3)*16384}\ns_nop 2\ns_add_u32 s{sW}, s{sW}, s{11 if keep else 10}")
                A(f"buffer_load_dwordx4 v22, {R4(SW2)}, s{sW} offen {w2aux} lds\ns_add_u32 m0, m0, 2048\ns_nop 0\nbuffer_load_dwordx4 v23, {R4(SW2)}, s{sW} offen {w2aux} lds")
            def Hq(q):
                A(f"s_add_u32 m0, s{sLH}, {(q&3)*16384}\ns_nop 0")
                for n in range(4):
                    A(hl[n])
                    if n<3: A("s_add_u32 m0, m0, 1024\ns_nop 0")
            A(f"s_lshl_b32 s11, s{sJ}, 7\ns_xor_b32 s10, s11, 128\ns_lshl_b32 s9, s{sJ}, 10\ns_xor_b32 s8, s9, 1024\ns_add_u32 s8, s8, s{sLW2}\ns_add_u32 s9, s9, s{sLW2}")
            for q,w in ((24,14),(25,12),(26,12),(27,12)):
                A(f"v_readlane_b32 s{sH}, v20, {q}"); Wh(q,0); Hq(q)
                if q==25: pad()
                A(f"s_waitcnt vmcnt({w})\ns_barrier")
            Wh(24,1); Wh(25,1); A("s_waitcnt vmcnt(10)\ns_barrier")
            Wh(26,1); Wh(27,1); A("s_waitcnt vmcnt(8)\ns_barrier\ns_waitcnt vmcnt(6)\ns_barrier\ns_waitcnt vmcnt(0)\ns_barrier")
        if w6:
            A(f"v_readlane_b32 s{sH}, v20, 26\ns_nop 2"); Hs(["s_nop 0"])
            A(f"v_readlane_b32 s{sH}, v20, 27\ns_waitcnt vmcnt(12)\ns_barrier\ns_nop 0"); Hs(["s_nop 0"])
            A("s_waitcnt vmcnt(8)\ns_barrier\ns_waitcnt vmcnt(4)\ns_barrier\ns_waitcnt vmcnt(0)\ns_barrier")
    else:
        A(f"s_mov_b32 s{sCnt}, 4\ns_mov_b32 s57, 7")
        if la2: A("s_cmp_eq_u32 s62, 0\ns_cbranch_scc0 P2_loop\ns_waitcnt vmcnt(16)\ns_barrier")
        A("P2_loop:")
        A(f"v_readlane_b32 s{sW}, v21, s{sCnt}\nv_readlane_b32 s{sH}, v20, s{sCnt}")
        A(f"s_add_u32 s{sSlot}, s{sSlot}, 16384\ns_and_b32 s{sSlot}, s{sSlot}, 0xffff")
        A(f"s_cmp_eq_u32 s{sCnt}, 24\ns_cbranch_scc0 P2_a\nv_mov_b32 v22, v24\nv_mov_b32 v23, v25\nP2_a:")
        if la2: A(f"s_cmp_eq_u32 s{sCnt}, 4\ns_cbranch_scc1 P2_nw\ns_waitcnt vmcnt(8)\nP2_nw:\ns_barrier")
        else: A("s_waitcnt vmcnt(16)\ns_barrier")
        assert l1epi==3 or sched==9
        A(f"s_lshl_b32 s{sT0}, s{sP}, 8\ns_add_u32 s{sT0}, s{sT0}, s{sCnt}\ns_cmp_eq_u32 s{sT0}, {256+l1st+(4 if la2 else 5)}\ns_cbranch_scc0 P2_nf2\nbuffer_store_dword v5, v6, {R4(SWS)}, s59 offen sc1\nP2_nf2:")
        if two:
            A(f"s_cmp_eq_u32 s{sT0}, 14\ns_cbranch_scc0 P2_n2a\ns_load_dwordx4 s[28:31], s[6:7], 0 glc\nP2_n2a:")
            A(f"s_cmp_eq_u32 s{sT0}, 20\ns_cbranch_scc0 P2_n2b\ns_mov_b32 s58, 0\ns_branch P2_h2w\nP2_h2:\ns_load_dwordx4 s[28:31], s[6:7], 0 glc\ns_add_u32 s58, s58, 1\nP2_h2w:\ns_waitcnt lgkmcnt(0)")
            A(f"s_and_b32 s28, s28, s29\ns_and_b32 s30, s30, s31\ns_and_b32 s28, s28, s30\ns_cmp_ge_u32 s58, {SPIN}\ns_cbranch_scc1 P2_n2b\ns_cmp_eq_u32 s28, 0x03030303\ns_cbranch_scc0 P2_h2\nP2_n2b:")
        A(f"s_cmp_eq_u32 s{sCnt}, 9\ns_cbranch_scc0 P2_np\n{PL}\nP2_np:")
        A(f"s_cmp_eq_u32 s{sCnt}, 10\ns_cbranch_scc0 P2_b")
        A("s_waitcnt vmcnt(8)\nv_cmp_gt_u32 vcc, s57, v4\ns_mov_b32 s58, 0\ns_nop 3\ns_cbranch_vccz P2_ok")
        A(f"P2_l2:\n{PL}\ns_add_u32 s58, s58, 1\ns_waitcnt vmcnt(0)\nv_cmp_gt_u32 vcc, s57, v4")
        spin_tail("P2_l2")
        A("P2_ok:\ns_mov_b32 s57, 7")
        A("P2_b:")
        pad()
        issueW(); issueH()
        if pf2==3:
            A("s_cmp_eq_u32 s13, 24\ns_cselect_b32 s8, s14, s8\ns_cselect_b32 s9, s15, s9\ns_cmp_lt_u32 s13, 28\ns_cbranch_scc0 P2_nspf")
            spf()
            A("P2_nspf:")
        A(f"s_add_u32 s{sCnt}, s{sCnt}, 1\ns_cmp_lt_u32 s{sCnt}, 28\ns_cbranch_scc1 P2_loop")
    if not w6 and not wsplit: A(("" if (la2 or tight2) else "s_waitcnt vmcnt(16)\ns_barrier\n")+"s_waitcnt vmcnt(8)\ns_barrier\ns_waitcnt vmcnt(0)\ns_barrier")
    if diag: stamp(5); rstamp(15); flush(16)
    A("s_endpgm")
    A(f".p2align {cal}\nL_cons:")
    ACC=16; F=[(128,144),(172,188)]
    vX0,vX1,vE,vO,vL=4,5,6,7,8; bX0,bE,bL=9,10,11
    sWm,sWf,sIt,sRg,sA,sB,sC=46,47,48,49,58,7,59
    sHA,sH3,sRX2,sClr,sPf=50,51,4,5,6
    vOwn,vT3,vH,vW=232,233,235,[236,237,238,239]
    if pfc and not fast:
        A(f"s_getpc_b64 s[54:55]\nC_pc:\ns_sub_u32 s54, s54, C_pc-{NAME}\ns_subb_u32 s55, s55, 0")
        A(f"v_lshlrev_b32 v3, 7, v0\nv_min_u32 v3, L_end-{NAME}, v3\nglobal_load_dword v255, v3, s[54:55]")
    if pf1==1 and not fast:
        A(f"v_and_b32 v15, 31, v2\nv_lshlrev_b32 v15, 7, v15\ns_lshl_b32 s{sA}, s2, 2\ns_add_u32 s{sA}, s{sA}, s3\ns_lshl_b32 s{sA}, s{sA}, 12")
    if pf1==3:
        A(f"v_and_b32 v15, 7, v2\nv_lshlrev_b32 v15, 7, v15\nv_bfe_u32 v14, v2, 3, 1\nv_lshl_add_u32 v15, v14, 11, v15\ns_lshl_b32 s{sA}, s2, 2\ns_add_u32 s{sA}, s{sA}, s3\ns_lshl_b32 s{sA}, s{sA}, 12\nv_mov_b32 v252, v15")
    if pf1==2:
        A(f"v_lshlrev_b32 v15, 7, v2\ns_lshr_b32 s{sA}, s2, 3\ns_lshl_b32 s{sA}, s{sA}, 2\ns_add_u32 s{sA}, s{sA}, s3\ns_lshl_b32 s{sA}, s{sA}, 13\ns_lshr_b32 s{sB}, s{sXcd}, 1\ns_lshl_b32 s{sB}, s{sB}, 20\ns_add_u32 s{sA}, s{sA}, s{sB}")
    A("s_waitcnt lgkmcnt(0)")
    if pf1==5: srd(A,SX,4,X_BYTES)
    elif pf1 and not (fast and pf1==1):
        srd(A,SX,4,X_BYTES)
        A(f"buffer_load_dword v253, v15, {R4(SX)}, s{sA} offen")
        if pf1==3: srd(A,SW1,6,W_BYTES)
    if diag==5: stamp(6)
    if cprio: A(f"s_setprio {cprio}")
    A(f"s_lshr_b32 s{sWm}, s3, 1\ns_and_b32 s{sWf}, s3, 1")
    A("v_and_b32 v3, 15, v2\nv_lshrrev_b32 v12, 4, v2")
    A("v_lshrrev_b32 v13, 1, v3\nv_xor_b32 v13, v13, v12\nv_lshlrev_b32 v13, 4, v13")
    A(f"s_lshl_b32 s{sA}, s{sWm}, 13\nv_lshlrev_b32 v14, 7, v3\nv_add3_u32 v{bX0}, v13, v14, s{sA}")
    A("v_lshrrev_b32 v13, 1, v12\nv_mul_u32_u24 v13, 7168, v13\nv_bfe_u32 v15, v2, 2, 2\nv_lshl_add_u32 v13, v15, 6, v13\nv_and_b32 v15, 3, v2\nv_lshl_add_u32 v13, v15, 3, v13")
    A(f"v_and_b32 v14, 1, v12\nv_mul_u32_u24 v15, 1056, v14\ns_lshl_b32 s{sA}, s{sWf}, 9\ns_add_u32 s{sA}, s{sA}, {WOFF}\nv_add3_u32 v{bE}, v13, v15, s{sA}")
    A(f"v_mul_u32_u24 v15, 544, v14\nv_add_u32 v13, v13, v15\ns_lshl_b32 s{sA}, s{sWf}, 5\nv_xor_b32 v13, s{sA}, v13\nv_add_u32 v{bL}, {WOFF+6144}, v13")
    VF=248
    if late2:
        for n in range(4): A(f"v_mov_b32 v{VF+n}, {OOB}")
    else: fragoffs(VF)
    A(f"v_add_u32 v{vE}, {2*WST}, v{bE}\nv_mov_b32 v{vX0}, v{bX0}\nv_add_u32 v{vL}, {2*WST}, v{bL}\nv_xor_b32 v{vO}, 32, v{vE}\nv_xor_b32 v{vX1}, 64, v{vX0}")
    srd(A,SO,10,O_BYTES); srd(A,SWS,14,0x10000000); srd(A,SW2,8,W_BYTES)
    if diag==5 or not spub: srd(A,SD,12,256)
    A("v_lshlrev_b32 v3, 4, v2")
    A(f"s_lshr_b32 s56, s{sLid}, 3\ns_lshl_b32 s56, s56, 10\ns_lshl_b32 s{sB}, s{sFt8}, 2\ns_add_u32 s56, s56, s{sB}\ns_add_u32 s56, s56, {F_OFF+fch*128}")
    if lead:
        A(f"s_cmp_eq_u32 s{sFt}, 0\ns_cselect_b32 s{sB}, 16, 0\nv_lshrrev_b32 v13, 3, v2\nv_lshlrev_b32 v13, 10, v13\nv_and_b32 v1, 7, v2\nv_lshl_add_u32 v13, v1, 2, v13")
        A(f"v_mov_b32 v1, {OOB}\nv_cmp_gt_u32 vcc, s{sB}, v2\ns_nop 1\nv_cndmask_b32 v1, v1, v13, vcc")
    else:
        A(f"v_mov_b32 v1, {OOB}\nv_cmp_eq_u32 vcc, 0, v2\ns_nop 1\nv_cndmask_b32 v1, v1, 0, vcc")
    A(f"s_andn2_b32 s57, s{sLid}, 7\ns_add_u32 s57, s57, s{sDt}\ns_lshl_b32 s57, s57, 2\ns_add_u32 s57, s57, s3\ns_mul_i32 s57, s57, {QS}\ns_add_u32 s57, s57, {P_OFF}")
    A0=A
    if late>=0: A=Asm()
    if late2: assert 0<=late<cbase; fragoffs(VF,A,(13,14,15))
    A(f"s_lshl_b32 s52, s{sWm}, 12\nv_add_u32 v{vH}, s52, v3")
    A("v_lshrrev_b32 v13, 5, v2\nv_lshlrev_b32 v13, 11, v13\nv_bfe_u32 v14, v2, 4, 1\nv_mul_u32_u24 v14, 288, v14\nv_add_u32 v13, v13, v14")
    A("v_bfe_u32 v15, v2, 2, 2\nv_lshl_add_u32 v13, v15, 6, v13\nv_and_b32 v15, 3, v2\nv_lshl_add_u32 v13, v15, 3, v13")
    A(f"s_lshl_b32 s52, s{sJ}, 1\ns_add_u32 s52, s52, s{sWf}\ns_lshl_b32 s52, s52, 9\ns_add_u32 s52, s52, 65536\nv_add_u32 v{vW[0]}, s52, v13")
    A(f"v_xor_b32 v{vW[1]}, 32, v{vW[0]}\nv_xor_b32 v{vW[2]}, 0x400, v{vW[0]}\nv_xor_b32 v{vW[3]}, 0x420, v{vW[0]}")
    A(f"s_add_u32 s62, s{sFt8}, s3\ns_and_b32 s62, s62, {rmask}\ns_add_u32 s62, s62, {l2st+5}")
    A(f"s_mul_i32 s{sHA}, s{sMt}, 112\ns_mul_i32 s{sH3}, s{sFt}, 7\ns_add_u32 s{sHA}, s{sHA}, s{sH3}\ns_and_b32 s52, s{sFt8}, 1")
    A(f"s_xor_b32 s53, s52, 1\ns_mul_i32 s53, s53, 6\ns_add_u32 s{sH3}, s{sHA}, s53\ns_add_u32 s{sHA}, s{sHA}, s52\ns_add_u32 s{sHA}, s{sHA}, s{sWf}")
    A(f"s_mul_i32 s52, s{sWm}, {QS}\ns_mul_i32 s{sHA}, s{sHA}, {CH}\ns_add_u32 s{sHA}, s{sHA}, s52\ns_mul_i32 s{sH3}, s{sH3}, {CH}\ns_add_u32 s{sH3}, s{sH3}, s52\ns_lshl_b32 s52, s{sWm}, 12")
    A(f"s_lshl_b32 s53, s{sWf}, 13\ns_add_u32 s52, s52, s53\nv_add_u32 v{vOwn}, s52, v3")
    A(f"v_bfe_u32 v13, v2, 4, 1\nv_lshlrev_b32 v13, 3, v13\nv_lshrrev_b32 v14, 5, v2\nv_lshl_add_u32 v13, v14, 1, v13\nv_bfe_u32 v14, v2, 3, 1\ns_lshl_b32 s52, s{sWf}, 2\nv_add3_u32 v13, v13, v14, s52")
    A("v_add_u32 v14, 16, v13\nv_and_b32 v15, 7, v2\nv_lshlrev_b32 v15, 4, v15")
    physline(vT3,13,12,A); physline(vT3+1,14,12,A)
    A(f"v_add_u32 v{vT3}, v{vT3}, v15\nv_add_u32 v{vT3+1}, v{vT3+1}, v15")
    A("v_mov_b32 v12, 1\ns_mov_b32 s52, 0xbfb8aa3b\ns_mov_b32 s53, 0xbfb8aa3b\ns_mov_b32 s54, 1.0\ns_mov_b32 s55, 1.0")
    if late>=0:
        LATE=A.text().rstrip(); A=A0
        A(f"v_mov_b32 v{vT3}, {OOB}\nv_mov_b32 v{vT3+1}, {OOB}")
    if not zc:
        for r in range(112): A(f"v_mov_b32 v{ACC+r}, 0")
    for r in range(4): A(f"v_mov_b32 v{244+r}, -1")
    def hook(it, body, name, reg=None):
        OOL.append(f"{name}:\n{body}\ns_branch {name}_b")
        return [f"s_cmp_eq_u32 s{reg or sIt}, {it}", f"s_cbranch_scc1 {name}\n{name}_b:"]
    def reads1(u, fs):
        X,W=F[fs]
        xs=[f"ds_read_b128 {vr(X+4*i,4)}, v{vX1 if u else vX0} offset:{i*2048}" for i in range(4)]
        ws=[]
        for j in range(7):
            a,o=(vL,0) if j==6 else ((vO if j&1 else vE),(j>>1)*2048)
            for hh in range(2): ws.append(f"ds_read_b64_tr_b16 {vr(W+4*j+2*hh,2)}, v{a} offset:{u*14336+o+hh*256}")
        return ws[0:2]+xs+ws[2:]
    def mf1(fs,zero=False):
        X,W=F[fs]
        return [f"v_mfma_f32_16x16x32_bf16 {vr(ACC+(j*4+i)*4,4)}, {vr(W+4*j,4)}, {vr(X+4*i,4)}, {'0' if zero else vr(ACC+(j*4+i)*4,4)}" for j,i in snake(range(7),4)]
    A(f"s_mov_b32 s{sIt}, 0\ns_mov_b32 s{sRg}, {2*WST}\ns_mov_b32 s{sRX2}, 0\ns_lshl_b32 s{sClr}, s3, {1 if cmask==7 else 0}\ns_add_u32 s{sClr}, s{sClr}, s{sFt8}\ns_and_b32 s{sClr}, s{sClr}, {cmask}\ns_add_u32 s{sClr}, s{sClr}, {cbase}")
    if two: A(f"s_mov_b32 s0, {1|4|(1<<ack)}")
    A(f"s_mul_i32 s{sPf}, s3, {pfb}\ns_add_u32 s{sPf}, s{sPf}, {pfa}")
    if pf2==2: A(f"v_min_u32 v15, 55, v2\nv_lshlrev_b32 v15, 7, v15\ns_lshl_b32 s{sA}, s2, 2\ns_add_u32 s{sA}, s{sA}, s3\ns_mul_i32 s{sA}, s{sA}, 7168\nbuffer_load_dword v255, v15, {R4(SW2)}, s{sA} offen")
    if diag in (2,3,6): A("s_mov_b32 m0, 0")
    clr="\n".join([f"buffer_store_dwordx4 v[244:247], v{VF+i}, {R4(SWS)}, s57 offen sc1" for i in range(4)])
    fclr=f"v_mov_b32 v13, 0\nbuffer_store_dword v13, v1, {R4(SWS)}, s56 offen sc1"
    if sep: assert lead; A(fclr)
    elif not two: clr=clr+"\n"+fclr
    if clr0: A(clr)
    if diag==5: stamp(8)
    WK=""
    if walk:
        WK=f"s_cmp_ge_u32 s3, {walk}\ns_cbranch_scc1 C_walked\n"+("" if (wlate or wnw) else f"s_waitcnt vmcnt({(1 if pf1 and not pcw else 0)+(1 if sep else 0)})\n")+"s_mov_b64 exec, 0\n"
        for w in range(walk-1): WK+=f"s_cmp_eq_u32 s3, {w}\ns_cbranch_scc1 @START{w}@\n"
        WK+=f"s_branch @START{walk-1}@\nC_wret:\ns_mov_b64 exec, -1\nC_walked:"
        if not wlate: A(WK)
    if diag==5: stamp(9)
    A("s_barrier")
    stamp(1)
    for l in reads1(0,0): A(l)
    A("s_waitcnt lgkmcnt(0)")
    ex=[f"s_add_u32 s{sRg}, s{sRg}, {WST}\ns_add_u32 s{sRX2}, s{sRX2}, 16384", f"s_cmp_eq_u32 s{sRg}, {WST*3}\ns_cselect_b32 s{sRg}, 0, s{sRg}",
        f"v_add_u32 v{vE}, s{sRg}, v{bE}\ns_and_b32 s{sRX2}, s{sRX2}, 0xffff", f"v_add_u32 v{vX0}, s{sRX2}, v{bX0}", f"v_add_u32 v{vL}, s{sRg}, v{bL}",
        f"v_xor_b32 v{vO}, 32, v{vE}", f"v_xor_b32 v{vX1}, 64, v{vX0}"]
    if zc:
        assert cbase>0
        sstamp()
        for l in interleave(mf1(0,True), reads1(1,1)+ex): A(l)
        A("s_branch C1_in")
    A(f".p2align {al}\nC1_loop:")
    sstamp()
    if not clr0: ex+=hook(f"s{sClr}" if stag else 2,clr,"H1_clr")
    for l in interleave(mf1(0), reads1(1,1)+ex): A(l)
    A("C1_in:\ns_waitcnt lgkmcnt(0)\ns_barrier")
    pub=(f"s_cmp_eq_u32 s3, 0\ns_cbranch_scc0 H1_pub_b\ns_and_b32 s{sA}, s{sLid}, 3\ns_lshl_b32 s{sA}, s{sA}, 3\ns_lshl_b32 s{sA}, 1, s{sA}\nv_mov_b32 v13, s{sA}\n"
         f"s_andn2_b32 s{sA}, s{sLid}, 3\nv_lshlrev_b32 v14, 8, v2\nbuffer_atomic_or v13, v14, {R4(SD)}, s{sA} offen")
    if two:
        h=hook(0,f"s_cmp_eq_u32 s{sIt}, 0\ns_cbranch_scc1 H1_fc\ns_waitcnt vmcnt(0)\ns_branch H1_ack_b\nH1_fc:\n{fclr}","H1_ack")
        h[0]=f"s_bitcmp1_b32 s0, s{sIt}"
    else: h=hook(ack,"s_waitcnt vmcnt(0)","H1_ack")
    ex=h+([] if spub else hook(ack+1,pub,"H1_pub"))
    if late>=0: ex+=hook(late,(PAD+"\n" if walk else "")+LATE+("\n"+WK if wlate else ""),"H1_late")
    if xp_n: ex+=hook(xp_it,f"s_sleep {xp_n}","H1_xp")
    if pf1==5: ex+=hook(pfi,f"v_xor_b32 v252, 0x400, v252\ns_nop 0\nbuffer_load_dword v253, v252, {R4(SX)}, 0 offen","H1_pf1")
    if pf1==3:
        nl=(16-w1s)*64*56//1024
        ex+=hook(pfi,f"s_lshl_b32 s{sA}, s2, 2\ns_add_u32 s{sA}, s{sA}, s3\ns_mul_i32 s{sB}, s{sA}, {nl*128}\ns_add_u32 s{sB}, s{sB}, {w1s*64*7168}\ns_lshl_b32 s{sA}, s{sA}, 12\n"
                     f"v_min_u32 v15, {nl-1}, v2\nv_lshlrev_b32 v15, 7, v15\nbuffer_load_dword v255, v15, {R4(SW1)}, s{sB} offen\nbuffer_load_dword v253, v252, {R4(SX)}, s{sA} offen offset:1024","H1_pf1")
    if pf2==4:
        ex+=hook(f"s{sPf}",f"s_lshl_b32 s{sA}, s2, 2\ns_add_u32 s{sA}, s{sA}, s3\ns_lshr_b32 s{sB}, s{sA}, 6\ns_and_b32 s60, s{sB}, 1\ns_mul_i32 s{sB}, s{sB}, 7\n"
                     f"s_add_u32 s61, s{sB}, s60\ns_add_u32 s61, s61, 4\ns_lshl_b32 s61, s61, 16\ns_xor_b32 s60, s60, 1\ns_mul_i32 s60, s60, 6\ns_add_u32 s{sB}, s{sB}, s60\ns_lshl_b32 s{sB}, s{sB}, 16\n"
                     f"s_and_b32 s{sA}, s{sA}, 63\ns_lshl_b32 s60, s{sA}, 11\ns_add_u32 s61, s61, s60\ns_lshl_b32 s60, s{sA}, 10\ns_add_u32 s{sB}, s{sB}, s60\n"
                     f"v_and_b32 v15, 15, v2\nv_lshlrev_b32 v15, 7, v15\nv_and_b32 v14, 7, v2\nv_lshlrev_b32 v14, 7, v14\n"
                     f"buffer_load_dword v255, v15, {R4(SW2)}, s61 offen\nbuffer_load_dword v253, v14, {R4(SW2)}, s{sB} offen","H1_pf")
    if pf2==1:
        ex+=hook(f"s{sPf}",f"v_min_u32 v15, 55, v2\nv_lshlrev_b32 v15, 7, v15\ns_lshl_b32 s{sA}, s2, 2\ns_add_u32 s{sA}, s{sA}, s3\ns_mul_i32 s{sA}, s{sA}, 7168\nbuffer_load_dword v255, v15, {R4(SW2)}, s{sA} offen","H1_pf")
    ex+=([PAD] if walk else [])+[f"s_add_u32 s{sIt}, s{sIt}, 1", f"s_cmp_lt_u32 s{sIt}, {14 if ab else 16}"]
    x=interleave(mf1(1), reads1(0,0)+ex)
    if x[-1].startswith("v_mfma"):
        for l in x[:-1]: A(l)
        A("s_waitcnt lgkmcnt(0)"); A(x[-1])
    else:
        for l in x: A(l)
        A("s_waitcnt lgkmcnt(0)")
    A("s_cbranch_scc1 C1_loop")
    if not ab: stamp(2)
    T=216
    PEND=[]
    def silu(a, b, D):
        t=T; src=[a,a+2,b,b+2]
        for r in range(4): A(f"v_pk_mul_f32 {vr(t+2*r,2)}, s[52:53], {vr(src[r],2)}")
        for r in range(8):
            A(f"v_exp_f32 v{t+r}, v{t+r}")
            if r in (1,5) and PEND: A(PEND.pop(0))
        for r in range(4): A(f"v_pk_add_f32 {vr(t+2*r,2)}, s[54:55], {vr(t+2*r,2)}")
        if dense>=2: pad()
        for r in range(8):
            A(f"v_rcp_f32 v{t+r}, v{t+r}")
            if r in (1,5) and PEND: A(PEND.pop(0))
        for r in range(4): A(f"v_pk_mul_f32 {vr(t+2*r,2)}, {vr(t+2*r,2)}, {vr(src[r],2)}")
        for r in range(4): A(f"v_cvt_pk_bf16_f32 v{D+r}, v{t+2*r}, v{t+2*r+1}")
    def later(x):
        if pipe: PEND.append(x)
        else: A(x)
    def flushp():
        while PEND: A(PEND.pop(0))
    def gst(D,i): return f"buffer_store_dwordx4 {vr(D,4)}, v{VF+i}, {R4(SWS)}, s{sHA} offen sc1"
    FLAG="s_nop 0"
    DL=[160,128,144]; D3=224
    if ab:
        assert not pipe and l1epi==3
        def rd1(X,W,st,u,js):
            xs=[f"ds_read_b128 {vr(X+4*i,4)}, v{vX1 if u else vX0} offset:{st*16384+i*2048}" for i in range(4)]
            ws=[]
            for n,j in enumerate(js):
                a,o=(vL,0) if j==6 else ((vO if j&1 else vE),(j>>1)*2048)
                for hh in range(2): ws.append(f"ds_read_b64_tr_b16 {vr(W+4*n+2*hh,2)}, v{a} offset:{st*WST+u*14336+o+hh*256}")
            return ws[0:2]+xs+ws[2:]
        def m1(X,W,js): return [f"v_mfma_f32_16x16x32_bf16 {vr(ACC+(j*4+i)*4,4)}, {vr(W+4*(j-js[0]),4)}, {vr(X+4*i,4)}, {vr(ACC+(j*4+i)*4,4)}" for j,i in snake(js,4)]
        JA=(0,1,2,3); JB=(4,5,6); S0=(128,144); S1=(172,188); S2=(156,200)
        P=[PAD] if walk else []
        for l in interleave(m1(*F[0],JA), rd1(*F[1],0,1,JA)+P): A(l)
        A("s_waitcnt lgkmcnt(0)\ns_barrier")
        for l in interleave(m1(*F[1],JA), rd1(*F[0],1,0,JA)): A(l)
        A("s_waitcnt lgkmcnt(0)")
        for l in interleave(m1(*F[0],JA), rd1(*F[1],1,1,JA)+P): A(l)
        A("s_waitcnt lgkmcnt(0)")
        for l in interleave(m1(*F[1],JA), rd1(*S0,0,0,JB)): A(l)
        stamp(2)
        for L,DB in ((0,156),(1,200)):
            for i in range(4):
                if i%2==0: pad()
                silu(ACC+((2*L)*4+i)*4, ACC+((2*L+1)*4+i)*4, DB+4*i)
                A(gst(DB+4*i,i)); A(f"ds_write_b128 v{vOwn}, {vr(DB+4*i,4)} offset:{L*16384+i*1024}")
                if L==1 and i==1:
                    for l in rd1(*S1,0,1,JB): A(l)
            A(f"s_add_u32 s{sHA}, s{sHA}, {2*CH}")
        stamp(11); A("s_waitcnt vmcnt(4)"); stamp(12)
        A("s_waitcnt lgkmcnt(0)\ns_barrier")
        for l in interleave(m1(*S0,JB), rd1(*S2,1,0,JB)+P): A(l)
        for l in interleave(m1(*S1,JB), rd1(*S0,1,1,JB)): A(l)
        A("s_waitcnt lgkmcnt(0)\ns_barrier")
        for l in m1(*S2,JB)+m1(*S0,JB): A(l)
        A("s_nop 3")
        for i in range(4):
            if i%2==0: pad()
            silu(ACC+(16+i)*4, ACC+(20+i)*4, 128+4*i)
            A(gst(128+4*i,i)); A(f"ds_write_b128 v{vOwn}, {vr(128+4*i,4)} offset:{32768+i*1024}")
    else:
        for L in range(3):
            for i in range(4):
                D=DL[L]+4*i
                if dense or i%padn==0:
                    if epad==1: pad()
                    elif epad==2: pad(); A("s_nop 0")
                    elif epad==3: A("s_nop 0")
                    elif epad==4 and (L==2 or (L==1 and i>=nb)): pad(); A("s_nop 0")
                    elif epad==5 and i==0: pad(); A("s_nop 0")
                silu(ACC+((2*L)*4+i)*4, ACC+((2*L+1)*4+i)*4, D)
                if L==0 or (L==2 and l1epi>=2) or (L==1 and i>=nb and l1epi): later(gst(D,i))
                later(f"ds_write_b128 v{vOwn}, {vr(D,4)} offset:{L*16384+i*1024}")
                if L==0 and i==3: later(f"s_add_u32 s{sHA}, s{sHA}, {2*CH}")
                if L==1 and i==nb-1:
                    flushp()
                    stamp(11); A("s_waitcnt vmcnt(0)"); stamp(12)
                    A(f"s_waitcnt lgkmcnt(0)\ns_barrier")
                    if l1epi:
                        if pipe==2:
                            for k in range(0,nb,2): later(gst(128+4*k,k)+"\n"+gst(132+4*k,k+1))
                        else:
                            for k in range(nb): A(gst(128+4*k,k))
            if L==1 and l1epi: later(f"s_add_u32 s{sHA}, s{sHA}, {2*CH}")
    F2=[(160,176),(192,208)]
    def rdH(X,slot,u): return [f"ds_read_b128 {vr(X+4*i,4)}, v{vH} offset:{slot*16384+u*8192+i*1024}" for i in range(4)]
    DYN=[w6]
    def rdW(W,slot,u,js): return [f"ds_read_b64_tr_b16 {vr(W+4*n+2*hh,2)}, v{vW[j]} offset:{(0 if DYN[0] else slot)*16384+(4*u+2*hh)*2048}" for n,j in enumerate(js) for hh in range(2)]
    WU=[f"v_add_u32 v{vW[0]}, s{sRg}, v240", f"v_xor_b32 v{vW[1]}, 32, v{vW[0]}", f"v_xor_b32 v{vW[2]}, 0x400, v{vW[0]}", f"v_xor_b32 v{vW[3]}, 0x420, v{vW[0]}"] if w6 else []
    WS=[f"s_add_u32 s{sRg}, s{sRg}, 16384", f"s_cmp_eq_u32 s{sRg}, {6*16384}\ns_cselect_b32 s{sRg}, 0, s{sRg}"] if w6 else []
    def reads2(slot,u,fs):
        X,W=F2[fs]; ws=rdW(W,slot,u,range(4)); return ws[0:2]+rdH(X,slot,u)+ws[2:]
    def mfm(X,W,js,zero=False,w0=0):
        return [f"v_mfma_f32_16x16x32_bf16 {vr(ACC+(j*4+i)*4,4)}, {vr(W+4*(j-w0),4)}, {vr(X+4*i,4)}, {'0' if zero else vr(ACC+(j*4+i)*4,4)}" for j,i in snake(js,4)]
    def mf2(fs,zero=False): return mfm(F2[fs][0],F2[fs][1],range(4),zero)
    for l in reads2(0,0,0): A(l)
    for ip in range(2):
        D=D3+4*ip; a=ACC+(24+2*ip)*4
        if ip==0 or dense:
            if epad==1: pad()
            elif epad in (2,4,5): pad(); A("s_nop 0")
            elif epad==3: A("s_nop 0")
        silu(a,a+4,D)
        A(f"s_nop 1\nv_permlane16_swap_b32 v{D}, v{D+2}\nv_permlane16_swap_b32 v{D+1}, v{D+3}")
        if l1epi>=3: later(f"buffer_store_dwordx4 {vr(D,4)}, v{vT3+ip}, {R4(SWS)}, s{sH3} offen sc1")
    flushp()
    A(f"v_mov_b32 v12, {7 if l1epi==3 else 3}\ns_mov_b32 s{sIt}, 0")
    if w6: A(f"v_mov_b32 v240, v{vW[0]}\ns_mov_b32 s{sRg}, 16384")
    stamp(3); stamp(4)
    sstamp()
    A("s_waitcnt lgkmcnt(0)")
    for l in interleave(mf2(0,True), reads2(0,1,1)+(WU if w6 else ([PAD] if walk else []))): A(l)
    A("s_branch C2_in")
    dw={}; dws={}
    t3st=[f"buffer_store_dwordx4 {vr(D3+4*ip,4)}, v{vT3+ip}, {R4(SWS)}, s{sH3} offen sc1" for ip in range(2)]
    ADV=f"\ns_add_u32 s{sHA}, s{sHA}, {2*CH}"
    L1s=[gst(128+4*i,i) for i in range(4)]; L2s=[gst(144+4*i,i) for i in range(4)]
    F3=f"s_waitcnt vmcnt(0)\n{FLAG}"; F7=f"v_mov_b32 v12, 7\ns_waitcnt vmcnt(0)\n{FLAG}"
    J="\n".join
    if sched==1:
        dw[(0,1)]=J(L1s[:2]); dw[(1,0)]=J(L1s[2:])+ADV; dw[(1,1)]=J(L2s[:2]); dw[(2,0)]=J(L2s[2:]); dw[(2,1)]=J(t3st); dw[(4,0)]=F7
    elif sched==2:
        dw[(0,1)]=J(L1s[:2]); dw[(1,0)]=J(L1s[2:])+ADV; dw[(3,0)]=F3
        dw[(3,1)]=L2s[0]; dw[(4,0)]=L2s[1]; dw[(4,1)]=L2s[2]; dw[(5,0)]=L2s[3]; dw[(5,1)]=t3st[0]; dw[(6,0)]=t3st[1]; dw[(10,0)]=F7
    elif sched==3:
        dw[(0,1)]=L1s[0]; dw[(1,0)]=L1s[1]; dw[(1,1)]=L1s[2]; dw[(2,0)]=L1s[3]+ADV; dw[(3,1)]=F3
        dw[(4,0)]=L2s[0]; dw[(4,1)]=L2s[1]; dw[(5,0)]=L2s[2]; dw[(5,1)]=L2s[3]; dw[(6,0)]=t3st[0]; dw[(6,1)]=t3st[1]; dw[(11,0)]=F7
    elif sched==4:
        dw[(0,1)]=J(L1s)+ADV; dw[(1,1)]=J(L2s); dw[(2,1)]=J(t3st); dw[(4,0)]=F7
    elif sched==9:
        dw[(1,1)]=F7
    elif sched==5:
        dw[(0,1)]=J(L2s[:2]); dw[(1,0)]=J(L2s[2:]); dw[(1,1)]=J(t3st); dw[(3,1)]=F7
    else:
        if not l1epi:
            dw[(l1st,0)]=gst(128,0)+"\n"+gst(132,1); dw[(l1st,1)]=gst(136,2)+"\n"+gst(140,3)+f"\ns_add_u32 s{sHA}, s{sHA}, {2*CH}"
            dw[(l1st+2,1)]=f"s_waitcnt vmcnt(0)\n{FLAG}"
        else:
            dw[(l1st,1)]=f"s_waitcnt vmcnt(0)\n{FLAG}"
        if l1epi>=2:
            if l1epi==2: dw[(l2st,0)]="\n".join(t3st)
            if l1epi==2: dw[(f3,1)]=f"v_mov_b32 v12, 7\ns_waitcnt vmcnt(0)\n{FLAG}"
        elif not stag2:
            dw[(l2st,0)]=gst(144,0)+"\n"+gst(148,1); dw[(l2st+1,0)]=gst(152,2)+"\n"+gst(156,3)+"\nv_mov_b32 v12, 7"
            dw[(l2st+2,0)]="\n".join(t3st)
            dw[(l2st+5,1)]=f"s_waitcnt vmcnt(0)\n{FLAG}"
        else:
            dw[(f3,1)]=f"v_mov_b32 v12, 7\ns_waitcnt vmcnt(0)\n{FLAG}"
            body=[gst(144+4*i,i) for i in range(4)]+t3st
            o="H2_st:\n"
            for n,b in enumerate(body):
                o+=f"s_cmp_eq_u32 s62, {5-n}\ns_cbranch_scc0 H2_st{n}\n{b}\nH2_st{n}:\n"
            o+="s_setpc_b64 s[54:55]"
            OOL.append(o)
    def hooks2(slot,u):
        ex=[]
        for (q,uu),body in sorted(dw.items()):
            if q%4==slot and uu==u: ex+=hook(q//4,body,f"H2_{q}_{uu}")
        if stag2 and l1epi<2 and u==0 and not sched:
            ex+=["s_sub_u32 s62, s62, 1\ns_cmp_lt_u32 s62, 6", f"s_cbranch_scc1 H2_go{slot}\nH2_ns{slot}:"]
            OOL.append(f"H2_go{slot}:\ns_call_b64 s[54:55], H2_st\ns_branch H2_ns{slot}")
        assert len(ex)<=4, (slot,u,ex)
        return ex
    A(f".p2align {al}\nC2_loop:")
    for slot in range(4):
        sstamp()
        for l in interleave(mf2(0), reads2(slot,1,1)+hooks2(slot,0)+(WU if w6 else ([PAD] if walk else []))): A(l)
        if slot==0: A("C2_in:")
        A("s_waitcnt lgkmcnt(0)\ns_barrier")
        ex=WS+hooks2(slot,1)
        if (w6 or dense) and walk and len(ex)<=(1 if slot==3 else 3): ex=ex+[PAD]
        if slot==3: ex+=[f"s_add_u32 s{sIt}, s{sIt}, 1", f"s_cmp_lt_u32 s{sIt}, 6"]
        x=interleave(mf2(1), reads2((slot+1)&3,0,0)+ex)
        if x[-1].startswith("v_mfma"):
            for l in x[:-1]: A(l)
            A("s_waitcnt lgkmcnt(0)"); A(x[-1])
        else:
            for l in x: A(l)
            A("s_waitcnt lgkmcnt(0)")
    A("s_cbranch_scc1 C2_loop")
    stamp(13)
    if diag: A("s_waitcnt lgkmcnt(0)")
    DYN[0]=0
    G=[dict(H=[160,80],W=[184,96]), dict(H=[192,104],W=[208,216])]
    def rdS(g,slot,js,us=(0,1)):
        o=[]
        for u in us:
            w=rdW(G[g]['W'][u],slot,u,js); o+=w[0:2]+rdH(G[g]['H'][u],slot,u)+w[2:]
        return o
    def mfS(g,js): return mfm(G[g]['H'][0],G[g]['W'][0],js,w0=js[0])+mfm(G[g]['H'][1],G[g]['W'][1],js,w0=js[0])
    for l in rdS(0,0,(2,3),(1,)): A(l)
    pad()
    A("s_barrier")
    m=mfS(0,(2,3)); r=rdS(1,1,(2,3))
    x=interleave(m[:8], r[:8])
    for l in x: A(l)
    A("s_waitcnt lgkmcnt(8)")
    for l in interleave(m[8:], r[8:]): A(l)
    for q in (1,2):
        if q==2 or dense: pad()
        A(f"s_waitcnt lgkmcnt({8 if cw else 0})\ns_barrier")
        x=interleave(mfS(q&1,(2,3)), rdS((q+1)&1,q+1,(2,3)))
        if cw: x.insert(16,"s_waitcnt lgkmcnt(8)"+("\n"+PAD if dense and walk else ""))
        for l in x: A(l)
    A(f"s_mul_i32 s52, s{sJ}, {-2*32*QS}\ns_add_u32 s52, s52, {32*QS}\ns_add_u32 s52, s52, s57\ns_mov_b32 s53, -2")
    sn=[]
    for i in range(4):
        D=128+4*i; t=[]
        for n,j in enumerate((2,3)):
            S=ACC+(j*4+i)*4
            t+= [f"v_cvt_pk_bf16_f32 v{D+2*n}, v{S}, v{S+1}", f"v_cvt_pk_bf16_f32 v{D+2*n+1}, v{S+2}, v{S+3}"]
        t+=[f"v_min_u32 v{D+r}, s53, v{D+r}" for r in range(4)]
        t.append(f"buffer_store_dwordx4 {vr(D,4)}, v{VF+i}, {R4(SWS)}, s52 offen sc1")
        sn.append(t)
    A("s_waitcnt lgkmcnt(0)")
    if wsplit: assert esend; A("s_barrier")
    if esend:
        g=G[1]; r=rdS(0,0,(0,1)); k=0
        for i in range(4):
            for u,j in ((0,2),(0,3),(1,3),(1,2)):
                A(f"v_mfma_f32_16x16x32_bf16 {vr(ACC+(j*4+i)*4,4)}, {vr(g['W'][u]+4*(j-2),4)}, {vr(g['H'][u]+4*i,4)}, {vr(ACC+(j*4+i)*4,4)}")
                A(r[k]); k+=1
            if dense and i in (0,2): pad()
            if i>=1:
                for l in sn[i-1]: A(l)
        stamp(5)
        pad()
        A("s_waitcnt lgkmcnt(0)")
        if wsplit: A("s_barrier")
        m=mfS(0,(0,1)); r=rdS(1,1,(0,1))
        for n,mm_ in enumerate(m):
            A(mm_); A(r[n])
            if n==2:
                for l in sn[3]: A(l)
    else:
        for l in interleave(mfS(1,(2,3)), rdS(0,0,(0,1))): A(l)
        stamp(5)
        pad()
        snd=sum(sn,[])
        A("s_waitcnt lgkmcnt(0)")
        m=mfS(0,(0,1)); r=rdS(1,1,(0,1))
        k=0
        for n,mm_ in enumerate(m):
            A(mm_); A(r[n])
            if packfirst and n==1:
                A("s_nop 3")
                while k<len(snd): A(snd[k]); k+=1
            if n>=3:
                for _ in range(3):
                    if k<len(snd): A(snd[k]); k+=1
        while k<len(snd): A(snd[k]); k+=1
    if diag!=5 and not cw: stamp(6)
    RB=144 if dual else 80; RB2=224
    def LDs(b): return [f"buffer_load_dwordx4 {vr(b+4*i,4)}, v{VF+i}, {R4(SWS)}, s57 offen sc1" for i in range(4)]
    LD=LDs(RB)
    for q in (1,2):
        pad()
        A(f"s_waitcnt lgkmcnt({8 if cw else 0})")
        x=interleave(mfS(q&1,(0,1)), rdS((q+1)&1,q+1,(0,1)))
        if cw: assert not dual; x.insert(16,"s_waitcnt lgkmcnt(8)"+("\n"+PAD if dense and walk else ""))
        if dual==q:
            for n in range(4): x.insert(2+3*n+n,LD[n])
        for l in x: A(l)
    A(f"s_waitcnt lgkmcnt({8 if cw else 0})")
    adr=["v_and_b32 v13, 15, v2","v_lshlrev_b32 v13, 11, v13","v_bfe_u32 v14, v2, 4, 1","v_lshl_add_u32 v13, v14, 5, v13","v_lshrrev_b32 v14, 5, v2","v_lshl_add_u32 v13, v14, 4, v13",
         f"s_lshl_b32 s{sC}, s{sMt}, 1\ns_add_u32 s{sC}, s{sC}, s{sWm}", f"s_lshl_b32 s{sC}, s{sC}, 17\ns_lshl_b32 s52, s{sDt}, 8", f"s_add_u32 s{sC}, s{sC}, s52\ns_lshl_b32 s52, s{sJ}, 7",
         f"s_add_u32 s{sC}, s{sC}, s52\ns_lshl_b32 s52, s{sWf}, 6", f"s_add_u32 s{sC}, s{sC}, s52\ns_mov_b32 s58, 0"]
    if otr:
        adr=["v_bfe_u32 v14, v2, 4, 1\nv_lshrrev_b32 v13, 5, v2","v_lshl_add_u32 v13, v14, 1, v13\nv_bfe_u32 v14, v2, 1, 2","v_xor_b32 v13, v13, v14\nv_and_b32 v14, 15, v2",
             f"v_lshlrev_b32 v14, 6, v14\ns_lshl_b32 s52, s3, 12","v_lshl_add_u32 v14, v13, 4, v14\ns_add_u32 s52, s52, 131072","v_add_u32 v240, s52, v14\nv_add_u32 v241, s52, v3",
             "v_bfe_u32 v14, v2, 3, 2\nv_and_b32 v13, 3, v2","v_xor_b32 v13, v13, v14\nv_lshrrev_b32 v14, 2, v2","v_lshlrev_b32 v14, 11, v14\nv_lshl_add_u32 v13, v13, 4, v14",
             f"s_lshl_b32 s{sC}, s{sMt}, 1\ns_add_u32 s{sC}, s{sC}, s{sWm}\ns_lshl_b32 s{sC}, s{sC}, 17\ns_lshl_b32 s52, s{sDt}, 8\ns_add_u32 s{sC}, s{sC}, s52",
             f"s_lshl_b32 s52, s{sJ}, 7\ns_add_u32 s{sC}, s{sC}, s52\ns_lshl_b32 s52, s{sWf}, 6\ns_add_u32 s{sC}, s{sC}, s52\ns_mov_b32 s58, 0"]
    def chk():
        A(f"v_max3_u32 v14, v{RB}, v{RB+1}, v{RB+2}")
        for r in range(3,15,2): A(f"v_max3_u32 v14, v14, v{RB+r}, v{RB+r+1}")
        A(f"v_max_u32 v14, v14, v{RB+15}\nv_cmp_eq_u32 vcc, -1, v14")
    if dual:
        for l in interleave(mfS(1,(0,1)), LDs(80)+adr): A(l)
        A("s_waitcnt vmcnt(4)"); chk()
        A("s_nop 4\ns_cbranch_vccz C3_ok\ns_waitcnt vmcnt(0)")
        for r in range(16): A(f"v_mov_b32 v{RB+r}, v{80+r}")
    else:
        x=interleave(mfS(1,(0,1)), adr[:ldpos]+LD+adr[ldpos:])
        if cw: x.insert(16,"s_waitcnt lgkmcnt(0)"+("\n"+PAD if dense and walk else ""))
        for l in x: A(l)
    if diag and diag!=5: stamp(8)
    pad()
    A("s_branch C3_chk")
    A("C3_poll:")
    for l in LD: A(l)
    A("C3_chk:\ns_add_u32 s58, s58, 1\ns_waitcnt vmcnt(0)")
    chk()
    spin_tail("C3_poll")
    A("C3_ok:")
    stamp(7)
    if diag: A("s_waitcnt lgkmcnt(0)")
    if diag==4: A("s_mov_b32 s86, s58")
    A("s_mov_b32 s53, 0xffff0000")
    for i in range(4):
        D=128+4*i
        for n in range(2):
            S=ACC+(n*4+i)*4
            for h in range(2):
                Rr=RB+4*i+2*n+h
                A(f"v_lshlrev_b32 v{T}, 16, v{Rr}\nv_and_b32 v{T+1}, s53, v{Rr}\nv_pk_add_f32 {vr(S+2*h,2)}, {vr(S+2*h,2)}, {vr(T,2)}")
                A(f"v_cvt_pk_bf16_f32 v{D+2*n+h}, v{S+2*h}, v{S+2*h+1}")
        A(f"s_nop 1\nv_permlane16_swap_b32 v{D}, v{D+2}\nv_permlane16_swap_b32 v{D+1}, v{D+3}")
        if otr:
            def ost(k,n): A(f"s_waitcnt lgkmcnt({n})\nbuffer_store_dwordx4 {vr(144+4*k,4)}, v13, {R4(SO)}, s{sC} offen {outaux}"+(f"\ns_add_u32 s{sC}, s{sC}, 0x8000" if k<3 else ""))
            A(f"ds_write_b128 v240, {vr(D,4)} offset:{i*1024}\nds_read_b128 {vr(144+4*i,4)}, v241 offset:{i*1024}")
            if i>0: ost(i-1,2)
            if i==3: ost(3,0)
        else:
            A(f"buffer_store_dwordx4 {vr(D,4)}, v13, {R4(SO)}, s{sC} offen {outaux}")
            if i<3: A(f"s_add_u32 s{sC}, s{sC}, 0x8000")
        if i==0 or (dense and i<3): pad()
    if diag:
        if diag!=5: stamp(9)
        A("s_waitcnt vmcnt(0)"); stamp(10); rstamp(15); flush(16,True)
    A("s_endpgm")
    if walk: A(PAD+"\ns_endpgm")
    for b in OOL: A(b)
    A("L_end:\ns_endpgm")
    A(f""".section .rodata,"a"
.p2align 6
.amdhsa_kernel {NAME}
  .amdhsa_next_free_vgpr 256
  .amdhsa_next_free_sgpr 96
  .amdhsa_accum_offset 256
  .amdhsa_group_segment_fixed_size 0
  .amdhsa_kernarg_size 48
  .amdhsa_user_sgpr_count 2
  .amdhsa_user_sgpr_kernarg_segment_ptr 1
  .amdhsa_system_sgpr_workgroup_id_x 1
.end_amdhsa_kernel""")
    txt=A.text()
    if walk:
        n=txt.count("@PAD@"); parts=txt.split("@PAD@")
        starts=[round(w*n/walk) for w in range(walk)]
        out=parts[0]
        for k in range(n):
            nxt="C_wret" if (k+1==n or k+1 in starts) else f"PAD{k+1}"
            out+=f"PAD{k}:\ns_cbranch_execz {nxt}"+parts[k+1]
        for w in range(walk): out=out.replace(f"@START{w}@",f"PAD{starts[w]}")
        txt=out
    return txt

if __name__=="__main__":
    import inspect
    p=argparse.ArgumentParser(); p.add_argument("-o")
    for k,v in inspect.signature(build).parameters.items():
        p.add_argument("--"+k,type=type(v.default),default=v.default)
    a=vars(p.parse_args()); o=a.pop("o")
    open(o,"w").write(build(**a))
```

```python
import sys, argparse
NAME="standalone__dense_activation_silu__prompt_kernel"
class Asm:
    def __init__(self): self.L=[]
    def __call__(self, s):
        for l in s.split("\n"): self.L.append(l)
    def text(self): return "\n".join(self.L)+"\n"
def vr(a,n): return f"v[{a}:{a+n-1}]"
def srd(A, d, b, nbytes):
    A(f"s_mov_b32 s{d}, s{b}\ns_and_b32 s{d+1}, s{b+1}, 0xffff\ns_mov_b32 s{d+2}, {nbytes}\ns_mov_b32 s{d+3}, 0x20000")
X_BYTES=2048*1024*2; W_BYTES=1024*3584*2; O_BYTES=2048*1024*2
H_OFF=0; P_OFF=24<<20; F_OFF=48<<20; T_OFF=64<<20
SX,SW1,SW2,SO,SD,SWS=16,20,24,28,32,36
sMt,sJ,sFt8,sFt,sLid,sXcd,sDt=40,41,42,43,44,45,63
OOB=0x7ffffff0
SPIN=1<<17
def R4(s): return f"s[{s}:{s+3}]"

def interleave(mf, rd):
    out=[]; k=0
    for m in mf:
        out.append(m)
        if k<len(rd): out.append(rd[k]); k+=1
    return out+rd[k:]
ORDER='ji'
def snake(JS,NI):
    JS=list(JS)
    if ORDER=='ij': return [(j,i) for i in range(NI) for j in (JS if i%2==0 else JS[::-1])]
    return [(j,(i if n%2==0 else NI-1-i)) for n,j in enumerate(JS) for i in range(NI)]

def build(diag=0, rot=8, pf1=5, pf2=1, pfc=1, outaux="sc1", pfa=12, dswz=0, w1aux="", xaux="", w2aux="", l1st=1, l2st=4, stag=1, l1epi=3, rmask=1, f3=9, skew2=3, pfb=0, stag2=1, remap=1, spa=0, spb=13, spn=4, ack=4, ldearly=1, pfi=2, w1s=6, sched=0, fch=6, pdelay=0, nb=2, clr0=0, dual=0, tlb=0, packfirst=1, spub=1, vpoll=0, hsi=12, hsglc='', cmask=0, cbase=1, walk=4, w2e=2, order='ji', esend=1, ldpos=0, fast=1, la1=0, hd=4, la2=0, npoll=2, tearly=2, nsh=0, two=0, tight2=1, tight1=1, lead=1, tl=0, tlw=16, tl0=0, sep=1, xp_it=0, xp_n=0, late=0, sl2=0, cprio=1, pprio=3, al=3, pj=0, w6=0, late2=1, pcw=16, pipe=0, wsplit=1, cw=1, zc=1, wlate=0, pskip=0, wnw=0, pp1=-1, ppt=-1, pp2=-1, otr=1):
    global ORDER; ORDER=order
    assert ack+2!=hsi and tl not in (ack+5,hsi+3) and ack+2<=12 and (cbase+cmask<ack or sep) and nsh<=(4 if two else ack+2)
    A=Asm(); A_main=A; OOL=[]
    tm='s_memrealtime' if diag>=3 else 's_memtime'
    def stamp(k):
        if diag: A(f"{tm} s[{64+2*k}:{65+2*k}]")
    def rstamp(k):
        if diag: A(f"s_memrealtime s[{64+2*k}:{65+2*k}]")
    def sstamp():
        if diag==6: A(f"s_memtime s[90:91]\ns_memrealtime s[88:89]\ns_waitcnt lgkmcnt(0)\nv_writelane_b32 v254, s90, m0\nv_writelane_b32 v252, s88, m0\ns_add_u32 m0, m0, 1")
        if diag in (2,3): A(f"{tm} s[90:91]\ns_waitcnt lgkmcnt(0)\nv_writelane_b32 v254, s90, m0\ns_add_u32 m0, m0, 1")
    def flush(n, cons=False):
        if not diag: return
        if diag==5:
            ks=[6,8,9,1,2,4,5,10] if cons else [1,8,2,3,4,5]
            lab="DB_c" if cons else "DB_p"
            A(f"s_waitcnt lgkmcnt(0)\ns_and_b32 s60, s3, 3\ns_or_b32 s60, s60, s2\ns_cmp_eq_u32 s60, 0\ns_cbranch_scc0 {lab}\nv_lshlrev_b32 v1, 8, v2")
            for n_,k in enumerate(ks):
                A(f"s_sub_u32 s60, s{64+2*k}, s64\nv_mov_b32 v4, s60\nbuffer_store_dword v4, v1, {R4(SD)}, 0 offen offset:{4*(n_+(0 if cons else 8))} sc1")
            A(f"s_waitcnt vmcnt(0)\n{lab}:")
            return
        A(f"s_waitcnt lgkmcnt(0)\ns_lshl_b32 s60, s2, 3\ns_add_u32 s60, s60, s3\ns_lshl_b32 s60, s60, 8\ns_add_u32 s60, s60, {T_OFF}\nv_mov_b32 v1, 0")
        for k in range(n): A(f"v_mov_b32 v2, s{64+2*k}\nbuffer_store_dword v2, v1, {R4(SWS)}, s60 offen offset:{4*k}")
        if cons and diag>=2:
            A(f"v_and_b32 v1, 63, v0\nv_lshlrev_b32 v1, 2, v1\nv_mov_b32 v2, {OOB}\nv_cmp_gt_u32 vcc, 192, v1\ns_nop 1\nv_cndmask_b32 v1, v2, v1, vcc")
            A(f"buffer_store_dword v254, v1, {R4(SWS)}, s60 offen offset:64")
            if diag==6: A(f"s_add_u32 s60, s60, 0x80000\nbuffer_store_dword v252, v1, {R4(SWS)}, s60 offen offset:64")
        A("s_waitcnt vmcnt(0)")
    PAD='@PAD@' if walk else 's_nop 0'
    def pad():
        if walk: A(PAD)
    def spin_tail(label):
        A(f"s_cmp_lt_u32 s58, {SPIN}\ns_cselect_b64 s[60:61], -1, 0\ns_and_b64 vcc, vcc, s[60:61]\ns_cbranch_scc1 {label}")
    WST=28672; WOFF=65536
    QS=5120 if remap else 4096
    CH=2*QS
    def physline(dst,g,tmp,A=None):
        A=A or A_main
        if remap: A(f"v_add_u32 v{tmp}, 4, v{g}\nv_mul_u32_u24 v{tmp}, 37, v{tmp}\nv_lshrrev_b32 v{tmp}, 8, v{tmp}\nv_add_u32 v{tmp}, v{tmp}, v{g}\nv_lshlrev_b32 v{dst}, 7, v{tmp}")
        else: A(f"v_lshlrev_b32 v{dst}, 7, v{g}")
    def fragoffs(base,A=None,t=(4,5,6)):
        A=A or A_main
        A(f"v_and_b32 v{t[2]}, 7, v2\nv_lshlrev_b32 v{t[2]}, 4, v{t[2]}")
        for n in range(4):
            A(f"v_lshrrev_b32 v{t[1]}, 3, v2\nv_add_u32 v{t[1]}, {8*n}, v{t[1]}"); physline(base+n,t[1],t[0],A); A(f"v_add_u32 v{base+n}, v{base+n}, v{t[2]}")
    A("""; Fused feed-forward  out = silu(x @ w1) @ w2   (bf16 in/out, fp32 accumulation), one launch.
; Kernarg (48 bytes): 0 x[2048,1024]  8 w1[1024,3584]  16 w2[3584,1024]  24 out[2048,1024]  32 debug(256 B)  40 ws
; 256 workgroups, one per CU.  Waves 0-3 compute (16x16x32 MFMA), waves 4-7 stream tiles into LDS rings.
;   phase 1: h[128 x 224] = silu(x[128 x 1024] @ w1[1024 x 224]); h goes to LDS (own chunks) and, write-through, to ws
;   phase 2: partial[128 x 128] over one half of F; the 8 workgroups of a row block hand h over with flags in ws
;            (flags are reset by the row leader in this launch and announced through debug before anyone trusts them)
;   end    : the two K halves swap half tiles through ws (inbox reset to a sentinel by its owner), add and store out
; PADn labels are instruction-cache landing pads: a wave with EXEC = 0 hops over them once, touching no memory.
; @launch grid=(256,1,1) block=(512,1,1) lds="""+("163840" if w6 else "151552"))
    A('.amdgcn_target "amdgcn-amd-amdhsa--gfx950"\n.text')
    A(f".globl {NAME}\n.p2align 8\n.type {NAME},@function\n{NAME}:")
    A("s_load_dwordx8 s[4:11], s[0:1], 0\ns_load_dwordx4 s[12:15], s[0:1], 32")
    A("s_cmp_ge_u32 s2, 256\ns_cbranch_scc1 L_end")
    stamp(0); rstamp(14)
    if fast and pfc and pskip:
        A(f"v_lshrrev_b32 v1, 6, v0\nv_and_b32 v2, 63, v0\ns_cmp_lt_u32 s2, {pcw}\ns_cbranch_scc1 L_pfc\nL_pfcb:")
        PFC=(f"L_pfc:\ns_getpc_b64 s[54:55]\nC_pc:\nv_lshlrev_b32 v3, 7, v0\ns_sub_u32 s54, s54, C_pc-{NAME}\ns_subb_u32 s55, s55, 0\n"
             f"v_min_u32 v3, L_end-{NAME}, v3\ns_nop 0\nglobal_load_dword v255, v3, s[54:55]\ns_branch L_pfcb")
    elif fast and pfc:
        A(f"s_getpc_b64 s[54:55]\nC_pc:\nv_lshlrev_b32 v3, 7, v0\ns_sub_u32 s54, s54, C_pc-{NAME}\ns_subb_u32 s55, s55, 0")
        if pcw:
            A(f"s_cmp_lt_u32 s2, {pcw}\ns_cselect_b32 s3, L_end-{NAME}, 0\nv_min_u32 v3, s3, v3\nv_lshrrev_b32 v1, 6, v0\nglobal_load_dword v255, v3, s[54:55]\nv_and_b32 v2, 63, v0")
        else: A(f"v_min_u32 v3, L_end-{NAME}, v3\nv_lshrrev_b32 v1, 6, v0\nglobal_load_dword v255, v3, s[54:55]\nv_and_b32 v2, 63, v0")
    else: A("v_lshrrev_b32 v1, 6, v0\nv_and_b32 v2, 63, v0")
    A(f"v_readfirstlane_b32 s3, v1\ns_and_b32 s{sXcd}, s2, 7\ns_lshr_b32 s46, s2, 3")
    dec1=f"s_lshr_b32 s{sMt}, s{sXcd}, 1\ns_lshl_b32 s{sMt}, s{sMt}, 2\ns_lshr_b32 s47, s46, 3\ns_add_u32 s{sMt}, s{sMt}, s47\ns_and_b32 s{sJ}, s{sXcd}, 1"
    dec2=(f"s_and_b32 s{sFt8}, s46, 7\ns_lshl_b32 s{sFt}, s{sJ}, 3\ns_add_u32 s{sFt}, s{sFt}, s{sFt8}\n"
          f"s_lshl_b32 s{sLid}, s{sMt}, 4\ns_add_u32 s{sLid}, s{sLid}, s{sFt}\ns_xor_b32 s{sDt}, s{sJ}, 1\ns_mul_i32 s{sDt}, s{sDt}, {dswz}\ns_xor_b32 s{sDt}, s{sDt}, s{sFt8}")
    A(dec1); A(dec2)
    if fast and pf1==5:
        A("s_cmp_lt_u32 s3, 4\ns_cbranch_scc0 L_prod")
        A(f"s_lshr_b32 s58, s{sXcd}, 1\ns_lshl_b32 s59, s58, 2\ns_lshl_b32 s58, s58, 5\ns_add_u32 s58, s58, s46\ns_lshl_b32 s58, s58, 1\ns_add_u32 s58, s58, s{sJ}\ns_lshl_b32 s58, s58, 14")
        A("v_bfe_u32 v15, v0, 2, 3\nv_add_u32 v15, s59, v15\nv_and_b32 v15, 15, v15\nv_lshlrev_b32 v15, 7, v15\nv_lshrrev_b32 v14, 5, v0\nv_lshl_add_u32 v15, v14, 11, v15\nv_add_u32 v252, s58, v15")
        A("s_waitcnt lgkmcnt(0)\nglobal_load_dword v253, v252, s[4:5]\ns_branch L_cons")
        if pfc and pskip: A(PFC)
        A("L_prod:")
    elif fast and pf1==1:
        A("s_cmp_lt_u32 s3, 4\ns_cbranch_scc0 L_prod")
        A("v_lshrrev_b32 v15, 1, v0\ns_lshl_b32 s58, s2, 7\nv_add_u32 v15, s58, v15\nv_lshlrev_b32 v15, 7, v15\ns_waitcnt lgkmcnt(0)\nglobal_load_dword v253, v15, s[4:5]\ns_branch L_cons\nL_prod:")
    else:
        A("s_cmp_lt_u32 s3, 4\ns_cbranch_scc1 L_cons")
    sP,sKX,sKW,sLX,sLW,sRing,sCnt,sT0,sT1=46,47,48,49,50,51,52,53,54
    A(f"s_sub_u32 s{sP}, s3, 4")
    if pprio: A(f"s_setprio {pprio}")
    A("v_lshrrev_b32 v3, 3, v2\nv_and_b32 v4, 7, v2\nv_lshrrev_b32 v5, 4, v2\nv_xor_b32 v4, v4, v5\nv_lshlrev_b32 v4, 4, v4\nv_lshl_add_u32 v3, v3, 11, v4")
    A(f"s_lshl_b32 s{sT0}, s{sMt}, 18\ns_lshl_b32 s{sT1}, s{sP}, 16\ns_add_u32 s{sT0}, s{sT0}, s{sT1}\nv_add_u32 v8, s{sT0}, v3")
    A("v_xor_b32 v9, 64, v8\nv_add_u32 v9, 0x4000, v9\nv_add_u32 v10, 0x8000, v8\nv_add_u32 v11, 0x8000, v9")
    if not rot: A(f"s_mov_b32 s{sKX}, 0\ns_mov_b32 s{sKW}, 0")
    if rot:
        if rot in (1,2,4,5,6,7,8):
            if pj: A(f"s_lshr_b32 s{sT0}, s{sXcd}, 1\ns_lshl_b32 s{sT1}, s{sJ}, 1\ns_add_u32 s{sT0}, s{sT0}, s{sT1}\ns_and_b32 s{sT0}, s{sT0}, 3\ns_lshl_b32 s{sT0}, s{sT0}, 2")
            else: A(f"s_lshr_b32 s{sT0}, s{sXcd}, 1\ns_lshl_b32 s{sT0}, s{sT0}, 2")
            if rot==4: A(f"s_and_b32 s{sT0}, s{sT0}, 8")
        else: A(f"s_mov_b32 s{sT0}, 0")
        if rot>=5: A(f"s_mov_b32 s62, s{sT0}\ns_mov_b32 s60, 0\ns_mov_b32 s61, 0")
        if rot in (7,8): A(f"s_and_b32 s{sT1}, s{sMt}, 1\ns_lshl_b32 s{sT1}, s{sT1}, {rot-7}\ns_add_u32 s{sT0}, s{sT0}, s{sT1}")
        elif rot>=2: A(f"s_and_b32 s{sT1}, s{sMt}, 3\ns_add_u32 s{sT0}, s{sT0}, s{sT1}")
        A(f"s_lshl_b32 s{sKX}, s{sT0}, 7\ns_mul_i32 s{sKW}, s{sT0}, {64*7168}")
    sRX=57
    A(f"s_lshl_b32 s{sLX}, s{sP}, 12\ns_mov_b32 s{sRX}, 0\ns_mov_b32 s{SX+2}, {X_BYTES}\ns_mov_b32 s{SX+3}, 0x20000")
    A(f"s_waitcnt lgkmcnt(0)\ns_mov_b32 s{SX}, s4\ns_and_b32 s{SX+1}, s5, 0xffff")
    def nextk(c):
        if rot in (7,8):
            A(f"s_add_u32 s{c}, s{c}, 1\ns_and_b32 s{sT1}, s{c}, 8\ns_cselect_b32 s{sT0}, 1, 0\ns_xor_b32 s{sT0}, s{sT0}, s{sMt}\ns_and_b32 s{sT0}, s{sT0}, 1\ns_lshl_b32 s{sT0}, s{sT0}, {rot-7}\ns_add_u32 s{sT0}, s{sT0}, s{c}\ns_and_b32 s{sT0}, s{sT0}, 7")
            A(f"s_add_u32 s{sT0}, s{sT0}, s{sT1}\ns_add_u32 s{sT0}, s{sT0}, s62\ns_and_b32 s{sT0}, s{sT0}, 15")
            return
        if rot==6:
            A(f"s_add_u32 s{c}, s{c}, 1\ns_and_b32 s{sT1}, s{c}, 8\ns_cselect_b32 s{sT0}, 3, 0\ns_xor_b32 s{sT0}, s{sT0}, s{sMt}\ns_and_b32 s{sT0}, s{sT0}, 3\ns_add_u32 s{sT0}, s{sT0}, s{c}\ns_and_b32 s{sT0}, s{sT0}, 7")
            A(f"s_add_u32 s{sT0}, s{sT0}, s{sT1}\ns_add_u32 s{sT0}, s{sT0}, s62\ns_and_b32 s{sT0}, s{sT0}, 15")
            return
        A(f"s_add_u32 s{c}, s{c}, 1\ns_add_u32 s{sT0}, s{c}, s{sMt}\ns_and_b32 s{sT0}, s{sT0}, 3\ns_and_b32 s{sT1}, s{c}, 12\ns_add_u32 s{sT0}, s{sT0}, s{sT1}\ns_add_u32 s{sT0}, s{sT0}, s62\ns_and_b32 s{sT0}, s{sT0}, 15")
    def issueW1(part=None):
        inc=[1024,896,1024,896,1024,1280]
        ns=range(7) if part is None else (range(hd) if part==0 else range(hd,7))
        if part!=1: A(f"s_add_u32 m0, s{sRing}, s{sLW}\ns_add_u32 s{sRing}, s{sRing}, {WST}")
        else: A("s_mov_b32 m0, s1\ns_nop 0")
        for n in ns:
            a,o=n>>1,n&1
            if n<6:
                A(f"buffer_load_dwordx4 v{13+o}, {R4(SW1)}, s{sKW} offen offset:{a*128} {w1aux} lds")
                if part==0 and n==hd-1: A(f"s_add_u32 s1, m0, {inc[n]}")
                else:
                    A(f"s_add_u32 m0, m0, {inc[n]}")
                    A("s_nop 0" if n else f"s_cmp_eq_u32 s{sRing}, {WST*3}\ns_cselect_b32 s{sRing}, 0, s{sRing}")
            else:
                A(f"buffer_load_dwordx4 v12, {R4(SW1)}, s{sKW} offen {w1aux} lds\ns_add_u32 s{sKW}, s{sKW}, {64*7168}")
                if rot>=5:
                    nextk(60); A(f"s_mul_i32 s{sKW}, s{sT0}, {64*7168}\ns_add_u32 s{sKW}, s{sKW}, s59")
                elif rot: A(f"s_cmp_eq_u32 s{sKW}, s58\ns_cselect_b32 s{sKW}, s59, s{sKW}")
    def issueX():
        A(f"s_add_u32 m0, s{sRX}, s{sLX}\ns_add_u32 s{sRX}, s{sRX}, 16384")
        for n in range(4):
            A(f"buffer_load_dwordx4 v{8+n}, {R4(SX)}, s{sKX} offen {xaux} lds")
            if n<3: A("s_add_u32 m0, m0, 1024\n"+("s_nop 0" if n else f"s_and_b32 s{sRX}, s{sRX}, 0xffff"))
        if tight1: pass
        elif rot>=5:
            nextk(61); A(f"s_lshl_b32 s{sKX}, s{sT0}, 7")
        else: A(f"s_add_u32 s{sKX}, s{sKX}, 128\ns_and_b32 s{sKX}, s{sKX}, 2047")
    stamp(1)
    issueX()
    A(f"s_and_b32 s{sT0}, s{sFt8}, 1\ns_lshl_b32 s{sT1}, s{sT0}, 6")
    A("v_bfe_u32 v3, v2, 2, 3\nv_mul_u32_u24 v3, 7168, v3\nv_lshrrev_b32 v5, 5, v2\nv_and_b32 v4, 3, v2\nv_lshlrev_b32 v4, 4, v4")
    A(f"v_lshl_add_u32 v6, v5, 6, v3\nv_add3_u32 v13, v6, v4, s{sT1}\nv_xor_b32 v14, 32, v13\nv_add_u32 v14, {8*7168}, v14")
    A(f"s_xor_b32 s{sT0}, s{sT0}, 1\ns_mul_i32 s{sT0}, s{sT0}, 384\nv_lshrrev_b32 v3, 2, v2\nv_mul_u32_u24 v3, 7168, v3\nv_lshlrev_b32 v5, 5, v5\nv_xor_b32 v4, v4, v5\nv_add3_u32 v12, v3, v4, s{sT0}")
    A(f"s_mul_i32 s59, s{sP}, {16*7168}\ns_mul_i32 s{sT0}, s{sFt}, 448\ns_add_u32 s59, s59, s{sT0}\ns_add_u32 s{sKW}, s{sKW}, s59\ns_add_u32 s58, s59, {1024*7168}")
    A(f"s_mul_i32 s{sLW}, s{sP}, 7168\ns_add_u32 s{sLW}, s{sLW}, {WOFF}\ns_mov_b32 s{sRing}, {2*WST}")
    srd(A,SW1,6,W_BYTES)
    if la1 or tearly: issueW1(0)
    else: issueW1(); issueX(); issueW1()
    srd(A,SW2,8,W_BYTES); srd(A,SWS,14,0x10000000)
    if diag==5: srd(A,SD,12,256)
    sHp,sHalf=55,56
    if tlb:
        A(f"s_cmp_lt_u32 s2, {tlb}\ns_cbranch_scc0 P1_ntlb\ns_lshl_b32 s{sT0}, s{sP}, 21")
        A(f"s_add_u32 s4, s8, s{sT0}\ns_addc_u32 s5, s9, 0\ns_load_dword s0, s[4:5], 0")
        A(f"s_lshr_b32 s{sT1}, s{sT0}, 1\ns_add_u32 s4, s10, s{sT1}\ns_addc_u32 s5, s11, 0\ns_load_dword s0, s[4:5], 0")
        for b in (0, 8<<20, 16<<20, P_OFF, F_OFF):
            A(f"s_add_u32 s{sT1}, s{sT0}, {b}\ns_add_u32 s4, s14, s{sT1}\ns_addc_u32 s5, s15, 0\ns_load_dword s0, s[4:5], 0")
        A("P1_ntlb:")
    if tl0:
        A(f"s_cmp_lt_u32 s2, {tlw}\ns_cbranch_scc0 P1_nt0\ns_lshl_b32 s{sT0}, s{sP}, 21\ns_add_u32 s{sT0}, s{sT0}, {P_OFF}\ns_cmp_eq_u32 s{sP}, 3\ns_cselect_b32 s{sT0}, {F_OFF}, s{sT0}")
        A(f"s_add_u32 s4, s14, s{sT0}\ns_addc_u32 s5, s15, 0\ns_load_dword s0, s[4:5], 0\nP1_nt0:")
    A(f"s_lshr_b32 s4, s{sLid}, 3\ns_lshl_b32 s4, s4, 10\ns_add_u32 s4, s4, {F_OFF+fch*128}\ns_add_u32 s4, s14, s4\ns_addc_u32 s5, s15, 0")
    A(f"s_lshl_b32 s6, s{sMt}, 4\ns_add_u32 s6, s12, s6\ns_addc_u32 s7, s13, 0")
    def spf():
        if pf2 not in (3,4): return
        for k in range(4): A(f"s_load_dword s12, s[8:9], {k*64}")
        A(f"s_add_u32 s13, s13, 1\ns_and_b32 s{sT0}, s13, 7\ns_cselect_b32 s{sT0}, 0, {131072-2048}\ns_add_u32 s{sT0}, s{sT0}, 256\ns_add_u32 s8, s8, s{sT0}\ns_addc_u32 s9, s9, 0")
    if pf2 in (3,4):
        A(f"s_lshl_b32 s12, s2, 2\ns_add_u32 s12, s12, s{sP}")
        A(f"s_lshr_b32 s{sT0}, s12, 6\ns_mul_i32 s13, s{sT0}, 7\ns_and_b32 s{sT0}, s{sT0}, 1")
        A(f"s_xor_b32 s{sT1}, s{sT0}, 1\ns_mul_i32 s{sT1}, s{sT1}, 6\ns_add_u32 s{sT1}, s{sT1}, s13\ns_lshl_b32 s{sT1}, s{sT1}, 16\ns_and_b32 s14, s12, 63\ns_lshl_b32 s14, s14, 10\ns_add_u32 s{sT1}, s{sT1}, s14")
        A(f"s_add_u32 s14, s8, s{sT1}\ns_addc_u32 s15, s9, 0")
        A(f"s_add_u32 s13, s13, s{sT0}\ns_lshl_b32 s13, s13, 16\ns_and_b32 s12, s12, 63\ns_lshl_b32 s12, s12, 11\ns_add_u32 s13, s13, s12\ns_add_u32 s8, s8, s13\ns_addc_u32 s9, s9, 0\ns_mov_b32 s13, 0")
    A(f"s_lshr_b32 s{sHp}, s{sP}, 1\ns_and_b32 s{sHalf}, s{sP}, 1")
    A("v_subrev_u32 v5, 3, v2\nv_mul_u32_u24 v3, 37, v5\nv_lshrrev_b32 v3, 8, v3\nv_mul_u32_u24 v4, 7, v3\nv_sub_u32 v4, v5, v4")
    if skew2==3: A(f"v_add_u32 v6, s{sMt}, v3\nv_and_b32 v6, 3, v6\nv_add_u32 v4, v6, v4\nv_subrev_u32 v6, 7, v4\nv_min_u32 v4, v4, v6")
    elif skew2: A(f"s_and_b32 s{sT0}, s{sMt}, 3\ns_mul_i32 s{sT0}, s{sT0}, {3-skew2}\nv_add_u32 v4, s{sT0}, v4\nv_subrev_u32 v6, 7, v4\nv_min_u32 v4, v4, v6")
    A("v_add_u32 v4, 1, v4")
    A("v_cmp_gt_u32 vcc, 3, v2\ns_nop 1\nv_cndmask_b32 v3, v3, v2, vcc\nv_cndmask_b32 v4, v4, 0, vcc")
    A(f"v_add_u32 v4, s{sFt8}, v4\nv_and_b32 v4, 7, v4\nv_and_b32 v6, 1, v4\nv_mul_u32_u24 v4, 7, v4\nv_lshl_add_u32 v4, v3, 1, v4\nv_add3_u32 v4, v4, v6, s{sHp}")
    A(f"s_and_b32 s{sT0}, s{sMt}, {3 if skew2 else 0}\nv_add_u32 v5, s{sT0}, v2\nv_and_b32 v5, 3, v5\nv_mul_u32_u24 v5, 14, v5\nv_add3_u32 v5, v5, 6, s{sHp}")
    A("v_cmp_gt_u32 vcc, 24, v2\ns_nop 1\nv_cndmask_b32 v4, v5, v4, vcc\nv_and_b32 v4, 63, v4")
    A(f"s_mul_i32 s{sT0}, s{sJ}, 56\nv_add_u32 v4, s{sT0}, v4")
    A(f"s_mul_i32 s{sT0}, s{sMt}, {112*CH}\ns_mul_i32 s{sT1}, s{sHalf}, {QS}\ns_add_u32 s{sT0}, s{sT0}, s{sT1}")
    A(f"v_mul_u32_u24 v20, {CH}, v4\nv_add_u32 v20, s{sT0}, v20")
    A(f"s_lshl_b32 s{sT0}, s{sHalf}, 15\ns_lshl_b32 s{sT1}, s{sHalf}, 13\nv_mov_b32 v5, s{sT0}\nv_mov_b32 v6, s{sT1}\nv_cndmask_b32 v5, v6, v5, vcc")
    A(f"v_lshl_add_u32 v21, v4, 16, v5\ns_lshl_b32 s{sT0}, s{sDt}, 8\nv_add_u32 v21, s{sT0}, v21")
    A("v_and_b32 v4, 3, v2\nv_bfe_u32 v5, v2, 4, 1\nv_lshlrev_b32 v6, 1, v5\nv_xor_b32 v4, v4, v6\nv_lshlrev_b32 v4, 4, v4")
    A("v_lshrrev_b32 v6, 5, v2\nv_lshl_add_u32 v4, v6, 6, v4")
    A("v_bfe_u32 v6, v2, 2, 3\nv_lshl_add_u32 v22, v6, 11, v4\nv_add_u32 v23, 0x4000, v22")
    A("v_lshl_add_u32 v24, v5, 13, v22\nv_add_u32 v25, 0x8000, v24")
    fragoffs(26)
    if tight1:
        assert rot==8 and tearly==2 and not nsh and not la1 and spub and hsi and not two
        A(f"v_bfe_u32 v3, v2, 3, 1\nv_xor_b32 v3, s{sMt}, v3\nv_and_b32 v3, 1, v3\nv_lshl_add_u32 v3, v3, 1, v2\nv_and_b32 v3, 7, v3\nv_and_b32 v4, 8, v2\nv_add3_u32 v3, v3, v4, s62\nv_and_b32 v3, 15, v3")
        A(f"v_lshlrev_b32 v30, 7, v3\nv_mul_u32_u24 v31, {64*7168}, v3\nv_add_u32 v31, s59, v31")
    if diag==5: stamp(8)
    if tight1:
        xl=[f"buffer_load_dwordx4 v{8+n}, {R4(SX)}, s{sKX} offen {xaux} lds" for n in range(4)]
        wl=[f"buffer_load_dwordx4 v{13+(n&1)}, {R4(SW1)}, s{sKW} offen offset:{(n>>1)*128} {w1aux} lds" for n in range(6)]+[f"buffer_load_dwordx4 v12, {R4(SW1)}, s{sKW} offen {w1aux} lds"]
        inc=[1024,896,1024,896,1024,1280]
        def Wt(): A(f"s_mov_b32 m0, s1\ns_nop 0\n{wl[4]}\ns_add_u32 m0, m0, {inc[4]}\ns_nop 0\n{wl[5]}\ns_add_u32 m0, m0, {inc[5]}\ns_nop 0\n{wl[6]}")
        def Xs(fill):
            A(f"s_add_u32 m0, s{sRX}, s{sLX}\ns_add_u32 s{sRX}, s{sRX}, 16384")
            for n in range(4):
                A(xl[n])
                if n<3: A(f"s_add_u32 m0, m0, 1024\n{fill[n]}")
        assert hd==4
        andx=f"s_and_b32 s{sRX}, s{sRX}, 0xffff"
        A(f"v_readlane_b32 s{sKX}, v30, 1")
        Wt(); Xs([f"v_readlane_b32 s{sKW}, v31, 1", andx, "s_nop 0"])
        issueW1(0)
        A(f"v_readlane_b32 s{sKX}, v30, 2\ns_waitcnt vmcnt(8)")
        stamp(2)
        A("s_barrier")
        Wt(); Xs([f"v_readlane_b32 s{sKW}, v31, 2", andx, f"s_mov_b32 s{sCnt}, 2"])
        if pp1>=0: A(f"s_setprio {pp1}")
        A(f"s_mov_b32 s61, {(1<<(ack+2+3))|(1<<(hsi+3))|((1<<tl) if tl else 0)}\ns_add_u32 m0, s{sRing}, s{sLW}\ns_branch P1_w")
        A(f".p2align {al}\nP1_loop:")
        A(f"s_bitcmp1_b32 s61, s{sCnt}\ns_cbranch_scc1 P1_hk\nP1_hkb:")
        Xs([f"v_readlane_b32 s{sKW}, v31, s{sCnt}", andx, "s_nop 0"])
        A(f"s_add_u32 m0, s{sRing}, s{sLW}\ns_waitcnt vmcnt(15)\ns_barrier\nP1_w:")
        fill=[f"s_add_u32 s{sCnt}, s{sCnt}, 1", f"s_add_u32 s{sRing}, s{sRing}, {WST}", f"v_readlane_b32 s{sKX}, v30, s{sCnt}",
              f"s_cmp_eq_u32 s{sRing}, {WST*3}\ns_cselect_b32 s{sRing}, 0, s{sRing}", "s_nop 0", f"s_cmp_lt_u32 s{sCnt}, 16"]
        for n in range(7):
            A(wl[n])
            if n<6: A(f"s_add_u32 m0, m0, {inc[n]}\n{fill[n]}")
        A("s_cbranch_scc1 P1_loop\ns_branch P1_done")
        A("P1_hk:")
        if tl:
            A(f"s_cmp_eq_u32 s{sCnt}, {tl}\ns_cbranch_scc0 P1_hk0\ns_cmp_lt_u32 s2, {tlw}\ns_cbranch_scc0 P1_hkb\ns_lshl_b32 s{sT0}, s{sP}, 21")
            A(f"s_add_u32 s12, s8, s{sT0}\ns_addc_u32 s13, s9, 0\ns_load_dword s0, s[12:13], 0")
            A(f"s_lshr_b32 s{sT1}, s{sT0}, 1\ns_add_u32 s12, s10, s{sT1}\ns_addc_u32 s13, s11, 0\ns_load_dword s0, s[12:13], 0")
            for b in (0, 8<<20, 16<<20):
                A(f"s_add_u32 s{sT1}, s{sT0}, {b}\ns_add_u32 s12, s14, s{sT1}\ns_addc_u32 s13, s15, 0\ns_load_dword s0, s[12:13], 0")
            A("s_branch P1_hkb\nP1_hk0:")
        A(f"s_cmp_eq_u32 s{sCnt}, {hsi+3}\ns_cbranch_scc0 P1_hk1\ns_cmp_eq_u32 s{sP}, 0\ns_cbranch_scc0 P1_hkb\ns_load_dwordx4 s[28:31], s[6:7], 0 {hsglc}\ns_branch P1_hkb")
        if lead: A(f"P1_hk1:\ns_lshl_b32 s1, s{sFt}, 2\ns_add_u32 s1, s1, s{sP}\ns_cmp_eq_u32 s1, 2\ns_cbranch_scc0 P1_hkb\ns_mov_b32 s1, 1\ns_atomic_add s1, s[6:7], 0\ns_branch P1_hkb")
        else: A(f"P1_hk1:\ns_cmp_eq_u32 s{sP}, 2\ns_cbranch_scc0 P1_hkb\ns_and_b32 s1, s{sFt}, 3\ns_lshl_b32 s1, s1, 3\ns_lshl_b32 s1, 1, s1\ns_and_b32 s{sT0}, s{sFt}, 12\ns_atomic_or s1, s[6:7], s{sT0}\ns_branch P1_hkb")
        A("P1_done:")
        if ppt>=0: A(f"s_setprio {ppt}")
        pad()
    else:
        if la1:
            A(f"s_mov_b32 s{sCnt}, -1\ns_branch P1_in")
            A(f"P1_loop:\ns_waitcnt vmcnt({4+hd})")
            if diag: A(f"s_cmp_eq_u32 s{sCnt}, 0\ns_cbranch_scc0 P1_ns"); stamp(2); A("P1_ns:")
            A("s_barrier\nP1_in:")
            issueW1(1); issueX(); issueW1(0)
        else:
            if nsh:
                A(f"s_mov_b32 s{sCnt}, -1\ns_branch P1_shin\nP1_sh:\ns_waitcnt vmcnt({4+hd})")
                if diag: A(f"s_cmp_eq_u32 s{sCnt}, 0\ns_cbranch_scc0 P1_ns"); stamp(2); A("P1_ns:")
                A("s_barrier\nP1_shin:")
                issueW1(1); issueX()
                A(f"s_cmp_eq_u32 s{sCnt}, {nsh}\ns_cbranch_scc1 P1_in")
                issueW1(0)
                A(f"s_add_u32 s{sCnt}, s{sCnt}, 1\ns_branch P1_sh")
            else:
                if tearly==1: issueW1(1); issueX(); issueW1()
                if tearly==2: issueW1(1); issueX(); issueW1(0)
                A(f"s_waitcnt vmcnt({4+hd if tearly==2 else 11})")
                stamp(2)
                A("s_barrier")
                if tearly==2: issueW1(1)
                issueX()
                A(f"s_mov_b32 s{sCnt}, 0\ns_branch P1_in")
            A("P1_loop:\ns_waitcnt vmcnt(15)\ns_barrier\nP1_in:")
            issueW1(); issueX()
        if spub and two:
            A(f"s_lshl_b32 s{sT0}, s{sP}, 8\ns_add_u32 s{sT0}, s{sT0}, s{sCnt}\ns_cmp_eq_u32 s{sT0}, {512+4}\ns_cselect_b32 s0, 1, 0\ns_cmp_eq_u32 s{sT0}, {512+ack+2}\ns_cselect_b32 s0, 2, s0\ns_cmp_eq_u32 s0, 0\ns_cbranch_scc1 P1_npub")
            A(f"s_and_b32 s{sT0}, s{sFt}, 3\ns_lshl_b32 s{sT0}, s{sT0}, 3\ns_lshl_b32 s0, s0, s{sT0}\ns_and_b32 s{sT0}, s{sFt}, 12\ns_atomic_or s0, s[6:7], s{sT0}\nP1_npub:")
        elif spub:
            A(f"s_lshl_b32 s{sT0}, s{sP}, 8\ns_add_u32 s{sT0}, s{sT0}, s{sCnt}\ns_cmp_eq_u32 s{sT0}, {512+ack+2}\ns_cbranch_scc0 P1_npub")
            A(f"s_and_b32 s0, s{sFt}, 3\ns_lshl_b32 s0, s0, 3\ns_lshl_b32 s0, 1, s0\ns_and_b32 s{sT0}, s{sFt}, 12\ns_atomic_or s0, s[6:7], s{sT0}\nP1_npub:")
        if hsi:
            assert pf2 not in (3,4)
            A(f"s_lshl_b32 s{sT0}, s{sP}, 8\ns_add_u32 s{sT0}, s{sT0}, s{sCnt}\ns_cmp_eq_u32 s{sT0}, {hsi}\ns_cbranch_scc0 P1_nh\ns_load_dwordx4 s[28:31], s[6:7], 0 {hsglc}\nP1_nh:")
        if pf2==4:
            spf()
            A(f"s_cmp_lt_u32 s{sCnt}, 3\ns_cbranch_scc0 P1_nspf")
            spf()
            A("P1_nspf:")
        if pf2==3:
            A(f"s_sub_u32 s{sT0}, s{sCnt}, {spa}\ns_cmp_lt_u32 s{sT0}, {spb-spa}\ns_cbranch_scc0 P1_nspf")
            spf()
            A("P1_nspf:")
        A(f"s_add_u32 s{sCnt}, s{sCnt}, 1\ns_cmp_lt_u32 s{sCnt}, {14 if la1 else 13}\ns_cbranch_scc1 P1_loop")
        pad()
        A(f"s_waitcnt vmcnt({4+hd if la1 else 15})\ns_barrier")
        issueW1(1 if la1 else None)
    sW,sH,sSlot,sLW2,sLH=47,48,51,50,49
    A(f"s_lshl_b32 s{sLH}, s{sP}, 12\ns_add_u32 s{sLW2}, s{sLH}, 65536\ns_mov_b32 s{sCnt}, 0\ns_mov_b32 s{sSlot}, 0")
    def issueW():
        A(f"s_add_u32 m0, s{sLW2}, s{sSlot}\ns_nop 0")
        for n in range(4):
            o,tb=n>>1,n&1
            A(f"buffer_load_dwordx4 v{22+o}, {R4(SW2)}, s{sW} offen offset:{tb*128} {w2aux} lds")
            if n<3: A(f"s_add_u32 m0, m0, {896 if tb==0 else 1024+128}\ns_nop 0")
    def issueH():
        A(f"s_add_u32 m0, s{sLH}, s{sSlot}\ns_nop 0")
        for n in range(4):
            A(f"buffer_load_dwordx4 v{26+n}, {R4(SWS)}, s{sH} offen sc1 lds")
            if n<3: A("s_add_u32 m0, m0, 1024\ns_nop 0")
    A(f"v_readlane_b32 s{sW}, v21, 0")
    if not la1: A("s_waitcnt vmcnt(7)\ns_barrier")
    if not hsi: A(f"s_cmp_eq_u32 s{sP}, 0\ns_cbranch_scc0 P2_nh\ns_load_dwordx4 s[28:31], s[6:7], 0 glc\nP2_nh:")
    A("s_waitcnt vmcnt(0)\ns_barrier")
    def nextW(): A(f"s_add_u32 s{sCnt}, s{sCnt}, 1\ns_add_u32 s{sSlot}, s{sSlot}, 16384\nv_readlane_b32 s{sW}, v21, s{sCnt}\ns_nop 2")
    if w2e:
        A("s_branch P2_w0\nP2_w:"); nextW(); A("P2_w0:"); issueW()
        A(f"s_cmp_lt_u32 s{sCnt}, {w2e}\ns_cbranch_scc1 P2_w")
        A("s_barrier")
        pad()
        A("P2_w2:"); nextW(); issueW()
        A(f"s_cmp_lt_u32 s{sCnt}, 3\ns_cbranch_scc1 P2_w2")
    else:
        issueW()
        A("s_barrier")
        pad()
        A("P2_w:"); nextW(); issueW()
        A(f"s_cmp_lt_u32 s{sCnt}, {5 if w6==1 else 3}\ns_cbranch_scc1 P2_w")
    A(f"s_cmp_eq_u32 s{sP}, 0\ns_cbranch_scc0 P2_hsd\ns_mov_b32 s58, 0\ns_branch P2_hsw")
    A("P2_hs:\ns_load_dwordx4 s[28:31], s[6:7], 0 glc\ns_add_u32 s58, s58, 1\nP2_hsw:\ns_waitcnt lgkmcnt(0)")
    if lead: A(f"s_cmp_ge_u32 s58, {SPIN}\ns_cbranch_scc1 P2_hsd\ns_cmp_eq_u32 s28, 0\ns_cbranch_scc1 P2_hs\nP2_hsd:")
    else:
        A(f"s_and_b32 s28, s28, s29\ns_and_b32 s30, s30, s31\ns_and_b32 s28, s28, s30\ns_and_b32 s28, s28, 0x01010101\ns_cmp_ge_u32 s58, {SPIN}\ns_cbranch_scc1 P2_hsd\ns_cmp_eq_u32 s28, 0x01010101\ns_cbranch_scc0 P2_hs\nP2_hsd:")
    A(f"s_lshr_b32 s59, s{sLid}, 3\ns_lshl_b32 s59, s59, 10\ns_add_u32 s59, s59, {F_OFF+fch*128}\ns_lshl_b32 s{sT0}, s{sFt8}, 2")
    A(f"v_mov_b32 v5, {OOB}\nv_mov_b32 v6, s{sT0}\nv_cmp_eq_u32 vcc, 0, v2\nv_and_b32 v3, 7, v2\nv_lshlrev_b32 v3, 2, v3\nv_cndmask_b32 v6, v5, v6, vcc\nv_mov_b32 v5, 1")
    A(f"v_readlane_b32 s{sH}, v20, 3\ns_waitcnt vmcnt({20 if w6==1 else 12})")
    stamp(3)
    A("s_barrier")
    stamp(6)
    A(f"s_cmp_eq_u32 s{sP}, 1\ns_cbranch_scc0 P2_nf\nbuffer_store_dword v5, v6, {R4(SWS)}, s59 offen sc1\ns_nop 1\nv_mov_b32 v5, 7\nP2_nf:")
    if w6==2:
        A("P2_w45:"); nextW(); issueW()
        A(f"s_cmp_lt_u32 s{sCnt}, 5\ns_cbranch_scc1 P2_w45")
    A(f"s_mov_b32 s62, 0\ns_cmp_eq_u32 s{sP}, 0\ns_cbranch_scc1 P2_p0\ns_waitcnt vmcnt({8 if w6==2 else 0})\ns_branch P2_go\nP2_p0:\ns_mov_b32 s58, 0")
    if pdelay: A(f"s_mov_b32 s16, 0\nP2_dl:\ns_add_u32 s16, s16, 1\ns_cmp_lt_u32 s16, {pdelay}\ns_cbranch_scc1 P2_dl")
    stamp(7)
    if vpoll:
        A(f"P2_l1:\nbuffer_load_dword v4, v3, {R4(SWS)}, s59 offen sc1\ns_add_u32 s58, s58, 1\ns_waitcnt vmcnt(0)\nv_cmp_eq_u32 vcc, 0, v4")
        spin_tail("P2_l1")
    else:
        A("P2_l1:\ns_load_dwordx8 s[16:23], s[4:5], 0 glc\ns_add_u32 s58, s58, 1\ns_waitcnt lgkmcnt(0)")
        A("s_and_b64 s[16:17], s[16:17], s[18:19]\ns_and_b64 s[20:21], s[20:21], s[22:23]\ns_and_b64 s[16:17], s[16:17], s[20:21]\ns_and_b32 s16, s16, s17")
        A(f"s_cmp_ge_u32 s58, {SPIN}\ns_cbranch_scc1 P2_rdy\ns_bitcmp1_b32 s16, 0\ns_cbranch_scc1 P2_rdy")
        if la2: A(f"s_cmp_eq_u32 s58, {npoll}\ns_cbranch_scc0 P2_l1\ns_waitcnt vmcnt(0)\ns_barrier\ns_mov_b32 s62, 1")
        A("s_branch P2_l1")
    A("P2_rdy:")
    if diag and diag!=5: stamp(9); A("s_mov_b32 s80, s58")
    A(f"s_mov_b32 m0, 49152\ns_mov_b32 s58, 0")
    A("P2_h3:")
    for n in range(4): A(f"buffer_load_dwordx4 v{26+n}, {R4(SWS)}, s{sH} offen sc1 lds\ns_add_u32 m0, m0, 1024\n"+("s_nop 0" if n<3 else f"s_add_u32 s{sH}, s{sH}, {QS}"))
    A("s_add_u32 s58, s58, 1\ns_cmp_lt_u32 s58, 4\ns_cbranch_scc1 P2_h3")
    A("P2_go:")
    if pp2>=0: A(f"s_setprio {pp2}")
    pad()
    stamp(4)
    PL=f"buffer_load_dword v4, v3, {R4(SWS)}, s59 offen sc1"
    POOL=[]
    if tight2:
        assert not la2 and not two and pf2 not in (3,4) and l1epi==3
        mask=(1<<(l1st+5))|(1<<9)|(1<<(8 if sl2 else 10))|(1<<(21 if w6 else 23))|(((1<<14)|(1<<20)) if lead else 0)
        wl=[f"buffer_load_dwordx4 v{22+(n>>1)}, {R4(SW2)}, s{sW} offen offset:{(n&1)*128} {w2aux} lds" for n in range(4)]
        hl=[f"buffer_load_dwordx4 v{26+n}, {R4(SWS)}, s{sH} offen sc1 lds" for n in range(4)]
        if w6:
            sWs=62
            A(f"s_mov_b32 s{sCnt}, 4\ns_mov_b32 s57, {mask}\nv_readlane_b32 s{sW}, v21, 6\ns_mov_b32 s{sSlot}, 0\ns_mov_b32 s{sWs}, 0\ns_mov_b32 m0, s{sLW2}\ns_branch P2_bar")
            A(f".p2align {al}\nP2_loop:")
            A(f"s_bitcmp1_b32 s57, s{sCnt}\ns_cbranch_scc1 P2_hk\nP2_hkb:")
            def Hs(f):
                A(f"s_add_u32 m0, s{sLH}, s{sSlot}\ns_add_u32 s{sCnt}, s{sCnt}, 1")
                A(f"{hl[0]}\ns_add_u32 m0, m0, 1024\n{f[0]}")
                A(f"{hl[1]}\ns_add_u32 m0, m0, 1024\ns_add_u32 s{sSlot}, s{sSlot}, 16384")
                A(f"{hl[2]}\ns_add_u32 m0, m0, 1024\ns_and_b32 s{sSlot}, s{sSlot}, 0xffff")
                A(hl[3])
            Hs([f"v_readlane_b32 s{sW}, v21, s{sT1}"])
            A(f"s_add_u32 m0, s{sLW2}, s{sWs}\nP2_bar:\ns_waitcnt vmcnt(16)\ns_barrier")
            A(f"s_cmp_lt_u32 s{sCnt}, 26\ns_cbranch_scc0 P2_out")
            A(f"{wl[0]}\ns_add_u32 m0, m0, 896\nv_readlane_b32 s{sH}, v20, s{sCnt}")
            A(f"{wl[1]}\ns_add_u32 m0, m0, 1152\ns_add_u32 s{sWs}, s{sWs}, 16384")
            A(f"{wl[2]}\ns_add_u32 m0, m0, 896\ns_add_u32 s{sT1}, s{sCnt}, 3")
            A(f"{wl[3]}\ns_cmp_eq_u32 s{sWs}, {6*16384}\ns_cselect_b32 s{sWs}, 0, s{sWs}\ns_branch P2_loop")
        else:
            A(f"s_mov_b32 s{sCnt}, 4\ns_mov_b32 s57, {mask}\nv_readlane_b32 s{sW}, v21, 4\ns_mov_b32 s{sSlot}, 0\ns_mov_b32 m0, s{sLW2}\ns_branch P2_bar")
            A(f".p2align {al}\nP2_loop:")
            A(f"s_bitcmp1_b32 s57, s{sCnt}\ns_cbranch_scc1 P2_hk\nP2_hkb:")
            A(f"s_add_u32 m0, s{sLH}, s{sSlot}\ns_add_u32 s{sCnt}, s{sCnt}, 1")
            A(f"{hl[0]}\ns_add_u32 m0, m0, 1024\nv_readlane_b32 s{sW}, v21, s{sCnt}")
            A(f"{hl[1]}\ns_add_u32 m0, m0, 1024\ns_add_u32 s{sSlot}, s{sSlot}, 16384")
            A(f"{hl[2]}\ns_add_u32 m0, m0, 1024\ns_and_b32 s{sSlot}, s{sSlot}, 0xffff")
            A(f"{hl[3]}\ns_add_u32 m0, s{sLW2}, s{sSlot}\nP2_bar:\ns_waitcnt vmcnt(16)\ns_barrier")
            A(f"s_cmp_lt_u32 s{sCnt}, {24 if wsplit else 28}\ns_cbranch_scc0 P2_out")
            A(f"{wl[0]}\ns_add_u32 m0, m0, 896\nv_readlane_b32 s{sH}, v20, s{sCnt}")
            A(f"{wl[1]}\ns_add_u32 m0, m0, 1152\ns_nop 0")
            A(f"{wl[2]}\ns_add_u32 m0, m0, 896\ns_nop 0")
            A(f"{wl[3]}\ns_branch P2_loop")
        A("P2_hk:"); pad()
        A(f"s_cmp_eq_u32 s{sCnt}, {21 if w6 else 23}\ns_cbranch_scc0 P2_hk1\nv_mov_b32 v22, v24\nv_mov_b32 v23, v25\ns_branch P2_hkb")
        A("P2_hk1:")
        if lead:
            A(f"s_cmp_lt_u32 s{sCnt}, 14\ns_cbranch_scc1 P2_hk1a\ns_cmp_eq_u32 s{sP}, 0\ns_cbranch_scc0 P2_hkb\ns_mov_b32 s58, 0\ns_cmp_eq_u32 s{sCnt}, 20\ns_cbranch_scc1 P2_pw")
            A(f"s_xor_b32 s4, s4, 1024\ns_xor_b32 s{sT0}, s{sFt8}, {dswz}\ns_lshl_b32 s{sT0}, s{sT0}, 2\ns_add_u32 s4, s4, s{sT0}\ns_load_dword s28, s[4:5], 0 glc\ns_branch P2_hkb")
            A(f"P2_pl:\ns_load_dword s28, s[4:5], 0 glc\ns_add_u32 s58, s58, 1\nP2_pw:\ns_waitcnt lgkmcnt(0)\ns_cmp_ge_u32 s58, {SPIN}\ns_cbranch_scc1 P2_hkb\ns_cmp_eq_u32 s28, 0\ns_cbranch_scc1 P2_pl\ns_branch P2_hkb\nP2_hk1a:")
        if sl2:
            assert l1st+5<8
            A(f"s_cmp_lt_u32 s{sCnt}, 8\ns_cbranch_scc0 P2_hk2\ns_cmp_eq_u32 s{sP}, 1\ns_cbranch_scc0 P2_hkb\nbuffer_store_dword v5, v6, {R4(SWS)}, s59 offen sc1\ns_branch P2_hkb")
            A(f"P2_hk2:\ns_cmp_eq_u32 s{sP}, 0\ns_cbranch_scc0 P2_hkb\ns_mov_b32 s58, 0\ns_cmp_eq_u32 s{sCnt}, 9\ns_cbranch_scc1 P2_l2w\ns_load_dwordx8 s[16:23], s[4:5], 0 glc\ns_branch P2_hkb")
            A("P2_l2:\ns_load_dwordx8 s[16:23], s[4:5], 0 glc\ns_add_u32 s58, s58, 1\nP2_l2w:\ns_waitcnt lgkmcnt(0)")
            A("s_and_b64 s[16:17], s[16:17], s[18:19]\ns_and_b64 s[20:21], s[20:21], s[22:23]\ns_and_b64 s[16:17], s[16:17], s[20:21]\ns_and_b32 s16, s16, s17")
            A(f"s_cmp_ge_u32 s58, {SPIN}\ns_cbranch_scc1 P2_hkb\ns_cmp_eq_u32 s16, 7\ns_cbranch_scc0 P2_l2")
        else:
            A(f"s_cmp_eq_u32 s{sCnt}, 9\ns_cbranch_scc0 P2_hk2\n{PL}\ns_branch P2_hkb")
            A(f"P2_hk2:\ns_cmp_eq_u32 s{sCnt}, 10\ns_cbranch_scc1 P2_hk3\ns_cmp_eq_u32 s{sP}, 1\ns_cbranch_scc0 P2_hkb\nbuffer_store_dword v5, v6, {R4(SWS)}, s59 offen sc1\ns_branch P2_hkb")
            A("P2_hk3:\ns_waitcnt vmcnt(8)\nv_cmp_gt_u32 vcc, 7, v4\ns_mov_b32 s58, 0\ns_nop 3\ns_cbranch_vccz P2_hkb")
            A(f"P2_l2:\n{PL}\ns_add_u32 s58, s58, 1\ns_waitcnt vmcnt(0)\nv_cmp_gt_u32 vcc, 7, v4")
            spin_tail("P2_l2")
        A("s_branch P2_hkb\nP2_out:")
        if wsplit:
            assert not w6
            def Wh(q,keep):
                A(f"v_readlane_b32 s{sW}, v21, {q}\ns_add_u32 m0, s{9 if keep else 8}, {(q&3)*16384}\ns_nop 2\ns_add_u32 s{sW}, s{sW}, s{11 if keep else 10}")
                A(f"buffer_load_dwordx4 v22, {R4(SW2)}, s{sW} offen {w2aux} lds\ns_add_u32 m0, m0, 2048\ns_nop 0\nbuffer_load_dwordx4 v23, {R4(SW2)}, s{sW} offen {w2aux} lds")
            def Hq(q):
                A(f"s_add_u32 m0, s{sLH}, {(q&3)*16384}\ns_nop 0")
                for n in range(4):
                    A(hl[n])
                    if n<3: A("s_add_u32 m0, m0, 1024\ns_nop 0")
            A(f"s_lshl_b32 s11, s{sJ}, 7\ns_xor_b32 s10, s11, 128\ns_lshl_b32 s9, s{sJ}, 10\ns_xor_b32 s8, s9, 1024\ns_add_u32 s8, s8, s{sLW2}\ns_add_u32 s9, s9, s{sLW2}")
            for q,w in ((24,14),(25,12),(26,12),(27,12)):
                A(f"v_readlane_b32 s{sH}, v20, {q}"); Wh(q,0); Hq(q)
                if q==25: pad()
                A(f"s_waitcnt vmcnt({w})\ns_barrier")
            Wh(24,1); Wh(25,1); A("s_waitcnt vmcnt(10)\ns_barrier")
            Wh(26,1); Wh(27,1); A("s_waitcnt vmcnt(8)\ns_barrier\ns_waitcnt vmcnt(6)\ns_barrier\ns_waitcnt vmcnt(0)\ns_barrier")
        if w6:
            A(f"v_readlane_b32 s{sH}, v20, 26\ns_nop 2"); Hs(["s_nop 0"])
            A(f"v_readlane_b32 s{sH}, v20, 27\ns_waitcnt vmcnt(12)\ns_barrier\ns_nop 0"); Hs(["s_nop 0"])
            A("s_waitcnt vmcnt(8)\ns_barrier\ns_waitcnt vmcnt(4)\ns_barrier\ns_waitcnt vmcnt(0)\ns_barrier")
    else:
        A(f"s_mov_b32 s{sCnt}, 4\ns_mov_b32 s57, 7")
        if la2: A("s_cmp_eq_u32 s62, 0\ns_cbranch_scc0 P2_loop\ns_waitcnt vmcnt(16)\ns_barrier")
        A("P2_loop:")
        A(f"v_readlane_b32 s{sW}, v21, s{sCnt}\nv_readlane_b32 s{sH}, v20, s{sCnt}")
        A(f"s_add_u32 s{sSlot}, s{sSlot}, 16384\ns_and_b32 s{sSlot}, s{sSlot}, 0xffff")
        A(f"s_cmp_eq_u32 s{sCnt}, 24\ns_cbranch_scc0 P2_a\nv_mov_b32 v22, v24\nv_mov_b32 v23, v25\nP2_a:")
        if la2: A(f"s_cmp_eq_u32 s{sCnt}, 4\ns_cbranch_scc1 P2_nw\ns_waitcnt vmcnt(8)\nP2_nw:\ns_barrier")
        else: A("s_waitcnt vmcnt(16)\ns_barrier")
        assert l1epi==3 or sched==9
        A(f"s_lshl_b32 s{sT0}, s{sP}, 8\ns_add_u32 s{sT0}, s{sT0}, s{sCnt}\ns_cmp_eq_u32 s{sT0}, {256+l1st+(4 if la2 else 5)}\ns_cbranch_scc0 P2_nf2\nbuffer_store_dword v5, v6, {R4(SWS)}, s59 offen sc1\nP2_nf2:")
        if two:
            A(f"s_cmp_eq_u32 s{sT0}, 14\ns_cbranch_scc0 P2_n2a\ns_load_dwordx4 s[28:31], s[6:7], 0 glc\nP2_n2a:")
            A(f"s_cmp_eq_u32 s{sT0}, 20\ns_cbranch_scc0 P2_n2b\ns_mov_b32 s58, 0\ns_branch P2_h2w\nP2_h2:\ns_load_dwordx4 s[28:31], s[6:7], 0 glc\ns_add_u32 s58, s58, 1\nP2_h2w:\ns_waitcnt lgkmcnt(0)")
            A(f"s_and_b32 s28, s28, s29\ns_and_b32 s30, s30, s31\ns_and_b32 s28, s28, s30\ns_cmp_ge_u32 s58, {SPIN}\ns_cbranch_scc1 P2_n2b\ns_cmp_eq_u32 s28, 0x03030303\ns_cbranch_scc0 P2_h2\nP2_n2b:")
        A(f"s_cmp_eq_u32 s{sCnt}, 9\ns_cbranch_scc0 P2_np\n{PL}\nP2_np:")
        A(f"s_cmp_eq_u32 s{sCnt}, 10\ns_cbranch_scc0 P2_b")
        A("s_waitcnt vmcnt(8)\nv_cmp_gt_u32 vcc, s57, v4\ns_mov_b32 s58, 0\ns_nop 3\ns_cbranch_vccz P2_ok")
        A(f"P2_l2:\n{PL}\ns_add_u32 s58, s58, 1\ns_waitcnt vmcnt(0)\nv_cmp_gt_u32 vcc, s57, v4")
        spin_tail("P2_l2")
        A("P2_ok:\ns_mov_b32 s57, 7")
        A("P2_b:")
        pad()
        issueW(); issueH()
        if pf2==3:
            A("s_cmp_eq_u32 s13, 24\ns_cselect_b32 s8, s14, s8\ns_cselect_b32 s9, s15, s9\ns_cmp_lt_u32 s13, 28\ns_cbranch_scc0 P2_nspf")
            spf()
            A("P2_nspf:")
        A(f"s_add_u32 s{sCnt}, s{sCnt}, 1\ns_cmp_lt_u32 s{sCnt}, 28\ns_cbranch_scc1 P2_loop")
    if not w6 and not wsplit: A(("" if (la2 or tight2) else "s_waitcnt vmcnt(16)\ns_barrier\n")+"s_waitcnt vmcnt(8)\ns_barrier\ns_waitcnt vmcnt(0)\ns_barrier")
    if diag: stamp(5); rstamp(15); flush(16)
    A("s_endpgm")
    A(".p2align 6\nL_cons:")
    ACC=16; F=[(128,144),(172,188)]
    vX0,vX1,vE,vO,vL=4,5,6,7,8; bX0,bE,bL=9,10,11
    sWm,sWf,sIt,sRg,sA,sB,sC=46,47,48,49,58,7,59
    sHA,sH3,sRX2,sClr,sPf=50,51,4,5,6
    vOwn,vT3,vH,vW=232,233,235,[236,237,238,239]
    if pfc and not fast:
        A(f"s_getpc_b64 s[54:55]\nC_pc:\ns_sub_u32 s54, s54, C_pc-{NAME}\ns_subb_u32 s55, s55, 0")
        A(f"v_lshlrev_b32 v3, 7, v0\nv_min_u32 v3, L_end-{NAME}, v3\nglobal_load_dword v255, v3, s[54:55]")
    if pf1==1 and not fast:
        A(f"v_and_b32 v15, 31, v2\nv_lshlrev_b32 v15, 7, v15\ns_lshl_b32 s{sA}, s2, 2\ns_add_u32 s{sA}, s{sA}, s3\ns_lshl_b32 s{sA}, s{sA}, 12")
    if pf1==3:
        A(f"v_and_b32 v15, 7, v2\nv_lshlrev_b32 v15, 7, v15\nv_bfe_u32 v14, v2, 3, 1\nv_lshl_add_u32 v15, v14, 11, v15\ns_lshl_b32 s{sA}, s2, 2\ns_add_u32 s{sA}, s{sA}, s3\ns_lshl_b32 s{sA}, s{sA}, 12\nv_mov_b32 v252, v15")
    if pf1==2:
        A(f"v_lshlrev_b32 v15, 7, v2\ns_lshr_b32 s{sA}, s2, 3\ns_lshl_b32 s{sA}, s{sA}, 2\ns_add_u32 s{sA}, s{sA}, s3\ns_lshl_b32 s{sA}, s{sA}, 13\ns_lshr_b32 s{sB}, s{sXcd}, 1\ns_lshl_b32 s{sB}, s{sB}, 20\ns_add_u32 s{sA}, s{sA}, s{sB}")
    A("s_waitcnt lgkmcnt(0)")
    if pf1==5: srd(A,SX,4,X_BYTES)
    elif pf1 and not (fast and pf1==1):
        srd(A,SX,4,X_BYTES)
        A(f"buffer_load_dword v253, v15, {R4(SX)}, s{sA} offen")
        if pf1==3: srd(A,SW1,6,W_BYTES)
    if diag==5: stamp(6)
    if cprio: A(f"s_setprio {cprio}")
    A(f"s_lshr_b32 s{sWm}, s3, 1\ns_and_b32 s{sWf}, s3, 1")
    A("v_and_b32 v3, 15, v2\nv_lshrrev_b32 v12, 4, v2")
    A("v_lshrrev_b32 v13, 1, v3\nv_xor_b32 v13, v13, v12\nv_lshlrev_b32 v13, 4, v13")
    A(f"s_lshl_b32 s{sA}, s{sWm}, 13\nv_lshlrev_b32 v14, 7, v3\nv_add3_u32 v{bX0}, v13, v14, s{sA}")
    A("v_lshrrev_b32 v13, 1, v12\nv_mul_u32_u24 v13, 7168, v13\nv_bfe_u32 v15, v2, 2, 2\nv_lshl_add_u32 v13, v15, 6, v13\nv_and_b32 v15, 3, v2\nv_lshl_add_u32 v13, v15, 3, v13")
    A(f"v_and_b32 v14, 1, v12\nv_mul_u32_u24 v15, 1056, v14\ns_lshl_b32 s{sA}, s{sWf}, 9\ns_add_u32 s{sA}, s{sA}, {WOFF}\nv_add3_u32 v{bE}, v13, v15, s{sA}")
    A(f"v_mul_u32_u24 v15, 544, v14\nv_add_u32 v13, v13, v15\ns_lshl_b32 s{sA}, s{sWf}, 5\nv_xor_b32 v13, s{sA}, v13\nv_add_u32 v{bL}, {WOFF+6144}, v13")
    VF=248
    if late2:
        for n in range(4): A(f"v_mov_b32 v{VF+n}, {OOB}")
    else: fragoffs(VF)
    A(f"v_add_u32 v{vE}, {2*WST}, v{bE}\nv_mov_b32 v{vX0}, v{bX0}\nv_add_u32 v{vL}, {2*WST}, v{bL}\nv_xor_b32 v{vO}, 32, v{vE}\nv_xor_b32 v{vX1}, 64, v{vX0}")
    srd(A,SO,10,O_BYTES); srd(A,SWS,14,0x10000000); srd(A,SW2,8,W_BYTES)
    if diag==5 or not spub: srd(A,SD,12,256)
    A("v_lshlrev_b32 v3, 4, v2")
    A(f"s_lshr_b32 s56, s{sLid}, 3\ns_lshl_b32 s56, s56, 10\ns_lshl_b32 s{sB}, s{sFt8}, 2\ns_add_u32 s56, s56, s{sB}\ns_add_u32 s56, s56, {F_OFF+fch*128}")
    if lead:
        A(f"s_cmp_eq_u32 s{sFt}, 0\ns_cselect_b32 s{sB}, 16, 0\nv_lshrrev_b32 v13, 3, v2\nv_lshlrev_b32 v13, 10, v13\nv_and_b32 v1, 7, v2\nv_lshl_add_u32 v13, v1, 2, v13")
        A(f"v_mov_b32 v1, {OOB}\nv_cmp_gt_u32 vcc, s{sB}, v2\ns_nop 1\nv_cndmask_b32 v1, v1, v13, vcc")
    else:
        A(f"v_mov_b32 v1, {OOB}\nv_cmp_eq_u32 vcc, 0, v2\ns_nop 1\nv_cndmask_b32 v1, v1, 0, vcc")
    A(f"s_andn2_b32 s57, s{sLid}, 7\ns_add_u32 s57, s57, s{sDt}\ns_lshl_b32 s57, s57, 2\ns_add_u32 s57, s57, s3\ns_mul_i32 s57, s57, {QS}\ns_add_u32 s57, s57, {P_OFF}")
    A0=A
    if late>=0: A=Asm()
    if late2: assert 0<=late<cbase; fragoffs(VF,A,(13,14,15))
    A(f"s_lshl_b32 s52, s{sWm}, 12\nv_add_u32 v{vH}, s52, v3")
    A("v_lshrrev_b32 v13, 5, v2\nv_lshlrev_b32 v13, 11, v13\nv_bfe_u32 v14, v2, 4, 1\nv_mul_u32_u24 v14, 288, v14\nv_add_u32 v13, v13, v14")
    A("v_bfe_u32 v15, v2, 2, 2\nv_lshl_add_u32 v13, v15, 6, v13\nv_and_b32 v15, 3, v2\nv_lshl_add_u32 v13, v15, 3, v13")
    A(f"s_lshl_b32 s52, s{sJ}, 1\ns_add_u32 s52, s52, s{sWf}\ns_lshl_b32 s52, s52, 9\ns_add_u32 s52, s52, 65536\nv_add_u32 v{vW[0]}, s52, v13")
    A(f"v_xor_b32 v{vW[1]}, 32, v{vW[0]}\nv_xor_b32 v{vW[2]}, 0x400, v{vW[0]}\nv_xor_b32 v{vW[3]}, 0x420, v{vW[0]}")
    A(f"s_add_u32 s62, s{sFt8}, s3\ns_and_b32 s62, s62, {rmask}\ns_add_u32 s62, s62, {l2st+5}")
    A(f"s_mul_i32 s{sHA}, s{sMt}, 112\ns_mul_i32 s{sH3}, s{sFt}, 7\ns_add_u32 s{sHA}, s{sHA}, s{sH3}\ns_and_b32 s52, s{sFt8}, 1")
    A(f"s_xor_b32 s53, s52, 1\ns_mul_i32 s53, s53, 6\ns_add_u32 s{sH3}, s{sHA}, s53\ns_add_u32 s{sHA}, s{sHA}, s52\ns_add_u32 s{sHA}, s{sHA}, s{sWf}")
    A(f"s_mul_i32 s52, s{sWm}, {QS}\ns_mul_i32 s{sHA}, s{sHA}, {CH}\ns_add_u32 s{sHA}, s{sHA}, s52\ns_mul_i32 s{sH3}, s{sH3}, {CH}\ns_add_u32 s{sH3}, s{sH3}, s52\ns_lshl_b32 s52, s{sWm}, 12")
    A(f"s_lshl_b32 s53, s{sWf}, 13\ns_add_u32 s52, s52, s53\nv_add_u32 v{vOwn}, s52, v3")
    A(f"v_bfe_u32 v13, v2, 4, 1\nv_lshlrev_b32 v13, 3, v13\nv_lshrrev_b32 v14, 5, v2\nv_lshl_add_u32 v13, v14, 1, v13\nv_bfe_u32 v14, v2, 3, 1\ns_lshl_b32 s52, s{sWf}, 2\nv_add3_u32 v13, v13, v14, s52")
    A("v_add_u32 v14, 16, v13\nv_and_b32 v15, 7, v2\nv_lshlrev_b32 v15, 4, v15")
    physline(vT3,13,12,A); physline(vT3+1,14,12,A)
    A(f"v_add_u32 v{vT3}, v{vT3}, v15\nv_add_u32 v{vT3+1}, v{vT3+1}, v15")
    A("v_mov_b32 v12, 1\ns_mov_b32 s52, 0xbfb8aa3b\ns_mov_b32 s53, 0xbfb8aa3b\ns_mov_b32 s54, 1.0\ns_mov_b32 s55, 1.0")
    if late>=0:
        LATE=A.text().rstrip(); A=A0
        A(f"v_mov_b32 v{vT3}, {OOB}\nv_mov_b32 v{vT3+1}, {OOB}")
    if not zc:
        for r in range(112): A(f"v_mov_b32 v{ACC+r}, 0")
    for r in range(4): A(f"v_mov_b32 v{244+r}, -1")
    def hook(it, body, name, reg=None):
        OOL.append(f"{name}:\n{body}\ns_branch {name}_b")
        return [f"s_cmp_eq_u32 s{reg or sIt}, {it}", f"s_cbranch_scc1 {name}\n{name}_b:"]
    def reads1(u, fs):
        X,W=F[fs]
        xs=[f"ds_read_b128 {vr(X+4*i,4)}, v{vX1 if u else vX0} offset:{i*2048}" for i in range(4)]
        ws=[]
        for j in range(7):
            a,o=(vL,0) if j==6 else ((vO if j&1 else vE),(j>>1)*2048)
            for hh in range(2): ws.append(f"ds_read_b64_tr_b16 {vr(W+4*j+2*hh,2)}, v{a} offset:{u*14336+o+hh*256}")
        return ws[0:2]+xs+ws[2:]
    def mf1(fs,zero=False):
        X,W=F[fs]
        return [f"v_mfma_f32_16x16x32_bf16 {vr(ACC+(j*4+i)*4,4)}, {vr(W+4*j,4)}, {vr(X+4*i,4)}, {'0' if zero else vr(ACC+(j*4+i)*4,4)}" for j,i in snake(range(7),4)]
    A(f"s_mov_b32 s{sIt}, 0\ns_mov_b32 s{sRg}, {2*WST}\ns_mov_b32 s{sRX2}, 0\ns_lshl_b32 s{sClr}, s3, {1 if cmask==7 else 0}\ns_add_u32 s{sClr}, s{sClr}, s{sFt8}\ns_and_b32 s{sClr}, s{sClr}, {cmask}\ns_add_u32 s{sClr}, s{sClr}, {cbase}")
    if two: A(f"s_mov_b32 s0, {1|4|(1<<ack)}")
    A(f"s_mul_i32 s{sPf}, s3, {pfb}\ns_add_u32 s{sPf}, s{sPf}, {pfa}")
    if pf2==2: A(f"v_min_u32 v15, 55, v2\nv_lshlrev_b32 v15, 7, v15\ns_lshl_b32 s{sA}, s2, 2\ns_add_u32 s{sA}, s{sA}, s3\ns_mul_i32 s{sA}, s{sA}, 7168\nbuffer_load_dword v255, v15, {R4(SW2)}, s{sA} offen")
    if diag in (2,3,6): A("s_mov_b32 m0, 0")
    clr="\n".join([f"buffer_store_dwordx4 v[244:247], v{VF+i}, {R4(SWS)}, s57 offen sc1" for i in range(4)])
    fclr=f"v_mov_b32 v13, 0\nbuffer_store_dword v13, v1, {R4(SWS)}, s56 offen sc1"
    if sep: assert lead; A(fclr)
    elif not two: clr=clr+"\n"+fclr
    if clr0: A(clr)
    if diag==5: stamp(8)
    WK=""
    if walk:
        WK=f"s_cmp_ge_u32 s3, {walk}\ns_cbranch_scc1 C_walked\n"+("" if (wlate or wnw) else f"s_waitcnt vmcnt({(1 if pf1 and not pcw else 0)+(1 if sep else 0)})\n")+"s_mov_b64 exec, 0\n"
        for w in range(walk-1): WK+=f"s_cmp_eq_u32 s3, {w}\ns_cbranch_scc1 @START{w}@\n"
        WK+=f"s_branch @START{walk-1}@\nC_wret:\ns_mov_b64 exec, -1\nC_walked:"
        if not wlate: A(WK)
    if diag==5: stamp(9)
    A("s_barrier")
    stamp(1)
    for l in reads1(0,0): A(l)
    A("s_waitcnt lgkmcnt(0)")
    ex=[f"s_add_u32 s{sRg}, s{sRg}, {WST}\ns_add_u32 s{sRX2}, s{sRX2}, 16384", f"s_cmp_eq_u32 s{sRg}, {WST*3}\ns_cselect_b32 s{sRg}, 0, s{sRg}",
        f"v_add_u32 v{vE}, s{sRg}, v{bE}\ns_and_b32 s{sRX2}, s{sRX2}, 0xffff", f"v_add_u32 v{vX0}, s{sRX2}, v{bX0}", f"v_add_u32 v{vL}, s{sRg}, v{bL}",
        f"v_xor_b32 v{vO}, 32, v{vE}", f"v_xor_b32 v{vX1}, 64, v{vX0}"]
    if zc:
        assert cbase>0
        sstamp()
        for l in interleave(mf1(0,True), reads1(1,1)+ex): A(l)
        A("s_branch C1_in")
    A(f".p2align {al}\nC1_loop:")
    sstamp()
    if not clr0: ex+=hook(f"s{sClr}" if stag else 2,clr,"H1_clr")
    for l in interleave(mf1(0), reads1(1,1)+ex): A(l)
    A("C1_in:\ns_waitcnt lgkmcnt(0)\ns_barrier")
    pub=(f"s_cmp_eq_u32 s3, 0\ns_cbranch_scc0 H1_pub_b\ns_and_b32 s{sA}, s{sLid}, 3\ns_lshl_b32 s{sA}, s{sA}, 3\ns_lshl_b32 s{sA}, 1, s{sA}\nv_mov_b32 v13, s{sA}\n"
         f"s_andn2_b32 s{sA}, s{sLid}, 3\nv_lshlrev_b32 v14, 8, v2\nbuffer_atomic_or v13, v14, {R4(SD)}, s{sA} offen")
    if two:
        h=hook(0,f"s_cmp_eq_u32 s{sIt}, 0\ns_cbranch_scc1 H1_fc\ns_waitcnt vmcnt(0)\ns_branch H1_ack_b\nH1_fc:\n{fclr}","H1_ack")
        h[0]=f"s_bitcmp1_b32 s0, s{sIt}"
    else: h=hook(ack,"s_waitcnt vmcnt(0)","H1_ack")
    ex=h+([] if spub else hook(ack+1,pub,"H1_pub"))
    if late>=0: ex+=hook(late,(PAD+"\n" if walk else "")+LATE+("\n"+WK if wlate else ""),"H1_late")
    if xp_n: ex+=hook(xp_it,f"s_sleep {xp_n}","H1_xp")
    if pf1==5: ex+=hook(pfi,f"v_xor_b32 v252, 0x400, v252\ns_nop 0\nbuffer_load_dword v253, v252, {R4(SX)}, 0 offen","H1_pf1")
    if pf1==3:
        nl=(16-w1s)*64*56//1024
        ex+=hook(pfi,f"s_lshl_b32 s{sA}, s2, 2\ns_add_u32 s{sA}, s{sA}, s3\ns_mul_i32 s{sB}, s{sA}, {nl*128}\ns_add_u32 s{sB}, s{sB}, {w1s*64*7168}\ns_lshl_b32 s{sA}, s{sA}, 12\n"
                     f"v_min_u32 v15, {nl-1}, v2\nv_lshlrev_b32 v15, 7, v15\nbuffer_load_dword v255, v15, {R4(SW1)}, s{sB} offen\nbuffer_load_dword v253, v252, {R4(SX)}, s{sA} offen offset:1024","H1_pf1")
    if pf2==4:
        ex+=hook(f"s{sPf}",f"s_lshl_b32 s{sA}, s2, 2\ns_add_u32 s{sA}, s{sA}, s3\ns_lshr_b32 s{sB}, s{sA}, 6\ns_and_b32 s60, s{sB}, 1\ns_mul_i32 s{sB}, s{sB}, 7\n"
                     f"s_add_u32 s61, s{sB}, s60\ns_add_u32 s61, s61, 4\ns_lshl_b32 s61, s61, 16\ns_xor_b32 s60, s60, 1\ns_mul_i32 s60, s60, 6\ns_add_u32 s{sB}, s{sB}, s60\ns_lshl_b32 s{sB}, s{sB}, 16\n"
                     f"s_and_b32 s{sA}, s{sA}, 63\ns_lshl_b32 s60, s{sA}, 11\ns_add_u32 s61, s61, s60\ns_lshl_b32 s60, s{sA}, 10\ns_add_u32 s{sB}, s{sB}, s60\n"
                     f"v_and_b32 v15, 15, v2\nv_lshlrev_b32 v15, 7, v15\nv_and_b32 v14, 7, v2\nv_lshlrev_b32 v14, 7, v14\n"
                     f"buffer_load_dword v255, v15, {R4(SW2)}, s61 offen\nbuffer_load_dword v253, v14, {R4(SW2)}, s{sB} offen","H1_pf")
    if pf2==1:
        ex+=hook(f"s{sPf}",f"v_min_u32 v15, 55, v2\nv_lshlrev_b32 v15, 7, v15\ns_lshl_b32 s{sA}, s2, 2\ns_add_u32 s{sA}, s{sA}, s3\ns_mul_i32 s{sA}, s{sA}, 7168\nbuffer_load_dword v255, v15, {R4(SW2)}, s{sA} offen","H1_pf")
    ex+=([PAD] if walk else [])+[f"s_add_u32 s{sIt}, s{sIt}, 1", f"s_cmp_lt_u32 s{sIt}, 16"]
    x=interleave(mf1(1), reads1(0,0)+ex)
    if x[-1].startswith("v_mfma"):
        for l in x[:-1]: A(l)
        A("s_waitcnt lgkmcnt(0)"); A(x[-1])
    else:
        for l in x: A(l)
        A("s_waitcnt lgkmcnt(0)")
    A("s_cbranch_scc1 C1_loop")
    stamp(2)
    T=216
    PEND=[]
    def silu(a, b, D):
        t=T; src=[a,a+2,b,b+2]
        for r in range(4): A(f"v_pk_mul_f32 {vr(t+2*r,2)}, s[52:53], {vr(src[r],2)}")
        for r in range(8):
            A(f"v_exp_f32 v{t+r}, v{t+r}")
            if r in (1,5) and PEND: A(PEND.pop(0))
        for r in range(4): A(f"v_pk_add_f32 {vr(t+2*r,2)}, s[54:55], {vr(t+2*r,2)}")
        for r in range(8):
            A(f"v_rcp_f32 v{t+r}, v{t+r}")
            if r in (1,5) and PEND: A(PEND.pop(0))
        for r in range(4): A(f"v_pk_mul_f32 {vr(t+2*r,2)}, {vr(t+2*r,2)}, {vr(src[r],2)}")
        for r in range(4): A(f"v_cvt_pk_bf16_f32 v{D+r}, v{t+2*r}, v{t+2*r+1}")
    def later(x):
        if pipe: PEND.append(x)
        else: A(x)
    def flushp():
        while PEND: A(PEND.pop(0))
    def gst(D,i): return f"buffer_store_dwordx4 {vr(D,4)}, v{VF+i}, {R4(SWS)}, s{sHA} offen sc1"
    FLAG="s_nop 0"
    DL=[160,128,144]; D3=224
    for L in range(3):
        for i in range(4):
            D=DL[L]+4*i
            if i%2==0: pad()
            silu(ACC+((2*L)*4+i)*4, ACC+((2*L+1)*4+i)*4, D)
            if L==0 or (L==2 and l1epi>=2) or (L==1 and i>=nb and l1epi): later(gst(D,i))
            later(f"ds_write_b128 v{vOwn}, {vr(D,4)} offset:{L*16384+i*1024}")
            if L==0 and i==3: later(f"s_add_u32 s{sHA}, s{sHA}, {2*CH}")
            if L==1 and i==nb-1:
                flushp()
                stamp(11); A("s_waitcnt vmcnt(0)"); stamp(12)
                A(f"s_waitcnt lgkmcnt(0)\ns_barrier")
                if l1epi:
                    if pipe==2:
                        for k in range(0,nb,2): later(gst(128+4*k,k)+"\n"+gst(132+4*k,k+1))
                    else:
                        for k in range(nb): A(gst(128+4*k,k))
        if L==1 and l1epi: later(f"s_add_u32 s{sHA}, s{sHA}, {2*CH}")
    F2=[(160,176),(192,208)]
    def rdH(X,slot,u): return [f"ds_read_b128 {vr(X+4*i,4)}, v{vH} offset:{slot*16384+u*8192+i*1024}" for i in range(4)]
    DYN=[w6]
    def rdW(W,slot,u,js): return [f"ds_read_b64_tr_b16 {vr(W+4*n+2*hh,2)}, v{vW[j]} offset:{(0 if DYN[0] else slot)*16384+(4*u+2*hh)*2048}" for n,j in enumerate(js) for hh in range(2)]
    WU=[f"v_add_u32 v{vW[0]}, s{sRg}, v240", f"v_xor_b32 v{vW[1]}, 32, v{vW[0]}", f"v_xor_b32 v{vW[2]}, 0x400, v{vW[0]}", f"v_xor_b32 v{vW[3]}, 0x420, v{vW[0]}"] if w6 else []
    WS=[f"s_add_u32 s{sRg}, s{sRg}, 16384", f"s_cmp_eq_u32 s{sRg}, {6*16384}\ns_cselect_b32 s{sRg}, 0, s{sRg}"] if w6 else []
    def reads2(slot,u,fs):
        X,W=F2[fs]; ws=rdW(W,slot,u,range(4)); return ws[0:2]+rdH(X,slot,u)+ws[2:]
    def mfm(X,W,js,zero=False,w0=0):
        return [f"v_mfma_f32_16x16x32_bf16 {vr(ACC+(j*4+i)*4,4)}, {vr(W+4*(j-w0),4)}, {vr(X+4*i,4)}, {'0' if zero else vr(ACC+(j*4+i)*4,4)}" for j,i in snake(js,4)]
    def mf2(fs,zero=False): return mfm(F2[fs][0],F2[fs][1],range(4),zero)
    for l in reads2(0,0,0): A(l)
    for ip in range(2):
        D=D3+4*ip; a=ACC+(24+2*ip)*4
        if ip==0: pad()
        silu(a,a+4,D)
        A(f"s_nop 1\nv_permlane16_swap_b32 v{D}, v{D+2}\nv_permlane16_swap_b32 v{D+1}, v{D+3}")
        if l1epi>=3: later(f"buffer_store_dwordx4 {vr(D,4)}, v{vT3+ip}, {R4(SWS)}, s{sH3} offen sc1")
    flushp()
    A(f"v_mov_b32 v12, {7 if l1epi==3 else 3}\ns_mov_b32 s{sIt}, 0")
    if w6: A(f"v_mov_b32 v240, v{vW[0]}\ns_mov_b32 s{sRg}, 16384")
    stamp(3); stamp(4)
    sstamp()
    A("s_waitcnt lgkmcnt(0)")
    for l in interleave(mf2(0,True), reads2(0,1,1)+(WU if w6 else ([PAD] if walk else []))): A(l)
    A("s_branch C2_in")
    dw={}; dws={}
    t3st=[f"buffer_store_dwordx4 {vr(D3+4*ip,4)}, v{vT3+ip}, {R4(SWS)}, s{sH3} offen sc1" for ip in range(2)]
    ADV=f"\ns_add_u32 s{sHA}, s{sHA}, {2*CH}"
    L1s=[gst(128+4*i,i) for i in range(4)]; L2s=[gst(144+4*i,i) for i in range(4)]
    F3=f"s_waitcnt vmcnt(0)\n{FLAG}"; F7=f"v_mov_b32 v12, 7\ns_waitcnt vmcnt(0)\n{FLAG}"
    J="\n".join
    if sched==1:
        dw[(0,1)]=J(L1s[:2]); dw[(1,0)]=J(L1s[2:])+ADV; dw[(1,1)]=J(L2s[:2]); dw[(2,0)]=J(L2s[2:]); dw[(2,1)]=J(t3st); dw[(4,0)]=F7
    elif sched==2:
        dw[(0,1)]=J(L1s[:2]); dw[(1,0)]=J(L1s[2:])+ADV; dw[(3,0)]=F3
        dw[(3,1)]=L2s[0]; dw[(4,0)]=L2s[1]; dw[(4,1)]=L2s[2]; dw[(5,0)]=L2s[3]; dw[(5,1)]=t3st[0]; dw[(6,0)]=t3st[1]; dw[(10,0)]=F7
    elif sched==3:
        dw[(0,1)]=L1s[0]; dw[(1,0)]=L1s[1]; dw[(1,1)]=L1s[2]; dw[(2,0)]=L1s[3]+ADV; dw[(3,1)]=F3
        dw[(4,0)]=L2s[0]; dw[(4,1)]=L2s[1]; dw[(5,0)]=L2s[2]; dw[(5,1)]=L2s[3]; dw[(6,0)]=t3st[0]; dw[(6,1)]=t3st[1]; dw[(11,0)]=F7
    elif sched==4:
        dw[(0,1)]=J(L1s)+ADV; dw[(1,1)]=J(L2s); dw[(2,1)]=J(t3st); dw[(4,0)]=F7
    elif sched==9:
        dw[(1,1)]=F7
    elif sched==5:
        dw[(0,1)]=J(L2s[:2]); dw[(1,0)]=J(L2s[2:]); dw[(1,1)]=J(t3st); dw[(3,1)]=F7
    else:
        if not l1epi:
            dw[(l1st,0)]=gst(128,0)+"\n"+gst(132,1); dw[(l1st,1)]=gst(136,2)+"\n"+gst(140,3)+f"\ns_add_u32 s{sHA}, s{sHA}, {2*CH}"
            dw[(l1st+2,1)]=f"s_waitcnt vmcnt(0)\n{FLAG}"
        else:
            dw[(l1st,1)]=f"s_waitcnt vmcnt(0)\n{FLAG}"
        if l1epi>=2:
            if l1epi==2: dw[(l2st,0)]="\n".join(t3st)
            if l1epi==2: dw[(f3,1)]=f"v_mov_b32 v12, 7\ns_waitcnt vmcnt(0)\n{FLAG}"
        elif not stag2:
            dw[(l2st,0)]=gst(144,0)+"\n"+gst(148,1); dw[(l2st+1,0)]=gst(152,2)+"\n"+gst(156,3)+"\nv_mov_b32 v12, 7"
            dw[(l2st+2,0)]="\n".join(t3st)
            dw[(l2st+5,1)]=f"s_waitcnt vmcnt(0)\n{FLAG}"
        else:
            dw[(f3,1)]=f"v_mov_b32 v12, 7\ns_waitcnt vmcnt(0)\n{FLAG}"
            body=[gst(144+4*i,i) for i in range(4)]+t3st
            o="H2_st:\n"
            for n,b in enumerate(body):
                o+=f"s_cmp_eq_u32 s62, {5-n}\ns_cbranch_scc0 H2_st{n}\n{b}\nH2_st{n}:\n"
            o+="s_setpc_b64 s[54:55]"
            OOL.append(o)
    def hooks2(slot,u):
        ex=[]
        for (q,uu),body in sorted(dw.items()):
            if q%4==slot and uu==u: ex+=hook(q//4,body,f"H2_{q}_{uu}")
        if stag2 and l1epi<2 and u==0 and not sched:
            ex+=["s_sub_u32 s62, s62, 1\ns_cmp_lt_u32 s62, 6", f"s_cbranch_scc1 H2_go{slot}\nH2_ns{slot}:"]
            OOL.append(f"H2_go{slot}:\ns_call_b64 s[54:55], H2_st\ns_branch H2_ns{slot}")
        assert len(ex)<=4, (slot,u,ex)
        return ex
    A(f".p2align {al}\nC2_loop:")
    for slot in range(4):
        sstamp()
        for l in interleave(mf2(0), reads2(slot,1,1)+hooks2(slot,0)+(WU if w6 else ([PAD] if walk else []))): A(l)
        if slot==0: A("C2_in:")
        A("s_waitcnt lgkmcnt(0)\ns_barrier")
        ex=WS+hooks2(slot,1)
        if w6 and walk and len(ex)<=3 and slot!=3: ex=ex+[PAD]
        if slot==3: ex+=[f"s_add_u32 s{sIt}, s{sIt}, 1", f"s_cmp_lt_u32 s{sIt}, 6"]
        x=interleave(mf2(1), reads2((slot+1)&3,0,0)+ex)
        if x[-1].startswith("v_mfma"):
            for l in x[:-1]: A(l)
            A("s_waitcnt lgkmcnt(0)"); A(x[-1])
        else:
            for l in x: A(l)
            A("s_waitcnt lgkmcnt(0)")
    A("s_cbranch_scc1 C2_loop")
    stamp(13)
    if diag: A("s_waitcnt lgkmcnt(0)")
    DYN[0]=0
    G=[dict(H=[160,80],W=[184,96]), dict(H=[192,104],W=[208,216])]
    def rdS(g,slot,js,us=(0,1)):
        o=[]
        for u in us:
            w=rdW(G[g]['W'][u],slot,u,js); o+=w[0:2]+rdH(G[g]['H'][u],slot,u)+w[2:]
        return o
    def mfS(g,js): return mfm(G[g]['H'][0],G[g]['W'][0],js,w0=js[0])+mfm(G[g]['H'][1],G[g]['W'][1],js,w0=js[0])
    for l in rdS(0,0,(2,3),(1,)): A(l)
    pad()
    A("s_barrier")
    m=mfS(0,(2,3)); r=rdS(1,1,(2,3))
    x=interleave(m[:8], r[:8])
    for l in x: A(l)
    A("s_waitcnt lgkmcnt(8)")
    for l in interleave(m[8:], r[8:]): A(l)
    for q in (1,2):
        if q==2: pad()
        A(f"s_waitcnt lgkmcnt({8 if cw else 0})\ns_barrier")
        x=interleave(mfS(q&1,(2,3)), rdS((q+1)&1,q+1,(2,3)))
        if cw: x.insert(16,"s_waitcnt lgkmcnt(8)")
        for l in x: A(l)
    A(f"s_mul_i32 s52, s{sJ}, {-2*32*QS}\ns_add_u32 s52, s52, {32*QS}\ns_add_u32 s52, s52, s57\ns_mov_b32 s53, -2")
    sn=[]
    for i in range(4):
        D=128+4*i; t=[]
        for n,j in enumerate((2,3)):
            S=ACC+(j*4+i)*4
            t+= [f"v_cvt_pk_bf16_f32 v{D+2*n}, v{S}, v{S+1}", f"v_cvt_pk_bf16_f32 v{D+2*n+1}, v{S+2}, v{S+3}"]
        t+=[f"v_min_u32 v{D+r}, s53, v{D+r}" for r in range(4)]
        t.append(f"buffer_store_dwordx4 {vr(D,4)}, v{VF+i}, {R4(SWS)}, s52 offen sc1")
        sn.append(t)
    A("s_waitcnt lgkmcnt(0)")
    if wsplit: assert esend; A("s_barrier")
    if esend:
        g=G[1]; r=rdS(0,0,(0,1)); k=0
        for i in range(4):
            for u,j in ((0,2),(0,3),(1,3),(1,2)):
                A(f"v_mfma_f32_16x16x32_bf16 {vr(ACC+(j*4+i)*4,4)}, {vr(g['W'][u]+4*(j-2),4)}, {vr(g['H'][u]+4*i,4)}, {vr(ACC+(j*4+i)*4,4)}")
                A(r[k]); k+=1
            if i>=1:
                for l in sn[i-1]: A(l)
        stamp(5)
        pad()
        A("s_waitcnt lgkmcnt(0)")
        if wsplit: A("s_barrier")
        m=mfS(0,(0,1)); r=rdS(1,1,(0,1))
        for n,mm_ in enumerate(m):
            A(mm_); A(r[n])
            if n==2:
                for l in sn[3]: A(l)
    else:
        for l in interleave(mfS(1,(2,3)), rdS(0,0,(0,1))): A(l)
        stamp(5)
        pad()
        snd=sum(sn,[])
        A("s_waitcnt lgkmcnt(0)")
        m=mfS(0,(0,1)); r=rdS(1,1,(0,1))
        k=0
        for n,mm_ in enumerate(m):
            A(mm_); A(r[n])
            if packfirst and n==1:
                A("s_nop 3")
                while k<len(snd): A(snd[k]); k+=1
            if n>=3:
                for _ in range(3):
                    if k<len(snd): A(snd[k]); k+=1
        while k<len(snd): A(snd[k]); k+=1
    if diag!=5 and not cw: stamp(6)
    RB=144 if dual else 80; RB2=224
    def LDs(b): return [f"buffer_load_dwordx4 {vr(b+4*i,4)}, v{VF+i}, {R4(SWS)}, s57 offen sc1" for i in range(4)]
    LD=LDs(RB)
    for q in (1,2):
        pad()
        A(f"s_waitcnt lgkmcnt({8 if cw else 0})")
        x=interleave(mfS(q&1,(0,1)), rdS((q+1)&1,q+1,(0,1)))
        if cw: assert not dual; x.insert(16,"s_waitcnt lgkmcnt(8)")
        if dual==q:
            for n in range(4): x.insert(2+3*n+n,LD[n])
        for l in x: A(l)
    A(f"s_waitcnt lgkmcnt({8 if cw else 0})")
    adr=["v_and_b32 v13, 15, v2","v_lshlrev_b32 v13, 11, v13","v_bfe_u32 v14, v2, 4, 1","v_lshl_add_u32 v13, v14, 5, v13","v_lshrrev_b32 v14, 5, v2","v_lshl_add_u32 v13, v14, 4, v13",
         f"s_lshl_b32 s{sC}, s{sMt}, 1\ns_add_u32 s{sC}, s{sC}, s{sWm}", f"s_lshl_b32 s{sC}, s{sC}, 17\ns_lshl_b32 s52, s{sDt}, 8", f"s_add_u32 s{sC}, s{sC}, s52\ns_lshl_b32 s52, s{sJ}, 7",
         f"s_add_u32 s{sC}, s{sC}, s52\ns_lshl_b32 s52, s{sWf}, 6", f"s_add_u32 s{sC}, s{sC}, s52\ns_mov_b32 s58, 0"]
    if otr:
        adr=["v_bfe_u32 v14, v2, 4, 1\nv_lshrrev_b32 v13, 5, v2","v_lshl_add_u32 v13, v14, 1, v13\nv_bfe_u32 v14, v2, 1, 2","v_xor_b32 v13, v13, v14\nv_and_b32 v14, 15, v2",
             f"v_lshlrev_b32 v14, 6, v14\ns_lshl_b32 s52, s3, 12","v_lshl_add_u32 v14, v13, 4, v14\ns_add_u32 s52, s52, 131072","v_add_u32 v240, s52, v14\nv_add_u32 v241, s52, v3",
             "v_bfe_u32 v14, v2, 3, 2\nv_and_b32 v13, 3, v2","v_xor_b32 v13, v13, v14\nv_lshrrev_b32 v14, 2, v2","v_lshlrev_b32 v14, 11, v14\nv_lshl_add_u32 v13, v13, 4, v14",
             f"s_lshl_b32 s{sC}, s{sMt}, 1\ns_add_u32 s{sC}, s{sC}, s{sWm}\ns_lshl_b32 s{sC}, s{sC}, 17\ns_lshl_b32 s52, s{sDt}, 8\ns_add_u32 s{sC}, s{sC}, s52",
             f"s_lshl_b32 s52, s{sJ}, 7\ns_add_u32 s{sC}, s{sC}, s52\ns_lshl_b32 s52, s{sWf}, 6\ns_add_u32 s{sC}, s{sC}, s52\ns_mov_b32 s58, 0"]
    def chk():
        A(f"v_max3_u32 v14, v{RB}, v{RB+1}, v{RB+2}")
        for r in range(3,15,2): A(f"v_max3_u32 v14, v14, v{RB+r}, v{RB+r+1}")
        A(f"v_max_u32 v14, v14, v{RB+15}\nv_cmp_eq_u32 vcc, -1, v14")
    if dual:
        for l in interleave(mfS(1,(0,1)), LDs(80)+adr): A(l)
        A("s_waitcnt vmcnt(4)"); chk()
        A("s_nop 4\ns_cbranch_vccz C3_ok\ns_waitcnt vmcnt(0)")
        for r in range(16): A(f"v_mov_b32 v{RB+r}, v{80+r}")
    else:
        x=interleave(mfS(1,(0,1)), adr[:ldpos]+LD+adr[ldpos:])
        if cw: x.insert(16,"s_waitcnt lgkmcnt(0)")
        for l in x: A(l)
    if diag and diag!=5: stamp(8)
    pad()
    A("s_branch C3_chk")
    A("C3_poll:")
    for l in LD: A(l)
    A("C3_chk:\ns_add_u32 s58, s58, 1\ns_waitcnt vmcnt(0)")
    chk()
    spin_tail("C3_poll")
    A("C3_ok:")
    stamp(7)
    if diag: A("s_waitcnt lgkmcnt(0)")
    if diag==4: A("s_mov_b32 s86, s58")
    A("s_mov_b32 s53, 0xffff0000")
    for i in range(4):
        D=128+4*i
        for n in range(2):
            S=ACC+(n*4+i)*4
            for h in range(2):
                Rr=RB+4*i+2*n+h
                A(f"v_lshlrev_b32 v{T}, 16, v{Rr}\nv_and_b32 v{T+1}, s53, v{Rr}\nv_pk_add_f32 {vr(S+2*h,2)}, {vr(S+2*h,2)}, {vr(T,2)}")
                A(f"v_cvt_pk_bf16_f32 v{D+2*n+h}, v{S+2*h}, v{S+2*h+1}")
        A(f"s_nop 1\nv_permlane16_swap_b32 v{D}, v{D+2}\nv_permlane16_swap_b32 v{D+1}, v{D+3}")
        if otr:
            def ost(k,n): A(f"s_waitcnt lgkmcnt({n})\nbuffer_store_dwordx4 {vr(144+4*k,4)}, v13, {R4(SO)}, s{sC} offen {outaux}"+(f"\ns_add_u32 s{sC}, s{sC}, 0x8000" if k<3 else ""))
            A(f"ds_write_b128 v240, {vr(D,4)} offset:{i*1024}\nds_read_b128 {vr(144+4*i,4)}, v241 offset:{i*1024}")
            if i>0: ost(i-1,2)
            if i==3: ost(3,0)
        else:
            A(f"buffer_store_dwordx4 {vr(D,4)}, v13, {R4(SO)}, s{sC} offen {outaux}")
            if i<3: A(f"s_add_u32 s{sC}, s{sC}, 0x8000")
        if i==0: pad()
    if diag:
        if diag!=5: stamp(9)
        A("s_waitcnt vmcnt(0)"); stamp(10); rstamp(15); flush(16,True)
    A("s_endpgm")
    if walk: A(PAD+"\ns_endpgm")
    for b in OOL: A(b)
    A("L_end:\ns_endpgm")
    A(f""".section .rodata,"a"
.p2align 6
.amdhsa_kernel {NAME}
  .amdhsa_next_free_vgpr 256
  .amdhsa_next_free_sgpr 96
  .amdhsa_accum_offset 256
  .amdhsa_group_segment_fixed_size 0
  .amdhsa_kernarg_size 48
  .amdhsa_user_sgpr_count 2
  .amdhsa_user_sgpr_kernarg_segment_ptr 1
  .amdhsa_system_sgpr_workgroup_id_x 1
.end_amdhsa_kernel""")
    txt=A.text()
    if walk:
        n=txt.count("@PAD@"); parts=txt.split("@PAD@")
        starts=[round(w*n/walk) for w in range(walk)]
        out=parts[0]
        for k in range(n):
            nxt="C_wret" if (k+1==n or k+1 in starts) else f"PAD{k+1}"
            out+=f"PAD{k}:\ns_cbranch_execz {nxt}"+parts[k+1]
        for w in range(walk): out=out.replace(f"@START{w}@",f"PAD{starts[w]}")
        txt=out
    return txt

if __name__=="__main__":
    import inspect
    p=argparse.ArgumentParser(); p.add_argument("-o")
    for k,v in inspect.signature(build).parameters.items():
        p.add_argument("--"+k,type=type(v.default),default=v.default)
    a=vars(p.parse_args()); o=a.pop("o")
    open(o,"w").write(build(**a))
```

```python
import sys, argparse
NAME="standalone__dense_activation_silu__prompt_kernel"
class Asm:
    def __init__(self): self.L=[]
    def __call__(self, s):
        for l in s.split("\n"): self.L.append(l)
    def text(self): return "\n".join(self.L)+"\n"
def vr(a,n): return f"v[{a}:{a+n-1}]"
def srd(A, d, b, nbytes):
    A(f"s_mov_b32 s{d}, s{b}\ns_and_b32 s{d+1}, s{b+1}, 0xffff\ns_mov_b32 s{d+2}, {nbytes}\ns_mov_b32 s{d+3}, 0x20000")
X_BYTES=2048*1024*2; W_BYTES=1024*3584*2; O_BYTES=2048*1024*2
H_OFF=0; P_OFF=24<<20; F_OFF=48<<20; T_OFF=64<<20
SX,SW1,SW2,SO,SD,SWS=16,20,24,28,32,36
sMt,sJ,sFt8,sFt,sLid,sXcd,sDt=40,41,42,43,44,45,63
OOB=0x7ffffff0
SPIN=1<<17
def R4(s): return f"s[{s}:{s+3}]"

def interleave(mf, rd):
    out=[]; k=0
    for m in mf:
        out.append(m)
        if k<len(rd): out.append(rd[k]); k+=1
    return out+rd[k:]
ORDER='ji'
def snake(JS,NI):
    JS=list(JS)
    if ORDER=='ij': return [(j,i) for i in range(NI) for j in (JS if i%2==0 else JS[::-1])]
    return [(j,(i if n%2==0 else NI-1-i)) for n,j in enumerate(JS) for i in range(NI)]

def build(diag=0, rot=8, pf1=5, pf2=1, pfc=1, outaux="sc1", pfa=12, dswz=0, w1aux="", xaux="", w2aux="", l1st=1, l2st=4, stag=1, l1epi=3, rmask=1, f3=9, skew2=3, pfb=0, stag2=1, remap=1, spa=0, spb=13, spn=4, ack=4, ldearly=1, pfi=2, w1s=6, sched=0, fch=6, pdelay=0, nb=2, clr0=0, dual=0, tlb=0, packfirst=1, spub=1, vpoll=0, hsi=12, hsglc='', cmask=0, cbase=1, walk=4, w2e=2, order='ji', esend=1, ldpos=0, fast=1, la1=0, hd=4, la2=0, npoll=2, tearly=2, nsh=0, two=0, tight2=1, tight1=1, lead=1, tl=0, tlw=16, tl0=0, sep=1, xp_it=0, xp_n=0, late=0, sl2=0, cprio=1, pprio=3, al=3, pj=0, w6=0, late2=1, pcw=16, pipe=0, wsplit=1, cw=1, zc=1, wlate=0, pskip=0, wnw=0, pp1=-1, ppt=-1, pp2=-1, otr=1, padn=2, cal=6, dense=0, epad=1, ab=0, wit=-1, pfe=-1, pfew=2):
    global ORDER; ORDER=order
    assert wit<0 or wit==pfi
    assert ack+2!=hsi and tl not in (ack+5,hsi+3) and ack+2<=12 and cbase+cmask+2<=ack and nsh<=(4 if two else ack+2)
    A=Asm(); A_main=A; OOL=[]
    tm='s_memrealtime' if diag>=3 else 's_memtime'
    def stamp(k):
        if diag and diag!=7: A(f"{tm} s[{64+2*k}:{65+2*k}]")
    def rstamp(k):
        if diag: A(f"s_memrealtime s[{64+2*k}:{65+2*k}]")
    def sstamp():
        if diag==6: A(f"s_memtime s[90:91]\ns_memrealtime s[88:89]\ns_waitcnt lgkmcnt(0)\nv_writelane_b32 v254, s90, m0\nv_writelane_b32 v243, s88, m0\ns_add_u32 m0, m0, 1")
        if diag in (2,3): A(f"{tm} s[90:91]\ns_waitcnt lgkmcnt(0)\nv_writelane_b32 v254, s90, m0\ns_add_u32 m0, m0, 1")
    def flush(n, cons=False):
        if not diag: return
        if diag==5:
            ks=[6,8,9,1,2,4,5,10] if cons else [1,8,2,3,4,5]
            lab="DB_c" if cons else "DB_p"
            A(f"s_waitcnt lgkmcnt(0)\ns_and_b32 s60, s3, 3\ns_or_b32 s60, s60, s2\ns_cmp_eq_u32 s60, 0\ns_cbranch_scc0 {lab}\nv_lshlrev_b32 v1, 8, v2")
            for n_,k in enumerate(ks):
                A(f"s_sub_u32 s60, s{64+2*k}, s64\nv_mov_b32 v4, s60\nbuffer_store_dword v4, v1, {R4(SD)}, 0 offen offset:{4*(n_+(0 if cons else 8))} sc1")
            A(f"s_waitcnt vmcnt(0)\n{lab}:")
            return
        A(f"s_waitcnt lgkmcnt(0)\ns_lshl_b32 s60, s2, 3\ns_add_u32 s60, s60, s3\ns_lshl_b32 s60, s60, 8\ns_add_u32 s60, s60, {T_OFF}\nv_mov_b32 v1, 0")
        for k in (range(n) if diag!=7 else (14,15)): A(f"v_mov_b32 v2, s{64+2*k}\nbuffer_store_dword v2, v1, {R4(SWS)}, s60 offen offset:{4*k}")
        if cons and diag>=2 and diag!=7:
            A(f"v_and_b32 v1, 63, v0\nv_lshlrev_b32 v1, 2, v1\nv_mov_b32 v2, {OOB}\nv_cmp_gt_u32 vcc, 192, v1\ns_nop 1\nv_cndmask_b32 v1, v2, v1, vcc")
            A(f"buffer_store_dword v254, v1, {R4(SWS)}, s60 offen offset:64")
            if diag==6: A(f"s_add_u32 s60, s60, 0x80000\nbuffer_store_dword v243, v1, {R4(SWS)}, s60 offen offset:64")
        A("s_waitcnt vmcnt(0)")
    PAD='@PAD@' if walk else 's_nop 0'
    def pad():
        if walk: A(PAD)
    def spin_tail(label):
        A(f"s_cmp_lt_u32 s58, {SPIN}\ns_cselect_b64 s[60:61], -1, 0\ns_and_b64 vcc, vcc, s[60:61]\ns_cbranch_scc1 {label}")
    WST=28672; WOFF=65536
    QS=5120 if remap else 4096
    CH=2*QS
    def physline(dst,g,tmp,A=None):
        A=A or A_main
        if remap: A(f"v_add_u32 v{tmp}, 4, v{g}\nv_mul_u32_u24 v{tmp}, 37, v{tmp}\nv_lshrrev_b32 v{tmp}, 8, v{tmp}\nv_add_u32 v{tmp}, v{tmp}, v{g}\nv_lshlrev_b32 v{dst}, 7, v{tmp}")
        else: A(f"v_lshlrev_b32 v{dst}, 7, v{g}")
    def fragoffs(base,A=None,t=(4,5,6)):
        A=A or A_main
        A(f"v_and_b32 v{t[2]}, 7, v2\nv_lshlrev_b32 v{t[2]}, 4, v{t[2]}")
        for n in range(4):
            A(f"v_lshrrev_b32 v{t[1]}, 3, v2\nv_add_u32 v{t[1]}, {8*n}, v{t[1]}"); physline(base+n,t[1],t[0],A); A(f"v_add_u32 v{base+n}, v{base+n}, v{t[2]}")
    A("""; Fused feed-forward  out = silu(x @ w1) @ w2   (bf16 in/out, fp32 accumulation), one launch.
; Kernarg (48 bytes): 0 x[2048,1024]  8 w1[1024,3584]  16 w2[3584,1024]  24 out[2048,1024]  32 debug(256 B)  40 ws
; 256 workgroups, one per CU.  Waves 0-3 compute (16x16x32 MFMA), waves 4-7 stream tiles into LDS rings.
;   phase 1: h[128 x 224] = silu(x[128 x 1024] @ w1[1024 x 224]); h goes to LDS (own chunks) and, write-through, to ws
;   phase 2: partial[128 x 128] over one half of F; the 8 workgroups of a row block hand h over with flags in ws
;            (flags are reset by the row leader in this launch and announced through debug before anyone trusts them)
;   end    : the two K halves swap half tiles through ws (inbox reset to a sentinel by its owner), add and store out
; PADn labels are instruction-cache landing pads: a wave with EXEC = 0 hops over them once, touching no memory.
; @launch grid=(256,1,1) block=(512,1,1) lds="""+("163840" if w6 else "151552"))
    A('.amdgcn_target "amdgcn-amd-amdhsa--gfx950"\n.text')
    A(f".globl {NAME}\n.p2align 8\n.type {NAME},@function\n{NAME}:")
    A("s_load_dwordx8 s[4:11], s[0:1], 0\ns_load_dwordx4 s[12:15], s[0:1], 32")
    A("s_cmp_ge_u32 s2, 256\ns_cbranch_scc1 L_end")
    stamp(0); rstamp(14)
    if fast and pfc and pskip:
        A(f"v_lshrrev_b32 v1, 6, v0\nv_and_b32 v2, 63, v0\ns_cmp_lt_u32 s2, {pcw}\ns_cbranch_scc1 L_pfc\nL_pfcb:")
        PFC=(f"L_pfc:\ns_getpc_b64 s[54:55]\nC_pc:\nv_lshlrev_b32 v3, 7, v0\ns_sub_u32 s54, s54, C_pc-{NAME}\ns_subb_u32 s55, s55, 0\n"
             f"v_min_u32 v3, L_end-{NAME}, v3\ns_nop 0\nglobal_load_dword v255, v3, s[54:55]\ns_branch L_pfcb")
    elif fast and pfc:
        A(f"s_getpc_b64 s[54:55]\nC_pc:\nv_lshlrev_b32 v3, 7, v0\ns_sub_u32 s54, s54, C_pc-{NAME}\ns_subb_u32 s55, s55, 0")
        if pcw:
            A(f"s_cmp_lt_u32 s2, {pcw}\ns_cselect_b32 s3, L_end-{NAME}, 0\nv_min_u32 v3, s3, v3\nv_lshrrev_b32 v1, 6, v0\nglobal_load_dword v255, v3, s[54:55]\nv_and_b32 v2, 63, v0")
        else: A(f"v_min_u32 v3, L_end-{NAME}, v3\nv_lshrrev_b32 v1, 6, v0\nglobal_load_dword v255, v3, s[54:55]\nv_and_b32 v2, 63, v0")
    else: A("v_lshrrev_b32 v1, 6, v0\nv_and_b32 v2, 63, v0")
    A(f"v_readfirstlane_b32 s3, v1\ns_and_b32 s{sXcd}, s2, 7\ns_lshr_b32 s46, s2, 3")
    dec1=f"s_lshr_b32 s{sMt}, s{sXcd}, 1\ns_lshl_b32 s{sMt}, s{sMt}, 2\ns_lshr_b32 s47, s46, 3\ns_add_u32 s{sMt}, s{sMt}, s47\ns_and_b32 s{sJ}, s{sXcd}, 1"
    dec2=(f"s_and_b32 s{sFt8}, s46, 7\ns_lshl_b32 s{sFt}, s{sJ}, 3\ns_add_u32 s{sFt}, s{sFt}, s{sFt8}\n"
          f"s_lshl_b32 s{sLid}, s{sMt}, 4\ns_add_u32 s{sLid}, s{sLid}, s{sFt}\n"+(f"s_xor_b32 s{sDt}, s{sJ}, 1\ns_mul_i32 s{sDt}, s{sDt}, {dswz}\ns_xor_b32 s{sDt}, s{sDt}, s{sFt8}" if dswz else f"s_mov_b32 s{sDt}, s{sFt8}"))
    A(dec1); A(dec2)
    if fast and pf1==5:
        A("s_cmp_lt_u32 s3, 4\ns_cbranch_scc0 L_prod")
        A(f"s_lshr_b32 s58, s{sXcd}, 1\ns_lshl_b32 s59, s58, 2\ns_lshl_b32 s58, s58, 5\ns_add_u32 s58, s58, s46\ns_lshl_b32 s58, s58, 1\ns_add_u32 s58, s58, s{sJ}\ns_lshl_b32 s58, s58, 14")
        A("v_bfe_u32 v15, v0, 2, 3\nv_add_u32 v15, s59, v15\nv_and_b32 v15, 15, v15\nv_lshlrev_b32 v15, 7, v15\nv_lshrrev_b32 v14, 5, v0\nv_lshl_add_u32 v15, v14, 11, v15\nv_add_u32 v252, s58, v15")
        A("s_waitcnt lgkmcnt(0)\nglobal_load_dword v253, v252, s[4:5]\ns_branch L_cons")
        if pfc and pskip: A(PFC)
        A("L_prod:")
    elif fast and pf1==1:
        A("s_cmp_lt_u32 s3, 4\ns_cbranch_scc0 L_prod")
        A("v_lshrrev_b32 v15, 1, v0\ns_lshl_b32 s58, s2, 7\nv_add_u32 v15, s58, v15\nv_lshlrev_b32 v15, 7, v15\ns_waitcnt lgkmcnt(0)\nglobal_load_dword v253, v15, s[4:5]\ns_branch L_cons\nL_prod:")
    else:
        A("s_cmp_lt_u32 s3, 4\ns_cbranch_scc1 L_cons")
    sP,sKX,sKW,sLX,sLW,sRing,sCnt,sT0,sT1=46,47,48,49,50,51,52,53,54
    A(f"s_sub_u32 s{sP}, s3, 4")
    if pprio: A(f"s_setprio {pprio}")
    A("v_lshrrev_b32 v3, 3, v2\nv_and_b32 v4, 7, v2\nv_lshrrev_b32 v5, 4, v2\nv_xor_b32 v4, v4, v5\nv_lshlrev_b32 v4, 4, v4\nv_lshl_add_u32 v3, v3, 11, v4")
    A(f"s_lshl_b32 s{sT0}, s{sMt}, 18\ns_lshl_b32 s{sT1}, s{sP}, 16\ns_add_u32 s{sT0}, s{sT0}, s{sT1}\nv_add_u32 v8, s{sT0}, v3")
    A("v_xor_b32 v9, 64, v8\nv_add_u32 v9, 0x4000, v9\nv_add_u32 v10, 0x8000, v8\nv_add_u32 v11, 0x8000, v9")
    if not rot: A(f"s_mov_b32 s{sKX}, 0\ns_mov_b32 s{sKW}, 0")
    if rot:
        if rot in (1,2,4,5,6,7,8):
            if pj: A(f"s_lshr_b32 s{sT0}, s{sXcd}, 1\ns_lshl_b32 s{sT1}, s{sJ}, 1\ns_add_u32 s{sT0}, s{sT0}, s{sT1}\ns_and_b32 s{sT0}, s{sT0}, 3\ns_lshl_b32 s{sT0}, s{sT0}, 2")
            else: A(f"s_lshr_b32 s{sT0}, s{sXcd}, 1\ns_lshl_b32 s{sT0}, s{sT0}, 2")
            if rot==4: A(f"s_and_b32 s{sT0}, s{sT0}, 8")
        else: A(f"s_mov_b32 s{sT0}, 0")
        if rot>=5: A(f"s_mov_b32 s62, s{sT0}"+("" if tight1 else "\ns_mov_b32 s60, 0\ns_mov_b32 s61, 0"))
        if rot in (7,8): A(f"s_and_b32 s{sT1}, s{sMt}, 1\ns_lshl_b32 s{sT1}, s{sT1}, {rot-7}\ns_add_u32 s{sT0}, s{sT0}, s{sT1}")
        elif rot>=2: A(f"s_and_b32 s{sT1}, s{sMt}, 3\ns_add_u32 s{sT0}, s{sT0}, s{sT1}")
        A(f"s_lshl_b32 s{sKX}, s{sT0}, 7\ns_mul_i32 s{sKW}, s{sT0}, {64*7168}")
    sRX=57
    A(f"s_lshl_b32 s{sLX}, s{sP}, 12\ns_mov_b32 s{sRX}, 0\ns_mov_b32 s{SX+2}, {X_BYTES}\ns_mov_b32 s{SX+3}, 0x20000")
    A(f"s_waitcnt lgkmcnt(0)\ns_mov_b32 s{SX}, s4\ns_and_b32 s{SX+1}, s5, 0xffff")
    def nextk(c):
        if rot in (7,8):
            A(f"s_add_u32 s{c}, s{c}, 1\ns_and_b32 s{sT1}, s{c}, 8\ns_cselect_b32 s{sT0}, 1, 0\ns_xor_b32 s{sT0}, s{sT0}, s{sMt}\ns_and_b32 s{sT0}, s{sT0}, 1\ns_lshl_b32 s{sT0}, s{sT0}, {rot-7}\ns_add_u32 s{sT0}, s{sT0}, s{c}\ns_and_b32 s{sT0}, s{sT0}, 7")
            A(f"s_add_u32 s{sT0}, s{sT0}, s{sT1}\ns_add_u32 s{sT0}, s{sT0}, s62\ns_and_b32 s{sT0}, s{sT0}, 15")
            return
        if rot==6:
            A(f"s_add_u32 s{c}, s{c}, 1\ns_and_b32 s{sT1}, s{c}, 8\ns_cselect_b32 s{sT0}, 3, 0\ns_xor_b32 s{sT0}, s{sT0}, s{sMt}\ns_and_b32 s{sT0}, s{sT0}, 3\ns_add_u32 s{sT0}, s{sT0}, s{c}\ns_and_b32 s{sT0}, s{sT0}, 7")
            A(f"s_add_u32 s{sT0}, s{sT0}, s{sT1}\ns_add_u32 s{sT0}, s{sT0}, s62\ns_and_b32 s{sT0}, s{sT0}, 15")
            return
        A(f"s_add_u32 s{c}, s{c}, 1\ns_add_u32 s{sT0}, s{c}, s{sMt}\ns_and_b32 s{sT0}, s{sT0}, 3\ns_and_b32 s{sT1}, s{c}, 12\ns_add_u32 s{sT0}, s{sT0}, s{sT1}\ns_add_u32 s{sT0}, s{sT0}, s62\ns_and_b32 s{sT0}, s{sT0}, 15")
    def issueW1(part=None):
        inc=[1024,896,1024,896,1024,1280]
        ns=range(7) if part is None else (range(hd) if part==0 else range(hd,7))
        if part!=1: A(f"s_add_u32 m0, s{sRing}, s{sLW}\ns_add_u32 s{sRing}, s{sRing}, {WST}")
        else: A("s_mov_b32 m0, s1\ns_nop 0")
        for n in ns:
            a,o=n>>1,n&1
            if n<6:
                A(f"buffer_load_dwordx4 v{13+o}, {R4(SW1)}, s{sKW} offen offset:{a*128} {w1aux} lds")
                if part==0 and n==hd-1: A(f"s_add_u32 s1, m0, {inc[n]}")
                else:
                    A(f"s_add_u32 m0, m0, {inc[n]}")
                    A("s_nop 0" if n else f"s_cmp_eq_u32 s{sRing}, {WST*3}\ns_cselect_b32 s{sRing}, 0, s{sRing}")
            else:
                A(f"buffer_load_dwordx4 v12, {R4(SW1)}, s{sKW} offen {w1aux} lds\ns_add_u32 s{sKW}, s{sKW}, {64*7168}")
                if rot>=5:
                    nextk(60); A(f"s_mul_i32 s{sKW}, s{sT0}, {64*7168}\ns_add_u32 s{sKW}, s{sKW}, s59")
                elif rot: A(f"s_cmp_eq_u32 s{sKW}, s58\ns_cselect_b32 s{sKW}, s59, s{sKW}")
    def issueX():
        A(f"s_add_u32 m0, s{sRX}, s{sLX}\ns_add_u32 s{sRX}, s{sRX}, 16384")
        for n in range(4):
            A(f"buffer_load_dwordx4 v{8+n}, {R4(SX)}, s{sKX} offen {xaux} lds")
            if n<3: A("s_add_u32 m0, m0, 1024\n"+("s_nop 0" if n else f"s_and_b32 s{sRX}, s{sRX}, 0xffff"))
        if tight1: pass
        elif rot>=5:
            nextk(61); A(f"s_lshl_b32 s{sKX}, s{sT0}, 7")
        else: A(f"s_add_u32 s{sKX}, s{sKX}, 128\ns_and_b32 s{sKX}, s{sKX}, 2047")
    stamp(1)
    issueX()
    A(f"s_and_b32 s{sT0}, s{sFt8}, 1\ns_lshl_b32 s{sT1}, s{sT0}, 6")
    A("v_bfe_u32 v3, v2, 2, 3\nv_mul_u32_u24 v3, 7168, v3\nv_lshrrev_b32 v5, 5, v2\nv_and_b32 v4, 3, v2\nv_lshlrev_b32 v4, 4, v4")
    A(f"v_lshl_add_u32 v6, v5, 6, v3\nv_add3_u32 v13, v6, v4, s{sT1}\nv_xor_b32 v14, 32, v13\nv_add_u32 v14, {8*7168}, v14")
    A(f"s_xor_b32 s{sT0}, s{sT0}, 1\ns_mul_i32 s{sT0}, s{sT0}, 384\nv_lshrrev_b32 v3, 2, v2\nv_mul_u32_u24 v3, 7168, v3\nv_lshlrev_b32 v5, 5, v5\nv_xor_b32 v4, v4, v5\nv_add3_u32 v12, v3, v4, s{sT0}")
    A(f"s_mul_i32 s59, s{sP}, {16*7168}\ns_mul_i32 s{sT0}, s{sFt}, 448\ns_add_u32 s59, s59, s{sT0}\ns_add_u32 s{sKW}, s{sKW}, s59"+("" if tight1 else f"\ns_add_u32 s58, s59, {1024*7168}"))
    A(f"s_mul_i32 s{sLW}, s{sP}, 7168\ns_add_u32 s{sLW}, s{sLW}, {WOFF}\ns_mov_b32 s{sRing}, {2*WST}")
    srd(A,SW1,6,W_BYTES)
    if la1 or tearly: issueW1(0)
    else: issueW1(); issueX(); issueW1()
    srd(A,SW2,8,W_BYTES); srd(A,SWS,14,0x10000000)
    if diag==5: srd(A,SD,12,256)
    sHp,sHalf=55,56
    if tlb:
        A(f"s_cmp_lt_u32 s2, {tlb}\ns_cbranch_scc0 P1_ntlb\ns_lshl_b32 s{sT0}, s{sP}, 21")
        A(f"s_add_u32 s4, s8, s{sT0}\ns_addc_u32 s5, s9, 0\ns_load_dword s0, s[4:5], 0")
        A(f"s_lshr_b32 s{sT1}, s{sT0}, 1\ns_add_u32 s4, s10, s{sT1}\ns_addc_u32 s5, s11, 0\ns_load_dword s0, s[4:5], 0")
        for b in (0, 8<<20, 16<<20, P_OFF, F_OFF):
            A(f"s_add_u32 s{sT1}, s{sT0}, {b}\ns_add_u32 s4, s14, s{sT1}\ns_addc_u32 s5, s15, 0\ns_load_dword s0, s[4:5], 0")
        A("P1_ntlb:")
    if tl0:
        A(f"s_cmp_lt_u32 s2, {tlw}\ns_cbranch_scc0 P1_nt0\ns_lshl_b32 s{sT0}, s{sP}, 21\ns_add_u32 s{sT0}, s{sT0}, {P_OFF}\ns_cmp_eq_u32 s{sP}, 3\ns_cselect_b32 s{sT0}, {F_OFF}, s{sT0}")
        A(f"s_add_u32 s4, s14, s{sT0}\ns_addc_u32 s5, s15, 0\ns_load_dword s0, s[4:5], 0\nP1_nt0:")
    A(f"s_lshr_b32 s4, s{sLid}, 3\ns_lshl_b32 s4, s4, 10\ns_add_u32 s4, s4, {F_OFF+fch*128}\ns_add_u32 s4, s14, s4\ns_addc_u32 s5, s15, 0")
    A(f"s_lshl_b32 s6, s{sMt}, 4\ns_add_u32 s6, s12, s6\ns_addc_u32 s7, s13, 0")
    def spf():
        if pf2 not in (3,4): return
        for k in range(4): A(f"s_load_dword s12, s[8:9], {k*64}")
        A(f"s_add_u32 s13, s13, 1\ns_and_b32 s{sT0}, s13, 7\ns_cselect_b32 s{sT0}, 0, {131072-2048}\ns_add_u32 s{sT0}, s{sT0}, 256\ns_add_u32 s8, s8, s{sT0}\ns_addc_u32 s9, s9, 0")
    if pf2 in (3,4):
        A(f"s_lshl_b32 s12, s2, 2\ns_add_u32 s12, s12, s{sP}")
        A(f"s_lshr_b32 s{sT0}, s12, 6\ns_mul_i32 s13, s{sT0}, 7\ns_and_b32 s{sT0}, s{sT0}, 1")
        A(f"s_xor_b32 s{sT1}, s{sT0}, 1\ns_mul_i32 s{sT1}, s{sT1}, 6\ns_add_u32 s{sT1}, s{sT1}, s13\ns_lshl_b32 s{sT1}, s{sT1}, 16\ns_and_b32 s14, s12, 63\ns_lshl_b32 s14, s14, 10\ns_add_u32 s{sT1}, s{sT1}, s14")
        A(f"s_add_u32 s14, s8, s{sT1}\ns_addc_u32 s15, s9, 0")
        A(f"s_add_u32 s13, s13, s{sT0}\ns_lshl_b32 s13, s13, 16\ns_and_b32 s12, s12, 63\ns_lshl_b32 s12, s12, 11\ns_add_u32 s13, s13, s12\ns_add_u32 s8, s8, s13\ns_addc_u32 s9, s9, 0\ns_mov_b32 s13, 0")
    A(f"s_lshr_b32 s{sHp}, s{sP}, 1\ns_and_b32 s{sHalf}, s{sP}, 1")
    A("v_subrev_u32 v5, 3, v2\nv_mul_u32_u24 v3, 37, v5\nv_lshrrev_b32 v3, 8, v3\nv_mul_u32_u24 v4, 7, v3\nv_sub_u32 v4, v5, v4")
    if skew2==3: A(f"v_add_u32 v6, s{sMt}, v3\nv_and_b32 v6, 3, v6\nv_add_u32 v4, v6, v4\nv_subrev_u32 v6, 7, v4\nv_min_u32 v4, v4, v6")
    elif skew2: A(f"s_and_b32 s{sT0}, s{sMt}, 3\ns_mul_i32 s{sT0}, s{sT0}, {3-skew2}\nv_add_u32 v4, s{sT0}, v4\nv_subrev_u32 v6, 7, v4\nv_min_u32 v4, v4, v6")
    A("v_add_u32 v4, 1, v4")
    A("v_cmp_gt_u32 vcc, 3, v2\ns_nop 1\nv_cndmask_b32 v3, v3, v2, vcc\nv_cndmask_b32 v4, v4, 0, vcc")
    A(f"v_add_u32 v4, s{sFt8}, v4\nv_and_b32 v4, 7, v4\nv_and_b32 v6, 1, v4\nv_mul_u32_u24 v4, 7, v4\nv_lshl_add_u32 v4, v3, 1, v4\nv_add3_u32 v4, v4, v6, s{sHp}")
    A(f"s_and_b32 s{sT0}, s{sMt}, {3 if skew2 else 0}\nv_add_u32 v5, s{sT0}, v2\nv_and_b32 v5, 3, v5\nv_mul_u32_u24 v5, 14, v5\nv_add3_u32 v5, v5, 6, s{sHp}")
    A("v_cmp_gt_u32 vcc, 24, v2\ns_nop 1\nv_cndmask_b32 v4, v5, v4, vcc\nv_and_b32 v4, 63, v4")
    A(f"s_mul_i32 s{sT0}, s{sJ}, 56\nv_add_u32 v4, s{sT0}, v4")
    A(f"s_mul_i32 s{sT0}, s{sMt}, {112*CH}\ns_mul_i32 s{sT1}, s{sHalf}, {QS}\ns_add_u32 s{sT0}, s{sT0}, s{sT1}")
    A(f"v_mul_u32_u24 v20, {CH}, v4\nv_add_u32 v20, s{sT0}, v20")
    A(f"s_lshl_b32 s{sT0}, s{sHalf}, 15\ns_lshl_b32 s{sT1}, s{sHalf}, 13\nv_mov_b32 v5, s{sT0}\nv_mov_b32 v6, s{sT1}\nv_cndmask_b32 v5, v6, v5, vcc")
    A(f"v_lshl_add_u32 v21, v4, 16, v5\ns_lshl_b32 s{sT0}, s{sDt}, 8\nv_add_u32 v21, s{sT0}, v21")
    A("v_and_b32 v4, 3, v2\nv_bfe_u32 v5, v2, 4, 1\nv_lshlrev_b32 v6, 1, v5\nv_xor_b32 v4, v4, v6\nv_lshlrev_b32 v4, 4, v4")
    A("v_lshrrev_b32 v6, 5, v2\nv_lshl_add_u32 v4, v6, 6, v4")
    A("v_bfe_u32 v6, v2, 2, 3\nv_lshl_add_u32 v22, v6, 11, v4\nv_add_u32 v23, 0x4000, v22")
    A("v_lshl_add_u32 v24, v5, 13, v22\nv_add_u32 v25, 0x8000, v24")
    fragoffs(26)
    if tight1:
        assert rot==8 and tearly==2 and not nsh and not la1 and spub and hsi and not two
        A(f"v_bfe_u32 v3, v2, 3, 1\nv_xor_b32 v3, s{sMt}, v3\nv_and_b32 v3, 1, v3\nv_lshl_add_u32 v3, v3, 1, v2\nv_and_b32 v3, 7, v3\nv_and_b32 v4, 8, v2\nv_add3_u32 v3, v3, v4, s62\nv_and_b32 v3, 15, v3")
        A(f"v_lshlrev_b32 v30, 7, v3\nv_mul_u32_u24 v31, {64*7168}, v3\nv_add_u32 v31, s59, v31")
    if diag==5: stamp(8)
    if tight1:
        xl=[f"buffer_load_dwordx4 v{8+n}, {R4(SX)}, s{sKX} offen {xaux} lds" for n in range(4)]
        wl=[f"buffer_load_dwordx4 v{13+(n&1)}, {R4(SW1)}, s{sKW} offen offset:{(n>>1)*128} {w1aux} lds" for n in range(6)]+[f"buffer_load_dwordx4 v12, {R4(SW1)}, s{sKW} offen {w1aux} lds"]
        inc=[1024,896,1024,896,1024,1280]
        def Wt(): A(f"s_mov_b32 m0, s1\ns_nop 0\n{wl[4]}\ns_add_u32 m0, m0, {inc[4]}\ns_nop 0\n{wl[5]}\ns_add_u32 m0, m0, {inc[5]}\ns_nop 0\n{wl[6]}")
        def Xs(fill):
            A(f"s_add_u32 m0, s{sRX}, s{sLX}\ns_add_u32 s{sRX}, s{sRX}, 16384")
            for n in range(4):
                A(xl[n])
                if n<3: A(f"s_add_u32 m0, m0, 1024\n{fill[n]}")
        assert hd==4
        andx=f"s_and_b32 s{sRX}, s{sRX}, 0xffff"
        A(f"v_readlane_b32 s{sKX}, v30, 1")
        Wt(); Xs([f"v_readlane_b32 s{sKW}, v31, 1", andx, "s_nop 0"])
        issueW1(0)
        A(f"v_readlane_b32 s{sKX}, v30, 2\ns_waitcnt vmcnt(8)")
        stamp(2)
        A("s_barrier")
        Wt(); Xs([f"v_readlane_b32 s{sKW}, v31, 2", andx, f"s_mov_b32 s{sCnt}, 2"])
        if pp1>=0: A(f"s_setprio {pp1}")
        A(f"s_mov_b32 s61, {(1<<(ack+2+3))|(1<<(hsi+3))|((1<<tl) if tl else 0)}\ns_add_u32 m0, s{sRing}, s{sLW}\ns_branch P1_w")
        A(f".p2align {al}\nP1_loop:")
        A(f"s_bitcmp1_b32 s61, s{sCnt}\ns_cbranch_scc1 P1_hk\nP1_hkb:")
        Xs([f"v_readlane_b32 s{sKW}, v31, s{sCnt}", andx, "s_nop 0"])
        A(f"s_add_u32 m0, s{sRing}, s{sLW}\ns_waitcnt vmcnt(15)\ns_barrier\nP1_w:")
        fill=[f"s_add_u32 s{sCnt}, s{sCnt}, 1", f"s_add_u32 s{sRing}, s{sRing}, {WST}", f"v_readlane_b32 s{sKX}, v30, s{sCnt}",
              f"s_cmp_eq_u32 s{sRing}, {WST*3}\ns_cselect_b32 s{sRing}, 0, s{sRing}", "s_nop 0", f"s_cmp_lt_u32 s{sCnt}, 16"]
        for n in range(7):
            A(wl[n])
            if n<6: A(f"s_add_u32 m0, m0, {inc[n]}\n{fill[n]}")
        A("s_cbranch_scc1 P1_loop\ns_branch P1_done")
        A("P1_hk:")
        if tl:
            A(f"s_cmp_eq_u32 s{sCnt}, {tl}\ns_cbranch_scc0 P1_hk0\ns_cmp_lt_u32 s2, {tlw}\ns_cbranch_scc0 P1_hkb\ns_lshl_b32 s{sT0}, s{sP}, 21")
            A(f"s_add_u32 s12, s8, s{sT0}\ns_addc_u32 s13, s9, 0\ns_load_dword s0, s[12:13], 0")
            A(f"s_lshr_b32 s{sT1}, s{sT0}, 1\ns_add_u32 s12, s10, s{sT1}\ns_addc_u32 s13, s11, 0\ns_load_dword s0, s[12:13], 0")
            for b in (0, 8<<20, 16<<20):
                A(f"s_add_u32 s{sT1}, s{sT0}, {b}\ns_add_u32 s12, s14, s{sT1}\ns_addc_u32 s13, s15, 0\ns_load_dword s0, s[12:13], 0")
            A("s_branch P1_hkb\nP1_hk0:")
        A(f"s_cmp_eq_u32 s{sCnt}, {hsi+3}\ns_cbranch_scc0 P1_hk1\ns_cmp_eq_u32 s{sP}, 0\ns_cbranch_scc0 P1_hkb\ns_load_dwordx4 s[28:31], s[6:7], 0 {hsglc}\ns_branch P1_hkb")
        if lead: A(f"P1_hk1:\ns_lshl_b32 s1, s{sFt}, 2\ns_add_u32 s1, s1, s{sP}\ns_cmp_eq_u32 s1, 2\ns_cbranch_scc0 P1_hkb\ns_mov_b32 s1, 1\ns_atomic_add s1, s[6:7], 0\ns_branch P1_hkb")
        else: A(f"P1_hk1:\ns_cmp_eq_u32 s{sP}, 2\ns_cbranch_scc0 P1_hkb\ns_and_b32 s1, s{sFt}, 3\ns_lshl_b32 s1, s1, 3\ns_lshl_b32 s1, 1, s1\ns_and_b32 s{sT0}, s{sFt}, 12\ns_atomic_or s1, s[6:7], s{sT0}\ns_branch P1_hkb")
        A("P1_done:")
        if ppt>=0: A(f"s_setprio {ppt}")
        pad()
    else:
        if la1:
            A(f"s_mov_b32 s{sCnt}, -1\ns_branch P1_in")
            A(f"P1_loop:\ns_waitcnt vmcnt({4+hd})")
            if diag: A(f"s_cmp_eq_u32 s{sCnt}, 0\ns_cbranch_scc0 P1_ns"); stamp(2); A("P1_ns:")
            A("s_barrier\nP1_in:")
            issueW1(1); issueX(); issueW1(0)
        else:
            if nsh:
                A(f"s_mov_b32 s{sCnt}, -1\ns_branch P1_shin\nP1_sh:\ns_waitcnt vmcnt({4+hd})")
                if diag: A(f"s_cmp_eq_u32 s{sCnt}, 0\ns_cbranch_scc0 P1_ns"); stamp(2); A("P1_ns:")
                A("s_barrier\nP1_shin:")
                issueW1(1); issueX()
                A(f"s_cmp_eq_u32 s{sCnt}, {nsh}\ns_cbranch_scc1 P1_in")
                issueW1(0)
                A(f"s_add_u32 s{sCnt}, s{sCnt}, 1\ns_branch P1_sh")
            else:
                if tearly==1: issueW1(1); issueX(); issueW1()
                if tearly==2: issueW1(1); issueX(); issueW1(0)
                A(f"s_waitcnt vmcnt({4+hd if tearly==2 else 11})")
                stamp(2)
                A("s_barrier")
                if tearly==2: issueW1(1)
                issueX()
                A(f"s_mov_b32 s{sCnt}, 0\ns_branch P1_in")
            A("P1_loop:\ns_waitcnt vmcnt(15)\ns_barrier\nP1_in:")
            issueW1(); issueX()
        if spub and two:
            A(f"s_lshl_b32 s{sT0}, s{sP}, 8\ns_add_u32 s{sT0}, s{sT0}, s{sCnt}\ns_cmp_eq_u32 s{sT0}, {512+4}\ns_cselect_b32 s0, 1, 0\ns_cmp_eq_u32 s{sT0}, {512+ack+2}\ns_cselect_b32 s0, 2, s0\ns_cmp_eq_u32 s0, 0\ns_cbranch_scc1 P1_npub")
            A(f"s_and_b32 s{sT0}, s{sFt}, 3\ns_lshl_b32 s{sT0}, s{sT0}, 3\ns_lshl_b32 s0, s0, s{sT0}\ns_and_b32 s{sT0}, s{sFt}, 12\ns_atomic_or s0, s[6:7], s{sT0}\nP1_npub:")
        elif spub:
            A(f"s_lshl_b32 s{sT0}, s{sP}, 8\ns_add_u32 s{sT0}, s{sT0}, s{sCnt}\ns_cmp_eq_u32 s{sT0}, {512+ack+2}\ns_cbranch_scc0 P1_npub")
            A(f"s_and_b32 s0, s{sFt}, 3\ns_lshl_b32 s0, s0, 3\ns_lshl_b32 s0, 1, s0\ns_and_b32 s{sT0}, s{sFt}, 12\ns_atomic_or s0, s[6:7], s{sT0}\nP1_npub:")
        if hsi:
            assert pf2 not in (3,4)
            A(f"s_lshl_b32 s{sT0}, s{sP}, 8\ns_add_u32 s{sT0}, s{sT0}, s{sCnt}\ns_cmp_eq_u32 s{sT0}, {hsi}\ns_cbranch_scc0 P1_nh\ns_load_dwordx4 s[28:31], s[6:7], 0 {hsglc}\nP1_nh:")
        if pf2==4:
            spf()
            A(f"s_cmp_lt_u32 s{sCnt}, 3\ns_cbranch_scc0 P1_nspf")
            spf()
            A("P1_nspf:")
        if pf2==3:
            A(f"s_sub_u32 s{sT0}, s{sCnt}, {spa}\ns_cmp_lt_u32 s{sT0}, {spb-spa}\ns_cbranch_scc0 P1_nspf")
            spf()
            A("P1_nspf:")
        A(f"s_add_u32 s{sCnt}, s{sCnt}, 1\ns_cmp_lt_u32 s{sCnt}, {14 if la1 else 13}\ns_cbranch_scc1 P1_loop")
        pad()
        A(f"s_waitcnt vmcnt({4+hd if la1 else 15})\ns_barrier")
        issueW1(1 if la1 else None)
    sW,sH,sSlot,sLW2,sLH=47,48,51,50,49
    A(f"s_lshl_b32 s{sLH}, s{sP}, 12\ns_add_u32 s{sLW2}, s{sLH}, 65536\ns_mov_b32 s{sCnt}, 0\ns_mov_b32 s{sSlot}, 0")
    def issueW():
        A(f"s_add_u32 m0, s{sLW2}, s{sSlot}\ns_nop 0")
        for n in range(4):
            o,tb=n>>1,n&1
            A(f"buffer_load_dwordx4 v{22+o}, {R4(SW2)}, s{sW} offen offset:{tb*128} {w2aux} lds")
            if n<3: A(f"s_add_u32 m0, m0, {896 if tb==0 else 1024+128}\ns_nop 0")
    def issueH():
        A(f"s_add_u32 m0, s{sLH}, s{sSlot}\ns_nop 0")
        for n in range(4):
            A(f"buffer_load_dwordx4 v{26+n}, {R4(SWS)}, s{sH} offen sc1 lds")
            if n<3: A("s_add_u32 m0, m0, 1024\ns_nop 0")
    A(f"v_readlane_b32 s{sW}, v21, 0")
    if not la1: A("s_waitcnt vmcnt(7)\ns_barrier")
    if not hsi: A(f"s_cmp_eq_u32 s{sP}, 0\ns_cbranch_scc0 P2_nh\ns_load_dwordx4 s[28:31], s[6:7], 0 glc\nP2_nh:")
    A("s_waitcnt vmcnt(0)\ns_barrier")
    def nextW(): A(f"s_add_u32 s{sCnt}, s{sCnt}, 1\ns_add_u32 s{sSlot}, s{sSlot}, 16384\nv_readlane_b32 s{sW}, v21, s{sCnt}\ns_nop 2")
    if ab:
        issueW(); pad()
    elif w2e:
        A("s_branch P2_w0\nP2_w:"); nextW(); A("P2_w0:"); issueW()
        A(f"s_cmp_lt_u32 s{sCnt}, {w2e}\ns_cbranch_scc1 P2_w")
        A("s_barrier")
        pad()
        A("P2_w2:"); nextW(); issueW()
        A(f"s_cmp_lt_u32 s{sCnt}, 3\ns_cbranch_scc1 P2_w2")
    else:
        issueW()
        A("s_barrier")
        pad()
        A("P2_w:"); nextW(); issueW()
        A(f"s_cmp_lt_u32 s{sCnt}, {5 if w6==1 else 3}\ns_cbranch_scc1 P2_w")
    A(f"s_cmp_eq_u32 s{sP}, 0\ns_cbranch_scc0 P2_hsd\ns_mov_b32 s58, 0\ns_branch P2_hsw")
    A("P2_hs:\ns_load_dwordx4 s[28:31], s[6:7], 0 glc\ns_add_u32 s58, s58, 1\nP2_hsw:\ns_waitcnt lgkmcnt(0)")
    if lead: A(f"s_cmp_ge_u32 s58, {SPIN}\ns_cbranch_scc1 P2_hsd\ns_cmp_eq_u32 s28, 0\ns_cbranch_scc1 P2_hs\nP2_hsd:")
    else:
        A(f"s_and_b32 s28, s28, s29\ns_and_b32 s30, s30, s31\ns_and_b32 s28, s28, s30\ns_and_b32 s28, s28, 0x01010101\ns_cmp_ge_u32 s58, {SPIN}\ns_cbranch_scc1 P2_hsd\ns_cmp_eq_u32 s28, 0x01010101\ns_cbranch_scc0 P2_hs\nP2_hsd:")
    A(f"s_lshr_b32 s59, s{sLid}, 3\ns_lshl_b32 s59, s59, 10\ns_add_u32 s59, s59, {F_OFF+fch*128}\ns_lshl_b32 s{sT0}, s{sFt8}, 2")
    A(f"v_mov_b32 v5, {OOB}\nv_mov_b32 v6, s{sT0}\nv_cmp_eq_u32 vcc, 0, v2\nv_and_b32 v3, 7, v2\nv_lshlrev_b32 v3, 2, v3\nv_cndmask_b32 v6, v5, v6, vcc\nv_mov_b32 v5, 1")
    A(f"v_readlane_b32 s{sH}, v20, 3\ns_waitcnt vmcnt({0 if ab else (20 if w6==1 else 12)})")
    stamp(3)
    A("s_barrier")
    stamp(6)
    A(f"s_cmp_eq_u32 s{sP}, 1\ns_cbranch_scc0 P2_nf\nbuffer_store_dword v5, v6, {R4(SWS)}, s59 offen sc1\ns_nop 1\nv_mov_b32 v5, 7\nP2_nf:")
    if ab:
        A("P2_w:"); nextW(); issueW()
        A(f"s_cmp_lt_u32 s{sCnt}, 2\ns_cbranch_scc1 P2_w\ns_barrier")
        nextW(); issueW()
    if w6==2:
        A("P2_w45:"); nextW(); issueW()
        A(f"s_cmp_lt_u32 s{sCnt}, 5\ns_cbranch_scc1 P2_w45")
    if la2: A("s_mov_b32 s62, 0")
    A(f"s_cmp_eq_u32 s{sP}, 0\ns_cbranch_scc1 P2_p0\ns_waitcnt vmcnt({8 if w6==2 else 0})\ns_branch P2_go\nP2_p0:\ns_mov_b32 s58, 0")
    if pdelay: A(f"s_mov_b32 s16, 0\nP2_dl:\ns_add_u32 s16, s16, 1\ns_cmp_lt_u32 s16, {pdelay}\ns_cbranch_scc1 P2_dl")
    stamp(7)
    if vpoll:
        A(f"P2_l1:\nbuffer_load_dword v4, v3, {R4(SWS)}, s59 offen sc1\ns_add_u32 s58, s58, 1\ns_waitcnt vmcnt(0)\nv_cmp_eq_u32 vcc, 0, v4")
        spin_tail("P2_l1")
    else:
        A("P2_l1:\ns_load_dwordx8 s[16:23], s[4:5], 0 glc\ns_add_u32 s58, s58, 1\ns_waitcnt lgkmcnt(0)")
        A("s_and_b64 s[16:17], s[16:17], s[18:19]\ns_and_b64 s[20:21], s[20:21], s[22:23]\ns_and_b64 s[16:17], s[16:17], s[20:21]\ns_and_b32 s16, s16, s17")
        A(f"s_cmp_ge_u32 s58, {SPIN}\ns_cbranch_scc1 P2_rdy\ns_bitcmp1_b32 s16, 0\ns_cbranch_scc1 P2_rdy")
        if la2: A(f"s_cmp_eq_u32 s58, {npoll}\ns_cbranch_scc0 P2_l1\ns_waitcnt vmcnt(0)\ns_barrier\ns_mov_b32 s62, 1")
        A("s_branch P2_l1")
    A("P2_rdy:")
    if diag and diag!=5: stamp(9); A("s_mov_b32 s80, s58")
    A(f"s_mov_b32 m0, 49152\ns_mov_b32 s58, 0")
    A("P2_h3:")
    for n in range(4): A(f"buffer_load_dwordx4 v{26+n}, {R4(SWS)}, s{sH} offen sc1 lds\ns_add_u32 m0, m0, 1024\n"+("s_nop 0" if n<3 else f"s_add_u32 s{sH}, s{sH}, {QS}"))
    A("s_add_u32 s58, s58, 1\ns_cmp_lt_u32 s58, 4\ns_cbranch_scc1 P2_h3")
    A("P2_go:")
    if pp2>=0: A(f"s_setprio {pp2}")
    pad()
    stamp(4)
    PL=f"buffer_load_dword v4, v3, {R4(SWS)}, s59 offen sc1"
    POOL=[]
    if tight2:
        assert not la2 and not two and pf2 not in (3,4) and l1epi==3
        mask=(1<<(l1st+5))|(1<<9)|(1<<(8 if sl2 else 10))|(1<<(21 if w6 else 23))|(((1<<14)|(1<<20)) if lead else 0)
        wl=[f"buffer_load_dwordx4 v{22+(n>>1)}, {R4(SW2)}, s{sW} offen offset:{(n&1)*128} {w2aux} lds" for n in range(4)]
        hl=[f"buffer_load_dwordx4 v{26+n}, {R4(SWS)}, s{sH} offen sc1 lds" for n in range(4)]
        if w6:
            sWs=62
            A(f"s_mov_b32 s{sCnt}, 4\ns_mov_b32 s57, {mask}\nv_readlane_b32 s{sW}, v21, 6\ns_mov_b32 s{sSlot}, 0\ns_mov_b32 s{sWs}, 0\ns_mov_b32 m0, s{sLW2}\ns_branch P2_bar")
            A(f".p2align {al}\nP2_loop:")
            A(f"s_bitcmp1_b32 s57, s{sCnt}\ns_cbranch_scc1 P2_hk\nP2_hkb:")
            def Hs(f):
                A(f"s_add_u32 m0, s{sLH}, s{sSlot}\ns_add_u32 s{sCnt}, s{sCnt}, 1")
                A(f"{hl[0]}\ns_add_u32 m0, m0, 1024\n{f[0]}")
                A(f"{hl[1]}\ns_add_u32 m0, m0, 1024\ns_add_u32 s{sSlot}, s{sSlot}, 16384")
                A(f"{hl[2]}\ns_add_u32 m0, m0, 1024\ns_and_b32 s{sSlot}, s{sSlot}, 0xffff")
                A(hl[3])
            Hs([f"v_readlane_b32 s{sW}, v21, s{sT1}"])
            A(f"s_add_u32 m0, s{sLW2}, s{sWs}\nP2_bar:\ns_waitcnt vmcnt(16)\ns_barrier")
            A(f"s_cmp_lt_u32 s{sCnt}, 26\ns_cbranch_scc0 P2_out")
            A(f"{wl[0]}\ns_add_u32 m0, m0, 896\nv_readlane_b32 s{sH}, v20, s{sCnt}")
            A(f"{wl[1]}\ns_add_u32 m0, m0, 1152\ns_add_u32 s{sWs}, s{sWs}, 16384")
            A(f"{wl[2]}\ns_add_u32 m0, m0, 896\ns_add_u32 s{sT1}, s{sCnt}, 3")
            A(f"{wl[3]}\ns_cmp_eq_u32 s{sWs}, {6*16384}\ns_cselect_b32 s{sWs}, 0, s{sWs}\ns_branch P2_loop")
        else:
            A(f"s_mov_b32 s{sCnt}, 4\ns_mov_b32 s57, {mask}\nv_readlane_b32 s{sW}, v21, 4\ns_mov_b32 s{sSlot}, 0\ns_mov_b32 m0, s{sLW2}\ns_branch P2_bar")
            A(f".p2align {al}\nP2_loop:")
            A(f"s_bitcmp1_b32 s57, s{sCnt}\ns_cbranch_scc1 P2_hk\nP2_hkb:")
            A(f"s_add_u32 m0, s{sLH}, s{sSlot}\ns_add_u32 s{sCnt}, s{sCnt}, 1")
            A(f"{hl[0]}\ns_add_u32 m0, m0, 1024\nv_readlane_b32 s{sW}, v21, s{sCnt}")
            A(f"{hl[1]}\ns_add_u32 m0, m0, 1024\ns_add_u32 s{sSlot}, s{sSlot}, 16384")
            A(f"{hl[2]}\ns_add_u32 m0, m0, 1024\ns_and_b32 s{sSlot}, s{sSlot}, 0xffff")
            A(f"{hl[3]}\ns_add_u32 m0, s{sLW2}, s{sSlot}\nP2_bar:\ns_waitcnt vmcnt(16)\ns_barrier")
            A(f"s_cmp_lt_u32 s{sCnt}, {24 if wsplit else 28}\ns_cbranch_scc0 P2_out")
            A(f"{wl[0]}\ns_add_u32 m0, m0, 896\nv_readlane_b32 s{sH}, v20, s{sCnt}")
            A(f"{wl[1]}\ns_add_u32 m0, m0, 1152\ns_nop 0")
            A(f"{wl[2]}\ns_add_u32 m0, m0, 896\ns_nop 0")
            A(f"{wl[3]}\ns_branch P2_loop")
        A("P2_hk:"); pad()
        A(f"s_cmp_eq_u32 s{sCnt}, {21 if w6 else 23}\ns_cbranch_scc0 P2_hk1\nv_mov_b32 v22, v24\nv_mov_b32 v23, v25\ns_branch P2_hkb")
        A("P2_hk1:")
        if lead:
            A(f"s_cmp_lt_u32 s{sCnt}, 14\ns_cbranch_scc1 P2_hk1a\ns_cmp_eq_u32 s{sP}, 0\ns_cbranch_scc0 P2_hkb\ns_mov_b32 s58, 0\ns_cmp_eq_u32 s{sCnt}, 20\ns_cbranch_scc1 P2_pw")
            A(f"s_xor_b32 s4, s4, 1024\ns_xor_b32 s{sT0}, s{sFt8}, {dswz}\ns_lshl_b32 s{sT0}, s{sT0}, 2\ns_add_u32 s4, s4, s{sT0}\ns_load_dword s28, s[4:5], 0 glc\ns_branch P2_hkb")
            A(f"P2_pl:\ns_load_dword s28, s[4:5], 0 glc\ns_add_u32 s58, s58, 1\nP2_pw:\ns_waitcnt lgkmcnt(0)\ns_cmp_ge_u32 s58, {SPIN}\ns_cbranch_scc1 P2_hkb\ns_cmp_eq_u32 s28, 0\ns_cbranch_scc1 P2_pl\ns_branch P2_hkb\nP2_hk1a:")
        if sl2:
            assert l1st+5<8
            A(f"s_cmp_lt_u32 s{sCnt}, 8\ns_cbranch_scc0 P2_hk2\ns_cmp_eq_u32 s{sP}, 1\ns_cbranch_scc0 P2_hkb\nbuffer_store_dword v5, v6, {R4(SWS)}, s59 offen sc1\ns_branch P2_hkb")
            A(f"P2_hk2:\ns_cmp_eq_u32 s{sP}, 0\ns_cbranch_scc0 P2_hkb\ns_mov_b32 s58, 0\ns_cmp_eq_u32 s{sCnt}, 9\ns_cbranch_scc1 P2_l2w\ns_load_dwordx8 s[16:23], s[4:5], 0 glc\ns_branch P2_hkb")
            A("P2_l2:\ns_load_dwordx8 s[16:23], s[4:5], 0 glc\ns_add_u32 s58, s58, 1\nP2_l2w:\ns_waitcnt lgkmcnt(0)")
            A("s_and_b64 s[16:17], s[16:17], s[18:19]\ns_and_b64 s[20:21], s[20:21], s[22:23]\ns_and_b64 s[16:17], s[16:17], s[20:21]\ns_and_b32 s16, s16, s17")
            A(f"s_cmp_ge_u32 s58, {SPIN}\ns_cbranch_scc1 P2_hkb\ns_cmp_eq_u32 s16, 7\ns_cbranch_scc0 P2_l2")
        else:
            A(f"s_cmp_eq_u32 s{sCnt}, 9\ns_cbranch_scc0 P2_hk2\n{PL}\ns_branch P2_hkb")
            A(f"P2_hk2:\ns_cmp_eq_u32 s{sCnt}, 10\ns_cbranch_scc1 P2_hk3\ns_cmp_eq_u32 s{sP}, 1\ns_cbranch_scc0 P2_hkb\nbuffer_store_dword v5, v6, {R4(SWS)}, s59 offen sc1\ns_branch P2_hkb")
            A("P2_hk3:\ns_waitcnt vmcnt(8)\nv_cmp_gt_u32 vcc, 7, v4\ns_mov_b32 s58, 0\ns_nop 3\ns_cbranch_vccz P2_hkb")
            A(f"P2_l2:\n{PL}\ns_add_u32 s58, s58, 1\ns_waitcnt vmcnt(0)\nv_cmp_gt_u32 vcc, 7, v4")
            spin_tail("P2_l2")
        A("s_branch P2_hkb\nP2_out:")
        if wsplit:
            assert not w6
            def Wh(q,keep):
                A(f"v_readlane_b32 s{sW}, v21, {q}\ns_add_u32 m0, s{9 if keep else 8}, {(q&3)*16384}\ns_nop 2\ns_add_u32 s{sW}, s{sW}, s{11 if keep else 10}")
                A(f"buffer_load_dwordx4 v22, {R4(SW2)}, s{sW} offen {w2aux} lds\ns_add_u32 m0, m0, 2048\ns_nop 0\nbuffer_load_dwordx4 v23, {R4(SW2)}, s{sW} offen {w2aux} lds")
            def Hq(q):
                A(f"s_add_u32 m0, s{sLH}, {(q&3)*16384}\ns_nop 0")
                for n in range(4):
                    A(hl[n])
                    if n<3: A("s_add_u32 m0, m0, 1024\ns_nop 0")
            A(f"s_lshl_b32 s11, s{sJ}, 7\ns_xor_b32 s10, s11, 128\ns_lshl_b32 s9, s{sJ}, 10\ns_xor_b32 s8, s9, 1024\ns_add_u32 s8, s8, s{sLW2}\ns_add_u32 s9, s9, s{sLW2}")
            for q,w in ((24,14),(25,12),(26,12),(27,12)):
                A(f"v_readlane_b32 s{sH}, v20, {q}"); Wh(q,0); Hq(q)
                if q==25: pad()
                A(f"s_waitcnt vmcnt({w})\ns_barrier")
            Wh(24,1); Wh(25,1); A("s_waitcnt vmcnt(10)\ns_barrier")
            Wh(26,1); Wh(27,1); A("s_waitcnt vmcnt(8)\ns_barrier\ns_waitcnt vmcnt(6)\ns_barrier\ns_waitcnt vmcnt(0)\ns_barrier")
        if w6:
            A(f"v_readlane_b32 s{sH}, v20, 26\ns_nop 2"); Hs(["s_nop 0"])
            A(f"v_readlane_b32 s{sH}, v20, 27\ns_waitcnt vmcnt(12)\ns_barrier\ns_nop 0"); Hs(["s_nop 0"])
            A("s_waitcnt vmcnt(8)\ns_barrier\ns_waitcnt vmcnt(4)\ns_barrier\ns_waitcnt vmcnt(0)\ns_barrier")
    else:
        A(f"s_mov_b32 s{sCnt}, 4\ns_mov_b32 s57, 7")
        if la2: A("s_cmp_eq_u32 s62, 0\ns_cbranch_scc0 P2_loop\ns_waitcnt vmcnt(16)\ns_barrier")
        A("P2_loop:")
        A(f"v_readlane_b32 s{sW}, v21, s{sCnt}\nv_readlane_b32 s{sH}, v20, s{sCnt}")
        A(f"s_add_u32 s{sSlot}, s{sSlot}, 16384\ns_and_b32 s{sSlot}, s{sSlot}, 0xffff")
        A(f"s_cmp_eq_u32 s{sCnt}, 24\ns_cbranch_scc0 P2_a\nv_mov_b32 v22, v24\nv_mov_b32 v23, v25\nP2_a:")
        if la2: A(f"s_cmp_eq_u32 s{sCnt}, 4\ns_cbranch_scc1 P2_nw\ns_waitcnt vmcnt(8)\nP2_nw:\ns_barrier")
        else: A("s_waitcnt vmcnt(16)\ns_barrier")
        assert l1epi==3 or sched==9
        A(f"s_lshl_b32 s{sT0}, s{sP}, 8\ns_add_u32 s{sT0}, s{sT0}, s{sCnt}\ns_cmp_eq_u32 s{sT0}, {256+l1st+(4 if la2 else 5)}\ns_cbranch_scc0 P2_nf2\nbuffer_store_dword v5, v6, {R4(SWS)}, s59 offen sc1\nP2_nf2:")
        if two:
            A(f"s_cmp_eq_u32 s{sT0}, 14\ns_cbranch_scc0 P2_n2a\ns_load_dwordx4 s[28:31], s[6:7], 0 glc\nP2_n2a:")
            A(f"s_cmp_eq_u32 s{sT0}, 20\ns_cbranch_scc0 P2_n2b\ns_mov_b32 s58, 0\ns_branch P2_h2w\nP2_h2:\ns_load_dwordx4 s[28:31], s[6:7], 0 glc\ns_add_u32 s58, s58, 1\nP2_h2w:\ns_waitcnt lgkmcnt(0)")
            A(f"s_and_b32 s28, s28, s29\ns_and_b32 s30, s30, s31\ns_and_b32 s28, s28, s30\ns_cmp_ge_u32 s58, {SPIN}\ns_cbranch_scc1 P2_n2b\ns_cmp_eq_u32 s28, 0x03030303\ns_cbranch_scc0 P2_h2\nP2_n2b:")
        A(f"s_cmp_eq_u32 s{sCnt}, 9\ns_cbranch_scc0 P2_np\n{PL}\nP2_np:")
        A(f"s_cmp_eq_u32 s{sCnt}, 10\ns_cbranch_scc0 P2_b")
        A("s_waitcnt vmcnt(8)\nv_cmp_gt_u32 vcc, s57, v4\ns_mov_b32 s58, 0\ns_nop 3\ns_cbranch_vccz P2_ok")
        A(f"P2_l2:\n{PL}\ns_add_u32 s58, s58, 1\ns_waitcnt vmcnt(0)\nv_cmp_gt_u32 vcc, s57, v4")
        spin_tail("P2_l2")
        A("P2_ok:\ns_mov_b32 s57, 7")
        A("P2_b:")
        pad()
        issueW(); issueH()
        if pf2==3:
            A("s_cmp_eq_u32 s13, 24\ns_cselect_b32 s8, s14, s8\ns_cselect_b32 s9, s15, s9\ns_cmp_lt_u32 s13, 28\ns_cbranch_scc0 P2_nspf")
            spf()
            A("P2_nspf:")
        A(f"s_add_u32 s{sCnt}, s{sCnt}, 1\ns_cmp_lt_u32 s{sCnt}, 28\ns_cbranch_scc1 P2_loop")
    if not w6 and not wsplit: A(("" if (la2 or tight2) else "s_waitcnt vmcnt(16)\ns_barrier\n")+"s_waitcnt vmcnt(8)\ns_barrier\ns_waitcnt vmcnt(0)\ns_barrier")
    if diag==7: A('s_setprio 0')
    if diag: stamp(5); rstamp(15); flush(16)
    A("s_endpgm")
    A(f".p2align {cal}\nL_cons:")
    ACC=16; F=[(128,144),(172,188)]
    vX0,vX1,vE,vO,vL=4,5,6,7,8; bX0,bE,bL=9,10,11
    sWm,sWf,sIt,sRg,sA,sB,sC=46,47,48,49,58,7,59
    sHA,sH3,sRX2,sClr,sPf=50,51,4,5,6
    vOwn,vT3,vH,vW=232,233,235,[236,237,238,239]
    if pfc and not fast:
        A(f"s_getpc_b64 s[54:55]\nC_pc:\ns_sub_u32 s54, s54, C_pc-{NAME}\ns_subb_u32 s55, s55, 0")
        A(f"v_lshlrev_b32 v3, 7, v0\nv_min_u32 v3, L_end-{NAME}, v3\nglobal_load_dword v255, v3, s[54:55]")
    if pf1==1 and not fast:
        A(f"v_and_b32 v15, 31, v2\nv_lshlrev_b32 v15, 7, v15\ns_lshl_b32 s{sA}, s2, 2\ns_add_u32 s{sA}, s{sA}, s3\ns_lshl_b32 s{sA}, s{sA}, 12")
    if pf1==3:
        A(f"v_and_b32 v15, 7, v2\nv_lshlrev_b32 v15, 7, v15\nv_bfe_u32 v14, v2, 3, 1\nv_lshl_add_u32 v15, v14, 11, v15\ns_lshl_b32 s{sA}, s2, 2\ns_add_u32 s{sA}, s{sA}, s3\ns_lshl_b32 s{sA}, s{sA}, 12\nv_mov_b32 v252, v15")
    if pf1==2:
        A(f"v_lshlrev_b32 v15, 7, v2\ns_lshr_b32 s{sA}, s2, 3\ns_lshl_b32 s{sA}, s{sA}, 2\ns_add_u32 s{sA}, s{sA}, s3\ns_lshl_b32 s{sA}, s{sA}, 13\ns_lshr_b32 s{sB}, s{sXcd}, 1\ns_lshl_b32 s{sB}, s{sB}, 20\ns_add_u32 s{sA}, s{sA}, s{sB}")
    A("s_waitcnt lgkmcnt(0)")
    if pf1==5: srd(A,SX,4,X_BYTES)
    elif pf1 and not (fast and pf1==1):
        srd(A,SX,4,X_BYTES)
        A(f"buffer_load_dword v253, v15, {R4(SX)}, s{sA} offen")
        if pf1==3: srd(A,SW1,6,W_BYTES)
    if diag==5: stamp(6)
    if cprio: A(f"s_setprio {cprio}")
    A(f"s_lshr_b32 s{sWm}, s3, 1\ns_and_b32 s{sWf}, s3, 1")
    A("v_and_b32 v3, 15, v2\nv_lshrrev_b32 v12, 4, v2")
    A("v_lshrrev_b32 v13, 1, v3\nv_xor_b32 v13, v13, v12\nv_lshlrev_b32 v13, 4, v13")
    A(f"s_lshl_b32 s{sA}, s{sWm}, 13\nv_lshlrev_b32 v14, 7, v3\nv_add3_u32 v{bX0}, v13, v14, s{sA}")
    A("v_lshrrev_b32 v13, 1, v12\nv_mul_u32_u24 v13, 7168, v13\nv_bfe_u32 v15, v2, 2, 2\nv_lshl_add_u32 v13, v15, 6, v13\nv_and_b32 v15, 3, v2\nv_lshl_add_u32 v13, v15, 3, v13")
    A(f"v_and_b32 v14, 1, v12\nv_mul_u32_u24 v15, 1056, v14\ns_lshl_b32 s{sA}, s{sWf}, 9\ns_add_u32 s{sA}, s{sA}, {WOFF}\nv_add3_u32 v{bE}, v13, v15, s{sA}")
    A(f"v_mul_u32_u24 v15, 544, v14\nv_add_u32 v13, v13, v15\ns_lshl_b32 s{sA}, s{sWf}, 5\nv_xor_b32 v13, s{sA}, v13\nv_add_u32 v{bL}, {WOFF+6144}, v13")
    VF=248
    if late2:
        for n in range(4): A(f"v_mov_b32 v{VF+n}, {OOB}")
    else: fragoffs(VF)
    A(f"v_add_u32 v{vE}, {2*WST}, v{bE}\nv_mov_b32 v{vX0}, v{bX0}\nv_add_u32 v{vL}, {2*WST}, v{bL}\nv_xor_b32 v{vO}, 32, v{vE}\nv_xor_b32 v{vX1}, 64, v{vX0}")
    srd(A,SO,10,O_BYTES); srd(A,SWS,14,0x10000000); srd(A,SW2,8,W_BYTES)
    if diag==5 or not spub: srd(A,SD,12,256)
    A("v_lshlrev_b32 v3, 4, v2")
    A(f"s_lshr_b32 s56, s{sLid}, 3\ns_lshl_b32 s56, s56, 10\ns_lshl_b32 s{sB}, s{sFt8}, 2\ns_add_u32 s56, s56, s{sB}\ns_add_u32 s56, s56, {F_OFF+fch*128}")
    if lead:
        A(f"s_cmp_eq_u32 s{sFt}, 0\ns_cselect_b32 s{sB}, 16, 0\nv_lshrrev_b32 v13, 3, v2\nv_lshlrev_b32 v13, 10, v13\nv_and_b32 v1, 7, v2\nv_lshl_add_u32 v13, v1, 2, v13")
        A(f"v_mov_b32 v1, {OOB}\nv_cmp_gt_u32 vcc, s{sB}, v2\ns_nop 1\nv_cndmask_b32 v1, v1, v13, vcc")
    else:
        A(f"v_mov_b32 v1, {OOB}\nv_cmp_eq_u32 vcc, 0, v2\ns_nop 1\nv_cndmask_b32 v1, v1, 0, vcc")
    A(f"s_andn2_b32 s57, s{sLid}, 7\ns_add_u32 s57, s57, s{sDt}\ns_lshl_b32 s57, s57, 2\ns_add_u32 s57, s57, s3\ns_mul_i32 s57, s57, {QS}\ns_add_u32 s57, s57, {P_OFF}")
    A0=A
    if late>=0: A=Asm()
    if late2: assert 0<=late<cbase; fragoffs(VF,A,(13,14,15))
    A(f"s_lshl_b32 s52, s{sWm}, 12\nv_add_u32 v{vH}, s52, v3")
    A("v_lshrrev_b32 v13, 5, v2\nv_lshlrev_b32 v13, 11, v13\nv_bfe_u32 v14, v2, 4, 1\nv_mul_u32_u24 v14, 288, v14\nv_add_u32 v13, v13, v14")
    A("v_bfe_u32 v15, v2, 2, 2\nv_lshl_add_u32 v13, v15, 6, v13\nv_and_b32 v15, 3, v2\nv_lshl_add_u32 v13, v15, 3, v13")
    A(f"s_lshl_b32 s52, s{sJ}, 1\ns_add_u32 s52, s52, s{sWf}\ns_lshl_b32 s52, s52, 9\ns_add_u32 s52, s52, 65536\nv_add_u32 v{vW[0]}, s52, v13")
    A(f"v_xor_b32 v{vW[1]}, 32, v{vW[0]}\nv_xor_b32 v{vW[2]}, 0x400, v{vW[0]}\nv_xor_b32 v{vW[3]}, 0x420, v{vW[0]}")
    if l1epi<2: A(f"s_add_u32 s62, s{sFt8}, s3\ns_and_b32 s62, s62, {rmask}\ns_add_u32 s62, s62, {l2st+5}")
    A(f"s_mul_i32 s{sHA}, s{sMt}, 112\ns_mul_i32 s{sH3}, s{sFt}, 7\ns_add_u32 s{sHA}, s{sHA}, s{sH3}\ns_and_b32 s52, s{sFt8}, 1")
    A(f"s_xor_b32 s53, s52, 1\ns_mul_i32 s53, s53, 6\ns_add_u32 s{sH3}, s{sHA}, s53\ns_add_u32 s{sHA}, s{sHA}, s52\ns_add_u32 s{sHA}, s{sHA}, s{sWf}")
    A(f"s_mul_i32 s52, s{sWm}, {QS}\ns_mul_i32 s{sHA}, s{sHA}, {CH}\ns_add_u32 s{sHA}, s{sHA}, s52\ns_mul_i32 s{sH3}, s{sH3}, {CH}\ns_add_u32 s{sH3}, s{sH3}, s52\ns_lshl_b32 s52, s{sWm}, 12")
    A(f"s_lshl_b32 s53, s{sWf}, 13\ns_add_u32 s52, s52, s53\nv_add_u32 v{vOwn}, s52, v3")
    A(f"v_bfe_u32 v13, v2, 4, 1\nv_lshlrev_b32 v13, 3, v13\nv_lshrrev_b32 v14, 5, v2\nv_lshl_add_u32 v13, v14, 1, v13\nv_bfe_u32 v14, v2, 3, 1\ns_lshl_b32 s52, s{sWf}, 2\nv_add3_u32 v13, v13, v14, s52")
    A("v_add_u32 v14, 16, v13\nv_and_b32 v15, 7, v2\nv_lshlrev_b32 v15, 4, v15")
    physline(vT3,13,12,A); physline(vT3+1,14,12,A)
    A(f"v_add_u32 v{vT3}, v{vT3}, v15\nv_add_u32 v{vT3+1}, v{vT3+1}, v15")
    A("s_mov_b32 s52, 0xbfb8aa3b\ns_mov_b32 s53, 0xbfb8aa3b\ns_mov_b32 s54, 1.0\ns_mov_b32 s55, 1.0")
    if late>=0:
        LATE=A.text().rstrip(); A=A0
        A(f"v_mov_b32 v{vT3}, {OOB}\nv_mov_b32 v{vT3+1}, {OOB}")
    if not zc:
        for r in range(112): A(f"v_mov_b32 v{ACC+r}, 0")
    for r in range(4): A(f"v_mov_b32 v{244+r}, -1")
    def hook(it, body, name, reg=None):
        OOL.append(f"{name}:\n{body}\ns_branch {name}_b")
        return [f"s_cmp_eq_u32 s{reg or sIt}, {it}", f"s_cbranch_scc1 {name}\n{name}_b:"]
    def reads1(u, fs):
        X,W=F[fs]
        xs=[f"ds_read_b128 {vr(X+4*i,4)}, v{vX1 if u else vX0} offset:{i*2048}" for i in range(4)]
        ws=[]
        for j in range(7):
            a,o=(vL,0) if j==6 else ((vO if j&1 else vE),(j>>1)*2048)
            for hh in range(2): ws.append(f"ds_read_b64_tr_b16 {vr(W+4*j+2*hh,2)}, v{a} offset:{u*14336+o+hh*256}")
        return ws[0:2]+xs+ws[2:]
    def mf1(fs,zero=False):
        X,W=F[fs]
        return [f"v_mfma_f32_16x16x32_bf16 {vr(ACC+(j*4+i)*4,4)}, {vr(W+4*j,4)}, {vr(X+4*i,4)}, {'0' if zero else vr(ACC+(j*4+i)*4,4)}" for j,i in snake(range(7),4)]
    A(f"s_mov_b32 s{sIt}, 0\ns_mov_b32 s{sRg}, {2*WST}\ns_mov_b32 s{sRX2}, 0")
    if cmask: A(f"s_lshl_b32 s{sClr}, s3, {1 if cmask==7 else 0}\ns_add_u32 s{sClr}, s{sClr}, s{sFt8}\ns_and_b32 s{sClr}, s{sClr}, {cmask}\ns_add_u32 s{sClr}, s{sClr}, {cbase}")
    if two: A(f"s_mov_b32 s0, {1|4|(1<<ack)}")
    elif lead: A(f"s_cmp_eq_u32 s{sFt}, 0\ns_cselect_b32 s0, {ack}, -1")
    PFE=f"\ns_cmp_lt_u32 s3, {pfew}\ns_cselect_b32 s{sPf}, {pfe}, s{sPf}" if pfe>=0 else ""
    if pfb or PFE: A(f"s_mul_i32 s{sPf}, s3, {pfb}\ns_add_u32 s{sPf}, s{sPf}, {pfa}"+PFE)
    if pf2==2: A(f"v_min_u32 v15, 55, v2\nv_lshlrev_b32 v15, 7, v15\ns_lshl_b32 s{sA}, s2, 2\ns_add_u32 s{sA}, s{sA}, s3\ns_mul_i32 s{sA}, s{sA}, 7168\nbuffer_load_dword v255, v15, {R4(SW2)}, s{sA} offen")
    if diag in (2,3,6): A("s_mov_b32 m0, 0")
    clr="\n".join([f"buffer_store_dwordx4 v[244:247], v{VF+i}, {R4(SWS)}, s57 offen sc1" for i in range(4)])
    fclr=f"v_mov_b32 v13, 0\nbuffer_store_dword v13, v1, {R4(SWS)}, s56 offen sc1"
    if sep: assert lead; A(fclr)
    elif not two: clr=clr+"\n"+fclr
    if clr0: A(clr)
    if diag==5: stamp(8)
    WK=""
    if walk:
        WK=f"s_cmp_ge_u32 s3, {walk}\ns_cbranch_scc1 C_walked\n"+("" if (wlate or wnw or wit>=0) else f"s_waitcnt vmcnt({(1 if pf1 and not pcw else 0)+(1 if sep else 0)})\n")+"s_mov_b64 exec, 0\n"
        for w in range(walk-1): WK+=f"s_cmp_eq_u32 s3, {w}\ns_cbranch_scc1 @START{w}@\n"
        WK+=f"s_branch @START{walk-1}@\nC_wret:\ns_mov_b64 exec, -1\nC_walked:"
        if not wlate and wit<0: A(WK)
    if diag==5: stamp(9)
    A("s_barrier")
    stamp(1)
    for l in reads1(0,0): A(l)
    A("s_waitcnt lgkmcnt(0)")
    ex=[f"s_add_u32 s{sRg}, s{sRg}, {WST}\ns_add_u32 s{sRX2}, s{sRX2}, 16384", f"s_cmp_eq_u32 s{sRg}, {WST*3}\ns_cselect_b32 s{sRg}, 0, s{sRg}",
        f"v_add_u32 v{vE}, s{sRg}, v{bE}\ns_and_b32 s{sRX2}, s{sRX2}, 0xffff", f"v_add_u32 v{vX0}, s{sRX2}, v{bX0}", f"v_add_u32 v{vL}, s{sRg}, v{bL}",
        f"v_xor_b32 v{vO}, 32, v{vE}", f"v_xor_b32 v{vX1}, 64, v{vX0}"]
    if zc:
        assert cbase>0
        sstamp()
        for l in interleave(mf1(0,True), reads1(1,1)+ex): A(l)
        A("s_branch C1_in")
    A(f".p2align {al}\nC1_loop:")
    sstamp()
    if not clr0: ex+=hook(f"s{sClr}" if cmask else cbase,clr,"H1_clr")
    for l in interleave(mf1(0), reads1(1,1)+ex): A(l)
    A("C1_in:\ns_waitcnt lgkmcnt(0)\ns_barrier")
    pub=(f"s_cmp_eq_u32 s3, 0\ns_cbranch_scc0 H1_pub_b\ns_and_b32 s{sA}, s{sLid}, 3\ns_lshl_b32 s{sA}, s{sA}, 3\ns_lshl_b32 s{sA}, 1, s{sA}\nv_mov_b32 v13, s{sA}\n"
         f"s_andn2_b32 s{sA}, s{sLid}, 3\nv_lshlrev_b32 v14, 8, v2\nbuffer_atomic_or v13, v14, {R4(SD)}, s{sA} offen")
    if two:
        h=hook(0,f"s_cmp_eq_u32 s{sIt}, 0\ns_cbranch_scc1 H1_fc\ns_waitcnt vmcnt(0)\ns_branch H1_ack_b\nH1_fc:\n{fclr}","H1_ack")
        h[0]=f"s_bitcmp1_b32 s0, s{sIt}"
    elif lead:
        h=hook("s0","s_waitcnt vmcnt(0)","H1_ack")
    else: h=hook(ack,"s_waitcnt vmcnt(0)","H1_ack")
    ex=h+([] if spub else hook(ack+1,pub,"H1_pub"))
    if late>=0: ex+=hook(late,(PAD+"\n" if walk else "")+LATE+("\n"+WK if wlate else ""),"H1_late")
    if xp_n: ex+=hook(xp_it,f"s_sleep {xp_n}","H1_xp")
    if pf1==5: ex+=hook(pfi,f"v_xor_b32 v252, 0x400, v252\ns_nop 0\nbuffer_load_dword v253, v252, {R4(SX)}, 0 offen"+("\n"+WK if wit==pfi else ""),"H1_pf1")
    if pf1==3:
        nl=(16-w1s)*64*56//1024
        ex+=hook(pfi,f"s_lshl_b32 s{sA}, s2, 2\ns_add_u32 s{sA}, s{sA}, s3\ns_mul_i32 s{sB}, s{sA}, {nl*128}\ns_add_u32 s{sB}, s{sB}, {w1s*64*7168}\ns_lshl_b32 s{sA}, s{sA}, 12\n"
                     f"v_min_u32 v15, {nl-1}, v2\nv_lshlrev_b32 v15, 7, v15\nbuffer_load_dword v255, v15, {R4(SW1)}, s{sB} offen\nbuffer_load_dword v253, v252, {R4(SX)}, s{sA} offen offset:1024","H1_pf1")
    if pf2==4:
        ex+=hook(f"s{sPf}",f"s_lshl_b32 s{sA}, s2, 2\ns_add_u32 s{sA}, s{sA}, s3\ns_lshr_b32 s{sB}, s{sA}, 6\ns_and_b32 s60, s{sB}, 1\ns_mul_i32 s{sB}, s{sB}, 7\n"
                     f"s_add_u32 s61, s{sB}, s60\ns_add_u32 s61, s61, 4\ns_lshl_b32 s61, s61, 16\ns_xor_b32 s60, s60, 1\ns_mul_i32 s60, s60, 6\ns_add_u32 s{sB}, s{sB}, s60\ns_lshl_b32 s{sB}, s{sB}, 16\n"
                     f"s_and_b32 s{sA}, s{sA}, 63\ns_lshl_b32 s60, s{sA}, 11\ns_add_u32 s61, s61, s60\ns_lshl_b32 s60, s{sA}, 10\ns_add_u32 s{sB}, s{sB}, s60\n"
                     f"v_and_b32 v15, 15, v2\nv_lshlrev_b32 v15, 7, v15\nv_and_b32 v14, 7, v2\nv_lshlrev_b32 v14, 7, v14\n"
                     f"buffer_load_dword v255, v15, {R4(SW2)}, s61 offen\nbuffer_load_dword v253, v14, {R4(SW2)}, s{sB} offen","H1_pf")
    if pf2==1:
        ex+=hook(f"s{sPf}" if (pfb or PFE) else pfa,f"v_min_u32 v15, 55, v2\nv_lshlrev_b32 v15, 7, v15\ns_lshl_b32 s{sA}, s2, 2\ns_add_u32 s{sA}, s{sA}, s3\ns_mul_i32 s{sA}, s{sA}, 7168\nbuffer_load_dword v255, v15, {R4(SW2)}, s{sA} offen","H1_pf")
    ex+=([PAD] if walk else [])+[f"s_add_u32 s{sIt}, s{sIt}, 1", f"s_cmp_lt_u32 s{sIt}, {14 if ab else 16}"]
    x=interleave(mf1(1), reads1(0,0)+ex)
    if x[-1].startswith("v_mfma"):
        for l in x[:-1]: A(l)
        A("s_waitcnt lgkmcnt(0)"); A(x[-1])
    else:
        for l in x: A(l)
        A("s_waitcnt lgkmcnt(0)")
    A("s_cbranch_scc1 C1_loop")
    if not ab: stamp(2)
    T=216
    PEND=[]
    def silu(a, b, D):
        t=T; src=[a,a+2,b,b+2]
        for r in range(4): A(f"v_pk_mul_f32 {vr(t+2*r,2)}, s[52:53], {vr(src[r],2)}")
        for r in range(8):
            A(f"v_exp_f32 v{t+r}, v{t+r}")
            if r in (1,5) and PEND: A(PEND.pop(0))
        for r in range(4): A(f"v_pk_add_f32 {vr(t+2*r,2)}, s[54:55], {vr(t+2*r,2)}")
        if dense>=2: pad()
        for r in range(8):
            A(f"v_rcp_f32 v{t+r}, v{t+r}")
            if r in (1,5) and PEND: A(PEND.pop(0))
        for r in range(4): A(f"v_pk_mul_f32 {vr(t+2*r,2)}, {vr(t+2*r,2)}, {vr(src[r],2)}")
        for r in range(4): A(f"v_cvt_pk_bf16_f32 v{D+r}, v{t+2*r}, v{t+2*r+1}")
    def later(x):
        if pipe: PEND.append(x)
        else: A(x)
    def flushp():
        while PEND: A(PEND.pop(0))
    def gst(D,i): return f"buffer_store_dwordx4 {vr(D,4)}, v{VF+i}, {R4(SWS)}, s{sHA} offen sc1"
    FLAG="s_nop 0"
    DL=[160,128,144]; D3=224
    if ab:
        assert not pipe and l1epi==3
        def rd1(X,W,st,u,js):
            xs=[f"ds_read_b128 {vr(X+4*i,4)}, v{vX1 if u else vX0} offset:{st*16384+i*2048}" for i in range(4)]
            ws=[]
            for n,j in enumerate(js):
                a,o=(vL,0) if j==6 else ((vO if j&1 else vE),(j>>1)*2048)
                for hh in range(2): ws.append(f"ds_read_b64_tr_b16 {vr(W+4*n+2*hh,2)}, v{a} offset:{st*WST+u*14336+o+hh*256}")
            return ws[0:2]+xs+ws[2:]
        def m1(X,W,js): return [f"v_mfma_f32_16x16x32_bf16 {vr(ACC+(j*4+i)*4,4)}, {vr(W+4*(j-js[0]),4)}, {vr(X+4*i,4)}, {vr(ACC+(j*4+i)*4,4)}" for j,i in snake(js,4)]
        JA=(0,1,2,3); JB=(4,5,6); S0=(128,144); S1=(172,188); S2=(156,200)
        P=[PAD] if walk else []
        for l in interleave(m1(*F[0],JA), rd1(*F[1],0,1,JA)+P): A(l)
        A("s_waitcnt lgkmcnt(0)\ns_barrier")
        for l in interleave(m1(*F[1],JA), rd1(*F[0],1,0,JA)): A(l)
        A("s_waitcnt lgkmcnt(0)")
        for l in interleave(m1(*F[0],JA), rd1(*F[1],1,1,JA)+P): A(l)
        A("s_waitcnt lgkmcnt(0)")
        for l in interleave(m1(*F[1],JA), rd1(*S0,0,0,JB)): A(l)
        stamp(2)
        for L,DB in ((0,156),(1,200)):
            for i in range(4):
                if i%2==0: pad()
                silu(ACC+((2*L)*4+i)*4, ACC+((2*L+1)*4+i)*4, DB+4*i)
                A(gst(DB+4*i,i)); A(f"ds_write_b128 v{vOwn}, {vr(DB+4*i,4)} offset:{L*16384+i*1024}")
                if L==1 and i==1:
                    for l in rd1(*S1,0,1,JB): A(l)
            A(f"s_add_u32 s{sHA}, s{sHA}, {2*CH}")
        stamp(11); A("s_waitcnt vmcnt(4)"); stamp(12)
        A("s_waitcnt lgkmcnt(0)\ns_barrier")
        for l in interleave(m1(*S0,JB), rd1(*S2,1,0,JB)+P): A(l)
        for l in interleave(m1(*S1,JB), rd1(*S0,1,1,JB)): A(l)
        A("s_waitcnt lgkmcnt(0)\ns_barrier")
        for l in m1(*S2,JB)+m1(*S0,JB): A(l)
        A("s_nop 3")
        for i in range(4):
            if i%2==0: pad()
            silu(ACC+(16+i)*4, ACC+(20+i)*4, 128+4*i)
            A(gst(128+4*i,i)); A(f"ds_write_b128 v{vOwn}, {vr(128+4*i,4)} offset:{32768+i*1024}")
    else:
        for L in range(3):
            for i in range(4):
                D=DL[L]+4*i
                if dense or i%padn==0:
                    if epad==1: pad()
                    elif epad==2: pad(); A("s_nop 0")
                    elif epad==3: A("s_nop 0")
                    elif epad==4 and (L==2 or (L==1 and i>=nb)): pad(); A("s_nop 0")
                    elif epad==5 and i==0: pad(); A("s_nop 0")
                silu(ACC+((2*L)*4+i)*4, ACC+((2*L+1)*4+i)*4, D)
                if L==0 or (L==2 and l1epi>=2) or (L==1 and i>=nb and l1epi): later(gst(D,i))
                later(f"ds_write_b128 v{vOwn}, {vr(D,4)} offset:{L*16384+i*1024}")
                if L==0 and i==3: later(f"s_add_u32 s{sHA}, s{sHA}, {2*CH}")
                if L==1 and i==nb-1:
                    flushp()
                    stamp(11); A("s_waitcnt vmcnt(0)"); stamp(12)
                    A(f"s_waitcnt lgkmcnt(0)\ns_barrier")
                    if l1epi:
                        if pipe==2:
                            for k in range(0,nb,2): later(gst(128+4*k,k)+"\n"+gst(132+4*k,k+1))
                        else:
                            for k in range(nb): A(gst(128+4*k,k))
            if L==1 and l1epi: later(f"s_add_u32 s{sHA}, s{sHA}, {2*CH}")
    F2=[(160,176),(192,208)]
    def rdH(X,slot,u): return [f"ds_read_b128 {vr(X+4*i,4)}, v{vH} offset:{slot*16384+u*8192+i*1024}" for i in range(4)]
    DYN=[w6]
    def rdW(W,slot,u,js): return [f"ds_read_b64_tr_b16 {vr(W+4*n+2*hh,2)}, v{vW[j]} offset:{(0 if DYN[0] else slot)*16384+(4*u+2*hh)*2048}" for n,j in enumerate(js) for hh in range(2)]
    WU=[f"v_add_u32 v{vW[0]}, s{sRg}, v240", f"v_xor_b32 v{vW[1]}, 32, v{vW[0]}", f"v_xor_b32 v{vW[2]}, 0x400, v{vW[0]}", f"v_xor_b32 v{vW[3]}, 0x420, v{vW[0]}"] if w6 else []
    WS=[f"s_add_u32 s{sRg}, s{sRg}, 16384", f"s_cmp_eq_u32 s{sRg}, {6*16384}\ns_cselect_b32 s{sRg}, 0, s{sRg}"] if w6 else []
    def reads2(slot,u,fs):
        X,W=F2[fs]; ws=rdW(W,slot,u,range(4)); return ws[0:2]+rdH(X,slot,u)+ws[2:]
    def mfm(X,W,js,zero=False,w0=0):
        return [f"v_mfma_f32_16x16x32_bf16 {vr(ACC+(j*4+i)*4,4)}, {vr(W+4*(j-w0),4)}, {vr(X+4*i,4)}, {'0' if zero else vr(ACC+(j*4+i)*4,4)}" for j,i in snake(js,4)]
    def mf2(fs,zero=False): return mfm(F2[fs][0],F2[fs][1],range(4),zero)
    for l in reads2(0,0,0): A(l)
    for ip in range(2):
        D=D3+4*ip; a=ACC+(24+2*ip)*4
        if ip==0 or dense:
            if epad==1: pad()
            elif epad in (2,4,5): pad(); A("s_nop 0")
            elif epad==3: A("s_nop 0")
        silu(a,a+4,D)
        A(f"s_nop 1\nv_permlane16_swap_b32 v{D}, v{D+2}\nv_permlane16_swap_b32 v{D+1}, v{D+3}")
        if l1epi>=3: later(f"buffer_store_dwordx4 {vr(D,4)}, v{vT3+ip}, {R4(SWS)}, s{sH3} offen sc1")
    flushp()
    A(f"s_mov_b32 s{sIt}, 0")
    if w6: A(f"v_mov_b32 v240, v{vW[0]}\ns_mov_b32 s{sRg}, 16384")
    stamp(3); stamp(4)
    sstamp()
    A("s_waitcnt lgkmcnt(0)")
    for l in interleave(mf2(0,True), reads2(0,1,1)+(WU if w6 else ([PAD] if walk else []))): A(l)
    A("s_branch C2_in")
    dw={}; dws={}
    t3st=[f"buffer_store_dwordx4 {vr(D3+4*ip,4)}, v{vT3+ip}, {R4(SWS)}, s{sH3} offen sc1" for ip in range(2)]
    ADV=f"\ns_add_u32 s{sHA}, s{sHA}, {2*CH}"
    L1s=[gst(128+4*i,i) for i in range(4)]; L2s=[gst(144+4*i,i) for i in range(4)]
    F3=f"s_waitcnt vmcnt(0)\n{FLAG}"; F7=f"v_mov_b32 v12, 7\ns_waitcnt vmcnt(0)\n{FLAG}"
    J="\n".join
    if sched==1:
        dw[(0,1)]=J(L1s[:2]); dw[(1,0)]=J(L1s[2:])+ADV; dw[(1,1)]=J(L2s[:2]); dw[(2,0)]=J(L2s[2:]); dw[(2,1)]=J(t3st); dw[(4,0)]=F7
    elif sched==2:
        dw[(0,1)]=J(L1s[:2]); dw[(1,0)]=J(L1s[2:])+ADV; dw[(3,0)]=F3
        dw[(3,1)]=L2s[0]; dw[(4,0)]=L2s[1]; dw[(4,1)]=L2s[2]; dw[(5,0)]=L2s[3]; dw[(5,1)]=t3st[0]; dw[(6,0)]=t3st[1]; dw[(10,0)]=F7
    elif sched==3:
        dw[(0,1)]=L1s[0]; dw[(1,0)]=L1s[1]; dw[(1,1)]=L1s[2]; dw[(2,0)]=L1s[3]+ADV; dw[(3,1)]=F3
        dw[(4,0)]=L2s[0]; dw[(4,1)]=L2s[1]; dw[(5,0)]=L2s[2]; dw[(5,1)]=L2s[3]; dw[(6,0)]=t3st[0]; dw[(6,1)]=t3st[1]; dw[(11,0)]=F7
    elif sched==4:
        dw[(0,1)]=J(L1s)+ADV; dw[(1,1)]=J(L2s); dw[(2,1)]=J(t3st); dw[(4,0)]=F7
    elif sched==9:
        dw[(1,1)]=F7
    elif sched==5:
        dw[(0,1)]=J(L2s[:2]); dw[(1,0)]=J(L2s[2:]); dw[(1,1)]=J(t3st); dw[(3,1)]=F7
    else:
        if not l1epi:
            dw[(l1st,0)]=gst(128,0)+"\n"+gst(132,1); dw[(l1st,1)]=gst(136,2)+"\n"+gst(140,3)+f"\ns_add_u32 s{sHA}, s{sHA}, {2*CH}"
            dw[(l1st+2,1)]=f"s_waitcnt vmcnt(0)\n{FLAG}"
        else:
            dw[(l1st,1)]="s_waitcnt vmcnt(0)"
        if l1epi>=2:
            if l1epi==2: dw[(l2st,0)]="\n".join(t3st)
            if l1epi==2: dw[(f3,1)]=f"v_mov_b32 v12, 7\ns_waitcnt vmcnt(0)\n{FLAG}"
        elif not stag2:
            dw[(l2st,0)]=gst(144,0)+"\n"+gst(148,1); dw[(l2st+1,0)]=gst(152,2)+"\n"+gst(156,3)+"\nv_mov_b32 v12, 7"
            dw[(l2st+2,0)]="\n".join(t3st)
            dw[(l2st+5,1)]=f"s_waitcnt vmcnt(0)\n{FLAG}"
        else:
            dw[(f3,1)]=f"v_mov_b32 v12, 7\ns_waitcnt vmcnt(0)\n{FLAG}"
            body=[gst(144+4*i,i) for i in range(4)]+t3st
            o="H2_st:\n"
            for n,b in enumerate(body):
                o+=f"s_cmp_eq_u32 s62, {5-n}\ns_cbranch_scc0 H2_st{n}\n{b}\nH2_st{n}:\n"
            o+="s_setpc_b64 s[54:55]"
            OOL.append(o)
    def hooks2(slot,u):
        ex=[]
        for (q,uu),body in sorted(dw.items()):
            if q%4==slot and uu==u: ex+=hook(q//4,body,f"H2_{q}_{uu}")
        if stag2 and l1epi<2 and u==0 and not sched:
            ex+=["s_sub_u32 s62, s62, 1\ns_cmp_lt_u32 s62, 6", f"s_cbranch_scc1 H2_go{slot}\nH2_ns{slot}:"]
            OOL.append(f"H2_go{slot}:\ns_call_b64 s[54:55], H2_st\ns_branch H2_ns{slot}")
        assert len(ex)<=4, (slot,u,ex)
        return ex
    A(f".p2align {al}\nC2_loop:")
    for slot in range(4):
        sstamp()
        for l in interleave(mf2(0), reads2(slot,1,1)+hooks2(slot,0)+(WU if w6 else ([PAD] if walk else []))): A(l)
        if slot==0: A("C2_in:")
        A("s_waitcnt lgkmcnt(0)\ns_barrier")
        ex=WS+hooks2(slot,1)
        if (w6 or dense) and walk and len(ex)<=(1 if slot==3 else 3): ex=ex+[PAD]
        if slot==3: ex+=[f"s_add_u32 s{sIt}, s{sIt}, 1", f"s_cmp_lt_u32 s{sIt}, 6"]
        x=interleave(mf2(1), reads2((slot+1)&3,0,0)+ex)
        if x[-1].startswith("v_mfma"):
            for l in x[:-1]: A(l)
            A("s_waitcnt lgkmcnt(0)"); A(x[-1])
        else:
            for l in x: A(l)
            A("s_waitcnt lgkmcnt(0)")
    A("s_cbranch_scc1 C2_loop")
    stamp(13)
    if diag: A("s_waitcnt lgkmcnt(0)")
    DYN[0]=0
    G=[dict(H=[160,80],W=[184,96]), dict(H=[192,104],W=[208,216])]
    def rdS(g,slot,js,us=(0,1)):
        o=[]
        for u in us:
            w=rdW(G[g]['W'][u],slot,u,js); o+=w[0:2]+rdH(G[g]['H'][u],slot,u)+w[2:]
        return o
    def mfS(g,js): return mfm(G[g]['H'][0],G[g]['W'][0],js,w0=js[0])+mfm(G[g]['H'][1],G[g]['W'][1],js,w0=js[0])
    for l in rdS(0,0,(2,3),(1,)): A(l)
    pad()
    A("s_barrier")
    m=mfS(0,(2,3)); r=rdS(1,1,(2,3))
    x=interleave(m[:8], r[:8])
    for l in x: A(l)
    A("s_waitcnt lgkmcnt(8)")
    for l in interleave(m[8:], r[8:]): A(l)
    for q in (1,2):
        if q==2 or dense: pad()
        A(f"s_waitcnt lgkmcnt({8 if cw else 0})\ns_barrier")
        x=interleave(mfS(q&1,(2,3)), rdS((q+1)&1,q+1,(2,3)))
        if cw: x.insert(16,"s_waitcnt lgkmcnt(8)"+("\n"+PAD if dense and walk else ""))
        for l in x: A(l)
    A(f"s_mul_i32 s52, s{sJ}, {-2*32*QS}\ns_add_u32 s52, s52, {32*QS}\ns_add_u32 s52, s52, s57\ns_mov_b32 s53, -2")
    sn=[]
    for i in range(4):
        D=128+4*i; t=[]
        for n,j in enumerate((2,3)):
            S=ACC+(j*4+i)*4
            t+= [f"v_cvt_pk_bf16_f32 v{D+2*n}, v{S}, v{S+1}", f"v_cvt_pk_bf16_f32 v{D+2*n+1}, v{S+2}, v{S+3}"]
        t+=[f"v_min_u32 v{D+r}, s53, v{D+r}" for r in range(4)]
        t.append(f"buffer_store_dwordx4 {vr(D,4)}, v{VF+i}, {R4(SWS)}, s52 offen sc1")
        sn.append(t)
    A("s_waitcnt lgkmcnt(0)")
    if wsplit: assert esend; A("s_barrier")
    if esend:
        g=G[1]; r=rdS(0,0,(0,1)); k=0
        for i in range(4):
            for u,j in ((0,2),(0,3),(1,3),(1,2)):
                A(f"v_mfma_f32_16x16x32_bf16 {vr(ACC+(j*4+i)*4,4)}, {vr(g['W'][u]+4*(j-2),4)}, {vr(g['H'][u]+4*i,4)}, {vr(ACC+(j*4+i)*4,4)}")
                A(r[k]); k+=1
            if dense and i in (0,2): pad()
            if i>=1:
                for l in sn[i-1]: A(l)
        stamp(5)
        pad()
        A("s_waitcnt lgkmcnt(0)")
        if wsplit: A("s_barrier")
        m=mfS(0,(0,1)); r=rdS(1,1,(0,1))
        for n,mm_ in enumerate(m):
            A(mm_); A(r[n])
            if n==2:
                for l in sn[3]: A(l)
    else:
        for l in interleave(mfS(1,(2,3)), rdS(0,0,(0,1))): A(l)
        stamp(5)
        pad()
        snd=sum(sn,[])
        A("s_waitcnt lgkmcnt(0)")
        m=mfS(0,(0,1)); r=rdS(1,1,(0,1))
        k=0
        for n,mm_ in enumerate(m):
            A(mm_); A(r[n])
            if packfirst and n==1:
                A("s_nop 3")
                while k<len(snd): A(snd[k]); k+=1
            if n>=3:
                for _ in range(3):
                    if k<len(snd): A(snd[k]); k+=1
        while k<len(snd): A(snd[k]); k+=1
    if diag!=5 and not cw: stamp(6)
    RB=144 if dual else 80; RB2=224
    def LDs(b): return [f"buffer_load_dwordx4 {vr(b+4*i,4)}, v{VF+i}, {R4(SWS)}, s57 offen sc1" for i in range(4)]
    LD=LDs(RB)
    for q in (1,2):
        pad()
        A(f"s_waitcnt lgkmcnt({8 if cw else 0})")
        x=interleave(mfS(q&1,(0,1)), rdS((q+1)&1,q+1,(0,1)))
        if cw: assert not dual; x.insert(16,"s_waitcnt lgkmcnt(8)"+("\n"+PAD if dense and walk else ""))
        if dual==q:
            for n in range(4): x.insert(2+3*n+n,LD[n])
        for l in x: A(l)
    A(f"s_waitcnt lgkmcnt({8 if cw else 0})")
    adr=["v_and_b32 v13, 15, v2","v_lshlrev_b32 v13, 11, v13","v_bfe_u32 v14, v2, 4, 1","v_lshl_add_u32 v13, v14, 5, v13","v_lshrrev_b32 v14, 5, v2","v_lshl_add_u32 v13, v14, 4, v13",
         f"s_lshl_b32 s{sC}, s{sMt}, 1\ns_add_u32 s{sC}, s{sC}, s{sWm}", f"s_lshl_b32 s{sC}, s{sC}, 17\ns_lshl_b32 s52, s{sDt}, 8", f"s_add_u32 s{sC}, s{sC}, s52\ns_lshl_b32 s52, s{sJ}, 7",
         f"s_add_u32 s{sC}, s{sC}, s52\ns_lshl_b32 s52, s{sWf}, 6", f"s_add_u32 s{sC}, s{sC}, s52\ns_mov_b32 s58, 0"]
    if otr:
        adr=["v_bfe_u32 v14, v2, 4, 1\nv_lshrrev_b32 v13, 5, v2","v_lshl_add_u32 v13, v14, 1, v13\nv_bfe_u32 v14, v2, 1, 2","v_xor_b32 v13, v13, v14\nv_and_b32 v14, 15, v2",
             f"v_lshlrev_b32 v14, 6, v14\ns_lshl_b32 s52, s3, 12","v_lshl_add_u32 v14, v13, 4, v14\ns_add_u32 s52, s52, 131072","v_add_u32 v240, s52, v14\nv_add_u32 v241, s52, v3",
             "v_bfe_u32 v14, v2, 3, 2\nv_and_b32 v13, 3, v2","v_xor_b32 v13, v13, v14\nv_lshrrev_b32 v14, 2, v2","v_lshlrev_b32 v14, 11, v14\nv_lshl_add_u32 v13, v13, 4, v14",
             f"s_lshl_b32 s{sC}, s{sMt}, 1\ns_add_u32 s{sC}, s{sC}, s{sWm}\ns_lshl_b32 s{sC}, s{sC}, 17\ns_lshl_b32 s52, s{sDt}, 8\ns_add_u32 s{sC}, s{sC}, s52",
             f"s_lshl_b32 s52, s{sJ}, 7\ns_add_u32 s{sC}, s{sC}, s52\ns_lshl_b32 s52, s{sWf}, 6\ns_add_u32 s{sC}, s{sC}, s52\ns_mov_b32 s58, 0"]
    def chk():
        A(f"v_max3_u32 v14, v{RB}, v{RB+1}, v{RB+2}")
        for r in range(3,15,2): A(f"v_max3_u32 v14, v14, v{RB+r}, v{RB+r+1}")
        A(f"v_max_u32 v14, v14, v{RB+15}\nv_cmp_eq_u32 vcc, -1, v14")
    if dual:
        for l in interleave(mfS(1,(0,1)), LDs(80)+adr): A(l)
        A("s_waitcnt vmcnt(4)"); chk()
        A("s_nop 4\ns_cbranch_vccz C3_ok\ns_waitcnt vmcnt(0)")
        for r in range(16): A(f"v_mov_b32 v{RB+r}, v{80+r}")
    else:
        x=interleave(mfS(1,(0,1)), adr[:ldpos]+LD+adr[ldpos:])
        if cw: x.insert(16,"s_waitcnt lgkmcnt(0)"+("\n"+PAD if dense and walk else ""))
        for l in x: A(l)
    if diag and diag!=5: stamp(8)
    pad()
    A("s_branch C3_chk")
    A("C3_poll:")
    for l in LD: A(l)
    A("C3_chk:\ns_add_u32 s58, s58, 1\ns_waitcnt vmcnt(0)")
    chk()
    spin_tail("C3_poll")
    A("C3_ok:")
    stamp(7)
    if diag: A("s_waitcnt lgkmcnt(0)")
    if diag==4: A("s_mov_b32 s86, s58")
    A("s_mov_b32 s53, 0xffff0000")
    for i in range(4):
        D=128+4*i
        for n in range(2):
            S=ACC+(n*4+i)*4
            for h in range(2):
                Rr=RB+4*i+2*n+h
                A(f"v_lshlrev_b32 v{T}, 16, v{Rr}\nv_and_b32 v{T+1}, s53, v{Rr}\nv_pk_add_f32 {vr(S+2*h,2)}, {vr(S+2*h,2)}, {vr(T,2)}")
                A(f"v_cvt_pk_bf16_f32 v{D+2*n+h}, v{S+2*h}, v{S+2*h+1}")
        A(f"s_nop 1\nv_permlane16_swap_b32 v{D}, v{D+2}\nv_permlane16_swap_b32 v{D+1}, v{D+3}")
        if otr:
            def ost(k,n): A(f"s_waitcnt lgkmcnt({n})\nbuffer_store_dwordx4 {vr(144+4*k,4)}, v13, {R4(SO)}, s{sC} offen {outaux}"+(f"\ns_add_u32 s{sC}, s{sC}, 0x8000" if k<3 else ""))
            A(f"ds_write_b128 v240, {vr(D,4)} offset:{i*1024}\nds_read_b128 {vr(144+4*i,4)}, v241 offset:{i*1024}")
            if i>0: ost(i-1,2)
            if i==3: ost(3,0)
        else:
            A(f"buffer_store_dwordx4 {vr(D,4)}, v13, {R4(SO)}, s{sC} offen {outaux}")
            if i<3: A(f"s_add_u32 s{sC}, s{sC}, 0x8000")
        if i==0 or (dense and i<3): pad()
    if diag:
        if diag!=5: stamp(9)
        A("s_waitcnt vmcnt(0)"); stamp(10); rstamp(15); flush(16,True)
    A("s_endpgm")
    if walk: A(PAD+"\ns_endpgm")
    for b in OOL: A(b)
    A("L_end:\ns_endpgm")
    A(f""".section .rodata,"a"
.p2align 6
.amdhsa_kernel {NAME}
  .amdhsa_next_free_vgpr 256
  .amdhsa_next_free_sgpr 96
  .amdhsa_accum_offset 256
  .amdhsa_group_segment_fixed_size 0
  .amdhsa_kernarg_size 48
  .amdhsa_user_sgpr_count 2
  .amdhsa_user_sgpr_kernarg_segment_ptr 1
  .amdhsa_system_sgpr_workgroup_id_x 1
.end_amdhsa_kernel""")
    txt=A.text()
    if walk:
        n=txt.count("@PAD@"); parts=txt.split("@PAD@")
        starts=[round(w*n/walk) for w in range(walk)]
        out=parts[0]
        for k in range(n):
            nxt="C_wret" if (k+1==n or k+1 in starts) else f"PAD{k+1}"
            out+=f"PAD{k}:\ns_cbranch_execz {nxt}"+parts[k+1]
        for w in range(walk): out=out.replace(f"@START{w}@",f"PAD{starts[w]}")
        txt=out
    return txt

if __name__=="__main__":
    import inspect
    p=argparse.ArgumentParser(); p.add_argument("-o")
    for k,v in inspect.signature(build).parameters.items():
        p.add_argument("--"+k,type=type(v.default),default=v.default)
    a=vars(p.parse_args()); o=a.pop("o")
    open(o,"w").write(build(**a))
```
